```python
import torch

def _softmax(x, axis=-1):
    return torch.softmax(x, dim=axis)
def _gelu(x):
    return torch.nn.functional.gelu(x, approximate="tanh")
def _silu(x):
    return torch.nn.functional.silu(x)
def _sigmoid(x):
    return torch.sigmoid(x)
def _layernorm(x, axis=-1, eps=1e-5):
    m = x.mean(dim=axis, keepdim=True)
    v = x.var(dim=axis, keepdim=True, unbiased=False)
    return (x - m) / torch.sqrt(v + eps)
def _scatter_add(tgt, idx, src, axis=0):
    return tgt.clone().index_add_(axis, idx, src)
def _segment_sum(src, seg, n):
    out = torch.zeros((n,) + src.shape[1:], dtype=src.dtype)
    return out.index_add_(0, seg, src)
def _pad(x, pw):
    flat = tuple(v for pair in reversed(pw) for v in pair)
    return torch.nn.functional.pad(x, flat)

kernel_name = 'sequential_preLN__ssm_conv_s4d__mixer_token_mlp__prompt'

def setup_inputs():

    _w = (lambda a: (lambda t: t.to(torch.bfloat16) if t.is_floating_point() else t)(torch.as_tensor(a)))
    def _A_setup():
        Bsz, L, D, N = 1, 2048, 448, 256
        return {
            "u": _w((lambda *s: torch.randn(*s, dtype=torch.bfloat16) * 0.05)(Bsz, L, D)),
            "log_A_real": _w((lambda *s: torch.randn(*s, dtype=torch.bfloat16) * 6.4)(D, N) * 0.5),
            "A_imag": _w((lambda *s: torch.randn(*s, dtype=torch.bfloat16) * 0.05)(D, N) * 3.14),
            "C_real": _w((lambda *s: torch.randn(*s, dtype=torch.bfloat16) * 0.05)(D, N) / N ** 0.5),
            "C_imag": _w((lambda *s: torch.randn(*s, dtype=torch.bfloat16) * 0.05)(D, N) / N ** 0.5),
            "log_dt": _w((lambda *s: torch.randn(*s, dtype=torch.bfloat16) * 0.05)(D) * 0.5 - 4.0),
            "D_skip": _w((lambda *s: torch.randn(*s, dtype=torch.bfloat16) * 0.05)(D)),
        }
    _A_in = _A_setup()

    def _B_setup():
        B, S, D, F = 1, 2048, 448, 1792
        return {
            "x": _w((lambda *s: torch.randn(*s, dtype=torch.bfloat16) * 0.05)(B, S, D)),
            "w1": _w((lambda *s: torch.randn(*s, dtype=torch.bfloat16) * 0.4)(S, F) * (S ** -0.5)),
            "b1": _w((lambda *s: torch.randn(*s, dtype=torch.bfloat16) * 12.8)(F) * 0.02),
            "w2": _w((lambda *s: torch.randn(*s, dtype=torch.bfloat16) * 0.2)(F, S) * (F ** -0.5)),
            "b2": _w((lambda *s: torch.randn(*s, dtype=torch.bfloat16) * 3.2)(S) * 0.02),
        }
    _B_in = _B_setup()

    return {
        "A_u": _A_in["u"],
        "A_log_A_real": _A_in["log_A_real"],
        "A_A_imag": _A_in["A_imag"],
        "A_C_real": _A_in["C_real"],
        "A_C_imag": _A_in["C_imag"],
        "A_log_dt": _A_in["log_dt"],
        "A_D_skip": _A_in["D_skip"],
        "B_x": _B_in["x"],
        "B_w1": _B_in["w1"],
        "B_b1": _B_in["b1"],
        "B_w2": _B_in["w2"],
        "B_b2": _B_in["b2"],
    }

def reference(A_u, A_log_A_real, A_A_imag, A_C_real, A_C_imag, A_log_dt, A_D_skip, B_x, B_w1, B_b1, B_w2, B_b2):
    def _A_ref(u, log_A_real, A_imag, C_real, C_imag, log_dt, D_skip):
        L = u.shape[1]
        dt = torch.exp(log_dt)
        A = -torch.exp(log_A_real) + 1j * A_imag
        C = (C_real + 1j * C_imag) * dt[:, None]
        pos = (lambda x, dt: x.to(dt))(torch.arange(L), log_dt.dtype)
        P = torch.exp((A * dt[:, None])[:, :, None] * pos[None, None, :])
        K = 2.0 * torch.einsum("dn,dnl->dl", C, P).real
        L2 = 2 * L
        u_t = (lambda x, *d: x.permute(*d))(u, 0, 2, 1)
        Kf = (lambda x, *a, **k: torch.fft.rfft(x.float(), *a, **k))(K, L2)
        Uf = (lambda x, *a, **k: torch.fft.rfft(x.float(), *a, **k))(u_t, L2)
        y = (lambda x, *a, **k: torch.fft.irfft(x, *a, **k).to(torch.bfloat16))(Uf * Kf[None, :, :], L2)[:, :, :L]
        y = (lambda x, *d: x.permute(*d))(y, 0, 2, 1)
        return y + u * D_skip[None, None, :]

    def _B_ref(x, w1, b1, w2, b2):
        B, S, D = x.shape
        h = _layernorm(x, axis=-1)
        u = torch.einsum("bsd,sf->bdf", h, w1) + b1
        u = _gelu(u)
        y = torch.einsum("bdf,fs->bds", u, w2) + b2
        return (lambda x, *d: x.permute(*d))(y, 0, 2, 1)

    x = A_u
    h = x + _A_ref(_layernorm(x, axis=-1), A_log_A_real, A_A_imag, A_C_real, A_C_imag, A_log_dt, A_D_skip)
    h2 = h + _B_ref(_layernorm(h, axis=-1), B_w1, B_b1, B_w2, B_b2)
    return h2
```

```python
import re

REG_RE = re.compile(r'^(-|abs\()?\|?([vas])(?:\[(\d+):(\d+)\]|(\d+))\|?\)?$')


def parse_reg(tok):
    tok = tok.strip()
    if tok in ('vcc',):
        return [('s', 'vcc')]
    if tok in ('vcc_lo', 'vcc_hi'):
        return [('s', 'vcc')]
    if tok in ('exec', 'exec_lo', 'exec_hi'):
        return [('s', 'exec')]
    if tok == 'm0':
        return [('s', 'm0')]
    m = REG_RE.match(tok)
    if not m:
        return []
    k = m.group(2)
    if m.group(3) is not None:
        return [(k, i) for i in range(int(m.group(3)), int(m.group(4)) + 1)]
    return [(k, int(m.group(5)))]


TRANS = ('v_exp_f32', 'v_log_f32', 'v_rcp_f32', 'v_rsq_f32', 'v_sqrt_f32', 'v_sin_f32', 'v_cos_f32',
         'v_rcp_iflag_f32', 'v_exp_f16', 'v_rcp_f16')


class Ins:
    __slots__ = ('text', 'op', 'rd', 'wr', 'kind', 'ops', 'store_data', 'dpp', 'srcc', 'ab', 'passes', 'is_trans',
                 'label', 'target', 'lds_dma', 'sdwa_dst')

    def __init__(self, text):
        self.text = text
        self.label = None
        self.target = None
        self.rd = []
        self.wr = []
        self.store_data = []
        self.dpp = False
        self.srcc = []
        self.ab = []
        self.passes = 0
        self.is_trans = False
        self.lds_dma = False
        self.sdwa_dst = False
        t = text.split(';')[0].split('//')[0].strip()
        if not t:
            self.kind = 'nop0'
            self.op = ''
            return
        if t.endswith(':'):
            self.kind = 'label'
            self.label = t[:-1]
            self.op = ''
            return
        if t.startswith('.'):
            self.kind = 'dir'
            self.op = t.split()[0]
            return
        sp = t.split(None, 1)
        op = sp[0]
        self.op = op
        rest = sp[1] if len(sp) > 1 else ''
        ops = []
        depth = 0
        cur = ''
        for ch in rest:
            if ch == '[':
                depth += 1
            if ch == ']':
                depth -= 1
            if ch == ',' and depth == 0:
                ops.append(cur.strip())
                cur = ''
            else:
                cur += ch
        if cur.strip():
            ops.append(cur.strip())
        mods = ''
        if ops:
            last = ops[-1]
            depth = 0
            cut = None
            for i, ch in enumerate(last):
                if ch == '[':
                    depth += 1
                if ch == ']':
                    depth -= 1
                if ch in ' \t' and depth == 0:
                    cut = i
                    break
            if cut is not None:
                mods = last[cut:]
                ops[-1] = last[:cut]
        self.ops = ops
        R = [parse_reg(o) for o in ops]
        flat = lambda L: [x for l in L for x in l]
        base = op.replace('_e32', '').replace('_e64', '').replace('_dpp', '').replace('_sdwa', '')
        if op.startswith('v_mfma') or op.startswith('v_smfmac'):
            self.kind = 'mfma'
            self.wr = R[0]
            self.ab = R[1] + R[2]
            self.srcc = R[3] if len(R) > 3 else []
            self.rd = self.ab + self.srcc
            if '16x16x32' in op or '16x16x16' in op:
                self.passes = 4
            elif '32x32x16' in op or '32x32x8' in op:
                self.passes = 8
            else:
                self.passes = 16
        elif op.startswith('v_'):
            self.kind = 'valu'
            self.is_trans = base in TRANS
            self.dpp = ('_dpp' in op) or any(k in mods for k in ('row_', 'quad_perm', 'wave_'))
            if '_sdwa' in op and 'dst_sel' in mods and 'dst_sel:DWORD' not in mods:
                self.sdwa_dst = True
            if base.startswith('v_cmpx'):
                self.wr = R[0] + [('s', 'exec')]
                self.rd = flat(R[1:])
            elif base.startswith('v_cmp'):
                self.wr = R[0]
                self.rd = flat(R[1:])
            elif base in ('v_permlane32_swap_b32', 'v_permlane16_swap_b32'):
                self.wr = R[0] + R[1]
                self.rd = R[0] + R[1]
                self.kind = 'permlane'
            elif base in ('v_readlane_b32', 'v_readfirstlane_b32'):
                self.wr = R[0]
                self.rd = flat(R[1:])
                self.kind = 'readlane'
            elif base == 'v_writelane_b32':
                self.wr = R[0]
                self.rd = flat(R)
            elif base in ('v_add_co_u32', 'v_sub_co_u32', 'v_subrev_co_u32', 'v_addc_co_u32', 'v_subb_co_u32'):
                self.wr = R[0] + R[1]
                self.rd = flat(R[2:])
            elif base in ('v_fmac_f32', 'v_dot2c_f32_bf16', 'v_pk_fmac_f16', 'v_mac_f32'):
                self.wr = R[0]
                self.rd = flat(R)
            elif base == 'v_cndmask_b32':
                self.wr = R[0]
                self.rd = flat(R[1:])
                if len(R) < 4:
                    self.rd += [('s', 'vcc')]
            else:
                self.wr = R[0]
                self.rd = flat(R[1:])
                if self.dpp or self.sdwa_dst:
                    self.rd += R[0]
        elif op.startswith('ds_'):
            self.kind = 'ds'
            if op.startswith('ds_read') or op.startswith('ds_bpermute') or op.startswith('ds_permute') or op.startswith('ds_swizzle'):
                self.wr = R[0]
                self.rd = flat(R[1:])
                if 'd16' in op:
                    self.rd += R[0]
            else:
                self.rd = flat(R)
                self.store_data = flat(R[1:])
        elif op.startswith('buffer_') or op.startswith('global_') or op.startswith('flat_'):
            self.kind = 'vmem'
            words = mods.split()
            if op in ('buffer_wbl2', 'buffer_inv'):
                pass
            elif 'lds' in words or '_lds_' in op:
                self.lds_dma = True
                self.rd = flat(R) + [('s', 'm0')]
            elif op.startswith('buffer_load') :
                self.wr = R[0]
                self.rd = flat(R[1:])
                if 'd16' in op:
                    self.rd += R[0]
            elif op.startswith('global_load') or op.startswith('flat_load'):
                self.wr = R[0]
                self.rd = flat(R[1:])
                if 'd16' in op:
                    self.rd += R[0]
            elif op.startswith('buffer_store'):
                self.rd = flat(R)
                self.store_data = R[0]
            elif op.startswith('global_store') or op.startswith('flat_store'):
                self.rd = flat(R)
                self.store_data = R[1]
            elif 'atomic' in op:
                if 'sc0' in words:
                    self.wr = R[0]
                    self.rd = flat(R[1:]) if op.startswith('global') else flat(R)
                else:
                    self.rd = flat(R)
            else:
                raise ValueError('unknown vmem ' + text)
        elif op.startswith('s_'):
            self.kind = 'salu'
            if op in ('s_branch',) or op.startswith('s_cbranch'):
                self.kind = 'branch'
                self.target = ops[0]
                if 'vcc' in op:
                    self.rd = [('s', 'vcc')]
                if 'exec' in op:
                    self.rd = [('s', 'exec')]
            elif op == 's_nop':
                self.kind = 'snop'
            elif op in ('s_waitcnt', 's_barrier', 's_endpgm', 's_sleep', 's_setprio'):
                self.kind = 'sctl'
            elif op.startswith('s_cmp') or op.startswith('s_bitcmp'):
                self.rd = flat(R)
            elif op.startswith('s_load') or op.startswith('s_buffer_load') or op in ('s_memtime', 's_memrealtime'):
                self.kind = 'smem'
                self.wr = R[0]
                self.rd = flat(R[1:])
            else:
                self.wr = R[0] if R else []
                self.rd = flat(R[1:])
                if 'saveexec' in op:
                    self.wr = R[0] + [('s', 'exec')]
                    self.rd = flat(R[1:]) + [('s', 'exec')]
        else:
            raise ValueError('unknown instruction: ' + text)

    def states(self):
        if self.kind in ('label', 'nop0', 'dir'):
            return 0
        if self.kind == 'snop':
            return int(self.ops[0], 0) + 1
        return 1


def isv(r):
    return r[0] in ('v', 'a')


def need_wait(p, c):
    n = 0
    pw = set(p.wr)
    if not pw and not p.store_data and p.kind != 'mfma':
        return 0
    crd = set(c.rd)
    cwr = set(c.wr)
    valu_p = p.kind in ('valu', 'permlane', 'readlane')
    valu_c = c.kind in ('valu', 'permlane', 'readlane')
    if valu_p:
        vw = {r for r in pw if isv(r)}
        sw = {r for r in pw if r[0] == 's'}
        if c.kind == 'mfma' and vw & crd:
            n = max(n, 2)
        if c.kind == 'mfma' and ('s', 'exec') in sw:
            n = max(n, 4)
        if valu_c and c.dpp and (vw & crd):
            n = max(n, 2)
        if valu_c and c.dpp and ('s', 'exec') in sw:
            n = max(n, 5)
        if c.kind == 'permlane' and (vw & crd):
            n = max(n, 2)
        if c.kind == 'permlane' and ('s', 'exec') in sw:
            n = max(n, 4)
        if c.kind == 'readlane' and (vw & crd):
            n = max(n, 1)
        if c.kind == 'readlane' and ('s', 'exec') in sw:
            n = max(n, 4)
        if p.is_trans and valu_c and (vw & crd):
            n = max(n, 1)
        if p.is_trans and c.kind == 'mfma' and (vw & crd):
            n = max(n, 2)
        if p.sdwa_dst and valu_c and (vw & (crd | cwr)):
            n = max(n, 1)
        if sw:
            if c.kind == 'vmem' and (sw & crd):
                n = max(n, 5)
            if valu_c and (sw & crd):
                if c.kind == 'readlane' or c.op.startswith('v_writelane'):
                    n = max(n, 4)
                else:
                    n = max(n, 2)
            if valu_c and ('s', 'exec') in sw and not p.op.startswith('v_cmpx'):
                n = max(n, 2)
            if c.kind in ('salu', 'branch', 'smem') and (sw & crd):
                n = max(n, 4)
    if p.kind == 'salu':
        if ('s', 'm0') in pw and (c.lds_dma or c.op.startswith('s_sendmsg')):
            n = max(n, 1)
    if p.kind == 'mfma':
        d = pw
        P = p.passes
        dist_valu = {2: 5, 4: 8, 8: 12, 16: 20}[P]
        if c.kind == 'mfma':
            cs = set(c.srcc)
            if d & cs:
                if cs == d and c.passes == P:
                    n = max(n, 2 if P == 2 else 0)
                else:
                    n = max(n, {2: 4, 4: 6, 8: 10, 16: 18}[P])
            if d & set(c.ab):
                n = max(n, dist_valu)
            if (d & cwr) and not (d & cs):
                n = max(n, dist_valu)
        elif valu_c:
            if d & (crd | cwr):
                n = max(n, dist_valu)
        elif c.kind in ('vmem', 'ds'):
            if d & (crd | cwr):
                n = max(n, dist_valu)
        if valu_c and (set(p.srcc) & cwr):
            n = max(n, {2: 1, 4: 3, 8: 7, 16: 15}[P])
    if p.store_data and p.kind == 'vmem' and len(p.store_data) >= 3:
        if valu_c and (set(p.store_data) & cwr):
            n = max(n, 2)
        elif c.kind in ('vmem', 'ds', 'mfma') and (set(p.store_data) & cwr):
            n = max(n, 1)
    if p.store_data and p.kind == 'ds' and len(p.store_data) >= 3:
        if valu_c and (set(p.store_data) & cwr):
            n = max(n, 1)
    return n


MAXLOOK = 22


class Prog:
    def __init__(self):
        self.items = []
        self.nlab = 0

    def e(self, text):
        for line in text.split('\n'):
            line = line.strip()
            if line:
                self.items.append(Ins(line))

    def raw(self, text):
        i = Ins('')
        i.text = text
        i.kind = 'dir'
        self.items.append(i)

    def lab(self, prefix='L'):
        self.nlab += 1
        return '%s_%d' % (prefix, self.nlab)

    def insert_nops(self):
        changed = True
        total = 0
        while changed:
            changed = False
            items = self.items
            labels = {it.label: i for i, it in enumerate(items) if it.kind == 'label'}
            br_to = {}
            for i, it in enumerate(items):
                if it.kind == 'branch' and it.target in labels:
                    br_to.setdefault(labels[it.target], []).append(i)
            out = []
            for i, c in enumerate(items):
                if c.kind in ('label', 'nop0', 'dir', 'snop'):
                    continue
                need = self._need(i, items, br_to)
                if need > 0:
                    k = need
                    new = []
                    while k > 0:
                        m = min(k, 16)
                        new.append(Ins('s_nop %d' % (m - 1)))
                        k -= m
                    self.items = items[:i] + new + items[i:]
                    total += need
                    changed = True
                    break
        return total

    def _need(self, i, items, br_to):
        c = items[i]
        worst = 0
        stack = [(i - 1, 0)]
        seen = set()
        while stack:
            j, dist = stack.pop()
            while j >= 0 and dist < MAXLOOK:
                it = items[j]
                if (j, dist) in seen:
                    break
                seen.add((j, dist))
                if it.kind == 'label':
                    for b in br_to.get(j, []):
                        stack.append((b, dist))
                    j -= 1
                    continue
                if it.kind in ('nop0', 'dir'):
                    j -= 1
                    continue
                if it.op in ('s_branch', 's_endpgm') and j != i - 1 or (it.op in ('s_endpgm',)):
                    if it.op == 's_endpgm':
                        break
                w = need_wait(it, c)
                if w > dist:
                    worst = max(worst, w - dist)
                dist += it.states()
                j -= 1
        return worst

    def fast_insert_nops(self):
        total = 0
        while True:
            items = self.items
            labels = {it.label: i for i, it in enumerate(items) if it.kind == 'label'}
            br_to = {}
            for i, it in enumerate(items):
                if it.kind == 'branch' and it.target in labels:
                    br_to.setdefault(labels[it.target], []).append(i)
            ins = {}
            out = []
            added = 0
            any_added = False
            for i, c in enumerate(items):
                if c.kind not in ('label', 'nop0', 'dir', 'snop'):
                    need = self._need(i, items, br_to)
                    if need > 0 and not any_added:
                        ins[i] = need
                        any_added = True
                        last = i
                    elif need > 0 and i - last > 2 * MAXLOOK:
                        ins[i] = need
                        last = i
            if not ins:
                return total
            for i, c in enumerate(items):
                if i in ins:
                    k = ins[i]
                    total += k
                    while k > 0:
                        m = min(k, 16)
                        out.append(Ins('s_nop %d' % (m - 1)))
                        k -= m
                out.append(c)
            self.items = out

    def text(self):
        lines = []
        for it in self.items:
            if it.kind == 'label':
                lines.append(it.text)
            elif it.kind == 'dir':
                lines.append(it.text)
            else:
                lines.append('    ' + it.text)
        return '\n'.join(lines) + '\n'

    def count(self):
        return sum(1 for it in self.items if it.kind not in ('label', 'nop0', 'dir'))
```

```python
import sys, struct
import numpy as np
from asmlib import Prog

NAME = 'sequential_preLN__ssm_conv_s4d__mixer_token_mlp__prompt'

L, D, NM, F = 2048, 448, 256, 1792
XBYTES = L * D * 2
PBYTES = D * NM * 2
W1BYTES = L * F * 2
W2BYTES = F * L * 2

WS_STATS = 0x0
WS_AOUT = 0x10000
WS_H = 0x200000
WS_HH = 0x400000
WS_G = 0x600000
WS_DBG = 0x800000
WS_USED = 0x1000000
OOB = 0x40000000

L_RED0 = 0
L_RED1 = 256
L_SIG = 512
L_KT = 640
KTCH = 1600
L_U = L_KT + 2 * KTCH
UCH = 4608
L_KC = L_U + 2 * UCH
KCOPY = 4160
KCH = 8 * KCOPY
L_SCR = L_KC + 2 * KCH
SROW = 272
SCRW = 64 * SROW
LDS_BYTES = 160 * 1024
L_WRING = 0
L_PART = 65536
PROW = 272
PARTW = 64 * PROW

S_WS = 4
S_X = 8
S_T0, S_T1, S_T2, S_T3 = 12, 16, 20, 24
S_W, S_XCD, S_LOC, S_B, S_P, S_J, S_I1, S_I2 = 28, 29, 30, 31, 32, 33, 34, 35
P_X, P_LAR, P_AI, P_CR, P_CI, P_LDT, P_DSK = 36, 38, 40, 42, 44, 46, 48
P_W1, P_B1, P_W2, P_B2, P_OUT, P_DBG, P_WS = 52, 54, 56, 58, 60, 62, 64


def f2u(x):
    return struct.unpack('<I', struct.pack('<f', x))[0]


def fx(x):
    return '0x%08x' % f2u(x)


def srd(a, dst, ptr, nbytes):
    a.e(f's_mov_b32 s{dst}, s{ptr}')
    a.e(f's_and_b32 s{dst+1}, s{ptr+1}, 0xffff')
    a.e(f's_mov_b32 s{dst+2}, {nbytes}')
    a.e(f's_mov_b32 s{dst+3}, 0x00020000')


def prologue(a, nwg, lend):
    a.e(f's_cmp_ge_u32 s2, {nwg}')
    a.e(f's_cbranch_scc1 {lend}')
    a.e('s_load_dwordx16 s[36:51], s[0:1], 0')
    a.e('s_load_dwordx8 s[52:59], s[0:1], 64')
    a.e('s_load_dwordx4 s[60:63], s[0:1], 96')
    a.e('s_load_dwordx2 s[64:65], s[0:1], 112')
    a.e('v_and_b32 v1, 63, v0')
    a.e('v_lshrrev_b32 v2, 6, v0')
    a.e(f's_and_b32 s{S_XCD}, s2, 7')
    a.e(f'v_readfirstlane_b32 s{S_W}, v2')
    a.e(f's_lshr_b32 s{S_LOC}, s2, 3')
    a.e(f's_lshl_b32 s{S_B}, s{S_XCD}, 5')
    a.e(f's_add_u32 s{S_B}, s{S_B}, s{S_LOC}')
    a.e(f's_mul_i32 s{S_P}, s{S_XCD}, 28')
    a.e(f's_add_u32 s{S_P}, s{S_P}, s{S_LOC}')
    a.e(f's_and_b32 s{S_J}, s{S_XCD}, 1')
    a.e(f's_lshl_b32 s{S_J}, s{S_J}, 2')
    a.e(f's_and_b32 s3, s{S_LOC}, 3')
    a.e(f's_add_u32 s{S_J}, s{S_J}, s3')
    a.e(f's_lshr_b32 s3, s{S_XCD}, 1')
    a.e(f's_lshr_b32 s66, s{S_LOC}, 2')
    a.e(f's_mul_i32 s{S_I1}, s3, 7')
    a.e(f's_add_u32 s{S_I1}, s{S_I1}, s66')
    a.e(f's_lshl_b32 s{S_I2}, s3, 3')
    a.e(f's_add_u32 s{S_I2}, s{S_I2}, s66')
    a.e('s_waitcnt lgkmcnt(0)')
    srd(a, S_WS, P_WS, WS_USED)
    srd(a, S_X, P_X, XBYTES)


def reduce16(a, V):
    for i in range(8):
        a.e(f'v_permlane32_swap_b32 v{V[i]}, v{V[i+8]}')
    for i in range(8):
        a.e(f'v_add_f32 v{V[i]}, v{V[i]}, v{V[i+8]}')
    for i in range(4):
        a.e(f'v_permlane16_swap_b32 v{V[i]}, v{V[i+4]}')
    for i in range(4):
        a.e(f'v_add_f32 v{V[i]}, v{V[i]}, v{V[i+4]}')
    for i in range(2):
        a.e(f'v_add_f32_dpp v{V[i]}, v{V[i]}, v{V[i]} row_ror:8 row_mask:0xf bank_mask:0x3')
    for i in range(2):
        a.e(f'v_add_f32_dpp v{V[i]}, v{V[i+2]}, v{V[i+2]} row_ror:8 row_mask:0xf bank_mask:0xc')
    a.e(f'v_add_f32_dpp v{V[0]}, v{V[0]}, v{V[0]} row_half_mirror row_mask:0xf bank_mask:0x5')
    a.e(f'v_add_f32_dpp v{V[0]}, v{V[1]}, v{V[1]} row_half_mirror row_mask:0xf bank_mask:0xa')
    a.e(f'v_add_f32_dpp v{V[0]}, v{V[0]}, v{V[0]} quad_perm:[1,0,3,2] row_mask:0xf bank_mask:0xf')
    a.e(f'v_add_f32_dpp v{V[0]}, v{V[0]}, v{V[0]} quad_perm:[2,3,0,1] row_mask:0xf bank_mask:0xf')


def ln_stats(a, X, T, red, vt):
    a.e('s_mov_b32 s66, 0x3f803f80')
    for j in range(8):
        a.e(f'v_dot2_f32_bf16 v{T+j}, v{X[j]}, s66, 0')
        a.e(f'v_dot2_f32_bf16 v{T+8+j}, v{X[j]}, v{X[j]}, 0')
    reduce16(a, [T + i for i in range(16)])
    a.e(f'v_lshrrev_b32 v{vt}, 2, v1')
    a.e(f'v_lshlrev_b32 v{vt}, 4, v{vt}')
    a.e(f's_lshl_b32 s66, s{S_W}, 2')
    a.e(f'v_add_u32 v{vt}, s66, v{vt}')
    a.e('s_mov_b32 exec_lo, 0x11111111')
    a.e('s_mov_b32 exec_hi, 0x11111111')
    a.e(f'ds_write_b32 v{vt}, v{T} offset:{red}')
    a.e('s_mov_b64 exec, -1')
    a.e(f'v_and_b32 v{vt}, 7, v1')
    a.e(f'v_lshlrev_b32 v{vt}, 4, v{vt}')
    a.e('s_waitcnt lgkmcnt(0)')
    a.e('s_barrier')
    a.e(f'ds_read_b128 v[{T}:{T+3}], v{vt} offset:{red}')
    a.e(f'ds_read_b128 v[{T+4}:{T+7}], v{vt} offset:{red+128}')
    a.e('s_waitcnt lgkmcnt(1)')
    a.e(f'v_pk_add_f32 v[{T}:{T+1}], v[{T}:{T+1}], v[{T+2}:{T+3}]')
    a.e('s_waitcnt lgkmcnt(0)')
    a.e(f'v_pk_add_f32 v[{T+4}:{T+5}], v[{T+4}:{T+5}], v[{T+6}:{T+7}]')
    a.e(f'v_add_f32 v{T}, v{T}, v{T+1}')
    a.e(f'v_add_f32 v{T+4}, v{T+4}, v{T+5}')
    a.e(f'v_mul_f32 v{T}, {fx(1.0/448)}, v{T}')
    a.e(f'v_mul_f32 v{T+4}, {fx(1.0/448)}, v{T+4}')
    a.e(f'v_fma_f32 v{T+4}, -v{T}, v{T}, v{T+4}')
    a.e(f'v_max_f32 v{T+4}, 0, v{T+4}')
    a.e(f'v_cvt_pk_bf16_f32 v{T+4}, v{T+4}, v{T+4}')
    a.e(f'v_lshlrev_b32 v{T+4}, 16, v{T+4}')
    a.e(f'v_add_f32 v{T+4}, {fx(1e-5)}, v{T+4}')
    a.e(f'v_cvt_pk_bf16_f32 v{T+4}, v{T+4}, v{T+4}')
    a.e(f'v_lshlrev_b32 v{T+4}, 16, v{T+4}')
    a.e(f'v_sqrt_f32 v{T+4}, v{T+4}')
    a.e(f'v_cvt_pk_bf16_f32 v{T}, v{T}, v{T+4}')


def load_xrows(a, X):
    a.e(f's_mul_i32 s66, s{S_W}, 224')
    a.e(f's_mul_i32 s67, s{S_B}, {8*896}')
    a.e('s_add_u32 s66, s66, s67')
    a.e('v_lshl_add_u32 v2, v1, 2, s66')
    a.e(f'v_mov_b32 v3, {OOB}')
    a.e('v_cmp_gt_u32 vcc, 56, v1')
    a.e('v_cndmask_b32 v2, v3, v2, vcc')
    a.e('v_add_u32 v3, 4480, v2')
    for j in range(5):
        a.e(f'buffer_load_dword v{X[j]}, v2, s[{S_X}:{S_X+3}], 0 offen offset:{j*896}')
    for j in range(5, 8):
        a.e(f'buffer_load_dword v{X[j]}, v3, s[{S_X}:{S_X+3}], 0 offen offset:{(j-5)*896}')


def phase_p1(a):
    X = list(range(8, 16))
    load_xrows(a, X)
    a.e('s_waitcnt vmcnt(0)')
    ln_stats(a, X, 16, L_RED0, 4)
    lskip = a.lab('p1skip')
    a.e(f's_cmp_lg_u32 s{S_W}, 0')
    a.e(f's_cbranch_scc1 {lskip}')
    a.e(f's_lshl_b32 s66, s{S_B}, 6')
    a.e(f's_add_u32 s66, s66, {WS_STATS}')
    a.e('v_lshl_add_u32 v2, v1, 3, s66')
    a.e('v_mov_b32 v17, 0')
    a.e('s_mov_b64 exec, 0xff')
    a.e(f'buffer_store_dwordx2 v[16:17], v2, s[{S_WS}:{S_WS+3}], 0 offen')
    a.e('s_mov_b64 exec, -1')
    a.e(f'{lskip}:')


POS_OF_ROW = [0, 1, 2, 3, 4, 5, 6, 7, 128, 129, 130, 131, 132, 133, 134, 135, 256, 258, 260, 262, 384, 386, 388, 390,
              512, 516, 640, 644, 768, 772, 896, 900, 1024, 1152, 1280, 1408, 1536, 1664, 1792, 1920, 2048]


def bf16_round_int(l):
    f = np.array([l], dtype=np.float32)
    u = f.view(np.uint32)
    r = ((u + 0x7FFF + ((u >> 16) & 1)) >> 16).astype(np.uint32) << 16
    return int(r.view(np.float32)[0])


def rowcol(pos):
    if pos < 256:
        return (8 * (pos >> 7) + (pos & 7), (pos & 127) >> 3)
    if pos < 512:
        p = pos - 256
        return (16 + 4 * (p >> 7) + ((p & 7) >> 1), (p & 127) >> 3)
    if pos < 1024:
        p = pos - 512
        return (24 + 2 * (p >> 7) + ((p & 7) >> 2), (p & 127) >> 3)
    p = pos - 1024
    return (32 + (p >> 7), (p & 127) >> 3)


def gather_table():
    tab = []
    for m in range(256):
        for e in range(16):
            idx = 2047 - 8 * m - e
            if idx < 0 or e == 15:
                tab.append(1536)
            else:
                r, c = rowcol(bf16_round_int(idx))
                assert POS_OF_ROW[r] + 8 * c == bf16_round_int(idx)
                tab.append((r * 16 + c) * 2)
    return tab


def cmul(a, d, x, y, t):
    a.e(f'v_pk_mul_f32 v[{t}:{t+1}], v[{x}:{x+1}], v[{y}:{y+1}] op_sel:[0,0] op_sel_hi:[1,0]')
    a.e(f'v_pk_fma_f32 v[{d}:{d+1}], v[{x}:{x+1}], v[{y}:{y+1}], v[{t}:{t+1}] op_sel:[1,1,0] op_sel_hi:[0,1,1] neg_lo:[1,0,0]')


LOG2E_HI = 1.44268798828125
LOG2E_LO_LN2 = (1.4426950408889634 - 1.44268798828125) * 0.6931471805599453


def exp_bf16(a, d, x, t):
    a.e(f'v_mul_f32 v{t}, {fx(LOG2E_HI)}, v{x}')
    a.e(f'v_exp_f32 v{t}, v{t}')
    a.e(f'v_mul_f32 v{d}, {fx(LOG2E_LO_LN2)}, v{x}')
    a.e(f'v_fma_f32 v{d}, v{t}, v{d}, v{t}')
    a.e(f'v_cvt_pk_bf16_f32 v{d}, v{d}, v{d}')
    a.e(f'v_lshlrev_b32 v{d}, 16, v{d}')


def kgen_loads(a):
    srd(a, S_T0, P_LAR, PBYTES)
    srd(a, S_T1, P_AI, PBYTES)
    srd(a, S_T2, P_CR, PBYTES)
    srd(a, S_T3, P_CI, PBYTES)
    a.e(f's_lshl_b32 s66, s{S_P}, 10')
    a.e(f's_lshl_b32 s67, s{S_W}, 7')
    a.e('s_add_u32 s66, s66, s67')
    a.e('v_lshl_add_u32 v2, v1, 1, s66')
    for c in range(2):
        for k, s in enumerate((S_T0, S_T1, S_T2, S_T3)):
            a.e(f'buffer_load_ushort v{40+4*c+k}, v2, s[{s}:{s+3}], 0 offen offset:{512*c}')
    a.e(f's_lshl_b32 s66, s{S_P}, 2')
    a.e(f's_load_dword s68, s[{P_LDT}:{P_LDT+1}], s66')
    a.e(f's_load_dword s69, s[{P_DSK}:{P_DSK+1}], s66')


def kgen_channel(a, c, DACC):
    LAR, AI, CR, CI = 40 + 4 * c, 41 + 4 * c, 42 + 4 * c, 43 + 4 * c
    SIG, DT = 52 + c, 54 + c
    AL, BE = 56, 57
    Z1, Z2, Z4, Z8, Z128, Z256, Z512, Z1024 = 58, 60, 62, 64, 66, 68, 70, 72
    X0, CA, CB, CC, T0, T1 = 74, 76, 78, 80, 82, 84
    CV = [86, 87, 88, 89]
    VW = 90
    t, t2 = 92, 93
    for r in (LAR, AI, CR, CI):
        a.e(f'v_lshlrev_b32 v{r}, 16, v{r}')
    if c == 0:
        a.e(f's_lshl_b32 s66, s68, 16')
    else:
        a.e(f's_and_b32 s66, s68, 0xffff0000')
    a.e(f'v_mov_b32 v{t2}, s66')
    exp_bf16(a, DT, t2, t)
    a.e(f'v_add_f32 v{SIG}, abs(v{CR}), abs(v{CI})')
    exp_bf16(a, AL, LAR, t)
    a.e(f'v_add_f32_dpp v{SIG}, v{SIG}, v{SIG} quad_perm:[1,0,3,2] row_mask:0xf bank_mask:0xf')
    a.e(f'v_mul_f32 v{AL}, v{AL}, v{DT}')
    a.e(f'v_mul_f32 v{BE}, v{AI}, v{DT}')
    a.e(f'v_add_f32_dpp v{SIG}, v{SIG}, v{SIG} quad_perm:[2,3,0,1] row_mask:0xf bank_mask:0xf')
    a.e(f'v_mul_f32 v{AL}, {fx(-1.4426950408889634)}, v{AL}')
    a.e(f'v_mul_f32 v{BE}, {fx(0.15915494309189535)}, v{BE}')
    a.e(f'v_add_f32_dpp v{SIG}, v{SIG}, v{SIG} row_half_mirror row_mask:0xf bank_mask:0xf')
    a.e(f'v_exp_f32 v{T0}, v{AL}')
    a.e(f'v_fract_f32 v{t}, v{BE}')
    a.e(f'v_add_f32_dpp v{SIG}, v{SIG}, v{SIG} row_ror:8 row_mask:0xf bank_mask:0xf')
    a.e(f'v_cos_f32 v{Z1}, v{t}')
    a.e(f'v_sin_f32 v{Z1+1}, v{t}')
    a.e(f'v_mov_b32 v{t2}, v{SIG}')
    a.e(f'v_mul_f32 v{T1}, 0x43000000, v{AL}')
    a.e(f'v_mul_f32 v{t}, 0x43000000, v{BE}')
    a.e(f'v_permlane16_swap_b32 v{SIG}, v{t2}')
    a.e(f'v_pk_mul_f32 v[{Z1}:{Z1+1}], v[{Z1}:{Z1+1}], v[{T0}:{T0+1}] op_sel:[0,0] op_sel_hi:[1,0]')
    a.e(f'v_add_f32 v{SIG}, v{SIG}, v{t2}')
    a.e(f'v_exp_f32 v{T1}, v{T1}')
    a.e(f'v_fract_f32 v{t}, v{t}')
    a.e(f'v_mov_b32 v{t2}, v{SIG}')
    a.e(f'v_cos_f32 v{Z128}, v{t}')
    a.e(f'v_sin_f32 v{Z128+1}, v{t}')
    a.e(f'v_permlane32_swap_b32 v{SIG}, v{t2}')
    cmul(a, Z2, Z1, Z1, Z2)
    a.e(f'v_add_f32 v{SIG}, v{SIG}, v{t2}')
    a.e(f'v_pk_mul_f32 v[{Z128}:{Z128+1}], v[{Z128}:{Z128+1}], v[{T1}:{T1+1}] op_sel:[0,0] op_sel_hi:[1,0]')
    a.e(f'v_add_f32 v{SIG}, {fx(1e-30)}, v{SIG}')
    cmul(a, Z4, Z2, Z2, Z4)
    a.e(f'v_rcp_f32 v{t}, v{SIG}')
    cmul(a, Z256, Z128, Z128, Z256)
    cmul(a, Z8, Z4, Z4, Z8)
    a.e(f'v_mul_f32 v{X0}, v{CR}, v{t}')
    a.e(f'v_mul_f32 v{X0+1}, v{CI}, v{t}')
    cmul(a, Z512, Z256, Z256, Z512)
    a.e(f's_mul_i32 s66, s{S_W}, {SCRW}')
    a.e(f's_add_u32 s66, s66, {L_SCR}')
    a.e(f'v_lshl_add_u32 v{VW}, v1, 2, s66')
    cmul(a, Z1024, Z512, Z512, Z1024)
    cvi = [0]

    def putX(row, r):
        cv = CV[cvi[0] % 4]
        cvi[0] += 1
        a.e(f'v_cvt_pk_f16_f32 v{cv}, v{r}, -v{r+1}')
        a.e(f'ds_write_b32 v{VW}, v{cv} offset:{row*SROW}')

    def putY(b, r):
        cv = CV[cvi[0] % 4]
        cvi[0] += 1
        a.e(f'v_cvt_pk_f16_f32 v{cv}, v{r}, v{r+1}')
        a.e(f'ds_write_b32 v{VW}, v{cv} offset:{(48+b)*SROW}')

    a.e(f'v_mov_b32 v{CV[3]}, 0x00003c00')
    a.e(f'ds_write_b32 v{VW}, v{CV[3]} offset:{48*SROW}')
    putY(1, Z8)
    ychain = {'cur': Z8, 'b': 1}
    YA, YB = CC, 94

    def ystep():
        if ychain['b'] >= 15:
            return
        d = YA if ychain['cur'] != YA else YB
        cmul(a, d, ychain['cur'], Z8, d)
        ychain['b'] += 1
        ychain['cur'] = d
        putY(ychain['b'], d)

    putX(0, X0)
    cmul(a, T0, X0, Z128, T0)
    putX(8, T0)
    cur = X0
    for j in range(1, 8):
        d = CA if cur != CA else CB
        cmul(a, d, cur, Z1, d)
        ystep()
        putX(j, d)
        cmul(a, T0, d, Z128, T0)
        putX(8 + j, T0)
        cur = d
    cmul(a, CA, X0, Z256, CA)
    ystep()
    putX(16, CA)
    cmul(a, T0, CA, Z128, T0)
    putX(20, T0)
    cur = CA
    for j in range(1, 4):
        d = CA if cur != CA else CB
        cmul(a, d, cur, Z2, d)
        ystep()
        putX(16 + j, d)
        cmul(a, T0, d, Z128, T0)
        putX(20 + j, T0)
        cur = d
    cmul(a, CA, X0, Z512, CA)
    ystep()
    putX(24, CA)
    cmul(a, CB, CA, Z4, CB)
    ystep()
    putX(25, CB)
    pa, pb = CA, CB
    na, nb = T0, T1
    for q in range(1, 4):
        cmul(a, na, pa, Z128, na)
        cmul(a, nb, pb, Z128, nb)
        ystep()
        putX(24 + 2 * q, na)
        putX(25 + 2 * q, nb)
        pa, pb, na, nb = na, nb, pa, pb
    cmul(a, CA, X0, Z1024, CA)
    putX(32, CA)
    cur = CA
    for q in range(1, 9):
        d = CA if cur != CA else CB
        cmul(a, d, cur, Z128, d)
        putX(32 + q, d)
        cur = d
    while ychain['b'] < 15:
        ystep()
    FA = 96
    VR = 91
    a.e(f'v_and_b32 v{t}, 15, v1')
    a.e(f'v_mul_u32_u24 v{t}, {SROW}, v{t}')
    a.e(f'v_lshrrev_b32 v{t2}, 4, v1')
    a.e(f'v_lshl_add_u32 v{t}, v{t2}, 4, v{t}')
    a.e(f'v_add_u32 v{VR}, s66, v{t}')
    for k in range(4):
        a.e(f'ds_read_b128 v[{144+4*k}:{147+4*k}], v{VR} offset:{48*SROW+64*k}')
        for T in range(3):
            r = FA + 16 * T + 4 * k
            a.e(f'ds_read_b128 v[{r}:{r+3}], v{VR} offset:{16*T*SROW+64*k}')
    for k in range(4):
        a.e(f's_waitcnt lgkmcnt({4*(3-k)})')
        for T in range(3):
            r = FA + 16 * T + 4 * k
            cc = '0' if k == 0 else f'v[{DACC+4*T}:{DACC+4*T+3}]'
            a.e(f'v_mfma_f32_16x16x32_f16 v[{DACC+4*T}:{DACC+4*T+3}], v[{r}:{r+3}], v[{144+4*k}:{147+4*k}], {cc}')


DK0, DK1 = 16, 28


def phase_kgen(a):
    kgen_channel(a, 0, DK0)
    kgen_channel(a, 1, DK1)
    a.e(f's_mul_i32 s66, s{S_W}, {SCRW}')
    a.e(f's_add_u32 s66, s66, {L_SCR}')
    a.e('v_lshl_add_u32 v90, v1, 4, s66')
    for c, DK in ((0, DK0), (1, DK1)):
        for i in range(0, 12, 2):
            a.e(f'v_pk_mul_f32 v[{DK+i}:{DK+i+1}], v[{DK+i}:{DK+i+1}], v[{52}:{53}] op_sel:[0,{c}] op_sel_hi:[1,{c}]')
    for c, DK in ((0, DK0), (1, DK1)):
        for T in range(3):
            a.e(f'ds_write_b128 v90, v[{DK+4*T}:{DK+4*T+3}] offset:{c*3072+T*1024}')
    a.e(f's_lshl_b32 s67, s{S_W}, 2')
    a.e(f's_add_u32 s67, s67, {L_SIG}')
    a.e('v_mov_b32 v91, s67')
    a.e('s_mov_b64 exec, 1')
    a.e('ds_write_b32 v91, v52')
    a.e('ds_write_b32 v91, v53 offset:16')
    a.e('s_mov_b64 exec, -1')
    a.e('v_mov_b32 v92, 0')
    a.e('v_mov_b32 v93, 0')
    a.e('v_mov_b32 v94, 0')
    a.e('v_mov_b32 v95, 0')
    a.e('s_waitcnt lgkmcnt(0)')
    a.e('s_barrier')
    a.e(f'v_mov_b32 v91, {L_SIG}')
    a.e('ds_read_b128 v[44:47], v91')
    a.e('ds_read_b128 v[48:51], v91 offset:16')
    a.e(f's_and_b32 s67, s{S_W}, 1')
    a.e(f's_lshr_b32 s70, s{S_W}, 1')
    a.e('s_mul_i32 s71, s67, 3072')
    a.e('s_lshl_b32 s72, s70, 10')
    a.e('s_add_u32 s72, s72, s71')
    a.e(f's_add_u32 s72, s72, {L_SCR}')
    a.e(f's_add_u32 s71, s71, {L_SCR + 2048}')
    a.e('v_lshl_add_u32 v90, v1, 4, s72')
    a.e('v_lshl_add_u32 v91, v1, 4, s71')
    for wv in range(4):
        a.e(f'ds_read_b128 v[{96+4*wv}:{99+4*wv}], v90 offset:{wv*SCRW}')
    for wv in range(4):
        a.e(f'ds_read_b128 v[{112+4*wv}:{115+4*wv}], v91 offset:{wv*SCRW}')
    a.e('s_waitcnt lgkmcnt(8)')
    a.e('v_pk_add_f32 v[44:45], v[44:45], v[46:47]')
    a.e('v_pk_add_f32 v[48:49], v[48:49], v[50:51]')
    a.e('v_add_f32 v44, v44, v45')
    a.e('v_add_f32 v45, v48, v49')
    a.e('v_pk_mul_f32 v[54:55], v[54:55], v[44:45]')
    a.e('v_pk_add_f32 v[54:55], v[54:55], v[54:55]')
    a.e('s_cmp_eq_u32 s67, 0')
    a.e('s_cselect_b64 vcc, -1, 0')
    a.e('v_cndmask_b32 v46, v45, v44, vcc')
    a.e('v_rcp_f32 v46, v46')
    a.e('v_lshrrev_b32 v92, 4, v1')
    a.e('v_lshlrev_b32 v92, 7, v92')
    a.e('v_and_b32 v93, 15, v1')
    a.e('v_lshl_add_u32 v92, v93, 1, v92')
    a.e(f's_mul_i32 s71, s67, {KTCH}')
    a.e(f's_add_u32 s71, s71, {L_KT}')
    a.e('v_add_u32 v93, s71, v92')
    a.e('s_lshl_b32 s72, s70, 9')
    a.e('v_add_u32 v92, s72, v93')
    for jb, (base, va, off) in enumerate(((96, 92, 0), (112, 93, 1024))):
        a.e(f's_waitcnt lgkmcnt({4 if jb == 0 else 0})')
        for h in range(2):
            a.e(f'v_pk_add_f32 v[{base+2*h}:{base+2*h+1}], v[{base+2*h}:{base+2*h+1}], v[{base+4+2*h}:{base+5+2*h}]')
            a.e(f'v_pk_add_f32 v[{base+8+2*h}:{base+9+2*h}], v[{base+8+2*h}:{base+9+2*h}], v[{base+12+2*h}:{base+13+2*h}]')
        for h in range(2):
            a.e(f'v_pk_add_f32 v[{base+2*h}:{base+2*h+1}], v[{base+2*h}:{base+2*h+1}], v[{base+8+2*h}:{base+9+2*h}]')
        for h in range(2):
            a.e(f'v_pk_mul_f32 v[{base+2*h}:{base+2*h+1}], v[{base+2*h}:{base+2*h+1}], v[46:47] op_sel:[0,0] op_sel_hi:[1,0]')
        a.e(f'v_cvt_pk_f16_f32 v{base+4}, v{base}, v{base+1}')
        a.e(f'v_cvt_pk_f16_f32 v{base+5}, v{base+2}, v{base+3}')
        a.e(f'ds_write_b16 v{va}, v{base+4} offset:{off}')
        a.e(f'ds_write_b16_d16_hi v{va}, v{base+4} offset:{off+32}')
        a.e(f'ds_write_b16 v{va}, v{base+5} offset:{off+64}')
        a.e(f'ds_write_b16_d16_hi v{va}, v{base+5} offset:{off+96}')
    a.e('v_mov_b32 v96, 0')
    a.e('v_mov_b32 v97, 0')
    a.e('v_mov_b32 v98, 0')
    a.e('v_mov_b32 v99, 0')
    a.e(f'v_mov_b32 v90, {L_KT + 1536}')
    a.e('ds_write_b32 v90, v96')
    a.e(f'ds_write_b32 v90, v96 offset:{KTCH}')
    a.e('v_and_b32 v90, 15, v1')
    a.e(f'v_mul_u32_u24 v90, {KCOPY}, v90')
    a.e(f'ds_write_b128 v90, v[96:99] offset:{L_KC + 4096}')
    a.e('v_lshlrev_b32 v90, 3, v1')
    a.e(f'ds_write_b64 v90, v[96:97] offset:{L_U}')
    a.e(f'ds_write_b64 v90, v[96:97] offset:{L_U + UCH}')
    a.e('s_waitcnt lgkmcnt(0)')
    a.e('s_barrier')
    AD = 96
    for e in range(15):
        src = 160 + e // 2
        if e % 2 == 0:
            a.e(f'v_and_b32 v{AD+e}, 0xffff, v{src}')
        else:
            a.e(f'v_lshrrev_b32 v{AD+e}, 16, v{src}')
    a.e('v_lshlrev_b32 v111, 4, v0')
    RR = [112, 128]
    for c in range(2):
        for e in range(15):
            a.e(f'ds_read_u16 v{RR[c]+e}, v{AD+e} offset:{L_KT + c*KTCH}')
    for c in range(2):
        R = RR[c]
        Da, Db, Oa, Ob = 144, 152, 160, 168
        a.e(f's_waitcnt lgkmcnt({15 if c == 0 else 0})')
        for i in range(6):
            a.e(f'v_lshl_or_b32 v{Da+i}, v{R+2*i+1}, 16, v{R+2*i}')
            a.e(f'v_lshl_or_b32 v{Oa+i}, v{R+2*i+2}, 16, v{R+2*i+1}')
        for i in range(6):
            a.e(f'v_lshl_or_b32 v{Db+i}, v{R+2*i+3}, 16, v{R+2*i+2}')
            a.e(f'v_lshl_or_b32 v{Ob+i}, v{R+2*i+4}, 16, v{R+2*i+3}')
        if c == 1:
            a.e(f'v_add_u32 v111, {KCH}, v111')
        for s, r in ((0, Da), (1, Oa), (4, Da + 2), (5, Oa + 2), (2, Db), (3, Ob), (6, Db + 2), (7, Ob + 2)):
            a.e(f'ds_write_b128 v111, v[{r}:{r+3}] offset:{L_KC + s*KCOPY}')


def load_gather_table(a, tablabel):
    lp = a.lab('pc')
    a.e('s_getpc_b64 s[70:71]')
    a.e(f'{lp}:')
    a.e(f's_add_u32 s70, s70, {tablabel}-{lp}')
    a.e('s_addc_u32 s71, s71, 0')
    a.e('v_lshlrev_b32 v2, 5, v0')
    a.e('global_load_dwordx4 v[160:163], v2, s[70:71]')
    a.e('global_load_dwordx4 v[164:167], v2, s[70:71] offset:16')


def emit_gather_table(a, tablabel):
    a.raw('.p2align 4')
    a.raw(f'.type {tablabel},@object')
    a.raw(f'{tablabel}:')
    tab = gather_table()
    for i in range(0, len(tab), 16):
        a.raw('.short ' + ', '.join(str(x) for x in tab[i:i + 16]))
    a.raw(f'.size {tablabel}, {2*len(tab)}')


XC = list(range(192, 200))
ST = 200


def conv_loads(a):
    a.e(f's_lshl_b32 s66, s{S_P}, 2')
    a.e(f'v_mul_u32_u24 v2, {8*896}, v0')
    a.e('v_add_u32 v2, s66, v2')
    a.e('v_add_u32 v3, 4480, v2')
    for j in range(5):
        a.e(f'buffer_load_dword v{XC[j]}, v2, s[{S_X}:{S_X+3}], 0 offen offset:{j*896}')
    for j in range(5, 8):
        a.e(f'buffer_load_dword v{XC[j]}, v3, s[{S_X}:{S_X+3}], 0 offen offset:{(j-5)*896}')


def stats_loads(a):
    a.e('v_lshlrev_b32 v2, 6, v0')
    for i in range(4):
        a.e(f'buffer_load_dwordx4 v[{ST+4*i}:{ST+4*i+3}], v2, s[{S_WS}:{S_WS+3}], 0 offen offset:{WS_STATS+16*i}')


def phase_norm(a):
    U0, U1 = 96, 100
    for j in range(8):
        g = ST + 2 * j
        x = XC[j]
        t = 104 + 8 * (j % 2)
        a.e(f'v_lshlrev_b32 v{t}, 16, v{x}')
        a.e(f'v_and_b32 v{t+1}, 0xffff0000, v{x}')
        a.e(f'v_lshlrev_b32 v{t+2}, 16, v{g}')
        a.e(f'v_and_b32 v{t+3}, 0xffff0000, v{g}')
        a.e(f'v_rcp_f32 v{t+3}, v{t+3}')
        a.e(f'v_pk_add_f32 v[{t}:{t+1}], v[{t}:{t+1}], v[{t+2}:{t+3}] op_sel:[0,0] op_sel_hi:[1,0] neg_lo:[0,1] neg_hi:[0,1]')
        a.e(f'v_cvt_pk_bf16_f32 v{t+4}, v{t}, v{t+1}')
        a.e(f'v_lshlrev_b32 v{t}, 16, v{t+4}')
        a.e(f'v_and_b32 v{t+1}, 0xffff0000, v{t+4}')
        a.e(f'v_pk_mul_f32 v[{t}:{t+1}], v[{t}:{t+1}], v[{t+2}:{t+3}] op_sel:[0,1] op_sel_hi:[1,1]')
        a.e(f'v_cvt_pk_bf16_f32 v{t+4}, v{t}, v{t+1}')
        a.e(f'v_lshlrev_b32 v{120+2*j}, 16, v{t+4}')
        a.e(f'v_and_b32 v{121+2*j}, 0xffff0000, v{t+4}')
    for i in range(4):
        a.e(f'v_cvt_pk_f16_f32 v{U0+i}, v{120+4*i}, v{122+4*i}')
        a.e(f'v_cvt_pk_f16_f32 v{U1+i}, v{121+4*i}, v{123+4*i}')
    a.e('v_lshlrev_b32 v2, 4, v0')
    a.e(f'ds_write_b128 v2, v[{U0}:{U0+3}] offset:{L_U + 512}')
    a.e(f'ds_write_b128 v2, v[{U1}:{U1+3}] offset:{L_U + UCH + 512}')
    a.e('s_waitcnt lgkmcnt(0)')
    a.e('s_barrier')


def phase_conv(a):
    ACC = 16
    FA = [[64 + 64 * s + 4 * i for i in range(8)] for s in range(2)]
    FB = [[96 + 64 * s + 4 * i for i in range(8)] for s in range(2)]
    VA, VB = 48, 49
    a.e(f's_lshr_b32 s66, s{S_W}, 1')
    a.e(f's_and_b32 s67, s{S_W}, 1')
    a.e('v_and_b32 v2, 7, v1')
    a.e('v_sub_u32 v2, 7, v2')
    a.e(f'v_mul_u32_u24 v2, {KCOPY}, v2')
    a.e('v_lshrrev_b32 v3, 4, v1')
    a.e('v_bfe_u32 v4, v1, 3, 1')
    a.e('v_sub_u32 v3, v3, v4')
    a.e('v_lshl_add_u32 v2, v3, 4, v2')
    a.e(f's_mul_i32 s70, s66, {KCH}')
    a.e('s_lshl_b32 s71, s67, 8')
    a.e('s_sub_u32 s70, s70, s71')
    a.e(f's_add_u32 s70, s70, {L_KC + 16*253 - 512*7 - 64*3}')
    a.e(f'v_add_u32 v{VA}, s70, v2')
    a.e('v_and_b32 v2, 15, v1')
    a.e('v_lshlrev_b32 v2, 5, v2')
    a.e('v_lshrrev_b32 v3, 4, v1')
    a.e('v_lshl_add_u32 v2, v3, 4, v2')
    a.e(f's_mul_i32 s70, s66, {UCH}')
    a.e('s_sub_u32 s70, s70, s71')
    a.e(f's_add_u32 s70, s70, {L_U + 480 - 64*3}')
    a.e(f'v_add_u32 v{VB}, s70, v2')

    def loads(qq, s):
        for i in range(8):
            a.e(f'ds_read_b128 v[{FB[s][i]}:{FB[s][i]+3}], v{VB} offset:{512*i + 64*(3-qq)}')
            a.e(f'ds_read_b128 v[{FA[s][i]}:{FA[s][i]+3}], v{VA} offset:{512*(7-i) + 64*(3-qq)}')

    loads(0, 0)
    for qq in range(4):
        s = qq & 1
        if qq < 3:
            nxt = []
            for i in range(8):
                nxt.append(f'ds_read_b128 v[{FB[1-s][i]}:{FB[1-s][i]+3}], v{VB} offset:{512*i + 64*(3-qq-1)}')
                nxt.append(f'ds_read_b128 v[{FA[1-s][i]}:{FA[1-s][i]+3}], v{VA} offset:{512*(7-i) + 64*(3-qq-1)}')
        else:
            nxt = []
        a.e('s_waitcnt lgkmcnt(0)')
        n = 0
        for w in range(8):
            for c in range(w, 8):
                cc = '0' if (qq == 0 and w == 0) else f'v[{ACC+4*c}:{ACC+4*c+3}]'
                a.e(f'v_mfma_f32_16x16x32_f16 v[{ACC+4*c}:{ACC+4*c+3}], v[{FA[s][w]}:{FA[s][w]+3}], v[{FB[s][c-w]}:{FB[s][c-w]+3}], {cc}')
                if nxt and n % 2 == 1:
                    a.e(nxt.pop(0))
                n += 1
        assert not nxt
    CP = L_SCR
    TS = 1280
    a.e('v_and_b32 v2, 15, v1')
    a.e('v_lshlrev_b32 v2, 4, v2')
    a.e('v_lshrrev_b32 v3, 4, v1')
    a.e('v_mul_u32_u24 v3, 320, v3')
    a.e('v_add_u32 v2, v2, v3')
    a.e(f's_mul_i32 s70, s{S_W}, {8*TS}')
    a.e(f's_add_u32 s70, s70, {CP}')
    a.e('v_add_u32 v2, s70, v2')
    for c in range(8):
        a.e(f'ds_write_b128 v2, v[{ACC+4*c}:{ACC+4*c+3}] offset:{c*TS}')
    a.e('v_lshrrev_b32 v2, 2, v1')
    a.e('v_lshlrev_b32 v2, 4, v2')
    a.e('v_and_b32 v3, 3, v1')
    a.e('v_mul_u32_u24 v3, 320, v3')
    a.e('v_add_u32 v2, v2, v3')
    a.e(f's_lshl_b32 s70, s{S_W}, 1')
    a.e(f's_mul_i32 s71, s70, {TS}')
    a.e(f's_add_u32 s71, s71, {CP}')
    a.e('v_add_u32 v2, s71, v2')
    a.e('s_lshl_b32 s71, s70, 9')
    a.e(f's_add_u32 s71, s71, {L_U + 512}')
    a.e('v_lshl_add_u32 v3, v1, 3, s71')
    a.e(f's_lshl_b32 s71, s{S_P}, 13')
    a.e('s_lshl_b32 s72, s70, 10')
    a.e('s_add_u32 s71, s71, s72')
    a.e(f's_add_u32 s71, s71, {WS_AOUT}')
    a.e('v_lshl_add_u32 v4, v1, 4, s71')
    a.e('s_lshl_b32 s72, s69, 16')
    a.e('s_and_b32 s73, s69, 0xffff0000')
    a.e('v_mov_b32 v56, s72')
    a.e('v_mov_b32 v57, s73')
    a.e('s_waitcnt lgkmcnt(0)')
    a.e('s_barrier')
    for q in range(2):
        P = 64 + 32 * q
        for ch in range(2):
            for hf in range(2):
                r = P + 8 * ch + 4 * hf
                a.e(f'ds_read_b128 v[{r}:{r+3}], v2 offset:{(2*ch+hf)*8*TS + q*TS}')
        for ch in range(2):
            a.e(f'ds_read_b64 v[{P+16+2*ch}:{P+17+2*ch}], v3 offset:{ch*UCH + q*512}')
    for q in range(2):
        P = 64 + 32 * q
        a.e(f's_waitcnt lgkmcnt({6 if q == 0 else 0})')
        for ch in range(2):
            y = P + 8 * ch
            T = 128 + 16 * ch
            for h in range(2):
                a.e(f'v_pk_add_f32 v[{y+2*h}:{y+2*h+1}], v[{y+2*h}:{y+2*h+1}], v[{y+4+2*h}:{y+5+2*h}]')
            for h in range(2):
                a.e(f'v_pk_mul_f32 v[{y+2*h}:{y+2*h+1}], v[{y+2*h}:{y+2*h+1}], v[54:55] op_sel:[0,{ch}] op_sel_hi:[1,{ch}]')
            u = P + 16 + 2 * ch
            for i in range(4):
                a.e(f'v_fma_mix_f32 v{T+i}, v{u+i//2}, v{56+ch}, 0 op_sel:[{i%2},0,0] op_sel_hi:[1,0,0]')
            for h in range(2):
                a.e(f'v_cvt_pk_bf16_f32 v{T+4+h}, v{y+2*h}, v{y+2*h+1}')
                a.e(f'v_cvt_pk_bf16_f32 v{T+6+h}, v{T+2*h}, v{T+2*h+1}')
            for h in range(2):
                a.e(f'v_lshlrev_b32 v{y+2*h}, 16, v{T+4+h}')
                a.e(f'v_and_b32 v{y+2*h+1}, 0xffff0000, v{T+4+h}')
                a.e(f'v_lshlrev_b32 v{T+2*h}, 16, v{T+6+h}')
                a.e(f'v_and_b32 v{T+2*h+1}, 0xffff0000, v{T+6+h}')
            for h in range(2):
                a.e(f'v_pk_add_f32 v[{y+2*h}:{y+2*h+1}], v[{y+2*h}:{y+2*h+1}], v[{T+2*h}:{T+2*h+1}]')
        O = 160 + 4 * q
        for i in range(4):
            a.e(f'v_cvt_pk_bf16_f32 v{O+i}, v{P+i}, v{P+8+i}')
        a.e(f'buffer_store_dwordx4 v[{O}:{O+3}], v4, s[{S_WS}:{S_WS+3}], 0 offen offset:{q*1024}')


def bcast_stats(a, T):
    a.e(f'v_lshlrev_b32 v{T+1}, 16, v{T}')
    a.e(f'v_and_b32 v{T+2}, 0xffff0000, v{T}')
    a.e(f'v_rcp_f32 v{T+2}, v{T+2}')
    for j in range(8):
        a.e(f'v_readlane_b32 s{72+2*j}, v{T+1}, {j}')
    for j in range(8):
        a.e(f'v_readlane_b32 s{73+2*j}, v{T+2}, {j}')


def norm_tok(a, j, src, d):
    a.e(f'v_lshlrev_b32 v{d}, 16, v{src}')
    a.e(f'v_and_b32 v{d+1}, 0xffff0000, v{src}')
    a.e(f'v_pk_add_f32 v[{d}:{d+1}], v[{d}:{d+1}], s[{72+2*j}:{73+2*j}] op_sel:[0,0] op_sel_hi:[1,0] neg_lo:[0,1] neg_hi:[0,1]')
    a.e(f'v_cvt_pk_bf16_f32 v{src}, v{d}, v{d+1}')
    a.e(f'v_lshlrev_b32 v{d}, 16, v{src}')
    a.e(f'v_and_b32 v{d+1}, 0xffff0000, v{src}')
    a.e(f'v_pk_mul_f32 v[{d}:{d+1}], v[{d}:{d+1}], s[{72+2*j}:{73+2*j}] op_sel:[0,1] op_sel_hi:[1,1]')


def phase_p4(a):
    X = list(range(8, 16))
    A = 32
    load_xrows(a, X)
    a.e(f's_mul_i32 s66, s{S_W}, {56*8192}')
    a.e(f's_lshl_b32 s67, s{S_B}, 5')
    a.e('s_add_u32 s66, s66, s67')
    a.e(f's_add_u32 s66, s66, {WS_AOUT}')
    a.e('v_lshl_add_u32 v4, v1, 13, s66')
    a.e(f'v_mov_b32 v5, {OOB}')
    a.e('v_cndmask_b32 v4, v5, v4, vcc')
    a.e(f'buffer_load_dwordx4 v[{A}:{A+3}], v4, s[{S_WS}:{S_WS+3}], 0 offen')
    a.e(f'buffer_load_dwordx4 v[{A+4}:{A+7}], v4, s[{S_WS}:{S_WS+3}], 0 offen offset:16')
    a.e(f'v_add_u32 v6, {WS_H}, v2')
    a.e(f'v_add_u32 v7, {WS_H}, v3')
    a.e('s_waitcnt vmcnt(0)')
    for j in range(8):
        t = 40 + 4 * (j % 2)
        a.e(f'v_lshlrev_b32 v{t}, 16, v{X[j]}')
        a.e(f'v_and_b32 v{t+1}, 0xffff0000, v{X[j]}')
        a.e(f'v_lshlrev_b32 v{t+2}, 16, v{A+j}')
        a.e(f'v_and_b32 v{t+3}, 0xffff0000, v{A+j}')
        a.e(f'v_pk_add_f32 v[{t}:{t+1}], v[{t}:{t+1}], v[{t+2}:{t+3}]')
        a.e(f'v_cvt_pk_bf16_f32 v{X[j]}, v{t}, v{t+1}')
    for j in range(5):
        a.e(f'buffer_store_dword v{X[j]}, v6, s[{S_WS}:{S_WS+3}], 0 offen offset:{j*896}')
    for j in range(5, 8):
        a.e(f'buffer_store_dword v{X[j]}, v7, s[{S_WS}:{S_WS+3}], 0 offen offset:{(j-5)*896}')
    H = list(range(48, 56))
    for j in range(8):
        a.e(f'v_mov_b32 v{H[j]}, v{X[j]}')
    ln_stats(a, H, 16, L_RED0, 5)
    bcast_stats(a, 16)
    a.e('s_mov_b32 exec_hi, 0x00ffffff')
    for j in range(8):
        t = 40 + 2 * (j % 4)
        norm_tok(a, j, H[j], t)
        a.e(f'v_cvt_pk_bf16_f32 v{H[j]}, v{t}, v{t+1}')
    a.e('s_mov_b32 exec_hi, -1')
    ln_stats(a, H, 16, L_RED1, 5)
    bcast_stats(a, 16)
    for j in range(8):
        norm_tok(a, j, H[j], 64 + 2 * j)
    O0, O1 = 80, 84
    for i in range(4):
        a.e(f'v_cvt_pk_bf16_f32 v{O0+i}, v{64+4*i}, v{66+4*i}')
        a.e(f'v_cvt_pk_bf16_f32 v{O1+i}, v{65+4*i}, v{67+4*i}')
    a.e(f's_mul_i32 s66, s{S_B}, 7168')
    a.e(f's_mul_i32 s67, s{S_W}, 1792')
    a.e('s_add_u32 s66, s66, s67')
    a.e(f's_add_u32 s66, s66, {WS_HH}')
    a.e('v_lshl_add_u32 v4, v1, 4, s66')
    a.e('v_add_u32 v5, 448, v4')
    a.e('v_cmp_gt_u32 vcc, 28, v1')
    a.e('v_cndmask_b32 v4, v5, v4, vcc')
    a.e(f'v_mov_b32 v5, {OOB}')
    a.e('v_cmp_gt_u32 vcc, 56, v1')
    a.e('v_cndmask_b32 v4, v5, v4, vcc')
    a.e(f'buffer_store_dwordx4 v[{O0}:{O0+3}], v4, s[{S_WS}:{S_WS+3}], 0 offen')
    a.e(f'buffer_store_dwordx4 v[{O1}:{O1+3}], v4, s[{S_WS}:{S_WS+3}], 0 offen offset:448')


ACC = 16
XS = 80
NS = 8


def gemm_xaddr(a, ws_off, kblocks):
    a.e(f's_mul_i32 s66, s{S_W}, {kblocks*7168}')
    a.e(f's_mul_i32 s67, s{S_J}, 896')
    a.e('s_add_u32 s66, s66, s67')
    a.e(f's_add_u32 s66, s66, {ws_off}')
    a.e('v_lshrrev_b32 v4, 4, v1')
    a.e('v_mul_u32_u24 v4, 7168, v4')
    a.e('v_and_b32 v5, 15, v1')
    a.e('v_lshl_add_u32 v4, v5, 4, v4')
    a.e('v_add_u32 v2, s66, v4')
    a.e('v_and_b32 v5, 7, v1')
    a.e('v_lshrrev_b32 v4, 4, v1')
    a.e('v_mul_u32_u24 v4, 7168, v4')
    a.e('v_lshl_add_u32 v4, v5, 4, v4')
    a.e('v_add_u32 v3, s66, v4')
    a.e('v_add_u32 v3, 768, v3')


def gemm_xload(a, kappa):
    st = XS + 16 * (kappa % NS)
    a.e(f's_mov_b32 s70, {kappa*4*7168}')
    for nu in range(3):
        a.e(f'buffer_load_dwordx4 v[{st+4*nu}:{st+4*nu+3}], v2, s[{S_WS}:{S_WS+3}], s70 offen offset:{256*nu}')
    a.e(f'buffer_load_dwordx4 v[{st+12}:{st+15}], v3, s[{S_WS}:{S_WS+3}], s70 offen')


def gemm_wload(a, nk, rowbytes, wptr, wbytes, coltile_sreg, rows_per_wave, extra_vm):
    srd(a, S_T0, wptr, wbytes)
    a.e('v_lshrrev_b32 v4, 3, v1')
    a.e(f's_mov_b32 s66, {rowbytes}')
    a.e('v_mul_lo_u32 v5, v4, s66')
    a.e('v_bfe_u32 v4, v1, 4, 1')
    a.e('v_lshlrev_b32 v4, 1, v4')
    a.e('v_and_b32 v6, 7, v1')
    a.e('v_xor_b32 v6, v6, v4')
    a.e(f's_mul_i32 s67, s{S_W}, {rows_per_wave*rowbytes}')
    a.e(f's_lshl_b32 s66, s{coltile_sreg}, 7')
    a.e('s_add_u32 s67, s67, s66')
    a.e('v_lshl_add_u32 v4, v6, 4, v5')
    a.e('v_add_u32 v208, s67, v4')
    a.e('v_xor_b32 v6, 4, v6')
    a.e('v_lshl_add_u32 v4, v6, 4, v5')
    a.e('v_add_u32 v209, s67, v4')
    a.e('v_lshrrev_b32 v4, 4, v1')
    a.e('v_bfe_u32 v5, v1, 2, 2')
    a.e('v_lshl_add_u32 v5, v4, 3, v5')
    a.e('v_lshlrev_b32 v5, 7, v5')
    a.e('v_and_b32 v6, 1, v1')
    a.e('v_lshl_add_u32 v5, v6, 3, v5')
    a.e('v_bfe_u32 v6, v1, 1, 1')
    a.e('v_lshl_add_u32 v5, v6, 4, v5')
    a.e(f's_lshl_b32 s66, s{S_W}, 14')
    a.e(f's_add_u32 s66, s66, {L_WRING}')
    a.e('v_add_u32 v5, s66, v5')
    a.e('v_bfe_u32 v6, v1, 3, 1')
    a.e('v_and_b32 v4, 1, v4')
    a.e('v_lshl_add_u32 v6, v4, 1, v6')
    for mu in range(4):
        a.e(f'v_xor_b32 v4, {mu}, v6')
        a.e(f'v_lshl_add_u32 v{210+mu}, v4, 5, v5')
    a.e(f's_mov_b32 s71, s66')

    def dma(kappa):
        for i in range(4):
            a.e(f's_add_u32 m0, s71, {(kappa % 4)*4096 + i*1024}')
            a.e(f's_mov_b32 s70, {(32*kappa + 8*i)*rowbytes}')
            a.e(f'buffer_load_dwordx4 v{208 + (i & 1)}, s[{S_T0}:{S_T0+3}], s70 offen lds')

    for k in range(min(4, nk)):
        dma(k)
    for k in range(nk):
        inflight = min(3, nk - 1 - k)
        a.e(f's_waitcnt vmcnt({4*inflight})')
        for mu in range(4):
            r = (k * 4 + mu) * 4
            a.e(f'ds_read_b64_tr_b16 a[{r}:{r+1}], v{210+mu} offset:{(k % 4)*4096}')
            a.e(f'ds_read_b64_tr_b16 a[{r+2}:{r+3}], v{210+mu} offset:{(k % 4)*4096 + 512}')
        if k + 4 < nk:
            a.e('s_waitcnt lgkmcnt(0)')
            dma(k + 4)
    a.e('s_waitcnt lgkmcnt(0)')


def gemm_main(a, nk, w_is_a):
    for k in range(nk):
        st = XS + 16 * (k % NS)
        rem = min(NS - 1, nk - 1 - k)
        a.e(f's_waitcnt vmcnt({4*rem})')
        for mu in range(4):
            for nu in range(4):
                w = (k * 4 + mu) * 4
                x = st + 4 * nu
                if w_is_a:
                    acc = ACC + (mu * 4 + nu) * 4
                    A, B = f'a[{w}:{w+3}]', f'v[{x}:{x+3}]'
                else:
                    acc = ACC + (nu * 4 + mu) * 4
                    A, B = f'v[{x}:{x+3}]', f'a[{w}:{w+3}]'
                cc = '0' if k == 0 else f'v[{acc}:{acc+3}]'
                a.e(f'v_mfma_f32_16x16x32_bf16 v[{acc}:{acc+3}], {A}, {B}, {cc}')
        if k + NS < nk:
            gemm_xload(a, k + NS)


def write_partials(a):
    a.e('v_and_b32 v4, 15, v1')
    a.e(f'v_mul_u32_u24 v4, {PROW}, v4')
    a.e('v_lshrrev_b32 v5, 4, v1')
    a.e('v_lshl_add_u32 v4, v5, 4, v4')
    a.e(f's_mul_i32 s66, s{S_W}, {PARTW}')
    a.e(f's_add_u32 s66, s66, {L_PART}')
    a.e('v_add_u32 v4, s66, v4')
    for mt in range(4):
        for nt in range(4):
            acc = ACC + (mt * 4 + nt) * 4
            a.e(f'ds_write_b128 v4, v[{acc}:{acc+3}] offset:{nt*16*PROW + mt*64}')
    a.e('s_waitcnt lgkmcnt(0)')
    a.e('s_barrier')


def round_pairs(a, src, dst_pk, n):
    for i in range(n // 2):
        a.e(f'v_cvt_pk_bf16_f32 v{dst_pk+i}, v{src+2*i}, v{src+2*i+1}')
    for i in range(n // 2):
        a.e(f'v_lshlrev_b32 v{src+2*i}, 16, v{dst_pk+i}')
        a.e(f'v_and_b32 v{src+2*i+1}, 0xffff0000, v{dst_pk+i}')


def phase_gemm1(a):
    gemm_xaddr(a, WS_HH, 64)
    for k in range(NS):
        gemm_xload(a, k)
    gemm_wload(a, 16, F * 2, P_W1, W1BYTES, S_I1, 512, 32)
    gemm_main(a, 16, True)
    write_partials(a)
    srd(a, S_T1, P_B1, F * 2)
    a.e(f'v_mul_u32_u24 v4, {PROW}, v1')
    a.e(f's_lshl_b32 s66, s{S_W}, 6')
    a.e(f's_add_u32 s66, s66, {L_PART}')
    a.e('v_add_u32 v4, s66, v4')
    a.e(f's_lshl_b32 s67, s{S_I1}, 7')
    a.e(f's_lshl_b32 s70, s{S_W}, 5')
    a.e('s_add_u32 s67, s67, s70')
    a.e(f's_load_dwordx8 s[72:79], s[{P_B1}:{P_B1+1}], s67')
    a.e(f's_lshl_b32 s66, s{S_I1}, 3')
    a.e(f's_lshl_b32 s70, s{S_W}, 1')
    a.e('s_add_u32 s66, s66, s70')
    a.e('s_mul_i32 s66, s66, 7168')
    a.e(f's_mul_i32 s70, s{S_J}, 896')
    a.e('s_add_u32 s66, s66, s70')
    a.e(f's_add_u32 s66, s66, {WS_G}')
    a.e('v_lshl_add_u32 v5, v1, 4, s66')
    a.e(f'v_mov_b32 v6, {OOB}')
    a.e('v_cmp_gt_u32 vcc, 56, v1')
    a.e('v_cndmask_b32 v5, v6, v5, vcc')
    for r in range(2):
        P = 16 + 32 * r
        for wv in range(4):
            a.e(f'ds_read_b128 v[{P+8*wv}:{P+8*wv+3}], v4 offset:{wv*PARTW + r*32}')
            a.e(f'ds_read_b128 v[{P+8*wv+4}:{P+8*wv+7}], v4 offset:{wv*PARTW + r*32 + 16}')
    a.e('s_waitcnt lgkmcnt(0)')
    for i in range(8):
        a.e(f's_lshl_b32 s{80+2*i}, s{72+i}, 16')
        a.e(f's_and_b32 s{81+2*i}, s{72+i}, 0xffff0000')
    C1 = 0.044715
    C2 = -2.0 * 0.7978845608028654 * 1.4426950408889634
    a.e(f'v_mov_b32 v100, {fx(C1*C2)}')
    a.e(f'v_mov_b32 v101, {fx(C1*C2)}')
    a.e(f'v_mov_b32 v102, {fx(C2)}')
    a.e(f'v_mov_b32 v103, {fx(C2)}')
    for r in range(2):
        P = 16 + 32 * r
        T = 80 + 0
        for h in range(4):
            a.e(f'v_pk_add_f32 v[{P+2*h}:{P+2*h+1}], v[{P+2*h}:{P+2*h+1}], v[{P+8+2*h}:{P+9+2*h}]')
            a.e(f'v_pk_add_f32 v[{P+16+2*h}:{P+17+2*h}], v[{P+16+2*h}:{P+17+2*h}], v[{P+24+2*h}:{P+25+2*h}]')
        for h in range(4):
            a.e(f'v_pk_add_f32 v[{P+2*h}:{P+2*h+1}], v[{P+2*h}:{P+2*h+1}], v[{P+16+2*h}:{P+17+2*h}]')
        round_pairs(a, P, T, 8)
        for h in range(4):
            a.e(f'v_pk_add_f32 v[{P+2*h}:{P+2*h+1}], v[{P+2*h}:{P+2*h+1}], s[{80+8*r+2*h}:{81+8*r+2*h}]')
        round_pairs(a, P, T, 8)
        for h in range(4):
            a.e(f'v_pk_mul_f32 v[{P+8+2*h}:{P+9+2*h}], v[{P+2*h}:{P+2*h+1}], v[{P+2*h}:{P+2*h+1}]')
        for h in range(4):
            a.e(f'v_pk_fma_f32 v[{P+8+2*h}:{P+9+2*h}], v[{P+8+2*h}:{P+9+2*h}], v[100:101], v[102:103]')
        for h in range(4):
            a.e(f'v_pk_mul_f32 v[{P+8+2*h}:{P+9+2*h}], v[{P+8+2*h}:{P+9+2*h}], v[{P+2*h}:{P+2*h+1}]')
        for i in range(8):
            a.e(f'v_exp_f32 v{P+8+i}, v{P+8+i}')
        for h in range(4):
            a.e(f'v_pk_add_f32 v[{P+8+2*h}:{P+9+2*h}], v[{P+8+2*h}:{P+9+2*h}], 1.0 op_sel_hi:[1,0]')
        for i in range(8):
            a.e(f'v_rcp_f32 v{P+8+i}, v{P+8+i}')
        for h in range(4):
            a.e(f'v_pk_mul_f32 v[{P+2*h}:{P+2*h+1}], v[{P+2*h}:{P+2*h+1}], v[{P+8+2*h}:{P+9+2*h}]')
        O = 88 + 4 * r
        for h in range(4):
            a.e(f'v_cvt_pk_bf16_f32 v{O+h}, v{P+2*h}, v{P+2*h+1}')
        if r == 1:
            a.e('v_add_u32 v5, 7168, v5')
        a.e(f'buffer_store_dwordx4 v[{O}:{O+3}], v5, s[{S_WS}:{S_WS+3}], 0 offen')


def phase_gemm2(a):
    gemm_xaddr(a, WS_G, 56)
    for k in range(NS):
        gemm_xload(a, k)
    gemm_wload(a, 14, L * 2, P_W2, W2BYTES, S_I2, 448, 32)
    gemm_main(a, 14, False)
    write_partials(a)
    srd(a, S_T1, P_OUT, XBYTES)
    a.e('v_lshrrev_b32 v4, 3, v1')
    a.e('v_and_b32 v5, 7, v1')
    a.e(f's_lshl_b32 s66, s{S_W}, 4')
    a.e('v_add_u32 v4, s66, v4')
    a.e(f'v_mul_u32_u24 v6, {PROW}, v4')
    a.e('v_lshl_add_u32 v6, v5, 4, v6')
    a.e(f'v_add_u32 v6, {L_PART}, v6')
    a.e(f's_lshl_b32 s67, s{S_I2}, 6')
    a.e('v_add_u32 v7, s67, v4')
    a.e('v_mul_u32_u24 v8, 896, v7')
    a.e('v_lshl_add_u32 v8, v5, 4, v8')
    a.e(f's_mul_i32 s70, s{S_J}, 112')
    a.e('v_add_u32 v8, s70, v8')
    a.e(f'v_mov_b32 v9, {OOB}')
    a.e('v_cmp_gt_u32 vcc, 7, v5')
    a.e('v_cndmask_b32 v8, v9, v8, vcc')
    a.e(f'v_add_u32 v9, {WS_H}, v8')
    srd(a, S_T2, P_B2, L * 2)
    a.e('v_lshlrev_b32 v7, 1, v7')
    for r in range(2):
        a.e(f'buffer_load_dwordx4 v[{96+4*r}:{99+4*r}], v9, s[{S_WS}:{S_WS+3}], 0 offen')
        if r == 0:
            a.e(f'v_add_u32 v9, {8*896}, v9')
        a.e(f'buffer_load_ushort v{104+r}, v7, s[{S_T2}:{S_T2+3}], 0 offen offset:{16*r}')
    for r in range(2):
        P = 16 + 32 * r
        for wv in range(4):
            a.e(f'ds_read_b128 v[{P+8*wv}:{P+8*wv+3}], v6 offset:{wv*PARTW + r*8*PROW}')
            a.e(f'ds_read_b128 v[{P+8*wv+4}:{P+8*wv+7}], v6 offset:{wv*PARTW + r*8*PROW + 112}')
    a.e('s_waitcnt lgkmcnt(0) vmcnt(0)')
    for r in range(2):
        P = 16 + 32 * r
        T = 80
        for h in range(4):
            a.e(f'v_pk_add_f32 v[{P+2*h}:{P+2*h+1}], v[{P+2*h}:{P+2*h+1}], v[{P+8+2*h}:{P+9+2*h}]')
            a.e(f'v_pk_add_f32 v[{P+16+2*h}:{P+17+2*h}], v[{P+16+2*h}:{P+17+2*h}], v[{P+24+2*h}:{P+25+2*h}]')
        for h in range(4):
            a.e(f'v_pk_add_f32 v[{P+2*h}:{P+2*h+1}], v[{P+2*h}:{P+2*h+1}], v[{P+16+2*h}:{P+17+2*h}]')
        round_pairs(a, P, T, 8)
        a.e(f'v_lshlrev_b32 v{106}, 16, v{104+r}')
        for h in range(4):
            a.e(f'v_pk_add_f32 v[{P+2*h}:{P+2*h+1}], v[{P+2*h}:{P+2*h+1}], v[106:107] op_sel:[0,0] op_sel_hi:[1,0]')
        round_pairs(a, P, T, 8)
        H = 96 + 4 * r
        for i in range(4):
            a.e(f'v_lshlrev_b32 v{P+8+i}, 16, v{H+i}')
            a.e(f'v_and_b32 v{P+12+i}, 0xffff0000, v{H+i}')
        for h in range(4):
            a.e(f'v_pk_add_f32 v[{P+2*h}:{P+2*h+1}], v[{P+2*h}:{P+2*h+1}], v[{P+8+2*h}:{P+9+2*h}]')
        O = 88 + 4 * r
        for i in range(4):
            a.e(f'v_cvt_pk_bf16_f32 v{O+i}, v{P+i}, v{P+4+i}')
        if r == 1:
            a.e(f'v_add_u32 v8, {8*896}, v8')
        a.e(f'buffer_store_dwordx4 v[{O}:{O+3}], v8, s[{S_T1}:{S_T1+3}], 0 offen')


def kernel(a, name, body, nwg=256):
    lend = a.lab('end')
    a.raw(f'.globl {name}')
    a.raw('.p2align 8')
    a.raw(f'.type {name},@function')
    a.raw(f'{name}:')
    prologue(a, nwg, lend)
    body(a, lend)
    a.e(f'{lend}:')
    a.e('s_endpgm')


def descriptor(name):
    return f'''.amdhsa_kernel {name}
  .amdhsa_next_free_vgpr 512
  .amdhsa_next_free_sgpr 102
  .amdhsa_accum_offset 256
  .amdhsa_group_segment_fixed_size 0
  .amdhsa_kernarg_size 120
  .amdhsa_user_sgpr_count 2
  .amdhsa_user_sgpr_kernarg_segment_ptr 1
  .amdhsa_system_sgpr_workgroup_id_x 1
  .amdhsa_float_denorm_mode_32 3
.end_amdhsa_kernel
'''


def skip_if_loc_ge28(a, lend):
    a.e(f's_cmp_ge_u32 s{S_LOC}, 28')
    a.e(f's_cbranch_scc1 {lend}')


def build_multi():
    a = Prog()
    names = ['k1_stats_kernel', 'k2_conv_kernel', 'k3_ln_kernel', 'k4_gemm1_kernel', 'k5_gemm2_kernel']

    def b1(a, lend):
        phase_p1(a)

    def b2(a, lend):
        skip_if_loc_ge28(a, lend)
        kgen_loads(a)
        load_gather_table(a, 'ktab_idx')
        conv_loads(a)
        stats_loads(a)
        a.e('s_waitcnt vmcnt(0) lgkmcnt(0)')
        phase_kgen(a)
        phase_norm(a)
        phase_conv(a)

    def b3(a, lend):
        phase_p4(a)

    def b4(a, lend):
        skip_if_loc_ge28(a, lend)
        phase_gemm1(a)

    def b5(a, lend):
        phase_gemm2(a)

    for n, b in zip(names, (b1, b2, b3, b4, b5)):
        kernel(a, n, b)
        if n == 'k2_conv_kernel':
            emit_gather_table(a, 'ktab_idx')
    nn = a.fast_insert_nops()
    head = ''
    for n in names:
        head += f'; @launch kernel={n} grid=(256,1,1) block=(256,1,1) lds={LDS_BYTES}\n'
    head += '.amdgcn_target "amdgcn-amd-amdhsa--gfx950"\n.text\n'
    tail = '.section .rodata,"a"\n'
    for n in names:
        tail += '.p2align 6\n' + descriptor(n)
    sys.stderr.write(f'instructions: {a.count()}, nops inserted: {nn}\n')
    return head + a.text() + tail


if __name__ == '__main__':
    out = sys.argv[1] if len(sys.argv) > 1 else 'multi.s'
    open(out, 'w').write(build_multi())
```

```python
import sys, struct
import numpy as np
from asmlib import Prog

NAME = 'sequential_preLN__ssm_conv_s4d__mixer_token_mlp__prompt'

L, D, NM, F = 2048, 448, 256, 1792
XBYTES = L * D * 2
PBYTES = D * NM * 2
W1BYTES = L * F * 2
W2BYTES = F * L * 2

WS_STATS = 0x0
WS_EPOCH = 0x8000
WS_AOUT = 0x10000
WS_H = 0x200000
WS_HH = 0x400000
WS_G = 0x600000
WS_DBG = 0x800000
WS_USED = 0x1000000
OOB = 0x40000000

L_RED0 = 0
L_RED1 = 256
L_SIG = 512
L_KT = 640
KTCH = 1600
L_U = L_KT + 2 * KTCH
UCH = 4608
L_KC = L_U + 2 * UCH
KCOPY = 4160
KCH = 8 * KCOPY
L_SCR = L_KC + 2 * KCH
SROW = 272
SCRW = 64 * SROW
LDS_BYTES = 160 * 1024
L_WRING = 1024
L_PART = 66560
PROW = 272
PARTW = 64 * PROW

S_WS = 4
S_X = 8
S_T0, S_T1, S_T2, S_T3 = 12, 16, 20, 24
S_W, S_XCD, S_LOC, S_B, S_P, S_J, S_I1, S_I2 = 28, 29, 30, 31, 32, 33, 34, 35
P_X, P_LAR, P_AI, P_CR, P_CI, P_LDT, P_DSK = 36, 38, 40, 42, 44, 46, 48
P_W1, P_B1, P_W2, P_B2, P_OUT, P_DBG, P_WS = 52, 54, 56, 58, 60, 62, 64


STAMPS = False
PERS = False
S_TAG = 96
S_SPIN = 97
S_RETRY = 98
SPIN_MAX = 4000
RETRY_MAX = 20


def SC():
    return ' sc1' if PERS else ''


KIDX = [0]


def stamp(a, idx):
    if not STAMPS:
        return
    a.e('s_memrealtime s[100:101]')
    a.e('s_waitcnt lgkmcnt(0)')
    a.e(f'v_writelane_b32 v255, s100, {idx}')


def stamp_flush(a):
    if not STAMPS:
        return
    l = a.lab('nost')
    a.e(f's_cmp_lg_u32 s{S_W}, 0')
    a.e(f's_cbranch_scc1 {l}')
    a.e(f's_lshl_b32 s66, s2, 8')
    a.e(f's_add_u32 s66, s66, {WS_DBG} + {0x10000}*{KIDX[0]}')
    a.e('v_lshl_add_u32 v254, v1, 2, s66')
    a.e(f'buffer_store_dword v255, v254, s[{S_WS}:{S_WS+3}], 0 offen')
    a.e(f'{l}:')


def f2u(x):
    return struct.unpack('<I', struct.pack('<f', x))[0]


def fx(x):
    return '0x%08x' % f2u(x)


def srd(a, dst, ptr, nbytes):
    a.e(f's_mov_b32 s{dst}, s{ptr}')
    a.e(f's_and_b32 s{dst+1}, s{ptr+1}, 0xffff')
    a.e(f's_mov_b32 s{dst+2}, {nbytes}')
    a.e(f's_mov_b32 s{dst+3}, 0x00020000')


def prologue(a, nwg, lend):
    a.e(f's_cmp_ge_u32 s2, {nwg}')
    a.e(f's_cbranch_scc1 {lend}')
    if STAMPS:
        a.e('v_mov_b32 v255, 0')
        stamp(a, 0)
    a.e('s_load_dwordx16 s[36:51], s[0:1], 0')
    a.e('s_load_dwordx8 s[52:59], s[0:1], 64')
    a.e('s_load_dwordx4 s[60:63], s[0:1], 96')
    a.e('s_load_dwordx2 s[64:65], s[0:1], 112')
    a.e('v_and_b32 v1, 63, v0')
    a.e('v_lshrrev_b32 v2, 6, v0')
    a.e(f's_and_b32 s{S_XCD}, s2, 7')
    a.e(f'v_readfirstlane_b32 s{S_W}, v2')
    a.e(f's_lshr_b32 s{S_LOC}, s2, 3')
    a.e(f's_lshl_b32 s{S_B}, s{S_XCD}, 5')
    a.e(f's_add_u32 s{S_B}, s{S_B}, s{S_LOC}')
    a.e(f's_mul_i32 s{S_P}, s{S_XCD}, 28')
    a.e(f's_add_u32 s{S_P}, s{S_P}, s{S_LOC}')
    a.e(f's_and_b32 s{S_J}, s{S_XCD}, 1')
    a.e(f's_lshl_b32 s{S_J}, s{S_J}, 2')
    a.e(f's_and_b32 s3, s{S_LOC}, 3')
    a.e(f's_add_u32 s{S_J}, s{S_J}, s3')
    a.e(f's_lshr_b32 s3, s{S_XCD}, 1')
    a.e(f's_lshr_b32 s66, s{S_LOC}, 2')
    a.e(f's_mul_i32 s{S_I1}, s3, 7')
    a.e(f's_add_u32 s{S_I1}, s{S_I1}, s66')
    a.e(f's_lshl_b32 s{S_I2}, s3, 3')
    a.e(f's_add_u32 s{S_I2}, s{S_I2}, s66')
    a.e('s_waitcnt lgkmcnt(0)')
    srd(a, S_WS, P_WS, WS_USED)
    srd(a, S_X, P_X, XBYTES)
    stamp(a, 1)


def reduce16(a, V):
    for i in range(8):
        a.e(f'v_permlane32_swap_b32 v{V[i]}, v{V[i+8]}')
    for i in range(8):
        a.e(f'v_add_f32 v{V[i]}, v{V[i]}, v{V[i+8]}')
    for i in range(4):
        a.e(f'v_permlane16_swap_b32 v{V[i]}, v{V[i+4]}')
    for i in range(4):
        a.e(f'v_add_f32 v{V[i]}, v{V[i]}, v{V[i+4]}')
    for i in range(2):
        a.e(f'v_add_f32_dpp v{V[i]}, v{V[i]}, v{V[i]} row_ror:8 row_mask:0xf bank_mask:0x3')
    for i in range(2):
        a.e(f'v_add_f32_dpp v{V[i]}, v{V[i+2]}, v{V[i+2]} row_ror:8 row_mask:0xf bank_mask:0xc')
    a.e(f'v_add_f32_dpp v{V[0]}, v{V[0]}, v{V[0]} row_half_mirror row_mask:0xf bank_mask:0x5')
    a.e(f'v_add_f32_dpp v{V[0]}, v{V[1]}, v{V[1]} row_half_mirror row_mask:0xf bank_mask:0xa')
    a.e(f'v_add_f32_dpp v{V[0]}, v{V[0]}, v{V[0]} quad_perm:[1,0,3,2] row_mask:0xf bank_mask:0xf')
    a.e(f'v_add_f32_dpp v{V[0]}, v{V[0]}, v{V[0]} quad_perm:[2,3,0,1] row_mask:0xf bank_mask:0xf')


def ln_stats(a, X, T, red, vt):
    a.e('s_mov_b32 s66, 0x3f803f80')
    for j in range(8):
        a.e(f'v_dot2_f32_bf16 v{T+j}, v{X[j]}, s66, 0')
        a.e(f'v_dot2_f32_bf16 v{T+8+j}, v{X[j]}, v{X[j]}, 0')
    reduce16(a, [T + i for i in range(16)])
    a.e(f'v_lshrrev_b32 v{vt}, 2, v1')
    a.e(f'v_lshlrev_b32 v{vt}, 4, v{vt}')
    a.e(f's_lshl_b32 s66, s{S_W}, 2')
    a.e(f'v_add_u32 v{vt}, s66, v{vt}')
    a.e('s_mov_b32 exec_lo, 0x11111111')
    a.e('s_mov_b32 exec_hi, 0x11111111')
    a.e(f'ds_write_b32 v{vt}, v{T} offset:{red}')
    a.e('s_mov_b64 exec, -1')
    a.e(f'v_and_b32 v{vt}, 7, v1')
    a.e(f'v_lshlrev_b32 v{vt}, 4, v{vt}')
    a.e('s_waitcnt lgkmcnt(0)')
    a.e('s_barrier')
    a.e(f'ds_read_b128 v[{T}:{T+3}], v{vt} offset:{red}')
    a.e(f'ds_read_b128 v[{T+4}:{T+7}], v{vt} offset:{red+128}')
    a.e('s_waitcnt lgkmcnt(1)')
    a.e(f'v_pk_add_f32 v[{T}:{T+1}], v[{T}:{T+1}], v[{T+2}:{T+3}]')
    a.e('s_waitcnt lgkmcnt(0)')
    a.e(f'v_pk_add_f32 v[{T+4}:{T+5}], v[{T+4}:{T+5}], v[{T+6}:{T+7}]')
    a.e(f'v_add_f32 v{T}, v{T}, v{T+1}')
    a.e(f'v_add_f32 v{T+4}, v{T+4}, v{T+5}')
    a.e(f'v_mul_f32 v{T}, {fx(1.0/448)}, v{T}')
    a.e(f'v_mul_f32 v{T+4}, {fx(1.0/448)}, v{T+4}')
    a.e(f'v_fma_f32 v{T+4}, -v{T}, v{T}, v{T+4}')
    a.e(f'v_max_f32 v{T+4}, 0, v{T+4}')
    a.e(f'v_cvt_pk_bf16_f32 v{T+4}, v{T+4}, v{T+4}')
    a.e(f'v_lshlrev_b32 v{T+4}, 16, v{T+4}')
    a.e(f'v_add_f32 v{T+4}, {fx(1e-5)}, v{T+4}')
    a.e(f'v_cvt_pk_bf16_f32 v{T+4}, v{T+4}, v{T+4}')
    a.e(f'v_lshlrev_b32 v{T+4}, 16, v{T+4}')
    a.e(f'v_sqrt_f32 v{T+4}, v{T+4}')
    a.e(f'v_cvt_pk_bf16_f32 v{T}, v{T}, v{T+4}')


def xrow_addr(a):
    a.e(f's_mul_i32 s66, s{S_W}, 224')
    a.e(f's_mul_i32 s67, s{S_B}, {8*896}')
    a.e('s_add_u32 s66, s66, s67')
    a.e('v_lshl_add_u32 v2, v1, 2, s66')
    a.e(f'v_mov_b32 v3, {OOB}')
    a.e('v_cmp_gt_u32 vcc, 56, v1')
    a.e('v_cndmask_b32 v2, v3, v2, vcc')
    a.e('v_add_u32 v3, 4480, v2')


def load_xrows(a, X):
    xrow_addr(a)
    for j in range(5):
        a.e(f'buffer_load_dword v{X[j]}, v2, s[{S_X}:{S_X+3}], 0 offen offset:{j*896}')
    for j in range(5, 8):
        a.e(f'buffer_load_dword v{X[j]}, v3, s[{S_X}:{S_X+3}], 0 offen offset:{(j-5)*896}')


def phase_p1(a, wait_x=0, wait_pub=None):
    X = list(range(8, 16))
    if not PERS:
        load_xrows(a, X)
    a.e(f's_waitcnt vmcnt({wait_x})')
    stamp(a, 2)
    ln_stats(a, X, 16, L_RED0, 4)
    stamp(a, 3)
    if wait_pub is not None:
        a.e(f's_waitcnt vmcnt({wait_pub})')
        a.e('s_barrier')
    lskip = a.lab('p1skip')
    a.e(f's_cmp_lg_u32 s{S_W}, 0')
    a.e(f's_cbranch_scc1 {lskip}')
    a.e(f's_lshl_b32 s66, s{S_B}, 6')
    a.e(f's_add_u32 s66, s66, {WS_STATS}')
    a.e('v_lshl_add_u32 v2, v1, 3, s66')
    a.e(f'v_mov_b32 v17, s{S_TAG}' if PERS else 'v_mov_b32 v17, 0')
    a.e('s_mov_b64 exec, 0xff')
    a.e(f'buffer_store_dwordx2 v[16:17], v2, s[{S_WS}:{S_WS+3}], 0 offen{SC()}')
    a.e('s_mov_b64 exec, -1')
    a.e(f'{lskip}:')


POS_OF_ROW = [0, 1, 2, 3, 4, 5, 6, 7, 128, 129, 130, 131, 132, 133, 134, 135, 256, 258, 260, 262, 384, 386, 388, 390,
              512, 516, 640, 644, 768, 772, 896, 900, 1024, 1152, 1280, 1408, 1536, 1664, 1792, 1920, 2048]


def bf16_round_int(l):
    f = np.array([l], dtype=np.float32)
    u = f.view(np.uint32)
    r = ((u + 0x7FFF + ((u >> 16) & 1)) >> 16).astype(np.uint32) << 16
    return int(r.view(np.float32)[0])


def rowcol(pos):
    if pos < 256:
        return (8 * (pos >> 7) + (pos & 7), (pos & 127) >> 3)
    if pos < 512:
        p = pos - 256
        return (16 + 4 * (p >> 7) + ((p & 7) >> 1), (p & 127) >> 3)
    if pos < 1024:
        p = pos - 512
        return (24 + 2 * (p >> 7) + ((p & 7) >> 2), (p & 127) >> 3)
    p = pos - 1024
    return (32 + (p >> 7), (p & 127) >> 3)


def gather_table():
    tab = []
    for m in range(256):
        for e in range(16):
            idx = 2047 - 8 * m - e
            if idx < 0 or e == 15:
                tab.append(1536)
            else:
                r, c = rowcol(bf16_round_int(idx))
                assert POS_OF_ROW[r] + 8 * c == bf16_round_int(idx)
                tab.append((r * 16 + c) * 2)
    return tab


def cmul(a, d, x, y, t):
    a.e(f'v_pk_mul_f32 v[{t}:{t+1}], v[{x}:{x+1}], v[{y}:{y+1}] op_sel:[0,0] op_sel_hi:[1,0]')
    a.e(f'v_pk_fma_f32 v[{d}:{d+1}], v[{x}:{x+1}], v[{y}:{y+1}], v[{t}:{t+1}] op_sel:[1,1,0] op_sel_hi:[0,1,1] neg_lo:[1,0,0]')


LOG2E_HI = 1.44268798828125
LOG2E_LO_LN2 = (1.4426950408889634 - 1.44268798828125) * 0.6931471805599453


def exp_bf16(a, d, x, t):
    a.e(f'v_mul_f32 v{t}, {fx(LOG2E_HI)}, v{x}')
    a.e(f'v_exp_f32 v{t}, v{t}')
    a.e(f'v_mul_f32 v{d}, {fx(LOG2E_LO_LN2)}, v{x}')
    a.e(f'v_fma_f32 v{d}, v{t}, v{d}, v{t}')
    a.e(f'v_cvt_pk_bf16_f32 v{d}, v{d}, v{d}')
    a.e(f'v_lshlrev_b32 v{d}, 16, v{d}')


def kgen_loads(a):
    srd(a, S_T0, P_LAR, PBYTES)
    srd(a, S_T1, P_AI, PBYTES)
    srd(a, S_T2, P_CR, PBYTES)
    srd(a, S_T3, P_CI, PBYTES)
    a.e(f's_lshl_b32 s66, s{S_P}, 10')
    a.e(f's_lshl_b32 s67, s{S_W}, 7')
    a.e('s_add_u32 s66, s66, s67')
    a.e('v_lshl_add_u32 v2, v1, 1, s66')
    for c in range(2):
        for k, s in enumerate((S_T0, S_T1, S_T2, S_T3)):
            a.e(f'buffer_load_ushort v{40+4*c+k}, v2, s[{s}:{s+3}], 0 offen offset:{512*c}')
    a.e(f's_lshl_b32 s66, s{S_P}, 2')
    a.e(f's_load_dword s68, s[{P_LDT}:{P_LDT+1}], s66')
    a.e(f's_load_dword s69, s[{P_DSK}:{P_DSK+1}], s66')


def kgen_channel(a, c, DACC):
    LAR, AI, CR, CI = 40 + 4 * c, 41 + 4 * c, 42 + 4 * c, 43 + 4 * c
    SIG, DT = 52 + c, 54 + c
    AL, BE = 56, 57
    Z1, Z2, Z4, Z8, Z128, Z256, Z512, Z1024 = 58, 60, 62, 64, 66, 68, 70, 72
    X0, CA, CB, CC, T0, T1 = 74, 76, 78, 80, 82, 84
    CV = [86, 87, 88, 89]
    VW = 90
    t, t2 = 92, 93
    for r in (LAR, AI, CR, CI):
        a.e(f'v_lshlrev_b32 v{r}, 16, v{r}')
    if c == 0:
        a.e(f's_lshl_b32 s66, s68, 16')
    else:
        a.e(f's_and_b32 s66, s68, 0xffff0000')
    a.e(f'v_mov_b32 v{t2}, s66')
    exp_bf16(a, DT, t2, t)
    a.e(f'v_add_f32 v{SIG}, abs(v{CR}), abs(v{CI})')
    exp_bf16(a, AL, LAR, t)
    a.e(f'v_add_f32_dpp v{SIG}, v{SIG}, v{SIG} quad_perm:[1,0,3,2] row_mask:0xf bank_mask:0xf')
    a.e(f'v_mul_f32 v{AL}, v{AL}, v{DT}')
    a.e(f'v_mul_f32 v{BE}, v{AI}, v{DT}')
    a.e(f'v_add_f32_dpp v{SIG}, v{SIG}, v{SIG} quad_perm:[2,3,0,1] row_mask:0xf bank_mask:0xf')
    a.e(f'v_mul_f32 v{AL}, {fx(-1.4426950408889634)}, v{AL}')
    a.e(f'v_mul_f32 v{BE}, {fx(0.15915494309189535)}, v{BE}')
    a.e(f'v_add_f32_dpp v{SIG}, v{SIG}, v{SIG} row_half_mirror row_mask:0xf bank_mask:0xf')
    a.e(f'v_exp_f32 v{T0}, v{AL}')
    a.e(f'v_fract_f32 v{t}, v{BE}')
    a.e(f'v_add_f32_dpp v{SIG}, v{SIG}, v{SIG} row_ror:8 row_mask:0xf bank_mask:0xf')
    a.e(f'v_cos_f32 v{Z1}, v{t}')
    a.e(f'v_sin_f32 v{Z1+1}, v{t}')
    a.e(f'v_mov_b32 v{t2}, v{SIG}')
    a.e(f'v_mul_f32 v{T1}, 0x43000000, v{AL}')
    a.e(f'v_mul_f32 v{t}, 0x43000000, v{BE}')
    a.e(f'v_permlane16_swap_b32 v{SIG}, v{t2}')
    a.e(f'v_pk_mul_f32 v[{Z1}:{Z1+1}], v[{Z1}:{Z1+1}], v[{T0}:{T0+1}] op_sel:[0,0] op_sel_hi:[1,0]')
    a.e(f'v_add_f32 v{SIG}, v{SIG}, v{t2}')
    a.e(f'v_exp_f32 v{T1}, v{T1}')
    a.e(f'v_fract_f32 v{t}, v{t}')
    a.e(f'v_mov_b32 v{t2}, v{SIG}')
    a.e(f'v_cos_f32 v{Z128}, v{t}')
    a.e(f'v_sin_f32 v{Z128+1}, v{t}')
    a.e(f'v_permlane32_swap_b32 v{SIG}, v{t2}')
    cmul(a, Z2, Z1, Z1, Z2)
    a.e(f'v_add_f32 v{SIG}, v{SIG}, v{t2}')
    a.e(f'v_pk_mul_f32 v[{Z128}:{Z128+1}], v[{Z128}:{Z128+1}], v[{T1}:{T1+1}] op_sel:[0,0] op_sel_hi:[1,0]')
    a.e(f'v_add_f32 v{SIG}, {fx(1e-30)}, v{SIG}')
    cmul(a, Z4, Z2, Z2, Z4)
    a.e(f'v_rcp_f32 v{t}, v{SIG}')
    cmul(a, Z256, Z128, Z128, Z256)
    cmul(a, Z8, Z4, Z4, Z8)
    a.e(f'v_mul_f32 v{X0}, v{CR}, v{t}')
    a.e(f'v_mul_f32 v{X0+1}, v{CI}, v{t}')
    cmul(a, Z512, Z256, Z256, Z512)
    a.e(f's_mul_i32 s66, s{S_W}, {SCRW}')
    a.e(f's_add_u32 s66, s66, {L_SCR}')
    a.e(f'v_lshl_add_u32 v{VW}, v1, 2, s66')
    cmul(a, Z1024, Z512, Z512, Z1024)
    cvi = [0]

    def putX(row, r):
        cv = CV[cvi[0] % 4]
        cvi[0] += 1
        a.e(f'v_cvt_pk_f16_f32 v{cv}, v{r}, -v{r+1}')
        a.e(f'ds_write_b32 v{VW}, v{cv} offset:{row*SROW}')

    def putY(b, r):
        cv = CV[cvi[0] % 4]
        cvi[0] += 1
        a.e(f'v_cvt_pk_f16_f32 v{cv}, v{r}, v{r+1}')
        a.e(f'ds_write_b32 v{VW}, v{cv} offset:{(48+b)*SROW}')

    a.e(f'v_mov_b32 v{CV[3]}, 0x00003c00')
    a.e(f'ds_write_b32 v{VW}, v{CV[3]} offset:{48*SROW}')
    putY(1, Z8)
    ychain = {'cur': Z8, 'b': 1}
    YA, YB = CC, 94

    def ystep():
        if ychain['b'] >= 15:
            return
        d = YA if ychain['cur'] != YA else YB
        cmul(a, d, ychain['cur'], Z8, d)
        ychain['b'] += 1
        ychain['cur'] = d
        putY(ychain['b'], d)

    putX(0, X0)
    cmul(a, T0, X0, Z128, T0)
    putX(8, T0)
    cur = X0
    for j in range(1, 8):
        d = CA if cur != CA else CB
        cmul(a, d, cur, Z1, d)
        ystep()
        putX(j, d)
        cmul(a, T0, d, Z128, T0)
        putX(8 + j, T0)
        cur = d
    cmul(a, CA, X0, Z256, CA)
    ystep()
    putX(16, CA)
    cmul(a, T0, CA, Z128, T0)
    putX(20, T0)
    cur = CA
    for j in range(1, 4):
        d = CA if cur != CA else CB
        cmul(a, d, cur, Z2, d)
        ystep()
        putX(16 + j, d)
        cmul(a, T0, d, Z128, T0)
        putX(20 + j, T0)
        cur = d
    cmul(a, CA, X0, Z512, CA)
    ystep()
    putX(24, CA)
    cmul(a, CB, CA, Z4, CB)
    ystep()
    putX(25, CB)
    pa, pb = CA, CB
    na, nb = T0, T1
    for q in range(1, 4):
        cmul(a, na, pa, Z128, na)
        cmul(a, nb, pb, Z128, nb)
        ystep()
        putX(24 + 2 * q, na)
        putX(25 + 2 * q, nb)
        pa, pb, na, nb = na, nb, pa, pb
    cmul(a, CA, X0, Z1024, CA)
    putX(32, CA)
    cur = CA
    for q in range(1, 9):
        d = CA if cur != CA else CB
        cmul(a, d, cur, Z128, d)
        putX(32 + q, d)
        cur = d
    while ychain['b'] < 15:
        ystep()
    FA = 96
    VR = 91
    a.e(f'v_and_b32 v{t}, 15, v1')
    a.e(f'v_mul_u32_u24 v{t}, {SROW}, v{t}')
    a.e(f'v_lshrrev_b32 v{t2}, 4, v1')
    a.e(f'v_lshl_add_u32 v{t}, v{t2}, 4, v{t}')
    a.e(f'v_add_u32 v{VR}, s66, v{t}')
    for k in range(4):
        a.e(f'ds_read_b128 v[{144+4*k}:{147+4*k}], v{VR} offset:{48*SROW+64*k}')
        for T in range(3):
            r = FA + 16 * T + 4 * k
            a.e(f'ds_read_b128 v[{r}:{r+3}], v{VR} offset:{16*T*SROW+64*k}')
    for k in range(4):
        a.e(f's_waitcnt lgkmcnt({4*(3-k)})')
        for T in range(3):
            r = FA + 16 * T + 4 * k
            cc = '0' if k == 0 else f'v[{DACC+4*T}:{DACC+4*T+3}]'
            a.e(f'v_mfma_f32_16x16x32_f16 v[{DACC+4*T}:{DACC+4*T+3}], v[{r}:{r+3}], v[{144+4*k}:{147+4*k}], {cc}')


DK0, DK1 = 16, 28


def phase_kgen(a):
    kgen_channel(a, 0, DK0)
    kgen_channel(a, 1, DK1)
    stamp(a, 5 if PERS else 3)
    a.e(f's_mul_i32 s66, s{S_W}, {SCRW}')
    a.e(f's_add_u32 s66, s66, {L_SCR}')
    a.e('v_lshl_add_u32 v90, v1, 4, s66')
    for c, DK in ((0, DK0), (1, DK1)):
        for i in range(0, 12, 2):
            a.e(f'v_pk_mul_f32 v[{DK+i}:{DK+i+1}], v[{DK+i}:{DK+i+1}], v[{52}:{53}] op_sel:[0,{c}] op_sel_hi:[1,{c}]')
    for c, DK in ((0, DK0), (1, DK1)):
        for T in range(3):
            a.e(f'ds_write_b128 v90, v[{DK+4*T}:{DK+4*T+3}] offset:{c*3072+T*1024}')
    a.e(f's_lshl_b32 s67, s{S_W}, 2')
    a.e(f's_add_u32 s67, s67, {L_SIG}')
    a.e('v_mov_b32 v91, s67')
    a.e('s_mov_b64 exec, 1')
    a.e('ds_write_b32 v91, v52')
    a.e('ds_write_b32 v91, v53 offset:16')
    a.e('s_mov_b64 exec, -1')
    a.e('v_mov_b32 v92, 0')
    a.e('v_mov_b32 v93, 0')
    a.e('v_mov_b32 v94, 0')
    a.e('v_mov_b32 v95, 0')
    a.e('s_waitcnt lgkmcnt(0)')
    a.e('s_barrier')
    a.e(f'v_mov_b32 v91, {L_SIG}')
    a.e('ds_read_b128 v[44:47], v91')
    a.e('ds_read_b128 v[48:51], v91 offset:16')
    a.e(f's_and_b32 s67, s{S_W}, 1')
    a.e(f's_lshr_b32 s70, s{S_W}, 1')
    a.e('s_mul_i32 s71, s67, 3072')
    a.e('s_lshl_b32 s72, s70, 10')
    a.e('s_add_u32 s72, s72, s71')
    a.e(f's_add_u32 s72, s72, {L_SCR}')
    a.e(f's_add_u32 s71, s71, {L_SCR + 2048}')
    a.e('v_lshl_add_u32 v90, v1, 4, s72')
    a.e('v_lshl_add_u32 v91, v1, 4, s71')
    for wv in range(4):
        a.e(f'ds_read_b128 v[{96+4*wv}:{99+4*wv}], v90 offset:{wv*SCRW}')
    for wv in range(4):
        a.e(f'ds_read_b128 v[{112+4*wv}:{115+4*wv}], v91 offset:{wv*SCRW}')
    a.e('s_waitcnt lgkmcnt(8)')
    a.e('v_pk_add_f32 v[44:45], v[44:45], v[46:47]')
    a.e('v_pk_add_f32 v[48:49], v[48:49], v[50:51]')
    a.e('v_add_f32 v44, v44, v45')
    a.e('v_add_f32 v45, v48, v49')
    a.e('v_pk_mul_f32 v[54:55], v[54:55], v[44:45]')
    a.e('v_pk_add_f32 v[54:55], v[54:55], v[54:55]')
    a.e('s_cmp_eq_u32 s67, 0')
    a.e('s_cselect_b64 vcc, -1, 0')
    a.e('v_cndmask_b32 v46, v45, v44, vcc')
    a.e('v_rcp_f32 v46, v46')
    a.e('v_lshrrev_b32 v92, 4, v1')
    a.e('v_lshlrev_b32 v92, 7, v92')
    a.e('v_and_b32 v93, 15, v1')
    a.e('v_lshl_add_u32 v92, v93, 1, v92')
    a.e(f's_mul_i32 s71, s67, {KTCH}')
    a.e(f's_add_u32 s71, s71, {L_KT}')
    a.e('v_add_u32 v93, s71, v92')
    a.e('s_lshl_b32 s72, s70, 9')
    a.e('v_add_u32 v92, s72, v93')
    for jb, (base, va, off) in enumerate(((96, 92, 0), (112, 93, 1024))):
        a.e(f's_waitcnt lgkmcnt({4 if jb == 0 else 0})')
        for h in range(2):
            a.e(f'v_pk_add_f32 v[{base+2*h}:{base+2*h+1}], v[{base+2*h}:{base+2*h+1}], v[{base+4+2*h}:{base+5+2*h}]')
            a.e(f'v_pk_add_f32 v[{base+8+2*h}:{base+9+2*h}], v[{base+8+2*h}:{base+9+2*h}], v[{base+12+2*h}:{base+13+2*h}]')
        for h in range(2):
            a.e(f'v_pk_add_f32 v[{base+2*h}:{base+2*h+1}], v[{base+2*h}:{base+2*h+1}], v[{base+8+2*h}:{base+9+2*h}]')
        for h in range(2):
            a.e(f'v_pk_mul_f32 v[{base+2*h}:{base+2*h+1}], v[{base+2*h}:{base+2*h+1}], v[46:47] op_sel:[0,0] op_sel_hi:[1,0]')
        a.e(f'v_cvt_pk_f16_f32 v{base+4}, v{base}, v{base+1}')
        a.e(f'v_cvt_pk_f16_f32 v{base+5}, v{base+2}, v{base+3}')
        a.e(f'ds_write_b16 v{va}, v{base+4} offset:{off}')
        a.e(f'ds_write_b16_d16_hi v{va}, v{base+4} offset:{off+32}')
        a.e(f'ds_write_b16 v{va}, v{base+5} offset:{off+64}')
        a.e(f'ds_write_b16_d16_hi v{va}, v{base+5} offset:{off+96}')
    a.e('v_mov_b32 v96, 0')
    a.e('v_mov_b32 v97, 0')
    a.e('v_mov_b32 v98, 0')
    a.e('v_mov_b32 v99, 0')
    a.e(f'v_mov_b32 v90, {L_KT + 1536}')
    a.e('ds_write_b32 v90, v96')
    a.e(f'ds_write_b32 v90, v96 offset:{KTCH}')
    a.e('v_and_b32 v90, 15, v1')
    a.e(f'v_mul_u32_u24 v90, {KCOPY}, v90')
    a.e(f'ds_write_b128 v90, v[96:99] offset:{L_KC + 4096}')
    a.e('v_lshlrev_b32 v90, 3, v1')
    a.e(f'ds_write_b64 v90, v[96:97] offset:{L_U}')
    a.e(f'ds_write_b64 v90, v[96:97] offset:{L_U + UCH}')
    a.e('s_waitcnt lgkmcnt(0)')
    a.e('s_barrier')
    stamp(a, 6 if PERS else 4)
    AD = 96
    for e in range(15):
        src = 160 + e // 2
        if e % 2 == 0:
            a.e(f'v_and_b32 v{AD+e}, 0xffff, v{src}')
        else:
            a.e(f'v_lshrrev_b32 v{AD+e}, 16, v{src}')
    a.e('v_lshlrev_b32 v111, 4, v0')
    RR = [112, 128]
    for c in range(2):
        for e in range(15):
            a.e(f'ds_read_u16 v{RR[c]+e}, v{AD+e} offset:{L_KT + c*KTCH}')
    for c in range(2):
        R = RR[c]
        Da, Db, Oa, Ob = 144, 152, 160, 168
        a.e(f's_waitcnt lgkmcnt({15 if c == 0 else 0})')
        for i in range(6):
            a.e(f'v_lshl_or_b32 v{Da+i}, v{R+2*i+1}, 16, v{R+2*i}')
            a.e(f'v_lshl_or_b32 v{Oa+i}, v{R+2*i+2}, 16, v{R+2*i+1}')
        for i in range(6):
            a.e(f'v_lshl_or_b32 v{Db+i}, v{R+2*i+3}, 16, v{R+2*i+2}')
            a.e(f'v_lshl_or_b32 v{Ob+i}, v{R+2*i+4}, 16, v{R+2*i+3}')
        if c == 1:
            a.e(f'v_add_u32 v111, {KCH}, v111')
        for s, r in ((0, Da), (1, Oa), (4, Da + 2), (5, Oa + 2), (2, Db), (3, Ob), (6, Db + 2), (7, Ob + 2)):
            a.e(f'ds_write_b128 v111, v[{r}:{r+3}] offset:{L_KC + s*KCOPY}')


def load_gather_table(a, tablabel):
    lp = a.lab('pc')
    a.e('s_getpc_b64 s[70:71]')
    a.e(f'{lp}:')
    a.e(f's_add_u32 s70, s70, {tablabel}-{lp}')
    a.e('s_addc_u32 s71, s71, 0')
    a.e('v_lshlrev_b32 v2, 5, v0')
    a.e('global_load_dwordx4 v[160:163], v2, s[70:71]')
    a.e('global_load_dwordx4 v[164:167], v2, s[70:71] offset:16')


def emit_gather_table(a, tablabel):
    a.raw('.p2align 4')
    a.raw(f'.type {tablabel},@object')
    a.raw(f'{tablabel}:')
    tab = gather_table()
    for i in range(0, len(tab), 16):
        a.raw('.short ' + ', '.join(str(x) for x in tab[i:i + 16]))
    a.raw(f'.size {tablabel}, {2*len(tab)}')


XC = list(range(192, 200))
ST = 200


def conv_loads(a):
    a.e(f's_lshl_b32 s66, s{S_P}, 2')
    a.e(f'v_mul_u32_u24 v2, {8*896}, v0')
    a.e('v_add_u32 v2, s66, v2')
    a.e('v_add_u32 v3, 4480, v2')
    for j in range(5):
        a.e(f'buffer_load_dword v{XC[j]}, v2, s[{S_X}:{S_X+3}], 0 offen offset:{j*896}')
    for j in range(5, 8):
        a.e(f'buffer_load_dword v{XC[j]}, v3, s[{S_X}:{S_X+3}], 0 offen offset:{(j-5)*896}')


def stats_loads(a):
    a.e('v_lshlrev_b32 v2, 6, v0')
    for i in range(4):
        a.e(f'buffer_load_dwordx4 v[{ST+4*i}:{ST+4*i+3}], v2, s[{S_WS}:{S_WS+3}], 0 offen offset:{WS_STATS+16*i}')


def phase_norm(a):
    U0, U1 = 96, 100
    for j in range(8):
        g = ST + 2 * j
        x = XC[j]
        t = 104 + 8 * (j % 2)
        a.e(f'v_lshlrev_b32 v{t}, 16, v{x}')
        a.e(f'v_and_b32 v{t+1}, 0xffff0000, v{x}')
        a.e(f'v_lshlrev_b32 v{t+2}, 16, v{g}')
        a.e(f'v_and_b32 v{t+3}, 0xffff0000, v{g}')
        a.e(f'v_rcp_f32 v{t+3}, v{t+3}')
        a.e(f'v_pk_add_f32 v[{t}:{t+1}], v[{t}:{t+1}], v[{t+2}:{t+3}] op_sel:[0,0] op_sel_hi:[1,0] neg_lo:[0,1] neg_hi:[0,1]')
        a.e(f'v_cvt_pk_bf16_f32 v{t+4}, v{t}, v{t+1}')
        a.e(f'v_lshlrev_b32 v{t}, 16, v{t+4}')
        a.e(f'v_and_b32 v{t+1}, 0xffff0000, v{t+4}')
        a.e(f'v_pk_mul_f32 v[{t}:{t+1}], v[{t}:{t+1}], v[{t+2}:{t+3}] op_sel:[0,1] op_sel_hi:[1,1]')
        a.e(f'v_cvt_pk_bf16_f32 v{t+4}, v{t}, v{t+1}')
        a.e(f'v_lshlrev_b32 v{120+2*j}, 16, v{t+4}')
        a.e(f'v_and_b32 v{121+2*j}, 0xffff0000, v{t+4}')
    for i in range(4):
        a.e(f'v_cvt_pk_f16_f32 v{U0+i}, v{120+4*i}, v{122+4*i}')
        a.e(f'v_cvt_pk_f16_f32 v{U1+i}, v{121+4*i}, v{123+4*i}')
    a.e('v_lshlrev_b32 v2, 4, v0')
    a.e(f'ds_write_b128 v2, v[{U0}:{U0+3}] offset:{L_U + 512}')
    a.e(f'ds_write_b128 v2, v[{U1}:{U1+3}] offset:{L_U + UCH + 512}')
    a.e('s_waitcnt lgkmcnt(0)')
    a.e('s_barrier')


def phase_conv(a):
    ACC = 16
    FA = [[64 + 64 * s + 4 * i for i in range(8)] for s in range(2)]
    FB = [[96 + 64 * s + 4 * i for i in range(8)] for s in range(2)]
    VA, VB = 48, 49
    a.e(f's_lshr_b32 s66, s{S_W}, 1')
    a.e(f's_and_b32 s67, s{S_W}, 1')
    a.e('v_and_b32 v2, 7, v1')
    a.e('v_sub_u32 v2, 7, v2')
    a.e(f'v_mul_u32_u24 v2, {KCOPY}, v2')
    a.e('v_lshrrev_b32 v3, 4, v1')
    a.e('v_bfe_u32 v4, v1, 3, 1')
    a.e('v_sub_u32 v3, v3, v4')
    a.e('v_lshl_add_u32 v2, v3, 4, v2')
    a.e(f's_mul_i32 s70, s66, {KCH}')
    a.e('s_lshl_b32 s71, s67, 8')
    a.e('s_sub_u32 s70, s70, s71')
    a.e(f's_add_u32 s70, s70, {L_KC + 16*253 - 512*7 - 64*3}')
    a.e(f'v_add_u32 v{VA}, s70, v2')
    a.e('v_and_b32 v2, 15, v1')
    a.e('v_lshlrev_b32 v2, 5, v2')
    a.e('v_lshrrev_b32 v3, 4, v1')
    a.e('v_lshl_add_u32 v2, v3, 4, v2')
    a.e(f's_mul_i32 s70, s66, {UCH}')
    a.e('s_sub_u32 s70, s70, s71')
    a.e(f's_add_u32 s70, s70, {L_U + 480 - 64*3}')
    a.e(f'v_add_u32 v{VB}, s70, v2')

    def loads(qq, s):
        for i in range(8):
            a.e(f'ds_read_b128 v[{FB[s][i]}:{FB[s][i]+3}], v{VB} offset:{512*i + 64*(3-qq)}')
            a.e(f'ds_read_b128 v[{FA[s][i]}:{FA[s][i]+3}], v{VA} offset:{512*(7-i) + 64*(3-qq)}')

    loads(0, 0)
    for qq in range(4):
        s = qq & 1
        if qq < 3:
            nxt = []
            for i in range(8):
                nxt.append(f'ds_read_b128 v[{FB[1-s][i]}:{FB[1-s][i]+3}], v{VB} offset:{512*i + 64*(3-qq-1)}')
                nxt.append(f'ds_read_b128 v[{FA[1-s][i]}:{FA[1-s][i]+3}], v{VA} offset:{512*(7-i) + 64*(3-qq-1)}')
        else:
            nxt = []
        a.e('s_waitcnt lgkmcnt(0)')
        n = 0
        for w in range(8):
            for c in range(w, 8):
                cc = '0' if (qq == 0 and w == 0) else f'v[{ACC+4*c}:{ACC+4*c+3}]'
                a.e(f'v_mfma_f32_16x16x32_f16 v[{ACC+4*c}:{ACC+4*c+3}], v[{FA[s][w]}:{FA[s][w]+3}], v[{FB[s][c-w]}:{FB[s][c-w]+3}], {cc}')
                if nxt and n % 2 == 1:
                    a.e(nxt.pop(0))
                n += 1
        assert not nxt
    stamp(a, 11 if PERS else 7)
    CP = L_SCR
    TS = 1280
    a.e('v_and_b32 v2, 15, v1')
    a.e('v_lshlrev_b32 v2, 4, v2')
    a.e('v_lshrrev_b32 v3, 4, v1')
    a.e('v_mul_u32_u24 v3, 320, v3')
    a.e('v_add_u32 v2, v2, v3')
    a.e(f's_mul_i32 s70, s{S_W}, {8*TS}')
    a.e(f's_add_u32 s70, s70, {CP}')
    a.e('v_add_u32 v2, s70, v2')
    for c in range(8):
        a.e(f'ds_write_b128 v2, v[{ACC+4*c}:{ACC+4*c+3}] offset:{c*TS}')
    a.e('v_lshrrev_b32 v2, 2, v1')
    a.e('v_lshlrev_b32 v2, 4, v2')
    a.e('v_and_b32 v3, 3, v1')
    a.e('v_mul_u32_u24 v3, 320, v3')
    a.e('v_add_u32 v2, v2, v3')
    a.e(f's_lshl_b32 s70, s{S_W}, 1')
    a.e(f's_mul_i32 s71, s70, {TS}')
    a.e(f's_add_u32 s71, s71, {CP}')
    a.e('v_add_u32 v2, s71, v2')
    a.e('s_lshl_b32 s71, s70, 9')
    a.e(f's_add_u32 s71, s71, {L_U + 512}')
    a.e('v_lshl_add_u32 v3, v1, 3, s71')
    a.e(f's_lshl_b32 s71, s{S_P}, 13')
    a.e('s_lshl_b32 s72, s70, 10')
    a.e('s_add_u32 s71, s71, s72')
    a.e(f's_add_u32 s71, s71, {WS_AOUT}')
    a.e('v_lshl_add_u32 v4, v1, 4, s71')
    a.e('s_lshl_b32 s72, s69, 16')
    a.e('s_and_b32 s73, s69, 0xffff0000')
    a.e('v_mov_b32 v56, s72')
    a.e('v_mov_b32 v57, s73')
    a.e('s_waitcnt lgkmcnt(0)')
    a.e('s_barrier')
    for q in range(2):
        P = 64 + 32 * q
        for ch in range(2):
            for hf in range(2):
                r = P + 8 * ch + 4 * hf
                a.e(f'ds_read_b128 v[{r}:{r+3}], v2 offset:{(2*ch+hf)*8*TS + q*TS}')
        for ch in range(2):
            a.e(f'ds_read_b64 v[{P+16+2*ch}:{P+17+2*ch}], v3 offset:{ch*UCH + q*512}')
    for q in range(2):
        P = 64 + 32 * q
        a.e(f's_waitcnt lgkmcnt({6 if q == 0 else 0})')
        for ch in range(2):
            y = P + 8 * ch
            T = 128 + 16 * ch
            for h in range(2):
                a.e(f'v_pk_add_f32 v[{y+2*h}:{y+2*h+1}], v[{y+2*h}:{y+2*h+1}], v[{y+4+2*h}:{y+5+2*h}]')
            for h in range(2):
                a.e(f'v_pk_mul_f32 v[{y+2*h}:{y+2*h+1}], v[{y+2*h}:{y+2*h+1}], v[54:55] op_sel:[0,{ch}] op_sel_hi:[1,{ch}]')
            u = P + 16 + 2 * ch
            for i in range(4):
                a.e(f'v_fma_mix_f32 v{T+i}, v{u+i//2}, v{56+ch}, 0 op_sel:[{i%2},0,0] op_sel_hi:[1,0,0]')
            for h in range(2):
                a.e(f'v_cvt_pk_bf16_f32 v{T+4+h}, v{y+2*h}, v{y+2*h+1}')
                a.e(f'v_cvt_pk_bf16_f32 v{T+6+h}, v{T+2*h}, v{T+2*h+1}')
            for h in range(2):
                a.e(f'v_lshlrev_b32 v{y+2*h}, 16, v{T+4+h}')
                a.e(f'v_and_b32 v{y+2*h+1}, 0xffff0000, v{T+4+h}')
                a.e(f'v_lshlrev_b32 v{T+2*h}, 16, v{T+6+h}')
                a.e(f'v_and_b32 v{T+2*h+1}, 0xffff0000, v{T+6+h}')
            for h in range(2):
                a.e(f'v_pk_add_f32 v[{y+2*h}:{y+2*h+1}], v[{y+2*h}:{y+2*h+1}], v[{T+2*h}:{T+2*h+1}]')
        O = 160 + 4 * q
        for i in range(4):
            a.e(f'v_cvt_pk_bf16_f32 v{O+i}, v{P+i}, v{P+8+i}')
        a.e(f'buffer_store_dwordx4 v[{O}:{O+3}], v4, s[{S_WS}:{S_WS+3}], 0 offen offset:{q*1024}{SC()}')


def bcast_stats(a, T):
    a.e(f'v_lshlrev_b32 v{T+1}, 16, v{T}')
    a.e(f'v_and_b32 v{T+2}, 0xffff0000, v{T}')
    a.e(f'v_rcp_f32 v{T+2}, v{T+2}')
    for j in range(8):
        a.e(f'v_readlane_b32 s{72+2*j}, v{T+1}, {j}')
    for j in range(8):
        a.e(f'v_readlane_b32 s{73+2*j}, v{T+2}, {j}')


def norm_tok(a, j, src, d):
    a.e(f'v_lshlrev_b32 v{d}, 16, v{src}')
    a.e(f'v_and_b32 v{d+1}, 0xffff0000, v{src}')
    a.e(f'v_pk_add_f32 v[{d}:{d+1}], v[{d}:{d+1}], s[{72+2*j}:{73+2*j}] op_sel:[0,0] op_sel_hi:[1,0] neg_lo:[0,1] neg_hi:[0,1]')
    a.e(f'v_cvt_pk_bf16_f32 v{src}, v{d}, v{d+1}')
    a.e(f'v_lshlrev_b32 v{d}, 16, v{src}')
    a.e(f'v_and_b32 v{d+1}, 0xffff0000, v{src}')
    a.e(f'v_pk_mul_f32 v[{d}:{d+1}], v[{d}:{d+1}], s[{72+2*j}:{73+2*j}] op_sel:[0,1] op_sel_hi:[1,1]')


def phase_p4(a):
    X = list(range(8, 16))
    A = 32
    if PERS:
        xrow_addr(a)
    else:
        load_xrows(a, X)
    a.e(f's_mul_i32 s66, s{S_W}, {56*8192}')
    a.e(f's_lshl_b32 s67, s{S_B}, 5')
    a.e('s_add_u32 s66, s66, s67')
    a.e(f's_add_u32 s66, s66, {WS_AOUT}')
    a.e('v_lshl_add_u32 v4, v1, 13, s66')
    a.e(f'v_mov_b32 v5, {OOB}')
    a.e('v_cndmask_b32 v4, v5, v4, vcc')
    a.e(f'v_add_u32 v6, {WS_H}, v2')
    a.e(f'v_add_u32 v7, {WS_H}, v3')
    lp, ld = a.lab('h2poll'), a.lab('h2done')
    a.e(f's_mov_b32 s{S_SPIN}, 0')
    a.e(f'{lp}:')
    a.e(f'buffer_load_dwordx4 v[{A}:{A+3}], v4, s[{S_WS}:{S_WS+3}], 0 offen{SC()}')
    a.e(f'buffer_load_dwordx4 v[{A+4}:{A+7}], v4, s[{S_WS}:{S_WS+3}], 0 offen offset:16{SC()}')
    a.e('s_waitcnt vmcnt(0)')
    if PERS:
        a.e(f'v_max3_u32 v40, v{A}, v{A+1}, v{A+2}')
        a.e(f'v_max3_u32 v41, v{A+3}, v{A+4}, v{A+5}')
        a.e(f'v_max3_u32 v40, v40, v{A+6}, v{A+7}')
        a.e('v_max_u32 v40, v40, v41')
        a.e('v_cmp_eq_u32 vcc, -1, v40')
        a.e(f's_cbranch_vccz {ld}')
        a.e(f's_add_u32 s{S_SPIN}, s{S_SPIN}, 1')
        a.e(f's_cmp_lt_u32 s{S_SPIN}, {SPIN_MAX}')
        a.e(f's_cbranch_scc1 {lp}')
    a.e(f'{ld}:')
    stamp(a, 14 if PERS else 2)
    for j in range(8):
        t = 40 + 4 * (j % 2)
        a.e(f'v_lshlrev_b32 v{t}, 16, v{X[j]}')
        a.e(f'v_and_b32 v{t+1}, 0xffff0000, v{X[j]}')
        a.e(f'v_lshlrev_b32 v{t+2}, 16, v{A+j}')
        a.e(f'v_and_b32 v{t+3}, 0xffff0000, v{A+j}')
        a.e(f'v_pk_add_f32 v[{t}:{t+1}], v[{t}:{t+1}], v[{t+2}:{t+3}]')
        a.e(f'v_cvt_pk_bf16_f32 v{X[j]}, v{t}, v{t+1}')
    for j in range(5):
        a.e(f'buffer_store_dword v{X[j]}, v6, s[{S_WS}:{S_WS+3}], 0 offen offset:{j*896}{SC()}')
    for j in range(5, 8):
        a.e(f'buffer_store_dword v{X[j]}, v7, s[{S_WS}:{S_WS+3}], 0 offen offset:{(j-5)*896}{SC()}')
    H = list(range(48, 56))
    for j in range(8):
        a.e(f'v_mov_b32 v{H[j]}, v{X[j]}')
    ln_stats(a, H, 16, L_RED0, 5)
    bcast_stats(a, 16)
    a.e('s_mov_b32 exec_hi, 0x00ffffff')
    for j in range(8):
        t = 40 + 2 * (j % 4)
        norm_tok(a, j, H[j], t)
        a.e(f'v_cvt_pk_bf16_f32 v{H[j]}, v{t}, v{t+1}')
    a.e('s_mov_b32 exec_hi, -1')
    ln_stats(a, H, 16, L_RED1, 5)
    bcast_stats(a, 16)
    for j in range(8):
        norm_tok(a, j, H[j], 64 + 2 * j)
    O0, O1 = 80, 84
    for i in range(4):
        a.e(f'v_cvt_pk_bf16_f32 v{O0+i}, v{64+4*i}, v{66+4*i}')
        a.e(f'v_cvt_pk_bf16_f32 v{O1+i}, v{65+4*i}, v{67+4*i}')
    a.e(f's_mul_i32 s66, s{S_B}, 7168')
    a.e(f's_mul_i32 s67, s{S_W}, 1792')
    a.e('s_add_u32 s66, s66, s67')
    a.e(f's_add_u32 s66, s66, {WS_HH}')
    a.e('v_lshl_add_u32 v4, v1, 4, s66')
    a.e('v_add_u32 v5, 448, v4')
    a.e('v_cmp_gt_u32 vcc, 28, v1')
    a.e('v_cndmask_b32 v4, v5, v4, vcc')
    a.e(f'v_mov_b32 v5, {OOB}')
    a.e('v_cmp_gt_u32 vcc, 56, v1')
    a.e('v_cndmask_b32 v4, v5, v4, vcc')
    if PERS:
        a.e('s_waitcnt vmcnt(0)')
    a.e(f'buffer_store_dwordx4 v[{O0}:{O0+3}], v4, s[{S_WS}:{S_WS+3}], 0 offen{SC()}')
    a.e(f'buffer_store_dwordx4 v[{O1}:{O1+3}], v4, s[{S_WS}:{S_WS+3}], 0 offen offset:448{SC()}')


ACC = 16
XS = 80
NS = 8


def gemm_xaddr(a, ws_off, kblocks):
    a.e(f's_mul_i32 s66, s{S_W}, {kblocks*7168}')
    a.e(f's_mul_i32 s67, s{S_J}, 896')
    a.e('s_add_u32 s66, s66, s67')
    a.e(f's_add_u32 s66, s66, {ws_off}')
    a.e('v_lshrrev_b32 v4, 4, v1')
    a.e('v_mul_u32_u24 v4, 7168, v4')
    a.e('v_and_b32 v5, 15, v1')
    a.e('v_lshl_add_u32 v4, v5, 4, v4')
    a.e('v_add_u32 v2, s66, v4')
    a.e('v_and_b32 v5, 7, v1')
    a.e('v_lshrrev_b32 v4, 4, v1')
    a.e('v_mul_u32_u24 v4, 7168, v4')
    a.e('v_lshl_add_u32 v4, v5, 4, v4')
    a.e('v_add_u32 v3, s66, v4')
    a.e('v_add_u32 v3, 768, v3')


def gemm_xload(a, kappa):
    st = XS + 16 * (kappa % NS)
    a.e(f's_mov_b32 s70, {kappa*4*7168}')
    for nu in range(3):
        a.e(f'buffer_load_dwordx4 v[{st+4*nu}:{st+4*nu+3}], v2, s[{S_WS}:{S_WS+3}], s70 offen offset:{256*nu}{SC()}')
    a.e(f'buffer_load_dwordx4 v[{st+12}:{st+15}], v3, s[{S_WS}:{S_WS+3}], s70 offen{SC()}')


def gemm_wload(a, nk, rowbytes, wptr, wbytes, coltile_sreg, rows_per_wave, extra_vm, k0=0):
    srd(a, S_T0, wptr, wbytes)
    a.e('v_lshrrev_b32 v4, 3, v1')
    a.e(f's_mov_b32 s66, {rowbytes}')
    a.e('v_mul_lo_u32 v5, v4, s66')
    a.e('v_bfe_u32 v4, v1, 4, 1')
    a.e('v_lshlrev_b32 v4, 1, v4')
    a.e('v_and_b32 v6, 7, v1')
    a.e('v_xor_b32 v6, v6, v4')
    a.e(f's_mul_i32 s67, s{S_W}, {rows_per_wave*rowbytes}')
    a.e(f's_lshl_b32 s66, s{coltile_sreg}, 7')
    a.e('s_add_u32 s67, s67, s66')
    a.e('v_lshl_add_u32 v4, v6, 4, v5')
    a.e('v_add_u32 v208, s67, v4')
    a.e('v_xor_b32 v6, 4, v6')
    a.e('v_lshl_add_u32 v4, v6, 4, v5')
    a.e('v_add_u32 v209, s67, v4')
    a.e('v_lshrrev_b32 v4, 4, v1')
    a.e('v_bfe_u32 v5, v1, 2, 2')
    a.e('v_lshl_add_u32 v5, v4, 3, v5')
    a.e('v_lshlrev_b32 v5, 7, v5')
    a.e('v_and_b32 v6, 1, v1')
    a.e('v_lshl_add_u32 v5, v6, 3, v5')
    a.e('v_bfe_u32 v6, v1, 1, 1')
    a.e('v_lshl_add_u32 v5, v6, 4, v5')
    a.e(f's_lshl_b32 s66, s{S_W}, 14')
    a.e(f's_add_u32 s66, s66, {L_WRING}')
    a.e('v_add_u32 v5, s66, v5')
    a.e('v_bfe_u32 v6, v1, 3, 1')
    a.e('v_and_b32 v4, 1, v4')
    a.e('v_lshl_add_u32 v6, v4, 1, v6')
    for mu in range(4):
        a.e(f'v_xor_b32 v4, {mu}, v6')
        a.e(f'v_lshl_add_u32 v{210+mu}, v4, 5, v5')
    a.e(f's_mov_b32 s71, s66')

    def dma(kappa):
        for i in range(4):
            a.e(f's_add_u32 m0, s71, {(kappa % 4)*4096 + i*1024}')
            a.e(f's_mov_b32 s70, {(32*kappa + 8*i)*rowbytes}')
            a.e(f'buffer_load_dwordx4 v{208 + (i & 1)}, s[{S_T0}:{S_T0+3}], s70 offen lds')

    for k in range(k0, min(k0 + 4, nk)):
        dma(k)
    for k in range(k0, nk):
        inflight = min(3, nk - 1 - k)
        a.e(f's_waitcnt vmcnt({4*inflight})')
        for mu in range(4):
            r = (k * 4 + mu) * 4
            a.e(f'ds_read_b64_tr_b16 a[{r}:{r+1}], v{210+mu} offset:{(k % 4)*4096}')
            a.e(f'ds_read_b64_tr_b16 a[{r+2}:{r+3}], v{210+mu} offset:{(k % 4)*4096 + 512}')
        if k + 4 < nk:
            a.e('s_waitcnt lgkmcnt(0)')
            dma(k + 4)
    a.e('s_waitcnt lgkmcnt(0)')


VMAX = 214


def gemm_main(a, nk, w_is_a):
    if PERS:
        a.e(f'v_mov_b32 v{VMAX}, 0')
    for k in range(nk):
        st = XS + 16 * (k % NS)
        rem = min(NS - 1, nk - 1 - k)
        a.e(f's_waitcnt vmcnt({4*rem})')
        for mu in range(4):
            for nu in range(4):
                if PERS and nu % 2 == 1:
                    r = st + 4 * mu + (nu - 1)
                    a.e(f'v_max3_u32 v{VMAX}, v{VMAX}, v{r}, v{r+1}')
                w = (k * 4 + mu) * 4
                x = st + 4 * nu
                if w_is_a:
                    acc = ACC + (mu * 4 + nu) * 4
                    A, B = f'a[{w}:{w+3}]', f'v[{x}:{x+3}]'
                else:
                    acc = ACC + (nu * 4 + mu) * 4
                    A, B = f'v[{x}:{x+3}]', f'a[{w}:{w+3}]'
                cc = '0' if k == 0 else f'v[{acc}:{acc+3}]'
                a.e(f'v_mfma_f32_16x16x32_bf16 v[{acc}:{acc+3}], {A}, {B}, {cc}')
        if k + NS < nk:
            gemm_xload(a, k + NS)


def write_partials(a):
    a.e('v_and_b32 v4, 15, v1')
    a.e(f'v_mul_u32_u24 v4, {PROW}, v4')
    a.e('v_lshrrev_b32 v5, 4, v1')
    a.e('v_lshl_add_u32 v4, v5, 4, v4')
    a.e(f's_mul_i32 s66, s{S_W}, {PARTW}')
    a.e(f's_add_u32 s66, s66, {L_PART}')
    a.e('v_add_u32 v4, s66, v4')
    for mt in range(4):
        for nt in range(4):
            acc = ACC + (mt * 4 + nt) * 4
            a.e(f'ds_write_b128 v4, v[{acc}:{acc+3}] offset:{nt*16*PROW + mt*64}')
    a.e('s_waitcnt lgkmcnt(0)')
    a.e('s_barrier')


def round_pairs(a, src, dst_pk, n):
    for i in range(n // 2):
        a.e(f'v_cvt_pk_bf16_f32 v{dst_pk+i}, v{src+2*i}, v{src+2*i+1}')
    for i in range(n // 2):
        a.e(f'v_lshlrev_b32 v{src+2*i}, 16, v{dst_pk+i}')
        a.e(f'v_and_b32 v{src+2*i+1}, 0xffff0000, v{dst_pk+i}')


def phase_gemm1(a):
    gemm_xaddr(a, WS_HH, 64)
    for k in range(NS):
        gemm_xload(a, k)
    stamp(a, 2)
    gemm_wload(a, 16, F * 2, P_W1, W1BYTES, S_I1, 512, 32)
    stamp(a, 3)
    gemm_main(a, 16, True)
    stamp(a, 4)
    gemm1_epilogue(a)


def gemm1_epilogue(a):
    write_partials(a)
    stamp(a, 24 if PERS else 5)
    srd(a, S_T1, P_B1, F * 2)
    a.e(f'v_mul_u32_u24 v4, {PROW}, v1')
    a.e(f's_lshl_b32 s66, s{S_W}, 6')
    a.e(f's_add_u32 s66, s66, {L_PART}')
    a.e('v_add_u32 v4, s66, v4')
    a.e(f's_lshl_b32 s67, s{S_I1}, 7')
    a.e(f's_lshl_b32 s70, s{S_W}, 5')
    a.e('s_add_u32 s67, s67, s70')
    a.e(f's_load_dwordx8 s[72:79], s[{P_B1}:{P_B1+1}], s67')
    a.e(f's_lshl_b32 s66, s{S_I1}, 3')
    a.e(f's_lshl_b32 s70, s{S_W}, 1')
    a.e('s_add_u32 s66, s66, s70')
    a.e('s_mul_i32 s66, s66, 7168')
    a.e(f's_mul_i32 s70, s{S_J}, 896')
    a.e('s_add_u32 s66, s66, s70')
    a.e(f's_add_u32 s66, s66, {WS_G}')
    a.e('v_lshl_add_u32 v5, v1, 4, s66')
    a.e(f'v_mov_b32 v6, {OOB}')
    a.e('v_cmp_gt_u32 vcc, 56, v1')
    a.e('v_cndmask_b32 v5, v6, v5, vcc')
    for r in range(2):
        P = 16 + 32 * r
        for wv in range(4):
            a.e(f'ds_read_b128 v[{P+8*wv}:{P+8*wv+3}], v4 offset:{wv*PARTW + r*32}')
            a.e(f'ds_read_b128 v[{P+8*wv+4}:{P+8*wv+7}], v4 offset:{wv*PARTW + r*32 + 16}')
    a.e('s_waitcnt lgkmcnt(0)')
    for i in range(8):
        a.e(f's_lshl_b32 s{80+2*i}, s{72+i}, 16')
        a.e(f's_and_b32 s{81+2*i}, s{72+i}, 0xffff0000')
    C1 = 0.044715
    C2 = -2.0 * 0.7978845608028654 * 1.4426950408889634
    a.e(f'v_mov_b32 v100, {fx(C1*C2)}')
    a.e(f'v_mov_b32 v101, {fx(C1*C2)}')
    a.e(f'v_mov_b32 v102, {fx(C2)}')
    a.e(f'v_mov_b32 v103, {fx(C2)}')
    for r in range(2):
        P = 16 + 32 * r
        T = 80 + 0
        for h in range(4):
            a.e(f'v_pk_add_f32 v[{P+2*h}:{P+2*h+1}], v[{P+2*h}:{P+2*h+1}], v[{P+8+2*h}:{P+9+2*h}]')
            a.e(f'v_pk_add_f32 v[{P+16+2*h}:{P+17+2*h}], v[{P+16+2*h}:{P+17+2*h}], v[{P+24+2*h}:{P+25+2*h}]')
        for h in range(4):
            a.e(f'v_pk_add_f32 v[{P+2*h}:{P+2*h+1}], v[{P+2*h}:{P+2*h+1}], v[{P+16+2*h}:{P+17+2*h}]')
        round_pairs(a, P, T, 8)
        for h in range(4):
            a.e(f'v_pk_add_f32 v[{P+2*h}:{P+2*h+1}], v[{P+2*h}:{P+2*h+1}], s[{80+8*r+2*h}:{81+8*r+2*h}]')
        round_pairs(a, P, T, 8)
        for h in range(4):
            a.e(f'v_pk_mul_f32 v[{P+8+2*h}:{P+9+2*h}], v[{P+2*h}:{P+2*h+1}], v[{P+2*h}:{P+2*h+1}]')
        for h in range(4):
            a.e(f'v_pk_fma_f32 v[{P+8+2*h}:{P+9+2*h}], v[{P+8+2*h}:{P+9+2*h}], v[100:101], v[102:103]')
        for h in range(4):
            a.e(f'v_pk_mul_f32 v[{P+8+2*h}:{P+9+2*h}], v[{P+8+2*h}:{P+9+2*h}], v[{P+2*h}:{P+2*h+1}]')
        for i in range(8):
            a.e(f'v_exp_f32 v{P+8+i}, v{P+8+i}')
        for h in range(4):
            a.e(f'v_pk_add_f32 v[{P+8+2*h}:{P+9+2*h}], v[{P+8+2*h}:{P+9+2*h}], 1.0 op_sel_hi:[1,0]')
        for i in range(8):
            a.e(f'v_rcp_f32 v{P+8+i}, v{P+8+i}')
        for h in range(4):
            a.e(f'v_pk_mul_f32 v[{P+2*h}:{P+2*h+1}], v[{P+2*h}:{P+2*h+1}], v[{P+8+2*h}:{P+9+2*h}]')
        O = 88 + 4 * r
        for h in range(4):
            a.e(f'v_cvt_pk_bf16_f32 v{O+h}, v{P+2*h}, v{P+2*h+1}')
        if r == 1:
            a.e('v_add_u32 v5, 7168, v5')
        a.e(f'buffer_store_dwordx4 v[{O}:{O+3}], v5, s[{S_WS}:{S_WS+3}], 0 offen{SC()}')


def phase_gemm2(a):
    gemm_xaddr(a, WS_G, 56)
    for k in range(NS):
        gemm_xload(a, k)
    stamp(a, 2)
    gemm_wload(a, 14, L * 2, P_W2, W2BYTES, S_I2, 448, 32)
    stamp(a, 3)
    gemm_main(a, 14, False)
    stamp(a, 4)
    gemm2_epilogue(a)


def gemm2_epilogue(a):
    write_partials(a)
    stamp(a, 33 if PERS else 5)
    srd(a, S_T1, P_OUT, XBYTES)
    a.e('v_lshrrev_b32 v4, 3, v1')
    a.e('v_and_b32 v5, 7, v1')
    a.e(f's_lshl_b32 s66, s{S_W}, 4')
    a.e('v_add_u32 v4, s66, v4')
    a.e(f'v_mul_u32_u24 v6, {PROW}, v4')
    a.e('v_lshl_add_u32 v6, v5, 4, v6')
    a.e(f'v_add_u32 v6, {L_PART}, v6')
    a.e(f's_lshl_b32 s67, s{S_I2}, 6')
    a.e('v_add_u32 v7, s67, v4')
    a.e('v_mul_u32_u24 v8, 896, v7')
    a.e('v_lshl_add_u32 v8, v5, 4, v8')
    a.e(f's_mul_i32 s70, s{S_J}, 112')
    a.e('v_add_u32 v8, s70, v8')
    a.e(f'v_mov_b32 v9, {OOB}')
    a.e('v_cmp_gt_u32 vcc, 7, v5')
    a.e('v_cndmask_b32 v8, v9, v8, vcc')
    a.e(f'v_add_u32 v9, {WS_H}, v8')
    srd(a, S_T2, P_B2, L * 2)
    a.e('v_lshlrev_b32 v7, 1, v7')
    for r in range(2):
        a.e(f'buffer_load_dwordx4 v[{96+4*r}:{99+4*r}], v9, s[{S_WS}:{S_WS+3}], 0 offen{SC()}')
        if r == 0:
            a.e(f'v_add_u32 v9, {8*896}, v9')
        a.e(f'buffer_load_ushort v{104+r}, v7, s[{S_T2}:{S_T2+3}], 0 offen offset:{16*r}')
    for r in range(2):
        P = 16 + 32 * r
        for wv in range(4):
            a.e(f'ds_read_b128 v[{P+8*wv}:{P+8*wv+3}], v6 offset:{wv*PARTW + r*8*PROW}')
            a.e(f'ds_read_b128 v[{P+8*wv+4}:{P+8*wv+7}], v6 offset:{wv*PARTW + r*8*PROW + 112}')
    a.e('s_waitcnt lgkmcnt(0) vmcnt(0)')
    for r in range(2):
        P = 16 + 32 * r
        T = 80
        for h in range(4):
            a.e(f'v_pk_add_f32 v[{P+2*h}:{P+2*h+1}], v[{P+2*h}:{P+2*h+1}], v[{P+8+2*h}:{P+9+2*h}]')
            a.e(f'v_pk_add_f32 v[{P+16+2*h}:{P+17+2*h}], v[{P+16+2*h}:{P+17+2*h}], v[{P+24+2*h}:{P+25+2*h}]')
        for h in range(4):
            a.e(f'v_pk_add_f32 v[{P+2*h}:{P+2*h+1}], v[{P+2*h}:{P+2*h+1}], v[{P+16+2*h}:{P+17+2*h}]')
        round_pairs(a, P, T, 8)
        a.e(f'v_lshlrev_b32 v{106}, 16, v{104+r}')
        for h in range(4):
            a.e(f'v_pk_add_f32 v[{P+2*h}:{P+2*h+1}], v[{P+2*h}:{P+2*h+1}], v[106:107] op_sel:[0,0] op_sel_hi:[1,0]')
        round_pairs(a, P, T, 8)
        H = 96 + 4 * r
        for i in range(4):
            a.e(f'v_lshlrev_b32 v{P+8+i}, 16, v{H+i}')
            a.e(f'v_and_b32 v{P+12+i}, 0xffff0000, v{H+i}')
        for h in range(4):
            a.e(f'v_pk_add_f32 v[{P+2*h}:{P+2*h+1}], v[{P+2*h}:{P+2*h+1}], v[{P+8+2*h}:{P+9+2*h}]')
        O = 88 + 4 * r
        for i in range(4):
            a.e(f'v_cvt_pk_bf16_f32 v{O+i}, v{P+i}, v{P+4+i}')
        if r == 1:
            a.e(f'v_add_u32 v8, {8*896}, v8')
        a.e(f'buffer_store_dwordx4 v[{O}:{O+3}], v8, s[{S_T1}:{S_T1+3}], 0 offen')


def kernel(a, name, body, nwg=256):
    lend = a.lab('end')
    a.raw(f'.globl {name}')
    a.raw('.p2align 8')
    a.raw(f'.type {name},@function')
    a.raw(f'{name}:')
    prologue(a, nwg, lend)
    body(a, lend)
    stamp(a, 63)
    stamp_flush(a)
    KIDX[0] += 1
    a.e(f'{lend}:')
    a.e('s_endpgm')


def descriptor(name):
    return f'''.amdhsa_kernel {name}
  .amdhsa_next_free_vgpr 512
  .amdhsa_next_free_sgpr 102
  .amdhsa_accum_offset 256
  .amdhsa_group_segment_fixed_size 0
  .amdhsa_kernarg_size 120
  .amdhsa_user_sgpr_count 2
  .amdhsa_user_sgpr_kernarg_segment_ptr 1
  .amdhsa_system_sgpr_workgroup_id_x 1
  .amdhsa_float_denorm_mode_32 3
.end_amdhsa_kernel
'''


def skip_if_loc_ge28(a, lend):
    a.e(f's_cmp_ge_u32 s{S_LOC}, 28')
    a.e(f's_cbranch_scc1 {lend}')


def build_multi():
    a = Prog()
    names = ['k1_stats_kernel', 'k2_conv_kernel', 'k3_ln_kernel', 'k4_gemm1_kernel', 'k5_gemm2_kernel']

    def b1(a, lend):
        phase_p1(a)

    def b2(a, lend):
        skip_if_loc_ge28(a, lend)
        kgen_loads(a)
        load_gather_table(a, 'ktab_idx')
        conv_loads(a)
        stats_loads(a)
        a.e('s_waitcnt vmcnt(0) lgkmcnt(0)')
        stamp(a, 2)
        phase_kgen(a)
        stamp(a, 5)
        phase_norm(a)
        stamp(a, 6)
        phase_conv(a)

    def b3(a, lend):
        phase_p4(a)

    def b4(a, lend):
        skip_if_loc_ge28(a, lend)
        phase_gemm1(a)

    def b5(a, lend):
        phase_gemm2(a)

    for n, b in zip(names, (b1, b2, b3, b4, b5)):
        kernel(a, n, b)
        if n == 'k2_conv_kernel':
            emit_gather_table(a, 'ktab_idx')
    nn = a.fast_insert_nops()
    head = ''
    for n in names:
        head += f'; @launch kernel={n} grid=(256,1,1) block=(256,1,1) lds={LDS_BYTES}\n'
    head += '.amdgcn_target "amdgcn-amd-amdhsa--gfx950"\n.text\n'
    tail = '.section .rodata,"a"\n'
    for n in names:
        tail += '.p2align 6\n' + descriptor(n)
    sys.stderr.write(f'instructions: {a.count()}, nops inserted: {nn}\n')
    return head + a.text() + tail


def g_store_addr(a, vd):
    a.e(f's_lshl_b32 s66, s{S_I1}, 3')
    a.e(f's_lshl_b32 s70, s{S_W}, 1')
    a.e('s_add_u32 s66, s66, s70')
    a.e('s_mul_i32 s66, s66, 7168')
    a.e(f's_mul_i32 s70, s{S_J}, 896')
    a.e('s_add_u32 s66, s66, s70')
    a.e(f's_add_u32 s66, s66, {WS_G}')
    a.e(f'v_lshl_add_u32 v{vd}, v1, 4, s66')
    a.e(f'v_mov_b32 v6, {OOB}')
    a.e('v_cmp_gt_u32 vcc, 56, v1')
    a.e(f'v_cndmask_b32 v{vd}, v6, v{vd}, vcc')


def clear_hh(a):
    a.e(f's_mul_i32 s66, s{S_B}, 7168')
    a.e(f's_add_u32 s66, s66, {WS_HH}')
    a.e('v_lshl_add_u32 v4, v0, 4, s66')
    a.e('v_add_u32 v5, 4096, v4')
    a.e(f'v_mov_b32 v6, {OOB}')
    a.e('v_cmp_gt_u32 vcc, 192, v0')
    a.e('v_cndmask_b32 v5, v6, v5, vcc')
    a.e(f'buffer_store_dwordx4 v[216:219], v4, s[{S_WS}:{S_WS+3}], 0 offen sc1')
    a.e(f'buffer_store_dwordx4 v[216:219], v5, s[{S_WS}:{S_WS+3}], 0 offen sc1')


def clear_conv_g(a):
    a.e(f's_lshl_b32 s66, s{S_P}, 13')
    a.e(f's_add_u32 s66, s66, {WS_AOUT}')
    a.e('v_lshl_add_u32 v4, v0, 4, s66')
    a.e('v_add_u32 v5, 4096, v4')
    a.e(f'buffer_store_dwordx4 v[216:219], v4, s[{S_WS}:{S_WS+3}], 0 offen sc1')
    a.e(f'buffer_store_dwordx4 v[216:219], v5, s[{S_WS}:{S_WS+3}], 0 offen sc1')
    g_store_addr(a, 4)
    a.e('v_add_u32 v5, 7168, v4')
    a.e(f'buffer_store_dwordx4 v[216:219], v4, s[{S_WS}:{S_WS+3}], 0 offen sc1')
    a.e(f'buffer_store_dwordx4 v[216:219], v5, s[{S_WS}:{S_WS+3}], 0 offen sc1')


def h1_poll(a):
    lp, ld = a.lab('h1poll'), a.lab('h1done')
    a.e('v_lshlrev_b32 v2, 6, v0')
    a.e(f's_mov_b32 s{S_SPIN}, 0')
    a.e(f'{lp}:')
    for i in range(4):
        a.e(f'buffer_load_dwordx4 v[{ST+4*i}:{ST+4*i+3}], v2, s[{S_WS}:{S_WS+3}], 0 offen offset:{WS_STATS+16*i} sc1')
    a.e('s_waitcnt vmcnt(0)')
    a.e(f'v_xor_b32 v3, s{S_TAG}, v{ST+1}')
    for i in range(1, 8):
        a.e(f'v_xor_b32 v4, s{S_TAG}, v{ST+1+2*i}')
        a.e('v_or_b32 v3, v3, v4')
    a.e('v_cmp_ne_u32 vcc, 0, v3')
    a.e(f's_cbranch_vccz {ld}')
    a.e(f's_add_u32 s{S_SPIN}, s{S_SPIN}, 1')
    a.e(f's_cmp_lt_u32 s{S_SPIN}, {SPIN_MAX}')
    a.e(f's_cbranch_scc1 {lp}')
    a.e(f'{ld}:')


def sentinel(a, ws_off, kblocks):
    lp, ld = a.lab('spoll'), a.lab('sdone')
    a.e(f's_mul_i32 s66, s{S_W}, {kblocks*7168}')
    a.e(f's_mul_i32 s67, s{S_J}, 896')
    a.e('s_add_u32 s66, s66, s67')
    a.e(f's_add_u32 s66, s66, {ws_off + 55*16 + 12}')
    a.e('v_mul_u32_u24 v4, 7168, v1')
    a.e('v_add_u32 v4, s66, v4')
    if kblocks < 64:
        a.e(f'v_mov_b32 v5, {OOB}')
        a.e(f'v_cmp_gt_u32 vcc, {kblocks}, v1')
        a.e('v_cndmask_b32 v4, v5, v4, vcc')
    a.e(f's_mov_b32 s{S_SPIN}, 0')
    a.e(f'{lp}:')
    a.e(f'buffer_load_dword v5, v4, s[{S_WS}:{S_WS+3}], 0 offen sc1')
    a.e('s_waitcnt vmcnt(0)')
    a.e('v_cmp_eq_u32 vcc, -1, v5')
    a.e(f's_cbranch_vccz {ld}')
    a.e(f's_add_u32 s{S_SPIN}, s{S_SPIN}, 1')
    a.e(f's_cmp_lt_u32 s{S_SPIN}, {SPIN_MAX}')
    a.e(f's_cbranch_scc1 {lp}')
    a.e(f'{ld}:')


def gemm_poll_main(a, ws_off, kblocks, nk, w_is_a, sb):
    lr, lok = a.lab('gretry'), a.lab('gok')
    a.e(f's_mov_b32 s{S_RETRY}, 0')
    a.e(f'{lr}:')
    sentinel(a, ws_off, kblocks)
    stamp(a, sb)
    gemm_xaddr(a, ws_off, kblocks)
    for k in range(NS):
        gemm_xload(a, k)
    gemm_main(a, nk, w_is_a)
    a.e(f'v_cmp_eq_u32 vcc, -1, v{VMAX}')
    a.e(f's_cbranch_vccz {lok}')
    a.e(f's_add_u32 s{S_RETRY}, s{S_RETRY}, 1')
    a.e(f's_cmp_lt_u32 s{S_RETRY}, {RETRY_MAX}')
    a.e(f's_cbranch_scc1 {lr}')
    a.e(f'{lok}:')


def build_pers():
    global PERS
    PERS = True
    a = Prog()
    name = NAME + '_kernel'

    def body(a, lend):
        lnc1, lnc2, lnc3 = a.lab('noconv'), a.lab('noconv'), a.lab('noconv')
        a.e(f's_add_u32 s66, s{P_WS}, {WS_EPOCH}')
        a.e(f's_addc_u32 s67, s{P_WS+1}, 0')
        a.e('s_load_dword s99, s[66:67], 0')
        load_xrows(a, list(range(8, 16)))
        for r in range(216, 220):
            a.e(f'v_mov_b32 v{r}, -1')
        clear_hh(a)
        a.e(f's_cmp_ge_u32 s{S_LOC}, 28')
        a.e(f's_cbranch_scc1 {lnc1}')
        clear_conv_g(a)
        kgen_loads(a)
        load_gather_table(a, 'ktab_idx')
        conv_loads(a)
        a.e('s_waitcnt lgkmcnt(0)')
        a.e(f's_add_u32 s{S_TAG}, s99, 0x9e3779b9')
        phase_p1(a, wait_x=24, wait_pub=18)
        a.e('s_waitcnt vmcnt(8)')
        stamp(a, 4)
        phase_kgen(a)
        stamp(a, 8)
        h1_poll(a)
        stamp(a, 9)
        le = a.lab('noep')
        a.e('s_cmp_lg_u32 s2, 0')
        a.e(f's_cbranch_scc1 {le}')
        a.e(f'v_mov_b32 v2, {WS_EPOCH}')
        a.e(f'v_mov_b32 v3, s{S_TAG}')
        a.e('s_mov_b64 exec, 1')
        a.e(f'buffer_store_dword v3, v2, s[{S_WS}:{S_WS+3}], 0 offen sc1')
        a.e('s_mov_b64 exec, -1')
        a.e(f'{le}:')
        phase_norm(a)
        stamp(a, 10)
        phase_conv(a)
        stamp(a, 12)
        a.e('s_barrier')
        gemm_wload(a, 8, F * 2, P_W1, W1BYTES, S_I1, 512, 0)
        stamp(a, 13)
        a.e(f's_branch {lnc2}')
        a.e(f'{lnc1}:')
        a.e('s_waitcnt lgkmcnt(0)')
        a.e(f's_add_u32 s{S_TAG}, s99, 0x9e3779b9')
        phase_p1(a, wait_x=2, wait_pub=0)
        h1_poll(a)
        a.e(f'{lnc2}:')
        phase_p4(a)
        stamp(a, 20)
        a.e(f's_cmp_ge_u32 s{S_LOC}, 28')
        a.e(f's_cbranch_scc1 {lnc3}')
        gemm_wload(a, 16, F * 2, P_W1, W1BYTES, S_I1, 512, 0, k0=8)
        stamp(a, 21)
        gemm_poll_main(a, WS_HH, 64, 16, True, 22)
        stamp(a, 23)
        gemm1_epilogue(a)
        stamp(a, 25)
        a.e('s_barrier')
        a.e(f'{lnc3}:')
        gemm_wload(a, 14, L * 2, P_W2, W2BYTES, S_I2, 448, 0)
        stamp(a, 30)
        gemm_poll_main(a, WS_G, 56, 14, False, 31)
        stamp(a, 32)
        gemm2_epilogue(a)

    kernel(a, name, body)
    emit_gather_table(a, 'ktab_idx')
    nn = a.fast_insert_nops()
    head = f'; @launch grid=(256,1,1) block=(256,1,1) lds={LDS_BYTES}\n'
    head += '.amdgcn_target "amdgcn-amd-amdhsa--gfx950"\n.text\n'
    tail = '.section .rodata,"a"\n.p2align 6\n' + descriptor(name)
    sys.stderr.write(f'instructions: {a.count()}, nops inserted: {nn}\n')
    return head + a.text() + tail


if __name__ == '__main__':
    out = sys.argv[1] if len(sys.argv) > 1 else 'multi.s'
    STAMPS = 'stamps' in sys.argv
    open(out, 'w').write(build_pers() if 'pers' in sys.argv else build_multi())
```

```python
import sys, struct
import numpy as np
from asmlib import Prog

NAME = 'sequential_preLN__ssm_conv_s4d__mixer_token_mlp__prompt'

L, D, NM, F = 2048, 448, 256, 1792
XBYTES = L * D * 2
PBYTES = D * NM * 2
W1BYTES = L * F * 2
W2BYTES = F * L * 2

WS_STATS = 0x0
WS_EPOCH = 0x8000
WS_AOUT = 0x10000
WS_H = 0x200000
WS_HH = 0x400000
WS_G = 0x600000
WS_DBG = 0x800000
WS_USED = 0x1000000
OOB = 0x40000000

L_RED0 = 0
L_RED1 = 256
L_SIG = 512
L_KT = 640
KTCH = 1600
L_U = L_KT + 2 * KTCH
UCH = 4608
L_KC = L_U + 2 * UCH
KCOPY = 4160
KCH = 8 * KCOPY
L_SCR = L_KC + 2 * KCH
SROW = 272
SCRW = 64 * SROW
LDS_BYTES = 160 * 1024
L_WRING = 1024
L_PART = 66560
PROW = 272
PARTW = 64 * PROW

S_WS = 4
S_X = 8
S_T0, S_T1, S_T2, S_T3 = 12, 16, 20, 24
S_W, S_XCD, S_LOC, S_B, S_P, S_J, S_I1, S_I2 = 28, 29, 30, 31, 32, 33, 34, 35
P_X, P_LAR, P_AI, P_CR, P_CI, P_LDT, P_DSK = 36, 38, 40, 42, 44, 46, 48
P_W1, P_B1, P_W2, P_B2, P_OUT, P_DBG, P_WS = 52, 54, 56, 58, 60, 62, 64


STAMPS = False
PERS = False
S_TAG = 96
S_SPIN = 97
S_RETRY = 98
SPIN_MAX = 4000
RETRY_MAX = 20


def SC():
    return ' sc1' if PERS else ''


KIDX = [0]


DBGSEL = None


def stamp(a, idx):
    if not STAMPS:
        return
    if DBGSEL is not None:
        if idx not in DBGSEL:
            return
        idx = DBGSEL.index(idx)
    a.e('s_memrealtime s[100:101]')
    a.e('s_waitcnt lgkmcnt(0)')
    a.e(f'v_writelane_b32 v255, s100, {idx}')


def stamp_flush(a):
    if not STAMPS:
        return
    l = a.lab('nost')
    a.e(f's_cmp_lg_u32 s{S_W}, 0')
    a.e(f's_cbranch_scc1 {l}')
    if DBGSEL is not None:
        a.e('v_not_b32 v253, v255')
        a.e('v_cmp_eq_u32 vcc, 0, v1')
        a.e('v_cndmask_b32 v255, v255, v253, vcc')
        a.e('v_lshlrev_b32 v254, 2, v1')
        a.e('s_mov_b64 exec, 0xffff')
        a.e(f'global_atomic_umax v254, v255, s[{P_DBG}:{P_DBG+1}]')
        a.e('s_mov_b64 exec, -1')
        a.e(f'{l}:')
        return
    a.e(f's_lshl_b32 s66, s2, 8')
    a.e(f's_add_u32 s66, s66, {WS_DBG} + {0x10000}*{KIDX[0]}')
    a.e('v_lshl_add_u32 v254, v1, 2, s66')
    a.e(f'buffer_store_dword v255, v254, s[{S_WS}:{S_WS+3}], 0 offen')
    a.e(f'{l}:')


def f2u(x):
    return struct.unpack('<I', struct.pack('<f', x))[0]


def fx(x):
    return '0x%08x' % f2u(x)


def srd(a, dst, ptr, nbytes):
    a.e(f's_mov_b32 s{dst}, s{ptr}')
    a.e(f's_and_b32 s{dst+1}, s{ptr+1}, 0xffff')
    a.e(f's_mov_b32 s{dst+2}, {nbytes}')
    a.e(f's_mov_b32 s{dst+3}, 0x00020000')


def prologue(a, nwg, lend):
    a.e(f's_cmp_ge_u32 s2, {nwg}')
    a.e(f's_cbranch_scc1 {lend}')
    if STAMPS:
        a.e('v_mov_b32 v255, 0')
        stamp(a, 0)
    a.e('s_load_dwordx16 s[36:51], s[0:1], 0')
    a.e('s_load_dwordx8 s[52:59], s[0:1], 64')
    a.e('s_load_dwordx4 s[60:63], s[0:1], 96')
    a.e('s_load_dwordx2 s[64:65], s[0:1], 112')
    a.e('v_and_b32 v1, 63, v0')
    a.e('v_lshrrev_b32 v2, 6, v0')
    a.e(f's_and_b32 s{S_XCD}, s2, 7')
    a.e(f'v_readfirstlane_b32 s{S_W}, v2')
    a.e(f's_lshr_b32 s{S_LOC}, s2, 3')
    a.e(f's_lshl_b32 s{S_B}, s{S_XCD}, 5')
    a.e(f's_add_u32 s{S_B}, s{S_B}, s{S_LOC}')
    a.e(f's_mul_i32 s{S_P}, s{S_XCD}, 28')
    a.e(f's_add_u32 s{S_P}, s{S_P}, s{S_LOC}')
    a.e(f's_and_b32 s{S_J}, s{S_XCD}, 1')
    a.e(f's_lshl_b32 s{S_J}, s{S_J}, 2')
    a.e(f's_and_b32 s3, s{S_LOC}, 3')
    a.e(f's_add_u32 s{S_J}, s{S_J}, s3')
    a.e(f's_lshr_b32 s3, s{S_XCD}, 1')
    a.e(f's_lshr_b32 s66, s{S_LOC}, 2')
    a.e(f's_mul_i32 s{S_I1}, s3, 7')
    a.e(f's_add_u32 s{S_I1}, s{S_I1}, s66')
    a.e(f's_lshl_b32 s{S_I2}, s3, 3')
    a.e(f's_add_u32 s{S_I2}, s{S_I2}, s66')
    a.e('s_waitcnt lgkmcnt(0)')
    srd(a, S_WS, P_WS, WS_USED)
    srd(a, S_X, P_X, XBYTES)
    stamp(a, 1)


def reduce16(a, V):
    for i in range(8):
        a.e(f'v_permlane32_swap_b32 v{V[i]}, v{V[i+8]}')
    for i in range(8):
        a.e(f'v_add_f32 v{V[i]}, v{V[i]}, v{V[i+8]}')
    for i in range(4):
        a.e(f'v_permlane16_swap_b32 v{V[i]}, v{V[i+4]}')
    for i in range(4):
        a.e(f'v_add_f32 v{V[i]}, v{V[i]}, v{V[i+4]}')
    for i in range(2):
        a.e(f'v_add_f32_dpp v{V[i]}, v{V[i]}, v{V[i]} row_ror:8 row_mask:0xf bank_mask:0x3')
    for i in range(2):
        a.e(f'v_add_f32_dpp v{V[i]}, v{V[i+2]}, v{V[i+2]} row_ror:8 row_mask:0xf bank_mask:0xc')
    a.e(f'v_add_f32_dpp v{V[0]}, v{V[0]}, v{V[0]} row_half_mirror row_mask:0xf bank_mask:0x5')
    a.e(f'v_add_f32_dpp v{V[0]}, v{V[1]}, v{V[1]} row_half_mirror row_mask:0xf bank_mask:0xa')
    a.e(f'v_add_f32_dpp v{V[0]}, v{V[0]}, v{V[0]} quad_perm:[1,0,3,2] row_mask:0xf bank_mask:0xf')
    a.e(f'v_add_f32_dpp v{V[0]}, v{V[0]}, v{V[0]} quad_perm:[2,3,0,1] row_mask:0xf bank_mask:0xf')


def ln_stats(a, X, T, red, vt):
    a.e('s_mov_b32 s66, 0x3f803f80')
    for j in range(8):
        a.e(f'v_dot2_f32_bf16 v{T+j}, v{X[j]}, s66, 0')
        a.e(f'v_dot2_f32_bf16 v{T+8+j}, v{X[j]}, v{X[j]}, 0')
    reduce16(a, [T + i for i in range(16)])
    a.e(f'v_lshrrev_b32 v{vt}, 2, v1')
    a.e(f'v_lshlrev_b32 v{vt}, 4, v{vt}')
    a.e(f's_lshl_b32 s66, s{S_W}, 2')
    a.e(f'v_add_u32 v{vt}, s66, v{vt}')
    a.e('s_mov_b32 exec_lo, 0x11111111')
    a.e('s_mov_b32 exec_hi, 0x11111111')
    a.e(f'ds_write_b32 v{vt}, v{T} offset:{red}')
    a.e('s_mov_b64 exec, -1')
    a.e(f'v_and_b32 v{vt}, 7, v1')
    a.e(f'v_lshlrev_b32 v{vt}, 4, v{vt}')
    a.e('s_waitcnt lgkmcnt(0)')
    a.e('s_barrier')
    a.e(f'ds_read_b128 v[{T}:{T+3}], v{vt} offset:{red}')
    a.e(f'ds_read_b128 v[{T+4}:{T+7}], v{vt} offset:{red+128}')
    a.e('s_waitcnt lgkmcnt(1)')
    a.e(f'v_pk_add_f32 v[{T}:{T+1}], v[{T}:{T+1}], v[{T+2}:{T+3}]')
    a.e('s_waitcnt lgkmcnt(0)')
    a.e(f'v_pk_add_f32 v[{T+4}:{T+5}], v[{T+4}:{T+5}], v[{T+6}:{T+7}]')
    a.e(f'v_add_f32 v{T}, v{T}, v{T+1}')
    a.e(f'v_add_f32 v{T+4}, v{T+4}, v{T+5}')
    a.e(f'v_mul_f32 v{T}, {fx(1.0/448)}, v{T}')
    a.e(f'v_mul_f32 v{T+4}, {fx(1.0/448)}, v{T+4}')
    a.e(f'v_fma_f32 v{T+4}, -v{T}, v{T}, v{T+4}')
    a.e(f'v_max_f32 v{T+4}, 0, v{T+4}')
    a.e(f'v_cvt_pk_bf16_f32 v{T+4}, v{T+4}, v{T+4}')
    a.e(f'v_lshlrev_b32 v{T+4}, 16, v{T+4}')
    a.e(f'v_add_f32 v{T+4}, {fx(1e-5)}, v{T+4}')
    a.e(f'v_cvt_pk_bf16_f32 v{T+4}, v{T+4}, v{T+4}')
    a.e(f'v_lshlrev_b32 v{T+4}, 16, v{T+4}')
    a.e(f'v_sqrt_f32 v{T+4}, v{T+4}')
    a.e(f'v_cvt_pk_bf16_f32 v{T}, v{T}, v{T+4}')


def xrow_addr(a):
    a.e(f's_mul_i32 s66, s{S_W}, 224')
    a.e(f's_mul_i32 s67, s{S_B}, {8*896}')
    a.e('s_add_u32 s66, s66, s67')
    a.e('v_lshl_add_u32 v2, v1, 2, s66')
    a.e(f'v_mov_b32 v3, {OOB}')
    a.e('v_cmp_gt_u32 vcc, 56, v1')
    a.e('v_cndmask_b32 v2, v3, v2, vcc')
    a.e('v_add_u32 v3, 4480, v2')


def load_xrows(a, X):
    xrow_addr(a)
    for j in range(5):
        a.e(f'buffer_load_dword v{X[j]}, v2, s[{S_X}:{S_X+3}], 0 offen offset:{j*896}')
    for j in range(5, 8):
        a.e(f'buffer_load_dword v{X[j]}, v3, s[{S_X}:{S_X+3}], 0 offen offset:{(j-5)*896}')


def phase_p1(a, wait_x=0, wait_pub=None):
    X = list(range(8, 16))
    if not PERS:
        load_xrows(a, X)
    a.e(f's_waitcnt vmcnt({wait_x})')
    stamp(a, 2)
    ln_stats(a, X, 16, L_RED0, 4)
    stamp(a, 3)
    if wait_pub is not None:
        a.e(f's_waitcnt vmcnt({wait_pub})')
        a.e('s_barrier')
    lskip = a.lab('p1skip')
    a.e(f's_cmp_lg_u32 s{S_W}, 0')
    a.e(f's_cbranch_scc1 {lskip}')
    a.e(f's_lshl_b32 s66, s{S_B}, 6')
    a.e(f's_add_u32 s66, s66, {WS_STATS}')
    a.e('v_lshl_add_u32 v2, v1, 3, s66')
    a.e(f'v_mov_b32 v17, s{S_TAG}' if PERS else 'v_mov_b32 v17, 0')
    a.e('s_mov_b64 exec, 0xff')
    a.e(f'buffer_store_dwordx2 v[16:17], v2, s[{S_WS}:{S_WS+3}], 0 offen{SC()}')
    a.e('s_mov_b64 exec, -1')
    a.e(f'{lskip}:')


POS_OF_ROW = [0, 1, 2, 3, 4, 5, 6, 7, 128, 129, 130, 131, 132, 133, 134, 135, 256, 258, 260, 262, 384, 386, 388, 390,
              512, 516, 640, 644, 768, 772, 896, 900, 1024, 1152, 1280, 1408, 1536, 1664, 1792, 1920, 2048]


def bf16_round_int(l):
    f = np.array([l], dtype=np.float32)
    u = f.view(np.uint32)
    r = ((u + 0x7FFF + ((u >> 16) & 1)) >> 16).astype(np.uint32) << 16
    return int(r.view(np.float32)[0])


def rowcol(pos):
    if pos < 256:
        return (8 * (pos >> 7) + (pos & 7), (pos & 127) >> 3)
    if pos < 512:
        p = pos - 256
        return (16 + 4 * (p >> 7) + ((p & 7) >> 1), (p & 127) >> 3)
    if pos < 1024:
        p = pos - 512
        return (24 + 2 * (p >> 7) + ((p & 7) >> 2), (p & 127) >> 3)
    p = pos - 1024
    return (32 + (p >> 7), (p & 127) >> 3)


def gather_table():
    tab = []
    for m in range(256):
        for e in range(16):
            idx = 2047 - 8 * m - e
            if idx < 0 or e == 15:
                tab.append(1536)
            else:
                r, c = rowcol(bf16_round_int(idx))
                assert POS_OF_ROW[r] + 8 * c == bf16_round_int(idx)
                tab.append((r * 16 + c) * 2)
    return tab


def cmul(a, d, x, y, t):
    a.e(f'v_pk_mul_f32 v[{t}:{t+1}], v[{x}:{x+1}], v[{y}:{y+1}] op_sel:[0,0] op_sel_hi:[1,0]')
    a.e(f'v_pk_fma_f32 v[{d}:{d+1}], v[{x}:{x+1}], v[{y}:{y+1}], v[{t}:{t+1}] op_sel:[1,1,0] op_sel_hi:[0,1,1] neg_lo:[1,0,0]')


LOG2E_HI = 1.44268798828125
LOG2E_LO_LN2 = (1.4426950408889634 - 1.44268798828125) * 0.6931471805599453


def exp_bf16(a, d, x, t):
    a.e(f'v_mul_f32 v{t}, {fx(LOG2E_HI)}, v{x}')
    a.e(f'v_exp_f32 v{t}, v{t}')
    a.e(f'v_mul_f32 v{d}, {fx(LOG2E_LO_LN2)}, v{x}')
    a.e(f'v_fma_f32 v{d}, v{t}, v{d}, v{t}')
    a.e(f'v_cvt_pk_bf16_f32 v{d}, v{d}, v{d}')
    a.e(f'v_lshlrev_b32 v{d}, 16, v{d}')


def kgen_loads(a):
    srd(a, S_T0, P_LAR, PBYTES)
    srd(a, S_T1, P_AI, PBYTES)
    srd(a, S_T2, P_CR, PBYTES)
    srd(a, S_T3, P_CI, PBYTES)
    a.e(f's_lshl_b32 s66, s{S_P}, 10')
    a.e(f's_lshl_b32 s67, s{S_W}, 7')
    a.e('s_add_u32 s66, s66, s67')
    a.e('v_lshl_add_u32 v2, v1, 1, s66')
    for c in range(2):
        for k, s in enumerate((S_T0, S_T1, S_T2, S_T3)):
            a.e(f'buffer_load_ushort v{40+4*c+k}, v2, s[{s}:{s+3}], 0 offen offset:{512*c}')
    a.e(f's_lshl_b32 s66, s{S_P}, 2')
    a.e(f's_load_dword s68, s[{P_LDT}:{P_LDT+1}], s66')
    a.e(f's_load_dword s69, s[{P_DSK}:{P_DSK+1}], s66')


def kgen_channel(a, c, DACC):
    LAR, AI, CR, CI = 40 + 4 * c, 41 + 4 * c, 42 + 4 * c, 43 + 4 * c
    SIG, DT = 52 + c, 54 + c
    AL, BE = 56, 57
    Z1, Z2, Z4, Z8, Z128, Z256, Z512, Z1024 = 58, 60, 62, 64, 66, 68, 70, 72
    X0, CA, CB, CC, T0, T1 = 74, 76, 78, 80, 82, 84
    CV = [86, 87, 88, 89]
    VW = 90
    t, t2 = 92, 93
    for r in (LAR, AI, CR, CI):
        a.e(f'v_lshlrev_b32 v{r}, 16, v{r}')
    if c == 0:
        a.e(f's_lshl_b32 s66, s68, 16')
    else:
        a.e(f's_and_b32 s66, s68, 0xffff0000')
    a.e(f'v_mov_b32 v{t2}, s66')
    exp_bf16(a, DT, t2, t)
    a.e(f'v_add_f32 v{SIG}, abs(v{CR}), abs(v{CI})')
    exp_bf16(a, AL, LAR, t)
    a.e(f'v_add_f32_dpp v{SIG}, v{SIG}, v{SIG} quad_perm:[1,0,3,2] row_mask:0xf bank_mask:0xf')
    a.e(f'v_mul_f32 v{AL}, v{AL}, v{DT}')
    a.e(f'v_mul_f32 v{BE}, v{AI}, v{DT}')
    a.e(f'v_add_f32_dpp v{SIG}, v{SIG}, v{SIG} quad_perm:[2,3,0,1] row_mask:0xf bank_mask:0xf')
    a.e(f'v_mul_f32 v{AL}, {fx(-1.4426950408889634)}, v{AL}')
    a.e(f'v_mul_f32 v{BE}, {fx(0.15915494309189535)}, v{BE}')
    a.e(f'v_add_f32_dpp v{SIG}, v{SIG}, v{SIG} row_half_mirror row_mask:0xf bank_mask:0xf')
    a.e(f'v_exp_f32 v{T0}, v{AL}')
    a.e(f'v_fract_f32 v{t}, v{BE}')
    a.e(f'v_add_f32_dpp v{SIG}, v{SIG}, v{SIG} row_ror:8 row_mask:0xf bank_mask:0xf')
    a.e(f'v_cos_f32 v{Z1}, v{t}')
    a.e(f'v_sin_f32 v{Z1+1}, v{t}')
    a.e(f'v_mov_b32 v{t2}, v{SIG}')
    a.e(f'v_mul_f32 v{T1}, 0x43000000, v{AL}')
    a.e(f'v_mul_f32 v{t}, 0x43000000, v{BE}')
    a.e(f'v_permlane16_swap_b32 v{SIG}, v{t2}')
    a.e(f'v_pk_mul_f32 v[{Z1}:{Z1+1}], v[{Z1}:{Z1+1}], v[{T0}:{T0+1}] op_sel:[0,0] op_sel_hi:[1,0]')
    a.e(f'v_add_f32 v{SIG}, v{SIG}, v{t2}')
    a.e(f'v_exp_f32 v{T1}, v{T1}')
    a.e(f'v_fract_f32 v{t}, v{t}')
    a.e(f'v_mov_b32 v{t2}, v{SIG}')
    a.e(f'v_cos_f32 v{Z128}, v{t}')
    a.e(f'v_sin_f32 v{Z128+1}, v{t}')
    a.e(f'v_permlane32_swap_b32 v{SIG}, v{t2}')
    cmul(a, Z2, Z1, Z1, Z2)
    a.e(f'v_add_f32 v{SIG}, v{SIG}, v{t2}')
    a.e(f'v_pk_mul_f32 v[{Z128}:{Z128+1}], v[{Z128}:{Z128+1}], v[{T1}:{T1+1}] op_sel:[0,0] op_sel_hi:[1,0]')
    a.e(f'v_add_f32 v{SIG}, {fx(1e-30)}, v{SIG}')
    cmul(a, Z4, Z2, Z2, Z4)
    a.e(f'v_rcp_f32 v{t}, v{SIG}')
    cmul(a, Z256, Z128, Z128, Z256)
    cmul(a, Z8, Z4, Z4, Z8)
    a.e(f'v_mul_f32 v{X0}, v{CR}, v{t}')
    a.e(f'v_mul_f32 v{X0+1}, v{CI}, v{t}')
    cmul(a, Z512, Z256, Z256, Z512)
    a.e(f's_mul_i32 s66, s{S_W}, {SCRW}')
    a.e(f's_add_u32 s66, s66, {L_SCR}')
    a.e(f'v_lshl_add_u32 v{VW}, v1, 2, s66')
    cmul(a, Z1024, Z512, Z512, Z1024)
    cvi = [0]

    def putX(row, r):
        cv = CV[cvi[0] % 4]
        cvi[0] += 1
        a.e(f'v_cvt_pk_f16_f32 v{cv}, v{r}, -v{r+1}')
        a.e(f'ds_write_b32 v{VW}, v{cv} offset:{row*SROW}')

    def putY(b, r):
        cv = CV[cvi[0] % 4]
        cvi[0] += 1
        a.e(f'v_cvt_pk_f16_f32 v{cv}, v{r}, v{r+1}')
        a.e(f'ds_write_b32 v{VW}, v{cv} offset:{(48+b)*SROW}')

    a.e(f'v_mov_b32 v{CV[3]}, 0x00003c00')
    a.e(f'ds_write_b32 v{VW}, v{CV[3]} offset:{48*SROW}')
    putY(1, Z8)
    ychain = {'cur': Z8, 'b': 1}
    YA, YB = CC, 94

    def ystep():
        if ychain['b'] >= 15:
            return
        d = YA if ychain['cur'] != YA else YB
        cmul(a, d, ychain['cur'], Z8, d)
        ychain['b'] += 1
        ychain['cur'] = d
        putY(ychain['b'], d)

    putX(0, X0)
    cmul(a, T0, X0, Z128, T0)
    putX(8, T0)
    cur = X0
    for j in range(1, 8):
        d = CA if cur != CA else CB
        cmul(a, d, cur, Z1, d)
        ystep()
        putX(j, d)
        cmul(a, T0, d, Z128, T0)
        putX(8 + j, T0)
        cur = d
    cmul(a, CA, X0, Z256, CA)
    ystep()
    putX(16, CA)
    cmul(a, T0, CA, Z128, T0)
    putX(20, T0)
    cur = CA
    for j in range(1, 4):
        d = CA if cur != CA else CB
        cmul(a, d, cur, Z2, d)
        ystep()
        putX(16 + j, d)
        cmul(a, T0, d, Z128, T0)
        putX(20 + j, T0)
        cur = d
    cmul(a, CA, X0, Z512, CA)
    ystep()
    putX(24, CA)
    cmul(a, CB, CA, Z4, CB)
    ystep()
    putX(25, CB)
    pa, pb = CA, CB
    na, nb = T0, T1
    for q in range(1, 4):
        cmul(a, na, pa, Z128, na)
        cmul(a, nb, pb, Z128, nb)
        ystep()
        putX(24 + 2 * q, na)
        putX(25 + 2 * q, nb)
        pa, pb, na, nb = na, nb, pa, pb
    cmul(a, CA, X0, Z1024, CA)
    putX(32, CA)
    cur = CA
    for q in range(1, 9):
        d = CA if cur != CA else CB
        cmul(a, d, cur, Z128, d)
        putX(32 + q, d)
        cur = d
    while ychain['b'] < 15:
        ystep()
    FA = 96
    VR = 91
    a.e(f'v_and_b32 v{t}, 15, v1')
    a.e(f'v_mul_u32_u24 v{t}, {SROW}, v{t}')
    a.e(f'v_lshrrev_b32 v{t2}, 4, v1')
    a.e(f'v_lshl_add_u32 v{t}, v{t2}, 4, v{t}')
    a.e(f'v_add_u32 v{VR}, s66, v{t}')
    for k in range(4):
        a.e(f'ds_read_b128 v[{144+4*k}:{147+4*k}], v{VR} offset:{48*SROW+64*k}')
        for T in range(3):
            r = FA + 16 * T + 4 * k
            a.e(f'ds_read_b128 v[{r}:{r+3}], v{VR} offset:{16*T*SROW+64*k}')
    for k in range(4):
        a.e(f's_waitcnt lgkmcnt({4*(3-k)})')
        for T in range(3):
            r = FA + 16 * T + 4 * k
            cc = '0' if k == 0 else f'v[{DACC+4*T}:{DACC+4*T+3}]'
            a.e(f'v_mfma_f32_16x16x32_f16 v[{DACC+4*T}:{DACC+4*T+3}], v[{r}:{r+3}], v[{144+4*k}:{147+4*k}], {cc}')


DK0, DK1 = 16, 28


def phase_kgen(a):
    kgen_channel(a, 0, DK0)
    kgen_channel(a, 1, DK1)
    stamp(a, 5 if PERS else 3)
    a.e(f's_mul_i32 s66, s{S_W}, {SCRW}')
    a.e(f's_add_u32 s66, s66, {L_SCR}')
    a.e('v_lshl_add_u32 v90, v1, 4, s66')
    for c, DK in ((0, DK0), (1, DK1)):
        for i in range(0, 12, 2):
            a.e(f'v_pk_mul_f32 v[{DK+i}:{DK+i+1}], v[{DK+i}:{DK+i+1}], v[{52}:{53}] op_sel:[0,{c}] op_sel_hi:[1,{c}]')
    for c, DK in ((0, DK0), (1, DK1)):
        for T in range(3):
            a.e(f'ds_write_b128 v90, v[{DK+4*T}:{DK+4*T+3}] offset:{c*3072+T*1024}')
    a.e(f's_lshl_b32 s67, s{S_W}, 2')
    a.e(f's_add_u32 s67, s67, {L_SIG}')
    a.e('v_mov_b32 v91, s67')
    a.e('s_mov_b64 exec, 1')
    a.e('ds_write_b32 v91, v52')
    a.e('ds_write_b32 v91, v53 offset:16')
    a.e('s_mov_b64 exec, -1')
    a.e('v_mov_b32 v92, 0')
    a.e('v_mov_b32 v93, 0')
    a.e('v_mov_b32 v94, 0')
    a.e('v_mov_b32 v95, 0')
    a.e('s_waitcnt lgkmcnt(0)')
    a.e('s_barrier')
    a.e(f'v_mov_b32 v91, {L_SIG}')
    a.e('ds_read_b128 v[44:47], v91')
    a.e('ds_read_b128 v[48:51], v91 offset:16')
    a.e(f's_and_b32 s67, s{S_W}, 1')
    a.e(f's_lshr_b32 s70, s{S_W}, 1')
    a.e('s_mul_i32 s71, s67, 3072')
    a.e('s_lshl_b32 s72, s70, 10')
    a.e('s_add_u32 s72, s72, s71')
    a.e(f's_add_u32 s72, s72, {L_SCR}')
    a.e(f's_add_u32 s71, s71, {L_SCR + 2048}')
    a.e('v_lshl_add_u32 v90, v1, 4, s72')
    a.e('v_lshl_add_u32 v91, v1, 4, s71')
    for wv in range(4):
        a.e(f'ds_read_b128 v[{96+4*wv}:{99+4*wv}], v90 offset:{wv*SCRW}')
    for wv in range(4):
        a.e(f'ds_read_b128 v[{112+4*wv}:{115+4*wv}], v91 offset:{wv*SCRW}')
    a.e('s_waitcnt lgkmcnt(8)')
    a.e('v_pk_add_f32 v[44:45], v[44:45], v[46:47]')
    a.e('v_pk_add_f32 v[48:49], v[48:49], v[50:51]')
    a.e('v_add_f32 v44, v44, v45')
    a.e('v_add_f32 v45, v48, v49')
    a.e('v_pk_mul_f32 v[54:55], v[54:55], v[44:45]')
    a.e('v_pk_add_f32 v[54:55], v[54:55], v[54:55]')
    a.e('s_cmp_eq_u32 s67, 0')
    a.e('s_cselect_b64 vcc, -1, 0')
    a.e('v_cndmask_b32 v46, v45, v44, vcc')
    a.e('v_rcp_f32 v46, v46')
    a.e('v_lshrrev_b32 v92, 4, v1')
    a.e('v_lshlrev_b32 v92, 7, v92')
    a.e('v_and_b32 v93, 15, v1')
    a.e('v_lshl_add_u32 v92, v93, 1, v92')
    a.e(f's_mul_i32 s71, s67, {KTCH}')
    a.e(f's_add_u32 s71, s71, {L_KT}')
    a.e('v_add_u32 v93, s71, v92')
    a.e('s_lshl_b32 s72, s70, 9')
    a.e('v_add_u32 v92, s72, v93')
    for jb, (base, va, off) in enumerate(((96, 92, 0), (112, 93, 1024))):
        a.e(f's_waitcnt lgkmcnt({4 if jb == 0 else 0})')
        for h in range(2):
            a.e(f'v_pk_add_f32 v[{base+2*h}:{base+2*h+1}], v[{base+2*h}:{base+2*h+1}], v[{base+4+2*h}:{base+5+2*h}]')
            a.e(f'v_pk_add_f32 v[{base+8+2*h}:{base+9+2*h}], v[{base+8+2*h}:{base+9+2*h}], v[{base+12+2*h}:{base+13+2*h}]')
        for h in range(2):
            a.e(f'v_pk_add_f32 v[{base+2*h}:{base+2*h+1}], v[{base+2*h}:{base+2*h+1}], v[{base+8+2*h}:{base+9+2*h}]')
        for h in range(2):
            a.e(f'v_pk_mul_f32 v[{base+2*h}:{base+2*h+1}], v[{base+2*h}:{base+2*h+1}], v[46:47] op_sel:[0,0] op_sel_hi:[1,0]')
        a.e(f'v_cvt_pk_f16_f32 v{base+4}, v{base}, v{base+1}')
        a.e(f'v_cvt_pk_f16_f32 v{base+5}, v{base+2}, v{base+3}')
        a.e(f'ds_write_b16 v{va}, v{base+4} offset:{off}')
        a.e(f'ds_write_b16_d16_hi v{va}, v{base+4} offset:{off+32}')
        a.e(f'ds_write_b16 v{va}, v{base+5} offset:{off+64}')
        a.e(f'ds_write_b16_d16_hi v{va}, v{base+5} offset:{off+96}')
    a.e('v_mov_b32 v96, 0')
    a.e('v_mov_b32 v97, 0')
    a.e('v_mov_b32 v98, 0')
    a.e('v_mov_b32 v99, 0')
    a.e(f'v_mov_b32 v90, {L_KT + 1536}')
    a.e('ds_write_b32 v90, v96')
    a.e(f'ds_write_b32 v90, v96 offset:{KTCH}')
    a.e('v_and_b32 v90, 15, v1')
    a.e(f'v_mul_u32_u24 v90, {KCOPY}, v90')
    a.e(f'ds_write_b128 v90, v[96:99] offset:{L_KC + 4096}')
    a.e('v_lshlrev_b32 v90, 3, v1')
    a.e(f'ds_write_b64 v90, v[96:97] offset:{L_U}')
    a.e(f'ds_write_b64 v90, v[96:97] offset:{L_U + UCH}')
    a.e('s_waitcnt lgkmcnt(0)')
    a.e('s_barrier')
    stamp(a, 6 if PERS else 4)
    AD = 96
    for e in range(15):
        src = 160 + e // 2
        if e % 2 == 0:
            a.e(f'v_and_b32 v{AD+e}, 0xffff, v{src}')
        else:
            a.e(f'v_lshrrev_b32 v{AD+e}, 16, v{src}')
    a.e('v_lshlrev_b32 v111, 4, v0')
    RR = [112, 128]
    for c in range(2):
        for e in range(15):
            a.e(f'ds_read_u16 v{RR[c]+e}, v{AD+e} offset:{L_KT + c*KTCH}')
    for c in range(2):
        R = RR[c]
        Da, Db, Oa, Ob = 144, 152, 160, 168
        a.e(f's_waitcnt lgkmcnt({15 if c == 0 else 0})')
        for i in range(6):
            a.e(f'v_lshl_or_b32 v{Da+i}, v{R+2*i+1}, 16, v{R+2*i}')
            a.e(f'v_lshl_or_b32 v{Oa+i}, v{R+2*i+2}, 16, v{R+2*i+1}')
        for i in range(6):
            a.e(f'v_lshl_or_b32 v{Db+i}, v{R+2*i+3}, 16, v{R+2*i+2}')
            a.e(f'v_lshl_or_b32 v{Ob+i}, v{R+2*i+4}, 16, v{R+2*i+3}')
        if c == 1:
            a.e(f'v_add_u32 v111, {KCH}, v111')
        for s, r in ((0, Da), (1, Oa), (4, Da + 2), (5, Oa + 2), (2, Db), (3, Ob), (6, Db + 2), (7, Ob + 2)):
            a.e(f'ds_write_b128 v111, v[{r}:{r+3}] offset:{L_KC + s*KCOPY}')


def load_gather_table(a, tablabel):
    lp = a.lab('pc')
    a.e('s_getpc_b64 s[70:71]')
    a.e(f'{lp}:')
    a.e(f's_add_u32 s70, s70, {tablabel}-{lp}')
    a.e('s_addc_u32 s71, s71, 0')
    a.e('v_lshlrev_b32 v2, 5, v0')
    a.e('global_load_dwordx4 v[160:163], v2, s[70:71]')
    a.e('global_load_dwordx4 v[164:167], v2, s[70:71] offset:16')


def emit_gather_table(a, tablabel):
    a.raw('.p2align 4')
    a.raw(f'.type {tablabel},@object')
    a.raw(f'{tablabel}:')
    tab = gather_table()
    for i in range(0, len(tab), 16):
        a.raw('.short ' + ', '.join(str(x) for x in tab[i:i + 16]))
    a.raw(f'.size {tablabel}, {2*len(tab)}')


XC = list(range(192, 200))
ST = 200


def conv_loads(a):
    a.e(f's_lshl_b32 s66, s{S_P}, 2')
    a.e(f'v_mul_u32_u24 v2, {8*896}, v0')
    a.e('v_add_u32 v2, s66, v2')
    a.e('v_add_u32 v3, 4480, v2')
    for j in range(5):
        a.e(f'buffer_load_dword v{XC[j]}, v2, s[{S_X}:{S_X+3}], 0 offen offset:{j*896}')
    for j in range(5, 8):
        a.e(f'buffer_load_dword v{XC[j]}, v3, s[{S_X}:{S_X+3}], 0 offen offset:{(j-5)*896}')


def stats_loads(a):
    a.e('v_lshlrev_b32 v2, 6, v0')
    for i in range(4):
        a.e(f'buffer_load_dwordx4 v[{ST+4*i}:{ST+4*i+3}], v2, s[{S_WS}:{S_WS+3}], 0 offen offset:{WS_STATS+16*i}')


def phase_norm(a):
    U0, U1 = 96, 100
    for j in range(8):
        g = ST + 2 * j
        x = XC[j]
        t = 104 + 8 * (j % 2)
        a.e(f'v_lshlrev_b32 v{t}, 16, v{x}')
        a.e(f'v_and_b32 v{t+1}, 0xffff0000, v{x}')
        a.e(f'v_lshlrev_b32 v{t+2}, 16, v{g}')
        a.e(f'v_and_b32 v{t+3}, 0xffff0000, v{g}')
        a.e(f'v_rcp_f32 v{t+3}, v{t+3}')
        a.e(f'v_pk_add_f32 v[{t}:{t+1}], v[{t}:{t+1}], v[{t+2}:{t+3}] op_sel:[0,0] op_sel_hi:[1,0] neg_lo:[0,1] neg_hi:[0,1]')
        a.e(f'v_cvt_pk_bf16_f32 v{t+4}, v{t}, v{t+1}')
        a.e(f'v_lshlrev_b32 v{t}, 16, v{t+4}')
        a.e(f'v_and_b32 v{t+1}, 0xffff0000, v{t+4}')
        a.e(f'v_pk_mul_f32 v[{t}:{t+1}], v[{t}:{t+1}], v[{t+2}:{t+3}] op_sel:[0,1] op_sel_hi:[1,1]')
        a.e(f'v_cvt_pk_bf16_f32 v{t+4}, v{t}, v{t+1}')
        a.e(f'v_lshlrev_b32 v{120+2*j}, 16, v{t+4}')
        a.e(f'v_and_b32 v{121+2*j}, 0xffff0000, v{t+4}')
    for i in range(4):
        a.e(f'v_cvt_pk_f16_f32 v{U0+i}, v{120+4*i}, v{122+4*i}')
        a.e(f'v_cvt_pk_f16_f32 v{U1+i}, v{121+4*i}, v{123+4*i}')
    a.e('v_lshlrev_b32 v2, 4, v0')
    a.e(f'ds_write_b128 v2, v[{U0}:{U0+3}] offset:{L_U + 512}')
    a.e(f'ds_write_b128 v2, v[{U1}:{U1+3}] offset:{L_U + UCH + 512}')
    a.e('s_waitcnt lgkmcnt(0)')
    a.e('s_barrier')


def phase_conv(a):
    ACC = 16
    FA = [[64 + 64 * s + 4 * i for i in range(8)] for s in range(2)]
    FB = [[96 + 64 * s + 4 * i for i in range(8)] for s in range(2)]
    VA, VB = 48, 49
    a.e(f's_lshr_b32 s66, s{S_W}, 1')
    a.e(f's_and_b32 s67, s{S_W}, 1')
    a.e('v_and_b32 v2, 7, v1')
    a.e('v_sub_u32 v2, 7, v2')
    a.e(f'v_mul_u32_u24 v2, {KCOPY}, v2')
    a.e('v_lshrrev_b32 v3, 4, v1')
    a.e('v_bfe_u32 v4, v1, 3, 1')
    a.e('v_sub_u32 v3, v3, v4')
    a.e('v_lshl_add_u32 v2, v3, 4, v2')
    a.e(f's_mul_i32 s70, s66, {KCH}')
    a.e('s_lshl_b32 s71, s67, 8')
    a.e('s_sub_u32 s70, s70, s71')
    a.e(f's_add_u32 s70, s70, {L_KC + 16*253 - 512*7 - 64*3}')
    a.e(f'v_add_u32 v{VA}, s70, v2')
    a.e('v_and_b32 v2, 15, v1')
    a.e('v_lshlrev_b32 v2, 5, v2')
    a.e('v_lshrrev_b32 v3, 4, v1')
    a.e('v_lshl_add_u32 v2, v3, 4, v2')
    a.e(f's_mul_i32 s70, s66, {UCH}')
    a.e('s_sub_u32 s70, s70, s71')
    a.e(f's_add_u32 s70, s70, {L_U + 480 - 64*3}')
    a.e(f'v_add_u32 v{VB}, s70, v2')

    def loads(qq, s):
        for i in range(8):
            a.e(f'ds_read_b128 v[{FB[s][i]}:{FB[s][i]+3}], v{VB} offset:{512*i + 64*(3-qq)}')
            a.e(f'ds_read_b128 v[{FA[s][i]}:{FA[s][i]+3}], v{VA} offset:{512*(7-i) + 64*(3-qq)}')

    loads(0, 0)
    for qq in range(4):
        s = qq & 1
        if qq < 3:
            nxt = []
            for i in range(8):
                nxt.append(f'ds_read_b128 v[{FB[1-s][i]}:{FB[1-s][i]+3}], v{VB} offset:{512*i + 64*(3-qq-1)}')
                nxt.append(f'ds_read_b128 v[{FA[1-s][i]}:{FA[1-s][i]+3}], v{VA} offset:{512*(7-i) + 64*(3-qq-1)}')
        else:
            nxt = []
        a.e('s_waitcnt lgkmcnt(0)')
        n = 0
        for w in range(8):
            for c in range(w, 8):
                cc = '0' if (qq == 0 and w == 0) else f'v[{ACC+4*c}:{ACC+4*c+3}]'
                a.e(f'v_mfma_f32_16x16x32_f16 v[{ACC+4*c}:{ACC+4*c+3}], v[{FA[s][w]}:{FA[s][w]+3}], v[{FB[s][c-w]}:{FB[s][c-w]+3}], {cc}')
                if nxt and n % 2 == 1:
                    a.e(nxt.pop(0))
                n += 1
        assert not nxt
    stamp(a, 11 if PERS else 7)
    CP = L_SCR
    TS = 1280
    a.e('v_and_b32 v2, 15, v1')
    a.e('v_lshlrev_b32 v2, 4, v2')
    a.e('v_lshrrev_b32 v3, 4, v1')
    a.e('v_mul_u32_u24 v3, 320, v3')
    a.e('v_add_u32 v2, v2, v3')
    a.e(f's_mul_i32 s70, s{S_W}, {8*TS}')
    a.e(f's_add_u32 s70, s70, {CP}')
    a.e('v_add_u32 v2, s70, v2')
    for c in range(8):
        a.e(f'ds_write_b128 v2, v[{ACC+4*c}:{ACC+4*c+3}] offset:{c*TS}')
    a.e('v_lshrrev_b32 v2, 2, v1')
    a.e('v_lshlrev_b32 v2, 4, v2')
    a.e('v_and_b32 v3, 3, v1')
    a.e('v_mul_u32_u24 v3, 320, v3')
    a.e('v_add_u32 v2, v2, v3')
    a.e(f's_lshl_b32 s70, s{S_W}, 1')
    a.e(f's_mul_i32 s71, s70, {TS}')
    a.e(f's_add_u32 s71, s71, {CP}')
    a.e('v_add_u32 v2, s71, v2')
    a.e('s_lshl_b32 s71, s70, 9')
    a.e(f's_add_u32 s71, s71, {L_U + 512}')
    a.e('v_lshl_add_u32 v3, v1, 3, s71')
    a.e(f's_lshl_b32 s71, s{S_P}, 13')
    a.e('s_lshl_b32 s72, s70, 10')
    a.e('s_add_u32 s71, s71, s72')
    a.e(f's_add_u32 s71, s71, {WS_AOUT}')
    a.e('v_lshl_add_u32 v4, v1, 4, s71')
    a.e('s_lshl_b32 s72, s69, 16')
    a.e('s_and_b32 s73, s69, 0xffff0000')
    a.e('v_mov_b32 v56, s72')
    a.e('v_mov_b32 v57, s73')
    a.e('s_waitcnt lgkmcnt(0)')
    a.e('s_barrier')
    for q in range(2):
        P = 64 + 32 * q
        for ch in range(2):
            for hf in range(2):
                r = P + 8 * ch + 4 * hf
                a.e(f'ds_read_b128 v[{r}:{r+3}], v2 offset:{(2*ch+hf)*8*TS + q*TS}')
        for ch in range(2):
            a.e(f'ds_read_b64 v[{P+16+2*ch}:{P+17+2*ch}], v3 offset:{ch*UCH + q*512}')
    for q in range(2):
        P = 64 + 32 * q
        a.e(f's_waitcnt lgkmcnt({6 if q == 0 else 0})')
        for ch in range(2):
            y = P + 8 * ch
            T = 128 + 16 * ch
            for h in range(2):
                a.e(f'v_pk_add_f32 v[{y+2*h}:{y+2*h+1}], v[{y+2*h}:{y+2*h+1}], v[{y+4+2*h}:{y+5+2*h}]')
            for h in range(2):
                a.e(f'v_pk_mul_f32 v[{y+2*h}:{y+2*h+1}], v[{y+2*h}:{y+2*h+1}], v[54:55] op_sel:[0,{ch}] op_sel_hi:[1,{ch}]')
            u = P + 16 + 2 * ch
            for i in range(4):
                a.e(f'v_fma_mix_f32 v{T+i}, v{u+i//2}, v{56+ch}, 0 op_sel:[{i%2},0,0] op_sel_hi:[1,0,0]')
            for h in range(2):
                a.e(f'v_cvt_pk_bf16_f32 v{T+4+h}, v{y+2*h}, v{y+2*h+1}')
                a.e(f'v_cvt_pk_bf16_f32 v{T+6+h}, v{T+2*h}, v{T+2*h+1}')
            for h in range(2):
                a.e(f'v_lshlrev_b32 v{y+2*h}, 16, v{T+4+h}')
                a.e(f'v_and_b32 v{y+2*h+1}, 0xffff0000, v{T+4+h}')
                a.e(f'v_lshlrev_b32 v{T+2*h}, 16, v{T+6+h}')
                a.e(f'v_and_b32 v{T+2*h+1}, 0xffff0000, v{T+6+h}')
            for h in range(2):
                a.e(f'v_pk_add_f32 v[{y+2*h}:{y+2*h+1}], v[{y+2*h}:{y+2*h+1}], v[{T+2*h}:{T+2*h+1}]')
        O = 160 + 4 * q
        for i in range(4):
            a.e(f'v_cvt_pk_bf16_f32 v{O+i}, v{P+i}, v{P+8+i}')
        a.e(f'buffer_store_dwordx4 v[{O}:{O+3}], v4, s[{S_WS}:{S_WS+3}], 0 offen offset:{q*1024}{SC()}')


def bcast_stats(a, T):
    a.e(f'v_lshlrev_b32 v{T+1}, 16, v{T}')
    a.e(f'v_and_b32 v{T+2}, 0xffff0000, v{T}')
    a.e(f'v_rcp_f32 v{T+2}, v{T+2}')
    for j in range(8):
        a.e(f'v_readlane_b32 s{72+2*j}, v{T+1}, {j}')
    for j in range(8):
        a.e(f'v_readlane_b32 s{73+2*j}, v{T+2}, {j}')


def norm_tok(a, j, src, d):
    a.e(f'v_lshlrev_b32 v{d}, 16, v{src}')
    a.e(f'v_and_b32 v{d+1}, 0xffff0000, v{src}')
    a.e(f'v_pk_add_f32 v[{d}:{d+1}], v[{d}:{d+1}], s[{72+2*j}:{73+2*j}] op_sel:[0,0] op_sel_hi:[1,0] neg_lo:[0,1] neg_hi:[0,1]')
    a.e(f'v_cvt_pk_bf16_f32 v{src}, v{d}, v{d+1}')
    a.e(f'v_lshlrev_b32 v{d}, 16, v{src}')
    a.e(f'v_and_b32 v{d+1}, 0xffff0000, v{src}')
    a.e(f'v_pk_mul_f32 v[{d}:{d+1}], v[{d}:{d+1}], s[{72+2*j}:{73+2*j}] op_sel:[0,1] op_sel_hi:[1,1]')


def phase_p4(a):
    X = list(range(8, 16))
    A = 32
    if PERS:
        xrow_addr(a)
    else:
        load_xrows(a, X)
    a.e(f's_mul_i32 s66, s{S_W}, {56*8192}')
    a.e(f's_lshl_b32 s67, s{S_B}, 5')
    a.e('s_add_u32 s66, s66, s67')
    a.e(f's_add_u32 s66, s66, {WS_AOUT}')
    a.e('v_lshl_add_u32 v4, v1, 13, s66')
    a.e(f'v_mov_b32 v5, {OOB}')
    a.e('v_cndmask_b32 v4, v5, v4, vcc')
    a.e(f'v_add_u32 v6, {WS_H}, v2')
    a.e(f'v_add_u32 v7, {WS_H}, v3')
    lp, ld = a.lab('h2poll'), a.lab('h2done')
    a.e(f's_mov_b32 s{S_SPIN}, 0')
    a.e(f'{lp}:')
    a.e(f'buffer_load_dwordx4 v[{A}:{A+3}], v4, s[{S_WS}:{S_WS+3}], 0 offen{SC()}')
    a.e(f'buffer_load_dwordx4 v[{A+4}:{A+7}], v4, s[{S_WS}:{S_WS+3}], 0 offen offset:16{SC()}')
    a.e('s_waitcnt vmcnt(0)')
    if PERS:
        a.e(f'v_max3_u32 v40, v{A}, v{A+1}, v{A+2}')
        a.e(f'v_max3_u32 v41, v{A+3}, v{A+4}, v{A+5}')
        a.e(f'v_max3_u32 v40, v40, v{A+6}, v{A+7}')
        a.e('v_max_u32 v40, v40, v41')
        a.e('v_cmp_eq_u32 vcc, -1, v40')
        a.e(f's_cbranch_vccz {ld}')
        a.e(f's_add_u32 s{S_SPIN}, s{S_SPIN}, 1')
        a.e(f's_cmp_lt_u32 s{S_SPIN}, {SPIN_MAX}')
        a.e(f's_cbranch_scc1 {lp}')
    a.e(f'{ld}:')
    stamp(a, 14 if PERS else 2)
    for j in range(8):
        t = 40 + 4 * (j % 2)
        a.e(f'v_lshlrev_b32 v{t}, 16, v{X[j]}')
        a.e(f'v_and_b32 v{t+1}, 0xffff0000, v{X[j]}')
        a.e(f'v_lshlrev_b32 v{t+2}, 16, v{A+j}')
        a.e(f'v_and_b32 v{t+3}, 0xffff0000, v{A+j}')
        a.e(f'v_pk_add_f32 v[{t}:{t+1}], v[{t}:{t+1}], v[{t+2}:{t+3}]')
        a.e(f'v_cvt_pk_bf16_f32 v{X[j]}, v{t}, v{t+1}')
    for j in range(5):
        a.e(f'buffer_store_dword v{X[j]}, v6, s[{S_WS}:{S_WS+3}], 0 offen offset:{j*896}{SC()}')
    for j in range(5, 8):
        a.e(f'buffer_store_dword v{X[j]}, v7, s[{S_WS}:{S_WS+3}], 0 offen offset:{(j-5)*896}{SC()}')
    H = list(range(48, 56))
    for j in range(8):
        a.e(f'v_mov_b32 v{H[j]}, v{X[j]}')
    ln_stats(a, H, 16, L_RED0, 5)
    bcast_stats(a, 16)
    a.e('s_mov_b32 exec_hi, 0x00ffffff')
    for j in range(8):
        t = 40 + 2 * (j % 4)
        norm_tok(a, j, H[j], t)
        a.e(f'v_cvt_pk_bf16_f32 v{H[j]}, v{t}, v{t+1}')
    a.e('s_mov_b32 exec_hi, -1')
    ln_stats(a, H, 16, L_RED1, 5)
    bcast_stats(a, 16)
    for j in range(8):
        norm_tok(a, j, H[j], 64 + 2 * j)
    O0, O1 = 80, 84
    for i in range(4):
        a.e(f'v_cvt_pk_bf16_f32 v{O0+i}, v{64+4*i}, v{66+4*i}')
        a.e(f'v_cvt_pk_bf16_f32 v{O1+i}, v{65+4*i}, v{67+4*i}')
    a.e(f's_mul_i32 s66, s{S_B}, 7168')
    a.e(f's_mul_i32 s67, s{S_W}, 1792')
    a.e('s_add_u32 s66, s66, s67')
    a.e(f's_add_u32 s66, s66, {WS_HH}')
    a.e('v_lshl_add_u32 v4, v1, 4, s66')
    a.e('v_add_u32 v5, 448, v4')
    a.e('v_cmp_gt_u32 vcc, 28, v1')
    a.e('v_cndmask_b32 v4, v5, v4, vcc')
    a.e(f'v_mov_b32 v5, {OOB}')
    a.e('v_cmp_gt_u32 vcc, 56, v1')
    a.e('v_cndmask_b32 v4, v5, v4, vcc')
    if PERS:
        a.e('s_waitcnt vmcnt(0)')
    a.e(f'buffer_store_dwordx4 v[{O0}:{O0+3}], v4, s[{S_WS}:{S_WS+3}], 0 offen{SC()}')
    a.e(f'buffer_store_dwordx4 v[{O1}:{O1+3}], v4, s[{S_WS}:{S_WS+3}], 0 offen offset:448{SC()}')


ACC = 16
XS = 80
NS = 8


def gemm_xaddr(a, ws_off, kblocks):
    a.e(f's_mul_i32 s66, s{S_W}, {kblocks*7168}')
    a.e(f's_mul_i32 s67, s{S_J}, 896')
    a.e('s_add_u32 s66, s66, s67')
    a.e(f's_add_u32 s66, s66, {ws_off}')
    a.e('v_lshrrev_b32 v4, 4, v1')
    a.e('v_mul_u32_u24 v4, 7168, v4')
    a.e('v_and_b32 v5, 15, v1')
    a.e('v_lshl_add_u32 v4, v5, 4, v4')
    a.e('v_add_u32 v2, s66, v4')
    a.e('v_and_b32 v5, 7, v1')
    a.e('v_lshrrev_b32 v4, 4, v1')
    a.e('v_mul_u32_u24 v4, 7168, v4')
    a.e('v_lshl_add_u32 v4, v5, 4, v4')
    a.e('v_add_u32 v3, s66, v4')
    a.e('v_add_u32 v3, 768, v3')


def gemm_xload(a, kappa):
    st = XS + 16 * (kappa % NS)
    a.e(f's_mov_b32 s70, {kappa*4*7168}')
    for nu in range(3):
        a.e(f'buffer_load_dwordx4 v[{st+4*nu}:{st+4*nu+3}], v2, s[{S_WS}:{S_WS+3}], s70 offen offset:{256*nu}{SC()}')
    a.e(f'buffer_load_dwordx4 v[{st+12}:{st+15}], v3, s[{S_WS}:{S_WS+3}], s70 offen{SC()}')


def gemm_wload(a, nk, rowbytes, wptr, wbytes, coltile_sreg, rows_per_wave, extra_vm, k0=0):
    srd(a, S_T0, wptr, wbytes)
    a.e('v_lshrrev_b32 v4, 3, v1')
    a.e(f's_mov_b32 s66, {rowbytes}')
    a.e('v_mul_lo_u32 v5, v4, s66')
    a.e('v_bfe_u32 v4, v1, 4, 1')
    a.e('v_lshlrev_b32 v4, 1, v4')
    a.e('v_and_b32 v6, 7, v1')
    a.e('v_xor_b32 v6, v6, v4')
    a.e(f's_mul_i32 s67, s{S_W}, {rows_per_wave*rowbytes}')
    a.e(f's_lshl_b32 s66, s{coltile_sreg}, 7')
    a.e('s_add_u32 s67, s67, s66')
    a.e('v_lshl_add_u32 v4, v6, 4, v5')
    a.e('v_add_u32 v208, s67, v4')
    a.e('v_xor_b32 v6, 4, v6')
    a.e('v_lshl_add_u32 v4, v6, 4, v5')
    a.e('v_add_u32 v209, s67, v4')
    a.e('v_lshrrev_b32 v4, 4, v1')
    a.e('v_bfe_u32 v5, v1, 2, 2')
    a.e('v_lshl_add_u32 v5, v4, 3, v5')
    a.e('v_lshlrev_b32 v5, 7, v5')
    a.e('v_and_b32 v6, 1, v1')
    a.e('v_lshl_add_u32 v5, v6, 3, v5')
    a.e('v_bfe_u32 v6, v1, 1, 1')
    a.e('v_lshl_add_u32 v5, v6, 4, v5')
    a.e(f's_lshl_b32 s66, s{S_W}, 14')
    a.e(f's_add_u32 s66, s66, {L_WRING}')
    a.e('v_add_u32 v5, s66, v5')
    a.e('v_bfe_u32 v6, v1, 3, 1')
    a.e('v_and_b32 v4, 1, v4')
    a.e('v_lshl_add_u32 v6, v4, 1, v6')
    for mu in range(4):
        a.e(f'v_xor_b32 v4, {mu}, v6')
        a.e(f'v_lshl_add_u32 v{210+mu}, v4, 5, v5')
    a.e(f's_mov_b32 s71, s66')

    def dma(kappa):
        for i in range(4):
            a.e(f's_add_u32 m0, s71, {(kappa % 4)*4096 + i*1024}')
            a.e(f's_mov_b32 s70, {(32*kappa + 8*i)*rowbytes}')
            a.e(f'buffer_load_dwordx4 v{208 + (i & 1)}, s[{S_T0}:{S_T0+3}], s70 offen lds')

    for k in range(k0, min(k0 + 4, nk)):
        dma(k)
    for k in range(k0, nk):
        inflight = min(3, nk - 1 - k)
        a.e(f's_waitcnt vmcnt({4*inflight})')
        for mu in range(4):
            r = (k * 4 + mu) * 4
            a.e(f'ds_read_b64_tr_b16 a[{r}:{r+1}], v{210+mu} offset:{(k % 4)*4096}')
            a.e(f'ds_read_b64_tr_b16 a[{r+2}:{r+3}], v{210+mu} offset:{(k % 4)*4096 + 512}')
        if k + 4 < nk:
            a.e('s_waitcnt lgkmcnt(0)')
            dma(k + 4)
    a.e('s_waitcnt lgkmcnt(0)')


VMAX = 214


def gemm_main(a, nk, w_is_a):
    if PERS:
        a.e(f'v_mov_b32 v{VMAX}, 0')
    for k in range(nk):
        st = XS + 16 * (k % NS)
        rem = min(NS - 1, nk - 1 - k)
        a.e(f's_waitcnt vmcnt({4*rem})')
        for mu in range(4):
            for nu in range(4):
                if PERS and nu % 2 == 1:
                    r = st + 4 * mu + (nu - 1)
                    a.e(f'v_max3_u32 v{VMAX}, v{VMAX}, v{r}, v{r+1}')
                w = (k * 4 + mu) * 4
                x = st + 4 * nu
                if w_is_a:
                    acc = ACC + (mu * 4 + nu) * 4
                    A, B = f'a[{w}:{w+3}]', f'v[{x}:{x+3}]'
                else:
                    acc = ACC + (nu * 4 + mu) * 4
                    A, B = f'v[{x}:{x+3}]', f'a[{w}:{w+3}]'
                cc = '0' if k == 0 else f'v[{acc}:{acc+3}]'
                a.e(f'v_mfma_f32_16x16x32_bf16 v[{acc}:{acc+3}], {A}, {B}, {cc}')
        if k + NS < nk:
            gemm_xload(a, k + NS)


def write_partials(a):
    a.e('v_and_b32 v4, 15, v1')
    a.e(f'v_mul_u32_u24 v4, {PROW}, v4')
    a.e('v_lshrrev_b32 v5, 4, v1')
    a.e('v_lshl_add_u32 v4, v5, 4, v4')
    a.e(f's_mul_i32 s66, s{S_W}, {PARTW}')
    a.e(f's_add_u32 s66, s66, {L_PART}')
    a.e('v_add_u32 v4, s66, v4')
    for mt in range(4):
        for nt in range(4):
            acc = ACC + (mt * 4 + nt) * 4
            a.e(f'ds_write_b128 v4, v[{acc}:{acc+3}] offset:{nt*16*PROW + mt*64}')
    a.e('s_waitcnt lgkmcnt(0)')
    a.e('s_barrier')


def round_pairs(a, src, dst_pk, n):
    for i in range(n // 2):
        a.e(f'v_cvt_pk_bf16_f32 v{dst_pk+i}, v{src+2*i}, v{src+2*i+1}')
    for i in range(n // 2):
        a.e(f'v_lshlrev_b32 v{src+2*i}, 16, v{dst_pk+i}')
        a.e(f'v_and_b32 v{src+2*i+1}, 0xffff0000, v{dst_pk+i}')


def phase_gemm1(a):
    gemm_xaddr(a, WS_HH, 64)
    for k in range(NS):
        gemm_xload(a, k)
    stamp(a, 2)
    gemm_wload(a, 16, F * 2, P_W1, W1BYTES, S_I1, 512, 32)
    stamp(a, 3)
    gemm_main(a, 16, True)
    stamp(a, 4)
    gemm1_epilogue(a)


def gemm1_epilogue(a):
    write_partials(a)
    stamp(a, 24 if PERS else 5)
    srd(a, S_T1, P_B1, F * 2)
    a.e(f'v_mul_u32_u24 v4, {PROW}, v1')
    a.e(f's_lshl_b32 s66, s{S_W}, 6')
    a.e(f's_add_u32 s66, s66, {L_PART}')
    a.e('v_add_u32 v4, s66, v4')
    a.e(f's_lshl_b32 s67, s{S_I1}, 7')
    a.e(f's_lshl_b32 s70, s{S_W}, 5')
    a.e('s_add_u32 s67, s67, s70')
    a.e(f's_load_dwordx8 s[72:79], s[{P_B1}:{P_B1+1}], s67')
    a.e(f's_lshl_b32 s66, s{S_I1}, 3')
    a.e(f's_lshl_b32 s70, s{S_W}, 1')
    a.e('s_add_u32 s66, s66, s70')
    a.e('s_mul_i32 s66, s66, 7168')
    a.e(f's_mul_i32 s70, s{S_J}, 896')
    a.e('s_add_u32 s66, s66, s70')
    a.e(f's_add_u32 s66, s66, {WS_G}')
    a.e('v_lshl_add_u32 v5, v1, 4, s66')
    a.e(f'v_mov_b32 v6, {OOB}')
    a.e('v_cmp_gt_u32 vcc, 56, v1')
    a.e('v_cndmask_b32 v5, v6, v5, vcc')
    for r in range(2):
        P = 16 + 32 * r
        for wv in range(4):
            a.e(f'ds_read_b128 v[{P+8*wv}:{P+8*wv+3}], v4 offset:{wv*PARTW + r*32}')
            a.e(f'ds_read_b128 v[{P+8*wv+4}:{P+8*wv+7}], v4 offset:{wv*PARTW + r*32 + 16}')
    a.e('s_waitcnt lgkmcnt(0)')
    for i in range(8):
        a.e(f's_lshl_b32 s{80+2*i}, s{72+i}, 16')
        a.e(f's_and_b32 s{81+2*i}, s{72+i}, 0xffff0000')
    C1 = 0.044715
    C2 = -2.0 * 0.7978845608028654 * 1.4426950408889634
    a.e(f'v_mov_b32 v100, {fx(C1*C2)}')
    a.e(f'v_mov_b32 v101, {fx(C1*C2)}')
    a.e(f'v_mov_b32 v102, {fx(C2)}')
    a.e(f'v_mov_b32 v103, {fx(C2)}')
    for r in range(2):
        P = 16 + 32 * r
        T = 80 + 0
        for h in range(4):
            a.e(f'v_pk_add_f32 v[{P+2*h}:{P+2*h+1}], v[{P+2*h}:{P+2*h+1}], v[{P+8+2*h}:{P+9+2*h}]')
            a.e(f'v_pk_add_f32 v[{P+16+2*h}:{P+17+2*h}], v[{P+16+2*h}:{P+17+2*h}], v[{P+24+2*h}:{P+25+2*h}]')
        for h in range(4):
            a.e(f'v_pk_add_f32 v[{P+2*h}:{P+2*h+1}], v[{P+2*h}:{P+2*h+1}], v[{P+16+2*h}:{P+17+2*h}]')
        round_pairs(a, P, T, 8)
        for h in range(4):
            a.e(f'v_pk_add_f32 v[{P+2*h}:{P+2*h+1}], v[{P+2*h}:{P+2*h+1}], s[{80+8*r+2*h}:{81+8*r+2*h}]')
        round_pairs(a, P, T, 8)
        for h in range(4):
            a.e(f'v_pk_mul_f32 v[{P+8+2*h}:{P+9+2*h}], v[{P+2*h}:{P+2*h+1}], v[{P+2*h}:{P+2*h+1}]')
        for h in range(4):
            a.e(f'v_pk_fma_f32 v[{P+8+2*h}:{P+9+2*h}], v[{P+8+2*h}:{P+9+2*h}], v[100:101], v[102:103]')
        for h in range(4):
            a.e(f'v_pk_mul_f32 v[{P+8+2*h}:{P+9+2*h}], v[{P+8+2*h}:{P+9+2*h}], v[{P+2*h}:{P+2*h+1}]')
        for i in range(8):
            a.e(f'v_exp_f32 v{P+8+i}, v{P+8+i}')
        for h in range(4):
            a.e(f'v_pk_add_f32 v[{P+8+2*h}:{P+9+2*h}], v[{P+8+2*h}:{P+9+2*h}], 1.0 op_sel_hi:[1,0]')
        for i in range(8):
            a.e(f'v_rcp_f32 v{P+8+i}, v{P+8+i}')
        for h in range(4):
            a.e(f'v_pk_mul_f32 v[{P+2*h}:{P+2*h+1}], v[{P+2*h}:{P+2*h+1}], v[{P+8+2*h}:{P+9+2*h}]')
        O = 88 + 4 * r
        for h in range(4):
            a.e(f'v_cvt_pk_bf16_f32 v{O+h}, v{P+2*h}, v{P+2*h+1}')
        if r == 1:
            a.e('v_add_u32 v5, 7168, v5')
        a.e(f'buffer_store_dwordx4 v[{O}:{O+3}], v5, s[{S_WS}:{S_WS+3}], 0 offen{SC()}')


def phase_gemm2(a):
    gemm_xaddr(a, WS_G, 56)
    for k in range(NS):
        gemm_xload(a, k)
    stamp(a, 2)
    gemm_wload(a, 14, L * 2, P_W2, W2BYTES, S_I2, 448, 32)
    stamp(a, 3)
    gemm_main(a, 14, False)
    stamp(a, 4)
    gemm2_epilogue(a)


def gemm2_epilogue(a):
    write_partials(a)
    stamp(a, 33 if PERS else 5)
    srd(a, S_T1, P_OUT, XBYTES)
    a.e('v_lshrrev_b32 v4, 3, v1')
    a.e('v_and_b32 v5, 7, v1')
    a.e(f's_lshl_b32 s66, s{S_W}, 4')
    a.e('v_add_u32 v4, s66, v4')
    a.e(f'v_mul_u32_u24 v6, {PROW}, v4')
    a.e('v_lshl_add_u32 v6, v5, 4, v6')
    a.e(f'v_add_u32 v6, {L_PART}, v6')
    a.e(f's_lshl_b32 s67, s{S_I2}, 6')
    a.e('v_add_u32 v7, s67, v4')
    a.e('v_mul_u32_u24 v8, 896, v7')
    a.e('v_lshl_add_u32 v8, v5, 4, v8')
    a.e(f's_mul_i32 s70, s{S_J}, 112')
    a.e('v_add_u32 v8, s70, v8')
    a.e(f'v_mov_b32 v9, {OOB}')
    a.e('v_cmp_gt_u32 vcc, 7, v5')
    a.e('v_cndmask_b32 v8, v9, v8, vcc')
    a.e(f'v_add_u32 v9, {WS_H}, v8')
    srd(a, S_T2, P_B2, L * 2)
    a.e('v_lshlrev_b32 v7, 1, v7')
    for r in range(2):
        a.e(f'buffer_load_dwordx4 v[{96+4*r}:{99+4*r}], v9, s[{S_WS}:{S_WS+3}], 0 offen{SC()}')
        if r == 0:
            a.e(f'v_add_u32 v9, {8*896}, v9')
        a.e(f'buffer_load_ushort v{104+r}, v7, s[{S_T2}:{S_T2+3}], 0 offen offset:{16*r}')
    for r in range(2):
        P = 16 + 32 * r
        for wv in range(4):
            a.e(f'ds_read_b128 v[{P+8*wv}:{P+8*wv+3}], v6 offset:{wv*PARTW + r*8*PROW}')
            a.e(f'ds_read_b128 v[{P+8*wv+4}:{P+8*wv+7}], v6 offset:{wv*PARTW + r*8*PROW + 112}')
    a.e('s_waitcnt lgkmcnt(0) vmcnt(0)')
    for r in range(2):
        P = 16 + 32 * r
        T = 80
        for h in range(4):
            a.e(f'v_pk_add_f32 v[{P+2*h}:{P+2*h+1}], v[{P+2*h}:{P+2*h+1}], v[{P+8+2*h}:{P+9+2*h}]')
            a.e(f'v_pk_add_f32 v[{P+16+2*h}:{P+17+2*h}], v[{P+16+2*h}:{P+17+2*h}], v[{P+24+2*h}:{P+25+2*h}]')
        for h in range(4):
            a.e(f'v_pk_add_f32 v[{P+2*h}:{P+2*h+1}], v[{P+2*h}:{P+2*h+1}], v[{P+16+2*h}:{P+17+2*h}]')
        round_pairs(a, P, T, 8)
        a.e(f'v_lshlrev_b32 v{106}, 16, v{104+r}')
        for h in range(4):
            a.e(f'v_pk_add_f32 v[{P+2*h}:{P+2*h+1}], v[{P+2*h}:{P+2*h+1}], v[106:107] op_sel:[0,0] op_sel_hi:[1,0]')
        round_pairs(a, P, T, 8)
        H = 96 + 4 * r
        for i in range(4):
            a.e(f'v_lshlrev_b32 v{P+8+i}, 16, v{H+i}')
            a.e(f'v_and_b32 v{P+12+i}, 0xffff0000, v{H+i}')
        for h in range(4):
            a.e(f'v_pk_add_f32 v[{P+2*h}:{P+2*h+1}], v[{P+2*h}:{P+2*h+1}], v[{P+8+2*h}:{P+9+2*h}]')
        O = 88 + 4 * r
        for i in range(4):
            a.e(f'v_cvt_pk_bf16_f32 v{O+i}, v{P+i}, v{P+4+i}')
        if r == 1:
            a.e(f'v_add_u32 v8, {8*896}, v8')
        a.e(f'buffer_store_dwordx4 v[{O}:{O+3}], v8, s[{S_T1}:{S_T1+3}], 0 offen')


def kernel(a, name, body, nwg=256):
    lend = a.lab('end')
    a.raw(f'.globl {name}')
    a.raw('.p2align 8')
    a.raw(f'.type {name},@function')
    a.raw(f'{name}:')
    prologue(a, nwg, lend)
    body(a, lend)
    stamp(a, 63)
    stamp_flush(a)
    KIDX[0] += 1
    a.e(f'{lend}:')
    a.e('s_endpgm')


def descriptor(name):
    return f'''.amdhsa_kernel {name}
  .amdhsa_next_free_vgpr 512
  .amdhsa_next_free_sgpr 102
  .amdhsa_accum_offset 256
  .amdhsa_group_segment_fixed_size 0
  .amdhsa_kernarg_size 120
  .amdhsa_user_sgpr_count 2
  .amdhsa_user_sgpr_kernarg_segment_ptr 1
  .amdhsa_system_sgpr_workgroup_id_x 1
  .amdhsa_float_denorm_mode_32 3
.end_amdhsa_kernel
'''


def skip_if_loc_ge28(a, lend):
    a.e(f's_cmp_ge_u32 s{S_LOC}, 28')
    a.e(f's_cbranch_scc1 {lend}')


def build_multi():
    a = Prog()
    names = ['k1_stats_kernel', 'k2_conv_kernel', 'k3_ln_kernel', 'k4_gemm1_kernel', 'k5_gemm2_kernel']

    def b1(a, lend):
        phase_p1(a)

    def b2(a, lend):
        skip_if_loc_ge28(a, lend)
        kgen_loads(a)
        load_gather_table(a, 'ktab_idx')
        conv_loads(a)
        stats_loads(a)
        a.e('s_waitcnt vmcnt(0) lgkmcnt(0)')
        stamp(a, 2)
        phase_kgen(a)
        stamp(a, 5)
        phase_norm(a)
        stamp(a, 6)
        phase_conv(a)

    def b3(a, lend):
        phase_p4(a)

    def b4(a, lend):
        skip_if_loc_ge28(a, lend)
        phase_gemm1(a)

    def b5(a, lend):
        phase_gemm2(a)

    for n, b in zip(names, (b1, b2, b3, b4, b5)):
        kernel(a, n, b)
        if n == 'k2_conv_kernel':
            emit_gather_table(a, 'ktab_idx')
    nn = a.fast_insert_nops()
    head = ''
    for n in names:
        head += f'; @launch kernel={n} grid=(256,1,1) block=(256,1,1) lds={LDS_BYTES}\n'
    head += '.amdgcn_target "amdgcn-amd-amdhsa--gfx950"\n.text\n'
    tail = '.section .rodata,"a"\n'
    for n in names:
        tail += '.p2align 6\n' + descriptor(n)
    sys.stderr.write(f'instructions: {a.count()}, nops inserted: {nn}\n')
    return head + a.text() + tail


def g_store_addr(a, vd):
    a.e(f's_lshl_b32 s66, s{S_I1}, 3')
    a.e(f's_lshl_b32 s70, s{S_W}, 1')
    a.e('s_add_u32 s66, s66, s70')
    a.e('s_mul_i32 s66, s66, 7168')
    a.e(f's_mul_i32 s70, s{S_J}, 896')
    a.e('s_add_u32 s66, s66, s70')
    a.e(f's_add_u32 s66, s66, {WS_G}')
    a.e(f'v_lshl_add_u32 v{vd}, v1, 4, s66')
    a.e(f'v_mov_b32 v6, {OOB}')
    a.e('v_cmp_gt_u32 vcc, 56, v1')
    a.e(f'v_cndmask_b32 v{vd}, v6, v{vd}, vcc')


def clear_hh(a):
    a.e(f's_mul_i32 s66, s{S_B}, 7168')
    a.e(f's_add_u32 s66, s66, {WS_HH}')
    a.e('v_lshl_add_u32 v4, v0, 4, s66')
    a.e('v_add_u32 v5, 4096, v4')
    a.e(f'v_mov_b32 v6, {OOB}')
    a.e('v_cmp_gt_u32 vcc, 192, v0')
    a.e('v_cndmask_b32 v5, v6, v5, vcc')
    a.e(f'buffer_store_dwordx4 v[216:219], v4, s[{S_WS}:{S_WS+3}], 0 offen sc1')
    a.e(f'buffer_store_dwordx4 v[216:219], v5, s[{S_WS}:{S_WS+3}], 0 offen sc1')


def clear_conv_g(a):
    a.e(f's_lshl_b32 s66, s{S_P}, 13')
    a.e(f's_add_u32 s66, s66, {WS_AOUT}')
    a.e('v_lshl_add_u32 v4, v0, 4, s66')
    a.e('v_add_u32 v5, 4096, v4')
    a.e(f'buffer_store_dwordx4 v[216:219], v4, s[{S_WS}:{S_WS+3}], 0 offen sc1')
    a.e(f'buffer_store_dwordx4 v[216:219], v5, s[{S_WS}:{S_WS+3}], 0 offen sc1')
    g_store_addr(a, 4)
    a.e('v_add_u32 v5, 7168, v4')
    a.e(f'buffer_store_dwordx4 v[216:219], v4, s[{S_WS}:{S_WS+3}], 0 offen sc1')
    a.e(f'buffer_store_dwordx4 v[216:219], v5, s[{S_WS}:{S_WS+3}], 0 offen sc1')


def h1_poll(a):
    lp, ld = a.lab('h1poll'), a.lab('h1done')
    a.e('v_lshlrev_b32 v2, 6, v0')
    a.e(f's_mov_b32 s{S_SPIN}, 0')
    a.e(f'{lp}:')
    for i in range(4):
        a.e(f'buffer_load_dwordx4 v[{ST+4*i}:{ST+4*i+3}], v2, s[{S_WS}:{S_WS+3}], 0 offen offset:{WS_STATS+16*i} sc1')
    a.e('s_waitcnt vmcnt(0)')
    a.e(f'v_xor_b32 v3, s{S_TAG}, v{ST+1}')
    for i in range(1, 8):
        a.e(f'v_xor_b32 v4, s{S_TAG}, v{ST+1+2*i}')
        a.e('v_or_b32 v3, v3, v4')
    a.e('v_cmp_ne_u32 vcc, 0, v3')
    a.e(f's_cbranch_vccz {ld}')
    a.e(f's_add_u32 s{S_SPIN}, s{S_SPIN}, 1')
    a.e(f's_cmp_lt_u32 s{S_SPIN}, {SPIN_MAX}')
    a.e(f's_cbranch_scc1 {lp}')
    a.e(f'{ld}:')


def sentinel(a, ws_off, kblocks):
    lp, ld = a.lab('spoll'), a.lab('sdone')
    a.e(f's_mul_i32 s66, s{S_W}, {kblocks*7168}')
    a.e(f's_mul_i32 s67, s{S_J}, 896')
    a.e('s_add_u32 s66, s66, s67')
    a.e(f's_add_u32 s66, s66, {ws_off + 55*16 + 12}')
    a.e('v_mul_u32_u24 v4, 7168, v1')
    a.e('v_add_u32 v4, s66, v4')
    if kblocks < 64:
        a.e(f'v_mov_b32 v5, {OOB}')
        a.e(f'v_cmp_gt_u32 vcc, {kblocks}, v1')
        a.e('v_cndmask_b32 v4, v5, v4, vcc')
    a.e(f's_mov_b32 s{S_SPIN}, 0')
    a.e(f'{lp}:')
    a.e(f'buffer_load_dword v5, v4, s[{S_WS}:{S_WS+3}], 0 offen sc1')
    a.e('s_waitcnt vmcnt(0)')
    a.e('v_cmp_eq_u32 vcc, -1, v5')
    a.e(f's_cbranch_vccz {ld}')
    a.e(f's_add_u32 s{S_SPIN}, s{S_SPIN}, 1')
    a.e(f's_cmp_lt_u32 s{S_SPIN}, {SPIN_MAX}')
    a.e(f's_cbranch_scc1 {lp}')
    a.e(f'{ld}:')


def gemm_poll_main(a, ws_off, kblocks, nk, w_is_a, sb):
    lr, lok = a.lab('gretry'), a.lab('gok')
    a.e(f's_mov_b32 s{S_RETRY}, 0')
    a.e(f'{lr}:')
    sentinel(a, ws_off, kblocks)
    stamp(a, sb)
    gemm_xaddr(a, ws_off, kblocks)
    for k in range(NS):
        gemm_xload(a, k)
    gemm_main(a, nk, w_is_a)
    a.e(f'v_cmp_eq_u32 vcc, -1, v{VMAX}')
    a.e(f's_cbranch_vccz {lok}')
    a.e(f's_add_u32 s{S_RETRY}, s{S_RETRY}, 1')
    a.e(f's_cmp_lt_u32 s{S_RETRY}, {RETRY_MAX}')
    a.e(f's_cbranch_scc1 {lr}')
    a.e(f'{lok}:')


def build_pers():
    global PERS
    PERS = True
    a = Prog()
    name = NAME + '_kernel'

    def body(a, lend):
        lnc1, lnc2, lnc3 = a.lab('noconv'), a.lab('noconv'), a.lab('noconv')
        a.e(f's_add_u32 s66, s{P_WS}, {WS_EPOCH}')
        a.e(f's_addc_u32 s67, s{P_WS+1}, 0')
        a.e('s_load_dword s99, s[66:67], 0')
        load_xrows(a, list(range(8, 16)))
        for r in range(216, 220):
            a.e(f'v_mov_b32 v{r}, -1')
        clear_hh(a)
        a.e(f's_cmp_ge_u32 s{S_LOC}, 28')
        a.e(f's_cbranch_scc1 {lnc1}')
        clear_conv_g(a)
        kgen_loads(a)
        load_gather_table(a, 'ktab_idx')
        conv_loads(a)
        a.e('s_waitcnt lgkmcnt(0)')
        a.e(f's_add_u32 s{S_TAG}, s99, 0x9e3779b9')
        phase_p1(a, wait_x=24, wait_pub=18)
        a.e('s_waitcnt vmcnt(8)')
        stamp(a, 4)
        phase_kgen(a)
        stamp(a, 8)
        h1_poll(a)
        stamp(a, 9)
        le = a.lab('noep')
        a.e('s_cmp_lg_u32 s2, 0')
        a.e(f's_cbranch_scc1 {le}')
        a.e(f'v_mov_b32 v2, {WS_EPOCH}')
        a.e(f'v_mov_b32 v3, s{S_TAG}')
        a.e('s_mov_b64 exec, 1')
        a.e(f'buffer_store_dword v3, v2, s[{S_WS}:{S_WS+3}], 0 offen sc1')
        a.e('s_mov_b64 exec, -1')
        a.e(f'{le}:')
        phase_norm(a)
        stamp(a, 10)
        phase_conv(a)
        stamp(a, 12)
        a.e('s_barrier')
        gemm_wload(a, 8, F * 2, P_W1, W1BYTES, S_I1, 512, 0)
        stamp(a, 13)
        a.e(f's_branch {lnc2}')
        a.e(f'{lnc1}:')
        a.e('s_waitcnt lgkmcnt(0)')
        a.e(f's_add_u32 s{S_TAG}, s99, 0x9e3779b9')
        phase_p1(a, wait_x=2, wait_pub=0)
        h1_poll(a)
        a.e(f'{lnc2}:')
        phase_p4(a)
        stamp(a, 20)
        a.e(f's_cmp_ge_u32 s{S_LOC}, 28')
        a.e(f's_cbranch_scc1 {lnc3}')
        gemm_wload(a, 16, F * 2, P_W1, W1BYTES, S_I1, 512, 0, k0=8)
        stamp(a, 21)
        gemm_poll_main(a, WS_HH, 64, 16, True, 22)
        stamp(a, 23)
        gemm1_epilogue(a)
        stamp(a, 25)
        a.e('s_barrier')
        a.e(f'{lnc3}:')
        gemm_wload(a, 14, L * 2, P_W2, W2BYTES, S_I2, 448, 0)
        stamp(a, 30)
        gemm_poll_main(a, WS_G, 56, 14, False, 31)
        stamp(a, 32)
        gemm2_epilogue(a)

    kernel(a, name, body)
    emit_gather_table(a, 'ktab_idx')
    nn = a.fast_insert_nops()
    head = f'; @launch grid=(256,1,1) block=(256,1,1) lds={LDS_BYTES}\n'
    head += '.amdgcn_target "amdgcn-amd-amdhsa--gfx950"\n.text\n'
    tail = '.section .rodata,"a"\n.p2align 6\n' + descriptor(name)
    sys.stderr.write(f'instructions: {a.count()}, nops inserted: {nn}\n')
    return head + a.text() + tail


if __name__ == '__main__':
    out = sys.argv[1] if len(sys.argv) > 1 else 'multi.s'
    STAMPS = 'stamps' in sys.argv or 'dbg' in sys.argv
    if 'dbg' in sys.argv:
        DBGSEL = [0, 1, 2, 4, 8, 9, 12, 13, 14, 20, 21, 23, 25, 30, 32, 63]
    open(out, 'w').write(build_pers() if 'pers' in sys.argv else build_multi())
```

```python
import sys, struct
import numpy as np
from asmlib import Prog

NAME = 'sequential_preLN__ssm_conv_s4d__mixer_token_mlp__prompt'

L, D, NM, F = 2048, 448, 256, 1792
XBYTES = L * D * 2
PBYTES = D * NM * 2
W1BYTES = L * F * 2
W2BYTES = F * L * 2

WS_STATS = 0x0
WS_FLAG = 0x4000
WS_EPOCH = 0x9000
WS_XN = 0xA00000
WS_AOUT = 0x10000
WS_H = 0x200000
WS_HH = 0x400000
WS_G = 0x600000
WS_DBG = 0x800000
WS_USED = 0x1000000
OOB = 0x40000000

L_RED0 = 0
L_RED1 = 256
L_SIG = 512
L_KT = 640
KTCH = 1600
L_U = L_KT + 2 * KTCH
UCH = 4608
L_SCR = L_U + 2 * UCH
SROW = 272
SCRW = 64 * SROW
L_KC = L_SCR + 4 * SCRW
KCOPY = 4160
KCH = 8 * KCOPY
L_CP = L_KC
LDS_BYTES = 160 * 1024
L_WA = 13056
L_WB = 78592
L_PART = 1024
PROW = 272
PARTW = 64 * PROW

S_WS = 4
S_X = 8
S_T0, S_T1, S_T2, S_T3 = 12, 16, 20, 24
S_W, S_XCD, S_LOC, S_B, S_P, S_J, S_I1, S_I2 = 28, 29, 30, 31, 32, 33, 34, 35
P_X, P_LAR, P_AI, P_CR, P_CI, P_LDT, P_DSK = 36, 38, 40, 42, 44, 46, 48
P_W1, P_B1, P_W2, P_B2, P_OUT, P_DBG, P_WS = 52, 54, 56, 58, 60, 62, 64


STAMPS = False
PERS = False
S_W1, S_W2 = 12, 16
S_SA, S_SB = 50, 51
V_D1, V_D2, V_TA, V_TB = 240, 242, 244, 248
S_TAG = 96
S_SPIN = 97
S_RETRY = 98
SPIN_MAX = 4000
RETRY_MAX = 20


def SC():
    return ' sc1' if PERS else ''


KIDX = [0]


DBGSEL = None


def stamp(a, idx):
    if not STAMPS:
        return
    if DBGSEL is not None:
        if idx not in DBGSEL:
            return
        idx = DBGSEL.index(idx)
    a.e('s_memrealtime s[100:101]')
    a.e('s_waitcnt lgkmcnt(0)')
    a.e(f'v_writelane_b32 v255, s100, {idx}')


def stamp_clk(a, idx):
    if not STAMPS or DBGSEL is not None:
        return
    a.e('s_memtime s[100:101]')
    a.e('s_waitcnt lgkmcnt(0)')
    a.e(f'v_writelane_b32 v255, s100, {idx}')


def stamp_flush(a):
    if not STAMPS:
        return
    l = a.lab('nost')
    a.e(f's_cmp_lg_u32 s{S_W}, 0')
    a.e(f's_cbranch_scc1 {l}')
    if DBGSEL is not None:
        a.e('v_not_b32 v253, v255')
        a.e('v_cmp_eq_u32 vcc, 0, v1')
        a.e('v_cndmask_b32 v255, v255, v253, vcc')
        a.e('v_lshlrev_b32 v254, 2, v1')
        a.e('s_mov_b64 exec, 0xffff')
        a.e(f'global_atomic_umax v254, v255, s[{P_DBG}:{P_DBG+1}]')
        a.e('s_mov_b64 exec, -1')
        a.e(f'{l}:')
        return
    a.e(f's_lshl_b32 s66, s2, 8')
    a.e(f's_add_u32 s66, s66, {WS_DBG} + {0x10000}*{KIDX[0]}')
    a.e('v_lshl_add_u32 v254, v1, 2, s66')
    a.e(f'buffer_store_dword v255, v254, s[{S_WS}:{S_WS+3}], 0 offen')
    a.e(f'{l}:')


def f2u(x):
    return struct.unpack('<I', struct.pack('<f', x))[0]


def fx(x):
    return '0x%08x' % f2u(x)


def srd(a, dst, ptr, nbytes):
    a.e(f's_mov_b32 s{dst}, s{ptr}')
    a.e(f's_and_b32 s{dst+1}, s{ptr+1}, 0xffff')
    a.e(f's_mov_b32 s{dst+2}, {nbytes}')
    a.e(f's_mov_b32 s{dst+3}, 0x00020000')


def prologue(a, nwg, lend):
    a.e(f's_cmp_ge_u32 s2, {nwg}')
    a.e(f's_cbranch_scc1 {lend}')
    if STAMPS:
        a.e('v_mov_b32 v255, 0')
        stamp(a, 0)
        stamp_clk(a, 60)
    a.e('s_load_dwordx16 s[36:51], s[0:1], 0')
    a.e('s_load_dwordx8 s[52:59], s[0:1], 64')
    a.e('s_load_dwordx4 s[60:63], s[0:1], 96')
    a.e('s_load_dwordx2 s[64:65], s[0:1], 112')
    a.e('v_and_b32 v1, 63, v0')
    a.e('v_lshrrev_b32 v2, 6, v0')
    a.e(f's_and_b32 s{S_XCD}, s2, 7')
    a.e(f'v_readfirstlane_b32 s{S_W}, v2')
    a.e(f's_lshr_b32 s{S_LOC}, s2, 3')
    a.e(f's_lshl_b32 s{S_B}, s{S_XCD}, 5')
    a.e(f's_add_u32 s{S_B}, s{S_B}, s{S_LOC}')
    a.e(f's_mul_i32 s{S_P}, s{S_XCD}, 28')
    a.e(f's_add_u32 s{S_P}, s{S_P}, s{S_LOC}')
    a.e(f's_and_b32 s{S_J}, s{S_XCD}, 1')
    a.e(f's_lshl_b32 s{S_J}, s{S_J}, 2')
    a.e(f's_and_b32 s3, s{S_LOC}, 3')
    a.e(f's_add_u32 s{S_J}, s{S_J}, s3')
    a.e(f's_lshr_b32 s3, s{S_XCD}, 1')
    a.e(f's_lshr_b32 s66, s{S_LOC}, 2')
    a.e(f's_mul_i32 s{S_I1}, s3, 7')
    a.e(f's_add_u32 s{S_I1}, s{S_I1}, s66')
    a.e(f's_lshl_b32 s{S_I2}, s3, 3')
    a.e(f's_add_u32 s{S_I2}, s{S_I2}, s66')
    a.e('s_waitcnt lgkmcnt(0)')
    srd(a, S_WS, P_WS, WS_USED)
    srd(a, S_X, P_X, XBYTES)
    stamp(a, 1)


def reduce16(a, V):
    for i in range(8):
        a.e(f'v_permlane32_swap_b32 v{V[i]}, v{V[i+8]}')
    for i in range(8):
        a.e(f'v_add_f32 v{V[i]}, v{V[i]}, v{V[i+8]}')
    for i in range(4):
        a.e(f'v_permlane16_swap_b32 v{V[i]}, v{V[i+4]}')
    for i in range(4):
        a.e(f'v_add_f32 v{V[i]}, v{V[i]}, v{V[i+4]}')
    for i in range(2):
        a.e(f'v_add_f32_dpp v{V[i]}, v{V[i]}, v{V[i]} row_ror:8 row_mask:0xf bank_mask:0x3')
    for i in range(2):
        a.e(f'v_add_f32_dpp v{V[i]}, v{V[i+2]}, v{V[i+2]} row_ror:8 row_mask:0xf bank_mask:0xc')
    a.e(f'v_add_f32_dpp v{V[0]}, v{V[0]}, v{V[0]} row_half_mirror row_mask:0xf bank_mask:0x5')
    a.e(f'v_add_f32_dpp v{V[0]}, v{V[1]}, v{V[1]} row_half_mirror row_mask:0xf bank_mask:0xa')
    a.e(f'v_add_f32_dpp v{V[0]}, v{V[0]}, v{V[0]} quad_perm:[1,0,3,2] row_mask:0xf bank_mask:0xf')
    a.e(f'v_add_f32_dpp v{V[0]}, v{V[0]}, v{V[0]} quad_perm:[2,3,0,1] row_mask:0xf bank_mask:0xf')


def ln_stats(a, X, T, red, vt):
    a.e('s_mov_b32 s66, 0x3f803f80')
    for j in range(8):
        a.e(f'v_dot2_f32_bf16 v{T+j}, v{X[j]}, s66, 0')
        a.e(f'v_dot2_f32_bf16 v{T+8+j}, v{X[j]}, v{X[j]}, 0')
    reduce16(a, [T + i for i in range(16)])
    a.e(f'v_lshrrev_b32 v{vt}, 2, v1')
    a.e(f'v_lshlrev_b32 v{vt}, 4, v{vt}')
    a.e(f's_lshl_b32 s66, s{S_W}, 2')
    a.e(f'v_add_u32 v{vt}, s66, v{vt}')
    a.e('s_mov_b32 exec_lo, 0x11111111')
    a.e('s_mov_b32 exec_hi, 0x11111111')
    a.e(f'ds_write_b32 v{vt}, v{T} offset:{red}')
    a.e('s_mov_b64 exec, -1')
    a.e(f'v_and_b32 v{vt}, 7, v1')
    a.e(f'v_lshlrev_b32 v{vt}, 4, v{vt}')
    a.e('s_waitcnt lgkmcnt(0)')
    a.e('s_barrier')
    a.e(f'ds_read_b128 v[{T}:{T+3}], v{vt} offset:{red}')
    a.e(f'ds_read_b128 v[{T+4}:{T+7}], v{vt} offset:{red+128}')
    a.e('s_waitcnt lgkmcnt(1)')
    a.e(f'v_pk_add_f32 v[{T}:{T+1}], v[{T}:{T+1}], v[{T+2}:{T+3}]')
    a.e('s_waitcnt lgkmcnt(0)')
    a.e(f'v_pk_add_f32 v[{T+4}:{T+5}], v[{T+4}:{T+5}], v[{T+6}:{T+7}]')
    a.e(f'v_add_f32 v{T}, v{T}, v{T+1}')
    a.e(f'v_add_f32 v{T+4}, v{T+4}, v{T+5}')
    a.e(f'v_mul_f32 v{T}, {fx(1.0/448)}, v{T}')
    a.e(f'v_mul_f32 v{T+4}, {fx(1.0/448)}, v{T+4}')
    a.e(f'v_fma_f32 v{T+4}, -v{T}, v{T}, v{T+4}')
    a.e(f'v_max_f32 v{T+4}, 0, v{T+4}')
    a.e(f'v_cvt_pk_bf16_f32 v{T+4}, v{T+4}, v{T+4}')
    a.e(f'v_lshlrev_b32 v{T+4}, 16, v{T+4}')
    a.e(f'v_add_f32 v{T+4}, {fx(1e-5)}, v{T+4}')
    a.e(f'v_cvt_pk_bf16_f32 v{T+4}, v{T+4}, v{T+4}')
    a.e(f'v_lshlrev_b32 v{T+4}, 16, v{T+4}')
    a.e(f'v_sqrt_f32 v{T+4}, v{T+4}')
    a.e(f'v_cvt_pk_bf16_f32 v{T}, v{T}, v{T+4}')


def xrow_addr(a):
    a.e(f's_mul_i32 s66, s{S_W}, 224')
    a.e(f's_mul_i32 s67, s{S_B}, {8*896}')
    a.e('s_add_u32 s66, s66, s67')
    a.e('v_lshl_add_u32 v2, v1, 2, s66')
    a.e(f'v_mov_b32 v3, {OOB}')
    a.e('v_cmp_gt_u32 vcc, 56, v1')
    a.e('v_cndmask_b32 v2, v3, v2, vcc')
    a.e('v_add_u32 v3, 4480, v2')


def load_xrows(a, X):
    xrow_addr(a)
    for j in range(5):
        a.e(f'buffer_load_dword v{X[j]}, v2, s[{S_X}:{S_X+3}], 0 offen offset:{j*896}')
    for j in range(5, 8):
        a.e(f'buffer_load_dword v{X[j]}, v3, s[{S_X}:{S_X+3}], 0 offen offset:{(j-5)*896}')


def phase_p1(a, wait_x=0, wait_pub=None):
    X = list(range(8, 16))
    if not PERS:
        load_xrows(a, X)
    a.e(f's_waitcnt vmcnt({wait_x})')
    stamp(a, 2)
    ln_stats(a, X, 16, L_RED0, 4)
    stamp(a, 3)
    if wait_pub is not None:
        a.e(f's_waitcnt vmcnt({wait_pub})')
        a.e('s_barrier')
    lskip = a.lab('p1skip')
    a.e(f's_cmp_lg_u32 s{S_W}, 0')
    a.e(f's_cbranch_scc1 {lskip}')
    a.e(f's_lshl_b32 s66, s{S_B}, 6')
    a.e(f's_add_u32 s66, s66, {WS_STATS}')
    a.e('v_lshl_add_u32 v2, v1, 3, s66')
    a.e(f'v_mov_b32 v17, s{S_TAG}' if PERS else 'v_mov_b32 v17, 0')
    a.e('s_mov_b64 exec, 0xff')
    a.e(f'buffer_store_dwordx2 v[16:17], v2, s[{S_WS}:{S_WS+3}], 0 offen{SC()}')
    a.e('s_mov_b64 exec, -1')
    a.e(f'{lskip}:')


POS_OF_ROW = [0, 1, 2, 3, 4, 5, 6, 7, 128, 129, 130, 131, 132, 133, 134, 135, 256, 258, 260, 262, 384, 386, 388, 390,
              512, 516, 640, 644, 768, 772, 896, 900, 1024, 1152, 1280, 1408, 1536, 1664, 1792, 1920, 2048]


def bf16_round_int(l):
    f = np.array([l], dtype=np.float32)
    u = f.view(np.uint32)
    r = ((u + 0x7FFF + ((u >> 16) & 1)) >> 16).astype(np.uint32) << 16
    return int(r.view(np.float32)[0])


def rowcol(pos):
    if pos < 256:
        return (8 * (pos >> 7) + (pos & 7), (pos & 127) >> 3)
    if pos < 512:
        p = pos - 256
        return (16 + 4 * (p >> 7) + ((p & 7) >> 1), (p & 127) >> 3)
    if pos < 1024:
        p = pos - 512
        return (24 + 2 * (p >> 7) + ((p & 7) >> 2), (p & 127) >> 3)
    p = pos - 1024
    return (32 + (p >> 7), (p & 127) >> 3)


def gather_table():
    tab = []
    for m in range(256):
        for e in range(16):
            idx = 2047 - 8 * m - e
            if idx < 0 or e == 15:
                tab.append(1536)
            else:
                r, c = rowcol(bf16_round_int(idx))
                assert POS_OF_ROW[r] + 8 * c == bf16_round_int(idx)
                tab.append((r * 16 + c) * 2)
    return tab


def cmul(a, d, x, y, t):
    a.e(f'v_pk_mul_f32 v[{t}:{t+1}], v[{x}:{x+1}], v[{y}:{y+1}] op_sel:[0,0] op_sel_hi:[1,0]')
    a.e(f'v_pk_fma_f32 v[{d}:{d+1}], v[{x}:{x+1}], v[{y}:{y+1}], v[{t}:{t+1}] op_sel:[1,1,0] op_sel_hi:[0,1,1] neg_lo:[1,0,0]')


LOG2E_HI = 1.44268798828125
LOG2E_LO_LN2 = (1.4426950408889634 - 1.44268798828125) * 0.6931471805599453


def exp_bf16(a, d, x, t):
    a.e(f'v_mul_f32 v{t}, {fx(LOG2E_HI)}, v{x}')
    a.e(f'v_exp_f32 v{t}, v{t}')
    a.e(f'v_mul_f32 v{d}, {fx(LOG2E_LO_LN2)}, v{x}')
    a.e(f'v_fma_f32 v{d}, v{t}, v{d}, v{t}')
    a.e(f'v_cvt_pk_bf16_f32 v{d}, v{d}, v{d}')
    a.e(f'v_lshlrev_b32 v{d}, 16, v{d}')


def kgen_loads(a):
    srd(a, S_T0, P_LAR, PBYTES)
    srd(a, S_T1, P_AI, PBYTES)
    srd(a, S_T2, P_CR, PBYTES)
    srd(a, S_T3, P_CI, PBYTES)
    a.e(f's_lshl_b32 s66, s{S_P}, 10')
    a.e(f's_lshl_b32 s67, s{S_W}, 7')
    a.e('s_add_u32 s66, s66, s67')
    a.e('v_lshl_add_u32 v2, v1, 1, s66')
    for c in range(2):
        for k, s in enumerate((S_T0, S_T1, S_T2, S_T3)):
            a.e(f'buffer_load_ushort v{40+4*c+k}, v2, s[{s}:{s+3}], 0 offen offset:{512*c}')
    a.e(f's_lshl_b32 s66, s{S_P}, 2')
    a.e(f's_load_dword s68, s[{P_LDT}:{P_LDT+1}], s66')
    a.e(f's_load_dword s69, s[{P_DSK}:{P_DSK+1}], s66')


def kgen_channel(a, c, DACC, hooks=()):
    LAR, AI, CR, CI = 40 + 4 * c, 41 + 4 * c, 42 + 4 * c, 43 + 4 * c
    SIG, DT = 52 + c, 54 + c
    AL, BE = 56, 57
    Z1, Z2, Z4, Z8, Z128, Z256, Z512, Z1024 = 58, 60, 62, 64, 66, 68, 70, 72
    X0, CA, CB, CC, T0, T1 = 74, 76, 78, 80, 82, 84
    CV = [86, 87, 88, 89]
    VW = 90
    t, t2 = 92, 93
    for r in (LAR, AI, CR, CI):
        a.e(f'v_lshlrev_b32 v{r}, 16, v{r}')
    if c == 0:
        a.e(f's_lshl_b32 s66, s68, 16')
    else:
        a.e(f's_and_b32 s66, s68, 0xffff0000')
    a.e(f'v_mov_b32 v{t2}, s66')
    exp_bf16(a, DT, t2, t)
    a.e(f'v_add_f32 v{SIG}, abs(v{CR}), abs(v{CI})')
    exp_bf16(a, AL, LAR, t)
    a.e(f'v_add_f32_dpp v{SIG}, v{SIG}, v{SIG} quad_perm:[1,0,3,2] row_mask:0xf bank_mask:0xf')
    a.e(f'v_mul_f32 v{AL}, v{AL}, v{DT}')
    a.e(f'v_mul_f32 v{BE}, v{AI}, v{DT}')
    a.e(f'v_add_f32_dpp v{SIG}, v{SIG}, v{SIG} quad_perm:[2,3,0,1] row_mask:0xf bank_mask:0xf')
    a.e(f'v_mul_f32 v{AL}, {fx(-1.4426950408889634)}, v{AL}')
    a.e(f'v_mul_f32 v{BE}, {fx(0.15915494309189535)}, v{BE}')
    a.e(f'v_add_f32_dpp v{SIG}, v{SIG}, v{SIG} row_half_mirror row_mask:0xf bank_mask:0xf')
    a.e(f'v_exp_f32 v{T0}, v{AL}')
    a.e(f'v_fract_f32 v{t}, v{BE}')
    a.e(f'v_add_f32_dpp v{SIG}, v{SIG}, v{SIG} row_ror:8 row_mask:0xf bank_mask:0xf')
    a.e(f'v_cos_f32 v{Z1}, v{t}')
    a.e(f'v_sin_f32 v{Z1+1}, v{t}')
    a.e(f'v_mov_b32 v{t2}, v{SIG}')
    a.e(f'v_mul_f32 v{T1}, 0x43000000, v{AL}')
    a.e(f'v_mul_f32 v{t}, 0x43000000, v{BE}')
    a.e(f'v_permlane16_swap_b32 v{SIG}, v{t2}')
    a.e(f'v_pk_mul_f32 v[{Z1}:{Z1+1}], v[{Z1}:{Z1+1}], v[{T0}:{T0+1}] op_sel:[0,0] op_sel_hi:[1,0]')
    a.e(f'v_add_f32 v{SIG}, v{SIG}, v{t2}')
    a.e(f'v_exp_f32 v{T1}, v{T1}')
    a.e(f'v_fract_f32 v{t}, v{t}')
    a.e(f'v_mov_b32 v{t2}, v{SIG}')
    a.e(f'v_cos_f32 v{Z128}, v{t}')
    a.e(f'v_sin_f32 v{Z128+1}, v{t}')
    a.e(f'v_permlane32_swap_b32 v{SIG}, v{t2}')
    cmul(a, Z2, Z1, Z1, Z2)
    a.e(f'v_add_f32 v{SIG}, v{SIG}, v{t2}')
    a.e(f'v_pk_mul_f32 v[{Z128}:{Z128+1}], v[{Z128}:{Z128+1}], v[{T1}:{T1+1}] op_sel:[0,0] op_sel_hi:[1,0]')
    a.e(f'v_add_f32 v{SIG}, {fx(1e-30)}, v{SIG}')
    cmul(a, Z4, Z2, Z2, Z4)
    a.e(f'v_rcp_f32 v{t}, v{SIG}')
    cmul(a, Z256, Z128, Z128, Z256)
    cmul(a, Z8, Z4, Z4, Z8)
    a.e(f'v_mul_f32 v{X0}, v{CR}, v{t}')
    a.e(f'v_mul_f32 v{X0+1}, v{CI}, v{t}')
    cmul(a, Z512, Z256, Z256, Z512)
    a.e(f's_mul_i32 s66, s{S_W}, {SCRW}')
    a.e(f's_add_u32 s66, s66, {L_SCR}')
    a.e('s_mov_b32 m0, s66')
    cmul(a, Z1024, Z512, Z512, Z1024)
    cvi = [0]
    pend = []
    hooks = list(hooks)

    def flush(keep):
        while len(pend) > keep:
            cv, off = pend.pop(0)
            a.e(f'ds_write_addtid_b32 v{cv} offset:{off}')

    def put(off, r, neg):
        cv = CV[cvi[0] % 4]
        cvi[0] += 1
        a.e(f'v_cvt_pk_f16_f32 v{cv}, v{r}, {"-" if neg else ""}v{r+1}')
        flush(1)
        pend.append((cv, off))
        if hooks and cvi[0] % 12 == 6:
            hooks.pop(0)()

    def putX(row, r):
        put(row * SROW, r, True)

    def putY(b, r):
        put((48 + b) * SROW, r, False)

    a.e(f'v_mov_b32 v{VW}, 0x00003c00')
    pend.append((VW, 48 * SROW))
    putY(1, Z8)
    ychain = {'cur': Z8, 'b': 1}
    YA, YB = CC, 94

    def ystep():
        if ychain['b'] >= 15:
            return
        d = YA if ychain['cur'] != YA else YB
        cmul(a, d, ychain['cur'], Z8, d)
        ychain['b'] += 1
        ychain['cur'] = d
        putY(ychain['b'], d)

    putX(0, X0)
    cmul(a, T0, X0, Z128, T0)
    putX(8, T0)
    cur = X0
    for j in range(1, 8):
        d = CA if cur != CA else CB
        cmul(a, d, cur, Z1, d)
        ystep()
        putX(j, d)
        cmul(a, T0, d, Z128, T0)
        putX(8 + j, T0)
        cur = d
    cmul(a, CA, X0, Z256, CA)
    ystep()
    putX(16, CA)
    cmul(a, T0, CA, Z128, T0)
    putX(20, T0)
    cur = CA
    for j in range(1, 4):
        d = CA if cur != CA else CB
        cmul(a, d, cur, Z2, d)
        ystep()
        putX(16 + j, d)
        cmul(a, T0, d, Z128, T0)
        putX(20 + j, T0)
        cur = d
    cmul(a, CA, X0, Z512, CA)
    ystep()
    putX(24, CA)
    cmul(a, CB, CA, Z4, CB)
    ystep()
    putX(25, CB)
    pa, pb = CA, CB
    na, nb = T0, T1
    for q in range(1, 4):
        cmul(a, na, pa, Z128, na)
        cmul(a, nb, pb, Z128, nb)
        ystep()
        putX(24 + 2 * q, na)
        putX(25 + 2 * q, nb)
        pa, pb, na, nb = na, nb, pa, pb
    cmul(a, CA, X0, Z1024, CA)
    putX(32, CA)
    cur = CA
    for q in range(1, 9):
        d = CA if cur != CA else CB
        cmul(a, d, cur, Z128, d)
        putX(32 + q, d)
        cur = d
    while ychain['b'] < 15:
        ystep()
    flush(0)
    while hooks:
        hooks.pop(0)()
    FA = 96
    VR = 91
    a.e(f'v_and_b32 v{t}, 15, v1')
    a.e(f'v_mul_u32_u24 v{t}, {SROW}, v{t}')
    a.e(f'v_lshrrev_b32 v{t2}, 4, v1')
    a.e(f'v_lshl_add_u32 v{t}, v{t2}, 4, v{t}')
    a.e(f'v_add_u32 v{VR}, s66, v{t}')
    for k in range(4):
        a.e(f'ds_read_b128 v[{144+4*k}:{147+4*k}], v{VR} offset:{48*SROW+64*k}')
        for T in range(3):
            r = FA + 16 * T + 4 * k
            a.e(f'ds_read_b128 v[{r}:{r+3}], v{VR} offset:{16*T*SROW+64*k}')
    for k in range(4):
        a.e(f's_waitcnt lgkmcnt({4*(3-k)})')
        for T in range(3):
            r = FA + 16 * T + 4 * k
            cc = '0' if k == 0 else f'v[{DACC+4*T}:{DACC+4*T+3}]'
            a.e(f'v_mfma_f32_16x16x32_f16 v[{DACC+4*T}:{DACC+4*T+3}], v[{r}:{r+3}], v[{144+4*k}:{147+4*k}], {cc}')


DK0, DK1 = 16, 28


def phase_kgen(a, hooks0=(), hooks1=(), skip0=False):
    if not skip0:
        kgen_channel(a, 0, DK0, hooks0)
    kgen_channel(a, 1, DK1, hooks1)
    stamp(a, 5 if PERS else 3)
    a.e(f's_mul_i32 s66, s{S_W}, {SCRW}')
    a.e(f's_add_u32 s66, s66, {L_SCR}')
    a.e('v_lshl_add_u32 v90, v1, 4, s66')
    for c, DK in ((0, DK0), (1, DK1)):
        for i in range(0, 12, 2):
            a.e(f'v_pk_mul_f32 v[{DK+i}:{DK+i+1}], v[{DK+i}:{DK+i+1}], v[{52}:{53}] op_sel:[0,{c}] op_sel_hi:[1,{c}]')
    for c, DK in ((0, DK0), (1, DK1)):
        for T in range(3):
            a.e(f'ds_write_b128 v90, v[{DK+4*T}:{DK+4*T+3}] offset:{c*3072+T*1024}')
    a.e(f's_lshl_b32 s67, s{S_W}, 2')
    a.e(f's_add_u32 s67, s67, {L_SIG}')
    a.e('v_mov_b32 v91, s67')
    a.e('s_mov_b64 exec, 1')
    a.e('ds_write_b32 v91, v52')
    a.e('ds_write_b32 v91, v53 offset:16')
    a.e('s_mov_b64 exec, -1')
    a.e('v_mov_b32 v92, 0')
    a.e('v_mov_b32 v93, 0')
    a.e('v_mov_b32 v94, 0')
    a.e('v_mov_b32 v95, 0')
    a.e('s_waitcnt lgkmcnt(0)')
    a.e('s_barrier')
    a.e(f'v_mov_b32 v91, {L_SIG}')
    a.e('ds_read_b128 v[44:47], v91')
    a.e('ds_read_b128 v[48:51], v91 offset:16')
    a.e(f's_and_b32 s67, s{S_W}, 1')
    a.e(f's_lshr_b32 s70, s{S_W}, 1')
    a.e('s_mul_i32 s71, s67, 3072')
    a.e('s_lshl_b32 s72, s70, 10')
    a.e('s_add_u32 s72, s72, s71')
    a.e(f's_add_u32 s72, s72, {L_SCR}')
    a.e(f's_add_u32 s71, s71, {L_SCR + 2048}')
    a.e('v_lshl_add_u32 v90, v1, 4, s72')
    a.e('v_lshl_add_u32 v91, v1, 4, s71')
    for wv in range(4):
        a.e(f'ds_read_b128 v[{96+4*wv}:{99+4*wv}], v90 offset:{wv*SCRW}')
    for wv in range(4):
        a.e(f'ds_read_b128 v[{112+4*wv}:{115+4*wv}], v91 offset:{wv*SCRW}')
    a.e('s_waitcnt lgkmcnt(8)')
    a.e('v_pk_add_f32 v[44:45], v[44:45], v[46:47]')
    a.e('v_pk_add_f32 v[48:49], v[48:49], v[50:51]')
    a.e('v_add_f32 v44, v44, v45')
    a.e('v_add_f32 v45, v48, v49')
    a.e('v_pk_mul_f32 v[54:55], v[54:55], v[44:45]')
    a.e('v_pk_add_f32 v[54:55], v[54:55], v[54:55]')
    a.e('s_cmp_eq_u32 s67, 0')
    a.e('s_cselect_b64 vcc, -1, 0')
    a.e('v_cndmask_b32 v46, v45, v44, vcc')
    a.e('v_rcp_f32 v46, v46')
    a.e('v_lshrrev_b32 v92, 4, v1')
    a.e('v_lshlrev_b32 v92, 7, v92')
    a.e('v_and_b32 v93, 15, v1')
    a.e('v_lshl_add_u32 v92, v93, 1, v92')
    a.e(f's_mul_i32 s71, s67, {KTCH}')
    a.e(f's_add_u32 s71, s71, {L_KT}')
    a.e('v_add_u32 v93, s71, v92')
    a.e('s_lshl_b32 s72, s70, 9')
    a.e('v_add_u32 v92, s72, v93')
    for jb, (base, va, off) in enumerate(((96, 92, 0), (112, 93, 1024))):
        a.e(f's_waitcnt lgkmcnt({4 if jb == 0 else 0})')
        for h in range(2):
            a.e(f'v_pk_add_f32 v[{base+2*h}:{base+2*h+1}], v[{base+2*h}:{base+2*h+1}], v[{base+4+2*h}:{base+5+2*h}]')
            a.e(f'v_pk_add_f32 v[{base+8+2*h}:{base+9+2*h}], v[{base+8+2*h}:{base+9+2*h}], v[{base+12+2*h}:{base+13+2*h}]')
        for h in range(2):
            a.e(f'v_pk_add_f32 v[{base+2*h}:{base+2*h+1}], v[{base+2*h}:{base+2*h+1}], v[{base+8+2*h}:{base+9+2*h}]')
        for h in range(2):
            a.e(f'v_pk_mul_f32 v[{base+2*h}:{base+2*h+1}], v[{base+2*h}:{base+2*h+1}], v[46:47] op_sel:[0,0] op_sel_hi:[1,0]')
        a.e(f'v_cvt_pk_f16_f32 v{base+4}, v{base}, v{base+1}')
        a.e(f'v_cvt_pk_f16_f32 v{base+5}, v{base+2}, v{base+3}')
        a.e(f'ds_write_b16 v{va}, v{base+4} offset:{off}')
        a.e(f'ds_write_b16_d16_hi v{va}, v{base+4} offset:{off+32}')
        a.e(f'ds_write_b16 v{va}, v{base+5} offset:{off+64}')
        a.e(f'ds_write_b16_d16_hi v{va}, v{base+5} offset:{off+96}')
    a.e('v_mov_b32 v96, 0')
    a.e('v_mov_b32 v97, 0')
    a.e('v_mov_b32 v98, 0')
    a.e('v_mov_b32 v99, 0')
    a.e(f'v_mov_b32 v90, {L_KT + 1536}')
    a.e('ds_write_b32 v90, v96')
    a.e(f'ds_write_b32 v90, v96 offset:{KTCH}')
    a.e('v_and_b32 v90, 15, v1')
    a.e(f'v_mul_u32_u24 v90, {KCOPY}, v90')
    a.e(f'v_add_u32 v90, {L_KC}, v90')
    a.e(f'ds_write_b128 v90, v[96:99] offset:4096')
    a.e('v_lshlrev_b32 v90, 3, v1')
    a.e(f'ds_write_b64 v90, v[96:97] offset:{L_U}')
    a.e(f'ds_write_b64 v90, v[96:97] offset:{L_U + UCH}')
    a.e('s_waitcnt lgkmcnt(0)')
    a.e('s_barrier')
    stamp(a, 6 if PERS else 4)
    AD = 96
    for e in range(15):
        src = 160 + e // 2
        if e % 2 == 0:
            a.e(f'v_and_b32 v{AD+e}, 0xffff, v{src}')
        else:
            a.e(f'v_lshrrev_b32 v{AD+e}, 16, v{src}')
    a.e('v_lshlrev_b32 v111, 4, v0')
    a.e(f'v_add_u32 v111, {L_KC}, v111')
    RR = [112, 128]
    for c in range(2):
        for e in range(15):
            a.e(f'ds_read_u16 v{RR[c]+e}, v{AD+e} offset:{L_KT + c*KTCH}')
    for c in range(2):
        R = RR[c]
        Da, Db, Oa, Ob = 144, 152, 160, 168
        a.e(f's_waitcnt lgkmcnt({15 if c == 0 else 0})')
        for i in range(6):
            a.e(f'v_lshl_or_b32 v{Da+i}, v{R+2*i+1}, 16, v{R+2*i}')
            a.e(f'v_lshl_or_b32 v{Oa+i}, v{R+2*i+2}, 16, v{R+2*i+1}')
        for i in range(6):
            a.e(f'v_lshl_or_b32 v{Db+i}, v{R+2*i+3}, 16, v{R+2*i+2}')
            a.e(f'v_lshl_or_b32 v{Ob+i}, v{R+2*i+4}, 16, v{R+2*i+3}')
        if c == 1:
            a.e(f'v_add_u32 v111, {KCH}, v111')
        for s, r in ((0, Da), (1, Oa), (4, Da + 2), (5, Oa + 2), (2, Db), (3, Ob), (6, Db + 2), (7, Ob + 2)):
            a.e(f'ds_write_b128 v111, v[{r}:{r+3}] offset:{s*KCOPY}')


def load_gather_table(a, tablabel):
    lp = a.lab('pc')
    a.e('s_getpc_b64 s[70:71]')
    a.e(f'{lp}:')
    a.e(f's_add_u32 s70, s70, {tablabel}-{lp}')
    a.e('s_addc_u32 s71, s71, 0')
    a.e('v_lshlrev_b32 v2, 5, v0')
    a.e('global_load_dwordx4 v[160:163], v2, s[70:71]')
    a.e('global_load_dwordx4 v[164:167], v2, s[70:71] offset:16')


def emit_gather_table(a, tablabel):
    a.raw('.p2align 4')
    a.raw(f'.type {tablabel},@object')
    a.raw(f'{tablabel}:')
    tab = gather_table()
    for i in range(0, len(tab), 16):
        a.raw('.short ' + ', '.join(str(x) for x in tab[i:i + 16]))
    a.raw(f'.size {tablabel}, {2*len(tab)}')


XC = list(range(192, 200))
ST = 200


def col_addr(a):
    a.e(f's_lshl_b32 s66, s{S_P}, 2')
    a.e(f'v_mul_u32_u24 v252, {8*896}, v0')
    a.e('v_add_u32 v252, s66, v252')
    a.e('v_add_u32 v221, 4480, v252')


def col_load(a, j):
    if j < 5:
        a.e(f'buffer_load_dword v{XC[j]}, v252, s[{S_X}:{S_X+3}], 0 offen offset:{j*896}')
    else:
        a.e(f'buffer_load_dword v{XC[j]}, v221, s[{S_X}:{S_X+3}], 0 offen offset:{(j-5)*896}')


def conv_loads(a):
    a.e(f's_lshl_b32 s66, s{S_P}, 2')
    a.e(f'v_mul_u32_u24 v2, {8*896}, v0')
    a.e('v_add_u32 v2, s66, v2')
    a.e('v_add_u32 v3, 4480, v2')
    for j in range(5):
        a.e(f'buffer_load_dword v{XC[j]}, v2, s[{S_X}:{S_X+3}], 0 offen offset:{j*896}')
    for j in range(5, 8):
        a.e(f'buffer_load_dword v{XC[j]}, v3, s[{S_X}:{S_X+3}], 0 offen offset:{(j-5)*896}')


def stats_loads(a):
    a.e('v_lshlrev_b32 v2, 6, v0')
    for i in range(4):
        a.e(f'buffer_load_dwordx4 v[{ST+4*i}:{ST+4*i+3}], v2, s[{S_WS}:{S_WS+3}], 0 offen offset:{WS_STATS+16*i}')


def phase_norm(a):
    U0, U1 = 96, 100
    for j in range(8):
        g = ST + 2 * j
        x = XC[j]
        t = 104 + 8 * (j % 2)
        a.e(f'v_lshlrev_b32 v{t}, 16, v{x}')
        a.e(f'v_and_b32 v{t+1}, 0xffff0000, v{x}')
        a.e(f'v_lshlrev_b32 v{t+2}, 16, v{g}')
        a.e(f'v_and_b32 v{t+3}, 0xffff0000, v{g}')
        a.e(f'v_rcp_f32 v{t+3}, v{t+3}')
        a.e(f'v_pk_add_f32 v[{t}:{t+1}], v[{t}:{t+1}], v[{t+2}:{t+3}] op_sel:[0,0] op_sel_hi:[1,0] neg_lo:[0,1] neg_hi:[0,1]')
        a.e(f'v_cvt_pk_bf16_f32 v{t+4}, v{t}, v{t+1}')
        a.e(f'v_lshlrev_b32 v{t}, 16, v{t+4}')
        a.e(f'v_and_b32 v{t+1}, 0xffff0000, v{t+4}')
        a.e(f'v_pk_mul_f32 v[{t}:{t+1}], v[{t}:{t+1}], v[{t+2}:{t+3}] op_sel:[0,1] op_sel_hi:[1,1]')
        a.e(f'v_cvt_pk_bf16_f32 v{t+4}, v{t}, v{t+1}')
        a.e(f'v_lshlrev_b32 v{120+2*j}, 16, v{t+4}')
        a.e(f'v_and_b32 v{121+2*j}, 0xffff0000, v{t+4}')
    for i in range(4):
        a.e(f'v_cvt_pk_f16_f32 v{U0+i}, v{120+4*i}, v{122+4*i}')
        a.e(f'v_cvt_pk_f16_f32 v{U1+i}, v{121+4*i}, v{123+4*i}')
    a.e('v_lshlrev_b32 v2, 4, v0')
    a.e(f'ds_write_b128 v2, v[{U0}:{U0+3}] offset:{L_U + 512}')
    a.e(f'ds_write_b128 v2, v[{U1}:{U1+3}] offset:{L_U + UCH + 512}')
    a.e('s_waitcnt lgkmcnt(0)')
    a.e('s_barrier')


def phase_conv(a, hooks=()):
    hooks = list(hooks)
    ACC = 16
    FA = [[64 + 64 * s + 4 * i for i in range(8)] for s in range(2)]
    FB = [[96 + 64 * s + 4 * i for i in range(8)] for s in range(2)]
    VA, VB = 48, 49
    a.e(f's_lshr_b32 s66, s{S_W}, 1')
    a.e(f's_and_b32 s67, s{S_W}, 1')
    a.e('v_and_b32 v2, 7, v1')
    a.e('v_sub_u32 v2, 7, v2')
    a.e(f'v_mul_u32_u24 v2, {KCOPY}, v2')
    a.e('v_lshrrev_b32 v3, 4, v1')
    a.e('v_bfe_u32 v4, v1, 3, 1')
    a.e('v_sub_u32 v3, v3, v4')
    a.e('v_lshl_add_u32 v2, v3, 4, v2')
    a.e(f's_mul_i32 s70, s66, {KCH}')
    a.e('s_lshl_b32 s71, s67, 8')
    a.e('s_sub_u32 s70, s70, s71')
    a.e(f's_add_u32 s70, s70, {L_KC + 16*253 - 512*7 - 64*3}')
    a.e(f'v_add_u32 v{VA}, s70, v2')
    a.e('v_and_b32 v2, 15, v1')
    a.e('v_lshlrev_b32 v2, 5, v2')
    a.e('v_lshrrev_b32 v3, 4, v1')
    a.e('v_lshl_add_u32 v2, v3, 4, v2')
    a.e(f's_mul_i32 s70, s66, {UCH}')
    a.e('s_sub_u32 s70, s70, s71')
    a.e(f's_add_u32 s70, s70, {L_U + 480 - 64*3}')
    a.e(f'v_add_u32 v{VB}, s70, v2')

    def loads(qq, s):
        for i in range(8):
            a.e(f'ds_read_b128 v[{FB[s][i]}:{FB[s][i]+3}], v{VB} offset:{512*i + 64*(3-qq)}')
            a.e(f'ds_read_b128 v[{FA[s][i]}:{FA[s][i]+3}], v{VA} offset:{512*(7-i) + 64*(3-qq)}')

    loads(0, 0)
    for qq in range(4):
        s = qq & 1
        if qq < 3:
            nxt = []
            for i in range(8):
                nxt.append(f'ds_read_b128 v[{FB[1-s][i]}:{FB[1-s][i]+3}], v{VB} offset:{512*i + 64*(3-qq-1)}')
                nxt.append(f'ds_read_b128 v[{FA[1-s][i]}:{FA[1-s][i]+3}], v{VA} offset:{512*(7-i) + 64*(3-qq-1)}')
        else:
            nxt = []
        a.e('s_waitcnt lgkmcnt(0)')
        n = 0
        for w in range(8):
            for c in range(w, 8):
                cc = '0' if (qq == 0 and w == 0) else f'v[{ACC+4*c}:{ACC+4*c+3}]'
                a.e(f'v_mfma_f32_16x16x32_f16 v[{ACC+4*c}:{ACC+4*c+3}], v[{FA[s][w]}:{FA[s][w]+3}], v[{FB[s][c-w]}:{FB[s][c-w]+3}], {cc}')
                if nxt and n % 2 == 1:
                    a.e(nxt.pop(0))
                if hooks and n % 8 == 4:
                    hooks.pop(0)()
                n += 1
        assert not nxt
    assert not hooks
    stamp(a, 11 if PERS else 7)
    CP = L_CP
    TS = 1280
    a.e('s_barrier')
    a.e('v_and_b32 v2, 15, v1')
    a.e('v_lshlrev_b32 v2, 4, v2')
    a.e('v_lshrrev_b32 v3, 4, v1')
    a.e('v_mul_u32_u24 v3, 320, v3')
    a.e('v_add_u32 v2, v2, v3')
    a.e(f's_mul_i32 s70, s{S_W}, {8*TS}')
    a.e(f's_add_u32 s70, s70, {CP}')
    a.e('v_add_u32 v2, s70, v2')
    for c in range(8):
        a.e(f'ds_write_b128 v2, v[{ACC+4*c}:{ACC+4*c+3}] offset:{c*TS}')
    a.e('v_lshrrev_b32 v2, 2, v1')
    a.e('v_lshlrev_b32 v2, 4, v2')
    a.e('v_and_b32 v3, 3, v1')
    a.e('v_mul_u32_u24 v3, 320, v3')
    a.e('v_add_u32 v2, v2, v3')
    a.e(f's_lshl_b32 s70, s{S_W}, 1')
    a.e(f's_mul_i32 s71, s70, {TS}')
    a.e(f's_add_u32 s71, s71, {CP}')
    a.e('v_add_u32 v2, s71, v2')
    a.e('s_lshl_b32 s71, s70, 9')
    a.e(f's_add_u32 s71, s71, {L_U + 512}')
    a.e('v_lshl_add_u32 v3, v1, 3, s71')
    a.e(f's_lshl_b32 s71, s{S_P}, 13')
    a.e('s_lshl_b32 s72, s70, 10')
    a.e('s_add_u32 s71, s71, s72')
    a.e(f's_add_u32 s71, s71, {WS_AOUT}')
    a.e('v_lshl_add_u32 v4, v1, 4, s71')
    a.e('s_lshl_b32 s72, s69, 16')
    a.e('s_and_b32 s73, s69, 0xffff0000')
    a.e('v_mov_b32 v56, s72')
    a.e('v_mov_b32 v57, s73')
    a.e('s_waitcnt lgkmcnt(0) vmcnt(0)' if PERS else 's_waitcnt lgkmcnt(0)')
    a.e('s_barrier')
    for q in range(2):
        P = 64 + 32 * q
        for ch in range(2):
            for hf in range(2):
                r = P + 8 * ch + 4 * hf
                a.e(f'ds_read_b128 v[{r}:{r+3}], v2 offset:{(2*ch+hf)*8*TS + q*TS}')
        for ch in range(2):
            a.e(f'ds_read_b64 v[{P+16+2*ch}:{P+17+2*ch}], v3 offset:{ch*UCH + q*512}')
    for q in range(2):
        P = 64 + 32 * q
        a.e(f's_waitcnt lgkmcnt({6 if q == 0 else 0})')
        for ch in range(2):
            y = P + 8 * ch
            T = 128 + 16 * ch
            for h in range(2):
                a.e(f'v_pk_add_f32 v[{y+2*h}:{y+2*h+1}], v[{y+2*h}:{y+2*h+1}], v[{y+4+2*h}:{y+5+2*h}]')
            for h in range(2):
                a.e(f'v_pk_mul_f32 v[{y+2*h}:{y+2*h+1}], v[{y+2*h}:{y+2*h+1}], v[54:55] op_sel:[0,{ch}] op_sel_hi:[1,{ch}]')
            u = P + 16 + 2 * ch
            for i in range(4):
                a.e(f'v_fma_mix_f32 v{T+i}, v{u+i//2}, v{56+ch}, 0 op_sel:[{i%2},0,0] op_sel_hi:[1,0,0]')
            for h in range(2):
                a.e(f'v_cvt_pk_bf16_f32 v{T+4+h}, v{y+2*h}, v{y+2*h+1}')
                a.e(f'v_cvt_pk_bf16_f32 v{T+6+h}, v{T+2*h}, v{T+2*h+1}')
            for h in range(2):
                a.e(f'v_lshlrev_b32 v{y+2*h}, 16, v{T+4+h}')
                a.e(f'v_and_b32 v{y+2*h+1}, 0xffff0000, v{T+4+h}')
                a.e(f'v_lshlrev_b32 v{T+2*h}, 16, v{T+6+h}')
                a.e(f'v_and_b32 v{T+2*h+1}, 0xffff0000, v{T+6+h}')
            for h in range(2):
                a.e(f'v_pk_add_f32 v[{y+2*h}:{y+2*h+1}], v[{y+2*h}:{y+2*h+1}], v[{T+2*h}:{T+2*h+1}]')
        O = 160 + 4 * q
        for i in range(4):
            a.e(f'v_cvt_pk_bf16_f32 v{O+i}, v{P+i}, v{P+8+i}')
        a.e(f'buffer_store_dwordx4 v[{O}:{O+3}], v4, s[{S_WS}:{S_WS+3}], 0 offen offset:{q*1024}{SC()}')


def bcast_stats(a, T):
    a.e(f'v_lshlrev_b32 v{T+1}, 16, v{T}')
    a.e(f'v_and_b32 v{T+2}, 0xffff0000, v{T}')
    a.e(f'v_rcp_f32 v{T+2}, v{T+2}')
    for j in range(8):
        a.e(f'v_readlane_b32 s{72+2*j}, v{T+1}, {j}')
    for j in range(8):
        a.e(f'v_readlane_b32 s{73+2*j}, v{T+2}, {j}')


def norm_tok(a, j, src, d):
    a.e(f'v_lshlrev_b32 v{d}, 16, v{src}')
    a.e(f'v_and_b32 v{d+1}, 0xffff0000, v{src}')
    a.e(f'v_pk_add_f32 v[{d}:{d+1}], v[{d}:{d+1}], s[{72+2*j}:{73+2*j}] op_sel:[0,0] op_sel_hi:[1,0] neg_lo:[0,1] neg_hi:[0,1]')
    a.e(f'v_cvt_pk_bf16_f32 v{src}, v{d}, v{d+1}')
    a.e(f'v_lshlrev_b32 v{d}, 16, v{src}')
    a.e(f'v_and_b32 v{d+1}, 0xffff0000, v{src}')
    a.e(f'v_pk_mul_f32 v[{d}:{d+1}], v[{d}:{d+1}], s[{72+2*j}:{73+2*j}] op_sel:[0,1] op_sel_hi:[1,1]')


def phase_p4(a):
    X = list(range(8, 16))
    A = 32
    if PERS:
        xrow_addr(a)
    else:
        load_xrows(a, X)
    a.e(f's_mul_i32 s66, s{S_W}, {56*8192}')
    a.e(f's_lshl_b32 s67, s{S_B}, 5')
    a.e('s_add_u32 s66, s66, s67')
    a.e(f's_add_u32 s66, s66, {WS_AOUT}')
    a.e('v_lshl_add_u32 v4, v1, 13, s66')
    a.e(f'v_mov_b32 v5, {OOB}')
    a.e('v_cndmask_b32 v4, v5, v4, vcc')
    a.e(f'v_add_u32 v6, {WS_H}, v2')
    a.e(f'v_add_u32 v7, {WS_H}, v3')
    lp, ld = a.lab('h2poll'), a.lab('h2done')
    a.e(f's_mov_b32 s{S_SPIN}, 0')
    a.e(f'{lp}:')
    a.e(f'buffer_load_dwordx4 v[{A}:{A+3}], v4, s[{S_WS}:{S_WS+3}], 0 offen{SC()}')
    a.e(f'buffer_load_dwordx4 v[{A+4}:{A+7}], v4, s[{S_WS}:{S_WS+3}], 0 offen offset:16{SC()}')
    a.e('s_waitcnt vmcnt(0)')
    if PERS:
        a.e(f'v_max3_u32 v40, v{A}, v{A+1}, v{A+2}')
        a.e(f'v_max3_u32 v41, v{A+3}, v{A+4}, v{A+5}')
        a.e(f'v_max3_u32 v40, v40, v{A+6}, v{A+7}')
        a.e('v_max_u32 v40, v40, v41')
        a.e('v_cmp_eq_u32 vcc, -1, v40')
        a.e(f's_cbranch_vccz {ld}')
        a.e(f's_add_u32 s{S_SPIN}, s{S_SPIN}, 1')
        a.e(f's_cmp_lt_u32 s{S_SPIN}, {SPIN_MAX}')
        a.e(f's_cbranch_scc1 {lp}')
    a.e(f'{ld}:')
    stamp(a, 14 if PERS else 2)
    for j in range(8):
        t = 40 + 4 * (j % 2)
        a.e(f'v_lshlrev_b32 v{t}, 16, v{X[j]}')
        a.e(f'v_and_b32 v{t+1}, 0xffff0000, v{X[j]}')
        a.e(f'v_lshlrev_b32 v{t+2}, 16, v{A+j}')
        a.e(f'v_and_b32 v{t+3}, 0xffff0000, v{A+j}')
        a.e(f'v_pk_add_f32 v[{t}:{t+1}], v[{t}:{t+1}], v[{t+2}:{t+3}]')
        a.e(f'v_cvt_pk_bf16_f32 v{X[j]}, v{t}, v{t+1}')
    for j in range(5):
        a.e(f'buffer_store_dword v{X[j]}, v6, s[{S_WS}:{S_WS+3}], 0 offen offset:{j*896}{SC()}')
    for j in range(5, 8):
        a.e(f'buffer_store_dword v{X[j]}, v7, s[{S_WS}:{S_WS+3}], 0 offen offset:{(j-5)*896}{SC()}')
    H = list(range(48, 56))
    for j in range(8):
        a.e(f'v_mov_b32 v{H[j]}, v{X[j]}')
    ln_stats(a, H, 16, L_RED0, 5)
    bcast_stats(a, 16)
    a.e('s_mov_b32 exec_hi, 0x00ffffff')
    for j in range(8):
        t = 40 + 2 * (j % 4)
        norm_tok(a, j, H[j], t)
        a.e(f'v_cvt_pk_bf16_f32 v{H[j]}, v{t}, v{t+1}')
    a.e('s_mov_b32 exec_hi, -1')
    ln_stats(a, H, 16, L_RED1, 5)
    bcast_stats(a, 16)
    for j in range(8):
        norm_tok(a, j, H[j], 64 + 2 * j)
    O0, O1 = 80, 84
    for i in range(4):
        a.e(f'v_cvt_pk_bf16_f32 v{O0+i}, v{64+4*i}, v{66+4*i}')
        a.e(f'v_cvt_pk_bf16_f32 v{O1+i}, v{65+4*i}, v{67+4*i}')
    a.e(f's_mul_i32 s66, s{S_B}, 7168')
    a.e(f's_mul_i32 s67, s{S_W}, 1792')
    a.e('s_add_u32 s66, s66, s67')
    a.e(f's_add_u32 s66, s66, {WS_HH}')
    a.e('v_lshl_add_u32 v4, v1, 4, s66')
    a.e('v_add_u32 v5, 448, v4')
    a.e('v_cmp_gt_u32 vcc, 28, v1')
    a.e('v_cndmask_b32 v4, v5, v4, vcc')
    a.e(f'v_mov_b32 v5, {OOB}')
    a.e('v_cmp_gt_u32 vcc, 56, v1')
    a.e('v_cndmask_b32 v4, v5, v4, vcc')
    if PERS:
        a.e('s_waitcnt vmcnt(0)')
    a.e(f'buffer_store_dwordx4 v[{O0}:{O0+3}], v4, s[{S_WS}:{S_WS+3}], 0 offen{SC()}')
    a.e(f'buffer_store_dwordx4 v[{O1}:{O1+3}], v4, s[{S_WS}:{S_WS+3}], 0 offen offset:448{SC()}')


ACC = 16
XS = 80
NS = 8


def gemm_xaddr(a, ws_off, kblocks):
    a.e(f's_mul_i32 s66, s{S_W}, {kblocks*7168}')
    a.e(f's_mul_i32 s67, s{S_J}, 896')
    a.e('s_add_u32 s66, s66, s67')
    a.e(f's_add_u32 s66, s66, {ws_off}')
    a.e('v_lshrrev_b32 v4, 4, v1')
    a.e('v_mul_u32_u24 v4, 7168, v4')
    a.e('v_and_b32 v5, 15, v1')
    a.e('v_lshl_add_u32 v4, v5, 4, v4')
    a.e('v_add_u32 v2, s66, v4')
    a.e('v_and_b32 v5, 7, v1')
    a.e('v_lshrrev_b32 v4, 4, v1')
    a.e('v_mul_u32_u24 v4, 7168, v4')
    a.e('v_lshl_add_u32 v4, v5, 4, v4')
    a.e('v_add_u32 v3, s66, v4')
    a.e('v_add_u32 v3, 768, v3')


def gemm_xload(a, kappa):
    st = XS + 16 * (kappa % NS)
    a.e(f's_mov_b32 s70, {kappa*4*7168}')
    for nu in range(3):
        a.e(f'buffer_load_dwordx4 v[{st+4*nu}:{st+4*nu+3}], v2, s[{S_WS}:{S_WS+3}], s70 offen offset:{256*nu}{SC()}')
    a.e(f'buffer_load_dwordx4 v[{st+12}:{st+15}], v3, s[{S_WS}:{S_WS+3}], s70 offen{SC()}')


def gemm_wload(a, nk, rowbytes, wptr, wbytes, coltile_sreg, rows_per_wave, extra_vm, k0=0):
    srd(a, S_T0, wptr, wbytes)
    a.e('v_lshrrev_b32 v4, 3, v1')
    a.e(f's_mov_b32 s66, {rowbytes}')
    a.e('v_mul_lo_u32 v5, v4, s66')
    a.e('v_bfe_u32 v4, v1, 4, 1')
    a.e('v_lshlrev_b32 v4, 1, v4')
    a.e('v_and_b32 v6, 7, v1')
    a.e('v_xor_b32 v6, v6, v4')
    a.e(f's_mul_i32 s67, s{S_W}, {rows_per_wave*rowbytes}')
    a.e(f's_lshl_b32 s66, s{coltile_sreg}, 7')
    a.e('s_add_u32 s67, s67, s66')
    a.e('v_lshl_add_u32 v4, v6, 4, v5')
    a.e('v_add_u32 v208, s67, v4')
    a.e('v_xor_b32 v6, 4, v6')
    a.e('v_lshl_add_u32 v4, v6, 4, v5')
    a.e('v_add_u32 v209, s67, v4')
    a.e('v_lshrrev_b32 v4, 4, v1')
    a.e('v_bfe_u32 v5, v1, 2, 2')
    a.e('v_lshl_add_u32 v5, v4, 3, v5')
    a.e('v_lshlrev_b32 v5, 7, v5')
    a.e('v_and_b32 v6, 1, v1')
    a.e('v_lshl_add_u32 v5, v6, 3, v5')
    a.e('v_bfe_u32 v6, v1, 1, 1')
    a.e('v_lshl_add_u32 v5, v6, 4, v5')
    a.e(f's_lshl_b32 s66, s{S_W}, 14')
    a.e(f's_add_u32 s66, s66, {L_WRING}')
    a.e('v_add_u32 v5, s66, v5')
    a.e('v_bfe_u32 v6, v1, 3, 1')
    a.e('v_and_b32 v4, 1, v4')
    a.e('v_lshl_add_u32 v6, v4, 1, v6')
    for mu in range(4):
        a.e(f'v_xor_b32 v4, {mu}, v6')
        a.e(f'v_lshl_add_u32 v{210+mu}, v4, 5, v5')
    a.e(f's_mov_b32 s71, s66')

    def dma(kappa):
        for i in range(4):
            a.e(f's_add_u32 m0, s71, {(kappa % 4)*4096 + i*1024}')
            a.e(f's_mov_b32 s70, {(32*kappa + 8*i)*rowbytes}')
            a.e(f'buffer_load_dwordx4 v{208 + (i & 1)}, s[{S_T0}:{S_T0+3}], s70 offen lds')

    for k in range(k0, min(k0 + 4, nk)):
        dma(k)
    for k in range(k0, nk):
        inflight = min(3, nk - 1 - k)
        a.e(f's_waitcnt vmcnt({4*inflight})')
        for mu in range(4):
            r = (k * 4 + mu) * 4
            a.e(f'ds_read_b64_tr_b16 a[{r}:{r+1}], v{210+mu} offset:{(k % 4)*4096}')
            a.e(f'ds_read_b64_tr_b16 a[{r+2}:{r+3}], v{210+mu} offset:{(k % 4)*4096 + 512}')
        if k + 4 < nk:
            a.e('s_waitcnt lgkmcnt(0)')
            dma(k + 4)
    a.e('s_waitcnt lgkmcnt(0)')


VMAX = 214


def gemm_main(a, nk, w_is_a):
    if PERS:
        a.e(f'v_mov_b32 v{VMAX}, 0')
    for k in range(nk):
        st = XS + 16 * (k % NS)
        rem = min(NS - 1, nk - 1 - k)
        a.e(f's_waitcnt vmcnt({4*rem})')
        for mu in range(4):
            for nu in range(4):
                if PERS and nu % 2 == 1:
                    r = st + 4 * mu + (nu - 1)
                    a.e(f'v_max3_u32 v{VMAX}, v{VMAX}, v{r}, v{r+1}')
                w = (k * 4 + mu) * 4
                x = st + 4 * nu
                if w_is_a:
                    acc = ACC + (mu * 4 + nu) * 4
                    A, B = f'a[{w}:{w+3}]', f'v[{x}:{x+3}]'
                else:
                    acc = ACC + (nu * 4 + mu) * 4
                    A, B = f'v[{x}:{x+3}]', f'a[{w}:{w+3}]'
                cc = '0' if k == 0 else f'v[{acc}:{acc+3}]'
                a.e(f'v_mfma_f32_16x16x32_bf16 v[{acc}:{acc+3}], {A}, {B}, {cc}')
        if k + NS < nk:
            gemm_xload(a, k + NS)


def write_partials(a):
    a.e('v_and_b32 v4, 15, v1')
    a.e(f'v_mul_u32_u24 v4, {PROW}, v4')
    a.e('v_lshrrev_b32 v5, 4, v1')
    a.e('v_lshl_add_u32 v4, v5, 4, v4')
    a.e(f's_mul_i32 s66, s{S_W}, {PARTW}')
    a.e(f's_add_u32 s66, s66, {L_PART}')
    a.e('v_add_u32 v4, s66, v4')
    for mt in range(4):
        for nt in range(4):
            acc = ACC + (mt * 4 + nt) * 4
            a.e(f'ds_write_b128 v4, v[{acc}:{acc+3}] offset:{nt*16*PROW + mt*64}')
    a.e('s_waitcnt lgkmcnt(0)')
    a.e('s_barrier')


def round_pairs(a, src, dst_pk, n):
    for i in range(n // 2):
        a.e(f'v_cvt_pk_bf16_f32 v{dst_pk+i}, v{src+2*i}, v{src+2*i+1}')
    for i in range(n // 2):
        a.e(f'v_lshlrev_b32 v{src+2*i}, 16, v{dst_pk+i}')
        a.e(f'v_and_b32 v{src+2*i+1}, 0xffff0000, v{dst_pk+i}')


def phase_gemm1(a):
    gemm_xaddr(a, WS_HH, 64)
    for k in range(NS):
        gemm_xload(a, k)
    stamp(a, 2)
    gemm_wload(a, 16, F * 2, P_W1, W1BYTES, S_I1, 512, 32)
    stamp(a, 3)
    gemm_main(a, 16, True)
    stamp(a, 4)
    gemm1_epilogue(a)


def gemm1_epilogue(a, after_reads=None):
    write_partials(a)
    stamp(a, 24 if PERS else 5)
    a.e(f'v_mul_u32_u24 v4, {PROW}, v1')
    a.e(f's_lshl_b32 s66, s{S_W}, 6')
    a.e(f's_add_u32 s66, s66, {L_PART}')
    a.e('v_add_u32 v4, s66, v4')
    a.e(f's_lshl_b32 s67, s{S_I1}, 7')
    a.e(f's_lshl_b32 s70, s{S_W}, 5')
    a.e('s_add_u32 s67, s67, s70')
    a.e(f's_load_dwordx8 s[72:79], s[{P_B1}:{P_B1+1}], s67')
    a.e(f's_lshl_b32 s66, s{S_I1}, 3')
    a.e(f's_lshl_b32 s70, s{S_W}, 1')
    a.e('s_add_u32 s66, s66, s70')
    a.e('s_mul_i32 s66, s66, 7168')
    a.e(f's_mul_i32 s70, s{S_J}, 896')
    a.e('s_add_u32 s66, s66, s70')
    a.e(f's_add_u32 s66, s66, {WS_G}')
    a.e('v_lshl_add_u32 v5, v1, 4, s66')
    a.e(f'v_mov_b32 v6, {OOB}')
    a.e('v_cmp_gt_u32 vcc, 56, v1')
    a.e('v_cndmask_b32 v5, v6, v5, vcc')
    for r in range(2):
        P = 16 + 32 * r
        for wv in range(4):
            a.e(f'ds_read_b128 v[{P+8*wv}:{P+8*wv+3}], v4 offset:{wv*PARTW + r*32}')
            a.e(f'ds_read_b128 v[{P+8*wv+4}:{P+8*wv+7}], v4 offset:{wv*PARTW + r*32 + 16}')
    a.e('s_waitcnt lgkmcnt(0)')
    if after_reads is not None:
        a.e('s_barrier')
        after_reads()
    for i in range(8):
        a.e(f's_lshl_b32 s{80+2*i}, s{72+i}, 16')
        a.e(f's_and_b32 s{81+2*i}, s{72+i}, 0xffff0000')
    C1 = 0.044715
    C2 = -2.0 * 0.7978845608028654 * 1.4426950408889634
    a.e(f'v_mov_b32 v100, {fx(C1*C2)}')
    a.e(f'v_mov_b32 v101, {fx(C1*C2)}')
    a.e(f'v_mov_b32 v102, {fx(C2)}')
    a.e(f'v_mov_b32 v103, {fx(C2)}')
    for r in range(2):
        P = 16 + 32 * r
        T = 80 + 0
        for h in range(4):
            a.e(f'v_pk_add_f32 v[{P+2*h}:{P+2*h+1}], v[{P+2*h}:{P+2*h+1}], v[{P+8+2*h}:{P+9+2*h}]')
            a.e(f'v_pk_add_f32 v[{P+16+2*h}:{P+17+2*h}], v[{P+16+2*h}:{P+17+2*h}], v[{P+24+2*h}:{P+25+2*h}]')
        for h in range(4):
            a.e(f'v_pk_add_f32 v[{P+2*h}:{P+2*h+1}], v[{P+2*h}:{P+2*h+1}], v[{P+16+2*h}:{P+17+2*h}]')
        round_pairs(a, P, T, 8)
        for h in range(4):
            a.e(f'v_pk_add_f32 v[{P+2*h}:{P+2*h+1}], v[{P+2*h}:{P+2*h+1}], s[{80+8*r+2*h}:{81+8*r+2*h}]')
        round_pairs(a, P, T, 8)
        for h in range(4):
            a.e(f'v_pk_mul_f32 v[{P+8+2*h}:{P+9+2*h}], v[{P+2*h}:{P+2*h+1}], v[{P+2*h}:{P+2*h+1}]')
        for h in range(4):
            a.e(f'v_pk_fma_f32 v[{P+8+2*h}:{P+9+2*h}], v[{P+8+2*h}:{P+9+2*h}], v[100:101], v[102:103]')
        for h in range(4):
            a.e(f'v_pk_mul_f32 v[{P+8+2*h}:{P+9+2*h}], v[{P+8+2*h}:{P+9+2*h}], v[{P+2*h}:{P+2*h+1}]')
        for i in range(8):
            a.e(f'v_exp_f32 v{P+8+i}, v{P+8+i}')
        for h in range(4):
            a.e(f'v_pk_add_f32 v[{P+8+2*h}:{P+9+2*h}], v[{P+8+2*h}:{P+9+2*h}], 1.0 op_sel_hi:[1,0]')
        for i in range(8):
            a.e(f'v_rcp_f32 v{P+8+i}, v{P+8+i}')
        for h in range(4):
            a.e(f'v_pk_mul_f32 v[{P+2*h}:{P+2*h+1}], v[{P+2*h}:{P+2*h+1}], v[{P+8+2*h}:{P+9+2*h}]')
        O = 88 + 4 * r
        for h in range(4):
            a.e(f'v_cvt_pk_bf16_f32 v{O+h}, v{P+2*h}, v{P+2*h+1}')
        if r == 1:
            a.e('v_add_u32 v5, 7168, v5')
        a.e(f'buffer_store_dwordx4 v[{O}:{O+3}], v5, s[{S_WS}:{S_WS+3}], 0 offen{SC()}')


def phase_gemm2(a):
    gemm_xaddr(a, WS_G, 56)
    for k in range(NS):
        gemm_xload(a, k)
    stamp(a, 2)
    gemm_wload(a, 14, L * 2, P_W2, W2BYTES, S_I2, 448, 32)
    stamp(a, 3)
    gemm_main(a, 14, False)
    stamp(a, 4)
    gemm2_epilogue(a)


def gemm2_epilogue(a):
    write_partials(a)
    stamp(a, 33 if PERS else 5)
    srd(a, S_T2, P_OUT, XBYTES)
    a.e('v_lshrrev_b32 v4, 3, v1')
    a.e('v_and_b32 v5, 7, v1')
    a.e(f's_lshl_b32 s66, s{S_W}, 4')
    a.e('v_add_u32 v4, s66, v4')
    a.e(f'v_mul_u32_u24 v6, {PROW}, v4')
    a.e('v_lshl_add_u32 v6, v5, 4, v6')
    a.e(f'v_add_u32 v6, {L_PART}, v6')
    a.e(f's_lshl_b32 s67, s{S_I2}, 6')
    a.e('v_add_u32 v7, s67, v4')
    a.e('v_mul_u32_u24 v8, 896, v7')
    a.e('v_lshl_add_u32 v8, v5, 4, v8')
    a.e(f's_mul_i32 s70, s{S_J}, 112')
    a.e('v_add_u32 v8, s70, v8')
    a.e(f'v_mov_b32 v9, {OOB}')
    a.e('v_cmp_gt_u32 vcc, 7, v5')
    a.e('v_cndmask_b32 v8, v9, v8, vcc')
    a.e(f'v_add_u32 v9, {WS_H}, v8')
    srd(a, S_T3, P_B2, L * 2)
    a.e('v_lshlrev_b32 v7, 1, v7')
    for r in range(2):
        a.e(f'buffer_load_dwordx4 v[{96+4*r}:{99+4*r}], v9, s[{S_WS}:{S_WS+3}], 0 offen{SC()}')
        if r == 0:
            a.e(f'v_add_u32 v9, {8*896}, v9')
        a.e(f'buffer_load_ushort v{104+r}, v7, s[{S_T3}:{S_T3+3}], 0 offen offset:{16*r}')
    for r in range(2):
        P = 16 + 32 * r
        for wv in range(4):
            a.e(f'ds_read_b128 v[{P+8*wv}:{P+8*wv+3}], v6 offset:{wv*PARTW + r*8*PROW}')
            a.e(f'ds_read_b128 v[{P+8*wv+4}:{P+8*wv+7}], v6 offset:{wv*PARTW + r*8*PROW + 112}')
    a.e('s_waitcnt lgkmcnt(0) vmcnt(0)')
    for r in range(2):
        P = 16 + 32 * r
        T = 80
        for h in range(4):
            a.e(f'v_pk_add_f32 v[{P+2*h}:{P+2*h+1}], v[{P+2*h}:{P+2*h+1}], v[{P+8+2*h}:{P+9+2*h}]')
            a.e(f'v_pk_add_f32 v[{P+16+2*h}:{P+17+2*h}], v[{P+16+2*h}:{P+17+2*h}], v[{P+24+2*h}:{P+25+2*h}]')
        for h in range(4):
            a.e(f'v_pk_add_f32 v[{P+2*h}:{P+2*h+1}], v[{P+2*h}:{P+2*h+1}], v[{P+16+2*h}:{P+17+2*h}]')
        round_pairs(a, P, T, 8)
        a.e(f'v_lshlrev_b32 v{106}, 16, v{104+r}')
        for h in range(4):
            a.e(f'v_pk_add_f32 v[{P+2*h}:{P+2*h+1}], v[{P+2*h}:{P+2*h+1}], v[106:107] op_sel:[0,0] op_sel_hi:[1,0]')
        round_pairs(a, P, T, 8)
        H = 96 + 4 * r
        for i in range(4):
            a.e(f'v_lshlrev_b32 v{P+8+i}, 16, v{H+i}')
            a.e(f'v_and_b32 v{P+12+i}, 0xffff0000, v{H+i}')
        for h in range(4):
            a.e(f'v_pk_add_f32 v[{P+2*h}:{P+2*h+1}], v[{P+2*h}:{P+2*h+1}], v[{P+8+2*h}:{P+9+2*h}]')
        O = 88 + 4 * r
        for i in range(4):
            a.e(f'v_cvt_pk_bf16_f32 v{O+i}, v{P+i}, v{P+4+i}')
        if r == 1:
            a.e(f'v_add_u32 v8, {8*896}, v8')
        a.e(f'buffer_store_dwordx4 v[{O}:{O+3}], v8, s[{S_T2}:{S_T2+3}], 0 offen')


def kernel(a, name, body, nwg=256):
    lend = a.lab('end')
    a.raw(f'.globl {name}')
    a.raw('.p2align 8')
    a.raw(f'.type {name},@function')
    a.raw(f'{name}:')
    prologue(a, nwg, lend)
    body(a, lend)
    stamp_clk(a, 61)
    stamp(a, 63)
    stamp_flush(a)
    KIDX[0] += 1
    a.e(f'{lend}:')
    a.e('s_endpgm')


def descriptor(name):
    return f'''.amdhsa_kernel {name}
  .amdhsa_next_free_vgpr 512
  .amdhsa_next_free_sgpr 102
  .amdhsa_accum_offset 256
  .amdhsa_group_segment_fixed_size 0
  .amdhsa_kernarg_size 120
  .amdhsa_user_sgpr_count 2
  .amdhsa_user_sgpr_kernarg_segment_ptr 1
  .amdhsa_system_sgpr_workgroup_id_x 1
  .amdhsa_float_denorm_mode_32 3
.end_amdhsa_kernel
'''


def skip_if_loc_ge28(a, lend):
    a.e(f's_cmp_ge_u32 s{S_LOC}, 28')
    a.e(f's_cbranch_scc1 {lend}')


def build_multi():
    a = Prog()
    names = ['k1_stats_kernel', 'k2_conv_kernel', 'k3_ln_kernel', 'k4_gemm1_kernel', 'k5_gemm2_kernel']

    def b1(a, lend):
        phase_p1(a)

    def b2(a, lend):
        skip_if_loc_ge28(a, lend)
        kgen_loads(a)
        load_gather_table(a, 'ktab_idx')
        conv_loads(a)
        stats_loads(a)
        a.e('s_waitcnt vmcnt(0) lgkmcnt(0)')
        stamp(a, 2)
        phase_kgen(a)
        stamp(a, 5)
        phase_norm(a)
        stamp(a, 6)
        phase_conv(a)

    def b3(a, lend):
        phase_p4(a)

    def b4(a, lend):
        skip_if_loc_ge28(a, lend)
        phase_gemm1(a)

    def b5(a, lend):
        phase_gemm2(a)

    for n, b in zip(names, (b1, b2, b3, b4, b5)):
        kernel(a, n, b)
        if n == 'k2_conv_kernel':
            emit_gather_table(a, 'ktab_idx')
    nn = a.fast_insert_nops()
    head = ''
    for n in names:
        head += f'; @launch kernel={n} grid=(256,1,1) block=(256,1,1) lds={LDS_BYTES}\n'
    head += '.amdgcn_target "amdgcn-amd-amdhsa--gfx950"\n.text\n'
    tail = '.section .rodata,"a"\n'
    for n in names:
        tail += '.p2align 6\n' + descriptor(n)
    sys.stderr.write(f'instructions: {a.count()}, nops inserted: {nn}\n')
    return head + a.text() + tail


def g_store_addr(a, vd):
    a.e(f's_lshl_b32 s66, s{S_I1}, 3')
    a.e(f's_lshl_b32 s70, s{S_W}, 1')
    a.e('s_add_u32 s66, s66, s70')
    a.e('s_mul_i32 s66, s66, 7168')
    a.e(f's_mul_i32 s70, s{S_J}, 896')
    a.e('s_add_u32 s66, s66, s70')
    a.e(f's_add_u32 s66, s66, {WS_G}')
    a.e(f'v_lshl_add_u32 v{vd}, v1, 4, s66')
    a.e(f'v_mov_b32 v6, {OOB}')
    a.e('v_cmp_gt_u32 vcc, 56, v1')
    a.e(f'v_cndmask_b32 v{vd}, v6, v{vd}, vcc')


def clear_hh(a):
    a.e(f's_mul_i32 s66, s{S_B}, 7168')
    a.e(f's_add_u32 s66, s66, {WS_HH}')
    a.e('v_lshl_add_u32 v4, v0, 4, s66')
    a.e('v_add_u32 v5, 4096, v4')
    a.e(f'v_mov_b32 v6, {OOB}')
    a.e('v_cmp_gt_u32 vcc, 192, v0')
    a.e('v_cndmask_b32 v5, v6, v5, vcc')
    a.e(f'buffer_store_dwordx4 v[216:219], v4, s[{S_WS}:{S_WS+3}], 0 offen sc1')
    a.e(f'buffer_store_dwordx4 v[216:219], v5, s[{S_WS}:{S_WS+3}], 0 offen sc1')


def clear_conv_g(a):
    a.e(f's_lshl_b32 s66, s{S_P}, 13')
    a.e(f's_add_u32 s66, s66, {WS_AOUT}')
    a.e('v_lshl_add_u32 v4, v0, 4, s66')
    a.e('v_add_u32 v5, 4096, v4')
    a.e(f'buffer_store_dwordx4 v[216:219], v4, s[{S_WS}:{S_WS+3}], 0 offen sc1')
    a.e(f'buffer_store_dwordx4 v[216:219], v5, s[{S_WS}:{S_WS+3}], 0 offen sc1')
    g_store_addr(a, 4)
    a.e('v_add_u32 v5, 7168, v4')
    a.e(f'buffer_store_dwordx4 v[216:219], v4, s[{S_WS}:{S_WS+3}], 0 offen sc1')
    a.e(f'buffer_store_dwordx4 v[216:219], v5, s[{S_WS}:{S_WS+3}], 0 offen sc1')


def h1_poll(a):
    lp, ld = a.lab('h1poll'), a.lab('h1done')
    a.e('v_lshlrev_b32 v2, 6, v0')
    a.e(f's_mov_b32 s{S_SPIN}, 0')
    a.e(f'{lp}:')
    for i in range(4):
        a.e(f'buffer_load_dwordx4 v[{ST+4*i}:{ST+4*i+3}], v2, s[{S_WS}:{S_WS+3}], 0 offen offset:{WS_STATS+16*i} sc1')
    a.e('s_waitcnt vmcnt(0)')
    a.e(f'v_xor_b32 v3, s{S_TAG}, v{ST+1}')
    for i in range(1, 8):
        a.e(f'v_xor_b32 v4, s{S_TAG}, v{ST+1+2*i}')
        a.e('v_or_b32 v3, v3, v4')
    a.e('v_cmp_ne_u32 vcc, 0, v3')
    a.e(f's_cbranch_vccz {ld}')
    a.e(f's_add_u32 s{S_SPIN}, s{S_SPIN}, 1')
    a.e(f's_cmp_lt_u32 s{S_SPIN}, {SPIN_MAX}')
    a.e(f's_cbranch_scc1 {lp}')
    a.e(f'{ld}:')


def sentinel(a, ws_off, kblocks):
    lp, ld = a.lab('spoll'), a.lab('sdone')
    a.e(f's_mul_i32 s66, s{S_W}, {kblocks*7168}')
    a.e(f's_mul_i32 s67, s{S_J}, 896')
    a.e('s_add_u32 s66, s66, s67')
    a.e(f's_add_u32 s66, s66, {ws_off + 55*16 + 12}')
    a.e('v_mul_u32_u24 v4, 7168, v1')
    a.e('v_add_u32 v4, s66, v4')
    if kblocks < 64:
        a.e(f'v_mov_b32 v5, {OOB}')
        a.e(f'v_cmp_gt_u32 vcc, {kblocks}, v1')
        a.e('v_cndmask_b32 v4, v5, v4, vcc')
    a.e(f's_mov_b32 s{S_SPIN}, 0')
    a.e(f'{lp}:')
    a.e(f'buffer_load_dword v5, v4, s[{S_WS}:{S_WS+3}], 0 offen sc1')
    a.e('s_waitcnt vmcnt(0)')
    a.e('v_cmp_eq_u32 vcc, -1, v5')
    a.e(f's_cbranch_vccz {ld}')
    a.e(f's_add_u32 s{S_SPIN}, s{S_SPIN}, 1')
    a.e(f's_cmp_lt_u32 s{S_SPIN}, {SPIN_MAX}')
    a.e(f's_cbranch_scc1 {lp}')
    a.e(f'{ld}:')


def gemm_poll_main(a, ws_off, kblocks, nk, w_is_a, sb):
    lr, lok = a.lab('gretry'), a.lab('gok')
    a.e(f's_mov_b32 s{S_RETRY}, 0')
    a.e(f'{lr}:')
    sentinel(a, ws_off, kblocks)
    stamp(a, sb)
    gemm_xaddr(a, ws_off, kblocks)
    for k in range(NS):
        gemm_xload(a, k)
    gemm_main(a, nk, w_is_a)
    a.e(f'v_cmp_eq_u32 vcc, -1, v{VMAX}')
    a.e(f's_cbranch_vccz {lok}')
    a.e(f's_add_u32 s{S_RETRY}, s{S_RETRY}, 1')
    a.e(f's_cmp_lt_u32 s{S_RETRY}, {RETRY_MAX}')
    a.e(f's_cbranch_scc1 {lr}')
    a.e(f'{lok}:')


def build_pers():
    global PERS
    PERS = True
    a = Prog()
    name = NAME + '_kernel'

    def body(a, lend):
        lnc1, lnc2, lnc3 = a.lab('noconv'), a.lab('noconv'), a.lab('noconv')
        a.e(f's_add_u32 s66, s{P_WS}, {WS_EPOCH}')
        a.e(f's_addc_u32 s67, s{P_WS+1}, 0')
        a.e('s_load_dword s99, s[66:67], 0')
        load_xrows(a, list(range(8, 16)))
        for r in range(216, 220):
            a.e(f'v_mov_b32 v{r}, -1')
        clear_hh(a)
        a.e(f's_cmp_ge_u32 s{S_LOC}, 28')
        a.e(f's_cbranch_scc1 {lnc1}')
        clear_conv_g(a)
        kgen_loads(a)
        load_gather_table(a, 'ktab_idx')
        conv_loads(a)
        a.e('s_waitcnt lgkmcnt(0)')
        a.e(f's_add_u32 s{S_TAG}, s99, 0x9e3779b9')
        phase_p1(a, wait_x=24, wait_pub=18)
        a.e('s_waitcnt vmcnt(8)')
        stamp(a, 4)
        phase_kgen(a)
        stamp(a, 8)
        h1_poll(a)
        stamp(a, 9)
        le = a.lab('noep')
        a.e('s_cmp_lg_u32 s2, 0')
        a.e(f's_cbranch_scc1 {le}')
        a.e(f'v_mov_b32 v2, {WS_EPOCH}')
        a.e(f'v_mov_b32 v3, s{S_TAG}')
        a.e('s_mov_b64 exec, 1')
        a.e(f'buffer_store_dword v3, v2, s[{S_WS}:{S_WS+3}], 0 offen sc1')
        a.e('s_mov_b64 exec, -1')
        a.e(f'{le}:')
        phase_norm(a)
        stamp(a, 10)
        phase_conv(a)
        stamp(a, 12)
        a.e('s_barrier')
        gemm_wload(a, 8, F * 2, P_W1, W1BYTES, S_I1, 512, 0)
        stamp(a, 13)
        a.e(f's_branch {lnc2}')
        a.e(f'{lnc1}:')
        a.e('s_waitcnt lgkmcnt(0)')
        a.e(f's_add_u32 s{S_TAG}, s99, 0x9e3779b9')
        phase_p1(a, wait_x=2, wait_pub=0)
        h1_poll(a)
        a.e(f'{lnc2}:')
        phase_p4(a)
        stamp(a, 20)
        a.e(f's_cmp_ge_u32 s{S_LOC}, 28')
        a.e(f's_cbranch_scc1 {lnc3}')
        gemm_wload(a, 16, F * 2, P_W1, W1BYTES, S_I1, 512, 0, k0=8)
        stamp(a, 21)
        gemm_poll_main(a, WS_HH, 64, 16, True, 22)
        stamp(a, 23)
        gemm1_epilogue(a)
        stamp(a, 25)
        a.e('s_barrier')
        a.e(f'{lnc3}:')
        gemm_wload(a, 14, L * 2, P_W2, W2BYTES, S_I2, 448, 0)
        stamp(a, 30)
        gemm_poll_main(a, WS_G, 56, 14, False, 31)
        stamp(a, 32)
        gemm2_epilogue(a)

    kernel(a, name, body)
    emit_gather_table(a, 'ktab_idx')
    nn = a.fast_insert_nops()
    head = f'; @launch grid=(256,1,1) block=(256,1,1) lds={LDS_BYTES}\n'
    head += '.amdgcn_target "amdgcn-amd-amdhsa--gfx950"\n.text\n'
    tail = '.section .rodata,"a"\n.p2align 6\n' + descriptor(name)
    sys.stderr.write(f'instructions: {a.count()}, nops inserted: {nn}\n')
    return head + a.text() + tail


def code_prefetch(a, lstart, lend_):
    lp = a.lab('pcp')
    a.e('s_getpc_b64 s[74:75]')
    a.e(f'{lp}:')
    a.e(f's_sub_u32 s74, s74, {lp}-{lstart}')
    a.e('s_subb_u32 s75, s75, 0')
    a.e('v_lshlrev_b32 v4, 6, v0')
    a.e(f's_mov_b32 s76, {lend_}-{lstart}-4')
    a.e('v_add_u32 v5, 16384, v4')
    a.e('v_min_u32 v4, s76, v4')
    a.e('v_min_u32 v5, s76, v5')
    a.e('global_load_dword v220, v4, s[74:75]')
    a.e('global_load_dword v220, v5, s[74:75]')


def w_prefetch(a, wptr, wbytes, rowbytes, tile_sreg, rows_q):
    srd(a, S_T0, wptr, wbytes)
    a.e(f's_and_b32 s66, s{S_LOC}, 3')
    a.e(f's_mul_i32 s66, s66, {rows_q*rowbytes}')
    a.e(f's_lshl_b32 s67, s{tile_sreg}, 7')
    a.e('s_add_u32 s66, s66, s67')
    a.e('v_lshrrev_b32 v4, 1, v0')
    a.e(f's_mov_b32 s67, {rowbytes}')
    a.e('v_mul_lo_u32 v4, v4, s67')
    a.e('v_and_b32 v5, 1, v0')
    a.e('v_lshl_add_u32 v4, v5, 6, v4')
    a.e('v_add_u32 v4, s66, v4')
    for i in range(4):
        if 128 * (i + 1) > rows_q:
            a.e(f'v_mov_b32 v5, {OOB}')
            a.e(f'v_cmp_gt_u32 vcc, {2*(rows_q-128*i)}, v0')
            a.e('v_cndmask_b32 v4, v5, v4, vcc')
        a.e(f's_mov_b32 s70, {128*i*rowbytes}')
        a.e(f'buffer_load_dword v220, v4, s[{S_T0}:{S_T0+3}], s70 offen')


def clear_aout(a):
    a.e(f's_lshl_b32 s66, s{S_P}, 13')
    a.e(f's_add_u32 s66, s66, {WS_AOUT}')
    a.e('v_lshl_add_u32 v4, v0, 4, s66')
    a.e('v_add_u32 v5, 4096, v4')
    a.e(f'buffer_store_dwordx4 v[216:219], v4, s[{S_WS}:{S_WS+3}], 0 offen sc1')
    a.e(f'buffer_store_dwordx4 v[216:219], v5, s[{S_WS}:{S_WS+3}], 0 offen sc1')


def clear_g(a):
    g_store_addr(a, 4)
    a.e('v_add_u32 v5, 7168, v4')
    a.e(f'buffer_store_dwordx4 v[216:219], v4, s[{S_WS}:{S_WS+3}], 0 offen sc1')
    a.e(f'buffer_store_dwordx4 v[216:219], v5, s[{S_WS}:{S_WS+3}], 0 offen sc1')


def epoch_update(a):
    le = a.lab('noep')
    a.e('s_cmp_lg_u32 s2, 0')
    a.e(f's_cbranch_scc1 {le}')
    a.e(f'v_mov_b32 v2, {WS_EPOCH}')
    a.e(f'v_mov_b32 v3, s{S_TAG}')
    a.e('s_mov_b64 exec, 1')
    a.e(f'buffer_store_dword v3, v2, s[{S_WS}:{S_WS+3}], 0 offen sc1')
    a.e('s_mov_b64 exec, -1')
    a.e(f'{le}:')


def build_pers3():
    global PERS
    PERS = True
    a = Prog()
    name = NAME + '_kernel'

    def body(a, lend):
        lnc1, lnc2, lnc3 = a.lab('noconv'), a.lab('noconv'), a.lab('noconv')
        a.e(f's_add_u32 s66, s{P_WS}, {WS_EPOCH}')
        a.e(f's_addc_u32 s67, s{P_WS+1}, 0')
        a.e('s_load_dword s99, s[66:67], 0')
        load_xrows(a, list(range(8, 16)))
        for r in range(216, 220):
            a.e(f'v_mov_b32 v{r}, -1')
        a.e(f's_cmp_ge_u32 s{S_LOC}, 28')
        a.e(f's_cbranch_scc1 {lnc1}')
        kgen_loads(a)
        load_gather_table(a, 'ktab_idx')
        code_prefetch(a, name, 'kcode_end')
        clear_hh(a)
        clear_aout(a)
        a.e('s_waitcnt lgkmcnt(0)')
        a.e(f's_add_u32 s{S_TAG}, s99, 0x9e3779b9')
        phase_p1(a, wait_x=16, wait_pub=0)
        stamp(a, 40)
        conv_loads(a)
        stamp(a, 41)
        w_prefetch(a, P_W1, W1BYTES, F * 2, S_I1, 512)
        stamp(a, 4)
        phase_kgen(a)
        stamp(a, 8)
        h1_poll(a)
        stamp(a, 9)
        epoch_update(a)
        clear_g(a)
        w_prefetch(a, P_W2, W2BYTES, L * 2, S_I2, 448)
        phase_norm(a)
        stamp(a, 10)
        phase_conv(a)
        stamp(a, 12)
        a.e('s_barrier')
        gemm_wload(a, 8, F * 2, P_W1, W1BYTES, S_I1, 512, 0)
        stamp(a, 13)
        a.e(f's_branch {lnc2}')
        a.e(f'{lnc1}:')
        code_prefetch(a, name, 'kcode_end')
        clear_hh(a)
        a.e('s_waitcnt lgkmcnt(0)')
        a.e(f's_add_u32 s{S_TAG}, s99, 0x9e3779b9')
        phase_p1(a, wait_x=4, wait_pub=0)
        h1_poll(a)
        w_prefetch(a, P_W2, W2BYTES, L * 2, S_I2, 448)
        a.e(f'{lnc2}:')
        phase_p4(a)
        stamp(a, 20)
        a.e(f's_cmp_ge_u32 s{S_LOC}, 28')
        a.e(f's_cbranch_scc1 {lnc3}')
        gemm_wload(a, 16, F * 2, P_W1, W1BYTES, S_I1, 512, 0, k0=8)
        stamp(a, 21)
        gemm_poll_main(a, WS_HH, 64, 16, True, 22)
        stamp(a, 23)
        gemm1_epilogue(a)
        stamp(a, 25)
        a.e('s_barrier')
        a.e(f'{lnc3}:')
        gemm_wload(a, 14, L * 2, P_W2, W2BYTES, S_I2, 448, 0)
        stamp(a, 30)
        gemm_poll_main(a, WS_G, 56, 14, False, 31)
        stamp(a, 32)
        gemm2_epilogue(a)

    kernel(a, name, body)
    a.raw('kcode_end:')
    emit_gather_table(a, 'ktab_idx')
    nn = a.fast_insert_nops()
    head = f'; @launch grid=(256,1,1) block=(256,1,1) lds={LDS_BYTES}\n'
    head += '.amdgcn_target "amdgcn-amd-amdhsa--gfx950"\n.text\n'
    tail = '.section .rodata,"a"\n.p2align 6\n' + descriptor(name)
    sys.stderr.write(f'instructions: {a.count()}, nops inserted: {nn}\n')
    return head + a.text() + tail


def w_setup(a):
    srd(a, S_W1, P_W1, W1BYTES)
    srd(a, S_W2, P_W2, W2BYTES)
    a.e('v_lshrrev_b32 v4, 3, v1')
    a.e('v_bfe_u32 v5, v1, 4, 1')
    a.e('v_lshlrev_b32 v5, 1, v5')
    a.e('v_and_b32 v6, 7, v1')
    a.e('v_xor_b32 v6, v6, v5')
    a.e('v_xor_b32 v7, 4, v6')
    for vd, rowbytes, tile, rows in ((V_D1, F * 2, S_I1, 512), (V_D2, L * 2, S_I2, 448)):
        a.e(f's_mov_b32 s66, {rowbytes}')
        a.e('v_mul_lo_u32 v5, v4, s66')
        a.e(f's_mul_i32 s67, s{S_W}, {rows*rowbytes}')
        a.e(f's_lshl_b32 s66, s{tile}, 7')
        a.e('s_add_u32 s67, s67, s66')
        a.e('v_add_u32 v5, s67, v5')
        a.e(f'v_lshl_add_u32 v{vd}, v6, 4, v5')
        a.e(f'v_lshl_add_u32 v{vd+1}, v7, 4, v5')
    a.e('v_lshrrev_b32 v4, 4, v1')
    a.e('v_bfe_u32 v5, v1, 2, 2')
    a.e('v_lshl_add_u32 v5, v4, 3, v5')
    a.e('v_lshlrev_b32 v5, 7, v5')
    a.e('v_and_b32 v6, 1, v1')
    a.e('v_lshl_add_u32 v5, v6, 3, v5')
    a.e('v_bfe_u32 v6, v1, 1, 1')
    a.e('v_lshl_add_u32 v5, v6, 4, v5')
    a.e('v_bfe_u32 v6, v1, 3, 1')
    a.e('v_and_b32 v4, 1, v4')
    a.e('v_lshl_add_u32 v6, v4, 1, v6')
    a.e(f's_lshl_b32 s{S_SA}, s{S_W}, 14')
    a.e(f's_add_u32 s{S_SA}, s{S_SA}, {L_WA}')
    a.e(f's_mul_i32 s{S_SB}, s{S_W}, 20480')
    a.e(f's_add_u32 s{S_SB}, s{S_SB}, {L_WB}')
    for mu in range(4):
        a.e(f'v_xor_b32 v4, {mu}, v6')
        a.e('v_lshl_add_u32 v4, v4, 5, v5')
        a.e(f'v_add_u32 v{V_TA+mu}, s{S_SA}, v4')
        a.e(f'v_add_u32 v{V_TB+mu}, s{S_SB}, v4')


def slot(name):
    return (S_SA, V_TA, int(name[1])) if name[0] == 'A' else (S_SB, V_TB, int(name[1]))


def w_dma(a, mat, slab, sl):
    sb, _, si = slot(sl)
    vd, srd_, rowbytes = (V_D1, S_W1, F * 2) if mat == 1 else (V_D2, S_W2, L * 2)
    for i in range(4):
        a.e(f's_add_u32 m0, s{sb}, {si*4096 + i*1024}')
        a.e(f's_mov_b32 s70, {(32*slab + 8*i)*rowbytes}')
        a.e(f'buffer_load_dwordx4 v{vd + (i & 1)}, s[{srd_}:{srd_+3}], s70 offen lds')


def w_dma1(a, mat, slab, sl, i):
    sb, _, si = slot(sl)
    vd, srd_, rowbytes = (V_D1, S_W1, F * 2) if mat == 1 else (V_D2, S_W2, L * 2)
    a.e(f's_add_u32 m0, s{sb}, {si*4096 + i*1024}')
    a.e(f's_mov_b32 s70, {(32*slab + 8*i)*rowbytes}')
    a.e(f'buffer_load_dwordx4 v{vd + (i & 1)}, s[{srd_}:{srd_+3}], s70 offen lds')


def w_tr(a, slab, sl):
    _, vt, si = slot(sl)
    for mu in range(4):
        r = (slab * 4 + mu) * 4
        a.e(f'ds_read_b64_tr_b16 a[{r}:{r+1}], v{vt+mu} offset:{si*4096}')
        a.e(f'ds_read_b64_tr_b16 a[{r+2}:{r+3}], v{vt+mu} offset:{si*4096 + 512}')


AS = ['A0', 'A1', 'A2', 'A3']
BS = ['B0', 'B1', 'B2', 'B3', 'B4']


def build_pers4():
    global PERS
    PERS = True
    a = Prog()
    name = NAME + '_kernel'

    def body(a, lend):
        lnc1, lnc2, lnc3, lnc4, lnc5, lnc6 = [a.lab('noconv') for _ in range(6)]

        def if_conv_skip(l):
            a.e(f's_cmp_ge_u32 s{S_LOC}, 28')
            a.e(f's_cbranch_scc1 {l}')

        a.e(f's_add_u32 s66, s{P_WS}, {WS_EPOCH}')
        a.e(f's_addc_u32 s67, s{P_WS+1}, 0')
        a.e('s_load_dword s99, s[66:67], 0')
        load_xrows(a, list(range(8, 16)))
        for r in range(216, 220):
            a.e(f'v_mov_b32 v{r}, -1')
        if_conv_skip(lnc1)
        kgen_loads(a)
        load_gather_table(a, 'ktab_idx')
        code_prefetch(a, name, 'kcode_end')
        clear_hh(a)
        clear_aout(a)
        a.e('s_barrier')
        col_addr(a)
        for j in range(4):
            col_load(a, j)
        w_setup(a)
        a.e('s_waitcnt lgkmcnt(0)')
        a.e(f's_add_u32 s{S_TAG}, s99, 0x9e3779b9')
        phase_p1(a, wait_x=20, wait_pub=4)
        stamp(a, 4)
        hk = [lambda j=j: col_load(a, j) for j in range(4, 8)]
        phase_kgen(a, hk[:2], hk[2:])
        stamp(a, 8)
        h1_poll(a)
        stamp(a, 9)
        epoch_update(a)
        clear_g(a)
        for k in range(4):
            w_dma(a, 1, k, AS[k])
        phase_norm(a)
        stamp(a, 10)
        phase_conv(a)
        stamp(a, 12)
        for k in range(4):
            w_tr(a, k, AS[k])
        a.e('s_waitcnt lgkmcnt(0)')
        a.e('s_barrier')
        for k in range(4, 8):
            w_dma(a, 1, k, AS[k - 4])
        for k in range(8, 13):
            w_dma(a, 1, k, BS[k - 8])
        stamp(a, 13)
        a.e(f's_branch {lnc2}')
        a.e(f'{lnc1}:')
        code_prefetch(a, name, 'kcode_end')
        clear_hh(a)
        w_setup(a)
        a.e('s_waitcnt lgkmcnt(0)')
        a.e(f's_add_u32 s{S_TAG}, s99, 0x9e3779b9')
        phase_p1(a, wait_x=4, wait_pub=0)
        h1_poll(a)
        a.e(f'{lnc2}:')
        phase_p4(a)
        stamp(a, 20)
        if_conv_skip(lnc3)
        for k in range(4, 8):
            w_tr(a, k, AS[k - 4])
        for k in range(8, 13):
            w_tr(a, k, BS[k - 8])
        a.e('s_waitcnt lgkmcnt(0)')
        for k in range(13, 16):
            w_dma(a, 1, k, AS[k - 13])
        a.e(f'{lnc3}:')
        for k in range(5):
            w_dma(a, 2, k, BS[k])
        if_conv_skip(lnc4)
        a.e('s_waitcnt vmcnt(20)')
        for k in range(13, 16):
            w_tr(a, k, AS[k - 13])
        a.e('s_waitcnt lgkmcnt(0)')
        stamp(a, 21)
        gemm_poll_main(a, WS_HH, 64, 16, True, 22)
        stamp(a, 23)
        a.e(f'{lnc4}:')
        a.e('s_waitcnt vmcnt(0)')
        for k in range(5):
            w_tr(a, k, BS[k])
        a.e('s_waitcnt lgkmcnt(0)')
        for k in range(5, 10):
            w_dma(a, 2, k, BS[k - 5])
        if_conv_skip(lnc5)
        a.e('s_barrier')
        gemm1_epilogue(a, lambda: [w_dma(a, 2, k, AS[k - 10]) for k in range(10, 14)])
        stamp(a, 25)
        a.e('s_waitcnt vmcnt(2)')
        a.e(f's_branch {lnc6}')
        a.e(f'{lnc5}:')
        for k in range(10, 14):
            w_dma(a, 2, k, AS[k - 10])
        a.e('s_waitcnt vmcnt(0)')
        a.e(f'{lnc6}:')
        for k in range(5, 10):
            w_tr(a, k, BS[k - 5])
        for k in range(10, 14):
            w_tr(a, k, AS[k - 10])
        a.e('s_waitcnt lgkmcnt(0)')
        stamp(a, 30)
        gemm_poll_main(a, WS_G, 56, 14, False, 31)
        stamp(a, 32)
        a.e('s_barrier')
        gemm2_epilogue(a)

    kernel(a, name, body)
    a.raw('kcode_end:')
    emit_gather_table(a, 'ktab_idx')
    nn = a.fast_insert_nops()
    head = f'; @launch grid=(256,1,1) block=(256,1,1) lds={LDS_BYTES}\n'
    head += '.amdgcn_target "amdgcn-amd-amdhsa--gfx950"\n.text\n'
    tail = '.section .rodata,"a"\n.p2align 6\n' + descriptor(name)
    sys.stderr.write(f'instructions: {a.count()}, nops inserted: {nn}\n')
    return head + a.text() + tail


def p1_publish_xn(a):
    bcast_stats(a, 16)
    for j in range(8):
        a.e(f'v_mov_b32 v{48+j}, v{8+j}')
    for j in range(8):
        d = 64 + 2 * j
        norm_tok(a, j, 48 + j, d)
        a.e(f'v_cvt_pk_bf16_f32 v{48+j}, v{d}, v{d+1}')
    for j in range(8):
        d = 64 + 2 * j
        a.e(f'v_lshlrev_b32 v{d}, 16, v{48+j}')
        a.e(f'v_and_b32 v{d+1}, 0xffff0000, v{48+j}')
    for i in range(4):
        a.e(f'v_cvt_pk_f16_f32 v{80+i}, v{64+4*i}, v{66+4*i}')
        a.e(f'v_cvt_pk_f16_f32 v{84+i}, v{65+4*i}, v{67+4*i}')
    a.e(f's_mul_i32 s66, s{S_W}, {56*8192}')
    a.e(f's_lshl_b32 s67, s{S_B}, 4')
    a.e('s_add_u32 s66, s66, s67')
    a.e(f's_add_u32 s66, s66, {WS_XN}')
    a.e('v_lshl_add_u32 v4, v1, 13, s66')
    a.e(f'v_mov_b32 v5, {OOB}')
    a.e('v_cmp_gt_u32 vcc, 56, v1')
    a.e('v_cndmask_b32 v4, v5, v4, vcc')
    a.e('v_add_u32 v5, 4096, v4')
    a.e(f'buffer_store_dwordx4 v[80:83], v4, s[{S_WS}:{S_WS+3}], 0 offen sc1')
    a.e(f'buffer_store_dwordx4 v[84:87], v5, s[{S_WS}:{S_WS+3}], 0 offen sc1')


def publish_flag(a):
    a.e('s_waitcnt vmcnt(0)')
    a.e('s_barrier')
    l = a.lab('noflag')
    a.e(f's_cmp_lg_u32 s{S_W}, 0')
    a.e(f's_cbranch_scc1 {l}')
    a.e(f's_lshl_b32 s66, s{S_B}, 6')
    a.e(f's_add_u32 s66, s66, {WS_FLAG}')
    a.e('v_mov_b32 v2, s66')
    a.e(f'v_mov_b32 v3, s{S_TAG}')
    a.e('s_mov_b64 exec, 1')
    a.e(f'buffer_store_dword v3, v2, s[{S_WS}:{S_WS+3}], 0 offen sc1')
    a.e('s_mov_b64 exec, -1')
    a.e(f'{l}:')


def flag_poll(a):
    lp, ld = a.lab('fpoll'), a.lab('fdone')
    a.e(f'v_lshlrev_b32 v2, 6, v0')
    a.e(f'v_add_u32 v2, {WS_FLAG}, v2')
    a.e(f's_mov_b32 s{S_SPIN}, 0')
    a.e(f'{lp}:')
    a.e(f'buffer_load_dword v3, v2, s[{S_WS}:{S_WS+3}], 0 offen sc1')
    a.e('s_waitcnt vmcnt(0)')
    a.e(f'v_cmp_ne_u32 vcc, s{S_TAG}, v3')
    a.e(f's_cbranch_vccz {ld}')
    a.e(f's_add_u32 s{S_SPIN}, s{S_SPIN}, 1')
    a.e(f's_cmp_lt_u32 s{S_SPIN}, {SPIN_MAX}')
    a.e(f's_cbranch_scc1 {lp}')
    a.e(f'{ld}:')


def load_u(a):
    a.e(f's_lshl_b32 s66, s{S_P}, 13')
    a.e(f's_add_u32 s66, s66, {WS_XN}')
    a.e('v_lshl_add_u32 v2, v0, 4, s66')
    a.e('v_add_u32 v3, 4096, v2')
    a.e(f'buffer_load_dwordx4 v[96:99], v2, s[{S_WS}:{S_WS+3}], 0 offen sc1')
    a.e(f'buffer_load_dwordx4 v[100:103], v3, s[{S_WS}:{S_WS+3}], 0 offen sc1')


def store_u(a, vm):
    a.e('v_lshlrev_b32 v2, 4, v0')
    a.e(f's_waitcnt vmcnt({vm})')
    a.e(f'ds_write_b128 v2, v[96:99] offset:{L_U + 512}')
    a.e(f'ds_write_b128 v2, v[100:103] offset:{L_U + UCH + 512}')
    a.e('s_waitcnt lgkmcnt(0)')
    a.e('s_barrier')


def l2_stream(a, srd_, rowbytes, col_sreg_expr, lanes, row0_expr, nrows, rowstep):
    col_sreg_expr()
    row0_expr()
    a.e(f's_mul_i32 s67, s67, {rowbytes}')
    a.e('s_add_u32 s70, s66, s67')
    a.e('v_lshlrev_b32 v4, 4, v1')
    if lanes < 64:
        a.e(f'v_mov_b32 v5, {OOB}')
        a.e(f'v_cmp_gt_u32 vcc, {lanes}, v1')
        a.e('v_cndmask_b32 v4, v5, v4, vcc')
    l = a.lab('l2s')
    a.e(f's_mov_b32 s71, {nrows // 4}')
    a.e(f'{l}:')
    for i in range(4):
        a.e(f'buffer_load_dwordx4 v[220:223], v4, s[{srd_}:{srd_+3}], s70 offen')
        a.e(f's_add_u32 s70, s70, {rowstep*rowbytes}')
    a.e('s_waitcnt vmcnt(40)')
    a.e('s_sub_u32 s71, s71, 1')
    a.e('s_cmp_lg_u32 s71, 0')
    a.e(f's_cbranch_scc1 {l}')


def helper_w1(a):
    def col():
        a.e(f's_lshr_b32 s66, s{S_XCD}, 1')
        a.e('s_mul_i32 s66, s66, 896')

    def row():
        a.e(f's_sub_u32 s67, s{S_LOC}, 28')
        a.e('s_lshl_b32 s67, s67, 9')
        a.e(f's_add_u32 s67, s67, s{S_W}')
    l2_stream(a, S_W1, F * 2, col, 56, row, 128, 4)


def helper_w2(a, first, count):
    def col():
        a.e(f's_lshr_b32 s66, s{S_XCD}, 1')
        a.e('s_lshl_b32 s66, s66, 10')

    def row():
        a.e(f's_sub_u32 s67, s{S_LOC}, 28')
        a.e('s_mul_i32 s67, s67, 448')
        a.e(f's_add_u32 s67, s67, s{S_W}')
        a.e(f's_add_u32 s67, s67, {first}')
    l2_stream(a, S_W2, L * 2, col, 64, row, count // 4, 4)


def quarter_prefetch(a, mat):
    srd_, rowbytes, tile, rows_q, n = (S_W1, F * 2, S_I1, 512, 16) if mat == 1 else (S_W2, L * 2, S_I2, 448, 14)
    a.e(f's_and_b32 s66, s{S_LOC}, 3')
    a.e(f's_mul_i32 s66, s66, {rows_q}')
    a.e(f's_mul_i32 s67, s{S_W}, {rows_q // 4}')
    a.e('s_add_u32 s66, s66, s67')
    a.e(f's_mul_i32 s66, s66, {rowbytes}')
    a.e(f's_lshl_b32 s67, s{tile}, 7')
    a.e('s_add_u32 s70, s66, s67')
    a.e('v_lshrrev_b32 v4, 3, v1')
    a.e(f's_mov_b32 s67, {rowbytes}')
    a.e('v_mul_lo_u32 v4, v4, s67')
    a.e('v_and_b32 v5, 7, v1')
    a.e('v_lshl_add_u32 v4, v5, 4, v4')
    l = a.lab('qpf')
    a.e(f's_mov_b32 s71, {n // 2}')
    a.e(f'{l}:')
    for i in range(2):
        a.e(f'buffer_load_dwordx4 v[220:223], v4, s[{srd_}:{srd_+3}], s70 offen')
        a.e(f's_add_u32 s70, s70, {8*rowbytes}')
    a.e('s_sub_u32 s71, s71, 1')
    a.e('s_cmp_lg_u32 s71, 0')
    a.e(f's_cbranch_scc1 {l}')


def build_pers5():
    global PERS
    PERS = True
    a = Prog()
    name = NAME + '_kernel'

    def body(a, lend):
        lnc1, lnc2, lnc3, lnc4, lnc5, lnc6 = [a.lab('noconv') for _ in range(6)]

        def if_conv_skip(l):
            a.e(f's_cmp_ge_u32 s{S_LOC}, 28')
            a.e(f's_cbranch_scc1 {l}')

        a.e(f's_add_u32 s66, s{P_WS}, {WS_EPOCH}')
        a.e(f's_addc_u32 s67, s{P_WS+1}, 0')
        a.e('s_load_dword s99, s[66:67], 0')
        load_xrows(a, list(range(8, 16)))
        for r in range(216, 220):
            a.e(f'v_mov_b32 v{r}, -1')
        if_conv_skip(lnc1)
        kgen_loads(a)
        load_gather_table(a, 'ktab_idx')
        clear_hh(a)
        clear_aout(a)
        w_setup(a)
        quarter_prefetch(a, 1)
        a.e('s_waitcnt lgkmcnt(0)')
        a.e(f's_add_u32 s{S_TAG}, s99, 0x9e3779b9')
        a.e('s_waitcnt vmcnt(30)')
        stamp(a, 2)
        ln_stats(a, list(range(8, 16)), 16, L_RED0, 4)
        stamp(a, 3)
        p1_publish_xn(a)
        stamp(a, 4)
        a.e('s_waitcnt vmcnt(24)')
        kgen_channel(a, 0, DK0)
        publish_flag(a)
        quarter_prefetch(a, 2)
        stamp(a, 40)
        phase_kgen(a, skip0=True)
        stamp(a, 8)
        flag_poll(a)
        a.e('s_barrier')
        stamp(a, 9)
        load_u(a)
        epoch_update(a)
        clear_g(a)
        store_u(a, 2)
        stamp(a, 10)
        hk = []
        for k in range(4):
            for i in range(4):
                hk.append(lambda k=k, i=i: w_dma1(a, 1, k, AS[k], i))
        phase_conv(a, hk)
        stamp(a, 12)
        for k in range(4):
            w_tr(a, k, AS[k])
        a.e('s_waitcnt lgkmcnt(0)')
        a.e('s_barrier')
        for k in range(4, 8):
            w_dma(a, 1, k, AS[k - 4])
        for k in range(8, 13):
            w_dma(a, 1, k, BS[k - 8])
        stamp(a, 13)
        a.e(f's_branch {lnc2}')
        a.e(f'{lnc1}:')
        clear_hh(a)
        code_prefetch(a, name, 'kcode_end')
        w_setup(a)
        a.e('s_waitcnt lgkmcnt(0)')
        a.e(f's_add_u32 s{S_TAG}, s99, 0x9e3779b9')
        a.e('s_waitcnt vmcnt(4)')
        ln_stats(a, list(range(8, 16)), 16, L_RED0, 4)
        p1_publish_xn(a)
        publish_flag(a)
        quarter_prefetch(a, 2)
        stamp(a, 41)
        flag_poll(a)
        a.e('s_barrier')
        stamp(a, 42)
        a.e(f'{lnc2}:')
        phase_p4(a)
        stamp(a, 20)
        if_conv_skip(lnc3)
        for k in range(4, 8):
            w_tr(a, k, AS[k - 4])
        for k in range(8, 13):
            w_tr(a, k, BS[k - 8])
        a.e('s_waitcnt lgkmcnt(0)')
        for k in range(13, 16):
            w_dma(a, 1, k, AS[k - 13])
        for k in range(5):
            w_dma(a, 2, k, BS[k])
        a.e('s_waitcnt vmcnt(20)')
        for k in range(13, 16):
            w_tr(a, k, AS[k - 13])
        a.e('s_waitcnt lgkmcnt(0)')
        stamp(a, 21)
        gemm_poll_main(a, WS_HH, 64, 16, True, 22)
        stamp(a, 23)
        a.e('s_barrier')
        gemm1_epilogue(a)
        stamp(a, 25)
        for k in range(5):
            w_tr(a, k, BS[k])
        a.e('s_waitcnt lgkmcnt(0)')
        a.e('s_barrier')
        a.e(f's_branch {lnc5}')
        a.e(f'{lnc3}:')
        for k in range(5):
            w_dma(a, 2, k, BS[k])
        a.e('s_waitcnt vmcnt(0)')
        for k in range(5):
            w_tr(a, k, BS[k])
        a.e('s_waitcnt lgkmcnt(0)')
        a.e(f'{lnc5}:')
        for k in range(5, 10):
            w_dma(a, 2, k, BS[k - 5])
        for k in range(10, 14):
            w_dma(a, 2, k, AS[k - 10])
        a.e('s_waitcnt vmcnt(16)')
        for k in range(5, 10):
            w_tr(a, k, BS[k - 5])
        a.e('s_waitcnt vmcnt(0)')
        for k in range(10, 14):
            w_tr(a, k, AS[k - 10])
        a.e('s_waitcnt lgkmcnt(0)')
        stamp(a, 30)
        gemm_poll_main(a, WS_G, 56, 14, False, 31)
        stamp(a, 32)
        a.e('s_barrier')
        gemm2_epilogue(a)

    kernel(a, name, body)
    a.raw('kcode_end:')
    emit_gather_table(a, 'ktab_idx')
    nn = a.fast_insert_nops()
    head = f'; @launch grid=(256,1,1) block=(256,1,1) lds={LDS_BYTES}\n'
    head += '.amdgcn_target "amdgcn-amd-amdhsa--gfx950"\n.text\n'
    tail = '.section .rodata,"a"\n.p2align 6\n' + descriptor(name)
    sys.stderr.write(f'instructions: {a.count()}, nops inserted: {nn}\n')
    return head + a.text() + tail


if __name__ == '__main__':
    out = sys.argv[1] if len(sys.argv) > 1 else 'multi.s'
    STAMPS = 'stamps' in sys.argv or 'dbg' in sys.argv
    if 'dbg' in sys.argv:
        DBGSEL = [0, 1, 2, 4, 8, 9, 12, 13, 14, 20, 21, 23, 25, 30, 32, 63]
    open(out, 'w').write(build_pers5() if 'pers5' in sys.argv else build_pers4() if 'pers4' in sys.argv else build_pers3() if 'pers3' in sys.argv else build_pers() if 'pers' in sys.argv else build_multi())
```

```python
import re

REG_RE = re.compile(r'^(-|abs\()?\|?([vas])(?:\[(\d+):(\d+)\]|(\d+))\|?\)?$')


def parse_reg(tok):
    tok = tok.strip()
    if tok in ('vcc',):
        return [('s', 'vcc')]
    if tok in ('vcc_lo', 'vcc_hi'):
        return [('s', 'vcc')]
    if tok in ('exec', 'exec_lo', 'exec_hi'):
        return [('s', 'exec')]
    if tok == 'm0':
        return [('s', 'm0')]
    m = REG_RE.match(tok)
    if not m:
        return []
    k = m.group(2)
    if m.group(3) is not None:
        return [(k, i) for i in range(int(m.group(3)), int(m.group(4)) + 1)]
    return [(k, int(m.group(5)))]


TRANS = ('v_exp_f32', 'v_log_f32', 'v_rcp_f32', 'v_rsq_f32', 'v_sqrt_f32', 'v_sin_f32', 'v_cos_f32',
         'v_rcp_iflag_f32', 'v_exp_f16', 'v_rcp_f16')


class Ins:
    __slots__ = ('text', 'op', 'rd', 'wr', 'kind', 'ops', 'store_data', 'dpp', 'srcc', 'ab', 'passes', 'is_trans',
                 'label', 'target', 'lds_dma', 'sdwa_dst')

    def __init__(self, text):
        self.text = text
        self.label = None
        self.target = None
        self.rd = []
        self.wr = []
        self.store_data = []
        self.dpp = False
        self.srcc = []
        self.ab = []
        self.passes = 0
        self.is_trans = False
        self.lds_dma = False
        self.sdwa_dst = False
        t = text.split(';')[0].split('//')[0].strip()
        if not t:
            self.kind = 'nop0'
            self.op = ''
            return
        if t.endswith(':'):
            self.kind = 'label'
            self.label = t[:-1]
            self.op = ''
            return
        if t.startswith('.'):
            self.kind = 'dir'
            self.op = t.split()[0]
            return
        sp = t.split(None, 1)
        op = sp[0]
        self.op = op
        rest = sp[1] if len(sp) > 1 else ''
        ops = []
        depth = 0
        cur = ''
        for ch in rest:
            if ch == '[':
                depth += 1
            if ch == ']':
                depth -= 1
            if ch == ',' and depth == 0:
                ops.append(cur.strip())
                cur = ''
            else:
                cur += ch
        if cur.strip():
            ops.append(cur.strip())
        mods = ''
        if ops:
            last = ops[-1]
            depth = 0
            cut = None
            for i, ch in enumerate(last):
                if ch == '[':
                    depth += 1
                if ch == ']':
                    depth -= 1
                if ch in ' \t' and depth == 0:
                    cut = i
                    break
            if cut is not None:
                mods = last[cut:]
                ops[-1] = last[:cut]
        self.ops = ops
        R = [parse_reg(o) for o in ops]
        flat = lambda L: [x for l in L for x in l]
        base = op.replace('_e32', '').replace('_e64', '').replace('_dpp', '').replace('_sdwa', '')
        if op.startswith('v_mfma') or op.startswith('v_smfmac'):
            self.kind = 'mfma'
            self.wr = R[0]
            self.ab = R[1] + R[2]
            self.srcc = R[3] if len(R) > 3 else []
            self.rd = self.ab + self.srcc
            if '16x16x32' in op or '16x16x16' in op:
                self.passes = 4
            elif '32x32x16' in op or '32x32x8' in op:
                self.passes = 8
            else:
                self.passes = 16
        elif op.startswith('v_'):
            self.kind = 'valu'
            self.is_trans = base in TRANS
            self.dpp = ('_dpp' in op) or any(k in mods for k in ('row_', 'quad_perm', 'wave_'))
            if '_sdwa' in op and 'dst_sel' in mods and 'dst_sel:DWORD' not in mods:
                self.sdwa_dst = True
            if base.startswith('v_cmpx'):
                self.wr = R[0] + [('s', 'exec')]
                self.rd = flat(R[1:])
            elif base.startswith('v_cmp'):
                self.wr = R[0]
                self.rd = flat(R[1:])
            elif base in ('v_permlane32_swap_b32', 'v_permlane16_swap_b32'):
                self.wr = R[0] + R[1]
                self.rd = R[0] + R[1]
                self.kind = 'permlane'
            elif base in ('v_readlane_b32', 'v_readfirstlane_b32'):
                self.wr = R[0]
                self.rd = flat(R[1:])
                self.kind = 'readlane'
            elif base == 'v_writelane_b32':
                self.wr = R[0]
                self.rd = flat(R)
            elif base in ('v_add_co_u32', 'v_sub_co_u32', 'v_subrev_co_u32', 'v_addc_co_u32', 'v_subb_co_u32'):
                self.wr = R[0] + R[1]
                self.rd = flat(R[2:])
            elif base in ('v_fmac_f32', 'v_dot2c_f32_bf16', 'v_pk_fmac_f16', 'v_mac_f32'):
                self.wr = R[0]
                self.rd = flat(R)
            elif base == 'v_cndmask_b32':
                self.wr = R[0]
                self.rd = flat(R[1:])
                if len(R) < 4:
                    self.rd += [('s', 'vcc')]
            else:
                self.wr = R[0]
                self.rd = flat(R[1:])
                if self.dpp or self.sdwa_dst:
                    self.rd += R[0]
        elif op.startswith('ds_'):
            self.kind = 'ds'
            if op.startswith('ds_read') or op.startswith('ds_bpermute') or op.startswith('ds_permute') or op.startswith('ds_swizzle'):
                self.wr = R[0]
                self.rd = flat(R[1:])
                if 'd16' in op:
                    self.rd += R[0]
            else:
                self.rd = flat(R)
                self.store_data = flat(R[1:])
        elif op.startswith('buffer_') or op.startswith('global_') or op.startswith('flat_'):
            self.kind = 'vmem'
            words = mods.split()
            if op in ('buffer_wbl2', 'buffer_inv'):
                pass
            elif 'lds' in words or '_lds_' in op:
                self.lds_dma = True
                self.rd = flat(R) + [('s', 'm0')]
            elif op.startswith('buffer_load') :
                self.wr = R[0]
                self.rd = flat(R[1:])
                if 'd16' in op:
                    self.rd += R[0]
            elif op.startswith('global_load') or op.startswith('flat_load'):
                self.wr = R[0]
                self.rd = flat(R[1:])
                if 'd16' in op:
                    self.rd += R[0]
            elif op.startswith('buffer_store'):
                self.rd = flat(R)
                self.store_data = R[0]
            elif op.startswith('global_store') or op.startswith('flat_store'):
                self.rd = flat(R)
                self.store_data = R[1]
            elif 'atomic' in op:
                if 'sc0' in words:
                    self.wr = R[0]
                    self.rd = flat(R[1:]) if op.startswith('global') else flat(R)
                else:
                    self.rd = flat(R)
            else:
                raise ValueError('unknown vmem ' + text)
        elif op.startswith('s_'):
            self.kind = 'salu'
            if op in ('s_branch',) or op.startswith('s_cbranch'):
                self.kind = 'branch'
                self.target = ops[0]
                if 'vcc' in op:
                    self.rd = [('s', 'vcc')]
                if 'exec' in op:
                    self.rd = [('s', 'exec')]
            elif op == 's_nop':
                self.kind = 'snop'
            elif op in ('s_waitcnt', 's_barrier', 's_endpgm', 's_sleep', 's_setprio'):
                self.kind = 'sctl'
            elif op.startswith('s_cmp') or op.startswith('s_bitcmp'):
                self.rd = flat(R)
            elif op.startswith('s_load') or op.startswith('s_buffer_load') or op in ('s_memtime', 's_memrealtime'):
                self.kind = 'smem'
                self.wr = R[0]
                self.rd = flat(R[1:])
            else:
                self.wr = R[0] if R else []
                self.rd = flat(R[1:])
                if 'saveexec' in op:
                    self.wr = R[0] + [('s', 'exec')]
                    self.rd = flat(R[1:]) + [('s', 'exec')]
        else:
            raise ValueError('unknown instruction: ' + text)

    def states(self):
        if self.kind in ('label', 'nop0', 'dir'):
            return 0
        if self.kind == 'snop':
            return int(self.ops[0], 0) + 1
        return 1


def isv(r):
    return r[0] in ('v', 'a')


def need_wait(p, c):
    n = 0
    pw = set(p.wr)
    if not pw and not p.store_data and p.kind != 'mfma':
        return 0
    crd = set(c.rd)
    cwr = set(c.wr)
    valu_p = p.kind in ('valu', 'permlane', 'readlane')
    valu_c = c.kind in ('valu', 'permlane', 'readlane')
    if valu_p:
        vw = {r for r in pw if isv(r)}
        sw = {r for r in pw if r[0] == 's'}
        if c.kind == 'mfma' and vw & crd:
            n = max(n, 2)
        if c.kind == 'mfma' and ('s', 'exec') in sw:
            n = max(n, 4)
        if valu_c and c.dpp and (vw & crd):
            n = max(n, 2)
        if valu_c and c.dpp and ('s', 'exec') in sw:
            n = max(n, 5)
        if c.kind == 'permlane' and (vw & crd):
            n = max(n, 2)
        if c.kind == 'permlane' and ('s', 'exec') in sw:
            n = max(n, 4)
        if c.kind == 'readlane' and (vw & crd):
            n = max(n, 1)
        if c.kind == 'readlane' and ('s', 'exec') in sw:
            n = max(n, 4)
        if p.is_trans and valu_c and (vw & crd):
            n = max(n, 1)
        if p.is_trans and c.kind == 'mfma' and (vw & crd):
            n = max(n, 2)
        if p.sdwa_dst and valu_c and (vw & (crd | cwr)):
            n = max(n, 1)
        if sw:
            if c.kind == 'vmem' and (sw & crd):
                n = max(n, 5)
            if valu_c and (sw & crd):
                if c.kind == 'readlane' or c.op.startswith('v_writelane'):
                    n = max(n, 4)
                else:
                    n = max(n, 2)
            if valu_c and ('s', 'exec') in sw and not p.op.startswith('v_cmpx'):
                n = max(n, 2)
            if c.kind in ('salu', 'branch', 'smem') and (sw & crd):
                n = max(n, 4)
    if p.kind == 'salu':
        if ('s', 'm0') in pw and (c.lds_dma or c.op.startswith('s_sendmsg')):
            n = max(n, 1)
    if p.kind == 'mfma':
        d = pw
        P = p.passes
        dist_valu = {2: 5, 4: 8, 8: 12, 16: 20}[P]
        if c.kind == 'mfma':
            cs = set(c.srcc)
            if d & cs:
                if cs == d and c.passes == P:
                    n = max(n, 2 if P == 2 else 0)
                else:
                    n = max(n, {2: 4, 4: 6, 8: 10, 16: 18}[P])
            if d & set(c.ab):
                n = max(n, dist_valu)
            if (d & cwr) and not (d & cs):
                n = max(n, dist_valu)
        elif valu_c:
            if d & (crd | cwr):
                n = max(n, dist_valu)
        elif c.kind in ('vmem', 'ds'):
            if d & (crd | cwr):
                n = max(n, dist_valu)
        if valu_c and (set(p.srcc) & cwr):
            n = max(n, {2: 1, 4: 3, 8: 7, 16: 15}[P])
    if p.store_data and p.kind == 'vmem' and len(p.store_data) >= 3:
        if valu_c and (set(p.store_data) & cwr):
            n = max(n, 2)
        elif c.kind in ('vmem', 'ds', 'mfma') and (set(p.store_data) & cwr):
            n = max(n, 1)
    if p.store_data and p.kind == 'ds' and len(p.store_data) >= 3:
        if valu_c and (set(p.store_data) & cwr):
            n = max(n, 1)
    return n


MAXLOOK = 22


class Prog:
    def __init__(self):
        self.items = []
        self.nlab = 0

    def e(self, text):
        for line in text.split('\n'):
            line = line.strip()
            if line:
                self.items.append(Ins(line))

    def raw(self, text):
        i = Ins('')
        i.text = text
        i.kind = 'dir'
        self.items.append(i)

    def lab(self, prefix='L'):
        self.nlab += 1
        return '%s_%d' % (prefix, self.nlab)

    def insert_nops(self):
        changed = True
        total = 0
        while changed:
            changed = False
            items = self.items
            labels = {it.label: i for i, it in enumerate(items) if it.kind == 'label'}
            br_to = {}
            for i, it in enumerate(items):
                if it.kind == 'branch' and it.target in labels:
                    br_to.setdefault(labels[it.target], []).append(i)
            out = []
            for i, c in enumerate(items):
                if c.kind in ('label', 'nop0', 'dir', 'snop'):
                    continue
                need = self._need(i, items, br_to)
                if need > 0:
                    k = need
                    new = []
                    while k > 0:
                        m = min(k, 16)
                        new.append(Ins('s_nop %d' % (m - 1)))
                        k -= m
                    self.items = items[:i] + new + items[i:]
                    total += need
                    changed = True
                    break
        return total

    def _need(self, i, items, br_to):
        c = items[i]
        worst = 0
        stack = [(i - 1, 0)]
        seen = set()
        while stack:
            j, dist = stack.pop()
            while j >= 0 and dist < MAXLOOK:
                it = items[j]
                if (j, dist) in seen:
                    break
                seen.add((j, dist))
                if it.kind == 'label':
                    for b in br_to.get(j, []):
                        stack.append((b, dist))
                    j -= 1
                    continue
                if it.kind in ('nop0', 'dir'):
                    j -= 1
                    continue
                if it.op in ('s_branch', 's_endpgm') and j != i - 1 or (it.op in ('s_endpgm',)):
                    if it.op == 's_endpgm':
                        break
                w = need_wait(it, c)
                if w > dist:
                    worst = max(worst, w - dist)
                dist += it.states()
                j -= 1
        return worst

    def fast_insert_nops(self):
        total = 0
        while True:
            items = self.items
            labels = {it.label: i for i, it in enumerate(items) if it.kind == 'label'}
            br_to = {}
            for i, it in enumerate(items):
                if it.kind == 'branch' and it.target in labels:
                    br_to.setdefault(labels[it.target], []).append(i)
            ins = {}
            out = []
            added = 0
            any_added = False
            for i, c in enumerate(items):
                if c.kind not in ('label', 'nop0', 'dir', 'snop'):
                    need = self._need(i, items, br_to)
                    if need > 0 and not any_added:
                        ins[i] = need
                        any_added = True
                        last = i
                    elif need > 0 and i - last > 2 * MAXLOOK:
                        ins[i] = need
                        last = i
            if not ins:
                return total
            for i, c in enumerate(items):
                if i in ins:
                    k = ins[i]
                    total += k
                    while k > 0:
                        m = min(k, 16)
                        out.append(Ins('s_nop %d' % (m - 1)))
                        k -= m
                out.append(c)
            self.items = out

    def text(self):
        lines = []
        for it in self.items:
            if it.kind == 'label':
                lines.append(it.text)
            elif it.kind == 'dir':
                lines.append(it.text)
            else:
                lines.append('    ' + it.text)
        return '\n'.join(lines) + '\n'

    def count(self):
        return sum(1 for it in self.items if it.kind not in ('label', 'nop0', 'dir'))


def _sizes(self, head, tail):
    import subprocess, tempfile, os, re
    d = tempfile.mkdtemp()
    sp, op = os.path.join(d, 'x.s'), os.path.join(d, 'x.o')
    open(sp, 'w').write(head + self.text() + tail)
    r = subprocess.run(['clang', '-x', 'assembler', '-target', 'amdgcn-amd-amdhsa', '-mcpu=gfx950', '-c', sp, '-o', op],
                       capture_output=True, text=True)
    assert r.returncode == 0, r.stderr[:2000]
    o = subprocess.run(['llvm-objdump', '-d', '--mcpu=gfx950', op], capture_output=True, text=True).stdout
    sizes = []
    for line in o.split('\n'):
        m = re.search(r'// ([0-9A-F]{12}): ([0-9A-F ]+)$', line.rstrip())
        if m:
            sizes.append(4 * len(m.group(2).split()))
    return sizes


E64_OK = ('v_add_u32', 'v_sub_u32', 'v_subrev_u32', 'v_lshlrev_b32', 'v_lshrrev_b32', 'v_and_b32', 'v_or_b32', 'v_xor_b32', 'v_mov_b32',
          'v_add_f32', 'v_sub_f32', 'v_mul_f32', 'v_max_f32', 'v_min_f32', 'v_exp_f32', 'v_rcp_f32', 'v_sqrt_f32', 'v_sin_f32',
          'v_cos_f32', 'v_fract_f32', 'v_mul_u32_u24', 'v_max_u32', 'v_min_u32', 'v_not_b32', 'v_ashrrev_i32')


def align8(self, head, tail):
    sizes = _sizes(self, head, tail)
    real = [it for it in self.items if it.kind not in ('label', 'nop0', 'dir')]
    n = len(real)
    assert len(sizes) >= n, (len(sizes), n)
    sizes = sizes[:n]
    off = 0
    widened = padded = left = 0
    out = []
    idx = 0
    last4 = None
    for it in self.items:
        if it.kind in ('label', 'nop0', 'dir'):
            if it.kind == 'dir' and 'p2align' in it.text:
                off = 0
            if it.kind == 'label':
                last4 = None
            out.append(it)
            continue
        sz = sizes[idx]
        idx += 1
        if sz % 8 == 0 and off % 8 == 4:
            if last4 is not None:
                p, w = last4
                op = w.op
                out[p] = Ins(w.text.replace(op, op + '_e64', 1))
                off += 4
                widened += 1
                last4 = None
            else:
                run = 0
                j = idx - 1
                while j < n and sizes[j] % 8 == 0:
                    run += 1
                    j += 1
                if run >= 5:
                    out.append(Ins('s_nop 0'))
                    off += 4
                    padded += 1
                else:
                    left += run
        if sz == 4:
            if it.kind == 'valu' and it.op in E64_OK and not it.dpp:
                last4 = (len(out), it)
            elif off % 8 == 0:
                last4 = None if it.kind in ('branch',) else last4
        elif sz % 8 == 4:
            pass
        if sz % 8 == 0 and off % 8 == 0:
            last4 = None
        out.append(it)
        off += sz
    self.items = out
    return dict(widened=widened, padded=padded, left=left)


Prog.align8 = align8
```

```python
import sys, struct
import numpy as np
from asmlib import Prog

NAME = 'sequential_preLN__ssm_conv_s4d__mixer_token_mlp__prompt'

L, D, NM, F = 2048, 448, 256, 1792
XBYTES = L * D * 2
PBYTES = D * NM * 2
W1BYTES = L * F * 2
W2BYTES = F * L * 2

WS_STATS = 0x0
WS_FLAG = 0x4000
WS_EPOCH = 0x9000
WS_XN = 0xA00000
WS_AOUT = 0x10000
WS_H = 0x200000
WS_HH = 0x400000
WS_G = 0x600000
WS_DBG = 0x800000
WS_USED = 0x1000000
OOB = 0x40000000

L_RED0 = 0
L_RED1 = 256
L_SIG = 512
L_KT = 640
KTCH = 1600
L_U = L_KT + 2 * KTCH
UCH = 4608
L_SCR = L_U + 2 * UCH
SROW = 272
YROW = 41
SCRW = 57 * SROW
L_KC = 82688
KCOPY = 4160
KCH = 8 * KCOPY
L_CP = L_KC
LDS_BYTES = 160 * 1024
L_WA = 13056
L_WB = 78592
L_PART = 1024
PROW = 272
PARTW = 64 * PROW

S_WS = 4
S_X = 8
S_T0, S_T1, S_T2, S_T3 = 12, 16, 20, 24
S_W, S_XCD, S_LOC, S_B, S_P, S_J, S_I1, S_I2 = 28, 29, 30, 31, 32, 33, 34, 35
P_X, P_LAR, P_AI, P_CR, P_CI, P_LDT, P_DSK = 36, 38, 40, 42, 44, 46, 48
P_W1, P_B1, P_W2, P_B2, P_OUT, P_DBG, P_WS = 52, 54, 56, 58, 60, 62, 64


STAMPS = False
PERS = False
S_W1, S_W2 = 12, 16
S_SA, S_SB = 50, 51
V_D1, V_D2, V_TA, V_TB = 224, 228, 244, 248
S_RW1, S_RX1, S_RW2, S_RX2 = 38, 39, 40, 41
ROT = False
S_TAG = 96
S_SPIN = 97
S_RETRY = 98
SPIN_MAX = 4000
RETRY_MAX = 20


def SC():
    return ' sc1' if PERS else ''


KIDX = [0]


DBGSEL = None


def stamp(a, idx):
    if not STAMPS:
        return
    if DBGSEL is not None:
        if idx not in DBGSEL:
            return
        idx = DBGSEL.index(idx)
    a.e('s_memrealtime s[100:101]')
    a.e('s_waitcnt lgkmcnt(0)')
    a.e(f'v_writelane_b32 v255, s100, {idx}')


def stamp_clk(a, idx):
    if not STAMPS or DBGSEL is not None:
        return
    a.e('s_memtime s[100:101]')
    a.e('s_waitcnt lgkmcnt(0)')
    a.e(f'v_writelane_b32 v255, s100, {idx}')


def stamp_flush(a):
    if not STAMPS:
        return
    l = a.lab('nost')
    a.e(f's_cmp_lg_u32 s{S_W}, 0')
    a.e(f's_cbranch_scc1 {l}')
    if DBGSEL is not None:
        a.e('v_not_b32 v253, v255')
        a.e('v_cmp_eq_u32 vcc, 0, v1')
        a.e('v_cndmask_b32 v255, v255, v253, vcc')
        a.e('v_lshlrev_b32 v254, 2, v1')
        a.e('s_mov_b64 exec, 0xffff')
        a.e(f'global_atomic_umax v254, v255, s[{P_DBG}:{P_DBG+1}]')
        a.e('s_mov_b64 exec, -1')
        a.e(f'{l}:')
        return
    a.e(f's_lshl_b32 s66, s2, 8')
    a.e(f's_add_u32 s66, s66, {WS_DBG} + {0x10000}*{KIDX[0]}')
    a.e('v_lshl_add_u32 v254, v1, 2, s66')
    a.e(f'buffer_store_dword v255, v254, s[{S_WS}:{S_WS+3}], 0 offen')
    a.e(f'{l}:')


def f2u(x):
    return struct.unpack('<I', struct.pack('<f', x))[0]


def fx(x):
    return '0x%08x' % f2u(x)


def srd(a, dst, ptr, nbytes):
    a.e(f's_mov_b32 s{dst}, s{ptr}')
    a.e(f's_and_b32 s{dst+1}, s{ptr+1}, 0xffff')
    a.e(f's_mov_b32 s{dst+2}, {nbytes}')
    a.e(f's_mov_b32 s{dst+3}, 0x00020000')


def prologue(a, nwg, lend):
    a.e(f's_cmp_ge_u32 s2, {nwg}')
    a.e(f's_cbranch_scc1 {lend}')
    if STAMPS:
        a.e('v_mov_b32 v255, 0')
        stamp(a, 0)
        stamp_clk(a, 60)
    a.e('s_load_dwordx16 s[36:51], s[0:1], 0')
    a.e('s_load_dwordx8 s[52:59], s[0:1], 64')
    a.e('s_load_dwordx4 s[60:63], s[0:1], 96')
    a.e('s_load_dwordx2 s[64:65], s[0:1], 112')
    a.e('v_and_b32 v1, 63, v0')
    a.e('v_lshrrev_b32 v2, 6, v0')
    a.e(f's_and_b32 s{S_XCD}, s2, 7')
    a.e(f'v_readfirstlane_b32 s{S_W}, v2')
    a.e(f's_lshr_b32 s{S_LOC}, s2, 3')
    a.e(f's_lshl_b32 s{S_B}, s{S_XCD}, 5')
    a.e(f's_add_u32 s{S_B}, s{S_B}, s{S_LOC}')
    a.e(f's_mul_i32 s{S_P}, s{S_XCD}, 28')
    a.e(f's_add_u32 s{S_P}, s{S_P}, s{S_LOC}')
    a.e(f's_and_b32 s{S_J}, s{S_XCD}, 1')
    a.e(f's_lshl_b32 s{S_J}, s{S_J}, 2')
    a.e(f's_and_b32 s3, s{S_LOC}, 3')
    a.e(f's_add_u32 s{S_J}, s{S_J}, s3')
    a.e(f's_lshr_b32 s3, s{S_XCD}, 1')
    a.e(f's_lshr_b32 s66, s{S_LOC}, 2')
    a.e(f's_mul_i32 s{S_I1}, s3, 7')
    a.e(f's_add_u32 s{S_I1}, s{S_I1}, s66')
    a.e(f's_lshl_b32 s{S_I2}, s3, 3')
    a.e(f's_add_u32 s{S_I2}, s{S_I2}, s66')
    a.e('s_waitcnt lgkmcnt(0)')
    srd(a, S_WS, P_WS, WS_USED)
    srd(a, S_X, P_X, XBYTES)
    stamp(a, 1)


def reduce16(a, V):
    for i in range(8):
        a.e(f'v_permlane32_swap_b32 v{V[i]}, v{V[i+8]}')
    for i in range(8):
        a.e(f'v_add_f32 v{V[i]}, v{V[i]}, v{V[i+8]}')
    for i in range(4):
        a.e(f'v_permlane16_swap_b32 v{V[i]}, v{V[i+4]}')
    for i in range(4):
        a.e(f'v_add_f32 v{V[i]}, v{V[i]}, v{V[i+4]}')
    for i in range(2):
        a.e(f'v_add_f32_dpp v{V[i]}, v{V[i]}, v{V[i]} row_ror:8 row_mask:0xf bank_mask:0x3')
    for i in range(2):
        a.e(f'v_add_f32_dpp v{V[i]}, v{V[i+2]}, v{V[i+2]} row_ror:8 row_mask:0xf bank_mask:0xc')
    a.e(f'v_add_f32_dpp v{V[0]}, v{V[0]}, v{V[0]} row_half_mirror row_mask:0xf bank_mask:0x5')
    a.e(f'v_add_f32_dpp v{V[0]}, v{V[1]}, v{V[1]} row_half_mirror row_mask:0xf bank_mask:0xa')
    a.e(f'v_add_f32_dpp v{V[0]}, v{V[0]}, v{V[0]} quad_perm:[1,0,3,2] row_mask:0xf bank_mask:0xf')
    a.e(f'v_add_f32_dpp v{V[0]}, v{V[0]}, v{V[0]} quad_perm:[2,3,0,1] row_mask:0xf bank_mask:0xf')


def ln_stats(a, X, T, red, vt):
    a.e('s_mov_b32 s66, 0x3f803f80')
    for j in range(8):
        a.e(f'v_dot2_f32_bf16 v{T+j}, v{X[j]}, s66, 0')
        a.e(f'v_dot2_f32_bf16 v{T+8+j}, v{X[j]}, v{X[j]}, 0')
    reduce16(a, [T + i for i in range(16)])
    a.e(f'v_lshrrev_b32 v{vt}, 2, v1')
    a.e(f'v_lshlrev_b32 v{vt}, 4, v{vt}')
    a.e(f's_lshl_b32 s66, s{S_W}, 2')
    a.e(f'v_add_u32 v{vt}, s66, v{vt}')
    a.e('s_mov_b32 exec_lo, 0x11111111')
    a.e('s_mov_b32 exec_hi, 0x11111111')
    a.e(f'ds_write_b32 v{vt}, v{T} offset:{red}')
    a.e('s_mov_b64 exec, -1')
    a.e(f'v_and_b32 v{vt}, 7, v1')
    a.e(f'v_lshlrev_b32 v{vt}, 4, v{vt}')
    a.e('s_waitcnt lgkmcnt(0)')
    a.e('s_barrier')
    a.e(f'ds_read_b128 v[{T}:{T+3}], v{vt} offset:{red}')
    a.e(f'ds_read_b128 v[{T+4}:{T+7}], v{vt} offset:{red+128}')
    a.e('s_waitcnt lgkmcnt(1)')
    a.e(f'v_pk_add_f32 v[{T}:{T+1}], v[{T}:{T+1}], v[{T+2}:{T+3}]')
    a.e('s_waitcnt lgkmcnt(0)')
    a.e(f'v_pk_add_f32 v[{T+4}:{T+5}], v[{T+4}:{T+5}], v[{T+6}:{T+7}]')
    a.e(f'v_add_f32 v{T}, v{T}, v{T+1}')
    a.e(f'v_add_f32 v{T+4}, v{T+4}, v{T+5}')
    a.e(f'v_mul_f32 v{T}, {fx(1.0/448)}, v{T}')
    a.e(f'v_mul_f32 v{T+4}, {fx(1.0/448)}, v{T+4}')
    a.e(f'v_fma_f32 v{T+4}, -v{T}, v{T}, v{T+4}')
    a.e(f'v_max_f32 v{T+4}, 0, v{T+4}')
    a.e(f'v_cvt_pk_bf16_f32 v{T+4}, v{T+4}, v{T+4}')
    a.e(f'v_lshlrev_b32 v{T+4}, 16, v{T+4}')
    a.e(f'v_add_f32 v{T+4}, {fx(1e-5)}, v{T+4}')
    a.e(f'v_cvt_pk_bf16_f32 v{T+4}, v{T+4}, v{T+4}')
    a.e(f'v_lshlrev_b32 v{T+4}, 16, v{T+4}')
    a.e(f'v_sqrt_f32 v{T+4}, v{T+4}')
    a.e(f'v_cvt_pk_bf16_f32 v{T}, v{T}, v{T+4}')


def xrow_addr(a):
    a.e(f's_mul_i32 s66, s{S_W}, 224')
    a.e(f's_mul_i32 s67, s{S_B}, {8*896}')
    a.e('s_add_u32 s66, s66, s67')
    a.e('v_lshl_add_u32 v2, v1, 2, s66')
    a.e(f'v_mov_b32 v3, {OOB}')
    a.e('v_cmp_gt_u32 vcc, 56, v1')
    a.e('v_cndmask_b32 v2, v3, v2, vcc')
    a.e('v_add_u32 v3, 4480, v2')


def load_xrows(a, X):
    xrow_addr(a)
    for j in range(5):
        a.e(f'buffer_load_dword v{X[j]}, v2, s[{S_X}:{S_X+3}], 0 offen offset:{j*896}')
    for j in range(5, 8):
        a.e(f'buffer_load_dword v{X[j]}, v3, s[{S_X}:{S_X+3}], 0 offen offset:{(j-5)*896}')


def phase_p1(a, wait_x=0, wait_pub=None):
    X = list(range(8, 16))
    if not PERS:
        load_xrows(a, X)
    a.e(f's_waitcnt vmcnt({wait_x})')
    stamp(a, 2)
    ln_stats(a, X, 16, L_RED0, 4)
    stamp(a, 3)
    if wait_pub is not None:
        a.e(f's_waitcnt vmcnt({wait_pub})')
        a.e('s_barrier')
    lskip = a.lab('p1skip')
    a.e(f's_cmp_lg_u32 s{S_W}, 0')
    a.e(f's_cbranch_scc1 {lskip}')
    a.e(f's_lshl_b32 s66, s{S_B}, 6')
    a.e(f's_add_u32 s66, s66, {WS_STATS}')
    a.e('v_lshl_add_u32 v2, v1, 3, s66')
    a.e(f'v_mov_b32 v17, s{S_TAG}' if PERS else 'v_mov_b32 v17, 0')
    a.e('s_mov_b64 exec, 0xff')
    a.e(f'buffer_store_dwordx2 v[16:17], v2, s[{S_WS}:{S_WS+3}], 0 offen{SC()}')
    a.e('s_mov_b64 exec, -1')
    a.e(f'{lskip}:')


POS_OF_ROW = [0, 1, 2, 3, 4, 5, 6, 7, 128, 129, 130, 131, 132, 133, 134, 135, 256, 258, 260, 262, 384, 386, 388, 390,
              512, 516, 640, 644, 768, 772, 896, 900, 1024, 1152, 1280, 1408, 1536, 1664, 1792, 1920, 2048]


def bf16_round_int(l):
    f = np.array([l], dtype=np.float32)
    u = f.view(np.uint32)
    r = ((u + 0x7FFF + ((u >> 16) & 1)) >> 16).astype(np.uint32) << 16
    return int(r.view(np.float32)[0])


def rowcol(pos):
    if pos < 256:
        return (8 * (pos >> 7) + (pos & 7), (pos & 127) >> 3)
    if pos < 512:
        p = pos - 256
        return (16 + 4 * (p >> 7) + ((p & 7) >> 1), (p & 127) >> 3)
    if pos < 1024:
        p = pos - 512
        return (24 + 2 * (p >> 7) + ((p & 7) >> 2), (p & 127) >> 3)
    p = pos - 1024
    return (32 + (p >> 7), (p & 127) >> 3)


def gather_table():
    tab = []
    for m in range(256):
        for e in range(16):
            idx = 2047 - 8 * m - e
            if idx < 0 or e == 15:
                tab.append(1536)
            else:
                r, c = rowcol(bf16_round_int(idx))
                assert POS_OF_ROW[r] + 8 * c == bf16_round_int(idx)
                tab.append((r * 16 + c) * 2)
    return tab


def cmul(a, d, x, y, t):
    a.e(f'v_pk_mul_f32 v[{t}:{t+1}], v[{x}:{x+1}], v[{y}:{y+1}] op_sel:[0,0] op_sel_hi:[1,0]')
    a.e(f'v_pk_fma_f32 v[{d}:{d+1}], v[{x}:{x+1}], v[{y}:{y+1}], v[{t}:{t+1}] op_sel:[1,1,0] op_sel_hi:[0,1,1] neg_lo:[1,0,0]')


LOG2E_HI = 1.44268798828125
LOG2E_LO_LN2 = (1.4426950408889634 - 1.44268798828125) * 0.6931471805599453


def exp_bf16(a, d, x, t):
    a.e(f'v_mul_f32 v{t}, {fx(LOG2E_HI)}, v{x}')
    a.e(f'v_exp_f32 v{t}, v{t}')
    a.e(f'v_mul_f32 v{d}, {fx(LOG2E_LO_LN2)}, v{x}')
    a.e(f'v_fma_f32 v{d}, v{t}, v{d}, v{t}')
    a.e(f'v_cvt_pk_bf16_f32 v{d}, v{d}, v{d}')
    a.e(f'v_lshlrev_b32 v{d}, 16, v{d}')


def kgen_loads(a):
    srd(a, S_T0, P_LAR, PBYTES)
    srd(a, S_T1, P_AI, PBYTES)
    srd(a, S_T2, P_CR, PBYTES)
    srd(a, S_T3, P_CI, PBYTES)
    a.e(f's_lshl_b32 s66, s{S_P}, 10')
    a.e(f's_lshl_b32 s67, s{S_W}, 7')
    a.e('s_add_u32 s66, s66, s67')
    a.e('v_lshl_add_u32 v2, v1, 1, s66')
    for c in range(2):
        for k, s in enumerate((S_T0, S_T1, S_T2, S_T3)):
            a.e(f'buffer_load_ushort v{40+4*c+k}, v2, s[{s}:{s+3}], 0 offen offset:{512*c}')
    a.e(f's_lshl_b32 s66, s{S_P}, 2')
    a.e(f's_load_dword s68, s[{P_LDT}:{P_LDT+1}], s66')
    a.e(f's_load_dword s69, s[{P_DSK}:{P_DSK+1}], s66')


def kgen_channel(a, c, DACC, hooks=()):
    LAR, AI, CR, CI = 40 + 4 * c, 41 + 4 * c, 42 + 4 * c, 43 + 4 * c
    SIG, DT = 52 + c, 54 + c
    AL, BE = 56, 57
    Z1, Z2, Z4, Z8, Z128, Z256, Z512, Z1024 = 58, 60, 62, 64, 66, 68, 70, 72
    X0, CA, CB, CC, T0, T1 = 74, 76, 78, 80, 82, 84
    CV = [86, 87, 88, 89]
    VW = 90
    t, t2 = 92, 93
    for r in (LAR, AI, CR, CI):
        a.e(f'v_lshlrev_b32 v{r}, 16, v{r}')
    if c == 0:
        a.e(f's_lshl_b32 s66, s68, 16')
    else:
        a.e(f's_and_b32 s66, s68, 0xffff0000')
    a.e(f'v_mov_b32 v{t2}, s66')
    exp_bf16(a, DT, t2, t)
    a.e(f'v_add_f32 v{SIG}, abs(v{CR}), abs(v{CI})')
    exp_bf16(a, AL, LAR, t)
    a.e(f'v_add_f32_dpp v{SIG}, v{SIG}, v{SIG} quad_perm:[1,0,3,2] row_mask:0xf bank_mask:0xf')
    a.e(f'v_mul_f32 v{AL}, v{AL}, v{DT}')
    a.e(f'v_mul_f32 v{BE}, v{AI}, v{DT}')
    a.e(f'v_add_f32_dpp v{SIG}, v{SIG}, v{SIG} quad_perm:[2,3,0,1] row_mask:0xf bank_mask:0xf')
    a.e(f'v_mul_f32 v{AL}, {fx(-1.4426950408889634)}, v{AL}')
    a.e(f'v_mul_f32 v{BE}, {fx(0.15915494309189535)}, v{BE}')
    a.e(f'v_add_f32_dpp v{SIG}, v{SIG}, v{SIG} row_half_mirror row_mask:0xf bank_mask:0xf')
    a.e(f'v_exp_f32 v{T0}, v{AL}')
    a.e(f'v_fract_f32 v{t}, v{BE}')
    a.e(f'v_add_f32_dpp v{SIG}, v{SIG}, v{SIG} row_ror:8 row_mask:0xf bank_mask:0xf')
    a.e(f'v_cos_f32 v{Z1}, v{t}')
    a.e(f'v_sin_f32 v{Z1+1}, v{t}')
    a.e(f'v_mov_b32 v{t2}, v{SIG}')
    a.e(f'v_mul_f32 v{T1}, 0x43000000, v{AL}')
    a.e(f'v_mul_f32 v{t}, 0x43000000, v{BE}')
    a.e(f'v_permlane16_swap_b32 v{SIG}, v{t2}')
    a.e(f'v_pk_mul_f32 v[{Z1}:{Z1+1}], v[{Z1}:{Z1+1}], v[{T0}:{T0+1}] op_sel:[0,0] op_sel_hi:[1,0]')
    a.e(f'v_add_f32 v{SIG}, v{SIG}, v{t2}')
    a.e(f'v_exp_f32 v{T1}, v{T1}')
    a.e(f'v_fract_f32 v{t}, v{t}')
    a.e(f'v_mov_b32 v{t2}, v{SIG}')
    a.e(f'v_cos_f32 v{Z128}, v{t}')
    a.e(f'v_sin_f32 v{Z128+1}, v{t}')
    a.e(f'v_permlane32_swap_b32 v{SIG}, v{t2}')
    cmul(a, Z2, Z1, Z1, Z2)
    a.e(f'v_add_f32 v{SIG}, v{SIG}, v{t2}')
    a.e(f'v_pk_mul_f32 v[{Z128}:{Z128+1}], v[{Z128}:{Z128+1}], v[{T1}:{T1+1}] op_sel:[0,0] op_sel_hi:[1,0]')
    a.e(f'v_add_f32 v{SIG}, {fx(1e-30)}, v{SIG}')
    cmul(a, Z4, Z2, Z2, Z4)
    a.e(f'v_rcp_f32 v{t}, v{SIG}')
    cmul(a, Z256, Z128, Z128, Z256)
    cmul(a, Z8, Z4, Z4, Z8)
    a.e(f'v_mul_f32 v{X0}, v{CR}, v{t}')
    a.e(f'v_mul_f32 v{X0+1}, v{CI}, v{t}')
    cmul(a, Z512, Z256, Z256, Z512)
    a.e(f's_mul_i32 s66, s{S_W}, {SCRW}')
    a.e(f's_add_u32 s66, s66, {L_SCR}')
    a.e('s_mov_b32 m0, s66')
    cmul(a, Z1024, Z512, Z512, Z1024)
    cvi = [0]
    pend = []
    hooks = list(hooks)

    def flush(keep):
        while len(pend) > keep:
            cv, off = pend.pop(0)
            a.e(f'ds_write_addtid_b32 v{cv} offset:{off}')

    def put(off, r, neg):
        cv = CV[cvi[0] % 4]
        cvi[0] += 1
        a.e(f'v_cvt_pk_f16_f32 v{cv}, v{r}, {"-" if neg else ""}v{r+1}')
        flush(1)
        pend.append((cv, off))
        if hooks and cvi[0] % 12 == 6:
            hooks.pop(0)()

    def putX(row, r):
        put(row * SROW, r, True)

    def putY(b, r):
        put((YROW + b) * SROW, r, False)

    a.e(f'v_mov_b32 v{VW}, 0x00003c00')
    pend.append((VW, YROW * SROW))
    putY(1, Z8)
    ychain = {'cur': Z8, 'b': 1}
    YA, YB = CC, 94

    def ystep():
        if ychain['b'] >= 15:
            return
        d = YA if ychain['cur'] != YA else YB
        cmul(a, d, ychain['cur'], Z8, d)
        ychain['b'] += 1
        ychain['cur'] = d
        putY(ychain['b'], d)

    putX(0, X0)
    cmul(a, T0, X0, Z128, T0)
    putX(8, T0)
    cur = X0
    for j in range(1, 8):
        d = CA if cur != CA else CB
        cmul(a, d, cur, Z1, d)
        ystep()
        putX(j, d)
        cmul(a, T0, d, Z128, T0)
        putX(8 + j, T0)
        cur = d
    cmul(a, CA, X0, Z256, CA)
    ystep()
    putX(16, CA)
    cmul(a, T0, CA, Z128, T0)
    putX(20, T0)
    cur = CA
    for j in range(1, 4):
        d = CA if cur != CA else CB
        cmul(a, d, cur, Z2, d)
        ystep()
        putX(16 + j, d)
        cmul(a, T0, d, Z128, T0)
        putX(20 + j, T0)
        cur = d
    cmul(a, CA, X0, Z512, CA)
    ystep()
    putX(24, CA)
    cmul(a, CB, CA, Z4, CB)
    ystep()
    putX(25, CB)
    pa, pb = CA, CB
    na, nb = T0, T1
    for q in range(1, 4):
        cmul(a, na, pa, Z128, na)
        cmul(a, nb, pb, Z128, nb)
        ystep()
        putX(24 + 2 * q, na)
        putX(25 + 2 * q, nb)
        pa, pb, na, nb = na, nb, pa, pb
    cmul(a, CA, X0, Z1024, CA)
    putX(32, CA)
    cur = CA
    for q in range(1, 9):
        d = CA if cur != CA else CB
        cmul(a, d, cur, Z128, d)
        putX(32 + q, d)
        cur = d
    while ychain['b'] < 15:
        ystep()
    flush(0)
    while hooks:
        hooks.pop(0)()
    FA = 96
    VR = 91
    a.e(f'v_and_b32 v{t}, 15, v1')
    a.e(f'v_mul_u32_u24 v{t}, {SROW}, v{t}')
    a.e(f'v_lshrrev_b32 v{t2}, 4, v1')
    a.e(f'v_lshl_add_u32 v{t}, v{t2}, 4, v{t}')
    a.e(f'v_add_u32 v{VR}, s66, v{t}')
    for k in range(4):
        a.e(f'ds_read_b128 v[{144+4*k}:{147+4*k}], v{VR} offset:{YROW*SROW+64*k}')
        for T in range(3):
            r = FA + 16 * T + 4 * k
            a.e(f'ds_read_b128 v[{r}:{r+3}], v{VR} offset:{16*T*SROW+64*k}')
    for k in range(4):
        a.e(f's_waitcnt lgkmcnt({4*(3-k)})')
        for T in range(3):
            r = FA + 16 * T + 4 * k
            cc = '0' if k == 0 else f'v[{DACC+4*T}:{DACC+4*T+3}]'
            a.e(f'v_mfma_f32_16x16x32_f16 v[{DACC+4*T}:{DACC+4*T+3}], v[{r}:{r+3}], v[{144+4*k}:{147+4*k}], {cc}')


DK0, DK1 = 16, 28


def phase_kgen(a, hooks0=(), hooks1=(), skip0=False, skip1=False):
    if not skip0:
        kgen_channel(a, 0, DK0, hooks0)
    if not skip1:
        kgen_channel(a, 1, DK1, hooks1)
    stamp(a, 5 if PERS else 3)
    a.e(f's_mul_i32 s66, s{S_W}, {SCRW}')
    a.e(f's_add_u32 s66, s66, {L_SCR}')
    a.e('v_lshl_add_u32 v90, v1, 4, s66')
    for c, DK in ((0, DK0), (1, DK1)):
        for i in range(0, 12, 2):
            a.e(f'v_pk_mul_f32 v[{DK+i}:{DK+i+1}], v[{DK+i}:{DK+i+1}], v[{52}:{53}] op_sel:[0,{c}] op_sel_hi:[1,{c}]')
    for c, DK in ((0, DK0), (1, DK1)):
        for T in range(3):
            a.e(f'ds_write_b128 v90, v[{DK+4*T}:{DK+4*T+3}] offset:{c*3072+T*1024}')
    a.e(f's_lshl_b32 s67, s{S_W}, 2')
    a.e(f's_add_u32 s67, s67, {L_SIG}')
    a.e('v_mov_b32 v91, s67')
    a.e('s_mov_b64 exec, 1')
    a.e('ds_write_b32 v91, v52')
    a.e('ds_write_b32 v91, v53 offset:16')
    a.e('s_mov_b64 exec, -1')
    a.e('v_mov_b32 v92, 0')
    a.e('v_mov_b32 v93, 0')
    a.e('v_mov_b32 v94, 0')
    a.e('v_mov_b32 v95, 0')
    a.e('s_waitcnt lgkmcnt(0)')
    a.e('s_barrier')
    a.e(f'v_mov_b32 v91, {L_SIG}')
    a.e('ds_read_b128 v[44:47], v91')
    a.e('ds_read_b128 v[48:51], v91 offset:16')
    a.e(f's_and_b32 s67, s{S_W}, 1')
    a.e(f's_lshr_b32 s70, s{S_W}, 1')
    a.e('s_mul_i32 s71, s67, 3072')
    a.e('s_lshl_b32 s72, s70, 10')
    a.e('s_add_u32 s72, s72, s71')
    a.e(f's_add_u32 s72, s72, {L_SCR}')
    a.e(f's_add_u32 s71, s71, {L_SCR + 2048}')
    a.e('v_lshl_add_u32 v90, v1, 4, s72')
    a.e('v_lshl_add_u32 v91, v1, 4, s71')
    for wv in range(4):
        a.e(f'ds_read_b128 v[{96+4*wv}:{99+4*wv}], v90 offset:{wv*SCRW}')
    for wv in range(4):
        a.e(f'ds_read_b128 v[{112+4*wv}:{115+4*wv}], v91 offset:{wv*SCRW}')
    a.e('s_waitcnt lgkmcnt(8)')
    a.e('v_pk_add_f32 v[44:45], v[44:45], v[46:47]')
    a.e('v_pk_add_f32 v[48:49], v[48:49], v[50:51]')
    a.e('v_add_f32 v44, v44, v45')
    a.e('v_add_f32 v45, v48, v49')
    a.e('v_pk_mul_f32 v[54:55], v[54:55], v[44:45]')
    a.e('v_pk_add_f32 v[54:55], v[54:55], v[54:55]')
    a.e('s_cmp_eq_u32 s67, 0')
    a.e('s_cselect_b64 vcc, -1, 0')
    a.e('v_cndmask_b32 v46, v45, v44, vcc')
    a.e('v_rcp_f32 v46, v46')
    a.e('v_lshrrev_b32 v92, 4, v1')
    a.e('v_lshlrev_b32 v92, 7, v92')
    a.e('v_and_b32 v93, 15, v1')
    a.e('v_lshl_add_u32 v92, v93, 1, v92')
    a.e(f's_mul_i32 s71, s67, {KTCH}')
    a.e(f's_add_u32 s71, s71, {L_KT}')
    a.e('v_add_u32 v93, s71, v92')
    a.e('s_lshl_b32 s72, s70, 9')
    a.e('v_add_u32 v92, s72, v93')
    for jb, (base, va, off) in enumerate(((96, 92, 0), (112, 93, 1024))):
        a.e(f's_waitcnt lgkmcnt({4 if jb == 0 else 0})')
        for h in range(2):
            a.e(f'v_pk_add_f32 v[{base+2*h}:{base+2*h+1}], v[{base+2*h}:{base+2*h+1}], v[{base+4+2*h}:{base+5+2*h}]')
            a.e(f'v_pk_add_f32 v[{base+8+2*h}:{base+9+2*h}], v[{base+8+2*h}:{base+9+2*h}], v[{base+12+2*h}:{base+13+2*h}]')
        for h in range(2):
            a.e(f'v_pk_add_f32 v[{base+2*h}:{base+2*h+1}], v[{base+2*h}:{base+2*h+1}], v[{base+8+2*h}:{base+9+2*h}]')
        for h in range(2):
            a.e(f'v_pk_mul_f32 v[{base+2*h}:{base+2*h+1}], v[{base+2*h}:{base+2*h+1}], v[46:47] op_sel:[0,0] op_sel_hi:[1,0]')
        a.e(f'v_cvt_pk_f16_f32 v{base+4}, v{base}, v{base+1}')
        a.e(f'v_cvt_pk_f16_f32 v{base+5}, v{base+2}, v{base+3}')
        a.e(f'ds_write_b16 v{va}, v{base+4} offset:{off}')
        a.e(f'ds_write_b16_d16_hi v{va}, v{base+4} offset:{off+32}')
        a.e(f'ds_write_b16 v{va}, v{base+5} offset:{off+64}')
        a.e(f'ds_write_b16_d16_hi v{va}, v{base+5} offset:{off+96}')
    a.e('v_mov_b32 v96, 0')
    a.e('v_mov_b32 v97, 0')
    a.e('v_mov_b32 v98, 0')
    a.e('v_mov_b32 v99, 0')
    a.e(f'v_mov_b32 v90, {L_KT + 1536}')
    a.e('ds_write_b32 v90, v96')
    a.e(f'ds_write_b32 v90, v96 offset:{KTCH}')
    a.e('v_and_b32 v90, 15, v1')
    a.e(f'v_mul_u32_u24 v90, {KCOPY}, v90')
    a.e(f'v_add_u32 v90, {L_KC}, v90')
    a.e(f'ds_write_b128 v90, v[96:99] offset:4096')
    a.e('v_lshlrev_b32 v90, 3, v1')
    a.e(f'ds_write_b64 v90, v[96:97] offset:{L_U}')
    a.e(f'ds_write_b64 v90, v[96:97] offset:{L_U + UCH}')
    a.e('s_waitcnt lgkmcnt(0)')
    a.e('s_barrier')
    stamp(a, 6 if PERS else 4)
    AD = 96
    for e in range(15):
        src = 160 + e // 2
        if e % 2 == 0:
            a.e(f'v_and_b32 v{AD+e}, 0xffff, v{src}')
        else:
            a.e(f'v_lshrrev_b32 v{AD+e}, 16, v{src}')
    a.e('v_lshlrev_b32 v111, 4, v0')
    a.e(f'v_add_u32 v111, {L_KC}, v111')
    RR = [112, 128]
    for c in range(2):
        for e in range(15):
            a.e(f'ds_read_u16 v{RR[c]+e}, v{AD+e} offset:{L_KT + c*KTCH}')
    for c in range(2):
        R = RR[c]
        Da, Db, Oa, Ob = 144, 152, 160, 168
        a.e(f's_waitcnt lgkmcnt({15 if c == 0 else 0})')
        for i in range(6):
            a.e(f'v_lshl_or_b32 v{Da+i}, v{R+2*i+1}, 16, v{R+2*i}')
            a.e(f'v_lshl_or_b32 v{Oa+i}, v{R+2*i+2}, 16, v{R+2*i+1}')
        for i in range(6):
            a.e(f'v_lshl_or_b32 v{Db+i}, v{R+2*i+3}, 16, v{R+2*i+2}')
            a.e(f'v_lshl_or_b32 v{Ob+i}, v{R+2*i+4}, 16, v{R+2*i+3}')
        if c == 1:
            a.e(f'v_add_u32 v111, {KCH}, v111')
        for s, r in ((0, Da), (1, Oa), (4, Da + 2), (5, Oa + 2), (2, Db), (3, Ob), (6, Db + 2), (7, Ob + 2)):
            a.e(f'ds_write_b128 v111, v[{r}:{r+3}] offset:{s*KCOPY}')


def load_gather_table(a, tablabel):
    lp = a.lab('pc')
    a.e('s_getpc_b64 s[70:71]')
    a.e(f'{lp}:')
    a.e(f's_add_u32 s70, s70, {tablabel}-{lp}')
    a.e('s_addc_u32 s71, s71, 0')
    a.e('v_lshlrev_b32 v2, 5, v0')
    a.e('global_load_dwordx4 v[160:163], v2, s[70:71]')
    a.e('global_load_dwordx4 v[164:167], v2, s[70:71] offset:16')


def emit_gather_table(a, tablabel):
    a.raw('.p2align 4')
    a.raw(f'.type {tablabel},@object')
    a.raw(f'{tablabel}:')
    tab = gather_table()
    for i in range(0, len(tab), 16):
        a.raw('.short ' + ', '.join(str(x) for x in tab[i:i + 16]))
    a.raw(f'.size {tablabel}, {2*len(tab)}')


XC = list(range(192, 200))
ST = 200


def col_addr(a):
    a.e(f's_lshl_b32 s66, s{S_P}, 2')
    a.e(f'v_mul_u32_u24 v252, {8*896}, v0')
    a.e('v_add_u32 v252, s66, v252')
    a.e('v_add_u32 v221, 4480, v252')


def col_load(a, j):
    if j < 5:
        a.e(f'buffer_load_dword v{XC[j]}, v252, s[{S_X}:{S_X+3}], 0 offen offset:{j*896}')
    else:
        a.e(f'buffer_load_dword v{XC[j]}, v221, s[{S_X}:{S_X+3}], 0 offen offset:{(j-5)*896}')


def conv_loads(a):
    a.e(f's_lshl_b32 s66, s{S_P}, 2')
    a.e(f'v_mul_u32_u24 v2, {8*896}, v0')
    a.e('v_add_u32 v2, s66, v2')
    a.e('v_add_u32 v3, 4480, v2')
    for j in range(5):
        a.e(f'buffer_load_dword v{XC[j]}, v2, s[{S_X}:{S_X+3}], 0 offen offset:{j*896}')
    for j in range(5, 8):
        a.e(f'buffer_load_dword v{XC[j]}, v3, s[{S_X}:{S_X+3}], 0 offen offset:{(j-5)*896}')


def stats_loads(a):
    a.e('v_lshlrev_b32 v2, 6, v0')
    for i in range(4):
        a.e(f'buffer_load_dwordx4 v[{ST+4*i}:{ST+4*i+3}], v2, s[{S_WS}:{S_WS+3}], 0 offen offset:{WS_STATS+16*i}')


def phase_norm(a):
    U0, U1 = 96, 100
    for j in range(8):
        g = ST + 2 * j
        x = XC[j]
        t = 104 + 8 * (j % 2)
        a.e(f'v_lshlrev_b32 v{t}, 16, v{x}')
        a.e(f'v_and_b32 v{t+1}, 0xffff0000, v{x}')
        a.e(f'v_lshlrev_b32 v{t+2}, 16, v{g}')
        a.e(f'v_and_b32 v{t+3}, 0xffff0000, v{g}')
        a.e(f'v_rcp_f32 v{t+3}, v{t+3}')
        a.e(f'v_pk_add_f32 v[{t}:{t+1}], v[{t}:{t+1}], v[{t+2}:{t+3}] op_sel:[0,0] op_sel_hi:[1,0] neg_lo:[0,1] neg_hi:[0,1]')
        a.e(f'v_cvt_pk_bf16_f32 v{t+4}, v{t}, v{t+1}')
        a.e(f'v_lshlrev_b32 v{t}, 16, v{t+4}')
        a.e(f'v_and_b32 v{t+1}, 0xffff0000, v{t+4}')
        a.e(f'v_pk_mul_f32 v[{t}:{t+1}], v[{t}:{t+1}], v[{t+2}:{t+3}] op_sel:[0,1] op_sel_hi:[1,1]')
        a.e(f'v_cvt_pk_bf16_f32 v{t+4}, v{t}, v{t+1}')
        a.e(f'v_lshlrev_b32 v{120+2*j}, 16, v{t+4}')
        a.e(f'v_and_b32 v{121+2*j}, 0xffff0000, v{t+4}')
    for i in range(4):
        a.e(f'v_cvt_pk_f16_f32 v{U0+i}, v{120+4*i}, v{122+4*i}')
        a.e(f'v_cvt_pk_f16_f32 v{U1+i}, v{121+4*i}, v{123+4*i}')
    a.e('v_lshlrev_b32 v2, 4, v0')
    a.e(f'ds_write_b128 v2, v[{U0}:{U0+3}] offset:{L_U + 512}')
    a.e(f'ds_write_b128 v2, v[{U1}:{U1+3}] offset:{L_U + UCH + 512}')
    a.e('s_waitcnt lgkmcnt(0)')
    a.e('s_barrier')


def phase_conv(a, hooks=(), pre_vm=0):
    hooks = list(hooks)
    ACC = 16
    FA = [[64 + 64 * s + 4 * i for i in range(8)] for s in range(2)]
    FB = [[96 + 64 * s + 4 * i for i in range(8)] for s in range(2)]
    VA, VB = 48, 49
    a.e(f's_lshr_b32 s66, s{S_W}, 1')
    a.e(f's_and_b32 s67, s{S_W}, 1')
    a.e('v_and_b32 v2, 7, v1')
    a.e('v_sub_u32 v2, 7, v2')
    a.e(f'v_mul_u32_u24 v2, {KCOPY}, v2')
    a.e('v_lshrrev_b32 v3, 4, v1')
    a.e('v_bfe_u32 v4, v1, 3, 1')
    a.e('v_sub_u32 v3, v3, v4')
    a.e('v_lshl_add_u32 v2, v3, 4, v2')
    a.e(f's_mul_i32 s70, s66, {KCH}')
    a.e('s_lshl_b32 s71, s67, 8')
    a.e('s_sub_u32 s70, s70, s71')
    a.e(f's_add_u32 s70, s70, {L_KC + 16*253 - 512*7 - 64*3}')
    a.e(f'v_add_u32 v{VA}, s70, v2')
    a.e('v_and_b32 v2, 15, v1')
    a.e('v_lshlrev_b32 v2, 5, v2')
    a.e('v_lshrrev_b32 v3, 4, v1')
    a.e('v_lshl_add_u32 v2, v3, 4, v2')
    a.e(f's_mul_i32 s70, s66, {UCH}')
    a.e('s_sub_u32 s70, s70, s71')
    a.e(f's_add_u32 s70, s70, {L_U + 480 - 64*3}')
    a.e(f'v_add_u32 v{VB}, s70, v2')

    def loads(qq, s):
        for i in range(8):
            a.e(f'ds_read_b128 v[{FB[s][i]}:{FB[s][i]+3}], v{VB} offset:{512*i + 64*(3-qq)}')
            a.e(f'ds_read_b128 v[{FA[s][i]}:{FA[s][i]+3}], v{VA} offset:{512*(7-i) + 64*(3-qq)}')

    loads(0, 0)
    for qq in range(4):
        s = qq & 1
        if qq < 3:
            nxt = []
            for i in range(8):
                nxt.append(f'ds_read_b128 v[{FB[1-s][i]}:{FB[1-s][i]+3}], v{VB} offset:{512*i + 64*(3-qq-1)}')
                nxt.append(f'ds_read_b128 v[{FA[1-s][i]}:{FA[1-s][i]+3}], v{VA} offset:{512*(7-i) + 64*(3-qq-1)}')
        else:
            nxt = []
        a.e('s_waitcnt lgkmcnt(0)')
        n = 0
        for w in range(8):
            for c in range(w, 8):
                cc = '0' if (qq == 0 and w == 0) else f'v[{ACC+4*c}:{ACC+4*c+3}]'
                a.e(f'v_mfma_f32_16x16x32_f16 v[{ACC+4*c}:{ACC+4*c+3}], v[{FA[s][w]}:{FA[s][w]+3}], v[{FB[s][c-w]}:{FB[s][c-w]+3}], {cc}')
                if nxt and n % 2 == 1:
                    a.e(nxt.pop(0))
                if hooks and n % 4 == 2:
                    hooks.pop(0)()
                n += 1
        assert not nxt
    assert not hooks
    stamp(a, 11 if PERS else 7)
    CP = L_CP
    TS = 1280
    a.e('s_barrier')
    a.e('v_and_b32 v2, 15, v1')
    a.e('v_lshlrev_b32 v2, 4, v2')
    a.e('v_lshrrev_b32 v3, 4, v1')
    a.e('v_mul_u32_u24 v3, 320, v3')
    a.e('v_add_u32 v2, v2, v3')
    a.e(f's_mul_i32 s70, s{S_W}, {8*TS}')
    a.e(f's_add_u32 s70, s70, {CP}')
    a.e('v_add_u32 v2, s70, v2')
    for c in range(8):
        a.e(f'ds_write_b128 v2, v[{ACC+4*c}:{ACC+4*c+3}] offset:{c*TS}')
    a.e('v_lshrrev_b32 v2, 2, v1')
    a.e('v_lshlrev_b32 v2, 4, v2')
    a.e('v_and_b32 v3, 3, v1')
    a.e('v_mul_u32_u24 v3, 320, v3')
    a.e('v_add_u32 v2, v2, v3')
    a.e(f's_lshl_b32 s70, s{S_W}, 1')
    a.e(f's_mul_i32 s71, s70, {TS}')
    a.e(f's_add_u32 s71, s71, {CP}')
    a.e('v_add_u32 v2, s71, v2')
    a.e('s_lshl_b32 s71, s70, 9')
    a.e(f's_add_u32 s71, s71, {L_U + 512}')
    a.e('v_lshl_add_u32 v3, v1, 3, s71')
    a.e(f's_lshl_b32 s71, s{S_P}, 13')
    a.e('s_lshl_b32 s72, s70, 10')
    a.e('s_add_u32 s71, s71, s72')
    a.e(f's_add_u32 s71, s71, {WS_AOUT}')
    a.e('v_lshl_add_u32 v4, v1, 4, s71')
    a.e('s_lshl_b32 s72, s69, 16')
    a.e('s_and_b32 s73, s69, 0xffff0000')
    a.e('v_mov_b32 v56, s72')
    a.e('v_mov_b32 v57, s73')
    a.e(f's_waitcnt lgkmcnt(0) vmcnt({pre_vm})' if PERS else 's_waitcnt lgkmcnt(0)')
    a.e('s_barrier')
    for q in range(2):
        P = 64 + 32 * q
        for ch in range(2):
            for hf in range(2):
                r = P + 8 * ch + 4 * hf
                a.e(f'ds_read_b128 v[{r}:{r+3}], v2 offset:{(2*ch+hf)*8*TS + q*TS}')
        for ch in range(2):
            a.e(f'ds_read_b64 v[{P+16+2*ch}:{P+17+2*ch}], v3 offset:{ch*UCH + q*512}')
    for q in range(2):
        P = 64 + 32 * q
        a.e(f's_waitcnt lgkmcnt({6 if q == 0 else 0})')
        for ch in range(2):
            y = P + 8 * ch
            T = 128 + 16 * ch
            for h in range(2):
                a.e(f'v_pk_add_f32 v[{y+2*h}:{y+2*h+1}], v[{y+2*h}:{y+2*h+1}], v[{y+4+2*h}:{y+5+2*h}]')
            for h in range(2):
                a.e(f'v_pk_mul_f32 v[{y+2*h}:{y+2*h+1}], v[{y+2*h}:{y+2*h+1}], v[54:55] op_sel:[0,{ch}] op_sel_hi:[1,{ch}]')
            u = P + 16 + 2 * ch
            for i in range(4):
                a.e(f'v_fma_mix_f32 v{T+i}, v{u+i//2}, v{56+ch}, 0 op_sel:[{i%2},0,0] op_sel_hi:[1,0,0]')
            for h in range(2):
                a.e(f'v_cvt_pk_bf16_f32 v{T+4+h}, v{y+2*h}, v{y+2*h+1}')
                a.e(f'v_cvt_pk_bf16_f32 v{T+6+h}, v{T+2*h}, v{T+2*h+1}')
            for h in range(2):
                a.e(f'v_lshlrev_b32 v{y+2*h}, 16, v{T+4+h}')
                a.e(f'v_and_b32 v{y+2*h+1}, 0xffff0000, v{T+4+h}')
                a.e(f'v_lshlrev_b32 v{T+2*h}, 16, v{T+6+h}')
                a.e(f'v_and_b32 v{T+2*h+1}, 0xffff0000, v{T+6+h}')
            for h in range(2):
                a.e(f'v_pk_add_f32 v[{y+2*h}:{y+2*h+1}], v[{y+2*h}:{y+2*h+1}], v[{T+2*h}:{T+2*h+1}]')
        O = 160 + 4 * q
        for i in range(4):
            a.e(f'v_cvt_pk_bf16_f32 v{O+i}, v{P+i}, v{P+8+i}')
        a.e(f'buffer_store_dwordx4 v[{O}:{O+3}], v4, s[{S_WS}:{S_WS+3}], 0 offen offset:{q*1024}{SC()}')


def bcast_stats(a, T):
    a.e(f'v_lshlrev_b32 v{T+1}, 16, v{T}')
    a.e(f'v_and_b32 v{T+2}, 0xffff0000, v{T}')
    a.e(f'v_rcp_f32 v{T+2}, v{T+2}')
    for j in range(8):
        a.e(f'v_readlane_b32 s{72+2*j}, v{T+1}, {j}')
    for j in range(8):
        a.e(f'v_readlane_b32 s{73+2*j}, v{T+2}, {j}')


def norm_tok(a, j, src, d):
    a.e(f'v_lshlrev_b32 v{d}, 16, v{src}')
    a.e(f'v_and_b32 v{d+1}, 0xffff0000, v{src}')
    a.e(f'v_pk_add_f32 v[{d}:{d+1}], v[{d}:{d+1}], s[{72+2*j}:{73+2*j}] op_sel:[0,0] op_sel_hi:[1,0] neg_lo:[0,1] neg_hi:[0,1]')
    a.e(f'v_cvt_pk_bf16_f32 v{src}, v{d}, v{d+1}')
    a.e(f'v_lshlrev_b32 v{d}, 16, v{src}')
    a.e(f'v_and_b32 v{d+1}, 0xffff0000, v{src}')
    a.e(f'v_pk_mul_f32 v[{d}:{d+1}], v[{d}:{d+1}], s[{72+2*j}:{73+2*j}] op_sel:[0,1] op_sel_hi:[1,1]')


def phase_p4(a):
    X = list(range(8, 16))
    A = 32
    if PERS:
        xrow_addr(a)
    else:
        load_xrows(a, X)
    a.e(f's_mul_i32 s66, s{S_W}, {56*8192}')
    a.e(f's_lshl_b32 s67, s{S_B}, 5')
    a.e('s_add_u32 s66, s66, s67')
    a.e(f's_add_u32 s66, s66, {WS_AOUT}')
    a.e('v_lshl_add_u32 v4, v1, 13, s66')
    a.e(f'v_mov_b32 v5, {OOB}')
    a.e('v_cndmask_b32 v4, v5, v4, vcc')
    a.e(f'v_add_u32 v6, {WS_H}, v2')
    a.e(f'v_add_u32 v7, {WS_H}, v3')
    lp, ld = a.lab('h2poll'), a.lab('h2done')
    a.e(f's_mov_b32 s{S_SPIN}, 0')
    a.e(f'{lp}:')
    a.e(f'buffer_load_dwordx4 v[{A}:{A+3}], v4, s[{S_WS}:{S_WS+3}], 0 offen{SC()}')
    a.e(f'buffer_load_dwordx4 v[{A+4}:{A+7}], v4, s[{S_WS}:{S_WS+3}], 0 offen offset:16{SC()}')
    a.e('s_waitcnt vmcnt(0)')
    if PERS:
        a.e(f'v_max3_u32 v40, v{A}, v{A+1}, v{A+2}')
        a.e(f'v_max3_u32 v41, v{A+3}, v{A+4}, v{A+5}')
        a.e(f'v_max3_u32 v40, v40, v{A+6}, v{A+7}')
        a.e('v_max_u32 v40, v40, v41')
        a.e('v_cmp_eq_u32 vcc, -1, v40')
        a.e(f's_cbranch_vccz {ld}')
        a.e(f's_add_u32 s{S_SPIN}, s{S_SPIN}, 1')
        a.e(f's_cmp_lt_u32 s{S_SPIN}, {SPIN_MAX}')
        a.e(f's_cbranch_scc1 {lp}')
    a.e(f'{ld}:')
    stamp(a, 14 if PERS else 2)
    for j in range(8):
        t = 40 + 4 * (j % 2)
        a.e(f'v_lshlrev_b32 v{t}, 16, v{X[j]}')
        a.e(f'v_and_b32 v{t+1}, 0xffff0000, v{X[j]}')
        a.e(f'v_lshlrev_b32 v{t+2}, 16, v{A+j}')
        a.e(f'v_and_b32 v{t+3}, 0xffff0000, v{A+j}')
        a.e(f'v_pk_add_f32 v[{t}:{t+1}], v[{t}:{t+1}], v[{t+2}:{t+3}]')
        a.e(f'v_cvt_pk_bf16_f32 v{X[j]}, v{t}, v{t+1}')
    for j in range(5):
        a.e(f'buffer_store_dword v{X[j]}, v6, s[{S_WS}:{S_WS+3}], 0 offen offset:{j*896}{SC()}')
    for j in range(5, 8):
        a.e(f'buffer_store_dword v{X[j]}, v7, s[{S_WS}:{S_WS+3}], 0 offen offset:{(j-5)*896}{SC()}')
    H = list(range(48, 56))
    for j in range(8):
        a.e(f'v_mov_b32 v{H[j]}, v{X[j]}')
    ln_stats(a, H, 16, L_RED0, 5)
    bcast_stats(a, 16)
    a.e('s_mov_b32 exec_hi, 0x00ffffff')
    for j in range(8):
        t = 40 + 2 * (j % 4)
        norm_tok(a, j, H[j], t)
        a.e(f'v_cvt_pk_bf16_f32 v{H[j]}, v{t}, v{t+1}')
    a.e('s_mov_b32 exec_hi, -1')
    ln_stats(a, H, 16, L_RED1, 5)
    bcast_stats(a, 16)
    for j in range(8):
        norm_tok(a, j, H[j], 64 + 2 * j)
    O0, O1 = 80, 84
    for i in range(4):
        a.e(f'v_cvt_pk_bf16_f32 v{O0+i}, v{64+4*i}, v{66+4*i}')
        a.e(f'v_cvt_pk_bf16_f32 v{O1+i}, v{65+4*i}, v{67+4*i}')
    a.e(f's_mul_i32 s66, s{S_B}, 7168')
    a.e(f's_mul_i32 s67, s{S_W}, 1792')
    a.e('s_add_u32 s66, s66, s67')
    a.e(f's_add_u32 s66, s66, {WS_HH}')
    a.e('v_lshl_add_u32 v4, v1, 4, s66')
    a.e('v_add_u32 v5, 448, v4')
    a.e('v_cmp_gt_u32 vcc, 28, v1')
    a.e('v_cndmask_b32 v4, v5, v4, vcc')
    a.e(f'v_mov_b32 v5, {OOB}')
    a.e('v_cmp_gt_u32 vcc, 56, v1')
    a.e('v_cndmask_b32 v4, v5, v4, vcc')
    if PERS:
        a.e('s_waitcnt vmcnt(0)')
    a.e(f'buffer_store_dwordx4 v[{O0}:{O0+3}], v4, s[{S_WS}:{S_WS+3}], 0 offen{SC()}')
    a.e(f'buffer_store_dwordx4 v[{O1}:{O1+3}], v4, s[{S_WS}:{S_WS+3}], 0 offen offset:448{SC()}')


ACC = 16
XS = 80
NS = 8


def gemm_xaddr(a, ws_off, kblocks):
    a.e(f's_mul_i32 s66, s{S_W}, {kblocks*7168}')
    a.e(f's_mul_i32 s67, s{S_J}, 896')
    a.e('s_add_u32 s66, s66, s67')
    a.e(f's_add_u32 s66, s66, {ws_off}')
    a.e('v_lshrrev_b32 v4, 4, v1')
    a.e('v_mul_u32_u24 v4, 7168, v4')
    a.e('v_and_b32 v5, 15, v1')
    a.e('v_lshl_add_u32 v4, v5, 4, v4')
    a.e('v_add_u32 v2, s66, v4')
    a.e('v_and_b32 v5, 7, v1')
    a.e('v_lshrrev_b32 v4, 4, v1')
    a.e('v_mul_u32_u24 v4, 7168, v4')
    a.e('v_lshl_add_u32 v4, v5, 4, v4')
    a.e('v_add_u32 v3, s66, v4')
    a.e('v_add_u32 v3, 768, v3')


def rot_off(a, idx, sreg, n, unit):
    if not ROT:
        a.e(f's_mov_b32 s70, {idx*unit}')
        return
    a.e(f's_add_u32 s70, s{sreg}, {idx*unit}')
    a.e(f's_cmp_ge_u32 s70, {n*unit}')
    a.e(f's_cselect_b32 s71, {n*unit}, 0')
    a.e('s_sub_u32 s70, s70, s71')


GEMM_ID = [1]


def gemm_xload(a, kappa):
    st = XS + 16 * (kappa % NS)
    if GEMM_ID[0] == 1:
        rot_off(a, kappa, S_RX1, 16, 4 * 7168)
    else:
        rot_off(a, kappa, S_RX2, 14, 4 * 7168)
    for nu in range(3):
        a.e(f'buffer_load_dwordx4 v[{st+4*nu}:{st+4*nu+3}], v2, s[{S_WS}:{S_WS+3}], s70 offen offset:{256*nu}{SC()}')
    a.e(f'buffer_load_dwordx4 v[{st+12}:{st+15}], v3, s[{S_WS}:{S_WS+3}], s70 offen{SC()}')


def gemm_wload(a, nk, rowbytes, wptr, wbytes, coltile_sreg, rows_per_wave, extra_vm, k0=0):
    srd(a, S_T0, wptr, wbytes)
    a.e('v_lshrrev_b32 v4, 3, v1')
    a.e(f's_mov_b32 s66, {rowbytes}')
    a.e('v_mul_lo_u32 v5, v4, s66')
    a.e('v_bfe_u32 v4, v1, 4, 1')
    a.e('v_lshlrev_b32 v4, 1, v4')
    a.e('v_and_b32 v6, 7, v1')
    a.e('v_xor_b32 v6, v6, v4')
    a.e(f's_mul_i32 s67, s{S_W}, {rows_per_wave*rowbytes}')
    a.e(f's_lshl_b32 s66, s{coltile_sreg}, 7')
    a.e('s_add_u32 s67, s67, s66')
    a.e('v_lshl_add_u32 v4, v6, 4, v5')
    a.e('v_add_u32 v208, s67, v4')
    a.e('v_xor_b32 v6, 4, v6')
    a.e('v_lshl_add_u32 v4, v6, 4, v5')
    a.e('v_add_u32 v209, s67, v4')
    a.e('v_lshrrev_b32 v4, 4, v1')
    a.e('v_bfe_u32 v5, v1, 2, 2')
    a.e('v_lshl_add_u32 v5, v4, 3, v5')
    a.e('v_lshlrev_b32 v5, 7, v5')
    a.e('v_and_b32 v6, 1, v1')
    a.e('v_lshl_add_u32 v5, v6, 3, v5')
    a.e('v_bfe_u32 v6, v1, 1, 1')
    a.e('v_lshl_add_u32 v5, v6, 4, v5')
    a.e(f's_lshl_b32 s66, s{S_W}, 14')
    a.e(f's_add_u32 s66, s66, {L_WRING}')
    a.e('v_add_u32 v5, s66, v5')
    a.e('v_bfe_u32 v6, v1, 3, 1')
    a.e('v_and_b32 v4, 1, v4')
    a.e('v_lshl_add_u32 v6, v4, 1, v6')
    for mu in range(4):
        a.e(f'v_xor_b32 v4, {mu}, v6')
        a.e(f'v_lshl_add_u32 v{210+mu}, v4, 5, v5')
    a.e(f's_mov_b32 s71, s66')

    def dma(kappa):
        for i in range(4):
            a.e(f's_add_u32 m0, s71, {(kappa % 4)*4096 + i*1024}')
            a.e(f's_mov_b32 s70, {(32*kappa + 8*i)*rowbytes}')
            a.e(f'buffer_load_dwordx4 v{208 + (i & 1)}, s[{S_T0}:{S_T0+3}], s70 offen lds')

    for k in range(k0, min(k0 + 4, nk)):
        dma(k)
    for k in range(k0, nk):
        inflight = min(3, nk - 1 - k)
        a.e(f's_waitcnt vmcnt({4*inflight})')
        for mu in range(4):
            r = (k * 4 + mu) * 4
            a.e(f'ds_read_b64_tr_b16 a[{r}:{r+1}], v{210+mu} offset:{(k % 4)*4096}')
            a.e(f'ds_read_b64_tr_b16 a[{r+2}:{r+3}], v{210+mu} offset:{(k % 4)*4096 + 512}')
        if k + 4 < nk:
            a.e('s_waitcnt lgkmcnt(0)')
            dma(k + 4)
    a.e('s_waitcnt lgkmcnt(0)')


VMAX = 214


def gemm_main(a, nk, w_is_a):
    if PERS:
        a.e(f'v_mov_b32 v{VMAX}, 0')
    for k in range(nk):
        st = XS + 16 * (k % NS)
        rem = min(NS - 1, nk - 1 - k)
        a.e(f's_waitcnt vmcnt({4*rem})')
        if PERS and STAMPS and k in (0, 1, 2, 4, 8, 12):
            stamp(a, (44 if w_is_a else 51) + (0, 1, 2, 4, 8, 12).index(k))
        for mu in range(4):
            for nu in range(4):
                if PERS and nu % 2 == 1:
                    r = st + 4 * mu + (nu - 1)
                    a.e(f'v_max3_u32 v{VMAX}, v{VMAX}, v{r}, v{r+1}')
                w = (k * 4 + mu) * 4
                x = st + 4 * nu
                if w_is_a:
                    acc = ACC + (mu * 4 + nu) * 4
                    A, B = f'a[{w}:{w+3}]', f'v[{x}:{x+3}]'
                else:
                    acc = ACC + (nu * 4 + mu) * 4
                    A, B = f'v[{x}:{x+3}]', f'a[{w}:{w+3}]'
                cc = '0' if k == 0 else f'v[{acc}:{acc+3}]'
                a.e(f'v_mfma_f32_16x16x32_bf16 v[{acc}:{acc+3}], {A}, {B}, {cc}')
        if k + NS < nk:
            gemm_xload(a, k + NS)


def write_partials(a):
    a.e('v_and_b32 v4, 15, v1')
    a.e(f'v_mul_u32_u24 v4, {PROW}, v4')
    a.e('v_lshrrev_b32 v5, 4, v1')
    a.e('v_lshl_add_u32 v4, v5, 4, v4')
    a.e(f's_mul_i32 s66, s{S_W}, {PARTW}')
    a.e(f's_add_u32 s66, s66, {L_PART}')
    a.e('v_add_u32 v4, s66, v4')
    for mt in range(4):
        for nt in range(4):
            acc = ACC + (mt * 4 + nt) * 4
            a.e(f'ds_write_b128 v4, v[{acc}:{acc+3}] offset:{nt*16*PROW + mt*64}')
    a.e('s_waitcnt lgkmcnt(0)')
    a.e('s_barrier')


def round_pairs(a, src, dst_pk, n):
    for i in range(n // 2):
        a.e(f'v_cvt_pk_bf16_f32 v{dst_pk+i}, v{src+2*i}, v{src+2*i+1}')
    for i in range(n // 2):
        a.e(f'v_lshlrev_b32 v{src+2*i}, 16, v{dst_pk+i}')
        a.e(f'v_and_b32 v{src+2*i+1}, 0xffff0000, v{dst_pk+i}')


def phase_gemm1(a):
    gemm_xaddr(a, WS_HH, 64)
    for k in range(NS):
        gemm_xload(a, k)
    stamp(a, 2)
    gemm_wload(a, 16, F * 2, P_W1, W1BYTES, S_I1, 512, 32)
    stamp(a, 3)
    gemm_main(a, 16, True)
    stamp(a, 4)
    gemm1_epilogue(a)


def gemm1_epilogue(a, after_reads=None):
    write_partials(a)
    stamp(a, 24 if PERS else 5)
    a.e(f'v_mul_u32_u24 v4, {PROW}, v1')
    a.e(f's_lshl_b32 s66, s{S_W}, 6')
    a.e(f's_add_u32 s66, s66, {L_PART}')
    a.e('v_add_u32 v4, s66, v4')
    a.e(f's_lshl_b32 s67, s{S_I1}, 7')
    a.e(f's_lshl_b32 s70, s{S_W}, 5')
    a.e('s_add_u32 s67, s67, s70')
    a.e(f's_load_dwordx8 s[72:79], s[{P_B1}:{P_B1+1}], s67')
    a.e(f's_lshl_b32 s66, s{S_I1}, 3')
    a.e(f's_lshl_b32 s70, s{S_W}, 1')
    a.e('s_add_u32 s66, s66, s70')
    a.e('s_mul_i32 s66, s66, 7168')
    a.e(f's_mul_i32 s70, s{S_J}, 896')
    a.e('s_add_u32 s66, s66, s70')
    a.e(f's_add_u32 s66, s66, {WS_G}')
    a.e('v_lshl_add_u32 v5, v1, 4, s66')
    a.e(f'v_mov_b32 v6, {OOB}')
    a.e('v_cmp_gt_u32 vcc, 56, v1')
    a.e('v_cndmask_b32 v5, v6, v5, vcc')
    for r in range(2):
        P = 16 + 32 * r
        for wv in range(4):
            a.e(f'ds_read_b128 v[{P+8*wv}:{P+8*wv+3}], v4 offset:{wv*PARTW + r*32}')
            a.e(f'ds_read_b128 v[{P+8*wv+4}:{P+8*wv+7}], v4 offset:{wv*PARTW + r*32 + 16}')
    a.e('s_waitcnt lgkmcnt(0)')
    if after_reads is not None:
        a.e('s_barrier')
        after_reads()
    for i in range(8):
        a.e(f's_lshl_b32 s{80+2*i}, s{72+i}, 16')
        a.e(f's_and_b32 s{81+2*i}, s{72+i}, 0xffff0000')
    C1 = 0.044715
    C2 = -2.0 * 0.7978845608028654 * 1.4426950408889634
    a.e(f'v_mov_b32 v100, {fx(C1*C2)}')
    a.e(f'v_mov_b32 v101, {fx(C1*C2)}')
    a.e(f'v_mov_b32 v102, {fx(C2)}')
    a.e(f'v_mov_b32 v103, {fx(C2)}')
    for r in range(2):
        P = 16 + 32 * r
        T = 80 + 0
        for h in range(4):
            a.e(f'v_pk_add_f32 v[{P+2*h}:{P+2*h+1}], v[{P+2*h}:{P+2*h+1}], v[{P+8+2*h}:{P+9+2*h}]')
            a.e(f'v_pk_add_f32 v[{P+16+2*h}:{P+17+2*h}], v[{P+16+2*h}:{P+17+2*h}], v[{P+24+2*h}:{P+25+2*h}]')
        for h in range(4):
            a.e(f'v_pk_add_f32 v[{P+2*h}:{P+2*h+1}], v[{P+2*h}:{P+2*h+1}], v[{P+16+2*h}:{P+17+2*h}]')
        round_pairs(a, P, T, 8)
        for h in range(4):
            a.e(f'v_pk_add_f32 v[{P+2*h}:{P+2*h+1}], v[{P+2*h}:{P+2*h+1}], s[{80+8*r+2*h}:{81+8*r+2*h}]')
        round_pairs(a, P, T, 8)
        for h in range(4):
            a.e(f'v_pk_mul_f32 v[{P+8+2*h}:{P+9+2*h}], v[{P+2*h}:{P+2*h+1}], v[{P+2*h}:{P+2*h+1}]')
        for h in range(4):
            a.e(f'v_pk_fma_f32 v[{P+8+2*h}:{P+9+2*h}], v[{P+8+2*h}:{P+9+2*h}], v[100:101], v[102:103]')
        for h in range(4):
            a.e(f'v_pk_mul_f32 v[{P+8+2*h}:{P+9+2*h}], v[{P+8+2*h}:{P+9+2*h}], v[{P+2*h}:{P+2*h+1}]')
        for i in range(8):
            a.e(f'v_exp_f32 v{P+8+i}, v{P+8+i}')
        for h in range(4):
            a.e(f'v_pk_add_f32 v[{P+8+2*h}:{P+9+2*h}], v[{P+8+2*h}:{P+9+2*h}], 1.0 op_sel_hi:[1,0]')
        for i in range(8):
            a.e(f'v_rcp_f32 v{P+8+i}, v{P+8+i}')
        for h in range(4):
            a.e(f'v_pk_mul_f32 v[{P+2*h}:{P+2*h+1}], v[{P+2*h}:{P+2*h+1}], v[{P+8+2*h}:{P+9+2*h}]')
        O = 88 + 4 * r
        for h in range(4):
            a.e(f'v_cvt_pk_bf16_f32 v{O+h}, v{P+2*h}, v{P+2*h+1}')
        if r == 1:
            a.e('v_add_u32 v5, 7168, v5')
        a.e(f'buffer_store_dwordx4 v[{O}:{O+3}], v5, s[{S_WS}:{S_WS+3}], 0 offen{SC()}')


def phase_gemm2(a):
    gemm_xaddr(a, WS_G, 56)
    for k in range(NS):
        gemm_xload(a, k)
    stamp(a, 2)
    gemm_wload(a, 14, L * 2, P_W2, W2BYTES, S_I2, 448, 32)
    stamp(a, 3)
    gemm_main(a, 14, False)
    stamp(a, 4)
    gemm2_epilogue(a)


def gemm2_epilogue(a):
    write_partials(a)
    stamp(a, 33 if PERS else 5)
    srd(a, S_T2, P_OUT, XBYTES)
    a.e('v_lshrrev_b32 v4, 3, v1')
    a.e('v_and_b32 v5, 7, v1')
    a.e(f's_lshl_b32 s66, s{S_W}, 4')
    a.e('v_add_u32 v4, s66, v4')
    a.e(f'v_mul_u32_u24 v6, {PROW}, v4')
    a.e('v_lshl_add_u32 v6, v5, 4, v6')
    a.e(f'v_add_u32 v6, {L_PART}, v6')
    a.e(f's_lshl_b32 s67, s{S_I2}, 6')
    a.e('v_add_u32 v7, s67, v4')
    a.e('v_mul_u32_u24 v8, 896, v7')
    a.e('v_lshl_add_u32 v8, v5, 4, v8')
    a.e(f's_mul_i32 s70, s{S_J}, 112')
    a.e('v_add_u32 v8, s70, v8')
    a.e(f'v_mov_b32 v9, {OOB}')
    a.e('v_cmp_gt_u32 vcc, 7, v5')
    a.e('v_cndmask_b32 v8, v9, v8, vcc')
    a.e(f'v_add_u32 v9, {WS_H}, v8')
    srd(a, S_T3, P_B2, L * 2)
    a.e('v_lshlrev_b32 v7, 1, v7')
    for r in range(2):
        a.e(f'buffer_load_dwordx4 v[{96+4*r}:{99+4*r}], v9, s[{S_WS}:{S_WS+3}], 0 offen{SC()}')
        if r == 0:
            a.e(f'v_add_u32 v9, {8*896}, v9')
        a.e(f'buffer_load_ushort v{104+r}, v7, s[{S_T3}:{S_T3+3}], 0 offen offset:{16*r}')
    for r in range(2):
        P = 16 + 32 * r
        for wv in range(4):
            a.e(f'ds_read_b128 v[{P+8*wv}:{P+8*wv+3}], v6 offset:{wv*PARTW + r*8*PROW}')
            a.e(f'ds_read_b128 v[{P+8*wv+4}:{P+8*wv+7}], v6 offset:{wv*PARTW + r*8*PROW + 112}')
    a.e('s_waitcnt lgkmcnt(0) vmcnt(0)')
    for r in range(2):
        P = 16 + 32 * r
        T = 80
        for h in range(4):
            a.e(f'v_pk_add_f32 v[{P+2*h}:{P+2*h+1}], v[{P+2*h}:{P+2*h+1}], v[{P+8+2*h}:{P+9+2*h}]')
            a.e(f'v_pk_add_f32 v[{P+16+2*h}:{P+17+2*h}], v[{P+16+2*h}:{P+17+2*h}], v[{P+24+2*h}:{P+25+2*h}]')
        for h in range(4):
            a.e(f'v_pk_add_f32 v[{P+2*h}:{P+2*h+1}], v[{P+2*h}:{P+2*h+1}], v[{P+16+2*h}:{P+17+2*h}]')
        round_pairs(a, P, T, 8)
        a.e(f'v_lshlrev_b32 v{106}, 16, v{104+r}')
        for h in range(4):
            a.e(f'v_pk_add_f32 v[{P+2*h}:{P+2*h+1}], v[{P+2*h}:{P+2*h+1}], v[106:107] op_sel:[0,0] op_sel_hi:[1,0]')
        round_pairs(a, P, T, 8)
        H = 96 + 4 * r
        for i in range(4):
            a.e(f'v_lshlrev_b32 v{P+8+i}, 16, v{H+i}')
            a.e(f'v_and_b32 v{P+12+i}, 0xffff0000, v{H+i}')
        for h in range(4):
            a.e(f'v_pk_add_f32 v[{P+2*h}:{P+2*h+1}], v[{P+2*h}:{P+2*h+1}], v[{P+8+2*h}:{P+9+2*h}]')
        O = 88 + 4 * r
        for i in range(4):
            a.e(f'v_cvt_pk_bf16_f32 v{O+i}, v{P+i}, v{P+4+i}')
        if r == 1:
            a.e(f'v_add_u32 v8, {8*896}, v8')
        a.e(f'buffer_store_dwordx4 v[{O}:{O+3}], v8, s[{S_T2}:{S_T2+3}], 0 offen')


def kernel(a, name, body, nwg=256):
    lend = a.lab('end')
    a.raw(f'.globl {name}')
    a.raw('.p2align 8')
    a.raw(f'.type {name},@function')
    a.raw(f'{name}:')
    prologue(a, nwg, lend)
    body(a, lend)
    stamp_clk(a, 61)
    stamp(a, 63)
    stamp_flush(a)
    KIDX[0] += 1
    a.e(f'{lend}:')
    a.e('s_endpgm')


def descriptor(name):
    return f'''.amdhsa_kernel {name}
  .amdhsa_next_free_vgpr 512
  .amdhsa_next_free_sgpr 102
  .amdhsa_accum_offset 256
  .amdhsa_group_segment_fixed_size 0
  .amdhsa_kernarg_size 120
  .amdhsa_user_sgpr_count 2
  .amdhsa_user_sgpr_kernarg_segment_ptr 1
  .amdhsa_system_sgpr_workgroup_id_x 1
  .amdhsa_float_denorm_mode_32 3
.end_amdhsa_kernel
'''


def skip_if_loc_ge28(a, lend):
    a.e(f's_cmp_ge_u32 s{S_LOC}, 28')
    a.e(f's_cbranch_scc1 {lend}')


def build_multi():
    a = Prog()
    names = ['k1_stats_kernel', 'k2_conv_kernel', 'k3_ln_kernel', 'k4_gemm1_kernel', 'k5_gemm2_kernel']

    def b1(a, lend):
        phase_p1(a)

    def b2(a, lend):
        skip_if_loc_ge28(a, lend)
        kgen_loads(a)
        load_gather_table(a, 'ktab_idx')
        conv_loads(a)
        stats_loads(a)
        a.e('s_waitcnt vmcnt(0) lgkmcnt(0)')
        stamp(a, 2)
        phase_kgen(a)
        stamp(a, 5)
        phase_norm(a)
        stamp(a, 6)
        phase_conv(a)

    def b3(a, lend):
        phase_p4(a)

    def b4(a, lend):
        skip_if_loc_ge28(a, lend)
        phase_gemm1(a)

    def b5(a, lend):
        phase_gemm2(a)

    for n, b in zip(names, (b1, b2, b3, b4, b5)):
        kernel(a, n, b)
        if n == 'k2_conv_kernel':
            emit_gather_table(a, 'ktab_idx')
    nn = a.fast_insert_nops()
    head = ''
    for n in names:
        head += f'; @launch kernel={n} grid=(256,1,1) block=(256,1,1) lds={LDS_BYTES}\n'
    head += '.amdgcn_target "amdgcn-amd-amdhsa--gfx950"\n.text\n'
    tail = '.section .rodata,"a"\n'
    for n in names:
        tail += '.p2align 6\n' + descriptor(n)
    sys.stderr.write(f'instructions: {a.count()}, nops inserted: {nn}\n')
    return head + a.text() + tail


def g_store_addr(a, vd):
    a.e(f's_lshl_b32 s66, s{S_I1}, 3')
    a.e(f's_lshl_b32 s70, s{S_W}, 1')
    a.e('s_add_u32 s66, s66, s70')
    a.e('s_mul_i32 s66, s66, 7168')
    a.e(f's_mul_i32 s70, s{S_J}, 896')
    a.e('s_add_u32 s66, s66, s70')
    a.e(f's_add_u32 s66, s66, {WS_G}')
    a.e(f'v_lshl_add_u32 v{vd}, v1, 4, s66')
    a.e(f'v_mov_b32 v6, {OOB}')
    a.e('v_cmp_gt_u32 vcc, 56, v1')
    a.e(f'v_cndmask_b32 v{vd}, v6, v{vd}, vcc')


def clear_hh(a):
    a.e(f's_mul_i32 s66, s{S_B}, 7168')
    a.e(f's_add_u32 s66, s66, {WS_HH}')
    a.e('v_lshl_add_u32 v4, v0, 4, s66')
    a.e('v_add_u32 v5, 4096, v4')
    a.e(f'v_mov_b32 v6, {OOB}')
    a.e('v_cmp_gt_u32 vcc, 192, v0')
    a.e('v_cndmask_b32 v5, v6, v5, vcc')
    a.e(f'buffer_store_dwordx4 v[216:219], v4, s[{S_WS}:{S_WS+3}], 0 offen sc1')
    a.e(f'buffer_store_dwordx4 v[216:219], v5, s[{S_WS}:{S_WS+3}], 0 offen sc1')


def clear_conv_g(a):
    a.e(f's_lshl_b32 s66, s{S_P}, 13')
    a.e(f's_add_u32 s66, s66, {WS_AOUT}')
    a.e('v_lshl_add_u32 v4, v0, 4, s66')
    a.e('v_add_u32 v5, 4096, v4')
    a.e(f'buffer_store_dwordx4 v[216:219], v4, s[{S_WS}:{S_WS+3}], 0 offen sc1')
    a.e(f'buffer_store_dwordx4 v[216:219], v5, s[{S_WS}:{S_WS+3}], 0 offen sc1')
    g_store_addr(a, 4)
    a.e('v_add_u32 v5, 7168, v4')
    a.e(f'buffer_store_dwordx4 v[216:219], v4, s[{S_WS}:{S_WS+3}], 0 offen sc1')
    a.e(f'buffer_store_dwordx4 v[216:219], v5, s[{S_WS}:{S_WS+3}], 0 offen sc1')


def h1_poll(a):
    lp, ld = a.lab('h1poll'), a.lab('h1done')
    a.e('v_lshlrev_b32 v2, 6, v0')
    a.e(f's_mov_b32 s{S_SPIN}, 0')
    a.e(f'{lp}:')
    for i in range(4):
        a.e(f'buffer_load_dwordx4 v[{ST+4*i}:{ST+4*i+3}], v2, s[{S_WS}:{S_WS+3}], 0 offen offset:{WS_STATS+16*i} sc1')
    a.e('s_waitcnt vmcnt(0)')
    a.e(f'v_xor_b32 v3, s{S_TAG}, v{ST+1}')
    for i in range(1, 8):
        a.e(f'v_xor_b32 v4, s{S_TAG}, v{ST+1+2*i}')
        a.e('v_or_b32 v3, v3, v4')
    a.e('v_cmp_ne_u32 vcc, 0, v3')
    a.e(f's_cbranch_vccz {ld}')
    a.e(f's_add_u32 s{S_SPIN}, s{S_SPIN}, 1')
    a.e(f's_cmp_lt_u32 s{S_SPIN}, {SPIN_MAX}')
    a.e(f's_cbranch_scc1 {lp}')
    a.e(f'{ld}:')


def sentinel(a, ws_off, kblocks):
    lp, ld = a.lab('spoll'), a.lab('sdone')
    a.e(f's_mul_i32 s66, s{S_W}, {kblocks*7168}')
    a.e(f's_mul_i32 s67, s{S_J}, 896')
    a.e('s_add_u32 s66, s66, s67')
    a.e(f's_add_u32 s66, s66, {ws_off + 55*16 + 12}')
    a.e('v_mul_u32_u24 v4, 7168, v1')
    a.e('v_add_u32 v4, s66, v4')
    if kblocks < 64:
        a.e(f'v_mov_b32 v5, {OOB}')
        a.e(f'v_cmp_gt_u32 vcc, {kblocks}, v1')
        a.e('v_cndmask_b32 v4, v5, v4, vcc')
    a.e(f's_mov_b32 s{S_SPIN}, 0')
    a.e(f'{lp}:')
    a.e(f'buffer_load_dword v5, v4, s[{S_WS}:{S_WS+3}], 0 offen sc1')
    a.e('s_waitcnt vmcnt(0)')
    a.e('v_cmp_eq_u32 vcc, -1, v5')
    a.e(f's_cbranch_vccz {ld}')
    a.e(f's_add_u32 s{S_SPIN}, s{S_SPIN}, 1')
    a.e(f's_cmp_lt_u32 s{S_SPIN}, {SPIN_MAX}')
    a.e(f's_cbranch_scc1 {lp}')
    a.e(f'{ld}:')


def gemm_poll_main(a, ws_off, kblocks, nk, w_is_a, sb):
    GEMM_ID[0] = 1 if w_is_a else 2
    lr, lok = a.lab('gretry'), a.lab('gok')
    a.e(f's_mov_b32 s{S_RETRY}, 0')
    a.e(f'{lr}:')
    sentinel(a, ws_off, kblocks)
    stamp(a, sb)
    gemm_xaddr(a, ws_off, kblocks)
    for k in range(NS):
        gemm_xload(a, k)
    stamp(a, 43 if w_is_a else 50)
    gemm_main(a, nk, w_is_a)
    a.e(f'v_cmp_eq_u32 vcc, -1, v{VMAX}')
    a.e(f's_cbranch_vccz {lok}')
    a.e(f's_add_u32 s{S_RETRY}, s{S_RETRY}, 1')
    a.e(f's_cmp_lt_u32 s{S_RETRY}, {RETRY_MAX}')
    a.e(f's_cbranch_scc1 {lr}')
    a.e(f'{lok}:')


def build_pers():
    global PERS
    PERS = True
    a = Prog()
    name = NAME + '_kernel'

    def body(a, lend):
        lnc1, lnc2, lnc3 = a.lab('noconv'), a.lab('noconv'), a.lab('noconv')
        a.e(f's_add_u32 s66, s{P_WS}, {WS_EPOCH}')
        a.e(f's_addc_u32 s67, s{P_WS+1}, 0')
        a.e('s_load_dword s99, s[66:67], 0')
        load_xrows(a, list(range(8, 16)))
        for r in range(216, 220):
            a.e(f'v_mov_b32 v{r}, -1')
        clear_hh(a)
        a.e(f's_cmp_ge_u32 s{S_LOC}, 28')
        a.e(f's_cbranch_scc1 {lnc1}')
        clear_conv_g(a)
        kgen_loads(a)
        load_gather_table(a, 'ktab_idx')
        conv_loads(a)
        a.e('s_waitcnt lgkmcnt(0)')
        a.e(f's_add_u32 s{S_TAG}, s99, 0x9e3779b9')
        phase_p1(a, wait_x=24, wait_pub=18)
        a.e('s_waitcnt vmcnt(8)')
        stamp(a, 4)
        phase_kgen(a)
        stamp(a, 8)
        h1_poll(a)
        stamp(a, 9)
        le = a.lab('noep')
        a.e('s_cmp_lg_u32 s2, 0')
        a.e(f's_cbranch_scc1 {le}')
        a.e(f'v_mov_b32 v2, {WS_EPOCH}')
        a.e(f'v_mov_b32 v3, s{S_TAG}')
        a.e('s_mov_b64 exec, 1')
        a.e(f'buffer_store_dword v3, v2, s[{S_WS}:{S_WS+3}], 0 offen sc1')
        a.e('s_mov_b64 exec, -1')
        a.e(f'{le}:')
        phase_norm(a)
        stamp(a, 10)
        phase_conv(a)
        stamp(a, 12)
        a.e('s_barrier')
        gemm_wload(a, 8, F * 2, P_W1, W1BYTES, S_I1, 512, 0)
        stamp(a, 13)
        a.e(f's_branch {lnc2}')
        a.e(f'{lnc1}:')
        a.e('s_waitcnt lgkmcnt(0)')
        a.e(f's_add_u32 s{S_TAG}, s99, 0x9e3779b9')
        phase_p1(a, wait_x=2, wait_pub=0)
        h1_poll(a)
        a.e(f'{lnc2}:')
        phase_p4(a)
        stamp(a, 20)
        a.e(f's_cmp_ge_u32 s{S_LOC}, 28')
        a.e(f's_cbranch_scc1 {lnc3}')
        gemm_wload(a, 16, F * 2, P_W1, W1BYTES, S_I1, 512, 0, k0=8)
        stamp(a, 21)
        gemm_poll_main(a, WS_HH, 64, 16, True, 22)
        stamp(a, 23)
        gemm1_epilogue(a)
        stamp(a, 25)
        a.e('s_barrier')
        a.e(f'{lnc3}:')
        gemm_wload(a, 14, L * 2, P_W2, W2BYTES, S_I2, 448, 0)
        stamp(a, 30)
        gemm_poll_main(a, WS_G, 56, 14, False, 31)
        stamp(a, 32)
        gemm2_epilogue(a)

    kernel(a, name, body)
    emit_gather_table(a, 'ktab_idx')
    nn = a.fast_insert_nops()
    head = f'; @launch grid=(256,1,1) block=(256,1,1) lds={LDS_BYTES}\n'
    head += '.amdgcn_target "amdgcn-amd-amdhsa--gfx950"\n.text\n'
    tail = '.section .rodata,"a"\n.p2align 6\n' + descriptor(name)
    sys.stderr.write(f'instructions: {a.count()}, nops inserted: {nn}\n')
    return head + a.text() + tail


def code_prefetch(a, lstart, lend_):
    lp = a.lab('pcp')
    a.e('s_getpc_b64 s[74:75]')
    a.e(f'{lp}:')
    a.e(f's_sub_u32 s74, s74, {lp}-{lstart}')
    a.e('s_subb_u32 s75, s75, 0')
    a.e('v_lshlrev_b32 v4, 6, v0')
    a.e(f's_mov_b32 s76, {lend_}-{lstart}-4')
    a.e('v_add_u32 v5, 16384, v4')
    a.e('v_min_u32 v4, s76, v4')
    a.e('v_min_u32 v5, s76, v5')
    a.e('global_load_dword v220, v4, s[74:75]')
    a.e('global_load_dword v220, v5, s[74:75]')


def w_prefetch(a, wptr, wbytes, rowbytes, tile_sreg, rows_q):
    srd(a, S_T0, wptr, wbytes)
    a.e(f's_and_b32 s66, s{S_LOC}, 3')
    a.e(f's_mul_i32 s66, s66, {rows_q*rowbytes}')
    a.e(f's_lshl_b32 s67, s{tile_sreg}, 7')
    a.e('s_add_u32 s66, s66, s67')
    a.e('v_lshrrev_b32 v4, 1, v0')
    a.e(f's_mov_b32 s67, {rowbytes}')
    a.e('v_mul_lo_u32 v4, v4, s67')
    a.e('v_and_b32 v5, 1, v0')
    a.e('v_lshl_add_u32 v4, v5, 6, v4')
    a.e('v_add_u32 v4, s66, v4')
    for i in range(4):
        if 128 * (i + 1) > rows_q:
            a.e(f'v_mov_b32 v5, {OOB}')
            a.e(f'v_cmp_gt_u32 vcc, {2*(rows_q-128*i)}, v0')
            a.e('v_cndmask_b32 v4, v5, v4, vcc')
        a.e(f's_mov_b32 s70, {128*i*rowbytes}')
        a.e(f'buffer_load_dword v220, v4, s[{S_T0}:{S_T0+3}], s70 offen')


def clear_aout(a):
    a.e(f's_lshl_b32 s66, s{S_P}, 13')
    a.e(f's_add_u32 s66, s66, {WS_AOUT}')
    a.e('v_lshl_add_u32 v4, v0, 4, s66')
    a.e('v_add_u32 v5, 4096, v4')
    a.e(f'buffer_store_dwordx4 v[216:219], v4, s[{S_WS}:{S_WS+3}], 0 offen sc1')
    a.e(f'buffer_store_dwordx4 v[216:219], v5, s[{S_WS}:{S_WS+3}], 0 offen sc1')


def clear_g(a):
    g_store_addr(a, 4)
    a.e('v_add_u32 v5, 7168, v4')
    a.e(f'buffer_store_dwordx4 v[216:219], v4, s[{S_WS}:{S_WS+3}], 0 offen sc1')
    a.e(f'buffer_store_dwordx4 v[216:219], v5, s[{S_WS}:{S_WS+3}], 0 offen sc1')


def epoch_update(a):
    le = a.lab('noep')
    a.e('s_cmp_lg_u32 s2, 0')
    a.e(f's_cbranch_scc1 {le}')
    a.e(f'v_mov_b32 v2, {WS_EPOCH}')
    a.e(f'v_mov_b32 v3, s{S_TAG}')
    a.e('s_mov_b64 exec, 1')
    a.e(f'buffer_store_dword v3, v2, s[{S_WS}:{S_WS+3}], 0 offen sc1')
    a.e('s_mov_b64 exec, -1')
    a.e(f'{le}:')


def build_pers3():
    global PERS
    PERS = True
    a = Prog()
    name = NAME + '_kernel'

    def body(a, lend):
        lnc1, lnc2, lnc3 = a.lab('noconv'), a.lab('noconv'), a.lab('noconv')
        a.e(f's_add_u32 s66, s{P_WS}, {WS_EPOCH}')
        a.e(f's_addc_u32 s67, s{P_WS+1}, 0')
        a.e('s_load_dword s99, s[66:67], 0')
        load_xrows(a, list(range(8, 16)))
        for r in range(216, 220):
            a.e(f'v_mov_b32 v{r}, -1')
        a.e(f's_cmp_ge_u32 s{S_LOC}, 28')
        a.e(f's_cbranch_scc1 {lnc1}')
        kgen_loads(a)
        load_gather_table(a, 'ktab_idx')
        code_prefetch(a, name, 'kcode_end')
        clear_hh(a)
        clear_aout(a)
        a.e('s_waitcnt lgkmcnt(0)')
        a.e(f's_add_u32 s{S_TAG}, s99, 0x9e3779b9')
        phase_p1(a, wait_x=16, wait_pub=0)
        stamp(a, 40)
        conv_loads(a)
        stamp(a, 41)
        w_prefetch(a, P_W1, W1BYTES, F * 2, S_I1, 512)
        stamp(a, 4)
        phase_kgen(a)
        stamp(a, 8)
        h1_poll(a)
        stamp(a, 9)
        epoch_update(a)
        clear_g(a)
        w_prefetch(a, P_W2, W2BYTES, L * 2, S_I2, 448)
        phase_norm(a)
        stamp(a, 10)
        phase_conv(a)
        stamp(a, 12)
        a.e('s_barrier')
        gemm_wload(a, 8, F * 2, P_W1, W1BYTES, S_I1, 512, 0)
        stamp(a, 13)
        a.e(f's_branch {lnc2}')
        a.e(f'{lnc1}:')
        code_prefetch(a, name, 'kcode_end')
        clear_hh(a)
        a.e('s_waitcnt lgkmcnt(0)')
        a.e(f's_add_u32 s{S_TAG}, s99, 0x9e3779b9')
        phase_p1(a, wait_x=4, wait_pub=0)
        h1_poll(a)
        w_prefetch(a, P_W2, W2BYTES, L * 2, S_I2, 448)
        a.e(f'{lnc2}:')
        phase_p4(a)
        stamp(a, 20)
        a.e(f's_cmp_ge_u32 s{S_LOC}, 28')
        a.e(f's_cbranch_scc1 {lnc3}')
        gemm_wload(a, 16, F * 2, P_W1, W1BYTES, S_I1, 512, 0, k0=8)
        stamp(a, 21)
        gemm_poll_main(a, WS_HH, 64, 16, True, 22)
        stamp(a, 23)
        gemm1_epilogue(a)
        stamp(a, 25)
        a.e('s_barrier')
        a.e(f'{lnc3}:')
        gemm_wload(a, 14, L * 2, P_W2, W2BYTES, S_I2, 448, 0)
        stamp(a, 30)
        gemm_poll_main(a, WS_G, 56, 14, False, 31)
        stamp(a, 32)
        gemm2_epilogue(a)

    kernel(a, name, body)
    a.raw('kcode_end:')
    emit_gather_table(a, 'ktab_idx')
    nn = a.fast_insert_nops()
    head = f'; @launch grid=(256,1,1) block=(256,1,1) lds={LDS_BYTES}\n'
    head += '.amdgcn_target "amdgcn-amd-amdhsa--gfx950"\n.text\n'
    tail = '.section .rodata,"a"\n.p2align 6\n' + descriptor(name)
    sys.stderr.write(f'instructions: {a.count()}, nops inserted: {nn}\n')
    return head + a.text() + tail


def w_setup(a):
    srd(a, S_W1, P_W1, W1BYTES)
    srd(a, S_W2, P_W2, W2BYTES)
    a.e('v_lshrrev_b32 v4, 3, v1')
    a.e('v_bfe_u32 v5, v1, 4, 1')
    a.e('v_lshlrev_b32 v5, 1, v5')
    a.e('v_and_b32 v6, 7, v1')
    a.e('v_xor_b32 v6, v6, v5')
    a.e('v_xor_b32 v7, 4, v6')
    for vd, rowbytes, tile, rows in ((V_D1, F * 2, S_I1, 512), (V_D2, L * 2, S_I2, 448)):
        a.e(f's_mov_b32 s66, {rowbytes}')
        a.e('v_mul_lo_u32 v5, v4, s66')
        a.e(f's_mul_i32 s67, s{S_W}, {rows*rowbytes}')
        a.e(f's_lshl_b32 s66, s{tile}, 7')
        a.e('s_add_u32 s67, s67, s66')
        a.e('v_add_u32 v5, s67, v5')
        for i in range(4):
            a.e(f'v_lshl_add_u32 v{vd+i}, v{6 + (i & 1)}, 4, v5')
            if i:
                a.e(f'v_add_u32 v{vd+i}, {i*(8*rowbytes - 1024)}, v{vd+i}')
    a.e('v_lshrrev_b32 v4, 4, v1')
    a.e('v_bfe_u32 v5, v1, 2, 2')
    a.e('v_lshl_add_u32 v5, v4, 3, v5')
    a.e('v_lshlrev_b32 v5, 7, v5')
    a.e('v_and_b32 v6, 1, v1')
    a.e('v_lshl_add_u32 v5, v6, 3, v5')
    a.e('v_bfe_u32 v6, v1, 1, 1')
    a.e('v_lshl_add_u32 v5, v6, 4, v5')
    a.e('v_bfe_u32 v6, v1, 3, 1')
    a.e('v_and_b32 v4, 1, v4')
    a.e('v_lshl_add_u32 v6, v4, 1, v6')
    if ROT:
        a.e(f's_and_b32 s66, s{S_LOC}, 3')
        a.e(f's_lshr_b32 s67, s{S_LOC}, 2')
        a.e('s_lshl_b32 s67, s67, 1')
        a.e('s_lshl_b32 s70, s66, 2')
        a.e('s_add_u32 s70, s70, s67')
        a.e('s_and_b32 s70, s70, 15')
        a.e(f's_mul_i32 s{S_RW1}, s70, {32*F*2}')
        a.e(f's_mul_i32 s{S_RX1}, s70, {4*7168}')
        a.e('s_mul_i32 s66, s66, 7')
        a.e('s_lshr_b32 s66, s66, 1')
        a.e('s_add_u32 s66, s66, s67')
        a.e('s_cmp_ge_u32 s66, 14')
        a.e('s_cselect_b32 s67, 14, 0')
        a.e('s_sub_u32 s66, s66, s67')
        a.e('s_cmp_ge_u32 s66, 14')
        a.e('s_cselect_b32 s67, 14, 0')
        a.e('s_sub_u32 s66, s66, s67')
        a.e(f's_mul_i32 s{S_RW2}, s66, {32*L*2}')
        a.e(f's_mul_i32 s{S_RX2}, s66, {4*7168}')
    a.e(f's_lshl_b32 s{S_SA}, s{S_W}, 14')
    a.e(f's_add_u32 s{S_SA}, s{S_SA}, {L_WA}')
    a.e(f's_mul_i32 s{S_SB}, s{S_W}, 20480')
    a.e(f's_add_u32 s{S_SB}, s{S_SB}, {L_WB}')
    for mu in range(4):
        a.e(f'v_xor_b32 v4, {mu}, v6')
        a.e('v_lshl_add_u32 v4, v4, 5, v5')
        a.e(f'v_add_u32 v{V_TA+mu}, s{S_SA}, v4')
        a.e(f'v_add_u32 v{V_TB+mu}, s{S_SB}, v4')


def slot(name):
    return (S_SA, V_TA, int(name[1])) if name[0] == 'A' else (S_SB, V_TB, int(name[1]))


def w_dma1(a, mat, slab, sl, i):
    sb, _, si = slot(sl)
    vd, srd_, rowbytes = (V_D1, S_W1, F * 2) if mat == 1 else (V_D2, S_W2, L * 2)
    if i == 0:
        if mat == 1:
            rot_off(a, slab, S_RW1, 16, 32 * rowbytes)
        else:
            rot_off(a, slab, S_RW2, 14, 32 * rowbytes)
        a.e(f's_add_u32 m0, s{sb}, {si*4096}')
    a.e(f'buffer_load_dwordx4 v{vd + i}, s[{srd_}:{srd_+3}], s70 offen offset:{1024*i} lds')


def w_dma(a, mat, slab, sl):
    for i in range(4):
        w_dma1(a, mat, slab, sl, i)


def w_tr(a, slab, sl):
    _, vt, si = slot(sl)
    for mu in range(4):
        r = (slab * 4 + mu) * 4
        a.e(f'ds_read_b64_tr_b16 a[{r}:{r+1}], v{vt+mu} offset:{si*4096}')
        a.e(f'ds_read_b64_tr_b16 a[{r+2}:{r+3}], v{vt+mu} offset:{si*4096 + 512}')


AS = ['A0', 'A1', 'A2', 'A3']
BS = ['B0', 'B1', 'B2', 'B3', 'B4']


def build_pers4():
    global PERS
    PERS = True
    a = Prog()
    name = NAME + '_kernel'

    def body(a, lend):
        lnc1, lnc2, lnc3, lnc4, lnc5, lnc6 = [a.lab('noconv') for _ in range(6)]

        def if_conv_skip(l):
            a.e(f's_cmp_ge_u32 s{S_LOC}, 28')
            a.e(f's_cbranch_scc1 {l}')

        a.e(f's_add_u32 s66, s{P_WS}, {WS_EPOCH}')
        a.e(f's_addc_u32 s67, s{P_WS+1}, 0')
        a.e('s_load_dword s99, s[66:67], 0')
        load_xrows(a, list(range(8, 16)))
        for r in range(216, 220):
            a.e(f'v_mov_b32 v{r}, -1')
        if_conv_skip(lnc1)
        kgen_loads(a)
        load_gather_table(a, 'ktab_idx')
        code_prefetch(a, name, 'kcode_end')
        clear_hh(a)
        clear_aout(a)
        a.e('s_barrier')
        col_addr(a)
        for j in range(4):
            col_load(a, j)
        w_setup(a)
        a.e('s_waitcnt lgkmcnt(0)')
        a.e(f's_add_u32 s{S_TAG}, s99, 0x9e3779b9')
        phase_p1(a, wait_x=20, wait_pub=4)
        stamp(a, 4)
        hk = [lambda j=j: col_load(a, j) for j in range(4, 8)]
        phase_kgen(a, hk[:2], hk[2:])
        stamp(a, 8)
        h1_poll(a)
        stamp(a, 9)
        epoch_update(a)
        clear_g(a)
        for k in range(4):
            w_dma(a, 1, k, AS[k])
        phase_norm(a)
        stamp(a, 10)
        phase_conv(a)
        stamp(a, 12)
        for k in range(4):
            w_tr(a, k, AS[k])
        a.e('s_waitcnt lgkmcnt(0)')
        a.e('s_barrier')
        for k in range(4, 8):
            w_dma(a, 1, k, AS[k - 4])
        for k in range(8, 13):
            w_dma(a, 1, k, BS[k - 8])
        stamp(a, 13)
        a.e(f's_branch {lnc2}')
        a.e(f'{lnc1}:')
        code_prefetch(a, name, 'kcode_end')
        clear_hh(a)
        w_setup(a)
        a.e('s_waitcnt lgkmcnt(0)')
        a.e(f's_add_u32 s{S_TAG}, s99, 0x9e3779b9')
        phase_p1(a, wait_x=4, wait_pub=0)
        h1_poll(a)
        a.e(f'{lnc2}:')
        phase_p4(a)
        stamp(a, 20)
        if_conv_skip(lnc3)
        for k in range(4, 8):
            w_tr(a, k, AS[k - 4])
        for k in range(8, 13):
            w_tr(a, k, BS[k - 8])
        a.e('s_waitcnt lgkmcnt(0)')
        for k in range(13, 16):
            w_dma(a, 1, k, AS[k - 13])
        a.e(f'{lnc3}:')
        for k in range(5):
            w_dma(a, 2, k, BS[k])
        if_conv_skip(lnc4)
        a.e('s_waitcnt vmcnt(20)')
        for k in range(13, 16):
            w_tr(a, k, AS[k - 13])
        a.e('s_waitcnt lgkmcnt(0)')
        stamp(a, 21)
        gemm_poll_main(a, WS_HH, 64, 16, True, 22)
        stamp(a, 23)
        a.e(f'{lnc4}:')
        a.e('s_waitcnt vmcnt(0)')
        for k in range(5):
            w_tr(a, k, BS[k])
        a.e('s_waitcnt lgkmcnt(0)')
        for k in range(5, 10):
            w_dma(a, 2, k, BS[k - 5])
        if_conv_skip(lnc5)
        a.e('s_barrier')
        gemm1_epilogue(a, lambda: [w_dma(a, 2, k, AS[k - 10]) for k in range(10, 14)])
        stamp(a, 25)
        a.e('s_waitcnt vmcnt(2)')
        a.e(f's_branch {lnc6}')
        a.e(f'{lnc5}:')
        for k in range(10, 14):
            w_dma(a, 2, k, AS[k - 10])
        a.e('s_waitcnt vmcnt(0)')
        a.e(f'{lnc6}:')
        for k in range(5, 10):
            w_tr(a, k, BS[k - 5])
        for k in range(10, 14):
            w_tr(a, k, AS[k - 10])
        a.e('s_waitcnt lgkmcnt(0)')
        stamp(a, 30)
        gemm_poll_main(a, WS_G, 56, 14, False, 31)
        stamp(a, 32)
        a.e('s_barrier')
        gemm2_epilogue(a)

    kernel(a, name, body)
    a.raw('kcode_end:')
    emit_gather_table(a, 'ktab_idx')
    nn = a.fast_insert_nops()
    head = f'; @launch grid=(256,1,1) block=(256,1,1) lds={LDS_BYTES}\n'
    head += '.amdgcn_target "amdgcn-amd-amdhsa--gfx950"\n.text\n'
    tail = '.section .rodata,"a"\n.p2align 6\n' + descriptor(name)
    sys.stderr.write(f'instructions: {a.count()}, nops inserted: {nn}\n')
    return head + a.text() + tail


def p1_publish_xn(a):
    bcast_stats(a, 16)
    for j in range(8):
        a.e(f'v_mov_b32 v{48+j}, v{8+j}')
    for j in range(8):
        d = 64 + 2 * j
        norm_tok(a, j, 48 + j, d)
        a.e(f'v_cvt_pk_bf16_f32 v{48+j}, v{d}, v{d+1}')
    for j in range(8):
        d = 64 + 2 * j
        a.e(f'v_lshlrev_b32 v{d}, 16, v{48+j}')
        a.e(f'v_and_b32 v{d+1}, 0xffff0000, v{48+j}')
    for i in range(4):
        a.e(f'v_cvt_pk_f16_f32 v{80+i}, v{64+4*i}, v{66+4*i}')
        a.e(f'v_cvt_pk_f16_f32 v{84+i}, v{65+4*i}, v{67+4*i}')
    a.e(f's_mul_i32 s66, s{S_W}, {56*8192}')
    a.e(f's_lshl_b32 s67, s{S_B}, 4')
    a.e('s_add_u32 s66, s66, s67')
    a.e(f's_add_u32 s66, s66, {WS_XN}')
    a.e('v_lshl_add_u32 v4, v1, 13, s66')
    a.e(f'v_mov_b32 v5, {OOB}')
    a.e('v_cmp_gt_u32 vcc, 56, v1')
    a.e('v_cndmask_b32 v4, v5, v4, vcc')
    a.e('v_add_u32 v5, 4096, v4')
    a.e(f'buffer_store_dwordx4 v[80:83], v4, s[{S_WS}:{S_WS+3}], 0 offen sc1')
    a.e(f'buffer_store_dwordx4 v[84:87], v5, s[{S_WS}:{S_WS+3}], 0 offen sc1')


def publish_flag(a, vm=0):
    a.e(f's_waitcnt vmcnt({vm})')
    a.e('s_barrier')
    l = a.lab('noflag')
    a.e(f's_cmp_lg_u32 s{S_W}, 0')
    a.e(f's_cbranch_scc1 {l}')
    a.e(f's_lshl_b32 s66, s{S_B}, 6')
    a.e(f's_add_u32 s66, s66, {WS_FLAG}')
    a.e('v_mov_b32 v2, s66')
    a.e(f'v_mov_b32 v3, s{S_TAG}')
    a.e('s_mov_b64 exec, 1')
    a.e(f'buffer_store_dword v3, v2, s[{S_WS}:{S_WS+3}], 0 offen sc1')
    a.e('s_mov_b64 exec, -1')
    a.e(f'{l}:')


def flag_poll(a):
    lp, ld = a.lab('fpoll'), a.lab('fdone')
    a.e(f'v_lshlrev_b32 v2, 6, v0')
    a.e(f'v_add_u32 v2, {WS_FLAG}, v2')
    a.e(f's_mov_b32 s{S_SPIN}, 0')
    a.e(f'{lp}:')
    a.e(f'buffer_load_dword v3, v2, s[{S_WS}:{S_WS+3}], 0 offen sc1')
    a.e('s_waitcnt vmcnt(0)')
    a.e(f'v_cmp_ne_u32 vcc, s{S_TAG}, v3')
    a.e(f's_cbranch_vccz {ld}')
    a.e(f's_add_u32 s{S_SPIN}, s{S_SPIN}, 1')
    a.e(f's_cmp_lt_u32 s{S_SPIN}, {SPIN_MAX}')
    a.e(f's_cbranch_scc1 {lp}')
    a.e(f'{ld}:')


def load_u(a):
    a.e(f's_lshl_b32 s66, s{S_P}, 13')
    a.e(f's_add_u32 s66, s66, {WS_XN}')
    a.e('v_lshl_add_u32 v2, v0, 4, s66')
    a.e('v_add_u32 v3, 4096, v2')
    a.e(f'buffer_load_dwordx4 v[96:99], v2, s[{S_WS}:{S_WS+3}], 0 offen sc1')
    a.e(f'buffer_load_dwordx4 v[100:103], v3, s[{S_WS}:{S_WS+3}], 0 offen sc1')


def store_u(a, vm):
    a.e('v_lshlrev_b32 v2, 4, v0')
    a.e(f's_waitcnt vmcnt({vm})')
    a.e(f'ds_write_b128 v2, v[96:99] offset:{L_U + 512}')
    a.e(f'ds_write_b128 v2, v[100:103] offset:{L_U + UCH + 512}')
    a.e('s_waitcnt lgkmcnt(0)')
    a.e('s_barrier')


def l2_stream(a, srd_, rowbytes, col_sreg_expr, lanes, row0_expr, nrows, rowstep):
    col_sreg_expr()
    row0_expr()
    a.e(f's_mul_i32 s67, s67, {rowbytes}')
    a.e('s_add_u32 s70, s66, s67')
    a.e('v_lshlrev_b32 v4, 4, v1')
    if lanes < 64:
        a.e(f'v_mov_b32 v5, {OOB}')
        a.e(f'v_cmp_gt_u32 vcc, {lanes}, v1')
        a.e('v_cndmask_b32 v4, v5, v4, vcc')
    l = a.lab('l2s')
    a.e(f's_mov_b32 s71, {nrows // 4}')
    a.e(f'{l}:')
    for i in range(4):
        a.e(f'buffer_load_dwordx4 v[220:223], v4, s[{srd_}:{srd_+3}], s70 offen')
        a.e(f's_add_u32 s70, s70, {rowstep*rowbytes}')
    a.e('s_waitcnt vmcnt(40)')
    a.e('s_sub_u32 s71, s71, 1')
    a.e('s_cmp_lg_u32 s71, 0')
    a.e(f's_cbranch_scc1 {l}')


def helper_w1(a):
    def col():
        a.e(f's_lshr_b32 s66, s{S_XCD}, 1')
        a.e('s_mul_i32 s66, s66, 896')

    def row():
        a.e(f's_sub_u32 s67, s{S_LOC}, 28')
        a.e('s_lshl_b32 s67, s67, 9')
        a.e(f's_add_u32 s67, s67, s{S_W}')
    l2_stream(a, S_W1, F * 2, col, 56, row, 128, 4)


def helper_w2(a, first, count):
    def col():
        a.e(f's_lshr_b32 s66, s{S_XCD}, 1')
        a.e('s_lshl_b32 s66, s66, 10')

    def row():
        a.e(f's_sub_u32 s67, s{S_LOC}, 28')
        a.e('s_mul_i32 s67, s67, 448')
        a.e(f's_add_u32 s67, s67, s{S_W}')
        a.e(f's_add_u32 s67, s67, {first}')
    l2_stream(a, S_W2, L * 2, col, 64, row, count // 4, 4)


def quarter_prefetch(a, mat):
    srd_, rowbytes, tile, rows_q, n = (S_W1, F * 2, S_I1, 512, 16) if mat == 1 else (S_W2, L * 2, S_I2, 448, 14)
    a.e(f's_and_b32 s66, s{S_LOC}, 3')
    a.e(f's_mul_i32 s66, s66, {rows_q}')
    a.e(f's_mul_i32 s67, s{S_W}, {rows_q // 4}')
    a.e('s_add_u32 s66, s66, s67')
    a.e(f's_mul_i32 s66, s66, {rowbytes}')
    a.e(f's_lshl_b32 s67, s{tile}, 7')
    a.e('s_add_u32 s70, s66, s67')
    a.e('v_lshrrev_b32 v4, 3, v1')
    a.e(f's_mov_b32 s67, {rowbytes}')
    a.e('v_mul_lo_u32 v4, v4, s67')
    a.e('v_and_b32 v5, 7, v1')
    a.e('v_lshl_add_u32 v4, v5, 4, v4')
    l = a.lab('qpf')
    a.e(f's_mov_b32 s71, {n // 2}')
    a.e(f'{l}:')
    for i in range(2):
        a.e(f'buffer_load_dwordx4 v[220:223], v4, s[{srd_}:{srd_+3}], s70 offen')
        a.e(f's_add_u32 s70, s70, {8*rowbytes}')
    a.e('s_sub_u32 s71, s71, 1')
    a.e('s_cmp_lg_u32 s71, 0')
    a.e(f's_cbranch_scc1 {l}')


def qpf_setup(a, mat, vd, sd):
    srd_, rowbytes, tile, rows_q, n = (S_W1, F * 2, S_I1, 512, 16) if mat == 1 else (S_W2, L * 2, S_I2, 448, 14)
    a.e(f's_and_b32 s66, s{S_LOC}, 3')
    a.e(f's_mul_i32 s66, s66, {rows_q}')
    a.e(f's_mul_i32 s67, s{S_W}, {rows_q // 4}')
    a.e('s_add_u32 s66, s66, s67')
    a.e(f's_mul_i32 s66, s66, {rowbytes}')
    a.e(f's_lshl_b32 s67, s{tile}, 7')
    a.e(f's_add_u32 s{sd}, s66, s67')
    a.e(f'v_lshrrev_b32 v{vd}, 3, v1')
    a.e(f's_mov_b32 s67, {rowbytes}')
    a.e(f'v_mul_lo_u32 v{vd}, v{vd}, s67')
    a.e('v_and_b32 v5, 7, v1')
    a.e(f'v_lshl_add_u32 v{vd}, v5, 4, v{vd}')


def qpf_load(a, mat, vd, sd):
    srd_, rowbytes = (S_W1, F * 2) if mat == 1 else (S_W2, L * 2)
    a.e(f'buffer_load_dwordx4 v[220:223], v{vd}, s[{srd_}:{srd_+3}], s{sd} offen')
    a.e(f's_add_u32 s{sd}, s{sd}, {8*rowbytes}')


def build_pers5():
    global PERS
    PERS = True
    a = Prog()
    name = NAME + '_kernel'

    def body(a, lend):
        lnc1, lnc2, lnc3, lnc4, lnc5, lnc6 = [a.lab('noconv') for _ in range(6)]

        def if_conv_skip(l):
            a.e(f's_cmp_ge_u32 s{S_LOC}, 28')
            a.e(f's_cbranch_scc1 {l}')

        a.e(f's_add_u32 s66, s{P_WS}, {WS_EPOCH}')
        a.e(f's_addc_u32 s67, s{P_WS+1}, 0')
        a.e('s_load_dword s99, s[66:67], 0')
        load_xrows(a, list(range(8, 16)))
        for r in range(216, 220):
            a.e(f'v_mov_b32 v{r}, -1')
        if_conv_skip(lnc1)
        kgen_loads(a)
        load_gather_table(a, 'ktab_idx')
        clear_hh(a)
        clear_aout(a)
        w_setup(a)
        quarter_prefetch(a, 1)
        a.e('s_waitcnt lgkmcnt(0)')
        a.e(f's_add_u32 s{S_TAG}, s99, 0x9e3779b9')
        a.e('s_waitcnt vmcnt(30)')
        stamp(a, 2)
        ln_stats(a, list(range(8, 16)), 16, L_RED0, 4)
        stamp(a, 3)
        p1_publish_xn(a)
        stamp(a, 4)
        a.e('s_waitcnt vmcnt(24)')
        kgen_channel(a, 0, DK0)
        publish_flag(a)
        quarter_prefetch(a, 2)
        stamp(a, 40)
        phase_kgen(a, skip0=True)
        stamp(a, 8)
        flag_poll(a)
        a.e('s_barrier')
        stamp(a, 9)
        load_u(a)
        epoch_update(a)
        clear_g(a)
        store_u(a, 2)
        stamp(a, 10)
        hk = []
        for k in range(4):
            for i in range(4):
                hk.append(lambda k=k, i=i: w_dma1(a, 1, k, AS[k], i))
        phase_conv(a, hk)
        stamp(a, 12)
        for k in range(4):
            w_tr(a, k, AS[k])
        a.e('s_waitcnt lgkmcnt(0)')
        a.e('s_barrier')
        for k in range(4, 8):
            w_dma(a, 1, k, AS[k - 4])
        for k in range(8, 13):
            w_dma(a, 1, k, BS[k - 8])
        stamp(a, 13)
        a.e(f's_branch {lnc2}')
        a.e(f'{lnc1}:')
        clear_hh(a)
        code_prefetch(a, name, 'kcode_end')
        w_setup(a)
        a.e('s_waitcnt lgkmcnt(0)')
        a.e(f's_add_u32 s{S_TAG}, s99, 0x9e3779b9')
        a.e('s_waitcnt vmcnt(4)')
        ln_stats(a, list(range(8, 16)), 16, L_RED0, 4)
        p1_publish_xn(a)
        publish_flag(a)
        quarter_prefetch(a, 2)
        stamp(a, 41)
        flag_poll(a)
        a.e('s_barrier')
        stamp(a, 42)
        a.e(f'{lnc2}:')
        phase_p4(a)
        stamp(a, 20)
        if_conv_skip(lnc3)
        for k in range(4, 8):
            w_tr(a, k, AS[k - 4])
        for k in range(8, 13):
            w_tr(a, k, BS[k - 8])
        a.e('s_waitcnt lgkmcnt(0)')
        for k in range(13, 16):
            w_dma(a, 1, k, AS[k - 13])
        for k in range(5):
            w_dma(a, 2, k, BS[k])
        a.e('s_waitcnt vmcnt(20)')
        for k in range(13, 16):
            w_tr(a, k, AS[k - 13])
        a.e('s_waitcnt lgkmcnt(0)')
        stamp(a, 21)
        gemm_poll_main(a, WS_HH, 64, 16, True, 22)
        stamp(a, 23)
        a.e('s_barrier')
        gemm1_epilogue(a)
        stamp(a, 25)
        for k in range(5):
            w_tr(a, k, BS[k])
        a.e('s_waitcnt lgkmcnt(0)')
        a.e('s_barrier')
        a.e(f's_branch {lnc5}')
        a.e(f'{lnc3}:')
        for k in range(5):
            w_dma(a, 2, k, BS[k])
        a.e('s_waitcnt vmcnt(0)')
        for k in range(5):
            w_tr(a, k, BS[k])
        a.e('s_waitcnt lgkmcnt(0)')
        a.e(f'{lnc5}:')
        for k in range(5, 10):
            w_dma(a, 2, k, BS[k - 5])
        for k in range(10, 14):
            w_dma(a, 2, k, AS[k - 10])
        a.e('s_waitcnt vmcnt(16)')
        for k in range(5, 10):
            w_tr(a, k, BS[k - 5])
        a.e('s_waitcnt vmcnt(0)')
        for k in range(10, 14):
            w_tr(a, k, AS[k - 10])
        a.e('s_waitcnt lgkmcnt(0)')
        stamp(a, 30)
        gemm_poll_main(a, WS_G, 56, 14, False, 31)
        stamp(a, 32)
        a.e('s_barrier')
        gemm2_epilogue(a)

    kernel(a, name, body)
    a.raw('kcode_end:')
    emit_gather_table(a, 'ktab_idx')
    nn = a.fast_insert_nops()
    head = f'; @launch grid=(256,1,1) block=(256,1,1) lds={LDS_BYTES}\n'
    head += '.amdgcn_target "amdgcn-amd-amdhsa--gfx950"\n.text\n'
    tail = '.section .rodata,"a"\n.p2align 6\n' + descriptor(name)
    sys.stderr.write(f'instructions: {a.count()}, nops inserted: {nn}\n')
    return head + a.text() + tail


def build_pers6():
    global PERS
    PERS = True
    a = Prog()
    name = NAME + '_kernel'

    def body(a, lend):
        lnc1, lnc2, lnc3, lnc4, lnc5, lnc6 = [a.lab('noconv') for _ in range(6)]

        def if_conv_skip(l):
            a.e(f's_cmp_ge_u32 s{S_LOC}, 28')
            a.e(f's_cbranch_scc1 {l}')

        a.e(f's_add_u32 s66, s{P_WS}, {WS_EPOCH}')
        a.e(f's_addc_u32 s67, s{P_WS+1}, 0')
        a.e('s_load_dword s99, s[66:67], 0')
        load_xrows(a, list(range(8, 16)))
        for r in range(216, 220):
            a.e(f'v_mov_b32 v{r}, -1')
        if_conv_skip(lnc1)
        kgen_loads(a)
        load_gather_table(a, 'ktab_idx')
        w_setup(a)
        a.e('s_waitcnt lgkmcnt(0)')
        a.e(f's_add_u32 s{S_TAG}, s99, 0x9e3779b9')
        a.e('s_waitcnt vmcnt(10)')
        for k in range(5):
            w_dma(a, 1, k, BS[k])
        stamp(a, 2)
        ln_stats(a, list(range(8, 16)), 16, L_RED0, 4)
        stamp(a, 3)
        p1_publish_xn(a)
        clear_hh(a)
        clear_aout(a)
        stamp(a, 4)
        a.e('s_waitcnt vmcnt(28)')
        kgen_channel(a, 0, DK0)
        publish_flag(a)
        for k in range(5):
            w_tr(a, k, BS[k])
        stamp(a, 40)
        phase_kgen(a, skip0=True)
        stamp(a, 8)
        flag_poll(a)
        a.e('s_barrier')
        stamp(a, 9)
        load_u(a)
        epoch_update(a)
        clear_g(a)
        store_u(a, 2)
        stamp(a, 10)
        hk = []
        for k in range(4):
            for i in range(4):
                hk.append(lambda k=k, i=i: w_dma1(a, 1, 5 + k, AS[k], i))
        phase_conv(a, hk)
        stamp(a, 12)
        for k in range(4):
            w_tr(a, 5 + k, AS[k])
        a.e('s_waitcnt lgkmcnt(0)')
        a.e('s_barrier')
        for k in range(9, 14):
            w_dma(a, 1, k, BS[k - 9])
        for k in range(14, 16):
            w_dma(a, 1, k, AS[k - 14])
        stamp(a, 13)
        a.e(f's_branch {lnc2}')
        a.e(f'{lnc1}:')
        code_prefetch(a, name, 'kcode_end')
        w_setup(a)
        a.e('s_waitcnt lgkmcnt(0)')
        a.e(f's_add_u32 s{S_TAG}, s99, 0x9e3779b9')
        a.e('s_waitcnt vmcnt(2)')
        ln_stats(a, list(range(8, 16)), 16, L_RED0, 4)
        p1_publish_xn(a)
        clear_hh(a)
        publish_flag(a)
        stamp(a, 41)
        flag_poll(a)
        a.e('s_barrier')
        stamp(a, 42)
        a.e(f'{lnc2}:')
        phase_p4(a)
        stamp(a, 20)
        if_conv_skip(lnc3)
        for k in range(9, 14):
            w_tr(a, k, BS[k - 9])
        for k in range(14, 16):
            w_tr(a, k, AS[k - 14])
        a.e('s_waitcnt lgkmcnt(0)')
        for k in range(5):
            w_dma(a, 2, k, BS[k])
        stamp(a, 21)
        gemm_poll_main(a, WS_HH, 64, 16, True, 22)
        stamp(a, 23)
        a.e('s_barrier')
        gemm1_epilogue(a)
        stamp(a, 25)
        for k in range(5):
            w_tr(a, k, BS[k])
        a.e('s_waitcnt lgkmcnt(0)')
        a.e('s_barrier')
        a.e(f's_branch {lnc5}')
        a.e(f'{lnc3}:')
        for k in range(5):
            w_dma(a, 2, k, BS[k])
        a.e('s_waitcnt vmcnt(0)')
        for k in range(5):
            w_tr(a, k, BS[k])
        a.e('s_waitcnt lgkmcnt(0)')
        a.e(f'{lnc5}:')
        for k in range(5, 10):
            w_dma(a, 2, k, BS[k - 5])
        for k in range(10, 14):
            w_dma(a, 2, k, AS[k - 10])
        a.e('s_waitcnt vmcnt(16)')
        for k in range(5, 10):
            w_tr(a, k, BS[k - 5])
        a.e('s_waitcnt vmcnt(0)')
        for k in range(10, 14):
            w_tr(a, k, AS[k - 10])
        a.e('s_waitcnt lgkmcnt(0)')
        stamp(a, 30)
        gemm_poll_main(a, WS_G, 56, 14, False, 31)
        stamp(a, 32)
        a.e('s_barrier')
        gemm2_epilogue(a)

    kernel(a, name, body)
    a.raw('kcode_end:')
    emit_gather_table(a, 'ktab_idx')
    nn = a.fast_insert_nops()
    head = f'; @launch grid=(256,1,1) block=(256,1,1) lds={LDS_BYTES}\n'
    head += '.amdgcn_target "amdgcn-amd-amdhsa--gfx950"\n.text\n'
    tail = '.section .rodata,"a"\n.p2align 6\n' + descriptor(name)
    sys.stderr.write(f'instructions: {a.count()}, nops inserted: {nn}\n')
    return head + a.text() + tail


def build_pers7():
    global PERS
    PERS = True
    a = Prog()
    name = NAME + '_kernel'

    def body(a, lend):
        lnc1, lnc2, lnc3, lnc4, lnc5, lnc6 = [a.lab('noconv') for _ in range(6)]

        def if_conv_skip(l):
            a.e(f's_cmp_ge_u32 s{S_LOC}, 28')
            a.e(f's_cbranch_scc1 {l}')

        a.e(f's_add_u32 s66, s{P_WS}, {WS_EPOCH}')
        a.e(f's_addc_u32 s67, s{P_WS+1}, 0')
        a.e('s_load_dword s99, s[66:67], 0')
        load_xrows(a, list(range(8, 16)))
        for r in range(216, 220):
            a.e(f'v_mov_b32 v{r}, -1')
        if_conv_skip(lnc1)
        kgen_loads(a)
        load_gather_table(a, 'ktab_idx')
        w_setup(a)
        a.e('s_waitcnt lgkmcnt(0)')
        a.e(f's_add_u32 s{S_TAG}, s99, 0x9e3779b9')
        a.e('s_waitcnt vmcnt(10)')
        stamp(a, 2)
        ln_stats(a, list(range(8, 16)), 16, L_RED0, 4)
        stamp(a, 3)
        p1_publish_xn(a)
        clear_hh(a)
        clear_aout(a)
        quarter_prefetch(a, 1)
        stamp(a, 4)
        a.e('s_waitcnt vmcnt(24)')
        kgen_channel(a, 0, DK0)
        publish_flag(a, 16)
        for k in range(5):
            w_dma(a, 1, k, BS[k])
        stamp(a, 40)
        kgen_channel(a, 1, DK1)
        a.e('s_waitcnt vmcnt(0)')
        for k in range(5):
            w_tr(a, k, BS[k])
        phase_kgen(a, skip0=True, skip1=True)
        stamp(a, 8)
        flag_poll(a)
        a.e('s_barrier')
        stamp(a, 9)
        load_u(a)
        epoch_update(a)
        clear_g(a)
        store_u(a, 2)
        stamp(a, 10)
        hk = []
        for k in range(4):
            for i in range(4):
                hk.append(lambda k=k, i=i: w_dma1(a, 1, 5 + k, AS[k], i))
        qpf_setup(a, 2, 222 - 7, 90)
        hk += [lambda: qpf_load(a, 2, 222 - 7, 90) for _ in range(14)]
        phase_conv(a, hk, pre_vm=14)
        stamp(a, 12)
        for k in range(4):
            w_tr(a, 5 + k, AS[k])
        a.e('s_waitcnt lgkmcnt(0)')
        a.e('s_barrier')
        for k in range(9, 14):
            w_dma(a, 1, k, BS[k - 9])
        for k in range(14, 16):
            w_dma(a, 1, k, AS[k - 14])
        stamp(a, 13)
        a.e(f's_branch {lnc2}')
        a.e(f'{lnc1}:')
        code_prefetch(a, name, 'kcode_end')
        w_setup(a)
        a.e('s_waitcnt lgkmcnt(0)')
        a.e(f's_add_u32 s{S_TAG}, s99, 0x9e3779b9')
        a.e('s_waitcnt vmcnt(2)')
        ln_stats(a, list(range(8, 16)), 16, L_RED0, 4)
        p1_publish_xn(a)
        clear_hh(a)
        publish_flag(a)
        quarter_prefetch(a, 2)
        stamp(a, 41)
        flag_poll(a)
        a.e('s_barrier')
        stamp(a, 42)
        a.e(f'{lnc2}:')
        phase_p4(a)
        stamp(a, 20)
        if_conv_skip(lnc3)
        for k in range(9, 14):
            w_tr(a, k, BS[k - 9])
        for k in range(14, 16):
            w_tr(a, k, AS[k - 14])
        a.e('s_waitcnt lgkmcnt(0)')
        for k in range(5):
            w_dma(a, 2, k, BS[k])
        stamp(a, 21)
        gemm_poll_main(a, WS_HH, 64, 16, True, 22)
        stamp(a, 23)
        a.e('s_barrier')
        gemm1_epilogue(a)
        stamp(a, 25)
        for k in range(5):
            w_tr(a, k, BS[k])
        a.e('s_waitcnt lgkmcnt(0)')
        a.e('s_barrier')
        a.e(f's_branch {lnc5}')
        a.e(f'{lnc3}:')
        for k in range(5):
            w_dma(a, 2, k, BS[k])
        a.e('s_waitcnt vmcnt(0)')
        for k in range(5):
            w_tr(a, k, BS[k])
        a.e('s_waitcnt lgkmcnt(0)')
        a.e(f'{lnc5}:')
        for k in range(5, 10):
            w_dma(a, 2, k, BS[k - 5])
        for k in range(10, 14):
            w_dma(a, 2, k, AS[k - 10])
        a.e('s_waitcnt vmcnt(16)')
        for k in range(5, 10):
            w_tr(a, k, BS[k - 5])
        a.e('s_waitcnt vmcnt(0)')
        for k in range(10, 14):
            w_tr(a, k, AS[k - 10])
        a.e('s_waitcnt lgkmcnt(0)')
        stamp(a, 30)
        gemm_poll_main(a, WS_G, 56, 14, False, 31)
        stamp(a, 32)
        a.e('s_barrier')
        gemm2_epilogue(a)

    kernel(a, name, body)
    a.raw('kcode_end:')
    emit_gather_table(a, 'ktab_idx')
    nn = a.fast_insert_nops()
    head = f'; @launch grid=(256,1,1) block=(256,1,1) lds={LDS_BYTES}\n'
    head += '.amdgcn_target "amdgcn-amd-amdhsa--gfx950"\n.text\n'
    tail = '.section .rodata,"a"\n.p2align 6\n' + descriptor(name)
    sys.stderr.write(f'instructions: {a.count()}, nops inserted: {nn}\n')
    return head + a.text() + tail


def build_pers8():
    global PERS, ROT
    PERS = True
    ROT = True
    a = Prog()
    name = NAME + '_kernel'

    def body(a, lend):
        lnc1, lnc2, lnc3, lnc4, lnc5, lnc6 = [a.lab('noconv') for _ in range(6)]

        def if_conv_skip(l):
            a.e(f's_cmp_ge_u32 s{S_LOC}, 28')
            a.e(f's_cbranch_scc1 {l}')

        a.e(f's_add_u32 s66, s{P_WS}, {WS_EPOCH}')
        a.e(f's_addc_u32 s67, s{P_WS+1}, 0')
        a.e('s_load_dword s99, s[66:67], 0')
        load_xrows(a, list(range(8, 16)))
        for r in range(216, 220):
            a.e(f'v_mov_b32 v{r}, -1')
        if_conv_skip(lnc1)
        kgen_loads(a)
        load_gather_table(a, 'ktab_idx')
        w_setup(a)
        a.e('s_waitcnt lgkmcnt(0)')
        a.e(f's_add_u32 s{S_TAG}, s99, 0x9e3779b9')
        a.e('s_waitcnt vmcnt(10)')
        stamp(a, 2)
        ln_stats(a, list(range(8, 16)), 16, L_RED0, 4)
        stamp(a, 3)
        p1_publish_xn(a)
        clear_hh(a)
        clear_aout(a)
        stamp(a, 4)
        a.e('s_waitcnt vmcnt(8)')
        kgen_channel(a, 0, DK0)
        publish_flag(a)
        for k in range(3):
            w_dma(a, 1, k, BS[k])
        stamp(a, 40)
        kgen_channel(a, 1, DK1)
        a.e('s_waitcnt vmcnt(0)')
        for k in range(3):
            w_tr(a, k, BS[k])
        phase_kgen(a, skip0=True, skip1=True)
        stamp(a, 8)
        flag_poll(a)
        a.e('s_barrier')
        stamp(a, 9)
        load_u(a)
        epoch_update(a)
        clear_g(a)
        store_u(a, 2)
        stamp(a, 10)
        hk = []
        for k in range(4):
            for i in range(4):
                hk.append(lambda k=k, i=i: w_dma1(a, 1, 3 + k, AS[k], i))
        hk = [x for h in hk for x in (h, lambda: None)]
        phase_conv(a, hk)
        stamp(a, 12)
        for k in range(4):
            w_tr(a, 3 + k, AS[k])
        a.e('s_waitcnt lgkmcnt(0)')
        a.e('s_barrier')
        for k in range(7, 12):
            w_dma(a, 1, k, BS[k - 7])
        for k in range(12, 16):
            w_dma(a, 1, k, AS[k - 12])
        stamp(a, 13)
        a.e(f's_branch {lnc2}')
        a.e(f'{lnc1}:')
        code_prefetch(a, name, 'kcode_end')
        w_setup(a)
        a.e('s_waitcnt lgkmcnt(0)')
        a.e(f's_add_u32 s{S_TAG}, s99, 0x9e3779b9')
        a.e('s_waitcnt vmcnt(2)')
        ln_stats(a, list(range(8, 16)), 16, L_RED0, 4)
        p1_publish_xn(a)
        clear_hh(a)
        publish_flag(a)
        stamp(a, 41)
        flag_poll(a)
        a.e('s_barrier')
        stamp(a, 42)
        a.e(f'{lnc2}:')
        phase_p4(a)
        stamp(a, 20)
        if_conv_skip(lnc3)
        for k in range(7, 12):
            w_tr(a, k, BS[k - 7])
        for k in range(12, 16):
            w_tr(a, k, AS[k - 12])
        a.e('s_waitcnt lgkmcnt(0)')
        for k in range(5):
            w_dma(a, 2, k, BS[k])
        stamp(a, 21)
        gemm_poll_main(a, WS_HH, 64, 16, True, 22)
        stamp(a, 23)
        a.e('s_barrier')
        gemm1_epilogue(a)
        stamp(a, 25)
        for k in range(5):
            w_tr(a, k, BS[k])
        a.e('s_waitcnt lgkmcnt(0)')
        a.e('s_barrier')
        a.e(f's_branch {lnc5}')
        a.e(f'{lnc3}:')
        for k in range(5):
            w_dma(a, 2, k, BS[k])
        a.e('s_waitcnt vmcnt(0)')
        for k in range(5):
            w_tr(a, k, BS[k])
        a.e('s_waitcnt lgkmcnt(0)')
        a.e(f'{lnc5}:')
        for k in range(5, 10):
            w_dma(a, 2, k, BS[k - 5])
        for k in range(10, 14):
            w_dma(a, 2, k, AS[k - 10])
        a.e('s_waitcnt vmcnt(16)')
        for k in range(5, 10):
            w_tr(a, k, BS[k - 5])
        a.e('s_waitcnt vmcnt(0)')
        for k in range(10, 14):
            w_tr(a, k, AS[k - 10])
        a.e('s_waitcnt lgkmcnt(0)')
        stamp(a, 30)
        gemm_poll_main(a, WS_G, 56, 14, False, 31)
        stamp(a, 32)
        a.e('s_barrier')
        gemm2_epilogue(a)

    kernel(a, name, body)
    a.raw('kcode_end:')
    emit_gather_table(a, 'ktab_idx')
    nn = a.fast_insert_nops()
    head = f'; @launch grid=(256,1,1) block=(256,1,1) lds={LDS_BYTES}\n'
    head += '.amdgcn_target "amdgcn-amd-amdhsa--gfx950"\n.text\n'
    tail = '.section .rodata,"a"\n.p2align 6\n' + descriptor(name)
    sys.stderr.write(f'instructions: {a.count()}, nops inserted: {nn}\n')
    return head + a.text() + tail


def build_pers9():
    global PERS, ROT
    PERS = True
    ROT = True
    a = Prog()
    name = NAME + '_kernel'

    def body(a, lend):
        lnc1, lnc2, lnc3, lnc4, lnc5, lnc6 = [a.lab('noconv') for _ in range(6)]

        def if_conv_skip(l):
            a.e(f's_cmp_ge_u32 s{S_LOC}, 28')
            a.e(f's_cbranch_scc1 {l}')

        a.e(f's_add_u32 s66, s{P_WS}, {WS_EPOCH}')
        a.e(f's_addc_u32 s67, s{P_WS+1}, 0')
        a.e('s_load_dword s99, s[66:67], 0')
        load_xrows(a, list(range(8, 16)))
        for r in range(216, 220):
            a.e(f'v_mov_b32 v{r}, -1')
        if_conv_skip(lnc1)
        kgen_loads(a)
        load_gather_table(a, 'ktab_idx')
        w_setup(a)
        a.e('s_waitcnt lgkmcnt(0)')
        a.e(f's_add_u32 s{S_TAG}, s99, 0x9e3779b9')
        a.e('s_waitcnt vmcnt(10)')
        stamp(a, 2)
        clear_hh(a)
        clear_aout(a)
        ln_stats(a, list(range(8, 16)), 16, L_RED0, 5)
        stamp(a, 3)
        p1_publish_xn(a)
        stamp(a, 4)
        a.e('s_waitcnt vmcnt(8)')
        kgen_channel(a, 0, DK0)
        publish_flag(a)
        for k in range(3):
            w_dma(a, 1, k, BS[k])
        stamp(a, 40)
        kgen_channel(a, 1, DK1)
        a.e('s_waitcnt vmcnt(0)')
        for k in range(3):
            w_tr(a, k, BS[k])
        phase_kgen(a, skip0=True, skip1=True)
        stamp(a, 8)
        flag_poll(a)
        a.e('s_barrier')
        stamp(a, 9)
        load_u(a)
        epoch_update(a)
        clear_g(a)
        store_u(a, 2)
        stamp(a, 10)
        hk = []
        for k in range(4):
            for i in range(4):
                hk.append(lambda k=k, i=i: w_dma1(a, 1, 3 + k, AS[k], i))
        hk = [x for h in hk for x in (h, lambda: None)]
        phase_conv(a, hk)
        stamp(a, 12)
        for k in range(4):
            w_tr(a, 3 + k, AS[k])
        a.e('s_waitcnt lgkmcnt(0)')
        a.e('s_barrier')
        for k in range(7, 12):
            w_dma(a, 1, k, BS[k - 7])
        for k in range(12, 16):
            w_dma(a, 1, k, AS[k - 12])
        stamp(a, 13)
        a.e(f's_branch {lnc2}')
        a.e(f'{lnc1}:')
        code_prefetch(a, name, 'kcode_end')
        w_setup(a)
        a.e('s_waitcnt lgkmcnt(0)')
        a.e(f's_add_u32 s{S_TAG}, s99, 0x9e3779b9')
        a.e('s_waitcnt vmcnt(2)')
        clear_hh(a)
        ln_stats(a, list(range(8, 16)), 16, L_RED0, 4)
        p1_publish_xn(a)
        publish_flag(a)
        stamp(a, 41)
        flag_poll(a)
        a.e('s_barrier')
        stamp(a, 42)
        a.e(f'{lnc2}:')
        phase_p4(a)
        stamp(a, 20)
        if_conv_skip(lnc3)
        for k in range(7, 12):
            w_tr(a, k, BS[k - 7])
        for k in range(12, 16):
            w_tr(a, k, AS[k - 12])
        a.e('s_waitcnt lgkmcnt(0)')
        for k in range(5):
            w_dma(a, 2, k, BS[k])
        stamp(a, 21)
        gemm_poll_main(a, WS_HH, 64, 16, True, 22)
        stamp(a, 23)
        a.e('s_barrier')
        gemm1_epilogue(a)
        stamp(a, 25)
        for k in range(5):
            w_tr(a, k, BS[k])
        a.e('s_waitcnt lgkmcnt(0)')
        a.e('s_barrier')
        a.e(f's_branch {lnc5}')
        a.e(f'{lnc3}:')
        for k in range(5):
            w_dma(a, 2, k, BS[k])
        a.e('s_waitcnt vmcnt(0)')
        for k in range(5):
            w_tr(a, k, BS[k])
        a.e('s_waitcnt lgkmcnt(0)')
        a.e(f'{lnc5}:')
        for k in range(5, 10):
            w_dma(a, 2, k, BS[k - 5])
        for k in range(10, 14):
            w_dma(a, 2, k, AS[k - 10])
        a.e('s_waitcnt vmcnt(16)')
        for k in range(5, 10):
            w_tr(a, k, BS[k - 5])
        a.e('s_waitcnt vmcnt(0)')
        for k in range(10, 14):
            w_tr(a, k, AS[k - 10])
        a.e('s_waitcnt lgkmcnt(0)')
        stamp(a, 30)
        gemm_poll_main(a, WS_G, 56, 14, False, 31)
        stamp(a, 32)
        a.e('s_barrier')
        gemm2_epilogue(a)

    kernel(a, name, body)
    a.raw('kcode_end:')
    emit_gather_table(a, 'ktab_idx')
    nn = a.fast_insert_nops()
    head = f'; @launch grid=(256,1,1) block=(256,1,1) lds={LDS_BYTES}\n'
    head += '.amdgcn_target "amdgcn-amd-amdhsa--gfx950"\n.text\n'
    tail = '.section .rodata,"a"\n.p2align 6\n' + descriptor(name)
    sys.stderr.write(f'instructions: {a.count()}, nops inserted: {nn}\n')
    return head + a.text() + tail


if __name__ == '__main__':
    out = sys.argv[1] if len(sys.argv) > 1 else 'multi.s'
    STAMPS = 'stamps' in sys.argv or 'dbg' in sys.argv
    if 'dbg' in sys.argv:
        DBGSEL = [0, 1, 2, 4, 8, 9, 12, 13, 14, 20, 21, 23, 25, 30, 32, 63]
    open(out, 'w').write(build_pers9() if 'pers9' in sys.argv else build_pers8() if 'pers8' in sys.argv else build_pers7() if 'pers7' in sys.argv else build_pers6() if 'pers6' in sys.argv else build_pers5() if 'pers5' in sys.argv else build_pers4() if 'pers4' in sys.argv else build_pers3() if 'pers3' in sys.argv else build_pers() if 'pers' in sys.argv else build_multi())
```

```python
import sys
import gen
from gen import (Prog, NAME, L, D, F, XBYTES, PBYTES, W1BYTES, W2BYTES, OOB, fx, srd, reduce16, cmul, exp_bf16,
                 gather_table, emit_gather_table, descriptor, round_pairs, norm_tok, bcast_stats)

OPT = dict(stamps=False, dbgsel=None, w2pf_a=10, w2pf_b=4, nfl=3, early=True, align=True, hlds=True)

WS_FLAG = 0x4000
WS_EPOCH = 0x9000
WS_AOUT = 0x10000
AST = 8448
WS_H = 0x200000
WS_HH = 0x400000
WS_G = 0x600000
WS_DBG = 0x800000
WS_XN = 0xA00000
XCS = 4352
XPS = 2 * XCS
WS_USED = 0x1000000

L_RED0, L_RED1, L_SIG, L_KT = 0, 256, 512, 640
KTCH = 1600
L_U = L_KT + 2 * KTCH
UCH = 4608
L_SCR = L_U + 2 * UCH
SROW = 272
YROW = 41
SCRW = 57 * SROW
L_KC = 82688
KCOPY = 4160
KCH = 8 * KCOPY
L_CP = L_KC
LDS_BYTES = 160 * 1024
L_WA, L_WB = 13056, 78592
L_PART = 1024
PROW = 272
PARTW = 64 * PROW
L_HT = 1024

S_WS, S_X = 4, 8
S_T0, S_T1, S_T2, S_T3 = 12, 16, 20, 24
S_W1, S_W2 = 12, 16
S_W, S_XCD, S_LOC, S_B, S_P, S_J, S_I1, S_I2 = 28, 29, 30, 31, 32, 33, 34, 35
P_X, P_LAR, P_AI, P_CR, P_CI, P_LDT, P_DSK = 36, 38, 40, 42, 44, 46, 48
P_W1, P_B1, P_W2, P_B2, P_OUT, P_DBG, P_WS = 52, 54, 56, 58, 60, 62, 64
S_SA, S_SB = 50, 51
S_RW1, S_RX1, S_RW2, S_RX2 = 38, 39, 40, 41
S_QPF = 42
S_EARLY = 43
S_TAG, S_SPIN, S_RETRY = 96, 97, 98
V_D1, V_D2, V_TA, V_TB = 224, 228, 244, 248
V_QPF = 232
SPIN_MAX, RETRY_MAX = 4000, 20
AS = ['A0', 'A1', 'A2', 'A3']
BS = ['B0', 'B1', 'B2', 'B3', 'B4']
WSR = f's[{S_WS}:{S_WS+3}]'

assert (gen.S_W, gen.S_B, gen.S_WS) == (S_W, S_B, S_WS)


def stamp(a, idx):
    if not OPT['stamps']:
        return
    sel = OPT['dbgsel']
    if sel is not None:
        if idx not in sel:
            return
        idx = sel.index(idx)
    a.e('s_memrealtime s[100:101]')
    a.e('s_waitcnt lgkmcnt(0)')
    a.e(f'v_writelane_b32 v255, s100, {idx}')


def stamp_clk(a, idx):
    if not OPT['stamps'] or OPT['dbgsel'] is not None:
        return
    a.e('s_memtime s[100:101]')
    a.e('s_waitcnt lgkmcnt(0)')
    a.e(f'v_writelane_b32 v255, s100, {idx}')


def stamp_flush(a):
    if not OPT['stamps']:
        return
    l = a.lab('nost')
    a.e(f's_cmp_lg_u32 s{S_W}, 0')
    a.e(f's_cbranch_scc1 {l}')
    if OPT['dbgsel'] is not None:
        a.e('v_not_b32 v253, v255')
        a.e('v_cmp_eq_u32 vcc, 0, v1')
        a.e('v_cndmask_b32 v255, v255, v253, vcc')
        a.e('v_lshlrev_b32 v254, 2, v1')
        a.e('s_mov_b64 exec, 0xffff')
        a.e(f'global_atomic_umax v254, v255, s[{P_DBG}:{P_DBG+1}]')
        a.e('s_mov_b64 exec, -1')
    else:
        a.e('s_lshl_b32 s66, s2, 8')
        a.e(f's_add_u32 s66, s66, {WS_DBG}')
        a.e('v_lshl_add_u32 v254, v1, 2, s66')
        a.e(f'buffer_store_dword v255, v254, {WSR}, 0 offen')
    a.e(f'{l}:')


def spin_tail(a, lp):
    a.e(f's_add_u32 s{S_SPIN}, s{S_SPIN}, 1')
    a.e(f's_cmp_lt_u32 s{S_SPIN}, {SPIN_MAX}')
    a.e(f's_cbranch_scc1 {lp}')


def mask_lanes(a, v, n, tmp, src='v1'):
    a.e(f'v_mov_b32 v{tmp}, {OOB}')
    a.e(f'v_cmp_gt_u32 vcc, {n}, {src}')
    a.e(f'v_cndmask_b32 v{v}, v{tmp}, v{v}, vcc')


def prologue(a, lend):
    a.e('s_cmp_ge_u32 s2, 256')
    a.e(f's_cbranch_scc1 {lend}')
    if OPT['stamps']:
        a.e('v_mov_b32 v255, 0')
        stamp(a, 0)
        stamp_clk(a, 60)
    a.e('s_load_dwordx16 s[36:51], s[0:1], 0')
    a.e('s_load_dwordx8 s[52:59], s[0:1], 64')
    a.e('s_load_dwordx4 s[60:63], s[0:1], 96')
    a.e('s_load_dwordx2 s[64:65], s[0:1], 112')
    a.e('v_and_b32 v1, 63, v0')
    a.e('v_lshrrev_b32 v2, 6, v0')
    a.e(f's_and_b32 s{S_XCD}, s2, 7')
    a.e(f'v_readfirstlane_b32 s{S_W}, v2')
    a.e(f's_lshr_b32 s{S_LOC}, s2, 3')
    a.e(f's_lshl_b32 s{S_B}, s{S_XCD}, 5')
    a.e(f's_add_u32 s{S_B}, s{S_B}, s{S_LOC}')
    a.e(f's_mul_i32 s{S_P}, s{S_XCD}, 28')
    a.e(f's_add_u32 s{S_P}, s{S_P}, s{S_LOC}')
    a.e(f's_and_b32 s{S_J}, s{S_XCD}, 1')
    a.e(f's_lshl_b32 s{S_J}, s{S_J}, 2')
    a.e(f's_and_b32 s3, s{S_LOC}, 3')
    a.e(f's_add_u32 s{S_J}, s{S_J}, s3')
    a.e(f's_lshr_b32 s3, s{S_XCD}, 1')
    a.e(f's_lshr_b32 s66, s{S_LOC}, 2')
    a.e(f's_mul_i32 s{S_I1}, s3, 7')
    a.e(f's_add_u32 s{S_I1}, s{S_I1}, s66')
    a.e(f's_lshl_b32 s{S_I2}, s3, 3')
    a.e(f's_add_u32 s{S_I2}, s{S_I2}, s66')
    a.e('s_waitcnt lgkmcnt(0)')
    srd(a, S_X, P_X, XBYTES)
    srd(a, S_WS, P_WS, WS_USED)
    stamp(a, 1)


def xrow_addr(a):
    a.e(f's_mul_i32 s66, s{S_W}, 224')
    a.e(f's_mul_i32 s67, s{S_B}, {8*896}')
    a.e('s_add_u32 s66, s66, s67')
    a.e('v_lshl_add_u32 v2, v1, 2, s66')
    mask_lanes(a, 2, 56, 3)
    a.e('v_add_u32 v3, 4480, v2')


def load_xrows(a):
    xrow_addr(a)
    for j in range(8):
        v, o = (2, j * 896) if j < 5 else (3, (j - 5) * 896)
        a.e(f'buffer_load_dword v{8+j}, v{v}, s[{S_X}:{S_X+3}], 0 offen offset:{o}')


def ln_stats(a, X, T, red, vt, mid=None):
    a.e('s_mov_b32 s66, 0x3f803f80')
    for j in range(8):
        a.e(f'v_dot2_f32_bf16 v{T+j}, v{X[j]}, s66, 0')
        a.e(f'v_dot2_f32_bf16 v{T+8+j}, v{X[j]}, v{X[j]}, 0')
    a.e(f'v_lshlrev_b32 v{vt}, 2, v1')
    a.e(f'v_and_b32 v{vt}, 0xf0, v{vt}')
    a.e(f's_lshl_b32 s66, s{S_W}, 2')
    a.e(f'v_add_u32 v{vt}, s66, v{vt}')
    reduce16(a, [T + i for i in range(16)])
    a.e('s_mov_b32 exec_lo, 0x11111111')
    a.e('s_mov_b32 exec_hi, 0x11111111')
    a.e(f'ds_write_b32 v{vt}, v{T} offset:{red}')
    a.e('s_mov_b64 exec, -1')
    a.e(f'v_and_b32 v{vt}, 7, v1')
    a.e(f'v_lshlrev_b32 v{vt}, 4, v{vt}')
    a.e('s_waitcnt lgkmcnt(0)')
    a.e('s_barrier')
    a.e(f'ds_read_b128 v[{T}:{T+3}], v{vt} offset:{red}')
    a.e(f'ds_read_b128 v[{T+4}:{T+7}], v{vt} offset:{red+128}')
    n_mid = mid() if mid else 0
    a.e(f's_waitcnt lgkmcnt({1 + n_mid})')
    a.e(f'v_pk_add_f32 v[{T}:{T+1}], v[{T}:{T+1}], v[{T+2}:{T+3}]')
    a.e(f's_waitcnt lgkmcnt({n_mid})')
    a.e(f'v_pk_add_f32 v[{T+4}:{T+5}], v[{T+4}:{T+5}], v[{T+6}:{T+7}]')
    a.e(f'v_add_f32 v{T}, v{T}, v{T+1}')
    a.e(f'v_add_f32 v{T+4}, v{T+4}, v{T+5}')
    a.e(f'v_mul_f32 v{T}, {fx(1.0/448)}, v{T}')
    a.e(f'v_mul_f32 v{T+4}, {fx(1.0/448)}, v{T+4}')
    a.e(f'v_fma_f32 v{T+4}, -v{T}, v{T}, v{T+4}')
    a.e(f'v_max_f32 v{T+4}, 0, v{T+4}')
    a.e(f'v_cvt_pk_bf16_f32 v{T+4}, v{T+4}, v{T+4}')
    a.e(f'v_lshlrev_b32 v{T+4}, 16, v{T+4}')
    a.e(f'v_add_f32 v{T+4}, {fx(1e-5)}, v{T+4}')
    a.e(f'v_cvt_pk_bf16_f32 v{T+4}, v{T+4}, v{T+4}')
    a.e(f'v_lshlrev_b32 v{T+4}, 16, v{T+4}')
    a.e(f'v_sqrt_f32 v{T+4}, v{T+4}')
    a.e(f'v_cvt_pk_bf16_f32 v{T}, v{T}, v{T+4}')


def poison_regs(a):
    for r in range(216, 220):
        a.e(f'v_mov_b32 v{r}, -1')


def clear_hh(a):
    a.e(f's_mul_i32 s66, s{S_B}, 7168')
    a.e(f's_add_u32 s66, s66, {WS_HH}')
    a.e('v_lshl_add_u32 v4, v0, 4, s66')
    a.e('v_add_u32 v5, 4096, v4')
    mask_lanes(a, 5, 192, 6, 'v0')
    a.e(f'buffer_store_dwordx4 v[216:219], v4, {WSR}, 0 offen sc1')
    a.e(f'buffer_store_dwordx4 v[216:219], v5, {WSR}, 0 offen sc1')


def clear_aout(a):
    a.e(f's_mul_i32 s66, s{S_P}, {AST}')
    a.e(f's_add_u32 s66, s66, {WS_AOUT}')
    a.e('v_lshl_add_u32 v4, v0, 4, s66')
    a.e('v_add_u32 v5, 4096, v4')
    a.e(f'buffer_store_dwordx4 v[216:219], v4, {WSR}, 0 offen sc1')
    a.e(f'buffer_store_dwordx4 v[216:219], v5, {WSR}, 0 offen sc1')


def g_store_addr(a, vd):
    a.e(f's_lshl_b32 s66, s{S_I1}, 3')
    a.e(f's_lshl_b32 s70, s{S_W}, 1')
    a.e('s_add_u32 s66, s66, s70')
    a.e('s_mul_i32 s66, s66, 7168')
    a.e(f's_mul_i32 s70, s{S_J}, 896')
    a.e('s_add_u32 s66, s66, s70')
    a.e(f's_add_u32 s66, s66, {WS_G}')
    a.e(f'v_lshl_add_u32 v{vd}, v1, 4, s66')
    mask_lanes(a, vd, 56, 6)


def clear_g(a):
    g_store_addr(a, 4)
    a.e('v_add_u32 v5, 7168, v4')
    a.e(f'buffer_store_dwordx4 v[216:219], v4, {WSR}, 0 offen sc1')
    a.e(f'buffer_store_dwordx4 v[216:219], v5, {WSR}, 0 offen sc1')


def publish_xn(a):
    bcast_stats(a, 16)
    for j in range(8):
        d = 64 + 2 * j
        t = 48 + j
        a.e(f'v_lshlrev_b32 v{d}, 16, v{8+j}')
        a.e(f'v_and_b32 v{d+1}, 0xffff0000, v{8+j}')
        a.e(f'v_pk_add_f32 v[{d}:{d+1}], v[{d}:{d+1}], s[{72+2*j}:{73+2*j}] op_sel:[0,0] op_sel_hi:[1,0] neg_lo:[0,1] neg_hi:[0,1]')
        a.e(f'v_cvt_pk_bf16_f32 v{t}, v{d}, v{d+1}')
        a.e(f'v_lshlrev_b32 v{d}, 16, v{t}')
        a.e(f'v_and_b32 v{d+1}, 0xffff0000, v{t}')
        a.e(f'v_pk_mul_f32 v[{d}:{d+1}], v[{d}:{d+1}], s[{72+2*j}:{73+2*j}] op_sel:[0,1] op_sel_hi:[1,1]')
        a.e(f'v_cvt_pk_bf16_f32 v{t}, v{d}, v{d+1}')
        a.e(f'v_lshlrev_b32 v{d}, 16, v{t}')
        a.e(f'v_and_b32 v{d+1}, 0xffff0000, v{t}')
    for i in range(4):
        a.e(f'v_cvt_pk_f16_f32 v{80+i}, v{64+4*i}, v{66+4*i}')
        a.e(f'v_cvt_pk_f16_f32 v{84+i}, v{65+4*i}, v{67+4*i}')
    a.e(f's_mul_i32 s66, s{S_W}, {56*XPS}')
    a.e(f's_lshl_b32 s67, s{S_B}, 4')
    a.e('s_add_u32 s66, s66, s67')
    a.e(f's_add_u32 s66, s66, {WS_XN}')
    a.e(f'v_mul_u32_u24 v4, {XPS}, v1')
    a.e('v_add_u32 v4, s66, v4')
    mask_lanes(a, 4, 56, 5)
    a.e(f'v_add_u32 v5, {XCS}, v4')
    a.e(f'buffer_store_dwordx4 v[80:83], v4, {WSR}, 0 offen sc1')
    a.e(f'buffer_store_dwordx4 v[84:87], v5, {WSR}, 0 offen sc1')


def publish_flag(a, vm=0):
    a.e(f's_waitcnt vmcnt({vm})')
    a.e('s_barrier')
    l = a.lab('noflag')
    a.e(f's_cmp_lg_u32 s{S_W}, 0')
    a.e(f's_cbranch_scc1 {l}')
    a.e(f's_lshl_b32 s66, s{S_B}, 6')
    a.e(f's_add_u32 s66, s66, {WS_FLAG}')
    a.e('v_mov_b32 v2, s66')
    a.e(f'v_mov_b32 v3, s{S_TAG}')
    a.e('s_mov_b64 exec, 1')
    a.e(f'buffer_store_dword v3, v2, {WSR}, 0 offen sc1')
    a.e('s_mov_b64 exec, -1')
    a.e(f'{l}:')


V_FA, V_FV = 233, 234


def flag_addr(a):
    a.e(f'v_lshlrev_b32 v{V_FA}, 6, v0')
    a.e(f'v_add_u32 v{V_FA}, {WS_FLAG}, v{V_FA}')


def flag_load(a):
    a.e(f'buffer_load_dword v{V_FV}, v{V_FA}, {WSR}, 0 offen sc1')


def flag_poll(a):
    lp, ld = a.lab('fpoll'), a.lab('fdone')
    a.e(f's_mov_b32 s{S_SPIN}, 0')
    a.e(f'{lp}:')
    flag_load(a)
    a.e('s_waitcnt vmcnt(0)')
    a.e(f'v_cmp_ne_u32 vcc, s{S_TAG}, v{V_FV}')
    a.e(f's_cbranch_vccz {ld}')
    spin_tail(a, lp)
    a.e(f'{ld}:')


def load_u(a):
    a.e(f's_mul_i32 s66, s{S_P}, {XPS}')
    a.e(f's_add_u32 s66, s66, {WS_XN}')
    a.e('v_lshl_add_u32 v2, v0, 4, s66')
    a.e(f'v_add_u32 v3, {XCS}, v2')
    a.e(f'buffer_load_dwordx4 v[176:179], v2, {WSR}, 0 offen sc1')
    a.e(f'buffer_load_dwordx4 v[180:183], v3, {WSR}, 0 offen sc1')


def epoch_update(a):
    le = a.lab('noep')
    a.e('s_cmp_lg_u32 s2, 0')
    a.e(f's_cbranch_scc1 {le}')
    a.e(f'v_mov_b32 v2, {WS_EPOCH}')
    a.e(f'v_mov_b32 v3, s{S_TAG}')
    a.e('s_mov_b64 exec, 1')
    a.e(f'buffer_store_dword v3, v2, {WSR}, 0 offen sc1')
    a.e('s_mov_b64 exec, -1')
    a.e(f'{le}:')


def code_prefetch(a, lstart, lend_):
    lp = a.lab('pcp')
    a.e('s_getpc_b64 s[74:75]')
    a.e(f'{lp}:')
    a.e(f's_sub_u32 s74, s74, {lp}-{lstart}')
    a.e('s_subb_u32 s75, s75, 0')
    a.e('v_lshlrev_b32 v4, 6, v0')
    a.e(f's_mov_b32 s76, {lend_}-{lstart}-4')
    a.e('v_add_u32 v5, 16384, v4')
    a.e('v_min_u32 v4, s76, v4')
    a.e('v_min_u32 v5, s76, v5')
    a.e('global_load_dword v220, v4, s[74:75]')
    a.e('global_load_dword v220, v5, s[74:75]')


def kgen_loads(a):
    srd(a, S_T0, P_LAR, PBYTES)
    srd(a, S_T1, P_AI, PBYTES)
    srd(a, S_T2, P_CR, PBYTES)
    srd(a, S_T3, P_CI, PBYTES)
    a.e(f's_lshl_b32 s66, s{S_P}, 10')
    a.e(f's_lshl_b32 s67, s{S_W}, 7')
    a.e('s_add_u32 s66, s66, s67')
    a.e('v_lshl_add_u32 v2, v1, 1, s66')
    for c in range(2):
        for k, s in enumerate((S_T0, S_T1, S_T2, S_T3)):
            a.e(f'buffer_load_ushort v{40+4*c+k}, v2, s[{s}:{s+3}], 0 offen offset:{512*c}')
    a.e(f's_lshl_b32 s66, s{S_P}, 2')
    a.e(f's_load_dword s68, s[{P_LDT}:{P_LDT+1}], s66')
    a.e(f's_load_dword s69, s[{P_DSK}:{P_DSK+1}], s66')


def load_gather_table(a, tablabel):
    lp = a.lab('pc')
    a.e('s_getpc_b64 s[70:71]')
    a.e(f'{lp}:')
    a.e(f's_add_u32 s70, s70, {tablabel}-{lp}')
    a.e('s_addc_u32 s71, s71, 0')
    a.e('v_lshlrev_b32 v2, 5, v0')
    a.e('global_load_dwordx4 v[160:163], v2, s[70:71]')
    a.e('global_load_dwordx4 v[164:167], v2, s[70:71] offset:16')


DK0, DK1 = 16, 28


def kgen_channel(a, c, DACC):
    LAR, AI, CR, CI = 40 + 4 * c, 41 + 4 * c, 42 + 4 * c, 43 + 4 * c
    SIG, DT = 52 + c, 54 + c
    AL, BE = 56, 57
    Z1, Z2, Z4, Z8, Z128, Z256, Z512, Z1024 = 58, 60, 62, 64, 66, 68, 70, 72
    X0, CA, CB, CC, T0, T1 = 74, 76, 78, 80, 82, 84
    CV = [86, 87, 88, 89]
    VW, VR = 90, 91
    t, t2 = 92, 93
    for r in (LAR, AI, CR, CI):
        a.e(f'v_lshlrev_b32 v{r}, 16, v{r}')
    a.e('s_lshl_b32 s66, s68, 16' if c == 0 else 's_and_b32 s66, s68, 0xffff0000')
    a.e(f'v_mov_b32 v{t2}, s66')
    exp_bf16(a, DT, t2, t)
    a.e(f'v_add_f32 v{SIG}, abs(v{CR}), abs(v{CI})')
    exp_bf16(a, AL, LAR, t)
    a.e(f'v_add_f32_dpp v{SIG}, v{SIG}, v{SIG} quad_perm:[1,0,3,2] row_mask:0xf bank_mask:0xf')
    a.e(f'v_mul_f32 v{AL}, v{AL}, v{DT}')
    a.e(f'v_mul_f32 v{BE}, v{AI}, v{DT}')
    a.e(f'v_add_f32_dpp v{SIG}, v{SIG}, v{SIG} quad_perm:[2,3,0,1] row_mask:0xf bank_mask:0xf')
    a.e(f'v_mul_f32 v{AL}, {fx(-1.4426950408889634)}, v{AL}')
    a.e(f'v_mul_f32 v{BE}, {fx(0.15915494309189535)}, v{BE}')
    a.e(f'v_add_f32_dpp v{SIG}, v{SIG}, v{SIG} row_half_mirror row_mask:0xf bank_mask:0xf')
    a.e(f'v_exp_f32 v{T0}, v{AL}')
    a.e(f'v_fract_f32 v{t}, v{BE}')
    a.e(f'v_add_f32_dpp v{SIG}, v{SIG}, v{SIG} row_ror:8 row_mask:0xf bank_mask:0xf')
    a.e(f'v_cos_f32 v{Z1}, v{t}')
    a.e(f'v_sin_f32 v{Z1+1}, v{t}')
    a.e(f'v_mov_b32 v{t2}, v{SIG}')
    a.e(f'v_mul_f32 v{T1}, 0x43000000, v{AL}')
    a.e(f'v_mul_f32 v{t}, 0x43000000, v{BE}')
    a.e(f'v_permlane16_swap_b32 v{SIG}, v{t2}')
    a.e(f'v_pk_mul_f32 v[{Z1}:{Z1+1}], v[{Z1}:{Z1+1}], v[{T0}:{T0+1}] op_sel:[0,0] op_sel_hi:[1,0]')
    a.e(f'v_add_f32 v{SIG}, v{SIG}, v{t2}')
    a.e(f'v_exp_f32 v{T1}, v{T1}')
    a.e(f'v_fract_f32 v{t}, v{t}')
    a.e(f'v_mov_b32 v{t2}, v{SIG}')
    a.e(f'v_cos_f32 v{Z128}, v{t}')
    a.e(f'v_sin_f32 v{Z128+1}, v{t}')
    a.e(f'v_permlane32_swap_b32 v{SIG}, v{t2}')
    cmul(a, Z2, Z1, Z1, Z2)
    a.e(f'v_add_f32 v{SIG}, v{SIG}, v{t2}')
    a.e(f'v_pk_mul_f32 v[{Z128}:{Z128+1}], v[{Z128}:{Z128+1}], v[{T1}:{T1+1}] op_sel:[0,0] op_sel_hi:[1,0]')
    a.e(f'v_add_f32 v{SIG}, {fx(1e-30)}, v{SIG}')
    cmul(a, Z4, Z2, Z2, Z4)
    a.e(f'v_rcp_f32 v{t}, v{SIG}')
    cmul(a, Z256, Z128, Z128, Z256)
    cmul(a, Z8, Z4, Z4, Z8)
    a.e(f'v_mul_f32 v{X0}, v{CR}, v{t}')
    a.e(f'v_mul_f32 v{X0+1}, v{CI}, v{t}')
    cmul(a, Z512, Z256, Z256, Z512)
    a.e(f's_mul_i32 s66, s{S_W}, {SCRW}')
    a.e(f's_add_u32 s66, s66, {L_SCR}')
    a.e('s_mov_b32 m0, s66')
    cmul(a, Z1024, Z512, Z512, Z1024)
    a.e(f'v_and_b32 v{t}, 15, v1')
    a.e(f'v_mul_u32_u24 v{t}, {SROW}, v{t}')
    a.e(f'v_lshrrev_b32 v{t2}, 4, v1')
    a.e(f'v_lshl_add_u32 v{t}, v{t2}, 4, v{t}')
    a.e(f'v_add_u32 v{VR}, s66, v{t}')
    cvi = [0]
    pend = []

    def flush(keep):
        while len(pend) > keep:
            cv, off = pend.pop(0)
            a.e(f'ds_write_addtid_b32 v{cv} offset:{off}')

    def put(off, r, neg):
        cv = CV[cvi[0] % 4]
        cvi[0] += 1
        a.e(f'v_cvt_pk_f16_f32 v{cv}, v{r}, {"-" if neg else ""}v{r+1}')
        flush(1)
        pend.append((cv, off))

    def putX(row, r):
        put(row * SROW, r, True)

    def putY(b, r):
        put((YROW + b) * SROW, r, False)

    a.e(f'v_mov_b32 v{VW}, 0x00003c00')
    pend.append((VW, YROW * SROW))
    putY(1, Z8)
    ychain = {'cur': Z8, 'b': 1}
    YA, YB = CC, 94

    def ystep():
        if ychain['b'] >= 15:
            return
        d = YA if ychain['cur'] != YA else YB
        cmul(a, d, ychain['cur'], Z8, d)
        ychain['b'] += 1
        ychain['cur'] = d
        putY(ychain['b'], d)

    putX(0, X0)
    cmul(a, T0, X0, Z128, T0)
    putX(8, T0)
    cur = X0
    for j in range(1, 8):
        d = CA if cur != CA else CB
        cmul(a, d, cur, Z1, d)
        ystep()
        putX(j, d)
        cmul(a, T0, d, Z128, T0)
        putX(8 + j, T0)
        cur = d
    cmul(a, CA, X0, Z256, CA)
    ystep()
    putX(16, CA)
    cmul(a, T0, CA, Z128, T0)
    putX(20, T0)
    cur = CA
    for j in range(1, 4):
        d = CA if cur != CA else CB
        cmul(a, d, cur, Z2, d)
        ystep()
        putX(16 + j, d)
        cmul(a, T0, d, Z128, T0)
        putX(20 + j, T0)
        cur = d
    cmul(a, CA, X0, Z512, CA)
    ystep()
    putX(24, CA)
    cmul(a, CB, CA, Z4, CB)
    ystep()
    putX(25, CB)
    pa, pb = CA, CB
    na, nb = T0, T1
    for q in range(1, 4):
        cmul(a, na, pa, Z128, na)
        cmul(a, nb, pb, Z128, nb)
        ystep()
        putX(24 + 2 * q, na)
        putX(25 + 2 * q, nb)
        pa, pb, na, nb = na, nb, pa, pb
    cmul(a, CA, X0, Z1024, CA)
    putX(32, CA)
    cur = CA
    for q in range(1, 9):
        d = CA if cur != CA else CB
        cmul(a, d, cur, Z128, d)
        putX(32 + q, d)
        cur = d
    while ychain['b'] < 15:
        ystep()
    flush(0)
    FA = 96
    for k in range(4):
        a.e(f'ds_read_b128 v[{144+4*k}:{147+4*k}], v{VR} offset:{YROW*SROW+64*k}')
        for T in range(3):
            r = FA + 16 * T + 4 * k
            a.e(f'ds_read_b128 v[{r}:{r+3}], v{VR} offset:{16*T*SROW+64*k}')
    for k in range(4):
        a.e(f's_waitcnt lgkmcnt({4*(3-k)})')
        for T in range(3):
            r = FA + 16 * T + 4 * k
            cc = '0' if k == 0 else f'v[{DACC+4*T}:{DACC+4*T+3}]'
            a.e(f'v_mfma_f32_16x16x32_f16 v[{DACC+4*T}:{DACC+4*T+3}], v[{r}:{r+3}], v[{144+4*k}:{147+4*k}], {cc}')


def ktab_part1(a):
    a.e(f's_mul_i32 s66, s{S_W}, {SCRW}')
    a.e(f's_add_u32 s66, s66, {L_SCR}')
    a.e('v_lshl_add_u32 v90, v1, 4, s66')
    a.e(f's_lshl_b32 s67, s{S_W}, 2')
    a.e(f's_add_u32 s67, s67, {L_SIG}')
    a.e('v_mov_b32 v91, s67')
    a.e('s_mov_b64 exec, 1')
    a.e('ds_write_b32 v91, v52')
    a.e('ds_write_b32 v91, v53 offset:16')
    a.e('s_mov_b64 exec, -1')
    for c, DK in ((0, DK0), (1, DK1)):
        for T in range(3):
            for h in range(2):
                i = DK + 4 * T + 2 * h
                a.e(f'v_pk_mul_f32 v[{i}:{i+1}], v[{i}:{i+1}], v[52:53] op_sel:[0,{c}] op_sel_hi:[1,{c}]')
            a.e(f'ds_write_b128 v90, v[{DK+4*T}:{DK+4*T+3}] offset:{c*3072+T*1024}')
    a.e('v_mov_b32 v96, 0')
    a.e('v_mov_b32 v97, 0')
    a.e('v_mov_b32 v98, 0')
    a.e('v_mov_b32 v99, 0')
    a.e(f'v_mov_b32 v92, {L_KT + 1536}')
    a.e('ds_write_b32 v92, v96')
    a.e(f'ds_write_b32 v92, v96 offset:{KTCH}')
    a.e('v_lshlrev_b32 v92, 3, v1')
    a.e(f'ds_write_b64 v92, v[96:97] offset:{L_U}')
    a.e(f'ds_write_b64 v92, v[96:97] offset:{L_U + UCH}')
    a.e('s_waitcnt lgkmcnt(0)')
    a.e('s_barrier')


def ktab_part2(a):
    a.e(f'v_mov_b32 v91, {L_SIG}')
    a.e('ds_read_b128 v[44:47], v91')
    a.e('ds_read_b128 v[48:51], v91 offset:16')
    a.e(f's_and_b32 s67, s{S_W}, 1')
    a.e(f's_lshr_b32 s70, s{S_W}, 1')
    a.e('s_mul_i32 s71, s67, 3072')
    a.e('s_lshl_b32 s72, s70, 10')
    a.e('s_add_u32 s72, s72, s71')
    a.e(f's_add_u32 s72, s72, {L_SCR}')
    a.e(f's_add_u32 s71, s71, {L_SCR + 2048}')
    a.e('v_lshl_add_u32 v90, v1, 4, s72')
    a.e('v_lshl_add_u32 v91, v1, 4, s71')
    for wv in range(4):
        a.e(f'ds_read_b128 v[{96+4*wv}:{99+4*wv}], v90 offset:{wv*SCRW}')
    for wv in range(4):
        a.e(f'ds_read_b128 v[{112+4*wv}:{115+4*wv}], v91 offset:{wv*SCRW}')
    a.e('v_mov_b32 v128, 0')
    a.e('v_mov_b32 v129, 0')
    a.e('v_mov_b32 v130, 0')
    a.e('v_mov_b32 v131, 0')
    a.e('v_and_b32 v132, 15, v1')
    a.e(f'v_mul_u32_u24 v132, {KCOPY}, v132')
    a.e(f'v_add_u32 v132, {L_KC}, v132')
    a.e('ds_write_b128 v132, v[128:131] offset:4096')
    a.e('v_lshrrev_b32 v92, 4, v1')
    a.e('v_lshlrev_b32 v92, 7, v92')
    a.e('v_and_b32 v93, 15, v1')
    a.e('v_lshl_add_u32 v92, v93, 1, v92')
    a.e(f's_mul_i32 s71, s67, {KTCH}')
    a.e(f's_add_u32 s71, s71, {L_KT}')
    a.e('v_add_u32 v93, s71, v92')
    a.e('s_lshl_b32 s72, s70, 9')
    a.e('v_add_u32 v92, s72, v93')
    a.e('s_waitcnt lgkmcnt(9)')
    a.e('v_pk_add_f32 v[44:45], v[44:45], v[46:47]')
    a.e('v_pk_add_f32 v[48:49], v[48:49], v[50:51]')
    a.e('v_add_f32 v44, v44, v45')
    a.e('v_add_f32 v45, v48, v49')
    a.e('s_cmp_eq_u32 s67, 0')
    a.e('s_cselect_b64 vcc, -1, 0')
    a.e('v_pk_mul_f32 v[54:55], v[54:55], v[44:45]')
    a.e('v_cndmask_b32 v46, v45, v44, vcc')
    a.e('v_pk_add_f32 v[54:55], v[54:55], v[54:55]')
    a.e('v_rcp_f32 v46, v46')
    for jb, (base, va, off) in enumerate(((96, 92, 0), (112, 93, 1024))):
        a.e(f's_waitcnt lgkmcnt({5 if jb == 0 else 5})')
        for h in range(2):
            a.e(f'v_pk_add_f32 v[{base+2*h}:{base+2*h+1}], v[{base+2*h}:{base+2*h+1}], v[{base+4+2*h}:{base+5+2*h}]')
            a.e(f'v_pk_add_f32 v[{base+8+2*h}:{base+9+2*h}], v[{base+8+2*h}:{base+9+2*h}], v[{base+12+2*h}:{base+13+2*h}]')
        for h in range(2):
            a.e(f'v_pk_add_f32 v[{base+2*h}:{base+2*h+1}], v[{base+2*h}:{base+2*h+1}], v[{base+8+2*h}:{base+9+2*h}]')
        for h in range(2):
            a.e(f'v_pk_mul_f32 v[{base+2*h}:{base+2*h+1}], v[{base+2*h}:{base+2*h+1}], v[46:47] op_sel:[0,0] op_sel_hi:[1,0]')
        a.e(f'v_cvt_pk_f16_f32 v{base+4}, v{base}, v{base+1}')
        a.e(f'v_cvt_pk_f16_f32 v{base+5}, v{base+2}, v{base+3}')
        a.e(f'ds_write_b16 v{va}, v{base+4} offset:{off}')
        a.e(f'ds_write_b16_d16_hi v{va}, v{base+4} offset:{off+32}')
        a.e(f'ds_write_b16 v{va}, v{base+5} offset:{off+64}')
        a.e(f'ds_write_b16_d16_hi v{va}, v{base+5} offset:{off+96}')
    for e in range(15):
        src = 160 + e // 2
        if e % 2 == 0:
            a.e(f'v_and_b32 v{136+e}, 0xffff, v{src}')
        else:
            a.e(f'v_lshrrev_b32 v{136+e}, 16, v{src}')
    a.e('s_waitcnt lgkmcnt(0)')
    a.e('s_barrier')


def kcopies(a):
    AD = 136
    a.e('v_lshlrev_b32 v111, 4, v0')
    a.e(f'v_add_u32 v111, {L_KC}, v111')
    RR = [96, 112]
    for c in range(2):
        for e in range(15):
            a.e(f'ds_read_u16 v{RR[c]+e}, v{AD+e} offset:{L_KT + c*KTCH}')
    for c in range(2):
        R = RR[c]
        Da, Db, Oa, Ob = 56 + 0, 64, 72, 80
        if c == 1:
            Da, Db, Oa, Ob = 16, 24, 32, 40
        a.e(f's_waitcnt lgkmcnt({15 if c == 0 else 8})')
        for i in range(6):
            a.e(f'v_lshl_or_b32 v{Da+i}, v{R+2*i+1}, 16, v{R+2*i}')
            a.e(f'v_lshl_or_b32 v{Oa+i}, v{R+2*i+2}, 16, v{R+2*i+1}')
        if c == 1:
            a.e(f'v_add_u32 v110, {KCH}, v111')
        va = 111 if c == 0 else 110
        for s, r in ((0, Da), (1, Oa), (4, Da + 2), (5, Oa + 2)):
            a.e(f'ds_write_b128 v{va}, v[{r}:{r+3}] offset:{s*KCOPY}')
        for i in range(6):
            a.e(f'v_lshl_or_b32 v{Db+i}, v{R+2*i+3}, 16, v{R+2*i+2}')
            a.e(f'v_lshl_or_b32 v{Ob+i}, v{R+2*i+4}, 16, v{R+2*i+3}')
        for s, r in ((2, Db), (3, Ob), (6, Db + 2), (7, Ob + 2)):
            a.e(f'ds_write_b128 v{va}, v[{r}:{r+3}] offset:{s*KCOPY}')


def store_u(a, vm):
    a.e('v_lshlrev_b32 v2, 4, v0')
    a.e(f's_waitcnt vmcnt({vm})')
    a.e(f'ds_write_b128 v2, v[176:179] offset:{L_U + 512}')
    a.e(f'ds_write_b128 v2, v[180:183] offset:{L_U + UCH + 512}')
    a.e('s_waitcnt lgkmcnt(0)')
    a.e('s_barrier')


def phase_conv(a, hooks, pre_vm):
    hooks = list(hooks)
    ACC = 16
    FA = [[64 + 64 * s + 4 * i for i in range(8)] for s in range(2)]
    FB = [[96 + 64 * s + 4 * i for i in range(8)] for s in range(2)]
    VA, VB = 48, 49

    def loads(qq, s):
        out = []
        for i in range(8):
            out.append(f'ds_read_b128 v[{FB[s][i]}:{FB[s][i]+3}], v{VB} offset:{512*i + 64*(3-qq)}')
            out.append(f'ds_read_b128 v[{FA[s][i]}:{FA[s][i]+3}], v{VA} offset:{512*(7-i) + 64*(3-qq)}')
        return out

    for x in loads(0, 0):
        a.e(x)
    for qq in range(4):
        s = qq & 1
        nxt = loads(qq + 1, 1 - s) if qq < 3 else []
        n = 0
        for w in range(8):
            for c in range(w, 8):
                if n == 0:
                    a.e('s_waitcnt lgkmcnt(0)')
                cc = '0' if (qq == 0 and w == 0) else f'v[{ACC+4*c}:{ACC+4*c+3}]'
                a.e(f'v_mfma_f32_16x16x32_f16 v[{ACC+4*c}:{ACC+4*c+3}], v[{FA[s][w]}:{FA[s][w]+3}], v[{FB[s][c-w]}:{FB[s][c-w]+3}], {cc}')
                if nxt and n % 2 == 1:
                    a.e(nxt.pop(0))
                if hooks and n % 4 == 2:
                    hooks.pop(0)()
                n += 1
        assert not nxt
    assert not hooks
    stamp(a, 11)
    CP, TS = L_CP, 1280
    a.e('v_and_b32 v2, 15, v1')
    a.e('v_lshlrev_b32 v2, 4, v2')
    a.e('v_lshrrev_b32 v3, 4, v1')
    a.e('v_mul_u32_u24 v3, 320, v3')
    a.e('v_add_u32 v2, v2, v3')
    a.e(f's_mul_i32 s70, s{S_W}, {8*TS}')
    a.e(f's_add_u32 s70, s70, {CP}')
    a.e('v_add_u32 v2, s70, v2')
    a.e('s_barrier')
    for c in range(8):
        a.e(f'ds_write_b128 v2, v[{ACC+4*c}:{ACC+4*c+3}] offset:{c*TS}')
    a.e('v_lshrrev_b32 v2, 2, v1')
    a.e('v_lshlrev_b32 v2, 4, v2')
    a.e('v_and_b32 v3, 3, v1')
    a.e('v_mul_u32_u24 v3, 320, v3')
    a.e('v_add_u32 v2, v2, v3')
    a.e(f's_lshl_b32 s70, s{S_W}, 1')
    a.e(f's_mul_i32 s71, s70, {TS}')
    a.e(f's_add_u32 s71, s71, {CP}')
    a.e('v_add_u32 v2, s71, v2')
    a.e('s_lshl_b32 s71, s70, 9')
    a.e(f's_add_u32 s71, s71, {L_U + 512}')
    a.e('v_lshl_add_u32 v3, v1, 3, s71')
    a.e(f's_mul_i32 s71, s{S_P}, {AST}')
    a.e('s_lshl_b32 s72, s70, 10')
    a.e('s_add_u32 s71, s71, s72')
    a.e(f's_add_u32 s71, s71, {WS_AOUT}')
    a.e('v_lshl_add_u32 v4, v1, 4, s71')
    a.e('s_lshl_b32 s72, s69, 16')
    a.e('s_and_b32 s73, s69, 0xffff0000')
    a.e('v_mov_b32 v56, s72')
    a.e('v_mov_b32 v57, s73')
    a.e(f's_waitcnt lgkmcnt(0) vmcnt({pre_vm})')
    a.e('s_barrier')
    for q in range(2):
        P = 64 + 32 * q
        for ch in range(2):
            for hf in range(2):
                r = P + 8 * ch + 4 * hf
                a.e(f'ds_read_b128 v[{r}:{r+3}], v2 offset:{(2*ch+hf)*8*TS + q*TS}')
        for ch in range(2):
            a.e(f'ds_read_b64 v[{P+16+2*ch}:{P+17+2*ch}], v3 offset:{ch*UCH + q*512}')
    for q in range(2):
        P = 64 + 32 * q
        a.e(f's_waitcnt lgkmcnt({6 if q == 0 else 0})')
        for ch in range(2):
            y = P + 8 * ch
            T = 128 + 16 * ch
            u = P + 16 + 2 * ch
            for h in range(2):
                a.e(f'v_pk_add_f32 v[{y+2*h}:{y+2*h+1}], v[{y+2*h}:{y+2*h+1}], v[{y+4+2*h}:{y+5+2*h}]')
            for i in range(4):
                a.e(f'v_fma_mix_f32 v{T+i}, v{u+i//2}, v{56+ch}, 0 op_sel:[{i%2},0,0] op_sel_hi:[1,0,0]')
            for h in range(2):
                a.e(f'v_pk_mul_f32 v[{y+2*h}:{y+2*h+1}], v[{y+2*h}:{y+2*h+1}], v[54:55] op_sel:[0,{ch}] op_sel_hi:[1,{ch}]')
            for h in range(2):
                a.e(f'v_cvt_pk_bf16_f32 v{T+6+h}, v{T+2*h}, v{T+2*h+1}')
                a.e(f'v_cvt_pk_bf16_f32 v{T+4+h}, v{y+2*h}, v{y+2*h+1}')
            for h in range(2):
                a.e(f'v_lshlrev_b32 v{T+2*h}, 16, v{T+6+h}')
                a.e(f'v_and_b32 v{T+2*h+1}, 0xffff0000, v{T+6+h}')
                a.e(f'v_lshlrev_b32 v{y+2*h}, 16, v{T+4+h}')
                a.e(f'v_and_b32 v{y+2*h+1}, 0xffff0000, v{T+4+h}')
            for h in range(2):
                a.e(f'v_pk_add_f32 v[{y+2*h}:{y+2*h+1}], v[{y+2*h}:{y+2*h+1}], v[{T+2*h}:{T+2*h+1}]')
        O = 160 + 4 * q
        for i in range(4):
            a.e(f'v_cvt_pk_bf16_f32 v{O+i}, v{P+i}, v{P+8+i}')
        a.e(f'buffer_store_dwordx4 v[{O}:{O+3}], v4, {WSR}, 0 offen offset:{q*1024} sc1')


def conv_addr(a):
    a.e(f's_lshr_b32 s66, s{S_W}, 1')
    a.e(f's_and_b32 s67, s{S_W}, 1')
    a.e('v_and_b32 v2, 7, v1')
    a.e('v_sub_u32 v2, 7, v2')
    a.e(f'v_mul_u32_u24 v2, {KCOPY}, v2')
    a.e('v_lshrrev_b32 v3, 4, v1')
    a.e('v_bfe_u32 v4, v1, 3, 1')
    a.e('v_sub_u32 v4, v3, v4')
    a.e('v_lshl_add_u32 v2, v4, 4, v2')
    a.e(f's_mul_i32 s70, s66, {KCH}')
    a.e('s_lshl_b32 s71, s67, 8')
    a.e('s_sub_u32 s70, s70, s71')
    a.e(f's_add_u32 s70, s70, {L_KC + 16*253 - 512*7 - 64*3}')
    a.e('v_add_u32 v48, s70, v2')
    a.e('v_and_b32 v2, 15, v1')
    a.e('v_lshlrev_b32 v2, 5, v2')
    a.e('v_lshl_add_u32 v2, v3, 4, v2')
    a.e(f's_mul_i32 s70, s66, {UCH}')
    a.e('s_sub_u32 s70, s70, s71')
    a.e(f's_add_u32 s70, s70, {L_U + 480 - 64*3}')
    a.e('v_add_u32 v49, s70, v2')


def phase_p4(a):
    X = list(range(8, 16))
    A = 32
    xrow_addr(a)
    a.e(f's_mul_i32 s66, s{S_W}, {56*AST}')
    a.e(f's_lshl_b32 s67, s{S_B}, 5')
    a.e('s_add_u32 s66, s66, s67')
    a.e(f's_add_u32 s66, s66, {WS_AOUT}')
    a.e(f'v_mul_u32_u24 v4, {AST}, v1')
    a.e('v_add_u32 v4, s66, v4')
    a.e(f'v_mov_b32 v5, {OOB}')
    a.e('v_cndmask_b32 v4, v5, v4, vcc')
    a.e(f's_mul_i32 s66, s{S_W}, 224')
    a.e(f's_add_u32 s66, s66, {L_HT}')
    a.e('v_lshl_add_u32 v6, v1, 2, s66')
    for j in range(8):
        a.e(f'v_lshlrev_b32 v{64+2*j}, 16, v{X[j]}')
        a.e(f'v_and_b32 v{65+2*j}, 0xffff0000, v{X[j]}')
    lp, ld = a.lab('h2poll'), a.lab('h2done')
    a.e(f's_mov_b32 s{S_SPIN}, 0')
    a.e(f'{lp}:')
    a.e(f'buffer_load_dwordx4 v[{A}:{A+3}], v4, {WSR}, 0 offen sc1')
    a.e(f'buffer_load_dwordx4 v[{A+4}:{A+7}], v4, {WSR}, 0 offen offset:16 sc1')
    a.e('s_waitcnt vmcnt(0)')
    a.e(f'v_max3_u32 v40, v{A}, v{A+1}, v{A+2}')
    a.e(f'v_max3_u32 v41, v{A+3}, v{A+4}, v{A+5}')
    a.e(f'v_max3_u32 v40, v40, v{A+6}, v{A+7}')
    a.e('v_max_u32 v40, v40, v41')
    a.e('v_cmp_eq_u32 vcc, -1, v40')
    a.e(f's_cbranch_vccz {ld}')
    spin_tail(a, lp)
    a.e(f'{ld}:')
    stamp(a, 14)
    H = list(range(48, 56))
    for j in range(8):
        t = 40 + 2 * (j % 4)
        a.e(f'v_lshlrev_b32 v{t}, 16, v{A+j}')
        a.e(f'v_and_b32 v{t+1}, 0xffff0000, v{A+j}')
        a.e(f'v_pk_add_f32 v[{t}:{t+1}], v[{t}:{t+1}], v[{64+2*j}:{65+2*j}]')
        a.e(f'v_cvt_pk_bf16_f32 v{H[j]}, v{t}, v{t+1}')
    a.e('s_mov_b32 exec_hi, 0x00ffffff')
    for j in range(8):
        a.e(f'ds_write_b32 v6, v{H[j]} offset:{j*896}')
    a.e('s_mov_b32 exec_hi, -1')

    def hstore():
        a.e('v_lshlrev_b32 v7, 4, v0')
        a.e(f'ds_read_b128 v[56:59], v7 offset:{L_HT}')
        a.e(f'ds_read_b128 v[60:63], v7 offset:{L_HT + 4096}')
        return 2

    ln_stats(a, H, 16, L_RED0, 5, mid=hstore)
    a.e(f's_mul_i32 s66, s{S_B}, 7168')
    a.e(f's_add_u32 s66, s66, {WS_H}')
    a.e('v_add_u32 v6, s66, v7')
    a.e('v_add_u32 v7, 4096, v6')
    mask_lanes(a, 7, 192, 4, 'v0')
    a.e('s_waitcnt lgkmcnt(0)')
    a.e(f'buffer_store_dwordx4 v[56:59], v6, {WSR}, 0 offen sc1')
    a.e(f'buffer_store_dwordx4 v[60:63], v7, {WSR}, 0 offen sc1')
    bcast_stats(a, 16)
    a.e('s_mov_b32 exec_hi, 0x00ffffff')
    for j in range(8):
        t = 40 + 2 * (j % 4)
        norm_tok(a, j, H[j], t)
        a.e(f'v_cvt_pk_bf16_f32 v{H[j]}, v{t}, v{t+1}')
    a.e('s_mov_b32 exec_hi, -1')
    ln_stats(a, H, 16, L_RED1, 5)
    bcast_stats(a, 16)
    a.e(f's_mul_i32 s66, s{S_B}, 7168')
    a.e(f's_mul_i32 s67, s{S_W}, 1792')
    a.e('s_add_u32 s66, s66, s67')
    a.e(f's_add_u32 s66, s66, {WS_HH}')
    a.e('v_lshl_add_u32 v4, v1, 4, s66')
    a.e('v_add_u32 v5, 448, v4')
    a.e('v_cmp_gt_u32 vcc, 28, v1')
    a.e('v_cndmask_b32 v4, v5, v4, vcc')
    mask_lanes(a, 4, 56, 5)
    for j in range(8):
        norm_tok(a, j, H[j], 64 + 2 * j)
    O0, O1 = 80, 84
    for i in range(4):
        a.e(f'v_cvt_pk_bf16_f32 v{O0+i}, v{64+4*i}, v{66+4*i}')
        a.e(f'v_cvt_pk_bf16_f32 v{O1+i}, v{65+4*i}, v{67+4*i}')
    a.e('s_waitcnt vmcnt(0)')
    a.e('s_barrier')
    a.e(f'buffer_store_dwordx4 v[{O0}:{O0+3}], v4, {WSR}, 0 offen sc1')
    a.e(f'buffer_store_dwordx4 v[{O1}:{O1+3}], v4, {WSR}, 0 offen offset:448 sc1')


def w_setup(a):
    srd(a, S_W1, P_W1, W1BYTES)
    srd(a, S_W2, P_W2, W2BYTES)
    a.e('v_lshrrev_b32 v4, 3, v1')
    a.e('v_bfe_u32 v5, v1, 4, 1')
    a.e('v_lshlrev_b32 v5, 1, v5')
    a.e('v_and_b32 v6, 7, v1')
    a.e('v_xor_b32 v6, v6, v5')
    a.e('v_xor_b32 v7, 4, v6')
    for vd, rowbytes, tile, rows in ((V_D1, F * 2, S_I1, 512), (V_D2, L * 2, S_I2, 448)):
        a.e(f's_mov_b32 s66, {rowbytes}')
        a.e('v_mul_lo_u32 v5, v4, s66')
        a.e(f's_mul_i32 s67, s{S_W}, {rows*rowbytes}')
        a.e(f's_lshl_b32 s66, s{tile}, 7')
        a.e('s_add_u32 s67, s67, s66')
        a.e('v_add_u32 v5, s67, v5')
        for i in range(4):
            a.e(f'v_lshl_add_u32 v{vd+i}, v{6 + (i & 1)}, 4, v5')
            if i:
                a.e(f'v_add_u32 v{vd+i}, {i*(8*rowbytes - 1024)}, v{vd+i}')
    a.e('v_lshlrev_b32 v5, 12, v4')
    a.e('v_and_b32 v6, 7, v1')
    a.e(f'v_lshl_add_u32 v{V_QPF}, v6, 4, v5')
    a.e(f's_and_b32 s66, s{S_LOC}, 3')
    a.e('s_mul_i32 s66, s66, 448')
    a.e(f's_mul_i32 s67, s{S_W}, 112')
    a.e('s_add_u32 s66, s66, s67')
    a.e('s_lshl_b32 s66, s66, 12')
    a.e(f's_lshl_b32 s67, s{S_I2}, 7')
    a.e(f's_add_u32 s{S_QPF}, s66, s67')
    a.e('v_lshrrev_b32 v4, 4, v1')
    a.e('v_bfe_u32 v5, v1, 2, 2')
    a.e('v_lshl_add_u32 v5, v4, 3, v5')
    a.e('v_lshlrev_b32 v5, 7, v5')
    a.e('v_and_b32 v6, 1, v1')
    a.e('v_lshl_add_u32 v5, v6, 3, v5')
    a.e('v_bfe_u32 v6, v1, 1, 1')
    a.e('v_lshl_add_u32 v5, v6, 4, v5')
    a.e('v_bfe_u32 v6, v1, 3, 1')
    a.e('v_and_b32 v4, 1, v4')
    a.e('v_lshl_add_u32 v6, v4, 1, v6')
    a.e(f's_and_b32 s66, s{S_LOC}, 3')
    a.e(f's_lshr_b32 s67, s{S_LOC}, 2')
    a.e('s_lshl_b32 s67, s67, 1')
    a.e('s_lshl_b32 s70, s66, 2')
    a.e('s_add_u32 s70, s70, s67')
    a.e('s_and_b32 s70, s70, 15')
    a.e(f's_mul_i32 s{S_RW1}, s70, {32*F*2}')
    a.e(f's_mul_i32 s{S_RX1}, s70, {4*7168}')
    a.e('s_mul_i32 s66, s66, 7')
    a.e('s_lshr_b32 s66, s66, 1')
    a.e('s_add_u32 s66, s66, s67')
    for _ in range(2):
        a.e('s_cmp_ge_u32 s66, 14')
        a.e('s_cselect_b32 s67, 14, 0')
        a.e('s_sub_u32 s66, s66, s67')
    a.e(f's_mul_i32 s{S_RW2}, s66, {32*L*2}')
    a.e(f's_mul_i32 s{S_RX2}, s66, {4*7168}')
    a.e(f's_lshl_b32 s{S_SA}, s{S_W}, 14')
    a.e(f's_add_u32 s{S_SA}, s{S_SA}, {L_WA}')
    a.e(f's_mul_i32 s{S_SB}, s{S_W}, 20480')
    a.e(f's_add_u32 s{S_SB}, s{S_SB}, {L_WB}')
    for mu in range(4):
        a.e(f'v_xor_b32 v4, {mu}, v6')
        a.e('v_lshl_add_u32 v4, v4, 5, v5')
        a.e(f'v_add_u32 v{V_TA+mu}, s{S_SA}, v4')
        a.e(f'v_add_u32 v{V_TB+mu}, s{S_SB}, v4')


def rot_off(a, idx, sreg, n, unit):
    a.e(f's_add_u32 s70, s{sreg}, {idx*unit}')
    a.e(f's_cmp_ge_u32 s70, {n*unit}')
    a.e(f's_cselect_b32 s71, {n*unit}, 0')
    a.e('s_sub_u32 s70, s70, s71')


def slot(name):
    return (S_SA, V_TA, int(name[1])) if name[0] == 'A' else (S_SB, V_TB, int(name[1]))


def w_dma1(a, mat, slab, sl, i):
    sb, _, si = slot(sl)
    vd, srd_, rowbytes = (V_D1, S_W1, F * 2) if mat == 1 else (V_D2, S_W2, L * 2)
    if i == 0:
        rot_off(a, slab, S_RW1 if mat == 1 else S_RW2, 16 if mat == 1 else 14, 32 * rowbytes)
        a.e(f's_add_u32 m0, s{sb}, {si*4096}')
    a.e(f'buffer_load_dwordx4 v{vd + i}, s[{srd_}:{srd_+3}], s70 offen offset:{1024*i} lds')


def w_dma(a, mat, slab, sl):
    for i in range(4):
        w_dma1(a, mat, slab, sl, i)


def w_tr(a, slab, sl):
    _, vt, si = slot(sl)
    for mu in range(4):
        r = (slab * 4 + mu) * 4
        a.e(f'ds_read_b64_tr_b16 a[{r}:{r+1}], v{vt+mu} offset:{si*4096}')
        a.e(f'ds_read_b64_tr_b16 a[{r+2}:{r+3}], v{vt+mu} offset:{si*4096 + 512}')


def qpf_load(a, n):
    for _ in range(n):
        a.e(f'buffer_load_dwordx4 v[220:223], v{V_QPF}, s[{S_W2}:{S_W2+3}], s{S_QPF} offen')
        a.e(f's_add_u32 s{S_QPF}, s{S_QPF}, {8*L*2}')


ACC = 16
XS = 80
NS = 6
VMAX = 214
V_X0, V_X3 = 208, 209


def gemm_xaddr(a, ws_off, kblocks):
    a.e(f's_mul_i32 s66, s{S_W}, {kblocks*7168}')
    a.e(f's_mul_i32 s67, s{S_J}, 896')
    a.e('s_add_u32 s66, s66, s67')
    a.e(f's_add_u32 s66, s66, {ws_off}')
    a.e('v_lshrrev_b32 v4, 4, v1')
    a.e('v_mul_u32_u24 v4, 7168, v4')
    a.e('v_add_u32 v4, s66, v4')
    a.e('v_and_b32 v5, 15, v1')
    a.e(f'v_lshl_add_u32 v{V_X0}, v5, 4, v4')
    a.e('v_and_b32 v5, 7, v1')
    a.e('v_lshl_add_u32 v4, v5, 4, v4')
    a.e(f'v_add_u32 v{V_X3}, 768, v4')


def gemm_xloads(a, kappa, gid):
    st = XS + 16 * (kappa % NS)
    out = []
    sreg, n = (S_RX1, 16) if gid == 1 else (S_RX2, 14)
    unit = 4 * 7168
    out.append(f's_add_u32 s70, s{sreg}, {kappa*unit}')
    out.append(f's_cmp_ge_u32 s70, {n*unit}')
    out.append(f's_cselect_b32 s71, {n*unit}, 0')
    out.append('s_sub_u32 s70, s70, s71')
    for nu in range(3):
        out.append(f'buffer_load_dwordx4 v[{st+4*nu}:{st+4*nu+3}], v{V_X0}, {WSR}, s70 offen offset:{256*nu} sc1')
    out.append(f'buffer_load_dwordx4 v[{st+12}:{st+15}], v{V_X3}, {WSR}, s70 offen sc1')
    return out


def gemm_main(a, nk, gid, tail_hook=None):
    nfl = OPT['nfl']
    w_is_a = gid == 1
    a.e(f'v_mov_b32 v{VMAX}, 0')
    extra = 0
    for k in range(nk):
        st = XS + 16 * (k % NS)
        rem = min(nfl - 1, nk - 1 - k)
        a.e(f's_waitcnt vmcnt({4*rem + extra})')
        if OPT['stamps'] and k in (0, 4, 8, 12):
            stamp(a, (44 if w_is_a else 51) + (0, 4, 8, 12).index(k))
        fill = gemm_xloads(a, k + nfl, gid) if k + nfl < nk else []
        if k + nfl == nk and tail_hook is not None:
            fill = []
            extra = tail_hook(fill)
        mx = [f'v_max3_u32 v{VMAX}, v{VMAX}, v{st+2*i}, v{st+2*i+1}' for i in range(8)]
        n = 0
        for mu in range(4):
            for nu in range(4):
                w = (k * 4 + mu) * 4
                x = st + 4 * nu
                if w_is_a:
                    acc = ACC + (mu * 4 + nu) * 4
                    A, B = f'a[{w}:{w+3}]', f'v[{x}:{x+3}]'
                else:
                    acc = ACC + (nu * 4 + mu) * 4
                    A, B = f'v[{x}:{x+3}]', f'a[{w}:{w+3}]'
                cc = '0' if k == 0 else f'v[{acc}:{acc+3}]'
                a.e(f'v_mfma_f32_16x16x32_bf16 v[{acc}:{acc+3}], {A}, {B}, {cc}')
                for _ in range(2):
                    if fill:
                        a.e(fill.pop(0))
                if not fill and mx and n >= 4:
                    a.e(mx.pop(0))
                n += 1
        assert not fill and not mx


def sentinel(a, ws_off, kblocks):
    lp, ld = a.lab('spoll'), a.lab('sdone')
    a.e(f's_mul_i32 s66, s{S_W}, {kblocks*7168}')
    a.e(f's_mul_i32 s67, s{S_J}, 896')
    a.e('s_add_u32 s66, s66, s67')
    a.e(f's_add_u32 s66, s66, {ws_off + 55*16 + 12}')
    a.e('v_mul_u32_u24 v4, 7168, v1')
    a.e('v_add_u32 v4, s66, v4')
    if kblocks < 64:
        mask_lanes(a, 4, kblocks, 5)
    a.e(f's_mov_b32 s{S_SPIN}, 0')
    a.e(f'{lp}:')
    a.e(f'buffer_load_dword v5, v4, {WSR}, 0 offen sc1')
    a.e('s_waitcnt vmcnt(0)')
    a.e('v_cmp_eq_u32 vcc, -1, v5')
    a.e(f's_cbranch_vccz {ld}')
    spin_tail(a, lp)
    a.e(f'{ld}:')


def gemm_poll_main(a, ws_off, kblocks, nk, gid, sb, tail_hook=None):
    lr, lok = a.lab('gretry'), a.lab('gok')
    gemm_xaddr(a, ws_off, kblocks)
    a.e(f's_mov_b32 s{S_RETRY}, 0')
    a.e(f'{lr}:')
    sentinel(a, ws_off, kblocks)
    stamp(a, sb)
    for k in range(OPT['nfl']):
        for x in gemm_xloads(a, k, gid):
            a.e(x)
    gemm_main(a, nk, gid, tail_hook)
    a.e(f'v_cmp_eq_u32 vcc, -1, v{VMAX}')
    a.e(f's_cbranch_vccz {lok}')
    a.e(f's_add_u32 s{S_RETRY}, s{S_RETRY}, 1')
    a.e(f's_cmp_lt_u32 s{S_RETRY}, {RETRY_MAX}')
    a.e(f's_cbranch_scc1 {lr}')
    a.e(f'{lok}:')


def write_partials(a):
    a.e('v_and_b32 v4, 15, v1')
    a.e(f'v_mul_u32_u24 v4, {PROW}, v4')
    a.e('v_lshrrev_b32 v5, 4, v1')
    a.e('v_lshl_add_u32 v4, v5, 4, v4')
    a.e(f's_mul_i32 s66, s{S_W}, {PARTW}')
    a.e(f's_add_u32 s66, s66, {L_PART}')
    a.e('v_add_u32 v4, s66, v4')
    a.e('s_barrier')
    for mt in range(4):
        for nt in range(4):
            acc = ACC + (mt * 4 + nt) * 4
            a.e(f'ds_write_b128 v4, v[{acc}:{acc+3}] offset:{nt*16*PROW + mt*64}')


def sum_partials(a, P):
    for h in range(4):
        a.e(f'v_pk_add_f32 v[{P+2*h}:{P+2*h+1}], v[{P+2*h}:{P+2*h+1}], v[{P+8+2*h}:{P+9+2*h}]')
        a.e(f'v_pk_add_f32 v[{P+16+2*h}:{P+17+2*h}], v[{P+16+2*h}:{P+17+2*h}], v[{P+24+2*h}:{P+25+2*h}]')
    for h in range(4):
        a.e(f'v_pk_add_f32 v[{P+2*h}:{P+2*h+1}], v[{P+2*h}:{P+2*h+1}], v[{P+16+2*h}:{P+17+2*h}]')


def b1_load(a):
    a.e(f's_lshl_b32 s67, s{S_I1}, 7')
    a.e(f's_lshl_b32 s70, s{S_W}, 5')
    a.e('s_add_u32 s67, s67, s70')
    a.e(f's_load_dwordx8 s[72:79], s[{P_B1}:{P_B1+1}], s67')


def gemm1_epilogue(a):
    write_partials(a)
    a.e(f'v_mul_u32_u24 v4, {PROW}, v1')
    a.e(f's_lshl_b32 s66, s{S_W}, 6')
    a.e(f's_add_u32 s66, s66, {L_PART}')
    a.e('v_add_u32 v4, s66, v4')
    g_store_addr(a, 5)
    C1 = 0.044715
    C2 = -2.0 * 0.7978845608028654 * 1.4426950408889634
    a.e(f'v_mov_b32 v100, {fx(C1*C2)}')
    a.e(f'v_mov_b32 v101, {fx(C1*C2)}')
    a.e(f'v_mov_b32 v102, {fx(C2)}')
    a.e(f'v_mov_b32 v103, {fx(C2)}')
    a.e('s_waitcnt lgkmcnt(0)')
    a.e('s_barrier')
    stamp(a, 24)
    for r in range(2):
        P = 16 + 32 * r
        for wv in range(4):
            a.e(f'ds_read_b128 v[{P+8*wv}:{P+8*wv+3}], v4 offset:{wv*PARTW + r*32}')
            a.e(f'ds_read_b128 v[{P+8*wv+4}:{P+8*wv+7}], v4 offset:{wv*PARTW + r*32 + 16}')
    for i in range(8):
        a.e(f's_lshl_b32 s{80+2*i}, s{72+i}, 16')
        a.e(f's_and_b32 s{81+2*i}, s{72+i}, 0xffff0000')
    for r in range(2):
        P = 16 + 32 * r
        T = 80
        a.e(f's_waitcnt lgkmcnt({8 if r == 0 else 0})')
        sum_partials(a, P)
        round_pairs(a, P, T, 8)
        for h in range(4):
            a.e(f'v_pk_add_f32 v[{P+2*h}:{P+2*h+1}], v[{P+2*h}:{P+2*h+1}], s[{80+8*r+2*h}:{81+8*r+2*h}]')
        round_pairs(a, P, T, 8)
        for h in range(4):
            a.e(f'v_pk_mul_f32 v[{P+8+2*h}:{P+9+2*h}], v[{P+2*h}:{P+2*h+1}], v[{P+2*h}:{P+2*h+1}]')
        for h in range(4):
            a.e(f'v_pk_fma_f32 v[{P+8+2*h}:{P+9+2*h}], v[{P+8+2*h}:{P+9+2*h}], v[100:101], v[102:103]')
        for h in range(4):
            a.e(f'v_pk_mul_f32 v[{P+8+2*h}:{P+9+2*h}], v[{P+8+2*h}:{P+9+2*h}], v[{P+2*h}:{P+2*h+1}]')
        for i in range(8):
            a.e(f'v_exp_f32 v{P+8+i}, v{P+8+i}')
        for h in range(4):
            a.e(f'v_pk_add_f32 v[{P+8+2*h}:{P+9+2*h}], v[{P+8+2*h}:{P+9+2*h}], 1.0 op_sel_hi:[1,0]')
        for i in range(8):
            a.e(f'v_rcp_f32 v{P+8+i}, v{P+8+i}')
        for h in range(4):
            a.e(f'v_pk_mul_f32 v[{P+2*h}:{P+2*h+1}], v[{P+2*h}:{P+2*h+1}], v[{P+8+2*h}:{P+9+2*h}]')
        O = 88 + 4 * r
        for h in range(4):
            a.e(f'v_cvt_pk_bf16_f32 v{O+h}, v{P+2*h}, v{P+2*h+1}')
        if r == 1:
            a.e('v_add_u32 v5, 7168, v5')
        a.e(f'buffer_store_dwordx4 v[{O}:{O+3}], v5, {WSR}, 0 offen sc1')


V_OUT, V_HAD, V_B2 = 210, 211, 212
V_HR = 196


def gemm2_addr(a):
    srd(a, S_T2, P_OUT, XBYTES)
    srd(a, S_T3, P_B2, L * 2)
    a.e('v_lshrrev_b32 v4, 3, v1')
    a.e('v_and_b32 v5, 7, v1')
    a.e(f's_lshl_b32 s66, s{S_W}, 4')
    a.e('v_add_u32 v4, s66, v4')
    a.e(f's_lshl_b32 s67, s{S_I2}, 6')
    a.e('v_add_u32 v7, s67, v4')
    a.e(f'v_mul_u32_u24 v{V_OUT}, 896, v7')
    a.e(f'v_lshl_add_u32 v{V_OUT}, v5, 4, v{V_OUT}')
    a.e(f's_mul_i32 s70, s{S_J}, 112')
    a.e(f'v_add_u32 v{V_OUT}, s70, v{V_OUT}')
    a.e(f'v_mov_b32 v6, {OOB}')
    a.e('v_cmp_gt_u32 vcc, 7, v5')
    a.e(f'v_cndmask_b32 v{V_OUT}, v6, v{V_OUT}, vcc')
    a.e(f'v_add_u32 v{V_HAD}, {WS_H}, v{V_OUT}')
    a.e(f'v_lshlrev_b32 v{V_B2}, 1, v7')


def gemm2_tail_loads(fill):
    fill.append(f'buffer_load_dwordx4 v[{V_HR}:{V_HR+3}], v{V_HAD}, {WSR}, 0 offen sc1')
    fill.append(f's_mov_b32 s70, {8*896}')
    fill.append(f'buffer_load_dwordx4 v[{V_HR+4}:{V_HR+7}], v{V_HAD}, {WSR}, s70 offen sc1')
    fill.append(f'buffer_load_ushort v{V_HR+8}, v{V_B2}, s[{S_T3}:{S_T3+3}], 0 offen')
    fill.append(f'buffer_load_ushort v{V_HR+9}, v{V_B2}, s[{S_T3}:{S_T3+3}], 0 offen offset:16')
    return 4


def gemm2_epilogue(a):
    write_partials(a)
    a.e('v_lshrrev_b32 v4, 3, v1')
    a.e('v_and_b32 v5, 7, v1')
    a.e(f's_lshl_b32 s66, s{S_W}, 4')
    a.e('v_add_u32 v4, s66, v4')
    a.e(f'v_mul_u32_u24 v6, {PROW}, v4')
    a.e('v_lshl_add_u32 v6, v5, 4, v6')
    a.e(f'v_add_u32 v6, {L_PART}, v6')
    a.e('s_waitcnt lgkmcnt(0)')
    a.e('s_barrier')
    stamp(a, 33)
    for r in range(2):
        P = 16 + 32 * r
        for wv in range(4):
            a.e(f'ds_read_b128 v[{P+8*wv}:{P+8*wv+3}], v6 offset:{wv*PARTW + r*8*PROW}')
            a.e(f'ds_read_b128 v[{P+8*wv+4}:{P+8*wv+7}], v6 offset:{wv*PARTW + r*8*PROW + 112}')
    a.e('s_waitcnt vmcnt(0)')
    for r in range(2):
        P = 16 + 32 * r
        T = 80
        H = V_HR + 4 * r
        a.e(f'v_lshlrev_b32 v106, 16, v{V_HR+8+r}')
        for i in range(4):
            a.e(f'v_lshlrev_b32 v{96+i}, 16, v{H+i}')
            a.e(f'v_and_b32 v{100+i}, 0xffff0000, v{H+i}')
        a.e(f's_waitcnt lgkmcnt({8 if r == 0 else 0})')
        sum_partials(a, P)
        round_pairs(a, P, T, 8)
        for h in range(4):
            a.e(f'v_pk_add_f32 v[{P+2*h}:{P+2*h+1}], v[{P+2*h}:{P+2*h+1}], v[106:107] op_sel:[0,0] op_sel_hi:[1,0]')
        round_pairs(a, P, T, 8)
        for h in range(4):
            a.e(f'v_pk_add_f32 v[{P+2*h}:{P+2*h+1}], v[{P+2*h}:{P+2*h+1}], v[{96+2*h}:{97+2*h}]')
        O = 88 + 4 * r
        for i in range(4):
            a.e(f'v_cvt_pk_bf16_f32 v{O+i}, v{P+i}, v{P+4+i}')
        if r == 1:
            a.e(f'v_add_u32 v{V_OUT}, {8*896}, v{V_OUT}')
        a.e(f'buffer_store_dwordx4 v[{O}:{O+3}], v{V_OUT}, s[{S_T2}:{S_T2+3}], 0 offen')


def build():
    a = Prog()
    name = NAME + '_kernel'
    lend = a.lab('end')
    a.raw(f'.globl {name}')
    a.raw('.p2align 8')
    a.raw(f'.type {name},@function')
    a.raw(f'{name}:')
    prologue(a, lend)
    lnc1, lnc2, lnc3, lnc5 = [a.lab('noconv') for _ in range(4)]

    def skip_if_helper(l):
        a.e(f's_cmp_ge_u32 s{S_LOC}, 28')
        a.e(f's_cbranch_scc1 {l}')

    load_xrows(a)
    a.e(f's_add_u32 s66, s{P_WS}, {WS_EPOCH}')
    a.e(f's_addc_u32 s67, s{P_WS+1}, 0')
    a.e('s_load_dword s99, s[66:67], 0')
    poison_regs(a)
    skip_if_helper(lnc1)
    kgen_loads(a)
    load_gather_table(a, 'ktab_idx')
    w_setup(a)
    flag_addr(a)
    a.e('s_waitcnt lgkmcnt(0)')
    a.e(f's_add_u32 s{S_TAG}, s99, 0x9e3779b9')
    a.e('s_waitcnt vmcnt(10)')
    stamp(a, 2)
    clear_hh(a)
    clear_aout(a)
    ln_stats(a, list(range(8, 16)), 16, L_RED0, 5)
    stamp(a, 3)
    publish_xn(a)
    stamp(a, 4)
    a.e('s_waitcnt vmcnt(8)')
    kgen_channel(a, 0, DK0)
    publish_flag(a)
    for k in range(3):
        w_dma(a, 1, k, BS[k])
    stamp(a, 40)
    kgen_channel(a, 1, DK1)
    stamp(a, 5)
    if OPT['early']:
        flag_load(a)
        a.e('s_waitcnt vmcnt(1)')
    else:
        a.e('s_waitcnt vmcnt(0)')
    for k in range(3):
        w_tr(a, k, BS[k])
    ktab_part1(a)
    stamp(a, 6)
    a.e(f's_mov_b32 s{S_EARLY}, 0')
    lne = a.lab('notearly')
    if OPT['early']:
        a.e('s_waitcnt vmcnt(0)')
        a.e(f'v_cmp_ne_u32 vcc, s{S_TAG}, v{V_FV}')
        a.e(f's_cbranch_vccnz {lne}')
        load_u(a)
        a.e(f's_mov_b32 s{S_EARLY}, 1')
        a.e(f'{lne}:')
    qpf_load(a, OPT['w2pf_a'])
    ktab_part2(a)
    stamp(a, 7)
    conv_addr(a)
    kcopies(a)
    stamp(a, 8)
    lhave = a.lab('haveu')
    a.e(f's_cmp_lg_u32 s{S_EARLY}, 0')
    a.e(f's_cbranch_scc1 {lhave}')
    flag_poll(a)
    load_u(a)
    a.e('s_waitcnt vmcnt(0)')
    a.e(f'{lhave}:')
    stamp(a, 9)
    store_u(a, OPT['w2pf_a'])
    epoch_update(a)
    clear_g(a)
    qpf_load(a, OPT['w2pf_b'])
    stamp(a, 10)
    hk = []
    for k in range(4):
        for i in range(4):
            hk.append(lambda k=k, i=i: w_dma1(a, 1, 3 + k, AS[k], i))
            hk.append(lambda: None)
    phase_conv(a, hk, 0)
    stamp(a, 12)
    for k in range(4):
        w_tr(a, 3 + k, AS[k])
    a.e('s_waitcnt lgkmcnt(0)')
    a.e('s_barrier')
    for k in range(7, 12):
        w_dma(a, 1, k, BS[k - 7])
    for k in range(12, 16):
        w_dma(a, 1, k, AS[k - 12])
    stamp(a, 13)
    a.e(f's_branch {lnc2}')
    a.e(f'{lnc1}:')
    code_prefetch(a, name, 'kcode_end')
    w_setup(a)
    flag_addr(a)
    a.e('s_waitcnt lgkmcnt(0)')
    a.e(f's_add_u32 s{S_TAG}, s99, 0x9e3779b9')
    a.e('s_waitcnt vmcnt(2)')
    clear_hh(a)
    ln_stats(a, list(range(8, 16)), 16, L_RED0, 5)
    publish_xn(a)
    publish_flag(a)
    qpf_load(a, OPT['w2pf_a'] + OPT['w2pf_b'])
    stamp(a, 41)
    flag_poll(a)
    a.e('s_barrier')
    stamp(a, 42)
    a.e(f'{lnc2}:')
    phase_p4(a)
    stamp(a, 20)
    gemm2_addr(a)
    skip_if_helper(lnc3)
    b1_load(a)
    for k in range(7, 12):
        w_tr(a, k, BS[k - 7])
    for k in range(12, 16):
        w_tr(a, k, AS[k - 12])
    a.e('s_waitcnt lgkmcnt(0)')
    for k in range(5):
        w_dma(a, 2, k, BS[k])
    stamp(a, 21)
    gemm_poll_main(a, WS_HH, 64, 16, 1, 22)
    stamp(a, 23)
    gemm1_epilogue(a)
    stamp(a, 25)
    for k in range(5):
        w_tr(a, k, BS[k])
    a.e('s_waitcnt lgkmcnt(0)')
    a.e('s_barrier')
    a.e(f's_branch {lnc5}')
    a.e(f'{lnc3}:')
    for k in range(5):
        w_dma(a, 2, k, BS[k])
    a.e('s_waitcnt vmcnt(0)')
    for k in range(5):
        w_tr(a, k, BS[k])
    a.e('s_waitcnt lgkmcnt(0)')
    a.e(f'{lnc5}:')
    for k in range(5, 10):
        w_dma(a, 2, k, BS[k - 5])
    for k in range(10, 14):
        w_dma(a, 2, k, AS[k - 10])
    a.e('s_waitcnt vmcnt(16)')
    for k in range(5, 10):
        w_tr(a, k, BS[k - 5])
    a.e('s_waitcnt vmcnt(0)')
    for k in range(10, 14):
        w_tr(a, k, AS[k - 10])
    a.e('s_waitcnt lgkmcnt(0)')
    stamp(a, 30)
    gemm_poll_main(a, WS_G, 56, 14, 2, 31, gemm2_tail_loads)
    stamp(a, 32)
    gemm2_epilogue(a)
    stamp_clk(a, 61)
    stamp(a, 63)
    stamp_flush(a)
    a.e(f'{lend}:')
    a.e('s_endpgm')
    a.raw('kcode_end:')
    emit_gather_table(a, 'ktab_idx')
    nn = a.fast_insert_nops()
    head = f'; @launch grid=(256,1,1) block=(256,1,1) lds={LDS_BYTES}\n'
    head += '.amdgcn_target "amdgcn-amd-amdhsa--gfx950"\n.text\n'
    tail = '.section .rodata,"a"\n.p2align 6\n' + descriptor(name)
    if OPT['align']:
        nal = a.align8(head, tail)
        sys.stderr.write(f'alignment: {nal}\n')
    sys.stderr.write(f'instructions: {a.count()}, nops inserted: {nn}\n')
    return head + a.text() + tail


if __name__ == '__main__':
    out = sys.argv[1]
    for arg in sys.argv[2:]:
        if arg == 'stamps':
            OPT['stamps'] = True
        elif arg == 'dbg':
            OPT['stamps'] = True
            OPT['dbgsel'] = [0, 1, 2, 4, 8, 9, 12, 13, 14, 20, 21, 23, 25, 30, 32, 63]
        elif '=' in arg:
            k, v = arg.split('=')
            OPT[k] = int(v)
    open(out, 'w').write(build())
```

```python
import sys
import gen
from gen import (Prog, NAME, L, D, F, XBYTES, PBYTES, W1BYTES, W2BYTES, OOB, fx, srd, reduce16, cmul, exp_bf16,
                 gather_table, emit_gather_table, descriptor, round_pairs, norm_tok, bcast_stats)

OPT = dict(outsc=0, x3oob=1, h4early=1, wb0=3, xnb=1, stamps=False, dbgsel=None, w2pf_a=10, w2pf_b=4, nfl=3, early=True, align=True, hlds=True)

WS_FLAG = 0x4000
WS_EPOCH = 0x9000
WS_AOUT = 0x10000
AST = 8448
WS_H = 0x200000
WS_HH = 0x400000
WS_G = 0x600000
WS_DBG = 0x800000
WS_XN = 0xA00000
XCS = 4352
XPS = 2 * XCS
WS_USED = 0x1000000

L_RED0, L_RED1, L_SIG, L_KT = 0, 256, 512, 640
KTCH = 1600
L_U = L_KT + 2 * KTCH
UCH = 4608
L_SCR = L_U + 2 * UCH
SROW = 272
YROW = 41
SCRW = 57 * SROW
L_KC = 82688
KCOPY = 4160
KCH = 8 * KCOPY
L_CP = L_KC
LDS_BYTES = 160 * 1024
L_WA, L_WB = 13056, 78592
L_PART = 1024
PROW = 272
PARTW = 64 * PROW
L_HT = 1024

S_WS, S_X = 4, 8
S_T0, S_T1, S_T2, S_T3 = 12, 16, 20, 24
S_W1, S_W2 = 12, 16
S_W, S_XCD, S_LOC, S_B, S_P, S_J, S_I1, S_I2 = 28, 29, 30, 31, 32, 33, 34, 35
P_X, P_LAR, P_AI, P_CR, P_CI, P_LDT, P_DSK = 36, 38, 40, 42, 44, 46, 48
P_W1, P_B1, P_W2, P_B2, P_OUT, P_DBG, P_WS = 52, 54, 56, 58, 60, 62, 64
S_SA, S_SB = 50, 51
S_RW1, S_RX1, S_RW2, S_RX2 = 38, 39, 40, 41
S_QPF = 42
S_EARLY = 43
S_TAG, S_SPIN, S_RETRY = 96, 97, 98
V_D1, V_D2, V_TA, V_TB = 224, 228, 244, 248
V_QPF = 232
SPIN_MAX, RETRY_MAX = 4000, 20
AS = ['A0', 'A1', 'A2', 'A3']
BS = ['B0', 'B1', 'B2', 'B3', 'B4']
WSR = f's[{S_WS}:{S_WS+3}]'

assert (gen.S_W, gen.S_B, gen.S_WS) == (S_W, S_B, S_WS)


def stamp(a, idx):
    if not OPT['stamps']:
        return
    sel = OPT['dbgsel']
    if sel is not None:
        if idx not in sel:
            return
        idx = sel.index(idx)
    a.e('s_memrealtime s[100:101]')
    a.e('s_waitcnt lgkmcnt(0)')
    a.e(f'v_writelane_b32 v255, s100, {idx}')


def stamp_clk(a, idx):
    if not OPT['stamps'] or OPT['dbgsel'] is not None:
        return
    a.e('s_memtime s[100:101]')
    a.e('s_waitcnt lgkmcnt(0)')
    a.e(f'v_writelane_b32 v255, s100, {idx}')


def stamp_flush(a):
    if not OPT['stamps']:
        return
    l = a.lab('nost')
    a.e(f's_cmp_lg_u32 s{S_W}, 0')
    a.e(f's_cbranch_scc1 {l}')
    if OPT['dbgsel'] is not None:
        a.e('v_not_b32 v253, v255')
        a.e('v_cmp_eq_u32 vcc, 0, v1')
        a.e('v_cndmask_b32 v255, v255, v253, vcc')
        a.e('v_lshlrev_b32 v254, 2, v1')
        a.e('s_mov_b64 exec, 0xffff')
        a.e(f'global_atomic_umax v254, v255, s[{P_DBG}:{P_DBG+1}]')
        a.e('s_mov_b64 exec, -1')
    else:
        a.e('s_lshl_b32 s66, s2, 8')
        a.e(f's_add_u32 s66, s66, {WS_DBG}')
        a.e('v_lshl_add_u32 v254, v1, 2, s66')
        a.e(f'buffer_store_dword v255, v254, {WSR}, 0 offen')
    a.e(f'{l}:')


def spin_tail(a, lp):
    a.e(f's_add_u32 s{S_SPIN}, s{S_SPIN}, 1')
    a.e(f's_cmp_lt_u32 s{S_SPIN}, {SPIN_MAX}')
    a.e(f's_cbranch_scc1 {lp}')


def mask_lanes(a, v, n, tmp, src='v1'):
    a.e(f'v_mov_b32 v{tmp}, {OOB}')
    a.e(f'v_cmp_gt_u32 vcc, {n}, {src}')
    a.e(f'v_cndmask_b32 v{v}, v{tmp}, v{v}, vcc')


def prologue(a, lend):
    a.e('s_cmp_ge_u32 s2, 256')
    a.e(f's_cbranch_scc1 {lend}')
    if OPT['stamps']:
        a.e('v_mov_b32 v255, 0')
        stamp(a, 0)
        stamp_clk(a, 60)
    a.e('s_load_dwordx16 s[36:51], s[0:1], 0')
    a.e('s_load_dwordx8 s[52:59], s[0:1], 64')
    a.e('s_load_dwordx4 s[60:63], s[0:1], 96')
    a.e('s_load_dwordx2 s[64:65], s[0:1], 112')
    a.e('v_and_b32 v1, 63, v0')
    a.e('v_lshrrev_b32 v2, 6, v0')
    a.e(f's_and_b32 s{S_XCD}, s2, 7')
    a.e(f'v_readfirstlane_b32 s{S_W}, v2')
    a.e(f's_lshr_b32 s{S_LOC}, s2, 3')
    a.e(f's_lshl_b32 s{S_B}, s{S_XCD}, 5')
    a.e(f's_add_u32 s{S_B}, s{S_B}, s{S_LOC}')
    a.e(f's_mul_i32 s{S_P}, s{S_XCD}, 28')
    a.e(f's_add_u32 s{S_P}, s{S_P}, s{S_LOC}')
    a.e(f's_and_b32 s{S_J}, s{S_XCD}, 1')
    a.e(f's_lshl_b32 s{S_J}, s{S_J}, 2')
    a.e(f's_and_b32 s3, s{S_LOC}, 3')
    a.e(f's_add_u32 s{S_J}, s{S_J}, s3')
    a.e(f's_lshr_b32 s3, s{S_XCD}, 1')
    a.e(f's_lshr_b32 s66, s{S_LOC}, 2')
    a.e(f's_mul_i32 s{S_I1}, s3, 7')
    a.e(f's_add_u32 s{S_I1}, s{S_I1}, s66')
    a.e(f's_lshl_b32 s{S_I2}, s3, 3')
    a.e(f's_add_u32 s{S_I2}, s{S_I2}, s66')
    a.e('s_waitcnt lgkmcnt(0)')
    srd(a, S_X, P_X, XBYTES)
    srd(a, S_WS, P_WS, WS_USED)
    stamp(a, 1)


def xrow_addr(a):
    a.e(f's_mul_i32 s66, s{S_W}, 224')
    a.e(f's_mul_i32 s67, s{S_B}, {8*896}')
    a.e('s_add_u32 s66, s66, s67')
    a.e('v_lshl_add_u32 v2, v1, 2, s66')
    mask_lanes(a, 2, 56, 3)
    a.e('v_add_u32 v3, 4480, v2')


def load_xrows(a):
    xrow_addr(a)
    for j in range(8):
        v, o = (2, j * 896) if j < 5 else (3, (j - 5) * 896)
        a.e(f'buffer_load_dword v{8+j}, v{v}, s[{S_X}:{S_X+3}], 0 offen offset:{o}')


def ln_stats(a, X, T, red, vt, mid=None):
    a.e('s_mov_b32 s66, 0x3f803f80')
    for j in range(8):
        a.e(f'v_dot2_f32_bf16 v{T+j}, v{X[j]}, s66, 0')
        a.e(f'v_dot2_f32_bf16 v{T+8+j}, v{X[j]}, v{X[j]}, 0')
    a.e(f'v_lshlrev_b32 v{vt}, 2, v1')
    a.e(f'v_and_b32 v{vt}, 0xf0, v{vt}')
    a.e(f's_lshl_b32 s66, s{S_W}, 2')
    a.e(f'v_add_u32 v{vt}, s66, v{vt}')
    reduce16(a, [T + i for i in range(16)])
    a.e('s_mov_b32 exec_lo, 0x11111111')
    a.e('s_mov_b32 exec_hi, 0x11111111')
    a.e(f'ds_write_b32 v{vt}, v{T} offset:{red}')
    a.e('s_mov_b64 exec, -1')
    a.e(f'v_and_b32 v{vt}, 7, v1')
    a.e(f'v_lshlrev_b32 v{vt}, 4, v{vt}')
    a.e('s_waitcnt lgkmcnt(0)')
    a.e('s_barrier')
    a.e(f'ds_read_b128 v[{T}:{T+3}], v{vt} offset:{red}')
    a.e(f'ds_read_b128 v[{T+4}:{T+7}], v{vt} offset:{red+128}')
    n_mid = mid() if mid else 0
    a.e(f's_waitcnt lgkmcnt({1 + n_mid})')
    a.e(f'v_pk_add_f32 v[{T}:{T+1}], v[{T}:{T+1}], v[{T+2}:{T+3}]')
    a.e(f's_waitcnt lgkmcnt({n_mid})')
    a.e(f'v_pk_add_f32 v[{T+4}:{T+5}], v[{T+4}:{T+5}], v[{T+6}:{T+7}]')
    a.e(f'v_add_f32 v{T}, v{T}, v{T+1}')
    a.e(f'v_add_f32 v{T+4}, v{T+4}, v{T+5}')
    a.e(f'v_mul_f32 v{T}, {fx(1.0/448)}, v{T}')
    a.e(f'v_mul_f32 v{T+4}, {fx(1.0/448)}, v{T+4}')
    a.e(f'v_fma_f32 v{T+4}, -v{T}, v{T}, v{T+4}')
    a.e(f'v_max_f32 v{T+4}, 0, v{T+4}')
    a.e(f'v_cvt_pk_bf16_f32 v{T+4}, v{T+4}, v{T+4}')
    a.e(f'v_lshlrev_b32 v{T+4}, 16, v{T+4}')
    a.e(f'v_add_f32 v{T+4}, {fx(1e-5)}, v{T+4}')
    a.e(f'v_cvt_pk_bf16_f32 v{T+4}, v{T+4}, v{T+4}')
    a.e(f'v_lshlrev_b32 v{T+4}, 16, v{T+4}')
    a.e(f'v_sqrt_f32 v{T+4}, v{T+4}')
    a.e(f'v_cvt_pk_bf16_f32 v{T}, v{T}, v{T+4}')


def poison_regs(a):
    for r in range(216, 220):
        a.e(f'v_mov_b32 v{r}, -1')


def clear_hh(a):
    a.e(f's_mul_i32 s66, s{S_B}, 7168')
    a.e(f's_add_u32 s66, s66, {WS_HH}')
    a.e('v_lshl_add_u32 v4, v0, 4, s66')
    a.e('v_add_u32 v5, 4096, v4')
    mask_lanes(a, 5, 192, 6, 'v0')
    a.e(f'buffer_store_dwordx4 v[216:219], v4, {WSR}, 0 offen sc1')
    a.e(f'buffer_store_dwordx4 v[216:219], v5, {WSR}, 0 offen sc1')


def clear_aout(a):
    a.e(f's_mul_i32 s66, s{S_P}, {AST}')
    a.e(f's_add_u32 s66, s66, {WS_AOUT}')
    a.e('v_lshl_add_u32 v4, v0, 4, s66')
    a.e('v_add_u32 v5, 4096, v4')
    a.e(f'buffer_store_dwordx4 v[216:219], v4, {WSR}, 0 offen sc1')
    a.e(f'buffer_store_dwordx4 v[216:219], v5, {WSR}, 0 offen sc1')


def g_store_addr(a, vd):
    a.e(f's_lshl_b32 s66, s{S_I1}, 3')
    a.e(f's_lshl_b32 s70, s{S_W}, 1')
    a.e('s_add_u32 s66, s66, s70')
    a.e('s_mul_i32 s66, s66, 7168')
    a.e(f's_mul_i32 s70, s{S_J}, 896')
    a.e('s_add_u32 s66, s66, s70')
    a.e(f's_add_u32 s66, s66, {WS_G}')
    a.e(f'v_lshl_add_u32 v{vd}, v1, 4, s66')
    mask_lanes(a, vd, 56, 6)


def clear_g(a):
    g_store_addr(a, 4)
    a.e('v_add_u32 v5, 7168, v4')
    a.e(f'buffer_store_dwordx4 v[216:219], v4, {WSR}, 0 offen sc1')
    a.e(f'buffer_store_dwordx4 v[216:219], v5, {WSR}, 0 offen sc1')


def publish_xn(a):
    bcast_stats(a, 16)
    for j in range(8):
        d = 64 + 2 * j
        t = 48 + j
        a.e(f'v_lshlrev_b32 v{d}, 16, v{8+j}')
        a.e(f'v_and_b32 v{d+1}, 0xffff0000, v{8+j}')
        a.e(f'v_pk_add_f32 v[{d}:{d+1}], v[{d}:{d+1}], s[{72+2*j}:{73+2*j}] op_sel:[0,0] op_sel_hi:[1,0] neg_lo:[0,1] neg_hi:[0,1]')
        a.e(f'v_cvt_pk_bf16_f32 v{t}, v{d}, v{d+1}')
        a.e(f'v_lshlrev_b32 v{d}, 16, v{t}')
        a.e(f'v_and_b32 v{d+1}, 0xffff0000, v{t}')
        a.e(f'v_pk_mul_f32 v[{d}:{d+1}], v[{d}:{d+1}], s[{72+2*j}:{73+2*j}] op_sel:[0,1] op_sel_hi:[1,1]')
        a.e(f'v_cvt_pk_bf16_f32 v{t}, v{d}, v{d+1}')
        a.e(f'v_lshlrev_b32 v{d}, 16, v{t}')
        a.e(f'v_and_b32 v{d+1}, 0xffff0000, v{t}')
    for i in range(4):
        a.e(f'v_cvt_pk_f16_f32 v{80+i}, v{64+4*i}, v{66+4*i}')
        a.e(f'v_cvt_pk_f16_f32 v{84+i}, v{65+4*i}, v{67+4*i}')
    if OPT['xnb']:
        a.e(f's_mul_i32 s66, s{S_W}, {56*16}')
        a.e(f's_mul_i32 s67, s{S_B}, 7168')
        a.e('s_add_u32 s66, s66, s67')
        a.e(f's_add_u32 s66, s66, {WS_XN}')
        a.e('v_lshl_add_u32 v4, v1, 4, s66')
        mask_lanes(a, 4, 56, 5)
        a.e('v_add_u32 v5, 3584, v4')
    else:
        a.e(f's_mul_i32 s66, s{S_W}, {56*XPS}')
        a.e(f's_lshl_b32 s67, s{S_B}, 4')
        a.e('s_add_u32 s66, s66, s67')
        a.e(f's_add_u32 s66, s66, {WS_XN}')
        a.e(f'v_mul_u32_u24 v4, {XPS}, v1')
        a.e('v_add_u32 v4, s66, v4')
        mask_lanes(a, 4, 56, 5)
        a.e(f'v_add_u32 v5, {XCS}, v4')
    a.e(f'buffer_store_dwordx4 v[80:83], v4, {WSR}, 0 offen sc1')
    a.e(f'buffer_store_dwordx4 v[84:87], v5, {WSR}, 0 offen sc1')


def publish_flag(a, vm=0):
    a.e(f's_waitcnt vmcnt({vm})')
    a.e('s_barrier')
    l = a.lab('noflag')
    a.e(f's_cmp_lg_u32 s{S_W}, 0')
    a.e(f's_cbranch_scc1 {l}')
    a.e(f's_lshl_b32 s66, s{S_B}, 6')
    a.e(f's_add_u32 s66, s66, {WS_FLAG}')
    a.e('v_mov_b32 v2, s66')
    a.e(f'v_mov_b32 v3, s{S_TAG}')
    a.e('s_mov_b64 exec, 1')
    a.e(f'buffer_store_dword v3, v2, {WSR}, 0 offen sc1')
    a.e('s_mov_b64 exec, -1')
    a.e(f'{l}:')


V_FA, V_FV = 233, 234


def flag_addr(a):
    a.e(f'v_lshlrev_b32 v{V_FA}, 6, v0')
    a.e(f'v_add_u32 v{V_FA}, {WS_FLAG}, v{V_FA}')


def flag_load(a):
    a.e(f'buffer_load_dword v{V_FV}, v{V_FA}, {WSR}, 0 offen sc1')


def flag_poll(a):
    lp, ld = a.lab('fpoll'), a.lab('fdone')
    a.e(f's_mov_b32 s{S_SPIN}, 0')
    a.e(f'{lp}:')
    flag_load(a)
    a.e('s_waitcnt vmcnt(0)')
    a.e(f'v_cmp_ne_u32 vcc, s{S_TAG}, v{V_FV}')
    a.e(f's_cbranch_vccz {ld}')
    spin_tail(a, lp)
    a.e(f'{ld}:')


def load_u(a):
    if OPT['xnb']:
        a.e(f's_lshl_b32 s66, s{S_P}, 4')
        a.e(f's_add_u32 s66, s66, {WS_XN}')
        a.e('v_mul_u32_u24 v2, 7168, v0')
        a.e('v_add_u32 v2, s66, v2')
        a.e('v_add_u32 v3, 3584, v2')
    else:
        a.e(f's_mul_i32 s66, s{S_P}, {XPS}')
        a.e(f's_add_u32 s66, s66, {WS_XN}')
        a.e('v_lshl_add_u32 v2, v0, 4, s66')
        a.e(f'v_add_u32 v3, {XCS}, v2')
    a.e(f'buffer_load_dwordx4 v[176:179], v2, {WSR}, 0 offen sc1')
    a.e(f'buffer_load_dwordx4 v[180:183], v3, {WSR}, 0 offen sc1')


def epoch_update(a):
    le = a.lab('noep')
    a.e('s_cmp_lg_u32 s2, 0')
    a.e(f's_cbranch_scc1 {le}')
    a.e(f'v_mov_b32 v2, {WS_EPOCH}')
    a.e(f'v_mov_b32 v3, s{S_TAG}')
    a.e('s_mov_b64 exec, 1')
    a.e(f'buffer_store_dword v3, v2, {WSR}, 0 offen sc1')
    a.e('s_mov_b64 exec, -1')
    a.e(f'{le}:')


def code_prefetch(a, lstart, lend_):
    lp = a.lab('pcp')
    a.e('s_getpc_b64 s[74:75]')
    a.e(f'{lp}:')
    a.e(f's_sub_u32 s74, s74, {lp}-{lstart}')
    a.e('s_subb_u32 s75, s75, 0')
    a.e('v_lshlrev_b32 v4, 6, v0')
    a.e(f's_mov_b32 s76, {lend_}-{lstart}-4')
    a.e('v_add_u32 v5, 16384, v4')
    a.e('v_min_u32 v4, s76, v4')
    a.e('v_min_u32 v5, s76, v5')
    a.e('global_load_dword v220, v4, s[74:75]')
    a.e('global_load_dword v220, v5, s[74:75]')


def kgen_loads(a):
    srd(a, S_T0, P_LAR, PBYTES)
    srd(a, S_T1, P_AI, PBYTES)
    srd(a, S_T2, P_CR, PBYTES)
    srd(a, S_T3, P_CI, PBYTES)
    a.e(f's_lshl_b32 s66, s{S_P}, 10')
    a.e(f's_lshl_b32 s67, s{S_W}, 7')
    a.e('s_add_u32 s66, s66, s67')
    a.e('v_lshl_add_u32 v2, v1, 1, s66')
    for c in range(2):
        for k, s in enumerate((S_T0, S_T1, S_T2, S_T3)):
            a.e(f'buffer_load_ushort v{40+4*c+k}, v2, s[{s}:{s+3}], 0 offen offset:{512*c}')
    a.e(f's_lshl_b32 s66, s{S_P}, 2')
    a.e(f's_load_dword s68, s[{P_LDT}:{P_LDT+1}], s66')
    a.e(f's_load_dword s69, s[{P_DSK}:{P_DSK+1}], s66')


def load_gather_table(a, tablabel):
    lp = a.lab('pc')
    a.e('s_getpc_b64 s[70:71]')
    a.e(f'{lp}:')
    a.e(f's_add_u32 s70, s70, {tablabel}-{lp}')
    a.e('s_addc_u32 s71, s71, 0')
    a.e('v_lshlrev_b32 v2, 5, v0')
    a.e('global_load_dwordx4 v[160:163], v2, s[70:71]')
    a.e('global_load_dwordx4 v[164:167], v2, s[70:71] offset:16')


DK0, DK1 = 16, 28


def kgen_channel(a, c, DACC, mid=None):
    LAR, AI, CR, CI = 40 + 4 * c, 41 + 4 * c, 42 + 4 * c, 43 + 4 * c
    SIG, DT = 52 + c, 54 + c
    AL, BE = 56, 57
    Z1, Z2, Z4, Z8, Z128, Z256, Z512, Z1024 = 58, 60, 62, 64, 66, 68, 70, 72
    X0, CA, CB, CC, T0, T1 = 74, 76, 78, 80, 82, 84
    CV = [86, 87, 88, 89]
    VW, VR = 90, 91
    t, t2 = 92, 93
    for r in (LAR, AI, CR, CI):
        a.e(f'v_lshlrev_b32 v{r}, 16, v{r}')
    a.e('s_lshl_b32 s66, s68, 16' if c == 0 else 's_and_b32 s66, s68, 0xffff0000')
    a.e(f'v_mov_b32 v{t2}, s66')
    exp_bf16(a, DT, t2, t)
    a.e(f'v_add_f32 v{SIG}, abs(v{CR}), abs(v{CI})')
    exp_bf16(a, AL, LAR, t)
    a.e(f'v_add_f32_dpp v{SIG}, v{SIG}, v{SIG} quad_perm:[1,0,3,2] row_mask:0xf bank_mask:0xf')
    a.e(f'v_mul_f32 v{AL}, v{AL}, v{DT}')
    a.e(f'v_mul_f32 v{BE}, v{AI}, v{DT}')
    a.e(f'v_add_f32_dpp v{SIG}, v{SIG}, v{SIG} quad_perm:[2,3,0,1] row_mask:0xf bank_mask:0xf')
    a.e(f'v_mul_f32 v{AL}, {fx(-1.4426950408889634)}, v{AL}')
    a.e(f'v_mul_f32 v{BE}, {fx(0.15915494309189535)}, v{BE}')
    a.e(f'v_add_f32_dpp v{SIG}, v{SIG}, v{SIG} row_half_mirror row_mask:0xf bank_mask:0xf')
    a.e(f'v_exp_f32 v{T0}, v{AL}')
    a.e(f'v_fract_f32 v{t}, v{BE}')
    a.e(f'v_add_f32_dpp v{SIG}, v{SIG}, v{SIG} row_ror:8 row_mask:0xf bank_mask:0xf')
    a.e(f'v_cos_f32 v{Z1}, v{t}')
    a.e(f'v_sin_f32 v{Z1+1}, v{t}')
    a.e(f'v_mov_b32 v{t2}, v{SIG}')
    a.e(f'v_mul_f32 v{T1}, 0x43000000, v{AL}')
    a.e(f'v_mul_f32 v{t}, 0x43000000, v{BE}')
    a.e(f'v_permlane16_swap_b32 v{SIG}, v{t2}')
    a.e(f'v_pk_mul_f32 v[{Z1}:{Z1+1}], v[{Z1}:{Z1+1}], v[{T0}:{T0+1}] op_sel:[0,0] op_sel_hi:[1,0]')
    a.e(f'v_add_f32 v{SIG}, v{SIG}, v{t2}')
    a.e(f'v_exp_f32 v{T1}, v{T1}')
    a.e(f'v_fract_f32 v{t}, v{t}')
    a.e(f'v_mov_b32 v{t2}, v{SIG}')
    a.e(f'v_cos_f32 v{Z128}, v{t}')
    a.e(f'v_sin_f32 v{Z128+1}, v{t}')
    a.e(f'v_permlane32_swap_b32 v{SIG}, v{t2}')
    cmul(a, Z2, Z1, Z1, Z2)
    a.e(f'v_add_f32 v{SIG}, v{SIG}, v{t2}')
    a.e(f'v_pk_mul_f32 v[{Z128}:{Z128+1}], v[{Z128}:{Z128+1}], v[{T1}:{T1+1}] op_sel:[0,0] op_sel_hi:[1,0]')
    a.e(f'v_add_f32 v{SIG}, {fx(1e-30)}, v{SIG}')
    cmul(a, Z4, Z2, Z2, Z4)
    a.e(f'v_rcp_f32 v{t}, v{SIG}')
    cmul(a, Z256, Z128, Z128, Z256)
    cmul(a, Z8, Z4, Z4, Z8)
    a.e(f'v_mul_f32 v{X0}, v{CR}, v{t}')
    a.e(f'v_mul_f32 v{X0+1}, v{CI}, v{t}')
    cmul(a, Z512, Z256, Z256, Z512)
    a.e(f's_mul_i32 s66, s{S_W}, {SCRW}')
    a.e(f's_add_u32 s66, s66, {L_SCR}')
    a.e('s_mov_b32 m0, s66')
    cmul(a, Z1024, Z512, Z512, Z1024)
    a.e(f'v_and_b32 v{t}, 15, v1')
    a.e(f'v_mul_u32_u24 v{t}, {SROW}, v{t}')
    a.e(f'v_lshrrev_b32 v{t2}, 4, v1')
    a.e(f'v_lshl_add_u32 v{t}, v{t2}, 4, v{t}')
    a.e(f'v_add_u32 v{VR}, s66, v{t}')
    cvi = [0]
    pend = []

    def flush(keep):
        while len(pend) > keep:
            cv, off = pend.pop(0)
            a.e(f'ds_write_addtid_b32 v{cv} offset:{off}')

    def put(off, r, neg):
        cv = CV[cvi[0] % 4]
        cvi[0] += 1
        a.e(f'v_cvt_pk_f16_f32 v{cv}, v{r}, {"-" if neg else ""}v{r+1}')
        flush(1)
        pend.append((cv, off))

    def putX(row, r):
        put(row * SROW, r, True)

    def putY(b, r):
        put((YROW + b) * SROW, r, False)

    a.e(f'v_mov_b32 v{VW}, 0x00003c00')
    pend.append((VW, YROW * SROW))
    putY(1, Z8)
    ychain = {'cur': Z8, 'b': 1}
    YA, YB = CC, 94

    def ystep():
        if ychain['b'] >= 15:
            return
        d = YA if ychain['cur'] != YA else YB
        cmul(a, d, ychain['cur'], Z8, d)
        ychain['b'] += 1
        ychain['cur'] = d
        putY(ychain['b'], d)

    putX(0, X0)
    cmul(a, T0, X0, Z128, T0)
    putX(8, T0)
    cur = X0
    for j in range(1, 8):
        d = CA if cur != CA else CB
        cmul(a, d, cur, Z1, d)
        ystep()
        putX(j, d)
        cmul(a, T0, d, Z128, T0)
        putX(8 + j, T0)
        cur = d
    cmul(a, CA, X0, Z256, CA)
    ystep()
    putX(16, CA)
    cmul(a, T0, CA, Z128, T0)
    putX(20, T0)
    cur = CA
    for j in range(1, 4):
        d = CA if cur != CA else CB
        cmul(a, d, cur, Z2, d)
        ystep()
        putX(16 + j, d)
        cmul(a, T0, d, Z128, T0)
        putX(20 + j, T0)
        cur = d
    if mid is not None:
        flush(0)
        mid()
        a.e(f's_mul_i32 s66, s{S_W}, {SCRW}')
        a.e(f's_add_u32 s66, s66, {L_SCR}')
        a.e('s_mov_b32 m0, s66')
    cmul(a, CA, X0, Z512, CA)
    ystep()
    putX(24, CA)
    cmul(a, CB, CA, Z4, CB)
    ystep()
    putX(25, CB)
    pa, pb = CA, CB
    na, nb = T0, T1
    for q in range(1, 4):
        cmul(a, na, pa, Z128, na)
        cmul(a, nb, pb, Z128, nb)
        ystep()
        putX(24 + 2 * q, na)
        putX(25 + 2 * q, nb)
        pa, pb, na, nb = na, nb, pa, pb
    cmul(a, CA, X0, Z1024, CA)
    putX(32, CA)
    cur = CA
    for q in range(1, 9):
        d = CA if cur != CA else CB
        cmul(a, d, cur, Z128, d)
        putX(32 + q, d)
        cur = d
    while ychain['b'] < 15:
        ystep()
    flush(0)
    FA = 96
    for k in range(4):
        a.e(f'ds_read_b128 v[{144+4*k}:{147+4*k}], v{VR} offset:{YROW*SROW+64*k}')
        for T in range(3):
            r = FA + 16 * T + 4 * k
            a.e(f'ds_read_b128 v[{r}:{r+3}], v{VR} offset:{16*T*SROW+64*k}')
    for k in range(4):
        a.e(f's_waitcnt lgkmcnt({4*(3-k)})')
        for T in range(3):
            r = FA + 16 * T + 4 * k
            cc = '0' if k == 0 else f'v[{DACC+4*T}:{DACC+4*T+3}]'
            a.e(f'v_mfma_f32_16x16x32_f16 v[{DACC+4*T}:{DACC+4*T+3}], v[{r}:{r+3}], v[{144+4*k}:{147+4*k}], {cc}')


def ktab_part1(a):
    a.e(f's_mul_i32 s66, s{S_W}, {SCRW}')
    a.e(f's_add_u32 s66, s66, {L_SCR}')
    a.e('v_lshl_add_u32 v90, v1, 4, s66')
    a.e(f's_lshl_b32 s67, s{S_W}, 2')
    a.e(f's_add_u32 s67, s67, {L_SIG}')
    a.e('v_mov_b32 v91, s67')
    a.e('s_mov_b64 exec, 1')
    a.e('ds_write_b32 v91, v52')
    a.e('ds_write_b32 v91, v53 offset:16')
    a.e('s_mov_b64 exec, -1')
    for c, DK in ((0, DK0), (1, DK1)):
        for T in range(3):
            for h in range(2):
                i = DK + 4 * T + 2 * h
                a.e(f'v_pk_mul_f32 v[{i}:{i+1}], v[{i}:{i+1}], v[52:53] op_sel:[0,{c}] op_sel_hi:[1,{c}]')
            a.e(f'ds_write_b128 v90, v[{DK+4*T}:{DK+4*T+3}] offset:{c*3072+T*1024}')
    a.e('v_mov_b32 v96, 0')
    a.e('v_mov_b32 v97, 0')
    a.e('v_mov_b32 v98, 0')
    a.e('v_mov_b32 v99, 0')
    a.e(f'v_mov_b32 v92, {L_KT + 1536}')
    a.e('ds_write_b32 v92, v96')
    a.e(f'ds_write_b32 v92, v96 offset:{KTCH}')
    a.e('v_lshlrev_b32 v92, 3, v1')
    a.e(f'ds_write_b64 v92, v[96:97] offset:{L_U}')
    a.e(f'ds_write_b64 v92, v[96:97] offset:{L_U + UCH}')
    a.e('s_waitcnt lgkmcnt(0)')
    a.e('s_barrier')


def ktab_part2(a):
    a.e(f'v_mov_b32 v91, {L_SIG}')
    a.e('ds_read_b128 v[44:47], v91')
    a.e('ds_read_b128 v[48:51], v91 offset:16')
    a.e(f's_and_b32 s67, s{S_W}, 1')
    a.e(f's_lshr_b32 s70, s{S_W}, 1')
    a.e('s_mul_i32 s71, s67, 3072')
    a.e('s_lshl_b32 s72, s70, 10')
    a.e('s_add_u32 s72, s72, s71')
    a.e(f's_add_u32 s72, s72, {L_SCR}')
    a.e(f's_add_u32 s71, s71, {L_SCR + 2048}')
    a.e('v_lshl_add_u32 v90, v1, 4, s72')
    a.e('v_lshl_add_u32 v91, v1, 4, s71')
    for wv in range(4):
        a.e(f'ds_read_b128 v[{96+4*wv}:{99+4*wv}], v90 offset:{wv*SCRW}')
    for wv in range(4):
        a.e(f'ds_read_b128 v[{112+4*wv}:{115+4*wv}], v91 offset:{wv*SCRW}')
    a.e('v_mov_b32 v128, 0')
    a.e('v_mov_b32 v129, 0')
    a.e('v_mov_b32 v130, 0')
    a.e('v_mov_b32 v131, 0')
    a.e('v_and_b32 v132, 15, v1')
    a.e(f'v_mul_u32_u24 v132, {KCOPY}, v132')
    a.e(f'v_add_u32 v132, {L_KC}, v132')
    a.e('ds_write_b128 v132, v[128:131] offset:4096')
    a.e('v_lshrrev_b32 v92, 4, v1')
    a.e('v_lshlrev_b32 v92, 7, v92')
    a.e('v_and_b32 v93, 15, v1')
    a.e('v_lshl_add_u32 v92, v93, 1, v92')
    a.e(f's_mul_i32 s71, s67, {KTCH}')
    a.e(f's_add_u32 s71, s71, {L_KT}')
    a.e('v_add_u32 v93, s71, v92')
    a.e('s_lshl_b32 s72, s70, 9')
    a.e('v_add_u32 v92, s72, v93')
    a.e('s_waitcnt lgkmcnt(9)')
    a.e('v_pk_add_f32 v[44:45], v[44:45], v[46:47]')
    a.e('v_pk_add_f32 v[48:49], v[48:49], v[50:51]')
    a.e('v_add_f32 v44, v44, v45')
    a.e('v_add_f32 v45, v48, v49')
    a.e('s_cmp_eq_u32 s67, 0')
    a.e('s_cselect_b64 vcc, -1, 0')
    a.e('v_pk_mul_f32 v[54:55], v[54:55], v[44:45]')
    a.e('v_cndmask_b32 v46, v45, v44, vcc')
    a.e('v_pk_add_f32 v[54:55], v[54:55], v[54:55]')
    a.e('v_rcp_f32 v46, v46')
    for jb, (base, va, off) in enumerate(((96, 92, 0), (112, 93, 1024))):
        a.e(f's_waitcnt lgkmcnt({5 if jb == 0 else 5})')
        for h in range(2):
            a.e(f'v_pk_add_f32 v[{base+2*h}:{base+2*h+1}], v[{base+2*h}:{base+2*h+1}], v[{base+4+2*h}:{base+5+2*h}]')
            a.e(f'v_pk_add_f32 v[{base+8+2*h}:{base+9+2*h}], v[{base+8+2*h}:{base+9+2*h}], v[{base+12+2*h}:{base+13+2*h}]')
        for h in range(2):
            a.e(f'v_pk_add_f32 v[{base+2*h}:{base+2*h+1}], v[{base+2*h}:{base+2*h+1}], v[{base+8+2*h}:{base+9+2*h}]')
        for h in range(2):
            a.e(f'v_pk_mul_f32 v[{base+2*h}:{base+2*h+1}], v[{base+2*h}:{base+2*h+1}], v[46:47] op_sel:[0,0] op_sel_hi:[1,0]')
        a.e(f'v_cvt_pk_f16_f32 v{base+4}, v{base}, v{base+1}')
        a.e(f'v_cvt_pk_f16_f32 v{base+5}, v{base+2}, v{base+3}')
        a.e(f'ds_write_b16 v{va}, v{base+4} offset:{off}')
        a.e(f'ds_write_b16_d16_hi v{va}, v{base+4} offset:{off+32}')
        a.e(f'ds_write_b16 v{va}, v{base+5} offset:{off+64}')
        a.e(f'ds_write_b16_d16_hi v{va}, v{base+5} offset:{off+96}')
    for e in range(15):
        src = 160 + e // 2
        if e % 2 == 0:
            a.e(f'v_and_b32 v{136+e}, 0xffff, v{src}')
        else:
            a.e(f'v_lshrrev_b32 v{136+e}, 16, v{src}')
    a.e('s_waitcnt lgkmcnt(0)')
    a.e('s_barrier')


def kcopies(a):
    AD = 136
    a.e('v_lshlrev_b32 v111, 4, v0')
    a.e(f'v_add_u32 v111, {L_KC}, v111')
    RR = [96, 112]
    for c in range(2):
        for e in range(15):
            a.e(f'ds_read_u16 v{RR[c]+e}, v{AD+e} offset:{L_KT + c*KTCH}')
    for c in range(2):
        R = RR[c]
        Da, Db, Oa, Ob = 56 + 0, 64, 72, 80
        if c == 1:
            Da, Db, Oa, Ob = 16, 24, 32, 40
        a.e(f's_waitcnt lgkmcnt({15 if c == 0 else 8})')
        for i in range(6):
            a.e(f'v_lshl_or_b32 v{Da+i}, v{R+2*i+1}, 16, v{R+2*i}')
            a.e(f'v_lshl_or_b32 v{Oa+i}, v{R+2*i+2}, 16, v{R+2*i+1}')
        if c == 1:
            a.e(f'v_add_u32 v110, {KCH}, v111')
        va = 111 if c == 0 else 110
        for s, r in ((0, Da), (1, Oa), (4, Da + 2), (5, Oa + 2)):
            a.e(f'ds_write_b128 v{va}, v[{r}:{r+3}] offset:{s*KCOPY}')
        for i in range(6):
            a.e(f'v_lshl_or_b32 v{Db+i}, v{R+2*i+3}, 16, v{R+2*i+2}')
            a.e(f'v_lshl_or_b32 v{Ob+i}, v{R+2*i+4}, 16, v{R+2*i+3}')
        for s, r in ((2, Db), (3, Ob), (6, Db + 2), (7, Ob + 2)):
            a.e(f'ds_write_b128 v{va}, v[{r}:{r+3}] offset:{s*KCOPY}')


def store_u(a, vm):
    a.e('v_lshlrev_b32 v2, 4, v0')
    a.e(f's_waitcnt vmcnt({vm})')
    a.e(f'ds_write_b128 v2, v[176:179] offset:{L_U + 512}')
    a.e(f'ds_write_b128 v2, v[180:183] offset:{L_U + UCH + 512}')
    a.e('s_waitcnt lgkmcnt(0)')
    a.e('s_barrier')


def phase_conv(a, hooks, pre_vm):
    hooks = list(hooks)
    ACC = 16
    FA = [[64 + 64 * s + 4 * i for i in range(8)] for s in range(2)]
    FB = [[96 + 64 * s + 4 * i for i in range(8)] for s in range(2)]
    VA, VB = 48, 49

    def loads(qq, s):
        out = []
        for i in range(8):
            out.append(f'ds_read_b128 v[{FB[s][i]}:{FB[s][i]+3}], v{VB} offset:{512*i + 64*(3-qq)}')
            out.append(f'ds_read_b128 v[{FA[s][i]}:{FA[s][i]+3}], v{VA} offset:{512*(7-i) + 64*(3-qq)}')
        return out

    for x in loads(0, 0):
        a.e(x)
    for qq in range(4):
        s = qq & 1
        nxt = loads(qq + 1, 1 - s) if qq < 3 else []
        n = 0
        for w in range(8):
            for c in range(w, 8):
                if n == 0:
                    a.e('s_waitcnt lgkmcnt(0)')
                cc = '0' if (qq == 0 and w == 0) else f'v[{ACC+4*c}:{ACC+4*c+3}]'
                a.e(f'v_mfma_f32_16x16x32_f16 v[{ACC+4*c}:{ACC+4*c+3}], v[{FA[s][w]}:{FA[s][w]+3}], v[{FB[s][c-w]}:{FB[s][c-w]+3}], {cc}')
                if nxt and n % 2 == 1:
                    a.e(nxt.pop(0))
                if hooks and n % 4 == 2:
                    hooks.pop(0)()
                n += 1
        assert not nxt
    assert not hooks
    stamp(a, 11)
    CP, TS = L_CP, 1280
    a.e('v_and_b32 v2, 15, v1')
    a.e('v_lshlrev_b32 v2, 4, v2')
    a.e('v_lshrrev_b32 v3, 4, v1')
    a.e('v_mul_u32_u24 v3, 320, v3')
    a.e('v_add_u32 v2, v2, v3')
    a.e(f's_mul_i32 s70, s{S_W}, {8*TS}')
    a.e(f's_add_u32 s70, s70, {CP}')
    a.e('v_add_u32 v2, s70, v2')
    a.e('s_barrier')
    for c in range(8):
        a.e(f'ds_write_b128 v2, v[{ACC+4*c}:{ACC+4*c+3}] offset:{c*TS}')
    a.e('v_lshrrev_b32 v2, 2, v1')
    a.e('v_lshlrev_b32 v2, 4, v2')
    a.e('v_and_b32 v3, 3, v1')
    a.e('v_mul_u32_u24 v3, 320, v3')
    a.e('v_add_u32 v2, v2, v3')
    a.e(f's_lshl_b32 s70, s{S_W}, 1')
    a.e(f's_mul_i32 s71, s70, {TS}')
    a.e(f's_add_u32 s71, s71, {CP}')
    a.e('v_add_u32 v2, s71, v2')
    a.e('s_lshl_b32 s71, s70, 9')
    a.e(f's_add_u32 s71, s71, {L_U + 512}')
    a.e('v_lshl_add_u32 v3, v1, 3, s71')
    a.e(f's_mul_i32 s71, s{S_P}, {AST}')
    a.e('s_lshl_b32 s72, s70, 10')
    a.e('s_add_u32 s71, s71, s72')
    a.e(f's_add_u32 s71, s71, {WS_AOUT}')
    a.e('v_lshl_add_u32 v4, v1, 4, s71')
    a.e('s_lshl_b32 s72, s69, 16')
    a.e('s_and_b32 s73, s69, 0xffff0000')
    a.e('v_mov_b32 v56, s72')
    a.e('v_mov_b32 v57, s73')
    a.e(f's_waitcnt lgkmcnt(0) vmcnt({pre_vm})')
    a.e('s_barrier')
    for q in range(2):
        P = 64 + 32 * q
        for ch in range(2):
            for hf in range(2):
                r = P + 8 * ch + 4 * hf
                a.e(f'ds_read_b128 v[{r}:{r+3}], v2 offset:{(2*ch+hf)*8*TS + q*TS}')
        for ch in range(2):
            a.e(f'ds_read_b64 v[{P+16+2*ch}:{P+17+2*ch}], v3 offset:{ch*UCH + q*512}')
    for q in range(2):
        P = 64 + 32 * q
        a.e(f's_waitcnt lgkmcnt({6 if q == 0 else 0})')
        for ch in range(2):
            y = P + 8 * ch
            T = 128 + 16 * ch
            u = P + 16 + 2 * ch
            for h in range(2):
                a.e(f'v_pk_add_f32 v[{y+2*h}:{y+2*h+1}], v[{y+2*h}:{y+2*h+1}], v[{y+4+2*h}:{y+5+2*h}]')
            for i in range(4):
                a.e(f'v_fma_mix_f32 v{T+i}, v{u+i//2}, v{56+ch}, 0 op_sel:[{i%2},0,0] op_sel_hi:[1,0,0]')
            for h in range(2):
                a.e(f'v_pk_mul_f32 v[{y+2*h}:{y+2*h+1}], v[{y+2*h}:{y+2*h+1}], v[54:55] op_sel:[0,{ch}] op_sel_hi:[1,{ch}]')
            for h in range(2):
                a.e(f'v_cvt_pk_bf16_f32 v{T+6+h}, v{T+2*h}, v{T+2*h+1}')
                a.e(f'v_cvt_pk_bf16_f32 v{T+4+h}, v{y+2*h}, v{y+2*h+1}')
            for h in range(2):
                a.e(f'v_lshlrev_b32 v{T+2*h}, 16, v{T+6+h}')
                a.e(f'v_and_b32 v{T+2*h+1}, 0xffff0000, v{T+6+h}')
                a.e(f'v_lshlrev_b32 v{y+2*h}, 16, v{T+4+h}')
                a.e(f'v_and_b32 v{y+2*h+1}, 0xffff0000, v{T+4+h}')
            for h in range(2):
                a.e(f'v_pk_add_f32 v[{y+2*h}:{y+2*h+1}], v[{y+2*h}:{y+2*h+1}], v[{T+2*h}:{T+2*h+1}]')
        O = 160 + 4 * q
        for i in range(4):
            a.e(f'v_cvt_pk_bf16_f32 v{O+i}, v{P+i}, v{P+8+i}')
        a.e(f'buffer_store_dwordx4 v[{O}:{O+3}], v4, {WSR}, 0 offen offset:{q*1024} sc1')


def conv_addr(a):
    a.e(f's_lshr_b32 s66, s{S_W}, 1')
    a.e(f's_and_b32 s67, s{S_W}, 1')
    a.e('v_and_b32 v2, 7, v1')
    a.e('v_sub_u32 v2, 7, v2')
    a.e(f'v_mul_u32_u24 v2, {KCOPY}, v2')
    a.e('v_lshrrev_b32 v3, 4, v1')
    a.e('v_bfe_u32 v4, v1, 3, 1')
    a.e('v_sub_u32 v4, v3, v4')
    a.e('v_lshl_add_u32 v2, v4, 4, v2')
    a.e(f's_mul_i32 s70, s66, {KCH}')
    a.e('s_lshl_b32 s71, s67, 8')
    a.e('s_sub_u32 s70, s70, s71')
    a.e(f's_add_u32 s70, s70, {L_KC + 16*253 - 512*7 - 64*3}')
    a.e('v_add_u32 v48, s70, v2')
    a.e('v_and_b32 v2, 15, v1')
    a.e('v_lshlrev_b32 v2, 5, v2')
    a.e('v_lshl_add_u32 v2, v3, 4, v2')
    a.e(f's_mul_i32 s70, s66, {UCH}')
    a.e('s_sub_u32 s70, s70, s71')
    a.e(f's_add_u32 s70, s70, {L_U + 480 - 64*3}')
    a.e('v_add_u32 v49, s70, v2')


def phase_p4(a):
    X = list(range(8, 16))
    A = 32
    xrow_addr(a)
    a.e(f's_mul_i32 s66, s{S_W}, {56*AST}')
    a.e(f's_lshl_b32 s67, s{S_B}, 5')
    a.e('s_add_u32 s66, s66, s67')
    a.e(f's_add_u32 s66, s66, {WS_AOUT}')
    a.e(f'v_mul_u32_u24 v4, {AST}, v1')
    a.e('v_add_u32 v4, s66, v4')
    a.e(f'v_mov_b32 v5, {OOB}')
    a.e('v_cndmask_b32 v4, v5, v4, vcc')
    a.e(f's_mul_i32 s66, s{S_W}, 224')
    a.e(f's_add_u32 s66, s66, {L_HT}')
    a.e('v_lshl_add_u32 v6, v1, 2, s66')
    for j in range(8):
        a.e(f'v_lshlrev_b32 v{64+2*j}, 16, v{X[j]}')
        a.e(f'v_and_b32 v{65+2*j}, 0xffff0000, v{X[j]}')
    lp, ld = a.lab('h2poll'), a.lab('h2done')
    a.e(f's_mov_b32 s{S_SPIN}, 0')
    a.e(f'{lp}:')
    a.e(f'buffer_load_dwordx4 v[{A}:{A+3}], v4, {WSR}, 0 offen sc1')
    a.e(f'buffer_load_dwordx4 v[{A+4}:{A+7}], v4, {WSR}, 0 offen offset:16 sc1')
    a.e('s_waitcnt vmcnt(0)')
    a.e(f'v_max3_u32 v40, v{A}, v{A+1}, v{A+2}')
    a.e(f'v_max3_u32 v41, v{A+3}, v{A+4}, v{A+5}')
    a.e(f'v_max3_u32 v40, v40, v{A+6}, v{A+7}')
    a.e('v_max_u32 v40, v40, v41')
    a.e('v_cmp_eq_u32 vcc, -1, v40')
    a.e(f's_cbranch_vccz {ld}')
    spin_tail(a, lp)
    a.e(f'{ld}:')
    stamp(a, 14)
    H = list(range(48, 56))
    for j in range(8):
        t = 40 + 2 * (j % 4)
        a.e(f'v_lshlrev_b32 v{t}, 16, v{A+j}')
        a.e(f'v_and_b32 v{t+1}, 0xffff0000, v{A+j}')
        a.e(f'v_pk_add_f32 v[{t}:{t+1}], v[{t}:{t+1}], v[{64+2*j}:{65+2*j}]')
        a.e(f'v_cvt_pk_bf16_f32 v{H[j]}, v{t}, v{t+1}')
    a.e('s_mov_b32 exec_hi, 0x00ffffff')
    for j in range(8):
        a.e(f'ds_write_b32 v6, v{H[j]} offset:{j*896}')
    a.e('s_mov_b32 exec_hi, -1')

    def hstore():
        a.e('v_lshlrev_b32 v7, 4, v0')
        a.e(f'ds_read_b128 v[56:59], v7 offset:{L_HT}')
        a.e(f'ds_read_b128 v[60:63], v7 offset:{L_HT + 4096}')
        return 2

    ln_stats(a, H, 16, L_RED0, 5, mid=hstore)
    a.e(f's_mul_i32 s66, s{S_B}, 7168')
    a.e(f's_add_u32 s66, s66, {WS_H}')
    a.e('v_add_u32 v6, s66, v7')
    a.e('v_add_u32 v7, 4096, v6')
    mask_lanes(a, 7, 192, 4, 'v0')
    a.e('s_waitcnt lgkmcnt(0)')
    a.e(f'buffer_store_dwordx4 v[56:59], v6, {WSR}, 0 offen sc1')
    a.e(f'buffer_store_dwordx4 v[60:63], v7, {WSR}, 0 offen sc1')
    bcast_stats(a, 16)
    a.e('s_mov_b32 exec_hi, 0x00ffffff')
    for j in range(8):
        t = 40 + 2 * (j % 4)
        norm_tok(a, j, H[j], t)
        a.e(f'v_cvt_pk_bf16_f32 v{H[j]}, v{t}, v{t+1}')
    a.e('s_mov_b32 exec_hi, -1')
    ln_stats(a, H, 16, L_RED1, 5)
    bcast_stats(a, 16)
    a.e(f's_mul_i32 s66, s{S_B}, 7168')
    a.e(f's_mul_i32 s67, s{S_W}, 1792')
    a.e('s_add_u32 s66, s66, s67')
    a.e(f's_add_u32 s66, s66, {WS_HH}')
    a.e('v_lshl_add_u32 v4, v1, 4, s66')
    a.e('v_add_u32 v5, 448, v4')
    a.e('v_cmp_gt_u32 vcc, 28, v1')
    a.e('v_cndmask_b32 v4, v5, v4, vcc')
    mask_lanes(a, 4, 56, 5)
    for j in range(8):
        norm_tok(a, j, H[j], 64 + 2 * j)
    O0, O1 = 80, 84
    for i in range(4):
        a.e(f'v_cvt_pk_bf16_f32 v{O0+i}, v{64+4*i}, v{66+4*i}')
        a.e(f'v_cvt_pk_bf16_f32 v{O1+i}, v{65+4*i}, v{67+4*i}')
    a.e('s_waitcnt vmcnt(0)')
    a.e('s_barrier')
    a.e(f'buffer_store_dwordx4 v[{O0}:{O0+3}], v4, {WSR}, 0 offen sc1')
    a.e(f'buffer_store_dwordx4 v[{O1}:{O1+3}], v4, {WSR}, 0 offen offset:448 sc1')


def w_setup(a):
    srd(a, S_W1, P_W1, W1BYTES)
    srd(a, S_W2, P_W2, W2BYTES)
    a.e('v_lshrrev_b32 v4, 3, v1')
    a.e('v_bfe_u32 v5, v1, 4, 1')
    a.e('v_lshlrev_b32 v5, 1, v5')
    a.e('v_and_b32 v6, 7, v1')
    a.e('v_xor_b32 v6, v6, v5')
    a.e('v_xor_b32 v7, 4, v6')
    for vd, rowbytes, tile, rows in ((V_D1, F * 2, S_I1, 512), (V_D2, L * 2, S_I2, 448)):
        a.e(f's_mov_b32 s66, {rowbytes}')
        a.e('v_mul_lo_u32 v5, v4, s66')
        a.e(f's_mul_i32 s67, s{S_W}, {rows*rowbytes}')
        a.e(f's_lshl_b32 s66, s{tile}, 7')
        a.e('s_add_u32 s67, s67, s66')
        a.e('v_add_u32 v5, s67, v5')
        for i in range(4):
            a.e(f'v_lshl_add_u32 v{vd+i}, v{6 + (i & 1)}, 4, v5')
            if i:
                a.e(f'v_add_u32 v{vd+i}, {i*(8*rowbytes - 1024)}, v{vd+i}')
    a.e('v_lshlrev_b32 v5, 12, v4')
    a.e('v_and_b32 v6, 7, v1')
    a.e(f'v_lshl_add_u32 v{V_QPF}, v6, 4, v5')
    a.e(f's_and_b32 s66, s{S_LOC}, 3')
    a.e('s_mul_i32 s66, s66, 448')
    a.e(f's_mul_i32 s67, s{S_W}, 112')
    a.e('s_add_u32 s66, s66, s67')
    a.e('s_lshl_b32 s66, s66, 12')
    a.e(f's_lshl_b32 s67, s{S_I2}, 7')
    a.e(f's_add_u32 s{S_QPF}, s66, s67')
    a.e('v_lshrrev_b32 v4, 4, v1')
    a.e('v_bfe_u32 v5, v1, 2, 2')
    a.e('v_lshl_add_u32 v5, v4, 3, v5')
    a.e('v_lshlrev_b32 v5, 7, v5')
    a.e('v_and_b32 v6, 1, v1')
    a.e('v_lshl_add_u32 v5, v6, 3, v5')
    a.e('v_bfe_u32 v6, v1, 1, 1')
    a.e('v_lshl_add_u32 v5, v6, 4, v5')
    a.e('v_bfe_u32 v6, v1, 3, 1')
    a.e('v_and_b32 v4, 1, v4')
    a.e('v_lshl_add_u32 v6, v4, 1, v6')
    a.e(f's_and_b32 s66, s{S_LOC}, 3')
    a.e(f's_lshr_b32 s67, s{S_LOC}, 2')
    a.e('s_lshl_b32 s67, s67, 1')
    a.e('s_lshl_b32 s70, s66, 2')
    a.e('s_add_u32 s70, s70, s67')
    a.e('s_and_b32 s70, s70, 15')
    a.e(f's_mul_i32 s{S_RW1}, s70, {32*F*2}')
    a.e(f's_mul_i32 s{S_RX1}, s70, {4*7168}')
    a.e('s_mul_i32 s66, s66, 7')
    a.e('s_lshr_b32 s66, s66, 1')
    a.e('s_add_u32 s66, s66, s67')
    for _ in range(2):
        a.e('s_cmp_ge_u32 s66, 14')
        a.e('s_cselect_b32 s67, 14, 0')
        a.e('s_sub_u32 s66, s66, s67')
    a.e(f's_mul_i32 s{S_RW2}, s66, {32*L*2}')
    a.e(f's_mul_i32 s{S_RX2}, s66, {4*7168}')
    a.e(f's_lshl_b32 s{S_SA}, s{S_W}, 14')
    a.e(f's_add_u32 s{S_SA}, s{S_SA}, {L_WA}')
    a.e(f's_mul_i32 s{S_SB}, s{S_W}, 20480')
    a.e(f's_add_u32 s{S_SB}, s{S_SB}, {L_WB}')
    for mu in range(4):
        a.e(f'v_xor_b32 v4, {mu}, v6')
        a.e('v_lshl_add_u32 v4, v4, 5, v5')
        a.e(f'v_add_u32 v{V_TA+mu}, s{S_SA}, v4')
        a.e(f'v_add_u32 v{V_TB+mu}, s{S_SB}, v4')


def rot_off(a, idx, sreg, n, unit):
    a.e(f's_add_u32 s70, s{sreg}, {idx*unit}')
    a.e(f's_cmp_ge_u32 s70, {n*unit}')
    a.e(f's_cselect_b32 s71, {n*unit}, 0')
    a.e('s_sub_u32 s70, s70, s71')


def slot(name):
    return (S_SA, V_TA, int(name[1])) if name[0] == 'A' else (S_SB, V_TB, int(name[1]))


def w_dma1(a, mat, slab, sl, i):
    sb, _, si = slot(sl)
    vd, srd_, rowbytes = (V_D1, S_W1, F * 2) if mat == 1 else (V_D2, S_W2, L * 2)
    if i == 0:
        rot_off(a, slab, S_RW1 if mat == 1 else S_RW2, 16 if mat == 1 else 14, 32 * rowbytes)
        a.e(f's_add_u32 m0, s{sb}, {si*4096}')
    a.e(f'buffer_load_dwordx4 v{vd + i}, s[{srd_}:{srd_+3}], s70 offen offset:{1024*i} lds')


def w_dma(a, mat, slab, sl):
    for i in range(4):
        w_dma1(a, mat, slab, sl, i)


def w_tr(a, slab, sl):
    _, vt, si = slot(sl)
    for mu in range(4):
        r = (slab * 4 + mu) * 4
        a.e(f'ds_read_b64_tr_b16 a[{r}:{r+1}], v{vt+mu} offset:{si*4096}')
        a.e(f'ds_read_b64_tr_b16 a[{r+2}:{r+3}], v{vt+mu} offset:{si*4096 + 512}')


def qpf_load(a, n):
    for _ in range(n):
        a.e(f'buffer_load_dwordx4 v[220:223], v{V_QPF}, s[{S_W2}:{S_W2+3}], s{S_QPF} offen')
        a.e(f's_add_u32 s{S_QPF}, s{S_QPF}, {8*L*2}')


ACC = 16
XS = 80
NS = 6
VMAX = 214
V_X0, V_X3 = 208, 209


def gemm_xaddr(a, ws_off, kblocks):
    a.e(f's_mul_i32 s66, s{S_W}, {kblocks*7168}')
    a.e(f's_mul_i32 s67, s{S_J}, 896')
    a.e('s_add_u32 s66, s66, s67')
    a.e(f's_add_u32 s66, s66, {ws_off}')
    a.e('v_lshrrev_b32 v4, 4, v1')
    a.e('v_mul_u32_u24 v4, 7168, v4')
    a.e('v_add_u32 v4, s66, v4')
    a.e('v_and_b32 v5, 15, v1')
    a.e(f'v_lshl_add_u32 v{V_X0}, v5, 4, v4')
    if OPT['x3oob']:
        a.e(f'v_add_u32 v{V_X3}, 768, v{V_X0}')
        a.e(f'v_mov_b32 v4, {OOB}')
        a.e('v_cmp_gt_u32 vcc, 8, v5')
        a.e(f'v_cndmask_b32 v{V_X3}, v4, v{V_X3}, vcc')
    else:
        a.e('v_and_b32 v5, 7, v1')
        a.e('v_lshl_add_u32 v4, v5, 4, v4')
        a.e(f'v_add_u32 v{V_X3}, 768, v4')


def gemm_xloads(a, kappa, gid):
    st = XS + 16 * (kappa % NS)
    out = []
    sreg, n = (S_RX1, 16) if gid == 1 else (S_RX2, 14)
    unit = 4 * 7168
    out.append(f's_add_u32 s70, s{sreg}, {kappa*unit}')
    out.append(f's_cmp_ge_u32 s70, {n*unit}')
    out.append(f's_cselect_b32 s71, {n*unit}, 0')
    out.append('s_sub_u32 s70, s70, s71')
    for nu in range(3):
        out.append(f'buffer_load_dwordx4 v[{st+4*nu}:{st+4*nu+3}], v{V_X0}, {WSR}, s70 offen offset:{256*nu} sc1')
    out.append(f'buffer_load_dwordx4 v[{st+12}:{st+15}], v{V_X3}, {WSR}, s70 offen sc1')
    return out


def gemm_main(a, nk, gid, tail_hook=None):
    nfl = OPT['nfl']
    w_is_a = gid == 1
    a.e(f'v_mov_b32 v{VMAX}, 0')
    extra = 0
    for k in range(nk):
        st = XS + 16 * (k % NS)
        rem = min(nfl - 1, nk - 1 - k)
        a.e(f's_waitcnt vmcnt({4*rem + extra})')
        if OPT['stamps'] and k in (0, 4, 8, 12):
            stamp(a, (44 if w_is_a else 51) + (0, 4, 8, 12).index(k))
        fill = gemm_xloads(a, k + nfl, gid) if k + nfl < nk else []
        if k + nfl == nk and tail_hook is not None:
            fill = []
            extra = tail_hook(fill)
        mx = [f'v_max3_u32 v{VMAX}, v{VMAX}, v{st+2*i}, v{st+2*i+1}' for i in range(8)]
        n = 0
        for mu in range(4):
            for nu in range(4):
                w = (k * 4 + mu) * 4
                x = st + 4 * nu
                if w_is_a:
                    acc = ACC + (mu * 4 + nu) * 4
                    A, B = f'a[{w}:{w+3}]', f'v[{x}:{x+3}]'
                else:
                    acc = ACC + (nu * 4 + mu) * 4
                    A, B = f'v[{x}:{x+3}]', f'a[{w}:{w+3}]'
                cc = '0' if k == 0 else f'v[{acc}:{acc+3}]'
                a.e(f'v_mfma_f32_16x16x32_bf16 v[{acc}:{acc+3}], {A}, {B}, {cc}')
                for _ in range(2):
                    if fill:
                        a.e(fill.pop(0))
                if not fill and mx and n >= 4:
                    a.e(mx.pop(0))
                n += 1
        assert not fill and not mx


def sentinel(a, ws_off, kblocks):
    lp, ld = a.lab('spoll'), a.lab('sdone')
    a.e(f's_mul_i32 s66, s{S_W}, {kblocks*7168}')
    a.e(f's_mul_i32 s67, s{S_J}, 896')
    a.e('s_add_u32 s66, s66, s67')
    a.e(f's_add_u32 s66, s66, {ws_off + 55*16 + 12}')
    a.e('v_mul_u32_u24 v4, 7168, v1')
    a.e('v_add_u32 v4, s66, v4')
    if kblocks < 64:
        mask_lanes(a, 4, kblocks, 5)
    a.e(f's_mov_b32 s{S_SPIN}, 0')
    a.e(f'{lp}:')
    a.e(f'buffer_load_dword v5, v4, {WSR}, 0 offen sc1')
    a.e('s_waitcnt vmcnt(0)')
    a.e('v_cmp_eq_u32 vcc, -1, v5')
    a.e(f's_cbranch_vccz {ld}')
    spin_tail(a, lp)
    a.e(f'{ld}:')


def gemm_poll_main(a, ws_off, kblocks, nk, gid, sb, tail_hook=None):
    lr, lok = a.lab('gretry'), a.lab('gok')
    gemm_xaddr(a, ws_off, kblocks)
    a.e(f's_mov_b32 s{S_RETRY}, 0')
    a.e(f'{lr}:')
    sentinel(a, ws_off, kblocks)
    stamp(a, sb)
    for k in range(OPT['nfl']):
        for x in gemm_xloads(a, k, gid):
            a.e(x)
    gemm_main(a, nk, gid, tail_hook)
    a.e(f'v_cmp_eq_u32 vcc, -1, v{VMAX}')
    a.e(f's_cbranch_vccz {lok}')
    a.e(f's_add_u32 s{S_RETRY}, s{S_RETRY}, 1')
    a.e(f's_cmp_lt_u32 s{S_RETRY}, {RETRY_MAX}')
    a.e(f's_cbranch_scc1 {lr}')
    a.e(f'{lok}:')


def write_partials(a):
    a.e('v_and_b32 v4, 15, v1')
    a.e(f'v_mul_u32_u24 v4, {PROW}, v4')
    a.e('v_lshrrev_b32 v5, 4, v1')
    a.e('v_lshl_add_u32 v4, v5, 4, v4')
    a.e(f's_mul_i32 s66, s{S_W}, {PARTW}')
    a.e(f's_add_u32 s66, s66, {L_PART}')
    a.e('v_add_u32 v4, s66, v4')
    a.e('s_barrier')
    for mt in range(4):
        for nt in range(4):
            acc = ACC + (mt * 4 + nt) * 4
            a.e(f'ds_write_b128 v4, v[{acc}:{acc+3}] offset:{nt*16*PROW + mt*64}')


def sum_partials(a, P):
    for h in range(4):
        a.e(f'v_pk_add_f32 v[{P+2*h}:{P+2*h+1}], v[{P+2*h}:{P+2*h+1}], v[{P+8+2*h}:{P+9+2*h}]')
        a.e(f'v_pk_add_f32 v[{P+16+2*h}:{P+17+2*h}], v[{P+16+2*h}:{P+17+2*h}], v[{P+24+2*h}:{P+25+2*h}]')
    for h in range(4):
        a.e(f'v_pk_add_f32 v[{P+2*h}:{P+2*h+1}], v[{P+2*h}:{P+2*h+1}], v[{P+16+2*h}:{P+17+2*h}]')


def b1_load(a):
    a.e(f's_lshl_b32 s67, s{S_I1}, 7')
    a.e(f's_lshl_b32 s70, s{S_W}, 5')
    a.e('s_add_u32 s67, s67, s70')
    a.e(f's_load_dwordx8 s[72:79], s[{P_B1}:{P_B1+1}], s67')


def gemm1_epilogue(a):
    write_partials(a)
    a.e(f'v_mul_u32_u24 v4, {PROW}, v1')
    a.e(f's_lshl_b32 s66, s{S_W}, 6')
    a.e(f's_add_u32 s66, s66, {L_PART}')
    a.e('v_add_u32 v4, s66, v4')
    g_store_addr(a, 5)
    C1 = 0.044715
    C2 = -2.0 * 0.7978845608028654 * 1.4426950408889634
    a.e(f'v_mov_b32 v100, {fx(C1*C2)}')
    a.e(f'v_mov_b32 v101, {fx(C1*C2)}')
    a.e(f'v_mov_b32 v102, {fx(C2)}')
    a.e(f'v_mov_b32 v103, {fx(C2)}')
    a.e('s_waitcnt lgkmcnt(0)')
    a.e('s_barrier')
    stamp(a, 24)
    for r in range(2):
        P = 16 + 32 * r
        for wv in range(4):
            a.e(f'ds_read_b128 v[{P+8*wv}:{P+8*wv+3}], v4 offset:{wv*PARTW + r*32}')
            a.e(f'ds_read_b128 v[{P+8*wv+4}:{P+8*wv+7}], v4 offset:{wv*PARTW + r*32 + 16}')
    for i in range(8):
        a.e(f's_lshl_b32 s{80+2*i}, s{72+i}, 16')
        a.e(f's_and_b32 s{81+2*i}, s{72+i}, 0xffff0000')
    for r in range(2):
        P = 16 + 32 * r
        T = 80
        a.e(f's_waitcnt lgkmcnt({8 if r == 0 else 0})')
        sum_partials(a, P)
        round_pairs(a, P, T, 8)
        for h in range(4):
            a.e(f'v_pk_add_f32 v[{P+2*h}:{P+2*h+1}], v[{P+2*h}:{P+2*h+1}], s[{80+8*r+2*h}:{81+8*r+2*h}]')
        round_pairs(a, P, T, 8)
        for h in range(4):
            a.e(f'v_pk_mul_f32 v[{P+8+2*h}:{P+9+2*h}], v[{P+2*h}:{P+2*h+1}], v[{P+2*h}:{P+2*h+1}]')
        for h in range(4):
            a.e(f'v_pk_fma_f32 v[{P+8+2*h}:{P+9+2*h}], v[{P+8+2*h}:{P+9+2*h}], v[100:101], v[102:103]')
        for h in range(4):
            a.e(f'v_pk_mul_f32 v[{P+8+2*h}:{P+9+2*h}], v[{P+8+2*h}:{P+9+2*h}], v[{P+2*h}:{P+2*h+1}]')
        for i in range(8):
            a.e(f'v_exp_f32 v{P+8+i}, v{P+8+i}')
        for h in range(4):
            a.e(f'v_pk_add_f32 v[{P+8+2*h}:{P+9+2*h}], v[{P+8+2*h}:{P+9+2*h}], 1.0 op_sel_hi:[1,0]')
        for i in range(8):
            a.e(f'v_rcp_f32 v{P+8+i}, v{P+8+i}')
        for h in range(4):
            a.e(f'v_pk_mul_f32 v[{P+2*h}:{P+2*h+1}], v[{P+2*h}:{P+2*h+1}], v[{P+8+2*h}:{P+9+2*h}]')
        O = 88 + 4 * r
        for h in range(4):
            a.e(f'v_cvt_pk_bf16_f32 v{O+h}, v{P+2*h}, v{P+2*h+1}')
        if r == 1:
            a.e('v_add_u32 v5, 7168, v5')
        a.e(f'buffer_store_dwordx4 v[{O}:{O+3}], v5, {WSR}, 0 offen sc1')


V_OUT, V_HAD, V_B2 = 210, 211, 212
V_HR = 196


def gemm2_addr(a):
    srd(a, S_T2, P_OUT, XBYTES)
    srd(a, S_T3, P_B2, L * 2)
    a.e('v_lshrrev_b32 v4, 3, v1')
    a.e('v_and_b32 v5, 7, v1')
    a.e(f's_lshl_b32 s66, s{S_W}, 4')
    a.e('v_add_u32 v4, s66, v4')
    a.e(f's_lshl_b32 s67, s{S_I2}, 6')
    a.e('v_add_u32 v7, s67, v4')
    a.e(f'v_mul_u32_u24 v{V_OUT}, 896, v7')
    a.e(f'v_lshl_add_u32 v{V_OUT}, v5, 4, v{V_OUT}')
    a.e(f's_mul_i32 s70, s{S_J}, 112')
    a.e(f'v_add_u32 v{V_OUT}, s70, v{V_OUT}')
    a.e(f'v_mov_b32 v6, {OOB}')
    a.e('v_cmp_gt_u32 vcc, 7, v5')
    a.e(f'v_cndmask_b32 v{V_OUT}, v6, v{V_OUT}, vcc')
    a.e(f'v_add_u32 v{V_HAD}, {WS_H}, v{V_OUT}')
    a.e(f'v_lshlrev_b32 v{V_B2}, 1, v7')


def gemm2_tail_loads(fill):
    fill.append(f'buffer_load_dwordx4 v[{V_HR}:{V_HR+3}], v{V_HAD}, {WSR}, 0 offen sc1')
    fill.append(f's_mov_b32 s70, {8*896}')
    fill.append(f'buffer_load_dwordx4 v[{V_HR+4}:{V_HR+7}], v{V_HAD}, {WSR}, s70 offen sc1')
    fill.append(f'buffer_load_ushort v{V_HR+8}, v{V_B2}, s[{S_T3}:{S_T3+3}], 0 offen')
    fill.append(f'buffer_load_ushort v{V_HR+9}, v{V_B2}, s[{S_T3}:{S_T3+3}], 0 offen offset:16')
    return 4


def gemm2_epilogue(a):
    write_partials(a)
    a.e('v_lshrrev_b32 v4, 3, v1')
    a.e('v_and_b32 v5, 7, v1')
    a.e(f's_lshl_b32 s66, s{S_W}, 4')
    a.e('v_add_u32 v4, s66, v4')
    a.e(f'v_mul_u32_u24 v6, {PROW}, v4')
    a.e('v_lshl_add_u32 v6, v5, 4, v6')
    a.e(f'v_add_u32 v6, {L_PART}, v6')
    a.e('s_waitcnt lgkmcnt(0)')
    a.e('s_barrier')
    stamp(a, 33)
    for r in range(2):
        P = 16 + 32 * r
        for wv in range(4):
            a.e(f'ds_read_b128 v[{P+8*wv}:{P+8*wv+3}], v6 offset:{wv*PARTW + r*8*PROW}')
            a.e(f'ds_read_b128 v[{P+8*wv+4}:{P+8*wv+7}], v6 offset:{wv*PARTW + r*8*PROW + 112}')
    a.e('s_waitcnt vmcnt(0)')
    for r in range(2):
        P = 16 + 32 * r
        T = 80
        H = V_HR + 4 * r
        a.e(f'v_lshlrev_b32 v106, 16, v{V_HR+8+r}')
        for i in range(4):
            a.e(f'v_lshlrev_b32 v{96+i}, 16, v{H+i}')
            a.e(f'v_and_b32 v{100+i}, 0xffff0000, v{H+i}')
        a.e(f's_waitcnt lgkmcnt({8 if r == 0 else 0})')
        sum_partials(a, P)
        round_pairs(a, P, T, 8)
        for h in range(4):
            a.e(f'v_pk_add_f32 v[{P+2*h}:{P+2*h+1}], v[{P+2*h}:{P+2*h+1}], v[106:107] op_sel:[0,0] op_sel_hi:[1,0]')
        round_pairs(a, P, T, 8)
        for h in range(4):
            a.e(f'v_pk_add_f32 v[{P+2*h}:{P+2*h+1}], v[{P+2*h}:{P+2*h+1}], v[{96+2*h}:{97+2*h}]')
        O = 88 + 4 * r
        for i in range(4):
            a.e(f'v_cvt_pk_bf16_f32 v{O+i}, v{P+i}, v{P+4+i}')
        if r == 1:
            a.e(f'v_add_u32 v{V_OUT}, {8*896}, v{V_OUT}')
        a.e(f'buffer_store_dwordx4 v[{O}:{O+3}], v{V_OUT}, s[{S_T2}:{S_T2+3}], 0 offen' + ['', ' sc1', ' nt', ' sc0 sc1', ' sc1 nt'][OPT['outsc']])


def build():
    a = Prog()
    name = NAME + '_kernel'
    lend = a.lab('end')
    a.raw(f'.globl {name}')
    a.raw('.p2align 8')
    a.raw(f'.type {name},@function')
    a.raw(f'{name}:')
    prologue(a, lend)
    lnc1, lnc2, lnc3, lnc5, lnc6 = [a.lab('noconv') for _ in range(5)]

    def skip_if_helper(l):
        a.e(f's_cmp_ge_u32 s{S_LOC}, 28')
        a.e(f's_cbranch_scc1 {l}')

    load_xrows(a)
    a.e(f's_add_u32 s66, s{P_WS}, {WS_EPOCH}')
    a.e(f's_addc_u32 s67, s{P_WS+1}, 0')
    a.e('s_load_dword s99, s[66:67], 0')
    poison_regs(a)
    skip_if_helper(lnc1)
    kgen_loads(a)
    load_gather_table(a, 'ktab_idx')
    w_setup(a)
    flag_addr(a)
    a.e('s_waitcnt lgkmcnt(0)')
    a.e(f's_add_u32 s{S_TAG}, s99, 0x9e3779b9')
    a.e('s_waitcnt vmcnt(10)')
    stamp(a, 2)
    clear_hh(a)
    clear_aout(a)
    ln_stats(a, list(range(8, 16)), 16, L_RED0, 5)
    stamp(a, 3)
    publish_xn(a)
    stamp(a, 4)
    a.e('s_waitcnt vmcnt(8)')
    kgen_channel(a, 0, DK0)
    publish_flag(a)
    nb0 = OPT['wb0']
    for k in range(min(nb0, 3)):
        w_dma(a, 1, k, BS[k])
    stamp(a, 40)
    kgen_channel(a, 1, DK1, mid=(lambda: [w_dma(a, 1, k, BS[k]) for k in range(3, nb0)]) if nb0 > 3 else None)
    stamp(a, 5)
    if OPT['early']:
        flag_load(a)
        a.e('s_waitcnt vmcnt(1)')
    else:
        a.e('s_waitcnt vmcnt(0)')
    for k in range(nb0):
        w_tr(a, k, BS[k])
    ktab_part1(a)
    stamp(a, 6)
    a.e(f's_mov_b32 s{S_EARLY}, 0')
    lne = a.lab('notearly')
    if OPT['early']:
        a.e('s_waitcnt vmcnt(0)')
        a.e(f'v_cmp_ne_u32 vcc, s{S_TAG}, v{V_FV}')
        a.e(f's_cbranch_vccnz {lne}')
        load_u(a)
        a.e(f's_mov_b32 s{S_EARLY}, 1')
        a.e(f'{lne}:')
    qpf_load(a, OPT['w2pf_a'])
    ktab_part2(a)
    stamp(a, 7)
    conv_addr(a)
    kcopies(a)
    stamp(a, 8)
    lhave = a.lab('haveu')
    a.e(f's_cmp_lg_u32 s{S_EARLY}, 0')
    a.e(f's_cbranch_scc1 {lhave}')
    flag_poll(a)
    load_u(a)
    a.e('s_waitcnt vmcnt(0)')
    a.e(f'{lhave}:')
    stamp(a, 9)
    store_u(a, OPT['w2pf_a'])
    epoch_update(a)
    clear_g(a)
    qpf_load(a, OPT['w2pf_b'])
    stamp(a, 10)
    hk = []
    for k in range(4):
        for i in range(4):
            hk.append(lambda k=k, i=i: w_dma1(a, 1, nb0 + k, AS[k], i))
            hk.append(lambda: None)
    phase_conv(a, hk, 0)
    stamp(a, 12)
    for k in range(4):
        w_tr(a, nb0 + k, AS[k])
    a.e('s_waitcnt lgkmcnt(0)')
    a.e('s_barrier')
    rest = list(range(nb0 + 4, 16))
    rest_slots = (BS + AS)[:len(rest)]
    for k, sl in zip(rest, rest_slots):
        w_dma(a, 1, k, sl)
    stamp(a, 13)
    a.e(f's_branch {lnc2}')
    a.e(f'{lnc1}:')
    code_prefetch(a, name, 'kcode_end')
    w_setup(a)
    flag_addr(a)
    a.e('s_waitcnt lgkmcnt(0)')
    a.e(f's_add_u32 s{S_TAG}, s99, 0x9e3779b9')
    a.e('s_waitcnt vmcnt(2)')
    clear_hh(a)
    ln_stats(a, list(range(8, 16)), 16, L_RED0, 5)
    publish_xn(a)
    publish_flag(a)
    qpf_load(a, OPT['w2pf_a'] + OPT['w2pf_b'])
    stamp(a, 41)
    flag_poll(a)
    a.e('s_barrier')
    stamp(a, 42)
    a.e(f'{lnc2}:')
    phase_p4(a)
    stamp(a, 20)
    gemm2_addr(a)
    skip_if_helper(lnc3)
    b1_load(a)
    for k, sl in zip(rest, rest_slots):
        w_tr(a, k, sl)
    a.e('s_waitcnt lgkmcnt(0)')
    for k in range(5):
        w_dma(a, 2, k, BS[k])
    stamp(a, 21)
    gemm_poll_main(a, WS_HH, 64, 16, 1, 22)
    stamp(a, 23)
    if OPT['h4early']:
        for k in range(5):
            w_tr(a, k, BS[k])
        a.e('s_waitcnt lgkmcnt(0)')
        for k in range(5, 8):
            w_dma(a, 2, k, BS[k - 5])
        gemm1_epilogue(a)
        stamp(a, 25)
        a.e('s_barrier')
        for k in range(8, 10):
            w_dma(a, 2, k, BS[k - 5])
        for k in range(10, 14):
            w_dma(a, 2, k, AS[k - 10])
        a.e('s_waitcnt vmcnt(26)')
        for k in range(5, 8):
            w_tr(a, k, BS[k - 5])
        a.e('s_waitcnt vmcnt(16)')
        for k in range(8, 10):
            w_tr(a, k, BS[k - 5])
        a.e('s_waitcnt vmcnt(0)')
        for k in range(10, 14):
            w_tr(a, k, AS[k - 10])
        a.e('s_waitcnt lgkmcnt(0)')
        a.e(f's_branch {lnc6}')
    else:
        gemm1_epilogue(a)
        stamp(a, 25)
        for k in range(5):
            w_tr(a, k, BS[k])
        a.e('s_waitcnt lgkmcnt(0)')
        a.e('s_barrier')
        a.e(f's_branch {lnc5}')
    a.e(f'{lnc3}:')
    for k in range(5):
        w_dma(a, 2, k, BS[k])
    a.e('s_waitcnt vmcnt(0)')
    for k in range(5):
        w_tr(a, k, BS[k])
    a.e('s_waitcnt lgkmcnt(0)')
    a.e(f'{lnc5}:')
    for k in range(5, 10):
        w_dma(a, 2, k, BS[k - 5])
    for k in range(10, 14):
        w_dma(a, 2, k, AS[k - 10])
    a.e('s_waitcnt vmcnt(16)')
    for k in range(5, 10):
        w_tr(a, k, BS[k - 5])
    a.e('s_waitcnt vmcnt(0)')
    for k in range(10, 14):
        w_tr(a, k, AS[k - 10])
    a.e('s_waitcnt lgkmcnt(0)')
    a.e(f'{lnc6}:')
    stamp(a, 30)
    gemm_poll_main(a, WS_G, 56, 14, 2, 31, gemm2_tail_loads)
    stamp(a, 32)
    gemm2_epilogue(a)
    stamp_clk(a, 61)
    stamp(a, 63)
    stamp_flush(a)
    a.e(f'{lend}:')
    a.e('s_endpgm')
    a.raw('kcode_end:')
    emit_gather_table(a, 'ktab_idx')
    nn = a.fast_insert_nops()
    head = f'; @launch grid=(256,1,1) block=(256,1,1) lds={LDS_BYTES}\n'
    head += '.amdgcn_target "amdgcn-amd-amdhsa--gfx950"\n.text\n'
    tail = '.section .rodata,"a"\n.p2align 6\n' + descriptor(name)
    if OPT['align']:
        nal = a.align8(head, tail)
        sys.stderr.write(f'alignment: {nal}\n')
    sys.stderr.write(f'instructions: {a.count()}, nops inserted: {nn}\n')
    return head + a.text() + tail


if __name__ == '__main__':
    out = sys.argv[1]
    for arg in sys.argv[2:]:
        if arg == 'stamps':
            OPT['stamps'] = True
        elif arg == 'dbg':
            OPT['stamps'] = True
            OPT['dbgsel'] = [0, 1, 2, 4, 8, 9, 12, 13, 14, 20, 21, 23, 25, 30, 32, 63]
        elif '=' in arg:
            k, v = arg.split('=')
            OPT[k] = int(v)
    open(out, 'w').write(build())
```

```python
import sys
import gen
from gen import (Prog, NAME, L, D, F, XBYTES, PBYTES, W1BYTES, W2BYTES, OOB, fx, srd, reduce16, cmul, exp_bf16,
                 gather_table, emit_gather_table, descriptor, round_pairs, norm_tok, bcast_stats)

OPT = dict(tlb=0, outsc=0, x3oob=1, h4early=1, wb0=3, xnb=1, stamps=False, dbgsel=None, w2pf_a=10, w2pf_b=4, nfl=3, early=True, align=True, hlds=True)

WS_FLAG = 0x4000
WS_EPOCH = 0x9000
WS_AOUT = 0x10000
AST = 8448
WS_H = 0x200000
WS_HH = 0x400000
WS_G = 0x600000
WS_DBG = 0x800000
WS_XN = 0xA00000
XCS = 4352
XPS = 2 * XCS
WS_USED = 0x1000000

L_RED0, L_RED1, L_SIG, L_KT = 0, 256, 512, 640
KTCH = 1600
L_U = L_KT + 2 * KTCH
UCH = 4608
L_SCR = L_U + 2 * UCH
SROW = 272
YROW = 41
SCRW = 57 * SROW
L_KC = 82688
KCOPY = 4160
KCH = 8 * KCOPY
L_CP = L_KC
LDS_BYTES = 160 * 1024
L_WA, L_WB = 13056, 78592
L_PART = 1024
PROW = 272
PARTW = 64 * PROW
L_HT = 1024

S_WS, S_X = 4, 8
S_T0, S_T1, S_T2, S_T3 = 12, 16, 20, 24
S_W1, S_W2 = 12, 16
S_W, S_XCD, S_LOC, S_B, S_P, S_J, S_I1, S_I2 = 28, 29, 30, 31, 32, 33, 34, 35
P_X, P_LAR, P_AI, P_CR, P_CI, P_LDT, P_DSK = 36, 38, 40, 42, 44, 46, 48
P_W1, P_B1, P_W2, P_B2, P_OUT, P_DBG, P_WS = 52, 54, 56, 58, 60, 62, 64
S_SA, S_SB = 50, 51
S_RW1, S_RX1, S_RW2, S_RX2 = 38, 39, 40, 41
S_QPF = 42
S_EARLY = 43
S_TAG, S_SPIN, S_RETRY = 96, 97, 98
V_D1, V_D2, V_TA, V_TB = 224, 228, 244, 248
V_QPF = 232
SPIN_MAX, RETRY_MAX = 4000, 20
AS = ['A0', 'A1', 'A2', 'A3']
BS = ['B0', 'B1', 'B2', 'B3', 'B4']
WSR = f's[{S_WS}:{S_WS+3}]'

assert (gen.S_W, gen.S_B, gen.S_WS) == (S_W, S_B, S_WS)


def stamp(a, idx):
    if not OPT['stamps']:
        return
    sel = OPT['dbgsel']
    if sel is not None:
        if idx not in sel:
            return
        idx = sel.index(idx)
    a.e('s_memrealtime s[100:101]')
    a.e('s_waitcnt lgkmcnt(0)')
    a.e(f'v_writelane_b32 v255, s100, {idx}')


def stamp_clk(a, idx):
    if not OPT['stamps'] or OPT['dbgsel'] is not None:
        return
    a.e('s_memtime s[100:101]')
    a.e('s_waitcnt lgkmcnt(0)')
    a.e(f'v_writelane_b32 v255, s100, {idx}')


def stamp_flush(a):
    if not OPT['stamps']:
        return
    l = a.lab('nost')
    a.e(f's_cmp_lg_u32 s{S_W}, 0')
    a.e(f's_cbranch_scc1 {l}')
    if OPT['dbgsel'] is not None:
        a.e('v_not_b32 v253, v255')
        a.e('v_cmp_eq_u32 vcc, 0, v1')
        a.e('v_cndmask_b32 v255, v255, v253, vcc')
        a.e('v_lshlrev_b32 v254, 2, v1')
        a.e('s_mov_b64 exec, 0xffff')
        a.e(f'global_atomic_umax v254, v255, s[{P_DBG}:{P_DBG+1}]')
        a.e('s_mov_b64 exec, -1')
    else:
        a.e('s_lshl_b32 s66, s2, 8')
        a.e(f's_add_u32 s66, s66, {WS_DBG}')
        a.e('v_lshl_add_u32 v254, v1, 2, s66')
        a.e(f'buffer_store_dword v255, v254, {WSR}, 0 offen')
    a.e(f'{l}:')


def spin_tail(a, lp):
    a.e(f's_add_u32 s{S_SPIN}, s{S_SPIN}, 1')
    a.e(f's_cmp_lt_u32 s{S_SPIN}, {SPIN_MAX}')
    a.e(f's_cbranch_scc1 {lp}')


def mask_lanes(a, v, n, tmp, src='v1'):
    a.e(f'v_mov_b32 v{tmp}, {OOB}')
    a.e(f'v_cmp_gt_u32 vcc, {n}, {src}')
    a.e(f'v_cndmask_b32 v{v}, v{tmp}, v{v}, vcc')


def prologue(a, lend):
    a.e('s_cmp_ge_u32 s2, 256')
    a.e(f's_cbranch_scc1 {lend}')
    if OPT['stamps']:
        a.e('v_mov_b32 v255, 0')
        stamp(a, 0)
        stamp_clk(a, 60)
    a.e('s_load_dwordx16 s[36:51], s[0:1], 0')
    a.e('s_load_dwordx8 s[52:59], s[0:1], 64')
    a.e('s_load_dwordx4 s[60:63], s[0:1], 96')
    a.e('s_load_dwordx2 s[64:65], s[0:1], 112')
    a.e('v_and_b32 v1, 63, v0')
    a.e('v_lshrrev_b32 v2, 6, v0')
    a.e(f's_and_b32 s{S_XCD}, s2, 7')
    a.e(f'v_readfirstlane_b32 s{S_W}, v2')
    a.e(f's_lshr_b32 s{S_LOC}, s2, 3')
    a.e(f's_lshl_b32 s{S_B}, s{S_XCD}, 5')
    a.e(f's_add_u32 s{S_B}, s{S_B}, s{S_LOC}')
    a.e(f's_mul_i32 s{S_P}, s{S_XCD}, 28')
    a.e(f's_add_u32 s{S_P}, s{S_P}, s{S_LOC}')
    a.e(f's_and_b32 s{S_J}, s{S_XCD}, 1')
    a.e(f's_lshl_b32 s{S_J}, s{S_J}, 2')
    a.e(f's_and_b32 s3, s{S_LOC}, 3')
    a.e(f's_add_u32 s{S_J}, s{S_J}, s3')
    a.e(f's_lshr_b32 s3, s{S_XCD}, 1')
    a.e(f's_lshr_b32 s66, s{S_LOC}, 2')
    a.e(f's_mul_i32 s{S_I1}, s3, 7')
    a.e(f's_add_u32 s{S_I1}, s{S_I1}, s66')
    a.e(f's_lshl_b32 s{S_I2}, s3, 3')
    a.e(f's_add_u32 s{S_I2}, s{S_I2}, s66')
    a.e('s_waitcnt lgkmcnt(0)')
    srd(a, S_X, P_X, XBYTES)
    srd(a, S_WS, P_WS, WS_USED)
    stamp(a, 1)


def xrow_addr(a):
    a.e(f's_mul_i32 s66, s{S_W}, 224')
    a.e(f's_mul_i32 s67, s{S_B}, {8*896}')
    a.e('s_add_u32 s66, s66, s67')
    a.e('v_lshl_add_u32 v2, v1, 2, s66')
    mask_lanes(a, 2, 56, 3)
    a.e('v_add_u32 v3, 4480, v2')


def load_xrows(a):
    xrow_addr(a)
    for j in range(8):
        v, o = (2, j * 896) if j < 5 else (3, (j - 5) * 896)
        a.e(f'buffer_load_dword v{8+j}, v{v}, s[{S_X}:{S_X+3}], 0 offen offset:{o}')


def ln_stats(a, X, T, red, vt, mid=None):
    a.e('s_mov_b32 s66, 0x3f803f80')
    for j in range(8):
        a.e(f'v_dot2_f32_bf16 v{T+j}, v{X[j]}, s66, 0')
        a.e(f'v_dot2_f32_bf16 v{T+8+j}, v{X[j]}, v{X[j]}, 0')
    a.e(f'v_lshlrev_b32 v{vt}, 2, v1')
    a.e(f'v_and_b32 v{vt}, 0xf0, v{vt}')
    a.e(f's_lshl_b32 s66, s{S_W}, 2')
    a.e(f'v_add_u32 v{vt}, s66, v{vt}')
    reduce16(a, [T + i for i in range(16)])
    a.e('s_mov_b32 exec_lo, 0x11111111')
    a.e('s_mov_b32 exec_hi, 0x11111111')
    a.e(f'ds_write_b32 v{vt}, v{T} offset:{red}')
    a.e('s_mov_b64 exec, -1')
    a.e(f'v_and_b32 v{vt}, 7, v1')
    a.e(f'v_lshlrev_b32 v{vt}, 4, v{vt}')
    a.e('s_waitcnt lgkmcnt(0)')
    a.e('s_barrier')
    a.e(f'ds_read_b128 v[{T}:{T+3}], v{vt} offset:{red}')
    a.e(f'ds_read_b128 v[{T+4}:{T+7}], v{vt} offset:{red+128}')
    n_mid = mid() if mid else 0
    a.e(f's_waitcnt lgkmcnt({1 + n_mid})')
    a.e(f'v_pk_add_f32 v[{T}:{T+1}], v[{T}:{T+1}], v[{T+2}:{T+3}]')
    a.e(f's_waitcnt lgkmcnt({n_mid})')
    a.e(f'v_pk_add_f32 v[{T+4}:{T+5}], v[{T+4}:{T+5}], v[{T+6}:{T+7}]')
    a.e(f'v_add_f32 v{T}, v{T}, v{T+1}')
    a.e(f'v_add_f32 v{T+4}, v{T+4}, v{T+5}')
    a.e(f'v_mul_f32 v{T}, {fx(1.0/448)}, v{T}')
    a.e(f'v_mul_f32 v{T+4}, {fx(1.0/448)}, v{T+4}')
    a.e(f'v_fma_f32 v{T+4}, -v{T}, v{T}, v{T+4}')
    a.e(f'v_max_f32 v{T+4}, 0, v{T+4}')
    a.e(f'v_cvt_pk_bf16_f32 v{T+4}, v{T+4}, v{T+4}')
    a.e(f'v_lshlrev_b32 v{T+4}, 16, v{T+4}')
    a.e(f'v_add_f32 v{T+4}, {fx(1e-5)}, v{T+4}')
    a.e(f'v_cvt_pk_bf16_f32 v{T+4}, v{T+4}, v{T+4}')
    a.e(f'v_lshlrev_b32 v{T+4}, 16, v{T+4}')
    a.e(f'v_sqrt_f32 v{T+4}, v{T+4}')
    a.e(f'v_cvt_pk_bf16_f32 v{T}, v{T}, v{T+4}')


def poison_regs(a):
    for r in range(216, 220):
        a.e(f'v_mov_b32 v{r}, -1')


def clear_hh(a):
    a.e(f's_mul_i32 s66, s{S_B}, 7168')
    a.e(f's_add_u32 s66, s66, {WS_HH}')
    a.e('v_lshl_add_u32 v4, v0, 4, s66')
    a.e('v_add_u32 v5, 4096, v4')
    mask_lanes(a, 5, 192, 6, 'v0')
    a.e(f'buffer_store_dwordx4 v[216:219], v4, {WSR}, 0 offen sc1')
    a.e(f'buffer_store_dwordx4 v[216:219], v5, {WSR}, 0 offen sc1')


def clear_aout(a):
    a.e(f's_mul_i32 s66, s{S_P}, {AST}')
    a.e(f's_add_u32 s66, s66, {WS_AOUT}')
    a.e('v_lshl_add_u32 v4, v0, 4, s66')
    a.e('v_add_u32 v5, 4096, v4')
    a.e(f'buffer_store_dwordx4 v[216:219], v4, {WSR}, 0 offen sc1')
    a.e(f'buffer_store_dwordx4 v[216:219], v5, {WSR}, 0 offen sc1')


def g_store_addr(a, vd):
    a.e(f's_lshl_b32 s66, s{S_I1}, 3')
    a.e(f's_lshl_b32 s70, s{S_W}, 1')
    a.e('s_add_u32 s66, s66, s70')
    a.e('s_mul_i32 s66, s66, 7168')
    a.e(f's_mul_i32 s70, s{S_J}, 896')
    a.e('s_add_u32 s66, s66, s70')
    a.e(f's_add_u32 s66, s66, {WS_G}')
    a.e(f'v_lshl_add_u32 v{vd}, v1, 4, s66')
    mask_lanes(a, vd, 56, 6)


def clear_g(a):
    g_store_addr(a, 4)
    a.e('v_add_u32 v5, 7168, v4')
    a.e(f'buffer_store_dwordx4 v[216:219], v4, {WSR}, 0 offen sc1')
    a.e(f'buffer_store_dwordx4 v[216:219], v5, {WSR}, 0 offen sc1')


def publish_xn(a):
    bcast_stats(a, 16)
    for j in range(8):
        d = 64 + 2 * j
        t = 48 + j
        a.e(f'v_lshlrev_b32 v{d}, 16, v{8+j}')
        a.e(f'v_and_b32 v{d+1}, 0xffff0000, v{8+j}')
        a.e(f'v_pk_add_f32 v[{d}:{d+1}], v[{d}:{d+1}], s[{72+2*j}:{73+2*j}] op_sel:[0,0] op_sel_hi:[1,0] neg_lo:[0,1] neg_hi:[0,1]')
        a.e(f'v_cvt_pk_bf16_f32 v{t}, v{d}, v{d+1}')
        a.e(f'v_lshlrev_b32 v{d}, 16, v{t}')
        a.e(f'v_and_b32 v{d+1}, 0xffff0000, v{t}')
        a.e(f'v_pk_mul_f32 v[{d}:{d+1}], v[{d}:{d+1}], s[{72+2*j}:{73+2*j}] op_sel:[0,1] op_sel_hi:[1,1]')
        a.e(f'v_cvt_pk_bf16_f32 v{t}, v{d}, v{d+1}')
        a.e(f'v_lshlrev_b32 v{d}, 16, v{t}')
        a.e(f'v_and_b32 v{d+1}, 0xffff0000, v{t}')
    for i in range(4):
        a.e(f'v_cvt_pk_f16_f32 v{80+i}, v{64+4*i}, v{66+4*i}')
        a.e(f'v_cvt_pk_f16_f32 v{84+i}, v{65+4*i}, v{67+4*i}')
    if OPT['xnb']:
        a.e(f's_mul_i32 s66, s{S_W}, {56*16}')
        a.e(f's_mul_i32 s67, s{S_B}, 7168')
        a.e('s_add_u32 s66, s66, s67')
        a.e(f's_add_u32 s66, s66, {WS_XN}')
        a.e('v_lshl_add_u32 v4, v1, 4, s66')
        mask_lanes(a, 4, 56, 5)
        a.e('v_add_u32 v5, 3584, v4')
    else:
        a.e(f's_mul_i32 s66, s{S_W}, {56*XPS}')
        a.e(f's_lshl_b32 s67, s{S_B}, 4')
        a.e('s_add_u32 s66, s66, s67')
        a.e(f's_add_u32 s66, s66, {WS_XN}')
        a.e(f'v_mul_u32_u24 v4, {XPS}, v1')
        a.e('v_add_u32 v4, s66, v4')
        mask_lanes(a, 4, 56, 5)
        a.e(f'v_add_u32 v5, {XCS}, v4')
    a.e(f'buffer_store_dwordx4 v[80:83], v4, {WSR}, 0 offen sc1')
    a.e(f'buffer_store_dwordx4 v[84:87], v5, {WSR}, 0 offen sc1')


def publish_flag(a, vm=0):
    a.e(f's_waitcnt vmcnt({vm})')
    a.e('s_barrier')
    l = a.lab('noflag')
    a.e(f's_cmp_lg_u32 s{S_W}, 0')
    a.e(f's_cbranch_scc1 {l}')
    a.e(f's_lshl_b32 s66, s{S_B}, 6')
    a.e(f's_add_u32 s66, s66, {WS_FLAG}')
    a.e('v_mov_b32 v2, s66')
    a.e(f'v_mov_b32 v3, s{S_TAG}')
    a.e('s_mov_b64 exec, 1')
    a.e(f'buffer_store_dword v3, v2, {WSR}, 0 offen sc1')
    a.e('s_mov_b64 exec, -1')
    a.e(f'{l}:')


V_FA, V_FV = 233, 234


def flag_addr(a):
    a.e(f'v_lshlrev_b32 v{V_FA}, 6, v0')
    a.e(f'v_add_u32 v{V_FA}, {WS_FLAG}, v{V_FA}')


def flag_load(a):
    a.e(f'buffer_load_dword v{V_FV}, v{V_FA}, {WSR}, 0 offen sc1')


def flag_poll(a):
    lp, ld = a.lab('fpoll'), a.lab('fdone')
    a.e(f's_mov_b32 s{S_SPIN}, 0')
    a.e(f'{lp}:')
    flag_load(a)
    a.e('s_waitcnt vmcnt(0)')
    a.e(f'v_cmp_ne_u32 vcc, s{S_TAG}, v{V_FV}')
    a.e(f's_cbranch_vccz {ld}')
    spin_tail(a, lp)
    a.e(f'{ld}:')


def load_u(a):
    if OPT['xnb']:
        a.e(f's_lshl_b32 s66, s{S_P}, 4')
        a.e(f's_add_u32 s66, s66, {WS_XN}')
        a.e('v_mul_u32_u24 v2, 7168, v0')
        a.e('v_add_u32 v2, s66, v2')
        a.e('v_add_u32 v3, 3584, v2')
    else:
        a.e(f's_mul_i32 s66, s{S_P}, {XPS}')
        a.e(f's_add_u32 s66, s66, {WS_XN}')
        a.e('v_lshl_add_u32 v2, v0, 4, s66')
        a.e(f'v_add_u32 v3, {XCS}, v2')
    a.e(f'buffer_load_dwordx4 v[176:179], v2, {WSR}, 0 offen sc1')
    a.e(f'buffer_load_dwordx4 v[180:183], v3, {WSR}, 0 offen sc1')


def epoch_update(a):
    le = a.lab('noep')
    a.e('s_cmp_lg_u32 s2, 0')
    a.e(f's_cbranch_scc1 {le}')
    a.e(f'v_mov_b32 v2, {WS_EPOCH}')
    a.e(f'v_mov_b32 v3, s{S_TAG}')
    a.e('s_mov_b64 exec, 1')
    a.e(f'buffer_store_dword v3, v2, {WSR}, 0 offen sc1')
    a.e('s_mov_b64 exec, -1')
    a.e(f'{le}:')


def code_prefetch(a, lstart, lend_):
    lp = a.lab('pcp')
    a.e('s_getpc_b64 s[74:75]')
    a.e(f'{lp}:')
    a.e(f's_sub_u32 s74, s74, {lp}-{lstart}')
    a.e('s_subb_u32 s75, s75, 0')
    a.e('v_lshlrev_b32 v4, 6, v0')
    a.e(f's_mov_b32 s76, {lend_}-{lstart}-4')
    a.e('v_add_u32 v5, 16384, v4')
    a.e('v_min_u32 v4, s76, v4')
    a.e('v_min_u32 v5, s76, v5')
    a.e('global_load_dword v220, v4, s[74:75]')
    a.e('global_load_dword v220, v5, s[74:75]')


def tlb_touch(a):
    a.e('v_lshlrev_b32 v4, 21, v1')
    a.e(f'buffer_load_dword v220, v4, s[{S_W1}:{S_W1+3}], 0 offen')
    a.e(f'buffer_load_dword v220, v4, s[{S_W2}:{S_W2+3}], 0 offen')
    a.e(f'buffer_load_dword v220, v4, {WSR}, 0 offen')
    srd(a, S_T2, P_OUT, XBYTES)
    a.e(f'buffer_load_dword v220, v4, s[{S_T2}:{S_T2+3}], 0 offen')
    srd(a, S_T3, P_B2, L * 2)
    a.e(f'buffer_load_dword v220, v4, s[{S_T3}:{S_T3+3}], 0 offen')


def kgen_loads(a):
    srd(a, S_T0, P_LAR, PBYTES)
    srd(a, S_T1, P_AI, PBYTES)
    srd(a, S_T2, P_CR, PBYTES)
    srd(a, S_T3, P_CI, PBYTES)
    a.e(f's_lshl_b32 s66, s{S_P}, 10')
    a.e(f's_lshl_b32 s67, s{S_W}, 7')
    a.e('s_add_u32 s66, s66, s67')
    a.e('v_lshl_add_u32 v2, v1, 1, s66')
    for c in range(2):
        for k, s in enumerate((S_T0, S_T1, S_T2, S_T3)):
            a.e(f'buffer_load_ushort v{40+4*c+k}, v2, s[{s}:{s+3}], 0 offen offset:{512*c}')
    a.e(f's_lshl_b32 s66, s{S_P}, 2')
    a.e(f's_load_dword s68, s[{P_LDT}:{P_LDT+1}], s66')
    a.e(f's_load_dword s69, s[{P_DSK}:{P_DSK+1}], s66')


def load_gather_table(a, tablabel):
    lp = a.lab('pc')
    a.e('s_getpc_b64 s[70:71]')
    a.e(f'{lp}:')
    a.e(f's_add_u32 s70, s70, {tablabel}-{lp}')
    a.e('s_addc_u32 s71, s71, 0')
    a.e('v_lshlrev_b32 v2, 5, v0')
    a.e('global_load_dwordx4 v[160:163], v2, s[70:71]')
    a.e('global_load_dwordx4 v[164:167], v2, s[70:71] offset:16')


DK0, DK1 = 16, 28


def kgen_channel(a, c, DACC, mid=None):
    LAR, AI, CR, CI = 40 + 4 * c, 41 + 4 * c, 42 + 4 * c, 43 + 4 * c
    SIG, DT = 52 + c, 54 + c
    AL, BE = 56, 57
    Z1, Z2, Z4, Z8, Z128, Z256, Z512, Z1024 = 58, 60, 62, 64, 66, 68, 70, 72
    X0, CA, CB, CC, T0, T1 = 74, 76, 78, 80, 82, 84
    CV = [86, 87, 88, 89]
    VW, VR = 90, 91
    t, t2 = 92, 93
    for r in (LAR, AI, CR, CI):
        a.e(f'v_lshlrev_b32 v{r}, 16, v{r}')
    a.e('s_lshl_b32 s66, s68, 16' if c == 0 else 's_and_b32 s66, s68, 0xffff0000')
    a.e(f'v_mov_b32 v{t2}, s66')
    exp_bf16(a, DT, t2, t)
    a.e(f'v_add_f32 v{SIG}, abs(v{CR}), abs(v{CI})')
    exp_bf16(a, AL, LAR, t)
    a.e(f'v_add_f32_dpp v{SIG}, v{SIG}, v{SIG} quad_perm:[1,0,3,2] row_mask:0xf bank_mask:0xf')
    a.e(f'v_mul_f32 v{AL}, v{AL}, v{DT}')
    a.e(f'v_mul_f32 v{BE}, v{AI}, v{DT}')
    a.e(f'v_add_f32_dpp v{SIG}, v{SIG}, v{SIG} quad_perm:[2,3,0,1] row_mask:0xf bank_mask:0xf')
    a.e(f'v_mul_f32 v{AL}, {fx(-1.4426950408889634)}, v{AL}')
    a.e(f'v_mul_f32 v{BE}, {fx(0.15915494309189535)}, v{BE}')
    a.e(f'v_add_f32_dpp v{SIG}, v{SIG}, v{SIG} row_half_mirror row_mask:0xf bank_mask:0xf')
    a.e(f'v_exp_f32 v{T0}, v{AL}')
    a.e(f'v_fract_f32 v{t}, v{BE}')
    a.e(f'v_add_f32_dpp v{SIG}, v{SIG}, v{SIG} row_ror:8 row_mask:0xf bank_mask:0xf')
    a.e(f'v_cos_f32 v{Z1}, v{t}')
    a.e(f'v_sin_f32 v{Z1+1}, v{t}')
    a.e(f'v_mov_b32 v{t2}, v{SIG}')
    a.e(f'v_mul_f32 v{T1}, 0x43000000, v{AL}')
    a.e(f'v_mul_f32 v{t}, 0x43000000, v{BE}')
    a.e(f'v_permlane16_swap_b32 v{SIG}, v{t2}')
    a.e(f'v_pk_mul_f32 v[{Z1}:{Z1+1}], v[{Z1}:{Z1+1}], v[{T0}:{T0+1}] op_sel:[0,0] op_sel_hi:[1,0]')
    a.e(f'v_add_f32 v{SIG}, v{SIG}, v{t2}')
    a.e(f'v_exp_f32 v{T1}, v{T1}')
    a.e(f'v_fract_f32 v{t}, v{t}')
    a.e(f'v_mov_b32 v{t2}, v{SIG}')
    a.e(f'v_cos_f32 v{Z128}, v{t}')
    a.e(f'v_sin_f32 v{Z128+1}, v{t}')
    a.e(f'v_permlane32_swap_b32 v{SIG}, v{t2}')
    cmul(a, Z2, Z1, Z1, Z2)
    a.e(f'v_add_f32 v{SIG}, v{SIG}, v{t2}')
    a.e(f'v_pk_mul_f32 v[{Z128}:{Z128+1}], v[{Z128}:{Z128+1}], v[{T1}:{T1+1}] op_sel:[0,0] op_sel_hi:[1,0]')
    a.e(f'v_add_f32 v{SIG}, {fx(1e-30)}, v{SIG}')
    cmul(a, Z4, Z2, Z2, Z4)
    a.e(f'v_rcp_f32 v{t}, v{SIG}')
    cmul(a, Z256, Z128, Z128, Z256)
    cmul(a, Z8, Z4, Z4, Z8)
    a.e(f'v_mul_f32 v{X0}, v{CR}, v{t}')
    a.e(f'v_mul_f32 v{X0+1}, v{CI}, v{t}')
    cmul(a, Z512, Z256, Z256, Z512)
    a.e(f's_mul_i32 s66, s{S_W}, {SCRW}')
    a.e(f's_add_u32 s66, s66, {L_SCR}')
    a.e('s_mov_b32 m0, s66')
    cmul(a, Z1024, Z512, Z512, Z1024)
    a.e(f'v_and_b32 v{t}, 15, v1')
    a.e(f'v_mul_u32_u24 v{t}, {SROW}, v{t}')
    a.e(f'v_lshrrev_b32 v{t2}, 4, v1')
    a.e(f'v_lshl_add_u32 v{t}, v{t2}, 4, v{t}')
    a.e(f'v_add_u32 v{VR}, s66, v{t}')
    cvi = [0]
    pend = []

    def flush(keep):
        while len(pend) > keep:
            cv, off = pend.pop(0)
            a.e(f'ds_write_addtid_b32 v{cv} offset:{off}')

    def put(off, r, neg):
        cv = CV[cvi[0] % 4]
        cvi[0] += 1
        a.e(f'v_cvt_pk_f16_f32 v{cv}, v{r}, {"-" if neg else ""}v{r+1}')
        flush(1)
        pend.append((cv, off))

    def putX(row, r):
        put(row * SROW, r, True)

    def putY(b, r):
        put((YROW + b) * SROW, r, False)

    a.e(f'v_mov_b32 v{VW}, 0x00003c00')
    pend.append((VW, YROW * SROW))
    putY(1, Z8)
    ychain = {'cur': Z8, 'b': 1}
    YA, YB = CC, 94

    def ystep():
        if ychain['b'] >= 15:
            return
        d = YA if ychain['cur'] != YA else YB
        cmul(a, d, ychain['cur'], Z8, d)
        ychain['b'] += 1
        ychain['cur'] = d
        putY(ychain['b'], d)

    putX(0, X0)
    cmul(a, T0, X0, Z128, T0)
    putX(8, T0)
    cur = X0
    for j in range(1, 8):
        d = CA if cur != CA else CB
        cmul(a, d, cur, Z1, d)
        ystep()
        putX(j, d)
        cmul(a, T0, d, Z128, T0)
        putX(8 + j, T0)
        cur = d
    cmul(a, CA, X0, Z256, CA)
    ystep()
    putX(16, CA)
    cmul(a, T0, CA, Z128, T0)
    putX(20, T0)
    cur = CA
    for j in range(1, 4):
        d = CA if cur != CA else CB
        cmul(a, d, cur, Z2, d)
        ystep()
        putX(16 + j, d)
        cmul(a, T0, d, Z128, T0)
        putX(20 + j, T0)
        cur = d
    if mid is not None:
        flush(0)
        mid()
        a.e(f's_mul_i32 s66, s{S_W}, {SCRW}')
        a.e(f's_add_u32 s66, s66, {L_SCR}')
        a.e('s_mov_b32 m0, s66')
    cmul(a, CA, X0, Z512, CA)
    ystep()
    putX(24, CA)
    cmul(a, CB, CA, Z4, CB)
    ystep()
    putX(25, CB)
    pa, pb = CA, CB
    na, nb = T0, T1
    for q in range(1, 4):
        cmul(a, na, pa, Z128, na)
        cmul(a, nb, pb, Z128, nb)
        ystep()
        putX(24 + 2 * q, na)
        putX(25 + 2 * q, nb)
        pa, pb, na, nb = na, nb, pa, pb
    cmul(a, CA, X0, Z1024, CA)
    putX(32, CA)
    cur = CA
    for q in range(1, 9):
        d = CA if cur != CA else CB
        cmul(a, d, cur, Z128, d)
        putX(32 + q, d)
        cur = d
    while ychain['b'] < 15:
        ystep()
    flush(0)
    FA = 96
    for k in range(4):
        a.e(f'ds_read_b128 v[{144+4*k}:{147+4*k}], v{VR} offset:{YROW*SROW+64*k}')
        for T in range(3):
            r = FA + 16 * T + 4 * k
            a.e(f'ds_read_b128 v[{r}:{r+3}], v{VR} offset:{16*T*SROW+64*k}')
    for k in range(4):
        a.e(f's_waitcnt lgkmcnt({4*(3-k)})')
        for T in range(3):
            r = FA + 16 * T + 4 * k
            cc = '0' if k == 0 else f'v[{DACC+4*T}:{DACC+4*T+3}]'
            a.e(f'v_mfma_f32_16x16x32_f16 v[{DACC+4*T}:{DACC+4*T+3}], v[{r}:{r+3}], v[{144+4*k}:{147+4*k}], {cc}')


def ktab_part1(a):
    a.e(f's_mul_i32 s66, s{S_W}, {SCRW}')
    a.e(f's_add_u32 s66, s66, {L_SCR}')
    a.e('v_lshl_add_u32 v90, v1, 4, s66')
    a.e(f's_lshl_b32 s67, s{S_W}, 2')
    a.e(f's_add_u32 s67, s67, {L_SIG}')
    a.e('v_mov_b32 v91, s67')
    a.e('s_mov_b64 exec, 1')
    a.e('ds_write_b32 v91, v52')
    a.e('ds_write_b32 v91, v53 offset:16')
    a.e('s_mov_b64 exec, -1')
    for c, DK in ((0, DK0), (1, DK1)):
        for T in range(3):
            for h in range(2):
                i = DK + 4 * T + 2 * h
                a.e(f'v_pk_mul_f32 v[{i}:{i+1}], v[{i}:{i+1}], v[52:53] op_sel:[0,{c}] op_sel_hi:[1,{c}]')
            a.e(f'ds_write_b128 v90, v[{DK+4*T}:{DK+4*T+3}] offset:{c*3072+T*1024}')
    a.e('v_mov_b32 v96, 0')
    a.e('v_mov_b32 v97, 0')
    a.e('v_mov_b32 v98, 0')
    a.e('v_mov_b32 v99, 0')
    a.e(f'v_mov_b32 v92, {L_KT + 1536}')
    a.e('ds_write_b32 v92, v96')
    a.e(f'ds_write_b32 v92, v96 offset:{KTCH}')
    a.e('v_lshlrev_b32 v92, 3, v1')
    a.e(f'ds_write_b64 v92, v[96:97] offset:{L_U}')
    a.e(f'ds_write_b64 v92, v[96:97] offset:{L_U + UCH}')
    a.e('s_waitcnt lgkmcnt(0)')
    a.e('s_barrier')


def ktab_part2(a):
    a.e(f'v_mov_b32 v91, {L_SIG}')
    a.e('ds_read_b128 v[44:47], v91')
    a.e('ds_read_b128 v[48:51], v91 offset:16')
    a.e(f's_and_b32 s67, s{S_W}, 1')
    a.e(f's_lshr_b32 s70, s{S_W}, 1')
    a.e('s_mul_i32 s71, s67, 3072')
    a.e('s_lshl_b32 s72, s70, 10')
    a.e('s_add_u32 s72, s72, s71')
    a.e(f's_add_u32 s72, s72, {L_SCR}')
    a.e(f's_add_u32 s71, s71, {L_SCR + 2048}')
    a.e('v_lshl_add_u32 v90, v1, 4, s72')
    a.e('v_lshl_add_u32 v91, v1, 4, s71')
    for wv in range(4):
        a.e(f'ds_read_b128 v[{96+4*wv}:{99+4*wv}], v90 offset:{wv*SCRW}')
    for wv in range(4):
        a.e(f'ds_read_b128 v[{112+4*wv}:{115+4*wv}], v91 offset:{wv*SCRW}')
    a.e('v_mov_b32 v128, 0')
    a.e('v_mov_b32 v129, 0')
    a.e('v_mov_b32 v130, 0')
    a.e('v_mov_b32 v131, 0')
    a.e('v_and_b32 v132, 15, v1')
    a.e(f'v_mul_u32_u24 v132, {KCOPY}, v132')
    a.e(f'v_add_u32 v132, {L_KC}, v132')
    a.e('ds_write_b128 v132, v[128:131] offset:4096')
    a.e('v_lshrrev_b32 v92, 4, v1')
    a.e('v_lshlrev_b32 v92, 7, v92')
    a.e('v_and_b32 v93, 15, v1')
    a.e('v_lshl_add_u32 v92, v93, 1, v92')
    a.e(f's_mul_i32 s71, s67, {KTCH}')
    a.e(f's_add_u32 s71, s71, {L_KT}')
    a.e('v_add_u32 v93, s71, v92')
    a.e('s_lshl_b32 s72, s70, 9')
    a.e('v_add_u32 v92, s72, v93')
    a.e('s_waitcnt lgkmcnt(9)')
    a.e('v_pk_add_f32 v[44:45], v[44:45], v[46:47]')
    a.e('v_pk_add_f32 v[48:49], v[48:49], v[50:51]')
    a.e('v_add_f32 v44, v44, v45')
    a.e('v_add_f32 v45, v48, v49')
    a.e('s_cmp_eq_u32 s67, 0')
    a.e('s_cselect_b64 vcc, -1, 0')
    a.e('v_pk_mul_f32 v[54:55], v[54:55], v[44:45]')
    a.e('v_cndmask_b32 v46, v45, v44, vcc')
    a.e('v_pk_add_f32 v[54:55], v[54:55], v[54:55]')
    a.e('v_rcp_f32 v46, v46')
    for jb, (base, va, off) in enumerate(((96, 92, 0), (112, 93, 1024))):
        a.e(f's_waitcnt lgkmcnt({5 if jb == 0 else 5})')
        for h in range(2):
            a.e(f'v_pk_add_f32 v[{base+2*h}:{base+2*h+1}], v[{base+2*h}:{base+2*h+1}], v[{base+4+2*h}:{base+5+2*h}]')
            a.e(f'v_pk_add_f32 v[{base+8+2*h}:{base+9+2*h}], v[{base+8+2*h}:{base+9+2*h}], v[{base+12+2*h}:{base+13+2*h}]')
        for h in range(2):
            a.e(f'v_pk_add_f32 v[{base+2*h}:{base+2*h+1}], v[{base+2*h}:{base+2*h+1}], v[{base+8+2*h}:{base+9+2*h}]')
        for h in range(2):
            a.e(f'v_pk_mul_f32 v[{base+2*h}:{base+2*h+1}], v[{base+2*h}:{base+2*h+1}], v[46:47] op_sel:[0,0] op_sel_hi:[1,0]')
        a.e(f'v_cvt_pk_f16_f32 v{base+4}, v{base}, v{base+1}')
        a.e(f'v_cvt_pk_f16_f32 v{base+5}, v{base+2}, v{base+3}')
        a.e(f'ds_write_b16 v{va}, v{base+4} offset:{off}')
        a.e(f'ds_write_b16_d16_hi v{va}, v{base+4} offset:{off+32}')
        a.e(f'ds_write_b16 v{va}, v{base+5} offset:{off+64}')
        a.e(f'ds_write_b16_d16_hi v{va}, v{base+5} offset:{off+96}')
    for e in range(15):
        src = 160 + e // 2
        if e % 2 == 0:
            a.e(f'v_and_b32 v{136+e}, 0xffff, v{src}')
        else:
            a.e(f'v_lshrrev_b32 v{136+e}, 16, v{src}')
    a.e('s_waitcnt lgkmcnt(0)')
    a.e('s_barrier')


def kcopies(a):
    AD = 136
    a.e('v_lshlrev_b32 v111, 4, v0')
    a.e(f'v_add_u32 v111, {L_KC}, v111')
    RR = [96, 112]
    for c in range(2):
        for e in range(15):
            a.e(f'ds_read_u16 v{RR[c]+e}, v{AD+e} offset:{L_KT + c*KTCH}')
    for c in range(2):
        R = RR[c]
        Da, Db, Oa, Ob = 56 + 0, 64, 72, 80
        if c == 1:
            Da, Db, Oa, Ob = 16, 24, 32, 40
        a.e(f's_waitcnt lgkmcnt({15 if c == 0 else 8})')
        for i in range(6):
            a.e(f'v_lshl_or_b32 v{Da+i}, v{R+2*i+1}, 16, v{R+2*i}')
            a.e(f'v_lshl_or_b32 v{Oa+i}, v{R+2*i+2}, 16, v{R+2*i+1}')
        if c == 1:
            a.e(f'v_add_u32 v110, {KCH}, v111')
        va = 111 if c == 0 else 110
        for s, r in ((0, Da), (1, Oa), (4, Da + 2), (5, Oa + 2)):
            a.e(f'ds_write_b128 v{va}, v[{r}:{r+3}] offset:{s*KCOPY}')
        for i in range(6):
            a.e(f'v_lshl_or_b32 v{Db+i}, v{R+2*i+3}, 16, v{R+2*i+2}')
            a.e(f'v_lshl_or_b32 v{Ob+i}, v{R+2*i+4}, 16, v{R+2*i+3}')
        for s, r in ((2, Db), (3, Ob), (6, Db + 2), (7, Ob + 2)):
            a.e(f'ds_write_b128 v{va}, v[{r}:{r+3}] offset:{s*KCOPY}')


def store_u(a, vm):
    a.e('v_lshlrev_b32 v2, 4, v0')
    a.e(f's_waitcnt vmcnt({vm})')
    a.e(f'ds_write_b128 v2, v[176:179] offset:{L_U + 512}')
    a.e(f'ds_write_b128 v2, v[180:183] offset:{L_U + UCH + 512}')
    a.e('s_waitcnt lgkmcnt(0)')
    a.e('s_barrier')


def phase_conv(a, hooks, pre_vm):
    hooks = list(hooks)
    ACC = 16
    FA = [[64 + 64 * s + 4 * i for i in range(8)] for s in range(2)]
    FB = [[96 + 64 * s + 4 * i for i in range(8)] for s in range(2)]
    VA, VB = 48, 49

    def loads(qq, s):
        out = []
        for i in range(8):
            out.append(f'ds_read_b128 v[{FB[s][i]}:{FB[s][i]+3}], v{VB} offset:{512*i + 64*(3-qq)}')
            out.append(f'ds_read_b128 v[{FA[s][i]}:{FA[s][i]+3}], v{VA} offset:{512*(7-i) + 64*(3-qq)}')
        return out

    for x in loads(0, 0):
        a.e(x)
    for qq in range(4):
        s = qq & 1
        nxt = loads(qq + 1, 1 - s) if qq < 3 else []
        n = 0
        for w in range(8):
            for c in range(w, 8):
                if n == 0:
                    a.e('s_waitcnt lgkmcnt(0)')
                cc = '0' if (qq == 0 and w == 0) else f'v[{ACC+4*c}:{ACC+4*c+3}]'
                a.e(f'v_mfma_f32_16x16x32_f16 v[{ACC+4*c}:{ACC+4*c+3}], v[{FA[s][w]}:{FA[s][w]+3}], v[{FB[s][c-w]}:{FB[s][c-w]+3}], {cc}')
                if nxt and n % 2 == 1:
                    a.e(nxt.pop(0))
                if hooks and n % 4 == 2:
                    hooks.pop(0)()
                n += 1
        assert not nxt
    assert not hooks
    stamp(a, 11)
    CP, TS = L_CP, 1280
    a.e('v_and_b32 v2, 15, v1')
    a.e('v_lshlrev_b32 v2, 4, v2')
    a.e('v_lshrrev_b32 v3, 4, v1')
    a.e('v_mul_u32_u24 v3, 320, v3')
    a.e('v_add_u32 v2, v2, v3')
    a.e(f's_mul_i32 s70, s{S_W}, {8*TS}')
    a.e(f's_add_u32 s70, s70, {CP}')
    a.e('v_add_u32 v2, s70, v2')
    a.e('s_barrier')
    for c in range(8):
        a.e(f'ds_write_b128 v2, v[{ACC+4*c}:{ACC+4*c+3}] offset:{c*TS}')
    a.e('v_lshrrev_b32 v2, 2, v1')
    a.e('v_lshlrev_b32 v2, 4, v2')
    a.e('v_and_b32 v3, 3, v1')
    a.e('v_mul_u32_u24 v3, 320, v3')
    a.e('v_add_u32 v2, v2, v3')
    a.e(f's_lshl_b32 s70, s{S_W}, 1')
    a.e(f's_mul_i32 s71, s70, {TS}')
    a.e(f's_add_u32 s71, s71, {CP}')
    a.e('v_add_u32 v2, s71, v2')
    a.e('s_lshl_b32 s71, s70, 9')
    a.e(f's_add_u32 s71, s71, {L_U + 512}')
    a.e('v_lshl_add_u32 v3, v1, 3, s71')
    a.e(f's_mul_i32 s71, s{S_P}, {AST}')
    a.e('s_lshl_b32 s72, s70, 10')
    a.e('s_add_u32 s71, s71, s72')
    a.e(f's_add_u32 s71, s71, {WS_AOUT}')
    a.e('v_lshl_add_u32 v4, v1, 4, s71')
    a.e('s_lshl_b32 s72, s69, 16')
    a.e('s_and_b32 s73, s69, 0xffff0000')
    a.e('v_mov_b32 v56, s72')
    a.e('v_mov_b32 v57, s73')
    a.e(f's_waitcnt lgkmcnt(0) vmcnt({pre_vm})')
    a.e('s_barrier')
    for q in range(2):
        P = 64 + 32 * q
        for ch in range(2):
            for hf in range(2):
                r = P + 8 * ch + 4 * hf
                a.e(f'ds_read_b128 v[{r}:{r+3}], v2 offset:{(2*ch+hf)*8*TS + q*TS}')
        for ch in range(2):
            a.e(f'ds_read_b64 v[{P+16+2*ch}:{P+17+2*ch}], v3 offset:{ch*UCH + q*512}')
    for q in range(2):
        P = 64 + 32 * q
        a.e(f's_waitcnt lgkmcnt({6 if q == 0 else 0})')
        for ch in range(2):
            y = P + 8 * ch
            T = 128 + 16 * ch
            u = P + 16 + 2 * ch
            for h in range(2):
                a.e(f'v_pk_add_f32 v[{y+2*h}:{y+2*h+1}], v[{y+2*h}:{y+2*h+1}], v[{y+4+2*h}:{y+5+2*h}]')
            for i in range(4):
                a.e(f'v_fma_mix_f32 v{T+i}, v{u+i//2}, v{56+ch}, 0 op_sel:[{i%2},0,0] op_sel_hi:[1,0,0]')
            for h in range(2):
                a.e(f'v_pk_mul_f32 v[{y+2*h}:{y+2*h+1}], v[{y+2*h}:{y+2*h+1}], v[54:55] op_sel:[0,{ch}] op_sel_hi:[1,{ch}]')
            for h in range(2):
                a.e(f'v_cvt_pk_bf16_f32 v{T+6+h}, v{T+2*h}, v{T+2*h+1}')
                a.e(f'v_cvt_pk_bf16_f32 v{T+4+h}, v{y+2*h}, v{y+2*h+1}')
            for h in range(2):
                a.e(f'v_lshlrev_b32 v{T+2*h}, 16, v{T+6+h}')
                a.e(f'v_and_b32 v{T+2*h+1}, 0xffff0000, v{T+6+h}')
                a.e(f'v_lshlrev_b32 v{y+2*h}, 16, v{T+4+h}')
                a.e(f'v_and_b32 v{y+2*h+1}, 0xffff0000, v{T+4+h}')
            for h in range(2):
                a.e(f'v_pk_add_f32 v[{y+2*h}:{y+2*h+1}], v[{y+2*h}:{y+2*h+1}], v[{T+2*h}:{T+2*h+1}]')
        O = 160 + 4 * q
        for i in range(4):
            a.e(f'v_cvt_pk_bf16_f32 v{O+i}, v{P+i}, v{P+8+i}')
        a.e(f'buffer_store_dwordx4 v[{O}:{O+3}], v4, {WSR}, 0 offen offset:{q*1024} sc1')


def conv_addr(a):
    a.e(f's_lshr_b32 s66, s{S_W}, 1')
    a.e(f's_and_b32 s67, s{S_W}, 1')
    a.e('v_and_b32 v2, 7, v1')
    a.e('v_sub_u32 v2, 7, v2')
    a.e(f'v_mul_u32_u24 v2, {KCOPY}, v2')
    a.e('v_lshrrev_b32 v3, 4, v1')
    a.e('v_bfe_u32 v4, v1, 3, 1')
    a.e('v_sub_u32 v4, v3, v4')
    a.e('v_lshl_add_u32 v2, v4, 4, v2')
    a.e(f's_mul_i32 s70, s66, {KCH}')
    a.e('s_lshl_b32 s71, s67, 8')
    a.e('s_sub_u32 s70, s70, s71')
    a.e(f's_add_u32 s70, s70, {L_KC + 16*253 - 512*7 - 64*3}')
    a.e('v_add_u32 v48, s70, v2')
    a.e('v_and_b32 v2, 15, v1')
    a.e('v_lshlrev_b32 v2, 5, v2')
    a.e('v_lshl_add_u32 v2, v3, 4, v2')
    a.e(f's_mul_i32 s70, s66, {UCH}')
    a.e('s_sub_u32 s70, s70, s71')
    a.e(f's_add_u32 s70, s70, {L_U + 480 - 64*3}')
    a.e('v_add_u32 v49, s70, v2')


def phase_p4(a):
    X = list(range(8, 16))
    A = 32
    xrow_addr(a)
    a.e(f's_mul_i32 s66, s{S_W}, {56*AST}')
    a.e(f's_lshl_b32 s67, s{S_B}, 5')
    a.e('s_add_u32 s66, s66, s67')
    a.e(f's_add_u32 s66, s66, {WS_AOUT}')
    a.e(f'v_mul_u32_u24 v4, {AST}, v1')
    a.e('v_add_u32 v4, s66, v4')
    a.e(f'v_mov_b32 v5, {OOB}')
    a.e('v_cndmask_b32 v4, v5, v4, vcc')
    a.e(f's_mul_i32 s66, s{S_W}, 224')
    a.e(f's_add_u32 s66, s66, {L_HT}')
    a.e('v_lshl_add_u32 v6, v1, 2, s66')
    for j in range(8):
        a.e(f'v_lshlrev_b32 v{64+2*j}, 16, v{X[j]}')
        a.e(f'v_and_b32 v{65+2*j}, 0xffff0000, v{X[j]}')
    lp, ld = a.lab('h2poll'), a.lab('h2done')
    a.e(f's_mov_b32 s{S_SPIN}, 0')
    a.e(f'{lp}:')
    a.e(f'buffer_load_dwordx4 v[{A}:{A+3}], v4, {WSR}, 0 offen sc1')
    a.e(f'buffer_load_dwordx4 v[{A+4}:{A+7}], v4, {WSR}, 0 offen offset:16 sc1')
    a.e('s_waitcnt vmcnt(0)')
    a.e(f'v_max3_u32 v40, v{A}, v{A+1}, v{A+2}')
    a.e(f'v_max3_u32 v41, v{A+3}, v{A+4}, v{A+5}')
    a.e(f'v_max3_u32 v40, v40, v{A+6}, v{A+7}')
    a.e('v_max_u32 v40, v40, v41')
    a.e('v_cmp_eq_u32 vcc, -1, v40')
    a.e(f's_cbranch_vccz {ld}')
    spin_tail(a, lp)
    a.e(f'{ld}:')
    stamp(a, 14)
    H = list(range(48, 56))
    for j in range(8):
        t = 40 + 2 * (j % 4)
        a.e(f'v_lshlrev_b32 v{t}, 16, v{A+j}')
        a.e(f'v_and_b32 v{t+1}, 0xffff0000, v{A+j}')
        a.e(f'v_pk_add_f32 v[{t}:{t+1}], v[{t}:{t+1}], v[{64+2*j}:{65+2*j}]')
        a.e(f'v_cvt_pk_bf16_f32 v{H[j]}, v{t}, v{t+1}')
    a.e('s_mov_b32 exec_hi, 0x00ffffff')
    for j in range(8):
        a.e(f'ds_write_b32 v6, v{H[j]} offset:{j*896}')
    a.e('s_mov_b32 exec_hi, -1')

    def hstore():
        a.e('v_lshlrev_b32 v7, 4, v0')
        a.e(f'ds_read_b128 v[56:59], v7 offset:{L_HT}')
        a.e(f'ds_read_b128 v[60:63], v7 offset:{L_HT + 4096}')
        return 2

    ln_stats(a, H, 16, L_RED0, 5, mid=hstore)
    a.e(f's_mul_i32 s66, s{S_B}, 7168')
    a.e(f's_add_u32 s66, s66, {WS_H}')
    a.e('v_add_u32 v6, s66, v7')
    a.e('v_add_u32 v7, 4096, v6')
    mask_lanes(a, 7, 192, 4, 'v0')
    a.e('s_waitcnt lgkmcnt(0)')
    a.e(f'buffer_store_dwordx4 v[56:59], v6, {WSR}, 0 offen sc1')
    a.e(f'buffer_store_dwordx4 v[60:63], v7, {WSR}, 0 offen sc1')
    bcast_stats(a, 16)
    a.e('s_mov_b32 exec_hi, 0x00ffffff')
    for j in range(8):
        t = 40 + 2 * (j % 4)
        norm_tok(a, j, H[j], t)
        a.e(f'v_cvt_pk_bf16_f32 v{H[j]}, v{t}, v{t+1}')
    a.e('s_mov_b32 exec_hi, -1')
    ln_stats(a, H, 16, L_RED1, 5)
    bcast_stats(a, 16)
    a.e(f's_mul_i32 s66, s{S_B}, 7168')
    a.e(f's_mul_i32 s67, s{S_W}, 1792')
    a.e('s_add_u32 s66, s66, s67')
    a.e(f's_add_u32 s66, s66, {WS_HH}')
    a.e('v_lshl_add_u32 v4, v1, 4, s66')
    a.e('v_add_u32 v5, 448, v4')
    a.e('v_cmp_gt_u32 vcc, 28, v1')
    a.e('v_cndmask_b32 v4, v5, v4, vcc')
    mask_lanes(a, 4, 56, 5)
    for j in range(8):
        norm_tok(a, j, H[j], 64 + 2 * j)
    O0, O1 = 80, 84
    for i in range(4):
        a.e(f'v_cvt_pk_bf16_f32 v{O0+i}, v{64+4*i}, v{66+4*i}')
        a.e(f'v_cvt_pk_bf16_f32 v{O1+i}, v{65+4*i}, v{67+4*i}')
    a.e('s_waitcnt vmcnt(0)')
    a.e('s_barrier')
    a.e(f'buffer_store_dwordx4 v[{O0}:{O0+3}], v4, {WSR}, 0 offen sc1')
    a.e(f'buffer_store_dwordx4 v[{O1}:{O1+3}], v4, {WSR}, 0 offen offset:448 sc1')


def w_setup(a):
    srd(a, S_W1, P_W1, W1BYTES)
    srd(a, S_W2, P_W2, W2BYTES)
    a.e('v_lshrrev_b32 v4, 3, v1')
    a.e('v_bfe_u32 v5, v1, 4, 1')
    a.e('v_lshlrev_b32 v5, 1, v5')
    a.e('v_and_b32 v6, 7, v1')
    a.e('v_xor_b32 v6, v6, v5')
    a.e('v_xor_b32 v7, 4, v6')
    for vd, rowbytes, tile, rows in ((V_D1, F * 2, S_I1, 512), (V_D2, L * 2, S_I2, 448)):
        a.e(f's_mov_b32 s66, {rowbytes}')
        a.e('v_mul_lo_u32 v5, v4, s66')
        a.e(f's_mul_i32 s67, s{S_W}, {rows*rowbytes}')
        a.e(f's_lshl_b32 s66, s{tile}, 7')
        a.e('s_add_u32 s67, s67, s66')
        a.e('v_add_u32 v5, s67, v5')
        for i in range(4):
            a.e(f'v_lshl_add_u32 v{vd+i}, v{6 + (i & 1)}, 4, v5')
            if i:
                a.e(f'v_add_u32 v{vd+i}, {i*(8*rowbytes - 1024)}, v{vd+i}')
    a.e('v_lshlrev_b32 v5, 12, v4')
    a.e('v_and_b32 v6, 7, v1')
    a.e(f'v_lshl_add_u32 v{V_QPF}, v6, 4, v5')
    a.e(f's_and_b32 s66, s{S_LOC}, 3')
    a.e('s_mul_i32 s66, s66, 448')
    a.e(f's_mul_i32 s67, s{S_W}, 112')
    a.e('s_add_u32 s66, s66, s67')
    a.e('s_lshl_b32 s66, s66, 12')
    a.e(f's_lshl_b32 s67, s{S_I2}, 7')
    a.e(f's_add_u32 s{S_QPF}, s66, s67')
    a.e('v_lshrrev_b32 v4, 4, v1')
    a.e('v_bfe_u32 v5, v1, 2, 2')
    a.e('v_lshl_add_u32 v5, v4, 3, v5')
    a.e('v_lshlrev_b32 v5, 7, v5')
    a.e('v_and_b32 v6, 1, v1')
    a.e('v_lshl_add_u32 v5, v6, 3, v5')
    a.e('v_bfe_u32 v6, v1, 1, 1')
    a.e('v_lshl_add_u32 v5, v6, 4, v5')
    a.e('v_bfe_u32 v6, v1, 3, 1')
    a.e('v_and_b32 v4, 1, v4')
    a.e('v_lshl_add_u32 v6, v4, 1, v6')
    a.e(f's_and_b32 s66, s{S_LOC}, 3')
    a.e(f's_lshr_b32 s67, s{S_LOC}, 2')
    a.e('s_lshl_b32 s67, s67, 1')
    a.e('s_lshl_b32 s70, s66, 2')
    a.e('s_add_u32 s70, s70, s67')
    a.e('s_and_b32 s70, s70, 15')
    a.e(f's_mul_i32 s{S_RW1}, s70, {32*F*2}')
    a.e(f's_mul_i32 s{S_RX1}, s70, {4*7168}')
    a.e('s_mul_i32 s66, s66, 7')
    a.e('s_lshr_b32 s66, s66, 1')
    a.e('s_add_u32 s66, s66, s67')
    for _ in range(2):
        a.e('s_cmp_ge_u32 s66, 14')
        a.e('s_cselect_b32 s67, 14, 0')
        a.e('s_sub_u32 s66, s66, s67')
    a.e(f's_mul_i32 s{S_RW2}, s66, {32*L*2}')
    a.e(f's_mul_i32 s{S_RX2}, s66, {4*7168}')
    a.e(f's_lshl_b32 s{S_SA}, s{S_W}, 14')
    a.e(f's_add_u32 s{S_SA}, s{S_SA}, {L_WA}')
    a.e(f's_mul_i32 s{S_SB}, s{S_W}, 20480')
    a.e(f's_add_u32 s{S_SB}, s{S_SB}, {L_WB}')
    for mu in range(4):
        a.e(f'v_xor_b32 v4, {mu}, v6')
        a.e('v_lshl_add_u32 v4, v4, 5, v5')
        a.e(f'v_add_u32 v{V_TA+mu}, s{S_SA}, v4')
        a.e(f'v_add_u32 v{V_TB+mu}, s{S_SB}, v4')


def rot_off(a, idx, sreg, n, unit):
    a.e(f's_add_u32 s70, s{sreg}, {idx*unit}')
    a.e(f's_cmp_ge_u32 s70, {n*unit}')
    a.e(f's_cselect_b32 s71, {n*unit}, 0')
    a.e('s_sub_u32 s70, s70, s71')


def slot(name):
    return (S_SA, V_TA, int(name[1])) if name[0] == 'A' else (S_SB, V_TB, int(name[1]))


def w_dma1(a, mat, slab, sl, i):
    sb, _, si = slot(sl)
    vd, srd_, rowbytes = (V_D1, S_W1, F * 2) if mat == 1 else (V_D2, S_W2, L * 2)
    if i == 0:
        rot_off(a, slab, S_RW1 if mat == 1 else S_RW2, 16 if mat == 1 else 14, 32 * rowbytes)
        a.e(f's_add_u32 m0, s{sb}, {si*4096}')
    a.e(f'buffer_load_dwordx4 v{vd + i}, s[{srd_}:{srd_+3}], s70 offen offset:{1024*i} lds')


def w_dma(a, mat, slab, sl):
    for i in range(4):
        w_dma1(a, mat, slab, sl, i)


def w_tr(a, slab, sl):
    _, vt, si = slot(sl)
    for mu in range(4):
        r = (slab * 4 + mu) * 4
        a.e(f'ds_read_b64_tr_b16 a[{r}:{r+1}], v{vt+mu} offset:{si*4096}')
        a.e(f'ds_read_b64_tr_b16 a[{r+2}:{r+3}], v{vt+mu} offset:{si*4096 + 512}')


def qpf_load(a, n):
    for _ in range(n):
        a.e(f'buffer_load_dwordx4 v[220:223], v{V_QPF}, s[{S_W2}:{S_W2+3}], s{S_QPF} offen')
        a.e(f's_add_u32 s{S_QPF}, s{S_QPF}, {8*L*2}')


ACC = 16
XS = 80
NS = 6
VMAX = 214
V_X0, V_X3 = 208, 209


def gemm_xaddr(a, ws_off, kblocks):
    a.e(f's_mul_i32 s66, s{S_W}, {kblocks*7168}')
    a.e(f's_mul_i32 s67, s{S_J}, 896')
    a.e('s_add_u32 s66, s66, s67')
    a.e(f's_add_u32 s66, s66, {ws_off}')
    a.e('v_lshrrev_b32 v4, 4, v1')
    a.e('v_mul_u32_u24 v4, 7168, v4')
    a.e('v_add_u32 v4, s66, v4')
    a.e('v_and_b32 v5, 15, v1')
    a.e(f'v_lshl_add_u32 v{V_X0}, v5, 4, v4')
    if OPT['x3oob']:
        a.e(f'v_add_u32 v{V_X3}, 768, v{V_X0}')
        a.e(f'v_mov_b32 v4, {OOB}')
        a.e('v_cmp_gt_u32 vcc, 8, v5')
        a.e(f'v_cndmask_b32 v{V_X3}, v4, v{V_X3}, vcc')
    else:
        a.e('v_and_b32 v5, 7, v1')
        a.e('v_lshl_add_u32 v4, v5, 4, v4')
        a.e(f'v_add_u32 v{V_X3}, 768, v4')


def gemm_xloads(a, kappa, gid):
    st = XS + 16 * (kappa % NS)
    out = []
    sreg, n = (S_RX1, 16) if gid == 1 else (S_RX2, 14)
    unit = 4 * 7168
    out.append(f's_add_u32 s70, s{sreg}, {kappa*unit}')
    out.append(f's_cmp_ge_u32 s70, {n*unit}')
    out.append(f's_cselect_b32 s71, {n*unit}, 0')
    out.append('s_sub_u32 s70, s70, s71')
    for nu in range(3):
        out.append(f'buffer_load_dwordx4 v[{st+4*nu}:{st+4*nu+3}], v{V_X0}, {WSR}, s70 offen offset:{256*nu} sc1')
    out.append(f'buffer_load_dwordx4 v[{st+12}:{st+15}], v{V_X3}, {WSR}, s70 offen sc1')
    return out


def gemm_main(a, nk, gid, tail_hook=None):
    nfl = OPT['nfl']
    w_is_a = gid == 1
    a.e(f'v_mov_b32 v{VMAX}, 0')
    extra = 0
    for k in range(nk):
        st = XS + 16 * (k % NS)
        rem = min(nfl - 1, nk - 1 - k)
        a.e(f's_waitcnt vmcnt({4*rem + extra})')
        if OPT['stamps'] and k in (0, 4, 8, 12):
            stamp(a, (44 if w_is_a else 51) + (0, 4, 8, 12).index(k))
        fill = gemm_xloads(a, k + nfl, gid) if k + nfl < nk else []
        if k + nfl == nk and tail_hook is not None:
            fill = []
            extra = tail_hook(fill)
        mx = [f'v_max3_u32 v{VMAX}, v{VMAX}, v{st+2*i}, v{st+2*i+1}' for i in range(8)]
        n = 0
        for mu in range(4):
            for nu in range(4):
                w = (k * 4 + mu) * 4
                x = st + 4 * nu
                if w_is_a:
                    acc = ACC + (mu * 4 + nu) * 4
                    A, B = f'a[{w}:{w+3}]', f'v[{x}:{x+3}]'
                else:
                    acc = ACC + (nu * 4 + mu) * 4
                    A, B = f'v[{x}:{x+3}]', f'a[{w}:{w+3}]'
                cc = '0' if k == 0 else f'v[{acc}:{acc+3}]'
                a.e(f'v_mfma_f32_16x16x32_bf16 v[{acc}:{acc+3}], {A}, {B}, {cc}')
                for _ in range(2):
                    if fill:
                        a.e(fill.pop(0))
                if not fill and mx and n >= 4:
                    a.e(mx.pop(0))
                n += 1
        assert not fill and not mx


def sentinel(a, ws_off, kblocks):
    lp, ld = a.lab('spoll'), a.lab('sdone')
    a.e(f's_mul_i32 s66, s{S_W}, {kblocks*7168}')
    a.e(f's_mul_i32 s67, s{S_J}, 896')
    a.e('s_add_u32 s66, s66, s67')
    a.e(f's_add_u32 s66, s66, {ws_off + 55*16 + 12}')
    a.e('v_mul_u32_u24 v4, 7168, v1')
    a.e('v_add_u32 v4, s66, v4')
    if kblocks < 64:
        mask_lanes(a, 4, kblocks, 5)
    a.e(f's_mov_b32 s{S_SPIN}, 0')
    a.e(f'{lp}:')
    a.e(f'buffer_load_dword v5, v4, {WSR}, 0 offen sc1')
    a.e('s_waitcnt vmcnt(0)')
    a.e('v_cmp_eq_u32 vcc, -1, v5')
    a.e(f's_cbranch_vccz {ld}')
    spin_tail(a, lp)
    a.e(f'{ld}:')


def gemm_poll_main(a, ws_off, kblocks, nk, gid, sb, tail_hook=None):
    lr, lok = a.lab('gretry'), a.lab('gok')
    gemm_xaddr(a, ws_off, kblocks)
    a.e(f's_mov_b32 s{S_RETRY}, 0')
    a.e(f'{lr}:')
    sentinel(a, ws_off, kblocks)
    stamp(a, sb)
    for k in range(OPT['nfl']):
        for x in gemm_xloads(a, k, gid):
            a.e(x)
    gemm_main(a, nk, gid, tail_hook)
    a.e(f'v_cmp_eq_u32 vcc, -1, v{VMAX}')
    a.e(f's_cbranch_vccz {lok}')
    a.e(f's_add_u32 s{S_RETRY}, s{S_RETRY}, 1')
    a.e(f's_cmp_lt_u32 s{S_RETRY}, {RETRY_MAX}')
    a.e(f's_cbranch_scc1 {lr}')
    a.e(f'{lok}:')


def write_partials(a):
    a.e('v_and_b32 v4, 15, v1')
    a.e(f'v_mul_u32_u24 v4, {PROW}, v4')
    a.e('v_lshrrev_b32 v5, 4, v1')
    a.e('v_lshl_add_u32 v4, v5, 4, v4')
    a.e(f's_mul_i32 s66, s{S_W}, {PARTW}')
    a.e(f's_add_u32 s66, s66, {L_PART}')
    a.e('v_add_u32 v4, s66, v4')
    a.e('s_barrier')
    for mt in range(4):
        for nt in range(4):
            acc = ACC + (mt * 4 + nt) * 4
            a.e(f'ds_write_b128 v4, v[{acc}:{acc+3}] offset:{nt*16*PROW + mt*64}')


def sum_partials(a, P):
    for h in range(4):
        a.e(f'v_pk_add_f32 v[{P+2*h}:{P+2*h+1}], v[{P+2*h}:{P+2*h+1}], v[{P+8+2*h}:{P+9+2*h}]')
        a.e(f'v_pk_add_f32 v[{P+16+2*h}:{P+17+2*h}], v[{P+16+2*h}:{P+17+2*h}], v[{P+24+2*h}:{P+25+2*h}]')
    for h in range(4):
        a.e(f'v_pk_add_f32 v[{P+2*h}:{P+2*h+1}], v[{P+2*h}:{P+2*h+1}], v[{P+16+2*h}:{P+17+2*h}]')


def b1_load(a):
    a.e(f's_lshl_b32 s67, s{S_I1}, 7')
    a.e(f's_lshl_b32 s70, s{S_W}, 5')
    a.e('s_add_u32 s67, s67, s70')
    a.e(f's_load_dwordx8 s[72:79], s[{P_B1}:{P_B1+1}], s67')


def gemm1_epilogue(a):
    write_partials(a)
    a.e(f'v_mul_u32_u24 v4, {PROW}, v1')
    a.e(f's_lshl_b32 s66, s{S_W}, 6')
    a.e(f's_add_u32 s66, s66, {L_PART}')
    a.e('v_add_u32 v4, s66, v4')
    g_store_addr(a, 5)
    C1 = 0.044715
    C2 = -2.0 * 0.7978845608028654 * 1.4426950408889634
    a.e(f'v_mov_b32 v100, {fx(C1*C2)}')
    a.e(f'v_mov_b32 v101, {fx(C1*C2)}')
    a.e(f'v_mov_b32 v102, {fx(C2)}')
    a.e(f'v_mov_b32 v103, {fx(C2)}')
    a.e('s_waitcnt lgkmcnt(0)')
    a.e('s_barrier')
    stamp(a, 24)
    for r in range(2):
        P = 16 + 32 * r
        for wv in range(4):
            a.e(f'ds_read_b128 v[{P+8*wv}:{P+8*wv+3}], v4 offset:{wv*PARTW + r*32}')
            a.e(f'ds_read_b128 v[{P+8*wv+4}:{P+8*wv+7}], v4 offset:{wv*PARTW + r*32 + 16}')
    for i in range(8):
        a.e(f's_lshl_b32 s{80+2*i}, s{72+i}, 16')
        a.e(f's_and_b32 s{81+2*i}, s{72+i}, 0xffff0000')
    for r in range(2):
        P = 16 + 32 * r
        T = 80
        a.e(f's_waitcnt lgkmcnt({8 if r == 0 else 0})')
        sum_partials(a, P)
        round_pairs(a, P, T, 8)
        for h in range(4):
            a.e(f'v_pk_add_f32 v[{P+2*h}:{P+2*h+1}], v[{P+2*h}:{P+2*h+1}], s[{80+8*r+2*h}:{81+8*r+2*h}]')
        round_pairs(a, P, T, 8)
        for h in range(4):
            a.e(f'v_pk_mul_f32 v[{P+8+2*h}:{P+9+2*h}], v[{P+2*h}:{P+2*h+1}], v[{P+2*h}:{P+2*h+1}]')
        for h in range(4):
            a.e(f'v_pk_fma_f32 v[{P+8+2*h}:{P+9+2*h}], v[{P+8+2*h}:{P+9+2*h}], v[100:101], v[102:103]')
        for h in range(4):
            a.e(f'v_pk_mul_f32 v[{P+8+2*h}:{P+9+2*h}], v[{P+8+2*h}:{P+9+2*h}], v[{P+2*h}:{P+2*h+1}]')
        for i in range(8):
            a.e(f'v_exp_f32 v{P+8+i}, v{P+8+i}')
        for h in range(4):
            a.e(f'v_pk_add_f32 v[{P+8+2*h}:{P+9+2*h}], v[{P+8+2*h}:{P+9+2*h}], 1.0 op_sel_hi:[1,0]')
        for i in range(8):
            a.e(f'v_rcp_f32 v{P+8+i}, v{P+8+i}')
        for h in range(4):
            a.e(f'v_pk_mul_f32 v[{P+2*h}:{P+2*h+1}], v[{P+2*h}:{P+2*h+1}], v[{P+8+2*h}:{P+9+2*h}]')
        O = 88 + 4 * r
        for h in range(4):
            a.e(f'v_cvt_pk_bf16_f32 v{O+h}, v{P+2*h}, v{P+2*h+1}')
        if r == 1:
            a.e('v_add_u32 v5, 7168, v5')
        a.e(f'buffer_store_dwordx4 v[{O}:{O+3}], v5, {WSR}, 0 offen sc1')


V_OUT, V_HAD, V_B2 = 210, 211, 212
V_HR = 196


def gemm2_addr(a):
    srd(a, S_T2, P_OUT, XBYTES)
    srd(a, S_T3, P_B2, L * 2)
    a.e('v_lshrrev_b32 v4, 3, v1')
    a.e('v_and_b32 v5, 7, v1')
    a.e(f's_lshl_b32 s66, s{S_W}, 4')
    a.e('v_add_u32 v4, s66, v4')
    a.e(f's_lshl_b32 s67, s{S_I2}, 6')
    a.e('v_add_u32 v7, s67, v4')
    a.e(f'v_mul_u32_u24 v{V_OUT}, 896, v7')
    a.e(f'v_lshl_add_u32 v{V_OUT}, v5, 4, v{V_OUT}')
    a.e(f's_mul_i32 s70, s{S_J}, 112')
    a.e(f'v_add_u32 v{V_OUT}, s70, v{V_OUT}')
    a.e(f'v_mov_b32 v6, {OOB}')
    a.e('v_cmp_gt_u32 vcc, 7, v5')
    a.e(f'v_cndmask_b32 v{V_OUT}, v6, v{V_OUT}, vcc')
    a.e(f'v_add_u32 v{V_HAD}, {WS_H}, v{V_OUT}')
    a.e(f'v_lshlrev_b32 v{V_B2}, 1, v7')


def gemm2_tail_loads(fill):
    fill.append(f'buffer_load_dwordx4 v[{V_HR}:{V_HR+3}], v{V_HAD}, {WSR}, 0 offen sc1')
    fill.append(f's_mov_b32 s70, {8*896}')
    fill.append(f'buffer_load_dwordx4 v[{V_HR+4}:{V_HR+7}], v{V_HAD}, {WSR}, s70 offen sc1')
    fill.append(f'buffer_load_ushort v{V_HR+8}, v{V_B2}, s[{S_T3}:{S_T3+3}], 0 offen')
    fill.append(f'buffer_load_ushort v{V_HR+9}, v{V_B2}, s[{S_T3}:{S_T3+3}], 0 offen offset:16')
    return 4


def gemm2_epilogue(a):
    write_partials(a)
    a.e('v_lshrrev_b32 v4, 3, v1')
    a.e('v_and_b32 v5, 7, v1')
    a.e(f's_lshl_b32 s66, s{S_W}, 4')
    a.e('v_add_u32 v4, s66, v4')
    a.e(f'v_mul_u32_u24 v6, {PROW}, v4')
    a.e('v_lshl_add_u32 v6, v5, 4, v6')
    a.e(f'v_add_u32 v6, {L_PART}, v6')
    a.e('s_waitcnt lgkmcnt(0)')
    a.e('s_barrier')
    stamp(a, 33)
    for r in range(2):
        P = 16 + 32 * r
        for wv in range(4):
            a.e(f'ds_read_b128 v[{P+8*wv}:{P+8*wv+3}], v6 offset:{wv*PARTW + r*8*PROW}')
            a.e(f'ds_read_b128 v[{P+8*wv+4}:{P+8*wv+7}], v6 offset:{wv*PARTW + r*8*PROW + 112}')
    a.e('s_waitcnt vmcnt(0)')
    for r in range(2):
        P = 16 + 32 * r
        T = 80
        H = V_HR + 4 * r
        a.e(f'v_lshlrev_b32 v106, 16, v{V_HR+8+r}')
        for i in range(4):
            a.e(f'v_lshlrev_b32 v{96+i}, 16, v{H+i}')
            a.e(f'v_and_b32 v{100+i}, 0xffff0000, v{H+i}')
        a.e(f's_waitcnt lgkmcnt({8 if r == 0 else 0})')
        sum_partials(a, P)
        round_pairs(a, P, T, 8)
        for h in range(4):
            a.e(f'v_pk_add_f32 v[{P+2*h}:{P+2*h+1}], v[{P+2*h}:{P+2*h+1}], v[106:107] op_sel:[0,0] op_sel_hi:[1,0]')
        round_pairs(a, P, T, 8)
        for h in range(4):
            a.e(f'v_pk_add_f32 v[{P+2*h}:{P+2*h+1}], v[{P+2*h}:{P+2*h+1}], v[{96+2*h}:{97+2*h}]')
        O = 88 + 4 * r
        for i in range(4):
            a.e(f'v_cvt_pk_bf16_f32 v{O+i}, v{P+i}, v{P+4+i}')
        if r == 1:
            a.e(f'v_add_u32 v{V_OUT}, {8*896}, v{V_OUT}')
        a.e(f'buffer_store_dwordx4 v[{O}:{O+3}], v{V_OUT}, s[{S_T2}:{S_T2+3}], 0 offen' + ['', ' sc1', ' nt', ' sc0 sc1', ' sc1 nt'][OPT['outsc']])


def build():
    a = Prog()
    name = NAME + '_kernel'
    lend = a.lab('end')
    a.raw(f'.globl {name}')
    a.raw('.p2align 8')
    a.raw(f'.type {name},@function')
    a.raw(f'{name}:')
    prologue(a, lend)
    lnc1, lnc2, lnc3, lnc5, lnc6 = [a.lab('noconv') for _ in range(5)]

    def skip_if_helper(l):
        a.e(f's_cmp_ge_u32 s{S_LOC}, 28')
        a.e(f's_cbranch_scc1 {l}')

    load_xrows(a)
    a.e(f's_add_u32 s66, s{P_WS}, {WS_EPOCH}')
    a.e(f's_addc_u32 s67, s{P_WS+1}, 0')
    a.e('s_load_dword s99, s[66:67], 0')
    poison_regs(a)
    skip_if_helper(lnc1)
    kgen_loads(a)
    load_gather_table(a, 'ktab_idx')
    w_setup(a)
    nt = 0
    if OPT['tlb'] & 2:
        tlb_touch(a)
        nt = 5
    flag_addr(a)
    a.e('s_waitcnt lgkmcnt(0)')
    a.e(f's_add_u32 s{S_TAG}, s99, 0x9e3779b9')
    a.e(f's_waitcnt vmcnt({10 + nt})')
    stamp(a, 2)
    clear_hh(a)
    clear_aout(a)
    ln_stats(a, list(range(8, 16)), 16, L_RED0, 5)
    stamp(a, 3)
    publish_xn(a)
    stamp(a, 4)
    a.e(f's_waitcnt vmcnt({8 + nt})')
    kgen_channel(a, 0, DK0)
    publish_flag(a)
    nb0 = OPT['wb0']
    for k in range(min(nb0, 3)):
        w_dma(a, 1, k, BS[k])
    stamp(a, 40)
    kgen_channel(a, 1, DK1, mid=(lambda: [w_dma(a, 1, k, BS[k]) for k in range(3, nb0)]) if nb0 > 3 else None)
    stamp(a, 5)
    if OPT['early']:
        flag_load(a)
        a.e('s_waitcnt vmcnt(1)')
    else:
        a.e('s_waitcnt vmcnt(0)')
    for k in range(nb0):
        w_tr(a, k, BS[k])
    ktab_part1(a)
    stamp(a, 6)
    a.e(f's_mov_b32 s{S_EARLY}, 0')
    lne = a.lab('notearly')
    if OPT['early']:
        a.e('s_waitcnt vmcnt(0)')
        a.e(f'v_cmp_ne_u32 vcc, s{S_TAG}, v{V_FV}')
        a.e(f's_cbranch_vccnz {lne}')
        load_u(a)
        a.e(f's_mov_b32 s{S_EARLY}, 1')
        a.e(f'{lne}:')
    qpf_load(a, OPT['w2pf_a'])
    ktab_part2(a)
    stamp(a, 7)
    conv_addr(a)
    kcopies(a)
    stamp(a, 8)
    lhave = a.lab('haveu')
    a.e(f's_cmp_lg_u32 s{S_EARLY}, 0')
    a.e(f's_cbranch_scc1 {lhave}')
    flag_poll(a)
    load_u(a)
    a.e('s_waitcnt vmcnt(0)')
    a.e(f'{lhave}:')
    stamp(a, 9)
    store_u(a, OPT['w2pf_a'])
    epoch_update(a)
    clear_g(a)
    qpf_load(a, OPT['w2pf_b'])
    stamp(a, 10)
    hk = []
    for k in range(4):
        for i in range(4):
            hk.append(lambda k=k, i=i: w_dma1(a, 1, nb0 + k, AS[k], i))
            hk.append(lambda: None)
    phase_conv(a, hk, 0)
    stamp(a, 12)
    for k in range(4):
        w_tr(a, nb0 + k, AS[k])
    a.e('s_waitcnt lgkmcnt(0)')
    a.e('s_barrier')
    rest = list(range(nb0 + 4, 16))
    rest_slots = (BS + AS)[:len(rest)]
    for k, sl in zip(rest, rest_slots):
        w_dma(a, 1, k, sl)
    stamp(a, 13)
    a.e(f's_branch {lnc2}')
    a.e(f'{lnc1}:')
    code_prefetch(a, name, 'kcode_end')
    w_setup(a)
    if OPT['tlb'] & 1:
        tlb_touch(a)
    flag_addr(a)
    a.e('s_waitcnt lgkmcnt(0)')
    a.e(f's_add_u32 s{S_TAG}, s99, 0x9e3779b9')
    a.e(f's_waitcnt vmcnt({7 if OPT["tlb"] & 1 else 2})')
    clear_hh(a)
    ln_stats(a, list(range(8, 16)), 16, L_RED0, 5)
    publish_xn(a)
    publish_flag(a)
    qpf_load(a, OPT['w2pf_a'] + OPT['w2pf_b'])
    stamp(a, 41)
    flag_poll(a)
    a.e('s_barrier')
    stamp(a, 42)
    a.e(f'{lnc2}:')
    phase_p4(a)
    stamp(a, 20)
    gemm2_addr(a)
    skip_if_helper(lnc3)
    b1_load(a)
    for k, sl in zip(rest, rest_slots):
        w_tr(a, k, sl)
    a.e('s_waitcnt lgkmcnt(0)')
    for k in range(5):
        w_dma(a, 2, k, BS[k])
    stamp(a, 21)
    gemm_poll_main(a, WS_HH, 64, 16, 1, 22)
    stamp(a, 23)
    if OPT['h4early']:
        for k in range(5):
            w_tr(a, k, BS[k])
        a.e('s_waitcnt lgkmcnt(0)')
        for k in range(5, 8):
            w_dma(a, 2, k, BS[k - 5])
        gemm1_epilogue(a)
        stamp(a, 25)
        a.e('s_barrier')
        for k in range(8, 10):
            w_dma(a, 2, k, BS[k - 5])
        for k in range(10, 14):
            w_dma(a, 2, k, AS[k - 10])
        a.e('s_waitcnt vmcnt(26)')
        for k in range(5, 8):
            w_tr(a, k, BS[k - 5])
        a.e('s_waitcnt vmcnt(16)')
        for k in range(8, 10):
            w_tr(a, k, BS[k - 5])
        a.e('s_waitcnt vmcnt(0)')
        for k in range(10, 14):
            w_tr(a, k, AS[k - 10])
        a.e('s_waitcnt lgkmcnt(0)')
        a.e(f's_branch {lnc6}')
    else:
        gemm1_epilogue(a)
        stamp(a, 25)
        for k in range(5):
            w_tr(a, k, BS[k])
        a.e('s_waitcnt lgkmcnt(0)')
        a.e('s_barrier')
        a.e(f's_branch {lnc5}')
    a.e(f'{lnc3}:')
    for k in range(5):
        w_dma(a, 2, k, BS[k])
    a.e('s_waitcnt vmcnt(0)')
    for k in range(5):
        w_tr(a, k, BS[k])
    a.e('s_waitcnt lgkmcnt(0)')
    a.e(f'{lnc5}:')
    for k in range(5, 10):
        w_dma(a, 2, k, BS[k - 5])
    for k in range(10, 14):
        w_dma(a, 2, k, AS[k - 10])
    a.e('s_waitcnt vmcnt(16)')
    for k in range(5, 10):
        w_tr(a, k, BS[k - 5])
    a.e('s_waitcnt vmcnt(0)')
    for k in range(10, 14):
        w_tr(a, k, AS[k - 10])
    a.e('s_waitcnt lgkmcnt(0)')
    a.e(f'{lnc6}:')
    stamp(a, 30)
    gemm_poll_main(a, WS_G, 56, 14, 2, 31, gemm2_tail_loads)
    stamp(a, 32)
    gemm2_epilogue(a)
    stamp_clk(a, 61)
    stamp(a, 63)
    stamp_flush(a)
    a.e(f'{lend}:')
    a.e('s_endpgm')
    a.raw('kcode_end:')
    emit_gather_table(a, 'ktab_idx')
    nn = a.fast_insert_nops()
    head = f'; @launch grid=(256,1,1) block=(256,1,1) lds={LDS_BYTES}\n'
    head += '.amdgcn_target "amdgcn-amd-amdhsa--gfx950"\n.text\n'
    tail = '.section .rodata,"a"\n.p2align 6\n' + descriptor(name)
    if OPT['align']:
        nal = a.align8(head, tail)
        sys.stderr.write(f'alignment: {nal}\n')
    sys.stderr.write(f'instructions: {a.count()}, nops inserted: {nn}\n')
    return head + a.text() + tail


if __name__ == '__main__':
    out = sys.argv[1]
    for arg in sys.argv[2:]:
        if arg == 'stamps':
            OPT['stamps'] = True
        elif arg == 'dbg':
            OPT['stamps'] = True
            OPT['dbgsel'] = [0, 1, 2, 4, 8, 9, 12, 13, 14, 20, 21, 23, 25, 30, 32, 63]
        elif '=' in arg:
            k, v = arg.split('=')
            OPT[k] = int(v)
    open(out, 'w').write(build())
```

```python
import sys
import gen
from gen import (Prog, NAME, L, D, F, XBYTES, PBYTES, W1BYTES, W2BYTES, OOB, fx, srd, reduce16, cmul, exp_bf16,
                 gather_table, emit_gather_table, descriptor, round_pairs, norm_tok, bcast_stats)

OPT = dict(sched=2, qa=7, qb=7, tlb=3, outsc=0, x3oob=1, h4early=1, wb0=3, xnb=1, stamps=False, dbgsel=None, w2pf_a=10, w2pf_b=4, nfl=3, early=True, align=True, hlds=True)

WS_FLAG = 0x4000
WS_EPOCH = 0x9000
WS_AOUT = 0x10000
AST = 8448
WS_H = 0x200000
WS_HH = 0x400000
WS_G = 0x600000
WS_DBG = 0x800000
WS_XN = 0xA00000
XCS = 4352
XPS = 2 * XCS
WS_USED = 0x1000000

L_RED0, L_RED1, L_SIG, L_KT = 0, 256, 512, 640
KTCH = 1600
L_U = L_KT + 2 * KTCH
UCH = 4608
L_SCR = L_U + 2 * UCH
SROW = 272
YROW = 41
SCRW = 57 * SROW
L_KC = 82688
KCOPY = 4160
KCH = 8 * KCOPY
L_CP = L_KC
LDS_BYTES = 160 * 1024
L_WA, L_WB = 13056, 78592
L_PART = 1024
PROW = 272
PARTW = 64 * PROW
L_HT = 1024

S_WS, S_X = 4, 8
S_T0, S_T1, S_T2, S_T3 = 12, 16, 20, 24
S_W1, S_W2 = 12, 16
S_W, S_XCD, S_LOC, S_B, S_P, S_J, S_I1, S_I2 = 28, 29, 30, 31, 32, 33, 34, 35
P_X, P_LAR, P_AI, P_CR, P_CI, P_LDT, P_DSK = 36, 38, 40, 42, 44, 46, 48
P_W1, P_B1, P_W2, P_B2, P_OUT, P_DBG, P_WS = 52, 54, 56, 58, 60, 62, 64
S_SA, S_SB = 50, 51
S_RW1, S_RX1, S_RW2, S_RX2 = 38, 39, 40, 41
S_QPF = 42
S_EARLY = 43
S_TAG, S_SPIN, S_RETRY = 96, 97, 98
V_D1, V_D2, V_TA, V_TB = 224, 228, 244, 248
V_QPF = 232
SPIN_MAX, RETRY_MAX = 4000, 20
AS = ['A0', 'A1', 'A2', 'A3']
BS = ['B0', 'B1', 'B2', 'B3', 'B4']
WSR = f's[{S_WS}:{S_WS+3}]'

assert (gen.S_W, gen.S_B, gen.S_WS) == (S_W, S_B, S_WS)


def stamp(a, idx):
    if not OPT['stamps']:
        return
    sel = OPT['dbgsel']
    if sel is not None:
        if idx not in sel:
            return
        idx = sel.index(idx)
    a.e('s_memrealtime s[100:101]')
    a.e('s_waitcnt lgkmcnt(0)')
    a.e(f'v_writelane_b32 v255, s100, {idx}')


def stamp_clk(a, idx):
    if not OPT['stamps'] or OPT['dbgsel'] is not None:
        return
    a.e('s_memtime s[100:101]')
    a.e('s_waitcnt lgkmcnt(0)')
    a.e(f'v_writelane_b32 v255, s100, {idx}')


def stamp_flush(a):
    if not OPT['stamps']:
        return
    l = a.lab('nost')
    a.e(f's_cmp_lg_u32 s{S_W}, 0')
    a.e(f's_cbranch_scc1 {l}')
    if OPT['dbgsel'] is not None:
        a.e('v_not_b32 v253, v255')
        a.e('v_cmp_eq_u32 vcc, 0, v1')
        a.e('v_cndmask_b32 v255, v255, v253, vcc')
        a.e('v_lshlrev_b32 v254, 2, v1')
        a.e('s_mov_b64 exec, 0xffff')
        a.e(f'global_atomic_umax v254, v255, s[{P_DBG}:{P_DBG+1}]')
        a.e('s_mov_b64 exec, -1')
    else:
        a.e('s_lshl_b32 s66, s2, 8')
        a.e(f's_add_u32 s66, s66, {WS_DBG}')
        a.e('v_lshl_add_u32 v254, v1, 2, s66')
        a.e(f'buffer_store_dword v255, v254, {WSR}, 0 offen')
    a.e(f'{l}:')


def spin_tail(a, lp):
    a.e(f's_add_u32 s{S_SPIN}, s{S_SPIN}, 1')
    a.e(f's_cmp_lt_u32 s{S_SPIN}, {SPIN_MAX}')
    a.e(f's_cbranch_scc1 {lp}')


def mask_lanes(a, v, n, tmp, src='v1'):
    a.e(f'v_mov_b32 v{tmp}, {OOB}')
    a.e(f'v_cmp_gt_u32 vcc, {n}, {src}')
    a.e(f'v_cndmask_b32 v{v}, v{tmp}, v{v}, vcc')


def prologue(a, lend):
    a.e('s_cmp_ge_u32 s2, 256')
    a.e(f's_cbranch_scc1 {lend}')
    if OPT['stamps']:
        a.e('v_mov_b32 v255, 0')
        stamp(a, 0)
        stamp_clk(a, 60)
    a.e('s_load_dwordx16 s[36:51], s[0:1], 0')
    a.e('s_load_dwordx8 s[52:59], s[0:1], 64')
    a.e('s_load_dwordx4 s[60:63], s[0:1], 96')
    a.e('s_load_dwordx2 s[64:65], s[0:1], 112')
    a.e('v_and_b32 v1, 63, v0')
    a.e('v_lshrrev_b32 v2, 6, v0')
    a.e(f's_and_b32 s{S_XCD}, s2, 7')
    a.e(f'v_readfirstlane_b32 s{S_W}, v2')
    a.e(f's_lshr_b32 s{S_LOC}, s2, 3')
    a.e(f's_lshl_b32 s{S_B}, s{S_XCD}, 5')
    a.e(f's_add_u32 s{S_B}, s{S_B}, s{S_LOC}')
    a.e(f's_mul_i32 s{S_P}, s{S_XCD}, 28')
    a.e(f's_add_u32 s{S_P}, s{S_P}, s{S_LOC}')
    a.e(f's_and_b32 s{S_J}, s{S_XCD}, 1')
    a.e(f's_lshl_b32 s{S_J}, s{S_J}, 2')
    a.e(f's_and_b32 s3, s{S_LOC}, 3')
    a.e(f's_add_u32 s{S_J}, s{S_J}, s3')
    a.e(f's_lshr_b32 s3, s{S_XCD}, 1')
    a.e(f's_lshr_b32 s66, s{S_LOC}, 2')
    a.e(f's_mul_i32 s{S_I1}, s3, 7')
    a.e(f's_add_u32 s{S_I1}, s{S_I1}, s66')
    a.e(f's_lshl_b32 s{S_I2}, s3, 3')
    a.e(f's_add_u32 s{S_I2}, s{S_I2}, s66')
    a.e('s_waitcnt lgkmcnt(0)')
    srd(a, S_X, P_X, XBYTES)
    srd(a, S_WS, P_WS, WS_USED)
    stamp(a, 1)


def xrow_addr(a):
    a.e(f's_mul_i32 s66, s{S_W}, 224')
    a.e(f's_mul_i32 s67, s{S_B}, {8*896}')
    a.e('s_add_u32 s66, s66, s67')
    a.e('v_lshl_add_u32 v2, v1, 2, s66')
    mask_lanes(a, 2, 56, 3)
    a.e('v_add_u32 v3, 4480, v2')


def load_xrows(a):
    xrow_addr(a)
    for j in range(8):
        v, o = (2, j * 896) if j < 5 else (3, (j - 5) * 896)
        a.e(f'buffer_load_dword v{8+j}, v{v}, s[{S_X}:{S_X+3}], 0 offen offset:{o}')


def ln_stats(a, X, T, red, vt, mid=None):
    a.e('s_mov_b32 s66, 0x3f803f80')
    for j in range(8):
        a.e(f'v_dot2_f32_bf16 v{T+j}, v{X[j]}, s66, 0')
        a.e(f'v_dot2_f32_bf16 v{T+8+j}, v{X[j]}, v{X[j]}, 0')
    a.e(f'v_lshlrev_b32 v{vt}, 2, v1')
    a.e(f'v_and_b32 v{vt}, 0xf0, v{vt}')
    a.e(f's_lshl_b32 s66, s{S_W}, 2')
    a.e(f'v_add_u32 v{vt}, s66, v{vt}')
    reduce16(a, [T + i for i in range(16)])
    a.e('s_mov_b32 exec_lo, 0x11111111')
    a.e('s_mov_b32 exec_hi, 0x11111111')
    a.e(f'ds_write_b32 v{vt}, v{T} offset:{red}')
    a.e('s_mov_b64 exec, -1')
    a.e(f'v_and_b32 v{vt}, 7, v1')
    a.e(f'v_lshlrev_b32 v{vt}, 4, v{vt}')
    a.e('s_waitcnt lgkmcnt(0)')
    a.e('s_barrier')
    a.e(f'ds_read_b128 v[{T}:{T+3}], v{vt} offset:{red}')
    a.e(f'ds_read_b128 v[{T+4}:{T+7}], v{vt} offset:{red+128}')
    n_mid = mid() if mid else 0
    a.e(f's_waitcnt lgkmcnt({1 + n_mid})')
    a.e(f'v_pk_add_f32 v[{T}:{T+1}], v[{T}:{T+1}], v[{T+2}:{T+3}]')
    a.e(f's_waitcnt lgkmcnt({n_mid})')
    a.e(f'v_pk_add_f32 v[{T+4}:{T+5}], v[{T+4}:{T+5}], v[{T+6}:{T+7}]')
    a.e(f'v_add_f32 v{T}, v{T}, v{T+1}')
    a.e(f'v_add_f32 v{T+4}, v{T+4}, v{T+5}')
    a.e(f'v_mul_f32 v{T}, {fx(1.0/448)}, v{T}')
    a.e(f'v_mul_f32 v{T+4}, {fx(1.0/448)}, v{T+4}')
    a.e(f'v_fma_f32 v{T+4}, -v{T}, v{T}, v{T+4}')
    a.e(f'v_max_f32 v{T+4}, 0, v{T+4}')
    a.e(f'v_cvt_pk_bf16_f32 v{T+4}, v{T+4}, v{T+4}')
    a.e(f'v_lshlrev_b32 v{T+4}, 16, v{T+4}')
    a.e(f'v_add_f32 v{T+4}, {fx(1e-5)}, v{T+4}')
    a.e(f'v_cvt_pk_bf16_f32 v{T+4}, v{T+4}, v{T+4}')
    a.e(f'v_lshlrev_b32 v{T+4}, 16, v{T+4}')
    a.e(f'v_sqrt_f32 v{T+4}, v{T+4}')
    a.e(f'v_cvt_pk_bf16_f32 v{T}, v{T}, v{T+4}')


def poison_regs(a):
    for r in range(216, 220):
        a.e(f'v_mov_b32 v{r}, -1')


def clear_hh(a):
    a.e(f's_mul_i32 s66, s{S_B}, 7168')
    a.e(f's_add_u32 s66, s66, {WS_HH}')
    a.e('v_lshl_add_u32 v4, v0, 4, s66')
    a.e('v_add_u32 v5, 4096, v4')
    mask_lanes(a, 5, 192, 6, 'v0')
    a.e(f'buffer_store_dwordx4 v[216:219], v4, {WSR}, 0 offen sc1')
    a.e(f'buffer_store_dwordx4 v[216:219], v5, {WSR}, 0 offen sc1')


def clear_aout(a):
    a.e(f's_mul_i32 s66, s{S_P}, {AST}')
    a.e(f's_add_u32 s66, s66, {WS_AOUT}')
    a.e('v_lshl_add_u32 v4, v0, 4, s66')
    a.e('v_add_u32 v5, 4096, v4')
    a.e(f'buffer_store_dwordx4 v[216:219], v4, {WSR}, 0 offen sc1')
    a.e(f'buffer_store_dwordx4 v[216:219], v5, {WSR}, 0 offen sc1')


def g_store_addr(a, vd):
    a.e(f's_lshl_b32 s66, s{S_I1}, 3')
    a.e(f's_lshl_b32 s70, s{S_W}, 1')
    a.e('s_add_u32 s66, s66, s70')
    a.e('s_mul_i32 s66, s66, 7168')
    a.e(f's_mul_i32 s70, s{S_J}, 896')
    a.e('s_add_u32 s66, s66, s70')
    a.e(f's_add_u32 s66, s66, {WS_G}')
    a.e(f'v_lshl_add_u32 v{vd}, v1, 4, s66')
    mask_lanes(a, vd, 56, 6)


def clear_g(a):
    g_store_addr(a, 4)
    a.e('v_add_u32 v5, 7168, v4')
    a.e(f'buffer_store_dwordx4 v[216:219], v4, {WSR}, 0 offen sc1')
    a.e(f'buffer_store_dwordx4 v[216:219], v5, {WSR}, 0 offen sc1')


def publish_xn(a):
    bcast_stats(a, 16)
    for j in range(8):
        d = 64 + 2 * j
        t = 48 + j
        a.e(f'v_lshlrev_b32 v{d}, 16, v{8+j}')
        a.e(f'v_and_b32 v{d+1}, 0xffff0000, v{8+j}')
        a.e(f'v_pk_add_f32 v[{d}:{d+1}], v[{d}:{d+1}], s[{72+2*j}:{73+2*j}] op_sel:[0,0] op_sel_hi:[1,0] neg_lo:[0,1] neg_hi:[0,1]')
        a.e(f'v_cvt_pk_bf16_f32 v{t}, v{d}, v{d+1}')
        a.e(f'v_lshlrev_b32 v{d}, 16, v{t}')
        a.e(f'v_and_b32 v{d+1}, 0xffff0000, v{t}')
        a.e(f'v_pk_mul_f32 v[{d}:{d+1}], v[{d}:{d+1}], s[{72+2*j}:{73+2*j}] op_sel:[0,1] op_sel_hi:[1,1]')
        a.e(f'v_cvt_pk_bf16_f32 v{t}, v{d}, v{d+1}')
        a.e(f'v_lshlrev_b32 v{d}, 16, v{t}')
        a.e(f'v_and_b32 v{d+1}, 0xffff0000, v{t}')
    for i in range(4):
        a.e(f'v_cvt_pk_f16_f32 v{80+i}, v{64+4*i}, v{66+4*i}')
        a.e(f'v_cvt_pk_f16_f32 v{84+i}, v{65+4*i}, v{67+4*i}')
    if OPT['xnb']:
        a.e(f's_mul_i32 s66, s{S_W}, {56*16}')
        a.e(f's_mul_i32 s67, s{S_B}, 7168')
        a.e('s_add_u32 s66, s66, s67')
        a.e(f's_add_u32 s66, s66, {WS_XN}')
        a.e('v_lshl_add_u32 v4, v1, 4, s66')
        mask_lanes(a, 4, 56, 5)
        a.e('v_add_u32 v5, 3584, v4')
    else:
        a.e(f's_mul_i32 s66, s{S_W}, {56*XPS}')
        a.e(f's_lshl_b32 s67, s{S_B}, 4')
        a.e('s_add_u32 s66, s66, s67')
        a.e(f's_add_u32 s66, s66, {WS_XN}')
        a.e(f'v_mul_u32_u24 v4, {XPS}, v1')
        a.e('v_add_u32 v4, s66, v4')
        mask_lanes(a, 4, 56, 5)
        a.e(f'v_add_u32 v5, {XCS}, v4')
    a.e(f'buffer_store_dwordx4 v[80:83], v4, {WSR}, 0 offen sc1')
    a.e(f'buffer_store_dwordx4 v[84:87], v5, {WSR}, 0 offen sc1')


def publish_flag(a, vm=0):
    a.e(f's_waitcnt vmcnt({vm})')
    a.e('s_barrier')
    l = a.lab('noflag')
    a.e(f's_cmp_lg_u32 s{S_W}, 0')
    a.e(f's_cbranch_scc1 {l}')
    a.e(f's_lshl_b32 s66, s{S_B}, 6')
    a.e(f's_add_u32 s66, s66, {WS_FLAG}')
    a.e('v_mov_b32 v2, s66')
    a.e(f'v_mov_b32 v3, s{S_TAG}')
    a.e('s_mov_b64 exec, 1')
    a.e(f'buffer_store_dword v3, v2, {WSR}, 0 offen sc1')
    a.e('s_mov_b64 exec, -1')
    a.e(f'{l}:')


V_FA, V_FV = 233, 234


def flag_addr(a):
    a.e(f'v_lshlrev_b32 v{V_FA}, 6, v0')
    a.e(f'v_add_u32 v{V_FA}, {WS_FLAG}, v{V_FA}')


def flag_load(a):
    a.e(f'buffer_load_dword v{V_FV}, v{V_FA}, {WSR}, 0 offen sc1')


def flag_poll(a):
    lp, ld = a.lab('fpoll'), a.lab('fdone')
    a.e(f's_mov_b32 s{S_SPIN}, 0')
    a.e(f'{lp}:')
    flag_load(a)
    a.e('s_waitcnt vmcnt(0)')
    a.e(f'v_cmp_ne_u32 vcc, s{S_TAG}, v{V_FV}')
    a.e(f's_cbranch_vccz {ld}')
    spin_tail(a, lp)
    a.e(f'{ld}:')


def load_u(a):
    if OPT['xnb']:
        a.e(f's_lshl_b32 s66, s{S_P}, 4')
        a.e(f's_add_u32 s66, s66, {WS_XN}')
        a.e('v_mul_u32_u24 v2, 7168, v0')
        a.e('v_add_u32 v2, s66, v2')
        a.e('v_add_u32 v3, 3584, v2')
    else:
        a.e(f's_mul_i32 s66, s{S_P}, {XPS}')
        a.e(f's_add_u32 s66, s66, {WS_XN}')
        a.e('v_lshl_add_u32 v2, v0, 4, s66')
        a.e(f'v_add_u32 v3, {XCS}, v2')
    a.e(f'buffer_load_dwordx4 v[176:179], v2, {WSR}, 0 offen sc1')
    a.e(f'buffer_load_dwordx4 v[180:183], v3, {WSR}, 0 offen sc1')


def epoch_update(a):
    le = a.lab('noep')
    a.e('s_cmp_lg_u32 s2, 0')
    a.e(f's_cbranch_scc1 {le}')
    a.e(f'v_mov_b32 v2, {WS_EPOCH}')
    a.e(f'v_mov_b32 v3, s{S_TAG}')
    a.e('s_mov_b64 exec, 1')
    a.e(f'buffer_store_dword v3, v2, {WSR}, 0 offen sc1')
    a.e('s_mov_b64 exec, -1')
    a.e(f'{le}:')


def code_prefetch(a, lstart, lend_):
    lp = a.lab('pcp')
    a.e('s_getpc_b64 s[74:75]')
    a.e(f'{lp}:')
    a.e(f's_sub_u32 s74, s74, {lp}-{lstart}')
    a.e('s_subb_u32 s75, s75, 0')
    a.e('v_lshlrev_b32 v4, 6, v0')
    a.e(f's_mov_b32 s76, {lend_}-{lstart}-4')
    a.e('v_add_u32 v5, 16384, v4')
    a.e('v_min_u32 v4, s76, v4')
    a.e('v_min_u32 v5, s76, v5')
    a.e('global_load_dword v220, v4, s[74:75]')
    a.e('global_load_dword v220, v5, s[74:75]')


def tlb_touch(a):
    a.e('v_lshlrev_b32 v4, 21, v1')
    a.e(f'buffer_load_dword v220, v4, s[{S_W1}:{S_W1+3}], 0 offen')
    a.e(f'buffer_load_dword v220, v4, s[{S_W2}:{S_W2+3}], 0 offen')
    a.e(f'buffer_load_dword v220, v4, {WSR}, 0 offen')
    srd(a, S_T2, P_OUT, XBYTES)
    a.e(f'buffer_load_dword v220, v4, s[{S_T2}:{S_T2+3}], 0 offen')
    srd(a, S_T3, P_B2, L * 2)
    a.e(f'buffer_load_dword v220, v4, s[{S_T3}:{S_T3+3}], 0 offen')


def kgen_loads(a):
    srd(a, S_T0, P_LAR, PBYTES)
    srd(a, S_T1, P_AI, PBYTES)
    srd(a, S_T2, P_CR, PBYTES)
    srd(a, S_T3, P_CI, PBYTES)
    a.e(f's_lshl_b32 s66, s{S_P}, 10')
    a.e(f's_lshl_b32 s67, s{S_W}, 7')
    a.e('s_add_u32 s66, s66, s67')
    a.e('v_lshl_add_u32 v2, v1, 1, s66')
    for c in range(2):
        for k, s in enumerate((S_T0, S_T1, S_T2, S_T3)):
            a.e(f'buffer_load_ushort v{40+4*c+k}, v2, s[{s}:{s+3}], 0 offen offset:{512*c}')
    a.e(f's_lshl_b32 s66, s{S_P}, 2')
    a.e(f's_load_dword s68, s[{P_LDT}:{P_LDT+1}], s66')
    a.e(f's_load_dword s69, s[{P_DSK}:{P_DSK+1}], s66')


def load_gather_table(a, tablabel):
    lp = a.lab('pc')
    a.e('s_getpc_b64 s[70:71]')
    a.e(f'{lp}:')
    a.e(f's_add_u32 s70, s70, {tablabel}-{lp}')
    a.e('s_addc_u32 s71, s71, 0')
    a.e('v_lshlrev_b32 v2, 5, v0')
    a.e('global_load_dwordx4 v[160:163], v2, s[70:71]')
    a.e('global_load_dwordx4 v[164:167], v2, s[70:71] offset:16')


DK0, DK1 = 16, 28


def kgen_channel(a, c, DACC, mid=None, mid_m0=True):
    LAR, AI, CR, CI = 40 + 4 * c, 41 + 4 * c, 42 + 4 * c, 43 + 4 * c
    SIG, DT = 52 + c, 54 + c
    AL, BE = 56, 57
    Z1, Z2, Z4, Z8, Z128, Z256, Z512, Z1024 = 58, 60, 62, 64, 66, 68, 70, 72
    X0, CA, CB, CC, T0, T1 = 74, 76, 78, 80, 82, 84
    CV = [86, 87, 88, 89]
    VW, VR = 90, 91
    t, t2 = 92, 93
    for r in (LAR, AI, CR, CI):
        a.e(f'v_lshlrev_b32 v{r}, 16, v{r}')
    a.e('s_lshl_b32 s66, s68, 16' if c == 0 else 's_and_b32 s66, s68, 0xffff0000')
    a.e(f'v_mov_b32 v{t2}, s66')
    exp_bf16(a, DT, t2, t)
    a.e(f'v_add_f32 v{SIG}, abs(v{CR}), abs(v{CI})')
    exp_bf16(a, AL, LAR, t)
    a.e(f'v_add_f32_dpp v{SIG}, v{SIG}, v{SIG} quad_perm:[1,0,3,2] row_mask:0xf bank_mask:0xf')
    a.e(f'v_mul_f32 v{AL}, v{AL}, v{DT}')
    a.e(f'v_mul_f32 v{BE}, v{AI}, v{DT}')
    a.e(f'v_add_f32_dpp v{SIG}, v{SIG}, v{SIG} quad_perm:[2,3,0,1] row_mask:0xf bank_mask:0xf')
    a.e(f'v_mul_f32 v{AL}, {fx(-1.4426950408889634)}, v{AL}')
    a.e(f'v_mul_f32 v{BE}, {fx(0.15915494309189535)}, v{BE}')
    a.e(f'v_add_f32_dpp v{SIG}, v{SIG}, v{SIG} row_half_mirror row_mask:0xf bank_mask:0xf')
    a.e(f'v_exp_f32 v{T0}, v{AL}')
    a.e(f'v_fract_f32 v{t}, v{BE}')
    a.e(f'v_add_f32_dpp v{SIG}, v{SIG}, v{SIG} row_ror:8 row_mask:0xf bank_mask:0xf')
    a.e(f'v_cos_f32 v{Z1}, v{t}')
    a.e(f'v_sin_f32 v{Z1+1}, v{t}')
    a.e(f'v_mov_b32 v{t2}, v{SIG}')
    a.e(f'v_mul_f32 v{T1}, 0x43000000, v{AL}')
    a.e(f'v_mul_f32 v{t}, 0x43000000, v{BE}')
    a.e(f'v_permlane16_swap_b32 v{SIG}, v{t2}')
    a.e(f'v_pk_mul_f32 v[{Z1}:{Z1+1}], v[{Z1}:{Z1+1}], v[{T0}:{T0+1}] op_sel:[0,0] op_sel_hi:[1,0]')
    a.e(f'v_add_f32 v{SIG}, v{SIG}, v{t2}')
    a.e(f'v_exp_f32 v{T1}, v{T1}')
    a.e(f'v_fract_f32 v{t}, v{t}')
    a.e(f'v_mov_b32 v{t2}, v{SIG}')
    a.e(f'v_cos_f32 v{Z128}, v{t}')
    a.e(f'v_sin_f32 v{Z128+1}, v{t}')
    a.e(f'v_permlane32_swap_b32 v{SIG}, v{t2}')
    cmul(a, Z2, Z1, Z1, Z2)
    a.e(f'v_add_f32 v{SIG}, v{SIG}, v{t2}')
    a.e(f'v_pk_mul_f32 v[{Z128}:{Z128+1}], v[{Z128}:{Z128+1}], v[{T1}:{T1+1}] op_sel:[0,0] op_sel_hi:[1,0]')
    a.e(f'v_add_f32 v{SIG}, {fx(1e-30)}, v{SIG}')
    cmul(a, Z4, Z2, Z2, Z4)
    a.e(f'v_rcp_f32 v{t}, v{SIG}')
    cmul(a, Z256, Z128, Z128, Z256)
    cmul(a, Z8, Z4, Z4, Z8)
    a.e(f'v_mul_f32 v{X0}, v{CR}, v{t}')
    a.e(f'v_mul_f32 v{X0+1}, v{CI}, v{t}')
    cmul(a, Z512, Z256, Z256, Z512)
    a.e(f's_mul_i32 s66, s{S_W}, {SCRW}')
    a.e(f's_add_u32 s66, s66, {L_SCR}')
    a.e('s_mov_b32 m0, s66')
    cmul(a, Z1024, Z512, Z512, Z1024)
    a.e(f'v_and_b32 v{t}, 15, v1')
    a.e(f'v_mul_u32_u24 v{t}, {SROW}, v{t}')
    a.e(f'v_lshrrev_b32 v{t2}, 4, v1')
    a.e(f'v_lshl_add_u32 v{t}, v{t2}, 4, v{t}')
    a.e(f'v_add_u32 v{VR}, s66, v{t}')
    cvi = [0]
    pend = []

    def flush(keep):
        while len(pend) > keep:
            cv, off = pend.pop(0)
            a.e(f'ds_write_addtid_b32 v{cv} offset:{off}')

    def put(off, r, neg):
        cv = CV[cvi[0] % 4]
        cvi[0] += 1
        a.e(f'v_cvt_pk_f16_f32 v{cv}, v{r}, {"-" if neg else ""}v{r+1}')
        flush(1)
        pend.append((cv, off))

    def putX(row, r):
        put(row * SROW, r, True)

    def putY(b, r):
        put((YROW + b) * SROW, r, False)

    a.e(f'v_mov_b32 v{VW}, 0x00003c00')
    pend.append((VW, YROW * SROW))
    putY(1, Z8)
    ychain = {'cur': Z8, 'b': 1}
    YA, YB = CC, 94

    def ystep():
        if ychain['b'] >= 15:
            return
        d = YA if ychain['cur'] != YA else YB
        cmul(a, d, ychain['cur'], Z8, d)
        ychain['b'] += 1
        ychain['cur'] = d
        putY(ychain['b'], d)

    putX(0, X0)
    cmul(a, T0, X0, Z128, T0)
    putX(8, T0)
    cur = X0
    for j in range(1, 8):
        d = CA if cur != CA else CB
        cmul(a, d, cur, Z1, d)
        ystep()
        putX(j, d)
        cmul(a, T0, d, Z128, T0)
        putX(8 + j, T0)
        cur = d
    cmul(a, CA, X0, Z256, CA)
    ystep()
    putX(16, CA)
    cmul(a, T0, CA, Z128, T0)
    putX(20, T0)
    cur = CA
    for j in range(1, 4):
        d = CA if cur != CA else CB
        cmul(a, d, cur, Z2, d)
        ystep()
        putX(16 + j, d)
        cmul(a, T0, d, Z128, T0)
        putX(20 + j, T0)
        cur = d
    if mid is not None:
        if mid_m0:
            flush(0)
        mid()
        if mid_m0:
            a.e(f's_mul_i32 s66, s{S_W}, {SCRW}')
            a.e(f's_add_u32 s66, s66, {L_SCR}')
            a.e('s_mov_b32 m0, s66')
    cmul(a, CA, X0, Z512, CA)
    ystep()
    putX(24, CA)
    cmul(a, CB, CA, Z4, CB)
    ystep()
    putX(25, CB)
    pa, pb = CA, CB
    na, nb = T0, T1
    for q in range(1, 4):
        cmul(a, na, pa, Z128, na)
        cmul(a, nb, pb, Z128, nb)
        ystep()
        putX(24 + 2 * q, na)
        putX(25 + 2 * q, nb)
        pa, pb, na, nb = na, nb, pa, pb
    cmul(a, CA, X0, Z1024, CA)
    putX(32, CA)
    cur = CA
    for q in range(1, 9):
        d = CA if cur != CA else CB
        cmul(a, d, cur, Z128, d)
        putX(32 + q, d)
        cur = d
    while ychain['b'] < 15:
        ystep()
    flush(0)
    FA = 96
    for k in range(4):
        a.e(f'ds_read_b128 v[{144+4*k}:{147+4*k}], v{VR} offset:{YROW*SROW+64*k}')
        for T in range(3):
            r = FA + 16 * T + 4 * k
            a.e(f'ds_read_b128 v[{r}:{r+3}], v{VR} offset:{16*T*SROW+64*k}')
    for k in range(4):
        a.e(f's_waitcnt lgkmcnt({4*(3-k)})')
        for T in range(3):
            r = FA + 16 * T + 4 * k
            cc = '0' if k == 0 else f'v[{DACC+4*T}:{DACC+4*T+3}]'
            a.e(f'v_mfma_f32_16x16x32_f16 v[{DACC+4*T}:{DACC+4*T+3}], v[{r}:{r+3}], v[{144+4*k}:{147+4*k}], {cc}')


def ktab_part1(a):
    a.e(f's_mul_i32 s66, s{S_W}, {SCRW}')
    a.e(f's_add_u32 s66, s66, {L_SCR}')
    a.e('v_lshl_add_u32 v90, v1, 4, s66')
    a.e(f's_lshl_b32 s67, s{S_W}, 2')
    a.e(f's_add_u32 s67, s67, {L_SIG}')
    a.e('v_mov_b32 v91, s67')
    a.e('s_mov_b64 exec, 1')
    a.e('ds_write_b32 v91, v52')
    a.e('ds_write_b32 v91, v53 offset:16')
    a.e('s_mov_b64 exec, -1')
    for c, DK in ((0, DK0), (1, DK1)):
        for T in range(3):
            for h in range(2):
                i = DK + 4 * T + 2 * h
                a.e(f'v_pk_mul_f32 v[{i}:{i+1}], v[{i}:{i+1}], v[52:53] op_sel:[0,{c}] op_sel_hi:[1,{c}]')
            a.e(f'ds_write_b128 v90, v[{DK+4*T}:{DK+4*T+3}] offset:{c*3072+T*1024}')
    a.e('v_mov_b32 v96, 0')
    a.e('v_mov_b32 v97, 0')
    a.e('v_mov_b32 v98, 0')
    a.e('v_mov_b32 v99, 0')
    a.e(f'v_mov_b32 v92, {L_KT + 1536}')
    a.e('ds_write_b32 v92, v96')
    a.e(f'ds_write_b32 v92, v96 offset:{KTCH}')
    a.e('v_lshlrev_b32 v92, 3, v1')
    a.e(f'ds_write_b64 v92, v[96:97] offset:{L_U}')
    a.e(f'ds_write_b64 v92, v[96:97] offset:{L_U + UCH}')
    a.e('s_waitcnt lgkmcnt(0)')
    a.e('s_barrier')


def ktab_part2(a):
    a.e(f'v_mov_b32 v91, {L_SIG}')
    a.e('ds_read_b128 v[44:47], v91')
    a.e('ds_read_b128 v[48:51], v91 offset:16')
    a.e(f's_and_b32 s67, s{S_W}, 1')
    a.e(f's_lshr_b32 s70, s{S_W}, 1')
    a.e('s_mul_i32 s71, s67, 3072')
    a.e('s_lshl_b32 s72, s70, 10')
    a.e('s_add_u32 s72, s72, s71')
    a.e(f's_add_u32 s72, s72, {L_SCR}')
    a.e(f's_add_u32 s71, s71, {L_SCR + 2048}')
    a.e('v_lshl_add_u32 v90, v1, 4, s72')
    a.e('v_lshl_add_u32 v91, v1, 4, s71')
    for wv in range(4):
        a.e(f'ds_read_b128 v[{96+4*wv}:{99+4*wv}], v90 offset:{wv*SCRW}')
    for wv in range(4):
        a.e(f'ds_read_b128 v[{112+4*wv}:{115+4*wv}], v91 offset:{wv*SCRW}')
    a.e('v_mov_b32 v128, 0')
    a.e('v_mov_b32 v129, 0')
    a.e('v_mov_b32 v130, 0')
    a.e('v_mov_b32 v131, 0')
    a.e('v_and_b32 v132, 15, v1')
    a.e(f'v_mul_u32_u24 v132, {KCOPY}, v132')
    a.e(f'v_add_u32 v132, {L_KC}, v132')
    a.e('ds_write_b128 v132, v[128:131] offset:4096')
    a.e('v_lshrrev_b32 v92, 4, v1')
    a.e('v_lshlrev_b32 v92, 7, v92')
    a.e('v_and_b32 v93, 15, v1')
    a.e('v_lshl_add_u32 v92, v93, 1, v92')
    a.e(f's_mul_i32 s71, s67, {KTCH}')
    a.e(f's_add_u32 s71, s71, {L_KT}')
    a.e('v_add_u32 v93, s71, v92')
    a.e('s_lshl_b32 s72, s70, 9')
    a.e('v_add_u32 v92, s72, v93')
    a.e('s_waitcnt lgkmcnt(9)')
    a.e('v_pk_add_f32 v[44:45], v[44:45], v[46:47]')
    a.e('v_pk_add_f32 v[48:49], v[48:49], v[50:51]')
    a.e('v_add_f32 v44, v44, v45')
    a.e('v_add_f32 v45, v48, v49')
    a.e('s_cmp_eq_u32 s67, 0')
    a.e('s_cselect_b64 vcc, -1, 0')
    a.e('v_pk_mul_f32 v[54:55], v[54:55], v[44:45]')
    a.e('v_cndmask_b32 v46, v45, v44, vcc')
    a.e('v_pk_add_f32 v[54:55], v[54:55], v[54:55]')
    a.e('v_rcp_f32 v46, v46')
    for jb, (base, va, off) in enumerate(((96, 92, 0), (112, 93, 1024))):
        a.e(f's_waitcnt lgkmcnt({5 if jb == 0 else 5})')
        for h in range(2):
            a.e(f'v_pk_add_f32 v[{base+2*h}:{base+2*h+1}], v[{base+2*h}:{base+2*h+1}], v[{base+4+2*h}:{base+5+2*h}]')
            a.e(f'v_pk_add_f32 v[{base+8+2*h}:{base+9+2*h}], v[{base+8+2*h}:{base+9+2*h}], v[{base+12+2*h}:{base+13+2*h}]')
        for h in range(2):
            a.e(f'v_pk_add_f32 v[{base+2*h}:{base+2*h+1}], v[{base+2*h}:{base+2*h+1}], v[{base+8+2*h}:{base+9+2*h}]')
        for h in range(2):
            a.e(f'v_pk_mul_f32 v[{base+2*h}:{base+2*h+1}], v[{base+2*h}:{base+2*h+1}], v[46:47] op_sel:[0,0] op_sel_hi:[1,0]')
        a.e(f'v_cvt_pk_f16_f32 v{base+4}, v{base}, v{base+1}')
        a.e(f'v_cvt_pk_f16_f32 v{base+5}, v{base+2}, v{base+3}')
        a.e(f'ds_write_b16 v{va}, v{base+4} offset:{off}')
        a.e(f'ds_write_b16_d16_hi v{va}, v{base+4} offset:{off+32}')
        a.e(f'ds_write_b16 v{va}, v{base+5} offset:{off+64}')
        a.e(f'ds_write_b16_d16_hi v{va}, v{base+5} offset:{off+96}')
    for e in range(15):
        src = 160 + e // 2
        if e % 2 == 0:
            a.e(f'v_and_b32 v{136+e}, 0xffff, v{src}')
        else:
            a.e(f'v_lshrrev_b32 v{136+e}, 16, v{src}')
    a.e('s_waitcnt lgkmcnt(0)')
    a.e('s_barrier')


def kcopies(a):
    AD = 136
    a.e('v_lshlrev_b32 v111, 4, v0')
    a.e(f'v_add_u32 v111, {L_KC}, v111')
    RR = [96, 112]
    for c in range(2):
        for e in range(15):
            a.e(f'ds_read_u16 v{RR[c]+e}, v{AD+e} offset:{L_KT + c*KTCH}')
    for c in range(2):
        R = RR[c]
        Da, Db, Oa, Ob = 56 + 0, 64, 72, 80
        if c == 1:
            Da, Db, Oa, Ob = 16, 24, 32, 40
        a.e(f's_waitcnt lgkmcnt({15 if c == 0 else 8})')
        for i in range(6):
            a.e(f'v_lshl_or_b32 v{Da+i}, v{R+2*i+1}, 16, v{R+2*i}')
            a.e(f'v_lshl_or_b32 v{Oa+i}, v{R+2*i+2}, 16, v{R+2*i+1}')
        if c == 1:
            a.e(f'v_add_u32 v110, {KCH}, v111')
        va = 111 if c == 0 else 110
        for s, r in ((0, Da), (1, Oa), (4, Da + 2), (5, Oa + 2)):
            a.e(f'ds_write_b128 v{va}, v[{r}:{r+3}] offset:{s*KCOPY}')
        for i in range(6):
            a.e(f'v_lshl_or_b32 v{Db+i}, v{R+2*i+3}, 16, v{R+2*i+2}')
            a.e(f'v_lshl_or_b32 v{Ob+i}, v{R+2*i+4}, 16, v{R+2*i+3}')
        for s, r in ((2, Db), (3, Ob), (6, Db + 2), (7, Ob + 2)):
            a.e(f'ds_write_b128 v{va}, v[{r}:{r+3}] offset:{s*KCOPY}')


def store_u(a, vm):
    a.e('v_lshlrev_b32 v2, 4, v0')
    a.e(f's_waitcnt vmcnt({vm})')
    a.e(f'ds_write_b128 v2, v[176:179] offset:{L_U + 512}')
    a.e(f'ds_write_b128 v2, v[180:183] offset:{L_U + UCH + 512}')
    a.e('s_waitcnt lgkmcnt(0)')
    a.e('s_barrier')


def phase_conv(a, hooks, pre_vm):
    hooks = list(hooks)
    ACC = 16
    FA = [[64 + 64 * s + 4 * i for i in range(8)] for s in range(2)]
    FB = [[96 + 64 * s + 4 * i for i in range(8)] for s in range(2)]
    VA, VB = 48, 49

    def loads(qq, s):
        out = []
        for i in range(8):
            out.append(f'ds_read_b128 v[{FB[s][i]}:{FB[s][i]+3}], v{VB} offset:{512*i + 64*(3-qq)}')
            out.append(f'ds_read_b128 v[{FA[s][i]}:{FA[s][i]+3}], v{VA} offset:{512*(7-i) + 64*(3-qq)}')
        return out

    for x in loads(0, 0):
        a.e(x)
    for qq in range(4):
        s = qq & 1
        nxt = loads(qq + 1, 1 - s) if qq < 3 else []
        n = 0
        for w in range(8):
            for c in range(w, 8):
                if n == 0:
                    a.e('s_waitcnt lgkmcnt(0)')
                cc = '0' if (qq == 0 and w == 0) else f'v[{ACC+4*c}:{ACC+4*c+3}]'
                a.e(f'v_mfma_f32_16x16x32_f16 v[{ACC+4*c}:{ACC+4*c+3}], v[{FA[s][w]}:{FA[s][w]+3}], v[{FB[s][c-w]}:{FB[s][c-w]+3}], {cc}')
                if nxt and n % 2 == 1:
                    a.e(nxt.pop(0))
                if hooks and n % 4 == 2:
                    hooks.pop(0)()
                n += 1
        assert not nxt
    assert not hooks
    stamp(a, 11)
    CP, TS = L_CP, 1280
    a.e('v_and_b32 v2, 15, v1')
    a.e('v_lshlrev_b32 v2, 4, v2')
    a.e('v_lshrrev_b32 v3, 4, v1')
    a.e('v_mul_u32_u24 v3, 320, v3')
    a.e('v_add_u32 v2, v2, v3')
    a.e(f's_mul_i32 s70, s{S_W}, {8*TS}')
    a.e(f's_add_u32 s70, s70, {CP}')
    a.e('v_add_u32 v2, s70, v2')
    a.e('s_barrier')
    for c in range(8):
        a.e(f'ds_write_b128 v2, v[{ACC+4*c}:{ACC+4*c+3}] offset:{c*TS}')
    a.e('v_lshrrev_b32 v2, 2, v1')
    a.e('v_lshlrev_b32 v2, 4, v2')
    a.e('v_and_b32 v3, 3, v1')
    a.e('v_mul_u32_u24 v3, 320, v3')
    a.e('v_add_u32 v2, v2, v3')
    a.e(f's_lshl_b32 s70, s{S_W}, 1')
    a.e(f's_mul_i32 s71, s70, {TS}')
    a.e(f's_add_u32 s71, s71, {CP}')
    a.e('v_add_u32 v2, s71, v2')
    a.e('s_lshl_b32 s71, s70, 9')
    a.e(f's_add_u32 s71, s71, {L_U + 512}')
    a.e('v_lshl_add_u32 v3, v1, 3, s71')
    a.e(f's_mul_i32 s71, s{S_P}, {AST}')
    a.e('s_lshl_b32 s72, s70, 10')
    a.e('s_add_u32 s71, s71, s72')
    a.e(f's_add_u32 s71, s71, {WS_AOUT}')
    a.e('v_lshl_add_u32 v4, v1, 4, s71')
    a.e('s_lshl_b32 s72, s69, 16')
    a.e('s_and_b32 s73, s69, 0xffff0000')
    a.e('v_mov_b32 v56, s72')
    a.e('v_mov_b32 v57, s73')
    a.e(f's_waitcnt lgkmcnt(0) vmcnt({pre_vm})')
    a.e('s_barrier')
    for q in range(2):
        P = 64 + 32 * q
        for ch in range(2):
            for hf in range(2):
                r = P + 8 * ch + 4 * hf
                a.e(f'ds_read_b128 v[{r}:{r+3}], v2 offset:{(2*ch+hf)*8*TS + q*TS}')
        for ch in range(2):
            a.e(f'ds_read_b64 v[{P+16+2*ch}:{P+17+2*ch}], v3 offset:{ch*UCH + q*512}')
    for q in range(2):
        P = 64 + 32 * q
        a.e(f's_waitcnt lgkmcnt({6 if q == 0 else 0})')
        for ch in range(2):
            y = P + 8 * ch
            T = 128 + 16 * ch
            u = P + 16 + 2 * ch
            for h in range(2):
                a.e(f'v_pk_add_f32 v[{y+2*h}:{y+2*h+1}], v[{y+2*h}:{y+2*h+1}], v[{y+4+2*h}:{y+5+2*h}]')
            for i in range(4):
                a.e(f'v_fma_mix_f32 v{T+i}, v{u+i//2}, v{56+ch}, 0 op_sel:[{i%2},0,0] op_sel_hi:[1,0,0]')
            for h in range(2):
                a.e(f'v_pk_mul_f32 v[{y+2*h}:{y+2*h+1}], v[{y+2*h}:{y+2*h+1}], v[54:55] op_sel:[0,{ch}] op_sel_hi:[1,{ch}]')
            for h in range(2):
                a.e(f'v_cvt_pk_bf16_f32 v{T+6+h}, v{T+2*h}, v{T+2*h+1}')
                a.e(f'v_cvt_pk_bf16_f32 v{T+4+h}, v{y+2*h}, v{y+2*h+1}')
            for h in range(2):
                a.e(f'v_lshlrev_b32 v{T+2*h}, 16, v{T+6+h}')
                a.e(f'v_and_b32 v{T+2*h+1}, 0xffff0000, v{T+6+h}')
                a.e(f'v_lshlrev_b32 v{y+2*h}, 16, v{T+4+h}')
                a.e(f'v_and_b32 v{y+2*h+1}, 0xffff0000, v{T+4+h}')
            for h in range(2):
                a.e(f'v_pk_add_f32 v[{y+2*h}:{y+2*h+1}], v[{y+2*h}:{y+2*h+1}], v[{T+2*h}:{T+2*h+1}]')
        O = 160 + 4 * q
        for i in range(4):
            a.e(f'v_cvt_pk_bf16_f32 v{O+i}, v{P+i}, v{P+8+i}')
        a.e(f'buffer_store_dwordx4 v[{O}:{O+3}], v4, {WSR}, 0 offen offset:{q*1024} sc1')


def conv_addr(a):
    a.e(f's_lshr_b32 s66, s{S_W}, 1')
    a.e(f's_and_b32 s67, s{S_W}, 1')
    a.e('v_and_b32 v2, 7, v1')
    a.e('v_sub_u32 v2, 7, v2')
    a.e(f'v_mul_u32_u24 v2, {KCOPY}, v2')
    a.e('v_lshrrev_b32 v3, 4, v1')
    a.e('v_bfe_u32 v4, v1, 3, 1')
    a.e('v_sub_u32 v4, v3, v4')
    a.e('v_lshl_add_u32 v2, v4, 4, v2')
    a.e(f's_mul_i32 s70, s66, {KCH}')
    a.e('s_lshl_b32 s71, s67, 8')
    a.e('s_sub_u32 s70, s70, s71')
    a.e(f's_add_u32 s70, s70, {L_KC + 16*253 - 512*7 - 64*3}')
    a.e('v_add_u32 v48, s70, v2')
    a.e('v_and_b32 v2, 15, v1')
    a.e('v_lshlrev_b32 v2, 5, v2')
    a.e('v_lshl_add_u32 v2, v3, 4, v2')
    a.e(f's_mul_i32 s70, s66, {UCH}')
    a.e('s_sub_u32 s70, s70, s71')
    a.e(f's_add_u32 s70, s70, {L_U + 480 - 64*3}')
    a.e('v_add_u32 v49, s70, v2')


def phase_p4(a):
    X = list(range(8, 16))
    A = 32
    xrow_addr(a)
    a.e(f's_mul_i32 s66, s{S_W}, {56*AST}')
    a.e(f's_lshl_b32 s67, s{S_B}, 5')
    a.e('s_add_u32 s66, s66, s67')
    a.e(f's_add_u32 s66, s66, {WS_AOUT}')
    a.e(f'v_mul_u32_u24 v4, {AST}, v1')
    a.e('v_add_u32 v4, s66, v4')
    a.e(f'v_mov_b32 v5, {OOB}')
    a.e('v_cndmask_b32 v4, v5, v4, vcc')
    a.e(f's_mul_i32 s66, s{S_W}, 224')
    a.e(f's_add_u32 s66, s66, {L_HT}')
    a.e('v_lshl_add_u32 v6, v1, 2, s66')
    for j in range(8):
        a.e(f'v_lshlrev_b32 v{64+2*j}, 16, v{X[j]}')
        a.e(f'v_and_b32 v{65+2*j}, 0xffff0000, v{X[j]}')
    lp, ld = a.lab('h2poll'), a.lab('h2done')
    a.e(f's_mov_b32 s{S_SPIN}, 0')
    a.e(f'{lp}:')
    a.e(f'buffer_load_dwordx4 v[{A}:{A+3}], v4, {WSR}, 0 offen sc1')
    a.e(f'buffer_load_dwordx4 v[{A+4}:{A+7}], v4, {WSR}, 0 offen offset:16 sc1')
    a.e('s_waitcnt vmcnt(0)')
    a.e(f'v_max3_u32 v40, v{A}, v{A+1}, v{A+2}')
    a.e(f'v_max3_u32 v41, v{A+3}, v{A+4}, v{A+5}')
    a.e(f'v_max3_u32 v40, v40, v{A+6}, v{A+7}')
    a.e('v_max_u32 v40, v40, v41')
    a.e('v_cmp_eq_u32 vcc, -1, v40')
    a.e(f's_cbranch_vccz {ld}')
    spin_tail(a, lp)
    a.e(f'{ld}:')
    stamp(a, 14)
    H = list(range(48, 56))
    for j in range(8):
        t = 40 + 2 * (j % 4)
        a.e(f'v_lshlrev_b32 v{t}, 16, v{A+j}')
        a.e(f'v_and_b32 v{t+1}, 0xffff0000, v{A+j}')
        a.e(f'v_pk_add_f32 v[{t}:{t+1}], v[{t}:{t+1}], v[{64+2*j}:{65+2*j}]')
        a.e(f'v_cvt_pk_bf16_f32 v{H[j]}, v{t}, v{t+1}')
    a.e('s_mov_b32 exec_hi, 0x00ffffff')
    for j in range(8):
        a.e(f'ds_write_b32 v6, v{H[j]} offset:{j*896}')
    a.e('s_mov_b32 exec_hi, -1')

    def hstore():
        a.e('v_lshlrev_b32 v7, 4, v0')
        a.e(f'ds_read_b128 v[56:59], v7 offset:{L_HT}')
        a.e(f'ds_read_b128 v[60:63], v7 offset:{L_HT + 4096}')
        return 2

    ln_stats(a, H, 16, L_RED0, 5, mid=hstore)
    a.e(f's_mul_i32 s66, s{S_B}, 7168')
    a.e(f's_add_u32 s66, s66, {WS_H}')
    a.e('v_add_u32 v6, s66, v7')
    a.e('v_add_u32 v7, 4096, v6')
    mask_lanes(a, 7, 192, 4, 'v0')
    a.e('s_waitcnt lgkmcnt(0)')
    a.e(f'buffer_store_dwordx4 v[56:59], v6, {WSR}, 0 offen sc1')
    a.e(f'buffer_store_dwordx4 v[60:63], v7, {WSR}, 0 offen sc1')
    bcast_stats(a, 16)
    a.e('s_mov_b32 exec_hi, 0x00ffffff')
    for j in range(8):
        t = 40 + 2 * (j % 4)
        norm_tok(a, j, H[j], t)
        a.e(f'v_cvt_pk_bf16_f32 v{H[j]}, v{t}, v{t+1}')
    a.e('s_mov_b32 exec_hi, -1')
    ln_stats(a, H, 16, L_RED1, 5)
    bcast_stats(a, 16)
    a.e(f's_mul_i32 s66, s{S_B}, 7168')
    a.e(f's_mul_i32 s67, s{S_W}, 1792')
    a.e('s_add_u32 s66, s66, s67')
    a.e(f's_add_u32 s66, s66, {WS_HH}')
    a.e('v_lshl_add_u32 v4, v1, 4, s66')
    a.e('v_add_u32 v5, 448, v4')
    a.e('v_cmp_gt_u32 vcc, 28, v1')
    a.e('v_cndmask_b32 v4, v5, v4, vcc')
    mask_lanes(a, 4, 56, 5)
    for j in range(8):
        norm_tok(a, j, H[j], 64 + 2 * j)
    O0, O1 = 80, 84
    for i in range(4):
        a.e(f'v_cvt_pk_bf16_f32 v{O0+i}, v{64+4*i}, v{66+4*i}')
        a.e(f'v_cvt_pk_bf16_f32 v{O1+i}, v{65+4*i}, v{67+4*i}')
    a.e('s_waitcnt vmcnt(0)')
    a.e('s_barrier')
    a.e(f'buffer_store_dwordx4 v[{O0}:{O0+3}], v4, {WSR}, 0 offen sc1')
    a.e(f'buffer_store_dwordx4 v[{O1}:{O1+3}], v4, {WSR}, 0 offen offset:448 sc1')


def w_setup(a):
    srd(a, S_W1, P_W1, W1BYTES)
    srd(a, S_W2, P_W2, W2BYTES)
    a.e('v_lshrrev_b32 v4, 3, v1')
    a.e('v_bfe_u32 v5, v1, 4, 1')
    a.e('v_lshlrev_b32 v5, 1, v5')
    a.e('v_and_b32 v6, 7, v1')
    a.e('v_xor_b32 v6, v6, v5')
    a.e('v_xor_b32 v7, 4, v6')
    for vd, rowbytes, tile, rows in ((V_D1, F * 2, S_I1, 512), (V_D2, L * 2, S_I2, 448)):
        a.e(f's_mov_b32 s66, {rowbytes}')
        a.e('v_mul_lo_u32 v5, v4, s66')
        a.e(f's_mul_i32 s67, s{S_W}, {rows*rowbytes}')
        a.e(f's_lshl_b32 s66, s{tile}, 7')
        a.e('s_add_u32 s67, s67, s66')
        a.e('v_add_u32 v5, s67, v5')
        for i in range(4):
            a.e(f'v_lshl_add_u32 v{vd+i}, v{6 + (i & 1)}, 4, v5')
            if i:
                a.e(f'v_add_u32 v{vd+i}, {i*(8*rowbytes - 1024)}, v{vd+i}')
    a.e('v_lshlrev_b32 v5, 12, v4')
    a.e('v_and_b32 v6, 7, v1')
    a.e(f'v_lshl_add_u32 v{V_QPF}, v6, 4, v5')
    a.e(f's_and_b32 s66, s{S_LOC}, 3')
    a.e('s_mul_i32 s66, s66, 448')
    a.e(f's_mul_i32 s67, s{S_W}, 112')
    a.e('s_add_u32 s66, s66, s67')
    a.e('s_lshl_b32 s66, s66, 12')
    a.e(f's_lshl_b32 s67, s{S_I2}, 7')
    a.e(f's_add_u32 s{S_QPF}, s66, s67')
    a.e('v_lshrrev_b32 v4, 4, v1')
    a.e('v_bfe_u32 v5, v1, 2, 2')
    a.e('v_lshl_add_u32 v5, v4, 3, v5')
    a.e('v_lshlrev_b32 v5, 7, v5')
    a.e('v_and_b32 v6, 1, v1')
    a.e('v_lshl_add_u32 v5, v6, 3, v5')
    a.e('v_bfe_u32 v6, v1, 1, 1')
    a.e('v_lshl_add_u32 v5, v6, 4, v5')
    a.e('v_bfe_u32 v6, v1, 3, 1')
    a.e('v_and_b32 v4, 1, v4')
    a.e('v_lshl_add_u32 v6, v4, 1, v6')
    a.e(f's_and_b32 s66, s{S_LOC}, 3')
    a.e(f's_lshr_b32 s67, s{S_LOC}, 2')
    a.e('s_lshl_b32 s67, s67, 1')
    a.e('s_lshl_b32 s70, s66, 2')
    a.e('s_add_u32 s70, s70, s67')
    a.e('s_and_b32 s70, s70, 15')
    a.e(f's_mul_i32 s{S_RW1}, s70, {32*F*2}')
    a.e(f's_mul_i32 s{S_RX1}, s70, {4*7168}')
    a.e('s_mul_i32 s66, s66, 7')
    a.e('s_lshr_b32 s66, s66, 1')
    a.e('s_add_u32 s66, s66, s67')
    for _ in range(2):
        a.e('s_cmp_ge_u32 s66, 14')
        a.e('s_cselect_b32 s67, 14, 0')
        a.e('s_sub_u32 s66, s66, s67')
    a.e(f's_mul_i32 s{S_RW2}, s66, {32*L*2}')
    a.e(f's_mul_i32 s{S_RX2}, s66, {4*7168}')
    a.e(f's_lshl_b32 s{S_SA}, s{S_W}, 14')
    a.e(f's_add_u32 s{S_SA}, s{S_SA}, {L_WA}')
    a.e(f's_mul_i32 s{S_SB}, s{S_W}, 20480')
    a.e(f's_add_u32 s{S_SB}, s{S_SB}, {L_WB}')
    for mu in range(4):
        a.e(f'v_xor_b32 v4, {mu}, v6')
        a.e('v_lshl_add_u32 v4, v4, 5, v5')
        a.e(f'v_add_u32 v{V_TA+mu}, s{S_SA}, v4')
        a.e(f'v_add_u32 v{V_TB+mu}, s{S_SB}, v4')


def rot_off(a, idx, sreg, n, unit):
    a.e(f's_add_u32 s70, s{sreg}, {idx*unit}')
    a.e(f's_cmp_ge_u32 s70, {n*unit}')
    a.e(f's_cselect_b32 s71, {n*unit}, 0')
    a.e('s_sub_u32 s70, s70, s71')


def slot(name):
    return (S_SA, V_TA, int(name[1])) if name[0] == 'A' else (S_SB, V_TB, int(name[1]))


def w_dma1(a, mat, slab, sl, i):
    sb, _, si = slot(sl)
    vd, srd_, rowbytes = (V_D1, S_W1, F * 2) if mat == 1 else (V_D2, S_W2, L * 2)
    if i == 0:
        rot_off(a, slab, S_RW1 if mat == 1 else S_RW2, 16 if mat == 1 else 14, 32 * rowbytes)
        a.e(f's_add_u32 m0, s{sb}, {si*4096}')
    a.e(f'buffer_load_dwordx4 v{vd + i}, s[{srd_}:{srd_+3}], s70 offen offset:{1024*i} lds')


def w_dma(a, mat, slab, sl):
    for i in range(4):
        w_dma1(a, mat, slab, sl, i)


def w_tr(a, slab, sl):
    _, vt, si = slot(sl)
    for mu in range(4):
        r = (slab * 4 + mu) * 4
        a.e(f'ds_read_b64_tr_b16 a[{r}:{r+1}], v{vt+mu} offset:{si*4096}')
        a.e(f'ds_read_b64_tr_b16 a[{r+2}:{r+3}], v{vt+mu} offset:{si*4096 + 512}')


def qpf_load(a, n):
    for _ in range(n):
        a.e(f'buffer_load_dwordx4 v[220:223], v{V_QPF}, s[{S_W2}:{S_W2+3}], s{S_QPF} offen')
        a.e(f's_add_u32 s{S_QPF}, s{S_QPF}, {8*L*2}')


ACC = 16
XS = 80
NS = 6
VMAX = 214
V_X0, V_X3 = 208, 209


def gemm_xaddr(a, ws_off, kblocks):
    a.e(f's_mul_i32 s66, s{S_W}, {kblocks*7168}')
    a.e(f's_mul_i32 s67, s{S_J}, 896')
    a.e('s_add_u32 s66, s66, s67')
    a.e(f's_add_u32 s66, s66, {ws_off}')
    a.e('v_lshrrev_b32 v4, 4, v1')
    a.e('v_mul_u32_u24 v4, 7168, v4')
    a.e('v_add_u32 v4, s66, v4')
    a.e('v_and_b32 v5, 15, v1')
    a.e(f'v_lshl_add_u32 v{V_X0}, v5, 4, v4')
    if OPT['x3oob']:
        a.e(f'v_add_u32 v{V_X3}, 768, v{V_X0}')
        a.e(f'v_mov_b32 v4, {OOB}')
        a.e('v_cmp_gt_u32 vcc, 8, v5')
        a.e(f'v_cndmask_b32 v{V_X3}, v4, v{V_X3}, vcc')
    else:
        a.e('v_and_b32 v5, 7, v1')
        a.e('v_lshl_add_u32 v4, v5, 4, v4')
        a.e(f'v_add_u32 v{V_X3}, 768, v4')


def gemm_xloads(a, kappa, gid):
    st = XS + 16 * (kappa % NS)
    out = []
    sreg, n = (S_RX1, 16) if gid == 1 else (S_RX2, 14)
    unit = 4 * 7168
    out.append(f's_add_u32 s70, s{sreg}, {kappa*unit}')
    out.append(f's_cmp_ge_u32 s70, {n*unit}')
    out.append(f's_cselect_b32 s71, {n*unit}, 0')
    out.append('s_sub_u32 s70, s70, s71')
    for nu in range(3):
        out.append(f'buffer_load_dwordx4 v[{st+4*nu}:{st+4*nu+3}], v{V_X0}, {WSR}, s70 offen offset:{256*nu} sc1')
    out.append(f'buffer_load_dwordx4 v[{st+12}:{st+15}], v{V_X3}, {WSR}, s70 offen sc1')
    return out


def gemm_main(a, nk, gid, tail_hook=None):
    nfl = OPT['nfl']
    w_is_a = gid == 1
    a.e(f'v_mov_b32 v{VMAX}, 0')
    extra = 0
    for k in range(nk):
        st = XS + 16 * (k % NS)
        rem = min(nfl - 1, nk - 1 - k)
        a.e(f's_waitcnt vmcnt({4*rem + extra})')
        if OPT['stamps'] and k in (0, 4, 8, 12):
            stamp(a, (44 if w_is_a else 51) + (0, 4, 8, 12).index(k))
        fill = gemm_xloads(a, k + nfl, gid) if k + nfl < nk else []
        if k + nfl == nk and tail_hook is not None:
            fill = []
            extra = tail_hook(fill)
        mx = [f'v_max3_u32 v{VMAX}, v{VMAX}, v{st+2*i}, v{st+2*i+1}' for i in range(8)]
        n = 0
        for mu in range(4):
            for nu in range(4):
                w = (k * 4 + mu) * 4
                x = st + 4 * nu
                if w_is_a:
                    acc = ACC + (mu * 4 + nu) * 4
                    A, B = f'a[{w}:{w+3}]', f'v[{x}:{x+3}]'
                else:
                    acc = ACC + (nu * 4 + mu) * 4
                    A, B = f'v[{x}:{x+3}]', f'a[{w}:{w+3}]'
                cc = '0' if k == 0 else f'v[{acc}:{acc+3}]'
                a.e(f'v_mfma_f32_16x16x32_bf16 v[{acc}:{acc+3}], {A}, {B}, {cc}')
                for _ in range(2):
                    if fill:
                        a.e(fill.pop(0))
                if not fill and mx and n >= 4:
                    a.e(mx.pop(0))
                n += 1
        assert not fill and not mx


def sentinel(a, ws_off, kblocks):
    lp, ld = a.lab('spoll'), a.lab('sdone')
    a.e(f's_mul_i32 s66, s{S_W}, {kblocks*7168}')
    a.e(f's_mul_i32 s67, s{S_J}, 896')
    a.e('s_add_u32 s66, s66, s67')
    a.e(f's_add_u32 s66, s66, {ws_off + 55*16 + 12}')
    a.e('v_mul_u32_u24 v4, 7168, v1')
    a.e('v_add_u32 v4, s66, v4')
    if kblocks < 64:
        mask_lanes(a, 4, kblocks, 5)
    a.e(f's_mov_b32 s{S_SPIN}, 0')
    a.e(f'{lp}:')
    a.e(f'buffer_load_dword v5, v4, {WSR}, 0 offen sc1')
    a.e('s_waitcnt vmcnt(0)')
    a.e('v_cmp_eq_u32 vcc, -1, v5')
    a.e(f's_cbranch_vccz {ld}')
    spin_tail(a, lp)
    a.e(f'{ld}:')


def gemm_poll_main(a, ws_off, kblocks, nk, gid, sb, tail_hook=None):
    lr, lok = a.lab('gretry'), a.lab('gok')
    gemm_xaddr(a, ws_off, kblocks)
    a.e(f's_mov_b32 s{S_RETRY}, 0')
    a.e(f'{lr}:')
    sentinel(a, ws_off, kblocks)
    stamp(a, sb)
    for k in range(OPT['nfl']):
        for x in gemm_xloads(a, k, gid):
            a.e(x)
    gemm_main(a, nk, gid, tail_hook)
    a.e(f'v_cmp_eq_u32 vcc, -1, v{VMAX}')
    a.e(f's_cbranch_vccz {lok}')
    a.e(f's_add_u32 s{S_RETRY}, s{S_RETRY}, 1')
    a.e(f's_cmp_lt_u32 s{S_RETRY}, {RETRY_MAX}')
    a.e(f's_cbranch_scc1 {lr}')
    a.e(f'{lok}:')


def write_partials(a):
    a.e('v_and_b32 v4, 15, v1')
    a.e(f'v_mul_u32_u24 v4, {PROW}, v4')
    a.e('v_lshrrev_b32 v5, 4, v1')
    a.e('v_lshl_add_u32 v4, v5, 4, v4')
    a.e(f's_mul_i32 s66, s{S_W}, {PARTW}')
    a.e(f's_add_u32 s66, s66, {L_PART}')
    a.e('v_add_u32 v4, s66, v4')
    a.e('s_barrier')
    for mt in range(4):
        for nt in range(4):
            acc = ACC + (mt * 4 + nt) * 4
            a.e(f'ds_write_b128 v4, v[{acc}:{acc+3}] offset:{nt*16*PROW + mt*64}')


def sum_partials(a, P):
    for h in range(4):
        a.e(f'v_pk_add_f32 v[{P+2*h}:{P+2*h+1}], v[{P+2*h}:{P+2*h+1}], v[{P+8+2*h}:{P+9+2*h}]')
        a.e(f'v_pk_add_f32 v[{P+16+2*h}:{P+17+2*h}], v[{P+16+2*h}:{P+17+2*h}], v[{P+24+2*h}:{P+25+2*h}]')
    for h in range(4):
        a.e(f'v_pk_add_f32 v[{P+2*h}:{P+2*h+1}], v[{P+2*h}:{P+2*h+1}], v[{P+16+2*h}:{P+17+2*h}]')


def b1_load(a):
    a.e(f's_lshl_b32 s67, s{S_I1}, 7')
    a.e(f's_lshl_b32 s70, s{S_W}, 5')
    a.e('s_add_u32 s67, s67, s70')
    a.e(f's_load_dwordx8 s[72:79], s[{P_B1}:{P_B1+1}], s67')


def gemm1_epilogue(a):
    write_partials(a)
    a.e(f'v_mul_u32_u24 v4, {PROW}, v1')
    a.e(f's_lshl_b32 s66, s{S_W}, 6')
    a.e(f's_add_u32 s66, s66, {L_PART}')
    a.e('v_add_u32 v4, s66, v4')
    g_store_addr(a, 5)
    C1 = 0.044715
    C2 = -2.0 * 0.7978845608028654 * 1.4426950408889634
    a.e(f'v_mov_b32 v100, {fx(C1*C2)}')
    a.e(f'v_mov_b32 v101, {fx(C1*C2)}')
    a.e(f'v_mov_b32 v102, {fx(C2)}')
    a.e(f'v_mov_b32 v103, {fx(C2)}')
    a.e('s_waitcnt lgkmcnt(0)')
    a.e('s_barrier')
    stamp(a, 24)
    for r in range(2):
        P = 16 + 32 * r
        for wv in range(4):
            a.e(f'ds_read_b128 v[{P+8*wv}:{P+8*wv+3}], v4 offset:{wv*PARTW + r*32}')
            a.e(f'ds_read_b128 v[{P+8*wv+4}:{P+8*wv+7}], v4 offset:{wv*PARTW + r*32 + 16}')
    for i in range(8):
        a.e(f's_lshl_b32 s{80+2*i}, s{72+i}, 16')
        a.e(f's_and_b32 s{81+2*i}, s{72+i}, 0xffff0000')
    for r in range(2):
        P = 16 + 32 * r
        T = 80
        a.e(f's_waitcnt lgkmcnt({8 if r == 0 else 0})')
        sum_partials(a, P)
        round_pairs(a, P, T, 8)
        for h in range(4):
            a.e(f'v_pk_add_f32 v[{P+2*h}:{P+2*h+1}], v[{P+2*h}:{P+2*h+1}], s[{80+8*r+2*h}:{81+8*r+2*h}]')
        round_pairs(a, P, T, 8)
        for h in range(4):
            a.e(f'v_pk_mul_f32 v[{P+8+2*h}:{P+9+2*h}], v[{P+2*h}:{P+2*h+1}], v[{P+2*h}:{P+2*h+1}]')
        for h in range(4):
            a.e(f'v_pk_fma_f32 v[{P+8+2*h}:{P+9+2*h}], v[{P+8+2*h}:{P+9+2*h}], v[100:101], v[102:103]')
        for h in range(4):
            a.e(f'v_pk_mul_f32 v[{P+8+2*h}:{P+9+2*h}], v[{P+8+2*h}:{P+9+2*h}], v[{P+2*h}:{P+2*h+1}]')
        for i in range(8):
            a.e(f'v_exp_f32 v{P+8+i}, v{P+8+i}')
        for h in range(4):
            a.e(f'v_pk_add_f32 v[{P+8+2*h}:{P+9+2*h}], v[{P+8+2*h}:{P+9+2*h}], 1.0 op_sel_hi:[1,0]')
        for i in range(8):
            a.e(f'v_rcp_f32 v{P+8+i}, v{P+8+i}')
        for h in range(4):
            a.e(f'v_pk_mul_f32 v[{P+2*h}:{P+2*h+1}], v[{P+2*h}:{P+2*h+1}], v[{P+8+2*h}:{P+9+2*h}]')
        O = 88 + 4 * r
        for h in range(4):
            a.e(f'v_cvt_pk_bf16_f32 v{O+h}, v{P+2*h}, v{P+2*h+1}')
        if r == 1:
            a.e('v_add_u32 v5, 7168, v5')
        a.e(f'buffer_store_dwordx4 v[{O}:{O+3}], v5, {WSR}, 0 offen sc1')


V_OUT, V_HAD, V_B2 = 210, 211, 212
V_HR = 196


def gemm2_addr(a):
    srd(a, S_T2, P_OUT, XBYTES)
    srd(a, S_T3, P_B2, L * 2)
    a.e('v_lshrrev_b32 v4, 3, v1')
    a.e('v_and_b32 v5, 7, v1')
    a.e(f's_lshl_b32 s66, s{S_W}, 4')
    a.e('v_add_u32 v4, s66, v4')
    a.e(f's_lshl_b32 s67, s{S_I2}, 6')
    a.e('v_add_u32 v7, s67, v4')
    a.e(f'v_mul_u32_u24 v{V_OUT}, 896, v7')
    a.e(f'v_lshl_add_u32 v{V_OUT}, v5, 4, v{V_OUT}')
    a.e(f's_mul_i32 s70, s{S_J}, 112')
    a.e(f'v_add_u32 v{V_OUT}, s70, v{V_OUT}')
    a.e(f'v_mov_b32 v6, {OOB}')
    a.e('v_cmp_gt_u32 vcc, 7, v5')
    a.e(f'v_cndmask_b32 v{V_OUT}, v6, v{V_OUT}, vcc')
    a.e(f'v_add_u32 v{V_HAD}, {WS_H}, v{V_OUT}')
    a.e(f'v_lshlrev_b32 v{V_B2}, 1, v7')


def gemm2_tail_loads(fill):
    fill.append(f'buffer_load_dwordx4 v[{V_HR}:{V_HR+3}], v{V_HAD}, {WSR}, 0 offen sc1')
    fill.append(f's_mov_b32 s70, {8*896}')
    fill.append(f'buffer_load_dwordx4 v[{V_HR+4}:{V_HR+7}], v{V_HAD}, {WSR}, s70 offen sc1')
    fill.append(f'buffer_load_ushort v{V_HR+8}, v{V_B2}, s[{S_T3}:{S_T3+3}], 0 offen')
    fill.append(f'buffer_load_ushort v{V_HR+9}, v{V_B2}, s[{S_T3}:{S_T3+3}], 0 offen offset:16')
    return 4


def gemm2_epilogue(a):
    write_partials(a)
    a.e('v_lshrrev_b32 v4, 3, v1')
    a.e('v_and_b32 v5, 7, v1')
    a.e(f's_lshl_b32 s66, s{S_W}, 4')
    a.e('v_add_u32 v4, s66, v4')
    a.e(f'v_mul_u32_u24 v6, {PROW}, v4')
    a.e('v_lshl_add_u32 v6, v5, 4, v6')
    a.e(f'v_add_u32 v6, {L_PART}, v6')
    a.e('s_waitcnt lgkmcnt(0)')
    a.e('s_barrier')
    stamp(a, 33)
    for r in range(2):
        P = 16 + 32 * r
        for wv in range(4):
            a.e(f'ds_read_b128 v[{P+8*wv}:{P+8*wv+3}], v6 offset:{wv*PARTW + r*8*PROW}')
            a.e(f'ds_read_b128 v[{P+8*wv+4}:{P+8*wv+7}], v6 offset:{wv*PARTW + r*8*PROW + 112}')
    a.e('s_waitcnt vmcnt(0)')
    for r in range(2):
        P = 16 + 32 * r
        T = 80
        H = V_HR + 4 * r
        a.e(f'v_lshlrev_b32 v106, 16, v{V_HR+8+r}')
        for i in range(4):
            a.e(f'v_lshlrev_b32 v{96+i}, 16, v{H+i}')
            a.e(f'v_and_b32 v{100+i}, 0xffff0000, v{H+i}')
        a.e(f's_waitcnt lgkmcnt({8 if r == 0 else 0})')
        sum_partials(a, P)
        round_pairs(a, P, T, 8)
        for h in range(4):
            a.e(f'v_pk_add_f32 v[{P+2*h}:{P+2*h+1}], v[{P+2*h}:{P+2*h+1}], v[106:107] op_sel:[0,0] op_sel_hi:[1,0]')
        round_pairs(a, P, T, 8)
        for h in range(4):
            a.e(f'v_pk_add_f32 v[{P+2*h}:{P+2*h+1}], v[{P+2*h}:{P+2*h+1}], v[{96+2*h}:{97+2*h}]')
        O = 88 + 4 * r
        for i in range(4):
            a.e(f'v_cvt_pk_bf16_f32 v{O+i}, v{P+i}, v{P+4+i}')
        if r == 1:
            a.e(f'v_add_u32 v{V_OUT}, {8*896}, v{V_OUT}')
        a.e(f'buffer_store_dwordx4 v[{O}:{O+3}], v{V_OUT}, s[{S_T2}:{S_T2+3}], 0 offen' + ['', ' sc1', ' nt', ' sc0 sc1', ' sc1 nt'][OPT['outsc']])


def build():
    a = Prog()
    name = NAME + '_kernel'
    lend = a.lab('end')
    a.raw(f'.globl {name}')
    a.raw('.p2align 8')
    a.raw(f'.type {name},@function')
    a.raw(f'{name}:')
    prologue(a, lend)
    lnc1, lnc2, lnc3, lnc5, lnc6 = [a.lab('noconv') for _ in range(5)]

    def skip_if_helper(l):
        a.e(f's_cmp_ge_u32 s{S_LOC}, 28')
        a.e(f's_cbranch_scc1 {l}')

    load_xrows(a)
    a.e(f's_add_u32 s66, s{P_WS}, {WS_EPOCH}')
    a.e(f's_addc_u32 s67, s{P_WS+1}, 0')
    a.e('s_load_dword s99, s[66:67], 0')
    poison_regs(a)
    skip_if_helper(lnc1)
    kgen_loads(a)
    load_gather_table(a, 'ktab_idx')
    w_setup(a)
    nt = 0
    if OPT['tlb'] & 2:
        tlb_touch(a)
        nt = 5
    flag_addr(a)
    a.e('s_waitcnt lgkmcnt(0)')
    a.e(f's_add_u32 s{S_TAG}, s99, 0x9e3779b9')
    a.e(f's_waitcnt vmcnt({10 + nt})')
    stamp(a, 2)
    clear_hh(a)
    clear_aout(a)
    ln_stats(a, list(range(8, 16)), 16, L_RED0, 5)
    stamp(a, 3)
    publish_xn(a)
    nb0 = OPT['wb0']
    if OPT['sched'] == 2:
        qa, qb = OPT['qa'], OPT['qb']
        qpf_load(a, qa)
        stamp(a, 4)
        a.e(f's_waitcnt vmcnt({8 + nt + qa})')
        kgen_channel(a, 0, DK0)
        for k in range(nb0):
            w_dma(a, 1, k, BS[k])
        stamp(a, 40)
        kgen_channel(a, 1, DK1, mid=lambda: publish_flag(a, qa + 4 * nb0), mid_m0=False)
        stamp(a, 5)
        qpf_load(a, qb)
        a.e(f's_waitcnt vmcnt({qb})')
        for k in range(nb0):
            w_tr(a, k, BS[k])
        ktab_part1(a)
        stamp(a, 6)
        flag_load(a)
        ktab_part2(a)
        stamp(a, 7)
        a.e(f's_mov_b32 s{S_EARLY}, 0')
        lne = a.lab('notearly')
        a.e('s_waitcnt vmcnt(0)')
        a.e(f'v_cmp_ne_u32 vcc, s{S_TAG}, v{V_FV}')
        a.e(f's_cbranch_vccnz {lne}')
        load_u(a)
        a.e(f's_mov_b32 s{S_EARLY}, 1')
        a.e(f'{lne}:')
        conv_addr(a)
        kcopies(a)
        stamp(a, 8)
        lhave = a.lab('haveu')
        a.e(f's_cmp_lg_u32 s{S_EARLY}, 0')
        a.e(f's_cbranch_scc1 {lhave}')
        flag_poll(a)
        load_u(a)
        a.e(f'{lhave}:')
        stamp(a, 9)
        store_u(a, 0)
    else:
        stamp(a, 4)
        a.e(f's_waitcnt vmcnt({8 + nt})')
        kgen_channel(a, 0, DK0)
        publish_flag(a)
        for k in range(min(nb0, 3)):
            w_dma(a, 1, k, BS[k])
        stamp(a, 40)
        kgen_channel(a, 1, DK1, mid=(lambda: [w_dma(a, 1, k, BS[k]) for k in range(3, nb0)]) if nb0 > 3 else None)
        stamp(a, 5)
        if OPT['early']:
            flag_load(a)
            a.e('s_waitcnt vmcnt(1)')
        else:
            a.e('s_waitcnt vmcnt(0)')
        for k in range(nb0):
            w_tr(a, k, BS[k])
        ktab_part1(a)
        stamp(a, 6)
        a.e(f's_mov_b32 s{S_EARLY}, 0')
        lne = a.lab('notearly')
        if OPT['early']:
            a.e('s_waitcnt vmcnt(0)')
            a.e(f'v_cmp_ne_u32 vcc, s{S_TAG}, v{V_FV}')
            a.e(f's_cbranch_vccnz {lne}')
            load_u(a)
            a.e(f's_mov_b32 s{S_EARLY}, 1')
            a.e(f'{lne}:')
        qpf_load(a, OPT['w2pf_a'])
        ktab_part2(a)
        stamp(a, 7)
        conv_addr(a)
        kcopies(a)
        stamp(a, 8)
        lhave = a.lab('haveu')
        a.e(f's_cmp_lg_u32 s{S_EARLY}, 0')
        a.e(f's_cbranch_scc1 {lhave}')
        flag_poll(a)
        load_u(a)
        a.e('s_waitcnt vmcnt(0)')
        a.e(f'{lhave}:')
        stamp(a, 9)
        store_u(a, OPT['w2pf_a'])
    epoch_update(a)
    clear_g(a)
    if OPT['sched'] != 2:
        qpf_load(a, OPT['w2pf_b'])
    stamp(a, 10)
    hk = []
    for k in range(4):
        for i in range(4):
            hk.append(lambda k=k, i=i: w_dma1(a, 1, nb0 + k, AS[k], i))
            hk.append(lambda: None)
    phase_conv(a, hk, 0)
    stamp(a, 12)
    for k in range(4):
        w_tr(a, nb0 + k, AS[k])
    a.e('s_waitcnt lgkmcnt(0)')
    a.e('s_barrier')
    rest = list(range(nb0 + 4, 16))
    rest_slots = (BS + AS)[:len(rest)]
    for k, sl in zip(rest, rest_slots):
        w_dma(a, 1, k, sl)
    stamp(a, 13)
    a.e(f's_branch {lnc2}')
    a.e(f'{lnc1}:')
    code_prefetch(a, name, 'kcode_end')
    w_setup(a)
    if OPT['tlb'] & 1:
        tlb_touch(a)
    flag_addr(a)
    a.e('s_waitcnt lgkmcnt(0)')
    a.e(f's_add_u32 s{S_TAG}, s99, 0x9e3779b9')
    a.e(f's_waitcnt vmcnt({7 if OPT["tlb"] & 1 else 2})')
    clear_hh(a)
    ln_stats(a, list(range(8, 16)), 16, L_RED0, 5)
    publish_xn(a)
    publish_flag(a)
    qpf_load(a, 14)
    stamp(a, 41)
    flag_poll(a)
    a.e('s_barrier')
    stamp(a, 42)
    a.e(f'{lnc2}:')
    phase_p4(a)
    stamp(a, 20)
    gemm2_addr(a)
    skip_if_helper(lnc3)
    b1_load(a)
    for k, sl in zip(rest, rest_slots):
        w_tr(a, k, sl)
    a.e('s_waitcnt lgkmcnt(0)')
    for k in range(5):
        w_dma(a, 2, k, BS[k])
    stamp(a, 21)
    gemm_poll_main(a, WS_HH, 64, 16, 1, 22)
    stamp(a, 23)
    if OPT['h4early']:
        for k in range(5):
            w_tr(a, k, BS[k])
        a.e('s_waitcnt lgkmcnt(0)')
        for k in range(5, 8):
            w_dma(a, 2, k, BS[k - 5])
        gemm1_epilogue(a)
        stamp(a, 25)
        a.e('s_barrier')
        for k in range(8, 10):
            w_dma(a, 2, k, BS[k - 5])
        for k in range(10, 14):
            w_dma(a, 2, k, AS[k - 10])
        a.e('s_waitcnt vmcnt(26)')
        for k in range(5, 8):
            w_tr(a, k, BS[k - 5])
        a.e('s_waitcnt vmcnt(16)')
        for k in range(8, 10):
            w_tr(a, k, BS[k - 5])
        a.e('s_waitcnt vmcnt(0)')
        for k in range(10, 14):
            w_tr(a, k, AS[k - 10])
        a.e('s_waitcnt lgkmcnt(0)')
        a.e(f's_branch {lnc6}')
    else:
        gemm1_epilogue(a)
        stamp(a, 25)
        for k in range(5):
            w_tr(a, k, BS[k])
        a.e('s_waitcnt lgkmcnt(0)')
        a.e('s_barrier')
        a.e(f's_branch {lnc5}')
    a.e(f'{lnc3}:')
    for k in range(5):
        w_dma(a, 2, k, BS[k])
    a.e('s_waitcnt vmcnt(0)')
    for k in range(5):
        w_tr(a, k, BS[k])
    a.e('s_waitcnt lgkmcnt(0)')
    a.e(f'{lnc5}:')
    for k in range(5, 10):
        w_dma(a, 2, k, BS[k - 5])
    for k in range(10, 14):
        w_dma(a, 2, k, AS[k - 10])
    a.e('s_waitcnt vmcnt(16)')
    for k in range(5, 10):
        w_tr(a, k, BS[k - 5])
    a.e('s_waitcnt vmcnt(0)')
    for k in range(10, 14):
        w_tr(a, k, AS[k - 10])
    a.e('s_waitcnt lgkmcnt(0)')
    a.e(f'{lnc6}:')
    stamp(a, 30)
    gemm_poll_main(a, WS_G, 56, 14, 2, 31, gemm2_tail_loads)
    stamp(a, 32)
    gemm2_epilogue(a)
    stamp_clk(a, 61)
    stamp(a, 63)
    stamp_flush(a)
    a.e(f'{lend}:')
    a.e('s_endpgm')
    a.raw('kcode_end:')
    emit_gather_table(a, 'ktab_idx')
    nn = a.fast_insert_nops()
    head = f'; @launch grid=(256,1,1) block=(256,1,1) lds={LDS_BYTES}\n'
    head += '.amdgcn_target "amdgcn-amd-amdhsa--gfx950"\n.text\n'
    tail = '.section .rodata,"a"\n.p2align 6\n' + descriptor(name)
    if OPT['align']:
        nal = a.align8(head, tail)
        sys.stderr.write(f'alignment: {nal}\n')
    sys.stderr.write(f'instructions: {a.count()}, nops inserted: {nn}\n')
    return head + a.text() + tail


if __name__ == '__main__':
    out = sys.argv[1]
    for arg in sys.argv[2:]:
        if arg == 'stamps':
            OPT['stamps'] = True
        elif arg == 'dbg':
            OPT['stamps'] = True
            OPT['dbgsel'] = [0, 1, 2, 4, 8, 9, 12, 13, 14, 20, 21, 23, 25, 30, 32, 63]
        elif '=' in arg:
            k, v = arg.split('=')
            OPT[k] = int(v)
    open(out, 'w').write(build())
```

```python
import sys
import gen
from gen import (Prog, NAME, L, D, F, XBYTES, PBYTES, W1BYTES, W2BYTES, OOB, fx, srd, reduce16, cmul, exp_bf16,
                 gather_table, emit_gather_table, descriptor, round_pairs, norm_tok, bcast_stats)

OPT = dict(cpf=1, sched=2, qa=7, qb=7, tlb=3, outsc=0, x3oob=1, h4early=1, wb0=3, xnb=1, stamps=False, dbgsel=None, w2pf_a=10, w2pf_b=4, nfl=3, early=True, align=True, hlds=True)

WS_FLAG = 0x4000
WS_EPOCH = 0x9000
WS_AOUT = 0x10000
AST = 8448
WS_H = 0x200000
WS_HH = 0x400000
WS_G = 0x600000
WS_DBG = 0x800000
WS_XN = 0xA00000
XCS = 4352
XPS = 2 * XCS
WS_USED = 0x1000000

L_RED0, L_RED1, L_SIG, L_KT = 0, 256, 512, 640
KTCH = 1600
L_U = L_KT + 2 * KTCH
UCH = 4608
L_SCR = L_U + 2 * UCH
SROW = 272
YROW = 41
SCRW = 57 * SROW
L_KC = 82688
KCOPY = 4160
KCH = 8 * KCOPY
L_CP = L_KC
LDS_BYTES = 160 * 1024
L_WA, L_WB = 13056, 78592
L_PART = 1024
PROW = 272
PARTW = 64 * PROW
L_HT = 1024

S_WS, S_X = 4, 8
S_T0, S_T1, S_T2, S_T3 = 12, 16, 20, 24
S_W1, S_W2 = 12, 16
S_W, S_XCD, S_LOC, S_B, S_P, S_J, S_I1, S_I2 = 28, 29, 30, 31, 32, 33, 34, 35
P_X, P_LAR, P_AI, P_CR, P_CI, P_LDT, P_DSK = 36, 38, 40, 42, 44, 46, 48
P_W1, P_B1, P_W2, P_B2, P_OUT, P_DBG, P_WS = 52, 54, 56, 58, 60, 62, 64
S_SA, S_SB = 50, 51
S_RW1, S_RX1, S_RW2, S_RX2 = 38, 39, 40, 41
S_QPF = 42
S_EARLY = 43
S_TAG, S_SPIN, S_RETRY = 96, 97, 98
V_D1, V_D2, V_TA, V_TB = 224, 228, 244, 248
V_QPF = 232
SPIN_MAX, RETRY_MAX = 4000, 20
AS = ['A0', 'A1', 'A2', 'A3']
BS = ['B0', 'B1', 'B2', 'B3', 'B4']
WSR = f's[{S_WS}:{S_WS+3}]'

assert (gen.S_W, gen.S_B, gen.S_WS) == (S_W, S_B, S_WS)


def stamp(a, idx):
    if not OPT['stamps']:
        return
    sel = OPT['dbgsel']
    if sel is not None:
        if idx not in sel:
            return
        idx = sel.index(idx)
    a.e('s_memrealtime s[100:101]')
    a.e('s_waitcnt lgkmcnt(0)')
    a.e(f'v_writelane_b32 v255, s100, {idx}')


def stamp_clk(a, idx):
    if not OPT['stamps'] or OPT['dbgsel'] is not None:
        return
    a.e('s_memtime s[100:101]')
    a.e('s_waitcnt lgkmcnt(0)')
    a.e(f'v_writelane_b32 v255, s100, {idx}')


def stamp_flush(a):
    if not OPT['stamps']:
        return
    l = a.lab('nost')
    a.e(f's_cmp_lg_u32 s{S_W}, 0')
    a.e(f's_cbranch_scc1 {l}')
    if OPT['dbgsel'] is not None:
        a.e('v_not_b32 v253, v255')
        a.e('v_cmp_eq_u32 vcc, 0, v1')
        a.e('v_cndmask_b32 v255, v255, v253, vcc')
        a.e('v_lshlrev_b32 v254, 2, v1')
        a.e('s_mov_b64 exec, 0xffff')
        a.e(f'global_atomic_umax v254, v255, s[{P_DBG}:{P_DBG+1}]')
        a.e('s_mov_b64 exec, -1')
    else:
        a.e('s_lshl_b32 s66, s2, 8')
        a.e(f's_add_u32 s66, s66, {WS_DBG}')
        a.e('v_lshl_add_u32 v254, v1, 2, s66')
        a.e(f'buffer_store_dword v255, v254, {WSR}, 0 offen')
    a.e(f'{l}:')


def spin_tail(a, lp):
    a.e(f's_add_u32 s{S_SPIN}, s{S_SPIN}, 1')
    a.e(f's_cmp_lt_u32 s{S_SPIN}, {SPIN_MAX}')
    a.e(f's_cbranch_scc1 {lp}')


def mask_lanes(a, v, n, tmp, src='v1'):
    a.e(f'v_mov_b32 v{tmp}, {OOB}')
    a.e(f'v_cmp_gt_u32 vcc, {n}, {src}')
    a.e(f'v_cndmask_b32 v{v}, v{tmp}, v{v}, vcc')


def prologue(a, lend):
    a.e('s_cmp_ge_u32 s2, 256')
    a.e(f's_cbranch_scc1 {lend}')
    if OPT['stamps']:
        a.e('v_mov_b32 v255, 0')
        stamp(a, 0)
        stamp_clk(a, 60)
    a.e('s_load_dwordx16 s[36:51], s[0:1], 0')
    a.e('s_load_dwordx8 s[52:59], s[0:1], 64')
    a.e('s_load_dwordx4 s[60:63], s[0:1], 96')
    a.e('s_load_dwordx2 s[64:65], s[0:1], 112')
    a.e('v_and_b32 v1, 63, v0')
    a.e('v_lshrrev_b32 v2, 6, v0')
    a.e(f's_and_b32 s{S_XCD}, s2, 7')
    a.e(f'v_readfirstlane_b32 s{S_W}, v2')
    a.e(f's_lshr_b32 s{S_LOC}, s2, 3')
    a.e(f's_lshl_b32 s{S_B}, s{S_XCD}, 5')
    a.e(f's_add_u32 s{S_B}, s{S_B}, s{S_LOC}')
    a.e(f's_mul_i32 s{S_P}, s{S_XCD}, 28')
    a.e(f's_add_u32 s{S_P}, s{S_P}, s{S_LOC}')
    a.e(f's_and_b32 s{S_J}, s{S_XCD}, 1')
    a.e(f's_lshl_b32 s{S_J}, s{S_J}, 2')
    a.e(f's_and_b32 s3, s{S_LOC}, 3')
    a.e(f's_add_u32 s{S_J}, s{S_J}, s3')
    a.e(f's_lshr_b32 s3, s{S_XCD}, 1')
    a.e(f's_lshr_b32 s66, s{S_LOC}, 2')
    a.e(f's_mul_i32 s{S_I1}, s3, 7')
    a.e(f's_add_u32 s{S_I1}, s{S_I1}, s66')
    a.e(f's_lshl_b32 s{S_I2}, s3, 3')
    a.e(f's_add_u32 s{S_I2}, s{S_I2}, s66')
    a.e('s_waitcnt lgkmcnt(0)')
    srd(a, S_X, P_X, XBYTES)
    srd(a, S_WS, P_WS, WS_USED)
    stamp(a, 1)


def xrow_addr(a):
    a.e(f's_mul_i32 s66, s{S_W}, 224')
    a.e(f's_mul_i32 s67, s{S_B}, {8*896}')
    a.e('s_add_u32 s66, s66, s67')
    a.e('v_lshl_add_u32 v2, v1, 2, s66')
    mask_lanes(a, 2, 56, 3)
    a.e('v_add_u32 v3, 4480, v2')


def load_xrows(a):
    xrow_addr(a)
    for j in range(8):
        v, o = (2, j * 896) if j < 5 else (3, (j - 5) * 896)
        a.e(f'buffer_load_dword v{8+j}, v{v}, s[{S_X}:{S_X+3}], 0 offen offset:{o}')


def ln_stats(a, X, T, red, vt, mid=None):
    a.e('s_mov_b32 s66, 0x3f803f80')
    for j in range(8):
        a.e(f'v_dot2_f32_bf16 v{T+j}, v{X[j]}, s66, 0')
        a.e(f'v_dot2_f32_bf16 v{T+8+j}, v{X[j]}, v{X[j]}, 0')
    a.e(f'v_lshlrev_b32 v{vt}, 2, v1')
    a.e(f'v_and_b32 v{vt}, 0xf0, v{vt}')
    a.e(f's_lshl_b32 s66, s{S_W}, 2')
    a.e(f'v_add_u32 v{vt}, s66, v{vt}')
    reduce16(a, [T + i for i in range(16)])
    a.e('s_mov_b32 exec_lo, 0x11111111')
    a.e('s_mov_b32 exec_hi, 0x11111111')
    a.e(f'ds_write_b32 v{vt}, v{T} offset:{red}')
    a.e('s_mov_b64 exec, -1')
    a.e(f'v_and_b32 v{vt}, 7, v1')
    a.e(f'v_lshlrev_b32 v{vt}, 4, v{vt}')
    a.e('s_waitcnt lgkmcnt(0)')
    a.e('s_barrier')
    a.e(f'ds_read_b128 v[{T}:{T+3}], v{vt} offset:{red}')
    a.e(f'ds_read_b128 v[{T+4}:{T+7}], v{vt} offset:{red+128}')
    n_mid = mid() if mid else 0
    a.e(f's_waitcnt lgkmcnt({1 + n_mid})')
    a.e(f'v_pk_add_f32 v[{T}:{T+1}], v[{T}:{T+1}], v[{T+2}:{T+3}]')
    a.e(f's_waitcnt lgkmcnt({n_mid})')
    a.e(f'v_pk_add_f32 v[{T+4}:{T+5}], v[{T+4}:{T+5}], v[{T+6}:{T+7}]')
    a.e(f'v_add_f32 v{T}, v{T}, v{T+1}')
    a.e(f'v_add_f32 v{T+4}, v{T+4}, v{T+5}')
    a.e(f'v_mul_f32 v{T}, {fx(1.0/448)}, v{T}')
    a.e(f'v_mul_f32 v{T+4}, {fx(1.0/448)}, v{T+4}')
    a.e(f'v_fma_f32 v{T+4}, -v{T}, v{T}, v{T+4}')
    a.e(f'v_max_f32 v{T+4}, 0, v{T+4}')
    a.e(f'v_cvt_pk_bf16_f32 v{T+4}, v{T+4}, v{T+4}')
    a.e(f'v_lshlrev_b32 v{T+4}, 16, v{T+4}')
    a.e(f'v_add_f32 v{T+4}, {fx(1e-5)}, v{T+4}')
    a.e(f'v_cvt_pk_bf16_f32 v{T+4}, v{T+4}, v{T+4}')
    a.e(f'v_lshlrev_b32 v{T+4}, 16, v{T+4}')
    a.e(f'v_sqrt_f32 v{T+4}, v{T+4}')
    a.e(f'v_cvt_pk_bf16_f32 v{T}, v{T}, v{T+4}')


def poison_regs(a):
    for r in range(216, 220):
        a.e(f'v_mov_b32 v{r}, -1')


def clear_hh(a):
    a.e(f's_mul_i32 s66, s{S_B}, 7168')
    a.e(f's_add_u32 s66, s66, {WS_HH}')
    a.e('v_lshl_add_u32 v4, v0, 4, s66')
    a.e('v_add_u32 v5, 4096, v4')
    mask_lanes(a, 5, 192, 6, 'v0')
    a.e(f'buffer_store_dwordx4 v[216:219], v4, {WSR}, 0 offen sc1')
    a.e(f'buffer_store_dwordx4 v[216:219], v5, {WSR}, 0 offen sc1')


def clear_aout(a):
    a.e(f's_mul_i32 s66, s{S_P}, {AST}')
    a.e(f's_add_u32 s66, s66, {WS_AOUT}')
    a.e('v_lshl_add_u32 v4, v0, 4, s66')
    a.e('v_add_u32 v5, 4096, v4')
    a.e(f'buffer_store_dwordx4 v[216:219], v4, {WSR}, 0 offen sc1')
    a.e(f'buffer_store_dwordx4 v[216:219], v5, {WSR}, 0 offen sc1')


def g_store_addr(a, vd):
    a.e(f's_lshl_b32 s66, s{S_I1}, 3')
    a.e(f's_lshl_b32 s70, s{S_W}, 1')
    a.e('s_add_u32 s66, s66, s70')
    a.e('s_mul_i32 s66, s66, 7168')
    a.e(f's_mul_i32 s70, s{S_J}, 896')
    a.e('s_add_u32 s66, s66, s70')
    a.e(f's_add_u32 s66, s66, {WS_G}')
    a.e(f'v_lshl_add_u32 v{vd}, v1, 4, s66')
    mask_lanes(a, vd, 56, 6)


def clear_g(a):
    g_store_addr(a, 4)
    a.e('v_add_u32 v5, 7168, v4')
    a.e(f'buffer_store_dwordx4 v[216:219], v4, {WSR}, 0 offen sc1')
    a.e(f'buffer_store_dwordx4 v[216:219], v5, {WSR}, 0 offen sc1')


def publish_xn(a):
    bcast_stats(a, 16)
    for j in range(8):
        d = 64 + 2 * j
        t = 48 + j
        a.e(f'v_lshlrev_b32 v{d}, 16, v{8+j}')
        a.e(f'v_and_b32 v{d+1}, 0xffff0000, v{8+j}')
        a.e(f'v_pk_add_f32 v[{d}:{d+1}], v[{d}:{d+1}], s[{72+2*j}:{73+2*j}] op_sel:[0,0] op_sel_hi:[1,0] neg_lo:[0,1] neg_hi:[0,1]')
        a.e(f'v_cvt_pk_bf16_f32 v{t}, v{d}, v{d+1}')
        a.e(f'v_lshlrev_b32 v{d}, 16, v{t}')
        a.e(f'v_and_b32 v{d+1}, 0xffff0000, v{t}')
        a.e(f'v_pk_mul_f32 v[{d}:{d+1}], v[{d}:{d+1}], s[{72+2*j}:{73+2*j}] op_sel:[0,1] op_sel_hi:[1,1]')
        a.e(f'v_cvt_pk_bf16_f32 v{t}, v{d}, v{d+1}')
        a.e(f'v_lshlrev_b32 v{d}, 16, v{t}')
        a.e(f'v_and_b32 v{d+1}, 0xffff0000, v{t}')
    for i in range(4):
        a.e(f'v_cvt_pk_f16_f32 v{80+i}, v{64+4*i}, v{66+4*i}')
        a.e(f'v_cvt_pk_f16_f32 v{84+i}, v{65+4*i}, v{67+4*i}')
    if OPT['xnb']:
        a.e(f's_mul_i32 s66, s{S_W}, {56*16}')
        a.e(f's_mul_i32 s67, s{S_B}, 7168')
        a.e('s_add_u32 s66, s66, s67')
        a.e(f's_add_u32 s66, s66, {WS_XN}')
        a.e('v_lshl_add_u32 v4, v1, 4, s66')
        mask_lanes(a, 4, 56, 5)
        a.e('v_add_u32 v5, 3584, v4')
    else:
        a.e(f's_mul_i32 s66, s{S_W}, {56*XPS}')
        a.e(f's_lshl_b32 s67, s{S_B}, 4')
        a.e('s_add_u32 s66, s66, s67')
        a.e(f's_add_u32 s66, s66, {WS_XN}')
        a.e(f'v_mul_u32_u24 v4, {XPS}, v1')
        a.e('v_add_u32 v4, s66, v4')
        mask_lanes(a, 4, 56, 5)
        a.e(f'v_add_u32 v5, {XCS}, v4')
    a.e(f'buffer_store_dwordx4 v[80:83], v4, {WSR}, 0 offen sc1')
    a.e(f'buffer_store_dwordx4 v[84:87], v5, {WSR}, 0 offen sc1')


def publish_flag(a, vm=0):
    a.e(f's_waitcnt vmcnt({vm})')
    a.e('s_barrier')
    l = a.lab('noflag')
    a.e(f's_cmp_lg_u32 s{S_W}, 0')
    a.e(f's_cbranch_scc1 {l}')
    a.e(f's_lshl_b32 s66, s{S_B}, 6')
    a.e(f's_add_u32 s66, s66, {WS_FLAG}')
    a.e('v_mov_b32 v2, s66')
    a.e(f'v_mov_b32 v3, s{S_TAG}')
    a.e('s_mov_b64 exec, 1')
    a.e(f'buffer_store_dword v3, v2, {WSR}, 0 offen sc1')
    a.e('s_mov_b64 exec, -1')
    a.e(f'{l}:')


V_FA, V_FV = 233, 234


def flag_addr(a):
    a.e(f'v_lshlrev_b32 v{V_FA}, 6, v0')
    a.e(f'v_add_u32 v{V_FA}, {WS_FLAG}, v{V_FA}')


def flag_load(a):
    a.e(f'buffer_load_dword v{V_FV}, v{V_FA}, {WSR}, 0 offen sc1')


def flag_poll(a):
    lp, ld = a.lab('fpoll'), a.lab('fdone')
    a.e(f's_mov_b32 s{S_SPIN}, 0')
    a.e(f'{lp}:')
    flag_load(a)
    a.e('s_waitcnt vmcnt(0)')
    a.e(f'v_cmp_ne_u32 vcc, s{S_TAG}, v{V_FV}')
    a.e(f's_cbranch_vccz {ld}')
    spin_tail(a, lp)
    a.e(f'{ld}:')


def load_u(a):
    if OPT['xnb']:
        a.e(f's_lshl_b32 s66, s{S_P}, 4')
        a.e(f's_add_u32 s66, s66, {WS_XN}')
        a.e('v_mul_u32_u24 v2, 7168, v0')
        a.e('v_add_u32 v2, s66, v2')
        a.e('v_add_u32 v3, 3584, v2')
    else:
        a.e(f's_mul_i32 s66, s{S_P}, {XPS}')
        a.e(f's_add_u32 s66, s66, {WS_XN}')
        a.e('v_lshl_add_u32 v2, v0, 4, s66')
        a.e(f'v_add_u32 v3, {XCS}, v2')
    a.e(f'buffer_load_dwordx4 v[176:179], v2, {WSR}, 0 offen sc1')
    a.e(f'buffer_load_dwordx4 v[180:183], v3, {WSR}, 0 offen sc1')


def epoch_update(a):
    le = a.lab('noep')
    a.e('s_cmp_lg_u32 s2, 0')
    a.e(f's_cbranch_scc1 {le}')
    a.e(f'v_mov_b32 v2, {WS_EPOCH}')
    a.e(f'v_mov_b32 v3, s{S_TAG}')
    a.e('s_mov_b64 exec, 1')
    a.e(f'buffer_store_dword v3, v2, {WSR}, 0 offen sc1')
    a.e('s_mov_b64 exec, -1')
    a.e(f'{le}:')


def code_prefetch(a, lstart, lend_):
    lp = a.lab('pcp')
    a.e('s_getpc_b64 s[74:75]')
    a.e(f'{lp}:')
    a.e(f's_sub_u32 s74, s74, {lp}-{lstart}')
    a.e('s_subb_u32 s75, s75, 0')
    a.e('v_lshlrev_b32 v4, 6, v0')
    a.e(f's_mov_b32 s76, {lend_}-{lstart}-4')
    a.e('v_add_u32 v5, 16384, v4')
    a.e('v_min_u32 v4, s76, v4')
    a.e('v_min_u32 v5, s76, v5')
    a.e('global_load_dword v220, v4, s[74:75]')
    a.e('global_load_dword v220, v5, s[74:75]')


def code_prefetch1(a, lstart, lend_):
    lp = a.lab('pcp')
    a.e('s_getpc_b64 s[74:75]')
    a.e(f'{lp}:')
    a.e('v_lshlrev_b32 v4, 6, v0')
    a.e(f's_mov_b32 s76, {lend_}-{lp}-4')
    a.e('v_min_u32 v4, s76, v4')
    a.e('global_load_dword v220, v4, s[74:75]')


def tlb_touch(a):
    a.e('v_lshlrev_b32 v4, 21, v1')
    a.e(f'buffer_load_dword v220, v4, s[{S_W1}:{S_W1+3}], 0 offen')
    a.e(f'buffer_load_dword v220, v4, s[{S_W2}:{S_W2+3}], 0 offen')
    a.e(f'buffer_load_dword v220, v4, {WSR}, 0 offen')
    srd(a, S_T2, P_OUT, XBYTES)
    a.e(f'buffer_load_dword v220, v4, s[{S_T2}:{S_T2+3}], 0 offen')
    srd(a, S_T3, P_B2, L * 2)
    a.e(f'buffer_load_dword v220, v4, s[{S_T3}:{S_T3+3}], 0 offen')


def kgen_loads(a):
    srd(a, S_T0, P_LAR, PBYTES)
    srd(a, S_T1, P_AI, PBYTES)
    srd(a, S_T2, P_CR, PBYTES)
    srd(a, S_T3, P_CI, PBYTES)
    a.e(f's_lshl_b32 s66, s{S_P}, 10')
    a.e(f's_lshl_b32 s67, s{S_W}, 7')
    a.e('s_add_u32 s66, s66, s67')
    a.e('v_lshl_add_u32 v2, v1, 1, s66')
    for c in range(2):
        for k, s in enumerate((S_T0, S_T1, S_T2, S_T3)):
            a.e(f'buffer_load_ushort v{40+4*c+k}, v2, s[{s}:{s+3}], 0 offen offset:{512*c}')
    a.e(f's_lshl_b32 s66, s{S_P}, 2')
    a.e(f's_load_dword s68, s[{P_LDT}:{P_LDT+1}], s66')
    a.e(f's_load_dword s69, s[{P_DSK}:{P_DSK+1}], s66')


def load_gather_table(a, tablabel):
    lp = a.lab('pc')
    a.e('s_getpc_b64 s[70:71]')
    a.e(f'{lp}:')
    a.e(f's_add_u32 s70, s70, {tablabel}-{lp}')
    a.e('s_addc_u32 s71, s71, 0')
    a.e('v_lshlrev_b32 v2, 5, v0')
    a.e('global_load_dwordx4 v[160:163], v2, s[70:71]')
    a.e('global_load_dwordx4 v[164:167], v2, s[70:71] offset:16')


DK0, DK1 = 16, 28


def kgen_channel(a, c, DACC, mid=None, mid_m0=True):
    LAR, AI, CR, CI = 40 + 4 * c, 41 + 4 * c, 42 + 4 * c, 43 + 4 * c
    SIG, DT = 52 + c, 54 + c
    AL, BE = 56, 57
    Z1, Z2, Z4, Z8, Z128, Z256, Z512, Z1024 = 58, 60, 62, 64, 66, 68, 70, 72
    X0, CA, CB, CC, T0, T1 = 74, 76, 78, 80, 82, 84
    CV = [86, 87, 88, 89]
    VW, VR = 90, 91
    t, t2 = 92, 93
    for r in (LAR, AI, CR, CI):
        a.e(f'v_lshlrev_b32 v{r}, 16, v{r}')
    a.e('s_lshl_b32 s66, s68, 16' if c == 0 else 's_and_b32 s66, s68, 0xffff0000')
    a.e(f'v_mov_b32 v{t2}, s66')
    exp_bf16(a, DT, t2, t)
    a.e(f'v_add_f32 v{SIG}, abs(v{CR}), abs(v{CI})')
    exp_bf16(a, AL, LAR, t)
    a.e(f'v_add_f32_dpp v{SIG}, v{SIG}, v{SIG} quad_perm:[1,0,3,2] row_mask:0xf bank_mask:0xf')
    a.e(f'v_mul_f32 v{AL}, v{AL}, v{DT}')
    a.e(f'v_mul_f32 v{BE}, v{AI}, v{DT}')
    a.e(f'v_add_f32_dpp v{SIG}, v{SIG}, v{SIG} quad_perm:[2,3,0,1] row_mask:0xf bank_mask:0xf')
    a.e(f'v_mul_f32 v{AL}, {fx(-1.4426950408889634)}, v{AL}')
    a.e(f'v_mul_f32 v{BE}, {fx(0.15915494309189535)}, v{BE}')
    a.e(f'v_add_f32_dpp v{SIG}, v{SIG}, v{SIG} row_half_mirror row_mask:0xf bank_mask:0xf')
    a.e(f'v_exp_f32 v{T0}, v{AL}')
    a.e(f'v_fract_f32 v{t}, v{BE}')
    a.e(f'v_add_f32_dpp v{SIG}, v{SIG}, v{SIG} row_ror:8 row_mask:0xf bank_mask:0xf')
    a.e(f'v_cos_f32 v{Z1}, v{t}')
    a.e(f'v_sin_f32 v{Z1+1}, v{t}')
    a.e(f'v_mov_b32 v{t2}, v{SIG}')
    a.e(f'v_mul_f32 v{T1}, 0x43000000, v{AL}')
    a.e(f'v_mul_f32 v{t}, 0x43000000, v{BE}')
    a.e(f'v_permlane16_swap_b32 v{SIG}, v{t2}')
    a.e(f'v_pk_mul_f32 v[{Z1}:{Z1+1}], v[{Z1}:{Z1+1}], v[{T0}:{T0+1}] op_sel:[0,0] op_sel_hi:[1,0]')
    a.e(f'v_add_f32 v{SIG}, v{SIG}, v{t2}')
    a.e(f'v_exp_f32 v{T1}, v{T1}')
    a.e(f'v_fract_f32 v{t}, v{t}')
    a.e(f'v_mov_b32 v{t2}, v{SIG}')
    a.e(f'v_cos_f32 v{Z128}, v{t}')
    a.e(f'v_sin_f32 v{Z128+1}, v{t}')
    a.e(f'v_permlane32_swap_b32 v{SIG}, v{t2}')
    cmul(a, Z2, Z1, Z1, Z2)
    a.e(f'v_add_f32 v{SIG}, v{SIG}, v{t2}')
    a.e(f'v_pk_mul_f32 v[{Z128}:{Z128+1}], v[{Z128}:{Z128+1}], v[{T1}:{T1+1}] op_sel:[0,0] op_sel_hi:[1,0]')
    a.e(f'v_add_f32 v{SIG}, {fx(1e-30)}, v{SIG}')
    cmul(a, Z4, Z2, Z2, Z4)
    a.e(f'v_rcp_f32 v{t}, v{SIG}')
    cmul(a, Z256, Z128, Z128, Z256)
    cmul(a, Z8, Z4, Z4, Z8)
    a.e(f'v_mul_f32 v{X0}, v{CR}, v{t}')
    a.e(f'v_mul_f32 v{X0+1}, v{CI}, v{t}')
    cmul(a, Z512, Z256, Z256, Z512)
    a.e(f's_mul_i32 s66, s{S_W}, {SCRW}')
    a.e(f's_add_u32 s66, s66, {L_SCR}')
    a.e('s_mov_b32 m0, s66')
    cmul(a, Z1024, Z512, Z512, Z1024)
    a.e(f'v_and_b32 v{t}, 15, v1')
    a.e(f'v_mul_u32_u24 v{t}, {SROW}, v{t}')
    a.e(f'v_lshrrev_b32 v{t2}, 4, v1')
    a.e(f'v_lshl_add_u32 v{t}, v{t2}, 4, v{t}')
    a.e(f'v_add_u32 v{VR}, s66, v{t}')
    cvi = [0]
    pend = []

    def flush(keep):
        while len(pend) > keep:
            cv, off = pend.pop(0)
            a.e(f'ds_write_addtid_b32 v{cv} offset:{off}')

    def put(off, r, neg):
        cv = CV[cvi[0] % 4]
        cvi[0] += 1
        a.e(f'v_cvt_pk_f16_f32 v{cv}, v{r}, {"-" if neg else ""}v{r+1}')
        flush(1)
        pend.append((cv, off))

    def putX(row, r):
        put(row * SROW, r, True)

    def putY(b, r):
        put((YROW + b) * SROW, r, False)

    a.e(f'v_mov_b32 v{VW}, 0x00003c00')
    pend.append((VW, YROW * SROW))
    putY(1, Z8)
    ychain = {'cur': Z8, 'b': 1}
    YA, YB = CC, 94

    def ystep():
        if ychain['b'] >= 15:
            return
        d = YA if ychain['cur'] != YA else YB
        cmul(a, d, ychain['cur'], Z8, d)
        ychain['b'] += 1
        ychain['cur'] = d
        putY(ychain['b'], d)

    putX(0, X0)
    cmul(a, T0, X0, Z128, T0)
    putX(8, T0)
    cur = X0
    for j in range(1, 8):
        d = CA if cur != CA else CB
        cmul(a, d, cur, Z1, d)
        ystep()
        putX(j, d)
        cmul(a, T0, d, Z128, T0)
        putX(8 + j, T0)
        cur = d
    cmul(a, CA, X0, Z256, CA)
    ystep()
    putX(16, CA)
    cmul(a, T0, CA, Z128, T0)
    putX(20, T0)
    cur = CA
    for j in range(1, 4):
        d = CA if cur != CA else CB
        cmul(a, d, cur, Z2, d)
        ystep()
        putX(16 + j, d)
        cmul(a, T0, d, Z128, T0)
        putX(20 + j, T0)
        cur = d
    if mid is not None:
        if mid_m0:
            flush(0)
        mid()
        if mid_m0:
            a.e(f's_mul_i32 s66, s{S_W}, {SCRW}')
            a.e(f's_add_u32 s66, s66, {L_SCR}')
            a.e('s_mov_b32 m0, s66')
    cmul(a, CA, X0, Z512, CA)
    ystep()
    putX(24, CA)
    cmul(a, CB, CA, Z4, CB)
    ystep()
    putX(25, CB)
    pa, pb = CA, CB
    na, nb = T0, T1
    for q in range(1, 4):
        cmul(a, na, pa, Z128, na)
        cmul(a, nb, pb, Z128, nb)
        ystep()
        putX(24 + 2 * q, na)
        putX(25 + 2 * q, nb)
        pa, pb, na, nb = na, nb, pa, pb
    cmul(a, CA, X0, Z1024, CA)
    putX(32, CA)
    cur = CA
    for q in range(1, 9):
        d = CA if cur != CA else CB
        cmul(a, d, cur, Z128, d)
        putX(32 + q, d)
        cur = d
    while ychain['b'] < 15:
        ystep()
    flush(0)
    FA = 96
    for k in range(4):
        a.e(f'ds_read_b128 v[{144+4*k}:{147+4*k}], v{VR} offset:{YROW*SROW+64*k}')
        for T in range(3):
            r = FA + 16 * T + 4 * k
            a.e(f'ds_read_b128 v[{r}:{r+3}], v{VR} offset:{16*T*SROW+64*k}')
    for k in range(4):
        a.e(f's_waitcnt lgkmcnt({4*(3-k)})')
        for T in range(3):
            r = FA + 16 * T + 4 * k
            cc = '0' if k == 0 else f'v[{DACC+4*T}:{DACC+4*T+3}]'
            a.e(f'v_mfma_f32_16x16x32_f16 v[{DACC+4*T}:{DACC+4*T+3}], v[{r}:{r+3}], v[{144+4*k}:{147+4*k}], {cc}')


def ktab_part1(a):
    a.e(f's_mul_i32 s66, s{S_W}, {SCRW}')
    a.e(f's_add_u32 s66, s66, {L_SCR}')
    a.e('v_lshl_add_u32 v90, v1, 4, s66')
    a.e(f's_lshl_b32 s67, s{S_W}, 2')
    a.e(f's_add_u32 s67, s67, {L_SIG}')
    a.e('v_mov_b32 v91, s67')
    a.e('s_mov_b64 exec, 1')
    a.e('ds_write_b32 v91, v52')
    a.e('ds_write_b32 v91, v53 offset:16')
    a.e('s_mov_b64 exec, -1')
    for c, DK in ((0, DK0), (1, DK1)):
        for T in range(3):
            for h in range(2):
                i = DK + 4 * T + 2 * h
                a.e(f'v_pk_mul_f32 v[{i}:{i+1}], v[{i}:{i+1}], v[52:53] op_sel:[0,{c}] op_sel_hi:[1,{c}]')
            a.e(f'ds_write_b128 v90, v[{DK+4*T}:{DK+4*T+3}] offset:{c*3072+T*1024}')
    a.e('v_mov_b32 v96, 0')
    a.e('v_mov_b32 v97, 0')
    a.e('v_mov_b32 v98, 0')
    a.e('v_mov_b32 v99, 0')
    a.e(f'v_mov_b32 v92, {L_KT + 1536}')
    a.e('ds_write_b32 v92, v96')
    a.e(f'ds_write_b32 v92, v96 offset:{KTCH}')
    a.e('v_lshlrev_b32 v92, 3, v1')
    a.e(f'ds_write_b64 v92, v[96:97] offset:{L_U}')
    a.e(f'ds_write_b64 v92, v[96:97] offset:{L_U + UCH}')
    a.e('s_waitcnt lgkmcnt(0)')
    a.e('s_barrier')


def ktab_part2(a):
    a.e(f'v_mov_b32 v91, {L_SIG}')
    a.e('ds_read_b128 v[44:47], v91')
    a.e('ds_read_b128 v[48:51], v91 offset:16')
    a.e(f's_and_b32 s67, s{S_W}, 1')
    a.e(f's_lshr_b32 s70, s{S_W}, 1')
    a.e('s_mul_i32 s71, s67, 3072')
    a.e('s_lshl_b32 s72, s70, 10')
    a.e('s_add_u32 s72, s72, s71')
    a.e(f's_add_u32 s72, s72, {L_SCR}')
    a.e(f's_add_u32 s71, s71, {L_SCR + 2048}')
    a.e('v_lshl_add_u32 v90, v1, 4, s72')
    a.e('v_lshl_add_u32 v91, v1, 4, s71')
    for wv in range(4):
        a.e(f'ds_read_b128 v[{96+4*wv}:{99+4*wv}], v90 offset:{wv*SCRW}')
    for wv in range(4):
        a.e(f'ds_read_b128 v[{112+4*wv}:{115+4*wv}], v91 offset:{wv*SCRW}')
    a.e('v_mov_b32 v128, 0')
    a.e('v_mov_b32 v129, 0')
    a.e('v_mov_b32 v130, 0')
    a.e('v_mov_b32 v131, 0')
    a.e('v_and_b32 v132, 15, v1')
    a.e(f'v_mul_u32_u24 v132, {KCOPY}, v132')
    a.e(f'v_add_u32 v132, {L_KC}, v132')
    a.e('ds_write_b128 v132, v[128:131] offset:4096')
    a.e('v_lshrrev_b32 v92, 4, v1')
    a.e('v_lshlrev_b32 v92, 7, v92')
    a.e('v_and_b32 v93, 15, v1')
    a.e('v_lshl_add_u32 v92, v93, 1, v92')
    a.e(f's_mul_i32 s71, s67, {KTCH}')
    a.e(f's_add_u32 s71, s71, {L_KT}')
    a.e('v_add_u32 v93, s71, v92')
    a.e('s_lshl_b32 s72, s70, 9')
    a.e('v_add_u32 v92, s72, v93')
    a.e('s_waitcnt lgkmcnt(9)')
    a.e('v_pk_add_f32 v[44:45], v[44:45], v[46:47]')
    a.e('v_pk_add_f32 v[48:49], v[48:49], v[50:51]')
    a.e('v_add_f32 v44, v44, v45')
    a.e('v_add_f32 v45, v48, v49')
    a.e('s_cmp_eq_u32 s67, 0')
    a.e('s_cselect_b64 vcc, -1, 0')
    a.e('v_pk_mul_f32 v[54:55], v[54:55], v[44:45]')
    a.e('v_cndmask_b32 v46, v45, v44, vcc')
    a.e('v_pk_add_f32 v[54:55], v[54:55], v[54:55]')
    a.e('v_rcp_f32 v46, v46')
    for jb, (base, va, off) in enumerate(((96, 92, 0), (112, 93, 1024))):
        a.e(f's_waitcnt lgkmcnt({5 if jb == 0 else 5})')
        for h in range(2):
            a.e(f'v_pk_add_f32 v[{base+2*h}:{base+2*h+1}], v[{base+2*h}:{base+2*h+1}], v[{base+4+2*h}:{base+5+2*h}]')
            a.e(f'v_pk_add_f32 v[{base+8+2*h}:{base+9+2*h}], v[{base+8+2*h}:{base+9+2*h}], v[{base+12+2*h}:{base+13+2*h}]')
        for h in range(2):
            a.e(f'v_pk_add_f32 v[{base+2*h}:{base+2*h+1}], v[{base+2*h}:{base+2*h+1}], v[{base+8+2*h}:{base+9+2*h}]')
        for h in range(2):
            a.e(f'v_pk_mul_f32 v[{base+2*h}:{base+2*h+1}], v[{base+2*h}:{base+2*h+1}], v[46:47] op_sel:[0,0] op_sel_hi:[1,0]')
        a.e(f'v_cvt_pk_f16_f32 v{base+4}, v{base}, v{base+1}')
        a.e(f'v_cvt_pk_f16_f32 v{base+5}, v{base+2}, v{base+3}')
        a.e(f'ds_write_b16 v{va}, v{base+4} offset:{off}')
        a.e(f'ds_write_b16_d16_hi v{va}, v{base+4} offset:{off+32}')
        a.e(f'ds_write_b16 v{va}, v{base+5} offset:{off+64}')
        a.e(f'ds_write_b16_d16_hi v{va}, v{base+5} offset:{off+96}')
    for e in range(15):
        src = 160 + e // 2
        if e % 2 == 0:
            a.e(f'v_and_b32 v{136+e}, 0xffff, v{src}')
        else:
            a.e(f'v_lshrrev_b32 v{136+e}, 16, v{src}')
    a.e('s_waitcnt lgkmcnt(0)')
    a.e('s_barrier')


def kcopies(a):
    AD = 136
    a.e('v_lshlrev_b32 v111, 4, v0')
    a.e(f'v_add_u32 v111, {L_KC}, v111')
    RR = [96, 112]
    for c in range(2):
        for e in range(15):
            a.e(f'ds_read_u16 v{RR[c]+e}, v{AD+e} offset:{L_KT + c*KTCH}')
    for c in range(2):
        R = RR[c]
        Da, Db, Oa, Ob = 56 + 0, 64, 72, 80
        if c == 1:
            Da, Db, Oa, Ob = 16, 24, 32, 40
        a.e(f's_waitcnt lgkmcnt({15 if c == 0 else 8})')
        for i in range(6):
            a.e(f'v_lshl_or_b32 v{Da+i}, v{R+2*i+1}, 16, v{R+2*i}')
            a.e(f'v_lshl_or_b32 v{Oa+i}, v{R+2*i+2}, 16, v{R+2*i+1}')
        if c == 1:
            a.e(f'v_add_u32 v110, {KCH}, v111')
        va = 111 if c == 0 else 110
        for s, r in ((0, Da), (1, Oa), (4, Da + 2), (5, Oa + 2)):
            a.e(f'ds_write_b128 v{va}, v[{r}:{r+3}] offset:{s*KCOPY}')
        for i in range(6):
            a.e(f'v_lshl_or_b32 v{Db+i}, v{R+2*i+3}, 16, v{R+2*i+2}')
            a.e(f'v_lshl_or_b32 v{Ob+i}, v{R+2*i+4}, 16, v{R+2*i+3}')
        for s, r in ((2, Db), (3, Ob), (6, Db + 2), (7, Ob + 2)):
            a.e(f'ds_write_b128 v{va}, v[{r}:{r+3}] offset:{s*KCOPY}')


def store_u(a, vm):
    a.e('v_lshlrev_b32 v2, 4, v0')
    a.e(f's_waitcnt vmcnt({vm})')
    a.e(f'ds_write_b128 v2, v[176:179] offset:{L_U + 512}')
    a.e(f'ds_write_b128 v2, v[180:183] offset:{L_U + UCH + 512}')
    a.e('s_waitcnt lgkmcnt(0)')
    a.e('s_barrier')


def phase_conv(a, hooks, pre_vm):
    hooks = list(hooks)
    ACC = 16
    FA = [[64 + 64 * s + 4 * i for i in range(8)] for s in range(2)]
    FB = [[96 + 64 * s + 4 * i for i in range(8)] for s in range(2)]
    VA, VB = 48, 49

    def loads(qq, s):
        out = []
        for i in range(8):
            out.append(f'ds_read_b128 v[{FB[s][i]}:{FB[s][i]+3}], v{VB} offset:{512*i + 64*(3-qq)}')
            out.append(f'ds_read_b128 v[{FA[s][i]}:{FA[s][i]+3}], v{VA} offset:{512*(7-i) + 64*(3-qq)}')
        return out

    for x in loads(0, 0):
        a.e(x)
    for qq in range(4):
        s = qq & 1
        nxt = loads(qq + 1, 1 - s) if qq < 3 else []
        n = 0
        for w in range(8):
            for c in range(w, 8):
                if n == 0:
                    a.e('s_waitcnt lgkmcnt(0)')
                cc = '0' if (qq == 0 and w == 0) else f'v[{ACC+4*c}:{ACC+4*c+3}]'
                a.e(f'v_mfma_f32_16x16x32_f16 v[{ACC+4*c}:{ACC+4*c+3}], v[{FA[s][w]}:{FA[s][w]+3}], v[{FB[s][c-w]}:{FB[s][c-w]+3}], {cc}')
                if nxt and n % 2 == 1:
                    a.e(nxt.pop(0))
                if hooks and n % 4 == 2:
                    hooks.pop(0)()
                n += 1
        assert not nxt
    assert not hooks
    stamp(a, 11)
    CP, TS = L_CP, 1280
    a.e('v_and_b32 v2, 15, v1')
    a.e('v_lshlrev_b32 v2, 4, v2')
    a.e('v_lshrrev_b32 v3, 4, v1')
    a.e('v_mul_u32_u24 v3, 320, v3')
    a.e('v_add_u32 v2, v2, v3')
    a.e(f's_mul_i32 s70, s{S_W}, {8*TS}')
    a.e(f's_add_u32 s70, s70, {CP}')
    a.e('v_add_u32 v2, s70, v2')
    a.e('s_barrier')
    for c in range(8):
        a.e(f'ds_write_b128 v2, v[{ACC+4*c}:{ACC+4*c+3}] offset:{c*TS}')
    a.e('v_lshrrev_b32 v2, 2, v1')
    a.e('v_lshlrev_b32 v2, 4, v2')
    a.e('v_and_b32 v3, 3, v1')
    a.e('v_mul_u32_u24 v3, 320, v3')
    a.e('v_add_u32 v2, v2, v3')
    a.e(f's_lshl_b32 s70, s{S_W}, 1')
    a.e(f's_mul_i32 s71, s70, {TS}')
    a.e(f's_add_u32 s71, s71, {CP}')
    a.e('v_add_u32 v2, s71, v2')
    a.e('s_lshl_b32 s71, s70, 9')
    a.e(f's_add_u32 s71, s71, {L_U + 512}')
    a.e('v_lshl_add_u32 v3, v1, 3, s71')
    a.e(f's_mul_i32 s71, s{S_P}, {AST}')
    a.e('s_lshl_b32 s72, s70, 10')
    a.e('s_add_u32 s71, s71, s72')
    a.e(f's_add_u32 s71, s71, {WS_AOUT}')
    a.e('v_lshl_add_u32 v4, v1, 4, s71')
    a.e('s_lshl_b32 s72, s69, 16')
    a.e('s_and_b32 s73, s69, 0xffff0000')
    a.e('v_mov_b32 v56, s72')
    a.e('v_mov_b32 v57, s73')
    a.e(f's_waitcnt lgkmcnt(0) vmcnt({pre_vm})')
    a.e('s_barrier')
    for q in range(2):
        P = 64 + 32 * q
        for ch in range(2):
            for hf in range(2):
                r = P + 8 * ch + 4 * hf
                a.e(f'ds_read_b128 v[{r}:{r+3}], v2 offset:{(2*ch+hf)*8*TS + q*TS}')
        for ch in range(2):
            a.e(f'ds_read_b64 v[{P+16+2*ch}:{P+17+2*ch}], v3 offset:{ch*UCH + q*512}')
    for q in range(2):
        P = 64 + 32 * q
        a.e(f's_waitcnt lgkmcnt({6 if q == 0 else 0})')
        for ch in range(2):
            y = P + 8 * ch
            T = 128 + 16 * ch
            u = P + 16 + 2 * ch
            for h in range(2):
                a.e(f'v_pk_add_f32 v[{y+2*h}:{y+2*h+1}], v[{y+2*h}:{y+2*h+1}], v[{y+4+2*h}:{y+5+2*h}]')
            for i in range(4):
                a.e(f'v_fma_mix_f32 v{T+i}, v{u+i//2}, v{56+ch}, 0 op_sel:[{i%2},0,0] op_sel_hi:[1,0,0]')
            for h in range(2):
                a.e(f'v_pk_mul_f32 v[{y+2*h}:{y+2*h+1}], v[{y+2*h}:{y+2*h+1}], v[54:55] op_sel:[0,{ch}] op_sel_hi:[1,{ch}]')
            for h in range(2):
                a.e(f'v_cvt_pk_bf16_f32 v{T+6+h}, v{T+2*h}, v{T+2*h+1}')
                a.e(f'v_cvt_pk_bf16_f32 v{T+4+h}, v{y+2*h}, v{y+2*h+1}')
            for h in range(2):
                a.e(f'v_lshlrev_b32 v{T+2*h}, 16, v{T+6+h}')
                a.e(f'v_and_b32 v{T+2*h+1}, 0xffff0000, v{T+6+h}')
                a.e(f'v_lshlrev_b32 v{y+2*h}, 16, v{T+4+h}')
                a.e(f'v_and_b32 v{y+2*h+1}, 0xffff0000, v{T+4+h}')
            for h in range(2):
                a.e(f'v_pk_add_f32 v[{y+2*h}:{y+2*h+1}], v[{y+2*h}:{y+2*h+1}], v[{T+2*h}:{T+2*h+1}]')
        O = 160 + 4 * q
        for i in range(4):
            a.e(f'v_cvt_pk_bf16_f32 v{O+i}, v{P+i}, v{P+8+i}')
        a.e(f'buffer_store_dwordx4 v[{O}:{O+3}], v4, {WSR}, 0 offen offset:{q*1024} sc1')


def conv_addr(a):
    a.e(f's_lshr_b32 s66, s{S_W}, 1')
    a.e(f's_and_b32 s67, s{S_W}, 1')
    a.e('v_and_b32 v2, 7, v1')
    a.e('v_sub_u32 v2, 7, v2')
    a.e(f'v_mul_u32_u24 v2, {KCOPY}, v2')
    a.e('v_lshrrev_b32 v3, 4, v1')
    a.e('v_bfe_u32 v4, v1, 3, 1')
    a.e('v_sub_u32 v4, v3, v4')
    a.e('v_lshl_add_u32 v2, v4, 4, v2')
    a.e(f's_mul_i32 s70, s66, {KCH}')
    a.e('s_lshl_b32 s71, s67, 8')
    a.e('s_sub_u32 s70, s70, s71')
    a.e(f's_add_u32 s70, s70, {L_KC + 16*253 - 512*7 - 64*3}')
    a.e('v_add_u32 v48, s70, v2')
    a.e('v_and_b32 v2, 15, v1')
    a.e('v_lshlrev_b32 v2, 5, v2')
    a.e('v_lshl_add_u32 v2, v3, 4, v2')
    a.e(f's_mul_i32 s70, s66, {UCH}')
    a.e('s_sub_u32 s70, s70, s71')
    a.e(f's_add_u32 s70, s70, {L_U + 480 - 64*3}')
    a.e('v_add_u32 v49, s70, v2')


def phase_p4(a):
    X = list(range(8, 16))
    A = 32
    xrow_addr(a)
    a.e(f's_mul_i32 s66, s{S_W}, {56*AST}')
    a.e(f's_lshl_b32 s67, s{S_B}, 5')
    a.e('s_add_u32 s66, s66, s67')
    a.e(f's_add_u32 s66, s66, {WS_AOUT}')
    a.e(f'v_mul_u32_u24 v4, {AST}, v1')
    a.e('v_add_u32 v4, s66, v4')
    a.e(f'v_mov_b32 v5, {OOB}')
    a.e('v_cndmask_b32 v4, v5, v4, vcc')
    a.e(f's_mul_i32 s66, s{S_W}, 224')
    a.e(f's_add_u32 s66, s66, {L_HT}')
    a.e('v_lshl_add_u32 v6, v1, 2, s66')
    for j in range(8):
        a.e(f'v_lshlrev_b32 v{64+2*j}, 16, v{X[j]}')
        a.e(f'v_and_b32 v{65+2*j}, 0xffff0000, v{X[j]}')
    lp, ld = a.lab('h2poll'), a.lab('h2done')
    a.e(f's_mov_b32 s{S_SPIN}, 0')
    a.e(f'{lp}:')
    a.e(f'buffer_load_dwordx4 v[{A}:{A+3}], v4, {WSR}, 0 offen sc1')
    a.e(f'buffer_load_dwordx4 v[{A+4}:{A+7}], v4, {WSR}, 0 offen offset:16 sc1')
    a.e('s_waitcnt vmcnt(0)')
    a.e(f'v_max3_u32 v40, v{A}, v{A+1}, v{A+2}')
    a.e(f'v_max3_u32 v41, v{A+3}, v{A+4}, v{A+5}')
    a.e(f'v_max3_u32 v40, v40, v{A+6}, v{A+7}')
    a.e('v_max_u32 v40, v40, v41')
    a.e('v_cmp_eq_u32 vcc, -1, v40')
    a.e(f's_cbranch_vccz {ld}')
    spin_tail(a, lp)
    a.e(f'{ld}:')
    stamp(a, 14)
    H = list(range(48, 56))
    for j in range(8):
        t = 40 + 2 * (j % 4)
        a.e(f'v_lshlrev_b32 v{t}, 16, v{A+j}')
        a.e(f'v_and_b32 v{t+1}, 0xffff0000, v{A+j}')
        a.e(f'v_pk_add_f32 v[{t}:{t+1}], v[{t}:{t+1}], v[{64+2*j}:{65+2*j}]')
        a.e(f'v_cvt_pk_bf16_f32 v{H[j]}, v{t}, v{t+1}')
    a.e('s_mov_b32 exec_hi, 0x00ffffff')
    for j in range(8):
        a.e(f'ds_write_b32 v6, v{H[j]} offset:{j*896}')
    a.e('s_mov_b32 exec_hi, -1')

    def hstore():
        a.e('v_lshlrev_b32 v7, 4, v0')
        a.e(f'ds_read_b128 v[56:59], v7 offset:{L_HT}')
        a.e(f'ds_read_b128 v[60:63], v7 offset:{L_HT + 4096}')
        return 2

    ln_stats(a, H, 16, L_RED0, 5, mid=hstore)
    a.e(f's_mul_i32 s66, s{S_B}, 7168')
    a.e(f's_add_u32 s66, s66, {WS_H}')
    a.e('v_add_u32 v6, s66, v7')
    a.e('v_add_u32 v7, 4096, v6')
    mask_lanes(a, 7, 192, 4, 'v0')
    a.e('s_waitcnt lgkmcnt(0)')
    a.e(f'buffer_store_dwordx4 v[56:59], v6, {WSR}, 0 offen sc1')
    a.e(f'buffer_store_dwordx4 v[60:63], v7, {WSR}, 0 offen sc1')
    bcast_stats(a, 16)
    a.e('s_mov_b32 exec_hi, 0x00ffffff')
    for j in range(8):
        t = 40 + 2 * (j % 4)
        norm_tok(a, j, H[j], t)
        a.e(f'v_cvt_pk_bf16_f32 v{H[j]}, v{t}, v{t+1}')
    a.e('s_mov_b32 exec_hi, -1')
    ln_stats(a, H, 16, L_RED1, 5)
    bcast_stats(a, 16)
    a.e(f's_mul_i32 s66, s{S_B}, 7168')
    a.e(f's_mul_i32 s67, s{S_W}, 1792')
    a.e('s_add_u32 s66, s66, s67')
    a.e(f's_add_u32 s66, s66, {WS_HH}')
    a.e('v_lshl_add_u32 v4, v1, 4, s66')
    a.e('v_add_u32 v5, 448, v4')
    a.e('v_cmp_gt_u32 vcc, 28, v1')
    a.e('v_cndmask_b32 v4, v5, v4, vcc')
    mask_lanes(a, 4, 56, 5)
    for j in range(8):
        norm_tok(a, j, H[j], 64 + 2 * j)
    O0, O1 = 80, 84
    for i in range(4):
        a.e(f'v_cvt_pk_bf16_f32 v{O0+i}, v{64+4*i}, v{66+4*i}')
        a.e(f'v_cvt_pk_bf16_f32 v{O1+i}, v{65+4*i}, v{67+4*i}')
    a.e('s_waitcnt vmcnt(0)')
    a.e('s_barrier')
    a.e(f'buffer_store_dwordx4 v[{O0}:{O0+3}], v4, {WSR}, 0 offen sc1')
    a.e(f'buffer_store_dwordx4 v[{O1}:{O1+3}], v4, {WSR}, 0 offen offset:448 sc1')


def w_setup(a):
    srd(a, S_W1, P_W1, W1BYTES)
    srd(a, S_W2, P_W2, W2BYTES)
    a.e('v_lshrrev_b32 v4, 3, v1')
    a.e('v_bfe_u32 v5, v1, 4, 1')
    a.e('v_lshlrev_b32 v5, 1, v5')
    a.e('v_and_b32 v6, 7, v1')
    a.e('v_xor_b32 v6, v6, v5')
    a.e('v_xor_b32 v7, 4, v6')
    for vd, rowbytes, tile, rows in ((V_D1, F * 2, S_I1, 512), (V_D2, L * 2, S_I2, 448)):
        a.e(f's_mov_b32 s66, {rowbytes}')
        a.e('v_mul_lo_u32 v5, v4, s66')
        a.e(f's_mul_i32 s67, s{S_W}, {rows*rowbytes}')
        a.e(f's_lshl_b32 s66, s{tile}, 7')
        a.e('s_add_u32 s67, s67, s66')
        a.e('v_add_u32 v5, s67, v5')
        for i in range(4):
            a.e(f'v_lshl_add_u32 v{vd+i}, v{6 + (i & 1)}, 4, v5')
            if i:
                a.e(f'v_add_u32 v{vd+i}, {i*(8*rowbytes - 1024)}, v{vd+i}')
    a.e('v_lshlrev_b32 v5, 12, v4')
    a.e('v_and_b32 v6, 7, v1')
    a.e(f'v_lshl_add_u32 v{V_QPF}, v6, 4, v5')
    a.e(f's_and_b32 s66, s{S_LOC}, 3')
    a.e('s_mul_i32 s66, s66, 448')
    a.e(f's_mul_i32 s67, s{S_W}, 112')
    a.e('s_add_u32 s66, s66, s67')
    a.e('s_lshl_b32 s66, s66, 12')
    a.e(f's_lshl_b32 s67, s{S_I2}, 7')
    a.e(f's_add_u32 s{S_QPF}, s66, s67')
    a.e('v_lshrrev_b32 v4, 4, v1')
    a.e('v_bfe_u32 v5, v1, 2, 2')
    a.e('v_lshl_add_u32 v5, v4, 3, v5')
    a.e('v_lshlrev_b32 v5, 7, v5')
    a.e('v_and_b32 v6, 1, v1')
    a.e('v_lshl_add_u32 v5, v6, 3, v5')
    a.e('v_bfe_u32 v6, v1, 1, 1')
    a.e('v_lshl_add_u32 v5, v6, 4, v5')
    a.e('v_bfe_u32 v6, v1, 3, 1')
    a.e('v_and_b32 v4, 1, v4')
    a.e('v_lshl_add_u32 v6, v4, 1, v6')
    a.e(f's_and_b32 s66, s{S_LOC}, 3')
    a.e(f's_lshr_b32 s67, s{S_LOC}, 2')
    a.e('s_lshl_b32 s67, s67, 1')
    a.e('s_lshl_b32 s70, s66, 2')
    a.e('s_add_u32 s70, s70, s67')
    a.e('s_and_b32 s70, s70, 15')
    a.e(f's_mul_i32 s{S_RW1}, s70, {32*F*2}')
    a.e(f's_mul_i32 s{S_RX1}, s70, {4*7168}')
    a.e('s_mul_i32 s66, s66, 7')
    a.e('s_lshr_b32 s66, s66, 1')
    a.e('s_add_u32 s66, s66, s67')
    for _ in range(2):
        a.e('s_cmp_ge_u32 s66, 14')
        a.e('s_cselect_b32 s67, 14, 0')
        a.e('s_sub_u32 s66, s66, s67')
    a.e(f's_mul_i32 s{S_RW2}, s66, {32*L*2}')
    a.e(f's_mul_i32 s{S_RX2}, s66, {4*7168}')
    a.e(f's_lshl_b32 s{S_SA}, s{S_W}, 14')
    a.e(f's_add_u32 s{S_SA}, s{S_SA}, {L_WA}')
    a.e(f's_mul_i32 s{S_SB}, s{S_W}, 20480')
    a.e(f's_add_u32 s{S_SB}, s{S_SB}, {L_WB}')
    for mu in range(4):
        a.e(f'v_xor_b32 v4, {mu}, v6')
        a.e('v_lshl_add_u32 v4, v4, 5, v5')
        a.e(f'v_add_u32 v{V_TA+mu}, s{S_SA}, v4')
        a.e(f'v_add_u32 v{V_TB+mu}, s{S_SB}, v4')


def rot_off(a, idx, sreg, n, unit):
    a.e(f's_add_u32 s70, s{sreg}, {idx*unit}')
    a.e(f's_cmp_ge_u32 s70, {n*unit}')
    a.e(f's_cselect_b32 s71, {n*unit}, 0')
    a.e('s_sub_u32 s70, s70, s71')


def slot(name):
    return (S_SA, V_TA, int(name[1])) if name[0] == 'A' else (S_SB, V_TB, int(name[1]))


def w_dma1(a, mat, slab, sl, i):
    sb, _, si = slot(sl)
    vd, srd_, rowbytes = (V_D1, S_W1, F * 2) if mat == 1 else (V_D2, S_W2, L * 2)
    if i == 0:
        rot_off(a, slab, S_RW1 if mat == 1 else S_RW2, 16 if mat == 1 else 14, 32 * rowbytes)
        a.e(f's_add_u32 m0, s{sb}, {si*4096}')
    a.e(f'buffer_load_dwordx4 v{vd + i}, s[{srd_}:{srd_+3}], s70 offen offset:{1024*i} lds')


def w_dma(a, mat, slab, sl):
    for i in range(4):
        w_dma1(a, mat, slab, sl, i)


def w_tr(a, slab, sl):
    _, vt, si = slot(sl)
    for mu in range(4):
        r = (slab * 4 + mu) * 4
        a.e(f'ds_read_b64_tr_b16 a[{r}:{r+1}], v{vt+mu} offset:{si*4096}')
        a.e(f'ds_read_b64_tr_b16 a[{r+2}:{r+3}], v{vt+mu} offset:{si*4096 + 512}')


def qpf_load(a, n):
    for _ in range(n):
        a.e(f'buffer_load_dwordx4 v[220:223], v{V_QPF}, s[{S_W2}:{S_W2+3}], s{S_QPF} offen')
        a.e(f's_add_u32 s{S_QPF}, s{S_QPF}, {8*L*2}')


ACC = 16
XS = 80
NS = 6
VMAX = 214
V_X0, V_X3 = 208, 209


def gemm_xaddr(a, ws_off, kblocks):
    a.e(f's_mul_i32 s66, s{S_W}, {kblocks*7168}')
    a.e(f's_mul_i32 s67, s{S_J}, 896')
    a.e('s_add_u32 s66, s66, s67')
    a.e(f's_add_u32 s66, s66, {ws_off}')
    a.e('v_lshrrev_b32 v4, 4, v1')
    a.e('v_mul_u32_u24 v4, 7168, v4')
    a.e('v_add_u32 v4, s66, v4')
    a.e('v_and_b32 v5, 15, v1')
    a.e(f'v_lshl_add_u32 v{V_X0}, v5, 4, v4')
    if OPT['x3oob']:
        a.e(f'v_add_u32 v{V_X3}, 768, v{V_X0}')
        a.e(f'v_mov_b32 v4, {OOB}')
        a.e('v_cmp_gt_u32 vcc, 8, v5')
        a.e(f'v_cndmask_b32 v{V_X3}, v4, v{V_X3}, vcc')
    else:
        a.e('v_and_b32 v5, 7, v1')
        a.e('v_lshl_add_u32 v4, v5, 4, v4')
        a.e(f'v_add_u32 v{V_X3}, 768, v4')


def gemm_xloads(a, kappa, gid):
    st = XS + 16 * (kappa % NS)
    out = []
    sreg, n = (S_RX1, 16) if gid == 1 else (S_RX2, 14)
    unit = 4 * 7168
    out.append(f's_add_u32 s70, s{sreg}, {kappa*unit}')
    out.append(f's_cmp_ge_u32 s70, {n*unit}')
    out.append(f's_cselect_b32 s71, {n*unit}, 0')
    out.append('s_sub_u32 s70, s70, s71')
    for nu in range(3):
        out.append(f'buffer_load_dwordx4 v[{st+4*nu}:{st+4*nu+3}], v{V_X0}, {WSR}, s70 offen offset:{256*nu} sc1')
    out.append(f'buffer_load_dwordx4 v[{st+12}:{st+15}], v{V_X3}, {WSR}, s70 offen sc1')
    return out


def gemm_main(a, nk, gid, tail_hook=None):
    nfl = OPT['nfl']
    w_is_a = gid == 1
    a.e(f'v_mov_b32 v{VMAX}, 0')
    extra = 0
    for k in range(nk):
        st = XS + 16 * (k % NS)
        rem = min(nfl - 1, nk - 1 - k)
        a.e(f's_waitcnt vmcnt({4*rem + extra})')
        if OPT['stamps'] and k in (0, 4, 8, 12):
            stamp(a, (44 if w_is_a else 51) + (0, 4, 8, 12).index(k))
        fill = gemm_xloads(a, k + nfl, gid) if k + nfl < nk else []
        if k + nfl == nk and tail_hook is not None:
            fill = []
            extra = tail_hook(fill)
        mx = [f'v_max3_u32 v{VMAX}, v{VMAX}, v{st+2*i}, v{st+2*i+1}' for i in range(8)]
        n = 0
        for mu in range(4):
            for nu in range(4):
                w = (k * 4 + mu) * 4
                x = st + 4 * nu
                if w_is_a:
                    acc = ACC + (mu * 4 + nu) * 4
                    A, B = f'a[{w}:{w+3}]', f'v[{x}:{x+3}]'
                else:
                    acc = ACC + (nu * 4 + mu) * 4
                    A, B = f'v[{x}:{x+3}]', f'a[{w}:{w+3}]'
                cc = '0' if k == 0 else f'v[{acc}:{acc+3}]'
                a.e(f'v_mfma_f32_16x16x32_bf16 v[{acc}:{acc+3}], {A}, {B}, {cc}')
                for _ in range(2):
                    if fill:
                        a.e(fill.pop(0))
                if not fill and mx and n >= 4:
                    a.e(mx.pop(0))
                n += 1
        assert not fill and not mx


def sentinel(a, ws_off, kblocks):
    lp, ld = a.lab('spoll'), a.lab('sdone')
    a.e(f's_mul_i32 s66, s{S_W}, {kblocks*7168}')
    a.e(f's_mul_i32 s67, s{S_J}, 896')
    a.e('s_add_u32 s66, s66, s67')
    a.e(f's_add_u32 s66, s66, {ws_off + 55*16 + 12}')
    a.e('v_mul_u32_u24 v4, 7168, v1')
    a.e('v_add_u32 v4, s66, v4')
    if kblocks < 64:
        mask_lanes(a, 4, kblocks, 5)
    a.e(f's_mov_b32 s{S_SPIN}, 0')
    a.e(f'{lp}:')
    a.e(f'buffer_load_dword v5, v4, {WSR}, 0 offen sc1')
    a.e('s_waitcnt vmcnt(0)')
    a.e('v_cmp_eq_u32 vcc, -1, v5')
    a.e(f's_cbranch_vccz {ld}')
    spin_tail(a, lp)
    a.e(f'{ld}:')


def gemm_poll_main(a, ws_off, kblocks, nk, gid, sb, tail_hook=None):
    lr, lok = a.lab('gretry'), a.lab('gok')
    gemm_xaddr(a, ws_off, kblocks)
    a.e(f's_mov_b32 s{S_RETRY}, 0')
    a.e(f'{lr}:')
    sentinel(a, ws_off, kblocks)
    stamp(a, sb)
    for k in range(OPT['nfl']):
        for x in gemm_xloads(a, k, gid):
            a.e(x)
    gemm_main(a, nk, gid, tail_hook)
    a.e(f'v_cmp_eq_u32 vcc, -1, v{VMAX}')
    a.e(f's_cbranch_vccz {lok}')
    a.e(f's_add_u32 s{S_RETRY}, s{S_RETRY}, 1')
    a.e(f's_cmp_lt_u32 s{S_RETRY}, {RETRY_MAX}')
    a.e(f's_cbranch_scc1 {lr}')
    a.e(f'{lok}:')


def write_partials(a):
    a.e('v_and_b32 v4, 15, v1')
    a.e(f'v_mul_u32_u24 v4, {PROW}, v4')
    a.e('v_lshrrev_b32 v5, 4, v1')
    a.e('v_lshl_add_u32 v4, v5, 4, v4')
    a.e(f's_mul_i32 s66, s{S_W}, {PARTW}')
    a.e(f's_add_u32 s66, s66, {L_PART}')
    a.e('v_add_u32 v4, s66, v4')
    a.e('s_barrier')
    for mt in range(4):
        for nt in range(4):
            acc = ACC + (mt * 4 + nt) * 4
            a.e(f'ds_write_b128 v4, v[{acc}:{acc+3}] offset:{nt*16*PROW + mt*64}')


def sum_partials(a, P):
    for h in range(4):
        a.e(f'v_pk_add_f32 v[{P+2*h}:{P+2*h+1}], v[{P+2*h}:{P+2*h+1}], v[{P+8+2*h}:{P+9+2*h}]')
        a.e(f'v_pk_add_f32 v[{P+16+2*h}:{P+17+2*h}], v[{P+16+2*h}:{P+17+2*h}], v[{P+24+2*h}:{P+25+2*h}]')
    for h in range(4):
        a.e(f'v_pk_add_f32 v[{P+2*h}:{P+2*h+1}], v[{P+2*h}:{P+2*h+1}], v[{P+16+2*h}:{P+17+2*h}]')


def b1_load(a):
    a.e(f's_lshl_b32 s67, s{S_I1}, 7')
    a.e(f's_lshl_b32 s70, s{S_W}, 5')
    a.e('s_add_u32 s67, s67, s70')
    a.e(f's_load_dwordx8 s[72:79], s[{P_B1}:{P_B1+1}], s67')


def gemm1_epilogue(a):
    write_partials(a)
    a.e(f'v_mul_u32_u24 v4, {PROW}, v1')
    a.e(f's_lshl_b32 s66, s{S_W}, 6')
    a.e(f's_add_u32 s66, s66, {L_PART}')
    a.e('v_add_u32 v4, s66, v4')
    g_store_addr(a, 5)
    C1 = 0.044715
    C2 = -2.0 * 0.7978845608028654 * 1.4426950408889634
    a.e(f'v_mov_b32 v100, {fx(C1*C2)}')
    a.e(f'v_mov_b32 v101, {fx(C1*C2)}')
    a.e(f'v_mov_b32 v102, {fx(C2)}')
    a.e(f'v_mov_b32 v103, {fx(C2)}')
    a.e('s_waitcnt lgkmcnt(0)')
    a.e('s_barrier')
    stamp(a, 24)
    for r in range(2):
        P = 16 + 32 * r
        for wv in range(4):
            a.e(f'ds_read_b128 v[{P+8*wv}:{P+8*wv+3}], v4 offset:{wv*PARTW + r*32}')
            a.e(f'ds_read_b128 v[{P+8*wv+4}:{P+8*wv+7}], v4 offset:{wv*PARTW + r*32 + 16}')
    for i in range(8):
        a.e(f's_lshl_b32 s{80+2*i}, s{72+i}, 16')
        a.e(f's_and_b32 s{81+2*i}, s{72+i}, 0xffff0000')
    for r in range(2):
        P = 16 + 32 * r
        T = 80
        a.e(f's_waitcnt lgkmcnt({8 if r == 0 else 0})')
        sum_partials(a, P)
        round_pairs(a, P, T, 8)
        for h in range(4):
            a.e(f'v_pk_add_f32 v[{P+2*h}:{P+2*h+1}], v[{P+2*h}:{P+2*h+1}], s[{80+8*r+2*h}:{81+8*r+2*h}]')
        round_pairs(a, P, T, 8)
        for h in range(4):
            a.e(f'v_pk_mul_f32 v[{P+8+2*h}:{P+9+2*h}], v[{P+2*h}:{P+2*h+1}], v[{P+2*h}:{P+2*h+1}]')
        for h in range(4):
            a.e(f'v_pk_fma_f32 v[{P+8+2*h}:{P+9+2*h}], v[{P+8+2*h}:{P+9+2*h}], v[100:101], v[102:103]')
        for h in range(4):
            a.e(f'v_pk_mul_f32 v[{P+8+2*h}:{P+9+2*h}], v[{P+8+2*h}:{P+9+2*h}], v[{P+2*h}:{P+2*h+1}]')
        for i in range(8):
            a.e(f'v_exp_f32 v{P+8+i}, v{P+8+i}')
        for h in range(4):
            a.e(f'v_pk_add_f32 v[{P+8+2*h}:{P+9+2*h}], v[{P+8+2*h}:{P+9+2*h}], 1.0 op_sel_hi:[1,0]')
        for i in range(8):
            a.e(f'v_rcp_f32 v{P+8+i}, v{P+8+i}')
        for h in range(4):
            a.e(f'v_pk_mul_f32 v[{P+2*h}:{P+2*h+1}], v[{P+2*h}:{P+2*h+1}], v[{P+8+2*h}:{P+9+2*h}]')
        O = 88 + 4 * r
        for h in range(4):
            a.e(f'v_cvt_pk_bf16_f32 v{O+h}, v{P+2*h}, v{P+2*h+1}')
        if r == 1:
            a.e('v_add_u32 v5, 7168, v5')
        a.e(f'buffer_store_dwordx4 v[{O}:{O+3}], v5, {WSR}, 0 offen sc1')


V_OUT, V_HAD, V_B2 = 210, 211, 212
V_HR = 196


def gemm2_addr(a):
    srd(a, S_T2, P_OUT, XBYTES)
    srd(a, S_T3, P_B2, L * 2)
    a.e('v_lshrrev_b32 v4, 3, v1')
    a.e('v_and_b32 v5, 7, v1')
    a.e(f's_lshl_b32 s66, s{S_W}, 4')
    a.e('v_add_u32 v4, s66, v4')
    a.e(f's_lshl_b32 s67, s{S_I2}, 6')
    a.e('v_add_u32 v7, s67, v4')
    a.e(f'v_mul_u32_u24 v{V_OUT}, 896, v7')
    a.e(f'v_lshl_add_u32 v{V_OUT}, v5, 4, v{V_OUT}')
    a.e(f's_mul_i32 s70, s{S_J}, 112')
    a.e(f'v_add_u32 v{V_OUT}, s70, v{V_OUT}')
    a.e(f'v_mov_b32 v6, {OOB}')
    a.e('v_cmp_gt_u32 vcc, 7, v5')
    a.e(f'v_cndmask_b32 v{V_OUT}, v6, v{V_OUT}, vcc')
    a.e(f'v_add_u32 v{V_HAD}, {WS_H}, v{V_OUT}')
    a.e(f'v_lshlrev_b32 v{V_B2}, 1, v7')


def gemm2_tail_loads(fill):
    fill.append(f'buffer_load_dwordx4 v[{V_HR}:{V_HR+3}], v{V_HAD}, {WSR}, 0 offen sc1')
    fill.append(f's_mov_b32 s70, {8*896}')
    fill.append(f'buffer_load_dwordx4 v[{V_HR+4}:{V_HR+7}], v{V_HAD}, {WSR}, s70 offen sc1')
    fill.append(f'buffer_load_ushort v{V_HR+8}, v{V_B2}, s[{S_T3}:{S_T3+3}], 0 offen')
    fill.append(f'buffer_load_ushort v{V_HR+9}, v{V_B2}, s[{S_T3}:{S_T3+3}], 0 offen offset:16')
    return 4


def gemm2_epilogue(a):
    write_partials(a)
    a.e('v_lshrrev_b32 v4, 3, v1')
    a.e('v_and_b32 v5, 7, v1')
    a.e(f's_lshl_b32 s66, s{S_W}, 4')
    a.e('v_add_u32 v4, s66, v4')
    a.e(f'v_mul_u32_u24 v6, {PROW}, v4')
    a.e('v_lshl_add_u32 v6, v5, 4, v6')
    a.e(f'v_add_u32 v6, {L_PART}, v6')
    a.e('s_waitcnt lgkmcnt(0)')
    a.e('s_barrier')
    stamp(a, 33)
    for r in range(2):
        P = 16 + 32 * r
        for wv in range(4):
            a.e(f'ds_read_b128 v[{P+8*wv}:{P+8*wv+3}], v6 offset:{wv*PARTW + r*8*PROW}')
            a.e(f'ds_read_b128 v[{P+8*wv+4}:{P+8*wv+7}], v6 offset:{wv*PARTW + r*8*PROW + 112}')
    a.e('s_waitcnt vmcnt(0)')
    for r in range(2):
        P = 16 + 32 * r
        T = 80
        H = V_HR + 4 * r
        a.e(f'v_lshlrev_b32 v106, 16, v{V_HR+8+r}')
        for i in range(4):
            a.e(f'v_lshlrev_b32 v{96+i}, 16, v{H+i}')
            a.e(f'v_and_b32 v{100+i}, 0xffff0000, v{H+i}')
        a.e(f's_waitcnt lgkmcnt({8 if r == 0 else 0})')
        sum_partials(a, P)
        round_pairs(a, P, T, 8)
        for h in range(4):
            a.e(f'v_pk_add_f32 v[{P+2*h}:{P+2*h+1}], v[{P+2*h}:{P+2*h+1}], v[106:107] op_sel:[0,0] op_sel_hi:[1,0]')
        round_pairs(a, P, T, 8)
        for h in range(4):
            a.e(f'v_pk_add_f32 v[{P+2*h}:{P+2*h+1}], v[{P+2*h}:{P+2*h+1}], v[{96+2*h}:{97+2*h}]')
        O = 88 + 4 * r
        for i in range(4):
            a.e(f'v_cvt_pk_bf16_f32 v{O+i}, v{P+i}, v{P+4+i}')
        if r == 1:
            a.e(f'v_add_u32 v{V_OUT}, {8*896}, v{V_OUT}')
        a.e(f'buffer_store_dwordx4 v[{O}:{O+3}], v{V_OUT}, s[{S_T2}:{S_T2+3}], 0 offen' + ['', ' sc1', ' nt', ' sc0 sc1', ' sc1 nt'][OPT['outsc']])


def build():
    a = Prog()
    name = NAME + '_kernel'
    lend = a.lab('end')
    a.raw(f'.globl {name}')
    a.raw('.p2align 8')
    a.raw(f'.type {name},@function')
    a.raw(f'{name}:')
    prologue(a, lend)
    lnc1, lnc2, lnc3, lnc5, lnc6 = [a.lab('noconv') for _ in range(5)]

    def skip_if_helper(l):
        a.e(f's_cmp_ge_u32 s{S_LOC}, 28')
        a.e(f's_cbranch_scc1 {l}')

    load_xrows(a)
    ncp = 0
    if OPT['cpf'] & 2:
        code_prefetch1(a, name, 'kcode_end')
        ncp = 1
    a.e(f's_add_u32 s66, s{P_WS}, {WS_EPOCH}')
    a.e(f's_addc_u32 s67, s{P_WS+1}, 0')
    a.e('s_load_dword s99, s[66:67], 0')
    poison_regs(a)
    skip_if_helper(lnc1)
    kgen_loads(a)
    load_gather_table(a, 'ktab_idx')
    w_setup(a)
    nt = 0
    if OPT['tlb'] & 2:
        tlb_touch(a)
        nt = 5
    flag_addr(a)
    a.e('s_waitcnt lgkmcnt(0)')
    a.e(f's_add_u32 s{S_TAG}, s99, 0x9e3779b9')
    a.e(f's_waitcnt vmcnt({10 + nt + ncp})')
    stamp(a, 2)
    clear_hh(a)
    clear_aout(a)
    ln_stats(a, list(range(8, 16)), 16, L_RED0, 5)
    stamp(a, 3)
    publish_xn(a)
    nb0 = OPT['wb0']
    if OPT['sched'] == 2:
        qa, qb = OPT['qa'], OPT['qb']
        qpf_load(a, qa)
        stamp(a, 4)
        a.e(f's_waitcnt vmcnt({8 + nt + qa})')
        kgen_channel(a, 0, DK0)
        for k in range(nb0):
            w_dma(a, 1, k, BS[k])
        stamp(a, 40)
        kgen_channel(a, 1, DK1, mid=lambda: publish_flag(a, qa + 4 * nb0), mid_m0=False)
        stamp(a, 5)
        qpf_load(a, qb)
        a.e(f's_waitcnt vmcnt({qb})')
        for k in range(nb0):
            w_tr(a, k, BS[k])
        ktab_part1(a)
        stamp(a, 6)
        flag_load(a)
        ktab_part2(a)
        stamp(a, 7)
        a.e(f's_mov_b32 s{S_EARLY}, 0')
        lne = a.lab('notearly')
        a.e('s_waitcnt vmcnt(0)')
        a.e(f'v_cmp_ne_u32 vcc, s{S_TAG}, v{V_FV}')
        a.e(f's_cbranch_vccnz {lne}')
        load_u(a)
        a.e(f's_mov_b32 s{S_EARLY}, 1')
        a.e(f'{lne}:')
        conv_addr(a)
        kcopies(a)
        stamp(a, 8)
        lhave = a.lab('haveu')
        a.e(f's_cmp_lg_u32 s{S_EARLY}, 0')
        a.e(f's_cbranch_scc1 {lhave}')
        flag_poll(a)
        load_u(a)
        a.e(f'{lhave}:')
        stamp(a, 9)
        store_u(a, 0)
    else:
        stamp(a, 4)
        a.e(f's_waitcnt vmcnt({8 + nt})')
        kgen_channel(a, 0, DK0)
        publish_flag(a)
        for k in range(min(nb0, 3)):
            w_dma(a, 1, k, BS[k])
        stamp(a, 40)
        kgen_channel(a, 1, DK1, mid=(lambda: [w_dma(a, 1, k, BS[k]) for k in range(3, nb0)]) if nb0 > 3 else None)
        stamp(a, 5)
        if OPT['early']:
            flag_load(a)
            a.e('s_waitcnt vmcnt(1)')
        else:
            a.e('s_waitcnt vmcnt(0)')
        for k in range(nb0):
            w_tr(a, k, BS[k])
        ktab_part1(a)
        stamp(a, 6)
        a.e(f's_mov_b32 s{S_EARLY}, 0')
        lne = a.lab('notearly')
        if OPT['early']:
            a.e('s_waitcnt vmcnt(0)')
            a.e(f'v_cmp_ne_u32 vcc, s{S_TAG}, v{V_FV}')
            a.e(f's_cbranch_vccnz {lne}')
            load_u(a)
            a.e(f's_mov_b32 s{S_EARLY}, 1')
            a.e(f'{lne}:')
        qpf_load(a, OPT['w2pf_a'])
        ktab_part2(a)
        stamp(a, 7)
        conv_addr(a)
        kcopies(a)
        stamp(a, 8)
        lhave = a.lab('haveu')
        a.e(f's_cmp_lg_u32 s{S_EARLY}, 0')
        a.e(f's_cbranch_scc1 {lhave}')
        flag_poll(a)
        load_u(a)
        a.e('s_waitcnt vmcnt(0)')
        a.e(f'{lhave}:')
        stamp(a, 9)
        store_u(a, OPT['w2pf_a'])
    epoch_update(a)
    clear_g(a)
    if OPT['sched'] != 2:
        qpf_load(a, OPT['w2pf_b'])
    stamp(a, 10)
    hk = []
    for k in range(4):
        for i in range(4):
            hk.append(lambda k=k, i=i: w_dma1(a, 1, nb0 + k, AS[k], i))
            hk.append(lambda: None)
    phase_conv(a, hk, 0)
    stamp(a, 12)
    for k in range(4):
        w_tr(a, nb0 + k, AS[k])
    a.e('s_waitcnt lgkmcnt(0)')
    a.e('s_barrier')
    rest = list(range(nb0 + 4, 16))
    rest_slots = (BS + AS)[:len(rest)]
    for k, sl in zip(rest, rest_slots):
        w_dma(a, 1, k, sl)
    stamp(a, 13)
    a.e(f's_branch {lnc2}')
    a.e(f'{lnc1}:')
    nh = 0
    if OPT['cpf'] & 1:
        code_prefetch(a, name, 'kcode_end')
        nh += 2
    w_setup(a)
    if OPT['tlb'] & 1:
        tlb_touch(a)
        nh += 5
    flag_addr(a)
    a.e('s_waitcnt lgkmcnt(0)')
    a.e(f's_add_u32 s{S_TAG}, s99, 0x9e3779b9')
    a.e(f's_waitcnt vmcnt({nh + ncp})')
    clear_hh(a)
    ln_stats(a, list(range(8, 16)), 16, L_RED0, 5)
    publish_xn(a)
    publish_flag(a)
    qpf_load(a, 14)
    stamp(a, 41)
    flag_poll(a)
    a.e('s_barrier')
    stamp(a, 42)
    a.e(f'{lnc2}:')
    phase_p4(a)
    stamp(a, 20)
    gemm2_addr(a)
    skip_if_helper(lnc3)
    b1_load(a)
    for k, sl in zip(rest, rest_slots):
        w_tr(a, k, sl)
    a.e('s_waitcnt lgkmcnt(0)')
    for k in range(5):
        w_dma(a, 2, k, BS[k])
    stamp(a, 21)
    gemm_poll_main(a, WS_HH, 64, 16, 1, 22)
    stamp(a, 23)
    if OPT['h4early']:
        for k in range(5):
            w_tr(a, k, BS[k])
        a.e('s_waitcnt lgkmcnt(0)')
        for k in range(5, 8):
            w_dma(a, 2, k, BS[k - 5])
        gemm1_epilogue(a)
        stamp(a, 25)
        a.e('s_barrier')
        for k in range(8, 10):
            w_dma(a, 2, k, BS[k - 5])
        for k in range(10, 14):
            w_dma(a, 2, k, AS[k - 10])
        a.e('s_waitcnt vmcnt(26)')
        for k in range(5, 8):
            w_tr(a, k, BS[k - 5])
        a.e('s_waitcnt vmcnt(16)')
        for k in range(8, 10):
            w_tr(a, k, BS[k - 5])
        a.e('s_waitcnt vmcnt(0)')
        for k in range(10, 14):
            w_tr(a, k, AS[k - 10])
        a.e('s_waitcnt lgkmcnt(0)')
        a.e(f's_branch {lnc6}')
    else:
        gemm1_epilogue(a)
        stamp(a, 25)
        for k in range(5):
            w_tr(a, k, BS[k])
        a.e('s_waitcnt lgkmcnt(0)')
        a.e('s_barrier')
        a.e(f's_branch {lnc5}')
    a.e(f'{lnc3}:')
    for k in range(5):
        w_dma(a, 2, k, BS[k])
    a.e('s_waitcnt vmcnt(0)')
    for k in range(5):
        w_tr(a, k, BS[k])
    a.e('s_waitcnt lgkmcnt(0)')
    a.e(f'{lnc5}:')
    for k in range(5, 10):
        w_dma(a, 2, k, BS[k - 5])
    for k in range(10, 14):
        w_dma(a, 2, k, AS[k - 10])
    a.e('s_waitcnt vmcnt(16)')
    for k in range(5, 10):
        w_tr(a, k, BS[k - 5])
    a.e('s_waitcnt vmcnt(0)')
    for k in range(10, 14):
        w_tr(a, k, AS[k - 10])
    a.e('s_waitcnt lgkmcnt(0)')
    a.e(f'{lnc6}:')
    stamp(a, 30)
    gemm_poll_main(a, WS_G, 56, 14, 2, 31, gemm2_tail_loads)
    stamp(a, 32)
    gemm2_epilogue(a)
    stamp_clk(a, 61)
    stamp(a, 63)
    stamp_flush(a)
    a.e(f'{lend}:')
    a.e('s_endpgm')
    a.raw('kcode_end:')
    emit_gather_table(a, 'ktab_idx')
    nn = a.fast_insert_nops()
    head = f'; @launch grid=(256,1,1) block=(256,1,1) lds={LDS_BYTES}\n'
    head += '.amdgcn_target "amdgcn-amd-amdhsa--gfx950"\n.text\n'
    tail = '.section .rodata,"a"\n.p2align 6\n' + descriptor(name)
    if OPT['align']:
        nal = a.align8(head, tail)
        sys.stderr.write(f'alignment: {nal}\n')
    sys.stderr.write(f'instructions: {a.count()}, nops inserted: {nn}\n')
    return head + a.text() + tail


if __name__ == '__main__':
    out = sys.argv[1]
    for arg in sys.argv[2:]:
        if arg == 'stamps':
            OPT['stamps'] = True
        elif arg == 'dbg':
            OPT['stamps'] = True
            OPT['dbgsel'] = [0, 1, 2, 4, 8, 9, 12, 13, 14, 20, 21, 23, 25, 30, 32, 63]
        elif '=' in arg:
            k, v = arg.split('=')
            OPT[k] = int(v)
    open(out, 'w').write(build())
```

```python
import sys
import gen
from gen import (Prog, NAME, L, D, F, XBYTES, PBYTES, W1BYTES, W2BYTES, OOB, fx, srd, reduce16, cmul, exp_bf16,
                 gather_table, emit_gather_table, descriptor, round_pairs, norm_tok, bcast_stats)

OPT = dict(tlbg=21, cpf=3, sched=2, qa=7, qb=7, tlb=3, outsc=0, x3oob=1, h4early=1, wb0=3, xnb=1, stamps=False, dbgsel=None, w2pf_a=10, w2pf_b=4, nfl=3, early=True, align=True, hlds=True)

WS_FLAG = 0x4000
WS_EPOCH = 0x9000
WS_AOUT = 0x10000
AST = 8448
WS_H = 0x200000
WS_HH = 0x400000
WS_G = 0x600000
WS_DBG = 0x800000
WS_XN = 0xA00000
XCS = 4352
XPS = 2 * XCS
WS_USED = 0x1000000

L_RED0, L_RED1, L_SIG, L_KT = 0, 256, 512, 640
KTCH = 1600
L_U = L_KT + 2 * KTCH
UCH = 4608
L_SCR = L_U + 2 * UCH
SROW = 272
YROW = 41
SCRW = 57 * SROW
L_KC = 82688
KCOPY = 4160
KCH = 8 * KCOPY
L_CP = L_KC
LDS_BYTES = 160 * 1024
L_WA, L_WB = 13056, 78592
L_PART = 1024
PROW = 272
PARTW = 64 * PROW
L_HT = 1024

S_WS, S_X = 4, 8
S_T0, S_T1, S_T2, S_T3 = 12, 16, 20, 24
S_W1, S_W2 = 12, 16
S_W, S_XCD, S_LOC, S_B, S_P, S_J, S_I1, S_I2 = 28, 29, 30, 31, 32, 33, 34, 35
P_X, P_LAR, P_AI, P_CR, P_CI, P_LDT, P_DSK = 36, 38, 40, 42, 44, 46, 48
P_W1, P_B1, P_W2, P_B2, P_OUT, P_DBG, P_WS = 52, 54, 56, 58, 60, 62, 64
S_SA, S_SB = 50, 51
S_RW1, S_RX1, S_RW2, S_RX2 = 38, 39, 40, 41
S_QPF = 42
S_EARLY = 43
S_TAG, S_SPIN, S_RETRY = 96, 97, 98
V_D1, V_D2, V_TA, V_TB = 224, 228, 244, 248
V_QPF = 232
SPIN_MAX, RETRY_MAX = 4000, 20
AS = ['A0', 'A1', 'A2', 'A3']
BS = ['B0', 'B1', 'B2', 'B3', 'B4']
WSR = f's[{S_WS}:{S_WS+3}]'

assert (gen.S_W, gen.S_B, gen.S_WS) == (S_W, S_B, S_WS)


def stamp(a, idx):
    if not OPT['stamps']:
        return
    sel = OPT['dbgsel']
    if sel is not None:
        if idx not in sel:
            return
        idx = sel.index(idx)
    a.e('s_memrealtime s[100:101]')
    a.e('s_waitcnt lgkmcnt(0)')
    a.e(f'v_writelane_b32 v255, s100, {idx}')


def stamp_clk(a, idx):
    if not OPT['stamps'] or OPT['dbgsel'] is not None:
        return
    a.e('s_memtime s[100:101]')
    a.e('s_waitcnt lgkmcnt(0)')
    a.e(f'v_writelane_b32 v255, s100, {idx}')


def stamp_flush(a):
    if not OPT['stamps']:
        return
    l = a.lab('nost')
    a.e(f's_cmp_lg_u32 s{S_W}, 0')
    a.e(f's_cbranch_scc1 {l}')
    if OPT['dbgsel'] is not None:
        a.e('v_not_b32 v253, v255')
        a.e('v_cmp_eq_u32 vcc, 0, v1')
        a.e('v_cndmask_b32 v255, v255, v253, vcc')
        a.e('v_lshlrev_b32 v254, 2, v1')
        a.e('s_mov_b64 exec, 0xffff')
        a.e(f'global_atomic_umax v254, v255, s[{P_DBG}:{P_DBG+1}]')
        a.e('s_mov_b64 exec, -1')
    else:
        a.e('s_lshl_b32 s66, s2, 8')
        a.e(f's_add_u32 s66, s66, {WS_DBG}')
        a.e('v_lshl_add_u32 v254, v1, 2, s66')
        a.e(f'buffer_store_dword v255, v254, {WSR}, 0 offen')
    a.e(f'{l}:')


def spin_tail(a, lp):
    a.e(f's_add_u32 s{S_SPIN}, s{S_SPIN}, 1')
    a.e(f's_cmp_lt_u32 s{S_SPIN}, {SPIN_MAX}')
    a.e(f's_cbranch_scc1 {lp}')


def mask_lanes(a, v, n, tmp, src='v1'):
    a.e(f'v_mov_b32 v{tmp}, {OOB}')
    a.e(f'v_cmp_gt_u32 vcc, {n}, {src}')
    a.e(f'v_cndmask_b32 v{v}, v{tmp}, v{v}, vcc')


def prologue(a, lend):
    a.e('s_cmp_ge_u32 s2, 256')
    a.e(f's_cbranch_scc1 {lend}')
    if OPT['stamps']:
        a.e('v_mov_b32 v255, 0')
        stamp(a, 0)
        stamp_clk(a, 60)
    a.e('s_load_dwordx16 s[36:51], s[0:1], 0')
    a.e('s_load_dwordx8 s[52:59], s[0:1], 64')
    a.e('s_load_dwordx4 s[60:63], s[0:1], 96')
    a.e('s_load_dwordx2 s[64:65], s[0:1], 112')
    a.e('v_and_b32 v1, 63, v0')
    a.e('v_lshrrev_b32 v2, 6, v0')
    a.e(f's_and_b32 s{S_XCD}, s2, 7')
    a.e(f'v_readfirstlane_b32 s{S_W}, v2')
    a.e(f's_lshr_b32 s{S_LOC}, s2, 3')
    a.e(f's_lshl_b32 s{S_B}, s{S_XCD}, 5')
    a.e(f's_add_u32 s{S_B}, s{S_B}, s{S_LOC}')
    a.e(f's_mul_i32 s{S_P}, s{S_XCD}, 28')
    a.e(f's_add_u32 s{S_P}, s{S_P}, s{S_LOC}')
    a.e(f's_and_b32 s{S_J}, s{S_XCD}, 1')
    a.e(f's_lshl_b32 s{S_J}, s{S_J}, 2')
    a.e(f's_and_b32 s3, s{S_LOC}, 3')
    a.e(f's_add_u32 s{S_J}, s{S_J}, s3')
    a.e(f's_lshr_b32 s3, s{S_XCD}, 1')
    a.e(f's_lshr_b32 s66, s{S_LOC}, 2')
    a.e(f's_mul_i32 s{S_I1}, s3, 7')
    a.e(f's_add_u32 s{S_I1}, s{S_I1}, s66')
    a.e(f's_lshl_b32 s{S_I2}, s3, 3')
    a.e(f's_add_u32 s{S_I2}, s{S_I2}, s66')
    a.e('s_waitcnt lgkmcnt(0)')
    srd(a, S_X, P_X, XBYTES)
    srd(a, S_WS, P_WS, WS_USED)
    stamp(a, 1)


def xrow_addr(a):
    a.e(f's_mul_i32 s66, s{S_W}, 224')
    a.e(f's_mul_i32 s67, s{S_B}, {8*896}')
    a.e('s_add_u32 s66, s66, s67')
    a.e('v_lshl_add_u32 v2, v1, 2, s66')
    mask_lanes(a, 2, 56, 3)
    a.e('v_add_u32 v3, 4480, v2')


def load_xrows(a):
    xrow_addr(a)
    for j in range(8):
        v, o = (2, j * 896) if j < 5 else (3, (j - 5) * 896)
        a.e(f'buffer_load_dword v{8+j}, v{v}, s[{S_X}:{S_X+3}], 0 offen offset:{o}')


def ln_stats(a, X, T, red, vt, mid=None):
    a.e('s_mov_b32 s66, 0x3f803f80')
    for j in range(8):
        a.e(f'v_dot2_f32_bf16 v{T+j}, v{X[j]}, s66, 0')
        a.e(f'v_dot2_f32_bf16 v{T+8+j}, v{X[j]}, v{X[j]}, 0')
    a.e(f'v_lshlrev_b32 v{vt}, 2, v1')
    a.e(f'v_and_b32 v{vt}, 0xf0, v{vt}')
    a.e(f's_lshl_b32 s66, s{S_W}, 2')
    a.e(f'v_add_u32 v{vt}, s66, v{vt}')
    reduce16(a, [T + i for i in range(16)])
    a.e('s_mov_b32 exec_lo, 0x11111111')
    a.e('s_mov_b32 exec_hi, 0x11111111')
    a.e(f'ds_write_b32 v{vt}, v{T} offset:{red}')
    a.e('s_mov_b64 exec, -1')
    a.e(f'v_and_b32 v{vt}, 7, v1')
    a.e(f'v_lshlrev_b32 v{vt}, 4, v{vt}')
    a.e('s_waitcnt lgkmcnt(0)')
    a.e('s_barrier')
    a.e(f'ds_read_b128 v[{T}:{T+3}], v{vt} offset:{red}')
    a.e(f'ds_read_b128 v[{T+4}:{T+7}], v{vt} offset:{red+128}')
    n_mid = mid() if mid else 0
    a.e(f's_waitcnt lgkmcnt({1 + n_mid})')
    a.e(f'v_pk_add_f32 v[{T}:{T+1}], v[{T}:{T+1}], v[{T+2}:{T+3}]')
    a.e(f's_waitcnt lgkmcnt({n_mid})')
    a.e(f'v_pk_add_f32 v[{T+4}:{T+5}], v[{T+4}:{T+5}], v[{T+6}:{T+7}]')
    a.e(f'v_add_f32 v{T}, v{T}, v{T+1}')
    a.e(f'v_add_f32 v{T+4}, v{T+4}, v{T+5}')
    a.e(f'v_mul_f32 v{T}, {fx(1.0/448)}, v{T}')
    a.e(f'v_mul_f32 v{T+4}, {fx(1.0/448)}, v{T+4}')
    a.e(f'v_fma_f32 v{T+4}, -v{T}, v{T}, v{T+4}')
    a.e(f'v_max_f32 v{T+4}, 0, v{T+4}')
    a.e(f'v_cvt_pk_bf16_f32 v{T+4}, v{T+4}, v{T+4}')
    a.e(f'v_lshlrev_b32 v{T+4}, 16, v{T+4}')
    a.e(f'v_add_f32 v{T+4}, {fx(1e-5)}, v{T+4}')
    a.e(f'v_cvt_pk_bf16_f32 v{T+4}, v{T+4}, v{T+4}')
    a.e(f'v_lshlrev_b32 v{T+4}, 16, v{T+4}')
    a.e(f'v_sqrt_f32 v{T+4}, v{T+4}')
    a.e(f'v_cvt_pk_bf16_f32 v{T}, v{T}, v{T+4}')


def poison_regs(a):
    for r in range(216, 220):
        a.e(f'v_mov_b32 v{r}, -1')


def clear_hh(a):
    a.e(f's_mul_i32 s66, s{S_B}, 7168')
    a.e(f's_add_u32 s66, s66, {WS_HH}')
    a.e('v_lshl_add_u32 v4, v0, 4, s66')
    a.e('v_add_u32 v5, 4096, v4')
    mask_lanes(a, 5, 192, 6, 'v0')
    a.e(f'buffer_store_dwordx4 v[216:219], v4, {WSR}, 0 offen sc1')
    a.e(f'buffer_store_dwordx4 v[216:219], v5, {WSR}, 0 offen sc1')


def clear_aout(a):
    a.e(f's_mul_i32 s66, s{S_P}, {AST}')
    a.e(f's_add_u32 s66, s66, {WS_AOUT}')
    a.e('v_lshl_add_u32 v4, v0, 4, s66')
    a.e('v_add_u32 v5, 4096, v4')
    a.e(f'buffer_store_dwordx4 v[216:219], v4, {WSR}, 0 offen sc1')
    a.e(f'buffer_store_dwordx4 v[216:219], v5, {WSR}, 0 offen sc1')


def g_store_addr(a, vd):
    a.e(f's_lshl_b32 s66, s{S_I1}, 3')
    a.e(f's_lshl_b32 s70, s{S_W}, 1')
    a.e('s_add_u32 s66, s66, s70')
    a.e('s_mul_i32 s66, s66, 7168')
    a.e(f's_mul_i32 s70, s{S_J}, 896')
    a.e('s_add_u32 s66, s66, s70')
    a.e(f's_add_u32 s66, s66, {WS_G}')
    a.e(f'v_lshl_add_u32 v{vd}, v1, 4, s66')
    mask_lanes(a, vd, 56, 6)


def clear_g(a):
    g_store_addr(a, 4)
    a.e('v_add_u32 v5, 7168, v4')
    a.e(f'buffer_store_dwordx4 v[216:219], v4, {WSR}, 0 offen sc1')
    a.e(f'buffer_store_dwordx4 v[216:219], v5, {WSR}, 0 offen sc1')


def publish_xn(a):
    bcast_stats(a, 16)
    for j in range(8):
        d = 64 + 2 * j
        t = 48 + j
        a.e(f'v_lshlrev_b32 v{d}, 16, v{8+j}')
        a.e(f'v_and_b32 v{d+1}, 0xffff0000, v{8+j}')
        a.e(f'v_pk_add_f32 v[{d}:{d+1}], v[{d}:{d+1}], s[{72+2*j}:{73+2*j}] op_sel:[0,0] op_sel_hi:[1,0] neg_lo:[0,1] neg_hi:[0,1]')
        a.e(f'v_cvt_pk_bf16_f32 v{t}, v{d}, v{d+1}')
        a.e(f'v_lshlrev_b32 v{d}, 16, v{t}')
        a.e(f'v_and_b32 v{d+1}, 0xffff0000, v{t}')
        a.e(f'v_pk_mul_f32 v[{d}:{d+1}], v[{d}:{d+1}], s[{72+2*j}:{73+2*j}] op_sel:[0,1] op_sel_hi:[1,1]')
        a.e(f'v_cvt_pk_bf16_f32 v{t}, v{d}, v{d+1}')
        a.e(f'v_lshlrev_b32 v{d}, 16, v{t}')
        a.e(f'v_and_b32 v{d+1}, 0xffff0000, v{t}')
    for i in range(4):
        a.e(f'v_cvt_pk_f16_f32 v{80+i}, v{64+4*i}, v{66+4*i}')
        a.e(f'v_cvt_pk_f16_f32 v{84+i}, v{65+4*i}, v{67+4*i}')
    if OPT['xnb']:
        a.e(f's_mul_i32 s66, s{S_W}, {56*16}')
        a.e(f's_mul_i32 s67, s{S_B}, 7168')
        a.e('s_add_u32 s66, s66, s67')
        a.e(f's_add_u32 s66, s66, {WS_XN}')
        a.e('v_lshl_add_u32 v4, v1, 4, s66')
        mask_lanes(a, 4, 56, 5)
        a.e('v_add_u32 v5, 3584, v4')
    else:
        a.e(f's_mul_i32 s66, s{S_W}, {56*XPS}')
        a.e(f's_lshl_b32 s67, s{S_B}, 4')
        a.e('s_add_u32 s66, s66, s67')
        a.e(f's_add_u32 s66, s66, {WS_XN}')
        a.e(f'v_mul_u32_u24 v4, {XPS}, v1')
        a.e('v_add_u32 v4, s66, v4')
        mask_lanes(a, 4, 56, 5)
        a.e(f'v_add_u32 v5, {XCS}, v4')
    a.e(f'buffer_store_dwordx4 v[80:83], v4, {WSR}, 0 offen sc1')
    a.e(f'buffer_store_dwordx4 v[84:87], v5, {WSR}, 0 offen sc1')


def publish_flag(a, vm=0):
    a.e(f's_waitcnt vmcnt({vm})')
    a.e('s_barrier')
    l = a.lab('noflag')
    a.e(f's_cmp_lg_u32 s{S_W}, 0')
    a.e(f's_cbranch_scc1 {l}')
    a.e(f's_lshl_b32 s66, s{S_B}, 6')
    a.e(f's_add_u32 s66, s66, {WS_FLAG}')
    a.e('v_mov_b32 v2, s66')
    a.e(f'v_mov_b32 v3, s{S_TAG}')
    a.e('s_mov_b64 exec, 1')
    a.e(f'buffer_store_dword v3, v2, {WSR}, 0 offen sc1')
    a.e('s_mov_b64 exec, -1')
    a.e(f'{l}:')


V_FA, V_FV = 233, 234


def flag_addr(a):
    a.e(f'v_lshlrev_b32 v{V_FA}, 6, v0')
    a.e(f'v_add_u32 v{V_FA}, {WS_FLAG}, v{V_FA}')


def flag_load(a):
    a.e(f'buffer_load_dword v{V_FV}, v{V_FA}, {WSR}, 0 offen sc1')


def flag_poll(a):
    lp, ld = a.lab('fpoll'), a.lab('fdone')
    a.e(f's_mov_b32 s{S_SPIN}, 0')
    a.e(f'{lp}:')
    flag_load(a)
    a.e('s_waitcnt vmcnt(0)')
    a.e(f'v_cmp_ne_u32 vcc, s{S_TAG}, v{V_FV}')
    a.e(f's_cbranch_vccz {ld}')
    spin_tail(a, lp)
    a.e(f'{ld}:')


def load_u(a):
    if OPT['xnb']:
        a.e(f's_lshl_b32 s66, s{S_P}, 4')
        a.e(f's_add_u32 s66, s66, {WS_XN}')
        a.e('v_mul_u32_u24 v2, 7168, v0')
        a.e('v_add_u32 v2, s66, v2')
        a.e('v_add_u32 v3, 3584, v2')
    else:
        a.e(f's_mul_i32 s66, s{S_P}, {XPS}')
        a.e(f's_add_u32 s66, s66, {WS_XN}')
        a.e('v_lshl_add_u32 v2, v0, 4, s66')
        a.e(f'v_add_u32 v3, {XCS}, v2')
    a.e(f'buffer_load_dwordx4 v[176:179], v2, {WSR}, 0 offen sc1')
    a.e(f'buffer_load_dwordx4 v[180:183], v3, {WSR}, 0 offen sc1')


def epoch_update(a):
    le = a.lab('noep')
    a.e('s_cmp_lg_u32 s2, 0')
    a.e(f's_cbranch_scc1 {le}')
    a.e(f'v_mov_b32 v2, {WS_EPOCH}')
    a.e(f'v_mov_b32 v3, s{S_TAG}')
    a.e('s_mov_b64 exec, 1')
    a.e(f'buffer_store_dword v3, v2, {WSR}, 0 offen sc1')
    a.e('s_mov_b64 exec, -1')
    a.e(f'{le}:')


def code_prefetch(a, lstart, lend_):
    lp = a.lab('pcp')
    a.e('s_getpc_b64 s[74:75]')
    a.e(f'{lp}:')
    a.e(f's_sub_u32 s74, s74, {lp}-{lstart}')
    a.e('s_subb_u32 s75, s75, 0')
    a.e('v_lshlrev_b32 v4, 6, v0')
    a.e(f's_mov_b32 s76, {lend_}-{lstart}-4')
    a.e('v_add_u32 v5, 16384, v4')
    a.e('v_min_u32 v4, s76, v4')
    a.e('v_min_u32 v5, s76, v5')
    a.e('global_load_dword v220, v4, s[74:75]')
    a.e('global_load_dword v220, v5, s[74:75]')


def code_prefetch1(a, lstart, lend_):
    lp = a.lab('pcp')
    a.e('s_getpc_b64 s[74:75]')
    a.e(f'{lp}:')
    a.e('v_lshlrev_b32 v4, 6, v0')
    a.e(f's_mov_b32 s76, {lend_}-{lp}-4')
    a.e('v_min_u32 v4, s76, v4')
    a.e('global_load_dword v220, v4, s[74:75]')


def tlb_touch(a):
    g = OPT['tlbg']
    n = 0
    srd(a, S_T2, P_OUT, XBYTES)
    srd(a, S_T3, P_B2, L * 2)
    if g == 21:
        a.e('v_lshlrev_b32 v4, 21, v1')
        for s_ in (S_W1, S_W2, S_WS, S_T2, S_T3):
            a.e(f'buffer_load_dword v220, v4, s[{s_}:{s_+3}], 0 offen')
            n += 1
    else:
        a.e(f'v_lshlrev_b32 v4, {g}, v0')
        for s_, nbytes in ((S_W1, W1BYTES), (S_W2, W2BYTES), (S_WS, 0xC00000), (S_T2, XBYTES), (S_T3, 4096)):
            for k in range(-(-nbytes // (256 << g))):
                a.e(f's_mov_b32 s70, {k * (256 << g)}')
                a.e(f'buffer_load_dword v220, v4, s[{s_}:{s_+3}], s70 offen')
                n += 1
    return n


def kgen_loads(a):
    srd(a, S_T0, P_LAR, PBYTES)
    srd(a, S_T1, P_AI, PBYTES)
    srd(a, S_T2, P_CR, PBYTES)
    srd(a, S_T3, P_CI, PBYTES)
    a.e(f's_lshl_b32 s66, s{S_P}, 10')
    a.e(f's_lshl_b32 s67, s{S_W}, 7')
    a.e('s_add_u32 s66, s66, s67')
    a.e('v_lshl_add_u32 v2, v1, 1, s66')
    for c in range(2):
        for k, s in enumerate((S_T0, S_T1, S_T2, S_T3)):
            a.e(f'buffer_load_ushort v{40+4*c+k}, v2, s[{s}:{s+3}], 0 offen offset:{512*c}')
    a.e(f's_lshl_b32 s66, s{S_P}, 2')
    a.e(f's_load_dword s68, s[{P_LDT}:{P_LDT+1}], s66')
    a.e(f's_load_dword s69, s[{P_DSK}:{P_DSK+1}], s66')


def load_gather_table(a, tablabel):
    lp = a.lab('pc')
    a.e('s_getpc_b64 s[70:71]')
    a.e(f'{lp}:')
    a.e(f's_add_u32 s70, s70, {tablabel}-{lp}')
    a.e('s_addc_u32 s71, s71, 0')
    a.e('v_lshlrev_b32 v2, 5, v0')
    a.e('global_load_dwordx4 v[160:163], v2, s[70:71]')
    a.e('global_load_dwordx4 v[164:167], v2, s[70:71] offset:16')


DK0, DK1 = 16, 28


def kgen_channel(a, c, DACC, mid=None, mid_m0=True):
    LAR, AI, CR, CI = 40 + 4 * c, 41 + 4 * c, 42 + 4 * c, 43 + 4 * c
    SIG, DT = 52 + c, 54 + c
    AL, BE = 56, 57
    Z1, Z2, Z4, Z8, Z128, Z256, Z512, Z1024 = 58, 60, 62, 64, 66, 68, 70, 72
    X0, CA, CB, CC, T0, T1 = 74, 76, 78, 80, 82, 84
    CV = [86, 87, 88, 89]
    VW, VR = 90, 91
    t, t2 = 92, 93
    for r in (LAR, AI, CR, CI):
        a.e(f'v_lshlrev_b32 v{r}, 16, v{r}')
    a.e('s_lshl_b32 s66, s68, 16' if c == 0 else 's_and_b32 s66, s68, 0xffff0000')
    a.e(f'v_mov_b32 v{t2}, s66')
    exp_bf16(a, DT, t2, t)
    a.e(f'v_add_f32 v{SIG}, abs(v{CR}), abs(v{CI})')
    exp_bf16(a, AL, LAR, t)
    a.e(f'v_add_f32_dpp v{SIG}, v{SIG}, v{SIG} quad_perm:[1,0,3,2] row_mask:0xf bank_mask:0xf')
    a.e(f'v_mul_f32 v{AL}, v{AL}, v{DT}')
    a.e(f'v_mul_f32 v{BE}, v{AI}, v{DT}')
    a.e(f'v_add_f32_dpp v{SIG}, v{SIG}, v{SIG} quad_perm:[2,3,0,1] row_mask:0xf bank_mask:0xf')
    a.e(f'v_mul_f32 v{AL}, {fx(-1.4426950408889634)}, v{AL}')
    a.e(f'v_mul_f32 v{BE}, {fx(0.15915494309189535)}, v{BE}')
    a.e(f'v_add_f32_dpp v{SIG}, v{SIG}, v{SIG} row_half_mirror row_mask:0xf bank_mask:0xf')
    a.e(f'v_exp_f32 v{T0}, v{AL}')
    a.e(f'v_fract_f32 v{t}, v{BE}')
    a.e(f'v_add_f32_dpp v{SIG}, v{SIG}, v{SIG} row_ror:8 row_mask:0xf bank_mask:0xf')
    a.e(f'v_cos_f32 v{Z1}, v{t}')
    a.e(f'v_sin_f32 v{Z1+1}, v{t}')
    a.e(f'v_mov_b32 v{t2}, v{SIG}')
    a.e(f'v_mul_f32 v{T1}, 0x43000000, v{AL}')
    a.e(f'v_mul_f32 v{t}, 0x43000000, v{BE}')
    a.e(f'v_permlane16_swap_b32 v{SIG}, v{t2}')
    a.e(f'v_pk_mul_f32 v[{Z1}:{Z1+1}], v[{Z1}:{Z1+1}], v[{T0}:{T0+1}] op_sel:[0,0] op_sel_hi:[1,0]')
    a.e(f'v_add_f32 v{SIG}, v{SIG}, v{t2}')
    a.e(f'v_exp_f32 v{T1}, v{T1}')
    a.e(f'v_fract_f32 v{t}, v{t}')
    a.e(f'v_mov_b32 v{t2}, v{SIG}')
    a.e(f'v_cos_f32 v{Z128}, v{t}')
    a.e(f'v_sin_f32 v{Z128+1}, v{t}')
    a.e(f'v_permlane32_swap_b32 v{SIG}, v{t2}')
    cmul(a, Z2, Z1, Z1, Z2)
    a.e(f'v_add_f32 v{SIG}, v{SIG}, v{t2}')
    a.e(f'v_pk_mul_f32 v[{Z128}:{Z128+1}], v[{Z128}:{Z128+1}], v[{T1}:{T1+1}] op_sel:[0,0] op_sel_hi:[1,0]')
    a.e(f'v_add_f32 v{SIG}, {fx(1e-30)}, v{SIG}')
    cmul(a, Z4, Z2, Z2, Z4)
    a.e(f'v_rcp_f32 v{t}, v{SIG}')
    cmul(a, Z256, Z128, Z128, Z256)
    cmul(a, Z8, Z4, Z4, Z8)
    a.e(f'v_mul_f32 v{X0}, v{CR}, v{t}')
    a.e(f'v_mul_f32 v{X0+1}, v{CI}, v{t}')
    cmul(a, Z512, Z256, Z256, Z512)
    a.e(f's_mul_i32 s66, s{S_W}, {SCRW}')
    a.e(f's_add_u32 s66, s66, {L_SCR}')
    a.e('s_mov_b32 m0, s66')
    cmul(a, Z1024, Z512, Z512, Z1024)
    a.e(f'v_and_b32 v{t}, 15, v1')
    a.e(f'v_mul_u32_u24 v{t}, {SROW}, v{t}')
    a.e(f'v_lshrrev_b32 v{t2}, 4, v1')
    a.e(f'v_lshl_add_u32 v{t}, v{t2}, 4, v{t}')
    a.e(f'v_add_u32 v{VR}, s66, v{t}')
    cvi = [0]
    pend = []

    def flush(keep):
        while len(pend) > keep:
            cv, off = pend.pop(0)
            a.e(f'ds_write_addtid_b32 v{cv} offset:{off}')

    def put(off, r, neg):
        cv = CV[cvi[0] % 4]
        cvi[0] += 1
        a.e(f'v_cvt_pk_f16_f32 v{cv}, v{r}, {"-" if neg else ""}v{r+1}')
        flush(1)
        pend.append((cv, off))

    def putX(row, r):
        put(row * SROW, r, True)

    def putY(b, r):
        put((YROW + b) * SROW, r, False)

    a.e(f'v_mov_b32 v{VW}, 0x00003c00')
    pend.append((VW, YROW * SROW))
    putY(1, Z8)
    ychain = {'cur': Z8, 'b': 1}
    YA, YB = CC, 94

    def ystep():
        if ychain['b'] >= 15:
            return
        d = YA if ychain['cur'] != YA else YB
        cmul(a, d, ychain['cur'], Z8, d)
        ychain['b'] += 1
        ychain['cur'] = d
        putY(ychain['b'], d)

    putX(0, X0)
    cmul(a, T0, X0, Z128, T0)
    putX(8, T0)
    cur = X0
    for j in range(1, 8):
        d = CA if cur != CA else CB
        cmul(a, d, cur, Z1, d)
        ystep()
        putX(j, d)
        cmul(a, T0, d, Z128, T0)
        putX(8 + j, T0)
        cur = d
    cmul(a, CA, X0, Z256, CA)
    ystep()
    putX(16, CA)
    cmul(a, T0, CA, Z128, T0)
    putX(20, T0)
    cur = CA
    for j in range(1, 4):
        d = CA if cur != CA else CB
        cmul(a, d, cur, Z2, d)
        ystep()
        putX(16 + j, d)
        cmul(a, T0, d, Z128, T0)
        putX(20 + j, T0)
        cur = d
    if mid is not None:
        if mid_m0:
            flush(0)
        mid()
        if mid_m0:
            a.e(f's_mul_i32 s66, s{S_W}, {SCRW}')
            a.e(f's_add_u32 s66, s66, {L_SCR}')
            a.e('s_mov_b32 m0, s66')
    cmul(a, CA, X0, Z512, CA)
    ystep()
    putX(24, CA)
    cmul(a, CB, CA, Z4, CB)
    ystep()
    putX(25, CB)
    pa, pb = CA, CB
    na, nb = T0, T1
    for q in range(1, 4):
        cmul(a, na, pa, Z128, na)
        cmul(a, nb, pb, Z128, nb)
        ystep()
        putX(24 + 2 * q, na)
        putX(25 + 2 * q, nb)
        pa, pb, na, nb = na, nb, pa, pb
    cmul(a, CA, X0, Z1024, CA)
    putX(32, CA)
    cur = CA
    for q in range(1, 9):
        d = CA if cur != CA else CB
        cmul(a, d, cur, Z128, d)
        putX(32 + q, d)
        cur = d
    while ychain['b'] < 15:
        ystep()
    flush(0)
    FA = 96
    for k in range(4):
        a.e(f'ds_read_b128 v[{144+4*k}:{147+4*k}], v{VR} offset:{YROW*SROW+64*k}')
        for T in range(3):
            r = FA + 16 * T + 4 * k
            a.e(f'ds_read_b128 v[{r}:{r+3}], v{VR} offset:{16*T*SROW+64*k}')
    for k in range(4):
        a.e(f's_waitcnt lgkmcnt({4*(3-k)})')
        for T in range(3):
            r = FA + 16 * T + 4 * k
            cc = '0' if k == 0 else f'v[{DACC+4*T}:{DACC+4*T+3}]'
            a.e(f'v_mfma_f32_16x16x32_f16 v[{DACC+4*T}:{DACC+4*T+3}], v[{r}:{r+3}], v[{144+4*k}:{147+4*k}], {cc}')


def ktab_part1(a):
    a.e(f's_mul_i32 s66, s{S_W}, {SCRW}')
    a.e(f's_add_u32 s66, s66, {L_SCR}')
    a.e('v_lshl_add_u32 v90, v1, 4, s66')
    a.e(f's_lshl_b32 s67, s{S_W}, 2')
    a.e(f's_add_u32 s67, s67, {L_SIG}')
    a.e('v_mov_b32 v91, s67')
    a.e('s_mov_b64 exec, 1')
    a.e('ds_write_b32 v91, v52')
    a.e('ds_write_b32 v91, v53 offset:16')
    a.e('s_mov_b64 exec, -1')
    for c, DK in ((0, DK0), (1, DK1)):
        for T in range(3):
            for h in range(2):
                i = DK + 4 * T + 2 * h
                a.e(f'v_pk_mul_f32 v[{i}:{i+1}], v[{i}:{i+1}], v[52:53] op_sel:[0,{c}] op_sel_hi:[1,{c}]')
            a.e(f'ds_write_b128 v90, v[{DK+4*T}:{DK+4*T+3}] offset:{c*3072+T*1024}')
    a.e('v_mov_b32 v96, 0')
    a.e('v_mov_b32 v97, 0')
    a.e('v_mov_b32 v98, 0')
    a.e('v_mov_b32 v99, 0')
    a.e(f'v_mov_b32 v92, {L_KT + 1536}')
    a.e('ds_write_b32 v92, v96')
    a.e(f'ds_write_b32 v92, v96 offset:{KTCH}')
    a.e('v_lshlrev_b32 v92, 3, v1')
    a.e(f'ds_write_b64 v92, v[96:97] offset:{L_U}')
    a.e(f'ds_write_b64 v92, v[96:97] offset:{L_U + UCH}')
    a.e('s_waitcnt lgkmcnt(0)')
    a.e('s_barrier')


def ktab_part2(a):
    a.e(f'v_mov_b32 v91, {L_SIG}')
    a.e('ds_read_b128 v[44:47], v91')
    a.e('ds_read_b128 v[48:51], v91 offset:16')
    a.e(f's_and_b32 s67, s{S_W}, 1')
    a.e(f's_lshr_b32 s70, s{S_W}, 1')
    a.e('s_mul_i32 s71, s67, 3072')
    a.e('s_lshl_b32 s72, s70, 10')
    a.e('s_add_u32 s72, s72, s71')
    a.e(f's_add_u32 s72, s72, {L_SCR}')
    a.e(f's_add_u32 s71, s71, {L_SCR + 2048}')
    a.e('v_lshl_add_u32 v90, v1, 4, s72')
    a.e('v_lshl_add_u32 v91, v1, 4, s71')
    for wv in range(4):
        a.e(f'ds_read_b128 v[{96+4*wv}:{99+4*wv}], v90 offset:{wv*SCRW}')
    for wv in range(4):
        a.e(f'ds_read_b128 v[{112+4*wv}:{115+4*wv}], v91 offset:{wv*SCRW}')
    a.e('v_mov_b32 v128, 0')
    a.e('v_mov_b32 v129, 0')
    a.e('v_mov_b32 v130, 0')
    a.e('v_mov_b32 v131, 0')
    a.e('v_and_b32 v132, 15, v1')
    a.e(f'v_mul_u32_u24 v132, {KCOPY}, v132')
    a.e(f'v_add_u32 v132, {L_KC}, v132')
    a.e('ds_write_b128 v132, v[128:131] offset:4096')
    a.e('v_lshrrev_b32 v92, 4, v1')
    a.e('v_lshlrev_b32 v92, 7, v92')
    a.e('v_and_b32 v93, 15, v1')
    a.e('v_lshl_add_u32 v92, v93, 1, v92')
    a.e(f's_mul_i32 s71, s67, {KTCH}')
    a.e(f's_add_u32 s71, s71, {L_KT}')
    a.e('v_add_u32 v93, s71, v92')
    a.e('s_lshl_b32 s72, s70, 9')
    a.e('v_add_u32 v92, s72, v93')
    a.e('s_waitcnt lgkmcnt(9)')
    a.e('v_pk_add_f32 v[44:45], v[44:45], v[46:47]')
    a.e('v_pk_add_f32 v[48:49], v[48:49], v[50:51]')
    a.e('v_add_f32 v44, v44, v45')
    a.e('v_add_f32 v45, v48, v49')
    a.e('s_cmp_eq_u32 s67, 0')
    a.e('s_cselect_b64 vcc, -1, 0')
    a.e('v_pk_mul_f32 v[54:55], v[54:55], v[44:45]')
    a.e('v_cndmask_b32 v46, v45, v44, vcc')
    a.e('v_pk_add_f32 v[54:55], v[54:55], v[54:55]')
    a.e('v_rcp_f32 v46, v46')
    for jb, (base, va, off) in enumerate(((96, 92, 0), (112, 93, 1024))):
        a.e(f's_waitcnt lgkmcnt({5 if jb == 0 else 5})')
        for h in range(2):
            a.e(f'v_pk_add_f32 v[{base+2*h}:{base+2*h+1}], v[{base+2*h}:{base+2*h+1}], v[{base+4+2*h}:{base+5+2*h}]')
            a.e(f'v_pk_add_f32 v[{base+8+2*h}:{base+9+2*h}], v[{base+8+2*h}:{base+9+2*h}], v[{base+12+2*h}:{base+13+2*h}]')
        for h in range(2):
            a.e(f'v_pk_add_f32 v[{base+2*h}:{base+2*h+1}], v[{base+2*h}:{base+2*h+1}], v[{base+8+2*h}:{base+9+2*h}]')
        for h in range(2):
            a.e(f'v_pk_mul_f32 v[{base+2*h}:{base+2*h+1}], v[{base+2*h}:{base+2*h+1}], v[46:47] op_sel:[0,0] op_sel_hi:[1,0]')
        a.e(f'v_cvt_pk_f16_f32 v{base+4}, v{base}, v{base+1}')
        a.e(f'v_cvt_pk_f16_f32 v{base+5}, v{base+2}, v{base+3}')
        a.e(f'ds_write_b16 v{va}, v{base+4} offset:{off}')
        a.e(f'ds_write_b16_d16_hi v{va}, v{base+4} offset:{off+32}')
        a.e(f'ds_write_b16 v{va}, v{base+5} offset:{off+64}')
        a.e(f'ds_write_b16_d16_hi v{va}, v{base+5} offset:{off+96}')
    for e in range(15):
        src = 160 + e // 2
        if e % 2 == 0:
            a.e(f'v_and_b32 v{136+e}, 0xffff, v{src}')
        else:
            a.e(f'v_lshrrev_b32 v{136+e}, 16, v{src}')
    a.e('s_waitcnt lgkmcnt(0)')
    a.e('s_barrier')


def kcopies(a):
    AD = 136
    a.e('v_lshlrev_b32 v111, 4, v0')
    a.e(f'v_add_u32 v111, {L_KC}, v111')
    RR = [96, 112]
    for c in range(2):
        for e in range(15):
            a.e(f'ds_read_u16 v{RR[c]+e}, v{AD+e} offset:{L_KT + c*KTCH}')
    for c in range(2):
        R = RR[c]
        Da, Db, Oa, Ob = 56 + 0, 64, 72, 80
        if c == 1:
            Da, Db, Oa, Ob = 16, 24, 32, 40
        a.e(f's_waitcnt lgkmcnt({15 if c == 0 else 8})')
        for i in range(6):
            a.e(f'v_lshl_or_b32 v{Da+i}, v{R+2*i+1}, 16, v{R+2*i}')
            a.e(f'v_lshl_or_b32 v{Oa+i}, v{R+2*i+2}, 16, v{R+2*i+1}')
        if c == 1:
            a.e(f'v_add_u32 v110, {KCH}, v111')
        va = 111 if c == 0 else 110
        for s, r in ((0, Da), (1, Oa), (4, Da + 2), (5, Oa + 2)):
            a.e(f'ds_write_b128 v{va}, v[{r}:{r+3}] offset:{s*KCOPY}')
        for i in range(6):
            a.e(f'v_lshl_or_b32 v{Db+i}, v{R+2*i+3}, 16, v{R+2*i+2}')
            a.e(f'v_lshl_or_b32 v{Ob+i}, v{R+2*i+4}, 16, v{R+2*i+3}')
        for s, r in ((2, Db), (3, Ob), (6, Db + 2), (7, Ob + 2)):
            a.e(f'ds_write_b128 v{va}, v[{r}:{r+3}] offset:{s*KCOPY}')


def store_u(a, vm):
    a.e('v_lshlrev_b32 v2, 4, v0')
    a.e(f's_waitcnt vmcnt({vm})')
    a.e(f'ds_write_b128 v2, v[176:179] offset:{L_U + 512}')
    a.e(f'ds_write_b128 v2, v[180:183] offset:{L_U + UCH + 512}')
    a.e('s_waitcnt lgkmcnt(0)')
    a.e('s_barrier')


def phase_conv(a, hooks, pre_vm):
    hooks = list(hooks)
    ACC = 16
    FA = [[64 + 64 * s + 4 * i for i in range(8)] for s in range(2)]
    FB = [[96 + 64 * s + 4 * i for i in range(8)] for s in range(2)]
    VA, VB = 48, 49

    def loads(qq, s):
        out = []
        for i in range(8):
            out.append(f'ds_read_b128 v[{FB[s][i]}:{FB[s][i]+3}], v{VB} offset:{512*i + 64*(3-qq)}')
            out.append(f'ds_read_b128 v[{FA[s][i]}:{FA[s][i]+3}], v{VA} offset:{512*(7-i) + 64*(3-qq)}')
        return out

    for x in loads(0, 0):
        a.e(x)
    for qq in range(4):
        s = qq & 1
        nxt = loads(qq + 1, 1 - s) if qq < 3 else []
        n = 0
        for w in range(8):
            for c in range(w, 8):
                if n == 0:
                    a.e('s_waitcnt lgkmcnt(0)')
                cc = '0' if (qq == 0 and w == 0) else f'v[{ACC+4*c}:{ACC+4*c+3}]'
                a.e(f'v_mfma_f32_16x16x32_f16 v[{ACC+4*c}:{ACC+4*c+3}], v[{FA[s][w]}:{FA[s][w]+3}], v[{FB[s][c-w]}:{FB[s][c-w]+3}], {cc}')
                if nxt and n % 2 == 1:
                    a.e(nxt.pop(0))
                if hooks and n % 4 == 2:
                    hooks.pop(0)()
                n += 1
        assert not nxt
    assert not hooks
    stamp(a, 11)
    CP, TS = L_CP, 1280
    a.e('v_and_b32 v2, 15, v1')
    a.e('v_lshlrev_b32 v2, 4, v2')
    a.e('v_lshrrev_b32 v3, 4, v1')
    a.e('v_mul_u32_u24 v3, 320, v3')
    a.e('v_add_u32 v2, v2, v3')
    a.e(f's_mul_i32 s70, s{S_W}, {8*TS}')
    a.e(f's_add_u32 s70, s70, {CP}')
    a.e('v_add_u32 v2, s70, v2')
    a.e('s_barrier')
    for c in range(8):
        a.e(f'ds_write_b128 v2, v[{ACC+4*c}:{ACC+4*c+3}] offset:{c*TS}')
    a.e('v_lshrrev_b32 v2, 2, v1')
    a.e('v_lshlrev_b32 v2, 4, v2')
    a.e('v_and_b32 v3, 3, v1')
    a.e('v_mul_u32_u24 v3, 320, v3')
    a.e('v_add_u32 v2, v2, v3')
    a.e(f's_lshl_b32 s70, s{S_W}, 1')
    a.e(f's_mul_i32 s71, s70, {TS}')
    a.e(f's_add_u32 s71, s71, {CP}')
    a.e('v_add_u32 v2, s71, v2')
    a.e('s_lshl_b32 s71, s70, 9')
    a.e(f's_add_u32 s71, s71, {L_U + 512}')
    a.e('v_lshl_add_u32 v3, v1, 3, s71')
    a.e(f's_mul_i32 s71, s{S_P}, {AST}')
    a.e('s_lshl_b32 s72, s70, 10')
    a.e('s_add_u32 s71, s71, s72')
    a.e(f's_add_u32 s71, s71, {WS_AOUT}')
    a.e('v_lshl_add_u32 v4, v1, 4, s71')
    a.e('s_lshl_b32 s72, s69, 16')
    a.e('s_and_b32 s73, s69, 0xffff0000')
    a.e('v_mov_b32 v56, s72')
    a.e('v_mov_b32 v57, s73')
    a.e(f's_waitcnt lgkmcnt(0) vmcnt({pre_vm})')
    a.e('s_barrier')
    for q in range(2):
        P = 64 + 32 * q
        for ch in range(2):
            for hf in range(2):
                r = P + 8 * ch + 4 * hf
                a.e(f'ds_read_b128 v[{r}:{r+3}], v2 offset:{(2*ch+hf)*8*TS + q*TS}')
        for ch in range(2):
            a.e(f'ds_read_b64 v[{P+16+2*ch}:{P+17+2*ch}], v3 offset:{ch*UCH + q*512}')
    for q in range(2):
        P = 64 + 32 * q
        a.e(f's_waitcnt lgkmcnt({6 if q == 0 else 0})')
        for ch in range(2):
            y = P + 8 * ch
            T = 128 + 16 * ch
            u = P + 16 + 2 * ch
            for h in range(2):
                a.e(f'v_pk_add_f32 v[{y+2*h}:{y+2*h+1}], v[{y+2*h}:{y+2*h+1}], v[{y+4+2*h}:{y+5+2*h}]')
            for i in range(4):
                a.e(f'v_fma_mix_f32 v{T+i}, v{u+i//2}, v{56+ch}, 0 op_sel:[{i%2},0,0] op_sel_hi:[1,0,0]')
            for h in range(2):
                a.e(f'v_pk_mul_f32 v[{y+2*h}:{y+2*h+1}], v[{y+2*h}:{y+2*h+1}], v[54:55] op_sel:[0,{ch}] op_sel_hi:[1,{ch}]')
            for h in range(2):
                a.e(f'v_cvt_pk_bf16_f32 v{T+6+h}, v{T+2*h}, v{T+2*h+1}')
                a.e(f'v_cvt_pk_bf16_f32 v{T+4+h}, v{y+2*h}, v{y+2*h+1}')
            for h in range(2):
                a.e(f'v_lshlrev_b32 v{T+2*h}, 16, v{T+6+h}')
                a.e(f'v_and_b32 v{T+2*h+1}, 0xffff0000, v{T+6+h}')
                a.e(f'v_lshlrev_b32 v{y+2*h}, 16, v{T+4+h}')
                a.e(f'v_and_b32 v{y+2*h+1}, 0xffff0000, v{T+4+h}')
            for h in range(2):
                a.e(f'v_pk_add_f32 v[{y+2*h}:{y+2*h+1}], v[{y+2*h}:{y+2*h+1}], v[{T+2*h}:{T+2*h+1}]')
        O = 160 + 4 * q
        for i in range(4):
            a.e(f'v_cvt_pk_bf16_f32 v{O+i}, v{P+i}, v{P+8+i}')
        a.e(f'buffer_store_dwordx4 v[{O}:{O+3}], v4, {WSR}, 0 offen offset:{q*1024} sc1')


def conv_addr(a):
    a.e(f's_lshr_b32 s66, s{S_W}, 1')
    a.e(f's_and_b32 s67, s{S_W}, 1')
    a.e('v_and_b32 v2, 7, v1')
    a.e('v_sub_u32 v2, 7, v2')
    a.e(f'v_mul_u32_u24 v2, {KCOPY}, v2')
    a.e('v_lshrrev_b32 v3, 4, v1')
    a.e('v_bfe_u32 v4, v1, 3, 1')
    a.e('v_sub_u32 v4, v3, v4')
    a.e('v_lshl_add_u32 v2, v4, 4, v2')
    a.e(f's_mul_i32 s70, s66, {KCH}')
    a.e('s_lshl_b32 s71, s67, 8')
    a.e('s_sub_u32 s70, s70, s71')
    a.e(f's_add_u32 s70, s70, {L_KC + 16*253 - 512*7 - 64*3}')
    a.e('v_add_u32 v48, s70, v2')
    a.e('v_and_b32 v2, 15, v1')
    a.e('v_lshlrev_b32 v2, 5, v2')
    a.e('v_lshl_add_u32 v2, v3, 4, v2')
    a.e(f's_mul_i32 s70, s66, {UCH}')
    a.e('s_sub_u32 s70, s70, s71')
    a.e(f's_add_u32 s70, s70, {L_U + 480 - 64*3}')
    a.e('v_add_u32 v49, s70, v2')


def phase_p4(a):
    X = list(range(8, 16))
    A = 32
    xrow_addr(a)
    a.e(f's_mul_i32 s66, s{S_W}, {56*AST}')
    a.e(f's_lshl_b32 s67, s{S_B}, 5')
    a.e('s_add_u32 s66, s66, s67')
    a.e(f's_add_u32 s66, s66, {WS_AOUT}')
    a.e(f'v_mul_u32_u24 v4, {AST}, v1')
    a.e('v_add_u32 v4, s66, v4')
    a.e(f'v_mov_b32 v5, {OOB}')
    a.e('v_cndmask_b32 v4, v5, v4, vcc')
    a.e(f's_mul_i32 s66, s{S_W}, 224')
    a.e(f's_add_u32 s66, s66, {L_HT}')
    a.e('v_lshl_add_u32 v6, v1, 2, s66')
    for j in range(8):
        a.e(f'v_lshlrev_b32 v{64+2*j}, 16, v{X[j]}')
        a.e(f'v_and_b32 v{65+2*j}, 0xffff0000, v{X[j]}')
    lp, ld = a.lab('h2poll'), a.lab('h2done')
    a.e(f's_mov_b32 s{S_SPIN}, 0')
    a.e(f'{lp}:')
    a.e(f'buffer_load_dwordx4 v[{A}:{A+3}], v4, {WSR}, 0 offen sc1')
    a.e(f'buffer_load_dwordx4 v[{A+4}:{A+7}], v4, {WSR}, 0 offen offset:16 sc1')
    a.e('s_waitcnt vmcnt(0)')
    a.e(f'v_max3_u32 v40, v{A}, v{A+1}, v{A+2}')
    a.e(f'v_max3_u32 v41, v{A+3}, v{A+4}, v{A+5}')
    a.e(f'v_max3_u32 v40, v40, v{A+6}, v{A+7}')
    a.e('v_max_u32 v40, v40, v41')
    a.e('v_cmp_eq_u32 vcc, -1, v40')
    a.e(f's_cbranch_vccz {ld}')
    spin_tail(a, lp)
    a.e(f'{ld}:')
    stamp(a, 14)
    H = list(range(48, 56))
    for j in range(8):
        t = 40 + 2 * (j % 4)
        a.e(f'v_lshlrev_b32 v{t}, 16, v{A+j}')
        a.e(f'v_and_b32 v{t+1}, 0xffff0000, v{A+j}')
        a.e(f'v_pk_add_f32 v[{t}:{t+1}], v[{t}:{t+1}], v[{64+2*j}:{65+2*j}]')
        a.e(f'v_cvt_pk_bf16_f32 v{H[j]}, v{t}, v{t+1}')
    a.e('s_mov_b32 exec_hi, 0x00ffffff')
    for j in range(8):
        a.e(f'ds_write_b32 v6, v{H[j]} offset:{j*896}')
    a.e('s_mov_b32 exec_hi, -1')

    def hstore():
        a.e('v_lshlrev_b32 v7, 4, v0')
        a.e(f'ds_read_b128 v[56:59], v7 offset:{L_HT}')
        a.e(f'ds_read_b128 v[60:63], v7 offset:{L_HT + 4096}')
        return 2

    ln_stats(a, H, 16, L_RED0, 5, mid=hstore)
    a.e(f's_mul_i32 s66, s{S_B}, 7168')
    a.e(f's_add_u32 s66, s66, {WS_H}')
    a.e('v_add_u32 v6, s66, v7')
    a.e('v_add_u32 v7, 4096, v6')
    mask_lanes(a, 7, 192, 4, 'v0')
    a.e('s_waitcnt lgkmcnt(0)')
    a.e(f'buffer_store_dwordx4 v[56:59], v6, {WSR}, 0 offen sc1')
    a.e(f'buffer_store_dwordx4 v[60:63], v7, {WSR}, 0 offen sc1')
    bcast_stats(a, 16)
    a.e('s_mov_b32 exec_hi, 0x00ffffff')
    for j in range(8):
        t = 40 + 2 * (j % 4)
        norm_tok(a, j, H[j], t)
        a.e(f'v_cvt_pk_bf16_f32 v{H[j]}, v{t}, v{t+1}')
    a.e('s_mov_b32 exec_hi, -1')
    ln_stats(a, H, 16, L_RED1, 5)
    bcast_stats(a, 16)
    a.e(f's_mul_i32 s66, s{S_B}, 7168')
    a.e(f's_mul_i32 s67, s{S_W}, 1792')
    a.e('s_add_u32 s66, s66, s67')
    a.e(f's_add_u32 s66, s66, {WS_HH}')
    a.e('v_lshl_add_u32 v4, v1, 4, s66')
    a.e('v_add_u32 v5, 448, v4')
    a.e('v_cmp_gt_u32 vcc, 28, v1')
    a.e('v_cndmask_b32 v4, v5, v4, vcc')
    mask_lanes(a, 4, 56, 5)
    for j in range(8):
        norm_tok(a, j, H[j], 64 + 2 * j)
    O0, O1 = 80, 84
    for i in range(4):
        a.e(f'v_cvt_pk_bf16_f32 v{O0+i}, v{64+4*i}, v{66+4*i}')
        a.e(f'v_cvt_pk_bf16_f32 v{O1+i}, v{65+4*i}, v{67+4*i}')
    a.e('s_waitcnt vmcnt(0)')
    a.e('s_barrier')
    a.e(f'buffer_store_dwordx4 v[{O0}:{O0+3}], v4, {WSR}, 0 offen sc1')
    a.e(f'buffer_store_dwordx4 v[{O1}:{O1+3}], v4, {WSR}, 0 offen offset:448 sc1')


def w_setup(a):
    srd(a, S_W1, P_W1, W1BYTES)
    srd(a, S_W2, P_W2, W2BYTES)
    a.e('v_lshrrev_b32 v4, 3, v1')
    a.e('v_bfe_u32 v5, v1, 4, 1')
    a.e('v_lshlrev_b32 v5, 1, v5')
    a.e('v_and_b32 v6, 7, v1')
    a.e('v_xor_b32 v6, v6, v5')
    a.e('v_xor_b32 v7, 4, v6')
    for vd, rowbytes, tile, rows in ((V_D1, F * 2, S_I1, 512), (V_D2, L * 2, S_I2, 448)):
        a.e(f's_mov_b32 s66, {rowbytes}')
        a.e('v_mul_lo_u32 v5, v4, s66')
        a.e(f's_mul_i32 s67, s{S_W}, {rows*rowbytes}')
        a.e(f's_lshl_b32 s66, s{tile}, 7')
        a.e('s_add_u32 s67, s67, s66')
        a.e('v_add_u32 v5, s67, v5')
        for i in range(4):
            a.e(f'v_lshl_add_u32 v{vd+i}, v{6 + (i & 1)}, 4, v5')
            if i:
                a.e(f'v_add_u32 v{vd+i}, {i*(8*rowbytes - 1024)}, v{vd+i}')
    a.e('v_lshlrev_b32 v5, 12, v4')
    a.e('v_and_b32 v6, 7, v1')
    a.e(f'v_lshl_add_u32 v{V_QPF}, v6, 4, v5')
    a.e(f's_and_b32 s66, s{S_LOC}, 3')
    a.e('s_mul_i32 s66, s66, 448')
    a.e(f's_mul_i32 s67, s{S_W}, 112')
    a.e('s_add_u32 s66, s66, s67')
    a.e('s_lshl_b32 s66, s66, 12')
    a.e(f's_lshl_b32 s67, s{S_I2}, 7')
    a.e(f's_add_u32 s{S_QPF}, s66, s67')
    a.e('v_lshrrev_b32 v4, 4, v1')
    a.e('v_bfe_u32 v5, v1, 2, 2')
    a.e('v_lshl_add_u32 v5, v4, 3, v5')
    a.e('v_lshlrev_b32 v5, 7, v5')
    a.e('v_and_b32 v6, 1, v1')
    a.e('v_lshl_add_u32 v5, v6, 3, v5')
    a.e('v_bfe_u32 v6, v1, 1, 1')
    a.e('v_lshl_add_u32 v5, v6, 4, v5')
    a.e('v_bfe_u32 v6, v1, 3, 1')
    a.e('v_and_b32 v4, 1, v4')
    a.e('v_lshl_add_u32 v6, v4, 1, v6')
    a.e(f's_and_b32 s66, s{S_LOC}, 3')
    a.e(f's_lshr_b32 s67, s{S_LOC}, 2')
    a.e('s_lshl_b32 s67, s67, 1')
    a.e('s_lshl_b32 s70, s66, 2')
    a.e('s_add_u32 s70, s70, s67')
    a.e('s_and_b32 s70, s70, 15')
    a.e(f's_mul_i32 s{S_RW1}, s70, {32*F*2}')
    a.e(f's_mul_i32 s{S_RX1}, s70, {4*7168}')
    a.e('s_mul_i32 s66, s66, 7')
    a.e('s_lshr_b32 s66, s66, 1')
    a.e('s_add_u32 s66, s66, s67')
    for _ in range(2):
        a.e('s_cmp_ge_u32 s66, 14')
        a.e('s_cselect_b32 s67, 14, 0')
        a.e('s_sub_u32 s66, s66, s67')
    a.e(f's_mul_i32 s{S_RW2}, s66, {32*L*2}')
    a.e(f's_mul_i32 s{S_RX2}, s66, {4*7168}')
    a.e(f's_lshl_b32 s{S_SA}, s{S_W}, 14')
    a.e(f's_add_u32 s{S_SA}, s{S_SA}, {L_WA}')
    a.e(f's_mul_i32 s{S_SB}, s{S_W}, 20480')
    a.e(f's_add_u32 s{S_SB}, s{S_SB}, {L_WB}')
    for mu in range(4):
        a.e(f'v_xor_b32 v4, {mu}, v6')
        a.e('v_lshl_add_u32 v4, v4, 5, v5')
        a.e(f'v_add_u32 v{V_TA+mu}, s{S_SA}, v4')
        a.e(f'v_add_u32 v{V_TB+mu}, s{S_SB}, v4')


def rot_off(a, idx, sreg, n, unit):
    a.e(f's_add_u32 s70, s{sreg}, {idx*unit}')
    a.e(f's_cmp_ge_u32 s70, {n*unit}')
    a.e(f's_cselect_b32 s71, {n*unit}, 0')
    a.e('s_sub_u32 s70, s70, s71')


def slot(name):
    return (S_SA, V_TA, int(name[1])) if name[0] == 'A' else (S_SB, V_TB, int(name[1]))


def w_dma1(a, mat, slab, sl, i):
    sb, _, si = slot(sl)
    vd, srd_, rowbytes = (V_D1, S_W1, F * 2) if mat == 1 else (V_D2, S_W2, L * 2)
    if i == 0:
        rot_off(a, slab, S_RW1 if mat == 1 else S_RW2, 16 if mat == 1 else 14, 32 * rowbytes)
        a.e(f's_add_u32 m0, s{sb}, {si*4096}')
    a.e(f'buffer_load_dwordx4 v{vd + i}, s[{srd_}:{srd_+3}], s70 offen offset:{1024*i} lds')


def w_dma(a, mat, slab, sl):
    for i in range(4):
        w_dma1(a, mat, slab, sl, i)


def w_tr(a, slab, sl):
    _, vt, si = slot(sl)
    for mu in range(4):
        r = (slab * 4 + mu) * 4
        a.e(f'ds_read_b64_tr_b16 a[{r}:{r+1}], v{vt+mu} offset:{si*4096}')
        a.e(f'ds_read_b64_tr_b16 a[{r+2}:{r+3}], v{vt+mu} offset:{si*4096 + 512}')


def qpf_load(a, n):
    for _ in range(n):
        a.e(f'buffer_load_dwordx4 v[220:223], v{V_QPF}, s[{S_W2}:{S_W2+3}], s{S_QPF} offen')
        a.e(f's_add_u32 s{S_QPF}, s{S_QPF}, {8*L*2}')


ACC = 16
XS = 80
NS = 6
VMAX = 214
V_X0, V_X3 = 208, 209


def gemm_xaddr(a, ws_off, kblocks):
    a.e(f's_mul_i32 s66, s{S_W}, {kblocks*7168}')
    a.e(f's_mul_i32 s67, s{S_J}, 896')
    a.e('s_add_u32 s66, s66, s67')
    a.e(f's_add_u32 s66, s66, {ws_off}')
    a.e('v_lshrrev_b32 v4, 4, v1')
    a.e('v_mul_u32_u24 v4, 7168, v4')
    a.e('v_add_u32 v4, s66, v4')
    a.e('v_and_b32 v5, 15, v1')
    a.e(f'v_lshl_add_u32 v{V_X0}, v5, 4, v4')
    if OPT['x3oob']:
        a.e(f'v_add_u32 v{V_X3}, 768, v{V_X0}')
        a.e(f'v_mov_b32 v4, {OOB}')
        a.e('v_cmp_gt_u32 vcc, 8, v5')
        a.e(f'v_cndmask_b32 v{V_X3}, v4, v{V_X3}, vcc')
    else:
        a.e('v_and_b32 v5, 7, v1')
        a.e('v_lshl_add_u32 v4, v5, 4, v4')
        a.e(f'v_add_u32 v{V_X3}, 768, v4')


def gemm_xloads(a, kappa, gid):
    st = XS + 16 * (kappa % NS)
    out = []
    sreg, n = (S_RX1, 16) if gid == 1 else (S_RX2, 14)
    unit = 4 * 7168
    out.append(f's_add_u32 s70, s{sreg}, {kappa*unit}')
    out.append(f's_cmp_ge_u32 s70, {n*unit}')
    out.append(f's_cselect_b32 s71, {n*unit}, 0')
    out.append('s_sub_u32 s70, s70, s71')
    for nu in range(3):
        out.append(f'buffer_load_dwordx4 v[{st+4*nu}:{st+4*nu+3}], v{V_X0}, {WSR}, s70 offen offset:{256*nu} sc1')
    out.append(f'buffer_load_dwordx4 v[{st+12}:{st+15}], v{V_X3}, {WSR}, s70 offen sc1')
    return out


def gemm_main(a, nk, gid, tail_hook=None):
    nfl = OPT['nfl']
    w_is_a = gid == 1
    a.e(f'v_mov_b32 v{VMAX}, 0')
    extra = 0
    for k in range(nk):
        st = XS + 16 * (k % NS)
        rem = min(nfl - 1, nk - 1 - k)
        a.e(f's_waitcnt vmcnt({4*rem + extra})')
        if OPT['stamps'] and k in (0, 4, 8, 12):
            stamp(a, (44 if w_is_a else 51) + (0, 4, 8, 12).index(k))
        fill = gemm_xloads(a, k + nfl, gid) if k + nfl < nk else []
        if k + nfl == nk and tail_hook is not None:
            fill = []
            extra = tail_hook(fill)
        mx = [f'v_max3_u32 v{VMAX}, v{VMAX}, v{st+2*i}, v{st+2*i+1}' for i in range(8)]
        n = 0
        for mu in range(4):
            for nu in range(4):
                w = (k * 4 + mu) * 4
                x = st + 4 * nu
                if w_is_a:
                    acc = ACC + (mu * 4 + nu) * 4
                    A, B = f'a[{w}:{w+3}]', f'v[{x}:{x+3}]'
                else:
                    acc = ACC + (nu * 4 + mu) * 4
                    A, B = f'v[{x}:{x+3}]', f'a[{w}:{w+3}]'
                cc = '0' if k == 0 else f'v[{acc}:{acc+3}]'
                a.e(f'v_mfma_f32_16x16x32_bf16 v[{acc}:{acc+3}], {A}, {B}, {cc}')
                for _ in range(2):
                    if fill:
                        a.e(fill.pop(0))
                if not fill and mx and n >= 4:
                    a.e(mx.pop(0))
                n += 1
        assert not fill and not mx


def sentinel(a, ws_off, kblocks):
    lp, ld = a.lab('spoll'), a.lab('sdone')
    a.e(f's_mul_i32 s66, s{S_W}, {kblocks*7168}')
    a.e(f's_mul_i32 s67, s{S_J}, 896')
    a.e('s_add_u32 s66, s66, s67')
    a.e(f's_add_u32 s66, s66, {ws_off + 55*16 + 12}')
    a.e('v_mul_u32_u24 v4, 7168, v1')
    a.e('v_add_u32 v4, s66, v4')
    if kblocks < 64:
        mask_lanes(a, 4, kblocks, 5)
    a.e(f's_mov_b32 s{S_SPIN}, 0')
    a.e(f'{lp}:')
    a.e(f'buffer_load_dword v5, v4, {WSR}, 0 offen sc1')
    a.e('s_waitcnt vmcnt(0)')
    a.e('v_cmp_eq_u32 vcc, -1, v5')
    a.e(f's_cbranch_vccz {ld}')
    spin_tail(a, lp)
    a.e(f'{ld}:')


def gemm_poll_main(a, ws_off, kblocks, nk, gid, sb, tail_hook=None):
    lr, lok = a.lab('gretry'), a.lab('gok')
    gemm_xaddr(a, ws_off, kblocks)
    a.e(f's_mov_b32 s{S_RETRY}, 0')
    a.e(f'{lr}:')
    sentinel(a, ws_off, kblocks)
    stamp(a, sb)
    for k in range(OPT['nfl']):
        for x in gemm_xloads(a, k, gid):
            a.e(x)
    gemm_main(a, nk, gid, tail_hook)
    a.e(f'v_cmp_eq_u32 vcc, -1, v{VMAX}')
    a.e(f's_cbranch_vccz {lok}')
    a.e(f's_add_u32 s{S_RETRY}, s{S_RETRY}, 1')
    a.e(f's_cmp_lt_u32 s{S_RETRY}, {RETRY_MAX}')
    a.e(f's_cbranch_scc1 {lr}')
    a.e(f'{lok}:')


def write_partials(a):
    a.e('v_and_b32 v4, 15, v1')
    a.e(f'v_mul_u32_u24 v4, {PROW}, v4')
    a.e('v_lshrrev_b32 v5, 4, v1')
    a.e('v_lshl_add_u32 v4, v5, 4, v4')
    a.e(f's_mul_i32 s66, s{S_W}, {PARTW}')
    a.e(f's_add_u32 s66, s66, {L_PART}')
    a.e('v_add_u32 v4, s66, v4')
    a.e('s_barrier')
    for mt in range(4):
        for nt in range(4):
            acc = ACC + (mt * 4 + nt) * 4
            a.e(f'ds_write_b128 v4, v[{acc}:{acc+3}] offset:{nt*16*PROW + mt*64}')


def sum_partials(a, P):
    for h in range(4):
        a.e(f'v_pk_add_f32 v[{P+2*h}:{P+2*h+1}], v[{P+2*h}:{P+2*h+1}], v[{P+8+2*h}:{P+9+2*h}]')
        a.e(f'v_pk_add_f32 v[{P+16+2*h}:{P+17+2*h}], v[{P+16+2*h}:{P+17+2*h}], v[{P+24+2*h}:{P+25+2*h}]')
    for h in range(4):
        a.e(f'v_pk_add_f32 v[{P+2*h}:{P+2*h+1}], v[{P+2*h}:{P+2*h+1}], v[{P+16+2*h}:{P+17+2*h}]')


def b1_load(a):
    a.e(f's_lshl_b32 s67, s{S_I1}, 7')
    a.e(f's_lshl_b32 s70, s{S_W}, 5')
    a.e('s_add_u32 s67, s67, s70')
    a.e(f's_load_dwordx8 s[72:79], s[{P_B1}:{P_B1+1}], s67')


def gemm1_epilogue(a):
    write_partials(a)
    a.e(f'v_mul_u32_u24 v4, {PROW}, v1')
    a.e(f's_lshl_b32 s66, s{S_W}, 6')
    a.e(f's_add_u32 s66, s66, {L_PART}')
    a.e('v_add_u32 v4, s66, v4')
    g_store_addr(a, 5)
    C1 = 0.044715
    C2 = -2.0 * 0.7978845608028654 * 1.4426950408889634
    a.e(f'v_mov_b32 v100, {fx(C1*C2)}')
    a.e(f'v_mov_b32 v101, {fx(C1*C2)}')
    a.e(f'v_mov_b32 v102, {fx(C2)}')
    a.e(f'v_mov_b32 v103, {fx(C2)}')
    a.e('s_waitcnt lgkmcnt(0)')
    a.e('s_barrier')
    stamp(a, 24)
    for r in range(2):
        P = 16 + 32 * r
        for wv in range(4):
            a.e(f'ds_read_b128 v[{P+8*wv}:{P+8*wv+3}], v4 offset:{wv*PARTW + r*32}')
            a.e(f'ds_read_b128 v[{P+8*wv+4}:{P+8*wv+7}], v4 offset:{wv*PARTW + r*32 + 16}')
    for i in range(8):
        a.e(f's_lshl_b32 s{80+2*i}, s{72+i}, 16')
        a.e(f's_and_b32 s{81+2*i}, s{72+i}, 0xffff0000')
    for r in range(2):
        P = 16 + 32 * r
        T = 80
        a.e(f's_waitcnt lgkmcnt({8 if r == 0 else 0})')
        sum_partials(a, P)
        round_pairs(a, P, T, 8)
        for h in range(4):
            a.e(f'v_pk_add_f32 v[{P+2*h}:{P+2*h+1}], v[{P+2*h}:{P+2*h+1}], s[{80+8*r+2*h}:{81+8*r+2*h}]')
        round_pairs(a, P, T, 8)
        for h in range(4):
            a.e(f'v_pk_mul_f32 v[{P+8+2*h}:{P+9+2*h}], v[{P+2*h}:{P+2*h+1}], v[{P+2*h}:{P+2*h+1}]')
        for h in range(4):
            a.e(f'v_pk_fma_f32 v[{P+8+2*h}:{P+9+2*h}], v[{P+8+2*h}:{P+9+2*h}], v[100:101], v[102:103]')
        for h in range(4):
            a.e(f'v_pk_mul_f32 v[{P+8+2*h}:{P+9+2*h}], v[{P+8+2*h}:{P+9+2*h}], v[{P+2*h}:{P+2*h+1}]')
        for i in range(8):
            a.e(f'v_exp_f32 v{P+8+i}, v{P+8+i}')
        for h in range(4):
            a.e(f'v_pk_add_f32 v[{P+8+2*h}:{P+9+2*h}], v[{P+8+2*h}:{P+9+2*h}], 1.0 op_sel_hi:[1,0]')
        for i in range(8):
            a.e(f'v_rcp_f32 v{P+8+i}, v{P+8+i}')
        for h in range(4):
            a.e(f'v_pk_mul_f32 v[{P+2*h}:{P+2*h+1}], v[{P+2*h}:{P+2*h+1}], v[{P+8+2*h}:{P+9+2*h}]')
        O = 88 + 4 * r
        for h in range(4):
            a.e(f'v_cvt_pk_bf16_f32 v{O+h}, v{P+2*h}, v{P+2*h+1}')
        if r == 1:
            a.e('v_add_u32 v5, 7168, v5')
        a.e(f'buffer_store_dwordx4 v[{O}:{O+3}], v5, {WSR}, 0 offen sc1')


V_OUT, V_HAD, V_B2 = 210, 211, 212
V_HR = 196


def gemm2_addr(a):
    srd(a, S_T2, P_OUT, XBYTES)
    srd(a, S_T3, P_B2, L * 2)
    a.e('v_lshrrev_b32 v4, 3, v1')
    a.e('v_and_b32 v5, 7, v1')
    a.e(f's_lshl_b32 s66, s{S_W}, 4')
    a.e('v_add_u32 v4, s66, v4')
    a.e(f's_lshl_b32 s67, s{S_I2}, 6')
    a.e('v_add_u32 v7, s67, v4')
    a.e(f'v_mul_u32_u24 v{V_OUT}, 896, v7')
    a.e(f'v_lshl_add_u32 v{V_OUT}, v5, 4, v{V_OUT}')
    a.e(f's_mul_i32 s70, s{S_J}, 112')
    a.e(f'v_add_u32 v{V_OUT}, s70, v{V_OUT}')
    a.e(f'v_mov_b32 v6, {OOB}')
    a.e('v_cmp_gt_u32 vcc, 7, v5')
    a.e(f'v_cndmask_b32 v{V_OUT}, v6, v{V_OUT}, vcc')
    a.e(f'v_add_u32 v{V_HAD}, {WS_H}, v{V_OUT}')
    a.e(f'v_lshlrev_b32 v{V_B2}, 1, v7')


def gemm2_tail_loads(fill):
    fill.append(f'buffer_load_dwordx4 v[{V_HR}:{V_HR+3}], v{V_HAD}, {WSR}, 0 offen sc1')
    fill.append(f's_mov_b32 s70, {8*896}')
    fill.append(f'buffer_load_dwordx4 v[{V_HR+4}:{V_HR+7}], v{V_HAD}, {WSR}, s70 offen sc1')
    fill.append(f'buffer_load_ushort v{V_HR+8}, v{V_B2}, s[{S_T3}:{S_T3+3}], 0 offen')
    fill.append(f'buffer_load_ushort v{V_HR+9}, v{V_B2}, s[{S_T3}:{S_T3+3}], 0 offen offset:16')
    return 4


def gemm2_epilogue(a):
    write_partials(a)
    a.e('v_lshrrev_b32 v4, 3, v1')
    a.e('v_and_b32 v5, 7, v1')
    a.e(f's_lshl_b32 s66, s{S_W}, 4')
    a.e('v_add_u32 v4, s66, v4')
    a.e(f'v_mul_u32_u24 v6, {PROW}, v4')
    a.e('v_lshl_add_u32 v6, v5, 4, v6')
    a.e(f'v_add_u32 v6, {L_PART}, v6')
    a.e('s_waitcnt lgkmcnt(0)')
    a.e('s_barrier')
    stamp(a, 33)
    for r in range(2):
        P = 16 + 32 * r
        for wv in range(4):
            a.e(f'ds_read_b128 v[{P+8*wv}:{P+8*wv+3}], v6 offset:{wv*PARTW + r*8*PROW}')
            a.e(f'ds_read_b128 v[{P+8*wv+4}:{P+8*wv+7}], v6 offset:{wv*PARTW + r*8*PROW + 112}')
    a.e('s_waitcnt vmcnt(0)')
    for r in range(2):
        P = 16 + 32 * r
        T = 80
        H = V_HR + 4 * r
        a.e(f'v_lshlrev_b32 v106, 16, v{V_HR+8+r}')
        for i in range(4):
            a.e(f'v_lshlrev_b32 v{96+i}, 16, v{H+i}')
            a.e(f'v_and_b32 v{100+i}, 0xffff0000, v{H+i}')
        a.e(f's_waitcnt lgkmcnt({8 if r == 0 else 0})')
        sum_partials(a, P)
        round_pairs(a, P, T, 8)
        for h in range(4):
            a.e(f'v_pk_add_f32 v[{P+2*h}:{P+2*h+1}], v[{P+2*h}:{P+2*h+1}], v[106:107] op_sel:[0,0] op_sel_hi:[1,0]')
        round_pairs(a, P, T, 8)
        for h in range(4):
            a.e(f'v_pk_add_f32 v[{P+2*h}:{P+2*h+1}], v[{P+2*h}:{P+2*h+1}], v[{96+2*h}:{97+2*h}]')
        O = 88 + 4 * r
        for i in range(4):
            a.e(f'v_cvt_pk_bf16_f32 v{O+i}, v{P+i}, v{P+4+i}')
        if r == 1:
            a.e(f'v_add_u32 v{V_OUT}, {8*896}, v{V_OUT}')
        a.e(f'buffer_store_dwordx4 v[{O}:{O+3}], v{V_OUT}, s[{S_T2}:{S_T2+3}], 0 offen' + ['', ' sc1', ' nt', ' sc0 sc1', ' sc1 nt'][OPT['outsc']])


def build():
    a = Prog()
    name = NAME + '_kernel'
    lend = a.lab('end')
    a.raw(f'.globl {name}')
    a.raw('.p2align 8')
    a.raw(f'.type {name},@function')
    a.raw(f'{name}:')
    prologue(a, lend)
    lnc1, lnc2, lnc3, lnc5, lnc6 = [a.lab('noconv') for _ in range(5)]

    def skip_if_helper(l):
        a.e(f's_cmp_ge_u32 s{S_LOC}, 28')
        a.e(f's_cbranch_scc1 {l}')

    load_xrows(a)
    ncp = 0
    if OPT['cpf'] & 2:
        code_prefetch1(a, name, 'kcode_end')
        ncp = 1
    a.e(f's_add_u32 s66, s{P_WS}, {WS_EPOCH}')
    a.e(f's_addc_u32 s67, s{P_WS+1}, 0')
    a.e('s_load_dword s99, s[66:67], 0')
    poison_regs(a)
    skip_if_helper(lnc1)
    kgen_loads(a)
    load_gather_table(a, 'ktab_idx')
    w_setup(a)
    nt = 0
    if OPT['tlb'] & 2:
        nt = tlb_touch(a)
    flag_addr(a)
    a.e('s_waitcnt lgkmcnt(0)')
    a.e(f's_add_u32 s{S_TAG}, s99, 0x9e3779b9')
    a.e(f's_waitcnt vmcnt({10 + nt + ncp})')
    stamp(a, 2)
    clear_hh(a)
    clear_aout(a)
    ln_stats(a, list(range(8, 16)), 16, L_RED0, 5)
    stamp(a, 3)
    publish_xn(a)
    nb0 = OPT['wb0']
    if OPT['sched'] == 2:
        qa, qb = OPT['qa'], OPT['qb']
        qpf_load(a, qa)
        stamp(a, 4)
        a.e(f's_waitcnt vmcnt({8 + nt + qa})')
        kgen_channel(a, 0, DK0)
        for k in range(nb0):
            w_dma(a, 1, k, BS[k])
        stamp(a, 40)
        kgen_channel(a, 1, DK1, mid=lambda: publish_flag(a, qa + 4 * nb0), mid_m0=False)
        stamp(a, 5)
        qpf_load(a, qb)
        a.e(f's_waitcnt vmcnt({qb})')
        for k in range(nb0):
            w_tr(a, k, BS[k])
        ktab_part1(a)
        stamp(a, 6)
        flag_load(a)
        ktab_part2(a)
        stamp(a, 7)
        a.e(f's_mov_b32 s{S_EARLY}, 0')
        lne = a.lab('notearly')
        a.e('s_waitcnt vmcnt(0)')
        a.e(f'v_cmp_ne_u32 vcc, s{S_TAG}, v{V_FV}')
        a.e(f's_cbranch_vccnz {lne}')
        load_u(a)
        a.e(f's_mov_b32 s{S_EARLY}, 1')
        a.e(f'{lne}:')
        conv_addr(a)
        kcopies(a)
        stamp(a, 8)
        lhave = a.lab('haveu')
        a.e(f's_cmp_lg_u32 s{S_EARLY}, 0')
        a.e(f's_cbranch_scc1 {lhave}')
        flag_poll(a)
        load_u(a)
        a.e(f'{lhave}:')
        stamp(a, 9)
        store_u(a, 0)
    else:
        stamp(a, 4)
        a.e(f's_waitcnt vmcnt({8 + nt})')
        kgen_channel(a, 0, DK0)
        publish_flag(a)
        for k in range(min(nb0, 3)):
            w_dma(a, 1, k, BS[k])
        stamp(a, 40)
        kgen_channel(a, 1, DK1, mid=(lambda: [w_dma(a, 1, k, BS[k]) for k in range(3, nb0)]) if nb0 > 3 else None)
        stamp(a, 5)
        if OPT['early']:
            flag_load(a)
            a.e('s_waitcnt vmcnt(1)')
        else:
            a.e('s_waitcnt vmcnt(0)')
        for k in range(nb0):
            w_tr(a, k, BS[k])
        ktab_part1(a)
        stamp(a, 6)
        a.e(f's_mov_b32 s{S_EARLY}, 0')
        lne = a.lab('notearly')
        if OPT['early']:
            a.e('s_waitcnt vmcnt(0)')
            a.e(f'v_cmp_ne_u32 vcc, s{S_TAG}, v{V_FV}')
            a.e(f's_cbranch_vccnz {lne}')
            load_u(a)
            a.e(f's_mov_b32 s{S_EARLY}, 1')
            a.e(f'{lne}:')
        qpf_load(a, OPT['w2pf_a'])
        ktab_part2(a)
        stamp(a, 7)
        conv_addr(a)
        kcopies(a)
        stamp(a, 8)
        lhave = a.lab('haveu')
        a.e(f's_cmp_lg_u32 s{S_EARLY}, 0')
        a.e(f's_cbranch_scc1 {lhave}')
        flag_poll(a)
        load_u(a)
        a.e('s_waitcnt vmcnt(0)')
        a.e(f'{lhave}:')
        stamp(a, 9)
        store_u(a, OPT['w2pf_a'])
    epoch_update(a)
    clear_g(a)
    if OPT['sched'] != 2:
        qpf_load(a, OPT['w2pf_b'])
    stamp(a, 10)
    hk = []
    for k in range(4):
        for i in range(4):
            hk.append(lambda k=k, i=i: w_dma1(a, 1, nb0 + k, AS[k], i))
            hk.append(lambda: None)
    phase_conv(a, hk, 0)
    stamp(a, 12)
    for k in range(4):
        w_tr(a, nb0 + k, AS[k])
    a.e('s_waitcnt lgkmcnt(0)')
    a.e('s_barrier')
    rest = list(range(nb0 + 4, 16))
    rest_slots = (BS + AS)[:len(rest)]
    for k, sl in zip(rest, rest_slots):
        w_dma(a, 1, k, sl)
    stamp(a, 13)
    a.e(f's_branch {lnc2}')
    a.e(f'{lnc1}:')
    nh = 0
    if OPT['cpf'] & 1:
        code_prefetch(a, name, 'kcode_end')
        nh += 2
    w_setup(a)
    if OPT['tlb'] & 1:
        nh += tlb_touch(a)
    flag_addr(a)
    a.e('s_waitcnt lgkmcnt(0)')
    a.e(f's_add_u32 s{S_TAG}, s99, 0x9e3779b9')
    a.e(f's_waitcnt vmcnt({nh + ncp})')
    clear_hh(a)
    ln_stats(a, list(range(8, 16)), 16, L_RED0, 5)
    publish_xn(a)
    publish_flag(a)
    qpf_load(a, 14)
    stamp(a, 41)
    flag_poll(a)
    a.e('s_barrier')
    stamp(a, 42)
    a.e(f'{lnc2}:')
    phase_p4(a)
    stamp(a, 20)
    gemm2_addr(a)
    skip_if_helper(lnc3)
    b1_load(a)
    for k, sl in zip(rest, rest_slots):
        w_tr(a, k, sl)
    a.e('s_waitcnt lgkmcnt(0)')
    for k in range(5):
        w_dma(a, 2, k, BS[k])
    stamp(a, 21)
    gemm_poll_main(a, WS_HH, 64, 16, 1, 22)
    stamp(a, 23)
    if OPT['h4early']:
        for k in range(5):
            w_tr(a, k, BS[k])
        a.e('s_waitcnt lgkmcnt(0)')
        for k in range(5, 8):
            w_dma(a, 2, k, BS[k - 5])
        gemm1_epilogue(a)
        stamp(a, 25)
        a.e('s_barrier')
        for k in range(8, 10):
            w_dma(a, 2, k, BS[k - 5])
        for k in range(10, 14):
            w_dma(a, 2, k, AS[k - 10])
        a.e('s_waitcnt vmcnt(26)')
        for k in range(5, 8):
            w_tr(a, k, BS[k - 5])
        a.e('s_waitcnt vmcnt(16)')
        for k in range(8, 10):
            w_tr(a, k, BS[k - 5])
        a.e('s_waitcnt vmcnt(0)')
        for k in range(10, 14):
            w_tr(a, k, AS[k - 10])
        a.e('s_waitcnt lgkmcnt(0)')
        a.e(f's_branch {lnc6}')
    else:
        gemm1_epilogue(a)
        stamp(a, 25)
        for k in range(5):
            w_tr(a, k, BS[k])
        a.e('s_waitcnt lgkmcnt(0)')
        a.e('s_barrier')
        a.e(f's_branch {lnc5}')
    a.e(f'{lnc3}:')
    for k in range(5):
        w_dma(a, 2, k, BS[k])
    a.e('s_waitcnt vmcnt(0)')
    for k in range(5):
        w_tr(a, k, BS[k])
    a.e('s_waitcnt lgkmcnt(0)')
    a.e(f'{lnc5}:')
    for k in range(5, 10):
        w_dma(a, 2, k, BS[k - 5])
    for k in range(10, 14):
        w_dma(a, 2, k, AS[k - 10])
    a.e('s_waitcnt vmcnt(16)')
    for k in range(5, 10):
        w_tr(a, k, BS[k - 5])
    a.e('s_waitcnt vmcnt(0)')
    for k in range(10, 14):
        w_tr(a, k, AS[k - 10])
    a.e('s_waitcnt lgkmcnt(0)')
    a.e(f'{lnc6}:')
    stamp(a, 30)
    gemm_poll_main(a, WS_G, 56, 14, 2, 31, gemm2_tail_loads)
    stamp(a, 32)
    gemm2_epilogue(a)
    stamp_clk(a, 61)
    stamp(a, 63)
    stamp_flush(a)
    a.e(f'{lend}:')
    a.e('s_endpgm')
    a.raw('kcode_end:')
    emit_gather_table(a, 'ktab_idx')
    nn = a.fast_insert_nops()
    head = f'; @launch grid=(256,1,1) block=(256,1,1) lds={LDS_BYTES}\n'
    head += '.amdgcn_target "amdgcn-amd-amdhsa--gfx950"\n.text\n'
    tail = '.section .rodata,"a"\n.p2align 6\n' + descriptor(name)
    if OPT['align']:
        nal = a.align8(head, tail)
        sys.stderr.write(f'alignment: {nal}\n')
    sys.stderr.write(f'instructions: {a.count()}, nops inserted: {nn}\n')
    return head + a.text() + tail


if __name__ == '__main__':
    out = sys.argv[1]
    for arg in sys.argv[2:]:
        if arg == 'stamps':
            OPT['stamps'] = True
        elif arg == 'dbg':
            OPT['stamps'] = True
            OPT['dbgsel'] = [0, 1, 2, 4, 8, 9, 12, 13, 14, 20, 21, 23, 25, 30, 32, 63]
        elif '=' in arg:
            k, v = arg.split('=')
            OPT[k] = int(v)
    open(out, 'w').write(build())
```

```python
import sys
import gen
from gen import (Prog, NAME, L, D, F, XBYTES, PBYTES, W1BYTES, W2BYTES, OOB, fx, srd, reduce16, cmul, exp_bf16,
                 gather_table, emit_gather_table, descriptor, round_pairs, norm_tok, bcast_stats)

OPT = dict(hR=320, c4=1, kgrp=3, tlbg=21, cpf=1, sched=3, qa=7, qb=7, tlb=3, outsc=0, x3oob=1, h4early=1, wb0=3, xnb=1, stamps=False, dbgsel=None, w2pf_a=10, w2pf_b=4, nfl=3, early=True, align=True, hlds=True)

WS_FLAG = 0x4000
WS_EPOCH = 0x9000
WS_AOUT = 0x10000
AST = 8448
WS_H = 0x200000
WS_HH = 0x400000
WS_G = 0x600000
WS_DBG = 0x800000
WS_XN = 0xA00000
XCS = 4352
XPS = 2 * XCS
WS_USED = 0x1000000

L_RED0, L_RED1, L_SIG, L_KT = 0, 256, 512, 640
KTCH = 1600
L_U = L_KT + 2 * KTCH
UCH = 4608
L_SCR = L_U + 2 * UCH
SROW = 272
YROW = 41
SCRW = 57 * SROW
L_KC = 82688
KCOPY = 4160
KCH = 8 * KCOPY
L_CP = L_KC
LDS_BYTES = 160 * 1024
L_WA, L_WB = 13056, 78592
L_PART = 1024
PROW = 272
PARTW = 64 * PROW
L_HT = 1024

S_WS, S_X = 4, 8
S_T0, S_T1, S_T2, S_T3 = 12, 16, 20, 24
S_W1, S_W2 = 12, 16
S_W, S_XCD, S_LOC, S_B, S_P, S_J, S_I1, S_I2 = 28, 29, 30, 31, 32, 33, 34, 35
P_X, P_LAR, P_AI, P_CR, P_CI, P_LDT, P_DSK = 36, 38, 40, 42, 44, 46, 48
P_W1, P_B1, P_W2, P_B2, P_OUT, P_DBG, P_WS = 52, 54, 56, 58, 60, 62, 64
S_SA, S_SB = 50, 51
S_RW1, S_RX1, S_RW2, S_RX2 = 38, 39, 40, 41
S_QPF = 42
S_EARLY = 43
S_TAG, S_SPIN, S_RETRY = 96, 97, 98
V_D1, V_D2, V_TA, V_TB = 224, 228, 244, 248
V_QPF = 232
SPIN_MAX, RETRY_MAX = 4000, 20
AS = ['A0', 'A1', 'A2', 'A3']
BS = ['B0', 'B1', 'B2', 'B3', 'B4']
WSR = f's[{S_WS}:{S_WS+3}]'

assert (gen.S_W, gen.S_B, gen.S_WS) == (S_W, S_B, S_WS)


def stamp(a, idx):
    if not OPT['stamps']:
        return
    sel = OPT['dbgsel']
    if sel is not None:
        if idx not in sel:
            return
        idx = sel.index(idx)
    a.e('s_memrealtime s[100:101]')
    a.e('s_waitcnt lgkmcnt(0)')
    a.e(f'v_writelane_b32 v255, s100, {idx}')


def stamp_clk(a, idx):
    if not OPT['stamps'] or OPT['dbgsel'] is not None:
        return
    a.e('s_memtime s[100:101]')
    a.e('s_waitcnt lgkmcnt(0)')
    a.e(f'v_writelane_b32 v255, s100, {idx}')


def stamp_flush(a):
    if not OPT['stamps']:
        return
    l = a.lab('nost')
    a.e(f's_cmp_lg_u32 s{S_W}, 0')
    a.e(f's_cbranch_scc1 {l}')
    if OPT['dbgsel'] is not None:
        a.e('v_not_b32 v253, v255')
        a.e('v_cmp_eq_u32 vcc, 0, v1')
        a.e('v_cndmask_b32 v255, v255, v253, vcc')
        a.e('v_lshlrev_b32 v254, 2, v1')
        a.e('s_mov_b64 exec, 0xffff')
        a.e(f'global_atomic_umax v254, v255, s[{P_DBG}:{P_DBG+1}]')
        a.e('s_mov_b64 exec, -1')
    else:
        a.e('s_lshl_b32 s66, s2, 8')
        a.e(f's_add_u32 s66, s66, {WS_DBG}')
        a.e('v_lshl_add_u32 v254, v1, 2, s66')
        a.e(f'buffer_store_dword v255, v254, {WSR}, 0 offen')
    a.e(f'{l}:')


def spin_tail(a, lp):
    a.e(f's_add_u32 s{S_SPIN}, s{S_SPIN}, 1')
    a.e(f's_cmp_lt_u32 s{S_SPIN}, {SPIN_MAX}')
    a.e(f's_cbranch_scc1 {lp}')


def mask_lanes(a, v, n, tmp, src='v1'):
    a.e(f'v_mov_b32 v{tmp}, {OOB}')
    a.e(f'v_cmp_gt_u32 vcc, {n}, {src}')
    a.e(f'v_cndmask_b32 v{v}, v{tmp}, v{v}, vcc')


def prologue(a, lend):
    a.e('s_cmp_ge_u32 s2, 256')
    a.e(f's_cbranch_scc1 {lend}')
    if OPT['stamps']:
        a.e('v_mov_b32 v255, 0')
        stamp(a, 0)
        stamp_clk(a, 60)
    a.e('s_load_dwordx16 s[36:51], s[0:1], 0')
    a.e('s_load_dwordx8 s[52:59], s[0:1], 64')
    a.e('s_load_dwordx4 s[60:63], s[0:1], 96')
    a.e('s_load_dwordx2 s[64:65], s[0:1], 112')
    a.e('v_and_b32 v1, 63, v0')
    a.e('v_lshrrev_b32 v2, 6, v0')
    a.e(f's_and_b32 s{S_XCD}, s2, 7')
    a.e(f'v_readfirstlane_b32 s{S_W}, v2')
    a.e(f's_lshr_b32 s{S_LOC}, s2, 3')
    a.e(f's_lshl_b32 s{S_B}, s{S_XCD}, 5')
    a.e(f's_add_u32 s{S_B}, s{S_B}, s{S_LOC}')
    a.e(f's_mul_i32 s{S_P}, s{S_XCD}, 28')
    a.e(f's_add_u32 s{S_P}, s{S_P}, s{S_LOC}')
    a.e(f's_and_b32 s{S_J}, s{S_XCD}, 1')
    a.e(f's_lshl_b32 s{S_J}, s{S_J}, 2')
    a.e(f's_and_b32 s3, s{S_LOC}, 3')
    a.e(f's_add_u32 s{S_J}, s{S_J}, s3')
    a.e(f's_lshr_b32 s3, s{S_XCD}, 1')
    a.e(f's_lshr_b32 s66, s{S_LOC}, 2')
    a.e(f's_mul_i32 s{S_I1}, s3, 7')
    a.e(f's_add_u32 s{S_I1}, s{S_I1}, s66')
    a.e(f's_lshl_b32 s{S_I2}, s3, 3')
    a.e(f's_add_u32 s{S_I2}, s{S_I2}, s66')
    a.e('s_waitcnt lgkmcnt(0)')
    srd(a, S_X, P_X, XBYTES)
    srd(a, S_WS, P_WS, WS_USED)
    stamp(a, 1)


def xrow_addr(a):
    a.e(f's_mul_i32 s66, s{S_W}, 224')
    a.e(f's_mul_i32 s67, s{S_B}, {8*896}')
    a.e('s_add_u32 s66, s66, s67')
    a.e('v_lshl_add_u32 v2, v1, 2, s66')
    mask_lanes(a, 2, 56, 3)
    a.e('v_add_u32 v3, 4480, v2')


def load_xrows(a):
    xrow_addr(a)
    for j in range(8):
        v, o = (2, j * 896) if j < 5 else (3, (j - 5) * 896)
        a.e(f'buffer_load_dword v{8+j}, v{v}, s[{S_X}:{S_X+3}], 0 offen offset:{o}')


def ln_stats(a, X, T, red, vt, mid=None):
    a.e('s_mov_b32 s66, 0x3f803f80')
    for j in range(8):
        a.e(f'v_dot2_f32_bf16 v{T+j}, v{X[j]}, s66, 0')
        a.e(f'v_dot2_f32_bf16 v{T+8+j}, v{X[j]}, v{X[j]}, 0')
    a.e(f'v_lshlrev_b32 v{vt}, 2, v1')
    a.e(f'v_and_b32 v{vt}, 0xf0, v{vt}')
    a.e(f's_lshl_b32 s66, s{S_W}, 2')
    a.e(f'v_add_u32 v{vt}, s66, v{vt}')
    reduce16(a, [T + i for i in range(16)])
    a.e('s_mov_b32 exec_lo, 0x11111111')
    a.e('s_mov_b32 exec_hi, 0x11111111')
    a.e(f'ds_write_b32 v{vt}, v{T} offset:{red}')
    a.e('s_mov_b64 exec, -1')
    a.e(f'v_and_b32 v{vt}, 7, v1')
    a.e(f'v_lshlrev_b32 v{vt}, 4, v{vt}')
    a.e('s_waitcnt lgkmcnt(0)')
    a.e('s_barrier')
    a.e(f'ds_read_b128 v[{T}:{T+3}], v{vt} offset:{red}')
    a.e(f'ds_read_b128 v[{T+4}:{T+7}], v{vt} offset:{red+128}')
    n_mid = mid() if mid else 0
    a.e(f's_waitcnt lgkmcnt({1 + n_mid})')
    a.e(f'v_pk_add_f32 v[{T}:{T+1}], v[{T}:{T+1}], v[{T+2}:{T+3}]')
    a.e(f's_waitcnt lgkmcnt({n_mid})')
    a.e(f'v_pk_add_f32 v[{T+4}:{T+5}], v[{T+4}:{T+5}], v[{T+6}:{T+7}]')
    a.e(f'v_add_f32 v{T}, v{T}, v{T+1}')
    a.e(f'v_add_f32 v{T+4}, v{T+4}, v{T+5}')
    a.e(f'v_mul_f32 v{T}, {fx(1.0/448)}, v{T}')
    a.e(f'v_mul_f32 v{T+4}, {fx(1.0/448)}, v{T+4}')
    a.e(f'v_fma_f32 v{T+4}, -v{T}, v{T}, v{T+4}')
    a.e(f'v_max_f32 v{T+4}, 0, v{T+4}')
    a.e(f'v_cvt_pk_bf16_f32 v{T+4}, v{T+4}, v{T+4}')
    a.e(f'v_lshlrev_b32 v{T+4}, 16, v{T+4}')
    a.e(f'v_add_f32 v{T+4}, {fx(1e-5)}, v{T+4}')
    a.e(f'v_cvt_pk_bf16_f32 v{T+4}, v{T+4}, v{T+4}')
    a.e(f'v_lshlrev_b32 v{T+4}, 16, v{T+4}')
    a.e(f'v_sqrt_f32 v{T+4}, v{T+4}')
    a.e(f'v_cvt_pk_bf16_f32 v{T}, v{T}, v{T+4}')


def poison_regs(a):
    for r in range(216, 220):
        a.e(f'v_mov_b32 v{r}, -1')


def clear_hh(a):
    a.e(f's_mul_i32 s66, s{S_B}, 7168')
    a.e(f's_add_u32 s66, s66, {WS_HH}')
    a.e('v_lshl_add_u32 v4, v0, 4, s66')
    a.e('v_add_u32 v5, 4096, v4')
    mask_lanes(a, 5, 192, 6, 'v0')
    a.e(f'buffer_store_dwordx4 v[216:219], v4, {WSR}, 0 offen sc1')
    a.e(f'buffer_store_dwordx4 v[216:219], v5, {WSR}, 0 offen sc1')


def clear_aout(a):
    a.e(f's_mul_i32 s66, s{S_P}, {AST}')
    a.e(f's_add_u32 s66, s66, {WS_AOUT}')
    a.e('v_lshl_add_u32 v4, v0, 4, s66')
    a.e('v_add_u32 v5, 4096, v4')
    a.e(f'buffer_store_dwordx4 v[216:219], v4, {WSR}, 0 offen sc1')
    a.e(f'buffer_store_dwordx4 v[216:219], v5, {WSR}, 0 offen sc1')


def g_store_addr(a, vd):
    a.e(f's_lshl_b32 s66, s{S_I1}, 3')
    a.e(f's_lshl_b32 s70, s{S_W}, 1')
    a.e('s_add_u32 s66, s66, s70')
    a.e('s_mul_i32 s66, s66, 7168')
    a.e(f's_mul_i32 s70, s{S_J}, 896')
    a.e('s_add_u32 s66, s66, s70')
    a.e(f's_add_u32 s66, s66, {WS_G}')
    a.e(f'v_lshl_add_u32 v{vd}, v1, 4, s66')
    mask_lanes(a, vd, 56, 6)


def clear_g(a):
    g_store_addr(a, 4)
    a.e('v_add_u32 v5, 7168, v4')
    a.e(f'buffer_store_dwordx4 v[216:219], v4, {WSR}, 0 offen sc1')
    a.e(f'buffer_store_dwordx4 v[216:219], v5, {WSR}, 0 offen sc1')


def publish_xn(a):
    bcast_stats(a, 16)
    for j in range(8):
        d = 64 + 2 * j
        t = 48 + j
        a.e(f'v_lshlrev_b32 v{d}, 16, v{8+j}')
        a.e(f'v_and_b32 v{d+1}, 0xffff0000, v{8+j}')
        a.e(f'v_pk_add_f32 v[{d}:{d+1}], v[{d}:{d+1}], s[{72+2*j}:{73+2*j}] op_sel:[0,0] op_sel_hi:[1,0] neg_lo:[0,1] neg_hi:[0,1]')
        a.e(f'v_cvt_pk_bf16_f32 v{t}, v{d}, v{d+1}')
        a.e(f'v_lshlrev_b32 v{d}, 16, v{t}')
        a.e(f'v_and_b32 v{d+1}, 0xffff0000, v{t}')
        a.e(f'v_pk_mul_f32 v[{d}:{d+1}], v[{d}:{d+1}], s[{72+2*j}:{73+2*j}] op_sel:[0,1] op_sel_hi:[1,1]')
        a.e(f'v_cvt_pk_bf16_f32 v{t}, v{d}, v{d+1}')
        a.e(f'v_lshlrev_b32 v{d}, 16, v{t}')
        a.e(f'v_and_b32 v{d+1}, 0xffff0000, v{t}')
    for i in range(4):
        a.e(f'v_cvt_pk_f16_f32 v{80+i}, v{64+4*i}, v{66+4*i}')
        a.e(f'v_cvt_pk_f16_f32 v{84+i}, v{65+4*i}, v{67+4*i}')
    if OPT['xnb']:
        a.e(f's_mul_i32 s66, s{S_W}, {56*16}')
        a.e(f's_mul_i32 s67, s{S_B}, 7168')
        a.e('s_add_u32 s66, s66, s67')
        a.e(f's_add_u32 s66, s66, {WS_XN}')
        a.e('v_lshl_add_u32 v4, v1, 4, s66')
        mask_lanes(a, 4, 56, 5)
        a.e('v_add_u32 v5, 3584, v4')
    else:
        a.e(f's_mul_i32 s66, s{S_W}, {56*XPS}')
        a.e(f's_lshl_b32 s67, s{S_B}, 4')
        a.e('s_add_u32 s66, s66, s67')
        a.e(f's_add_u32 s66, s66, {WS_XN}')
        a.e(f'v_mul_u32_u24 v4, {XPS}, v1')
        a.e('v_add_u32 v4, s66, v4')
        mask_lanes(a, 4, 56, 5)
        a.e(f'v_add_u32 v5, {XCS}, v4')
    a.e(f'buffer_store_dwordx4 v[80:83], v4, {WSR}, 0 offen sc1')
    a.e(f'buffer_store_dwordx4 v[84:87], v5, {WSR}, 0 offen sc1')


def publish_flag(a, vm=0):
    a.e(f's_waitcnt vmcnt({vm})')
    a.e('s_barrier')
    l = a.lab('noflag')
    a.e(f's_cmp_lg_u32 s{S_W}, 0')
    a.e(f's_cbranch_scc1 {l}')
    a.e(f's_lshl_b32 s66, s{S_B}, 6')
    a.e(f's_add_u32 s66, s66, {WS_FLAG}')
    a.e('v_mov_b32 v2, s66')
    a.e(f'v_mov_b32 v3, s{S_TAG}')
    a.e('s_mov_b64 exec, 1')
    a.e(f'buffer_store_dword v3, v2, {WSR}, 0 offen sc1')
    a.e('s_mov_b64 exec, -1')
    a.e(f'{l}:')


V_FA, V_FV = 233, 234


def flag_addr(a):
    a.e(f'v_lshlrev_b32 v{V_FA}, 6, v0')
    a.e(f'v_add_u32 v{V_FA}, {WS_FLAG}, v{V_FA}')


def flag_load(a):
    a.e(f'buffer_load_dword v{V_FV}, v{V_FA}, {WSR}, 0 offen sc1')


def flag_poll(a):
    lp, ld = a.lab('fpoll'), a.lab('fdone')
    a.e(f's_mov_b32 s{S_SPIN}, 0')
    a.e(f'{lp}:')
    flag_load(a)
    a.e('s_waitcnt vmcnt(0)')
    a.e(f'v_cmp_ne_u32 vcc, s{S_TAG}, v{V_FV}')
    a.e(f's_cbranch_vccz {ld}')
    spin_tail(a, lp)
    a.e(f'{ld}:')


def load_u(a):
    if OPT['xnb']:
        a.e(f's_lshl_b32 s66, s{S_P}, 4')
        a.e(f's_add_u32 s66, s66, {WS_XN}')
        a.e('v_mul_u32_u24 v2, 7168, v0')
        a.e('v_add_u32 v2, s66, v2')
        a.e('v_add_u32 v3, 3584, v2')
    else:
        a.e(f's_mul_i32 s66, s{S_P}, {XPS}')
        a.e(f's_add_u32 s66, s66, {WS_XN}')
        a.e('v_lshl_add_u32 v2, v0, 4, s66')
        a.e(f'v_add_u32 v3, {XCS}, v2')
    a.e(f'buffer_load_dwordx4 v[176:179], v2, {WSR}, 0 offen sc1')
    a.e(f'buffer_load_dwordx4 v[180:183], v3, {WSR}, 0 offen sc1')


def epoch_update(a):
    le = a.lab('noep')
    a.e('s_cmp_lg_u32 s2, 0')
    a.e(f's_cbranch_scc1 {le}')
    a.e(f'v_mov_b32 v2, {WS_EPOCH}')
    a.e(f'v_mov_b32 v3, s{S_TAG}')
    a.e('s_mov_b64 exec, 1')
    a.e(f'buffer_store_dword v3, v2, {WSR}, 0 offen sc1')
    a.e('s_mov_b64 exec, -1')
    a.e(f'{le}:')


def code_prefetch(a, lstart, lend_):
    lp = a.lab('pcp')
    a.e('s_getpc_b64 s[74:75]')
    a.e(f'{lp}:')
    a.e(f's_sub_u32 s74, s74, {lp}-{lstart}')
    a.e('s_subb_u32 s75, s75, 0')
    a.e('v_lshlrev_b32 v4, 6, v0')
    a.e(f's_mov_b32 s76, {lend_}-{lstart}-4')
    a.e('v_add_u32 v5, 16384, v4')
    a.e('v_min_u32 v4, s76, v4')
    a.e('v_min_u32 v5, s76, v5')
    a.e('global_load_dword v220, v4, s[74:75]')
    a.e('global_load_dword v220, v5, s[74:75]')


def code_prefetch1(a, lstart, lend_):
    lp = a.lab('pcp')
    a.e('s_getpc_b64 s[74:75]')
    a.e(f'{lp}:')
    a.e('v_lshlrev_b32 v4, 6, v0')
    a.e(f's_mov_b32 s76, {lend_}-{lp}-4')
    a.e('v_min_u32 v4, s76, v4')
    a.e('global_load_dword v220, v4, s[74:75]')


def tlb_touch(a):
    g = OPT['tlbg']
    n = 0
    srd(a, S_T2, P_OUT, XBYTES)
    srd(a, S_T3, P_B2, L * 2)
    if g == 21:
        a.e('v_lshlrev_b32 v4, 21, v1')
        for s_ in (S_W1, S_W2, S_WS, S_T2, S_T3):
            a.e(f'buffer_load_dword v220, v4, s[{s_}:{s_+3}], 0 offen')
            n += 1
    else:
        a.e(f'v_lshlrev_b32 v4, {g}, v0')
        for s_, nbytes in ((S_W1, W1BYTES), (S_W2, W2BYTES), (S_WS, 0xC00000), (S_T2, XBYTES), (S_T3, 4096)):
            for k in range(-(-nbytes // (256 << g))):
                a.e(f's_mov_b32 s70, {k * (256 << g)}')
                a.e(f'buffer_load_dword v220, v4, s[{s_}:{s_+3}], s70 offen')
                n += 1
    return n


def kgen_loads(a):
    srd(a, S_T0, P_LAR, PBYTES)
    srd(a, S_T1, P_AI, PBYTES)
    srd(a, S_T2, P_CR, PBYTES)
    srd(a, S_T3, P_CI, PBYTES)
    a.e(f's_lshl_b32 s66, s{S_P}, 10')
    a.e(f's_lshl_b32 s67, s{S_W}, 7')
    a.e('s_add_u32 s66, s66, s67')
    a.e('v_lshl_add_u32 v2, v1, 1, s66')
    for c in range(2):
        for k, s in enumerate((S_T0, S_T1, S_T2, S_T3)):
            a.e(f'buffer_load_ushort v{40+4*c+k}, v2, s[{s}:{s+3}], 0 offen offset:{512*c}')
    a.e(f's_lshl_b32 s66, s{S_P}, 2')
    a.e(f's_load_dword s68, s[{P_LDT}:{P_LDT+1}], s66')
    a.e(f's_load_dword s69, s[{P_DSK}:{P_DSK+1}], s66')


def load_gather_table(a, tablabel):
    lp = a.lab('pc')
    a.e('s_getpc_b64 s[70:71]')
    a.e(f'{lp}:')
    a.e(f's_add_u32 s70, s70, {tablabel}-{lp}')
    a.e('s_addc_u32 s71, s71, 0')
    a.e('v_lshlrev_b32 v2, 5, v0')
    a.e('global_load_dwordx4 v[160:163], v2, s[70:71]')
    a.e('global_load_dwordx4 v[164:167], v2, s[70:71] offset:16')


DK0, DK1 = 16, 28


def kgen_channel(a, c, DACC, mid=None, mid_m0=True):
    LAR, AI, CR, CI = 40 + 4 * c, 41 + 4 * c, 42 + 4 * c, 43 + 4 * c
    SIG, DT = 52 + c, 54 + c
    AL, BE = 56, 57
    Z1, Z2, Z4, Z8, Z128, Z256, Z512, Z1024 = 58, 60, 62, 64, 66, 68, 70, 72
    X0, CA, CB, CC, T0, T1 = 74, 76, 78, 80, 82, 84
    CV = [86, 87, 88, 89]
    VW, VR = 90, 91
    t, t2 = 92, 93
    for r in (LAR, AI, CR, CI):
        a.e(f'v_lshlrev_b32 v{r}, 16, v{r}')
    a.e('s_lshl_b32 s66, s68, 16' if c == 0 else 's_and_b32 s66, s68, 0xffff0000')
    a.e(f'v_mov_b32 v{t2}, s66')
    exp_bf16(a, DT, t2, t)
    a.e(f'v_add_f32 v{SIG}, abs(v{CR}), abs(v{CI})')
    exp_bf16(a, AL, LAR, t)
    a.e(f'v_add_f32_dpp v{SIG}, v{SIG}, v{SIG} quad_perm:[1,0,3,2] row_mask:0xf bank_mask:0xf')
    a.e(f'v_mul_f32 v{AL}, v{AL}, v{DT}')
    a.e(f'v_mul_f32 v{BE}, v{AI}, v{DT}')
    a.e(f'v_add_f32_dpp v{SIG}, v{SIG}, v{SIG} quad_perm:[2,3,0,1] row_mask:0xf bank_mask:0xf')
    a.e(f'v_mul_f32 v{AL}, {fx(-1.4426950408889634)}, v{AL}')
    a.e(f'v_mul_f32 v{BE}, {fx(0.15915494309189535)}, v{BE}')
    a.e(f'v_add_f32_dpp v{SIG}, v{SIG}, v{SIG} row_half_mirror row_mask:0xf bank_mask:0xf')
    a.e(f'v_exp_f32 v{T0}, v{AL}')
    a.e(f'v_fract_f32 v{t}, v{BE}')
    a.e(f'v_add_f32_dpp v{SIG}, v{SIG}, v{SIG} row_ror:8 row_mask:0xf bank_mask:0xf')
    a.e(f'v_cos_f32 v{Z1}, v{t}')
    a.e(f'v_sin_f32 v{Z1+1}, v{t}')
    a.e(f'v_mov_b32 v{t2}, v{SIG}')
    a.e(f'v_mul_f32 v{T1}, 0x43000000, v{AL}')
    a.e(f'v_mul_f32 v{t}, 0x43000000, v{BE}')
    a.e(f'v_permlane16_swap_b32 v{SIG}, v{t2}')
    a.e(f'v_pk_mul_f32 v[{Z1}:{Z1+1}], v[{Z1}:{Z1+1}], v[{T0}:{T0+1}] op_sel:[0,0] op_sel_hi:[1,0]')
    a.e(f'v_add_f32 v{SIG}, v{SIG}, v{t2}')
    a.e(f'v_exp_f32 v{T1}, v{T1}')
    a.e(f'v_fract_f32 v{t}, v{t}')
    a.e(f'v_mov_b32 v{t2}, v{SIG}')
    a.e(f'v_cos_f32 v{Z128}, v{t}')
    a.e(f'v_sin_f32 v{Z128+1}, v{t}')
    a.e(f'v_permlane32_swap_b32 v{SIG}, v{t2}')
    cmul(a, Z2, Z1, Z1, Z2)
    a.e(f'v_add_f32 v{SIG}, v{SIG}, v{t2}')
    a.e(f'v_pk_mul_f32 v[{Z128}:{Z128+1}], v[{Z128}:{Z128+1}], v[{T1}:{T1+1}] op_sel:[0,0] op_sel_hi:[1,0]')
    a.e(f'v_add_f32 v{SIG}, {fx(1e-30)}, v{SIG}')
    cmul(a, Z4, Z2, Z2, Z4)
    a.e(f'v_rcp_f32 v{t}, v{SIG}')
    cmul(a, Z256, Z128, Z128, Z256)
    cmul(a, Z8, Z4, Z4, Z8)
    a.e(f'v_mul_f32 v{X0}, v{CR}, v{t}')
    a.e(f'v_mul_f32 v{X0+1}, v{CI}, v{t}')
    cmul(a, Z512, Z256, Z256, Z512)
    a.e(f's_mul_i32 s66, s{S_W}, {SCRW}')
    a.e(f's_add_u32 s66, s66, {L_SCR}')
    a.e('s_mov_b32 m0, s66')
    cmul(a, Z1024, Z512, Z512, Z1024)
    a.e(f'v_and_b32 v{t}, 15, v1')
    a.e(f'v_mul_u32_u24 v{t}, {SROW}, v{t}')
    a.e(f'v_lshrrev_b32 v{t2}, 4, v1')
    a.e(f'v_lshl_add_u32 v{t}, v{t2}, 4, v{t}')
    a.e(f'v_add_u32 v{VR}, s66, v{t}')
    cvi = [0]
    pend = []

    def flush(keep):
        while len(pend) > keep:
            cv, off = pend.pop(0)
            a.e(f'ds_write_addtid_b32 v{cv} offset:{off}')

    G = OPT['kgrp']
    if G > 1:
        CV = list(range(96, 112))

    def put(off, r, neg):
        cv = CV[cvi[0] % len(CV)]
        cvi[0] += 1
        a.e(f'v_cvt_pk_f16_f32 v{cv}, v{r}, {"-" if neg else ""}v{r+1}')
        if G > 1:
            pend.append((cv, off))
            if len(pend) >= G + 1:
                flush(1)
        else:
            flush(1)
            pend.append((cv, off))

    def putX(row, r):
        put(row * SROW, r, True)

    def putY(b, r):
        put((YROW + b) * SROW, r, False)

    a.e(f'v_mov_b32 v{VW}, 0x00003c00')
    pend.append((VW, YROW * SROW))
    putY(1, Z8)
    ychain = {'cur': Z8, 'b': 1}
    YA, YB = CC, 94

    def ystep():
        if ychain['b'] >= 15:
            return
        d = YA if ychain['cur'] != YA else YB
        cmul(a, d, ychain['cur'], Z8, d)
        ychain['b'] += 1
        ychain['cur'] = d
        putY(ychain['b'], d)

    putX(0, X0)
    cmul(a, T0, X0, Z128, T0)
    putX(8, T0)
    cur = X0
    for j in range(1, 8):
        d = CA if cur != CA else CB
        cmul(a, d, cur, Z1, d)
        ystep()
        putX(j, d)
        cmul(a, T0, d, Z128, T0)
        putX(8 + j, T0)
        cur = d
    cmul(a, CA, X0, Z256, CA)
    ystep()
    putX(16, CA)
    cmul(a, T0, CA, Z128, T0)
    putX(20, T0)
    cur = CA
    for j in range(1, 4):
        d = CA if cur != CA else CB
        cmul(a, d, cur, Z2, d)
        ystep()
        putX(16 + j, d)
        cmul(a, T0, d, Z128, T0)
        putX(20 + j, T0)
        cur = d
    if mid is not None:
        if mid_m0:
            flush(0)
        mid()
        if mid_m0:
            a.e(f's_mul_i32 s66, s{S_W}, {SCRW}')
            a.e(f's_add_u32 s66, s66, {L_SCR}')
            a.e('s_mov_b32 m0, s66')
    cmul(a, CA, X0, Z512, CA)
    ystep()
    putX(24, CA)
    cmul(a, CB, CA, Z4, CB)
    ystep()
    putX(25, CB)
    pa, pb = CA, CB
    na, nb = T0, T1
    for q in range(1, 4):
        cmul(a, na, pa, Z128, na)
        cmul(a, nb, pb, Z128, nb)
        ystep()
        putX(24 + 2 * q, na)
        putX(25 + 2 * q, nb)
        pa, pb, na, nb = na, nb, pa, pb
    cmul(a, CA, X0, Z1024, CA)
    putX(32, CA)
    cur = CA
    for q in range(1, 9):
        d = CA if cur != CA else CB
        cmul(a, d, cur, Z128, d)
        putX(32 + q, d)
        cur = d
    while ychain['b'] < 15:
        ystep()
    flush(0)
    FA = 96
    for k in range(4):
        a.e(f'ds_read_b128 v[{144+4*k}:{147+4*k}], v{VR} offset:{YROW*SROW+64*k}')
        for T in range(3):
            r = FA + 16 * T + 4 * k
            a.e(f'ds_read_b128 v[{r}:{r+3}], v{VR} offset:{16*T*SROW+64*k}')
    for k in range(4):
        a.e(f's_waitcnt lgkmcnt({4*(3-k)})')
        for T in range(3):
            r = FA + 16 * T + 4 * k
            cc = '0' if k == 0 else f'v[{DACC+4*T}:{DACC+4*T+3}]'
            a.e(f'v_mfma_f32_16x16x32_f16 v[{DACC+4*T}:{DACC+4*T+3}], v[{r}:{r+3}], v[{144+4*k}:{147+4*k}], {cc}')


def ktab_part1(a):
    a.e(f's_mul_i32 s66, s{S_W}, {SCRW}')
    a.e(f's_add_u32 s66, s66, {L_SCR}')
    a.e('v_lshl_add_u32 v90, v1, 4, s66')
    a.e(f's_lshl_b32 s67, s{S_W}, 2')
    a.e(f's_add_u32 s67, s67, {L_SIG}')
    a.e('v_mov_b32 v91, s67')
    a.e('s_mov_b64 exec, 1')
    a.e('ds_write_b32 v91, v52')
    a.e('ds_write_b32 v91, v53 offset:16')
    a.e('s_mov_b64 exec, -1')
    for c, DK in ((0, DK0), (1, DK1)):
        for T in range(3):
            for h in range(2):
                i = DK + 4 * T + 2 * h
                a.e(f'v_pk_mul_f32 v[{i}:{i+1}], v[{i}:{i+1}], v[52:53] op_sel:[0,{c}] op_sel_hi:[1,{c}]')
            a.e(f'ds_write_b128 v90, v[{DK+4*T}:{DK+4*T+3}] offset:{c*3072+T*1024}')
    a.e('v_mov_b32 v96, 0')
    a.e('v_mov_b32 v97, 0')
    a.e('v_mov_b32 v98, 0')
    a.e('v_mov_b32 v99, 0')
    a.e(f'v_mov_b32 v92, {L_KT + 1536}')
    a.e('ds_write_b32 v92, v96')
    a.e(f'ds_write_b32 v92, v96 offset:{KTCH}')
    a.e('v_lshlrev_b32 v92, 3, v1')
    a.e(f'ds_write_b64 v92, v[96:97] offset:{L_U}')
    a.e(f'ds_write_b64 v92, v[96:97] offset:{L_U + UCH}')
    a.e('s_waitcnt lgkmcnt(0)')
    a.e('s_barrier')


def ktab_part2(a):
    a.e(f'v_mov_b32 v91, {L_SIG}')
    a.e('ds_read_b128 v[44:47], v91')
    a.e('ds_read_b128 v[48:51], v91 offset:16')
    a.e(f's_and_b32 s67, s{S_W}, 1')
    a.e(f's_lshr_b32 s70, s{S_W}, 1')
    a.e('s_mul_i32 s71, s67, 3072')
    a.e('s_lshl_b32 s72, s70, 10')
    a.e('s_add_u32 s72, s72, s71')
    a.e(f's_add_u32 s72, s72, {L_SCR}')
    a.e(f's_add_u32 s71, s71, {L_SCR + 2048}')
    a.e('v_lshl_add_u32 v90, v1, 4, s72')
    a.e('v_lshl_add_u32 v91, v1, 4, s71')
    for wv in range(4):
        a.e(f'ds_read_b128 v[{96+4*wv}:{99+4*wv}], v90 offset:{wv*SCRW}')
    for wv in range(4):
        a.e(f'ds_read_b128 v[{112+4*wv}:{115+4*wv}], v91 offset:{wv*SCRW}')
    a.e('v_mov_b32 v128, 0')
    a.e('v_mov_b32 v129, 0')
    a.e('v_mov_b32 v130, 0')
    a.e('v_mov_b32 v131, 0')
    if OPT['c4']:
        a.e('v_and_b32 v132, 7, v1')
        a.e(f'v_mul_u32_u24 v132, {KCOPY}, v132')
        a.e('v_bfe_u32 v133, v1, 3, 1')
        a.e('v_lshl_add_u32 v132, v133, 4, v132')
    else:
        a.e('v_and_b32 v132, 15, v1')
        a.e(f'v_mul_u32_u24 v132, {KCOPY}, v132')
    a.e(f'v_add_u32 v132, {L_KC}, v132')
    a.e('ds_write_b128 v132, v[128:131] offset:4096')
    a.e('v_lshrrev_b32 v92, 4, v1')
    a.e('v_lshlrev_b32 v92, 7, v92')
    a.e('v_and_b32 v93, 15, v1')
    a.e('v_lshl_add_u32 v92, v93, 1, v92')
    a.e(f's_mul_i32 s71, s67, {KTCH}')
    a.e(f's_add_u32 s71, s71, {L_KT}')
    a.e('v_add_u32 v93, s71, v92')
    a.e('s_lshl_b32 s72, s70, 9')
    a.e('v_add_u32 v92, s72, v93')
    a.e('s_waitcnt lgkmcnt(9)')
    a.e('v_pk_add_f32 v[44:45], v[44:45], v[46:47]')
    a.e('v_pk_add_f32 v[48:49], v[48:49], v[50:51]')
    a.e('v_add_f32 v44, v44, v45')
    a.e('v_add_f32 v45, v48, v49')
    a.e('s_cmp_eq_u32 s67, 0')
    a.e('s_cselect_b64 vcc, -1, 0')
    a.e('v_pk_mul_f32 v[54:55], v[54:55], v[44:45]')
    a.e('v_cndmask_b32 v46, v45, v44, vcc')
    a.e('v_pk_add_f32 v[54:55], v[54:55], v[54:55]')
    a.e('v_rcp_f32 v46, v46')
    for jb, (base, va, off) in enumerate(((96, 92, 0), (112, 93, 1024))):
        a.e(f's_waitcnt lgkmcnt({5 if jb == 0 else 5})')
        for h in range(2):
            a.e(f'v_pk_add_f32 v[{base+2*h}:{base+2*h+1}], v[{base+2*h}:{base+2*h+1}], v[{base+4+2*h}:{base+5+2*h}]')
            a.e(f'v_pk_add_f32 v[{base+8+2*h}:{base+9+2*h}], v[{base+8+2*h}:{base+9+2*h}], v[{base+12+2*h}:{base+13+2*h}]')
        for h in range(2):
            a.e(f'v_pk_add_f32 v[{base+2*h}:{base+2*h+1}], v[{base+2*h}:{base+2*h+1}], v[{base+8+2*h}:{base+9+2*h}]')
        for h in range(2):
            a.e(f'v_pk_mul_f32 v[{base+2*h}:{base+2*h+1}], v[{base+2*h}:{base+2*h+1}], v[46:47] op_sel:[0,0] op_sel_hi:[1,0]')
        a.e(f'v_cvt_pk_f16_f32 v{base+4}, v{base}, v{base+1}')
        a.e(f'v_cvt_pk_f16_f32 v{base+5}, v{base+2}, v{base+3}')
        a.e(f'ds_write_b16 v{va}, v{base+4} offset:{off}')
        a.e(f'ds_write_b16_d16_hi v{va}, v{base+4} offset:{off+32}')
        a.e(f'ds_write_b16 v{va}, v{base+5} offset:{off+64}')
        a.e(f'ds_write_b16_d16_hi v{va}, v{base+5} offset:{off+96}')
    for e in range(11 if OPT['c4'] else 15):
        src = 160 + e // 2
        if e % 2 == 0:
            a.e(f'v_and_b32 v{136+e}, 0xffff, v{src}')
        else:
            a.e(f'v_lshrrev_b32 v{136+e}, 16, v{src}')
    a.e('s_waitcnt lgkmcnt(0)')
    a.e('s_barrier')


def kch():
    return (4 if OPT['c4'] else 8) * KCOPY


def kcopies(a):
    AD = 136
    a.e('v_lshlrev_b32 v111, 4, v0')
    a.e(f'v_add_u32 v111, {L_KC}, v111')
    RR = [96, 112]
    if OPT['c4']:
        for c in range(2):
            for e in range(11):
                a.e(f'ds_read_u16 v{RR[c]+e}, v{AD+e} offset:{L_KT + c*KTCH}')
        for c in range(2):
            R = RR[c]
            Da, Db, Oa, Ob = (56, 60, 64, 68) if c == 0 else (16, 20, 24, 28)
            a.e(f's_waitcnt lgkmcnt({11 if c == 0 else 4})')
            for i in range(4):
                a.e(f'v_lshl_or_b32 v{Da+i}, v{R+2*i+1}, 16, v{R+2*i}')
                a.e(f'v_lshl_or_b32 v{Oa+i}, v{R+2*i+2}, 16, v{R+2*i+1}')
                a.e(f'v_lshl_or_b32 v{Db+i}, v{R+2*i+3}, 16, v{R+2*i+2}')
                a.e(f'v_lshl_or_b32 v{Ob+i}, v{R+2*i+4}, 16, v{R+2*i+3}')
            for s_, r in ((0, Da), (1, Oa), (2, Db), (3, Ob)):
                a.e(f'ds_write_b128 v111, v[{r}:{r+3}] offset:{c*kch() + s_*KCOPY}')
        return
    for c in range(2):
        for e in range(15):
            a.e(f'ds_read_u16 v{RR[c]+e}, v{AD+e} offset:{L_KT + c*KTCH}')
    for c in range(2):
        R = RR[c]
        Da, Db, Oa, Ob = 56 + 0, 64, 72, 80
        if c == 1:
            Da, Db, Oa, Ob = 16, 24, 32, 40
        a.e(f's_waitcnt lgkmcnt({15 if c == 0 else 8})')
        for i in range(6):
            a.e(f'v_lshl_or_b32 v{Da+i}, v{R+2*i+1}, 16, v{R+2*i}')
            a.e(f'v_lshl_or_b32 v{Oa+i}, v{R+2*i+2}, 16, v{R+2*i+1}')
        if c == 1:
            a.e(f'v_add_u32 v110, {KCH}, v111')
        va = 111 if c == 0 else 110
        for s, r in ((0, Da), (1, Oa), (4, Da + 2), (5, Oa + 2)):
            a.e(f'ds_write_b128 v{va}, v[{r}:{r+3}] offset:{s*KCOPY}')
        for i in range(6):
            a.e(f'v_lshl_or_b32 v{Db+i}, v{R+2*i+3}, 16, v{R+2*i+2}')
            a.e(f'v_lshl_or_b32 v{Ob+i}, v{R+2*i+4}, 16, v{R+2*i+3}')
        for s, r in ((2, Db), (3, Ob), (6, Db + 2), (7, Ob + 2)):
            a.e(f'ds_write_b128 v{va}, v[{r}:{r+3}] offset:{s*KCOPY}')


def store_u(a, vm):
    a.e('v_lshlrev_b32 v2, 4, v0')
    a.e(f's_waitcnt vmcnt({vm})')
    a.e(f'ds_write_b128 v2, v[176:179] offset:{L_U + 512}')
    a.e(f'ds_write_b128 v2, v[180:183] offset:{L_U + UCH + 512}')
    a.e('s_waitcnt lgkmcnt(0)')
    a.e('s_barrier')


def phase_conv(a, hooks, pre_vm):
    hooks = list(hooks)
    ACC = 16
    FA = [[64 + 64 * s + 4 * i for i in range(8)] for s in range(2)]
    FB = [[96 + 64 * s + 4 * i for i in range(8)] for s in range(2)]
    VA, VB = 48, 49

    def loads(qq, s):
        out = []
        for i in range(8):
            out.append(f'ds_read_b128 v[{FB[s][i]}:{FB[s][i]+3}], v{VB} offset:{512*i + 64*(3-qq)}')
            if OPT['c4']:
                o = 512 * (7 - i) + 64 * (3 - qq)
                out.append(f'ds_read_b64 v[{FA[s][i]}:{FA[s][i]+1}], v{VA} offset:{o}')
                out.append(f'ds_read_b64 v[{FA[s][i]+2}:{FA[s][i]+3}], v{VA} offset:{o + 8}')
            else:
                out.append(f'ds_read_b128 v[{FA[s][i]}:{FA[s][i]+3}], v{VA} offset:{512*(7-i) + 64*(3-qq)}')
        return out

    for x in loads(0, 0):
        a.e(x)
    for qq in range(4):
        s = qq & 1
        nxt = loads(qq + 1, 1 - s) if qq < 3 else []
        n = 0
        for w in range(8):
            for c in range(w, 8):
                if n == 0:
                    a.e('s_waitcnt lgkmcnt(0)')
                cc = '0' if (qq == 0 and w == 0) else f'v[{ACC+4*c}:{ACC+4*c+3}]'
                a.e(f'v_mfma_f32_16x16x32_f16 v[{ACC+4*c}:{ACC+4*c+3}], v[{FA[s][w]}:{FA[s][w]+3}], v[{FB[s][c-w]}:{FB[s][c-w]+3}], {cc}')
                if nxt and (n % 2 == 1 or (OPT['c4'] and n % 4 == 0)):
                    a.e(nxt.pop(0))
                if hooks and n % 4 == 2:
                    hooks.pop(0)()
                n += 1
        assert not nxt
    assert not hooks
    stamp(a, 11)
    CP, TS = L_CP, 1280
    a.e('v_and_b32 v2, 15, v1')
    a.e('v_lshlrev_b32 v2, 4, v2')
    a.e('v_lshrrev_b32 v3, 4, v1')
    a.e('v_mul_u32_u24 v3, 320, v3')
    a.e('v_add_u32 v2, v2, v3')
    a.e(f's_mul_i32 s70, s{S_W}, {8*TS}')
    a.e(f's_add_u32 s70, s70, {CP}')
    a.e('v_add_u32 v2, s70, v2')
    a.e('s_barrier')
    for c in range(8):
        a.e(f'ds_write_b128 v2, v[{ACC+4*c}:{ACC+4*c+3}] offset:{c*TS}')
    a.e('v_lshrrev_b32 v2, 2, v1')
    a.e('v_lshlrev_b32 v2, 4, v2')
    a.e('v_and_b32 v3, 3, v1')
    a.e('v_mul_u32_u24 v3, 320, v3')
    a.e('v_add_u32 v2, v2, v3')
    a.e(f's_lshl_b32 s70, s{S_W}, 1')
    a.e(f's_mul_i32 s71, s70, {TS}')
    a.e(f's_add_u32 s71, s71, {CP}')
    a.e('v_add_u32 v2, s71, v2')
    a.e('s_lshl_b32 s71, s70, 9')
    a.e(f's_add_u32 s71, s71, {L_U + 512}')
    a.e('v_lshl_add_u32 v3, v1, 3, s71')
    a.e(f's_mul_i32 s71, s{S_P}, {AST}')
    a.e('s_lshl_b32 s72, s70, 10')
    a.e('s_add_u32 s71, s71, s72')
    a.e(f's_add_u32 s71, s71, {WS_AOUT}')
    a.e('v_lshl_add_u32 v4, v1, 4, s71')
    a.e('s_lshl_b32 s72, s69, 16')
    a.e('s_and_b32 s73, s69, 0xffff0000')
    a.e('v_mov_b32 v56, s72')
    a.e('v_mov_b32 v57, s73')
    a.e(f's_waitcnt lgkmcnt(0) vmcnt({pre_vm})')
    a.e('s_barrier')
    for q in range(2):
        P = 64 + 32 * q
        for ch in range(2):
            for hf in range(2):
                r = P + 8 * ch + 4 * hf
                a.e(f'ds_read_b128 v[{r}:{r+3}], v2 offset:{(2*ch+hf)*8*TS + q*TS}')
        for ch in range(2):
            a.e(f'ds_read_b64 v[{P+16+2*ch}:{P+17+2*ch}], v3 offset:{ch*UCH + q*512}')
    for q in range(2):
        P = 64 + 32 * q
        a.e(f's_waitcnt lgkmcnt({6 if q == 0 else 0})')
        for ch in range(2):
            y = P + 8 * ch
            T = 128 + 16 * ch
            u = P + 16 + 2 * ch
            for h in range(2):
                a.e(f'v_pk_add_f32 v[{y+2*h}:{y+2*h+1}], v[{y+2*h}:{y+2*h+1}], v[{y+4+2*h}:{y+5+2*h}]')
            for i in range(4):
                a.e(f'v_fma_mix_f32 v{T+i}, v{u+i//2}, v{56+ch}, 0 op_sel:[{i%2},0,0] op_sel_hi:[1,0,0]')
            for h in range(2):
                a.e(f'v_pk_mul_f32 v[{y+2*h}:{y+2*h+1}], v[{y+2*h}:{y+2*h+1}], v[54:55] op_sel:[0,{ch}] op_sel_hi:[1,{ch}]')
            for h in range(2):
                a.e(f'v_cvt_pk_bf16_f32 v{T+6+h}, v{T+2*h}, v{T+2*h+1}')
                a.e(f'v_cvt_pk_bf16_f32 v{T+4+h}, v{y+2*h}, v{y+2*h+1}')
            for h in range(2):
                a.e(f'v_lshlrev_b32 v{T+2*h}, 16, v{T+6+h}')
                a.e(f'v_and_b32 v{T+2*h+1}, 0xffff0000, v{T+6+h}')
                a.e(f'v_lshlrev_b32 v{y+2*h}, 16, v{T+4+h}')
                a.e(f'v_and_b32 v{y+2*h+1}, 0xffff0000, v{T+4+h}')
            for h in range(2):
                a.e(f'v_pk_add_f32 v[{y+2*h}:{y+2*h+1}], v[{y+2*h}:{y+2*h+1}], v[{T+2*h}:{T+2*h+1}]')
        O = 160 + 4 * q
        for i in range(4):
            a.e(f'v_cvt_pk_bf16_f32 v{O+i}, v{P+i}, v{P+8+i}')
        a.e(f'buffer_store_dwordx4 v[{O}:{O+3}], v4, {WSR}, 0 offen offset:{q*1024} sc1')


def conv_addr(a):
    a.e(f's_lshr_b32 s66, s{S_W}, 1')
    a.e(f's_and_b32 s67, s{S_W}, 1')
    a.e('v_and_b32 v2, 7, v1')
    a.e('v_sub_u32 v2, 7, v2')
    if OPT['c4']:
        a.e('v_lshrrev_b32 v5, 2, v2')
        a.e('v_and_b32 v2, 3, v2')
        a.e(f'v_mul_u32_u24 v2, {KCOPY}, v2')
        a.e('v_lshl_add_u32 v2, v5, 3, v2')
    else:
        a.e(f'v_mul_u32_u24 v2, {KCOPY}, v2')
    a.e('v_lshrrev_b32 v3, 4, v1')
    a.e('v_bfe_u32 v4, v1, 3, 1')
    a.e('v_sub_u32 v4, v3, v4')
    a.e('v_lshl_add_u32 v2, v4, 4, v2')
    a.e(f's_mul_i32 s70, s66, {kch()}')
    a.e('s_lshl_b32 s71, s67, 8')
    a.e('s_sub_u32 s70, s70, s71')
    a.e(f's_add_u32 s70, s70, {L_KC + 16*253 - 512*7 - 64*3}')
    a.e('v_add_u32 v48, s70, v2')
    a.e('v_and_b32 v2, 15, v1')
    a.e('v_lshlrev_b32 v2, 5, v2')
    a.e('v_lshl_add_u32 v2, v3, 4, v2')
    a.e(f's_mul_i32 s70, s66, {UCH}')
    a.e('s_sub_u32 s70, s70, s71')
    a.e(f's_add_u32 s70, s70, {L_U + 480 - 64*3}')
    a.e('v_add_u32 v49, s70, v2')


def phase_p4(a):
    X = list(range(8, 16))
    A = 32
    xrow_addr(a)
    a.e(f's_mul_i32 s66, s{S_W}, {56*AST}')
    a.e(f's_lshl_b32 s67, s{S_B}, 5')
    a.e('s_add_u32 s66, s66, s67')
    a.e(f's_add_u32 s66, s66, {WS_AOUT}')
    a.e(f'v_mul_u32_u24 v4, {AST}, v1')
    a.e('v_add_u32 v4, s66, v4')
    a.e(f'v_mov_b32 v5, {OOB}')
    a.e('v_cndmask_b32 v4, v5, v4, vcc')
    a.e(f's_mul_i32 s66, s{S_W}, 224')
    a.e(f's_add_u32 s66, s66, {L_HT}')
    a.e('v_lshl_add_u32 v6, v1, 2, s66')
    for j in range(8):
        a.e(f'v_lshlrev_b32 v{64+2*j}, 16, v{X[j]}')
        a.e(f'v_and_b32 v{65+2*j}, 0xffff0000, v{X[j]}')
    lp, ld = a.lab('h2poll'), a.lab('h2done')
    a.e(f's_mov_b32 s{S_SPIN}, 0')
    a.e(f'{lp}:')
    a.e(f'buffer_load_dwordx4 v[{A}:{A+3}], v4, {WSR}, 0 offen sc1')
    a.e(f'buffer_load_dwordx4 v[{A+4}:{A+7}], v4, {WSR}, 0 offen offset:16 sc1')
    a.e('s_waitcnt vmcnt(0)')
    a.e(f'v_max3_u32 v40, v{A}, v{A+1}, v{A+2}')
    a.e(f'v_max3_u32 v41, v{A+3}, v{A+4}, v{A+5}')
    a.e(f'v_max3_u32 v40, v40, v{A+6}, v{A+7}')
    a.e('v_max_u32 v40, v40, v41')
    a.e('v_cmp_eq_u32 vcc, -1, v40')
    a.e(f's_cbranch_vccz {ld}')
    spin_tail(a, lp)
    a.e(f'{ld}:')
    stamp(a, 14)
    H = list(range(48, 56))
    for j in range(8):
        t = 40 + 2 * (j % 4)
        a.e(f'v_lshlrev_b32 v{t}, 16, v{A+j}')
        a.e(f'v_and_b32 v{t+1}, 0xffff0000, v{A+j}')
        a.e(f'v_pk_add_f32 v[{t}:{t+1}], v[{t}:{t+1}], v[{64+2*j}:{65+2*j}]')
        a.e(f'v_cvt_pk_bf16_f32 v{H[j]}, v{t}, v{t+1}')
    a.e('s_mov_b32 exec_hi, 0x00ffffff')
    for j in range(8):
        a.e(f'ds_write_b32 v6, v{H[j]} offset:{j*896}')
    a.e('s_mov_b32 exec_hi, -1')

    def hstore():
        a.e('v_lshlrev_b32 v7, 4, v0')
        a.e(f'ds_read_b128 v[56:59], v7 offset:{L_HT}')
        a.e(f'ds_read_b128 v[60:63], v7 offset:{L_HT + 4096}')
        return 2

    ln_stats(a, H, 16, L_RED0, 5, mid=hstore)
    a.e(f's_mul_i32 s66, s{S_B}, 7168')
    a.e(f's_add_u32 s66, s66, {WS_H}')
    a.e('v_add_u32 v6, s66, v7')
    a.e('v_add_u32 v7, 4096, v6')
    mask_lanes(a, 7, 192, 4, 'v0')
    a.e('s_waitcnt lgkmcnt(0)')
    a.e(f'buffer_store_dwordx4 v[56:59], v6, {WSR}, 0 offen sc1')
    a.e(f'buffer_store_dwordx4 v[60:63], v7, {WSR}, 0 offen sc1')
    bcast_stats(a, 16)
    a.e('s_mov_b32 exec_hi, 0x00ffffff')
    for j in range(8):
        t = 40 + 2 * (j % 4)
        norm_tok(a, j, H[j], t)
        a.e(f'v_cvt_pk_bf16_f32 v{H[j]}, v{t}, v{t+1}')
    a.e('s_mov_b32 exec_hi, -1')
    ln_stats(a, H, 16, L_RED1, 5)
    bcast_stats(a, 16)
    a.e(f's_mul_i32 s66, s{S_B}, 7168')
    a.e(f's_mul_i32 s67, s{S_W}, 1792')
    a.e('s_add_u32 s66, s66, s67')
    a.e(f's_add_u32 s66, s66, {WS_HH}')
    a.e('v_lshl_add_u32 v4, v1, 4, s66')
    a.e('v_add_u32 v5, 448, v4')
    a.e('v_cmp_gt_u32 vcc, 28, v1')
    a.e('v_cndmask_b32 v4, v5, v4, vcc')
    mask_lanes(a, 4, 56, 5)
    for j in range(8):
        norm_tok(a, j, H[j], 64 + 2 * j)
    O0, O1 = 80, 84
    for i in range(4):
        a.e(f'v_cvt_pk_bf16_f32 v{O0+i}, v{64+4*i}, v{66+4*i}')
        a.e(f'v_cvt_pk_bf16_f32 v{O1+i}, v{65+4*i}, v{67+4*i}')
    a.e('s_waitcnt vmcnt(0)')
    a.e('s_barrier')
    a.e(f'buffer_store_dwordx4 v[{O0}:{O0+3}], v4, {WSR}, 0 offen sc1')
    a.e(f'buffer_store_dwordx4 v[{O1}:{O1+3}], v4, {WSR}, 0 offen offset:448 sc1')


def w_setup(a):
    srd(a, S_W1, P_W1, W1BYTES)
    srd(a, S_W2, P_W2, W2BYTES)
    a.e('v_lshrrev_b32 v4, 3, v1')
    a.e('v_bfe_u32 v5, v1, 4, 1')
    a.e('v_lshlrev_b32 v5, 1, v5')
    a.e('v_and_b32 v6, 7, v1')
    a.e('v_xor_b32 v6, v6, v5')
    a.e('v_xor_b32 v7, 4, v6')
    for vd, rowbytes, tile, rows in ((V_D1, F * 2, S_I1, 512), (V_D2, L * 2, S_I2, 448)):
        a.e(f's_mov_b32 s66, {rowbytes}')
        a.e('v_mul_lo_u32 v5, v4, s66')
        a.e(f's_mul_i32 s67, s{S_W}, {rows*rowbytes}')
        a.e(f's_lshl_b32 s66, s{tile}, 7')
        a.e('s_add_u32 s67, s67, s66')
        a.e('v_add_u32 v5, s67, v5')
        for i in range(4):
            a.e(f'v_lshl_add_u32 v{vd+i}, v{6 + (i & 1)}, 4, v5')
            if i:
                a.e(f'v_add_u32 v{vd+i}, {i*(8*rowbytes - 1024)}, v{vd+i}')
    a.e('v_lshlrev_b32 v5, 12, v4')
    a.e('v_and_b32 v6, 7, v1')
    a.e(f'v_lshl_add_u32 v{V_QPF}, v6, 4, v5')
    a.e(f's_and_b32 s66, s{S_LOC}, 3')
    a.e('s_mul_i32 s66, s66, 448')
    if OPT['sched'] == 3:
        a.e(f's_mul_i32 s67, s{S_W}, {(448 - OPT["hR"]) // 4}')
        a.e(f's_add_u32 s67, s67, {OPT["hR"]}')
    else:
        a.e(f's_mul_i32 s67, s{S_W}, 112')
    a.e('s_add_u32 s66, s66, s67')
    a.e('s_lshl_b32 s66, s66, 12')
    a.e(f's_lshl_b32 s67, s{S_I2}, 7')
    a.e(f's_add_u32 s{S_QPF}, s66, s67')
    a.e('v_lshrrev_b32 v4, 4, v1')
    a.e('v_bfe_u32 v5, v1, 2, 2')
    a.e('v_lshl_add_u32 v5, v4, 3, v5')
    a.e('v_lshlrev_b32 v5, 7, v5')
    a.e('v_and_b32 v6, 1, v1')
    a.e('v_lshl_add_u32 v5, v6, 3, v5')
    a.e('v_bfe_u32 v6, v1, 1, 1')
    a.e('v_lshl_add_u32 v5, v6, 4, v5')
    a.e('v_bfe_u32 v6, v1, 3, 1')
    a.e('v_and_b32 v4, 1, v4')
    a.e('v_lshl_add_u32 v6, v4, 1, v6')
    a.e(f's_and_b32 s66, s{S_LOC}, 3')
    a.e(f's_lshr_b32 s67, s{S_LOC}, 2')
    a.e('s_lshl_b32 s67, s67, 1')
    a.e('s_lshl_b32 s70, s66, 2')
    a.e('s_add_u32 s70, s70, s67')
    a.e('s_and_b32 s70, s70, 15')
    a.e(f's_mul_i32 s{S_RW1}, s70, {32*F*2}')
    a.e(f's_mul_i32 s{S_RX1}, s70, {4*7168}')
    a.e('s_mul_i32 s66, s66, 7')
    a.e('s_lshr_b32 s66, s66, 1')
    a.e('s_add_u32 s66, s66, s67')
    for _ in range(2):
        a.e('s_cmp_ge_u32 s66, 14')
        a.e('s_cselect_b32 s67, 14, 0')
        a.e('s_sub_u32 s66, s66, s67')
    a.e(f's_mul_i32 s{S_RW2}, s66, {32*L*2}')
    a.e(f's_mul_i32 s{S_RX2}, s66, {4*7168}')
    a.e(f's_lshl_b32 s{S_SA}, s{S_W}, 14')
    a.e(f's_add_u32 s{S_SA}, s{S_SA}, {L_WA}')
    a.e(f's_mul_i32 s{S_SB}, s{S_W}, 20480')
    a.e(f's_add_u32 s{S_SB}, s{S_SB}, {L_WB}')
    for mu in range(4):
        a.e(f'v_xor_b32 v4, {mu}, v6')
        a.e('v_lshl_add_u32 v4, v4, 5, v5')
        a.e(f'v_add_u32 v{V_TA+mu}, s{S_SA}, v4')
        a.e(f'v_add_u32 v{V_TB+mu}, s{S_SB}, v4')


def rot_off(a, idx, sreg, n, unit):
    a.e(f's_add_u32 s70, s{sreg}, {idx*unit}')
    a.e(f's_cmp_ge_u32 s70, {n*unit}')
    a.e(f's_cselect_b32 s71, {n*unit}, 0')
    a.e('s_sub_u32 s70, s70, s71')


def slot(name):
    return (S_SA, V_TA, int(name[1])) if name[0] == 'A' else (S_SB, V_TB, int(name[1]))


def w_dma1(a, mat, slab, sl, i):
    sb, _, si = slot(sl)
    vd, srd_, rowbytes = (V_D1, S_W1, F * 2) if mat == 1 else (V_D2, S_W2, L * 2)
    if i == 0:
        rot_off(a, slab, S_RW1 if mat == 1 else S_RW2, 16 if mat == 1 else 14, 32 * rowbytes)
        a.e(f's_add_u32 m0, s{sb}, {si*4096}')
    a.e(f'buffer_load_dwordx4 v{vd + i}, s[{srd_}:{srd_+3}], s70 offen offset:{1024*i} lds')


def w_dma(a, mat, slab, sl):
    for i in range(4):
        w_dma1(a, mat, slab, sl, i)


def w_tr(a, slab, sl):
    _, vt, si = slot(sl)
    for mu in range(4):
        r = (slab * 4 + mu) * 4
        a.e(f'ds_read_b64_tr_b16 a[{r}:{r+1}], v{vt+mu} offset:{si*4096}')
        a.e(f'ds_read_b64_tr_b16 a[{r+2}:{r+3}], v{vt+mu} offset:{si*4096 + 512}')


def helper_w2(a, nrows):
    a.e(f's_lshr_b32 s66, s{S_XCD}, 1')
    a.e('s_lshl_b32 s66, s66, 10')
    a.e(f's_sub_u32 s67, s{S_LOC}, 28')
    a.e('s_mul_i32 s67, s67, 448')
    a.e(f's_add_u32 s67, s67, s{S_W}')
    a.e('s_lshl_b32 s67, s67, 12')
    a.e('s_add_u32 s70, s66, s67')
    a.e('v_lshlrev_b32 v4, 4, v1')
    l = a.lab('l2s')
    a.e(f's_mov_b32 s71, {nrows // 16}')
    a.e(f'{l}:')
    for i in range(4):
        a.e(f'buffer_load_dwordx4 v[220:223], v4, s[{S_W2}:{S_W2+3}], s70 offen')
        a.e(f's_add_u32 s70, s70, {4*L*2}')
    a.e('s_waitcnt vmcnt(8)')
    a.e('s_sub_u32 s71, s71, 1')
    a.e('s_cmp_lg_u32 s71, 0')
    a.e(f's_cbranch_scc1 {l}')


def qpf_load(a, n):
    for _ in range(n):
        a.e(f'buffer_load_dwordx4 v[220:223], v{V_QPF}, s[{S_W2}:{S_W2+3}], s{S_QPF} offen')
        a.e(f's_add_u32 s{S_QPF}, s{S_QPF}, {8*L*2}')


ACC = 16
XS = 80
NS = 6
VMAX = 214
V_X0, V_X3 = 208, 209


def gemm_xaddr(a, ws_off, kblocks):
    a.e(f's_mul_i32 s66, s{S_W}, {kblocks*7168}')
    a.e(f's_mul_i32 s67, s{S_J}, 896')
    a.e('s_add_u32 s66, s66, s67')
    a.e(f's_add_u32 s66, s66, {ws_off}')
    a.e('v_lshrrev_b32 v4, 4, v1')
    a.e('v_mul_u32_u24 v4, 7168, v4')
    a.e('v_add_u32 v4, s66, v4')
    a.e('v_and_b32 v5, 15, v1')
    a.e(f'v_lshl_add_u32 v{V_X0}, v5, 4, v4')
    if OPT['x3oob']:
        a.e(f'v_add_u32 v{V_X3}, 768, v{V_X0}')
        a.e(f'v_mov_b32 v4, {OOB}')
        a.e('v_cmp_gt_u32 vcc, 8, v5')
        a.e(f'v_cndmask_b32 v{V_X3}, v4, v{V_X3}, vcc')
    else:
        a.e('v_and_b32 v5, 7, v1')
        a.e('v_lshl_add_u32 v4, v5, 4, v4')
        a.e(f'v_add_u32 v{V_X3}, 768, v4')


def gemm_xloads(a, kappa, gid):
    st = XS + 16 * (kappa % NS)
    out = []
    sreg, n = (S_RX1, 16) if gid == 1 else (S_RX2, 14)
    unit = 4 * 7168
    out.append(f's_add_u32 s70, s{sreg}, {kappa*unit}')
    out.append(f's_cmp_ge_u32 s70, {n*unit}')
    out.append(f's_cselect_b32 s71, {n*unit}, 0')
    out.append('s_sub_u32 s70, s70, s71')
    for nu in range(3):
        out.append(f'buffer_load_dwordx4 v[{st+4*nu}:{st+4*nu+3}], v{V_X0}, {WSR}, s70 offen offset:{256*nu} sc1')
    out.append(f'buffer_load_dwordx4 v[{st+12}:{st+15}], v{V_X3}, {WSR}, s70 offen sc1')
    return out


def gemm_main(a, nk, gid, tail_hook=None):
    nfl = OPT['nfl']
    w_is_a = gid == 1
    a.e(f'v_mov_b32 v{VMAX}, 0')
    extra = 0
    for k in range(nk):
        st = XS + 16 * (k % NS)
        rem = min(nfl - 1, nk - 1 - k)
        a.e(f's_waitcnt vmcnt({4*rem + extra})')
        if OPT['stamps'] and k in (0, 4, 8, 12):
            stamp(a, (44 if w_is_a else 51) + (0, 4, 8, 12).index(k))
        fill = gemm_xloads(a, k + nfl, gid) if k + nfl < nk else []
        if k + nfl == nk and tail_hook is not None:
            fill = []
            extra = tail_hook(fill)
        mx = [f'v_max3_u32 v{VMAX}, v{VMAX}, v{st+2*i}, v{st+2*i+1}' for i in range(8)]
        n = 0
        for mu in range(4):
            for nu in range(4):
                w = (k * 4 + mu) * 4
                x = st + 4 * nu
                if w_is_a:
                    acc = ACC + (mu * 4 + nu) * 4
                    A, B = f'a[{w}:{w+3}]', f'v[{x}:{x+3}]'
                else:
                    acc = ACC + (nu * 4 + mu) * 4
                    A, B = f'v[{x}:{x+3}]', f'a[{w}:{w+3}]'
                cc = '0' if k == 0 else f'v[{acc}:{acc+3}]'
                a.e(f'v_mfma_f32_16x16x32_bf16 v[{acc}:{acc+3}], {A}, {B}, {cc}')
                for _ in range(2):
                    if fill:
                        a.e(fill.pop(0))
                if not fill and mx and n >= 4:
                    a.e(mx.pop(0))
                n += 1
        assert not fill and not mx


def sentinel(a, ws_off, kblocks):
    lp, ld = a.lab('spoll'), a.lab('sdone')
    a.e(f's_mul_i32 s66, s{S_W}, {kblocks*7168}')
    a.e(f's_mul_i32 s67, s{S_J}, 896')
    a.e('s_add_u32 s66, s66, s67')
    a.e(f's_add_u32 s66, s66, {ws_off + 55*16 + 12}')
    a.e('v_mul_u32_u24 v4, 7168, v1')
    a.e('v_add_u32 v4, s66, v4')
    if kblocks < 64:
        mask_lanes(a, 4, kblocks, 5)
    a.e(f's_mov_b32 s{S_SPIN}, 0')
    a.e(f'{lp}:')
    a.e(f'buffer_load_dword v5, v4, {WSR}, 0 offen sc1')
    a.e('s_waitcnt vmcnt(0)')
    a.e('v_cmp_eq_u32 vcc, -1, v5')
    a.e(f's_cbranch_vccz {ld}')
    spin_tail(a, lp)
    a.e(f'{ld}:')


def gemm_poll_main(a, ws_off, kblocks, nk, gid, sb, tail_hook=None):
    lr, lok = a.lab('gretry'), a.lab('gok')
    gemm_xaddr(a, ws_off, kblocks)
    a.e(f's_mov_b32 s{S_RETRY}, 0')
    a.e(f'{lr}:')
    sentinel(a, ws_off, kblocks)
    stamp(a, sb)
    for k in range(OPT['nfl']):
        for x in gemm_xloads(a, k, gid):
            a.e(x)
    gemm_main(a, nk, gid, tail_hook)
    a.e(f'v_cmp_eq_u32 vcc, -1, v{VMAX}')
    a.e(f's_cbranch_vccz {lok}')
    a.e(f's_add_u32 s{S_RETRY}, s{S_RETRY}, 1')
    a.e(f's_cmp_lt_u32 s{S_RETRY}, {RETRY_MAX}')
    a.e(f's_cbranch_scc1 {lr}')
    a.e(f'{lok}:')


def write_partials(a):
    a.e('v_and_b32 v4, 15, v1')
    a.e(f'v_mul_u32_u24 v4, {PROW}, v4')
    a.e('v_lshrrev_b32 v5, 4, v1')
    a.e('v_lshl_add_u32 v4, v5, 4, v4')
    a.e(f's_mul_i32 s66, s{S_W}, {PARTW}')
    a.e(f's_add_u32 s66, s66, {L_PART}')
    a.e('v_add_u32 v4, s66, v4')
    a.e('s_barrier')
    for mt in range(4):
        for nt in range(4):
            acc = ACC + (mt * 4 + nt) * 4
            a.e(f'ds_write_b128 v4, v[{acc}:{acc+3}] offset:{nt*16*PROW + mt*64}')


def sum_partials(a, P):
    for h in range(4):
        a.e(f'v_pk_add_f32 v[{P+2*h}:{P+2*h+1}], v[{P+2*h}:{P+2*h+1}], v[{P+8+2*h}:{P+9+2*h}]')
        a.e(f'v_pk_add_f32 v[{P+16+2*h}:{P+17+2*h}], v[{P+16+2*h}:{P+17+2*h}], v[{P+24+2*h}:{P+25+2*h}]')
    for h in range(4):
        a.e(f'v_pk_add_f32 v[{P+2*h}:{P+2*h+1}], v[{P+2*h}:{P+2*h+1}], v[{P+16+2*h}:{P+17+2*h}]')


def b1_load(a):
    a.e(f's_lshl_b32 s67, s{S_I1}, 7')
    a.e(f's_lshl_b32 s70, s{S_W}, 5')
    a.e('s_add_u32 s67, s67, s70')
    a.e(f's_load_dwordx8 s[72:79], s[{P_B1}:{P_B1+1}], s67')


def gemm1_epilogue(a):
    write_partials(a)
    a.e(f'v_mul_u32_u24 v4, {PROW}, v1')
    a.e(f's_lshl_b32 s66, s{S_W}, 6')
    a.e(f's_add_u32 s66, s66, {L_PART}')
    a.e('v_add_u32 v4, s66, v4')
    g_store_addr(a, 5)
    C1 = 0.044715
    C2 = -2.0 * 0.7978845608028654 * 1.4426950408889634
    a.e(f'v_mov_b32 v100, {fx(C1*C2)}')
    a.e(f'v_mov_b32 v101, {fx(C1*C2)}')
    a.e(f'v_mov_b32 v102, {fx(C2)}')
    a.e(f'v_mov_b32 v103, {fx(C2)}')
    a.e('s_waitcnt lgkmcnt(0)')
    a.e('s_barrier')
    stamp(a, 24)
    for r in range(2):
        P = 16 + 32 * r
        for wv in range(4):
            a.e(f'ds_read_b128 v[{P+8*wv}:{P+8*wv+3}], v4 offset:{wv*PARTW + r*32}')
            a.e(f'ds_read_b128 v[{P+8*wv+4}:{P+8*wv+7}], v4 offset:{wv*PARTW + r*32 + 16}')
    for i in range(8):
        a.e(f's_lshl_b32 s{80+2*i}, s{72+i}, 16')
        a.e(f's_and_b32 s{81+2*i}, s{72+i}, 0xffff0000')
    for r in range(2):
        P = 16 + 32 * r
        T = 80
        a.e(f's_waitcnt lgkmcnt({8 if r == 0 else 0})')
        sum_partials(a, P)
        round_pairs(a, P, T, 8)
        for h in range(4):
            a.e(f'v_pk_add_f32 v[{P+2*h}:{P+2*h+1}], v[{P+2*h}:{P+2*h+1}], s[{80+8*r+2*h}:{81+8*r+2*h}]')
        round_pairs(a, P, T, 8)
        for h in range(4):
            a.e(f'v_pk_mul_f32 v[{P+8+2*h}:{P+9+2*h}], v[{P+2*h}:{P+2*h+1}], v[{P+2*h}:{P+2*h+1}]')
        for h in range(4):
            a.e(f'v_pk_fma_f32 v[{P+8+2*h}:{P+9+2*h}], v[{P+8+2*h}:{P+9+2*h}], v[100:101], v[102:103]')
        for h in range(4):
            a.e(f'v_pk_mul_f32 v[{P+8+2*h}:{P+9+2*h}], v[{P+8+2*h}:{P+9+2*h}], v[{P+2*h}:{P+2*h+1}]')
        for i in range(8):
            a.e(f'v_exp_f32 v{P+8+i}, v{P+8+i}')
        for h in range(4):
            a.e(f'v_pk_add_f32 v[{P+8+2*h}:{P+9+2*h}], v[{P+8+2*h}:{P+9+2*h}], 1.0 op_sel_hi:[1,0]')
        for i in range(8):
            a.e(f'v_rcp_f32 v{P+8+i}, v{P+8+i}')
        for h in range(4):
            a.e(f'v_pk_mul_f32 v[{P+2*h}:{P+2*h+1}], v[{P+2*h}:{P+2*h+1}], v[{P+8+2*h}:{P+9+2*h}]')
        O = 88 + 4 * r
        for h in range(4):
            a.e(f'v_cvt_pk_bf16_f32 v{O+h}, v{P+2*h}, v{P+2*h+1}')
        if r == 1:
            a.e('v_add_u32 v5, 7168, v5')
        a.e(f'buffer_store_dwordx4 v[{O}:{O+3}], v5, {WSR}, 0 offen sc1')


V_OUT, V_HAD, V_B2 = 210, 211, 212
V_HR = 196


def gemm2_addr(a):
    srd(a, S_T2, P_OUT, XBYTES)
    srd(a, S_T3, P_B2, L * 2)
    a.e('v_lshrrev_b32 v4, 3, v1')
    a.e('v_and_b32 v5, 7, v1')
    a.e(f's_lshl_b32 s66, s{S_W}, 4')
    a.e('v_add_u32 v4, s66, v4')
    a.e(f's_lshl_b32 s67, s{S_I2}, 6')
    a.e('v_add_u32 v7, s67, v4')
    a.e(f'v_mul_u32_u24 v{V_OUT}, 896, v7')
    a.e(f'v_lshl_add_u32 v{V_OUT}, v5, 4, v{V_OUT}')
    a.e(f's_mul_i32 s70, s{S_J}, 112')
    a.e(f'v_add_u32 v{V_OUT}, s70, v{V_OUT}')
    a.e(f'v_mov_b32 v6, {OOB}')
    a.e('v_cmp_gt_u32 vcc, 7, v5')
    a.e(f'v_cndmask_b32 v{V_OUT}, v6, v{V_OUT}, vcc')
    a.e(f'v_add_u32 v{V_HAD}, {WS_H}, v{V_OUT}')
    a.e(f'v_lshlrev_b32 v{V_B2}, 1, v7')


def gemm2_tail_loads(fill):
    fill.append(f'buffer_load_dwordx4 v[{V_HR}:{V_HR+3}], v{V_HAD}, {WSR}, 0 offen sc1')
    fill.append(f's_mov_b32 s70, {8*896}')
    fill.append(f'buffer_load_dwordx4 v[{V_HR+4}:{V_HR+7}], v{V_HAD}, {WSR}, s70 offen sc1')
    fill.append(f'buffer_load_ushort v{V_HR+8}, v{V_B2}, s[{S_T3}:{S_T3+3}], 0 offen')
    fill.append(f'buffer_load_ushort v{V_HR+9}, v{V_B2}, s[{S_T3}:{S_T3+3}], 0 offen offset:16')
    return 4


def gemm2_epilogue(a):
    write_partials(a)
    a.e('v_lshrrev_b32 v4, 3, v1')
    a.e('v_and_b32 v5, 7, v1')
    a.e(f's_lshl_b32 s66, s{S_W}, 4')
    a.e('v_add_u32 v4, s66, v4')
    a.e(f'v_mul_u32_u24 v6, {PROW}, v4')
    a.e('v_lshl_add_u32 v6, v5, 4, v6')
    a.e(f'v_add_u32 v6, {L_PART}, v6')
    a.e('s_waitcnt lgkmcnt(0)')
    a.e('s_barrier')
    stamp(a, 33)
    for r in range(2):
        P = 16 + 32 * r
        for wv in range(4):
            a.e(f'ds_read_b128 v[{P+8*wv}:{P+8*wv+3}], v6 offset:{wv*PARTW + r*8*PROW}')
            a.e(f'ds_read_b128 v[{P+8*wv+4}:{P+8*wv+7}], v6 offset:{wv*PARTW + r*8*PROW + 112}')
    a.e('s_waitcnt vmcnt(0)')
    for r in range(2):
        P = 16 + 32 * r
        T = 80
        H = V_HR + 4 * r
        a.e(f'v_lshlrev_b32 v106, 16, v{V_HR+8+r}')
        for i in range(4):
            a.e(f'v_lshlrev_b32 v{96+i}, 16, v{H+i}')
            a.e(f'v_and_b32 v{100+i}, 0xffff0000, v{H+i}')
        a.e(f's_waitcnt lgkmcnt({8 if r == 0 else 0})')
        sum_partials(a, P)
        round_pairs(a, P, T, 8)
        for h in range(4):
            a.e(f'v_pk_add_f32 v[{P+2*h}:{P+2*h+1}], v[{P+2*h}:{P+2*h+1}], v[106:107] op_sel:[0,0] op_sel_hi:[1,0]')
        round_pairs(a, P, T, 8)
        for h in range(4):
            a.e(f'v_pk_add_f32 v[{P+2*h}:{P+2*h+1}], v[{P+2*h}:{P+2*h+1}], v[{96+2*h}:{97+2*h}]')
        O = 88 + 4 * r
        for i in range(4):
            a.e(f'v_cvt_pk_bf16_f32 v{O+i}, v{P+i}, v{P+4+i}')
        if r == 1:
            a.e(f'v_add_u32 v{V_OUT}, {8*896}, v{V_OUT}')
        a.e(f'buffer_store_dwordx4 v[{O}:{O+3}], v{V_OUT}, s[{S_T2}:{S_T2+3}], 0 offen' + ['', ' sc1', ' nt', ' sc0 sc1', ' sc1 nt'][OPT['outsc']])


def build():
    a = Prog()
    name = NAME + '_kernel'
    lend = a.lab('end')
    a.raw(f'.globl {name}')
    a.raw('.p2align 8')
    a.raw(f'.type {name},@function')
    a.raw(f'{name}:')
    prologue(a, lend)
    lnc1, lnc2, lnc3, lnc5, lnc6 = [a.lab('noconv') for _ in range(5)]

    def skip_if_helper(l):
        a.e(f's_cmp_ge_u32 s{S_LOC}, 28')
        a.e(f's_cbranch_scc1 {l}')

    load_xrows(a)
    ncp = 0
    if OPT['cpf'] & 2:
        code_prefetch1(a, name, 'kcode_end')
        ncp = 1
    a.e(f's_add_u32 s66, s{P_WS}, {WS_EPOCH}')
    a.e(f's_addc_u32 s67, s{P_WS+1}, 0')
    a.e('s_load_dword s99, s[66:67], 0')
    poison_regs(a)
    skip_if_helper(lnc1)
    kgen_loads(a)
    load_gather_table(a, 'ktab_idx')
    w_setup(a)
    nt = 0
    if OPT['tlb'] & 2:
        nt = tlb_touch(a)
    flag_addr(a)
    a.e('s_waitcnt lgkmcnt(0)')
    a.e(f's_add_u32 s{S_TAG}, s99, 0x9e3779b9')
    a.e(f's_waitcnt vmcnt({10 + nt + ncp})')
    stamp(a, 2)
    clear_hh(a)
    clear_aout(a)
    ln_stats(a, list(range(8, 16)), 16, L_RED0, 5)
    stamp(a, 3)
    publish_xn(a)
    nb0 = OPT['wb0']
    if OPT['sched'] == 2:
        qa, qb = OPT['qa'], OPT['qb']
        qpf_load(a, qa)
        stamp(a, 4)
        a.e(f's_waitcnt vmcnt({8 + nt + qa})')
        kgen_channel(a, 0, DK0)
        for k in range(nb0):
            w_dma(a, 1, k, BS[k])
        stamp(a, 40)
        kgen_channel(a, 1, DK1, mid=lambda: publish_flag(a, qa + 4 * nb0), mid_m0=False)
        stamp(a, 5)
        qpf_load(a, qb)
        a.e(f's_waitcnt vmcnt({qb})')
        for k in range(nb0):
            w_tr(a, k, BS[k])
        ktab_part1(a)
        stamp(a, 6)
        flag_load(a)
        ktab_part2(a)
        stamp(a, 7)
        a.e(f's_mov_b32 s{S_EARLY}, 0')
        lne = a.lab('notearly')
        a.e('s_waitcnt vmcnt(0)')
        a.e(f'v_cmp_ne_u32 vcc, s{S_TAG}, v{V_FV}')
        a.e(f's_cbranch_vccnz {lne}')
        load_u(a)
        a.e(f's_mov_b32 s{S_EARLY}, 1')
        a.e(f'{lne}:')
        conv_addr(a)
        kcopies(a)
        stamp(a, 8)
        lhave = a.lab('haveu')
        a.e(f's_cmp_lg_u32 s{S_EARLY}, 0')
        a.e(f's_cbranch_scc1 {lhave}')
        flag_poll(a)
        load_u(a)
        a.e(f'{lhave}:')
        stamp(a, 9)
        store_u(a, 0)
    elif OPT['sched'] == 3:
        nq = (448 - OPT['hR']) // 32
        stamp(a, 4)
        a.e(f's_waitcnt vmcnt({8 + nt})')
        kgen_channel(a, 0, DK0)
        publish_flag(a)
        for k in range(nb0):
            w_dma(a, 1, k, BS[k])
        stamp(a, 40)
        kgen_channel(a, 1, DK1)
        stamp(a, 5)
        flag_load(a)
        qpf_load(a, nq)
        a.e(f's_waitcnt vmcnt({nq + 1})')
        for k in range(nb0):
            w_tr(a, k, BS[k])
        ktab_part1(a)
        stamp(a, 6)
        a.e(f's_mov_b32 s{S_EARLY}, 0')
        lne = a.lab('notearly')
        a.e(f's_waitcnt vmcnt({nq})')
        a.e(f'v_cmp_ne_u32 vcc, s{S_TAG}, v{V_FV}')
        a.e(f's_cbranch_vccnz {lne}')
        load_u(a)
        a.e(f's_mov_b32 s{S_EARLY}, 1')
        a.e(f'{lne}:')
        ktab_part2(a)
        stamp(a, 7)
        conv_addr(a)
        kcopies(a)
        stamp(a, 8)
        lhave = a.lab('haveu')
        a.e(f's_cmp_lg_u32 s{S_EARLY}, 0')
        a.e(f's_cbranch_scc1 {lhave}')
        flag_poll(a)
        load_u(a)
        a.e(f'{lhave}:')
        stamp(a, 9)
        store_u(a, 0)
    else:
        stamp(a, 4)
        a.e(f's_waitcnt vmcnt({8 + nt})')
        kgen_channel(a, 0, DK0)
        publish_flag(a)
        for k in range(min(nb0, 3)):
            w_dma(a, 1, k, BS[k])
        stamp(a, 40)
        kgen_channel(a, 1, DK1, mid=(lambda: [w_dma(a, 1, k, BS[k]) for k in range(3, nb0)]) if nb0 > 3 else None)
        stamp(a, 5)
        if OPT['early']:
            flag_load(a)
            a.e('s_waitcnt vmcnt(1)')
        else:
            a.e('s_waitcnt vmcnt(0)')
        for k in range(nb0):
            w_tr(a, k, BS[k])
        ktab_part1(a)
        stamp(a, 6)
        a.e(f's_mov_b32 s{S_EARLY}, 0')
        lne = a.lab('notearly')
        if OPT['early']:
            a.e('s_waitcnt vmcnt(0)')
            a.e(f'v_cmp_ne_u32 vcc, s{S_TAG}, v{V_FV}')
            a.e(f's_cbranch_vccnz {lne}')
            load_u(a)
            a.e(f's_mov_b32 s{S_EARLY}, 1')
            a.e(f'{lne}:')
        qpf_load(a, OPT['w2pf_a'])
        ktab_part2(a)
        stamp(a, 7)
        conv_addr(a)
        kcopies(a)
        stamp(a, 8)
        lhave = a.lab('haveu')
        a.e(f's_cmp_lg_u32 s{S_EARLY}, 0')
        a.e(f's_cbranch_scc1 {lhave}')
        flag_poll(a)
        load_u(a)
        a.e('s_waitcnt vmcnt(0)')
        a.e(f'{lhave}:')
        stamp(a, 9)
        store_u(a, OPT['w2pf_a'])
    epoch_update(a)
    clear_g(a)
    if OPT['sched'] == 1:
        qpf_load(a, OPT['w2pf_b'])
    stamp(a, 10)
    hk = []
    for k in range(4):
        for i in range(4):
            hk.append(lambda k=k, i=i: w_dma1(a, 1, nb0 + k, AS[k], i))
            hk.append(lambda: None)
    phase_conv(a, hk, 0)
    stamp(a, 12)
    for k in range(4):
        w_tr(a, nb0 + k, AS[k])
    a.e('s_waitcnt lgkmcnt(0)')
    a.e('s_barrier')
    rest = list(range(nb0 + 4, 16))
    rest_slots = (BS + AS)[:len(rest)]
    for k, sl in zip(rest, rest_slots):
        w_dma(a, 1, k, sl)
    stamp(a, 13)
    a.e(f's_branch {lnc2}')
    a.e(f'{lnc1}:')
    nh = 0
    if OPT['cpf'] & 1:
        code_prefetch(a, name, 'kcode_end')
        nh += 2
    w_setup(a)
    if OPT['tlb'] & 1:
        nh += tlb_touch(a)
    flag_addr(a)
    a.e('s_waitcnt lgkmcnt(0)')
    a.e(f's_add_u32 s{S_TAG}, s99, 0x9e3779b9')
    a.e(f's_waitcnt vmcnt({nh + ncp})')
    clear_hh(a)
    ln_stats(a, list(range(8, 16)), 16, L_RED0, 5)
    publish_xn(a)
    publish_flag(a)
    if OPT['sched'] == 3:
        qpf_load(a, (448 - OPT['hR']) // 32)
        helper_w2(a, OPT['hR'])
    else:
        qpf_load(a, 14)
    stamp(a, 41)
    flag_poll(a)
    a.e('s_barrier')
    stamp(a, 42)
    a.e(f'{lnc2}:')
    phase_p4(a)
    stamp(a, 20)
    gemm2_addr(a)
    skip_if_helper(lnc3)
    b1_load(a)
    for k, sl in zip(rest, rest_slots):
        w_tr(a, k, sl)
    a.e('s_waitcnt lgkmcnt(0)')
    for k in range(5):
        w_dma(a, 2, k, BS[k])
    stamp(a, 21)
    gemm_poll_main(a, WS_HH, 64, 16, 1, 22)
    stamp(a, 23)
    if OPT['h4early']:
        for k in range(5):
            w_tr(a, k, BS[k])
        a.e('s_waitcnt lgkmcnt(0)')
        for k in range(5, 8):
            w_dma(a, 2, k, BS[k - 5])
        gemm1_epilogue(a)
        stamp(a, 25)
        a.e('s_barrier')
        for k in range(8, 10):
            w_dma(a, 2, k, BS[k - 5])
        for k in range(10, 14):
            w_dma(a, 2, k, AS[k - 10])
        a.e('s_waitcnt vmcnt(26)')
        for k in range(5, 8):
            w_tr(a, k, BS[k - 5])
        a.e('s_waitcnt vmcnt(16)')
        for k in range(8, 10):
            w_tr(a, k, BS[k - 5])
        a.e('s_waitcnt vmcnt(0)')
        for k in range(10, 14):
            w_tr(a, k, AS[k - 10])
        a.e('s_waitcnt lgkmcnt(0)')
        a.e(f's_branch {lnc6}')
    else:
        gemm1_epilogue(a)
        stamp(a, 25)
        for k in range(5):
            w_tr(a, k, BS[k])
        a.e('s_waitcnt lgkmcnt(0)')
        a.e('s_barrier')
        a.e(f's_branch {lnc5}')
    a.e(f'{lnc3}:')
    for k in range(5):
        w_dma(a, 2, k, BS[k])
    a.e('s_waitcnt vmcnt(0)')
    for k in range(5):
        w_tr(a, k, BS[k])
    a.e('s_waitcnt lgkmcnt(0)')
    a.e(f'{lnc5}:')
    for k in range(5, 10):
        w_dma(a, 2, k, BS[k - 5])
    for k in range(10, 14):
        w_dma(a, 2, k, AS[k - 10])
    a.e('s_waitcnt vmcnt(16)')
    for k in range(5, 10):
        w_tr(a, k, BS[k - 5])
    a.e('s_waitcnt vmcnt(0)')
    for k in range(10, 14):
        w_tr(a, k, AS[k - 10])
    a.e('s_waitcnt lgkmcnt(0)')
    a.e(f'{lnc6}:')
    stamp(a, 30)
    gemm_poll_main(a, WS_G, 56, 14, 2, 31, gemm2_tail_loads)
    stamp(a, 32)
    gemm2_epilogue(a)
    stamp_clk(a, 61)
    stamp(a, 63)
    stamp_flush(a)
    a.e(f'{lend}:')
    a.e('s_endpgm')
    a.raw('kcode_end:')
    emit_gather_table(a, 'ktab_idx')
    nn = a.fast_insert_nops()
    head = f'; @launch grid=(256,1,1) block=(256,1,1) lds={LDS_BYTES}\n'
    head += '.amdgcn_target "amdgcn-amd-amdhsa--gfx950"\n.text\n'
    tail = '.section .rodata,"a"\n.p2align 6\n' + descriptor(name)
    if OPT['align']:
        nal = a.align8(head, tail)
        sys.stderr.write(f'alignment: {nal}\n')
    sys.stderr.write(f'instructions: {a.count()}, nops inserted: {nn}\n')
    return head + a.text() + tail


if __name__ == '__main__':
    out = sys.argv[1]
    for arg in sys.argv[2:]:
        if arg == 'stamps':
            OPT['stamps'] = True
        elif arg == 'dbg':
            OPT['stamps'] = True
            OPT['dbgsel'] = [0, 1, 2, 4, 8, 9, 12, 13, 14, 20, 21, 23, 25, 30, 32, 63]
        elif '=' in arg:
            k, v = arg.split('=')
            OPT[k] = int(v)
    open(out, 'w').write(build())
```

```python
import re

REG_RE = re.compile(r'^(-|abs\()?\|?([vas])(?:\[(\d+):(\d+)\]|(\d+))\|?\)?$')


def parse_reg(tok):
    tok = tok.strip()
    if tok in ('vcc',):
        return [('s', 'vcc')]
    if tok in ('vcc_lo', 'vcc_hi'):
        return [('s', 'vcc')]
    if tok in ('exec', 'exec_lo', 'exec_hi'):
        return [('s', 'exec')]
    if tok == 'm0':
        return [('s', 'm0')]
    m = REG_RE.match(tok)
    if not m:
        return []
    k = m.group(2)
    if m.group(3) is not None:
        return [(k, i) for i in range(int(m.group(3)), int(m.group(4)) + 1)]
    return [(k, int(m.group(5)))]


TRANS = ('v_exp_f32', 'v_log_f32', 'v_rcp_f32', 'v_rsq_f32', 'v_sqrt_f32', 'v_sin_f32', 'v_cos_f32',
         'v_rcp_iflag_f32', 'v_exp_f16', 'v_rcp_f16')


class Ins:
    __slots__ = ('text', 'op', 'rd', 'wr', 'kind', 'ops', 'store_data', 'dpp', 'srcc', 'ab', 'passes', 'is_trans',
                 'label', 'target', 'lds_dma', 'sdwa_dst')

    def __init__(self, text):
        self.text = text
        self.label = None
        self.target = None
        self.rd = []
        self.wr = []
        self.store_data = []
        self.dpp = False
        self.srcc = []
        self.ab = []
        self.passes = 0
        self.is_trans = False
        self.lds_dma = False
        self.sdwa_dst = False
        t = text.split(';')[0].split('//')[0].strip()
        if not t:
            self.kind = 'nop0'
            self.op = ''
            return
        if t.endswith(':'):
            self.kind = 'label'
            self.label = t[:-1]
            self.op = ''
            return
        if t.startswith('.'):
            self.kind = 'dir'
            self.op = t.split()[0]
            return
        sp = t.split(None, 1)
        op = sp[0]
        self.op = op
        rest = sp[1] if len(sp) > 1 else ''
        ops = []
        depth = 0
        cur = ''
        for ch in rest:
            if ch == '[':
                depth += 1
            if ch == ']':
                depth -= 1
            if ch == ',' and depth == 0:
                ops.append(cur.strip())
                cur = ''
            else:
                cur += ch
        if cur.strip():
            ops.append(cur.strip())
        mods = ''
        if ops:
            last = ops[-1]
            depth = 0
            cut = None
            for i, ch in enumerate(last):
                if ch == '[':
                    depth += 1
                if ch == ']':
                    depth -= 1
                if ch in ' \t' and depth == 0:
                    cut = i
                    break
            if cut is not None:
                mods = last[cut:]
                ops[-1] = last[:cut]
        self.ops = ops
        R = [parse_reg(o) for o in ops]
        flat = lambda L: [x for l in L for x in l]
        base = op.replace('_e32', '').replace('_e64', '').replace('_dpp', '').replace('_sdwa', '')
        if op.startswith('v_mfma') or op.startswith('v_smfmac'):
            self.kind = 'mfma'
            self.wr = R[0]
            self.ab = R[1] + R[2]
            self.srcc = R[3] if len(R) > 3 else []
            self.rd = self.ab + self.srcc
            if '16x16x32' in op or '16x16x16' in op:
                self.passes = 4
            elif '32x32x16' in op or '32x32x8' in op:
                self.passes = 8
            else:
                self.passes = 16
        elif op.startswith('v_'):
            self.kind = 'valu'
            self.is_trans = base in TRANS
            self.dpp = ('_dpp' in op) or any(k in mods for k in ('row_', 'quad_perm', 'wave_'))
            if '_sdwa' in op and 'dst_sel' in mods and 'dst_sel:DWORD' not in mods:
                self.sdwa_dst = True
            if base.startswith('v_cmpx'):
                self.wr = R[0] + [('s', 'exec')]
                self.rd = flat(R[1:])
            elif base.startswith('v_cmp'):
                self.wr = R[0]
                self.rd = flat(R[1:])
            elif base in ('v_permlane32_swap_b32', 'v_permlane16_swap_b32'):
                self.wr = R[0] + R[1]
                self.rd = R[0] + R[1]
                self.kind = 'permlane'
            elif base in ('v_readlane_b32', 'v_readfirstlane_b32'):
                self.wr = R[0]
                self.rd = flat(R[1:])
                self.kind = 'readlane'
            elif base == 'v_writelane_b32':
                self.wr = R[0]
                self.rd = flat(R)
            elif base in ('v_add_co_u32', 'v_sub_co_u32', 'v_subrev_co_u32', 'v_addc_co_u32', 'v_subb_co_u32'):
                self.wr = R[0] + R[1]
                self.rd = flat(R[2:])
            elif base in ('v_fmac_f32', 'v_dot2c_f32_bf16', 'v_pk_fmac_f16', 'v_mac_f32'):
                self.wr = R[0]
                self.rd = flat(R)
            elif base == 'v_cndmask_b32':
                self.wr = R[0]
                self.rd = flat(R[1:])
                if len(R) < 4:
                    self.rd += [('s', 'vcc')]
            else:
                self.wr = R[0]
                self.rd = flat(R[1:])
                if self.dpp or self.sdwa_dst:
                    self.rd += R[0]
        elif op.startswith('ds_'):
            self.kind = 'ds'
            if op.startswith('ds_read') or op.startswith('ds_bpermute') or op.startswith('ds_permute') or op.startswith('ds_swizzle'):
                self.wr = R[0]
                self.rd = flat(R[1:])
                if 'd16' in op:
                    self.rd += R[0]
            else:
                self.rd = flat(R)
                self.store_data = flat(R[1:])
        elif op.startswith('buffer_') or op.startswith('global_') or op.startswith('flat_'):
            self.kind = 'vmem'
            words = mods.split()
            if op in ('buffer_wbl2', 'buffer_inv'):
                pass
            elif 'lds' in words or '_lds_' in op:
                self.lds_dma = True
                self.rd = flat(R) + [('s', 'm0')]
            elif op.startswith('buffer_load') :
                self.wr = R[0]
                self.rd = flat(R[1:])
                if 'd16' in op:
                    self.rd += R[0]
            elif op.startswith('global_load') or op.startswith('flat_load'):
                self.wr = R[0]
                self.rd = flat(R[1:])
                if 'd16' in op:
                    self.rd += R[0]
            elif op.startswith('buffer_store'):
                self.rd = flat(R)
                self.store_data = R[0]
            elif op.startswith('global_store') or op.startswith('flat_store'):
                self.rd = flat(R)
                self.store_data = R[1]
            elif 'atomic' in op:
                if 'sc0' in words:
                    self.wr = R[0]
                    self.rd = flat(R[1:]) if op.startswith('global') else flat(R)
                else:
                    self.rd = flat(R)
            else:
                raise ValueError('unknown vmem ' + text)
        elif op.startswith('s_'):
            self.kind = 'salu'
            if op in ('s_branch',) or op.startswith('s_cbranch'):
                self.kind = 'branch'
                self.target = ops[0]
                if 'vcc' in op:
                    self.rd = [('s', 'vcc')]
                if 'exec' in op:
                    self.rd = [('s', 'exec')]
            elif op == 's_nop':
                self.kind = 'snop'
            elif op in ('s_waitcnt', 's_barrier', 's_endpgm', 's_sleep', 's_setprio'):
                self.kind = 'sctl'
            elif op.startswith('s_cmp') or op.startswith('s_bitcmp'):
                self.rd = flat(R)
            elif op.startswith('s_load') or op.startswith('s_buffer_load') or op in ('s_memtime', 's_memrealtime'):
                self.kind = 'smem'
                self.wr = R[0]
                self.rd = flat(R[1:])
            else:
                self.wr = R[0] if R else []
                self.rd = flat(R[1:])
                if 'saveexec' in op:
                    self.wr = R[0] + [('s', 'exec')]
                    self.rd = flat(R[1:]) + [('s', 'exec')]
        else:
            raise ValueError('unknown instruction: ' + text)

    def states(self):
        if self.kind in ('label', 'nop0', 'dir'):
            return 0
        if self.kind == 'snop':
            return int(self.ops[0], 0) + 1
        return 1


def isv(r):
    return r[0] in ('v', 'a')


def need_wait(p, c):
    n = 0
    pw = set(p.wr)
    if not pw and not p.store_data and p.kind != 'mfma':
        return 0
    crd = set(c.rd)
    cwr = set(c.wr)
    valu_p = p.kind in ('valu', 'permlane', 'readlane')
    valu_c = c.kind in ('valu', 'permlane', 'readlane')
    if valu_p:
        vw = {r for r in pw if isv(r)}
        sw = {r for r in pw if r[0] == 's'}
        if c.kind == 'mfma' and vw & crd:
            n = max(n, 2)
        if c.kind == 'mfma' and ('s', 'exec') in sw:
            n = max(n, 4)
        if valu_c and c.dpp and (vw & crd):
            n = max(n, 2)
        if valu_c and c.dpp and ('s', 'exec') in sw:
            n = max(n, 5)
        if c.kind == 'permlane' and (vw & crd):
            n = max(n, 2)
        if c.kind == 'permlane' and ('s', 'exec') in sw:
            n = max(n, 4)
        if c.kind == 'readlane' and (vw & crd):
            n = max(n, 1)
        if c.kind == 'readlane' and ('s', 'exec') in sw:
            n = max(n, 4)
        if p.is_trans and valu_c and (vw & crd):
            n = max(n, 1)
        if p.is_trans and c.kind == 'mfma' and (vw & crd):
            n = max(n, 2)
        if p.sdwa_dst and valu_c and (vw & (crd | cwr)):
            n = max(n, 1)
        if sw:
            if c.kind == 'vmem' and (sw & crd):
                n = max(n, 5)
            if valu_c and (sw & crd):
                if c.kind == 'readlane' or c.op.startswith('v_writelane'):
                    n = max(n, 4)
                else:
                    n = max(n, 2)
            if valu_c and ('s', 'exec') in sw and not p.op.startswith('v_cmpx'):
                n = max(n, 2)
            if c.kind in ('salu', 'branch', 'smem') and (sw & crd):
                n = max(n, 4)
    if p.kind == 'salu':
        if ('s', 'm0') in pw and (c.lds_dma or c.op.startswith('s_sendmsg')):
            n = max(n, 1)
    if p.kind == 'mfma':
        d = pw
        P = p.passes
        dist_valu = {2: 5, 4: 8, 8: 12, 16: 20}[P]
        if c.kind == 'mfma':
            cs = set(c.srcc)
            if d & cs:
                if cs == d and c.passes == P:
                    n = max(n, 2 if P == 2 else 0)
                else:
                    n = max(n, {2: 4, 4: 6, 8: 10, 16: 18}[P])
            if d & set(c.ab):
                n = max(n, dist_valu)
            if (d & cwr) and not (d & cs):
                n = max(n, dist_valu)
        elif valu_c:
            if d & (crd | cwr):
                n = max(n, dist_valu)
        elif c.kind in ('vmem', 'ds'):
            if d & (crd | cwr):
                n = max(n, dist_valu)
        if valu_c and (set(p.srcc) & cwr):
            n = max(n, {2: 1, 4: 3, 8: 7, 16: 15}[P])
    if p.store_data and p.kind == 'vmem' and len(p.store_data) >= 3:
        if valu_c and (set(p.store_data) & cwr):
            n = max(n, 2)
        elif c.kind in ('vmem', 'ds', 'mfma') and (set(p.store_data) & cwr):
            n = max(n, 1)
    if p.store_data and p.kind == 'ds' and len(p.store_data) >= 3:
        if valu_c and (set(p.store_data) & cwr):
            n = max(n, 1)
    return n


MAXLOOK = 22


class Prog:
    def __init__(self):
        self.items = []
        self.nlab = 0
        self.inj = []
        self.inj_off = 0
        self.inj_every = 1
        self.inj_cnt = 0

    def e(self, text):
        for line in text.split('\n'):
            line = line.strip()
            if line:
                it = Ins(line)
                self.items.append(it)
                if self.inj and not self.inj_off and it.kind == 'valu':
                    self.inj_cnt += 1
                    if self.inj_cnt >= self.inj_every:
                        self.inj_cnt = 0
                        h = self.inj.pop(0)
                        self.inj_off += 1
                        h()
                        self.inj_off -= 1

    def inject(self, hooks, every):
        assert not self.inj
        self.inj = list(hooks)
        self.inj_every = every
        self.inj_cnt = 0

    def inj_pause(self):
        self.inj_off += 1

    def inj_resume(self):
        self.inj_off -= 1

    def inj_flush(self):
        self.inj_off += 1
        while self.inj:
            self.inj.pop(0)()
        self.inj_off -= 1

    def raw(self, text):
        i = Ins('')
        i.text = text
        i.kind = 'dir'
        self.items.append(i)

    def lab(self, prefix='L'):
        self.nlab += 1
        return '%s_%d' % (prefix, self.nlab)

    def insert_nops(self):
        changed = True
        total = 0
        while changed:
            changed = False
            items = self.items
            labels = {it.label: i for i, it in enumerate(items) if it.kind == 'label'}
            br_to = {}
            for i, it in enumerate(items):
                if it.kind == 'branch' and it.target in labels:
                    br_to.setdefault(labels[it.target], []).append(i)
            out = []
            for i, c in enumerate(items):
                if c.kind in ('label', 'nop0', 'dir', 'snop'):
                    continue
                need = self._need(i, items, br_to)
                if need > 0:
                    k = need
                    new = []
                    while k > 0:
                        m = min(k, 16)
                        new.append(Ins('s_nop %d' % (m - 1)))
                        k -= m
                    self.items = items[:i] + new + items[i:]
                    total += need
                    changed = True
                    break
        return total

    def _need(self, i, items, br_to):
        c = items[i]
        worst = 0
        stack = [(i - 1, 0)]
        seen = set()
        while stack:
            j, dist = stack.pop()
            while j >= 0 and dist < MAXLOOK:
                it = items[j]
                if (j, dist) in seen:
                    break
                seen.add((j, dist))
                if it.kind == 'label':
                    for b in br_to.get(j, []):
                        stack.append((b, dist))
                    j -= 1
                    continue
                if it.kind in ('nop0', 'dir'):
                    j -= 1
                    continue
                if it.op in ('s_branch', 's_endpgm') and j != i - 1 or (it.op in ('s_endpgm',)):
                    if it.op == 's_endpgm':
                        break
                w = need_wait(it, c)
                if w > dist:
                    worst = max(worst, w - dist)
                dist += it.states()
                j -= 1
        return worst

    def fast_insert_nops(self):
        total = 0
        while True:
            items = self.items
            labels = {it.label: i for i, it in enumerate(items) if it.kind == 'label'}
            br_to = {}
            for i, it in enumerate(items):
                if it.kind == 'branch' and it.target in labels:
                    br_to.setdefault(labels[it.target], []).append(i)
            ins = {}
            out = []
            added = 0
            any_added = False
            for i, c in enumerate(items):
                if c.kind not in ('label', 'nop0', 'dir', 'snop'):
                    need = self._need(i, items, br_to)
                    if need > 0 and not any_added:
                        ins[i] = need
                        any_added = True
                        last = i
                    elif need > 0 and i - last > 2 * MAXLOOK:
                        ins[i] = need
                        last = i
            if not ins:
                return total
            for i, c in enumerate(items):
                if i in ins:
                    k = ins[i]
                    total += k
                    while k > 0:
                        m = min(k, 16)
                        out.append(Ins('s_nop %d' % (m - 1)))
                        k -= m
                out.append(c)
            self.items = out

    def text(self):
        lines = []
        for it in self.items:
            if it.kind == 'label':
                lines.append(it.text)
            elif it.kind == 'dir':
                lines.append(it.text)
            else:
                lines.append('    ' + it.text)
        return '\n'.join(lines) + '\n'

    def count(self):
        return sum(1 for it in self.items if it.kind not in ('label', 'nop0', 'dir'))


def _sizes(self, head, tail):
    import subprocess, tempfile, os, re
    d = tempfile.mkdtemp()
    sp, op = os.path.join(d, 'x.s'), os.path.join(d, 'x.o')
    open(sp, 'w').write(head + self.text() + tail)
    r = subprocess.run(['clang', '-x', 'assembler', '-target', 'amdgcn-amd-amdhsa', '-mcpu=gfx950', '-c', sp, '-o', op],
                       capture_output=True, text=True)
    assert r.returncode == 0, r.stderr[:2000]
    o = subprocess.run(['llvm-objdump', '-d', '--mcpu=gfx950', op], capture_output=True, text=True).stdout
    sizes = []
    for line in o.split('\n'):
        m = re.search(r'// ([0-9A-F]{12}): ([0-9A-F ]+)$', line.rstrip())
        if m:
            sizes.append(4 * len(m.group(2).split()))
    return sizes


E64_OK = ('v_add_u32', 'v_sub_u32', 'v_subrev_u32', 'v_lshlrev_b32', 'v_lshrrev_b32', 'v_and_b32', 'v_or_b32', 'v_xor_b32', 'v_mov_b32',
          'v_add_f32', 'v_sub_f32', 'v_mul_f32', 'v_max_f32', 'v_min_f32', 'v_exp_f32', 'v_rcp_f32', 'v_sqrt_f32', 'v_sin_f32',
          'v_cos_f32', 'v_fract_f32', 'v_mul_u32_u24', 'v_max_u32', 'v_min_u32', 'v_not_b32', 'v_ashrrev_i32')


def align8(self, head, tail):
    sizes = _sizes(self, head, tail)
    real = [it for it in self.items if it.kind not in ('label', 'nop0', 'dir')]
    n = len(real)
    assert len(sizes) >= n, (len(sizes), n)
    sizes = sizes[:n]
    off = 0
    widened = padded = left = 0
    out = []
    idx = 0
    last4 = None
    for it in self.items:
        if it.kind in ('label', 'nop0', 'dir'):
            if it.kind == 'dir' and 'p2align' in it.text:
                off = 0
            if it.kind == 'label':
                last4 = None
            out.append(it)
            continue
        sz = sizes[idx]
        idx += 1
        if sz % 8 == 0 and off % 8 == 4:
            if last4 is not None:
                p, w = last4
                op = w.op
                out[p] = Ins(w.text.replace(op, op + '_e64', 1))
                off += 4
                widened += 1
                last4 = None
            else:
                run = 0
                j = idx - 1
                while j < n and sizes[j] % 8 == 0:
                    run += 1
                    j += 1
                if run >= 5:
                    out.append(Ins('s_nop 0'))
                    off += 4
                    padded += 1
                else:
                    left += run
        if sz == 4:
            if it.kind == 'valu' and it.op in E64_OK and not it.dpp:
                last4 = (len(out), it)
            elif off % 8 == 0:
                last4 = None if it.kind in ('branch',) else last4
        elif sz % 8 == 4:
            pass
        if sz % 8 == 0 and off % 8 == 0:
            last4 = None
        out.append(it)
        off += sz
    self.items = out
    return dict(widened=widened, padded=padded, left=left)


Prog.align8 = align8
```

```python
import sys
import gen
from gen import (Prog, NAME, L, D, F, XBYTES, PBYTES, W1BYTES, W2BYTES, OOB, fx, srd, reduce16, cmul, exp_bf16,
                 gather_table, emit_gather_table, descriptor, round_pairs, norm_tok, bcast_stats)

OPT = dict(p4dma=0, p4ev=6, e1dma=0, plate=0, cearly=0, q4=4, hpriv=1, regc=1, hR=256, c4=1, kgrp=3, tlbg=21, cpf=1, sched=3, qa=7, qb=7, tlb=3, outsc=0, x3oob=1, h4early=1, wb0=3, xnb=1, stamps=False, dbgsel=None, w2pf_a=10, w2pf_b=4, nfl=3, early=True, align=True, hlds=True)

WS_FLAG = 0x4000
WS_EPOCH = 0x9000
WS_AOUT = 0x10000
AST = 8448
WS_H = 0x200000
WS_HH = 0x400000
WS_G = 0x600000
WS_DBG = 0x800000
WS_XN = 0xA00000
XCS = 4352
XPS = 2 * XCS
WS_USED = 0x1000000

L_RED0, L_RED1, L_SIG, L_KT = 0, 256, 512, 640
KTCH = 1600
L_U = L_KT + 2 * KTCH
UCH = 4608
L_SCR = L_U + 2 * UCH
SROW = 272
YROW = 41
SCRW = 57 * SROW
L_KC = 82688
KCOPY = 4160
KCH = 8 * KCOPY
L_CP = L_KC
LDS_BYTES = 160 * 1024
L_WA, L_WB = 13056, 78592
L_WC = 123904
L_PART = 1024
PROW = 272
PARTW = 64 * PROW
L_HT = 1024

S_WS, S_X = 4, 8
S_T0, S_T1, S_T2, S_T3 = 12, 16, 20, 24
S_W1, S_W2 = 12, 16
S_W, S_XCD, S_LOC, S_B, S_P, S_J, S_I1, S_I2 = 28, 29, 30, 31, 32, 33, 34, 35
P_X, P_LAR, P_AI, P_CR, P_CI, P_LDT, P_DSK = 36, 38, 40, 42, 44, 46, 48
P_W1, P_B1, P_W2, P_B2, P_OUT, P_DBG, P_WS = 52, 54, 56, 58, 60, 62, 64
S_SA, S_SB = 50, 51
S_RW1, S_RX1, S_RW2, S_RX2 = 38, 39, 40, 41
S_QPF = 42
S_EARLY = 43
S_SC = 44
V_TC = 236
S_TAG, S_SPIN, S_RETRY = 96, 97, 98
V_D1, V_D2, V_TA, V_TB = 224, 228, 244, 248
V_QPF = 232
SPIN_MAX, RETRY_MAX = 4000, 20
AS = ['A0', 'A1', 'A2', 'A3']
BS = ['B0', 'B1', 'B2', 'B3', 'B4']
WSR = f's[{S_WS}:{S_WS+3}]'

assert (gen.S_W, gen.S_B, gen.S_WS) == (S_W, S_B, S_WS)


def stamp(a, idx):
    if not OPT['stamps']:
        return
    sel = OPT['dbgsel']
    if sel is not None:
        if idx not in sel:
            return
        idx = sel.index(idx)
    a.e('s_memrealtime s[100:101]')
    a.e('s_waitcnt lgkmcnt(0)')
    a.e(f'v_writelane_b32 v255, s100, {idx}')


def stamp_clk(a, idx):
    if not OPT['stamps'] or OPT['dbgsel'] is not None:
        return
    a.e('s_memtime s[100:101]')
    a.e('s_waitcnt lgkmcnt(0)')
    a.e(f'v_writelane_b32 v255, s100, {idx}')


def stamp_flush(a):
    if not OPT['stamps']:
        return
    l = a.lab('nost')
    a.e(f's_cmp_lg_u32 s{S_W}, 0')
    a.e(f's_cbranch_scc1 {l}')
    if OPT['dbgsel'] is not None:
        a.e('v_not_b32 v253, v255')
        a.e('v_cmp_eq_u32 vcc, 0, v1')
        a.e('v_cndmask_b32 v255, v255, v253, vcc')
        a.e('v_lshlrev_b32 v254, 2, v1')
        a.e('s_mov_b64 exec, 0xffff')
        a.e(f'global_atomic_umax v254, v255, s[{P_DBG}:{P_DBG+1}]')
        a.e('s_mov_b64 exec, -1')
    else:
        a.e('s_lshl_b32 s66, s2, 8')
        a.e(f's_add_u32 s66, s66, {WS_DBG}')
        a.e('v_lshl_add_u32 v254, v1, 2, s66')
        a.e(f'buffer_store_dword v255, v254, {WSR}, 0 offen')
    a.e(f'{l}:')


def spin_tail(a, lp):
    a.e(f's_add_u32 s{S_SPIN}, s{S_SPIN}, 1')
    a.e(f's_cmp_lt_u32 s{S_SPIN}, {SPIN_MAX}')
    a.e(f's_cbranch_scc1 {lp}')


def mask_lanes(a, v, n, tmp, src='v1'):
    a.e(f'v_mov_b32 v{tmp}, {OOB}')
    a.e(f'v_cmp_gt_u32 vcc, {n}, {src}')
    a.e(f'v_cndmask_b32 v{v}, v{tmp}, v{v}, vcc')


def prologue(a, lend):
    a.e('s_cmp_ge_u32 s2, 256')
    a.e(f's_cbranch_scc1 {lend}')
    if OPT['stamps']:
        a.e('v_mov_b32 v255, 0')
        stamp(a, 0)
        stamp_clk(a, 60)
    a.e('s_load_dwordx16 s[36:51], s[0:1], 0')
    a.e('s_load_dwordx8 s[52:59], s[0:1], 64')
    a.e('s_load_dwordx4 s[60:63], s[0:1], 96')
    a.e('s_load_dwordx2 s[64:65], s[0:1], 112')
    a.e('v_and_b32 v1, 63, v0')
    a.e('v_lshrrev_b32 v2, 6, v0')
    a.e(f's_and_b32 s{S_XCD}, s2, 7')
    a.e(f'v_readfirstlane_b32 s{S_W}, v2')
    a.e(f's_lshr_b32 s{S_LOC}, s2, 3')
    a.e(f's_lshl_b32 s{S_B}, s{S_XCD}, 5')
    a.e(f's_add_u32 s{S_B}, s{S_B}, s{S_LOC}')
    a.e(f's_mul_i32 s{S_P}, s{S_XCD}, 28')
    a.e(f's_add_u32 s{S_P}, s{S_P}, s{S_LOC}')
    a.e(f's_and_b32 s{S_J}, s{S_XCD}, 1')
    a.e(f's_lshl_b32 s{S_J}, s{S_J}, 2')
    a.e(f's_and_b32 s3, s{S_LOC}, 3')
    a.e(f's_add_u32 s{S_J}, s{S_J}, s3')
    a.e(f's_lshr_b32 s3, s{S_XCD}, 1')
    a.e(f's_lshr_b32 s66, s{S_LOC}, 2')
    a.e(f's_mul_i32 s{S_I1}, s3, 7')
    a.e(f's_add_u32 s{S_I1}, s{S_I1}, s66')
    a.e(f's_lshl_b32 s{S_I2}, s3, 3')
    a.e(f's_add_u32 s{S_I2}, s{S_I2}, s66')
    a.e('s_waitcnt lgkmcnt(0)')
    srd(a, S_X, P_X, XBYTES)
    srd(a, S_WS, P_WS, WS_USED)
    stamp(a, 1)


def xrow_addr(a):
    a.e(f's_mul_i32 s66, s{S_W}, 224')
    a.e(f's_mul_i32 s67, s{S_B}, {8*896}')
    a.e('s_add_u32 s66, s66, s67')
    a.e('v_lshl_add_u32 v2, v1, 2, s66')
    mask_lanes(a, 2, 56, 3)
    a.e('v_add_u32 v3, 4480, v2')


def load_xrows(a):
    xrow_addr(a)
    for j in range(8):
        v, o = (2, j * 896) if j < 5 else (3, (j - 5) * 896)
        a.e(f'buffer_load_dword v{8+j}, v{v}, s[{S_X}:{S_X+3}], 0 offen offset:{o}')


def ln_stats(a, X, T, red, vt, mid=None):
    a.e('s_mov_b32 s66, 0x3f803f80')
    for j in range(8):
        a.e(f'v_dot2_f32_bf16 v{T+j}, v{X[j]}, s66, 0')
        a.e(f'v_dot2_f32_bf16 v{T+8+j}, v{X[j]}, v{X[j]}, 0')
    a.e(f'v_lshlrev_b32 v{vt}, 2, v1')
    a.e(f'v_and_b32 v{vt}, 0xf0, v{vt}')
    a.e(f's_lshl_b32 s66, s{S_W}, 2')
    a.e(f'v_add_u32 v{vt}, s66, v{vt}')
    reduce16(a, [T + i for i in range(16)])
    a.inj_pause()
    a.e('s_mov_b32 exec_lo, 0x11111111')
    a.e('s_mov_b32 exec_hi, 0x11111111')
    a.e(f'ds_write_b32 v{vt}, v{T} offset:{red}')
    a.e('s_mov_b64 exec, -1')
    a.inj_resume()
    a.e(f'v_and_b32 v{vt}, 7, v1')
    a.e(f'v_lshlrev_b32 v{vt}, 4, v{vt}')
    a.e('s_waitcnt lgkmcnt(0)')
    a.e('s_barrier')
    a.e(f'ds_read_b128 v[{T}:{T+3}], v{vt} offset:{red}')
    a.e(f'ds_read_b128 v[{T+4}:{T+7}], v{vt} offset:{red+128}')
    n_mid = mid() if mid else 0
    a.e(f's_waitcnt lgkmcnt({1 + n_mid})')
    a.e(f'v_pk_add_f32 v[{T}:{T+1}], v[{T}:{T+1}], v[{T+2}:{T+3}]')
    a.e(f's_waitcnt lgkmcnt({n_mid})')
    a.e(f'v_pk_add_f32 v[{T+4}:{T+5}], v[{T+4}:{T+5}], v[{T+6}:{T+7}]')
    a.e(f'v_add_f32 v{T}, v{T}, v{T+1}')
    a.e(f'v_add_f32 v{T+4}, v{T+4}, v{T+5}')
    a.e(f'v_mul_f32 v{T}, {fx(1.0/448)}, v{T}')
    a.e(f'v_mul_f32 v{T+4}, {fx(1.0/448)}, v{T+4}')
    a.e(f'v_fma_f32 v{T+4}, -v{T}, v{T}, v{T+4}')
    a.e(f'v_max_f32 v{T+4}, 0, v{T+4}')
    a.e(f'v_cvt_pk_bf16_f32 v{T+4}, v{T+4}, v{T+4}')
    a.e(f'v_lshlrev_b32 v{T+4}, 16, v{T+4}')
    a.e(f'v_add_f32 v{T+4}, {fx(1e-5)}, v{T+4}')
    a.e(f'v_cvt_pk_bf16_f32 v{T+4}, v{T+4}, v{T+4}')
    a.e(f'v_lshlrev_b32 v{T+4}, 16, v{T+4}')
    a.e(f'v_sqrt_f32 v{T+4}, v{T+4}')
    a.e(f'v_cvt_pk_bf16_f32 v{T}, v{T}, v{T+4}')


def poison_regs(a):
    for r in range(216, 220):
        a.e(f'v_mov_b32 v{r}, -1')


def clear_hh(a):
    a.e(f's_mul_i32 s66, s{S_B}, 7168')
    a.e(f's_add_u32 s66, s66, {WS_HH}')
    a.e('v_lshl_add_u32 v4, v0, 4, s66')
    a.e('v_add_u32 v5, 4096, v4')
    mask_lanes(a, 5, 192, 6, 'v0')
    a.e(f'buffer_store_dwordx4 v[216:219], v4, {WSR}, 0 offen sc1')
    a.e(f'buffer_store_dwordx4 v[216:219], v5, {WSR}, 0 offen sc1')


def clear_aout(a):
    a.e(f's_mul_i32 s66, s{S_P}, {AST}')
    a.e(f's_add_u32 s66, s66, {WS_AOUT}')
    a.e('v_lshl_add_u32 v4, v0, 4, s66')
    a.e('v_add_u32 v5, 4096, v4')
    a.e(f'buffer_store_dwordx4 v[216:219], v4, {WSR}, 0 offen sc1')
    a.e(f'buffer_store_dwordx4 v[216:219], v5, {WSR}, 0 offen sc1')


def g_store_addr(a, vd):
    a.e(f's_lshl_b32 s66, s{S_I1}, 3')
    a.e(f's_lshl_b32 s70, s{S_W}, 1')
    a.e('s_add_u32 s66, s66, s70')
    a.e('s_mul_i32 s66, s66, 7168')
    a.e(f's_mul_i32 s70, s{S_J}, 896')
    a.e('s_add_u32 s66, s66, s70')
    a.e(f's_add_u32 s66, s66, {WS_G}')
    a.e(f'v_lshl_add_u32 v{vd}, v1, 4, s66')
    mask_lanes(a, vd, 56, 6)


def clear_g(a):
    g_store_addr(a, 4)
    a.e('v_add_u32 v5, 7168, v4')
    a.e(f'buffer_store_dwordx4 v[216:219], v4, {WSR}, 0 offen sc1')
    a.e(f'buffer_store_dwordx4 v[216:219], v5, {WSR}, 0 offen sc1')


def publish_xn(a):
    bcast_stats(a, 16)
    for j in range(8):
        d = 64 + 2 * j
        t = 48 + j
        a.e(f'v_lshlrev_b32 v{d}, 16, v{8+j}')
        a.e(f'v_and_b32 v{d+1}, 0xffff0000, v{8+j}')
        a.e(f'v_pk_add_f32 v[{d}:{d+1}], v[{d}:{d+1}], s[{72+2*j}:{73+2*j}] op_sel:[0,0] op_sel_hi:[1,0] neg_lo:[0,1] neg_hi:[0,1]')
        a.e(f'v_cvt_pk_bf16_f32 v{t}, v{d}, v{d+1}')
        a.e(f'v_lshlrev_b32 v{d}, 16, v{t}')
        a.e(f'v_and_b32 v{d+1}, 0xffff0000, v{t}')
        a.e(f'v_pk_mul_f32 v[{d}:{d+1}], v[{d}:{d+1}], s[{72+2*j}:{73+2*j}] op_sel:[0,1] op_sel_hi:[1,1]')
        a.e(f'v_cvt_pk_bf16_f32 v{t}, v{d}, v{d+1}')
        a.e(f'v_lshlrev_b32 v{d}, 16, v{t}')
        a.e(f'v_and_b32 v{d+1}, 0xffff0000, v{t}')
    for i in range(4):
        a.e(f'v_cvt_pk_f16_f32 v{80+i}, v{64+4*i}, v{66+4*i}')
        a.e(f'v_cvt_pk_f16_f32 v{84+i}, v{65+4*i}, v{67+4*i}')
    if OPT['xnb']:
        a.e(f's_mul_i32 s66, s{S_W}, {56*16}')
        a.e(f's_mul_i32 s67, s{S_B}, 7168')
        a.e('s_add_u32 s66, s66, s67')
        a.e(f's_add_u32 s66, s66, {WS_XN}')
        a.e('v_lshl_add_u32 v4, v1, 4, s66')
        mask_lanes(a, 4, 56, 5)
        a.e('v_add_u32 v5, 3584, v4')
    else:
        a.e(f's_mul_i32 s66, s{S_W}, {56*XPS}')
        a.e(f's_lshl_b32 s67, s{S_B}, 4')
        a.e('s_add_u32 s66, s66, s67')
        a.e(f's_add_u32 s66, s66, {WS_XN}')
        a.e(f'v_mul_u32_u24 v4, {XPS}, v1')
        a.e('v_add_u32 v4, s66, v4')
        mask_lanes(a, 4, 56, 5)
        a.e(f'v_add_u32 v5, {XCS}, v4')
    a.e(f'buffer_store_dwordx4 v[80:83], v4, {WSR}, 0 offen sc1')
    a.e(f'buffer_store_dwordx4 v[84:87], v5, {WSR}, 0 offen sc1')


def publish_flag(a, vm=0):
    a.e(f's_waitcnt vmcnt({vm})')
    a.e('s_barrier')
    l = a.lab('noflag')
    a.e(f's_cmp_lg_u32 s{S_W}, 0')
    a.e(f's_cbranch_scc1 {l}')
    a.e(f's_lshl_b32 s66, s{S_B}, 6')
    a.e(f's_add_u32 s66, s66, {WS_FLAG}')
    a.e('v_mov_b32 v2, s66')
    a.e(f'v_mov_b32 v3, s{S_TAG}')
    a.e('s_mov_b64 exec, 1')
    a.e(f'buffer_store_dword v3, v2, {WSR}, 0 offen sc1')
    a.e('s_mov_b64 exec, -1')
    a.e(f'{l}:')


V_FA, V_FV = 233, 234


def flag_addr(a):
    a.e(f'v_lshlrev_b32 v{V_FA}, 6, v0')
    a.e(f'v_add_u32 v{V_FA}, {WS_FLAG}, v{V_FA}')


def flag_load(a):
    a.e(f'buffer_load_dword v{V_FV}, v{V_FA}, {WSR}, 0 offen sc1')


def flag_poll(a):
    lp, ld = a.lab('fpoll'), a.lab('fdone')
    a.e(f's_mov_b32 s{S_SPIN}, 0')
    a.e(f'{lp}:')
    flag_load(a)
    a.e('s_waitcnt vmcnt(0)')
    a.e(f'v_cmp_ne_u32 vcc, s{S_TAG}, v{V_FV}')
    a.e(f's_cbranch_vccz {ld}')
    spin_tail(a, lp)
    a.e(f'{ld}:')


def load_u(a):
    if OPT['xnb']:
        a.e(f's_lshl_b32 s66, s{S_P}, 4')
        a.e(f's_add_u32 s66, s66, {WS_XN}')
        a.e('v_mul_u32_u24 v2, 7168, v0')
        a.e('v_add_u32 v2, s66, v2')
        a.e('v_add_u32 v3, 3584, v2')
    else:
        a.e(f's_mul_i32 s66, s{S_P}, {XPS}')
        a.e(f's_add_u32 s66, s66, {WS_XN}')
        a.e('v_lshl_add_u32 v2, v0, 4, s66')
        a.e(f'v_add_u32 v3, {XCS}, v2')
    a.e(f'buffer_load_dwordx4 v[176:179], v2, {WSR}, 0 offen sc1')
    a.e(f'buffer_load_dwordx4 v[180:183], v3, {WSR}, 0 offen sc1')


def epoch_update(a):
    le = a.lab('noep')
    a.e('s_cmp_lg_u32 s2, 0')
    a.e(f's_cbranch_scc1 {le}')
    a.e(f'v_mov_b32 v2, {WS_EPOCH}')
    a.e(f'v_mov_b32 v3, s{S_TAG}')
    a.e('s_mov_b64 exec, 1')
    a.e(f'buffer_store_dword v3, v2, {WSR}, 0 offen sc1')
    a.e('s_mov_b64 exec, -1')
    a.e(f'{le}:')


def code_prefetch(a, lstart, lend_):
    lp = a.lab('pcp')
    a.e('s_getpc_b64 s[74:75]')
    a.e(f'{lp}:')
    a.e(f's_sub_u32 s74, s74, {lp}-{lstart}')
    a.e('s_subb_u32 s75, s75, 0')
    a.e('v_lshlrev_b32 v4, 6, v0')
    a.e(f's_mov_b32 s76, {lend_}-{lstart}-4')
    a.e('v_add_u32 v5, 16384, v4')
    a.e('v_min_u32 v4, s76, v4')
    a.e('v_min_u32 v5, s76, v5')
    a.e('global_load_dword v220, v4, s[74:75]')
    a.e('global_load_dword v220, v5, s[74:75]')


def code_prefetch1(a, lstart, lend_):
    lp = a.lab('pcp')
    a.e('s_getpc_b64 s[74:75]')
    a.e(f'{lp}:')
    a.e('v_lshlrev_b32 v4, 6, v0')
    a.e(f's_mov_b32 s76, {lend_}-{lp}-4')
    a.e('v_min_u32 v4, s76, v4')
    a.e('global_load_dword v220, v4, s[74:75]')


def tlb_touch(a):
    g = OPT['tlbg']
    n = 0
    srd(a, S_T2, P_OUT, XBYTES)
    srd(a, S_T3, P_B2, L * 2)
    if g == 21:
        a.e('v_lshlrev_b32 v4, 21, v1')
        for s_ in (S_W1, S_W2, S_WS, S_T2, S_T3):
            a.e(f'buffer_load_dword v220, v4, s[{s_}:{s_+3}], 0 offen')
            n += 1
    else:
        a.e(f'v_lshlrev_b32 v4, {g}, v0')
        for s_, nbytes in ((S_W1, W1BYTES), (S_W2, W2BYTES), (S_WS, 0xC00000), (S_T2, XBYTES), (S_T3, 4096)):
            for k in range(-(-nbytes // (256 << g))):
                a.e(f's_mov_b32 s70, {k * (256 << g)}')
                a.e(f'buffer_load_dword v220, v4, s[{s_}:{s_+3}], s70 offen')
                n += 1
    return n


def kgen_loads(a, part=None):
    R = (S_T0, S_T1, S_T2, S_T3) if part is None else (72, 76, 80, 84)
    if part != 'issue':
        for r, p in zip(R, (P_LAR, P_AI, P_CR, P_CI)):
            srd(a, r, p, PBYTES)
        a.e(f's_lshl_b32 s66, s{S_P}, 10')
        a.e(f's_lshl_b32 s67, s{S_W}, 7')
        a.e('s_add_u32 s66, s66, s67')
        a.e('v_lshl_add_u32 v235, v1, 1, s66')
        a.e(f's_lshl_b32 s66, s{S_P}, 2')
        a.e(f's_load_dword s68, s[{P_LDT}:{P_LDT+1}], s66')
        a.e(f's_load_dword s69, s[{P_DSK}:{P_DSK+1}], s66')
    if part != 'setup':
        for c in range(2):
            for k, s in enumerate(R):
                a.e(f'buffer_load_ushort v{40+4*c+k}, v235, s[{s}:{s+3}], 0 offen offset:{512*c}')


def load_gather_table(a, tablabel):
    lp = a.lab('pc')
    a.e('s_getpc_b64 s[70:71]')
    a.e(f'{lp}:')
    a.e(f's_add_u32 s70, s70, {tablabel}-{lp}')
    a.e('s_addc_u32 s71, s71, 0')
    a.e('v_lshlrev_b32 v2, 5, v0')
    a.e('global_load_dwordx4 v[160:163], v2, s[70:71]')
    a.e('global_load_dwordx4 v[164:167], v2, s[70:71] offset:16')


DK0, DK1 = 16, 28


def kgen_channel(a, c, DACC, mid=None, mid_m0=True):
    LAR, AI, CR, CI = 40 + 4 * c, 41 + 4 * c, 42 + 4 * c, 43 + 4 * c
    SIG, DT = 52 + c, 54 + c
    AL, BE = 56, 57
    Z1, Z2, Z4, Z8, Z128, Z256, Z512, Z1024 = 58, 60, 62, 64, 66, 68, 70, 72
    X0, CA, CB, CC, T0, T1 = 74, 76, 78, 80, 82, 84
    CV = [86, 87, 88, 89]
    VW, VR = 90, 91
    t, t2 = 92, 93
    for r in (LAR, AI, CR, CI):
        a.e(f'v_lshlrev_b32 v{r}, 16, v{r}')
    a.e('s_lshl_b32 s66, s68, 16' if c == 0 else 's_and_b32 s66, s68, 0xffff0000')
    a.e(f'v_mov_b32 v{t2}, s66')
    exp_bf16(a, DT, t2, t)
    a.e(f'v_add_f32 v{SIG}, abs(v{CR}), abs(v{CI})')
    exp_bf16(a, AL, LAR, t)
    a.e(f'v_add_f32_dpp v{SIG}, v{SIG}, v{SIG} quad_perm:[1,0,3,2] row_mask:0xf bank_mask:0xf')
    a.e(f'v_mul_f32 v{AL}, v{AL}, v{DT}')
    a.e(f'v_mul_f32 v{BE}, v{AI}, v{DT}')
    a.e(f'v_add_f32_dpp v{SIG}, v{SIG}, v{SIG} quad_perm:[2,3,0,1] row_mask:0xf bank_mask:0xf')
    a.e(f'v_mul_f32 v{AL}, {fx(-1.4426950408889634)}, v{AL}')
    a.e(f'v_mul_f32 v{BE}, {fx(0.15915494309189535)}, v{BE}')
    a.e(f'v_add_f32_dpp v{SIG}, v{SIG}, v{SIG} row_half_mirror row_mask:0xf bank_mask:0xf')
    a.e(f'v_exp_f32 v{T0}, v{AL}')
    a.e(f'v_fract_f32 v{t}, v{BE}')
    a.e(f'v_add_f32_dpp v{SIG}, v{SIG}, v{SIG} row_ror:8 row_mask:0xf bank_mask:0xf')
    a.e(f'v_cos_f32 v{Z1}, v{t}')
    a.e(f'v_sin_f32 v{Z1+1}, v{t}')
    a.e(f'v_mov_b32 v{t2}, v{SIG}')
    a.e(f'v_mul_f32 v{T1}, 0x43000000, v{AL}')
    a.e(f'v_mul_f32 v{t}, 0x43000000, v{BE}')
    a.e(f'v_permlane16_swap_b32 v{SIG}, v{t2}')
    a.e(f'v_pk_mul_f32 v[{Z1}:{Z1+1}], v[{Z1}:{Z1+1}], v[{T0}:{T0+1}] op_sel:[0,0] op_sel_hi:[1,0]')
    a.e(f'v_add_f32 v{SIG}, v{SIG}, v{t2}')
    a.e(f'v_exp_f32 v{T1}, v{T1}')
    a.e(f'v_fract_f32 v{t}, v{t}')
    a.e(f'v_mov_b32 v{t2}, v{SIG}')
    a.e(f'v_cos_f32 v{Z128}, v{t}')
    a.e(f'v_sin_f32 v{Z128+1}, v{t}')
    a.e(f'v_permlane32_swap_b32 v{SIG}, v{t2}')
    cmul(a, Z2, Z1, Z1, Z2)
    a.e(f'v_add_f32 v{SIG}, v{SIG}, v{t2}')
    a.e(f'v_pk_mul_f32 v[{Z128}:{Z128+1}], v[{Z128}:{Z128+1}], v[{T1}:{T1+1}] op_sel:[0,0] op_sel_hi:[1,0]')
    a.e(f'v_add_f32 v{SIG}, {fx(1e-30)}, v{SIG}')
    cmul(a, Z4, Z2, Z2, Z4)
    a.e(f'v_rcp_f32 v{t}, v{SIG}')
    cmul(a, Z256, Z128, Z128, Z256)
    cmul(a, Z8, Z4, Z4, Z8)
    a.e(f'v_mul_f32 v{X0}, v{CR}, v{t}')
    a.e(f'v_mul_f32 v{X0+1}, v{CI}, v{t}')
    cmul(a, Z512, Z256, Z256, Z512)
    a.e(f's_mul_i32 s66, s{S_W}, {SCRW}')
    a.e(f's_add_u32 s66, s66, {L_SCR}')
    a.e('s_mov_b32 m0, s66')
    cmul(a, Z1024, Z512, Z512, Z1024)
    a.e(f'v_and_b32 v{t}, 15, v1')
    a.e(f'v_mul_u32_u24 v{t}, {SROW}, v{t}')
    a.e(f'v_lshrrev_b32 v{t2}, 4, v1')
    a.e(f'v_lshl_add_u32 v{t}, v{t2}, 4, v{t}')
    a.e(f'v_add_u32 v{VR}, s66, v{t}')
    cvi = [0]
    pend = []

    def flush(keep):
        while len(pend) > keep:
            cv, off = pend.pop(0)
            a.e(f'ds_write_addtid_b32 v{cv} offset:{off}')

    G = OPT['kgrp']
    if G > 1:
        CV = list(range(96, 112))

    def put(off, r, neg):
        cv = CV[cvi[0] % len(CV)]
        cvi[0] += 1
        a.e(f'v_cvt_pk_f16_f32 v{cv}, v{r}, {"-" if neg else ""}v{r+1}')
        if G > 1:
            pend.append((cv, off))
            if len(pend) >= G + 1:
                flush(1)
        else:
            flush(1)
            pend.append((cv, off))

    def putX(row, r):
        put(row * SROW, r, True)

    def putY(b, r):
        put((YROW + b) * SROW, r, False)

    a.e(f'v_mov_b32 v{VW}, 0x00003c00')
    pend.append((VW, YROW * SROW))
    putY(1, Z8)
    ychain = {'cur': Z8, 'b': 1}
    YA, YB = CC, 94

    def ystep():
        if ychain['b'] >= 15:
            return
        d = YA if ychain['cur'] != YA else YB
        cmul(a, d, ychain['cur'], Z8, d)
        ychain['b'] += 1
        ychain['cur'] = d
        putY(ychain['b'], d)

    putX(0, X0)
    cmul(a, T0, X0, Z128, T0)
    putX(8, T0)
    cur = X0
    for j in range(1, 8):
        d = CA if cur != CA else CB
        cmul(a, d, cur, Z1, d)
        ystep()
        putX(j, d)
        cmul(a, T0, d, Z128, T0)
        putX(8 + j, T0)
        cur = d
    cmul(a, CA, X0, Z256, CA)
    ystep()
    putX(16, CA)
    cmul(a, T0, CA, Z128, T0)
    putX(20, T0)
    cur = CA
    for j in range(1, 4):
        d = CA if cur != CA else CB
        cmul(a, d, cur, Z2, d)
        ystep()
        putX(16 + j, d)
        cmul(a, T0, d, Z128, T0)
        putX(20 + j, T0)
        cur = d
    if mid is not None:
        if mid_m0:
            flush(0)
        mid()
        if mid_m0:
            a.e(f's_mul_i32 s66, s{S_W}, {SCRW}')
            a.e(f's_add_u32 s66, s66, {L_SCR}')
            a.e('s_mov_b32 m0, s66')
    cmul(a, CA, X0, Z512, CA)
    ystep()
    putX(24, CA)
    cmul(a, CB, CA, Z4, CB)
    ystep()
    putX(25, CB)
    pa, pb = CA, CB
    na, nb = T0, T1
    for q in range(1, 4):
        cmul(a, na, pa, Z128, na)
        cmul(a, nb, pb, Z128, nb)
        ystep()
        putX(24 + 2 * q, na)
        putX(25 + 2 * q, nb)
        pa, pb, na, nb = na, nb, pa, pb
    cmul(a, CA, X0, Z1024, CA)
    putX(32, CA)
    cur = CA
    for q in range(1, 9):
        d = CA if cur != CA else CB
        cmul(a, d, cur, Z128, d)
        putX(32 + q, d)
        cur = d
    while ychain['b'] < 15:
        ystep()
    flush(0)
    FA = 96
    for k in range(4):
        a.e(f'ds_read_b128 v[{144+4*k}:{147+4*k}], v{VR} offset:{YROW*SROW+64*k}')
        for T in range(3):
            r = FA + 16 * T + 4 * k
            a.e(f'ds_read_b128 v[{r}:{r+3}], v{VR} offset:{16*T*SROW+64*k}')
    for k in range(4):
        a.e(f's_waitcnt lgkmcnt({4*(3-k)})')
        for T in range(3):
            r = FA + 16 * T + 4 * k
            cc = '0' if k == 0 else f'v[{DACC+4*T}:{DACC+4*T+3}]'
            a.e(f'v_mfma_f32_16x16x32_f16 v[{DACC+4*T}:{DACC+4*T+3}], v[{r}:{r+3}], v[{144+4*k}:{147+4*k}], {cc}')


def ktab_part1(a):
    a.e(f's_mul_i32 s66, s{S_W}, {SCRW}')
    a.e(f's_add_u32 s66, s66, {L_SCR}')
    a.e('v_lshl_add_u32 v90, v1, 4, s66')
    a.e(f's_lshl_b32 s67, s{S_W}, 2')
    a.e(f's_add_u32 s67, s67, {L_SIG}')
    a.e('v_mov_b32 v91, s67')
    a.e('s_mov_b64 exec, 1')
    a.e('ds_write_b32 v91, v52')
    a.e('ds_write_b32 v91, v53 offset:16')
    a.e('s_mov_b64 exec, -1')
    for c, DK in ((0, DK0), (1, DK1)):
        for T in range(3):
            for h in range(2):
                i = DK + 4 * T + 2 * h
                a.e(f'v_pk_mul_f32 v[{i}:{i+1}], v[{i}:{i+1}], v[52:53] op_sel:[0,{c}] op_sel_hi:[1,{c}]')
            a.e(f'ds_write_b128 v90, v[{DK+4*T}:{DK+4*T+3}] offset:{c*3072+T*1024}')
    a.e('v_mov_b32 v96, 0')
    a.e('v_mov_b32 v97, 0')
    a.e('v_mov_b32 v98, 0')
    a.e('v_mov_b32 v99, 0')
    a.e(f'v_mov_b32 v92, {L_KT + 1536}')
    a.e('ds_write_b32 v92, v96')
    a.e(f'ds_write_b32 v92, v96 offset:{KTCH}')
    a.e('v_lshlrev_b32 v92, 3, v1')
    a.e(f'ds_write_b64 v92, v[96:97] offset:{L_U}')
    a.e(f'ds_write_b64 v92, v[96:97] offset:{L_U + UCH}')
    a.e('s_waitcnt lgkmcnt(0)')
    a.e('s_barrier')


def ktab_part2(a):
    a.e(f'v_mov_b32 v91, {L_SIG}')
    a.e('ds_read_b128 v[44:47], v91')
    a.e('ds_read_b128 v[48:51], v91 offset:16')
    a.e(f's_and_b32 s67, s{S_W}, 1')
    a.e(f's_lshr_b32 s70, s{S_W}, 1')
    a.e('s_mul_i32 s71, s67, 3072')
    a.e('s_lshl_b32 s72, s70, 10')
    a.e('s_add_u32 s72, s72, s71')
    a.e(f's_add_u32 s72, s72, {L_SCR}')
    a.e(f's_add_u32 s71, s71, {L_SCR + 2048}')
    a.e('v_lshl_add_u32 v90, v1, 4, s72')
    a.e('v_lshl_add_u32 v91, v1, 4, s71')
    for wv in range(4):
        a.e(f'ds_read_b128 v[{96+4*wv}:{99+4*wv}], v90 offset:{wv*SCRW}')
    for wv in range(4):
        a.e(f'ds_read_b128 v[{112+4*wv}:{115+4*wv}], v91 offset:{wv*SCRW}')
    a.e('v_mov_b32 v128, 0')
    a.e('v_mov_b32 v129, 0')
    a.e('v_mov_b32 v130, 0')
    a.e('v_mov_b32 v131, 0')
    if OPT['c4']:
        a.e('v_and_b32 v132, 7, v1')
        a.e(f'v_mul_u32_u24 v132, {KCOPY}, v132')
        a.e('v_bfe_u32 v133, v1, 3, 1')
        a.e('v_lshl_add_u32 v132, v133, 4, v132')
    else:
        a.e('v_and_b32 v132, 15, v1')
        a.e(f'v_mul_u32_u24 v132, {KCOPY}, v132')
    a.e(f'v_add_u32 v132, {L_KC}, v132')
    a.e('ds_write_b128 v132, v[128:131] offset:4096')
    a.e('v_lshrrev_b32 v92, 4, v1')
    a.e('v_lshlrev_b32 v92, 7, v92')
    a.e('v_and_b32 v93, 15, v1')
    a.e('v_lshl_add_u32 v92, v93, 1, v92')
    a.e(f's_mul_i32 s71, s67, {KTCH}')
    a.e(f's_add_u32 s71, s71, {L_KT}')
    a.e('v_add_u32 v93, s71, v92')
    a.e('s_lshl_b32 s72, s70, 9')
    a.e('v_add_u32 v92, s72, v93')
    a.e('s_waitcnt lgkmcnt(9)')
    a.e('v_pk_add_f32 v[44:45], v[44:45], v[46:47]')
    a.e('v_pk_add_f32 v[48:49], v[48:49], v[50:51]')
    a.e('v_add_f32 v44, v44, v45')
    a.e('v_add_f32 v45, v48, v49')
    a.e('s_cmp_eq_u32 s67, 0')
    a.e('s_cselect_b64 vcc, -1, 0')
    a.e('v_pk_mul_f32 v[54:55], v[54:55], v[44:45]')
    a.e('v_cndmask_b32 v46, v45, v44, vcc')
    a.e('v_pk_add_f32 v[54:55], v[54:55], v[54:55]')
    a.e('v_rcp_f32 v46, v46')
    for jb, (base, va, off) in enumerate(((96, 92, 0), (112, 93, 1024))):
        a.e(f's_waitcnt lgkmcnt({5 if jb == 0 else 5})')
        for h in range(2):
            a.e(f'v_pk_add_f32 v[{base+2*h}:{base+2*h+1}], v[{base+2*h}:{base+2*h+1}], v[{base+4+2*h}:{base+5+2*h}]')
            a.e(f'v_pk_add_f32 v[{base+8+2*h}:{base+9+2*h}], v[{base+8+2*h}:{base+9+2*h}], v[{base+12+2*h}:{base+13+2*h}]')
        for h in range(2):
            a.e(f'v_pk_add_f32 v[{base+2*h}:{base+2*h+1}], v[{base+2*h}:{base+2*h+1}], v[{base+8+2*h}:{base+9+2*h}]')
        for h in range(2):
            a.e(f'v_pk_mul_f32 v[{base+2*h}:{base+2*h+1}], v[{base+2*h}:{base+2*h+1}], v[46:47] op_sel:[0,0] op_sel_hi:[1,0]')
        a.e(f'v_cvt_pk_f16_f32 v{base+4}, v{base}, v{base+1}')
        a.e(f'v_cvt_pk_f16_f32 v{base+5}, v{base+2}, v{base+3}')
        a.e(f'ds_write_b16 v{va}, v{base+4} offset:{off}')
        a.e(f'ds_write_b16_d16_hi v{va}, v{base+4} offset:{off+32}')
        a.e(f'ds_write_b16 v{va}, v{base+5} offset:{off+64}')
        a.e(f'ds_write_b16_d16_hi v{va}, v{base+5} offset:{off+96}')
    for e in range(11 if OPT['c4'] else 15):
        src = 160 + e // 2
        if e % 2 == 0:
            a.e(f'v_and_b32 v{136+e}, 0xffff, v{src}')
        else:
            a.e(f'v_lshrrev_b32 v{136+e}, 16, v{src}')
    a.e('s_waitcnt lgkmcnt(0)')
    a.e('s_barrier')


def kch():
    return (4 if OPT['c4'] else 8) * KCOPY


def kcopies(a):
    AD = 136
    a.e('v_lshlrev_b32 v111, 4, v0')
    a.e(f'v_add_u32 v111, {L_KC}, v111')
    RR = [96, 112]
    if OPT['c4']:
        for c in range(2):
            for e in range(11):
                a.e(f'ds_read_u16 v{RR[c]+e}, v{AD+e} offset:{L_KT + c*KTCH}')
        for c in range(2):
            R = RR[c]
            Da, Db, Oa, Ob = (56, 60, 64, 68) if c == 0 else (16, 20, 24, 28)
            a.e(f's_waitcnt lgkmcnt({11 if c == 0 else 4})')
            for i in range(4):
                a.e(f'v_lshl_or_b32 v{Da+i}, v{R+2*i+1}, 16, v{R+2*i}')
                a.e(f'v_lshl_or_b32 v{Oa+i}, v{R+2*i+2}, 16, v{R+2*i+1}')
                a.e(f'v_lshl_or_b32 v{Db+i}, v{R+2*i+3}, 16, v{R+2*i+2}')
                a.e(f'v_lshl_or_b32 v{Ob+i}, v{R+2*i+4}, 16, v{R+2*i+3}')
            for s_, r in ((0, Da), (1, Oa), (2, Db), (3, Ob)):
                a.e(f'ds_write_b128 v111, v[{r}:{r+3}] offset:{c*kch() + s_*KCOPY}')
        return
    for c in range(2):
        for e in range(15):
            a.e(f'ds_read_u16 v{RR[c]+e}, v{AD+e} offset:{L_KT + c*KTCH}')
    for c in range(2):
        R = RR[c]
        Da, Db, Oa, Ob = 56 + 0, 64, 72, 80
        if c == 1:
            Da, Db, Oa, Ob = 16, 24, 32, 40
        a.e(f's_waitcnt lgkmcnt({15 if c == 0 else 8})')
        for i in range(6):
            a.e(f'v_lshl_or_b32 v{Da+i}, v{R+2*i+1}, 16, v{R+2*i}')
            a.e(f'v_lshl_or_b32 v{Oa+i}, v{R+2*i+2}, 16, v{R+2*i+1}')
        if c == 1:
            a.e(f'v_add_u32 v110, {KCH}, v111')
        va = 111 if c == 0 else 110
        for s, r in ((0, Da), (1, Oa), (4, Da + 2), (5, Oa + 2)):
            a.e(f'ds_write_b128 v{va}, v[{r}:{r+3}] offset:{s*KCOPY}')
        for i in range(6):
            a.e(f'v_lshl_or_b32 v{Db+i}, v{R+2*i+3}, 16, v{R+2*i+2}')
            a.e(f'v_lshl_or_b32 v{Ob+i}, v{R+2*i+4}, 16, v{R+2*i+3}')
        for s, r in ((2, Db), (3, Ob), (6, Db + 2), (7, Ob + 2)):
            a.e(f'ds_write_b128 v{va}, v[{r}:{r+3}] offset:{s*KCOPY}')


def store_u(a, vm):
    a.e('v_lshlrev_b32 v2, 4, v0')
    a.e(f's_waitcnt vmcnt({vm})')
    a.e(f'ds_write_b128 v2, v[176:179] offset:{L_U + 512}')
    a.e(f'ds_write_b128 v2, v[180:183] offset:{L_U + UCH + 512}')
    a.e('s_waitcnt lgkmcnt(0)')
    a.e('s_barrier')


def phase_conv(a, hooks, pre_vm):
    hooks = list(hooks)
    ACC = 16
    FA = [[64 + 64 * s + 4 * i for i in range(8)] for s in range(2)]
    FB = [[96 + 64 * s + 4 * i for i in range(8)] for s in range(2)]
    VA, VB = 48, 49

    def loads(qq, s):
        out = []
        for i in range(8):
            out.append(f'ds_read_b128 v[{FB[s][i]}:{FB[s][i]+3}], v{VB} offset:{512*i + 64*(3-qq)}')
            if OPT['c4']:
                o = 512 * (7 - i) + 64 * (3 - qq)
                out.append(f'ds_read_b64 v[{FA[s][i]}:{FA[s][i]+1}], v{VA} offset:{o}')
                out.append(f'ds_read_b64 v[{FA[s][i]+2}:{FA[s][i]+3}], v{VA} offset:{o + 8}')
            else:
                out.append(f'ds_read_b128 v[{FA[s][i]}:{FA[s][i]+3}], v{VA} offset:{512*(7-i) + 64*(3-qq)}')
        return out

    for x in loads(0, 0):
        a.e(x)
    for qq in range(4):
        s = qq & 1
        nxt = loads(qq + 1, 1 - s) if qq < 3 else []
        n = 0
        for w in range(8):
            for c in range(w, 8):
                if n == 0:
                    a.e('s_waitcnt lgkmcnt(0)')
                cc = '0' if (qq == 0 and w == 0) else f'v[{ACC+4*c}:{ACC+4*c+3}]'
                a.e(f'v_mfma_f32_16x16x32_f16 v[{ACC+4*c}:{ACC+4*c+3}], v[{FA[s][w]}:{FA[s][w]+3}], v[{FB[s][c-w]}:{FB[s][c-w]+3}], {cc}')
                if nxt and (n % 2 == 1 or (OPT['c4'] and n % 4 == 0)):
                    a.e(nxt.pop(0))
                if hooks and n % 4 == 2:
                    hooks.pop(0)()
                n += 1
        assert not nxt
    assert not hooks
    stamp(a, 11)
    CP, TS = L_CP, 1280
    a.e('v_and_b32 v2, 15, v1')
    a.e('v_lshlrev_b32 v2, 4, v2')
    a.e('v_lshrrev_b32 v3, 4, v1')
    a.e('v_mul_u32_u24 v3, 320, v3')
    a.e('v_add_u32 v2, v2, v3')
    a.e(f's_mul_i32 s70, s{S_W}, {8*TS}')
    a.e(f's_add_u32 s70, s70, {CP}')
    a.e('v_add_u32 v2, s70, v2')
    a.e('s_barrier')
    for c in range(8):
        a.e(f'ds_write_b128 v2, v[{ACC+4*c}:{ACC+4*c+3}] offset:{c*TS}')
    a.e('v_lshrrev_b32 v2, 2, v1')
    a.e('v_lshlrev_b32 v2, 4, v2')
    a.e('v_and_b32 v3, 3, v1')
    a.e('v_mul_u32_u24 v3, 320, v3')
    a.e('v_add_u32 v2, v2, v3')
    a.e(f's_lshl_b32 s70, s{S_W}, 1')
    a.e(f's_mul_i32 s71, s70, {TS}')
    a.e(f's_add_u32 s71, s71, {CP}')
    a.e('v_add_u32 v2, s71, v2')
    a.e('s_lshl_b32 s71, s70, 9')
    a.e(f's_add_u32 s71, s71, {L_U + 512}')
    a.e('v_lshl_add_u32 v3, v1, 3, s71')
    a.e(f's_mul_i32 s71, s{S_P}, {AST}')
    a.e('s_lshl_b32 s72, s70, 10')
    a.e('s_add_u32 s71, s71, s72')
    a.e(f's_add_u32 s71, s71, {WS_AOUT}')
    a.e('v_lshl_add_u32 v4, v1, 4, s71')
    a.e('s_lshl_b32 s72, s69, 16')
    a.e('s_and_b32 s73, s69, 0xffff0000')
    a.e('v_mov_b32 v56, s72')
    a.e('v_mov_b32 v57, s73')
    a.e(f's_waitcnt lgkmcnt(0) vmcnt({pre_vm})')
    a.e('s_barrier')
    for q in range(2):
        P = 64 + 32 * q
        for ch in range(2):
            for hf in range(2):
                r = P + 8 * ch + 4 * hf
                a.e(f'ds_read_b128 v[{r}:{r+3}], v2 offset:{(2*ch+hf)*8*TS + q*TS}')
        for ch in range(2):
            a.e(f'ds_read_b64 v[{P+16+2*ch}:{P+17+2*ch}], v3 offset:{ch*UCH + q*512}')
    for q in range(2):
        P = 64 + 32 * q
        a.e(f's_waitcnt lgkmcnt({6 if q == 0 else 0})')
        for ch in range(2):
            y = P + 8 * ch
            T = 128 + 16 * ch
            u = P + 16 + 2 * ch
            for h in range(2):
                a.e(f'v_pk_add_f32 v[{y+2*h}:{y+2*h+1}], v[{y+2*h}:{y+2*h+1}], v[{y+4+2*h}:{y+5+2*h}]')
            for i in range(4):
                a.e(f'v_fma_mix_f32 v{T+i}, v{u+i//2}, v{56+ch}, 0 op_sel:[{i%2},0,0] op_sel_hi:[1,0,0]')
            for h in range(2):
                a.e(f'v_pk_mul_f32 v[{y+2*h}:{y+2*h+1}], v[{y+2*h}:{y+2*h+1}], v[54:55] op_sel:[0,{ch}] op_sel_hi:[1,{ch}]')
            for h in range(2):
                a.e(f'v_cvt_pk_bf16_f32 v{T+6+h}, v{T+2*h}, v{T+2*h+1}')
                a.e(f'v_cvt_pk_bf16_f32 v{T+4+h}, v{y+2*h}, v{y+2*h+1}')
            for h in range(2):
                a.e(f'v_lshlrev_b32 v{T+2*h}, 16, v{T+6+h}')
                a.e(f'v_and_b32 v{T+2*h+1}, 0xffff0000, v{T+6+h}')
                a.e(f'v_lshlrev_b32 v{y+2*h}, 16, v{T+4+h}')
                a.e(f'v_and_b32 v{y+2*h+1}, 0xffff0000, v{T+4+h}')
            for h in range(2):
                a.e(f'v_pk_add_f32 v[{y+2*h}:{y+2*h+1}], v[{y+2*h}:{y+2*h+1}], v[{T+2*h}:{T+2*h+1}]')
        O = 160 + 4 * q
        for i in range(4):
            a.e(f'v_cvt_pk_bf16_f32 v{O+i}, v{P+i}, v{P+8+i}')
        a.e(f'buffer_store_dwordx4 v[{O}:{O+3}], v4, {WSR}, 0 offen offset:{q*1024} sc1')


def conv_addr(a):
    a.e(f's_lshr_b32 s66, s{S_W}, 1')
    a.e(f's_and_b32 s67, s{S_W}, 1')
    a.e('v_and_b32 v2, 7, v1')
    a.e('v_sub_u32 v2, 7, v2')
    if OPT['c4']:
        a.e('v_lshrrev_b32 v5, 2, v2')
        a.e('v_and_b32 v2, 3, v2')
        a.e(f'v_mul_u32_u24 v2, {KCOPY}, v2')
        a.e('v_lshl_add_u32 v2, v5, 3, v2')
    else:
        a.e(f'v_mul_u32_u24 v2, {KCOPY}, v2')
    a.e('v_lshrrev_b32 v3, 4, v1')
    a.e('v_bfe_u32 v4, v1, 3, 1')
    a.e('v_sub_u32 v4, v3, v4')
    a.e('v_lshl_add_u32 v2, v4, 4, v2')
    a.e(f's_mul_i32 s70, s66, {kch()}')
    a.e('s_lshl_b32 s71, s67, 8')
    a.e('s_sub_u32 s70, s70, s71')
    a.e(f's_add_u32 s70, s70, {L_KC + 16*253 - 512*7 - 64*3}')
    a.e('v_add_u32 v48, s70, v2')
    a.e('v_and_b32 v2, 15, v1')
    a.e('v_lshlrev_b32 v2, 5, v2')
    a.e('v_lshl_add_u32 v2, v3, 4, v2')
    a.e(f's_mul_i32 s70, s66, {UCH}')
    a.e('s_sub_u32 s70, s70, s71')
    a.e(f's_add_u32 s70, s70, {L_U + 480 - 64*3}')
    a.e('v_add_u32 v49, s70, v2')


def phase_p4(a, dmas=()):
    X = list(range(8, 16))
    A = 32
    xrow_addr(a)
    a.e(f's_mul_i32 s66, s{S_W}, {56*AST}')
    a.e(f's_lshl_b32 s67, s{S_B}, 5')
    a.e('s_add_u32 s66, s66, s67')
    a.e(f's_add_u32 s66, s66, {WS_AOUT}')
    a.e(f'v_mul_u32_u24 v4, {AST}, v1')
    a.e('v_add_u32 v4, s66, v4')
    a.e(f'v_mov_b32 v5, {OOB}')
    a.e('v_cndmask_b32 v4, v5, v4, vcc')
    if OPT['hpriv']:
        a.e(f's_mul_i32 s66, s{S_W}, 1792')
        a.e(f's_add_u32 s66, s66, {L_HT}')
        a.e('v_lshl_add_u32 v6, v1, 2, s66')
        a.e('v_lshl_add_u32 v7, v1, 4, s66')
        a.e(f's_mul_i32 s66, s{S_B}, 7168')
        a.e(f's_mul_i32 s67, s{S_W}, 224')
        a.e('s_add_u32 s66, s66, s67')
        a.e(f's_add_u32 s66, s66, {WS_H}')
        for k, vd in ((0, 56), (64, 57)):
            a.e(f'v_add_u32 v58, {k}, v1')
            a.e('v_mul_u32_u24 v59, 4682, v58')
            a.e('v_lshrrev_b32 v59, 16, v59')
            a.e(f'v_mul_u32_u24 v{vd}, {896 - 224}, v59')
            a.e(f'v_lshl_add_u32 v{vd}, v58, 4, v{vd}')
            a.e(f'v_add_u32 v{vd}, s66, v{vd}')
        mask_lanes(a, 57, 48, 58)
    else:
        a.e(f's_mul_i32 s66, s{S_W}, 224')
        a.e(f's_add_u32 s66, s66, {L_HT}')
        a.e('v_lshl_add_u32 v6, v1, 2, s66')
    for j in range(8):
        a.e(f'v_lshlrev_b32 v{64+2*j}, 16, v{X[j]}')
        a.e(f'v_and_b32 v{65+2*j}, 0xffff0000, v{X[j]}')
    lp, ld = a.lab('h2poll'), a.lab('h2done')
    a.e(f's_mov_b32 s{S_SPIN}, 0')
    a.e(f'{lp}:')
    a.e(f'buffer_load_dwordx4 v[{A}:{A+3}], v4, {WSR}, 0 offen sc1')
    a.e(f'buffer_load_dwordx4 v[{A+4}:{A+7}], v4, {WSR}, 0 offen offset:16 sc1')
    a.e('s_waitcnt vmcnt(0)')
    a.e(f'v_max3_u32 v40, v{A}, v{A+1}, v{A+2}')
    a.e(f'v_max3_u32 v41, v{A+3}, v{A+4}, v{A+5}')
    a.e(f'v_max3_u32 v40, v40, v{A+6}, v{A+7}')
    a.e('v_max_u32 v40, v40, v41')
    a.e('v_cmp_eq_u32 vcc, -1, v40')
    a.e(f's_cbranch_vccz {ld}')
    spin_tail(a, lp)
    a.e(f'{ld}:')
    stamp(a, 14)
    H = list(range(48, 56))
    for j in range(8):
        t = 40 + 2 * (j % 4)
        a.e(f'v_lshlrev_b32 v{t}, 16, v{A+j}')
        a.e(f'v_and_b32 v{t+1}, 0xffff0000, v{A+j}')
        a.e(f'v_pk_add_f32 v[{t}:{t+1}], v[{t}:{t+1}], v[{64+2*j}:{65+2*j}]')
        a.e(f'v_cvt_pk_bf16_f32 v{H[j]}, v{t}, v{t+1}')
    a.e('s_mov_b32 exec_hi, 0x00ffffff')
    for j in range(8):
        a.e(f'ds_write_b32 v6, v{H[j]} offset:{j*(224 if OPT["hpriv"] else 896)}')
    a.e('s_mov_b32 exec_hi, -1')
    if OPT['hpriv']:
        a.e('ds_read_b128 v[32:35], v7')
        a.e('ds_read_b128 v[36:39], v7 offset:1024')
        a.e('s_waitcnt lgkmcnt(1)')
        a.e(f'buffer_store_dwordx4 v[32:35], v56, {WSR}, 0 offen sc1')
        a.e('s_waitcnt lgkmcnt(0)')
        a.e(f'buffer_store_dwordx4 v[36:39], v57, {WSR}, 0 offen sc1')
        if dmas:
            a.inject(dmas, OPT['p4ev'])
        ln_stats(a, H, 16, L_RED0, 5)
    else:
        def hstore():
            a.e('v_lshlrev_b32 v7, 4, v0')
            a.e(f'ds_read_b128 v[56:59], v7 offset:{L_HT}')
            a.e(f'ds_read_b128 v[60:63], v7 offset:{L_HT + 4096}')
            return 2

        ln_stats(a, H, 16, L_RED0, 5, mid=hstore)
        a.e(f's_mul_i32 s66, s{S_B}, 7168')
        a.e(f's_add_u32 s66, s66, {WS_H}')
        a.e('v_add_u32 v6, s66, v7')
        a.e('v_add_u32 v7, 4096, v6')
        mask_lanes(a, 7, 192, 4, 'v0')
        a.e('s_waitcnt lgkmcnt(0)')
        a.e(f'buffer_store_dwordx4 v[56:59], v6, {WSR}, 0 offen sc1')
        a.e(f'buffer_store_dwordx4 v[60:63], v7, {WSR}, 0 offen sc1')
    bcast_stats(a, 16)
    a.inj_pause()
    a.e('s_mov_b32 exec_hi, 0x00ffffff')
    for j in range(8):
        t = 40 + 2 * (j % 4)
        norm_tok(a, j, H[j], t)
        a.e(f'v_cvt_pk_bf16_f32 v{H[j]}, v{t}, v{t+1}')
    a.e('s_mov_b32 exec_hi, -1')
    a.inj_resume()
    ln_stats(a, H, 16, L_RED1, 5)
    bcast_stats(a, 16)
    a.e(f's_mul_i32 s66, s{S_B}, 7168')
    a.e(f's_mul_i32 s67, s{S_W}, 1792')
    a.e('s_add_u32 s66, s66, s67')
    a.e(f's_add_u32 s66, s66, {WS_HH}')
    a.e('v_lshl_add_u32 v4, v1, 4, s66')
    a.e('v_add_u32 v5, 448, v4')
    a.e('v_cmp_gt_u32 vcc, 28, v1')
    a.e('v_cndmask_b32 v4, v5, v4, vcc')
    mask_lanes(a, 4, 56, 5)
    for j in range(8):
        norm_tok(a, j, H[j], 64 + 2 * j)
    O0, O1 = 80, 84
    for i in range(4):
        a.e(f'v_cvt_pk_bf16_f32 v{O0+i}, v{64+4*i}, v{66+4*i}')
        a.e(f'v_cvt_pk_bf16_f32 v{O1+i}, v{65+4*i}, v{67+4*i}')
    a.inj_flush()
    a.e(f's_waitcnt vmcnt({len(dmas)})')
    if not OPT['hpriv']:
        a.e('s_barrier')
    a.e(f'buffer_store_dwordx4 v[{O0}:{O0+3}], v4, {WSR}, 0 offen sc1')
    a.e(f'buffer_store_dwordx4 v[{O1}:{O1+3}], v4, {WSR}, 0 offen offset:448 sc1')


def w_setup(a):
    srd(a, S_W1, P_W1, W1BYTES)
    srd(a, S_W2, P_W2, W2BYTES)
    a.e('v_lshrrev_b32 v4, 3, v1')
    a.e('v_bfe_u32 v5, v1, 4, 1')
    a.e('v_lshlrev_b32 v5, 1, v5')
    a.e('v_and_b32 v6, 7, v1')
    a.e('v_xor_b32 v6, v6, v5')
    a.e('v_xor_b32 v7, 4, v6')
    for vd, rowbytes, tile, rows in ((V_D1, F * 2, S_I1, 512), (V_D2, L * 2, S_I2, 448)):
        a.e(f's_mov_b32 s66, {rowbytes}')
        a.e('v_mul_lo_u32 v5, v4, s66')
        a.e(f's_mul_i32 s67, s{S_W}, {rows*rowbytes}')
        a.e(f's_lshl_b32 s66, s{tile}, 7')
        a.e('s_add_u32 s67, s67, s66')
        a.e('v_add_u32 v5, s67, v5')
        for i in range(4):
            a.e(f'v_lshl_add_u32 v{vd+i}, v{6 + (i & 1)}, 4, v5')
            if i:
                a.e(f'v_add_u32 v{vd+i}, {i*(8*rowbytes - 1024)}, v{vd+i}')
    a.e('v_lshlrev_b32 v5, 12, v4')
    a.e('v_and_b32 v6, 7, v1')
    a.e(f'v_lshl_add_u32 v{V_QPF}, v6, 4, v5')
    a.e(f's_and_b32 s66, s{S_LOC}, 3')
    a.e('s_mul_i32 s66, s66, 448')
    if OPT['sched'] == 3:
        a.e(f's_mul_i32 s67, s{S_W}, {(448 - OPT["hR"]) // 4}')
        a.e(f's_add_u32 s67, s67, {OPT["hR"]}')
    else:
        a.e(f's_mul_i32 s67, s{S_W}, 112')
    a.e('s_add_u32 s66, s66, s67')
    a.e('s_lshl_b32 s66, s66, 12')
    a.e(f's_lshl_b32 s67, s{S_I2}, 7')
    a.e(f's_add_u32 s{S_QPF}, s66, s67')
    a.e('v_lshrrev_b32 v4, 4, v1')
    a.e('v_bfe_u32 v5, v1, 2, 2')
    a.e('v_lshl_add_u32 v5, v4, 3, v5')
    a.e('v_lshlrev_b32 v5, 7, v5')
    a.e('v_and_b32 v6, 1, v1')
    a.e('v_lshl_add_u32 v5, v6, 3, v5')
    a.e('v_bfe_u32 v6, v1, 1, 1')
    a.e('v_lshl_add_u32 v5, v6, 4, v5')
    a.e('v_bfe_u32 v6, v1, 3, 1')
    a.e('v_and_b32 v4, 1, v4')
    a.e('v_lshl_add_u32 v6, v4, 1, v6')
    a.e(f's_and_b32 s66, s{S_LOC}, 3')
    a.e(f's_lshr_b32 s67, s{S_LOC}, 2')
    a.e('s_lshl_b32 s67, s67, 1')
    a.e('s_lshl_b32 s70, s66, 2')
    a.e('s_add_u32 s70, s70, s67')
    a.e('s_and_b32 s70, s70, 15')
    a.e(f's_mul_i32 s{S_RW1}, s70, {32*F*2}')
    a.e(f's_mul_i32 s{S_RX1}, s70, {4*7168}')
    a.e('s_mul_i32 s66, s66, 7')
    a.e('s_lshr_b32 s66, s66, 1')
    a.e('s_add_u32 s66, s66, s67')
    for _ in range(2):
        a.e('s_cmp_ge_u32 s66, 14')
        a.e('s_cselect_b32 s67, 14, 0')
        a.e('s_sub_u32 s66, s66, s67')
    a.e(f's_mul_i32 s{S_RW2}, s66, {32*L*2}')
    a.e(f's_mul_i32 s{S_RX2}, s66, {4*7168}')
    a.e(f's_lshl_b32 s{S_SA}, s{S_W}, 14')
    a.e(f's_add_u32 s{S_SA}, s{S_SA}, {L_WA}')
    a.e(f's_mul_i32 s{S_SB}, s{S_W}, 20480')
    a.e(f's_add_u32 s{S_SB}, s{S_SB}, {L_WB}')
    a.e(f's_lshl_b32 s{S_SC}, s{S_W}, 13')
    a.e(f's_add_u32 s{S_SC}, s{S_SC}, {L_WC}')
    for mu in range(4):
        a.e(f'v_xor_b32 v4, {mu}, v6')
        a.e('v_lshl_add_u32 v4, v4, 5, v5')
        a.e(f'v_add_u32 v{V_TA+mu}, s{S_SA}, v4')
        a.e(f'v_add_u32 v{V_TB+mu}, s{S_SB}, v4')
        a.e(f'v_add_u32 v{V_TC+mu}, s{S_SC}, v4')


def rot_off(a, idx, sreg, n, unit):
    a.e(f's_add_u32 s70, s{sreg}, {idx*unit}')
    a.e(f's_cmp_ge_u32 s70, {n*unit}')
    a.e(f's_cselect_b32 s71, {n*unit}, 0')
    a.e('s_sub_u32 s70, s70, s71')


def slot(name):
    return {'A': (S_SA, V_TA), 'B': (S_SB, V_TB), 'C': (S_SC, V_TC)}[name[0]] + (int(name[1]),)


def w_dma1(a, mat, slab, sl, i):
    sb, _, si = slot(sl)
    vd, srd_, rowbytes = (V_D1, S_W1, F * 2) if mat == 1 else (V_D2, S_W2, L * 2)
    if i == 0:
        rot_off(a, slab, S_RW1 if mat == 1 else S_RW2, 16 if mat == 1 else 14, 32 * rowbytes)
        a.e(f's_add_u32 m0, s{sb}, {si*4096}')
    a.e(f'buffer_load_dwordx4 v{vd + i}, s[{srd_}:{srd_+3}], s70 offen offset:{1024*i} lds')


def w_dma(a, mat, slab, sl):
    for i in range(4):
        w_dma1(a, mat, slab, sl, i)


def w_tr(a, slab, sl):
    _, vt, si = slot(sl)
    for mu in range(4):
        r = (slab * 4 + mu) * 4
        a.e(f'ds_read_b64_tr_b16 a[{r}:{r+1}], v{vt+mu} offset:{si*4096}')
        a.e(f'ds_read_b64_tr_b16 a[{r+2}:{r+3}], v{vt+mu} offset:{si*4096 + 512}')


def helper_w2(a, nrows):
    a.e(f's_lshr_b32 s66, s{S_XCD}, 1')
    a.e('s_lshl_b32 s66, s66, 10')
    a.e(f's_sub_u32 s67, s{S_LOC}, 28')
    a.e('s_mul_i32 s67, s67, 448')
    a.e(f's_add_u32 s67, s67, s{S_W}')
    a.e('s_lshl_b32 s67, s67, 12')
    a.e('s_add_u32 s70, s66, s67')
    a.e('v_lshlrev_b32 v4, 4, v1')
    l = a.lab('l2s')
    a.e(f's_mov_b32 s71, {nrows // 16}')
    a.e(f'{l}:')
    for i in range(4):
        a.e(f'buffer_load_dwordx4 v[220:223], v4, s[{S_W2}:{S_W2+3}], s70 offen')
        a.e(f's_add_u32 s70, s70, {4*L*2}')
    a.e('s_waitcnt vmcnt(8)')
    a.e('s_sub_u32 s71, s71, 1')
    a.e('s_cmp_lg_u32 s71, 0')
    a.e(f's_cbranch_scc1 {l}')


def qpf_load(a, n):
    for _ in range(n):
        a.e(f'buffer_load_dwordx4 v[220:223], v{V_QPF}, s[{S_W2}:{S_W2+3}], s{S_QPF} offen')
        a.e(f's_add_u32 s{S_QPF}, s{S_QPF}, {8*L*2}')


ACC = 16
XS = 80
NS = 6
VMAX = 214
V_X0, V_X3 = 208, 209


def gemm_xaddr(a, ws_off, kblocks):
    a.e(f's_mul_i32 s66, s{S_W}, {kblocks*7168}')
    a.e(f's_mul_i32 s67, s{S_J}, 896')
    a.e('s_add_u32 s66, s66, s67')
    a.e(f's_add_u32 s66, s66, {ws_off}')
    a.e('v_lshrrev_b32 v4, 4, v1')
    a.e('v_mul_u32_u24 v4, 7168, v4')
    a.e('v_add_u32 v4, s66, v4')
    a.e('v_and_b32 v5, 15, v1')
    a.e(f'v_lshl_add_u32 v{V_X0}, v5, 4, v4')
    if OPT['x3oob']:
        a.e(f'v_add_u32 v{V_X3}, 768, v{V_X0}')
        a.e(f'v_mov_b32 v4, {OOB}')
        a.e('v_cmp_gt_u32 vcc, 8, v5')
        a.e(f'v_cndmask_b32 v{V_X3}, v4, v{V_X3}, vcc')
    else:
        a.e('v_and_b32 v5, 7, v1')
        a.e('v_lshl_add_u32 v4, v5, 4, v4')
        a.e(f'v_add_u32 v{V_X3}, 768, v4')


def gemm_xloads(a, kappa, gid):
    st = XS + 16 * (kappa % NS)
    out = []
    sreg, n = (S_RX1, 16) if gid == 1 else (S_RX2, 14)
    unit = 4 * 7168
    out.append(f's_add_u32 s70, s{sreg}, {kappa*unit}')
    out.append(f's_cmp_ge_u32 s70, {n*unit}')
    out.append(f's_cselect_b32 s71, {n*unit}, 0')
    out.append('s_sub_u32 s70, s70, s71')
    for nu in range(3):
        out.append(f'buffer_load_dwordx4 v[{st+4*nu}:{st+4*nu+3}], v{V_X0}, {WSR}, s70 offen offset:{256*nu} sc1')
    out.append(f'buffer_load_dwordx4 v[{st+12}:{st+15}], v{V_X3}, {WSR}, s70 offen sc1')
    return out


def gemm_main(a, nk, gid, tail_hook=None):
    nfl = OPT['nfl']
    w_is_a = gid == 1
    a.e(f'v_mov_b32 v{VMAX}, 0')
    extra = 0
    for k in range(nk):
        st = XS + 16 * (k % NS)
        rem = min(nfl - 1, nk - 1 - k)
        a.e(f's_waitcnt vmcnt({4*rem + extra})')
        if OPT['stamps'] and k in (0, 4, 8, 12):
            stamp(a, (44 if w_is_a else 51) + (0, 4, 8, 12).index(k))
        fill = gemm_xloads(a, k + nfl, gid) if k + nfl < nk else []
        if k + nfl == nk and tail_hook is not None:
            fill = []
            extra = tail_hook(fill)
        mx = [f'v_max3_u32 v{VMAX}, v{VMAX}, v{st+2*i}, v{st+2*i+1}' for i in range(8)]
        n = 0
        for mu in range(4):
            for nu in range(4):
                w = (k * 4 + mu) * 4
                x = st + 4 * nu
                if w_is_a:
                    acc = ACC + (mu * 4 + nu) * 4
                    A, B = f'a[{w}:{w+3}]', f'v[{x}:{x+3}]'
                else:
                    acc = ACC + (nu * 4 + mu) * 4
                    A, B = f'v[{x}:{x+3}]', f'a[{w}:{w+3}]'
                cc = '0' if k == 0 else f'v[{acc}:{acc+3}]'
                a.e(f'v_mfma_f32_16x16x32_bf16 v[{acc}:{acc+3}], {A}, {B}, {cc}')
                for _ in range(2):
                    if fill:
                        a.e(fill.pop(0))
                if not fill and mx and n >= 4:
                    a.e(mx.pop(0))
                n += 1
        assert not fill and not mx


def sentinel(a, ws_off, kblocks):
    lp, ld = a.lab('spoll'), a.lab('sdone')
    a.e(f's_mul_i32 s66, s{S_W}, {kblocks*7168}')
    a.e(f's_mul_i32 s67, s{S_J}, 896')
    a.e('s_add_u32 s66, s66, s67')
    a.e(f's_add_u32 s66, s66, {ws_off + 55*16 + 12}')
    a.e('v_mul_u32_u24 v4, 7168, v1')
    a.e('v_add_u32 v4, s66, v4')
    if kblocks < 64:
        mask_lanes(a, 4, kblocks, 5)
    a.e(f's_mov_b32 s{S_SPIN}, 0')
    a.e(f'{lp}:')
    a.e(f'buffer_load_dword v5, v4, {WSR}, 0 offen sc1')
    a.e('s_waitcnt vmcnt(0)')
    a.e('v_cmp_eq_u32 vcc, -1, v5')
    a.e(f's_cbranch_vccz {ld}')
    spin_tail(a, lp)
    a.e(f'{ld}:')


def gemm_poll_main(a, ws_off, kblocks, nk, gid, sb, tail_hook=None):
    lr, lok = a.lab('gretry'), a.lab('gok')
    gemm_xaddr(a, ws_off, kblocks)
    a.e(f's_mov_b32 s{S_RETRY}, 0')
    a.e(f'{lr}:')
    sentinel(a, ws_off, kblocks)
    stamp(a, sb)
    for k in range(OPT['nfl']):
        for x in gemm_xloads(a, k, gid):
            a.e(x)
    gemm_main(a, nk, gid, tail_hook)
    a.e(f'v_cmp_eq_u32 vcc, -1, v{VMAX}')
    a.e(f's_cbranch_vccz {lok}')
    a.e(f's_add_u32 s{S_RETRY}, s{S_RETRY}, 1')
    a.e(f's_cmp_lt_u32 s{S_RETRY}, {RETRY_MAX}')
    a.e(f's_cbranch_scc1 {lr}')
    a.e(f'{lok}:')


def write_partials(a):
    a.e('v_and_b32 v4, 15, v1')
    a.e(f'v_mul_u32_u24 v4, {PROW}, v4')
    a.e('v_lshrrev_b32 v5, 4, v1')
    a.e('v_lshl_add_u32 v4, v5, 4, v4')
    a.e(f's_mul_i32 s66, s{S_W}, {PARTW}')
    a.e(f's_add_u32 s66, s66, {L_PART}')
    a.e('v_add_u32 v4, s66, v4')
    a.e('s_barrier')
    for mt in range(4):
        for nt in range(4):
            acc = ACC + (mt * 4 + nt) * 4
            a.e(f'ds_write_b128 v4, v[{acc}:{acc+3}] offset:{nt*16*PROW + mt*64}')


def sum_partials(a, P):
    for h in range(4):
        a.e(f'v_pk_add_f32 v[{P+2*h}:{P+2*h+1}], v[{P+2*h}:{P+2*h+1}], v[{P+8+2*h}:{P+9+2*h}]')
        a.e(f'v_pk_add_f32 v[{P+16+2*h}:{P+17+2*h}], v[{P+16+2*h}:{P+17+2*h}], v[{P+24+2*h}:{P+25+2*h}]')
    for h in range(4):
        a.e(f'v_pk_add_f32 v[{P+2*h}:{P+2*h+1}], v[{P+2*h}:{P+2*h+1}], v[{P+16+2*h}:{P+17+2*h}]')


def b1_load(a):
    a.e(f's_lshl_b32 s67, s{S_I1}, 7')
    a.e(f's_lshl_b32 s70, s{S_W}, 5')
    a.e('s_add_u32 s67, s67, s70')
    a.e(f's_load_dwordx8 s[72:79], s[{P_B1}:{P_B1+1}], s67')


def gemm1_epilogue(a, d0=(), d1=()):
    write_partials(a)
    a.e(f'v_mul_u32_u24 v4, {PROW}, v1')
    a.e(f's_lshl_b32 s66, s{S_W}, 6')
    a.e(f's_add_u32 s66, s66, {L_PART}')
    a.e('v_add_u32 v4, s66, v4')
    g_store_addr(a, 5)
    C1 = 0.044715
    C2 = -2.0 * 0.7978845608028654 * 1.4426950408889634
    a.e(f'v_mov_b32 v100, {fx(C1*C2)}')
    a.e(f'v_mov_b32 v101, {fx(C1*C2)}')
    a.e(f'v_mov_b32 v102, {fx(C2)}')
    a.e(f'v_mov_b32 v103, {fx(C2)}')
    a.e('s_waitcnt lgkmcnt(0)')
    a.e('s_barrier')
    stamp(a, 24)
    for r in range(2):
        P = 16 + 32 * r
        for wv in range(4):
            a.e(f'ds_read_b128 v[{P+8*wv}:{P+8*wv+3}], v4 offset:{wv*PARTW + r*32}')
            a.e(f'ds_read_b128 v[{P+8*wv+4}:{P+8*wv+7}], v4 offset:{wv*PARTW + r*32 + 16}')
    for i in range(8):
        a.e(f's_lshl_b32 s{80+2*i}, s{72+i}, 16')
        a.e(f's_and_b32 s{81+2*i}, s{72+i}, 0xffff0000')
    for r in range(2):
        P = 16 + 32 * r
        T = 80
        a.e(f's_waitcnt lgkmcnt({8 if r == 0 else 0})')
        if r == 1 and d1:
            a.e('s_barrier')
        dd = d0 if r == 0 else d1
        if dd:
            a.inject(dd, max(1, 80 // len(dd)))
        sum_partials(a, P)
        round_pairs(a, P, T, 8)
        for h in range(4):
            a.e(f'v_pk_add_f32 v[{P+2*h}:{P+2*h+1}], v[{P+2*h}:{P+2*h+1}], s[{80+8*r+2*h}:{81+8*r+2*h}]')
        round_pairs(a, P, T, 8)
        for h in range(4):
            a.e(f'v_pk_mul_f32 v[{P+8+2*h}:{P+9+2*h}], v[{P+2*h}:{P+2*h+1}], v[{P+2*h}:{P+2*h+1}]')
        for h in range(4):
            a.e(f'v_pk_fma_f32 v[{P+8+2*h}:{P+9+2*h}], v[{P+8+2*h}:{P+9+2*h}], v[100:101], v[102:103]')
        for h in range(4):
            a.e(f'v_pk_mul_f32 v[{P+8+2*h}:{P+9+2*h}], v[{P+8+2*h}:{P+9+2*h}], v[{P+2*h}:{P+2*h+1}]')
        for i in range(8):
            a.e(f'v_exp_f32 v{P+8+i}, v{P+8+i}')
        for h in range(4):
            a.e(f'v_pk_add_f32 v[{P+8+2*h}:{P+9+2*h}], v[{P+8+2*h}:{P+9+2*h}], 1.0 op_sel_hi:[1,0]')
        for i in range(8):
            a.e(f'v_rcp_f32 v{P+8+i}, v{P+8+i}')
        for h in range(4):
            a.e(f'v_pk_mul_f32 v[{P+2*h}:{P+2*h+1}], v[{P+2*h}:{P+2*h+1}], v[{P+8+2*h}:{P+9+2*h}]')
        O = 88 + 4 * r
        for h in range(4):
            a.e(f'v_cvt_pk_bf16_f32 v{O+h}, v{P+2*h}, v{P+2*h+1}')
        a.inj_flush()
        if r == 1:
            a.e('v_add_u32 v5, 7168, v5')
        a.e(f'buffer_store_dwordx4 v[{O}:{O+3}], v5, {WSR}, 0 offen sc1')


V_OUT, V_HAD, V_B2 = 210, 211, 212
V_HR = 196


def gemm2_addr(a):
    srd(a, S_T2, P_OUT, XBYTES)
    srd(a, S_T3, P_B2, L * 2)
    a.e('v_lshrrev_b32 v4, 3, v1')
    a.e('v_and_b32 v5, 7, v1')
    a.e(f's_lshl_b32 s66, s{S_W}, 4')
    a.e('v_add_u32 v4, s66, v4')
    a.e(f's_lshl_b32 s67, s{S_I2}, 6')
    a.e('v_add_u32 v7, s67, v4')
    a.e(f'v_mul_u32_u24 v{V_OUT}, 896, v7')
    a.e(f'v_lshl_add_u32 v{V_OUT}, v5, 4, v{V_OUT}')
    a.e(f's_mul_i32 s70, s{S_J}, 112')
    a.e(f'v_add_u32 v{V_OUT}, s70, v{V_OUT}')
    a.e(f'v_mov_b32 v6, {OOB}')
    a.e('v_cmp_gt_u32 vcc, 7, v5')
    a.e(f'v_cndmask_b32 v{V_OUT}, v6, v{V_OUT}, vcc')
    a.e(f'v_add_u32 v{V_HAD}, {WS_H}, v{V_OUT}')
    a.e(f'v_lshlrev_b32 v{V_B2}, 1, v7')


def gemm2_tail_loads(fill):
    fill.append(f'buffer_load_dwordx4 v[{V_HR}:{V_HR+3}], v{V_HAD}, {WSR}, 0 offen sc1')
    fill.append(f's_mov_b32 s70, {8*896}')
    fill.append(f'buffer_load_dwordx4 v[{V_HR+4}:{V_HR+7}], v{V_HAD}, {WSR}, s70 offen sc1')
    fill.append(f'buffer_load_ushort v{V_HR+8}, v{V_B2}, s[{S_T3}:{S_T3+3}], 0 offen')
    fill.append(f'buffer_load_ushort v{V_HR+9}, v{V_B2}, s[{S_T3}:{S_T3+3}], 0 offen offset:16')
    return 4


def gemm2_epilogue(a):
    write_partials(a)
    a.e('v_lshrrev_b32 v4, 3, v1')
    a.e('v_and_b32 v5, 7, v1')
    a.e(f's_lshl_b32 s66, s{S_W}, 4')
    a.e('v_add_u32 v4, s66, v4')
    a.e(f'v_mul_u32_u24 v6, {PROW}, v4')
    a.e('v_lshl_add_u32 v6, v5, 4, v6')
    a.e(f'v_add_u32 v6, {L_PART}, v6')
    a.e('s_waitcnt lgkmcnt(0)')
    a.e('s_barrier')
    stamp(a, 33)
    for r in range(2):
        P = 16 + 32 * r
        for wv in range(4):
            a.e(f'ds_read_b128 v[{P+8*wv}:{P+8*wv+3}], v6 offset:{wv*PARTW + r*8*PROW}')
            a.e(f'ds_read_b128 v[{P+8*wv+4}:{P+8*wv+7}], v6 offset:{wv*PARTW + r*8*PROW + 112}')
    a.e('s_waitcnt vmcnt(0)')
    for r in range(2):
        P = 16 + 32 * r
        T = 80
        H = V_HR + 4 * r
        a.e(f'v_lshlrev_b32 v106, 16, v{V_HR+8+r}')
        for i in range(4):
            a.e(f'v_lshlrev_b32 v{96+i}, 16, v{H+i}')
            a.e(f'v_and_b32 v{100+i}, 0xffff0000, v{H+i}')
        a.e(f's_waitcnt lgkmcnt({8 if r == 0 else 0})')
        sum_partials(a, P)
        round_pairs(a, P, T, 8)
        for h in range(4):
            a.e(f'v_pk_add_f32 v[{P+2*h}:{P+2*h+1}], v[{P+2*h}:{P+2*h+1}], v[106:107] op_sel:[0,0] op_sel_hi:[1,0]')
        round_pairs(a, P, T, 8)
        for h in range(4):
            a.e(f'v_pk_add_f32 v[{P+2*h}:{P+2*h+1}], v[{P+2*h}:{P+2*h+1}], v[{96+2*h}:{97+2*h}]')
        O = 88 + 4 * r
        for i in range(4):
            a.e(f'v_cvt_pk_bf16_f32 v{O+i}, v{P+i}, v{P+4+i}')
        if r == 1:
            a.e(f'v_add_u32 v{V_OUT}, {8*896}, v{V_OUT}')
        a.e(f'buffer_store_dwordx4 v[{O}:{O+3}], v{V_OUT}, s[{S_T2}:{S_T2+3}], 0 offen' + ['', ' sc1', ' nt', ' sc0 sc1', ' sc1 nt'][OPT['outsc']])


def build():
    a = Prog()
    name = NAME + '_kernel'
    lend = a.lab('end')
    a.raw(f'.globl {name}')
    a.raw('.p2align 8')
    a.raw(f'.type {name},@function')
    a.raw(f'{name}:')
    prologue(a, lend)
    lnc1, lnc2, lnc3, lnc5, lnc6 = [a.lab('noconv') for _ in range(5)]

    def skip_if_helper(l):
        a.e(f's_cmp_ge_u32 s{S_LOC}, 28')
        a.e(f's_cbranch_scc1 {l}')

    load_xrows(a)
    ncp = 0
    if OPT['cpf'] & 2:
        code_prefetch1(a, name, 'kcode_end')
        ncp = 1
    a.e(f's_add_u32 s66, s{P_WS}, {WS_EPOCH}')
    a.e(f's_addc_u32 s67, s{P_WS+1}, 0')
    a.e('s_load_dword s99, s[66:67], 0')
    poison_regs(a)
    skip_if_helper(lnc1)
    nt = 0
    if not OPT['plate']:
        kgen_loads(a)
        load_gather_table(a, 'ktab_idx')
        w_setup(a)
        if OPT['tlb'] & 2:
            nt = tlb_touch(a)
        flag_addr(a)
        a.e('s_waitcnt lgkmcnt(0)')
        a.e(f's_add_u32 s{S_TAG}, s99, 0x9e3779b9')
        a.e(f's_waitcnt vmcnt({10 + nt + ncp})')
        stamp(a, 2)
        clear_hh(a)
        clear_aout(a)
    else:
        kgen_loads(a, 'setup')
        w_setup(a)
        flag_addr(a)
        a.e(f's_waitcnt vmcnt({ncp})')
        stamp(a, 2)
        kgen_loads(a, 'issue')
        clear_hh(a)
        clear_aout(a)
        load_gather_table(a, 'ktab_idx')
        if OPT['tlb'] & 2:
            nt = tlb_touch(a)
        a.e('s_waitcnt lgkmcnt(0)')
        a.e(f's_add_u32 s{S_TAG}, s99, 0x9e3779b9')
    ln_stats(a, list(range(8, 16)), 16, L_RED0, 5)
    stamp(a, 3)
    publish_xn(a)
    nb0 = OPT['wb0']
    if OPT['sched'] == 2:
        qa, qb = OPT['qa'], OPT['qb']
        qpf_load(a, qa)
        stamp(a, 4)
        a.e(f's_waitcnt vmcnt({8 + nt + qa})')
        kgen_channel(a, 0, DK0)
        for k in range(nb0):
            w_dma(a, 1, k, BS[k])
        stamp(a, 40)
        kgen_channel(a, 1, DK1, mid=lambda: publish_flag(a, qa + 4 * nb0), mid_m0=False)
        stamp(a, 5)
        qpf_load(a, qb)
        a.e(f's_waitcnt vmcnt({qb})')
        for k in range(nb0):
            w_tr(a, k, BS[k])
        ktab_part1(a)
        stamp(a, 6)
        flag_load(a)
        ktab_part2(a)
        stamp(a, 7)
        a.e(f's_mov_b32 s{S_EARLY}, 0')
        lne = a.lab('notearly')
        a.e('s_waitcnt vmcnt(0)')
        a.e(f'v_cmp_ne_u32 vcc, s{S_TAG}, v{V_FV}')
        a.e(f's_cbranch_vccnz {lne}')
        load_u(a)
        a.e(f's_mov_b32 s{S_EARLY}, 1')
        a.e(f'{lne}:')
        conv_addr(a)
        kcopies(a)
        stamp(a, 8)
        lhave = a.lab('haveu')
        a.e(f's_cmp_lg_u32 s{S_EARLY}, 0')
        a.e(f's_cbranch_scc1 {lhave}')
        flag_poll(a)
        load_u(a)
        a.e(f'{lhave}:')
        stamp(a, 9)
        store_u(a, 0)
    elif OPT['sched'] == 3:
        nq = (448 - OPT['hR']) // 32
        ne = 0
        if OPT['cearly']:
            assert OPT['regc']
            for k in range(2):
                w_dma(a, 1, k, f'C{k}')
            q4 = min(OPT['q4'], nq)
            qpf_load(a, q4)
            ne = 8 + q4
            nq -= q4
        stamp(a, 4)
        a.e(f's_waitcnt vmcnt({8 + nt + ne})')
        kgen_channel(a, 0, DK0)
        publish_flag(a, ne)
        if OPT['regc']:
            nb0 = 2
            if not OPT['cearly']:
                for k in range(2):
                    w_dma(a, 1, k, f'C{k}')
        else:
            for k in range(nb0):
                w_dma(a, 1, k, BS[k])
        if OPT['cearly']:
            qpf_load(a, nq)
            nq = 0
        stamp(a, 40)
        kgen_channel(a, 1, DK1)
        stamp(a, 5)
        flag_load(a)
        qpf_load(a, nq)
        if not OPT['regc']:
            a.e(f's_waitcnt vmcnt({nq + 1})')
            for k in range(nb0):
                w_tr(a, k, BS[k])
        ktab_part1(a)
        stamp(a, 6)
        a.e(f's_mov_b32 s{S_EARLY}, 0')
        lne = a.lab('notearly')
        a.e(f's_waitcnt vmcnt({nq})')
        a.e(f'v_cmp_ne_u32 vcc, s{S_TAG}, v{V_FV}')
        a.e(f's_cbranch_vccnz {lne}')
        load_u(a)
        a.e(f's_mov_b32 s{S_EARLY}, 1')
        a.e(f'{lne}:')
        ktab_part2(a)
        stamp(a, 7)
        conv_addr(a)
        kcopies(a)
        stamp(a, 8)
        lhave = a.lab('haveu')
        a.e(f's_cmp_lg_u32 s{S_EARLY}, 0')
        a.e(f's_cbranch_scc1 {lhave}')
        flag_poll(a)
        load_u(a)
        a.e(f'{lhave}:')
        stamp(a, 9)
        store_u(a, 0)
    else:
        stamp(a, 4)
        a.e(f's_waitcnt vmcnt({8 + nt})')
        kgen_channel(a, 0, DK0)
        publish_flag(a)
        for k in range(min(nb0, 3)):
            w_dma(a, 1, k, BS[k])
        stamp(a, 40)
        kgen_channel(a, 1, DK1, mid=(lambda: [w_dma(a, 1, k, BS[k]) for k in range(3, nb0)]) if nb0 > 3 else None)
        stamp(a, 5)
        if OPT['early']:
            flag_load(a)
            a.e('s_waitcnt vmcnt(1)')
        else:
            a.e('s_waitcnt vmcnt(0)')
        for k in range(nb0):
            w_tr(a, k, BS[k])
        ktab_part1(a)
        stamp(a, 6)
        a.e(f's_mov_b32 s{S_EARLY}, 0')
        lne = a.lab('notearly')
        if OPT['early']:
            a.e('s_waitcnt vmcnt(0)')
            a.e(f'v_cmp_ne_u32 vcc, s{S_TAG}, v{V_FV}')
            a.e(f's_cbranch_vccnz {lne}')
            load_u(a)
            a.e(f's_mov_b32 s{S_EARLY}, 1')
            a.e(f'{lne}:')
        qpf_load(a, OPT['w2pf_a'])
        ktab_part2(a)
        stamp(a, 7)
        conv_addr(a)
        kcopies(a)
        stamp(a, 8)
        lhave = a.lab('haveu')
        a.e(f's_cmp_lg_u32 s{S_EARLY}, 0')
        a.e(f's_cbranch_scc1 {lhave}')
        flag_poll(a)
        load_u(a)
        a.e('s_waitcnt vmcnt(0)')
        a.e(f'{lhave}:')
        stamp(a, 9)
        store_u(a, OPT['w2pf_a'])
    epoch_update(a)
    clear_g(a)
    if OPT['sched'] == 1:
        qpf_load(a, OPT['w2pf_b'])
    stamp(a, 10)
    hk = []
    for k in range(4):
        for i in range(4):
            hk.append(lambda k=k, i=i: w_dma1(a, 1, nb0 + k, AS[k], i))
            hk.append(lambda: None)
    phase_conv(a, hk, 0)
    stamp(a, 12)
    if OPT['regc']:
        for k in range(2):
            w_tr(a, k, f'C{k}')
    for k in range(4):
        w_tr(a, nb0 + k, AS[k])
    a.e('s_waitcnt lgkmcnt(0)')
    a.e('s_barrier')
    rest = list(range(nb0 + 4, 16))
    last = None
    if len(rest) > 9:
        last = rest.pop()
    rest_slots = (BS + AS)[:len(rest)]
    p4d = []
    if OPT['p4dma']:
        assert OPT['hpriv']
        p4d = [lambda k=k, sl=sl, i=i: w_dma1(a, 1, k, sl, i) for k, sl in zip(rest, rest_slots) for i in range(4)]
    else:
        for k, sl in zip(rest, rest_slots):
            w_dma(a, 1, k, sl)
    stamp(a, 13)
    a.e(f's_branch {lnc2}')
    a.e(f'{lnc1}:')
    nh = 0
    if OPT['cpf'] & 1:
        code_prefetch(a, name, 'kcode_end')
        nh += 2
    w_setup(a)
    if OPT['tlb'] & 1:
        nh += tlb_touch(a)
    flag_addr(a)
    a.e('s_waitcnt lgkmcnt(0)')
    a.e(f's_add_u32 s{S_TAG}, s99, 0x9e3779b9')
    a.e(f's_waitcnt vmcnt({nh + ncp})')
    clear_hh(a)
    ln_stats(a, list(range(8, 16)), 16, L_RED0, 5)
    publish_xn(a)
    publish_flag(a)
    if OPT['sched'] == 3:
        qpf_load(a, (448 - OPT['hR']) // 32)
        helper_w2(a, OPT['hR'])
    else:
        qpf_load(a, 14)
    stamp(a, 41)
    flag_poll(a)
    a.e('s_barrier')
    if p4d:
        a.e(f's_mov_b32 s{S_W1+2}, 0')
    stamp(a, 42)
    a.e(f'{lnc2}:')
    phase_p4(a, p4d)
    stamp(a, 20)
    gemm2_addr(a)
    skip_if_helper(lnc3)
    b1_load(a)
    if p4d:
        a.e('s_waitcnt vmcnt(2)')
    for k, sl in zip(rest, rest_slots):
        w_tr(a, k, sl)
    a.e('s_waitcnt lgkmcnt(0)')
    if last is not None:
        w_dma(a, 1, last, 'A0')
    for k in range(5):
        w_dma(a, 2, k, BS[k])
    if last is not None:
        a.e('s_waitcnt vmcnt(20)')
        w_tr(a, last, 'A0')
        a.e('s_waitcnt lgkmcnt(0)')
    stamp(a, 21)
    gemm_poll_main(a, WS_HH, 64, 16, 1, 22)
    stamp(a, 23)
    if OPT['h4early']:
        for k in range(5):
            w_tr(a, k, BS[k])
        a.e('s_waitcnt lgkmcnt(0)')
        for k in range(5, 8):
            w_dma(a, 2, k, BS[k - 5])
        if OPT['e1dma']:
            d0 = [lambda k=k, i=i: w_dma1(a, 2, k, BS[k - 5], i) for k in range(8, 10) for i in range(4)]
            d1 = [lambda k=k, i=i: w_dma1(a, 2, k, AS[k - 10], i) for k in range(10, 14) for i in range(4)]
            gemm1_epilogue(a, d0, d1)
            stamp(a, 25)
            w1, w2, w3 = 26, 18, 1
        else:
            gemm1_epilogue(a)
            stamp(a, 25)
            a.e('s_barrier')
            for k in range(8, 10):
                w_dma(a, 2, k, BS[k - 5])
            for k in range(10, 14):
                w_dma(a, 2, k, AS[k - 10])
            w1, w2, w3 = 26, 16, 0
        a.e(f's_waitcnt vmcnt({w1})')
        for k in range(5, 8):
            w_tr(a, k, BS[k - 5])
        a.e(f's_waitcnt vmcnt({w2})')
        for k in range(8, 10):
            w_tr(a, k, BS[k - 5])
        a.e(f's_waitcnt vmcnt({w3})')
        for k in range(10, 14):
            w_tr(a, k, AS[k - 10])
        a.e('s_waitcnt lgkmcnt(0)')
        a.e(f's_branch {lnc6}')
    else:
        gemm1_epilogue(a)
        stamp(a, 25)
        for k in range(5):
            w_tr(a, k, BS[k])
        a.e('s_waitcnt lgkmcnt(0)')
        a.e('s_barrier')
        a.e(f's_branch {lnc5}')
    a.e(f'{lnc3}:')
    for k in range(5):
        w_dma(a, 2, k, BS[k])
    a.e('s_waitcnt vmcnt(0)')
    for k in range(5):
        w_tr(a, k, BS[k])
    a.e('s_waitcnt lgkmcnt(0)')
    a.e(f'{lnc5}:')
    for k in range(5, 10):
        w_dma(a, 2, k, BS[k - 5])
    for k in range(10, 14):
        w_dma(a, 2, k, AS[k - 10])
    a.e('s_waitcnt vmcnt(16)')
    for k in range(5, 10):
        w_tr(a, k, BS[k - 5])
    a.e('s_waitcnt vmcnt(0)')
    for k in range(10, 14):
        w_tr(a, k, AS[k - 10])
    a.e('s_waitcnt lgkmcnt(0)')
    a.e(f'{lnc6}:')
    stamp(a, 30)
    gemm_poll_main(a, WS_G, 56, 14, 2, 31, gemm2_tail_loads)
    stamp(a, 32)
    gemm2_epilogue(a)
    stamp_clk(a, 61)
    stamp(a, 63)
    stamp_flush(a)
    a.e(f'{lend}:')
    a.e('s_endpgm')
    a.raw('kcode_end:')
    emit_gather_table(a, 'ktab_idx')
    nn = a.fast_insert_nops()
    head = f'; @launch grid=(256,1,1) block=(256,1,1) lds={LDS_BYTES}\n'
    head += '.amdgcn_target "amdgcn-amd-amdhsa--gfx950"\n.text\n'
    tail = '.section .rodata,"a"\n.p2align 6\n' + descriptor(name)
    if OPT['align']:
        nal = a.align8(head, tail)
        sys.stderr.write(f'alignment: {nal}\n')
    sys.stderr.write(f'instructions: {a.count()}, nops inserted: {nn}\n')
    return head + a.text() + tail


if __name__ == '__main__':
    out = sys.argv[1]
    for arg in sys.argv[2:]:
        if arg == 'stamps':
            OPT['stamps'] = True
        elif arg == 'dbg':
            OPT['stamps'] = True
            OPT['dbgsel'] = [0, 1, 2, 4, 8, 9, 12, 13, 14, 20, 21, 23, 25, 30, 32, 63]
        elif '=' in arg:
            k, v = arg.split('=')
            OPT[k] = int(v)
    open(out, 'w').write(build())
```

```python
import sys
import gen
from gen import (Prog, NAME, L, D, F, XBYTES, PBYTES, W1BYTES, W2BYTES, OOB, fx, srd, reduce16, cmul, exp_bf16,
                 gather_table, emit_gather_table, descriptor, round_pairs, norm_tok, bcast_stats)

OPT = dict(stchk=1, p4dma=0, p4ev=6, e1dma=0, plate=0, cearly=0, q4=4, hpriv=1, regc=1, hR=256, c4=1, kgrp=3, tlbg=21, cpf=1, sched=3, qa=7, qb=7, tlb=3, outsc=0, x3oob=1, h4early=1, wb0=3, xnb=1, stamps=False, dbgsel=None, w2pf_a=10, w2pf_b=4, nfl=3, early=True, align=True, hlds=True)

WS_FLAG = 0x4000
WS_EPOCH = 0x9000
WS_AOUT = 0x10000
AST = 8448
WS_H = 0x200000
WS_HH = 0x400000
WS_G = 0x600000
WS_DBG = 0x800000
WS_XN = 0xA00000
XCS = 4352
XPS = 2 * XCS
WS_USED = 0x1000000

L_RED0, L_RED1, L_SIG, L_KT = 0, 256, 512, 640
KTCH = 1600
L_U = L_KT + 2 * KTCH
UCH = 4608
L_SCR = L_U + 2 * UCH
SROW = 272
YROW = 41
SCRW = 57 * SROW
L_KC = 82688
KCOPY = 4160
KCH = 8 * KCOPY
L_CP = L_KC
LDS_BYTES = 160 * 1024
L_WA, L_WB = 13056, 78592
L_WC = 123904
L_PART = 1024
PROW = 272
PARTW = 64 * PROW
L_HT = 1024

S_WS, S_X = 4, 8
S_T0, S_T1, S_T2, S_T3 = 12, 16, 20, 24
S_W1, S_W2 = 12, 16
S_W, S_XCD, S_LOC, S_B, S_P, S_J, S_I1, S_I2 = 28, 29, 30, 31, 32, 33, 34, 35
P_X, P_LAR, P_AI, P_CR, P_CI, P_LDT, P_DSK = 36, 38, 40, 42, 44, 46, 48
P_W1, P_B1, P_W2, P_B2, P_OUT, P_DBG, P_WS = 52, 54, 56, 58, 60, 62, 64
S_SA, S_SB = 50, 51
S_RW1, S_RX1, S_RW2, S_RX2 = 38, 39, 40, 41
S_QPF = 42
S_EARLY = 43
S_SC = 44
V_TC = 236
S_TAG, S_SPIN, S_RETRY = 96, 97, 98
V_D1, V_D2, V_TA, V_TB = 224, 228, 244, 248
V_QPF = 232
SPIN_MAX, RETRY_MAX = 4000, 20
AS = ['A0', 'A1', 'A2', 'A3']
BS = ['B0', 'B1', 'B2', 'B3', 'B4']
WSR = f's[{S_WS}:{S_WS+3}]'

assert (gen.S_W, gen.S_B, gen.S_WS) == (S_W, S_B, S_WS)


def stamp(a, idx):
    if not OPT['stamps']:
        return
    sel = OPT['dbgsel']
    if sel is not None:
        if idx not in sel:
            return
        idx = sel.index(idx)
    a.e('s_memrealtime s[100:101]')
    a.e('s_waitcnt lgkmcnt(0)')
    a.e(f'v_writelane_b32 v255, s100, {idx}')


def stamp_clk(a, idx):
    if not OPT['stamps'] or OPT['dbgsel'] is not None:
        return
    a.e('s_memtime s[100:101]')
    a.e('s_waitcnt lgkmcnt(0)')
    a.e(f'v_writelane_b32 v255, s100, {idx}')


def stamp_flush(a):
    if not OPT['stamps']:
        return
    l = a.lab('nost')
    a.e(f's_cmp_lg_u32 s{S_W}, 0')
    a.e(f's_cbranch_scc1 {l}')
    if OPT['dbgsel'] is not None:
        a.e('v_not_b32 v253, v255')
        a.e('v_cmp_eq_u32 vcc, 0, v1')
        a.e('v_cndmask_b32 v255, v255, v253, vcc')
        a.e('v_lshlrev_b32 v254, 2, v1')
        a.e('s_mov_b64 exec, 0xffff')
        a.e(f'global_atomic_umax v254, v255, s[{P_DBG}:{P_DBG+1}]')
        a.e('s_mov_b64 exec, -1')
    else:
        a.e('s_lshl_b32 s66, s2, 8')
        a.e(f's_add_u32 s66, s66, {WS_DBG}')
        a.e('v_lshl_add_u32 v254, v1, 2, s66')
        a.e(f'buffer_store_dword v255, v254, {WSR}, 0 offen')
    a.e(f'{l}:')


def spin_tail(a, lp):
    a.e(f's_add_u32 s{S_SPIN}, s{S_SPIN}, 1')
    a.e(f's_cmp_lt_u32 s{S_SPIN}, {SPIN_MAX}')
    a.e(f's_cbranch_scc1 {lp}')


def mask_lanes(a, v, n, tmp, src='v1'):
    a.e(f'v_mov_b32 v{tmp}, {OOB}')
    a.e(f'v_cmp_gt_u32 vcc, {n}, {src}')
    a.e(f'v_cndmask_b32 v{v}, v{tmp}, v{v}, vcc')


def prologue(a, lend):
    a.e('s_cmp_ge_u32 s2, 256')
    a.e(f's_cbranch_scc1 {lend}')
    if OPT['stamps']:
        a.e('v_mov_b32 v255, 0')
        stamp(a, 0)
        stamp_clk(a, 60)
    a.e('s_load_dwordx16 s[36:51], s[0:1], 0')
    a.e('s_load_dwordx8 s[52:59], s[0:1], 64')
    a.e('s_load_dwordx4 s[60:63], s[0:1], 96')
    a.e('s_load_dwordx2 s[64:65], s[0:1], 112')
    a.e('v_and_b32 v1, 63, v0')
    a.e('v_lshrrev_b32 v2, 6, v0')
    a.e(f's_and_b32 s{S_XCD}, s2, 7')
    a.e(f'v_readfirstlane_b32 s{S_W}, v2')
    a.e(f's_lshr_b32 s{S_LOC}, s2, 3')
    a.e(f's_lshl_b32 s{S_B}, s{S_XCD}, 5')
    a.e(f's_add_u32 s{S_B}, s{S_B}, s{S_LOC}')
    a.e(f's_mul_i32 s{S_P}, s{S_XCD}, 28')
    a.e(f's_add_u32 s{S_P}, s{S_P}, s{S_LOC}')
    a.e(f's_and_b32 s{S_J}, s{S_XCD}, 1')
    a.e(f's_lshl_b32 s{S_J}, s{S_J}, 2')
    a.e(f's_and_b32 s3, s{S_LOC}, 3')
    a.e(f's_add_u32 s{S_J}, s{S_J}, s3')
    a.e(f's_lshr_b32 s3, s{S_XCD}, 1')
    a.e(f's_lshr_b32 s66, s{S_LOC}, 2')
    a.e(f's_mul_i32 s{S_I1}, s3, 7')
    a.e(f's_add_u32 s{S_I1}, s{S_I1}, s66')
    a.e(f's_lshl_b32 s{S_I2}, s3, 3')
    a.e(f's_add_u32 s{S_I2}, s{S_I2}, s66')
    a.e('s_waitcnt lgkmcnt(0)')
    srd(a, S_X, P_X, XBYTES)
    srd(a, S_WS, P_WS, WS_USED)
    stamp(a, 1)


def xrow_addr(a):
    a.e(f's_mul_i32 s66, s{S_W}, 224')
    a.e(f's_mul_i32 s67, s{S_B}, {8*896}')
    a.e('s_add_u32 s66, s66, s67')
    a.e('v_lshl_add_u32 v2, v1, 2, s66')
    mask_lanes(a, 2, 56, 3)
    a.e('v_add_u32 v3, 4480, v2')


def load_xrows(a):
    xrow_addr(a)
    for j in range(8):
        v, o = (2, j * 896) if j < 5 else (3, (j - 5) * 896)
        a.e(f'buffer_load_dword v{8+j}, v{v}, s[{S_X}:{S_X+3}], 0 offen offset:{o}')


def ln_stats(a, X, T, red, vt, mid=None):
    a.e('s_mov_b32 s66, 0x3f803f80')
    for j in range(8):
        a.e(f'v_dot2_f32_bf16 v{T+j}, v{X[j]}, s66, 0')
        a.e(f'v_dot2_f32_bf16 v{T+8+j}, v{X[j]}, v{X[j]}, 0')
    a.e(f'v_lshlrev_b32 v{vt}, 2, v1')
    a.e(f'v_and_b32 v{vt}, 0xf0, v{vt}')
    a.e(f's_lshl_b32 s66, s{S_W}, 2')
    a.e(f'v_add_u32 v{vt}, s66, v{vt}')
    reduce16(a, [T + i for i in range(16)])
    a.inj_pause()
    a.e('s_mov_b32 exec_lo, 0x11111111')
    a.e('s_mov_b32 exec_hi, 0x11111111')
    a.e(f'ds_write_b32 v{vt}, v{T} offset:{red}')
    a.e('s_mov_b64 exec, -1')
    a.inj_resume()
    a.e(f'v_and_b32 v{vt}, 7, v1')
    a.e(f'v_lshlrev_b32 v{vt}, 4, v{vt}')
    a.e('s_waitcnt lgkmcnt(0)')
    a.e('s_barrier')
    a.e(f'ds_read_b128 v[{T}:{T+3}], v{vt} offset:{red}')
    a.e(f'ds_read_b128 v[{T+4}:{T+7}], v{vt} offset:{red+128}')
    n_mid = mid() if mid else 0
    a.e(f's_waitcnt lgkmcnt({1 + n_mid})')
    a.e(f'v_pk_add_f32 v[{T}:{T+1}], v[{T}:{T+1}], v[{T+2}:{T+3}]')
    a.e(f's_waitcnt lgkmcnt({n_mid})')
    a.e(f'v_pk_add_f32 v[{T+4}:{T+5}], v[{T+4}:{T+5}], v[{T+6}:{T+7}]')
    a.e(f'v_add_f32 v{T}, v{T}, v{T+1}')
    a.e(f'v_add_f32 v{T+4}, v{T+4}, v{T+5}')
    a.e(f'v_mul_f32 v{T}, {fx(1.0/448)}, v{T}')
    a.e(f'v_mul_f32 v{T+4}, {fx(1.0/448)}, v{T+4}')
    a.e(f'v_fma_f32 v{T+4}, -v{T}, v{T}, v{T+4}')
    a.e(f'v_max_f32 v{T+4}, 0, v{T+4}')
    a.e(f'v_cvt_pk_bf16_f32 v{T+4}, v{T+4}, v{T+4}')
    a.e(f'v_lshlrev_b32 v{T+4}, 16, v{T+4}')
    a.e(f'v_add_f32 v{T+4}, {fx(1e-5)}, v{T+4}')
    a.e(f'v_cvt_pk_bf16_f32 v{T+4}, v{T+4}, v{T+4}')
    a.e(f'v_lshlrev_b32 v{T+4}, 16, v{T+4}')
    a.e(f'v_sqrt_f32 v{T+4}, v{T+4}')
    a.e(f'v_cvt_pk_bf16_f32 v{T}, v{T}, v{T+4}')


def poison_regs(a):
    for r in range(216, 220):
        a.e(f'v_mov_b32 v{r}, -1')


def clear_hh(a):
    a.e(f's_mul_i32 s66, s{S_B}, 7168')
    a.e(f's_add_u32 s66, s66, {WS_HH}')
    a.e('v_lshl_add_u32 v4, v0, 4, s66')
    a.e('v_add_u32 v5, 4096, v4')
    mask_lanes(a, 5, 192, 6, 'v0')
    a.e(f'buffer_store_dwordx4 v[216:219], v4, {WSR}, 0 offen sc1')
    a.e(f'buffer_store_dwordx4 v[216:219], v5, {WSR}, 0 offen sc1')


def clear_aout(a):
    a.e(f's_mul_i32 s66, s{S_P}, {AST}')
    a.e(f's_add_u32 s66, s66, {WS_AOUT}')
    a.e('v_lshl_add_u32 v4, v0, 4, s66')
    a.e('v_add_u32 v5, 4096, v4')
    a.e(f'buffer_store_dwordx4 v[216:219], v4, {WSR}, 0 offen sc1')
    a.e(f'buffer_store_dwordx4 v[216:219], v5, {WSR}, 0 offen sc1')


def g_store_addr(a, vd):
    a.e(f's_lshl_b32 s66, s{S_I1}, 3')
    a.e(f's_lshl_b32 s70, s{S_W}, 1')
    a.e('s_add_u32 s66, s66, s70')
    a.e('s_mul_i32 s66, s66, 7168')
    a.e(f's_mul_i32 s70, s{S_J}, 896')
    a.e('s_add_u32 s66, s66, s70')
    a.e(f's_add_u32 s66, s66, {WS_G}')
    a.e(f'v_lshl_add_u32 v{vd}, v1, 4, s66')
    mask_lanes(a, vd, 56, 6)


def clear_g(a):
    g_store_addr(a, 4)
    a.e('v_add_u32 v5, 7168, v4')
    a.e(f'buffer_store_dwordx4 v[216:219], v4, {WSR}, 0 offen sc1')
    a.e(f'buffer_store_dwordx4 v[216:219], v5, {WSR}, 0 offen sc1')


def publish_xn(a):
    bcast_stats(a, 16)
    for j in range(8):
        d = 64 + 2 * j
        t = 48 + j
        a.e(f'v_lshlrev_b32 v{d}, 16, v{8+j}')
        a.e(f'v_and_b32 v{d+1}, 0xffff0000, v{8+j}')
        a.e(f'v_pk_add_f32 v[{d}:{d+1}], v[{d}:{d+1}], s[{72+2*j}:{73+2*j}] op_sel:[0,0] op_sel_hi:[1,0] neg_lo:[0,1] neg_hi:[0,1]')
        a.e(f'v_cvt_pk_bf16_f32 v{t}, v{d}, v{d+1}')
        a.e(f'v_lshlrev_b32 v{d}, 16, v{t}')
        a.e(f'v_and_b32 v{d+1}, 0xffff0000, v{t}')
        a.e(f'v_pk_mul_f32 v[{d}:{d+1}], v[{d}:{d+1}], s[{72+2*j}:{73+2*j}] op_sel:[0,1] op_sel_hi:[1,1]')
        a.e(f'v_cvt_pk_bf16_f32 v{t}, v{d}, v{d+1}')
        a.e(f'v_lshlrev_b32 v{d}, 16, v{t}')
        a.e(f'v_and_b32 v{d+1}, 0xffff0000, v{t}')
    for i in range(4):
        a.e(f'v_cvt_pk_f16_f32 v{80+i}, v{64+4*i}, v{66+4*i}')
        a.e(f'v_cvt_pk_f16_f32 v{84+i}, v{65+4*i}, v{67+4*i}')
    if OPT['xnb']:
        a.e(f's_mul_i32 s66, s{S_W}, {56*16}')
        a.e(f's_mul_i32 s67, s{S_B}, 7168')
        a.e('s_add_u32 s66, s66, s67')
        a.e(f's_add_u32 s66, s66, {WS_XN}')
        a.e('v_lshl_add_u32 v4, v1, 4, s66')
        mask_lanes(a, 4, 56, 5)
        a.e('v_add_u32 v5, 3584, v4')
    else:
        a.e(f's_mul_i32 s66, s{S_W}, {56*XPS}')
        a.e(f's_lshl_b32 s67, s{S_B}, 4')
        a.e('s_add_u32 s66, s66, s67')
        a.e(f's_add_u32 s66, s66, {WS_XN}')
        a.e(f'v_mul_u32_u24 v4, {XPS}, v1')
        a.e('v_add_u32 v4, s66, v4')
        mask_lanes(a, 4, 56, 5)
        a.e(f'v_add_u32 v5, {XCS}, v4')
    a.e(f'buffer_store_dwordx4 v[80:83], v4, {WSR}, 0 offen sc1')
    a.e(f'buffer_store_dwordx4 v[84:87], v5, {WSR}, 0 offen sc1')


def publish_flag(a, vm=0):
    a.e(f's_waitcnt vmcnt({vm})')
    a.e('s_barrier')
    l = a.lab('noflag')
    a.e(f's_cmp_lg_u32 s{S_W}, 0')
    a.e(f's_cbranch_scc1 {l}')
    a.e(f's_lshl_b32 s66, s{S_B}, 6')
    a.e(f's_add_u32 s66, s66, {WS_FLAG}')
    a.e('v_mov_b32 v2, s66')
    a.e(f'v_mov_b32 v3, s{S_TAG}')
    a.e('s_mov_b64 exec, 1')
    a.e(f'buffer_store_dword v3, v2, {WSR}, 0 offen sc1')
    a.e('s_mov_b64 exec, -1')
    a.e(f'{l}:')


V_FA, V_FV = 233, 234


def flag_addr(a):
    a.e(f'v_lshlrev_b32 v{V_FA}, 6, v0')
    a.e(f'v_add_u32 v{V_FA}, {WS_FLAG}, v{V_FA}')


def flag_load(a):
    a.e(f'buffer_load_dword v{V_FV}, v{V_FA}, {WSR}, 0 offen sc1')


def flag_poll(a):
    lp, ld = a.lab('fpoll'), a.lab('fdone')
    a.e(f's_mov_b32 s{S_SPIN}, 0')
    a.e(f'{lp}:')
    flag_load(a)
    a.e('s_waitcnt vmcnt(0)')
    a.e(f'v_cmp_ne_u32 vcc, s{S_TAG}, v{V_FV}')
    a.e(f's_cbranch_vccz {ld}')
    spin_tail(a, lp)
    a.e(f'{ld}:')


def load_u(a):
    if OPT['xnb']:
        a.e(f's_lshl_b32 s66, s{S_P}, 4')
        a.e(f's_add_u32 s66, s66, {WS_XN}')
        a.e('v_mul_u32_u24 v2, 7168, v0')
        a.e('v_add_u32 v2, s66, v2')
        a.e('v_add_u32 v3, 3584, v2')
    else:
        a.e(f's_mul_i32 s66, s{S_P}, {XPS}')
        a.e(f's_add_u32 s66, s66, {WS_XN}')
        a.e('v_lshl_add_u32 v2, v0, 4, s66')
        a.e(f'v_add_u32 v3, {XCS}, v2')
    a.e(f'buffer_load_dwordx4 v[176:179], v2, {WSR}, 0 offen sc1')
    a.e(f'buffer_load_dwordx4 v[180:183], v3, {WSR}, 0 offen sc1')


def epoch_update(a):
    le = a.lab('noep')
    a.e('s_cmp_lg_u32 s2, 0')
    a.e(f's_cbranch_scc1 {le}')
    a.e(f'v_mov_b32 v2, {WS_EPOCH}')
    a.e(f'v_mov_b32 v3, s{S_TAG}')
    a.e('s_mov_b64 exec, 1')
    a.e(f'buffer_store_dword v3, v2, {WSR}, 0 offen sc1')
    a.e('s_mov_b64 exec, -1')
    a.e(f'{le}:')


def code_prefetch(a, lstart, lend_):
    lp = a.lab('pcp')
    a.e('s_getpc_b64 s[74:75]')
    a.e(f'{lp}:')
    a.e(f's_sub_u32 s74, s74, {lp}-{lstart}')
    a.e('s_subb_u32 s75, s75, 0')
    a.e('v_lshlrev_b32 v4, 6, v0')
    a.e(f's_mov_b32 s76, {lend_}-{lstart}-4')
    a.e('v_add_u32 v5, 16384, v4')
    a.e('v_add_u32 v6, 32768, v4')
    a.e('v_min_u32 v4, s76, v4')
    a.e('v_min_u32 v5, s76, v5')
    a.e('v_min_u32 v6, s76, v6')
    a.e('global_load_dword v220, v4, s[74:75]')
    a.e('global_load_dword v220, v5, s[74:75]')
    a.e('global_load_dword v220, v6, s[74:75]')


def code_prefetch1(a, lstart, lend_):
    lp = a.lab('pcp')
    a.e('s_getpc_b64 s[74:75]')
    a.e(f'{lp}:')
    a.e('v_lshlrev_b32 v4, 6, v0')
    a.e(f's_mov_b32 s76, {lend_}-{lp}-4')
    a.e('v_min_u32 v4, s76, v4')
    a.e('global_load_dword v220, v4, s[74:75]')


def tlb_touch(a):
    g = OPT['tlbg']
    n = 0
    srd(a, S_T2, P_OUT, XBYTES)
    srd(a, S_T3, P_B2, L * 2)
    if g == 21:
        a.e('v_lshlrev_b32 v4, 21, v1')
        for s_ in (S_W1, S_W2, S_WS, S_T2, S_T3):
            a.e(f'buffer_load_dword v220, v4, s[{s_}:{s_+3}], 0 offen')
            n += 1
    else:
        a.e(f'v_lshlrev_b32 v4, {g}, v0')
        for s_, nbytes in ((S_W1, W1BYTES), (S_W2, W2BYTES), (S_WS, 0xC00000), (S_T2, XBYTES), (S_T3, 4096)):
            for k in range(-(-nbytes // (256 << g))):
                a.e(f's_mov_b32 s70, {k * (256 << g)}')
                a.e(f'buffer_load_dword v220, v4, s[{s_}:{s_+3}], s70 offen')
                n += 1
    return n


def kgen_loads(a, part=None):
    R = (S_T0, S_T1, S_T2, S_T3) if part is None else (72, 76, 80, 84)
    if part != 'issue':
        for r, p in zip(R, (P_LAR, P_AI, P_CR, P_CI)):
            srd(a, r, p, PBYTES)
        a.e(f's_lshl_b32 s66, s{S_P}, 10')
        a.e(f's_lshl_b32 s67, s{S_W}, 7')
        a.e('s_add_u32 s66, s66, s67')
        a.e('v_lshl_add_u32 v235, v1, 1, s66')
        a.e(f's_lshl_b32 s66, s{S_P}, 2')
        a.e(f's_load_dword s68, s[{P_LDT}:{P_LDT+1}], s66')
        a.e(f's_load_dword s69, s[{P_DSK}:{P_DSK+1}], s66')
    if part != 'setup':
        for c in range(2):
            for k, s in enumerate(R):
                a.e(f'buffer_load_ushort v{40+4*c+k}, v235, s[{s}:{s+3}], 0 offen offset:{512*c}')


def load_gather_table(a, tablabel):
    lp = a.lab('pc')
    a.e('s_getpc_b64 s[70:71]')
    a.e(f'{lp}:')
    a.e(f's_add_u32 s70, s70, {tablabel}-{lp}')
    a.e('s_addc_u32 s71, s71, 0')
    a.e('v_lshlrev_b32 v2, 5, v0')
    a.e('global_load_dwordx4 v[160:163], v2, s[70:71]')
    a.e('global_load_dwordx4 v[164:167], v2, s[70:71] offset:16')


DK0, DK1 = 16, 28


def kgen_channel(a, c, DACC, mid=None, mid_m0=True):
    LAR, AI, CR, CI = 40 + 4 * c, 41 + 4 * c, 42 + 4 * c, 43 + 4 * c
    SIG, DT = 52 + c, 54 + c
    AL, BE = 56, 57
    Z1, Z2, Z4, Z8, Z128, Z256, Z512, Z1024 = 58, 60, 62, 64, 66, 68, 70, 72
    X0, CA, CB, CC, T0, T1 = 74, 76, 78, 80, 82, 84
    CV = [86, 87, 88, 89]
    VW, VR = 90, 91
    t, t2 = 92, 93
    for r in (LAR, AI, CR, CI):
        a.e(f'v_lshlrev_b32 v{r}, 16, v{r}')
    a.e('s_lshl_b32 s66, s68, 16' if c == 0 else 's_and_b32 s66, s68, 0xffff0000')
    a.e(f'v_mov_b32 v{t2}, s66')
    exp_bf16(a, DT, t2, t)
    a.e(f'v_add_f32 v{SIG}, abs(v{CR}), abs(v{CI})')
    exp_bf16(a, AL, LAR, t)
    a.e(f'v_add_f32_dpp v{SIG}, v{SIG}, v{SIG} quad_perm:[1,0,3,2] row_mask:0xf bank_mask:0xf')
    a.e(f'v_mul_f32 v{AL}, v{AL}, v{DT}')
    a.e(f'v_mul_f32 v{BE}, v{AI}, v{DT}')
    a.e(f'v_add_f32_dpp v{SIG}, v{SIG}, v{SIG} quad_perm:[2,3,0,1] row_mask:0xf bank_mask:0xf')
    a.e(f'v_mul_f32 v{AL}, {fx(-1.4426950408889634)}, v{AL}')
    a.e(f'v_mul_f32 v{BE}, {fx(0.15915494309189535)}, v{BE}')
    a.e(f'v_add_f32_dpp v{SIG}, v{SIG}, v{SIG} row_half_mirror row_mask:0xf bank_mask:0xf')
    a.e(f'v_exp_f32 v{T0}, v{AL}')
    a.e(f'v_fract_f32 v{t}, v{BE}')
    a.e(f'v_add_f32_dpp v{SIG}, v{SIG}, v{SIG} row_ror:8 row_mask:0xf bank_mask:0xf')
    a.e(f'v_cos_f32 v{Z1}, v{t}')
    a.e(f'v_sin_f32 v{Z1+1}, v{t}')
    a.e(f'v_mov_b32 v{t2}, v{SIG}')
    a.e(f'v_mul_f32 v{T1}, 0x43000000, v{AL}')
    a.e(f'v_mul_f32 v{t}, 0x43000000, v{BE}')
    a.e(f'v_permlane16_swap_b32 v{SIG}, v{t2}')
    a.e(f'v_pk_mul_f32 v[{Z1}:{Z1+1}], v[{Z1}:{Z1+1}], v[{T0}:{T0+1}] op_sel:[0,0] op_sel_hi:[1,0]')
    a.e(f'v_add_f32 v{SIG}, v{SIG}, v{t2}')
    a.e(f'v_exp_f32 v{T1}, v{T1}')
    a.e(f'v_fract_f32 v{t}, v{t}')
    a.e(f'v_mov_b32 v{t2}, v{SIG}')
    a.e(f'v_cos_f32 v{Z128}, v{t}')
    a.e(f'v_sin_f32 v{Z128+1}, v{t}')
    a.e(f'v_permlane32_swap_b32 v{SIG}, v{t2}')
    cmul(a, Z2, Z1, Z1, Z2)
    a.e(f'v_add_f32 v{SIG}, v{SIG}, v{t2}')
    a.e(f'v_pk_mul_f32 v[{Z128}:{Z128+1}], v[{Z128}:{Z128+1}], v[{T1}:{T1+1}] op_sel:[0,0] op_sel_hi:[1,0]')
    a.e(f'v_add_f32 v{SIG}, {fx(1e-30)}, v{SIG}')
    cmul(a, Z4, Z2, Z2, Z4)
    a.e(f'v_rcp_f32 v{t}, v{SIG}')
    cmul(a, Z256, Z128, Z128, Z256)
    cmul(a, Z8, Z4, Z4, Z8)
    a.e(f'v_mul_f32 v{X0}, v{CR}, v{t}')
    a.e(f'v_mul_f32 v{X0+1}, v{CI}, v{t}')
    cmul(a, Z512, Z256, Z256, Z512)
    a.e(f's_mul_i32 s66, s{S_W}, {SCRW}')
    a.e(f's_add_u32 s66, s66, {L_SCR}')
    a.e('s_mov_b32 m0, s66')
    cmul(a, Z1024, Z512, Z512, Z1024)
    a.e(f'v_and_b32 v{t}, 15, v1')
    a.e(f'v_mul_u32_u24 v{t}, {SROW}, v{t}')
    a.e(f'v_lshrrev_b32 v{t2}, 4, v1')
    a.e(f'v_lshl_add_u32 v{t}, v{t2}, 4, v{t}')
    a.e(f'v_add_u32 v{VR}, s66, v{t}')
    cvi = [0]
    pend = []

    def flush(keep):
        while len(pend) > keep:
            cv, off = pend.pop(0)
            a.e(f'ds_write_addtid_b32 v{cv} offset:{off}')

    G = OPT['kgrp']
    if G > 1:
        CV = list(range(96, 112))

    def put(off, r, neg):
        cv = CV[cvi[0] % len(CV)]
        cvi[0] += 1
        a.e(f'v_cvt_pk_f16_f32 v{cv}, v{r}, {"-" if neg else ""}v{r+1}')
        if G > 1:
            pend.append((cv, off))
            if len(pend) >= G + 1:
                flush(1)
        else:
            flush(1)
            pend.append((cv, off))

    def putX(row, r):
        put(row * SROW, r, True)

    def putY(b, r):
        put((YROW + b) * SROW, r, False)

    a.e(f'v_mov_b32 v{VW}, 0x00003c00')
    pend.append((VW, YROW * SROW))
    putY(1, Z8)
    ychain = {'cur': Z8, 'b': 1}
    YA, YB = CC, 94

    def ystep():
        if ychain['b'] >= 15:
            return
        d = YA if ychain['cur'] != YA else YB
        cmul(a, d, ychain['cur'], Z8, d)
        ychain['b'] += 1
        ychain['cur'] = d
        putY(ychain['b'], d)

    putX(0, X0)
    cmul(a, T0, X0, Z128, T0)
    putX(8, T0)
    cur = X0
    for j in range(1, 8):
        d = CA if cur != CA else CB
        cmul(a, d, cur, Z1, d)
        ystep()
        putX(j, d)
        cmul(a, T0, d, Z128, T0)
        putX(8 + j, T0)
        cur = d
    cmul(a, CA, X0, Z256, CA)
    ystep()
    putX(16, CA)
    cmul(a, T0, CA, Z128, T0)
    putX(20, T0)
    cur = CA
    for j in range(1, 4):
        d = CA if cur != CA else CB
        cmul(a, d, cur, Z2, d)
        ystep()
        putX(16 + j, d)
        cmul(a, T0, d, Z128, T0)
        putX(20 + j, T0)
        cur = d
    if mid is not None:
        if mid_m0:
            flush(0)
        mid()
        if mid_m0:
            a.e(f's_mul_i32 s66, s{S_W}, {SCRW}')
            a.e(f's_add_u32 s66, s66, {L_SCR}')
            a.e('s_mov_b32 m0, s66')
    cmul(a, CA, X0, Z512, CA)
    ystep()
    putX(24, CA)
    cmul(a, CB, CA, Z4, CB)
    ystep()
    putX(25, CB)
    pa, pb = CA, CB
    na, nb = T0, T1
    for q in range(1, 4):
        cmul(a, na, pa, Z128, na)
        cmul(a, nb, pb, Z128, nb)
        ystep()
        putX(24 + 2 * q, na)
        putX(25 + 2 * q, nb)
        pa, pb, na, nb = na, nb, pa, pb
    cmul(a, CA, X0, Z1024, CA)
    putX(32, CA)
    cur = CA
    for q in range(1, 9):
        d = CA if cur != CA else CB
        cmul(a, d, cur, Z128, d)
        putX(32 + q, d)
        cur = d
    while ychain['b'] < 15:
        ystep()
    flush(0)
    FA = 96
    for k in range(4):
        a.e(f'ds_read_b128 v[{144+4*k}:{147+4*k}], v{VR} offset:{YROW*SROW+64*k}')
        for T in range(3):
            r = FA + 16 * T + 4 * k
            a.e(f'ds_read_b128 v[{r}:{r+3}], v{VR} offset:{16*T*SROW+64*k}')
    for k in range(4):
        a.e(f's_waitcnt lgkmcnt({4*(3-k)})')
        for T in range(3):
            r = FA + 16 * T + 4 * k
            cc = '0' if k == 0 else f'v[{DACC+4*T}:{DACC+4*T+3}]'
            a.e(f'v_mfma_f32_16x16x32_f16 v[{DACC+4*T}:{DACC+4*T+3}], v[{r}:{r+3}], v[{144+4*k}:{147+4*k}], {cc}')


def ktab_part1(a):
    a.e(f's_mul_i32 s66, s{S_W}, {SCRW}')
    a.e(f's_add_u32 s66, s66, {L_SCR}')
    a.e('v_lshl_add_u32 v90, v1, 4, s66')
    a.e(f's_lshl_b32 s67, s{S_W}, 2')
    a.e(f's_add_u32 s67, s67, {L_SIG}')
    a.e('v_mov_b32 v91, s67')
    a.e('s_mov_b64 exec, 1')
    a.e('ds_write_b32 v91, v52')
    a.e('ds_write_b32 v91, v53 offset:16')
    a.e('s_mov_b64 exec, -1')
    for c, DK in ((0, DK0), (1, DK1)):
        for T in range(3):
            for h in range(2):
                i = DK + 4 * T + 2 * h
                a.e(f'v_pk_mul_f32 v[{i}:{i+1}], v[{i}:{i+1}], v[52:53] op_sel:[0,{c}] op_sel_hi:[1,{c}]')
            a.e(f'ds_write_b128 v90, v[{DK+4*T}:{DK+4*T+3}] offset:{c*3072+T*1024}')
    a.e('v_mov_b32 v96, 0')
    a.e('v_mov_b32 v97, 0')
    a.e('v_mov_b32 v98, 0')
    a.e('v_mov_b32 v99, 0')
    a.e(f'v_mov_b32 v92, {L_KT + 1536}')
    a.e('ds_write_b32 v92, v96')
    a.e(f'ds_write_b32 v92, v96 offset:{KTCH}')
    a.e('v_lshlrev_b32 v92, 3, v1')
    a.e(f'ds_write_b64 v92, v[96:97] offset:{L_U}')
    a.e(f'ds_write_b64 v92, v[96:97] offset:{L_U + UCH}')
    a.e('s_waitcnt lgkmcnt(0)')
    a.e('s_barrier')


def ktab_part2(a):
    a.e(f'v_mov_b32 v91, {L_SIG}')
    a.e('ds_read_b128 v[44:47], v91')
    a.e('ds_read_b128 v[48:51], v91 offset:16')
    a.e(f's_and_b32 s67, s{S_W}, 1')
    a.e(f's_lshr_b32 s70, s{S_W}, 1')
    a.e('s_mul_i32 s71, s67, 3072')
    a.e('s_lshl_b32 s72, s70, 10')
    a.e('s_add_u32 s72, s72, s71')
    a.e(f's_add_u32 s72, s72, {L_SCR}')
    a.e(f's_add_u32 s71, s71, {L_SCR + 2048}')
    a.e('v_lshl_add_u32 v90, v1, 4, s72')
    a.e('v_lshl_add_u32 v91, v1, 4, s71')
    for wv in range(4):
        a.e(f'ds_read_b128 v[{96+4*wv}:{99+4*wv}], v90 offset:{wv*SCRW}')
    for wv in range(4):
        a.e(f'ds_read_b128 v[{112+4*wv}:{115+4*wv}], v91 offset:{wv*SCRW}')
    a.e('v_mov_b32 v128, 0')
    a.e('v_mov_b32 v129, 0')
    a.e('v_mov_b32 v130, 0')
    a.e('v_mov_b32 v131, 0')
    if OPT['c4']:
        a.e('v_and_b32 v132, 7, v1')
        a.e(f'v_mul_u32_u24 v132, {KCOPY}, v132')
        a.e('v_bfe_u32 v133, v1, 3, 1')
        a.e('v_lshl_add_u32 v132, v133, 4, v132')
    else:
        a.e('v_and_b32 v132, 15, v1')
        a.e(f'v_mul_u32_u24 v132, {KCOPY}, v132')
    a.e(f'v_add_u32 v132, {L_KC}, v132')
    a.e('ds_write_b128 v132, v[128:131] offset:4096')
    a.e('v_lshrrev_b32 v92, 4, v1')
    a.e('v_lshlrev_b32 v92, 7, v92')
    a.e('v_and_b32 v93, 15, v1')
    a.e('v_lshl_add_u32 v92, v93, 1, v92')
    a.e(f's_mul_i32 s71, s67, {KTCH}')
    a.e(f's_add_u32 s71, s71, {L_KT}')
    a.e('v_add_u32 v93, s71, v92')
    a.e('s_lshl_b32 s72, s70, 9')
    a.e('v_add_u32 v92, s72, v93')
    a.e('s_waitcnt lgkmcnt(9)')
    a.e('v_pk_add_f32 v[44:45], v[44:45], v[46:47]')
    a.e('v_pk_add_f32 v[48:49], v[48:49], v[50:51]')
    a.e('v_add_f32 v44, v44, v45')
    a.e('v_add_f32 v45, v48, v49')
    a.e('s_cmp_eq_u32 s67, 0')
    a.e('s_cselect_b64 vcc, -1, 0')
    a.e('v_pk_mul_f32 v[54:55], v[54:55], v[44:45]')
    a.e('v_cndmask_b32 v46, v45, v44, vcc')
    a.e('v_pk_add_f32 v[54:55], v[54:55], v[54:55]')
    a.e('v_rcp_f32 v46, v46')
    for jb, (base, va, off) in enumerate(((96, 92, 0), (112, 93, 1024))):
        a.e(f's_waitcnt lgkmcnt({5 if jb == 0 else 5})')
        for h in range(2):
            a.e(f'v_pk_add_f32 v[{base+2*h}:{base+2*h+1}], v[{base+2*h}:{base+2*h+1}], v[{base+4+2*h}:{base+5+2*h}]')
            a.e(f'v_pk_add_f32 v[{base+8+2*h}:{base+9+2*h}], v[{base+8+2*h}:{base+9+2*h}], v[{base+12+2*h}:{base+13+2*h}]')
        for h in range(2):
            a.e(f'v_pk_add_f32 v[{base+2*h}:{base+2*h+1}], v[{base+2*h}:{base+2*h+1}], v[{base+8+2*h}:{base+9+2*h}]')
        for h in range(2):
            a.e(f'v_pk_mul_f32 v[{base+2*h}:{base+2*h+1}], v[{base+2*h}:{base+2*h+1}], v[46:47] op_sel:[0,0] op_sel_hi:[1,0]')
        a.e(f'v_cvt_pk_f16_f32 v{base+4}, v{base}, v{base+1}')
        a.e(f'v_cvt_pk_f16_f32 v{base+5}, v{base+2}, v{base+3}')
        a.e(f'ds_write_b16 v{va}, v{base+4} offset:{off}')
        a.e(f'ds_write_b16_d16_hi v{va}, v{base+4} offset:{off+32}')
        a.e(f'ds_write_b16 v{va}, v{base+5} offset:{off+64}')
        a.e(f'ds_write_b16_d16_hi v{va}, v{base+5} offset:{off+96}')
    for e in range(11 if OPT['c4'] else 15):
        src = 160 + e // 2
        if e % 2 == 0:
            a.e(f'v_and_b32 v{136+e}, 0xffff, v{src}')
        else:
            a.e(f'v_lshrrev_b32 v{136+e}, 16, v{src}')
    a.e('s_waitcnt lgkmcnt(0)')
    a.e('s_barrier')


def kch():
    return (4 if OPT['c4'] else 8) * KCOPY


def kcopies(a):
    AD = 136
    a.e('v_lshlrev_b32 v111, 4, v0')
    a.e(f'v_add_u32 v111, {L_KC}, v111')
    RR = [96, 112]
    if OPT['c4']:
        for c in range(2):
            for e in range(11):
                a.e(f'ds_read_u16 v{RR[c]+e}, v{AD+e} offset:{L_KT + c*KTCH}')
        for c in range(2):
            R = RR[c]
            Da, Db, Oa, Ob = (56, 60, 64, 68) if c == 0 else (16, 20, 24, 28)
            a.e(f's_waitcnt lgkmcnt({11 if c == 0 else 4})')
            for i in range(4):
                a.e(f'v_lshl_or_b32 v{Da+i}, v{R+2*i+1}, 16, v{R+2*i}')
                a.e(f'v_lshl_or_b32 v{Oa+i}, v{R+2*i+2}, 16, v{R+2*i+1}')
                a.e(f'v_lshl_or_b32 v{Db+i}, v{R+2*i+3}, 16, v{R+2*i+2}')
                a.e(f'v_lshl_or_b32 v{Ob+i}, v{R+2*i+4}, 16, v{R+2*i+3}')
            for s_, r in ((0, Da), (1, Oa), (2, Db), (3, Ob)):
                a.e(f'ds_write_b128 v111, v[{r}:{r+3}] offset:{c*kch() + s_*KCOPY}')
        return
    for c in range(2):
        for e in range(15):
            a.e(f'ds_read_u16 v{RR[c]+e}, v{AD+e} offset:{L_KT + c*KTCH}')
    for c in range(2):
        R = RR[c]
        Da, Db, Oa, Ob = 56 + 0, 64, 72, 80
        if c == 1:
            Da, Db, Oa, Ob = 16, 24, 32, 40
        a.e(f's_waitcnt lgkmcnt({15 if c == 0 else 8})')
        for i in range(6):
            a.e(f'v_lshl_or_b32 v{Da+i}, v{R+2*i+1}, 16, v{R+2*i}')
            a.e(f'v_lshl_or_b32 v{Oa+i}, v{R+2*i+2}, 16, v{R+2*i+1}')
        if c == 1:
            a.e(f'v_add_u32 v110, {KCH}, v111')
        va = 111 if c == 0 else 110
        for s, r in ((0, Da), (1, Oa), (4, Da + 2), (5, Oa + 2)):
            a.e(f'ds_write_b128 v{va}, v[{r}:{r+3}] offset:{s*KCOPY}')
        for i in range(6):
            a.e(f'v_lshl_or_b32 v{Db+i}, v{R+2*i+3}, 16, v{R+2*i+2}')
            a.e(f'v_lshl_or_b32 v{Ob+i}, v{R+2*i+4}, 16, v{R+2*i+3}')
        for s, r in ((2, Db), (3, Ob), (6, Db + 2), (7, Ob + 2)):
            a.e(f'ds_write_b128 v{va}, v[{r}:{r+3}] offset:{s*KCOPY}')


def store_u(a, vm):
    a.e('v_lshlrev_b32 v2, 4, v0')
    a.e(f's_waitcnt vmcnt({vm})')
    a.e(f'ds_write_b128 v2, v[176:179] offset:{L_U + 512}')
    a.e(f'ds_write_b128 v2, v[180:183] offset:{L_U + UCH + 512}')
    a.e('s_waitcnt lgkmcnt(0)')
    a.e('s_barrier')


def phase_conv(a, hooks, pre_vm):
    hooks = list(hooks)
    ACC = 16
    FA = [[64 + 64 * s + 4 * i for i in range(8)] for s in range(2)]
    FB = [[96 + 64 * s + 4 * i for i in range(8)] for s in range(2)]
    VA, VB = 48, 49

    def loads(qq, s):
        out = []
        for i in range(8):
            out.append(f'ds_read_b128 v[{FB[s][i]}:{FB[s][i]+3}], v{VB} offset:{512*i + 64*(3-qq)}')
            if OPT['c4']:
                o = 512 * (7 - i) + 64 * (3 - qq)
                out.append(f'ds_read_b64 v[{FA[s][i]}:{FA[s][i]+1}], v{VA} offset:{o}')
                out.append(f'ds_read_b64 v[{FA[s][i]+2}:{FA[s][i]+3}], v{VA} offset:{o + 8}')
            else:
                out.append(f'ds_read_b128 v[{FA[s][i]}:{FA[s][i]+3}], v{VA} offset:{512*(7-i) + 64*(3-qq)}')
        return out

    for x in loads(0, 0):
        a.e(x)
    for qq in range(4):
        s = qq & 1
        nxt = loads(qq + 1, 1 - s) if qq < 3 else []
        n = 0
        for w in range(8):
            for c in range(w, 8):
                if n == 0:
                    a.e('s_waitcnt lgkmcnt(0)')
                cc = '0' if (qq == 0 and w == 0) else f'v[{ACC+4*c}:{ACC+4*c+3}]'
                a.e(f'v_mfma_f32_16x16x32_f16 v[{ACC+4*c}:{ACC+4*c+3}], v[{FA[s][w]}:{FA[s][w]+3}], v[{FB[s][c-w]}:{FB[s][c-w]+3}], {cc}')
                if nxt and (n % 2 == 1 or (OPT['c4'] and n % 4 == 0)):
                    a.e(nxt.pop(0))
                if hooks and n % 4 == 2:
                    hooks.pop(0)()
                n += 1
        assert not nxt
    assert not hooks
    stamp(a, 11)
    CP, TS = L_CP, 1280
    a.e('v_and_b32 v2, 15, v1')
    a.e('v_lshlrev_b32 v2, 4, v2')
    a.e('v_lshrrev_b32 v3, 4, v1')
    a.e('v_mul_u32_u24 v3, 320, v3')
    a.e('v_add_u32 v2, v2, v3')
    a.e(f's_mul_i32 s70, s{S_W}, {8*TS}')
    a.e(f's_add_u32 s70, s70, {CP}')
    a.e('v_add_u32 v2, s70, v2')
    a.e('s_barrier')
    for c in range(8):
        a.e(f'ds_write_b128 v2, v[{ACC+4*c}:{ACC+4*c+3}] offset:{c*TS}')
    a.e('v_lshrrev_b32 v2, 2, v1')
    a.e('v_lshlrev_b32 v2, 4, v2')
    a.e('v_and_b32 v3, 3, v1')
    a.e('v_mul_u32_u24 v3, 320, v3')
    a.e('v_add_u32 v2, v2, v3')
    a.e(f's_lshl_b32 s70, s{S_W}, 1')
    a.e(f's_mul_i32 s71, s70, {TS}')
    a.e(f's_add_u32 s71, s71, {CP}')
    a.e('v_add_u32 v2, s71, v2')
    a.e('s_lshl_b32 s71, s70, 9')
    a.e(f's_add_u32 s71, s71, {L_U + 512}')
    a.e('v_lshl_add_u32 v3, v1, 3, s71')
    a.e(f's_mul_i32 s71, s{S_P}, {AST}')
    a.e('s_lshl_b32 s72, s70, 10')
    a.e('s_add_u32 s71, s71, s72')
    a.e(f's_add_u32 s71, s71, {WS_AOUT}')
    a.e('v_lshl_add_u32 v4, v1, 4, s71')
    a.e('s_lshl_b32 s72, s69, 16')
    a.e('s_and_b32 s73, s69, 0xffff0000')
    a.e('v_mov_b32 v56, s72')
    a.e('v_mov_b32 v57, s73')
    a.e(f's_waitcnt lgkmcnt(0) vmcnt({pre_vm})')
    a.e('s_barrier')
    for q in range(2):
        P = 64 + 32 * q
        for ch in range(2):
            for hf in range(2):
                r = P + 8 * ch + 4 * hf
                a.e(f'ds_read_b128 v[{r}:{r+3}], v2 offset:{(2*ch+hf)*8*TS + q*TS}')
        for ch in range(2):
            a.e(f'ds_read_b64 v[{P+16+2*ch}:{P+17+2*ch}], v3 offset:{ch*UCH + q*512}')
    for q in range(2):
        P = 64 + 32 * q
        a.e(f's_waitcnt lgkmcnt({6 if q == 0 else 0})')
        for ch in range(2):
            y = P + 8 * ch
            T = 128 + 16 * ch
            u = P + 16 + 2 * ch
            for h in range(2):
                a.e(f'v_pk_add_f32 v[{y+2*h}:{y+2*h+1}], v[{y+2*h}:{y+2*h+1}], v[{y+4+2*h}:{y+5+2*h}]')
            for i in range(4):
                a.e(f'v_fma_mix_f32 v{T+i}, v{u+i//2}, v{56+ch}, 0 op_sel:[{i%2},0,0] op_sel_hi:[1,0,0]')
            for h in range(2):
                a.e(f'v_pk_mul_f32 v[{y+2*h}:{y+2*h+1}], v[{y+2*h}:{y+2*h+1}], v[54:55] op_sel:[0,{ch}] op_sel_hi:[1,{ch}]')
            for h in range(2):
                a.e(f'v_cvt_pk_bf16_f32 v{T+6+h}, v{T+2*h}, v{T+2*h+1}')
                a.e(f'v_cvt_pk_bf16_f32 v{T+4+h}, v{y+2*h}, v{y+2*h+1}')
            for h in range(2):
                a.e(f'v_lshlrev_b32 v{T+2*h}, 16, v{T+6+h}')
                a.e(f'v_and_b32 v{T+2*h+1}, 0xffff0000, v{T+6+h}')
                a.e(f'v_lshlrev_b32 v{y+2*h}, 16, v{T+4+h}')
                a.e(f'v_and_b32 v{y+2*h+1}, 0xffff0000, v{T+4+h}')
            for h in range(2):
                a.e(f'v_pk_add_f32 v[{y+2*h}:{y+2*h+1}], v[{y+2*h}:{y+2*h+1}], v[{T+2*h}:{T+2*h+1}]')
        O = 160 + 4 * q
        for i in range(4):
            a.e(f'v_cvt_pk_bf16_f32 v{O+i}, v{P+i}, v{P+8+i}')
        a.e(f'buffer_store_dwordx4 v[{O}:{O+3}], v4, {WSR}, 0 offen offset:{q*1024} sc1')


def conv_addr(a):
    a.e(f's_lshr_b32 s66, s{S_W}, 1')
    a.e(f's_and_b32 s67, s{S_W}, 1')
    a.e('v_and_b32 v2, 7, v1')
    a.e('v_sub_u32 v2, 7, v2')
    if OPT['c4']:
        a.e('v_lshrrev_b32 v5, 2, v2')
        a.e('v_and_b32 v2, 3, v2')
        a.e(f'v_mul_u32_u24 v2, {KCOPY}, v2')
        a.e('v_lshl_add_u32 v2, v5, 3, v2')
    else:
        a.e(f'v_mul_u32_u24 v2, {KCOPY}, v2')
    a.e('v_lshrrev_b32 v3, 4, v1')
    a.e('v_bfe_u32 v4, v1, 3, 1')
    a.e('v_sub_u32 v4, v3, v4')
    a.e('v_lshl_add_u32 v2, v4, 4, v2')
    a.e(f's_mul_i32 s70, s66, {kch()}')
    a.e('s_lshl_b32 s71, s67, 8')
    a.e('s_sub_u32 s70, s70, s71')
    a.e(f's_add_u32 s70, s70, {L_KC + 16*253 - 512*7 - 64*3}')
    a.e('v_add_u32 v48, s70, v2')
    a.e('v_and_b32 v2, 15, v1')
    a.e('v_lshlrev_b32 v2, 5, v2')
    a.e('v_lshl_add_u32 v2, v3, 4, v2')
    a.e(f's_mul_i32 s70, s66, {UCH}')
    a.e('s_sub_u32 s70, s70, s71')
    a.e(f's_add_u32 s70, s70, {L_U + 480 - 64*3}')
    a.e('v_add_u32 v49, s70, v2')


def phase_p4(a, dmas=()):
    X = list(range(8, 16))
    A = 32
    xrow_addr(a)
    a.e(f's_mul_i32 s66, s{S_W}, {56*AST}')
    a.e(f's_lshl_b32 s67, s{S_B}, 5')
    a.e('s_add_u32 s66, s66, s67')
    a.e(f's_add_u32 s66, s66, {WS_AOUT}')
    a.e(f'v_mul_u32_u24 v4, {AST}, v1')
    a.e('v_add_u32 v4, s66, v4')
    a.e(f'v_mov_b32 v5, {OOB}')
    a.e('v_cndmask_b32 v4, v5, v4, vcc')
    if OPT['hpriv']:
        a.e(f's_mul_i32 s66, s{S_W}, 1792')
        a.e(f's_add_u32 s66, s66, {L_HT}')
        a.e('v_lshl_add_u32 v6, v1, 2, s66')
        a.e('v_lshl_add_u32 v7, v1, 4, s66')
        a.e(f's_mul_i32 s66, s{S_B}, 7168')
        a.e(f's_mul_i32 s67, s{S_W}, 224')
        a.e('s_add_u32 s66, s66, s67')
        a.e(f's_add_u32 s66, s66, {WS_H}')
        for k, vd in ((0, 56), (64, 57)):
            a.e(f'v_add_u32 v58, {k}, v1')
            a.e('v_mul_u32_u24 v59, 4682, v58')
            a.e('v_lshrrev_b32 v59, 16, v59')
            a.e(f'v_mul_u32_u24 v{vd}, {896 - 224}, v59')
            a.e(f'v_lshl_add_u32 v{vd}, v58, 4, v{vd}')
            a.e(f'v_add_u32 v{vd}, s66, v{vd}')
        mask_lanes(a, 57, 48, 58)
    else:
        a.e(f's_mul_i32 s66, s{S_W}, 224')
        a.e(f's_add_u32 s66, s66, {L_HT}')
        a.e('v_lshl_add_u32 v6, v1, 2, s66')
    for j in range(8):
        a.e(f'v_lshlrev_b32 v{64+2*j}, 16, v{X[j]}')
        a.e(f'v_and_b32 v{65+2*j}, 0xffff0000, v{X[j]}')
    lp, ld = a.lab('h2poll'), a.lab('h2done')
    a.e(f's_mov_b32 s{S_SPIN}, 0')
    a.e(f'{lp}:')
    a.e(f'buffer_load_dwordx4 v[{A}:{A+3}], v4, {WSR}, 0 offen sc1')
    a.e(f'buffer_load_dwordx4 v[{A+4}:{A+7}], v4, {WSR}, 0 offen offset:16 sc1')
    a.e('s_waitcnt vmcnt(0)')
    a.e(f'v_max3_u32 v40, v{A}, v{A+1}, v{A+2}')
    a.e(f'v_max3_u32 v41, v{A+3}, v{A+4}, v{A+5}')
    a.e(f'v_max3_u32 v40, v40, v{A+6}, v{A+7}')
    a.e('v_max_u32 v40, v40, v41')
    a.e('v_cmp_eq_u32 vcc, -1, v40')
    a.e(f's_cbranch_vccz {ld}')
    spin_tail(a, lp)
    a.e(f'{ld}:')
    stamp(a, 14)
    H = list(range(48, 56))
    for j in range(8):
        t = 40 + 2 * (j % 4)
        a.e(f'v_lshlrev_b32 v{t}, 16, v{A+j}')
        a.e(f'v_and_b32 v{t+1}, 0xffff0000, v{A+j}')
        a.e(f'v_pk_add_f32 v[{t}:{t+1}], v[{t}:{t+1}], v[{64+2*j}:{65+2*j}]')
        a.e(f'v_cvt_pk_bf16_f32 v{H[j]}, v{t}, v{t+1}')
    a.e('s_mov_b32 exec_hi, 0x00ffffff')
    for j in range(8):
        a.e(f'ds_write_b32 v6, v{H[j]} offset:{j*(224 if OPT["hpriv"] else 896)}')
    a.e('s_mov_b32 exec_hi, -1')
    if OPT['hpriv']:
        a.e('ds_read_b128 v[32:35], v7')
        a.e('ds_read_b128 v[36:39], v7 offset:1024')
        a.e('s_waitcnt lgkmcnt(1)')
        a.e(f'buffer_store_dwordx4 v[32:35], v56, {WSR}, 0 offen sc1')
        a.e('s_waitcnt lgkmcnt(0)')
        a.e(f'buffer_store_dwordx4 v[36:39], v57, {WSR}, 0 offen sc1')
        if dmas:
            a.inject(dmas, OPT['p4ev'])
        ln_stats(a, H, 16, L_RED0, 5)
    else:
        def hstore():
            a.e('v_lshlrev_b32 v7, 4, v0')
            a.e(f'ds_read_b128 v[56:59], v7 offset:{L_HT}')
            a.e(f'ds_read_b128 v[60:63], v7 offset:{L_HT + 4096}')
            return 2

        ln_stats(a, H, 16, L_RED0, 5, mid=hstore)
        a.e(f's_mul_i32 s66, s{S_B}, 7168')
        a.e(f's_add_u32 s66, s66, {WS_H}')
        a.e('v_add_u32 v6, s66, v7')
        a.e('v_add_u32 v7, 4096, v6')
        mask_lanes(a, 7, 192, 4, 'v0')
        a.e('s_waitcnt lgkmcnt(0)')
        a.e(f'buffer_store_dwordx4 v[56:59], v6, {WSR}, 0 offen sc1')
        a.e(f'buffer_store_dwordx4 v[60:63], v7, {WSR}, 0 offen sc1')
    bcast_stats(a, 16)
    a.inj_pause()
    a.e('s_mov_b32 exec_hi, 0x00ffffff')
    for j in range(8):
        t = 40 + 2 * (j % 4)
        norm_tok(a, j, H[j], t)
        a.e(f'v_cvt_pk_bf16_f32 v{H[j]}, v{t}, v{t+1}')
    a.e('s_mov_b32 exec_hi, -1')
    a.inj_resume()
    ln_stats(a, H, 16, L_RED1, 5)
    bcast_stats(a, 16)
    a.e(f's_mul_i32 s66, s{S_B}, 7168')
    a.e(f's_mul_i32 s67, s{S_W}, 1792')
    a.e('s_add_u32 s66, s66, s67')
    a.e(f's_add_u32 s66, s66, {WS_HH}')
    a.e('v_lshl_add_u32 v4, v1, 4, s66')
    a.e('v_add_u32 v5, 448, v4')
    a.e('v_cmp_gt_u32 vcc, 28, v1')
    a.e('v_cndmask_b32 v4, v5, v4, vcc')
    mask_lanes(a, 4, 56, 5)
    for j in range(8):
        norm_tok(a, j, H[j], 64 + 2 * j)
    O0, O1 = 80, 84
    for i in range(4):
        a.e(f'v_cvt_pk_bf16_f32 v{O0+i}, v{64+4*i}, v{66+4*i}')
        a.e(f'v_cvt_pk_bf16_f32 v{O1+i}, v{65+4*i}, v{67+4*i}')
    a.inj_flush()
    a.e(f's_waitcnt vmcnt({len(dmas)})')
    if not OPT['hpriv']:
        a.e('s_barrier')
    a.e(f'buffer_store_dwordx4 v[{O0}:{O0+3}], v4, {WSR}, 0 offen sc1')
    a.e(f'buffer_store_dwordx4 v[{O1}:{O1+3}], v4, {WSR}, 0 offen offset:448 sc1')


def w_setup(a):
    srd(a, S_W1, P_W1, W1BYTES)
    srd(a, S_W2, P_W2, W2BYTES)
    a.e('v_lshrrev_b32 v4, 3, v1')
    a.e('v_bfe_u32 v5, v1, 4, 1')
    a.e('v_lshlrev_b32 v5, 1, v5')
    a.e('v_and_b32 v6, 7, v1')
    a.e('v_xor_b32 v6, v6, v5')
    a.e('v_xor_b32 v7, 4, v6')
    for vd, rowbytes, tile, rows in ((V_D1, F * 2, S_I1, 512), (V_D2, L * 2, S_I2, 448)):
        a.e(f's_mov_b32 s66, {rowbytes}')
        a.e('v_mul_lo_u32 v5, v4, s66')
        a.e(f's_mul_i32 s67, s{S_W}, {rows*rowbytes}')
        a.e(f's_lshl_b32 s66, s{tile}, 7')
        a.e('s_add_u32 s67, s67, s66')
        a.e('v_add_u32 v5, s67, v5')
        for i in range(4):
            a.e(f'v_lshl_add_u32 v{vd+i}, v{6 + (i & 1)}, 4, v5')
            if i:
                a.e(f'v_add_u32 v{vd+i}, {i*(8*rowbytes - 1024)}, v{vd+i}')
    a.e('v_lshlrev_b32 v5, 12, v4')
    a.e('v_and_b32 v6, 7, v1')
    a.e(f'v_lshl_add_u32 v{V_QPF}, v6, 4, v5')
    a.e(f's_and_b32 s66, s{S_LOC}, 3')
    a.e('s_mul_i32 s66, s66, 448')
    if OPT['sched'] == 3:
        a.e(f's_mul_i32 s67, s{S_W}, {(448 - OPT["hR"]) // 4}')
        a.e(f's_add_u32 s67, s67, {OPT["hR"]}')
    else:
        a.e(f's_mul_i32 s67, s{S_W}, 112')
    a.e('s_add_u32 s66, s66, s67')
    a.e('s_lshl_b32 s66, s66, 12')
    a.e(f's_lshl_b32 s67, s{S_I2}, 7')
    a.e(f's_add_u32 s{S_QPF}, s66, s67')
    a.e('v_lshrrev_b32 v4, 4, v1')
    a.e('v_bfe_u32 v5, v1, 2, 2')
    a.e('v_lshl_add_u32 v5, v4, 3, v5')
    a.e('v_lshlrev_b32 v5, 7, v5')
    a.e('v_and_b32 v6, 1, v1')
    a.e('v_lshl_add_u32 v5, v6, 3, v5')
    a.e('v_bfe_u32 v6, v1, 1, 1')
    a.e('v_lshl_add_u32 v5, v6, 4, v5')
    a.e('v_bfe_u32 v6, v1, 3, 1')
    a.e('v_and_b32 v4, 1, v4')
    a.e('v_lshl_add_u32 v6, v4, 1, v6')
    a.e(f's_and_b32 s66, s{S_LOC}, 3')
    a.e(f's_lshr_b32 s67, s{S_LOC}, 2')
    a.e('s_lshl_b32 s67, s67, 1')
    a.e('s_lshl_b32 s70, s66, 2')
    a.e('s_add_u32 s70, s70, s67')
    a.e('s_and_b32 s70, s70, 15')
    a.e(f's_mul_i32 s{S_RW1}, s70, {32*F*2}')
    a.e(f's_mul_i32 s{S_RX1}, s70, {4*7168}')
    a.e('s_mul_i32 s66, s66, 7')
    a.e('s_lshr_b32 s66, s66, 1')
    a.e('s_add_u32 s66, s66, s67')
    for _ in range(2):
        a.e('s_cmp_ge_u32 s66, 14')
        a.e('s_cselect_b32 s67, 14, 0')
        a.e('s_sub_u32 s66, s66, s67')
    a.e(f's_mul_i32 s{S_RW2}, s66, {32*L*2}')
    a.e(f's_mul_i32 s{S_RX2}, s66, {4*7168}')
    a.e(f's_lshl_b32 s{S_SA}, s{S_W}, 14')
    a.e(f's_add_u32 s{S_SA}, s{S_SA}, {L_WA}')
    a.e(f's_mul_i32 s{S_SB}, s{S_W}, 20480')
    a.e(f's_add_u32 s{S_SB}, s{S_SB}, {L_WB}')
    a.e(f's_lshl_b32 s{S_SC}, s{S_W}, 13')
    a.e(f's_add_u32 s{S_SC}, s{S_SC}, {L_WC}')
    for mu in range(4):
        a.e(f'v_xor_b32 v4, {mu}, v6')
        a.e('v_lshl_add_u32 v4, v4, 5, v5')
        a.e(f'v_add_u32 v{V_TA+mu}, s{S_SA}, v4')
        a.e(f'v_add_u32 v{V_TB+mu}, s{S_SB}, v4')
        a.e(f'v_add_u32 v{V_TC+mu}, s{S_SC}, v4')


def rot_off(a, idx, sreg, n, unit):
    a.e(f's_add_u32 s70, s{sreg}, {idx*unit}')
    a.e(f's_cmp_ge_u32 s70, {n*unit}')
    a.e(f's_cselect_b32 s71, {n*unit}, 0')
    a.e('s_sub_u32 s70, s70, s71')


def slot(name):
    return {'A': (S_SA, V_TA), 'B': (S_SB, V_TB), 'C': (S_SC, V_TC)}[name[0]] + (int(name[1]),)


def w_dma1(a, mat, slab, sl, i):
    sb, _, si = slot(sl)
    vd, srd_, rowbytes = (V_D1, S_W1, F * 2) if mat == 1 else (V_D2, S_W2, L * 2)
    if i == 0:
        rot_off(a, slab, S_RW1 if mat == 1 else S_RW2, 16 if mat == 1 else 14, 32 * rowbytes)
        a.e(f's_add_u32 m0, s{sb}, {si*4096}')
    a.e(f'buffer_load_dwordx4 v{vd + i}, s[{srd_}:{srd_+3}], s70 offen offset:{1024*i} lds')


def w_dma(a, mat, slab, sl):
    for i in range(4):
        w_dma1(a, mat, slab, sl, i)


def w_tr(a, slab, sl):
    _, vt, si = slot(sl)
    for mu in range(4):
        r = (slab * 4 + mu) * 4
        a.e(f'ds_read_b64_tr_b16 a[{r}:{r+1}], v{vt+mu} offset:{si*4096}')
        a.e(f'ds_read_b64_tr_b16 a[{r+2}:{r+3}], v{vt+mu} offset:{si*4096 + 512}')


def helper_w2(a, nrows):
    a.e(f's_lshr_b32 s66, s{S_XCD}, 1')
    a.e('s_lshl_b32 s66, s66, 10')
    a.e(f's_sub_u32 s67, s{S_LOC}, 28')
    a.e('s_mul_i32 s67, s67, 448')
    a.e(f's_add_u32 s67, s67, s{S_W}')
    a.e('s_lshl_b32 s67, s67, 12')
    a.e('s_add_u32 s70, s66, s67')
    a.e('v_lshlrev_b32 v4, 4, v1')
    l = a.lab('l2s')
    a.e(f's_mov_b32 s71, {nrows // 16}')
    a.e(f'{l}:')
    for i in range(4):
        a.e(f'buffer_load_dwordx4 v[220:223], v4, s[{S_W2}:{S_W2+3}], s70 offen')
        a.e(f's_add_u32 s70, s70, {4*L*2}')
    a.e('s_waitcnt vmcnt(8)')
    a.e('s_sub_u32 s71, s71, 1')
    a.e('s_cmp_lg_u32 s71, 0')
    a.e(f's_cbranch_scc1 {l}')


def qpf_load(a, n):
    for _ in range(n):
        a.e(f'buffer_load_dwordx4 v[220:223], v{V_QPF}, s[{S_W2}:{S_W2+3}], s{S_QPF} offen')
        a.e(f's_add_u32 s{S_QPF}, s{S_QPF}, {8*L*2}')


ACC = 16
XS = 80
NS = 6
VMAX = 214
V_X0, V_X3 = 208, 209


def gemm_xaddr(a, ws_off, kblocks):
    a.e(f's_mul_i32 s66, s{S_W}, {kblocks*7168}')
    a.e(f's_mul_i32 s67, s{S_J}, 896')
    a.e('s_add_u32 s66, s66, s67')
    a.e(f's_add_u32 s66, s66, {ws_off}')
    a.e('v_lshrrev_b32 v4, 4, v1')
    a.e('v_mul_u32_u24 v4, 7168, v4')
    a.e('v_add_u32 v4, s66, v4')
    a.e('v_and_b32 v5, 15, v1')
    a.e(f'v_lshl_add_u32 v{V_X0}, v5, 4, v4')
    if OPT['x3oob']:
        a.e(f'v_add_u32 v{V_X3}, 768, v{V_X0}')
        a.e(f'v_mov_b32 v4, {OOB}')
        a.e('v_cmp_gt_u32 vcc, 8, v5')
        a.e(f'v_cndmask_b32 v{V_X3}, v4, v{V_X3}, vcc')
    else:
        a.e('v_and_b32 v5, 7, v1')
        a.e('v_lshl_add_u32 v4, v5, 4, v4')
        a.e(f'v_add_u32 v{V_X3}, 768, v4')


def gemm_xloads(a, kappa, gid):
    st = XS + 16 * (kappa % NS)
    out = []
    sreg, n = (S_RX1, 16) if gid == 1 else (S_RX2, 14)
    unit = 4 * 7168
    out.append(f's_add_u32 s70, s{sreg}, {kappa*unit}')
    out.append(f's_cmp_ge_u32 s70, {n*unit}')
    out.append(f's_cselect_b32 s71, {n*unit}, 0')
    out.append('s_sub_u32 s70, s70, s71')
    for nu in range(3):
        out.append(f'buffer_load_dwordx4 v[{st+4*nu}:{st+4*nu+3}], v{V_X0}, {WSR}, s70 offen offset:{256*nu} sc1')
    out.append(f'buffer_load_dwordx4 v[{st+12}:{st+15}], v{V_X3}, {WSR}, s70 offen sc1')
    return out


def gemm_main(a, nk, gid, tail_hook=None):
    nfl = OPT['nfl']
    w_is_a = gid == 1
    a.e(f'v_mov_b32 v{VMAX}, 0')
    extra = 0
    for k in range(nk):
        st = XS + 16 * (k % NS)
        rem = min(nfl - 1, nk - 1 - k)
        a.e(f's_waitcnt vmcnt({4*rem + extra})')
        if OPT['stamps'] and k in (0, 4, 8, 12):
            stamp(a, (44 if w_is_a else 51) + (0, 4, 8, 12).index(k))
        fill = gemm_xloads(a, k + nfl, gid) if k + nfl < nk else []
        if k + nfl == nk and tail_hook is not None:
            fill = []
            extra = tail_hook(fill)
        mx = [f'v_max3_u32 v{VMAX}, v{VMAX}, v{st+2*i}, v{st+2*i+1}' for i in range(8)]
        n = 0
        for mu in range(4):
            for nu in range(4):
                w = (k * 4 + mu) * 4
                x = st + 4 * nu
                if w_is_a:
                    acc = ACC + (mu * 4 + nu) * 4
                    A, B = f'a[{w}:{w+3}]', f'v[{x}:{x+3}]'
                else:
                    acc = ACC + (nu * 4 + mu) * 4
                    A, B = f'v[{x}:{x+3}]', f'a[{w}:{w+3}]'
                cc = '0' if k == 0 else f'v[{acc}:{acc+3}]'
                a.e(f'v_mfma_f32_16x16x32_bf16 v[{acc}:{acc+3}], {A}, {B}, {cc}')
                for _ in range(2):
                    if fill:
                        a.e(fill.pop(0))
                if not fill and mx and n >= 4:
                    a.e(mx.pop(0))
                n += 1
        assert not fill and not mx


STUBS = []


def mfma_line(k, mu, nu, gid):
    st = XS + 16 * (k % NS)
    w = (k * 4 + mu) * 4
    x = st + 4 * nu
    if gid == 1:
        acc = ACC + (mu * 4 + nu) * 4
        A, B = f'a[{w}:{w+3}]', f'v[{x}:{x+3}]'
    else:
        acc = ACC + (nu * 4 + mu) * 4
        A, B = f'v[{x}:{x+3}]', f'a[{w}:{w+3}]'
    cc = '0' if k == 0 else f'v[{acc}:{acc+3}]'
    return f'v_mfma_f32_16x16x32_bf16 v[{acc}:{acc+3}], {A}, {B}, {cc}'


def poison_check(k):
    st = XS + 16 * (k % NS)
    out = [f'v_max3_u32 v{VMAX}, v{st}, v{st+1}, v{st+2}']
    for i in range(6):
        out.append(f'v_max3_u32 v{VMAX}, v{VMAX}, v{st+3+2*i}, v{st+4+2*i}')
    out.append(f'v_max_u32 v{VMAX}, v{VMAX}, v{st+15}')
    out.append(f'v_cmp_eq_u32 vcc, -1, v{VMAX}')
    return out


def gemm_checked(a, nk, gid, sb, tail_hook=None):
    nfl = OPT['nfl']

    def slow(k):
        ls, lb, lp = a.lab('slow'), a.lab('back'), a.lab('sloop')

        def emit():
            a.e(f'{ls}:')
            a.e(f's_mov_b32 s{S_SPIN}, 0')
            a.e(f'{lp}:')
            for x in gemm_xloads(a, k, gid):
                a.e(x)
            a.e('s_waitcnt vmcnt(0)')
            for x in poison_check(k):
                a.e(x)
            ldone = a.lab('sdone')
            a.e(f's_cbranch_vccz {ldone}')
            spin_tail(a, lp)
            a.e(f'{ldone}:')
            if k == 0:
                for kk in range(1, min(nfl, nk - 1) + 1):
                    for x in gemm_xloads(a, kk, gid):
                        a.e(x)
            a.e(f's_branch {lb}')
        STUBS.append(emit)
        return ls, lb

    for k in range(nfl):
        for x in gemm_xloads(a, k, gid):
            a.e(x)
    a.e(f's_waitcnt vmcnt({4*(nfl-1)})')
    for x in gemm_xloads(a, nfl, gid):
        a.e(x)
    for x in poison_check(0):
        a.e(x)
    ls, lb = slow(0)
    a.e(f's_cbranch_vccnz {ls}')
    a.e(f'{lb}:')
    stamp(a, sb)
    extra = 0
    for k in range(nk):
        lines = [mfma_line(k, mu, nu, gid) for mu in range(4) for nu in range(4)]
        for i in range(8):
            a.e(lines[i])
        if k + 1 < nk:
            kn = k + 1
            rem = min(nfl - 1, nk - 1 - kn)
            a.e(f's_waitcnt vmcnt({4*rem + extra})')
            if OPT['stamps'] and kn in (4, 8, 12):
                stamp(a, (44 if gid == 1 else 51) + (0, 4, 8, 12).index(kn))
            fill = gemm_xloads(a, kn + nfl, gid) if kn + nfl < nk else []
            if kn + nfl == nk and tail_hook is not None:
                extra = tail_hook(fill)
            fill += poison_check(kn)
        else:
            fill = []
        per = -(-len(fill) // 8)
        for i in range(8, 16):
            a.e(lines[i])
            for _ in range(per):
                if fill:
                    a.e(fill.pop(0))
        assert not fill
        if k + 1 < nk:
            ls, lb = slow(k + 1)
            a.e(f's_cbranch_vccnz {ls}')
            a.e(f'{lb}:')


def sentinel(a, ws_off, kblocks):
    lp, ld = a.lab('spoll'), a.lab('sdone')
    a.e(f's_mul_i32 s66, s{S_W}, {kblocks*7168}')
    a.e(f's_mul_i32 s67, s{S_J}, 896')
    a.e('s_add_u32 s66, s66, s67')
    a.e(f's_add_u32 s66, s66, {ws_off + 55*16 + 12}')
    a.e('v_mul_u32_u24 v4, 7168, v1')
    a.e('v_add_u32 v4, s66, v4')
    if kblocks < 64:
        mask_lanes(a, 4, kblocks, 5)
    a.e(f's_mov_b32 s{S_SPIN}, 0')
    a.e(f'{lp}:')
    a.e(f'buffer_load_dword v5, v4, {WSR}, 0 offen sc1')
    a.e('s_waitcnt vmcnt(0)')
    a.e('v_cmp_eq_u32 vcc, -1, v5')
    a.e(f's_cbranch_vccz {ld}')
    spin_tail(a, lp)
    a.e(f'{ld}:')


def gemm_poll_main(a, ws_off, kblocks, nk, gid, sb, tail_hook=None):
    lr, lok = a.lab('gretry'), a.lab('gok')
    gemm_xaddr(a, ws_off, kblocks)
    if OPT['stchk']:
        gemm_checked(a, nk, gid, sb, tail_hook)
        return
    a.e(f's_mov_b32 s{S_RETRY}, 0')
    a.e(f'{lr}:')
    sentinel(a, ws_off, kblocks)
    stamp(a, sb)
    for k in range(OPT['nfl']):
        for x in gemm_xloads(a, k, gid):
            a.e(x)
    gemm_main(a, nk, gid, tail_hook)
    a.e(f'v_cmp_eq_u32 vcc, -1, v{VMAX}')
    a.e(f's_cbranch_vccz {lok}')
    a.e(f's_add_u32 s{S_RETRY}, s{S_RETRY}, 1')
    a.e(f's_cmp_lt_u32 s{S_RETRY}, {RETRY_MAX}')
    a.e(f's_cbranch_scc1 {lr}')
    a.e(f'{lok}:')


def write_partials(a):
    a.e('v_and_b32 v4, 15, v1')
    a.e(f'v_mul_u32_u24 v4, {PROW}, v4')
    a.e('v_lshrrev_b32 v5, 4, v1')
    a.e('v_lshl_add_u32 v4, v5, 4, v4')
    a.e(f's_mul_i32 s66, s{S_W}, {PARTW}')
    a.e(f's_add_u32 s66, s66, {L_PART}')
    a.e('v_add_u32 v4, s66, v4')
    a.e('s_barrier')
    for mt in range(4):
        for nt in range(4):
            acc = ACC + (mt * 4 + nt) * 4
            a.e(f'ds_write_b128 v4, v[{acc}:{acc+3}] offset:{nt*16*PROW + mt*64}')


def sum_partials(a, P):
    for h in range(4):
        a.e(f'v_pk_add_f32 v[{P+2*h}:{P+2*h+1}], v[{P+2*h}:{P+2*h+1}], v[{P+8+2*h}:{P+9+2*h}]')
        a.e(f'v_pk_add_f32 v[{P+16+2*h}:{P+17+2*h}], v[{P+16+2*h}:{P+17+2*h}], v[{P+24+2*h}:{P+25+2*h}]')
    for h in range(4):
        a.e(f'v_pk_add_f32 v[{P+2*h}:{P+2*h+1}], v[{P+2*h}:{P+2*h+1}], v[{P+16+2*h}:{P+17+2*h}]')


def b1_load(a):
    a.e(f's_lshl_b32 s67, s{S_I1}, 7')
    a.e(f's_lshl_b32 s70, s{S_W}, 5')
    a.e('s_add_u32 s67, s67, s70')
    a.e(f's_load_dwordx8 s[72:79], s[{P_B1}:{P_B1+1}], s67')


def gemm1_epilogue(a, d0=(), d1=()):
    write_partials(a)
    a.e(f'v_mul_u32_u24 v4, {PROW}, v1')
    a.e(f's_lshl_b32 s66, s{S_W}, 6')
    a.e(f's_add_u32 s66, s66, {L_PART}')
    a.e('v_add_u32 v4, s66, v4')
    g_store_addr(a, 5)
    C1 = 0.044715
    C2 = -2.0 * 0.7978845608028654 * 1.4426950408889634
    a.e(f'v_mov_b32 v100, {fx(C1*C2)}')
    a.e(f'v_mov_b32 v101, {fx(C1*C2)}')
    a.e(f'v_mov_b32 v102, {fx(C2)}')
    a.e(f'v_mov_b32 v103, {fx(C2)}')
    a.e('s_waitcnt lgkmcnt(0)')
    a.e('s_barrier')
    stamp(a, 24)
    for r in range(2):
        P = 16 + 32 * r
        for wv in range(4):
            a.e(f'ds_read_b128 v[{P+8*wv}:{P+8*wv+3}], v4 offset:{wv*PARTW + r*32}')
            a.e(f'ds_read_b128 v[{P+8*wv+4}:{P+8*wv+7}], v4 offset:{wv*PARTW + r*32 + 16}')
    for i in range(8):
        a.e(f's_lshl_b32 s{80+2*i}, s{72+i}, 16')
        a.e(f's_and_b32 s{81+2*i}, s{72+i}, 0xffff0000')
    for r in range(2):
        P = 16 + 32 * r
        T = 80
        a.e(f's_waitcnt lgkmcnt({8 if r == 0 else 0})')
        if r == 1 and d1:
            a.e('s_barrier')
        dd = d0 if r == 0 else d1
        if dd:
            a.inject(dd, max(1, 80 // len(dd)))
        sum_partials(a, P)
        round_pairs(a, P, T, 8)
        for h in range(4):
            a.e(f'v_pk_add_f32 v[{P+2*h}:{P+2*h+1}], v[{P+2*h}:{P+2*h+1}], s[{80+8*r+2*h}:{81+8*r+2*h}]')
        round_pairs(a, P, T, 8)
        for h in range(4):
            a.e(f'v_pk_mul_f32 v[{P+8+2*h}:{P+9+2*h}], v[{P+2*h}:{P+2*h+1}], v[{P+2*h}:{P+2*h+1}]')
        for h in range(4):
            a.e(f'v_pk_fma_f32 v[{P+8+2*h}:{P+9+2*h}], v[{P+8+2*h}:{P+9+2*h}], v[100:101], v[102:103]')
        for h in range(4):
            a.e(f'v_pk_mul_f32 v[{P+8+2*h}:{P+9+2*h}], v[{P+8+2*h}:{P+9+2*h}], v[{P+2*h}:{P+2*h+1}]')
        for i in range(8):
            a.e(f'v_exp_f32 v{P+8+i}, v{P+8+i}')
        for h in range(4):
            a.e(f'v_pk_add_f32 v[{P+8+2*h}:{P+9+2*h}], v[{P+8+2*h}:{P+9+2*h}], 1.0 op_sel_hi:[1,0]')
        for i in range(8):
            a.e(f'v_rcp_f32 v{P+8+i}, v{P+8+i}')
        for h in range(4):
            a.e(f'v_pk_mul_f32 v[{P+2*h}:{P+2*h+1}], v[{P+2*h}:{P+2*h+1}], v[{P+8+2*h}:{P+9+2*h}]')
        O = 88 + 4 * r
        for h in range(4):
            a.e(f'v_cvt_pk_bf16_f32 v{O+h}, v{P+2*h}, v{P+2*h+1}')
        a.inj_flush()
        if r == 1:
            a.e('v_add_u32 v5, 7168, v5')
        a.e(f'buffer_store_dwordx4 v[{O}:{O+3}], v5, {WSR}, 0 offen sc1')


V_OUT, V_HAD, V_B2 = 210, 211, 212
V_HR = 196


def gemm2_addr(a):
    srd(a, S_T2, P_OUT, XBYTES)
    srd(a, S_T3, P_B2, L * 2)
    a.e('v_lshrrev_b32 v4, 3, v1')
    a.e('v_and_b32 v5, 7, v1')
    a.e(f's_lshl_b32 s66, s{S_W}, 4')
    a.e('v_add_u32 v4, s66, v4')
    a.e(f's_lshl_b32 s67, s{S_I2}, 6')
    a.e('v_add_u32 v7, s67, v4')
    a.e(f'v_mul_u32_u24 v{V_OUT}, 896, v7')
    a.e(f'v_lshl_add_u32 v{V_OUT}, v5, 4, v{V_OUT}')
    a.e(f's_mul_i32 s70, s{S_J}, 112')
    a.e(f'v_add_u32 v{V_OUT}, s70, v{V_OUT}')
    a.e(f'v_mov_b32 v6, {OOB}')
    a.e('v_cmp_gt_u32 vcc, 7, v5')
    a.e(f'v_cndmask_b32 v{V_OUT}, v6, v{V_OUT}, vcc')
    a.e(f'v_add_u32 v{V_HAD}, {WS_H}, v{V_OUT}')
    a.e(f'v_lshlrev_b32 v{V_B2}, 1, v7')


def gemm2_tail_loads(fill):
    fill.append(f'buffer_load_dwordx4 v[{V_HR}:{V_HR+3}], v{V_HAD}, {WSR}, 0 offen sc1')
    fill.append(f's_mov_b32 s70, {8*896}')
    fill.append(f'buffer_load_dwordx4 v[{V_HR+4}:{V_HR+7}], v{V_HAD}, {WSR}, s70 offen sc1')
    fill.append(f'buffer_load_ushort v{V_HR+8}, v{V_B2}, s[{S_T3}:{S_T3+3}], 0 offen')
    fill.append(f'buffer_load_ushort v{V_HR+9}, v{V_B2}, s[{S_T3}:{S_T3+3}], 0 offen offset:16')
    return 4


def gemm2_epilogue(a):
    write_partials(a)
    a.e('v_lshrrev_b32 v4, 3, v1')
    a.e('v_and_b32 v5, 7, v1')
    a.e(f's_lshl_b32 s66, s{S_W}, 4')
    a.e('v_add_u32 v4, s66, v4')
    a.e(f'v_mul_u32_u24 v6, {PROW}, v4')
    a.e('v_lshl_add_u32 v6, v5, 4, v6')
    a.e(f'v_add_u32 v6, {L_PART}, v6')
    a.e('s_waitcnt lgkmcnt(0)')
    a.e('s_barrier')
    stamp(a, 33)
    for r in range(2):
        P = 16 + 32 * r
        for wv in range(4):
            a.e(f'ds_read_b128 v[{P+8*wv}:{P+8*wv+3}], v6 offset:{wv*PARTW + r*8*PROW}')
            a.e(f'ds_read_b128 v[{P+8*wv+4}:{P+8*wv+7}], v6 offset:{wv*PARTW + r*8*PROW + 112}')
    a.e('s_waitcnt vmcnt(0)')
    for r in range(2):
        P = 16 + 32 * r
        T = 80
        H = V_HR + 4 * r
        a.e(f'v_lshlrev_b32 v106, 16, v{V_HR+8+r}')
        for i in range(4):
            a.e(f'v_lshlrev_b32 v{96+i}, 16, v{H+i}')
            a.e(f'v_and_b32 v{100+i}, 0xffff0000, v{H+i}')
        a.e(f's_waitcnt lgkmcnt({8 if r == 0 else 0})')
        sum_partials(a, P)
        round_pairs(a, P, T, 8)
        for h in range(4):
            a.e(f'v_pk_add_f32 v[{P+2*h}:{P+2*h+1}], v[{P+2*h}:{P+2*h+1}], v[106:107] op_sel:[0,0] op_sel_hi:[1,0]')
        round_pairs(a, P, T, 8)
        for h in range(4):
            a.e(f'v_pk_add_f32 v[{P+2*h}:{P+2*h+1}], v[{P+2*h}:{P+2*h+1}], v[{96+2*h}:{97+2*h}]')
        O = 88 + 4 * r
        for i in range(4):
            a.e(f'v_cvt_pk_bf16_f32 v{O+i}, v{P+i}, v{P+4+i}')
        if r == 1:
            a.e(f'v_add_u32 v{V_OUT}, {8*896}, v{V_OUT}')
        a.e(f'buffer_store_dwordx4 v[{O}:{O+3}], v{V_OUT}, s[{S_T2}:{S_T2+3}], 0 offen' + ['', ' sc1', ' nt', ' sc0 sc1', ' sc1 nt'][OPT['outsc']])


def build():
    a = Prog()
    name = NAME + '_kernel'
    lend = a.lab('end')
    a.raw(f'.globl {name}')
    a.raw('.p2align 8')
    a.raw(f'.type {name},@function')
    a.raw(f'{name}:')
    prologue(a, lend)
    lnc1, lnc2, lnc3, lnc5, lnc6 = [a.lab('noconv') for _ in range(5)]

    def skip_if_helper(l):
        a.e(f's_cmp_ge_u32 s{S_LOC}, 28')
        a.e(f's_cbranch_scc1 {l}')

    load_xrows(a)
    ncp = 0
    if OPT['cpf'] & 2:
        code_prefetch1(a, name, 'kcode_end')
        ncp = 1
    a.e(f's_add_u32 s66, s{P_WS}, {WS_EPOCH}')
    a.e(f's_addc_u32 s67, s{P_WS+1}, 0')
    a.e('s_load_dword s99, s[66:67], 0')
    poison_regs(a)
    skip_if_helper(lnc1)
    nt = 0
    if not OPT['plate']:
        kgen_loads(a)
        load_gather_table(a, 'ktab_idx')
        w_setup(a)
        if OPT['tlb'] & 2:
            nt = tlb_touch(a)
        flag_addr(a)
        a.e('s_waitcnt lgkmcnt(0)')
        a.e(f's_add_u32 s{S_TAG}, s99, 0x9e3779b9')
        a.e(f's_waitcnt vmcnt({10 + nt + ncp})')
        stamp(a, 2)
        clear_hh(a)
        clear_aout(a)
    else:
        kgen_loads(a, 'setup')
        w_setup(a)
        flag_addr(a)
        a.e(f's_waitcnt vmcnt({ncp})')
        stamp(a, 2)
        kgen_loads(a, 'issue')
        clear_hh(a)
        clear_aout(a)
        load_gather_table(a, 'ktab_idx')
        if OPT['tlb'] & 2:
            nt = tlb_touch(a)
        a.e('s_waitcnt lgkmcnt(0)')
        a.e(f's_add_u32 s{S_TAG}, s99, 0x9e3779b9')
    ln_stats(a, list(range(8, 16)), 16, L_RED0, 5)
    stamp(a, 3)
    publish_xn(a)
    nb0 = OPT['wb0']
    if OPT['sched'] == 2:
        qa, qb = OPT['qa'], OPT['qb']
        qpf_load(a, qa)
        stamp(a, 4)
        a.e(f's_waitcnt vmcnt({8 + nt + qa})')
        kgen_channel(a, 0, DK0)
        for k in range(nb0):
            w_dma(a, 1, k, BS[k])
        stamp(a, 40)
        kgen_channel(a, 1, DK1, mid=lambda: publish_flag(a, qa + 4 * nb0), mid_m0=False)
        stamp(a, 5)
        qpf_load(a, qb)
        a.e(f's_waitcnt vmcnt({qb})')
        for k in range(nb0):
            w_tr(a, k, BS[k])
        ktab_part1(a)
        stamp(a, 6)
        flag_load(a)
        ktab_part2(a)
        stamp(a, 7)
        a.e(f's_mov_b32 s{S_EARLY}, 0')
        lne = a.lab('notearly')
        a.e('s_waitcnt vmcnt(0)')
        a.e(f'v_cmp_ne_u32 vcc, s{S_TAG}, v{V_FV}')
        a.e(f's_cbranch_vccnz {lne}')
        load_u(a)
        a.e(f's_mov_b32 s{S_EARLY}, 1')
        a.e(f'{lne}:')
        conv_addr(a)
        kcopies(a)
        stamp(a, 8)
        lhave = a.lab('haveu')
        a.e(f's_cmp_lg_u32 s{S_EARLY}, 0')
        a.e(f's_cbranch_scc1 {lhave}')
        flag_poll(a)
        load_u(a)
        a.e(f'{lhave}:')
        stamp(a, 9)
        store_u(a, 0)
    elif OPT['sched'] == 3:
        nq = (448 - OPT['hR']) // 32
        ne = 0
        if OPT['cearly']:
            assert OPT['regc']
            for k in range(2):
                w_dma(a, 1, k, f'C{k}')
            q4 = min(OPT['q4'], nq)
            qpf_load(a, q4)
            ne = 8 + q4
            nq -= q4
        stamp(a, 4)
        a.e(f's_waitcnt vmcnt({8 + nt + ne})')
        kgen_channel(a, 0, DK0)
        publish_flag(a, ne)
        if OPT['regc']:
            nb0 = 2
            if not OPT['cearly']:
                for k in range(2):
                    w_dma(a, 1, k, f'C{k}')
        else:
            for k in range(nb0):
                w_dma(a, 1, k, BS[k])
        if OPT['cearly']:
            qpf_load(a, nq)
            nq = 0
        stamp(a, 40)
        kgen_channel(a, 1, DK1)
        stamp(a, 5)
        flag_load(a)
        qpf_load(a, nq)
        if not OPT['regc']:
            a.e(f's_waitcnt vmcnt({nq + 1})')
            for k in range(nb0):
                w_tr(a, k, BS[k])
        ktab_part1(a)
        stamp(a, 6)
        a.e(f's_mov_b32 s{S_EARLY}, 0')
        lne = a.lab('notearly')
        a.e(f's_waitcnt vmcnt({nq})')
        a.e(f'v_cmp_ne_u32 vcc, s{S_TAG}, v{V_FV}')
        a.e(f's_cbranch_vccnz {lne}')
        load_u(a)
        a.e(f's_mov_b32 s{S_EARLY}, 1')
        a.e(f'{lne}:')
        ktab_part2(a)
        stamp(a, 7)
        conv_addr(a)
        kcopies(a)
        stamp(a, 8)
        lhave = a.lab('haveu')
        a.e(f's_cmp_lg_u32 s{S_EARLY}, 0')
        a.e(f's_cbranch_scc1 {lhave}')
        flag_poll(a)
        load_u(a)
        a.e(f'{lhave}:')
        stamp(a, 9)
        store_u(a, 0)
    else:
        stamp(a, 4)
        a.e(f's_waitcnt vmcnt({8 + nt})')
        kgen_channel(a, 0, DK0)
        publish_flag(a)
        for k in range(min(nb0, 3)):
            w_dma(a, 1, k, BS[k])
        stamp(a, 40)
        kgen_channel(a, 1, DK1, mid=(lambda: [w_dma(a, 1, k, BS[k]) for k in range(3, nb0)]) if nb0 > 3 else None)
        stamp(a, 5)
        if OPT['early']:
            flag_load(a)
            a.e('s_waitcnt vmcnt(1)')
        else:
            a.e('s_waitcnt vmcnt(0)')
        for k in range(nb0):
            w_tr(a, k, BS[k])
        ktab_part1(a)
        stamp(a, 6)
        a.e(f's_mov_b32 s{S_EARLY}, 0')
        lne = a.lab('notearly')
        if OPT['early']:
            a.e('s_waitcnt vmcnt(0)')
            a.e(f'v_cmp_ne_u32 vcc, s{S_TAG}, v{V_FV}')
            a.e(f's_cbranch_vccnz {lne}')
            load_u(a)
            a.e(f's_mov_b32 s{S_EARLY}, 1')
            a.e(f'{lne}:')
        qpf_load(a, OPT['w2pf_a'])
        ktab_part2(a)
        stamp(a, 7)
        conv_addr(a)
        kcopies(a)
        stamp(a, 8)
        lhave = a.lab('haveu')
        a.e(f's_cmp_lg_u32 s{S_EARLY}, 0')
        a.e(f's_cbranch_scc1 {lhave}')
        flag_poll(a)
        load_u(a)
        a.e('s_waitcnt vmcnt(0)')
        a.e(f'{lhave}:')
        stamp(a, 9)
        store_u(a, OPT['w2pf_a'])
    epoch_update(a)
    clear_g(a)
    if OPT['sched'] == 1:
        qpf_load(a, OPT['w2pf_b'])
    stamp(a, 10)
    hk = []
    for k in range(4):
        for i in range(4):
            hk.append(lambda k=k, i=i: w_dma1(a, 1, nb0 + k, AS[k], i))
            hk.append(lambda: None)
    phase_conv(a, hk, 0)
    stamp(a, 12)
    if OPT['regc']:
        for k in range(2):
            w_tr(a, k, f'C{k}')
    for k in range(4):
        w_tr(a, nb0 + k, AS[k])
    a.e('s_waitcnt lgkmcnt(0)')
    a.e('s_barrier')
    rest = list(range(nb0 + 4, 16))
    last = None
    if len(rest) > 9:
        last = rest.pop()
    rest_slots = (BS + AS)[:len(rest)]
    p4d = []
    if OPT['p4dma']:
        assert OPT['hpriv']
        p4d = [lambda k=k, sl=sl, i=i: w_dma1(a, 1, k, sl, i) for k, sl in zip(rest, rest_slots) for i in range(4)]
    else:
        for k, sl in zip(rest, rest_slots):
            w_dma(a, 1, k, sl)
    stamp(a, 13)
    a.e(f's_branch {lnc2}')
    a.e(f'{lnc1}:')
    nh = 0
    if OPT['cpf'] & 1:
        code_prefetch(a, name, 'kcode_end')
        nh += 3
    w_setup(a)
    if OPT['tlb'] & 1:
        nh += tlb_touch(a)
    flag_addr(a)
    a.e('s_waitcnt lgkmcnt(0)')
    a.e(f's_add_u32 s{S_TAG}, s99, 0x9e3779b9')
    a.e(f's_waitcnt vmcnt({nh + ncp})')
    clear_hh(a)
    ln_stats(a, list(range(8, 16)), 16, L_RED0, 5)
    publish_xn(a)
    publish_flag(a)
    if OPT['sched'] == 3:
        qpf_load(a, (448 - OPT['hR']) // 32)
        helper_w2(a, OPT['hR'])
    else:
        qpf_load(a, 14)
    stamp(a, 41)
    flag_poll(a)
    a.e('s_barrier')
    if p4d:
        a.e(f's_mov_b32 s{S_W1+2}, 0')
    stamp(a, 42)
    a.e(f'{lnc2}:')
    phase_p4(a, p4d)
    stamp(a, 20)
    gemm2_addr(a)
    skip_if_helper(lnc3)
    b1_load(a)
    if p4d:
        a.e('s_waitcnt vmcnt(2)')
    for k, sl in zip(rest, rest_slots):
        w_tr(a, k, sl)
    a.e('s_waitcnt lgkmcnt(0)')
    if last is not None:
        w_dma(a, 1, last, 'A0')
    for k in range(5):
        w_dma(a, 2, k, BS[k])
    if last is not None:
        a.e('s_waitcnt vmcnt(20)')
        w_tr(a, last, 'A0')
        a.e('s_waitcnt lgkmcnt(0)')
    stamp(a, 21)
    gemm_poll_main(a, WS_HH, 64, 16, 1, 22)
    stamp(a, 23)
    if OPT['h4early']:
        for k in range(5):
            w_tr(a, k, BS[k])
        a.e('s_waitcnt lgkmcnt(0)')
        for k in range(5, 8):
            w_dma(a, 2, k, BS[k - 5])
        if OPT['e1dma']:
            d0 = [lambda k=k, i=i: w_dma1(a, 2, k, BS[k - 5], i) for k in range(8, 10) for i in range(4)]
            d1 = [lambda k=k, i=i: w_dma1(a, 2, k, AS[k - 10], i) for k in range(10, 14) for i in range(4)]
            gemm1_epilogue(a, d0, d1)
            stamp(a, 25)
            w1, w2, w3 = 26, 18, 1
        else:
            gemm1_epilogue(a)
            stamp(a, 25)
            a.e('s_barrier')
            for k in range(8, 10):
                w_dma(a, 2, k, BS[k - 5])
            for k in range(10, 14):
                w_dma(a, 2, k, AS[k - 10])
            w1, w2, w3 = 26, 16, 0
        a.e(f's_waitcnt vmcnt({w1})')
        for k in range(5, 8):
            w_tr(a, k, BS[k - 5])
        a.e(f's_waitcnt vmcnt({w2})')
        for k in range(8, 10):
            w_tr(a, k, BS[k - 5])
        a.e(f's_waitcnt vmcnt({w3})')
        for k in range(10, 14):
            w_tr(a, k, AS[k - 10])
        a.e('s_waitcnt lgkmcnt(0)')
        a.e(f's_branch {lnc6}')
    else:
        gemm1_epilogue(a)
        stamp(a, 25)
        for k in range(5):
            w_tr(a, k, BS[k])
        a.e('s_waitcnt lgkmcnt(0)')
        a.e('s_barrier')
        a.e(f's_branch {lnc5}')
    a.e(f'{lnc3}:')
    for k in range(5):
        w_dma(a, 2, k, BS[k])
    a.e('s_waitcnt vmcnt(0)')
    for k in range(5):
        w_tr(a, k, BS[k])
    a.e('s_waitcnt lgkmcnt(0)')
    a.e(f'{lnc5}:')
    for k in range(5, 10):
        w_dma(a, 2, k, BS[k - 5])
    for k in range(10, 14):
        w_dma(a, 2, k, AS[k - 10])
    a.e('s_waitcnt vmcnt(16)')
    for k in range(5, 10):
        w_tr(a, k, BS[k - 5])
    a.e('s_waitcnt vmcnt(0)')
    for k in range(10, 14):
        w_tr(a, k, AS[k - 10])
    a.e('s_waitcnt lgkmcnt(0)')
    a.e(f'{lnc6}:')
    stamp(a, 30)
    gemm_poll_main(a, WS_G, 56, 14, 2, 31, gemm2_tail_loads)
    stamp(a, 32)
    gemm2_epilogue(a)
    stamp_clk(a, 61)
    stamp(a, 63)
    stamp_flush(a)
    a.e(f'{lend}:')
    a.e('s_endpgm')
    for emit in STUBS:
        emit()
    del STUBS[:]
    a.raw('kcode_end:')
    emit_gather_table(a, 'ktab_idx')
    nn = a.fast_insert_nops()
    head = f'; @launch grid=(256,1,1) block=(256,1,1) lds={LDS_BYTES}\n'
    head += '.amdgcn_target "amdgcn-amd-amdhsa--gfx950"\n.text\n'
    tail = '.section .rodata,"a"\n.p2align 6\n' + descriptor(name)
    if OPT['align']:
        nal = a.align8(head, tail)
        sys.stderr.write(f'alignment: {nal}\n')
    sys.stderr.write(f'instructions: {a.count()}, nops inserted: {nn}\n')
    return head + a.text() + tail


if __name__ == '__main__':
    out = sys.argv[1]
    for arg in sys.argv[2:]:
        if arg == 'stamps':
            OPT['stamps'] = True
        elif arg == 'dbg':
            OPT['stamps'] = True
            OPT['dbgsel'] = [0, 1, 2, 4, 8, 9, 12, 13, 14, 20, 21, 23, 25, 30, 32, 63]
        elif '=' in arg:
            k, v = arg.split('=')
            OPT[k] = int(v)
    open(out, 'w').write(build())
```

```python
import sys
import gen
from gen import (Prog, NAME, L, D, F, XBYTES, PBYTES, W1BYTES, W2BYTES, OOB, fx, srd, reduce16, cmul, exp_bf16,
                 gather_table, emit_gather_table, descriptor, round_pairs, norm_tok, bcast_stats)

OPT = dict(w2sh=1, stchk=1, p4dma=0, p4ev=6, e1dma=0, plate=0, cearly=0, q4=4, hpriv=1, regc=1, hR=256, c4=1, kgrp=3, tlbg=21, cpf=1, sched=3, qa=7, qb=7, tlb=3, outsc=0, x3oob=1, h4early=1, wb0=3, xnb=1, stamps=False, dbgsel=None, w2pf_a=10, w2pf_b=4, nfl=3, early=True, align=True, hlds=True)

WS_FLAG = 0x4000
WS_EPOCH = 0x9000
WS_AOUT = 0x10000
AST = 8448
WS_H = 0x200000
WS_HH = 0x400000
WS_G = 0x600000
WS_DBG = 0x800000
WS_XN = 0xA00000
XCS = 4352
XPS = 2 * XCS
WS_USED = 0x1000000

L_RED0, L_RED1, L_SIG, L_KT = 0, 256, 512, 640
KTCH = 1600
L_U = L_KT + 2 * KTCH
UCH = 4608
L_SCR = L_U + 2 * UCH
SROW = 272
YROW = 41
SCRW = 57 * SROW
L_KC = 82688
KCOPY = 4160
KCH = 8 * KCOPY
L_CP = L_KC
LDS_BYTES = 160 * 1024
L_WA, L_WB = 13056, 78592
L_WC = 123904
L_PART = 1024
PROW = 272
PARTW = 64 * PROW
L_HT = 1024

S_WS, S_X = 4, 8
S_T0, S_T1, S_T2, S_T3 = 12, 16, 20, 24
S_W1, S_W2 = 12, 16
S_W, S_XCD, S_LOC, S_B, S_P, S_J, S_I1, S_I2 = 28, 29, 30, 31, 32, 33, 34, 35
P_X, P_LAR, P_AI, P_CR, P_CI, P_LDT, P_DSK = 36, 38, 40, 42, 44, 46, 48
P_W1, P_B1, P_W2, P_B2, P_OUT, P_DBG, P_WS = 52, 54, 56, 58, 60, 62, 64
S_SA, S_SB = 50, 51
S_RW1, S_RX1, S_RW2, S_RX2 = 38, 39, 40, 41
S_QPF = 42
S_EARLY = 43
S_SC = 44
V_TC = 236
S_TAG, S_SPIN, S_RETRY = 96, 97, 98
V_D1, V_D2, V_TA, V_TB = 224, 228, 244, 248
V_QPF = 232
SPIN_MAX, RETRY_MAX = 4000, 20
AS = ['A0', 'A1', 'A2', 'A3']
BS = ['B0', 'B1', 'B2', 'B3', 'B4']
WSR = f's[{S_WS}:{S_WS+3}]'

assert (gen.S_W, gen.S_B, gen.S_WS) == (S_W, S_B, S_WS)


def stamp(a, idx):
    if not OPT['stamps']:
        return
    sel = OPT['dbgsel']
    if sel is not None:
        if idx not in sel:
            return
        idx = sel.index(idx)
    a.e('s_memrealtime s[100:101]')
    a.e('s_waitcnt lgkmcnt(0)')
    a.e(f'v_writelane_b32 v255, s100, {idx}')


def stamp_clk(a, idx):
    if not OPT['stamps'] or OPT['dbgsel'] is not None:
        return
    a.e('s_memtime s[100:101]')
    a.e('s_waitcnt lgkmcnt(0)')
    a.e(f'v_writelane_b32 v255, s100, {idx}')


def stamp_flush(a):
    if not OPT['stamps']:
        return
    l = a.lab('nost')
    a.e(f's_cmp_lg_u32 s{S_W}, 0')
    a.e(f's_cbranch_scc1 {l}')
    if OPT['dbgsel'] is not None:
        a.e('v_not_b32 v253, v255')
        a.e('v_cmp_eq_u32 vcc, 0, v1')
        a.e('v_cndmask_b32 v255, v255, v253, vcc')
        a.e('v_lshlrev_b32 v254, 2, v1')
        a.e('s_mov_b64 exec, 0xffff')
        a.e(f'global_atomic_umax v254, v255, s[{P_DBG}:{P_DBG+1}]')
        a.e('s_mov_b64 exec, -1')
    else:
        a.e('s_lshl_b32 s66, s2, 8')
        a.e(f's_add_u32 s66, s66, {WS_DBG}')
        a.e('v_lshl_add_u32 v254, v1, 2, s66')
        a.e(f'buffer_store_dword v255, v254, {WSR}, 0 offen')
    a.e(f'{l}:')


def spin_tail(a, lp):
    a.e(f's_add_u32 s{S_SPIN}, s{S_SPIN}, 1')
    a.e(f's_cmp_lt_u32 s{S_SPIN}, {SPIN_MAX}')
    a.e(f's_cbranch_scc1 {lp}')


def mask_lanes(a, v, n, tmp, src='v1'):
    a.e(f'v_mov_b32 v{tmp}, {OOB}')
    a.e(f'v_cmp_gt_u32 vcc, {n}, {src}')
    a.e(f'v_cndmask_b32 v{v}, v{tmp}, v{v}, vcc')


def prologue(a, lend):
    a.e('s_cmp_ge_u32 s2, 256')
    a.e(f's_cbranch_scc1 {lend}')
    if OPT['stamps']:
        a.e('v_mov_b32 v255, 0')
        stamp(a, 0)
        stamp_clk(a, 60)
    a.e('s_load_dwordx16 s[36:51], s[0:1], 0')
    a.e('s_load_dwordx8 s[52:59], s[0:1], 64')
    a.e('s_load_dwordx4 s[60:63], s[0:1], 96')
    a.e('s_load_dwordx2 s[64:65], s[0:1], 112')
    a.e('v_and_b32 v1, 63, v0')
    a.e('v_lshrrev_b32 v2, 6, v0')
    a.e(f's_and_b32 s{S_XCD}, s2, 7')
    a.e(f'v_readfirstlane_b32 s{S_W}, v2')
    a.e(f's_lshr_b32 s{S_LOC}, s2, 3')
    a.e(f's_lshl_b32 s{S_B}, s{S_XCD}, 5')
    a.e(f's_add_u32 s{S_B}, s{S_B}, s{S_LOC}')
    a.e(f's_mul_i32 s{S_P}, s{S_XCD}, 28')
    a.e(f's_add_u32 s{S_P}, s{S_P}, s{S_LOC}')
    a.e(f's_and_b32 s{S_J}, s{S_XCD}, 1')
    a.e(f's_lshl_b32 s{S_J}, s{S_J}, 2')
    a.e(f's_and_b32 s3, s{S_LOC}, 3')
    a.e(f's_add_u32 s{S_J}, s{S_J}, s3')
    a.e(f's_lshr_b32 s3, s{S_XCD}, 1')
    a.e(f's_lshr_b32 s66, s{S_LOC}, 2')
    a.e(f's_mul_i32 s{S_I1}, s3, 7')
    a.e(f's_add_u32 s{S_I1}, s{S_I1}, s66')
    a.e(f's_lshl_b32 s{S_I2}, s3, 3')
    a.e(f's_add_u32 s{S_I2}, s{S_I2}, s66')
    a.e('s_waitcnt lgkmcnt(0)')
    srd(a, S_X, P_X, XBYTES)
    srd(a, S_WS, P_WS, WS_USED)
    stamp(a, 1)


def xrow_addr(a):
    a.e(f's_mul_i32 s66, s{S_W}, 224')
    a.e(f's_mul_i32 s67, s{S_B}, {8*896}')
    a.e('s_add_u32 s66, s66, s67')
    a.e('v_lshl_add_u32 v2, v1, 2, s66')
    mask_lanes(a, 2, 56, 3)
    a.e('v_add_u32 v3, 4480, v2')


def load_xrows(a):
    xrow_addr(a)
    for j in range(8):
        v, o = (2, j * 896) if j < 5 else (3, (j - 5) * 896)
        a.e(f'buffer_load_dword v{8+j}, v{v}, s[{S_X}:{S_X+3}], 0 offen offset:{o}')


def ln_stats(a, X, T, red, vt, mid=None):
    a.e('s_mov_b32 s66, 0x3f803f80')
    for j in range(8):
        a.e(f'v_dot2_f32_bf16 v{T+j}, v{X[j]}, s66, 0')
        a.e(f'v_dot2_f32_bf16 v{T+8+j}, v{X[j]}, v{X[j]}, 0')
    a.e(f'v_lshlrev_b32 v{vt}, 2, v1')
    a.e(f'v_and_b32 v{vt}, 0xf0, v{vt}')
    a.e(f's_lshl_b32 s66, s{S_W}, 2')
    a.e(f'v_add_u32 v{vt}, s66, v{vt}')
    reduce16(a, [T + i for i in range(16)])
    a.inj_pause()
    a.e('s_mov_b32 exec_lo, 0x11111111')
    a.e('s_mov_b32 exec_hi, 0x11111111')
    a.e(f'ds_write_b32 v{vt}, v{T} offset:{red}')
    a.e('s_mov_b64 exec, -1')
    a.inj_resume()
    a.e(f'v_and_b32 v{vt}, 7, v1')
    a.e(f'v_lshlrev_b32 v{vt}, 4, v{vt}')
    a.e('s_waitcnt lgkmcnt(0)')
    a.e('s_barrier')
    a.e(f'ds_read_b128 v[{T}:{T+3}], v{vt} offset:{red}')
    a.e(f'ds_read_b128 v[{T+4}:{T+7}], v{vt} offset:{red+128}')
    n_mid = mid() if mid else 0
    a.e(f's_waitcnt lgkmcnt({1 + n_mid})')
    a.e(f'v_pk_add_f32 v[{T}:{T+1}], v[{T}:{T+1}], v[{T+2}:{T+3}]')
    a.e(f's_waitcnt lgkmcnt({n_mid})')
    a.e(f'v_pk_add_f32 v[{T+4}:{T+5}], v[{T+4}:{T+5}], v[{T+6}:{T+7}]')
    a.e(f'v_add_f32 v{T}, v{T}, v{T+1}')
    a.e(f'v_add_f32 v{T+4}, v{T+4}, v{T+5}')
    a.e(f'v_mul_f32 v{T}, {fx(1.0/448)}, v{T}')
    a.e(f'v_mul_f32 v{T+4}, {fx(1.0/448)}, v{T+4}')
    a.e(f'v_fma_f32 v{T+4}, -v{T}, v{T}, v{T+4}')
    a.e(f'v_max_f32 v{T+4}, 0, v{T+4}')
    a.e(f'v_cvt_pk_bf16_f32 v{T+4}, v{T+4}, v{T+4}')
    a.e(f'v_lshlrev_b32 v{T+4}, 16, v{T+4}')
    a.e(f'v_add_f32 v{T+4}, {fx(1e-5)}, v{T+4}')
    a.e(f'v_cvt_pk_bf16_f32 v{T+4}, v{T+4}, v{T+4}')
    a.e(f'v_lshlrev_b32 v{T+4}, 16, v{T+4}')
    a.e(f'v_sqrt_f32 v{T+4}, v{T+4}')
    a.e(f'v_cvt_pk_bf16_f32 v{T}, v{T}, v{T+4}')


def poison_regs(a):
    for r in range(216, 220):
        a.e(f'v_mov_b32 v{r}, -1')


def clear_hh(a):
    a.e(f's_mul_i32 s66, s{S_B}, 7168')
    a.e(f's_add_u32 s66, s66, {WS_HH}')
    a.e('v_lshl_add_u32 v4, v0, 4, s66')
    a.e('v_add_u32 v5, 4096, v4')
    mask_lanes(a, 5, 192, 6, 'v0')
    a.e(f'buffer_store_dwordx4 v[216:219], v4, {WSR}, 0 offen sc1')
    a.e(f'buffer_store_dwordx4 v[216:219], v5, {WSR}, 0 offen sc1')


def clear_aout(a):
    a.e(f's_mul_i32 s66, s{S_P}, {AST}')
    a.e(f's_add_u32 s66, s66, {WS_AOUT}')
    a.e('v_lshl_add_u32 v4, v0, 4, s66')
    a.e('v_add_u32 v5, 4096, v4')
    a.e(f'buffer_store_dwordx4 v[216:219], v4, {WSR}, 0 offen sc1')
    a.e(f'buffer_store_dwordx4 v[216:219], v5, {WSR}, 0 offen sc1')


def g_store_addr(a, vd):
    a.e(f's_lshl_b32 s66, s{S_I1}, 3')
    a.e(f's_lshl_b32 s70, s{S_W}, 1')
    a.e('s_add_u32 s66, s66, s70')
    a.e('s_mul_i32 s66, s66, 7168')
    a.e(f's_mul_i32 s70, s{S_J}, 896')
    a.e('s_add_u32 s66, s66, s70')
    a.e(f's_add_u32 s66, s66, {WS_G}')
    a.e(f'v_lshl_add_u32 v{vd}, v1, 4, s66')
    mask_lanes(a, vd, 56, 6)


def clear_g(a):
    g_store_addr(a, 4)
    a.e('v_add_u32 v5, 7168, v4')
    a.e(f'buffer_store_dwordx4 v[216:219], v4, {WSR}, 0 offen sc1')
    a.e(f'buffer_store_dwordx4 v[216:219], v5, {WSR}, 0 offen sc1')


def publish_xn(a):
    bcast_stats(a, 16)
    for j in range(8):
        d = 64 + 2 * j
        t = 48 + j
        a.e(f'v_lshlrev_b32 v{d}, 16, v{8+j}')
        a.e(f'v_and_b32 v{d+1}, 0xffff0000, v{8+j}')
        a.e(f'v_pk_add_f32 v[{d}:{d+1}], v[{d}:{d+1}], s[{72+2*j}:{73+2*j}] op_sel:[0,0] op_sel_hi:[1,0] neg_lo:[0,1] neg_hi:[0,1]')
        a.e(f'v_cvt_pk_bf16_f32 v{t}, v{d}, v{d+1}')
        a.e(f'v_lshlrev_b32 v{d}, 16, v{t}')
        a.e(f'v_and_b32 v{d+1}, 0xffff0000, v{t}')
        a.e(f'v_pk_mul_f32 v[{d}:{d+1}], v[{d}:{d+1}], s[{72+2*j}:{73+2*j}] op_sel:[0,1] op_sel_hi:[1,1]')
        a.e(f'v_cvt_pk_bf16_f32 v{t}, v{d}, v{d+1}')
        a.e(f'v_lshlrev_b32 v{d}, 16, v{t}')
        a.e(f'v_and_b32 v{d+1}, 0xffff0000, v{t}')
    for i in range(4):
        a.e(f'v_cvt_pk_f16_f32 v{80+i}, v{64+4*i}, v{66+4*i}')
        a.e(f'v_cvt_pk_f16_f32 v{84+i}, v{65+4*i}, v{67+4*i}')
    if OPT['xnb']:
        a.e(f's_mul_i32 s66, s{S_W}, {56*16}')
        a.e(f's_mul_i32 s67, s{S_B}, 7168')
        a.e('s_add_u32 s66, s66, s67')
        a.e(f's_add_u32 s66, s66, {WS_XN}')
        a.e('v_lshl_add_u32 v4, v1, 4, s66')
        mask_lanes(a, 4, 56, 5)
        a.e('v_add_u32 v5, 3584, v4')
    else:
        a.e(f's_mul_i32 s66, s{S_W}, {56*XPS}')
        a.e(f's_lshl_b32 s67, s{S_B}, 4')
        a.e('s_add_u32 s66, s66, s67')
        a.e(f's_add_u32 s66, s66, {WS_XN}')
        a.e(f'v_mul_u32_u24 v4, {XPS}, v1')
        a.e('v_add_u32 v4, s66, v4')
        mask_lanes(a, 4, 56, 5)
        a.e(f'v_add_u32 v5, {XCS}, v4')
    a.e(f'buffer_store_dwordx4 v[80:83], v4, {WSR}, 0 offen sc1')
    a.e(f'buffer_store_dwordx4 v[84:87], v5, {WSR}, 0 offen sc1')


def publish_flag(a, vm=0):
    a.e(f's_waitcnt vmcnt({vm})')
    a.e('s_barrier')
    l = a.lab('noflag')
    a.e(f's_cmp_lg_u32 s{S_W}, 0')
    a.e(f's_cbranch_scc1 {l}')
    a.e(f's_lshl_b32 s66, s{S_B}, 6')
    a.e(f's_add_u32 s66, s66, {WS_FLAG}')
    a.e('v_mov_b32 v2, s66')
    a.e(f'v_mov_b32 v3, s{S_TAG}')
    a.e('s_mov_b64 exec, 1')
    a.e(f'buffer_store_dword v3, v2, {WSR}, 0 offen sc1')
    a.e('s_mov_b64 exec, -1')
    a.e(f'{l}:')


V_FA, V_FV = 233, 234


def flag_addr(a):
    a.e(f'v_lshlrev_b32 v{V_FA}, 6, v0')
    a.e(f'v_add_u32 v{V_FA}, {WS_FLAG}, v{V_FA}')


def flag_load(a):
    a.e(f'buffer_load_dword v{V_FV}, v{V_FA}, {WSR}, 0 offen sc1')


def flag_poll(a):
    lp, ld = a.lab('fpoll'), a.lab('fdone')
    a.e(f's_mov_b32 s{S_SPIN}, 0')
    a.e(f'{lp}:')
    flag_load(a)
    a.e('s_waitcnt vmcnt(0)')
    a.e(f'v_cmp_ne_u32 vcc, s{S_TAG}, v{V_FV}')
    a.e(f's_cbranch_vccz {ld}')
    spin_tail(a, lp)
    a.e(f'{ld}:')


def load_u(a):
    if OPT['xnb']:
        a.e(f's_lshl_b32 s66, s{S_P}, 4')
        a.e(f's_add_u32 s66, s66, {WS_XN}')
        a.e('v_mul_u32_u24 v2, 7168, v0')
        a.e('v_add_u32 v2, s66, v2')
        a.e('v_add_u32 v3, 3584, v2')
    else:
        a.e(f's_mul_i32 s66, s{S_P}, {XPS}')
        a.e(f's_add_u32 s66, s66, {WS_XN}')
        a.e('v_lshl_add_u32 v2, v0, 4, s66')
        a.e(f'v_add_u32 v3, {XCS}, v2')
    a.e(f'buffer_load_dwordx4 v[176:179], v2, {WSR}, 0 offen sc1')
    a.e(f'buffer_load_dwordx4 v[180:183], v3, {WSR}, 0 offen sc1')


def epoch_update(a):
    le = a.lab('noep')
    a.e('s_cmp_lg_u32 s2, 0')
    a.e(f's_cbranch_scc1 {le}')
    a.e(f'v_mov_b32 v2, {WS_EPOCH}')
    a.e(f'v_mov_b32 v3, s{S_TAG}')
    a.e('s_mov_b64 exec, 1')
    a.e(f'buffer_store_dword v3, v2, {WSR}, 0 offen sc1')
    a.e('s_mov_b64 exec, -1')
    a.e(f'{le}:')


def code_prefetch(a, lstart, lend_):
    lp = a.lab('pcp')
    a.e('s_getpc_b64 s[74:75]')
    a.e(f'{lp}:')
    a.e(f's_sub_u32 s74, s74, {lp}-{lstart}')
    a.e('s_subb_u32 s75, s75, 0')
    a.e('v_lshlrev_b32 v4, 6, v0')
    a.e(f's_mov_b32 s76, {lend_}-{lstart}-4')
    a.e('v_add_u32 v5, 16384, v4')
    a.e('v_add_u32 v6, 32768, v4')
    a.e('v_min_u32 v4, s76, v4')
    a.e('v_min_u32 v5, s76, v5')
    a.e('v_min_u32 v6, s76, v6')
    a.e('global_load_dword v220, v4, s[74:75]')
    a.e('global_load_dword v220, v5, s[74:75]')
    a.e('global_load_dword v220, v6, s[74:75]')


def code_prefetch1(a, lstart, lend_):
    lp = a.lab('pcp')
    a.e('s_getpc_b64 s[74:75]')
    a.e(f'{lp}:')
    a.e('v_lshlrev_b32 v4, 6, v0')
    a.e(f's_mov_b32 s76, {lend_}-{lp}-4')
    a.e('v_min_u32 v4, s76, v4')
    a.e('global_load_dword v220, v4, s[74:75]')


def tlb_touch(a):
    g = OPT['tlbg']
    n = 0
    srd(a, S_T2, P_OUT, XBYTES)
    srd(a, S_T3, P_B2, L * 2)
    if g == 21:
        a.e('v_lshlrev_b32 v4, 21, v1')
        for s_ in (S_W1, S_W2, S_WS, S_T2, S_T3):
            a.e(f'buffer_load_dword v220, v4, s[{s_}:{s_+3}], 0 offen')
            n += 1
    else:
        a.e(f'v_lshlrev_b32 v4, {g}, v0')
        for s_, nbytes in ((S_W1, W1BYTES), (S_W2, W2BYTES), (S_WS, 0xC00000), (S_T2, XBYTES), (S_T3, 4096)):
            for k in range(-(-nbytes // (256 << g))):
                a.e(f's_mov_b32 s70, {k * (256 << g)}')
                a.e(f'buffer_load_dword v220, v4, s[{s_}:{s_+3}], s70 offen')
                n += 1
    return n


def kgen_loads(a, part=None):
    R = (S_T0, S_T1, S_T2, S_T3) if part is None else (72, 76, 80, 84)
    if part != 'issue':
        for r, p in zip(R, (P_LAR, P_AI, P_CR, P_CI)):
            srd(a, r, p, PBYTES)
        a.e(f's_lshl_b32 s66, s{S_P}, 10')
        a.e(f's_lshl_b32 s67, s{S_W}, 7')
        a.e('s_add_u32 s66, s66, s67')
        a.e('v_lshl_add_u32 v235, v1, 1, s66')
        a.e(f's_lshl_b32 s66, s{S_P}, 2')
        a.e(f's_load_dword s68, s[{P_LDT}:{P_LDT+1}], s66')
        a.e(f's_load_dword s69, s[{P_DSK}:{P_DSK+1}], s66')
    if part != 'setup':
        for c in range(2):
            for k, s in enumerate(R):
                a.e(f'buffer_load_ushort v{40+4*c+k}, v235, s[{s}:{s+3}], 0 offen offset:{512*c}')


def load_gather_table(a, tablabel):
    lp = a.lab('pc')
    a.e('s_getpc_b64 s[70:71]')
    a.e(f'{lp}:')
    a.e(f's_add_u32 s70, s70, {tablabel}-{lp}')
    a.e('s_addc_u32 s71, s71, 0')
    a.e('v_lshlrev_b32 v2, 5, v0')
    a.e('global_load_dwordx4 v[160:163], v2, s[70:71]')
    a.e('global_load_dwordx4 v[164:167], v2, s[70:71] offset:16')


DK0, DK1 = 16, 28


def kgen_channel(a, c, DACC, mid=None, mid_m0=True):
    LAR, AI, CR, CI = 40 + 4 * c, 41 + 4 * c, 42 + 4 * c, 43 + 4 * c
    SIG, DT = 52 + c, 54 + c
    AL, BE = 56, 57
    Z1, Z2, Z4, Z8, Z128, Z256, Z512, Z1024 = 58, 60, 62, 64, 66, 68, 70, 72
    X0, CA, CB, CC, T0, T1 = 74, 76, 78, 80, 82, 84
    CV = [86, 87, 88, 89]
    VW, VR = 90, 91
    t, t2 = 92, 93
    for r in (LAR, AI, CR, CI):
        a.e(f'v_lshlrev_b32 v{r}, 16, v{r}')
    a.e('s_lshl_b32 s66, s68, 16' if c == 0 else 's_and_b32 s66, s68, 0xffff0000')
    a.e(f'v_mov_b32 v{t2}, s66')
    exp_bf16(a, DT, t2, t)
    a.e(f'v_add_f32 v{SIG}, abs(v{CR}), abs(v{CI})')
    exp_bf16(a, AL, LAR, t)
    a.e(f'v_add_f32_dpp v{SIG}, v{SIG}, v{SIG} quad_perm:[1,0,3,2] row_mask:0xf bank_mask:0xf')
    a.e(f'v_mul_f32 v{AL}, v{AL}, v{DT}')
    a.e(f'v_mul_f32 v{BE}, v{AI}, v{DT}')
    a.e(f'v_add_f32_dpp v{SIG}, v{SIG}, v{SIG} quad_perm:[2,3,0,1] row_mask:0xf bank_mask:0xf')
    a.e(f'v_mul_f32 v{AL}, {fx(-1.4426950408889634)}, v{AL}')
    a.e(f'v_mul_f32 v{BE}, {fx(0.15915494309189535)}, v{BE}')
    a.e(f'v_add_f32_dpp v{SIG}, v{SIG}, v{SIG} row_half_mirror row_mask:0xf bank_mask:0xf')
    a.e(f'v_exp_f32 v{T0}, v{AL}')
    a.e(f'v_fract_f32 v{t}, v{BE}')
    a.e(f'v_add_f32_dpp v{SIG}, v{SIG}, v{SIG} row_ror:8 row_mask:0xf bank_mask:0xf')
    a.e(f'v_cos_f32 v{Z1}, v{t}')
    a.e(f'v_sin_f32 v{Z1+1}, v{t}')
    a.e(f'v_mov_b32 v{t2}, v{SIG}')
    a.e(f'v_mul_f32 v{T1}, 0x43000000, v{AL}')
    a.e(f'v_mul_f32 v{t}, 0x43000000, v{BE}')
    a.e(f'v_permlane16_swap_b32 v{SIG}, v{t2}')
    a.e(f'v_pk_mul_f32 v[{Z1}:{Z1+1}], v[{Z1}:{Z1+1}], v[{T0}:{T0+1}] op_sel:[0,0] op_sel_hi:[1,0]')
    a.e(f'v_add_f32 v{SIG}, v{SIG}, v{t2}')
    a.e(f'v_exp_f32 v{T1}, v{T1}')
    a.e(f'v_fract_f32 v{t}, v{t}')
    a.e(f'v_mov_b32 v{t2}, v{SIG}')
    a.e(f'v_cos_f32 v{Z128}, v{t}')
    a.e(f'v_sin_f32 v{Z128+1}, v{t}')
    a.e(f'v_permlane32_swap_b32 v{SIG}, v{t2}')
    cmul(a, Z2, Z1, Z1, Z2)
    a.e(f'v_add_f32 v{SIG}, v{SIG}, v{t2}')
    a.e(f'v_pk_mul_f32 v[{Z128}:{Z128+1}], v[{Z128}:{Z128+1}], v[{T1}:{T1+1}] op_sel:[0,0] op_sel_hi:[1,0]')
    a.e(f'v_add_f32 v{SIG}, {fx(1e-30)}, v{SIG}')
    cmul(a, Z4, Z2, Z2, Z4)
    a.e(f'v_rcp_f32 v{t}, v{SIG}')
    cmul(a, Z256, Z128, Z128, Z256)
    cmul(a, Z8, Z4, Z4, Z8)
    a.e(f'v_mul_f32 v{X0}, v{CR}, v{t}')
    a.e(f'v_mul_f32 v{X0+1}, v{CI}, v{t}')
    cmul(a, Z512, Z256, Z256, Z512)
    a.e(f's_mul_i32 s66, s{S_W}, {SCRW}')
    a.e(f's_add_u32 s66, s66, {L_SCR}')
    a.e('s_mov_b32 m0, s66')
    cmul(a, Z1024, Z512, Z512, Z1024)
    a.e(f'v_and_b32 v{t}, 15, v1')
    a.e(f'v_mul_u32_u24 v{t}, {SROW}, v{t}')
    a.e(f'v_lshrrev_b32 v{t2}, 4, v1')
    a.e(f'v_lshl_add_u32 v{t}, v{t2}, 4, v{t}')
    a.e(f'v_add_u32 v{VR}, s66, v{t}')
    cvi = [0]
    pend = []

    def flush(keep):
        while len(pend) > keep:
            cv, off = pend.pop(0)
            a.e(f'ds_write_addtid_b32 v{cv} offset:{off}')

    G = OPT['kgrp']
    if G > 1:
        CV = list(range(96, 112))

    def put(off, r, neg):
        cv = CV[cvi[0] % len(CV)]
        cvi[0] += 1
        a.e(f'v_cvt_pk_f16_f32 v{cv}, v{r}, {"-" if neg else ""}v{r+1}')
        if G > 1:
            pend.append((cv, off))
            if len(pend) >= G + 1:
                flush(1)
        else:
            flush(1)
            pend.append((cv, off))

    def putX(row, r):
        put(row * SROW, r, True)

    def putY(b, r):
        put((YROW + b) * SROW, r, False)

    a.e(f'v_mov_b32 v{VW}, 0x00003c00')
    pend.append((VW, YROW * SROW))
    putY(1, Z8)
    ychain = {'cur': Z8, 'b': 1}
    YA, YB = CC, 94

    def ystep():
        if ychain['b'] >= 15:
            return
        d = YA if ychain['cur'] != YA else YB
        cmul(a, d, ychain['cur'], Z8, d)
        ychain['b'] += 1
        ychain['cur'] = d
        putY(ychain['b'], d)

    putX(0, X0)
    cmul(a, T0, X0, Z128, T0)
    putX(8, T0)
    cur = X0
    for j in range(1, 8):
        d = CA if cur != CA else CB
        cmul(a, d, cur, Z1, d)
        ystep()
        putX(j, d)
        cmul(a, T0, d, Z128, T0)
        putX(8 + j, T0)
        cur = d
    cmul(a, CA, X0, Z256, CA)
    ystep()
    putX(16, CA)
    cmul(a, T0, CA, Z128, T0)
    putX(20, T0)
    cur = CA
    for j in range(1, 4):
        d = CA if cur != CA else CB
        cmul(a, d, cur, Z2, d)
        ystep()
        putX(16 + j, d)
        cmul(a, T0, d, Z128, T0)
        putX(20 + j, T0)
        cur = d
    if mid is not None:
        if mid_m0:
            flush(0)
        mid()
        if mid_m0:
            a.e(f's_mul_i32 s66, s{S_W}, {SCRW}')
            a.e(f's_add_u32 s66, s66, {L_SCR}')
            a.e('s_mov_b32 m0, s66')
    cmul(a, CA, X0, Z512, CA)
    ystep()
    putX(24, CA)
    cmul(a, CB, CA, Z4, CB)
    ystep()
    putX(25, CB)
    pa, pb = CA, CB
    na, nb = T0, T1
    for q in range(1, 4):
        cmul(a, na, pa, Z128, na)
        cmul(a, nb, pb, Z128, nb)
        ystep()
        putX(24 + 2 * q, na)
        putX(25 + 2 * q, nb)
        pa, pb, na, nb = na, nb, pa, pb
    cmul(a, CA, X0, Z1024, CA)
    putX(32, CA)
    cur = CA
    for q in range(1, 9):
        d = CA if cur != CA else CB
        cmul(a, d, cur, Z128, d)
        putX(32 + q, d)
        cur = d
    while ychain['b'] < 15:
        ystep()
    flush(0)
    FA = 96
    for k in range(4):
        a.e(f'ds_read_b128 v[{144+4*k}:{147+4*k}], v{VR} offset:{YROW*SROW+64*k}')
        for T in range(3):
            r = FA + 16 * T + 4 * k
            a.e(f'ds_read_b128 v[{r}:{r+3}], v{VR} offset:{16*T*SROW+64*k}')
    for k in range(4):
        a.e(f's_waitcnt lgkmcnt({4*(3-k)})')
        for T in range(3):
            r = FA + 16 * T + 4 * k
            cc = '0' if k == 0 else f'v[{DACC+4*T}:{DACC+4*T+3}]'
            a.e(f'v_mfma_f32_16x16x32_f16 v[{DACC+4*T}:{DACC+4*T+3}], v[{r}:{r+3}], v[{144+4*k}:{147+4*k}], {cc}')


def ktab_part1(a):
    a.e(f's_mul_i32 s66, s{S_W}, {SCRW}')
    a.e(f's_add_u32 s66, s66, {L_SCR}')
    a.e('v_lshl_add_u32 v90, v1, 4, s66')
    a.e(f's_lshl_b32 s67, s{S_W}, 2')
    a.e(f's_add_u32 s67, s67, {L_SIG}')
    a.e('v_mov_b32 v91, s67')
    a.e('s_mov_b64 exec, 1')
    a.e('ds_write_b32 v91, v52')
    a.e('ds_write_b32 v91, v53 offset:16')
    a.e('s_mov_b64 exec, -1')
    for c, DK in ((0, DK0), (1, DK1)):
        for T in range(3):
            for h in range(2):
                i = DK + 4 * T + 2 * h
                a.e(f'v_pk_mul_f32 v[{i}:{i+1}], v[{i}:{i+1}], v[52:53] op_sel:[0,{c}] op_sel_hi:[1,{c}]')
            a.e(f'ds_write_b128 v90, v[{DK+4*T}:{DK+4*T+3}] offset:{c*3072+T*1024}')
    a.e('v_mov_b32 v96, 0')
    a.e('v_mov_b32 v97, 0')
    a.e('v_mov_b32 v98, 0')
    a.e('v_mov_b32 v99, 0')
    a.e(f'v_mov_b32 v92, {L_KT + 1536}')
    a.e('ds_write_b32 v92, v96')
    a.e(f'ds_write_b32 v92, v96 offset:{KTCH}')
    a.e('v_lshlrev_b32 v92, 3, v1')
    a.e(f'ds_write_b64 v92, v[96:97] offset:{L_U}')
    a.e(f'ds_write_b64 v92, v[96:97] offset:{L_U + UCH}')
    a.e('s_waitcnt lgkmcnt(0)')
    a.e('s_barrier')


def ktab_part2(a):
    a.e(f'v_mov_b32 v91, {L_SIG}')
    a.e('ds_read_b128 v[44:47], v91')
    a.e('ds_read_b128 v[48:51], v91 offset:16')
    a.e(f's_and_b32 s67, s{S_W}, 1')
    a.e(f's_lshr_b32 s70, s{S_W}, 1')
    a.e('s_mul_i32 s71, s67, 3072')
    a.e('s_lshl_b32 s72, s70, 10')
    a.e('s_add_u32 s72, s72, s71')
    a.e(f's_add_u32 s72, s72, {L_SCR}')
    a.e(f's_add_u32 s71, s71, {L_SCR + 2048}')
    a.e('v_lshl_add_u32 v90, v1, 4, s72')
    a.e('v_lshl_add_u32 v91, v1, 4, s71')
    for wv in range(4):
        a.e(f'ds_read_b128 v[{96+4*wv}:{99+4*wv}], v90 offset:{wv*SCRW}')
    for wv in range(4):
        a.e(f'ds_read_b128 v[{112+4*wv}:{115+4*wv}], v91 offset:{wv*SCRW}')
    a.e('v_mov_b32 v128, 0')
    a.e('v_mov_b32 v129, 0')
    a.e('v_mov_b32 v130, 0')
    a.e('v_mov_b32 v131, 0')
    if OPT['c4']:
        a.e('v_and_b32 v132, 7, v1')
        a.e(f'v_mul_u32_u24 v132, {KCOPY}, v132')
        a.e('v_bfe_u32 v133, v1, 3, 1')
        a.e('v_lshl_add_u32 v132, v133, 4, v132')
    else:
        a.e('v_and_b32 v132, 15, v1')
        a.e(f'v_mul_u32_u24 v132, {KCOPY}, v132')
    a.e(f'v_add_u32 v132, {L_KC}, v132')
    a.e('ds_write_b128 v132, v[128:131] offset:4096')
    a.e('v_lshrrev_b32 v92, 4, v1')
    a.e('v_lshlrev_b32 v92, 7, v92')
    a.e('v_and_b32 v93, 15, v1')
    a.e('v_lshl_add_u32 v92, v93, 1, v92')
    a.e(f's_mul_i32 s71, s67, {KTCH}')
    a.e(f's_add_u32 s71, s71, {L_KT}')
    a.e('v_add_u32 v93, s71, v92')
    a.e('s_lshl_b32 s72, s70, 9')
    a.e('v_add_u32 v92, s72, v93')
    a.e('s_waitcnt lgkmcnt(9)')
    a.e('v_pk_add_f32 v[44:45], v[44:45], v[46:47]')
    a.e('v_pk_add_f32 v[48:49], v[48:49], v[50:51]')
    a.e('v_add_f32 v44, v44, v45')
    a.e('v_add_f32 v45, v48, v49')
    a.e('s_cmp_eq_u32 s67, 0')
    a.e('s_cselect_b64 vcc, -1, 0')
    a.e('v_pk_mul_f32 v[54:55], v[54:55], v[44:45]')
    a.e('v_cndmask_b32 v46, v45, v44, vcc')
    a.e('v_pk_add_f32 v[54:55], v[54:55], v[54:55]')
    a.e('v_rcp_f32 v46, v46')
    for jb, (base, va, off) in enumerate(((96, 92, 0), (112, 93, 1024))):
        a.e(f's_waitcnt lgkmcnt({5 if jb == 0 else 5})')
        for h in range(2):
            a.e(f'v_pk_add_f32 v[{base+2*h}:{base+2*h+1}], v[{base+2*h}:{base+2*h+1}], v[{base+4+2*h}:{base+5+2*h}]')
            a.e(f'v_pk_add_f32 v[{base+8+2*h}:{base+9+2*h}], v[{base+8+2*h}:{base+9+2*h}], v[{base+12+2*h}:{base+13+2*h}]')
        for h in range(2):
            a.e(f'v_pk_add_f32 v[{base+2*h}:{base+2*h+1}], v[{base+2*h}:{base+2*h+1}], v[{base+8+2*h}:{base+9+2*h}]')
        for h in range(2):
            a.e(f'v_pk_mul_f32 v[{base+2*h}:{base+2*h+1}], v[{base+2*h}:{base+2*h+1}], v[46:47] op_sel:[0,0] op_sel_hi:[1,0]')
        a.e(f'v_cvt_pk_f16_f32 v{base+4}, v{base}, v{base+1}')
        a.e(f'v_cvt_pk_f16_f32 v{base+5}, v{base+2}, v{base+3}')
        a.e(f'ds_write_b16 v{va}, v{base+4} offset:{off}')
        a.e(f'ds_write_b16_d16_hi v{va}, v{base+4} offset:{off+32}')
        a.e(f'ds_write_b16 v{va}, v{base+5} offset:{off+64}')
        a.e(f'ds_write_b16_d16_hi v{va}, v{base+5} offset:{off+96}')
    for e in range(11 if OPT['c4'] else 15):
        src = 160 + e // 2
        if e % 2 == 0:
            a.e(f'v_and_b32 v{136+e}, 0xffff, v{src}')
        else:
            a.e(f'v_lshrrev_b32 v{136+e}, 16, v{src}')
    a.e('s_waitcnt lgkmcnt(0)')
    a.e('s_barrier')


def kch():
    return (4 if OPT['c4'] else 8) * KCOPY


def kcopies(a):
    AD = 136
    a.e('v_lshlrev_b32 v111, 4, v0')
    a.e(f'v_add_u32 v111, {L_KC}, v111')
    RR = [96, 112]
    if OPT['c4']:
        for c in range(2):
            for e in range(11):
                a.e(f'ds_read_u16 v{RR[c]+e}, v{AD+e} offset:{L_KT + c*KTCH}')
        for c in range(2):
            R = RR[c]
            Da, Db, Oa, Ob = (56, 60, 64, 68) if c == 0 else (16, 20, 24, 28)
            a.e(f's_waitcnt lgkmcnt({11 if c == 0 else 4})')
            for i in range(4):
                a.e(f'v_lshl_or_b32 v{Da+i}, v{R+2*i+1}, 16, v{R+2*i}')
                a.e(f'v_lshl_or_b32 v{Oa+i}, v{R+2*i+2}, 16, v{R+2*i+1}')
                a.e(f'v_lshl_or_b32 v{Db+i}, v{R+2*i+3}, 16, v{R+2*i+2}')
                a.e(f'v_lshl_or_b32 v{Ob+i}, v{R+2*i+4}, 16, v{R+2*i+3}')
            for s_, r in ((0, Da), (1, Oa), (2, Db), (3, Ob)):
                a.e(f'ds_write_b128 v111, v[{r}:{r+3}] offset:{c*kch() + s_*KCOPY}')
        return
    for c in range(2):
        for e in range(15):
            a.e(f'ds_read_u16 v{RR[c]+e}, v{AD+e} offset:{L_KT + c*KTCH}')
    for c in range(2):
        R = RR[c]
        Da, Db, Oa, Ob = 56 + 0, 64, 72, 80
        if c == 1:
            Da, Db, Oa, Ob = 16, 24, 32, 40
        a.e(f's_waitcnt lgkmcnt({15 if c == 0 else 8})')
        for i in range(6):
            a.e(f'v_lshl_or_b32 v{Da+i}, v{R+2*i+1}, 16, v{R+2*i}')
            a.e(f'v_lshl_or_b32 v{Oa+i}, v{R+2*i+2}, 16, v{R+2*i+1}')
        if c == 1:
            a.e(f'v_add_u32 v110, {KCH}, v111')
        va = 111 if c == 0 else 110
        for s, r in ((0, Da), (1, Oa), (4, Da + 2), (5, Oa + 2)):
            a.e(f'ds_write_b128 v{va}, v[{r}:{r+3}] offset:{s*KCOPY}')
        for i in range(6):
            a.e(f'v_lshl_or_b32 v{Db+i}, v{R+2*i+3}, 16, v{R+2*i+2}')
            a.e(f'v_lshl_or_b32 v{Ob+i}, v{R+2*i+4}, 16, v{R+2*i+3}')
        for s, r in ((2, Db), (3, Ob), (6, Db + 2), (7, Ob + 2)):
            a.e(f'ds_write_b128 v{va}, v[{r}:{r+3}] offset:{s*KCOPY}')


def store_u(a, vm):
    a.e('v_lshlrev_b32 v2, 4, v0')
    a.e(f's_waitcnt vmcnt({vm})')
    a.e(f'ds_write_b128 v2, v[176:179] offset:{L_U + 512}')
    a.e(f'ds_write_b128 v2, v[180:183] offset:{L_U + UCH + 512}')
    a.e('s_waitcnt lgkmcnt(0)')
    a.e('s_barrier')


def phase_conv(a, hooks, pre_vm):
    hooks = list(hooks)
    ACC = 16
    FA = [[64 + 64 * s + 4 * i for i in range(8)] for s in range(2)]
    FB = [[96 + 64 * s + 4 * i for i in range(8)] for s in range(2)]
    VA, VB = 48, 49

    def loads(qq, s):
        out = []
        for i in range(8):
            out.append(f'ds_read_b128 v[{FB[s][i]}:{FB[s][i]+3}], v{VB} offset:{512*i + 64*(3-qq)}')
            if OPT['c4']:
                o = 512 * (7 - i) + 64 * (3 - qq)
                out.append(f'ds_read_b64 v[{FA[s][i]}:{FA[s][i]+1}], v{VA} offset:{o}')
                out.append(f'ds_read_b64 v[{FA[s][i]+2}:{FA[s][i]+3}], v{VA} offset:{o + 8}')
            else:
                out.append(f'ds_read_b128 v[{FA[s][i]}:{FA[s][i]+3}], v{VA} offset:{512*(7-i) + 64*(3-qq)}')
        return out

    for x in loads(0, 0):
        a.e(x)
    for qq in range(4):
        s = qq & 1
        nxt = loads(qq + 1, 1 - s) if qq < 3 else []
        n = 0
        for w in range(8):
            for c in range(w, 8):
                if n == 0:
                    a.e('s_waitcnt lgkmcnt(0)')
                cc = '0' if (qq == 0 and w == 0) else f'v[{ACC+4*c}:{ACC+4*c+3}]'
                a.e(f'v_mfma_f32_16x16x32_f16 v[{ACC+4*c}:{ACC+4*c+3}], v[{FA[s][w]}:{FA[s][w]+3}], v[{FB[s][c-w]}:{FB[s][c-w]+3}], {cc}')
                if nxt and (n % 2 == 1 or (OPT['c4'] and n % 4 == 0)):
                    a.e(nxt.pop(0))
                if hooks and n % 4 == 2:
                    hooks.pop(0)()
                n += 1
        assert not nxt
    assert not hooks
    stamp(a, 11)
    CP, TS = L_CP, 1280
    a.e('v_and_b32 v2, 15, v1')
    a.e('v_lshlrev_b32 v2, 4, v2')
    a.e('v_lshrrev_b32 v3, 4, v1')
    a.e('v_mul_u32_u24 v3, 320, v3')
    a.e('v_add_u32 v2, v2, v3')
    a.e(f's_mul_i32 s70, s{S_W}, {8*TS}')
    a.e(f's_add_u32 s70, s70, {CP}')
    a.e('v_add_u32 v2, s70, v2')
    a.e('s_barrier')
    for c in range(8):
        a.e(f'ds_write_b128 v2, v[{ACC+4*c}:{ACC+4*c+3}] offset:{c*TS}')
    a.e('v_lshrrev_b32 v2, 2, v1')
    a.e('v_lshlrev_b32 v2, 4, v2')
    a.e('v_and_b32 v3, 3, v1')
    a.e('v_mul_u32_u24 v3, 320, v3')
    a.e('v_add_u32 v2, v2, v3')
    a.e(f's_lshl_b32 s70, s{S_W}, 1')
    a.e(f's_mul_i32 s71, s70, {TS}')
    a.e(f's_add_u32 s71, s71, {CP}')
    a.e('v_add_u32 v2, s71, v2')
    a.e('s_lshl_b32 s71, s70, 9')
    a.e(f's_add_u32 s71, s71, {L_U + 512}')
    a.e('v_lshl_add_u32 v3, v1, 3, s71')
    a.e(f's_mul_i32 s71, s{S_P}, {AST}')
    a.e('s_lshl_b32 s72, s70, 10')
    a.e('s_add_u32 s71, s71, s72')
    a.e(f's_add_u32 s71, s71, {WS_AOUT}')
    a.e('v_lshl_add_u32 v4, v1, 4, s71')
    a.e('s_lshl_b32 s72, s69, 16')
    a.e('s_and_b32 s73, s69, 0xffff0000')
    a.e('v_mov_b32 v56, s72')
    a.e('v_mov_b32 v57, s73')
    a.e(f's_waitcnt lgkmcnt(0) vmcnt({pre_vm})')
    a.e('s_barrier')
    for q in range(2):
        P = 64 + 32 * q
        for ch in range(2):
            for hf in range(2):
                r = P + 8 * ch + 4 * hf
                a.e(f'ds_read_b128 v[{r}:{r+3}], v2 offset:{(2*ch+hf)*8*TS + q*TS}')
        for ch in range(2):
            a.e(f'ds_read_b64 v[{P+16+2*ch}:{P+17+2*ch}], v3 offset:{ch*UCH + q*512}')
    for q in range(2):
        P = 64 + 32 * q
        a.e(f's_waitcnt lgkmcnt({6 if q == 0 else 0})')
        for ch in range(2):
            y = P + 8 * ch
            T = 128 + 16 * ch
            u = P + 16 + 2 * ch
            for h in range(2):
                a.e(f'v_pk_add_f32 v[{y+2*h}:{y+2*h+1}], v[{y+2*h}:{y+2*h+1}], v[{y+4+2*h}:{y+5+2*h}]')
            for i in range(4):
                a.e(f'v_fma_mix_f32 v{T+i}, v{u+i//2}, v{56+ch}, 0 op_sel:[{i%2},0,0] op_sel_hi:[1,0,0]')
            for h in range(2):
                a.e(f'v_pk_mul_f32 v[{y+2*h}:{y+2*h+1}], v[{y+2*h}:{y+2*h+1}], v[54:55] op_sel:[0,{ch}] op_sel_hi:[1,{ch}]')
            for h in range(2):
                a.e(f'v_cvt_pk_bf16_f32 v{T+6+h}, v{T+2*h}, v{T+2*h+1}')
                a.e(f'v_cvt_pk_bf16_f32 v{T+4+h}, v{y+2*h}, v{y+2*h+1}')
            for h in range(2):
                a.e(f'v_lshlrev_b32 v{T+2*h}, 16, v{T+6+h}')
                a.e(f'v_and_b32 v{T+2*h+1}, 0xffff0000, v{T+6+h}')
                a.e(f'v_lshlrev_b32 v{y+2*h}, 16, v{T+4+h}')
                a.e(f'v_and_b32 v{y+2*h+1}, 0xffff0000, v{T+4+h}')
            for h in range(2):
                a.e(f'v_pk_add_f32 v[{y+2*h}:{y+2*h+1}], v[{y+2*h}:{y+2*h+1}], v[{T+2*h}:{T+2*h+1}]')
        O = 160 + 4 * q
        for i in range(4):
            a.e(f'v_cvt_pk_bf16_f32 v{O+i}, v{P+i}, v{P+8+i}')
        a.e(f'buffer_store_dwordx4 v[{O}:{O+3}], v4, {WSR}, 0 offen offset:{q*1024} sc1')


def conv_addr(a):
    a.e(f's_lshr_b32 s66, s{S_W}, 1')
    a.e(f's_and_b32 s67, s{S_W}, 1')
    a.e('v_and_b32 v2, 7, v1')
    a.e('v_sub_u32 v2, 7, v2')
    if OPT['c4']:
        a.e('v_lshrrev_b32 v5, 2, v2')
        a.e('v_and_b32 v2, 3, v2')
        a.e(f'v_mul_u32_u24 v2, {KCOPY}, v2')
        a.e('v_lshl_add_u32 v2, v5, 3, v2')
    else:
        a.e(f'v_mul_u32_u24 v2, {KCOPY}, v2')
    a.e('v_lshrrev_b32 v3, 4, v1')
    a.e('v_bfe_u32 v4, v1, 3, 1')
    a.e('v_sub_u32 v4, v3, v4')
    a.e('v_lshl_add_u32 v2, v4, 4, v2')
    a.e(f's_mul_i32 s70, s66, {kch()}')
    a.e('s_lshl_b32 s71, s67, 8')
    a.e('s_sub_u32 s70, s70, s71')
    a.e(f's_add_u32 s70, s70, {L_KC + 16*253 - 512*7 - 64*3}')
    a.e('v_add_u32 v48, s70, v2')
    a.e('v_and_b32 v2, 15, v1')
    a.e('v_lshlrev_b32 v2, 5, v2')
    a.e('v_lshl_add_u32 v2, v3, 4, v2')
    a.e(f's_mul_i32 s70, s66, {UCH}')
    a.e('s_sub_u32 s70, s70, s71')
    a.e(f's_add_u32 s70, s70, {L_U + 480 - 64*3}')
    a.e('v_add_u32 v49, s70, v2')


def phase_p4(a, dmas=()):
    X = list(range(8, 16))
    A = 32
    xrow_addr(a)
    a.e(f's_mul_i32 s66, s{S_W}, {56*AST}')
    a.e(f's_lshl_b32 s67, s{S_B}, 5')
    a.e('s_add_u32 s66, s66, s67')
    a.e(f's_add_u32 s66, s66, {WS_AOUT}')
    a.e(f'v_mul_u32_u24 v4, {AST}, v1')
    a.e('v_add_u32 v4, s66, v4')
    a.e(f'v_mov_b32 v5, {OOB}')
    a.e('v_cndmask_b32 v4, v5, v4, vcc')
    if OPT['hpriv']:
        a.e(f's_mul_i32 s66, s{S_W}, 1792')
        a.e(f's_add_u32 s66, s66, {L_HT}')
        a.e('v_lshl_add_u32 v6, v1, 2, s66')
        a.e('v_lshl_add_u32 v7, v1, 4, s66')
        a.e(f's_mul_i32 s66, s{S_B}, 7168')
        a.e(f's_mul_i32 s67, s{S_W}, 224')
        a.e('s_add_u32 s66, s66, s67')
        a.e(f's_add_u32 s66, s66, {WS_H}')
        for k, vd in ((0, 56), (64, 57)):
            a.e(f'v_add_u32 v58, {k}, v1')
            a.e('v_mul_u32_u24 v59, 4682, v58')
            a.e('v_lshrrev_b32 v59, 16, v59')
            a.e(f'v_mul_u32_u24 v{vd}, {896 - 224}, v59')
            a.e(f'v_lshl_add_u32 v{vd}, v58, 4, v{vd}')
            a.e(f'v_add_u32 v{vd}, s66, v{vd}')
        mask_lanes(a, 57, 48, 58)
    else:
        a.e(f's_mul_i32 s66, s{S_W}, 224')
        a.e(f's_add_u32 s66, s66, {L_HT}')
        a.e('v_lshl_add_u32 v6, v1, 2, s66')
    for j in range(8):
        a.e(f'v_lshlrev_b32 v{64+2*j}, 16, v{X[j]}')
        a.e(f'v_and_b32 v{65+2*j}, 0xffff0000, v{X[j]}')
    lp, ld = a.lab('h2poll'), a.lab('h2done')
    a.e(f's_mov_b32 s{S_SPIN}, 0')
    a.e(f'{lp}:')
    a.e(f'buffer_load_dwordx4 v[{A}:{A+3}], v4, {WSR}, 0 offen sc1')
    a.e(f'buffer_load_dwordx4 v[{A+4}:{A+7}], v4, {WSR}, 0 offen offset:16 sc1')
    a.e('s_waitcnt vmcnt(0)')
    a.e(f'v_max3_u32 v40, v{A}, v{A+1}, v{A+2}')
    a.e(f'v_max3_u32 v41, v{A+3}, v{A+4}, v{A+5}')
    a.e(f'v_max3_u32 v40, v40, v{A+6}, v{A+7}')
    a.e('v_max_u32 v40, v40, v41')
    a.e('v_cmp_eq_u32 vcc, -1, v40')
    a.e(f's_cbranch_vccz {ld}')
    spin_tail(a, lp)
    a.e(f'{ld}:')
    stamp(a, 14)
    H = list(range(48, 56))
    for j in range(8):
        t = 40 + 2 * (j % 4)
        a.e(f'v_lshlrev_b32 v{t}, 16, v{A+j}')
        a.e(f'v_and_b32 v{t+1}, 0xffff0000, v{A+j}')
        a.e(f'v_pk_add_f32 v[{t}:{t+1}], v[{t}:{t+1}], v[{64+2*j}:{65+2*j}]')
        a.e(f'v_cvt_pk_bf16_f32 v{H[j]}, v{t}, v{t+1}')
    a.e('s_mov_b32 exec_hi, 0x00ffffff')
    for j in range(8):
        a.e(f'ds_write_b32 v6, v{H[j]} offset:{j*(224 if OPT["hpriv"] else 896)}')
    a.e('s_mov_b32 exec_hi, -1')
    if OPT['hpriv']:
        a.e('ds_read_b128 v[32:35], v7')
        a.e('ds_read_b128 v[36:39], v7 offset:1024')
        a.e('s_waitcnt lgkmcnt(1)')
        a.e(f'buffer_store_dwordx4 v[32:35], v56, {WSR}, 0 offen sc1')
        a.e('s_waitcnt lgkmcnt(0)')
        a.e(f'buffer_store_dwordx4 v[36:39], v57, {WSR}, 0 offen sc1')
        if dmas:
            a.inject(dmas, OPT['p4ev'])
        ln_stats(a, H, 16, L_RED0, 5)
    else:
        def hstore():
            a.e('v_lshlrev_b32 v7, 4, v0')
            a.e(f'ds_read_b128 v[56:59], v7 offset:{L_HT}')
            a.e(f'ds_read_b128 v[60:63], v7 offset:{L_HT + 4096}')
            return 2

        ln_stats(a, H, 16, L_RED0, 5, mid=hstore)
        a.e(f's_mul_i32 s66, s{S_B}, 7168')
        a.e(f's_add_u32 s66, s66, {WS_H}')
        a.e('v_add_u32 v6, s66, v7')
        a.e('v_add_u32 v7, 4096, v6')
        mask_lanes(a, 7, 192, 4, 'v0')
        a.e('s_waitcnt lgkmcnt(0)')
        a.e(f'buffer_store_dwordx4 v[56:59], v6, {WSR}, 0 offen sc1')
        a.e(f'buffer_store_dwordx4 v[60:63], v7, {WSR}, 0 offen sc1')
    bcast_stats(a, 16)
    a.inj_pause()
    a.e('s_mov_b32 exec_hi, 0x00ffffff')
    for j in range(8):
        t = 40 + 2 * (j % 4)
        norm_tok(a, j, H[j], t)
        a.e(f'v_cvt_pk_bf16_f32 v{H[j]}, v{t}, v{t+1}')
    a.e('s_mov_b32 exec_hi, -1')
    a.inj_resume()
    ln_stats(a, H, 16, L_RED1, 5)
    bcast_stats(a, 16)
    a.e(f's_mul_i32 s66, s{S_B}, 7168')
    a.e(f's_mul_i32 s67, s{S_W}, 1792')
    a.e('s_add_u32 s66, s66, s67')
    a.e(f's_add_u32 s66, s66, {WS_HH}')
    a.e('v_lshl_add_u32 v4, v1, 4, s66')
    a.e('v_add_u32 v5, 448, v4')
    a.e('v_cmp_gt_u32 vcc, 28, v1')
    a.e('v_cndmask_b32 v4, v5, v4, vcc')
    mask_lanes(a, 4, 56, 5)
    for j in range(8):
        norm_tok(a, j, H[j], 64 + 2 * j)
    O0, O1 = 80, 84
    for i in range(4):
        a.e(f'v_cvt_pk_bf16_f32 v{O0+i}, v{64+4*i}, v{66+4*i}')
        a.e(f'v_cvt_pk_bf16_f32 v{O1+i}, v{65+4*i}, v{67+4*i}')
    a.inj_flush()
    a.e(f's_waitcnt vmcnt({len(dmas)})')
    if not OPT['hpriv']:
        a.e('s_barrier')
    a.e(f'buffer_store_dwordx4 v[{O0}:{O0+3}], v4, {WSR}, 0 offen sc1')
    a.e(f'buffer_store_dwordx4 v[{O1}:{O1+3}], v4, {WSR}, 0 offen offset:448 sc1')


def w_setup(a):
    srd(a, S_W1, P_W1, W1BYTES)
    srd(a, S_W2, P_W2, W2BYTES)
    a.e('v_lshrrev_b32 v4, 3, v1')
    a.e('v_bfe_u32 v5, v1, 4, 1')
    a.e('v_lshlrev_b32 v5, 1, v5')
    a.e('v_and_b32 v6, 7, v1')
    a.e('v_xor_b32 v6, v6, v5')
    a.e('v_xor_b32 v7, 4, v6')
    for vd, rowbytes, tile, rows in ((V_D1, F * 2, S_I1, 512), (V_D2, L * 2, S_I2, 448)):
        a.e(f's_mov_b32 s66, {rowbytes}')
        a.e('v_mul_lo_u32 v5, v4, s66')
        a.e(f's_mul_i32 s67, s{S_W}, {rows*rowbytes}')
        a.e(f's_lshl_b32 s66, s{tile}, 7')
        a.e('s_add_u32 s67, s67, s66')
        a.e('v_add_u32 v5, s67, v5')
        for i in range(4):
            a.e(f'v_lshl_add_u32 v{vd+i}, v{6 + (i & 1)}, 4, v5')
            if i:
                a.e(f'v_add_u32 v{vd+i}, {i*(8*rowbytes - 1024)}, v{vd+i}')
    a.e('v_lshlrev_b32 v5, 12, v4')
    a.e('v_and_b32 v6, 7, v1')
    a.e(f'v_lshl_add_u32 v{V_QPF}, v6, 4, v5')
    a.e(f's_and_b32 s66, s{S_LOC}, 3')
    a.e('s_mul_i32 s66, s66, 448')
    if OPT['sched'] == 3:
        a.e(f's_mul_i32 s67, s{S_W}, {(448 - OPT["hR"]) // 4}')
        a.e(f's_add_u32 s67, s67, {OPT["hR"]}')
    else:
        a.e(f's_mul_i32 s67, s{S_W}, 112')
    a.e('s_add_u32 s66, s66, s67')
    a.e('s_lshl_b32 s66, s66, 12')
    a.e(f's_lshl_b32 s67, s{S_I2}, 7')
    a.e(f's_add_u32 s{S_QPF}, s66, s67')
    a.e('v_lshrrev_b32 v4, 4, v1')
    a.e('v_bfe_u32 v5, v1, 2, 2')
    a.e('v_lshl_add_u32 v5, v4, 3, v5')
    a.e('v_lshlrev_b32 v5, 7, v5')
    a.e('v_and_b32 v6, 1, v1')
    a.e('v_lshl_add_u32 v5, v6, 3, v5')
    a.e('v_bfe_u32 v6, v1, 1, 1')
    a.e('v_lshl_add_u32 v5, v6, 4, v5')
    a.e('v_bfe_u32 v6, v1, 3, 1')
    a.e('v_and_b32 v4, 1, v4')
    a.e('v_lshl_add_u32 v6, v4, 1, v6')
    a.e(f's_and_b32 s66, s{S_LOC}, 3')
    a.e(f's_lshr_b32 s67, s{S_LOC}, 2')
    a.e('s_lshl_b32 s67, s67, 1')
    a.e('s_lshl_b32 s70, s66, 2')
    a.e('s_add_u32 s70, s70, s67')
    a.e('s_and_b32 s70, s70, 15')
    a.e(f's_mul_i32 s{S_RW1}, s70, {32*F*2}')
    a.e(f's_mul_i32 s{S_RX1}, s70, {4*7168}')
    a.e('s_mul_i32 s66, s66, 7')
    a.e('s_lshr_b32 s66, s66, 1')
    a.e('s_add_u32 s66, s66, s67')
    for _ in range(2):
        a.e('s_cmp_ge_u32 s66, 14')
        a.e('s_cselect_b32 s67, 14, 0')
        a.e('s_sub_u32 s66, s66, s67')
    a.e(f's_mul_i32 s{S_RW2}, s66, {32*L*2}')
    a.e(f's_mul_i32 s{S_RX2}, s66, {4*7168}')
    a.e(f's_lshl_b32 s{S_SA}, s{S_W}, 14')
    a.e(f's_add_u32 s{S_SA}, s{S_SA}, {L_WA}')
    a.e(f's_mul_i32 s{S_SB}, s{S_W}, 20480')
    a.e(f's_add_u32 s{S_SB}, s{S_SB}, {L_WB}')
    a.e(f's_lshl_b32 s{S_SC}, s{S_W}, 13')
    a.e(f's_add_u32 s{S_SC}, s{S_SC}, {L_WC}')
    for mu in range(4):
        a.e(f'v_xor_b32 v4, {mu}, v6')
        a.e('v_lshl_add_u32 v4, v4, 5, v5')
        a.e(f'v_add_u32 v{V_TA+mu}, s{S_SA}, v4')
        a.e(f'v_add_u32 v{V_TB+mu}, s{S_SB}, v4')
        a.e(f'v_add_u32 v{V_TC+mu}, s{S_SC}, v4')


def rot_off(a, idx, sreg, n, unit):
    a.e(f's_add_u32 s70, s{sreg}, {idx*unit}')
    a.e(f's_cmp_ge_u32 s70, {n*unit}')
    a.e(f's_cselect_b32 s71, {n*unit}, 0')
    a.e('s_sub_u32 s70, s70, s71')


def slot(name):
    return {'A': (S_SA, V_TA), 'B': (S_SB, V_TB), 'C': (S_SC, V_TC)}[name[0]] + (int(name[1]),)


def w_dma1(a, mat, slab, sl, i):
    sb, _, si = slot(sl)
    vd, srd_, rowbytes = (V_D1, S_W1, F * 2) if mat == 1 else (V_D2, S_W2, L * 2)
    if i == 0:
        rot_off(a, slab, S_RW1 if mat == 1 else S_RW2, 16 if mat == 1 else 14, 32 * rowbytes)
        a.e(f's_add_u32 m0, s{sb}, {si*4096}')
    a.e(f'buffer_load_dwordx4 v{vd + i}, s[{srd_}:{srd_+3}], s70 offen offset:{1024*i} lds')


def w_dma(a, mat, slab, sl):
    for i in range(4):
        w_dma1(a, mat, slab, sl, i)


def w_tr(a, slab, sl):
    _, vt, si = slot(sl)
    for mu in range(4):
        r = (slab * 4 + mu) * 4
        a.e(f'ds_read_b64_tr_b16 a[{r}:{r+1}], v{vt+mu} offset:{si*4096}')
        a.e(f'ds_read_b64_tr_b16 a[{r+2}:{r+3}], v{vt+mu} offset:{si*4096 + 512}')


def helper_w2(a, nrows):
    a.e(f's_lshr_b32 s66, s{S_XCD}, 1')
    a.e('s_lshl_b32 s66, s66, 10')
    a.e(f's_sub_u32 s67, s{S_LOC}, 28')
    a.e('s_mul_i32 s67, s67, 448')
    a.e(f's_add_u32 s67, s67, s{S_W}')
    a.e('s_lshl_b32 s67, s67, 12')
    a.e('s_add_u32 s70, s66, s67')
    a.e('v_lshlrev_b32 v4, 4, v1')
    l = a.lab('l2s')
    a.e(f's_mov_b32 s71, {nrows // 16}')
    a.e(f'{l}:')
    for i in range(4):
        a.e(f'buffer_load_dwordx4 v[220:223], v4, s[{S_W2}:{S_W2+3}], s70 offen')
        a.e(f's_add_u32 s70, s70, {4*L*2}')
    a.e('s_waitcnt vmcnt(8)')
    a.e('s_sub_u32 s71, s71, 1')
    a.e('s_cmp_lg_u32 s71, 0')
    a.e(f's_cbranch_scc1 {l}')


def qpf_load(a, n):
    for _ in range(n):
        a.e(f'buffer_load_dwordx4 v[220:223], v{V_QPF}, s[{S_W2}:{S_W2+3}], s{S_QPF} offen')
        a.e(f's_add_u32 s{S_QPF}, s{S_QPF}, {8*L*2}')


ACC = 16
XS = 80
NS = 6
VMAX = 214
V_X0, V_X3 = 208, 209


def gemm_xaddr(a, ws_off, kblocks):
    a.e(f's_mul_i32 s66, s{S_W}, {kblocks*7168}')
    a.e(f's_mul_i32 s67, s{S_J}, 896')
    a.e('s_add_u32 s66, s66, s67')
    a.e(f's_add_u32 s66, s66, {ws_off}')
    a.e('v_lshrrev_b32 v4, 4, v1')
    a.e('v_mul_u32_u24 v4, 7168, v4')
    a.e('v_add_u32 v4, s66, v4')
    a.e('v_and_b32 v5, 15, v1')
    a.e(f'v_lshl_add_u32 v{V_X0}, v5, 4, v4')
    if OPT['x3oob']:
        a.e(f'v_add_u32 v{V_X3}, 768, v{V_X0}')
        a.e(f'v_mov_b32 v4, {OOB}')
        a.e('v_cmp_gt_u32 vcc, 8, v5')
        a.e(f'v_cndmask_b32 v{V_X3}, v4, v{V_X3}, vcc')
    else:
        a.e('v_and_b32 v5, 7, v1')
        a.e('v_lshl_add_u32 v4, v5, 4, v4')
        a.e(f'v_add_u32 v{V_X3}, 768, v4')


def gemm_xloads(a, kappa, gid):
    st = XS + 16 * (kappa % NS)
    out = []
    sreg, n = (S_RX1, 16) if gid == 1 else (S_RX2, 14)
    unit = 4 * 7168
    out.append(f's_add_u32 s70, s{sreg}, {kappa*unit}')
    out.append(f's_cmp_ge_u32 s70, {n*unit}')
    out.append(f's_cselect_b32 s71, {n*unit}, 0')
    out.append('s_sub_u32 s70, s70, s71')
    for nu in range(3):
        out.append(f'buffer_load_dwordx4 v[{st+4*nu}:{st+4*nu+3}], v{V_X0}, {WSR}, s70 offen offset:{256*nu} sc1')
    out.append(f'buffer_load_dwordx4 v[{st+12}:{st+15}], v{V_X3}, {WSR}, s70 offen sc1')
    return out


def gemm_main(a, nk, gid, tail_hook=None):
    nfl = OPT['nfl']
    w_is_a = gid == 1
    a.e(f'v_mov_b32 v{VMAX}, 0')
    extra = 0
    for k in range(nk):
        st = XS + 16 * (k % NS)
        rem = min(nfl - 1, nk - 1 - k)
        a.e(f's_waitcnt vmcnt({4*rem + extra})')
        if OPT['stamps'] and k in (0, 4, 8, 12):
            stamp(a, (44 if w_is_a else 51) + (0, 4, 8, 12).index(k))
        fill = gemm_xloads(a, k + nfl, gid) if k + nfl < nk else []
        if k + nfl == nk and tail_hook is not None:
            fill = []
            extra = tail_hook(fill)
        mx = [f'v_max3_u32 v{VMAX}, v{VMAX}, v{st+2*i}, v{st+2*i+1}' for i in range(8)]
        n = 0
        for mu in range(4):
            for nu in range(4):
                w = (k * 4 + mu) * 4
                x = st + 4 * nu
                if w_is_a:
                    acc = ACC + (mu * 4 + nu) * 4
                    A, B = f'a[{w}:{w+3}]', f'v[{x}:{x+3}]'
                else:
                    acc = ACC + (nu * 4 + mu) * 4
                    A, B = f'v[{x}:{x+3}]', f'a[{w}:{w+3}]'
                cc = '0' if k == 0 else f'v[{acc}:{acc+3}]'
                a.e(f'v_mfma_f32_16x16x32_bf16 v[{acc}:{acc+3}], {A}, {B}, {cc}')
                for _ in range(2):
                    if fill:
                        a.e(fill.pop(0))
                if not fill and mx and n >= 4:
                    a.e(mx.pop(0))
                n += 1
        assert not fill and not mx


def capture(fn):
    p = Prog()
    fn(p)
    return [it.text for it in p.items]


STUBS = []


def mfma_line(k, mu, nu, gid):
    st = XS + 16 * (k % NS)
    w = (k * 4 + mu) * 4
    x = st + 4 * nu
    if gid == 1:
        acc = ACC + (mu * 4 + nu) * 4
        A, B = f'a[{w}:{w+3}]', f'v[{x}:{x+3}]'
    else:
        acc = ACC + (nu * 4 + mu) * 4
        A, B = f'v[{x}:{x+3}]', f'a[{w}:{w+3}]'
    cc = '0' if k == 0 else f'v[{acc}:{acc+3}]'
    return f'v_mfma_f32_16x16x32_bf16 v[{acc}:{acc+3}], {A}, {B}, {cc}'


def poison_check(k):
    st = XS + 16 * (k % NS)
    out = [f'v_max3_u32 v{VMAX}, v{st}, v{st+1}, v{st+2}']
    for i in range(6):
        out.append(f'v_max3_u32 v{VMAX}, v{VMAX}, v{st+3+2*i}, v{st+4+2*i}')
    out.append(f'v_max_u32 v{VMAX}, v{VMAX}, v{st+15}')
    out.append(f'v_cmp_eq_u32 vcc, -1, v{VMAX}')
    return out


def gemm_checked(a, nk, gid, sb, tail_hook=None, side=None):
    nfl = OPT['nfl']

    def slow(k):
        ls, lb, lp = a.lab('slow'), a.lab('back'), a.lab('sloop')

        def emit():
            a.e(f'{ls}:')
            a.e(f's_mov_b32 s{S_SPIN}, 0')
            a.e(f'{lp}:')
            for x in gemm_xloads(a, k, gid):
                a.e(x)
            a.e('s_waitcnt vmcnt(0)')
            for x in poison_check(k):
                a.e(x)
            ldone = a.lab('sdone')
            a.e(f's_cbranch_vccz {ldone}')
            spin_tail(a, lp)
            a.e(f'{ldone}:')
            if k == 0:
                for kk in range(1, min(nfl, nk - 1) + 1):
                    for x in gemm_xloads(a, kk, gid):
                        a.e(x)
            a.e(f's_branch {lb}')
        STUBS.append(emit)
        return ls, lb

    for k in range(nfl):
        for x in gemm_xloads(a, k, gid):
            a.e(x)
    a.e(f's_waitcnt vmcnt({4*(nfl-1)})')
    for x in gemm_xloads(a, nfl, gid):
        a.e(x)
    for x in poison_check(0):
        a.e(x)
    ls, lb = slow(0)
    a.e(f's_cbranch_vccnz {ls}')
    a.e(f'{lb}:')
    stamp(a, sb)
    extra = 0
    for k in range(nk):
        lines = [mfma_line(k, mu, nu, gid) for mu in range(4) for nu in range(4)]
        for i in range(8):
            a.e(lines[i])
        if k + 1 < nk:
            kn = k + 1
            rem = min(nfl - 1, nk - 1 - kn)
            a.e(f's_waitcnt vmcnt({4*rem + extra})')
            if OPT['stamps'] and kn in (4, 8, 12):
                stamp(a, (44 if gid == 1 else 51) + (0, 4, 8, 12).index(kn))
            fill = gemm_xloads(a, kn + nfl, gid) if kn + nfl < nk else []
            if kn + nfl == nk and tail_hook is not None:
                extra = tail_hook(fill)
            if side is not None:
                lines_, nvm = side(kn)
                fill += lines_
                extra += nvm
            fill += poison_check(kn)
        else:
            fill = []
        per = -(-len(fill) // 8)
        for i in range(8, 16):
            a.e(lines[i])
            for _ in range(per):
                if fill:
                    a.e(fill.pop(0))
        assert not fill
        if k + 1 < nk:
            ls, lb = slow(k + 1)
            a.e(f's_cbranch_vccnz {ls}')
            a.e(f'{lb}:')


def sentinel(a, ws_off, kblocks):
    lp, ld = a.lab('spoll'), a.lab('sdone')
    a.e(f's_mul_i32 s66, s{S_W}, {kblocks*7168}')
    a.e(f's_mul_i32 s67, s{S_J}, 896')
    a.e('s_add_u32 s66, s66, s67')
    a.e(f's_add_u32 s66, s66, {ws_off + 55*16 + 12}')
    a.e('v_mul_u32_u24 v4, 7168, v1')
    a.e('v_add_u32 v4, s66, v4')
    if kblocks < 64:
        mask_lanes(a, 4, kblocks, 5)
    a.e(f's_mov_b32 s{S_SPIN}, 0')
    a.e(f'{lp}:')
    a.e(f'buffer_load_dword v5, v4, {WSR}, 0 offen sc1')
    a.e('s_waitcnt vmcnt(0)')
    a.e('v_cmp_eq_u32 vcc, -1, v5')
    a.e(f's_cbranch_vccz {ld}')
    spin_tail(a, lp)
    a.e(f'{ld}:')


def gemm_poll_main(a, ws_off, kblocks, nk, gid, sb, tail_hook=None, side=None):
    lr, lok = a.lab('gretry'), a.lab('gok')
    gemm_xaddr(a, ws_off, kblocks)
    if OPT['stchk']:
        gemm_checked(a, nk, gid, sb, tail_hook, side)
        return
    a.e(f's_mov_b32 s{S_RETRY}, 0')
    a.e(f'{lr}:')
    sentinel(a, ws_off, kblocks)
    stamp(a, sb)
    for k in range(OPT['nfl']):
        for x in gemm_xloads(a, k, gid):
            a.e(x)
    gemm_main(a, nk, gid, tail_hook)
    a.e(f'v_cmp_eq_u32 vcc, -1, v{VMAX}')
    a.e(f's_cbranch_vccz {lok}')
    a.e(f's_add_u32 s{S_RETRY}, s{S_RETRY}, 1')
    a.e(f's_cmp_lt_u32 s{S_RETRY}, {RETRY_MAX}')
    a.e(f's_cbranch_scc1 {lr}')
    a.e(f'{lok}:')


def write_partials(a):
    a.e('v_and_b32 v4, 15, v1')
    a.e(f'v_mul_u32_u24 v4, {PROW}, v4')
    a.e('v_lshrrev_b32 v5, 4, v1')
    a.e('v_lshl_add_u32 v4, v5, 4, v4')
    a.e(f's_mul_i32 s66, s{S_W}, {PARTW}')
    a.e(f's_add_u32 s66, s66, {L_PART}')
    a.e('v_add_u32 v4, s66, v4')
    a.e('s_barrier')
    for mt in range(4):
        for nt in range(4):
            acc = ACC + (mt * 4 + nt) * 4
            a.e(f'ds_write_b128 v4, v[{acc}:{acc+3}] offset:{nt*16*PROW + mt*64}')


def sum_partials(a, P):
    for h in range(4):
        a.e(f'v_pk_add_f32 v[{P+2*h}:{P+2*h+1}], v[{P+2*h}:{P+2*h+1}], v[{P+8+2*h}:{P+9+2*h}]')
        a.e(f'v_pk_add_f32 v[{P+16+2*h}:{P+17+2*h}], v[{P+16+2*h}:{P+17+2*h}], v[{P+24+2*h}:{P+25+2*h}]')
    for h in range(4):
        a.e(f'v_pk_add_f32 v[{P+2*h}:{P+2*h+1}], v[{P+2*h}:{P+2*h+1}], v[{P+16+2*h}:{P+17+2*h}]')


def b1_load(a):
    a.e(f's_lshl_b32 s67, s{S_I1}, 7')
    a.e(f's_lshl_b32 s70, s{S_W}, 5')
    a.e('s_add_u32 s67, s67, s70')
    a.e(f's_load_dwordx8 s[72:79], s[{P_B1}:{P_B1+1}], s67')


def gemm1_epilogue(a, d0=(), d1=()):
    write_partials(a)
    a.e(f'v_mul_u32_u24 v4, {PROW}, v1')
    a.e(f's_lshl_b32 s66, s{S_W}, 6')
    a.e(f's_add_u32 s66, s66, {L_PART}')
    a.e('v_add_u32 v4, s66, v4')
    g_store_addr(a, 5)
    C1 = 0.044715
    C2 = -2.0 * 0.7978845608028654 * 1.4426950408889634
    a.e(f'v_mov_b32 v100, {fx(C1*C2)}')
    a.e(f'v_mov_b32 v101, {fx(C1*C2)}')
    a.e(f'v_mov_b32 v102, {fx(C2)}')
    a.e(f'v_mov_b32 v103, {fx(C2)}')
    a.e('s_waitcnt lgkmcnt(0)')
    a.e('s_barrier')
    stamp(a, 24)
    for r in range(2):
        P = 16 + 32 * r
        for wv in range(4):
            a.e(f'ds_read_b128 v[{P+8*wv}:{P+8*wv+3}], v4 offset:{wv*PARTW + r*32}')
            a.e(f'ds_read_b128 v[{P+8*wv+4}:{P+8*wv+7}], v4 offset:{wv*PARTW + r*32 + 16}')
    for i in range(8):
        a.e(f's_lshl_b32 s{80+2*i}, s{72+i}, 16')
        a.e(f's_and_b32 s{81+2*i}, s{72+i}, 0xffff0000')
    for r in range(2):
        P = 16 + 32 * r
        T = 80
        a.e(f's_waitcnt lgkmcnt({8 if r == 0 else 0})')
        if r == 1 and d1:
            a.e('s_barrier')
        dd = d0 if r == 0 else d1
        if dd:
            a.inject(dd, max(1, 80 // len(dd)))
        sum_partials(a, P)
        round_pairs(a, P, T, 8)
        for h in range(4):
            a.e(f'v_pk_add_f32 v[{P+2*h}:{P+2*h+1}], v[{P+2*h}:{P+2*h+1}], s[{80+8*r+2*h}:{81+8*r+2*h}]')
        round_pairs(a, P, T, 8)
        for h in range(4):
            a.e(f'v_pk_mul_f32 v[{P+8+2*h}:{P+9+2*h}], v[{P+2*h}:{P+2*h+1}], v[{P+2*h}:{P+2*h+1}]')
        for h in range(4):
            a.e(f'v_pk_fma_f32 v[{P+8+2*h}:{P+9+2*h}], v[{P+8+2*h}:{P+9+2*h}], v[100:101], v[102:103]')
        for h in range(4):
            a.e(f'v_pk_mul_f32 v[{P+8+2*h}:{P+9+2*h}], v[{P+8+2*h}:{P+9+2*h}], v[{P+2*h}:{P+2*h+1}]')
        for i in range(8):
            a.e(f'v_exp_f32 v{P+8+i}, v{P+8+i}')
        for h in range(4):
            a.e(f'v_pk_add_f32 v[{P+8+2*h}:{P+9+2*h}], v[{P+8+2*h}:{P+9+2*h}], 1.0 op_sel_hi:[1,0]')
        for i in range(8):
            a.e(f'v_rcp_f32 v{P+8+i}, v{P+8+i}')
        for h in range(4):
            a.e(f'v_pk_mul_f32 v[{P+2*h}:{P+2*h+1}], v[{P+2*h}:{P+2*h+1}], v[{P+8+2*h}:{P+9+2*h}]')
        O = 88 + 4 * r
        for h in range(4):
            a.e(f'v_cvt_pk_bf16_f32 v{O+h}, v{P+2*h}, v{P+2*h+1}')
        a.inj_flush()
        if r == 1:
            a.e('v_add_u32 v5, 7168, v5')
        a.e(f'buffer_store_dwordx4 v[{O}:{O+3}], v5, {WSR}, 0 offen sc1')


V_OUT, V_HAD, V_B2 = 210, 211, 212
V_HR = 196


def gemm2_addr(a):
    srd(a, S_T2, P_OUT, XBYTES)
    srd(a, S_T3, P_B2, L * 2)
    a.e('v_lshrrev_b32 v4, 3, v1')
    a.e('v_and_b32 v5, 7, v1')
    a.e(f's_lshl_b32 s66, s{S_W}, 4')
    a.e('v_add_u32 v4, s66, v4')
    a.e(f's_lshl_b32 s67, s{S_I2}, 6')
    a.e('v_add_u32 v7, s67, v4')
    a.e(f'v_mul_u32_u24 v{V_OUT}, 896, v7')
    a.e(f'v_lshl_add_u32 v{V_OUT}, v5, 4, v{V_OUT}')
    a.e(f's_mul_i32 s70, s{S_J}, 112')
    a.e(f'v_add_u32 v{V_OUT}, s70, v{V_OUT}')
    a.e(f'v_mov_b32 v6, {OOB}')
    a.e('v_cmp_gt_u32 vcc, 7, v5')
    a.e(f'v_cndmask_b32 v{V_OUT}, v6, v{V_OUT}, vcc')
    a.e(f'v_add_u32 v{V_HAD}, {WS_H}, v{V_OUT}')
    a.e(f'v_lshlrev_b32 v{V_B2}, 1, v7')


def gemm2_tail_loads(fill):
    fill.append(f'buffer_load_dwordx4 v[{V_HR}:{V_HR+3}], v{V_HAD}, {WSR}, 0 offen sc1')
    fill.append(f's_mov_b32 s70, {8*896}')
    fill.append(f'buffer_load_dwordx4 v[{V_HR+4}:{V_HR+7}], v{V_HAD}, {WSR}, s70 offen sc1')
    fill.append(f'buffer_load_ushort v{V_HR+8}, v{V_B2}, s[{S_T3}:{S_T3+3}], 0 offen')
    fill.append(f'buffer_load_ushort v{V_HR+9}, v{V_B2}, s[{S_T3}:{S_T3+3}], 0 offen offset:16')
    return 4


def gemm2_epilogue(a):
    write_partials(a)
    a.e('v_lshrrev_b32 v4, 3, v1')
    a.e('v_and_b32 v5, 7, v1')
    a.e(f's_lshl_b32 s66, s{S_W}, 4')
    a.e('v_add_u32 v4, s66, v4')
    a.e(f'v_mul_u32_u24 v6, {PROW}, v4')
    a.e('v_lshl_add_u32 v6, v5, 4, v6')
    a.e(f'v_add_u32 v6, {L_PART}, v6')
    a.e('s_waitcnt lgkmcnt(0)')
    a.e('s_barrier')
    stamp(a, 33)
    for r in range(2):
        P = 16 + 32 * r
        for wv in range(4):
            a.e(f'ds_read_b128 v[{P+8*wv}:{P+8*wv+3}], v6 offset:{wv*PARTW + r*8*PROW}')
            a.e(f'ds_read_b128 v[{P+8*wv+4}:{P+8*wv+7}], v6 offset:{wv*PARTW + r*8*PROW + 112}')
    a.e('s_waitcnt vmcnt(0)')
    for r in range(2):
        P = 16 + 32 * r
        T = 80
        H = V_HR + 4 * r
        a.e(f'v_lshlrev_b32 v106, 16, v{V_HR+8+r}')
        for i in range(4):
            a.e(f'v_lshlrev_b32 v{96+i}, 16, v{H+i}')
            a.e(f'v_and_b32 v{100+i}, 0xffff0000, v{H+i}')
        a.e(f's_waitcnt lgkmcnt({8 if r == 0 else 0})')
        sum_partials(a, P)
        round_pairs(a, P, T, 8)
        for h in range(4):
            a.e(f'v_pk_add_f32 v[{P+2*h}:{P+2*h+1}], v[{P+2*h}:{P+2*h+1}], v[106:107] op_sel:[0,0] op_sel_hi:[1,0]')
        round_pairs(a, P, T, 8)
        for h in range(4):
            a.e(f'v_pk_add_f32 v[{P+2*h}:{P+2*h+1}], v[{P+2*h}:{P+2*h+1}], v[{96+2*h}:{97+2*h}]')
        O = 88 + 4 * r
        for i in range(4):
            a.e(f'v_cvt_pk_bf16_f32 v{O+i}, v{P+i}, v{P+4+i}')
        if r == 1:
            a.e(f'v_add_u32 v{V_OUT}, {8*896}, v{V_OUT}')
        a.e(f'buffer_store_dwordx4 v[{O}:{O+3}], v{V_OUT}, s[{S_T2}:{S_T2+3}], 0 offen' + ['', ' sc1', ' nt', ' sc0 sc1', ' sc1 nt'][OPT['outsc']])


def build():
    a = Prog()
    name = NAME + '_kernel'
    lend = a.lab('end')
    a.raw(f'.globl {name}')
    a.raw('.p2align 8')
    a.raw(f'.type {name},@function')
    a.raw(f'{name}:')
    prologue(a, lend)
    lnc1, lnc2, lnc3, lnc5, lnc6 = [a.lab('noconv') for _ in range(5)]

    def skip_if_helper(l):
        a.e(f's_cmp_ge_u32 s{S_LOC}, 28')
        a.e(f's_cbranch_scc1 {l}')

    load_xrows(a)
    ncp = 0
    if OPT['cpf'] & 2:
        code_prefetch1(a, name, 'kcode_end')
        ncp = 1
    a.e(f's_add_u32 s66, s{P_WS}, {WS_EPOCH}')
    a.e(f's_addc_u32 s67, s{P_WS+1}, 0')
    a.e('s_load_dword s99, s[66:67], 0')
    poison_regs(a)
    skip_if_helper(lnc1)
    nt = 0
    if not OPT['plate']:
        kgen_loads(a)
        load_gather_table(a, 'ktab_idx')
        w_setup(a)
        if OPT['tlb'] & 2:
            nt = tlb_touch(a)
        flag_addr(a)
        a.e('s_waitcnt lgkmcnt(0)')
        a.e(f's_add_u32 s{S_TAG}, s99, 0x9e3779b9')
        a.e(f's_waitcnt vmcnt({10 + nt + ncp})')
        stamp(a, 2)
        clear_hh(a)
        clear_aout(a)
    else:
        kgen_loads(a, 'setup')
        w_setup(a)
        flag_addr(a)
        a.e(f's_waitcnt vmcnt({ncp})')
        stamp(a, 2)
        kgen_loads(a, 'issue')
        clear_hh(a)
        clear_aout(a)
        load_gather_table(a, 'ktab_idx')
        if OPT['tlb'] & 2:
            nt = tlb_touch(a)
        a.e('s_waitcnt lgkmcnt(0)')
        a.e(f's_add_u32 s{S_TAG}, s99, 0x9e3779b9')
    ln_stats(a, list(range(8, 16)), 16, L_RED0, 5)
    stamp(a, 3)
    publish_xn(a)
    nb0 = OPT['wb0']
    if OPT['sched'] == 2:
        qa, qb = OPT['qa'], OPT['qb']
        qpf_load(a, qa)
        stamp(a, 4)
        a.e(f's_waitcnt vmcnt({8 + nt + qa})')
        kgen_channel(a, 0, DK0)
        for k in range(nb0):
            w_dma(a, 1, k, BS[k])
        stamp(a, 40)
        kgen_channel(a, 1, DK1, mid=lambda: publish_flag(a, qa + 4 * nb0), mid_m0=False)
        stamp(a, 5)
        qpf_load(a, qb)
        a.e(f's_waitcnt vmcnt({qb})')
        for k in range(nb0):
            w_tr(a, k, BS[k])
        ktab_part1(a)
        stamp(a, 6)
        flag_load(a)
        ktab_part2(a)
        stamp(a, 7)
        a.e(f's_mov_b32 s{S_EARLY}, 0')
        lne = a.lab('notearly')
        a.e('s_waitcnt vmcnt(0)')
        a.e(f'v_cmp_ne_u32 vcc, s{S_TAG}, v{V_FV}')
        a.e(f's_cbranch_vccnz {lne}')
        load_u(a)
        a.e(f's_mov_b32 s{S_EARLY}, 1')
        a.e(f'{lne}:')
        conv_addr(a)
        kcopies(a)
        stamp(a, 8)
        lhave = a.lab('haveu')
        a.e(f's_cmp_lg_u32 s{S_EARLY}, 0')
        a.e(f's_cbranch_scc1 {lhave}')
        flag_poll(a)
        load_u(a)
        a.e(f'{lhave}:')
        stamp(a, 9)
        store_u(a, 0)
    elif OPT['sched'] == 3:
        nq = (448 - OPT['hR']) // 32
        ne = 0
        if OPT['cearly']:
            assert OPT['regc']
            for k in range(2):
                w_dma(a, 1, k, f'C{k}')
            q4 = min(OPT['q4'], nq)
            qpf_load(a, q4)
            ne = 8 + q4
            nq -= q4
        stamp(a, 4)
        a.e(f's_waitcnt vmcnt({8 + nt + ne})')
        kgen_channel(a, 0, DK0)
        publish_flag(a, ne)
        if OPT['regc']:
            nb0 = 2
            if not OPT['cearly']:
                for k in range(2):
                    w_dma(a, 1, k, f'C{k}')
        else:
            for k in range(nb0):
                w_dma(a, 1, k, BS[k])
        if OPT['cearly']:
            qpf_load(a, nq)
            nq = 0
        stamp(a, 40)
        kgen_channel(a, 1, DK1)
        stamp(a, 5)
        flag_load(a)
        qpf_load(a, nq)
        if not OPT['regc']:
            a.e(f's_waitcnt vmcnt({nq + 1})')
            for k in range(nb0):
                w_tr(a, k, BS[k])
        ktab_part1(a)
        stamp(a, 6)
        a.e(f's_mov_b32 s{S_EARLY}, 0')
        lne = a.lab('notearly')
        a.e(f's_waitcnt vmcnt({nq})')
        a.e(f'v_cmp_ne_u32 vcc, s{S_TAG}, v{V_FV}')
        a.e(f's_cbranch_vccnz {lne}')
        load_u(a)
        a.e(f's_mov_b32 s{S_EARLY}, 1')
        a.e(f'{lne}:')
        ktab_part2(a)
        stamp(a, 7)
        conv_addr(a)
        kcopies(a)
        stamp(a, 8)
        lhave = a.lab('haveu')
        a.e(f's_cmp_lg_u32 s{S_EARLY}, 0')
        a.e(f's_cbranch_scc1 {lhave}')
        flag_poll(a)
        load_u(a)
        a.e(f'{lhave}:')
        stamp(a, 9)
        store_u(a, 0)
    else:
        stamp(a, 4)
        a.e(f's_waitcnt vmcnt({8 + nt})')
        kgen_channel(a, 0, DK0)
        publish_flag(a)
        for k in range(min(nb0, 3)):
            w_dma(a, 1, k, BS[k])
        stamp(a, 40)
        kgen_channel(a, 1, DK1, mid=(lambda: [w_dma(a, 1, k, BS[k]) for k in range(3, nb0)]) if nb0 > 3 else None)
        stamp(a, 5)
        if OPT['early']:
            flag_load(a)
            a.e('s_waitcnt vmcnt(1)')
        else:
            a.e('s_waitcnt vmcnt(0)')
        for k in range(nb0):
            w_tr(a, k, BS[k])
        ktab_part1(a)
        stamp(a, 6)
        a.e(f's_mov_b32 s{S_EARLY}, 0')
        lne = a.lab('notearly')
        if OPT['early']:
            a.e('s_waitcnt vmcnt(0)')
            a.e(f'v_cmp_ne_u32 vcc, s{S_TAG}, v{V_FV}')
            a.e(f's_cbranch_vccnz {lne}')
            load_u(a)
            a.e(f's_mov_b32 s{S_EARLY}, 1')
            a.e(f'{lne}:')
        qpf_load(a, OPT['w2pf_a'])
        ktab_part2(a)
        stamp(a, 7)
        conv_addr(a)
        kcopies(a)
        stamp(a, 8)
        lhave = a.lab('haveu')
        a.e(f's_cmp_lg_u32 s{S_EARLY}, 0')
        a.e(f's_cbranch_scc1 {lhave}')
        flag_poll(a)
        load_u(a)
        a.e('s_waitcnt vmcnt(0)')
        a.e(f'{lhave}:')
        stamp(a, 9)
        store_u(a, OPT['w2pf_a'])
    epoch_update(a)
    clear_g(a)
    if OPT['sched'] == 1:
        qpf_load(a, OPT['w2pf_b'])
    stamp(a, 10)
    hk = []
    for k in range(4):
        for i in range(4):
            hk.append(lambda k=k, i=i: w_dma1(a, 1, nb0 + k, AS[k], i))
            hk.append(lambda: None)
    phase_conv(a, hk, 0)
    stamp(a, 12)
    if OPT['regc']:
        for k in range(2):
            w_tr(a, k, f'C{k}')
    for k in range(4):
        w_tr(a, nb0 + k, AS[k])
    a.e('s_waitcnt lgkmcnt(0)')
    a.e('s_barrier')
    rest = list(range(nb0 + 4, 16))
    last = None
    if len(rest) > 9:
        last = rest.pop()
    rest_slots = (BS + AS)[:len(rest)]
    p4d = []
    if OPT['p4dma']:
        assert OPT['hpriv']
        p4d = [lambda k=k, sl=sl, i=i: w_dma1(a, 1, k, sl, i) for k, sl in zip(rest, rest_slots) for i in range(4)]
    else:
        for k, sl in zip(rest, rest_slots):
            w_dma(a, 1, k, sl)
    stamp(a, 13)
    a.e(f's_branch {lnc2}')
    a.e(f'{lnc1}:')
    nh = 0
    if OPT['cpf'] & 1:
        code_prefetch(a, name, 'kcode_end')
        nh += 3
    w_setup(a)
    if OPT['tlb'] & 1:
        nh += tlb_touch(a)
    flag_addr(a)
    a.e('s_waitcnt lgkmcnt(0)')
    a.e(f's_add_u32 s{S_TAG}, s99, 0x9e3779b9')
    a.e(f's_waitcnt vmcnt({nh + ncp})')
    clear_hh(a)
    ln_stats(a, list(range(8, 16)), 16, L_RED0, 5)
    publish_xn(a)
    publish_flag(a)
    if OPT['sched'] == 3:
        qpf_load(a, (448 - OPT['hR']) // 32)
        helper_w2(a, OPT['hR'])
    else:
        qpf_load(a, 14)
    stamp(a, 41)
    flag_poll(a)
    a.e('s_barrier')
    if p4d:
        a.e(f's_mov_b32 s{S_W1+2}, 0')
    stamp(a, 42)
    a.e(f'{lnc2}:')
    phase_p4(a, p4d)
    stamp(a, 20)
    gemm2_addr(a)
    skip_if_helper(lnc3)
    b1_load(a)
    if p4d:
        a.e('s_waitcnt vmcnt(2)')
    for k, sl in zip(rest, rest_slots):
        w_tr(a, k, sl)
    a.e('s_waitcnt lgkmcnt(0)')
    if last is not None:
        w_dma(a, 1, last, 'A0')
    for k in range(5):
        w_dma(a, 2, k, BS[k])
    if last is not None:
        a.e('s_waitcnt vmcnt(20)')
        w_tr(a, last, 'A0')
        a.e('s_waitcnt lgkmcnt(0)')
    stamp(a, 21)
    w2sh = OPT['w2sh'] and OPT['stchk'] and OPT['h4early']

    def side1(kn):
        if 6 <= kn <= 10:
            return capture(lambda p: w_tr(p, kn - 6, BS[kn - 6])), 0
        if 13 <= kn <= 15:
            pre = ['s_waitcnt lgkmcnt(0)'] if kn == 13 else []
            return pre + capture(lambda p: w_dma(p, 2, kn - 8, BS[kn - 13])), 4
        return [], 0

    gemm_poll_main(a, WS_HH, 64, 16, 1, 22, side=side1 if w2sh else None)
    stamp(a, 23)
    if OPT['h4early']:
        if not w2sh:
            for k in range(5):
                w_tr(a, k, BS[k])
            a.e('s_waitcnt lgkmcnt(0)')
            for k in range(5, 8):
                w_dma(a, 2, k, BS[k - 5])
        if OPT['e1dma']:
            d0 = [lambda k=k, i=i: w_dma1(a, 2, k, BS[k - 5], i) for k in range(8, 10) for i in range(4)]
            d1 = [lambda k=k, i=i: w_dma1(a, 2, k, AS[k - 10], i) for k in range(10, 14) for i in range(4)]
            gemm1_epilogue(a, d0, d1)
            stamp(a, 25)
            w1, w2, w3 = 26, 18, 1
        else:
            gemm1_epilogue(a)
            stamp(a, 25)
            a.e('s_barrier')
            for k in range(8, 10):
                w_dma(a, 2, k, BS[k - 5])
            for k in range(10, 14):
                w_dma(a, 2, k, AS[k - 10])
            w1, w2, w3 = 26, 16, 0
        a.e(f's_waitcnt vmcnt({w1})')
        for k in range(5, 8):
            w_tr(a, k, BS[k - 5])
        a.e(f's_waitcnt vmcnt({w2})')
        for k in range(8, 10):
            w_tr(a, k, BS[k - 5])
        a.e(f's_waitcnt vmcnt({w3})')
        for k in range(10, 14):
            w_tr(a, k, AS[k - 10])
        a.e('s_waitcnt lgkmcnt(0)')
        a.e(f's_branch {lnc6}')
    else:
        gemm1_epilogue(a)
        stamp(a, 25)
        for k in range(5):
            w_tr(a, k, BS[k])
        a.e('s_waitcnt lgkmcnt(0)')
        a.e('s_barrier')
        a.e(f's_branch {lnc5}')
    a.e(f'{lnc3}:')
    for k in range(5):
        w_dma(a, 2, k, BS[k])
    a.e('s_waitcnt vmcnt(0)')
    for k in range(5):
        w_tr(a, k, BS[k])
    a.e('s_waitcnt lgkmcnt(0)')
    a.e(f'{lnc5}:')
    for k in range(5, 10):
        w_dma(a, 2, k, BS[k - 5])
    for k in range(10, 14):
        w_dma(a, 2, k, AS[k - 10])
    a.e('s_waitcnt vmcnt(16)')
    for k in range(5, 10):
        w_tr(a, k, BS[k - 5])
    a.e('s_waitcnt vmcnt(0)')
    for k in range(10, 14):
        w_tr(a, k, AS[k - 10])
    a.e('s_waitcnt lgkmcnt(0)')
    a.e(f'{lnc6}:')
    stamp(a, 30)
    gemm_poll_main(a, WS_G, 56, 14, 2, 31, gemm2_tail_loads)
    stamp(a, 32)
    gemm2_epilogue(a)
    stamp_clk(a, 61)
    stamp(a, 63)
    stamp_flush(a)
    a.e(f'{lend}:')
    a.e('s_endpgm')
    for emit in STUBS:
        emit()
    del STUBS[:]
    a.raw('kcode_end:')
    emit_gather_table(a, 'ktab_idx')
    nn = a.fast_insert_nops()
    head = f'; @launch grid=(256,1,1) block=(256,1,1) lds={LDS_BYTES}\n'
    head += '.amdgcn_target "amdgcn-amd-amdhsa--gfx950"\n.text\n'
    tail = '.section .rodata,"a"\n.p2align 6\n' + descriptor(name)
    if OPT['align']:
        nal = a.align8(head, tail)
        sys.stderr.write(f'alignment: {nal}\n')
    sys.stderr.write(f'instructions: {a.count()}, nops inserted: {nn}\n')
    return head + a.text() + tail


if __name__ == '__main__':
    out = sys.argv[1]
    for arg in sys.argv[2:]:
        if arg == 'stamps':
            OPT['stamps'] = True
        elif arg == 'dbg':
            OPT['stamps'] = True
            OPT['dbgsel'] = [0, 1, 2, 4, 8, 9, 12, 13, 14, 20, 21, 23, 25, 30, 32, 63]
        elif '=' in arg:
            k, v = arg.split('=')
            OPT[k] = int(v)
    open(out, 'w').write(build())
```

```python
import sys
import gen
from gen import (Prog, NAME, L, D, F, XBYTES, PBYTES, W1BYTES, W2BYTES, OOB, fx, srd, reduce16, cmul, exp_bf16,
                 gather_table, emit_gather_table, descriptor, round_pairs, norm_tok, bcast_stats)

OPT = dict(npre=3, nohk=0, hkpos=0, w2sh=0, stchk=1, p4dma=0, p4ev=6, e1dma=0, plate=0, cearly=0, q4=4, hpriv=1, regc=1, hR=320, c4=1, kgrp=3, tlbg=21, cpf=1, sched=3, qa=7, qb=7, tlb=3, outsc=0, x3oob=1, h4early=1, wb0=3, xnb=1, stamps=False, dbgsel=None, w2pf_a=10, w2pf_b=4, nfl=3, early=True, align=True, hlds=True)

WS_FLAG = 0x4000
WS_EPOCH = 0x9000
WS_AOUT = 0x10000
AST = 8448
WS_H = 0x200000
WS_HH = 0x400000
WS_G = 0x600000
WS_DBG = 0x800000
WS_XN = 0xA00000
XCS = 4352
XPS = 2 * XCS
WS_USED = 0x1000000

L_RED0, L_RED1, L_SIG, L_KT = 0, 256, 512, 640
KTCH = 1600
L_U = L_KT + 2 * KTCH
UCH = 4608
L_SCR = L_U + 2 * UCH
SROW = 272
YROW = 41
SCRW = 57 * SROW
L_KC = 82688
KCOPY = 4160
KCH = 8 * KCOPY
L_CP = L_KC
LDS_BYTES = 160 * 1024
L_WA, L_WB = 13056, 78592
L_WC = 123904
L_PART = 1024
PROW = 272
PARTW = 64 * PROW
L_HT = 1024

S_WS, S_X = 4, 8
S_T0, S_T1, S_T2, S_T3 = 12, 16, 20, 24
S_W1, S_W2 = 12, 16
S_W, S_XCD, S_LOC, S_B, S_P, S_J, S_I1, S_I2 = 28, 29, 30, 31, 32, 33, 34, 35
P_X, P_LAR, P_AI, P_CR, P_CI, P_LDT, P_DSK = 36, 38, 40, 42, 44, 46, 48
P_W1, P_B1, P_W2, P_B2, P_OUT, P_DBG, P_WS = 52, 54, 56, 58, 60, 62, 64
S_SA, S_SB = 50, 51
S_RW1, S_RX1, S_RW2, S_RX2 = 38, 39, 40, 41
S_QPF = 42
S_EARLY = 43
S_SC = 44
V_TC = 236
S_TAG, S_SPIN, S_RETRY = 96, 97, 98
V_D1, V_D2, V_TA, V_TB = 224, 228, 244, 248
V_QPF = 232
SPIN_MAX, RETRY_MAX = 4000, 20
AS = ['A0', 'A1', 'A2', 'A3']
BS = ['B0', 'B1', 'B2', 'B3', 'B4']
WSR = f's[{S_WS}:{S_WS+3}]'

assert (gen.S_W, gen.S_B, gen.S_WS) == (S_W, S_B, S_WS)


def stamp(a, idx):
    if not OPT['stamps']:
        return
    sel = OPT['dbgsel']
    if sel is not None:
        if idx not in sel:
            return
        idx = sel.index(idx)
    a.e('s_memrealtime s[100:101]')
    a.e('s_waitcnt lgkmcnt(0)')
    a.e(f'v_writelane_b32 v255, s100, {idx}')


def stamp_clk(a, idx):
    if not OPT['stamps'] or OPT['dbgsel'] is not None:
        return
    a.e('s_memtime s[100:101]')
    a.e('s_waitcnt lgkmcnt(0)')
    a.e(f'v_writelane_b32 v255, s100, {idx}')


def stamp_flush(a):
    if not OPT['stamps']:
        return
    l = a.lab('nost')
    a.e(f's_cmp_lg_u32 s{S_W}, 0')
    a.e(f's_cbranch_scc1 {l}')
    if OPT['dbgsel'] is not None:
        a.e('v_not_b32 v253, v255')
        a.e('v_cmp_eq_u32 vcc, 0, v1')
        a.e('v_cndmask_b32 v255, v255, v253, vcc')
        a.e('v_lshlrev_b32 v254, 2, v1')
        a.e('s_mov_b64 exec, 0xffff')
        a.e(f'global_atomic_umax v254, v255, s[{P_DBG}:{P_DBG+1}]')
        a.e('s_mov_b64 exec, -1')
    else:
        a.e('s_lshl_b32 s66, s2, 8')
        a.e(f's_add_u32 s66, s66, {WS_DBG}')
        a.e('v_lshl_add_u32 v254, v1, 2, s66')
        a.e(f'buffer_store_dword v255, v254, {WSR}, 0 offen')
    a.e(f'{l}:')


def spin_tail(a, lp):
    a.e(f's_add_u32 s{S_SPIN}, s{S_SPIN}, 1')
    a.e(f's_cmp_lt_u32 s{S_SPIN}, {SPIN_MAX}')
    a.e(f's_cbranch_scc1 {lp}')


def mask_lanes(a, v, n, tmp, src='v1'):
    a.e(f'v_mov_b32 v{tmp}, {OOB}')
    a.e(f'v_cmp_gt_u32 vcc, {n}, {src}')
    a.e(f'v_cndmask_b32 v{v}, v{tmp}, v{v}, vcc')


def prologue(a, lend):
    a.e('s_cmp_ge_u32 s2, 256')
    a.e(f's_cbranch_scc1 {lend}')
    if OPT['stamps']:
        a.e('v_mov_b32 v255, 0')
        stamp(a, 0)
        stamp_clk(a, 60)
    a.e('s_load_dwordx16 s[36:51], s[0:1], 0')
    a.e('s_load_dwordx8 s[52:59], s[0:1], 64')
    a.e('s_load_dwordx4 s[60:63], s[0:1], 96')
    a.e('s_load_dwordx2 s[64:65], s[0:1], 112')
    a.e('v_and_b32 v1, 63, v0')
    a.e('v_lshrrev_b32 v2, 6, v0')
    a.e(f's_and_b32 s{S_XCD}, s2, 7')
    a.e(f'v_readfirstlane_b32 s{S_W}, v2')
    a.e(f's_lshr_b32 s{S_LOC}, s2, 3')
    a.e(f's_lshl_b32 s{S_B}, s{S_XCD}, 5')
    a.e(f's_add_u32 s{S_B}, s{S_B}, s{S_LOC}')
    a.e(f's_mul_i32 s{S_P}, s{S_XCD}, 28')
    a.e(f's_add_u32 s{S_P}, s{S_P}, s{S_LOC}')
    a.e(f's_and_b32 s{S_J}, s{S_XCD}, 1')
    a.e(f's_lshl_b32 s{S_J}, s{S_J}, 2')
    a.e(f's_and_b32 s3, s{S_LOC}, 3')
    a.e(f's_add_u32 s{S_J}, s{S_J}, s3')
    a.e(f's_lshr_b32 s3, s{S_XCD}, 1')
    a.e(f's_lshr_b32 s66, s{S_LOC}, 2')
    a.e(f's_mul_i32 s{S_I1}, s3, 7')
    a.e(f's_add_u32 s{S_I1}, s{S_I1}, s66')
    a.e(f's_lshl_b32 s{S_I2}, s3, 3')
    a.e(f's_add_u32 s{S_I2}, s{S_I2}, s66')
    a.e('s_waitcnt lgkmcnt(0)')
    srd(a, S_X, P_X, XBYTES)
    srd(a, S_WS, P_WS, WS_USED)
    stamp(a, 1)


def xrow_addr(a):
    a.e(f's_mul_i32 s66, s{S_W}, 224')
    a.e(f's_mul_i32 s67, s{S_B}, {8*896}')
    a.e('s_add_u32 s66, s66, s67')
    a.e('v_lshl_add_u32 v2, v1, 2, s66')
    mask_lanes(a, 2, 56, 3)
    a.e('v_add_u32 v3, 4480, v2')


def load_xrows(a):
    xrow_addr(a)
    for j in range(8):
        v, o = (2, j * 896) if j < 5 else (3, (j - 5) * 896)
        a.e(f'buffer_load_dword v{8+j}, v{v}, s[{S_X}:{S_X+3}], 0 offen offset:{o}')


def ln_stats(a, X, T, red, vt, mid=None):
    a.e('s_mov_b32 s66, 0x3f803f80')
    for j in range(8):
        a.e(f'v_dot2_f32_bf16 v{T+j}, v{X[j]}, s66, 0')
        a.e(f'v_dot2_f32_bf16 v{T+8+j}, v{X[j]}, v{X[j]}, 0')
    a.e(f'v_lshlrev_b32 v{vt}, 2, v1')
    a.e(f'v_and_b32 v{vt}, 0xf0, v{vt}')
    a.e(f's_lshl_b32 s66, s{S_W}, 2')
    a.e(f'v_add_u32 v{vt}, s66, v{vt}')
    reduce16(a, [T + i for i in range(16)])
    a.inj_pause()
    a.e('s_mov_b32 exec_lo, 0x11111111')
    a.e('s_mov_b32 exec_hi, 0x11111111')
    a.e(f'ds_write_b32 v{vt}, v{T} offset:{red}')
    a.e('s_mov_b64 exec, -1')
    a.inj_resume()
    a.e(f'v_and_b32 v{vt}, 7, v1')
    a.e(f'v_lshlrev_b32 v{vt}, 4, v{vt}')
    a.e('s_waitcnt lgkmcnt(0)')
    a.e('s_barrier')
    a.e(f'ds_read_b128 v[{T}:{T+3}], v{vt} offset:{red}')
    a.e(f'ds_read_b128 v[{T+4}:{T+7}], v{vt} offset:{red+128}')
    n_mid = mid() if mid else 0
    a.e(f's_waitcnt lgkmcnt({1 + n_mid})')
    a.e(f'v_pk_add_f32 v[{T}:{T+1}], v[{T}:{T+1}], v[{T+2}:{T+3}]')
    a.e(f's_waitcnt lgkmcnt({n_mid})')
    a.e(f'v_pk_add_f32 v[{T+4}:{T+5}], v[{T+4}:{T+5}], v[{T+6}:{T+7}]')
    a.e(f'v_add_f32 v{T}, v{T}, v{T+1}')
    a.e(f'v_add_f32 v{T+4}, v{T+4}, v{T+5}')
    a.e(f'v_mul_f32 v{T}, {fx(1.0/448)}, v{T}')
    a.e(f'v_mul_f32 v{T+4}, {fx(1.0/448)}, v{T+4}')
    a.e(f'v_fma_f32 v{T+4}, -v{T}, v{T}, v{T+4}')
    a.e(f'v_max_f32 v{T+4}, 0, v{T+4}')
    a.e(f'v_cvt_pk_bf16_f32 v{T+4}, v{T+4}, v{T+4}')
    a.e(f'v_lshlrev_b32 v{T+4}, 16, v{T+4}')
    a.e(f'v_add_f32 v{T+4}, {fx(1e-5)}, v{T+4}')
    a.e(f'v_cvt_pk_bf16_f32 v{T+4}, v{T+4}, v{T+4}')
    a.e(f'v_lshlrev_b32 v{T+4}, 16, v{T+4}')
    a.e(f'v_sqrt_f32 v{T+4}, v{T+4}')
    a.e(f'v_cvt_pk_bf16_f32 v{T}, v{T}, v{T+4}')


def poison_regs(a):
    for r in range(216, 220):
        a.e(f'v_mov_b32 v{r}, -1')


def clear_hh(a):
    a.e(f's_mul_i32 s66, s{S_B}, 7168')
    a.e(f's_add_u32 s66, s66, {WS_HH}')
    a.e('v_lshl_add_u32 v4, v0, 4, s66')
    a.e('v_add_u32 v5, 4096, v4')
    mask_lanes(a, 5, 192, 6, 'v0')
    a.e(f'buffer_store_dwordx4 v[216:219], v4, {WSR}, 0 offen sc1')
    a.e(f'buffer_store_dwordx4 v[216:219], v5, {WSR}, 0 offen sc1')


def clear_aout(a):
    a.e(f's_mul_i32 s66, s{S_P}, {AST}')
    a.e(f's_add_u32 s66, s66, {WS_AOUT}')
    a.e('v_lshl_add_u32 v4, v0, 4, s66')
    a.e('v_add_u32 v5, 4096, v4')
    a.e(f'buffer_store_dwordx4 v[216:219], v4, {WSR}, 0 offen sc1')
    a.e(f'buffer_store_dwordx4 v[216:219], v5, {WSR}, 0 offen sc1')


def g_store_addr(a, vd):
    a.e(f's_lshl_b32 s66, s{S_I1}, 3')
    a.e(f's_lshl_b32 s70, s{S_W}, 1')
    a.e('s_add_u32 s66, s66, s70')
    a.e('s_mul_i32 s66, s66, 7168')
    a.e(f's_mul_i32 s70, s{S_J}, 896')
    a.e('s_add_u32 s66, s66, s70')
    a.e(f's_add_u32 s66, s66, {WS_G}')
    a.e(f'v_lshl_add_u32 v{vd}, v1, 4, s66')
    mask_lanes(a, vd, 56, 6)


def clear_g(a):
    g_store_addr(a, 4)
    a.e('v_add_u32 v5, 7168, v4')
    a.e(f'buffer_store_dwordx4 v[216:219], v4, {WSR}, 0 offen sc1')
    a.e(f'buffer_store_dwordx4 v[216:219], v5, {WSR}, 0 offen sc1')


def publish_xn(a):
    bcast_stats(a, 16)
    for j in range(8):
        d = 64 + 2 * j
        t = 48 + j
        a.e(f'v_lshlrev_b32 v{d}, 16, v{8+j}')
        a.e(f'v_and_b32 v{d+1}, 0xffff0000, v{8+j}')
        a.e(f'v_pk_add_f32 v[{d}:{d+1}], v[{d}:{d+1}], s[{72+2*j}:{73+2*j}] op_sel:[0,0] op_sel_hi:[1,0] neg_lo:[0,1] neg_hi:[0,1]')
        a.e(f'v_cvt_pk_bf16_f32 v{t}, v{d}, v{d+1}')
        a.e(f'v_lshlrev_b32 v{d}, 16, v{t}')
        a.e(f'v_and_b32 v{d+1}, 0xffff0000, v{t}')
        a.e(f'v_pk_mul_f32 v[{d}:{d+1}], v[{d}:{d+1}], s[{72+2*j}:{73+2*j}] op_sel:[0,1] op_sel_hi:[1,1]')
        a.e(f'v_cvt_pk_bf16_f32 v{t}, v{d}, v{d+1}')
        a.e(f'v_lshlrev_b32 v{d}, 16, v{t}')
        a.e(f'v_and_b32 v{d+1}, 0xffff0000, v{t}')
    for i in range(4):
        a.e(f'v_cvt_pk_f16_f32 v{80+i}, v{64+4*i}, v{66+4*i}')
        a.e(f'v_cvt_pk_f16_f32 v{84+i}, v{65+4*i}, v{67+4*i}')
    if OPT['xnb']:
        a.e(f's_mul_i32 s66, s{S_W}, {56*16}')
        a.e(f's_mul_i32 s67, s{S_B}, 7168')
        a.e('s_add_u32 s66, s66, s67')
        a.e(f's_add_u32 s66, s66, {WS_XN}')
        a.e('v_lshl_add_u32 v4, v1, 4, s66')
        mask_lanes(a, 4, 56, 5)
        a.e('v_add_u32 v5, 3584, v4')
    else:
        a.e(f's_mul_i32 s66, s{S_W}, {56*XPS}')
        a.e(f's_lshl_b32 s67, s{S_B}, 4')
        a.e('s_add_u32 s66, s66, s67')
        a.e(f's_add_u32 s66, s66, {WS_XN}')
        a.e(f'v_mul_u32_u24 v4, {XPS}, v1')
        a.e('v_add_u32 v4, s66, v4')
        mask_lanes(a, 4, 56, 5)
        a.e(f'v_add_u32 v5, {XCS}, v4')
    a.e(f'buffer_store_dwordx4 v[80:83], v4, {WSR}, 0 offen sc1')
    a.e(f'buffer_store_dwordx4 v[84:87], v5, {WSR}, 0 offen sc1')


def publish_flag(a, vm=0):
    a.e(f's_waitcnt vmcnt({vm})')
    a.e('s_barrier')
    l = a.lab('noflag')
    a.e(f's_cmp_lg_u32 s{S_W}, 0')
    a.e(f's_cbranch_scc1 {l}')
    a.e(f's_lshl_b32 s66, s{S_B}, 6')
    a.e(f's_add_u32 s66, s66, {WS_FLAG}')
    a.e('v_mov_b32 v2, s66')
    a.e(f'v_mov_b32 v3, s{S_TAG}')
    a.e('s_mov_b64 exec, 1')
    a.e(f'buffer_store_dword v3, v2, {WSR}, 0 offen sc1')
    a.e('s_mov_b64 exec, -1')
    a.e(f'{l}:')


V_FA, V_FV = 233, 234


def flag_addr(a):
    a.e(f'v_lshlrev_b32 v{V_FA}, 6, v0')
    a.e(f'v_add_u32 v{V_FA}, {WS_FLAG}, v{V_FA}')


def flag_load(a):
    a.e(f'buffer_load_dword v{V_FV}, v{V_FA}, {WSR}, 0 offen sc1')


def flag_poll(a):
    lp, ld = a.lab('fpoll'), a.lab('fdone')
    a.e(f's_mov_b32 s{S_SPIN}, 0')
    a.e(f'{lp}:')
    flag_load(a)
    a.e('s_waitcnt vmcnt(0)')
    a.e(f'v_cmp_ne_u32 vcc, s{S_TAG}, v{V_FV}')
    a.e(f's_cbranch_vccz {ld}')
    spin_tail(a, lp)
    a.e(f'{ld}:')


def load_u(a):
    if OPT['xnb']:
        a.e(f's_lshl_b32 s66, s{S_P}, 4')
        a.e(f's_add_u32 s66, s66, {WS_XN}')
        a.e('v_mul_u32_u24 v2, 7168, v0')
        a.e('v_add_u32 v2, s66, v2')
        a.e('v_add_u32 v3, 3584, v2')
    else:
        a.e(f's_mul_i32 s66, s{S_P}, {XPS}')
        a.e(f's_add_u32 s66, s66, {WS_XN}')
        a.e('v_lshl_add_u32 v2, v0, 4, s66')
        a.e(f'v_add_u32 v3, {XCS}, v2')
    a.e(f'buffer_load_dwordx4 v[176:179], v2, {WSR}, 0 offen sc1')
    a.e(f'buffer_load_dwordx4 v[180:183], v3, {WSR}, 0 offen sc1')


def epoch_update(a):
    le = a.lab('noep')
    a.e('s_cmp_lg_u32 s2, 0')
    a.e(f's_cbranch_scc1 {le}')
    a.e(f'v_mov_b32 v2, {WS_EPOCH}')
    a.e(f'v_mov_b32 v3, s{S_TAG}')
    a.e('s_mov_b64 exec, 1')
    a.e(f'buffer_store_dword v3, v2, {WSR}, 0 offen sc1')
    a.e('s_mov_b64 exec, -1')
    a.e(f'{le}:')


def code_prefetch(a, lstart, lend_):
    lp = a.lab('pcp')
    a.e('s_getpc_b64 s[74:75]')
    a.e(f'{lp}:')
    a.e(f's_sub_u32 s74, s74, {lp}-{lstart}')
    a.e('s_subb_u32 s75, s75, 0')
    a.e('v_lshlrev_b32 v4, 6, v0')
    a.e(f's_mov_b32 s76, {lend_}-{lstart}-4')
    a.e('v_add_u32 v5, 16384, v4')
    a.e('v_add_u32 v6, 32768, v4')
    a.e('v_min_u32 v4, s76, v4')
    a.e('v_min_u32 v5, s76, v5')
    a.e('v_min_u32 v6, s76, v6')
    a.e('global_load_dword v220, v4, s[74:75]')
    a.e('global_load_dword v220, v5, s[74:75]')
    a.e('global_load_dword v220, v6, s[74:75]')


def code_prefetch1(a, lstart, lend_):
    lp = a.lab('pcp')
    a.e('s_getpc_b64 s[74:75]')
    a.e(f'{lp}:')
    a.e('v_lshlrev_b32 v4, 6, v0')
    a.e(f's_mov_b32 s76, {lend_}-{lp}-4')
    a.e('v_min_u32 v4, s76, v4')
    a.e('global_load_dword v220, v4, s[74:75]')


def tlb_touch(a):
    g = OPT['tlbg']
    n = 0
    srd(a, S_T2, P_OUT, XBYTES)
    srd(a, S_T3, P_B2, L * 2)
    if g == 21:
        a.e('v_lshlrev_b32 v4, 21, v1')
        a.e('s_mov_b32 s70, 0x1f8000')
        for s_ in (S_W1, S_W2, S_WS, S_T2, S_T3):
            a.e(f'buffer_load_dword v220, v4, s[{s_}:{s_+3}], {"s70" if s_ == S_WS else 0} offen')
            n += 1
    else:
        a.e(f'v_lshlrev_b32 v4, {g}, v0')
        for s_, nbytes in ((S_W1, W1BYTES), (S_W2, W2BYTES), (S_WS, 0xC00000), (S_T2, XBYTES), (S_T3, 4096)):
            for k in range(-(-nbytes // (256 << g))):
                a.e(f's_mov_b32 s70, {k * (256 << g)}')
                a.e(f'buffer_load_dword v220, v4, s[{s_}:{s_+3}], s70 offen')
                n += 1
    return n


def kgen_loads(a, part=None):
    R = (S_T0, S_T1, S_T2, S_T3) if part is None else (72, 76, 80, 84)
    if part != 'issue':
        for r, p in zip(R, (P_LAR, P_AI, P_CR, P_CI)):
            srd(a, r, p, PBYTES)
        a.e(f's_lshl_b32 s66, s{S_P}, 10')
        a.e(f's_lshl_b32 s67, s{S_W}, 7')
        a.e('s_add_u32 s66, s66, s67')
        a.e('v_lshl_add_u32 v235, v1, 1, s66')
        a.e(f's_lshl_b32 s66, s{S_P}, 2')
        a.e(f's_load_dword s68, s[{P_LDT}:{P_LDT+1}], s66')
        a.e(f's_load_dword s69, s[{P_DSK}:{P_DSK+1}], s66')
    if part != 'setup':
        for c in range(2):
            for k, s in enumerate(R):
                a.e(f'buffer_load_ushort v{40+4*c+k}, v235, s[{s}:{s+3}], 0 offen offset:{512*c}')


def load_gather_table(a, tablabel):
    lp = a.lab('pc')
    a.e('s_getpc_b64 s[70:71]')
    a.e(f'{lp}:')
    a.e(f's_add_u32 s70, s70, {tablabel}-{lp}')
    a.e('s_addc_u32 s71, s71, 0')
    a.e('v_lshlrev_b32 v2, 5, v0')
    a.e('global_load_dwordx4 v[160:163], v2, s[70:71]')
    a.e('global_load_dwordx4 v[164:167], v2, s[70:71] offset:16')


DK0, DK1 = 16, 28


def kgen_channel(a, c, DACC, mid=None, mid_m0=True):
    LAR, AI, CR, CI = 40 + 4 * c, 41 + 4 * c, 42 + 4 * c, 43 + 4 * c
    SIG, DT = 52 + c, 54 + c
    AL, BE = 56, 57
    Z1, Z2, Z4, Z8, Z128, Z256, Z512, Z1024 = 58, 60, 62, 64, 66, 68, 70, 72
    X0, CA, CB, CC, T0, T1 = 74, 76, 78, 80, 82, 84
    CV = [86, 87, 88, 89]
    VW, VR = 90, 91
    t, t2 = 92, 93
    for r in (LAR, AI, CR, CI):
        a.e(f'v_lshlrev_b32 v{r}, 16, v{r}')
    a.e('s_lshl_b32 s66, s68, 16' if c == 0 else 's_and_b32 s66, s68, 0xffff0000')
    a.e(f'v_mov_b32 v{t2}, s66')
    exp_bf16(a, DT, t2, t)
    a.e(f'v_add_f32 v{SIG}, abs(v{CR}), abs(v{CI})')
    exp_bf16(a, AL, LAR, t)
    a.e(f'v_add_f32_dpp v{SIG}, v{SIG}, v{SIG} quad_perm:[1,0,3,2] row_mask:0xf bank_mask:0xf')
    a.e(f'v_mul_f32 v{AL}, v{AL}, v{DT}')
    a.e(f'v_mul_f32 v{BE}, v{AI}, v{DT}')
    a.e(f'v_add_f32_dpp v{SIG}, v{SIG}, v{SIG} quad_perm:[2,3,0,1] row_mask:0xf bank_mask:0xf')
    a.e(f'v_mul_f32 v{AL}, {fx(-1.4426950408889634)}, v{AL}')
    a.e(f'v_mul_f32 v{BE}, {fx(0.15915494309189535)}, v{BE}')
    a.e(f'v_add_f32_dpp v{SIG}, v{SIG}, v{SIG} row_half_mirror row_mask:0xf bank_mask:0xf')
    a.e(f'v_exp_f32 v{T0}, v{AL}')
    a.e(f'v_fract_f32 v{t}, v{BE}')
    a.e(f'v_add_f32_dpp v{SIG}, v{SIG}, v{SIG} row_ror:8 row_mask:0xf bank_mask:0xf')
    a.e(f'v_cos_f32 v{Z1}, v{t}')
    a.e(f'v_sin_f32 v{Z1+1}, v{t}')
    a.e(f'v_mov_b32 v{t2}, v{SIG}')
    a.e(f'v_mul_f32 v{T1}, 0x43000000, v{AL}')
    a.e(f'v_mul_f32 v{t}, 0x43000000, v{BE}')
    a.e(f'v_permlane16_swap_b32 v{SIG}, v{t2}')
    a.e(f'v_pk_mul_f32 v[{Z1}:{Z1+1}], v[{Z1}:{Z1+1}], v[{T0}:{T0+1}] op_sel:[0,0] op_sel_hi:[1,0]')
    a.e(f'v_add_f32 v{SIG}, v{SIG}, v{t2}')
    a.e(f'v_exp_f32 v{T1}, v{T1}')
    a.e(f'v_fract_f32 v{t}, v{t}')
    a.e(f'v_mov_b32 v{t2}, v{SIG}')
    a.e(f'v_cos_f32 v{Z128}, v{t}')
    a.e(f'v_sin_f32 v{Z128+1}, v{t}')
    a.e(f'v_permlane32_swap_b32 v{SIG}, v{t2}')
    cmul(a, Z2, Z1, Z1, Z2)
    a.e(f'v_add_f32 v{SIG}, v{SIG}, v{t2}')
    a.e(f'v_pk_mul_f32 v[{Z128}:{Z128+1}], v[{Z128}:{Z128+1}], v[{T1}:{T1+1}] op_sel:[0,0] op_sel_hi:[1,0]')
    a.e(f'v_add_f32 v{SIG}, {fx(1e-30)}, v{SIG}')
    cmul(a, Z4, Z2, Z2, Z4)
    a.e(f'v_rcp_f32 v{t}, v{SIG}')
    cmul(a, Z256, Z128, Z128, Z256)
    cmul(a, Z8, Z4, Z4, Z8)
    a.e(f'v_mul_f32 v{X0}, v{CR}, v{t}')
    a.e(f'v_mul_f32 v{X0+1}, v{CI}, v{t}')
    cmul(a, Z512, Z256, Z256, Z512)
    a.e(f's_mul_i32 s66, s{S_W}, {SCRW}')
    a.e(f's_add_u32 s66, s66, {L_SCR}')
    a.e('s_mov_b32 m0, s66')
    cmul(a, Z1024, Z512, Z512, Z1024)
    a.e(f'v_and_b32 v{t}, 15, v1')
    a.e(f'v_mul_u32_u24 v{t}, {SROW}, v{t}')
    a.e(f'v_lshrrev_b32 v{t2}, 4, v1')
    a.e(f'v_lshl_add_u32 v{t}, v{t2}, 4, v{t}')
    a.e(f'v_add_u32 v{VR}, s66, v{t}')
    cvi = [0]
    pend = []

    def flush(keep):
        while len(pend) > keep:
            cv, off = pend.pop(0)
            a.e(f'ds_write_addtid_b32 v{cv} offset:{off}')

    G = OPT['kgrp']
    if G > 1:
        CV = list(range(96, 112))

    def put(off, r, neg):
        cv = CV[cvi[0] % len(CV)]
        cvi[0] += 1
        a.e(f'v_cvt_pk_f16_f32 v{cv}, v{r}, {"-" if neg else ""}v{r+1}')
        if G > 1:
            pend.append((cv, off))
            if len(pend) >= G + 1:
                flush(1)
        else:
            flush(1)
            pend.append((cv, off))

    def putX(row, r):
        put(row * SROW, r, True)

    def putY(b, r):
        put((YROW + b) * SROW, r, False)

    a.e(f'v_mov_b32 v{VW}, 0x00003c00')
    pend.append((VW, YROW * SROW))
    putY(1, Z8)
    ychain = {'cur': Z8, 'b': 1}
    YA, YB = CC, 94

    def ystep():
        if ychain['b'] >= 15:
            return
        d = YA if ychain['cur'] != YA else YB
        cmul(a, d, ychain['cur'], Z8, d)
        ychain['b'] += 1
        ychain['cur'] = d
        putY(ychain['b'], d)

    putX(0, X0)
    cmul(a, T0, X0, Z128, T0)
    putX(8, T0)
    cur = X0
    for j in range(1, 8):
        d = CA if cur != CA else CB
        cmul(a, d, cur, Z1, d)
        ystep()
        putX(j, d)
        cmul(a, T0, d, Z128, T0)
        putX(8 + j, T0)
        cur = d
    cmul(a, CA, X0, Z256, CA)
    ystep()
    putX(16, CA)
    cmul(a, T0, CA, Z128, T0)
    putX(20, T0)
    cur = CA
    for j in range(1, 4):
        d = CA if cur != CA else CB
        cmul(a, d, cur, Z2, d)
        ystep()
        putX(16 + j, d)
        cmul(a, T0, d, Z128, T0)
        putX(20 + j, T0)
        cur = d
    if mid is not None:
        if mid_m0:
            flush(0)
        mid()
        if mid_m0:
            a.e(f's_mul_i32 s66, s{S_W}, {SCRW}')
            a.e(f's_add_u32 s66, s66, {L_SCR}')
            a.e('s_mov_b32 m0, s66')
    cmul(a, CA, X0, Z512, CA)
    ystep()
    putX(24, CA)
    cmul(a, CB, CA, Z4, CB)
    ystep()
    putX(25, CB)
    pa, pb = CA, CB
    na, nb = T0, T1
    for q in range(1, 4):
        cmul(a, na, pa, Z128, na)
        cmul(a, nb, pb, Z128, nb)
        ystep()
        putX(24 + 2 * q, na)
        putX(25 + 2 * q, nb)
        pa, pb, na, nb = na, nb, pa, pb
    cmul(a, CA, X0, Z1024, CA)
    putX(32, CA)
    cur = CA
    for q in range(1, 9):
        d = CA if cur != CA else CB
        cmul(a, d, cur, Z128, d)
        putX(32 + q, d)
        cur = d
    while ychain['b'] < 15:
        ystep()
    flush(0)
    FA = 96
    for k in range(4):
        a.e(f'ds_read_b128 v[{144+4*k}:{147+4*k}], v{VR} offset:{YROW*SROW+64*k}')
        for T in range(3):
            r = FA + 16 * T + 4 * k
            a.e(f'ds_read_b128 v[{r}:{r+3}], v{VR} offset:{16*T*SROW+64*k}')
    for k in range(4):
        a.e(f's_waitcnt lgkmcnt({4*(3-k)})')
        for T in range(3):
            r = FA + 16 * T + 4 * k
            cc = '0' if k == 0 else f'v[{DACC+4*T}:{DACC+4*T+3}]'
            a.e(f'v_mfma_f32_16x16x32_f16 v[{DACC+4*T}:{DACC+4*T+3}], v[{r}:{r+3}], v[{144+4*k}:{147+4*k}], {cc}')


def ktab_part1(a):
    a.e(f's_mul_i32 s66, s{S_W}, {SCRW}')
    a.e(f's_add_u32 s66, s66, {L_SCR}')
    a.e('v_lshl_add_u32 v90, v1, 4, s66')
    a.e(f's_lshl_b32 s67, s{S_W}, 2')
    a.e(f's_add_u32 s67, s67, {L_SIG}')
    a.e('v_mov_b32 v91, s67')
    a.e('s_mov_b64 exec, 1')
    a.e('ds_write_b32 v91, v52')
    a.e('ds_write_b32 v91, v53 offset:16')
    a.e('s_mov_b64 exec, -1')
    for c, DK in ((0, DK0), (1, DK1)):
        for T in range(3):
            for h in range(2):
                i = DK + 4 * T + 2 * h
                a.e(f'v_pk_mul_f32 v[{i}:{i+1}], v[{i}:{i+1}], v[52:53] op_sel:[0,{c}] op_sel_hi:[1,{c}]')
            a.e(f'ds_write_b128 v90, v[{DK+4*T}:{DK+4*T+3}] offset:{c*3072+T*1024}')
    a.e('v_mov_b32 v96, 0')
    a.e('v_mov_b32 v97, 0')
    a.e('v_mov_b32 v98, 0')
    a.e('v_mov_b32 v99, 0')
    a.e(f'v_mov_b32 v92, {L_KT + 1536}')
    a.e('ds_write_b32 v92, v96')
    a.e(f'ds_write_b32 v92, v96 offset:{KTCH}')
    a.e('v_lshlrev_b32 v92, 3, v1')
    a.e(f'ds_write_b64 v92, v[96:97] offset:{L_U}')
    a.e(f'ds_write_b64 v92, v[96:97] offset:{L_U + UCH}')
    a.e('s_waitcnt lgkmcnt(0)')
    a.e('s_barrier')


def ktab_part2(a):
    a.e(f'v_mov_b32 v91, {L_SIG}')
    a.e('ds_read_b128 v[44:47], v91')
    a.e('ds_read_b128 v[48:51], v91 offset:16')
    a.e(f's_and_b32 s67, s{S_W}, 1')
    a.e(f's_lshr_b32 s70, s{S_W}, 1')
    a.e('s_mul_i32 s71, s67, 3072')
    a.e('s_lshl_b32 s72, s70, 10')
    a.e('s_add_u32 s72, s72, s71')
    a.e(f's_add_u32 s72, s72, {L_SCR}')
    a.e(f's_add_u32 s71, s71, {L_SCR + 2048}')
    a.e('v_lshl_add_u32 v90, v1, 4, s72')
    a.e('v_lshl_add_u32 v91, v1, 4, s71')
    for wv in range(4):
        a.e(f'ds_read_b128 v[{96+4*wv}:{99+4*wv}], v90 offset:{wv*SCRW}')
    for wv in range(4):
        a.e(f'ds_read_b128 v[{112+4*wv}:{115+4*wv}], v91 offset:{wv*SCRW}')
    a.e('v_mov_b32 v128, 0')
    a.e('v_mov_b32 v129, 0')
    a.e('v_mov_b32 v130, 0')
    a.e('v_mov_b32 v131, 0')
    if OPT['c4']:
        a.e('v_and_b32 v132, 7, v1')
        a.e(f'v_mul_u32_u24 v132, {KCOPY}, v132')
        a.e('v_bfe_u32 v133, v1, 3, 1')
        a.e('v_lshl_add_u32 v132, v133, 4, v132')
    else:
        a.e('v_and_b32 v132, 15, v1')
        a.e(f'v_mul_u32_u24 v132, {KCOPY}, v132')
    a.e(f'v_add_u32 v132, {L_KC}, v132')
    a.e('ds_write_b128 v132, v[128:131] offset:4096')
    a.e('v_lshrrev_b32 v92, 4, v1')
    a.e('v_lshlrev_b32 v92, 7, v92')
    a.e('v_and_b32 v93, 15, v1')
    a.e('v_lshl_add_u32 v92, v93, 1, v92')
    a.e(f's_mul_i32 s71, s67, {KTCH}')
    a.e(f's_add_u32 s71, s71, {L_KT}')
    a.e('v_add_u32 v93, s71, v92')
    a.e('s_lshl_b32 s72, s70, 9')
    a.e('v_add_u32 v92, s72, v93')
    a.e('s_waitcnt lgkmcnt(9)')
    a.e('v_pk_add_f32 v[44:45], v[44:45], v[46:47]')
    a.e('v_pk_add_f32 v[48:49], v[48:49], v[50:51]')
    a.e('v_add_f32 v44, v44, v45')
    a.e('v_add_f32 v45, v48, v49')
    a.e('s_cmp_eq_u32 s67, 0')
    a.e('s_cselect_b64 vcc, -1, 0')
    a.e('v_pk_mul_f32 v[54:55], v[54:55], v[44:45]')
    a.e('v_cndmask_b32 v46, v45, v44, vcc')
    a.e('v_pk_add_f32 v[54:55], v[54:55], v[54:55]')
    a.e('v_rcp_f32 v46, v46')
    for jb, (base, va, off) in enumerate(((96, 92, 0), (112, 93, 1024))):
        a.e(f's_waitcnt lgkmcnt({5 if jb == 0 else 5})')
        for h in range(2):
            a.e(f'v_pk_add_f32 v[{base+2*h}:{base+2*h+1}], v[{base+2*h}:{base+2*h+1}], v[{base+4+2*h}:{base+5+2*h}]')
            a.e(f'v_pk_add_f32 v[{base+8+2*h}:{base+9+2*h}], v[{base+8+2*h}:{base+9+2*h}], v[{base+12+2*h}:{base+13+2*h}]')
        for h in range(2):
            a.e(f'v_pk_add_f32 v[{base+2*h}:{base+2*h+1}], v[{base+2*h}:{base+2*h+1}], v[{base+8+2*h}:{base+9+2*h}]')
        for h in range(2):
            a.e(f'v_pk_mul_f32 v[{base+2*h}:{base+2*h+1}], v[{base+2*h}:{base+2*h+1}], v[46:47] op_sel:[0,0] op_sel_hi:[1,0]')
        a.e(f'v_cvt_pk_f16_f32 v{base+4}, v{base}, v{base+1}')
        a.e(f'v_cvt_pk_f16_f32 v{base+5}, v{base+2}, v{base+3}')
        a.e(f'ds_write_b16 v{va}, v{base+4} offset:{off}')
        a.e(f'ds_write_b16_d16_hi v{va}, v{base+4} offset:{off+32}')
        a.e(f'ds_write_b16 v{va}, v{base+5} offset:{off+64}')
        a.e(f'ds_write_b16_d16_hi v{va}, v{base+5} offset:{off+96}')
    for e in range(11 if OPT['c4'] else 15):
        src = 160 + e // 2
        if e % 2 == 0:
            a.e(f'v_and_b32 v{136+e}, 0xffff, v{src}')
        else:
            a.e(f'v_lshrrev_b32 v{136+e}, 16, v{src}')
    a.e('s_waitcnt lgkmcnt(0)')
    a.e('s_barrier')


def kch():
    return (4 if OPT['c4'] else 8) * KCOPY


def kcopies(a):
    AD = 136
    a.e('v_lshlrev_b32 v111, 4, v0')
    a.e(f'v_add_u32 v111, {L_KC}, v111')
    RR = [96, 112]
    if OPT['c4']:
        for c in range(2):
            for e in range(11):
                a.e(f'ds_read_u16 v{RR[c]+e}, v{AD+e} offset:{L_KT + c*KTCH}')
        for c in range(2):
            R = RR[c]
            Da, Db, Oa, Ob = (56, 60, 64, 68) if c == 0 else (16, 20, 24, 28)
            a.e(f's_waitcnt lgkmcnt({11 if c == 0 else 4})')
            for i in range(4):
                a.e(f'v_lshl_or_b32 v{Da+i}, v{R+2*i+1}, 16, v{R+2*i}')
                a.e(f'v_lshl_or_b32 v{Oa+i}, v{R+2*i+2}, 16, v{R+2*i+1}')
                a.e(f'v_lshl_or_b32 v{Db+i}, v{R+2*i+3}, 16, v{R+2*i+2}')
                a.e(f'v_lshl_or_b32 v{Ob+i}, v{R+2*i+4}, 16, v{R+2*i+3}')
            for s_, r in ((0, Da), (1, Oa), (2, Db), (3, Ob)):
                a.e(f'ds_write_b128 v111, v[{r}:{r+3}] offset:{c*kch() + s_*KCOPY}')
        return
    for c in range(2):
        for e in range(15):
            a.e(f'ds_read_u16 v{RR[c]+e}, v{AD+e} offset:{L_KT + c*KTCH}')
    for c in range(2):
        R = RR[c]
        Da, Db, Oa, Ob = 56 + 0, 64, 72, 80
        if c == 1:
            Da, Db, Oa, Ob = 16, 24, 32, 40
        a.e(f's_waitcnt lgkmcnt({15 if c == 0 else 8})')
        for i in range(6):
            a.e(f'v_lshl_or_b32 v{Da+i}, v{R+2*i+1}, 16, v{R+2*i}')
            a.e(f'v_lshl_or_b32 v{Oa+i}, v{R+2*i+2}, 16, v{R+2*i+1}')
        if c == 1:
            a.e(f'v_add_u32 v110, {KCH}, v111')
        va = 111 if c == 0 else 110
        for s, r in ((0, Da), (1, Oa), (4, Da + 2), (5, Oa + 2)):
            a.e(f'ds_write_b128 v{va}, v[{r}:{r+3}] offset:{s*KCOPY}')
        for i in range(6):
            a.e(f'v_lshl_or_b32 v{Db+i}, v{R+2*i+3}, 16, v{R+2*i+2}')
            a.e(f'v_lshl_or_b32 v{Ob+i}, v{R+2*i+4}, 16, v{R+2*i+3}')
        for s, r in ((2, Db), (3, Ob), (6, Db + 2), (7, Ob + 2)):
            a.e(f'ds_write_b128 v{va}, v[{r}:{r+3}] offset:{s*KCOPY}')


def store_u(a, vm):
    a.e('v_lshlrev_b32 v2, 4, v0')
    a.e(f's_waitcnt vmcnt({vm})')
    a.e(f'ds_write_b128 v2, v[176:179] offset:{L_U + 512}')
    a.e(f'ds_write_b128 v2, v[180:183] offset:{L_U + UCH + 512}')
    a.e('s_waitcnt lgkmcnt(0)')
    a.e('s_barrier')


def phase_conv(a, hooks, pre_vm):
    hooks = list(hooks)
    ACC = 16
    FA = [[64 + 64 * s + 4 * i for i in range(8)] for s in range(2)]
    FB = [[96 + 64 * s + 4 * i for i in range(8)] for s in range(2)]
    VA, VB = 48, 49

    def loads(qq, s):
        out = []
        for i in range(8):
            out.append(f'ds_read_b128 v[{FB[s][i]}:{FB[s][i]+3}], v{VB} offset:{512*i + 64*(3-qq)}')
            if OPT['c4']:
                o = 512 * (7 - i) + 64 * (3 - qq)
                out.append(f'ds_read_b64 v[{FA[s][i]}:{FA[s][i]+1}], v{VA} offset:{o}')
                out.append(f'ds_read_b64 v[{FA[s][i]+2}:{FA[s][i]+3}], v{VA} offset:{o + 8}')
            else:
                out.append(f'ds_read_b128 v[{FA[s][i]}:{FA[s][i]+3}], v{VA} offset:{512*(7-i) + 64*(3-qq)}')
        return out

    for x in loads(0, 0):
        a.e(x)
    for qq in range(4):
        s = qq & 1
        nxt = loads(qq + 1, 1 - s) if qq < 3 else []
        n = 0
        for w in range(8):
            for c in range(w, 8):
                if n == 0:
                    a.e('s_waitcnt lgkmcnt(0)')
                cc = '0' if (qq == 0 and w == 0) else f'v[{ACC+4*c}:{ACC+4*c+3}]'
                a.e(f'v_mfma_f32_16x16x32_f16 v[{ACC+4*c}:{ACC+4*c+3}], v[{FA[s][w]}:{FA[s][w]+3}], v[{FB[s][c-w]}:{FB[s][c-w]+3}], {cc}')
                if nxt and (n % 2 == 1 or (OPT['c4'] and n % 4 == 0)):
                    a.e(nxt.pop(0))
                if hooks and n % 4 == 2:
                    hooks.pop(0)()
                n += 1
        assert not nxt
    assert not hooks
    stamp(a, 11)
    CP, TS = L_CP, 1280
    a.e('v_and_b32 v2, 15, v1')
    a.e('v_lshlrev_b32 v2, 4, v2')
    a.e('v_lshrrev_b32 v3, 4, v1')
    a.e('v_mul_u32_u24 v3, 320, v3')
    a.e('v_add_u32 v2, v2, v3')
    a.e(f's_mul_i32 s70, s{S_W}, {8*TS}')
    a.e(f's_add_u32 s70, s70, {CP}')
    a.e('v_add_u32 v2, s70, v2')
    a.e('s_barrier')
    for c in range(8):
        a.e(f'ds_write_b128 v2, v[{ACC+4*c}:{ACC+4*c+3}] offset:{c*TS}')
    a.e('v_lshrrev_b32 v2, 2, v1')
    a.e('v_lshlrev_b32 v2, 4, v2')
    a.e('v_and_b32 v3, 3, v1')
    a.e('v_mul_u32_u24 v3, 320, v3')
    a.e('v_add_u32 v2, v2, v3')
    a.e(f's_lshl_b32 s70, s{S_W}, 1')
    a.e(f's_mul_i32 s71, s70, {TS}')
    a.e(f's_add_u32 s71, s71, {CP}')
    a.e('v_add_u32 v2, s71, v2')
    a.e('s_lshl_b32 s71, s70, 9')
    a.e(f's_add_u32 s71, s71, {L_U + 512}')
    a.e('v_lshl_add_u32 v3, v1, 3, s71')
    a.e(f's_mul_i32 s71, s{S_P}, {AST}')
    a.e('s_lshl_b32 s72, s70, 10')
    a.e('s_add_u32 s71, s71, s72')
    a.e(f's_add_u32 s71, s71, {WS_AOUT}')
    a.e('v_lshl_add_u32 v4, v1, 4, s71')
    a.e('s_lshl_b32 s72, s69, 16')
    a.e('s_and_b32 s73, s69, 0xffff0000')
    a.e('v_mov_b32 v56, s72')
    a.e('v_mov_b32 v57, s73')
    a.e(f's_waitcnt lgkmcnt(0) vmcnt({pre_vm})')
    a.e('s_barrier')
    for q in range(2):
        P = 64 + 32 * q
        for ch in range(2):
            for hf in range(2):
                r = P + 8 * ch + 4 * hf
                a.e(f'ds_read_b128 v[{r}:{r+3}], v2 offset:{(2*ch+hf)*8*TS + q*TS}')
        for ch in range(2):
            a.e(f'ds_read_b64 v[{P+16+2*ch}:{P+17+2*ch}], v3 offset:{ch*UCH + q*512}')
    for q in range(2):
        P = 64 + 32 * q
        a.e(f's_waitcnt lgkmcnt({6 if q == 0 else 0})')
        for ch in range(2):
            y = P + 8 * ch
            T = 128 + 16 * ch
            u = P + 16 + 2 * ch
            for h in range(2):
                a.e(f'v_pk_add_f32 v[{y+2*h}:{y+2*h+1}], v[{y+2*h}:{y+2*h+1}], v[{y+4+2*h}:{y+5+2*h}]')
            for i in range(4):
                a.e(f'v_fma_mix_f32 v{T+i}, v{u+i//2}, v{56+ch}, 0 op_sel:[{i%2},0,0] op_sel_hi:[1,0,0]')
            for h in range(2):
                a.e(f'v_pk_mul_f32 v[{y+2*h}:{y+2*h+1}], v[{y+2*h}:{y+2*h+1}], v[54:55] op_sel:[0,{ch}] op_sel_hi:[1,{ch}]')
            for h in range(2):
                a.e(f'v_cvt_pk_bf16_f32 v{T+6+h}, v{T+2*h}, v{T+2*h+1}')
                a.e(f'v_cvt_pk_bf16_f32 v{T+4+h}, v{y+2*h}, v{y+2*h+1}')
            for h in range(2):
                a.e(f'v_lshlrev_b32 v{T+2*h}, 16, v{T+6+h}')
                a.e(f'v_and_b32 v{T+2*h+1}, 0xffff0000, v{T+6+h}')
                a.e(f'v_lshlrev_b32 v{y+2*h}, 16, v{T+4+h}')
                a.e(f'v_and_b32 v{y+2*h+1}, 0xffff0000, v{T+4+h}')
            for h in range(2):
                a.e(f'v_pk_add_f32 v[{y+2*h}:{y+2*h+1}], v[{y+2*h}:{y+2*h+1}], v[{T+2*h}:{T+2*h+1}]')
        O = 160 + 4 * q
        for i in range(4):
            a.e(f'v_cvt_pk_bf16_f32 v{O+i}, v{P+i}, v{P+8+i}')
        a.e(f'buffer_store_dwordx4 v[{O}:{O+3}], v4, {WSR}, 0 offen offset:{q*1024} sc1')


def conv_addr(a):
    a.e(f's_lshr_b32 s66, s{S_W}, 1')
    a.e(f's_and_b32 s67, s{S_W}, 1')
    a.e('v_and_b32 v2, 7, v1')
    a.e('v_sub_u32 v2, 7, v2')
    if OPT['c4']:
        a.e('v_lshrrev_b32 v5, 2, v2')
        a.e('v_and_b32 v2, 3, v2')
        a.e(f'v_mul_u32_u24 v2, {KCOPY}, v2')
        a.e('v_lshl_add_u32 v2, v5, 3, v2')
    else:
        a.e(f'v_mul_u32_u24 v2, {KCOPY}, v2')
    a.e('v_lshrrev_b32 v3, 4, v1')
    a.e('v_bfe_u32 v4, v1, 3, 1')
    a.e('v_sub_u32 v4, v3, v4')
    a.e('v_lshl_add_u32 v2, v4, 4, v2')
    a.e(f's_mul_i32 s70, s66, {kch()}')
    a.e('s_lshl_b32 s71, s67, 8')
    a.e('s_sub_u32 s70, s70, s71')
    a.e(f's_add_u32 s70, s70, {L_KC + 16*253 - 512*7 - 64*3}')
    a.e('v_add_u32 v48, s70, v2')
    a.e('v_and_b32 v2, 15, v1')
    a.e('v_lshlrev_b32 v2, 5, v2')
    a.e('v_lshl_add_u32 v2, v3, 4, v2')
    a.e(f's_mul_i32 s70, s66, {UCH}')
    a.e('s_sub_u32 s70, s70, s71')
    a.e(f's_add_u32 s70, s70, {L_U + 480 - 64*3}')
    a.e('v_add_u32 v49, s70, v2')


def phase_p4(a, dmas=()):
    X = list(range(8, 16))
    A = 32
    xrow_addr(a)
    a.e(f's_mul_i32 s66, s{S_W}, {56*AST}')
    a.e(f's_lshl_b32 s67, s{S_B}, 5')
    a.e('s_add_u32 s66, s66, s67')
    a.e(f's_add_u32 s66, s66, {WS_AOUT}')
    a.e(f'v_mul_u32_u24 v4, {AST}, v1')
    a.e('v_add_u32 v4, s66, v4')
    a.e(f'v_mov_b32 v5, {OOB}')
    a.e('v_cndmask_b32 v4, v5, v4, vcc')
    if OPT['hpriv']:
        a.e(f's_mul_i32 s66, s{S_W}, 1792')
        a.e(f's_add_u32 s66, s66, {L_HT}')
        a.e('v_lshl_add_u32 v6, v1, 2, s66')
        a.e('v_lshl_add_u32 v7, v1, 4, s66')
        a.e(f's_mul_i32 s66, s{S_B}, 7168')
        a.e(f's_mul_i32 s67, s{S_W}, 224')
        a.e('s_add_u32 s66, s66, s67')
        a.e(f's_add_u32 s66, s66, {WS_H}')
        for k, vd in ((0, 56), (64, 57)):
            a.e(f'v_add_u32 v58, {k}, v1')
            a.e('v_mul_u32_u24 v59, 4682, v58')
            a.e('v_lshrrev_b32 v59, 16, v59')
            a.e(f'v_mul_u32_u24 v{vd}, {896 - 224}, v59')
            a.e(f'v_lshl_add_u32 v{vd}, v58, 4, v{vd}')
            a.e(f'v_add_u32 v{vd}, s66, v{vd}')
        mask_lanes(a, 57, 48, 58)
    else:
        a.e(f's_mul_i32 s66, s{S_W}, 224')
        a.e(f's_add_u32 s66, s66, {L_HT}')
        a.e('v_lshl_add_u32 v6, v1, 2, s66')
    for j in range(8):
        a.e(f'v_lshlrev_b32 v{64+2*j}, 16, v{X[j]}')
        a.e(f'v_and_b32 v{65+2*j}, 0xffff0000, v{X[j]}')
    lp, ld = a.lab('h2poll'), a.lab('h2done')
    a.e(f's_mov_b32 s{S_SPIN}, 0')
    a.e(f'{lp}:')
    a.e(f'buffer_load_dwordx4 v[{A}:{A+3}], v4, {WSR}, 0 offen sc1')
    a.e(f'buffer_load_dwordx4 v[{A+4}:{A+7}], v4, {WSR}, 0 offen offset:16 sc1')
    a.e('s_waitcnt vmcnt(0)')
    a.e(f'v_max3_u32 v40, v{A}, v{A+1}, v{A+2}')
    a.e(f'v_max3_u32 v41, v{A+3}, v{A+4}, v{A+5}')
    a.e(f'v_max3_u32 v40, v40, v{A+6}, v{A+7}')
    a.e('v_max_u32 v40, v40, v41')
    a.e('v_cmp_eq_u32 vcc, -1, v40')
    a.e(f's_cbranch_vccz {ld}')
    spin_tail(a, lp)
    a.e(f'{ld}:')
    stamp(a, 14)
    H = list(range(48, 56))
    for j in range(8):
        t = 40 + 2 * (j % 4)
        a.e(f'v_lshlrev_b32 v{t}, 16, v{A+j}')
        a.e(f'v_and_b32 v{t+1}, 0xffff0000, v{A+j}')
        a.e(f'v_pk_add_f32 v[{t}:{t+1}], v[{t}:{t+1}], v[{64+2*j}:{65+2*j}]')
        a.e(f'v_cvt_pk_bf16_f32 v{H[j]}, v{t}, v{t+1}')
    a.e('s_mov_b32 exec_hi, 0x00ffffff')
    for j in range(8):
        a.e(f'ds_write_b32 v6, v{H[j]} offset:{j*(224 if OPT["hpriv"] else 896)}')
    a.e('s_mov_b32 exec_hi, -1')
    if OPT['hpriv']:
        a.e('ds_read_b128 v[32:35], v7')
        a.e('ds_read_b128 v[36:39], v7 offset:1024')
        a.e('s_waitcnt lgkmcnt(1)')
        a.e(f'buffer_store_dwordx4 v[32:35], v56, {WSR}, 0 offen sc1')
        a.e('s_waitcnt lgkmcnt(0)')
        a.e(f'buffer_store_dwordx4 v[36:39], v57, {WSR}, 0 offen sc1')
        if dmas:
            a.inject(dmas, OPT['p4ev'])
        ln_stats(a, H, 16, L_RED0, 5)
    else:
        def hstore():
            a.e('v_lshlrev_b32 v7, 4, v0')
            a.e(f'ds_read_b128 v[56:59], v7 offset:{L_HT}')
            a.e(f'ds_read_b128 v[60:63], v7 offset:{L_HT + 4096}')
            return 2

        ln_stats(a, H, 16, L_RED0, 5, mid=hstore)
        a.e(f's_mul_i32 s66, s{S_B}, 7168')
        a.e(f's_add_u32 s66, s66, {WS_H}')
        a.e('v_add_u32 v6, s66, v7')
        a.e('v_add_u32 v7, 4096, v6')
        mask_lanes(a, 7, 192, 4, 'v0')
        a.e('s_waitcnt lgkmcnt(0)')
        a.e(f'buffer_store_dwordx4 v[56:59], v6, {WSR}, 0 offen sc1')
        a.e(f'buffer_store_dwordx4 v[60:63], v7, {WSR}, 0 offen sc1')
    bcast_stats(a, 16)
    a.inj_pause()
    a.e('s_mov_b32 exec_hi, 0x00ffffff')
    for j in range(8):
        t = 40 + 2 * (j % 4)
        norm_tok(a, j, H[j], t)
        a.e(f'v_cvt_pk_bf16_f32 v{H[j]}, v{t}, v{t+1}')
    a.e('s_mov_b32 exec_hi, -1')
    a.inj_resume()
    ln_stats(a, H, 16, L_RED1, 5)
    bcast_stats(a, 16)
    a.e(f's_mul_i32 s66, s{S_B}, 7168')
    a.e(f's_mul_i32 s67, s{S_W}, 1792')
    a.e('s_add_u32 s66, s66, s67')
    a.e(f's_add_u32 s66, s66, {WS_HH}')
    a.e('v_lshl_add_u32 v4, v1, 4, s66')
    a.e('v_add_u32 v5, 448, v4')
    a.e('v_cmp_gt_u32 vcc, 28, v1')
    a.e('v_cndmask_b32 v4, v5, v4, vcc')
    mask_lanes(a, 4, 56, 5)
    for j in range(8):
        norm_tok(a, j, H[j], 64 + 2 * j)
    O0, O1 = 80, 84
    for i in range(4):
        a.e(f'v_cvt_pk_bf16_f32 v{O0+i}, v{64+4*i}, v{66+4*i}')
        a.e(f'v_cvt_pk_bf16_f32 v{O1+i}, v{65+4*i}, v{67+4*i}')
    a.inj_flush()
    a.e(f's_waitcnt vmcnt({len(dmas)})')
    if not OPT['hpriv']:
        a.e('s_barrier')
    a.e(f'buffer_store_dwordx4 v[{O0}:{O0+3}], v4, {WSR}, 0 offen sc1')
    a.e(f'buffer_store_dwordx4 v[{O1}:{O1+3}], v4, {WSR}, 0 offen offset:448 sc1')


def w_setup(a):
    srd(a, S_W1, P_W1, W1BYTES)
    srd(a, S_W2, P_W2, W2BYTES)
    a.e('v_lshrrev_b32 v4, 3, v1')
    a.e('v_bfe_u32 v5, v1, 4, 1')
    a.e('v_lshlrev_b32 v5, 1, v5')
    a.e('v_and_b32 v6, 7, v1')
    a.e('v_xor_b32 v6, v6, v5')
    a.e('v_xor_b32 v7, 4, v6')
    for vd, rowbytes, tile, rows in ((V_D1, F * 2, S_I1, 512), (V_D2, L * 2, S_I2, 448)):
        a.e(f's_mov_b32 s66, {rowbytes}')
        a.e('v_mul_lo_u32 v5, v4, s66')
        a.e(f's_mul_i32 s67, s{S_W}, {rows*rowbytes}')
        a.e(f's_lshl_b32 s66, s{tile}, 7')
        a.e('s_add_u32 s67, s67, s66')
        a.e('v_add_u32 v5, s67, v5')
        for i in range(4):
            a.e(f'v_lshl_add_u32 v{vd+i}, v{6 + (i & 1)}, 4, v5')
            if i:
                a.e(f'v_add_u32 v{vd+i}, {i*(8*rowbytes - 1024)}, v{vd+i}')
    a.e('v_lshlrev_b32 v5, 12, v4')
    a.e('v_and_b32 v6, 7, v1')
    a.e(f'v_lshl_add_u32 v{V_QPF}, v6, 4, v5')
    a.e(f's_and_b32 s66, s{S_LOC}, 3')
    a.e('s_mul_i32 s66, s66, 448')
    if OPT['sched'] == 3:
        a.e(f's_mul_i32 s67, s{S_W}, {(448 - OPT["hR"]) // 4}')
        a.e(f's_add_u32 s67, s67, {OPT["hR"]}')
    else:
        a.e(f's_mul_i32 s67, s{S_W}, 112')
    a.e('s_add_u32 s66, s66, s67')
    a.e('s_lshl_b32 s66, s66, 12')
    a.e(f's_lshl_b32 s67, s{S_I2}, 7')
    a.e(f's_add_u32 s{S_QPF}, s66, s67')
    a.e('v_lshrrev_b32 v4, 4, v1')
    a.e('v_bfe_u32 v5, v1, 2, 2')
    a.e('v_lshl_add_u32 v5, v4, 3, v5')
    a.e('v_lshlrev_b32 v5, 7, v5')
    a.e('v_and_b32 v6, 1, v1')
    a.e('v_lshl_add_u32 v5, v6, 3, v5')
    a.e('v_bfe_u32 v6, v1, 1, 1')
    a.e('v_lshl_add_u32 v5, v6, 4, v5')
    a.e('v_bfe_u32 v6, v1, 3, 1')
    a.e('v_and_b32 v4, 1, v4')
    a.e('v_lshl_add_u32 v6, v4, 1, v6')
    a.e(f's_and_b32 s66, s{S_LOC}, 3')
    a.e(f's_lshr_b32 s67, s{S_LOC}, 2')
    a.e('s_lshl_b32 s67, s67, 1')
    a.e('s_lshl_b32 s70, s66, 2')
    a.e('s_add_u32 s70, s70, s67')
    a.e('s_and_b32 s70, s70, 15')
    a.e(f's_mul_i32 s{S_RW1}, s70, {32*F*2}')
    a.e(f's_mul_i32 s{S_RX1}, s70, {4*7168}')
    a.e('s_mul_i32 s66, s66, 7')
    a.e('s_lshr_b32 s66, s66, 1')
    a.e('s_add_u32 s66, s66, s67')
    for _ in range(2):
        a.e('s_cmp_ge_u32 s66, 14')
        a.e('s_cselect_b32 s67, 14, 0')
        a.e('s_sub_u32 s66, s66, s67')
    a.e(f's_mul_i32 s{S_RW2}, s66, {32*L*2}')
    a.e(f's_mul_i32 s{S_RX2}, s66, {4*7168}')
    a.e(f's_lshl_b32 s{S_SA}, s{S_W}, 14')
    a.e(f's_add_u32 s{S_SA}, s{S_SA}, {L_WA}')
    a.e(f's_mul_i32 s{S_SB}, s{S_W}, 20480')
    a.e(f's_add_u32 s{S_SB}, s{S_SB}, {L_WB}')
    a.e(f's_lshl_b32 s{S_SC}, s{S_W}, 13')
    a.e(f's_add_u32 s{S_SC}, s{S_SC}, {L_WC}')
    for mu in range(4):
        a.e(f'v_xor_b32 v4, {mu}, v6')
        a.e('v_lshl_add_u32 v4, v4, 5, v5')
        a.e(f'v_add_u32 v{V_TA+mu}, s{S_SA}, v4')
        a.e(f'v_add_u32 v{V_TB+mu}, s{S_SB}, v4')
        a.e(f'v_add_u32 v{V_TC+mu}, s{S_SC}, v4')


def rot_off(a, idx, sreg, n, unit):
    a.e(f's_add_u32 s70, s{sreg}, {idx*unit}')
    a.e(f's_cmp_ge_u32 s70, {n*unit}')
    a.e(f's_cselect_b32 s71, {n*unit}, 0')
    a.e('s_sub_u32 s70, s70, s71')


def slot(name):
    return {'A': (S_SA, V_TA), 'B': (S_SB, V_TB), 'C': (S_SC, V_TC)}[name[0]] + (int(name[1]),)


def w_dma1(a, mat, slab, sl, i):
    sb, _, si = slot(sl)
    vd, srd_, rowbytes = (V_D1, S_W1, F * 2) if mat == 1 else (V_D2, S_W2, L * 2)
    if i == 0:
        rot_off(a, slab, S_RW1 if mat == 1 else S_RW2, 16 if mat == 1 else 14, 32 * rowbytes)
        a.e(f's_add_u32 m0, s{sb}, {si*4096}')
    a.e(f'buffer_load_dwordx4 v{vd + i}, s[{srd_}:{srd_+3}], s70 offen offset:{1024*i} lds')


def w_dma(a, mat, slab, sl):
    for i in range(4):
        w_dma1(a, mat, slab, sl, i)


def w_tr(a, slab, sl):
    _, vt, si = slot(sl)
    for mu in range(4):
        r = (slab * 4 + mu) * 4
        a.e(f'ds_read_b64_tr_b16 a[{r}:{r+1}], v{vt+mu} offset:{si*4096}')
        a.e(f'ds_read_b64_tr_b16 a[{r+2}:{r+3}], v{vt+mu} offset:{si*4096 + 512}')


def helper_w2(a, nrows):
    a.e(f's_lshr_b32 s66, s{S_XCD}, 1')
    a.e('s_lshl_b32 s66, s66, 10')
    a.e(f's_sub_u32 s67, s{S_LOC}, 28')
    a.e('s_mul_i32 s67, s67, 448')
    a.e(f's_add_u32 s67, s67, s{S_W}')
    a.e('s_lshl_b32 s67, s67, 12')
    a.e('s_add_u32 s70, s66, s67')
    a.e('v_lshlrev_b32 v4, 4, v1')
    l = a.lab('l2s')
    a.e(f's_mov_b32 s71, {nrows // 16}')
    a.e(f'{l}:')
    for i in range(4):
        a.e(f'buffer_load_dwordx4 v[220:223], v4, s[{S_W2}:{S_W2+3}], s70 offen')
        a.e(f's_add_u32 s70, s70, {4*L*2}')
    a.e('s_waitcnt vmcnt(8)')
    a.e('s_sub_u32 s71, s71, 1')
    a.e('s_cmp_lg_u32 s71, 0')
    a.e(f's_cbranch_scc1 {l}')


def qpf_load(a, n):
    for _ in range(n):
        a.e(f'buffer_load_dwordx4 v[220:223], v{V_QPF}, s[{S_W2}:{S_W2+3}], s{S_QPF} offen')
        a.e(f's_add_u32 s{S_QPF}, s{S_QPF}, {8*L*2}')


ACC = 16
XS = 80
NS = 6
VMAX = 214
V_X0, V_X3 = 208, 209


def gemm_xaddr(a, ws_off, kblocks):
    a.e(f's_mul_i32 s66, s{S_W}, {kblocks*7168}')
    a.e(f's_mul_i32 s67, s{S_J}, 896')
    a.e('s_add_u32 s66, s66, s67')
    a.e(f's_add_u32 s66, s66, {ws_off}')
    a.e('v_lshrrev_b32 v4, 4, v1')
    a.e('v_mul_u32_u24 v4, 7168, v4')
    a.e('v_add_u32 v4, s66, v4')
    a.e('v_and_b32 v5, 15, v1')
    a.e(f'v_lshl_add_u32 v{V_X0}, v5, 4, v4')
    if OPT['x3oob']:
        a.e(f'v_add_u32 v{V_X3}, 768, v{V_X0}')
        a.e(f'v_mov_b32 v4, {OOB}')
        a.e('v_cmp_gt_u32 vcc, 8, v5')
        a.e(f'v_cndmask_b32 v{V_X3}, v4, v{V_X3}, vcc')
    else:
        a.e('v_and_b32 v5, 7, v1')
        a.e('v_lshl_add_u32 v4, v5, 4, v4')
        a.e(f'v_add_u32 v{V_X3}, 768, v4')


def gemm_xloads(a, kappa, gid):
    st = XS + 16 * (kappa % NS)
    out = []
    sreg, n = (S_RX1, 16) if gid == 1 else (S_RX2, 14)
    unit = 4 * 7168
    out.append(f's_add_u32 s70, s{sreg}, {kappa*unit}')
    out.append(f's_cmp_ge_u32 s70, {n*unit}')
    out.append(f's_cselect_b32 s71, {n*unit}, 0')
    out.append('s_sub_u32 s70, s70, s71')
    for nu in range(3):
        out.append(f'buffer_load_dwordx4 v[{st+4*nu}:{st+4*nu+3}], v{V_X0}, {WSR}, s70 offen offset:{256*nu} sc1')
    out.append(f'buffer_load_dwordx4 v[{st+12}:{st+15}], v{V_X3}, {WSR}, s70 offen sc1')
    return out


def gemm_main(a, nk, gid, tail_hook=None):
    nfl = OPT['nfl']
    w_is_a = gid == 1
    a.e(f'v_mov_b32 v{VMAX}, 0')
    extra = 0
    for k in range(nk):
        st = XS + 16 * (k % NS)
        rem = min(nfl - 1, nk - 1 - k)
        a.e(f's_waitcnt vmcnt({4*rem + extra})')
        if OPT['stamps'] and k in (0, 4, 8, 12):
            stamp(a, (44 if w_is_a else 51) + (0, 4, 8, 12).index(k))
        fill = gemm_xloads(a, k + nfl, gid) if k + nfl < nk else []
        if k + nfl == nk and tail_hook is not None:
            fill = []
            extra = tail_hook(fill)
        mx = [f'v_max3_u32 v{VMAX}, v{VMAX}, v{st+2*i}, v{st+2*i+1}' for i in range(8)]
        n = 0
        for mu in range(4):
            for nu in range(4):
                w = (k * 4 + mu) * 4
                x = st + 4 * nu
                if w_is_a:
                    acc = ACC + (mu * 4 + nu) * 4
                    A, B = f'a[{w}:{w+3}]', f'v[{x}:{x+3}]'
                else:
                    acc = ACC + (nu * 4 + mu) * 4
                    A, B = f'v[{x}:{x+3}]', f'a[{w}:{w+3}]'
                cc = '0' if k == 0 else f'v[{acc}:{acc+3}]'
                a.e(f'v_mfma_f32_16x16x32_bf16 v[{acc}:{acc+3}], {A}, {B}, {cc}')
                for _ in range(2):
                    if fill:
                        a.e(fill.pop(0))
                if not fill and mx and n >= 4:
                    a.e(mx.pop(0))
                n += 1
        assert not fill and not mx


def capture(fn):
    p = Prog()
    fn(p)
    return [it.text for it in p.items]


STUBS = []


def mfma_line(k, mu, nu, gid):
    st = XS + 16 * (k % NS)
    w = (k * 4 + mu) * 4
    x = st + 4 * nu
    if gid == 1:
        acc = ACC + (mu * 4 + nu) * 4
        A, B = f'a[{w}:{w+3}]', f'v[{x}:{x+3}]'
    else:
        acc = ACC + (nu * 4 + mu) * 4
        A, B = f'v[{x}:{x+3}]', f'a[{w}:{w+3}]'
    cc = '0' if k == 0 else f'v[{acc}:{acc+3}]'
    return f'v_mfma_f32_16x16x32_bf16 v[{acc}:{acc+3}], {A}, {B}, {cc}'


def poison_check(k):
    st = XS + 16 * (k % NS)
    out = [f'v_max3_u32 v{VMAX}, v{st}, v{st+1}, v{st+2}']
    for i in range(6):
        out.append(f'v_max3_u32 v{VMAX}, v{VMAX}, v{st+3+2*i}, v{st+4+2*i}')
    out.append(f'v_max_u32 v{VMAX}, v{VMAX}, v{st+15}')
    out.append(f'v_cmp_eq_u32 vcc, -1, v{VMAX}')
    return out


def gemm_checked(a, nk, gid, sb, tail_hook=None, side=None):
    nfl = OPT['nfl']

    def slow(k):
        ls, lb, lp = a.lab('slow'), a.lab('back'), a.lab('sloop')

        def emit():
            a.e(f'{ls}:')
            a.e(f's_mov_b32 s{S_SPIN}, 0')
            a.e(f'{lp}:')
            for x in gemm_xloads(a, k, gid):
                a.e(x)
            a.e('s_waitcnt vmcnt(0)')
            for x in poison_check(k):
                a.e(x)
            ldone = a.lab('sdone')
            a.e(f's_cbranch_vccz {ldone}')
            spin_tail(a, lp)
            a.e(f'{ldone}:')
            if k == 0:
                for kk in range(1, min(nfl, nk - 1) + 1):
                    for x in gemm_xloads(a, kk, gid):
                        a.e(x)
            a.e(f's_branch {lb}')
        STUBS.append(emit)
        return ls, lb

    for k in range(nfl):
        for x in gemm_xloads(a, k, gid):
            a.e(x)
    a.e(f's_waitcnt vmcnt({4*(nfl-1)})')
    for x in gemm_xloads(a, nfl, gid):
        a.e(x)
    for x in poison_check(0):
        a.e(x)
    ls, lb = slow(0)
    a.e(f's_cbranch_vccnz {ls}')
    a.e(f'{lb}:')
    stamp(a, sb)
    extra = 0
    for k in range(nk):
        lines = [mfma_line(k, mu, nu, gid) for mu in range(4) for nu in range(4)]
        for i in range(8):
            a.e(lines[i])
        if k + 1 < nk:
            kn = k + 1
            rem = min(nfl - 1, nk - 1 - kn)
            a.e(f's_waitcnt vmcnt({4*rem + extra})')
            if OPT['stamps'] and kn in (4, 8, 12):
                stamp(a, (44 if gid == 1 else 51) + (0, 4, 8, 12).index(kn))
            fill = gemm_xloads(a, kn + nfl, gid) if kn + nfl < nk else []
            if kn + nfl == nk and tail_hook is not None:
                extra = tail_hook(fill)
            if side is not None:
                lines_, nvm = side(kn)
                fill += lines_
                extra += nvm
            fill += poison_check(kn)
        else:
            fill = []
        per = -(-len(fill) // 8)
        for i in range(8, 16):
            a.e(lines[i])
            for _ in range(per):
                if fill:
                    a.e(fill.pop(0))
        assert not fill
        if k + 1 < nk:
            ls, lb = slow(k + 1)
            a.e(f's_cbranch_vccnz {ls}')
            a.e(f'{lb}:')


def sentinel(a, ws_off, kblocks):
    lp, ld = a.lab('spoll'), a.lab('sdone')
    a.e(f's_mul_i32 s66, s{S_W}, {kblocks*7168}')
    a.e(f's_mul_i32 s67, s{S_J}, 896')
    a.e('s_add_u32 s66, s66, s67')
    a.e(f's_add_u32 s66, s66, {ws_off + 55*16 + 12}')
    a.e('v_mul_u32_u24 v4, 7168, v1')
    a.e('v_add_u32 v4, s66, v4')
    if kblocks < 64:
        mask_lanes(a, 4, kblocks, 5)
    a.e(f's_mov_b32 s{S_SPIN}, 0')
    a.e(f'{lp}:')
    a.e(f'buffer_load_dword v5, v4, {WSR}, 0 offen sc1')
    a.e('s_waitcnt vmcnt(0)')
    a.e('v_cmp_eq_u32 vcc, -1, v5')
    a.e(f's_cbranch_vccz {ld}')
    spin_tail(a, lp)
    a.e(f'{ld}:')


def gemm_poll_main(a, ws_off, kblocks, nk, gid, sb, tail_hook=None, side=None):
    lr, lok = a.lab('gretry'), a.lab('gok')
    gemm_xaddr(a, ws_off, kblocks)
    if OPT['stchk']:
        gemm_checked(a, nk, gid, sb, tail_hook, side)
        return
    a.e(f's_mov_b32 s{S_RETRY}, 0')
    a.e(f'{lr}:')
    sentinel(a, ws_off, kblocks)
    stamp(a, sb)
    for k in range(OPT['nfl']):
        for x in gemm_xloads(a, k, gid):
            a.e(x)
    gemm_main(a, nk, gid, tail_hook)
    a.e(f'v_cmp_eq_u32 vcc, -1, v{VMAX}')
    a.e(f's_cbranch_vccz {lok}')
    a.e(f's_add_u32 s{S_RETRY}, s{S_RETRY}, 1')
    a.e(f's_cmp_lt_u32 s{S_RETRY}, {RETRY_MAX}')
    a.e(f's_cbranch_scc1 {lr}')
    a.e(f'{lok}:')


def write_partials(a):
    a.e('v_and_b32 v4, 15, v1')
    a.e(f'v_mul_u32_u24 v4, {PROW}, v4')
    a.e('v_lshrrev_b32 v5, 4, v1')
    a.e('v_lshl_add_u32 v4, v5, 4, v4')
    a.e(f's_mul_i32 s66, s{S_W}, {PARTW}')
    a.e(f's_add_u32 s66, s66, {L_PART}')
    a.e('v_add_u32 v4, s66, v4')
    a.e('s_barrier')
    for mt in range(4):
        for nt in range(4):
            acc = ACC + (mt * 4 + nt) * 4
            a.e(f'ds_write_b128 v4, v[{acc}:{acc+3}] offset:{nt*16*PROW + mt*64}')


def sum_partials(a, P):
    for h in range(4):
        a.e(f'v_pk_add_f32 v[{P+2*h}:{P+2*h+1}], v[{P+2*h}:{P+2*h+1}], v[{P+8+2*h}:{P+9+2*h}]')
        a.e(f'v_pk_add_f32 v[{P+16+2*h}:{P+17+2*h}], v[{P+16+2*h}:{P+17+2*h}], v[{P+24+2*h}:{P+25+2*h}]')
    for h in range(4):
        a.e(f'v_pk_add_f32 v[{P+2*h}:{P+2*h+1}], v[{P+2*h}:{P+2*h+1}], v[{P+16+2*h}:{P+17+2*h}]')


def b1_load(a):
    a.e(f's_lshl_b32 s67, s{S_I1}, 7')
    a.e(f's_lshl_b32 s70, s{S_W}, 5')
    a.e('s_add_u32 s67, s67, s70')
    a.e(f's_load_dwordx8 s[72:79], s[{P_B1}:{P_B1+1}], s67')


def gemm1_epilogue(a, d0=(), d1=()):
    write_partials(a)
    a.e(f'v_mul_u32_u24 v4, {PROW}, v1')
    a.e(f's_lshl_b32 s66, s{S_W}, 6')
    a.e(f's_add_u32 s66, s66, {L_PART}')
    a.e('v_add_u32 v4, s66, v4')
    g_store_addr(a, 5)
    C1 = 0.044715
    C2 = -2.0 * 0.7978845608028654 * 1.4426950408889634
    a.e(f'v_mov_b32 v100, {fx(C1*C2)}')
    a.e(f'v_mov_b32 v101, {fx(C1*C2)}')
    a.e(f'v_mov_b32 v102, {fx(C2)}')
    a.e(f'v_mov_b32 v103, {fx(C2)}')
    a.e('s_waitcnt lgkmcnt(0)')
    a.e('s_barrier')
    stamp(a, 24)
    for r in range(2):
        P = 16 + 32 * r
        for wv in range(4):
            a.e(f'ds_read_b128 v[{P+8*wv}:{P+8*wv+3}], v4 offset:{wv*PARTW + r*32}')
            a.e(f'ds_read_b128 v[{P+8*wv+4}:{P+8*wv+7}], v4 offset:{wv*PARTW + r*32 + 16}')
    for i in range(8):
        a.e(f's_lshl_b32 s{80+2*i}, s{72+i}, 16')
        a.e(f's_and_b32 s{81+2*i}, s{72+i}, 0xffff0000')
    for r in range(2):
        P = 16 + 32 * r
        T = 80
        a.e(f's_waitcnt lgkmcnt({8 if r == 0 else 0})')
        if r == 1 and d1:
            a.e('s_barrier')
        dd = d0 if r == 0 else d1
        if dd:
            a.inject(dd, max(1, 80 // len(dd)))
        sum_partials(a, P)
        round_pairs(a, P, T, 8)
        for h in range(4):
            a.e(f'v_pk_add_f32 v[{P+2*h}:{P+2*h+1}], v[{P+2*h}:{P+2*h+1}], s[{80+8*r+2*h}:{81+8*r+2*h}]')
        round_pairs(a, P, T, 8)
        for h in range(4):
            a.e(f'v_pk_mul_f32 v[{P+8+2*h}:{P+9+2*h}], v[{P+2*h}:{P+2*h+1}], v[{P+2*h}:{P+2*h+1}]')
        for h in range(4):
            a.e(f'v_pk_fma_f32 v[{P+8+2*h}:{P+9+2*h}], v[{P+8+2*h}:{P+9+2*h}], v[100:101], v[102:103]')
        for h in range(4):
            a.e(f'v_pk_mul_f32 v[{P+8+2*h}:{P+9+2*h}], v[{P+8+2*h}:{P+9+2*h}], v[{P+2*h}:{P+2*h+1}]')
        for i in range(8):
            a.e(f'v_exp_f32 v{P+8+i}, v{P+8+i}')
        for h in range(4):
            a.e(f'v_pk_add_f32 v[{P+8+2*h}:{P+9+2*h}], v[{P+8+2*h}:{P+9+2*h}], 1.0 op_sel_hi:[1,0]')
        for i in range(8):
            a.e(f'v_rcp_f32 v{P+8+i}, v{P+8+i}')
        for h in range(4):
            a.e(f'v_pk_mul_f32 v[{P+2*h}:{P+2*h+1}], v[{P+2*h}:{P+2*h+1}], v[{P+8+2*h}:{P+9+2*h}]')
        O = 88 + 4 * r
        for h in range(4):
            a.e(f'v_cvt_pk_bf16_f32 v{O+h}, v{P+2*h}, v{P+2*h+1}')
        a.inj_flush()
        if r == 1:
            a.e('v_add_u32 v5, 7168, v5')
        a.e(f'buffer_store_dwordx4 v[{O}:{O+3}], v5, {WSR}, 0 offen sc1')


V_OUT, V_HAD, V_B2 = 210, 211, 212
V_HR = 196


def gemm2_addr(a):
    srd(a, S_T2, P_OUT, XBYTES)
    srd(a, S_T3, P_B2, L * 2)
    a.e('v_lshrrev_b32 v4, 3, v1')
    a.e('v_and_b32 v5, 7, v1')
    a.e(f's_lshl_b32 s66, s{S_W}, 4')
    a.e('v_add_u32 v4, s66, v4')
    a.e(f's_lshl_b32 s67, s{S_I2}, 6')
    a.e('v_add_u32 v7, s67, v4')
    a.e(f'v_mul_u32_u24 v{V_OUT}, 896, v7')
    a.e(f'v_lshl_add_u32 v{V_OUT}, v5, 4, v{V_OUT}')
    a.e(f's_mul_i32 s70, s{S_J}, 112')
    a.e(f'v_add_u32 v{V_OUT}, s70, v{V_OUT}')
    a.e(f'v_mov_b32 v6, {OOB}')
    a.e('v_cmp_gt_u32 vcc, 7, v5')
    a.e(f'v_cndmask_b32 v{V_OUT}, v6, v{V_OUT}, vcc')
    a.e(f'v_add_u32 v{V_HAD}, {WS_H}, v{V_OUT}')
    a.e(f'v_lshlrev_b32 v{V_B2}, 1, v7')


def gemm2_tail_loads(fill):
    fill.append(f'buffer_load_dwordx4 v[{V_HR}:{V_HR+3}], v{V_HAD}, {WSR}, 0 offen sc1')
    fill.append(f's_mov_b32 s70, {8*896}')
    fill.append(f'buffer_load_dwordx4 v[{V_HR+4}:{V_HR+7}], v{V_HAD}, {WSR}, s70 offen sc1')
    fill.append(f'buffer_load_ushort v{V_HR+8}, v{V_B2}, s[{S_T3}:{S_T3+3}], 0 offen')
    fill.append(f'buffer_load_ushort v{V_HR+9}, v{V_B2}, s[{S_T3}:{S_T3+3}], 0 offen offset:16')
    return 4


def gemm2_epilogue(a):
    write_partials(a)
    a.e('v_lshrrev_b32 v4, 3, v1')
    a.e('v_and_b32 v5, 7, v1')
    a.e(f's_lshl_b32 s66, s{S_W}, 4')
    a.e('v_add_u32 v4, s66, v4')
    a.e(f'v_mul_u32_u24 v6, {PROW}, v4')
    a.e('v_lshl_add_u32 v6, v5, 4, v6')
    a.e(f'v_add_u32 v6, {L_PART}, v6')
    a.e('s_waitcnt lgkmcnt(0)')
    a.e('s_barrier')
    stamp(a, 33)
    for r in range(2):
        P = 16 + 32 * r
        for wv in range(4):
            a.e(f'ds_read_b128 v[{P+8*wv}:{P+8*wv+3}], v6 offset:{wv*PARTW + r*8*PROW}')
            a.e(f'ds_read_b128 v[{P+8*wv+4}:{P+8*wv+7}], v6 offset:{wv*PARTW + r*8*PROW + 112}')
    a.e('s_waitcnt vmcnt(0)')
    for r in range(2):
        P = 16 + 32 * r
        T = 80
        H = V_HR + 4 * r
        a.e(f'v_lshlrev_b32 v106, 16, v{V_HR+8+r}')
        for i in range(4):
            a.e(f'v_lshlrev_b32 v{96+i}, 16, v{H+i}')
            a.e(f'v_and_b32 v{100+i}, 0xffff0000, v{H+i}')
        a.e(f's_waitcnt lgkmcnt({8 if r == 0 else 0})')
        sum_partials(a, P)
        round_pairs(a, P, T, 8)
        for h in range(4):
            a.e(f'v_pk_add_f32 v[{P+2*h}:{P+2*h+1}], v[{P+2*h}:{P+2*h+1}], v[106:107] op_sel:[0,0] op_sel_hi:[1,0]')
        round_pairs(a, P, T, 8)
        for h in range(4):
            a.e(f'v_pk_add_f32 v[{P+2*h}:{P+2*h+1}], v[{P+2*h}:{P+2*h+1}], v[{96+2*h}:{97+2*h}]')
        O = 88 + 4 * r
        for i in range(4):
            a.e(f'v_cvt_pk_bf16_f32 v{O+i}, v{P+i}, v{P+4+i}')
        if r == 1:
            a.e(f'v_add_u32 v{V_OUT}, {8*896}, v{V_OUT}')
        a.e(f'buffer_store_dwordx4 v[{O}:{O+3}], v{V_OUT}, s[{S_T2}:{S_T2+3}], 0 offen' + ['', ' sc1', ' nt', ' sc0 sc1', ' sc1 nt'][OPT['outsc']])


def build():
    a = Prog()
    name = NAME + '_kernel'
    lend = a.lab('end')
    a.raw(f'.globl {name}')
    a.raw('.p2align 8')
    a.raw(f'.type {name},@function')
    a.raw(f'{name}:')
    prologue(a, lend)
    lnc1, lnc2, lnc3, lnc5, lnc6 = [a.lab('noconv') for _ in range(5)]

    def skip_if_helper(l):
        a.e(f's_cmp_ge_u32 s{S_LOC}, 28')
        a.e(f's_cbranch_scc1 {l}')

    load_xrows(a)
    ncp = 0
    if OPT['cpf'] & 2:
        code_prefetch1(a, name, 'kcode_end')
        ncp = 1
    a.e(f's_add_u32 s66, s{P_WS}, {WS_EPOCH}')
    a.e(f's_addc_u32 s67, s{P_WS+1}, 0')
    a.e('s_load_dword s99, s[66:67], 0')
    poison_regs(a)
    skip_if_helper(lnc1)
    nt = 0
    if not OPT['plate']:
        kgen_loads(a)
        load_gather_table(a, 'ktab_idx')
        w_setup(a)
        if OPT['tlb'] & 2:
            nt = tlb_touch(a)
        flag_addr(a)
        a.e('s_waitcnt lgkmcnt(0)')
        a.e(f's_add_u32 s{S_TAG}, s99, 0x9e3779b9')
        a.e(f's_waitcnt vmcnt({10 + nt + ncp})')
        stamp(a, 2)
        clear_hh(a)
        clear_aout(a)
    else:
        kgen_loads(a, 'setup')
        w_setup(a)
        flag_addr(a)
        a.e(f's_waitcnt vmcnt({ncp})')
        stamp(a, 2)
        kgen_loads(a, 'issue')
        clear_hh(a)
        clear_aout(a)
        load_gather_table(a, 'ktab_idx')
        if OPT['tlb'] & 2:
            nt = tlb_touch(a)
        a.e('s_waitcnt lgkmcnt(0)')
        a.e(f's_add_u32 s{S_TAG}, s99, 0x9e3779b9')
    ln_stats(a, list(range(8, 16)), 16, L_RED0, 5)
    stamp(a, 3)
    publish_xn(a)
    nb0 = OPT['wb0']
    if OPT['sched'] == 2:
        qa, qb = OPT['qa'], OPT['qb']
        qpf_load(a, qa)
        stamp(a, 4)
        a.e(f's_waitcnt vmcnt({8 + nt + qa})')
        kgen_channel(a, 0, DK0)
        for k in range(nb0):
            w_dma(a, 1, k, BS[k])
        stamp(a, 40)
        kgen_channel(a, 1, DK1, mid=lambda: publish_flag(a, qa + 4 * nb0), mid_m0=False)
        stamp(a, 5)
        qpf_load(a, qb)
        a.e(f's_waitcnt vmcnt({qb})')
        for k in range(nb0):
            w_tr(a, k, BS[k])
        ktab_part1(a)
        stamp(a, 6)
        flag_load(a)
        ktab_part2(a)
        stamp(a, 7)
        a.e(f's_mov_b32 s{S_EARLY}, 0')
        lne = a.lab('notearly')
        a.e('s_waitcnt vmcnt(0)')
        a.e(f'v_cmp_ne_u32 vcc, s{S_TAG}, v{V_FV}')
        a.e(f's_cbranch_vccnz {lne}')
        load_u(a)
        a.e(f's_mov_b32 s{S_EARLY}, 1')
        a.e(f'{lne}:')
        conv_addr(a)
        kcopies(a)
        stamp(a, 8)
        lhave = a.lab('haveu')
        a.e(f's_cmp_lg_u32 s{S_EARLY}, 0')
        a.e(f's_cbranch_scc1 {lhave}')
        flag_poll(a)
        load_u(a)
        a.e(f'{lhave}:')
        stamp(a, 9)
        store_u(a, 0)
    elif OPT['sched'] == 3:
        nq = (448 - OPT['hR']) // 32
        ne = 0
        if OPT['cearly']:
            assert OPT['regc']
            for k in range(2):
                w_dma(a, 1, k, f'C{k}')
            q4 = min(OPT['q4'], nq)
            qpf_load(a, q4)
            ne = 8 + q4
            nq -= q4
        stamp(a, 4)
        a.e(f's_waitcnt vmcnt({8 + nt + ne})')
        kgen_channel(a, 0, DK0)
        publish_flag(a, ne)
        if OPT['regc']:
            nb0 = 2
            if not OPT['cearly']:
                for k in range(2):
                    w_dma(a, 1, k, f'C{k}')
        else:
            for k in range(nb0):
                w_dma(a, 1, k, BS[k])
        if OPT['cearly']:
            qpf_load(a, nq)
            nq = 0
        stamp(a, 40)
        kgen_channel(a, 1, DK1)
        stamp(a, 5)
        flag_load(a)
        qpf_load(a, nq)
        if not OPT['regc']:
            a.e(f's_waitcnt vmcnt({nq + 1})')
            for k in range(nb0):
                w_tr(a, k, BS[k])
        ktab_part1(a)
        stamp(a, 6)
        a.e(f's_mov_b32 s{S_EARLY}, 0')
        lne = a.lab('notearly')
        a.e(f's_waitcnt vmcnt({nq})')
        a.e(f'v_cmp_ne_u32 vcc, s{S_TAG}, v{V_FV}')
        a.e(f's_cbranch_vccnz {lne}')
        load_u(a)
        a.e(f's_mov_b32 s{S_EARLY}, 1')
        a.e(f'{lne}:')
        ktab_part2(a)
        stamp(a, 7)
        conv_addr(a)
        kcopies(a)
        stamp(a, 8)
        lhave = a.lab('haveu')
        a.e(f's_cmp_lg_u32 s{S_EARLY}, 0')
        a.e(f's_cbranch_scc1 {lhave}')
        flag_poll(a)
        load_u(a)
        a.e(f'{lhave}:')
        stamp(a, 9)
        store_u(a, 0)
    else:
        stamp(a, 4)
        a.e(f's_waitcnt vmcnt({8 + nt})')
        kgen_channel(a, 0, DK0)
        publish_flag(a)
        for k in range(min(nb0, 3)):
            w_dma(a, 1, k, BS[k])
        stamp(a, 40)
        kgen_channel(a, 1, DK1, mid=(lambda: [w_dma(a, 1, k, BS[k]) for k in range(3, nb0)]) if nb0 > 3 else None)
        stamp(a, 5)
        if OPT['early']:
            flag_load(a)
            a.e('s_waitcnt vmcnt(1)')
        else:
            a.e('s_waitcnt vmcnt(0)')
        for k in range(nb0):
            w_tr(a, k, BS[k])
        ktab_part1(a)
        stamp(a, 6)
        a.e(f's_mov_b32 s{S_EARLY}, 0')
        lne = a.lab('notearly')
        if OPT['early']:
            a.e('s_waitcnt vmcnt(0)')
            a.e(f'v_cmp_ne_u32 vcc, s{S_TAG}, v{V_FV}')
            a.e(f's_cbranch_vccnz {lne}')
            load_u(a)
            a.e(f's_mov_b32 s{S_EARLY}, 1')
            a.e(f'{lne}:')
        qpf_load(a, OPT['w2pf_a'])
        ktab_part2(a)
        stamp(a, 7)
        conv_addr(a)
        kcopies(a)
        stamp(a, 8)
        lhave = a.lab('haveu')
        a.e(f's_cmp_lg_u32 s{S_EARLY}, 0')
        a.e(f's_cbranch_scc1 {lhave}')
        flag_poll(a)
        load_u(a)
        a.e('s_waitcnt vmcnt(0)')
        a.e(f'{lhave}:')
        stamp(a, 9)
        store_u(a, OPT['w2pf_a'])
    epoch_update(a)
    clear_g(a)
    if OPT['sched'] == 1:
        qpf_load(a, OPT['w2pf_b'])
    stamp(a, 10)
    hk = []
    for k in range(4):
        for i in range(4):
            hk.append(lambda k=k, i=i: w_dma1(a, 1, nb0 + k, AS[k], i))
            hk.append(lambda: None)
    if OPT['nohk']:
        hk = []
    elif OPT['hkpos'] == 1:
        hk = [h for i, h in enumerate(hk) if i % 2 == 0]
    elif OPT['hkpos'] == 2:
        hk = [lambda: None] * 18 + [h for i, h in enumerate(hk) if i % 2 == 0]
    phase_conv(a, hk, 0)
    stamp(a, 12)
    if OPT['regc']:
        for k in range(2):
            w_tr(a, k, f'C{k}')
    for k in range(4):
        w_tr(a, nb0 + k, AS[k])
    a.e('s_waitcnt lgkmcnt(0)')
    a.e('s_barrier')
    rest = list(range(nb0 + 4, 16))
    last = None
    if len(rest) > 9:
        last = rest.pop()
    rest_slots = (BS + AS)[:len(rest)]
    p4d = []
    if OPT['p4dma']:
        assert OPT['hpriv']
        p4d = [lambda k=k, sl=sl, i=i: w_dma1(a, 1, k, sl, i) for k, sl in zip(rest, rest_slots) for i in range(4)]
    else:
        for k, sl in zip(rest, rest_slots):
            w_dma(a, 1, k, sl)
    stamp(a, 13)
    a.e(f's_branch {lnc2}')
    a.e(f'{lnc1}:')
    nh = 0
    if OPT['cpf'] & 1:
        code_prefetch(a, name, 'kcode_end')
        nh += 3
    w_setup(a)
    if OPT['tlb'] & 1:
        nh += tlb_touch(a)
    flag_addr(a)
    a.e('s_waitcnt lgkmcnt(0)')
    a.e(f's_add_u32 s{S_TAG}, s99, 0x9e3779b9')
    a.e(f's_waitcnt vmcnt({nh + ncp})')
    clear_hh(a)
    ln_stats(a, list(range(8, 16)), 16, L_RED0, 5)
    publish_xn(a)
    publish_flag(a)
    if OPT['sched'] == 3:
        qpf_load(a, (448 - OPT['hR']) // 32)
        helper_w2(a, OPT['hR'])
    else:
        qpf_load(a, 14)
    stamp(a, 41)
    flag_poll(a)
    a.e('s_barrier')
    if p4d:
        a.e(f's_mov_b32 s{S_W1+2}, 0')
    stamp(a, 42)
    a.e(f'{lnc2}:')
    phase_p4(a, p4d)
    stamp(a, 20)
    gemm2_addr(a)
    skip_if_helper(lnc3)
    b1_load(a)
    if p4d:
        a.e('s_waitcnt vmcnt(2)')
    for k, sl in zip(rest, rest_slots):
        w_tr(a, k, sl)
    a.e('s_waitcnt lgkmcnt(0)')
    if last is not None:
        w_dma(a, 1, last, 'A0')
    for k in range(5):
        w_dma(a, 2, k, BS[k])
    if last is not None:
        a.e('s_waitcnt vmcnt(20)')
        w_tr(a, last, 'A0')
        a.e('s_waitcnt lgkmcnt(0)')
    stamp(a, 21)
    w2sh = OPT['w2sh'] and OPT['stchk'] and OPT['h4early']

    def side1(kn):
        if 6 <= kn <= 10:
            return capture(lambda p: w_tr(p, kn - 6, BS[kn - 6])), 0
        if 13 <= kn <= 15:
            pre = ['s_waitcnt lgkmcnt(0)'] if kn == 13 else []
            return pre + capture(lambda p: w_dma(p, 2, kn - 8, BS[kn - 13])), 4
        return [], 0

    gemm_poll_main(a, WS_HH, 64, 16, 1, 22, side=side1 if w2sh else None)
    stamp(a, 23)
    if OPT['h4early']:
        if not w2sh:
            for k in range(5):
                w_tr(a, k, BS[k])
            a.e('s_waitcnt lgkmcnt(0)')
            for k in range(5, 5 + OPT['npre']):
                w_dma(a, 2, k, BS[k - 5])
        if OPT['e1dma']:
            d0 = [lambda k=k, i=i: w_dma1(a, 2, k, BS[k - 5], i) for k in range(8, 10) for i in range(4)]
            d1 = [lambda k=k, i=i: w_dma1(a, 2, k, AS[k - 10], i) for k in range(10, 14) for i in range(4)]
            gemm1_epilogue(a, d0, d1)
            stamp(a, 25)
            w1, w2, w3 = 26, 18, 1
        else:
            gemm1_epilogue(a)
            stamp(a, 25)
            npre = 3 if w2sh else OPT['npre']
            for k in range(5 + npre, 10):
                w_dma(a, 2, k, BS[k - 5])
            a.e('s_barrier')
            for k in range(10, 14):
                w_dma(a, 2, k, AS[k - 10])
            w1, w2, w3 = 24 + (0 if npre < 3 else 0), 16, 0
            w1 = 26 if npre == 3 else 24
        a.e(f's_waitcnt vmcnt({w1})')
        for k in range(5, 8):
            w_tr(a, k, BS[k - 5])
        a.e(f's_waitcnt vmcnt({w2})')
        for k in range(8, 10):
            w_tr(a, k, BS[k - 5])
        a.e(f's_waitcnt vmcnt({w3})')
        for k in range(10, 14):
            w_tr(a, k, AS[k - 10])
        a.e('s_waitcnt lgkmcnt(0)')
        a.e(f's_branch {lnc6}')
    else:
        gemm1_epilogue(a)
        stamp(a, 25)
        for k in range(5):
            w_tr(a, k, BS[k])
        a.e('s_waitcnt lgkmcnt(0)')
        a.e('s_barrier')
        a.e(f's_branch {lnc5}')
    a.e(f'{lnc3}:')
    for k in range(5):
        w_dma(a, 2, k, BS[k])
    a.e('s_waitcnt vmcnt(0)')
    for k in range(5):
        w_tr(a, k, BS[k])
    a.e('s_waitcnt lgkmcnt(0)')
    a.e(f'{lnc5}:')
    for k in range(5, 10):
        w_dma(a, 2, k, BS[k - 5])
    for k in range(10, 14):
        w_dma(a, 2, k, AS[k - 10])
    a.e('s_waitcnt vmcnt(16)')
    for k in range(5, 10):
        w_tr(a, k, BS[k - 5])
    a.e('s_waitcnt vmcnt(0)')
    for k in range(10, 14):
        w_tr(a, k, AS[k - 10])
    a.e('s_waitcnt lgkmcnt(0)')
    a.e(f'{lnc6}:')
    stamp(a, 30)
    gemm_poll_main(a, WS_G, 56, 14, 2, 31, gemm2_tail_loads)
    stamp(a, 32)
    gemm2_epilogue(a)
    stamp_clk(a, 61)
    stamp(a, 63)
    stamp_flush(a)
    a.e(f'{lend}:')
    a.e('s_endpgm')
    for emit in STUBS:
        emit()
    del STUBS[:]
    a.raw('kcode_end:')
    emit_gather_table(a, 'ktab_idx')
    nn = a.fast_insert_nops()
    head = f'; @launch grid=(256,1,1) block=(256,1,1) lds={LDS_BYTES}\n'
    head += '.amdgcn_target "amdgcn-amd-amdhsa--gfx950"\n.text\n'
    tail = '.section .rodata,"a"\n.p2align 6\n' + descriptor(name)
    if OPT['align']:
        nal = a.align8(head, tail)
        sys.stderr.write(f'alignment: {nal}\n')
    sys.stderr.write(f'instructions: {a.count()}, nops inserted: {nn}\n')
    return head + a.text() + tail


if __name__ == '__main__':
    out = sys.argv[1]
    for arg in sys.argv[2:]:
        if arg == 'stamps':
            OPT['stamps'] = True
        elif arg == 'dbg':
            OPT['stamps'] = True
            OPT['dbgsel'] = [0, 1, 2, 4, 8, 9, 12, 13, 14, 20, 21, 23, 25, 30, 32, 63]
        elif '=' in arg:
            k, v = arg.split('=')
            OPT[k] = int(v)
    open(out, 'w').write(build())
```

```python
import sys
import gen
from gen import (Prog, NAME, L, D, F, XBYTES, PBYTES, W1BYTES, W2BYTES, OOB, fx, srd, reduce16, cmul, exp_bf16,
                 gather_table, emit_gather_table, descriptor, round_pairs, norm_tok, bcast_stats)

OPT = dict(tlbout=1, kdefer=0, flagmid=0, npre=3, nohk=0, hkpos=0, w2sh=1, stchk=1, p4dma=0, p4ev=6, e1dma=0, plate=0, cearly=0, q4=4, hpriv=1, regc=1, hR=320, c4=1, kgrp=3, tlbg=21, cpf=1, sched=3, qa=7, qb=7, tlb=3, outsc=0, x3oob=1, h4early=1, wb0=3, xnb=1, stamps=False, dbgsel=None, w2pf_a=10, w2pf_b=4, nfl=3, early=True, align=True, hlds=True)

WS_FLAG = 0x4000
WS_EPOCH = 0x9000
WS_AOUT = 0x10000
AST = 8448
WS_H = 0x200000
WS_HH = 0x400000
WS_G = 0x600000
WS_DBG = 0x800000
WS_XN = 0xA00000
XCS = 4352
XPS = 2 * XCS
WS_USED = 0x1000000

L_RED0, L_RED1, L_SIG, L_KT = 0, 256, 512, 640
KTCH = 1600
L_U = L_KT + 2 * KTCH
UCH = 4608
L_SCR = L_U + 2 * UCH
SROW = 272
YROW = 41
SCRW = 57 * SROW
L_KC = 82688
KCOPY = 4160
KCH = 8 * KCOPY
L_CP = L_KC
LDS_BYTES = 160 * 1024
L_WA, L_WB = 13056, 78592
L_WC = 123904
L_PART = 1024
PROW = 272
PARTW = 64 * PROW
L_HT = 1024

S_WS, S_X = 4, 8
S_T0, S_T1, S_T2, S_T3 = 12, 16, 20, 24
S_W1, S_W2 = 12, 16
S_W, S_XCD, S_LOC, S_B, S_P, S_J, S_I1, S_I2 = 28, 29, 30, 31, 32, 33, 34, 35
P_X, P_LAR, P_AI, P_CR, P_CI, P_LDT, P_DSK = 36, 38, 40, 42, 44, 46, 48
P_W1, P_B1, P_W2, P_B2, P_OUT, P_DBG, P_WS = 52, 54, 56, 58, 60, 62, 64
S_SA, S_SB = 50, 51
S_RW1, S_RX1, S_RW2, S_RX2 = 38, 39, 40, 41
S_QPF = 42
S_EARLY = 43
S_SC = 44
V_TC = 236
S_TAG, S_SPIN, S_RETRY = 96, 97, 98
V_D1, V_D2, V_TA, V_TB = 224, 228, 244, 248
V_QPF = 232
SPIN_MAX, RETRY_MAX = 4000, 20
AS = ['A0', 'A1', 'A2', 'A3']
BS = ['B0', 'B1', 'B2', 'B3', 'B4']
WSR = f's[{S_WS}:{S_WS+3}]'

assert (gen.S_W, gen.S_B, gen.S_WS) == (S_W, S_B, S_WS)


def stamp(a, idx):
    if not OPT['stamps']:
        return
    sel = OPT['dbgsel']
    if sel is not None:
        if idx not in sel:
            return
        idx = sel.index(idx)
    a.e('s_memrealtime s[100:101]')
    a.e('s_waitcnt lgkmcnt(0)')
    a.e(f'v_writelane_b32 v255, s100, {idx}')


def stamp_clk(a, idx):
    if not OPT['stamps'] or OPT['dbgsel'] is not None:
        return
    a.e('s_memtime s[100:101]')
    a.e('s_waitcnt lgkmcnt(0)')
    a.e(f'v_writelane_b32 v255, s100, {idx}')


def stamp_flush(a):
    if not OPT['stamps']:
        return
    l = a.lab('nost')
    a.e(f's_cmp_lg_u32 s{S_W}, 0')
    a.e(f's_cbranch_scc1 {l}')
    if OPT['dbgsel'] is not None:
        a.e('v_not_b32 v253, v255')
        a.e('v_cmp_eq_u32 vcc, 0, v1')
        a.e('v_cndmask_b32 v255, v255, v253, vcc')
        a.e('v_lshlrev_b32 v254, 2, v1')
        a.e('s_mov_b64 exec, 0xffff')
        a.e(f'global_atomic_umax v254, v255, s[{P_DBG}:{P_DBG+1}]')
        a.e('s_mov_b64 exec, -1')
    else:
        a.e('s_lshl_b32 s66, s2, 8')
        a.e(f's_add_u32 s66, s66, {WS_DBG}')
        a.e('v_lshl_add_u32 v254, v1, 2, s66')
        a.e(f'buffer_store_dword v255, v254, {WSR}, 0 offen')
    a.e(f'{l}:')


def spin_tail(a, lp):
    a.e(f's_add_u32 s{S_SPIN}, s{S_SPIN}, 1')
    a.e(f's_cmp_lt_u32 s{S_SPIN}, {SPIN_MAX}')
    a.e(f's_cbranch_scc1 {lp}')


def mask_lanes(a, v, n, tmp, src='v1'):
    a.e(f'v_mov_b32 v{tmp}, {OOB}')
    a.e(f'v_cmp_gt_u32 vcc, {n}, {src}')
    a.e(f'v_cndmask_b32 v{v}, v{tmp}, v{v}, vcc')


def prologue(a, lend):
    a.e('s_cmp_ge_u32 s2, 256')
    a.e(f's_cbranch_scc1 {lend}')
    if OPT['stamps']:
        a.e('v_mov_b32 v255, 0')
        stamp(a, 0)
        stamp_clk(a, 60)
    a.e('s_load_dwordx16 s[36:51], s[0:1], 0')
    a.e('s_load_dwordx8 s[52:59], s[0:1], 64')
    a.e('s_load_dwordx4 s[60:63], s[0:1], 96')
    a.e('s_load_dwordx2 s[64:65], s[0:1], 112')
    a.e('v_and_b32 v1, 63, v0')
    a.e('v_lshrrev_b32 v2, 6, v0')
    a.e(f's_and_b32 s{S_XCD}, s2, 7')
    a.e(f'v_readfirstlane_b32 s{S_W}, v2')
    a.e(f's_lshr_b32 s{S_LOC}, s2, 3')
    a.e(f's_lshl_b32 s{S_B}, s{S_XCD}, 5')
    a.e(f's_add_u32 s{S_B}, s{S_B}, s{S_LOC}')
    a.e(f's_mul_i32 s{S_P}, s{S_XCD}, 28')
    a.e(f's_add_u32 s{S_P}, s{S_P}, s{S_LOC}')
    a.e(f's_and_b32 s{S_J}, s{S_XCD}, 1')
    a.e(f's_lshl_b32 s{S_J}, s{S_J}, 2')
    a.e(f's_and_b32 s3, s{S_LOC}, 3')
    a.e(f's_add_u32 s{S_J}, s{S_J}, s3')
    a.e(f's_lshr_b32 s3, s{S_XCD}, 1')
    a.e(f's_lshr_b32 s66, s{S_LOC}, 2')
    a.e(f's_mul_i32 s{S_I1}, s3, 7')
    a.e(f's_add_u32 s{S_I1}, s{S_I1}, s66')
    a.e(f's_lshl_b32 s{S_I2}, s3, 3')
    a.e(f's_add_u32 s{S_I2}, s{S_I2}, s66')
    a.e('s_waitcnt lgkmcnt(0)')
    srd(a, S_X, P_X, XBYTES)
    srd(a, S_WS, P_WS, WS_USED)
    stamp(a, 1)


def xrow_addr(a):
    a.e(f's_mul_i32 s66, s{S_W}, 224')
    a.e(f's_mul_i32 s67, s{S_B}, {8*896}')
    a.e('s_add_u32 s66, s66, s67')
    a.e('v_lshl_add_u32 v2, v1, 2, s66')
    mask_lanes(a, 2, 56, 3)
    a.e('v_add_u32 v3, 4480, v2')


def load_xrows(a):
    xrow_addr(a)
    for j in range(8):
        v, o = (2, j * 896) if j < 5 else (3, (j - 5) * 896)
        a.e(f'buffer_load_dword v{8+j}, v{v}, s[{S_X}:{S_X+3}], 0 offen offset:{o}')


def ln_stats(a, X, T, red, vt, mid=None):
    a.e('s_mov_b32 s66, 0x3f803f80')
    for j in range(8):
        a.e(f'v_dot2_f32_bf16 v{T+j}, v{X[j]}, s66, 0')
        a.e(f'v_dot2_f32_bf16 v{T+8+j}, v{X[j]}, v{X[j]}, 0')
    a.e(f'v_lshlrev_b32 v{vt}, 2, v1')
    a.e(f'v_and_b32 v{vt}, 0xf0, v{vt}')
    a.e(f's_lshl_b32 s66, s{S_W}, 2')
    a.e(f'v_add_u32 v{vt}, s66, v{vt}')
    reduce16(a, [T + i for i in range(16)])
    a.inj_pause()
    a.e('s_mov_b32 exec_lo, 0x11111111')
    a.e('s_mov_b32 exec_hi, 0x11111111')
    a.e(f'ds_write_b32 v{vt}, v{T} offset:{red}')
    a.e('s_mov_b64 exec, -1')
    a.inj_resume()
    a.e(f'v_and_b32 v{vt}, 7, v1')
    a.e(f'v_lshlrev_b32 v{vt}, 4, v{vt}')
    a.e('s_waitcnt lgkmcnt(0)')
    a.e('s_barrier')
    a.e(f'ds_read_b128 v[{T}:{T+3}], v{vt} offset:{red}')
    a.e(f'ds_read_b128 v[{T+4}:{T+7}], v{vt} offset:{red+128}')
    n_mid = mid() if mid else 0
    a.e(f's_waitcnt lgkmcnt({1 + n_mid})')
    a.e(f'v_pk_add_f32 v[{T}:{T+1}], v[{T}:{T+1}], v[{T+2}:{T+3}]')
    a.e(f's_waitcnt lgkmcnt({n_mid})')
    a.e(f'v_pk_add_f32 v[{T+4}:{T+5}], v[{T+4}:{T+5}], v[{T+6}:{T+7}]')
    a.e(f'v_add_f32 v{T}, v{T}, v{T+1}')
    a.e(f'v_add_f32 v{T+4}, v{T+4}, v{T+5}')
    a.e(f'v_mul_f32 v{T}, {fx(1.0/448)}, v{T}')
    a.e(f'v_mul_f32 v{T+4}, {fx(1.0/448)}, v{T+4}')
    a.e(f'v_fma_f32 v{T+4}, -v{T}, v{T}, v{T+4}')
    a.e(f'v_max_f32 v{T+4}, 0, v{T+4}')
    a.e(f'v_cvt_pk_bf16_f32 v{T+4}, v{T+4}, v{T+4}')
    a.e(f'v_lshlrev_b32 v{T+4}, 16, v{T+4}')
    a.e(f'v_add_f32 v{T+4}, {fx(1e-5)}, v{T+4}')
    a.e(f'v_cvt_pk_bf16_f32 v{T+4}, v{T+4}, v{T+4}')
    a.e(f'v_lshlrev_b32 v{T+4}, 16, v{T+4}')
    a.e(f'v_sqrt_f32 v{T+4}, v{T+4}')
    a.e(f'v_cvt_pk_bf16_f32 v{T}, v{T}, v{T+4}')


def poison_regs(a):
    for r in range(216, 220):
        a.e(f'v_mov_b32 v{r}, -1')


def clear_hh(a):
    a.e(f's_mul_i32 s66, s{S_B}, 7168')
    a.e(f's_add_u32 s66, s66, {WS_HH}')
    a.e('v_lshl_add_u32 v4, v0, 4, s66')
    a.e('v_add_u32 v5, 4096, v4')
    mask_lanes(a, 5, 192, 6, 'v0')
    a.e(f'buffer_store_dwordx4 v[216:219], v4, {WSR}, 0 offen sc1')
    a.e(f'buffer_store_dwordx4 v[216:219], v5, {WSR}, 0 offen sc1')


def clear_aout(a):
    a.e(f's_mul_i32 s66, s{S_P}, {AST}')
    a.e(f's_add_u32 s66, s66, {WS_AOUT}')
    a.e('v_lshl_add_u32 v4, v0, 4, s66')
    a.e('v_add_u32 v5, 4096, v4')
    a.e(f'buffer_store_dwordx4 v[216:219], v4, {WSR}, 0 offen sc1')
    a.e(f'buffer_store_dwordx4 v[216:219], v5, {WSR}, 0 offen sc1')


def g_store_addr(a, vd):
    a.e(f's_lshl_b32 s66, s{S_I1}, 3')
    a.e(f's_lshl_b32 s70, s{S_W}, 1')
    a.e('s_add_u32 s66, s66, s70')
    a.e('s_mul_i32 s66, s66, 7168')
    a.e(f's_mul_i32 s70, s{S_J}, 896')
    a.e('s_add_u32 s66, s66, s70')
    a.e(f's_add_u32 s66, s66, {WS_G}')
    a.e(f'v_lshl_add_u32 v{vd}, v1, 4, s66')
    mask_lanes(a, vd, 56, 6)


def clear_g(a):
    g_store_addr(a, 4)
    a.e('v_add_u32 v5, 7168, v4')
    a.e(f'buffer_store_dwordx4 v[216:219], v4, {WSR}, 0 offen sc1')
    a.e(f'buffer_store_dwordx4 v[216:219], v5, {WSR}, 0 offen sc1')


def publish_xn(a):
    bcast_stats(a, 16)
    for j in range(8):
        d = 64 + 2 * j
        t = 48 + j
        a.e(f'v_lshlrev_b32 v{d}, 16, v{8+j}')
        a.e(f'v_and_b32 v{d+1}, 0xffff0000, v{8+j}')
        a.e(f'v_pk_add_f32 v[{d}:{d+1}], v[{d}:{d+1}], s[{72+2*j}:{73+2*j}] op_sel:[0,0] op_sel_hi:[1,0] neg_lo:[0,1] neg_hi:[0,1]')
        a.e(f'v_cvt_pk_bf16_f32 v{t}, v{d}, v{d+1}')
        a.e(f'v_lshlrev_b32 v{d}, 16, v{t}')
        a.e(f'v_and_b32 v{d+1}, 0xffff0000, v{t}')
        a.e(f'v_pk_mul_f32 v[{d}:{d+1}], v[{d}:{d+1}], s[{72+2*j}:{73+2*j}] op_sel:[0,1] op_sel_hi:[1,1]')
        a.e(f'v_cvt_pk_bf16_f32 v{t}, v{d}, v{d+1}')
        a.e(f'v_lshlrev_b32 v{d}, 16, v{t}')
        a.e(f'v_and_b32 v{d+1}, 0xffff0000, v{t}')
    for i in range(4):
        a.e(f'v_cvt_pk_f16_f32 v{80+i}, v{64+4*i}, v{66+4*i}')
        a.e(f'v_cvt_pk_f16_f32 v{84+i}, v{65+4*i}, v{67+4*i}')
    if OPT['xnb']:
        a.e(f's_mul_i32 s66, s{S_W}, {56*16}')
        a.e(f's_mul_i32 s67, s{S_B}, 7168')
        a.e('s_add_u32 s66, s66, s67')
        a.e(f's_add_u32 s66, s66, {WS_XN}')
        a.e('v_lshl_add_u32 v4, v1, 4, s66')
        mask_lanes(a, 4, 56, 5)
        a.e('v_add_u32 v5, 3584, v4')
    else:
        a.e(f's_mul_i32 s66, s{S_W}, {56*XPS}')
        a.e(f's_lshl_b32 s67, s{S_B}, 4')
        a.e('s_add_u32 s66, s66, s67')
        a.e(f's_add_u32 s66, s66, {WS_XN}')
        a.e(f'v_mul_u32_u24 v4, {XPS}, v1')
        a.e('v_add_u32 v4, s66, v4')
        mask_lanes(a, 4, 56, 5)
        a.e(f'v_add_u32 v5, {XCS}, v4')
    a.e(f'buffer_store_dwordx4 v[80:83], v4, {WSR}, 0 offen sc1')
    a.e(f'buffer_store_dwordx4 v[84:87], v5, {WSR}, 0 offen sc1')


def publish_flag(a, vm=0):
    a.e(f's_waitcnt vmcnt({vm})')
    a.e('s_barrier')
    l = a.lab('noflag')
    a.e(f's_cmp_lg_u32 s{S_W}, 0')
    a.e(f's_cbranch_scc1 {l}')
    a.e(f's_lshl_b32 s66, s{S_B}, 6')
    a.e(f's_add_u32 s66, s66, {WS_FLAG}')
    a.e('v_mov_b32 v2, s66')
    a.e(f'v_mov_b32 v3, s{S_TAG}')
    a.e('s_mov_b64 exec, 1')
    a.e(f'buffer_store_dword v3, v2, {WSR}, 0 offen sc1')
    a.e('s_mov_b64 exec, -1')
    a.e(f'{l}:')


V_FA, V_FV = 233, 234


def flag_addr(a):
    a.e(f'v_lshlrev_b32 v{V_FA}, 6, v0')
    a.e(f'v_add_u32 v{V_FA}, {WS_FLAG}, v{V_FA}')


def flag_load(a):
    a.e(f'buffer_load_dword v{V_FV}, v{V_FA}, {WSR}, 0 offen sc1')


def flag_poll(a):
    lp, ld = a.lab('fpoll'), a.lab('fdone')
    a.e(f's_mov_b32 s{S_SPIN}, 0')
    a.e(f'{lp}:')
    flag_load(a)
    a.e('s_waitcnt vmcnt(0)')
    a.e(f'v_cmp_ne_u32 vcc, s{S_TAG}, v{V_FV}')
    a.e(f's_cbranch_vccz {ld}')
    spin_tail(a, lp)
    a.e(f'{ld}:')


def load_u(a):
    if OPT['xnb']:
        a.e(f's_lshl_b32 s66, s{S_P}, 4')
        a.e(f's_add_u32 s66, s66, {WS_XN}')
        a.e('v_mul_u32_u24 v2, 7168, v0')
        a.e('v_add_u32 v2, s66, v2')
        a.e('v_add_u32 v3, 3584, v2')
    else:
        a.e(f's_mul_i32 s66, s{S_P}, {XPS}')
        a.e(f's_add_u32 s66, s66, {WS_XN}')
        a.e('v_lshl_add_u32 v2, v0, 4, s66')
        a.e(f'v_add_u32 v3, {XCS}, v2')
    a.e(f'buffer_load_dwordx4 v[176:179], v2, {WSR}, 0 offen sc1')
    a.e(f'buffer_load_dwordx4 v[180:183], v3, {WSR}, 0 offen sc1')


def epoch_update(a):
    le = a.lab('noep')
    a.e('s_cmp_lg_u32 s2, 0')
    a.e(f's_cbranch_scc1 {le}')
    a.e(f'v_mov_b32 v2, {WS_EPOCH}')
    a.e(f'v_mov_b32 v3, s{S_TAG}')
    a.e('s_mov_b64 exec, 1')
    a.e(f'buffer_store_dword v3, v2, {WSR}, 0 offen sc1')
    a.e('s_mov_b64 exec, -1')
    a.e(f'{le}:')


def code_prefetch(a, lstart, lend_):
    lp = a.lab('pcp')
    a.e('s_getpc_b64 s[74:75]')
    a.e(f'{lp}:')
    a.e(f's_sub_u32 s74, s74, {lp}-{lstart}')
    a.e('s_subb_u32 s75, s75, 0')
    a.e('v_lshlrev_b32 v4, 6, v0')
    a.e(f's_mov_b32 s76, {lend_}-{lstart}-4')
    a.e('v_add_u32 v5, 16384, v4')
    a.e('v_add_u32 v6, 32768, v4')
    a.e('v_min_u32 v4, s76, v4')
    a.e('v_min_u32 v5, s76, v5')
    a.e('v_min_u32 v6, s76, v6')
    a.e('global_load_dword v220, v4, s[74:75]')
    a.e('global_load_dword v220, v5, s[74:75]')
    a.e('global_load_dword v220, v6, s[74:75]')


def code_prefetch1(a, lstart, lend_):
    lp = a.lab('pcp')
    a.e('s_getpc_b64 s[74:75]')
    a.e(f'{lp}:')
    a.e('v_lshlrev_b32 v4, 6, v0')
    a.e(f's_mov_b32 s76, {lend_}-{lp}-4')
    a.e('v_min_u32 v4, s76, v4')
    a.e('global_load_dword v220, v4, s[74:75]')


def tlb_touch(a):
    g = OPT['tlbg']
    n = 0
    srd(a, S_T2, P_OUT, XBYTES)
    srd(a, S_T3, P_B2, L * 2)
    if g == 21:
        a.e('v_lshlrev_b32 v4, 21, v1')
        a.e('s_mov_b32 s70, 0x1f8000')
        for s_ in (S_W1, S_W2, S_WS, S_T2, S_T3) if OPT['tlbout'] else (S_W1, S_W2, S_WS, S_T3):
            a.e(f'buffer_load_dword v220, v4, s[{s_}:{s_+3}], {"s70" if s_ == S_WS else 0} offen')
            n += 1
    else:
        a.e(f'v_lshlrev_b32 v4, {g}, v0')
        for s_, nbytes in ((S_W1, W1BYTES), (S_W2, W2BYTES), (S_WS, 0xC00000), (S_T2, XBYTES), (S_T3, 4096)):
            for k in range(-(-nbytes // (256 << g))):
                a.e(f's_mov_b32 s70, {k * (256 << g)}')
                a.e(f'buffer_load_dword v220, v4, s[{s_}:{s_+3}], s70 offen')
                n += 1
    return n


def kgen_loads(a, part=None):
    R = (S_T0, S_T1, S_T2, S_T3) if part is None else (72, 76, 80, 84)
    if part != 'issue':
        for r, p in zip(R, (P_LAR, P_AI, P_CR, P_CI)):
            srd(a, r, p, PBYTES)
        a.e(f's_lshl_b32 s66, s{S_P}, 10')
        a.e(f's_lshl_b32 s67, s{S_W}, 7')
        a.e('s_add_u32 s66, s66, s67')
        a.e('v_lshl_add_u32 v235, v1, 1, s66')
        a.e(f's_lshl_b32 s66, s{S_P}, 2')
        a.e(f's_load_dword s68, s[{P_LDT}:{P_LDT+1}], s66')
        a.e(f's_load_dword s69, s[{P_DSK}:{P_DSK+1}], s66')
    if part != 'setup':
        for c in range(2):
            for k, s in enumerate(R):
                a.e(f'buffer_load_ushort v{40+4*c+k}, v235, s[{s}:{s+3}], 0 offen offset:{512*c}')


def load_gather_table(a, tablabel):
    lp = a.lab('pc')
    a.e('s_getpc_b64 s[70:71]')
    a.e(f'{lp}:')
    a.e(f's_add_u32 s70, s70, {tablabel}-{lp}')
    a.e('s_addc_u32 s71, s71, 0')
    a.e('v_lshlrev_b32 v2, 5, v0')
    a.e('global_load_dwordx4 v[160:163], v2, s[70:71]')
    a.e('global_load_dwordx4 v[164:167], v2, s[70:71] offset:16')


DK0, DK1 = 16, 28


def kgen_channel(a, c, DACC, mid=None, mid_m0=True, after_setup=None, defer=False):
    LAR, AI, CR, CI = 40 + 4 * c, 41 + 4 * c, 42 + 4 * c, 43 + 4 * c
    SIG, DT = 52 + c, 54 + c
    AL, BE = 56, 57
    Z1, Z2, Z4, Z8, Z128, Z256, Z512, Z1024 = 58, 60, 62, 64, 66, 68, 70, 72
    X0, CA, CB, CC, T0, T1 = 74, 76, 78, 80, 82, 84
    CV = [86, 87, 88, 89]
    VW, VR = 90, 91
    t, t2 = 92, 93
    for r in (LAR, AI, CR, CI):
        a.e(f'v_lshlrev_b32 v{r}, 16, v{r}')
    a.e('s_lshl_b32 s66, s68, 16' if c == 0 else 's_and_b32 s66, s68, 0xffff0000')
    a.e(f'v_mov_b32 v{t2}, s66')
    exp_bf16(a, DT, t2, t)
    a.e(f'v_add_f32 v{SIG}, abs(v{CR}), abs(v{CI})')
    exp_bf16(a, AL, LAR, t)
    a.e(f'v_add_f32_dpp v{SIG}, v{SIG}, v{SIG} quad_perm:[1,0,3,2] row_mask:0xf bank_mask:0xf')
    a.e(f'v_mul_f32 v{AL}, v{AL}, v{DT}')
    a.e(f'v_mul_f32 v{BE}, v{AI}, v{DT}')
    a.e(f'v_add_f32_dpp v{SIG}, v{SIG}, v{SIG} quad_perm:[2,3,0,1] row_mask:0xf bank_mask:0xf')
    a.e(f'v_mul_f32 v{AL}, {fx(-1.4426950408889634)}, v{AL}')
    a.e(f'v_mul_f32 v{BE}, {fx(0.15915494309189535)}, v{BE}')
    a.e(f'v_add_f32_dpp v{SIG}, v{SIG}, v{SIG} row_half_mirror row_mask:0xf bank_mask:0xf')
    a.e(f'v_exp_f32 v{T0}, v{AL}')
    a.e(f'v_fract_f32 v{t}, v{BE}')
    a.e(f'v_add_f32_dpp v{SIG}, v{SIG}, v{SIG} row_ror:8 row_mask:0xf bank_mask:0xf')
    a.e(f'v_cos_f32 v{Z1}, v{t}')
    a.e(f'v_sin_f32 v{Z1+1}, v{t}')
    a.e(f'v_mov_b32 v{t2}, v{SIG}')
    a.e(f'v_mul_f32 v{T1}, 0x43000000, v{AL}')
    a.e(f'v_mul_f32 v{t}, 0x43000000, v{BE}')
    a.e(f'v_permlane16_swap_b32 v{SIG}, v{t2}')
    a.e(f'v_pk_mul_f32 v[{Z1}:{Z1+1}], v[{Z1}:{Z1+1}], v[{T0}:{T0+1}] op_sel:[0,0] op_sel_hi:[1,0]')
    a.e(f'v_add_f32 v{SIG}, v{SIG}, v{t2}')
    a.e(f'v_exp_f32 v{T1}, v{T1}')
    a.e(f'v_fract_f32 v{t}, v{t}')
    a.e(f'v_mov_b32 v{t2}, v{SIG}')
    a.e(f'v_cos_f32 v{Z128}, v{t}')
    a.e(f'v_sin_f32 v{Z128+1}, v{t}')
    a.e(f'v_permlane32_swap_b32 v{SIG}, v{t2}')
    cmul(a, Z2, Z1, Z1, Z2)
    a.e(f'v_add_f32 v{SIG}, v{SIG}, v{t2}')
    a.e(f'v_pk_mul_f32 v[{Z128}:{Z128+1}], v[{Z128}:{Z128+1}], v[{T1}:{T1+1}] op_sel:[0,0] op_sel_hi:[1,0]')
    a.e(f'v_add_f32 v{SIG}, {fx(1e-30)}, v{SIG}')
    cmul(a, Z4, Z2, Z2, Z4)
    a.e(f'v_rcp_f32 v{t}, v{SIG}')
    cmul(a, Z256, Z128, Z128, Z256)
    cmul(a, Z8, Z4, Z4, Z8)
    a.e(f'v_mul_f32 v{X0}, v{CR}, v{t}')
    a.e(f'v_mul_f32 v{X0+1}, v{CI}, v{t}')
    cmul(a, Z512, Z256, Z256, Z512)
    a.e(f's_mul_i32 s66, s{S_W}, {SCRW}')
    a.e(f's_add_u32 s66, s66, {L_SCR}')
    a.e('s_mov_b32 m0, s66')
    cmul(a, Z1024, Z512, Z512, Z1024)
    a.e(f'v_and_b32 v{t}, 15, v1')
    a.e(f'v_mul_u32_u24 v{t}, {SROW}, v{t}')
    a.e(f'v_lshrrev_b32 v{t2}, 4, v1')
    a.e(f'v_lshl_add_u32 v{t}, v{t2}, 4, v{t}')
    a.e(f'v_add_u32 v{VR}, s66, v{t}')
    cvi = [0]
    pend = []

    def flush(keep):
        while len(pend) > keep:
            cv, off = pend.pop(0)
            a.e(f'ds_write_addtid_b32 v{cv} offset:{off}')

    G = OPT['kgrp']
    if G > 1:
        CV = list(range(96, 112))
        if OPT['kdefer']:
            CV = list(range(168, 176)) + list(range(184, 192))
    if after_setup is not None:
        after_setup()

    def put(off, r, neg):
        cv = CV[cvi[0] % len(CV)]
        cvi[0] += 1
        a.e(f'v_cvt_pk_f16_f32 v{cv}, v{r}, {"-" if neg else ""}v{r+1}')
        if G > 1:
            pend.append((cv, off))
            if len(pend) >= G + 1:
                flush(1)
        else:
            flush(1)
            pend.append((cv, off))

    def putX(row, r):
        put(row * SROW, r, True)

    def putY(b, r):
        put((YROW + b) * SROW, r, False)

    a.e(f'v_mov_b32 v{VW}, 0x00003c00')
    pend.append((VW, YROW * SROW))
    putY(1, Z8)
    ychain = {'cur': Z8, 'b': 1}
    YA, YB = CC, 94

    def ystep():
        if ychain['b'] >= 15:
            return
        d = YA if ychain['cur'] != YA else YB
        cmul(a, d, ychain['cur'], Z8, d)
        ychain['b'] += 1
        ychain['cur'] = d
        putY(ychain['b'], d)

    putX(0, X0)
    cmul(a, T0, X0, Z128, T0)
    putX(8, T0)
    cur = X0
    for j in range(1, 8):
        d = CA if cur != CA else CB
        cmul(a, d, cur, Z1, d)
        ystep()
        putX(j, d)
        cmul(a, T0, d, Z128, T0)
        putX(8 + j, T0)
        cur = d
    cmul(a, CA, X0, Z256, CA)
    ystep()
    putX(16, CA)
    cmul(a, T0, CA, Z128, T0)
    putX(20, T0)
    cur = CA
    for j in range(1, 4):
        d = CA if cur != CA else CB
        cmul(a, d, cur, Z2, d)
        ystep()
        putX(16 + j, d)
        cmul(a, T0, d, Z128, T0)
        putX(20 + j, T0)
        cur = d
    if mid is not None:
        if mid_m0:
            flush(0)
        mid()
        if mid_m0:
            a.e(f's_mul_i32 s66, s{S_W}, {SCRW}')
            a.e(f's_add_u32 s66, s66, {L_SCR}')
            a.e('s_mov_b32 m0, s66')
    cmul(a, CA, X0, Z512, CA)
    ystep()
    putX(24, CA)
    cmul(a, CB, CA, Z4, CB)
    ystep()
    putX(25, CB)
    pa, pb = CA, CB
    na, nb = T0, T1
    for q in range(1, 4):
        cmul(a, na, pa, Z128, na)
        cmul(a, nb, pb, Z128, nb)
        ystep()
        putX(24 + 2 * q, na)
        putX(25 + 2 * q, nb)
        pa, pb, na, nb = na, nb, pa, pb
    cmul(a, CA, X0, Z1024, CA)
    putX(32, CA)
    cur = CA
    for q in range(1, 9):
        d = CA if cur != CA else CB
        cmul(a, d, cur, Z128, d)
        putX(32 + q, d)
        cur = d
    while ychain['b'] < 15:
        ystep()
    flush(0)
    FA = 96
    for k in range(4):
        a.e(f'ds_read_b128 v[{144+4*k}:{147+4*k}], v{VR} offset:{YROW*SROW+64*k}')
        for T in range(3):
            r = FA + 16 * T + 4 * k
            a.e(f'ds_read_b128 v[{r}:{r+3}], v{VR} offset:{16*T*SROW+64*k}')
    def mfmas(waits=True):
        for k in range(4):
            if waits:
                a.e(f's_waitcnt lgkmcnt({4*(3-k)})')
            elif k == 0:
                a.e('s_waitcnt lgkmcnt(0)')
            for T in range(3):
                r = FA + 16 * T + 4 * k
                cc = '0' if k == 0 else f'v[{DACC+4*T}:{DACC+4*T+3}]'
                a.e(f'v_mfma_f32_16x16x32_f16 v[{DACC+4*T}:{DACC+4*T+3}], v[{r}:{r+3}], v[{144+4*k}:{147+4*k}], {cc}')

    if defer:
        return lambda: mfmas(waits=False)
    mfmas()


def ktab_part1(a):
    a.e(f's_mul_i32 s66, s{S_W}, {SCRW}')
    a.e(f's_add_u32 s66, s66, {L_SCR}')
    a.e('v_lshl_add_u32 v90, v1, 4, s66')
    a.e(f's_lshl_b32 s67, s{S_W}, 2')
    a.e(f's_add_u32 s67, s67, {L_SIG}')
    a.e('v_mov_b32 v91, s67')
    a.e('s_mov_b64 exec, 1')
    a.e('ds_write_b32 v91, v52')
    a.e('ds_write_b32 v91, v53 offset:16')
    a.e('s_mov_b64 exec, -1')
    for c, DK in ((0, DK0), (1, DK1)):
        for T in range(3):
            for h in range(2):
                i = DK + 4 * T + 2 * h
                a.e(f'v_pk_mul_f32 v[{i}:{i+1}], v[{i}:{i+1}], v[52:53] op_sel:[0,{c}] op_sel_hi:[1,{c}]')
            a.e(f'ds_write_b128 v90, v[{DK+4*T}:{DK+4*T+3}] offset:{c*3072+T*1024}')
    a.e('v_mov_b32 v96, 0')
    a.e('v_mov_b32 v97, 0')
    a.e('v_mov_b32 v98, 0')
    a.e('v_mov_b32 v99, 0')
    a.e(f'v_mov_b32 v92, {L_KT + 1536}')
    a.e('ds_write_b32 v92, v96')
    a.e(f'ds_write_b32 v92, v96 offset:{KTCH}')
    a.e('v_lshlrev_b32 v92, 3, v1')
    a.e(f'ds_write_b64 v92, v[96:97] offset:{L_U}')
    a.e(f'ds_write_b64 v92, v[96:97] offset:{L_U + UCH}')
    a.e('s_waitcnt lgkmcnt(0)')
    a.e('s_barrier')


def ktab_part2(a):
    a.e(f'v_mov_b32 v91, {L_SIG}')
    a.e('ds_read_b128 v[44:47], v91')
    a.e('ds_read_b128 v[48:51], v91 offset:16')
    a.e(f's_and_b32 s67, s{S_W}, 1')
    a.e(f's_lshr_b32 s70, s{S_W}, 1')
    a.e('s_mul_i32 s71, s67, 3072')
    a.e('s_lshl_b32 s72, s70, 10')
    a.e('s_add_u32 s72, s72, s71')
    a.e(f's_add_u32 s72, s72, {L_SCR}')
    a.e(f's_add_u32 s71, s71, {L_SCR + 2048}')
    a.e('v_lshl_add_u32 v90, v1, 4, s72')
    a.e('v_lshl_add_u32 v91, v1, 4, s71')
    for wv in range(4):
        a.e(f'ds_read_b128 v[{96+4*wv}:{99+4*wv}], v90 offset:{wv*SCRW}')
    for wv in range(4):
        a.e(f'ds_read_b128 v[{112+4*wv}:{115+4*wv}], v91 offset:{wv*SCRW}')
    a.e('v_mov_b32 v128, 0')
    a.e('v_mov_b32 v129, 0')
    a.e('v_mov_b32 v130, 0')
    a.e('v_mov_b32 v131, 0')
    if OPT['c4']:
        a.e('v_and_b32 v132, 7, v1')
        a.e(f'v_mul_u32_u24 v132, {KCOPY}, v132')
        a.e('v_bfe_u32 v133, v1, 3, 1')
        a.e('v_lshl_add_u32 v132, v133, 4, v132')
    else:
        a.e('v_and_b32 v132, 15, v1')
        a.e(f'v_mul_u32_u24 v132, {KCOPY}, v132')
    a.e(f'v_add_u32 v132, {L_KC}, v132')
    a.e('ds_write_b128 v132, v[128:131] offset:4096')
    a.e('v_lshrrev_b32 v92, 4, v1')
    a.e('v_lshlrev_b32 v92, 7, v92')
    a.e('v_and_b32 v93, 15, v1')
    a.e('v_lshl_add_u32 v92, v93, 1, v92')
    a.e(f's_mul_i32 s71, s67, {KTCH}')
    a.e(f's_add_u32 s71, s71, {L_KT}')
    a.e('v_add_u32 v93, s71, v92')
    a.e('s_lshl_b32 s72, s70, 9')
    a.e('v_add_u32 v92, s72, v93')
    a.e('s_waitcnt lgkmcnt(9)')
    a.e('v_pk_add_f32 v[44:45], v[44:45], v[46:47]')
    a.e('v_pk_add_f32 v[48:49], v[48:49], v[50:51]')
    a.e('v_add_f32 v44, v44, v45')
    a.e('v_add_f32 v45, v48, v49')
    a.e('s_cmp_eq_u32 s67, 0')
    a.e('s_cselect_b64 vcc, -1, 0')
    a.e('v_pk_mul_f32 v[54:55], v[54:55], v[44:45]')
    a.e('v_cndmask_b32 v46, v45, v44, vcc')
    a.e('v_pk_add_f32 v[54:55], v[54:55], v[54:55]')
    a.e('v_rcp_f32 v46, v46')
    for jb, (base, va, off) in enumerate(((96, 92, 0), (112, 93, 1024))):
        a.e(f's_waitcnt lgkmcnt({5 if jb == 0 else 5})')
        for h in range(2):
            a.e(f'v_pk_add_f32 v[{base+2*h}:{base+2*h+1}], v[{base+2*h}:{base+2*h+1}], v[{base+4+2*h}:{base+5+2*h}]')
            a.e(f'v_pk_add_f32 v[{base+8+2*h}:{base+9+2*h}], v[{base+8+2*h}:{base+9+2*h}], v[{base+12+2*h}:{base+13+2*h}]')
        for h in range(2):
            a.e(f'v_pk_add_f32 v[{base+2*h}:{base+2*h+1}], v[{base+2*h}:{base+2*h+1}], v[{base+8+2*h}:{base+9+2*h}]')
        for h in range(2):
            a.e(f'v_pk_mul_f32 v[{base+2*h}:{base+2*h+1}], v[{base+2*h}:{base+2*h+1}], v[46:47] op_sel:[0,0] op_sel_hi:[1,0]')
        a.e(f'v_cvt_pk_f16_f32 v{base+4}, v{base}, v{base+1}')
        a.e(f'v_cvt_pk_f16_f32 v{base+5}, v{base+2}, v{base+3}')
        a.e(f'ds_write_b16 v{va}, v{base+4} offset:{off}')
        a.e(f'ds_write_b16_d16_hi v{va}, v{base+4} offset:{off+32}')
        a.e(f'ds_write_b16 v{va}, v{base+5} offset:{off+64}')
        a.e(f'ds_write_b16_d16_hi v{va}, v{base+5} offset:{off+96}')
    for e in range(11 if OPT['c4'] else 15):
        src = 160 + e // 2
        if e % 2 == 0:
            a.e(f'v_and_b32 v{136+e}, 0xffff, v{src}')
        else:
            a.e(f'v_lshrrev_b32 v{136+e}, 16, v{src}')
    a.e('s_waitcnt lgkmcnt(0)')
    a.e('s_barrier')


def kch():
    return (4 if OPT['c4'] else 8) * KCOPY


def kcopies(a):
    AD = 136
    a.e('v_lshlrev_b32 v111, 4, v0')
    a.e(f'v_add_u32 v111, {L_KC}, v111')
    RR = [96, 112]
    if OPT['c4']:
        for c in range(2):
            for e in range(11):
                a.e(f'ds_read_u16 v{RR[c]+e}, v{AD+e} offset:{L_KT + c*KTCH}')
        for c in range(2):
            R = RR[c]
            Da, Db, Oa, Ob = (56, 60, 64, 68) if c == 0 else (16, 20, 24, 28)
            a.e(f's_waitcnt lgkmcnt({11 if c == 0 else 4})')
            for i in range(4):
                a.e(f'v_lshl_or_b32 v{Da+i}, v{R+2*i+1}, 16, v{R+2*i}')
                a.e(f'v_lshl_or_b32 v{Oa+i}, v{R+2*i+2}, 16, v{R+2*i+1}')
                a.e(f'v_lshl_or_b32 v{Db+i}, v{R+2*i+3}, 16, v{R+2*i+2}')
                a.e(f'v_lshl_or_b32 v{Ob+i}, v{R+2*i+4}, 16, v{R+2*i+3}')
            for s_, r in ((0, Da), (1, Oa), (2, Db), (3, Ob)):
                a.e(f'ds_write_b128 v111, v[{r}:{r+3}] offset:{c*kch() + s_*KCOPY}')
        return
    for c in range(2):
        for e in range(15):
            a.e(f'ds_read_u16 v{RR[c]+e}, v{AD+e} offset:{L_KT + c*KTCH}')
    for c in range(2):
        R = RR[c]
        Da, Db, Oa, Ob = 56 + 0, 64, 72, 80
        if c == 1:
            Da, Db, Oa, Ob = 16, 24, 32, 40
        a.e(f's_waitcnt lgkmcnt({15 if c == 0 else 8})')
        for i in range(6):
            a.e(f'v_lshl_or_b32 v{Da+i}, v{R+2*i+1}, 16, v{R+2*i}')
            a.e(f'v_lshl_or_b32 v{Oa+i}, v{R+2*i+2}, 16, v{R+2*i+1}')
        if c == 1:
            a.e(f'v_add_u32 v110, {KCH}, v111')
        va = 111 if c == 0 else 110
        for s, r in ((0, Da), (1, Oa), (4, Da + 2), (5, Oa + 2)):
            a.e(f'ds_write_b128 v{va}, v[{r}:{r+3}] offset:{s*KCOPY}')
        for i in range(6):
            a.e(f'v_lshl_or_b32 v{Db+i}, v{R+2*i+3}, 16, v{R+2*i+2}')
            a.e(f'v_lshl_or_b32 v{Ob+i}, v{R+2*i+4}, 16, v{R+2*i+3}')
        for s, r in ((2, Db), (3, Ob), (6, Db + 2), (7, Ob + 2)):
            a.e(f'ds_write_b128 v{va}, v[{r}:{r+3}] offset:{s*KCOPY}')


def store_u(a, vm):
    a.e('v_lshlrev_b32 v2, 4, v0')
    a.e(f's_waitcnt vmcnt({vm})')
    a.e(f'ds_write_b128 v2, v[176:179] offset:{L_U + 512}')
    a.e(f'ds_write_b128 v2, v[180:183] offset:{L_U + UCH + 512}')
    a.e('s_waitcnt lgkmcnt(0)')
    a.e('s_barrier')


def phase_conv(a, hooks, pre_vm):
    hooks = list(hooks)
    ACC = 16
    FA = [[64 + 64 * s + 4 * i for i in range(8)] for s in range(2)]
    FB = [[96 + 64 * s + 4 * i for i in range(8)] for s in range(2)]
    VA, VB = 48, 49

    def loads(qq, s):
        out = []
        for i in range(8):
            out.append(f'ds_read_b128 v[{FB[s][i]}:{FB[s][i]+3}], v{VB} offset:{512*i + 64*(3-qq)}')
            if OPT['c4']:
                o = 512 * (7 - i) + 64 * (3 - qq)
                out.append(f'ds_read_b64 v[{FA[s][i]}:{FA[s][i]+1}], v{VA} offset:{o}')
                out.append(f'ds_read_b64 v[{FA[s][i]+2}:{FA[s][i]+3}], v{VA} offset:{o + 8}')
            else:
                out.append(f'ds_read_b128 v[{FA[s][i]}:{FA[s][i]+3}], v{VA} offset:{512*(7-i) + 64*(3-qq)}')
        return out

    for x in loads(0, 0):
        a.e(x)
    for qq in range(4):
        s = qq & 1
        nxt = loads(qq + 1, 1 - s) if qq < 3 else []
        n = 0
        for w in range(8):
            for c in range(w, 8):
                if n == 0:
                    a.e('s_waitcnt lgkmcnt(0)')
                cc = '0' if (qq == 0 and w == 0) else f'v[{ACC+4*c}:{ACC+4*c+3}]'
                a.e(f'v_mfma_f32_16x16x32_f16 v[{ACC+4*c}:{ACC+4*c+3}], v[{FA[s][w]}:{FA[s][w]+3}], v[{FB[s][c-w]}:{FB[s][c-w]+3}], {cc}')
                if nxt and (n % 2 == 1 or (OPT['c4'] and n % 4 == 0)):
                    a.e(nxt.pop(0))
                if hooks and n % 4 == 2:
                    hooks.pop(0)()
                n += 1
        assert not nxt
    assert not hooks
    stamp(a, 11)
    CP, TS = L_CP, 1280
    a.e('v_and_b32 v2, 15, v1')
    a.e('v_lshlrev_b32 v2, 4, v2')
    a.e('v_lshrrev_b32 v3, 4, v1')
    a.e('v_mul_u32_u24 v3, 320, v3')
    a.e('v_add_u32 v2, v2, v3')
    a.e(f's_mul_i32 s70, s{S_W}, {8*TS}')
    a.e(f's_add_u32 s70, s70, {CP}')
    a.e('v_add_u32 v2, s70, v2')
    a.e('s_barrier')
    for c in range(8):
        a.e(f'ds_write_b128 v2, v[{ACC+4*c}:{ACC+4*c+3}] offset:{c*TS}')
    a.e('v_lshrrev_b32 v2, 2, v1')
    a.e('v_lshlrev_b32 v2, 4, v2')
    a.e('v_and_b32 v3, 3, v1')
    a.e('v_mul_u32_u24 v3, 320, v3')
    a.e('v_add_u32 v2, v2, v3')
    a.e(f's_lshl_b32 s70, s{S_W}, 1')
    a.e(f's_mul_i32 s71, s70, {TS}')
    a.e(f's_add_u32 s71, s71, {CP}')
    a.e('v_add_u32 v2, s71, v2')
    a.e('s_lshl_b32 s71, s70, 9')
    a.e(f's_add_u32 s71, s71, {L_U + 512}')
    a.e('v_lshl_add_u32 v3, v1, 3, s71')
    a.e(f's_mul_i32 s71, s{S_P}, {AST}')
    a.e('s_lshl_b32 s72, s70, 10')
    a.e('s_add_u32 s71, s71, s72')
    a.e(f's_add_u32 s71, s71, {WS_AOUT}')
    a.e('v_lshl_add_u32 v4, v1, 4, s71')
    a.e('s_lshl_b32 s72, s69, 16')
    a.e('s_and_b32 s73, s69, 0xffff0000')
    a.e('v_mov_b32 v56, s72')
    a.e('v_mov_b32 v57, s73')
    a.e(f's_waitcnt lgkmcnt(0) vmcnt({pre_vm})')
    a.e('s_barrier')
    for q in range(2):
        P = 64 + 32 * q
        for ch in range(2):
            for hf in range(2):
                r = P + 8 * ch + 4 * hf
                a.e(f'ds_read_b128 v[{r}:{r+3}], v2 offset:{(2*ch+hf)*8*TS + q*TS}')
        for ch in range(2):
            a.e(f'ds_read_b64 v[{P+16+2*ch}:{P+17+2*ch}], v3 offset:{ch*UCH + q*512}')
    for q in range(2):
        P = 64 + 32 * q
        a.e(f's_waitcnt lgkmcnt({6 if q == 0 else 0})')
        for ch in range(2):
            y = P + 8 * ch
            T = 128 + 16 * ch
            u = P + 16 + 2 * ch
            for h in range(2):
                a.e(f'v_pk_add_f32 v[{y+2*h}:{y+2*h+1}], v[{y+2*h}:{y+2*h+1}], v[{y+4+2*h}:{y+5+2*h}]')
            for i in range(4):
                a.e(f'v_fma_mix_f32 v{T+i}, v{u+i//2}, v{56+ch}, 0 op_sel:[{i%2},0,0] op_sel_hi:[1,0,0]')
            for h in range(2):
                a.e(f'v_pk_mul_f32 v[{y+2*h}:{y+2*h+1}], v[{y+2*h}:{y+2*h+1}], v[54:55] op_sel:[0,{ch}] op_sel_hi:[1,{ch}]')
            for h in range(2):
                a.e(f'v_cvt_pk_bf16_f32 v{T+6+h}, v{T+2*h}, v{T+2*h+1}')
                a.e(f'v_cvt_pk_bf16_f32 v{T+4+h}, v{y+2*h}, v{y+2*h+1}')
            for h in range(2):
                a.e(f'v_lshlrev_b32 v{T+2*h}, 16, v{T+6+h}')
                a.e(f'v_and_b32 v{T+2*h+1}, 0xffff0000, v{T+6+h}')
                a.e(f'v_lshlrev_b32 v{y+2*h}, 16, v{T+4+h}')
                a.e(f'v_and_b32 v{y+2*h+1}, 0xffff0000, v{T+4+h}')
            for h in range(2):
                a.e(f'v_pk_add_f32 v[{y+2*h}:{y+2*h+1}], v[{y+2*h}:{y+2*h+1}], v[{T+2*h}:{T+2*h+1}]')
        O = 160 + 4 * q
        for i in range(4):
            a.e(f'v_cvt_pk_bf16_f32 v{O+i}, v{P+i}, v{P+8+i}')
        a.e(f'buffer_store_dwordx4 v[{O}:{O+3}], v4, {WSR}, 0 offen offset:{q*1024} sc1')


def conv_addr(a):
    a.e(f's_lshr_b32 s66, s{S_W}, 1')
    a.e(f's_and_b32 s67, s{S_W}, 1')
    a.e('v_and_b32 v2, 7, v1')
    a.e('v_sub_u32 v2, 7, v2')
    if OPT['c4']:
        a.e('v_lshrrev_b32 v5, 2, v2')
        a.e('v_and_b32 v2, 3, v2')
        a.e(f'v_mul_u32_u24 v2, {KCOPY}, v2')
        a.e('v_lshl_add_u32 v2, v5, 3, v2')
    else:
        a.e(f'v_mul_u32_u24 v2, {KCOPY}, v2')
    a.e('v_lshrrev_b32 v3, 4, v1')
    a.e('v_bfe_u32 v4, v1, 3, 1')
    a.e('v_sub_u32 v4, v3, v4')
    a.e('v_lshl_add_u32 v2, v4, 4, v2')
    a.e(f's_mul_i32 s70, s66, {kch()}')
    a.e('s_lshl_b32 s71, s67, 8')
    a.e('s_sub_u32 s70, s70, s71')
    a.e(f's_add_u32 s70, s70, {L_KC + 16*253 - 512*7 - 64*3}')
    a.e('v_add_u32 v48, s70, v2')
    a.e('v_and_b32 v2, 15, v1')
    a.e('v_lshlrev_b32 v2, 5, v2')
    a.e('v_lshl_add_u32 v2, v3, 4, v2')
    a.e(f's_mul_i32 s70, s66, {UCH}')
    a.e('s_sub_u32 s70, s70, s71')
    a.e(f's_add_u32 s70, s70, {L_U + 480 - 64*3}')
    a.e('v_add_u32 v49, s70, v2')


def phase_p4(a, dmas=()):
    X = list(range(8, 16))
    A = 32
    xrow_addr(a)
    a.e(f's_mul_i32 s66, s{S_W}, {56*AST}')
    a.e(f's_lshl_b32 s67, s{S_B}, 5')
    a.e('s_add_u32 s66, s66, s67')
    a.e(f's_add_u32 s66, s66, {WS_AOUT}')
    a.e(f'v_mul_u32_u24 v4, {AST}, v1')
    a.e('v_add_u32 v4, s66, v4')
    a.e(f'v_mov_b32 v5, {OOB}')
    a.e('v_cndmask_b32 v4, v5, v4, vcc')
    if OPT['hpriv']:
        a.e(f's_mul_i32 s66, s{S_W}, 1792')
        a.e(f's_add_u32 s66, s66, {L_HT}')
        a.e('v_lshl_add_u32 v6, v1, 2, s66')
        a.e('v_lshl_add_u32 v7, v1, 4, s66')
        a.e(f's_mul_i32 s66, s{S_B}, 7168')
        a.e(f's_mul_i32 s67, s{S_W}, 224')
        a.e('s_add_u32 s66, s66, s67')
        a.e(f's_add_u32 s66, s66, {WS_H}')
        for k, vd in ((0, 56), (64, 57)):
            a.e(f'v_add_u32 v58, {k}, v1')
            a.e('v_mul_u32_u24 v59, 4682, v58')
            a.e('v_lshrrev_b32 v59, 16, v59')
            a.e(f'v_mul_u32_u24 v{vd}, {896 - 224}, v59')
            a.e(f'v_lshl_add_u32 v{vd}, v58, 4, v{vd}')
            a.e(f'v_add_u32 v{vd}, s66, v{vd}')
        mask_lanes(a, 57, 48, 58)
    else:
        a.e(f's_mul_i32 s66, s{S_W}, 224')
        a.e(f's_add_u32 s66, s66, {L_HT}')
        a.e('v_lshl_add_u32 v6, v1, 2, s66')
    for j in range(8):
        a.e(f'v_lshlrev_b32 v{64+2*j}, 16, v{X[j]}')
        a.e(f'v_and_b32 v{65+2*j}, 0xffff0000, v{X[j]}')
    lp, ld = a.lab('h2poll'), a.lab('h2done')
    a.e(f's_mov_b32 s{S_SPIN}, 0')
    a.e(f'{lp}:')
    a.e(f'buffer_load_dwordx4 v[{A}:{A+3}], v4, {WSR}, 0 offen sc1')
    a.e(f'buffer_load_dwordx4 v[{A+4}:{A+7}], v4, {WSR}, 0 offen offset:16 sc1')
    a.e('s_waitcnt vmcnt(0)')
    a.e(f'v_max3_u32 v40, v{A}, v{A+1}, v{A+2}')
    a.e(f'v_max3_u32 v41, v{A+3}, v{A+4}, v{A+5}')
    a.e(f'v_max3_u32 v40, v40, v{A+6}, v{A+7}')
    a.e('v_max_u32 v40, v40, v41')
    a.e('v_cmp_eq_u32 vcc, -1, v40')
    a.e(f's_cbranch_vccz {ld}')
    spin_tail(a, lp)
    a.e(f'{ld}:')
    stamp(a, 14)
    H = list(range(48, 56))
    for j in range(8):
        t = 40 + 2 * (j % 4)
        a.e(f'v_lshlrev_b32 v{t}, 16, v{A+j}')
        a.e(f'v_and_b32 v{t+1}, 0xffff0000, v{A+j}')
        a.e(f'v_pk_add_f32 v[{t}:{t+1}], v[{t}:{t+1}], v[{64+2*j}:{65+2*j}]')
        a.e(f'v_cvt_pk_bf16_f32 v{H[j]}, v{t}, v{t+1}')
    a.e('s_mov_b32 exec_hi, 0x00ffffff')
    for j in range(8):
        a.e(f'ds_write_b32 v6, v{H[j]} offset:{j*(224 if OPT["hpriv"] else 896)}')
    a.e('s_mov_b32 exec_hi, -1')
    if OPT['hpriv']:
        a.e('ds_read_b128 v[32:35], v7')
        a.e('ds_read_b128 v[36:39], v7 offset:1024')
        a.e('s_waitcnt lgkmcnt(1)')
        a.e(f'buffer_store_dwordx4 v[32:35], v56, {WSR}, 0 offen sc1')
        a.e('s_waitcnt lgkmcnt(0)')
        a.e(f'buffer_store_dwordx4 v[36:39], v57, {WSR}, 0 offen sc1')
        if dmas:
            a.inject(dmas, OPT['p4ev'])
        ln_stats(a, H, 16, L_RED0, 5)
    else:
        def hstore():
            a.e('v_lshlrev_b32 v7, 4, v0')
            a.e(f'ds_read_b128 v[56:59], v7 offset:{L_HT}')
            a.e(f'ds_read_b128 v[60:63], v7 offset:{L_HT + 4096}')
            return 2

        ln_stats(a, H, 16, L_RED0, 5, mid=hstore)
        a.e(f's_mul_i32 s66, s{S_B}, 7168')
        a.e(f's_add_u32 s66, s66, {WS_H}')
        a.e('v_add_u32 v6, s66, v7')
        a.e('v_add_u32 v7, 4096, v6')
        mask_lanes(a, 7, 192, 4, 'v0')
        a.e('s_waitcnt lgkmcnt(0)')
        a.e(f'buffer_store_dwordx4 v[56:59], v6, {WSR}, 0 offen sc1')
        a.e(f'buffer_store_dwordx4 v[60:63], v7, {WSR}, 0 offen sc1')
    bcast_stats(a, 16)
    a.inj_pause()
    a.e('s_mov_b32 exec_hi, 0x00ffffff')
    for j in range(8):
        t = 40 + 2 * (j % 4)
        norm_tok(a, j, H[j], t)
        a.e(f'v_cvt_pk_bf16_f32 v{H[j]}, v{t}, v{t+1}')
    a.e('s_mov_b32 exec_hi, -1')
    a.inj_resume()
    ln_stats(a, H, 16, L_RED1, 5)
    bcast_stats(a, 16)
    a.e(f's_mul_i32 s66, s{S_B}, 7168')
    a.e(f's_mul_i32 s67, s{S_W}, 1792')
    a.e('s_add_u32 s66, s66, s67')
    a.e(f's_add_u32 s66, s66, {WS_HH}')
    a.e('v_lshl_add_u32 v4, v1, 4, s66')
    a.e('v_add_u32 v5, 448, v4')
    a.e('v_cmp_gt_u32 vcc, 28, v1')
    a.e('v_cndmask_b32 v4, v5, v4, vcc')
    mask_lanes(a, 4, 56, 5)
    for j in range(8):
        norm_tok(a, j, H[j], 64 + 2 * j)
    O0, O1 = 80, 84
    for i in range(4):
        a.e(f'v_cvt_pk_bf16_f32 v{O0+i}, v{64+4*i}, v{66+4*i}')
        a.e(f'v_cvt_pk_bf16_f32 v{O1+i}, v{65+4*i}, v{67+4*i}')
    a.inj_flush()
    a.e(f's_waitcnt vmcnt({len(dmas)})')
    if not OPT['hpriv']:
        a.e('s_barrier')
    a.e(f'buffer_store_dwordx4 v[{O0}:{O0+3}], v4, {WSR}, 0 offen sc1')
    a.e(f'buffer_store_dwordx4 v[{O1}:{O1+3}], v4, {WSR}, 0 offen offset:448 sc1')


def w_setup(a):
    srd(a, S_W1, P_W1, W1BYTES)
    srd(a, S_W2, P_W2, W2BYTES)
    a.e('v_lshrrev_b32 v4, 3, v1')
    a.e('v_bfe_u32 v5, v1, 4, 1')
    a.e('v_lshlrev_b32 v5, 1, v5')
    a.e('v_and_b32 v6, 7, v1')
    a.e('v_xor_b32 v6, v6, v5')
    a.e('v_xor_b32 v7, 4, v6')
    for vd, rowbytes, tile, rows in ((V_D1, F * 2, S_I1, 512), (V_D2, L * 2, S_I2, 448)):
        a.e(f's_mov_b32 s66, {rowbytes}')
        a.e('v_mul_lo_u32 v5, v4, s66')
        a.e(f's_mul_i32 s67, s{S_W}, {rows*rowbytes}')
        a.e(f's_lshl_b32 s66, s{tile}, 7')
        a.e('s_add_u32 s67, s67, s66')
        a.e('v_add_u32 v5, s67, v5')
        for i in range(4):
            a.e(f'v_lshl_add_u32 v{vd+i}, v{6 + (i & 1)}, 4, v5')
            if i:
                a.e(f'v_add_u32 v{vd+i}, {i*(8*rowbytes - 1024)}, v{vd+i}')
    a.e('v_lshlrev_b32 v5, 12, v4')
    a.e('v_and_b32 v6, 7, v1')
    a.e(f'v_lshl_add_u32 v{V_QPF}, v6, 4, v5')
    a.e(f's_and_b32 s66, s{S_LOC}, 3')
    a.e('s_mul_i32 s66, s66, 448')
    if OPT['sched'] == 3:
        a.e(f's_mul_i32 s67, s{S_W}, {(448 - OPT["hR"]) // 4}')
        a.e(f's_add_u32 s67, s67, {OPT["hR"]}')
    else:
        a.e(f's_mul_i32 s67, s{S_W}, 112')
    a.e('s_add_u32 s66, s66, s67')
    a.e('s_lshl_b32 s66, s66, 12')
    a.e(f's_lshl_b32 s67, s{S_I2}, 7')
    a.e(f's_add_u32 s{S_QPF}, s66, s67')
    a.e('v_lshrrev_b32 v4, 4, v1')
    a.e('v_bfe_u32 v5, v1, 2, 2')
    a.e('v_lshl_add_u32 v5, v4, 3, v5')
    a.e('v_lshlrev_b32 v5, 7, v5')
    a.e('v_and_b32 v6, 1, v1')
    a.e('v_lshl_add_u32 v5, v6, 3, v5')
    a.e('v_bfe_u32 v6, v1, 1, 1')
    a.e('v_lshl_add_u32 v5, v6, 4, v5')
    a.e('v_bfe_u32 v6, v1, 3, 1')
    a.e('v_and_b32 v4, 1, v4')
    a.e('v_lshl_add_u32 v6, v4, 1, v6')
    a.e(f's_and_b32 s66, s{S_LOC}, 3')
    a.e(f's_lshr_b32 s67, s{S_LOC}, 2')
    a.e('s_lshl_b32 s67, s67, 1')
    a.e('s_lshl_b32 s70, s66, 2')
    a.e('s_add_u32 s70, s70, s67')
    a.e('s_and_b32 s70, s70, 15')
    a.e(f's_mul_i32 s{S_RW1}, s70, {32*F*2}')
    a.e(f's_mul_i32 s{S_RX1}, s70, {4*7168}')
    a.e('s_mul_i32 s66, s66, 7')
    a.e('s_lshr_b32 s66, s66, 1')
    a.e('s_add_u32 s66, s66, s67')
    for _ in range(2):
        a.e('s_cmp_ge_u32 s66, 14')
        a.e('s_cselect_b32 s67, 14, 0')
        a.e('s_sub_u32 s66, s66, s67')
    a.e(f's_mul_i32 s{S_RW2}, s66, {32*L*2}')
    a.e(f's_mul_i32 s{S_RX2}, s66, {4*7168}')
    a.e(f's_lshl_b32 s{S_SA}, s{S_W}, 14')
    a.e(f's_add_u32 s{S_SA}, s{S_SA}, {L_WA}')
    a.e(f's_mul_i32 s{S_SB}, s{S_W}, 20480')
    a.e(f's_add_u32 s{S_SB}, s{S_SB}, {L_WB}')
    a.e(f's_lshl_b32 s{S_SC}, s{S_W}, 13')
    a.e(f's_add_u32 s{S_SC}, s{S_SC}, {L_WC}')
    for mu in range(4):
        a.e(f'v_xor_b32 v4, {mu}, v6')
        a.e('v_lshl_add_u32 v4, v4, 5, v5')
        a.e(f'v_add_u32 v{V_TA+mu}, s{S_SA}, v4')
        a.e(f'v_add_u32 v{V_TB+mu}, s{S_SB}, v4')
        a.e(f'v_add_u32 v{V_TC+mu}, s{S_SC}, v4')


def rot_off(a, idx, sreg, n, unit):
    a.e(f's_add_u32 s70, s{sreg}, {idx*unit}')
    a.e(f's_cmp_ge_u32 s70, {n*unit}')
    a.e(f's_cselect_b32 s71, {n*unit}, 0')
    a.e('s_sub_u32 s70, s70, s71')


def slot(name):
    return {'A': (S_SA, V_TA), 'B': (S_SB, V_TB), 'C': (S_SC, V_TC)}[name[0]] + (int(name[1]),)


def w_dma1(a, mat, slab, sl, i):
    sb, _, si = slot(sl)
    vd, srd_, rowbytes = (V_D1, S_W1, F * 2) if mat == 1 else (V_D2, S_W2, L * 2)
    if i == 0:
        rot_off(a, slab, S_RW1 if mat == 1 else S_RW2, 16 if mat == 1 else 14, 32 * rowbytes)
        a.e(f's_add_u32 m0, s{sb}, {si*4096}')
    a.e(f'buffer_load_dwordx4 v{vd + i}, s[{srd_}:{srd_+3}], s70 offen offset:{1024*i} lds')


def w_dma(a, mat, slab, sl):
    for i in range(4):
        w_dma1(a, mat, slab, sl, i)


def w_tr(a, slab, sl):
    _, vt, si = slot(sl)
    for mu in range(4):
        r = (slab * 4 + mu) * 4
        a.e(f'ds_read_b64_tr_b16 a[{r}:{r+1}], v{vt+mu} offset:{si*4096}')
        a.e(f'ds_read_b64_tr_b16 a[{r+2}:{r+3}], v{vt+mu} offset:{si*4096 + 512}')


def helper_w2(a, nrows):
    a.e(f's_lshr_b32 s66, s{S_XCD}, 1')
    a.e('s_lshl_b32 s66, s66, 10')
    a.e(f's_sub_u32 s67, s{S_LOC}, 28')
    a.e('s_mul_i32 s67, s67, 448')
    a.e(f's_add_u32 s67, s67, s{S_W}')
    a.e('s_lshl_b32 s67, s67, 12')
    a.e('s_add_u32 s70, s66, s67')
    a.e('v_lshlrev_b32 v4, 4, v1')
    l = a.lab('l2s')
    a.e(f's_mov_b32 s71, {nrows // 16}')
    a.e(f'{l}:')
    for i in range(4):
        a.e(f'buffer_load_dwordx4 v[220:223], v4, s[{S_W2}:{S_W2+3}], s70 offen')
        a.e(f's_add_u32 s70, s70, {4*L*2}')
    a.e('s_waitcnt vmcnt(8)')
    a.e('s_sub_u32 s71, s71, 1')
    a.e('s_cmp_lg_u32 s71, 0')
    a.e(f's_cbranch_scc1 {l}')


def qpf_load(a, n):
    for _ in range(n):
        a.e(f'buffer_load_dwordx4 v[220:223], v{V_QPF}, s[{S_W2}:{S_W2+3}], s{S_QPF} offen')
        a.e(f's_add_u32 s{S_QPF}, s{S_QPF}, {8*L*2}')


ACC = 16
XS = 80
NS = 6
VMAX = 214
V_X0, V_X3 = 208, 209


def gemm_xaddr(a, ws_off, kblocks):
    a.e(f's_mul_i32 s66, s{S_W}, {kblocks*7168}')
    a.e(f's_mul_i32 s67, s{S_J}, 896')
    a.e('s_add_u32 s66, s66, s67')
    a.e(f's_add_u32 s66, s66, {ws_off}')
    a.e('v_lshrrev_b32 v4, 4, v1')
    a.e('v_mul_u32_u24 v4, 7168, v4')
    a.e('v_add_u32 v4, s66, v4')
    a.e('v_and_b32 v5, 15, v1')
    a.e(f'v_lshl_add_u32 v{V_X0}, v5, 4, v4')
    if OPT['x3oob']:
        a.e(f'v_add_u32 v{V_X3}, 768, v{V_X0}')
        a.e(f'v_mov_b32 v4, {OOB}')
        a.e('v_cmp_gt_u32 vcc, 8, v5')
        a.e(f'v_cndmask_b32 v{V_X3}, v4, v{V_X3}, vcc')
    else:
        a.e('v_and_b32 v5, 7, v1')
        a.e('v_lshl_add_u32 v4, v5, 4, v4')
        a.e(f'v_add_u32 v{V_X3}, 768, v4')


def gemm_xloads(a, kappa, gid):
    st = XS + 16 * (kappa % NS)
    out = []
    sreg, n = (S_RX1, 16) if gid == 1 else (S_RX2, 14)
    unit = 4 * 7168
    out.append(f's_add_u32 s70, s{sreg}, {kappa*unit}')
    out.append(f's_cmp_ge_u32 s70, {n*unit}')
    out.append(f's_cselect_b32 s71, {n*unit}, 0')
    out.append('s_sub_u32 s70, s70, s71')
    for nu in range(3):
        out.append(f'buffer_load_dwordx4 v[{st+4*nu}:{st+4*nu+3}], v{V_X0}, {WSR}, s70 offen offset:{256*nu} sc1')
    out.append(f'buffer_load_dwordx4 v[{st+12}:{st+15}], v{V_X3}, {WSR}, s70 offen sc1')
    return out


def gemm_main(a, nk, gid, tail_hook=None):
    nfl = OPT['nfl']
    w_is_a = gid == 1
    a.e(f'v_mov_b32 v{VMAX}, 0')
    extra = 0
    for k in range(nk):
        st = XS + 16 * (k % NS)
        rem = min(nfl - 1, nk - 1 - k)
        a.e(f's_waitcnt vmcnt({4*rem + extra})')
        if OPT['stamps'] and k in (0, 4, 8, 12):
            stamp(a, (44 if w_is_a else 51) + (0, 4, 8, 12).index(k))
        fill = gemm_xloads(a, k + nfl, gid) if k + nfl < nk else []
        if k + nfl == nk and tail_hook is not None:
            fill = []
            extra = tail_hook(fill)
        mx = [f'v_max3_u32 v{VMAX}, v{VMAX}, v{st+2*i}, v{st+2*i+1}' for i in range(8)]
        n = 0
        for mu in range(4):
            for nu in range(4):
                w = (k * 4 + mu) * 4
                x = st + 4 * nu
                if w_is_a:
                    acc = ACC + (mu * 4 + nu) * 4
                    A, B = f'a[{w}:{w+3}]', f'v[{x}:{x+3}]'
                else:
                    acc = ACC + (nu * 4 + mu) * 4
                    A, B = f'v[{x}:{x+3}]', f'a[{w}:{w+3}]'
                cc = '0' if k == 0 else f'v[{acc}:{acc+3}]'
                a.e(f'v_mfma_f32_16x16x32_bf16 v[{acc}:{acc+3}], {A}, {B}, {cc}')
                for _ in range(2):
                    if fill:
                        a.e(fill.pop(0))
                if not fill and mx and n >= 4:
                    a.e(mx.pop(0))
                n += 1
        assert not fill and not mx


def capture(fn):
    p = Prog()
    fn(p)
    return [it.text for it in p.items]


STUBS = []


def mfma_line(k, mu, nu, gid):
    st = XS + 16 * (k % NS)
    w = (k * 4 + mu) * 4
    x = st + 4 * nu
    if gid == 1:
        acc = ACC + (mu * 4 + nu) * 4
        A, B = f'a[{w}:{w+3}]', f'v[{x}:{x+3}]'
    else:
        acc = ACC + (nu * 4 + mu) * 4
        A, B = f'v[{x}:{x+3}]', f'a[{w}:{w+3}]'
    cc = '0' if k == 0 else f'v[{acc}:{acc+3}]'
    return f'v_mfma_f32_16x16x32_bf16 v[{acc}:{acc+3}], {A}, {B}, {cc}'


def poison_check(k):
    st = XS + 16 * (k % NS)
    out = [f'v_max3_u32 v{VMAX}, v{st}, v{st+1}, v{st+2}']
    for i in range(6):
        out.append(f'v_max3_u32 v{VMAX}, v{VMAX}, v{st+3+2*i}, v{st+4+2*i}')
    out.append(f'v_max_u32 v{VMAX}, v{VMAX}, v{st+15}')
    out.append(f'v_cmp_eq_u32 vcc, -1, v{VMAX}')
    return out


def gemm_checked(a, nk, gid, sb, tail_hook=None, side=None):
    nfl = OPT['nfl']

    def slow(k):
        ls, lb, lp = a.lab('slow'), a.lab('back'), a.lab('sloop')

        def emit():
            a.e(f'{ls}:')
            a.e(f's_mov_b32 s{S_SPIN}, 0')
            a.e(f'{lp}:')
            for x in gemm_xloads(a, k, gid):
                a.e(x)
            a.e('s_waitcnt vmcnt(0)')
            for x in poison_check(k):
                a.e(x)
            ldone = a.lab('sdone')
            a.e(f's_cbranch_vccz {ldone}')
            spin_tail(a, lp)
            a.e(f'{ldone}:')
            if k == 0:
                for kk in range(1, min(nfl, nk - 1) + 1):
                    for x in gemm_xloads(a, kk, gid):
                        a.e(x)
            a.e(f's_branch {lb}')
        STUBS.append(emit)
        return ls, lb

    for k in range(nfl):
        for x in gemm_xloads(a, k, gid):
            a.e(x)
    a.e(f's_waitcnt vmcnt({4*(nfl-1)})')
    for x in gemm_xloads(a, nfl, gid):
        a.e(x)
    for x in poison_check(0):
        a.e(x)
    ls, lb = slow(0)
    a.e(f's_cbranch_vccnz {ls}')
    a.e(f'{lb}:')
    stamp(a, sb)
    extra = 0
    for k in range(nk):
        lines = [mfma_line(k, mu, nu, gid) for mu in range(4) for nu in range(4)]
        for i in range(8):
            a.e(lines[i])
        if k + 1 < nk:
            kn = k + 1
            rem = min(nfl - 1, nk - 1 - kn)
            a.e(f's_waitcnt vmcnt({4*rem + extra})')
            if OPT['stamps'] and kn in (4, 8, 12):
                stamp(a, (44 if gid == 1 else 51) + (0, 4, 8, 12).index(kn))
            fill = gemm_xloads(a, kn + nfl, gid) if kn + nfl < nk else []
            if kn + nfl == nk and tail_hook is not None:
                extra = tail_hook(fill)
            if side is not None:
                lines_, nvm = side(kn)
                fill += lines_
                extra += nvm
            fill += poison_check(kn)
        else:
            fill = []
        per = -(-len(fill) // 8)
        for i in range(8, 16):
            a.e(lines[i])
            for _ in range(per):
                if fill:
                    a.e(fill.pop(0))
        assert not fill
        if k + 1 < nk:
            ls, lb = slow(k + 1)
            a.e(f's_cbranch_vccnz {ls}')
            a.e(f'{lb}:')


def sentinel(a, ws_off, kblocks):
    lp, ld = a.lab('spoll'), a.lab('sdone')
    a.e(f's_mul_i32 s66, s{S_W}, {kblocks*7168}')
    a.e(f's_mul_i32 s67, s{S_J}, 896')
    a.e('s_add_u32 s66, s66, s67')
    a.e(f's_add_u32 s66, s66, {ws_off + 55*16 + 12}')
    a.e('v_mul_u32_u24 v4, 7168, v1')
    a.e('v_add_u32 v4, s66, v4')
    if kblocks < 64:
        mask_lanes(a, 4, kblocks, 5)
    a.e(f's_mov_b32 s{S_SPIN}, 0')
    a.e(f'{lp}:')
    a.e(f'buffer_load_dword v5, v4, {WSR}, 0 offen sc1')
    a.e('s_waitcnt vmcnt(0)')
    a.e('v_cmp_eq_u32 vcc, -1, v5')
    a.e(f's_cbranch_vccz {ld}')
    spin_tail(a, lp)
    a.e(f'{ld}:')


def gemm_poll_main(a, ws_off, kblocks, nk, gid, sb, tail_hook=None, side=None):
    lr, lok = a.lab('gretry'), a.lab('gok')
    gemm_xaddr(a, ws_off, kblocks)
    if OPT['stchk']:
        gemm_checked(a, nk, gid, sb, tail_hook, side)
        return
    a.e(f's_mov_b32 s{S_RETRY}, 0')
    a.e(f'{lr}:')
    sentinel(a, ws_off, kblocks)
    stamp(a, sb)
    for k in range(OPT['nfl']):
        for x in gemm_xloads(a, k, gid):
            a.e(x)
    gemm_main(a, nk, gid, tail_hook)
    a.e(f'v_cmp_eq_u32 vcc, -1, v{VMAX}')
    a.e(f's_cbranch_vccz {lok}')
    a.e(f's_add_u32 s{S_RETRY}, s{S_RETRY}, 1')
    a.e(f's_cmp_lt_u32 s{S_RETRY}, {RETRY_MAX}')
    a.e(f's_cbranch_scc1 {lr}')
    a.e(f'{lok}:')


def write_partials(a):
    a.e('v_and_b32 v4, 15, v1')
    a.e(f'v_mul_u32_u24 v4, {PROW}, v4')
    a.e('v_lshrrev_b32 v5, 4, v1')
    a.e('v_lshl_add_u32 v4, v5, 4, v4')
    a.e(f's_mul_i32 s66, s{S_W}, {PARTW}')
    a.e(f's_add_u32 s66, s66, {L_PART}')
    a.e('v_add_u32 v4, s66, v4')
    a.e('s_barrier')
    for mt in range(4):
        for nt in range(4):
            acc = ACC + (mt * 4 + nt) * 4
            a.e(f'ds_write_b128 v4, v[{acc}:{acc+3}] offset:{nt*16*PROW + mt*64}')


def sum_partials(a, P):
    for h in range(4):
        a.e(f'v_pk_add_f32 v[{P+2*h}:{P+2*h+1}], v[{P+2*h}:{P+2*h+1}], v[{P+8+2*h}:{P+9+2*h}]')
        a.e(f'v_pk_add_f32 v[{P+16+2*h}:{P+17+2*h}], v[{P+16+2*h}:{P+17+2*h}], v[{P+24+2*h}:{P+25+2*h}]')
    for h in range(4):
        a.e(f'v_pk_add_f32 v[{P+2*h}:{P+2*h+1}], v[{P+2*h}:{P+2*h+1}], v[{P+16+2*h}:{P+17+2*h}]')


def b1_load(a):
    a.e(f's_lshl_b32 s67, s{S_I1}, 7')
    a.e(f's_lshl_b32 s70, s{S_W}, 5')
    a.e('s_add_u32 s67, s67, s70')
    a.e(f's_load_dwordx8 s[72:79], s[{P_B1}:{P_B1+1}], s67')


def gemm1_epilogue(a, d0=(), d1=()):
    write_partials(a)
    a.e(f'v_mul_u32_u24 v4, {PROW}, v1')
    a.e(f's_lshl_b32 s66, s{S_W}, 6')
    a.e(f's_add_u32 s66, s66, {L_PART}')
    a.e('v_add_u32 v4, s66, v4')
    g_store_addr(a, 5)
    C1 = 0.044715
    C2 = -2.0 * 0.7978845608028654 * 1.4426950408889634
    a.e(f'v_mov_b32 v100, {fx(C1*C2)}')
    a.e(f'v_mov_b32 v101, {fx(C1*C2)}')
    a.e(f'v_mov_b32 v102, {fx(C2)}')
    a.e(f'v_mov_b32 v103, {fx(C2)}')
    a.e('s_waitcnt lgkmcnt(0)')
    a.e('s_barrier')
    stamp(a, 24)
    for r in range(2):
        P = 16 + 32 * r
        for wv in range(4):
            a.e(f'ds_read_b128 v[{P+8*wv}:{P+8*wv+3}], v4 offset:{wv*PARTW + r*32}')
            a.e(f'ds_read_b128 v[{P+8*wv+4}:{P+8*wv+7}], v4 offset:{wv*PARTW + r*32 + 16}')
    for i in range(8):
        a.e(f's_lshl_b32 s{80+2*i}, s{72+i}, 16')
        a.e(f's_and_b32 s{81+2*i}, s{72+i}, 0xffff0000')
    for r in range(2):
        P = 16 + 32 * r
        T = 80
        a.e(f's_waitcnt lgkmcnt({8 if r == 0 else 0})')
        if r == 1 and d1:
            a.e('s_barrier')
        dd = d0 if r == 0 else d1
        if dd:
            a.inject(dd, max(1, 80 // len(dd)))
        sum_partials(a, P)
        round_pairs(a, P, T, 8)
        for h in range(4):
            a.e(f'v_pk_add_f32 v[{P+2*h}:{P+2*h+1}], v[{P+2*h}:{P+2*h+1}], s[{80+8*r+2*h}:{81+8*r+2*h}]')
        round_pairs(a, P, T, 8)
        for h in range(4):
            a.e(f'v_pk_mul_f32 v[{P+8+2*h}:{P+9+2*h}], v[{P+2*h}:{P+2*h+1}], v[{P+2*h}:{P+2*h+1}]')
        for h in range(4):
            a.e(f'v_pk_fma_f32 v[{P+8+2*h}:{P+9+2*h}], v[{P+8+2*h}:{P+9+2*h}], v[100:101], v[102:103]')
        for h in range(4):
            a.e(f'v_pk_mul_f32 v[{P+8+2*h}:{P+9+2*h}], v[{P+8+2*h}:{P+9+2*h}], v[{P+2*h}:{P+2*h+1}]')
        for i in range(8):
            a.e(f'v_exp_f32 v{P+8+i}, v{P+8+i}')
        for h in range(4):
            a.e(f'v_pk_add_f32 v[{P+8+2*h}:{P+9+2*h}], v[{P+8+2*h}:{P+9+2*h}], 1.0 op_sel_hi:[1,0]')
        for i in range(8):
            a.e(f'v_rcp_f32 v{P+8+i}, v{P+8+i}')
        for h in range(4):
            a.e(f'v_pk_mul_f32 v[{P+2*h}:{P+2*h+1}], v[{P+2*h}:{P+2*h+1}], v[{P+8+2*h}:{P+9+2*h}]')
        O = 88 + 4 * r
        for h in range(4):
            a.e(f'v_cvt_pk_bf16_f32 v{O+h}, v{P+2*h}, v{P+2*h+1}')
        a.inj_flush()
        if r == 1:
            a.e('v_add_u32 v5, 7168, v5')
        a.e(f'buffer_store_dwordx4 v[{O}:{O+3}], v5, {WSR}, 0 offen sc1')


V_OUT, V_HAD, V_B2 = 210, 211, 212
V_HR = 196


def gemm2_addr(a):
    srd(a, S_T2, P_OUT, XBYTES)
    srd(a, S_T3, P_B2, L * 2)
    a.e('v_lshrrev_b32 v4, 3, v1')
    a.e('v_and_b32 v5, 7, v1')
    a.e(f's_lshl_b32 s66, s{S_W}, 4')
    a.e('v_add_u32 v4, s66, v4')
    a.e(f's_lshl_b32 s67, s{S_I2}, 6')
    a.e('v_add_u32 v7, s67, v4')
    a.e(f'v_mul_u32_u24 v{V_OUT}, 896, v7')
    a.e(f'v_lshl_add_u32 v{V_OUT}, v5, 4, v{V_OUT}')
    a.e(f's_mul_i32 s70, s{S_J}, 112')
    a.e(f'v_add_u32 v{V_OUT}, s70, v{V_OUT}')
    a.e(f'v_mov_b32 v6, {OOB}')
    a.e('v_cmp_gt_u32 vcc, 7, v5')
    a.e(f'v_cndmask_b32 v{V_OUT}, v6, v{V_OUT}, vcc')
    a.e(f'v_add_u32 v{V_HAD}, {WS_H}, v{V_OUT}')
    a.e(f'v_lshlrev_b32 v{V_B2}, 1, v7')


def gemm2_tail_loads(fill):
    fill.append(f'buffer_load_dwordx4 v[{V_HR}:{V_HR+3}], v{V_HAD}, {WSR}, 0 offen sc1')
    fill.append(f's_mov_b32 s70, {8*896}')
    fill.append(f'buffer_load_dwordx4 v[{V_HR+4}:{V_HR+7}], v{V_HAD}, {WSR}, s70 offen sc1')
    fill.append(f'buffer_load_ushort v{V_HR+8}, v{V_B2}, s[{S_T3}:{S_T3+3}], 0 offen')
    fill.append(f'buffer_load_ushort v{V_HR+9}, v{V_B2}, s[{S_T3}:{S_T3+3}], 0 offen offset:16')
    return 4


def gemm2_epilogue(a):
    write_partials(a)
    a.e('v_lshrrev_b32 v4, 3, v1')
    a.e('v_and_b32 v5, 7, v1')
    a.e(f's_lshl_b32 s66, s{S_W}, 4')
    a.e('v_add_u32 v4, s66, v4')
    a.e(f'v_mul_u32_u24 v6, {PROW}, v4')
    a.e('v_lshl_add_u32 v6, v5, 4, v6')
    a.e(f'v_add_u32 v6, {L_PART}, v6')
    a.e('s_waitcnt lgkmcnt(0)')
    a.e('s_barrier')
    stamp(a, 33)
    for r in range(2):
        P = 16 + 32 * r
        for wv in range(4):
            a.e(f'ds_read_b128 v[{P+8*wv}:{P+8*wv+3}], v6 offset:{wv*PARTW + r*8*PROW}')
            a.e(f'ds_read_b128 v[{P+8*wv+4}:{P+8*wv+7}], v6 offset:{wv*PARTW + r*8*PROW + 112}')
    a.e('s_waitcnt vmcnt(0)')
    for r in range(2):
        P = 16 + 32 * r
        T = 80
        H = V_HR + 4 * r
        a.e(f'v_lshlrev_b32 v106, 16, v{V_HR+8+r}')
        for i in range(4):
            a.e(f'v_lshlrev_b32 v{96+i}, 16, v{H+i}')
            a.e(f'v_and_b32 v{100+i}, 0xffff0000, v{H+i}')
        a.e(f's_waitcnt lgkmcnt({8 if r == 0 else 0})')
        sum_partials(a, P)
        round_pairs(a, P, T, 8)
        for h in range(4):
            a.e(f'v_pk_add_f32 v[{P+2*h}:{P+2*h+1}], v[{P+2*h}:{P+2*h+1}], v[106:107] op_sel:[0,0] op_sel_hi:[1,0]')
        round_pairs(a, P, T, 8)
        for h in range(4):
            a.e(f'v_pk_add_f32 v[{P+2*h}:{P+2*h+1}], v[{P+2*h}:{P+2*h+1}], v[{96+2*h}:{97+2*h}]')
        O = 88 + 4 * r
        for i in range(4):
            a.e(f'v_cvt_pk_bf16_f32 v{O+i}, v{P+i}, v{P+4+i}')
        if r == 1:
            a.e(f'v_add_u32 v{V_OUT}, {8*896}, v{V_OUT}')
        a.e(f'buffer_store_dwordx4 v[{O}:{O+3}], v{V_OUT}, s[{S_T2}:{S_T2+3}], 0 offen' + ['', ' sc1', ' nt', ' sc0 sc1', ' sc1 nt'][OPT['outsc']])


def build():
    a = Prog()
    name = NAME + '_kernel'
    lend = a.lab('end')
    a.raw(f'.globl {name}')
    a.raw('.p2align 8')
    a.raw(f'.type {name},@function')
    a.raw(f'{name}:')
    prologue(a, lend)
    lnc1, lnc2, lnc3, lnc5, lnc6 = [a.lab('noconv') for _ in range(5)]

    def skip_if_helper(l):
        a.e(f's_cmp_ge_u32 s{S_LOC}, 28')
        a.e(f's_cbranch_scc1 {l}')

    load_xrows(a)
    ncp = 0
    if OPT['cpf'] & 2:
        code_prefetch1(a, name, 'kcode_end')
        ncp = 1
    a.e(f's_add_u32 s66, s{P_WS}, {WS_EPOCH}')
    a.e(f's_addc_u32 s67, s{P_WS+1}, 0')
    a.e('s_load_dword s99, s[66:67], 0')
    poison_regs(a)
    skip_if_helper(lnc1)
    nt = 0
    if not OPT['plate']:
        kgen_loads(a)
        load_gather_table(a, 'ktab_idx')
        w_setup(a)
        if OPT['tlb'] & 2:
            nt = tlb_touch(a)
        flag_addr(a)
        a.e('s_waitcnt lgkmcnt(0)')
        a.e(f's_add_u32 s{S_TAG}, s99, 0x9e3779b9')
        a.e(f's_waitcnt vmcnt({10 + nt + ncp})')
        stamp(a, 2)
        clear_hh(a)
        clear_aout(a)
    else:
        kgen_loads(a, 'setup')
        w_setup(a)
        flag_addr(a)
        a.e(f's_waitcnt vmcnt({ncp})')
        stamp(a, 2)
        kgen_loads(a, 'issue')
        clear_hh(a)
        clear_aout(a)
        load_gather_table(a, 'ktab_idx')
        if OPT['tlb'] & 2:
            nt = tlb_touch(a)
        a.e('s_waitcnt lgkmcnt(0)')
        a.e(f's_add_u32 s{S_TAG}, s99, 0x9e3779b9')
    ln_stats(a, list(range(8, 16)), 16, L_RED0, 5)
    stamp(a, 3)
    publish_xn(a)
    nb0 = OPT['wb0']
    if OPT['sched'] == 2:
        qa, qb = OPT['qa'], OPT['qb']
        qpf_load(a, qa)
        stamp(a, 4)
        a.e(f's_waitcnt vmcnt({8 + nt + qa})')
        kgen_channel(a, 0, DK0)
        for k in range(nb0):
            w_dma(a, 1, k, BS[k])
        stamp(a, 40)
        kgen_channel(a, 1, DK1, mid=lambda: publish_flag(a, qa + 4 * nb0), mid_m0=False)
        stamp(a, 5)
        qpf_load(a, qb)
        a.e(f's_waitcnt vmcnt({qb})')
        for k in range(nb0):
            w_tr(a, k, BS[k])
        ktab_part1(a)
        stamp(a, 6)
        flag_load(a)
        ktab_part2(a)
        stamp(a, 7)
        a.e(f's_mov_b32 s{S_EARLY}, 0')
        lne = a.lab('notearly')
        a.e('s_waitcnt vmcnt(0)')
        a.e(f'v_cmp_ne_u32 vcc, s{S_TAG}, v{V_FV}')
        a.e(f's_cbranch_vccnz {lne}')
        load_u(a)
        a.e(f's_mov_b32 s{S_EARLY}, 1')
        a.e(f'{lne}:')
        conv_addr(a)
        kcopies(a)
        stamp(a, 8)
        lhave = a.lab('haveu')
        a.e(f's_cmp_lg_u32 s{S_EARLY}, 0')
        a.e(f's_cbranch_scc1 {lhave}')
        flag_poll(a)
        load_u(a)
        a.e(f'{lhave}:')
        stamp(a, 9)
        store_u(a, 0)
    elif OPT['sched'] == 3:
        nq = (448 - OPT['hR']) // 32
        ne = 0
        if OPT['cearly']:
            assert OPT['regc']
            for k in range(2):
                w_dma(a, 1, k, f'C{k}')
            q4 = min(OPT['q4'], nq)
            qpf_load(a, q4)
            ne = 8 + q4
            nq -= q4
        stamp(a, 4)
        a.e(f's_waitcnt vmcnt({8 + nt + ne})')
        m0 = kgen_channel(a, 0, DK0, defer=bool(OPT['kdefer']))
        if not OPT['flagmid']:
            publish_flag(a, ne)
        if OPT['regc']:
            nb0 = 2
            if not OPT['cearly']:
                for k in range(2):
                    w_dma(a, 1, k, f'C{k}')
        else:
            for k in range(nb0):
                w_dma(a, 1, k, BS[k])
        if OPT['cearly']:
            qpf_load(a, nq)
            nq = 0
        stamp(a, 40)
        if OPT['flagmid']:
            assert OPT['regc'] and not OPT['cearly']
            kgen_channel(a, 1, DK1, mid=lambda: publish_flag(a, 8), mid_m0=False)
        else:
            kgen_channel(a, 1, DK1, after_setup=m0)
        stamp(a, 5)
        flag_load(a)
        qpf_load(a, nq)
        if not OPT['regc']:
            a.e(f's_waitcnt vmcnt({nq + 1})')
            for k in range(nb0):
                w_tr(a, k, BS[k])
        ktab_part1(a)
        stamp(a, 6)
        a.e(f's_mov_b32 s{S_EARLY}, 0')
        lne = a.lab('notearly')
        a.e(f's_waitcnt vmcnt({nq})')
        a.e(f'v_cmp_ne_u32 vcc, s{S_TAG}, v{V_FV}')
        a.e(f's_cbranch_vccnz {lne}')
        load_u(a)
        a.e(f's_mov_b32 s{S_EARLY}, 1')
        a.e(f'{lne}:')
        ktab_part2(a)
        stamp(a, 7)
        conv_addr(a)
        kcopies(a)
        stamp(a, 8)
        lhave = a.lab('haveu')
        a.e(f's_cmp_lg_u32 s{S_EARLY}, 0')
        a.e(f's_cbranch_scc1 {lhave}')
        flag_poll(a)
        load_u(a)
        a.e(f'{lhave}:')
        stamp(a, 9)
        store_u(a, 0)
    else:
        stamp(a, 4)
        a.e(f's_waitcnt vmcnt({8 + nt})')
        kgen_channel(a, 0, DK0)
        publish_flag(a)
        for k in range(min(nb0, 3)):
            w_dma(a, 1, k, BS[k])
        stamp(a, 40)
        kgen_channel(a, 1, DK1, mid=(lambda: [w_dma(a, 1, k, BS[k]) for k in range(3, nb0)]) if nb0 > 3 else None)
        stamp(a, 5)
        if OPT['early']:
            flag_load(a)
            a.e('s_waitcnt vmcnt(1)')
        else:
            a.e('s_waitcnt vmcnt(0)')
        for k in range(nb0):
            w_tr(a, k, BS[k])
        ktab_part1(a)
        stamp(a, 6)
        a.e(f's_mov_b32 s{S_EARLY}, 0')
        lne = a.lab('notearly')
        if OPT['early']:
            a.e('s_waitcnt vmcnt(0)')
            a.e(f'v_cmp_ne_u32 vcc, s{S_TAG}, v{V_FV}')
            a.e(f's_cbranch_vccnz {lne}')
            load_u(a)
            a.e(f's_mov_b32 s{S_EARLY}, 1')
            a.e(f'{lne}:')
        qpf_load(a, OPT['w2pf_a'])
        ktab_part2(a)
        stamp(a, 7)
        conv_addr(a)
        kcopies(a)
        stamp(a, 8)
        lhave = a.lab('haveu')
        a.e(f's_cmp_lg_u32 s{S_EARLY}, 0')
        a.e(f's_cbranch_scc1 {lhave}')
        flag_poll(a)
        load_u(a)
        a.e('s_waitcnt vmcnt(0)')
        a.e(f'{lhave}:')
        stamp(a, 9)
        store_u(a, OPT['w2pf_a'])
    epoch_update(a)
    clear_g(a)
    if OPT['sched'] == 1:
        qpf_load(a, OPT['w2pf_b'])
    stamp(a, 10)
    hk = []
    for k in range(4):
        for i in range(4):
            hk.append(lambda k=k, i=i: w_dma1(a, 1, nb0 + k, AS[k], i))
            hk.append(lambda: None)
    if OPT['nohk']:
        hk = []
    elif OPT['hkpos'] == 1:
        hk = [h for i, h in enumerate(hk) if i % 2 == 0]
    elif OPT['hkpos'] == 2:
        hk = [lambda: None] * 18 + [h for i, h in enumerate(hk) if i % 2 == 0]
    phase_conv(a, hk, 0)
    stamp(a, 12)
    if OPT['regc']:
        for k in range(2):
            w_tr(a, k, f'C{k}')
    for k in range(4):
        w_tr(a, nb0 + k, AS[k])
    a.e('s_waitcnt lgkmcnt(0)')
    a.e('s_barrier')
    rest = list(range(nb0 + 4, 16))
    last = None
    if len(rest) > 9:
        last = rest.pop()
    rest_slots = (BS + AS)[:len(rest)]
    p4d = []
    if OPT['p4dma']:
        assert OPT['hpriv']
        p4d = [lambda k=k, sl=sl, i=i: w_dma1(a, 1, k, sl, i) for k, sl in zip(rest, rest_slots) for i in range(4)]
    else:
        for k, sl in zip(rest, rest_slots):
            w_dma(a, 1, k, sl)
    stamp(a, 13)
    a.e(f's_branch {lnc2}')
    a.e(f'{lnc1}:')
    nh = 0
    if OPT['cpf'] & 1:
        code_prefetch(a, name, 'kcode_end')
        nh += 3
    w_setup(a)
    if OPT['tlb'] & 1:
        nh += tlb_touch(a)
    flag_addr(a)
    a.e('s_waitcnt lgkmcnt(0)')
    a.e(f's_add_u32 s{S_TAG}, s99, 0x9e3779b9')
    a.e(f's_waitcnt vmcnt({nh + ncp})')
    clear_hh(a)
    ln_stats(a, list(range(8, 16)), 16, L_RED0, 5)
    publish_xn(a)
    publish_flag(a)
    if OPT['sched'] == 3:
        qpf_load(a, (448 - OPT['hR']) // 32)
        helper_w2(a, OPT['hR'])
    else:
        qpf_load(a, 14)
    stamp(a, 41)
    flag_poll(a)
    a.e('s_barrier')
    if p4d:
        a.e(f's_mov_b32 s{S_W1+2}, 0')
    stamp(a, 42)
    a.e(f'{lnc2}:')
    phase_p4(a, p4d)
    stamp(a, 20)
    gemm2_addr(a)
    skip_if_helper(lnc3)
    b1_load(a)
    if p4d:
        a.e('s_waitcnt vmcnt(2)')
    for k, sl in zip(rest, rest_slots):
        w_tr(a, k, sl)
    a.e('s_waitcnt lgkmcnt(0)')
    if last is not None:
        w_dma(a, 1, last, 'A0')
    for k in range(5):
        w_dma(a, 2, k, BS[k])
    if last is not None:
        a.e('s_waitcnt vmcnt(20)')
        w_tr(a, last, 'A0')
        a.e('s_waitcnt lgkmcnt(0)')
    stamp(a, 21)
    w2sh = OPT['w2sh'] and OPT['stchk'] and OPT['h4early']

    def side1(kn):
        if 6 <= kn <= 10:
            return capture(lambda p: w_tr(p, kn - 6, BS[kn - 6])), 0
        if 13 <= kn <= 15:
            pre = ['s_waitcnt lgkmcnt(0)'] if kn == 13 else []
            return pre + capture(lambda p: w_dma(p, 2, kn - 8, BS[kn - 13])), 4
        return [], 0

    gemm_poll_main(a, WS_HH, 64, 16, 1, 22, side=side1 if w2sh else None)
    stamp(a, 23)
    if OPT['h4early']:
        if not w2sh:
            for k in range(5):
                w_tr(a, k, BS[k])
            a.e('s_waitcnt lgkmcnt(0)')
            for k in range(5, 5 + OPT['npre']):
                w_dma(a, 2, k, BS[k - 5])
        if OPT['e1dma']:
            d0 = [lambda k=k, i=i: w_dma1(a, 2, k, BS[k - 5], i) for k in range(8, 10) for i in range(4)]
            d1 = [lambda k=k, i=i: w_dma1(a, 2, k, AS[k - 10], i) for k in range(10, 14) for i in range(4)]
            gemm1_epilogue(a, d0, d1)
            stamp(a, 25)
            w1, w2, w3 = 26, 18, 1
        else:
            gemm1_epilogue(a)
            stamp(a, 25)
            npre = 3 if w2sh else OPT['npre']
            for k in range(5 + npre, 10):
                w_dma(a, 2, k, BS[k - 5])
            a.e('s_barrier')
            for k in range(10, 14):
                w_dma(a, 2, k, AS[k - 10])
            w1, w2, w3 = 24 + (0 if npre < 3 else 0), 16, 0
            w1 = 26 if npre == 3 else 24
        a.e(f's_waitcnt vmcnt({w1})')
        for k in range(5, 8):
            w_tr(a, k, BS[k - 5])
        a.e(f's_waitcnt vmcnt({w2})')
        for k in range(8, 10):
            w_tr(a, k, BS[k - 5])
        a.e(f's_waitcnt vmcnt({w3})')
        for k in range(10, 14):
            w_tr(a, k, AS[k - 10])
        a.e('s_waitcnt lgkmcnt(0)')
        a.e(f's_branch {lnc6}')
    else:
        gemm1_epilogue(a)
        stamp(a, 25)
        for k in range(5):
            w_tr(a, k, BS[k])
        a.e('s_waitcnt lgkmcnt(0)')
        a.e('s_barrier')
        a.e(f's_branch {lnc5}')
    a.e(f'{lnc3}:')
    for k in range(5):
        w_dma(a, 2, k, BS[k])
    a.e('s_waitcnt vmcnt(0)')
    for k in range(5):
        w_tr(a, k, BS[k])
    a.e('s_waitcnt lgkmcnt(0)')
    a.e(f'{lnc5}:')
    for k in range(5, 10):
        w_dma(a, 2, k, BS[k - 5])
    for k in range(10, 14):
        w_dma(a, 2, k, AS[k - 10])
    a.e('s_waitcnt vmcnt(16)')
    for k in range(5, 10):
        w_tr(a, k, BS[k - 5])
    a.e('s_waitcnt vmcnt(0)')
    for k in range(10, 14):
        w_tr(a, k, AS[k - 10])
    a.e('s_waitcnt lgkmcnt(0)')
    a.e(f'{lnc6}:')
    stamp(a, 30)
    gemm_poll_main(a, WS_G, 56, 14, 2, 31, gemm2_tail_loads)
    stamp(a, 32)
    gemm2_epilogue(a)
    stamp_clk(a, 61)
    stamp(a, 63)
    stamp_flush(a)
    a.e(f'{lend}:')
    a.e('s_endpgm')
    for emit in STUBS:
        emit()
    del STUBS[:]
    a.raw('kcode_end:')
    emit_gather_table(a, 'ktab_idx')
    nn = a.fast_insert_nops()
    head = f'; @launch grid=(256,1,1) block=(256,1,1) lds={LDS_BYTES}\n'
    head += '.amdgcn_target "amdgcn-amd-amdhsa--gfx950"\n.text\n'
    tail = '.section .rodata,"a"\n.p2align 6\n' + descriptor(name)
    if OPT['align']:
        nal = a.align8(head, tail)
        sys.stderr.write(f'alignment: {nal}\n')
    sys.stderr.write(f'instructions: {a.count()}, nops inserted: {nn}\n')
    return head + a.text() + tail


if __name__ == '__main__':
    out = sys.argv[1]
    for arg in sys.argv[2:]:
        if arg == 'stamps':
            OPT['stamps'] = True
        elif arg == 'dbg':
            OPT['stamps'] = True
            OPT['dbgsel'] = [0, 1, 2, 4, 8, 9, 12, 13, 14, 20, 21, 23, 25, 30, 32, 63]
        elif '=' in arg:
            k, v = arg.split('=')
            OPT[k] = int(v)
    open(out, 'w').write(build())
```

```python
import sys
import gen
from gen import (Prog, NAME, L, D, F, XBYTES, PBYTES, W1BYTES, W2BYTES, OOB, fx, srd, reduce16, cmul, exp_bf16,
                 gather_table, emit_gather_table, descriptor, round_pairs, norm_tok, bcast_stats)

OPT = dict(slp=0, hn1=11, hsplit=0, hoist=0, cre=0, uov=0, tlbout=0, kdefer=0, flagmid=0, npre=3, nohk=0, hkpos=0, w2sh=1, stchk=1, p4dma=0, p4ev=6, e1dma=0, plate=0, cearly=0, q4=4, hpriv=1, regc=1, hR=320, c4=1, kgrp=3, tlbg=21, cpf=1, sched=3, qa=7, qb=7, tlb=3, outsc=0, x3oob=1, h4early=1, wb0=3, xnb=1, stamps=False, dbgsel=None, w2pf_a=10, w2pf_b=4, nfl=3, early=True, align=True, hlds=True)

WS_FLAG = 0x4000
WS_EPOCH = 0x9000
WS_AOUT = 0x10000
AST = 8448
WS_H = 0x200000
WS_HH = 0x400000
WS_G = 0x600000
WS_DBG = 0x800000
WS_XN = 0xA00000
XCS = 4352
XPS = 2 * XCS
WS_USED = 0x1000000

L_RED0, L_RED1, L_SIG, L_KT = 0, 256, 512, 640
KTCH = 1600
L_U = L_KT + 2 * KTCH
UCH = 4608
L_SCR = L_U + 2 * UCH
SROW = 272
YROW = 41
SCRW = 57 * SROW
L_KC = 82688
KCOPY = 4160
KCH = 8 * KCOPY
L_CP = L_KC
LDS_BYTES = 160 * 1024
L_WA, L_WB = 13056, 78592
L_WC = 123904
L_PART = 1024
PROW = 272
PARTW = 64 * PROW
L_HT = 1024

S_WS, S_X = 4, 8
S_T0, S_T1, S_T2, S_T3 = 12, 16, 20, 24
S_W1, S_W2 = 12, 16
S_W, S_XCD, S_LOC, S_B, S_P, S_J, S_I1, S_I2 = 28, 29, 30, 31, 32, 33, 34, 35
P_X, P_LAR, P_AI, P_CR, P_CI, P_LDT, P_DSK = 36, 38, 40, 42, 44, 46, 48
P_W1, P_B1, P_W2, P_B2, P_OUT, P_DBG, P_WS = 52, 54, 56, 58, 60, 62, 64
S_SA, S_SB = 50, 51
S_RW1, S_RX1, S_RW2, S_RX2 = 38, 39, 40, 41
S_QPF = 42
S_EARLY = 43
S_SC = 44
V_TC = 236
S_TAG, S_SPIN, S_RETRY = 96, 97, 98
V_D1, V_D2, V_TA, V_TB = 224, 228, 244, 248
V_QPF = 232
SPIN_MAX, RETRY_MAX = 4000, 20
AS = ['A0', 'A1', 'A2', 'A3']
BS = ['B0', 'B1', 'B2', 'B3', 'B4']
WSR = f's[{S_WS}:{S_WS+3}]'

assert (gen.S_W, gen.S_B, gen.S_WS) == (S_W, S_B, S_WS)


def stamp(a, idx):
    if not OPT['stamps']:
        return
    sel = OPT['dbgsel']
    if sel is not None:
        if idx not in sel:
            return
        idx = sel.index(idx)
    a.e('s_memrealtime s[100:101]')
    a.e('s_waitcnt lgkmcnt(0)')
    a.e(f'v_writelane_b32 v255, s100, {idx}')


def stamp_clk(a, idx):
    if not OPT['stamps'] or OPT['dbgsel'] is not None:
        return
    a.e('s_memtime s[100:101]')
    a.e('s_waitcnt lgkmcnt(0)')
    a.e(f'v_writelane_b32 v255, s100, {idx}')


def stamp_flush(a):
    if not OPT['stamps']:
        return
    l = a.lab('nost')
    a.e(f's_cmp_lg_u32 s{S_W}, 0')
    a.e(f's_cbranch_scc1 {l}')
    if OPT['dbgsel'] is not None:
        a.e('v_not_b32 v253, v255')
        a.e('v_cmp_eq_u32 vcc, 0, v1')
        a.e('v_cndmask_b32 v255, v255, v253, vcc')
        a.e('v_lshlrev_b32 v254, 2, v1')
        a.e('s_mov_b64 exec, 0xffff')
        a.e(f'global_atomic_umax v254, v255, s[{P_DBG}:{P_DBG+1}]')
        a.e('s_mov_b64 exec, -1')
    else:
        a.e('s_lshl_b32 s66, s2, 8')
        a.e(f's_add_u32 s66, s66, {WS_DBG}')
        a.e('v_lshl_add_u32 v254, v1, 2, s66')
        a.e(f'buffer_store_dword v255, v254, {WSR}, 0 offen')
    a.e(f'{l}:')


def spin_tail(a, lp):
    if OPT['slp']:
        a.e(f's_sleep {OPT["slp"]}')
    a.e(f's_add_u32 s{S_SPIN}, s{S_SPIN}, 1')
    a.e(f's_cmp_lt_u32 s{S_SPIN}, {SPIN_MAX}')
    a.e(f's_cbranch_scc1 {lp}')


def mask_lanes(a, v, n, tmp, src='v1'):
    a.e(f'v_mov_b32 v{tmp}, {OOB}')
    a.e(f'v_cmp_gt_u32 vcc, {n}, {src}')
    a.e(f'v_cndmask_b32 v{v}, v{tmp}, v{v}, vcc')


def prologue(a, lend):
    a.e('s_cmp_ge_u32 s2, 256')
    a.e(f's_cbranch_scc1 {lend}')
    if OPT['stamps']:
        a.e('v_mov_b32 v255, 0')
        stamp(a, 0)
        stamp_clk(a, 60)
    a.e('s_load_dwordx16 s[36:51], s[0:1], 0')
    a.e('s_load_dwordx8 s[52:59], s[0:1], 64')
    a.e('s_load_dwordx4 s[60:63], s[0:1], 96')
    a.e('s_load_dwordx2 s[64:65], s[0:1], 112')
    a.e('v_and_b32 v1, 63, v0')
    a.e('v_lshrrev_b32 v2, 6, v0')
    a.e(f's_and_b32 s{S_XCD}, s2, 7')
    a.e(f'v_readfirstlane_b32 s{S_W}, v2')
    a.e(f's_lshr_b32 s{S_LOC}, s2, 3')
    a.e(f's_lshl_b32 s{S_B}, s{S_XCD}, 5')
    a.e(f's_add_u32 s{S_B}, s{S_B}, s{S_LOC}')
    a.e(f's_mul_i32 s{S_P}, s{S_XCD}, 28')
    a.e(f's_add_u32 s{S_P}, s{S_P}, s{S_LOC}')
    a.e(f's_and_b32 s{S_J}, s{S_XCD}, 1')
    a.e(f's_lshl_b32 s{S_J}, s{S_J}, 2')
    a.e(f's_and_b32 s3, s{S_LOC}, 3')
    a.e(f's_add_u32 s{S_J}, s{S_J}, s3')
    a.e(f's_lshr_b32 s3, s{S_XCD}, 1')
    a.e(f's_lshr_b32 s66, s{S_LOC}, 2')
    a.e(f's_mul_i32 s{S_I1}, s3, 7')
    a.e(f's_add_u32 s{S_I1}, s{S_I1}, s66')
    a.e(f's_lshl_b32 s{S_I2}, s3, 3')
    a.e(f's_add_u32 s{S_I2}, s{S_I2}, s66')
    a.e('s_waitcnt lgkmcnt(0)')
    srd(a, S_X, P_X, XBYTES)
    srd(a, S_WS, P_WS, WS_USED)
    stamp(a, 1)


def xrow_addr(a):
    a.e(f's_mul_i32 s66, s{S_W}, 224')
    a.e(f's_mul_i32 s67, s{S_B}, {8*896}')
    a.e('s_add_u32 s66, s66, s67')
    a.e('v_lshl_add_u32 v2, v1, 2, s66')
    mask_lanes(a, 2, 56, 3)
    a.e('v_add_u32 v3, 4480, v2')


def load_xrows(a):
    xrow_addr(a)
    for j in range(8):
        v, o = (2, j * 896) if j < 5 else (3, (j - 5) * 896)
        a.e(f'buffer_load_dword v{8+j}, v{v}, s[{S_X}:{S_X+3}], 0 offen offset:{o}')


def ln_stats(a, X, T, red, vt, mid=None):
    a.e('s_mov_b32 s66, 0x3f803f80')
    for j in range(8):
        a.e(f'v_dot2_f32_bf16 v{T+j}, v{X[j]}, s66, 0')
        a.e(f'v_dot2_f32_bf16 v{T+8+j}, v{X[j]}, v{X[j]}, 0')
    a.e(f'v_lshlrev_b32 v{vt}, 2, v1')
    a.e(f'v_and_b32 v{vt}, 0xf0, v{vt}')
    a.e(f's_lshl_b32 s66, s{S_W}, 2')
    a.e(f'v_add_u32 v{vt}, s66, v{vt}')
    reduce16(a, [T + i for i in range(16)])
    a.inj_pause()
    a.e('s_mov_b32 exec_lo, 0x11111111')
    a.e('s_mov_b32 exec_hi, 0x11111111')
    a.e(f'ds_write_b32 v{vt}, v{T} offset:{red}')
    a.e('s_mov_b64 exec, -1')
    a.inj_resume()
    a.e(f'v_and_b32 v{vt}, 7, v1')
    a.e(f'v_lshlrev_b32 v{vt}, 4, v{vt}')
    a.e('s_waitcnt lgkmcnt(0)')
    a.e('s_barrier')
    a.e(f'ds_read_b128 v[{T}:{T+3}], v{vt} offset:{red}')
    a.e(f'ds_read_b128 v[{T+4}:{T+7}], v{vt} offset:{red+128}')
    n_mid = mid() if mid else 0
    a.e(f's_waitcnt lgkmcnt({1 + n_mid})')
    a.e(f'v_pk_add_f32 v[{T}:{T+1}], v[{T}:{T+1}], v[{T+2}:{T+3}]')
    a.e(f's_waitcnt lgkmcnt({n_mid})')
    a.e(f'v_pk_add_f32 v[{T+4}:{T+5}], v[{T+4}:{T+5}], v[{T+6}:{T+7}]')
    a.e(f'v_add_f32 v{T}, v{T}, v{T+1}')
    a.e(f'v_add_f32 v{T+4}, v{T+4}, v{T+5}')
    a.e(f'v_mul_f32 v{T}, {fx(1.0/448)}, v{T}')
    a.e(f'v_mul_f32 v{T+4}, {fx(1.0/448)}, v{T+4}')
    a.e(f'v_fma_f32 v{T+4}, -v{T}, v{T}, v{T+4}')
    a.e(f'v_max_f32 v{T+4}, 0, v{T+4}')
    a.e(f'v_cvt_pk_bf16_f32 v{T+4}, v{T+4}, v{T+4}')
    a.e(f'v_lshlrev_b32 v{T+4}, 16, v{T+4}')
    a.e(f'v_add_f32 v{T+4}, {fx(1e-5)}, v{T+4}')
    a.e(f'v_cvt_pk_bf16_f32 v{T+4}, v{T+4}, v{T+4}')
    a.e(f'v_lshlrev_b32 v{T+4}, 16, v{T+4}')
    a.e(f'v_sqrt_f32 v{T+4}, v{T+4}')
    a.e(f'v_cvt_pk_bf16_f32 v{T}, v{T}, v{T+4}')


def poison_regs(a):
    for r in range(216, 220):
        a.e(f'v_mov_b32 v{r}, -1')


def clear_hh(a):
    if OPT['hoist']:
        a.e(f'buffer_store_dwordx4 v[216:219], v184, {WSR}, 0 offen sc1')
        a.e(f'buffer_store_dwordx4 v[216:219], v185, {WSR}, 0 offen sc1')
        return
    a.e(f's_mul_i32 s66, s{S_B}, 7168')
    a.e(f's_add_u32 s66, s66, {WS_HH}')
    a.e('v_lshl_add_u32 v4, v0, 4, s66')
    a.e('v_add_u32 v5, 4096, v4')
    mask_lanes(a, 5, 192, 6, 'v0')
    a.e(f'buffer_store_dwordx4 v[216:219], v4, {WSR}, 0 offen sc1')
    a.e(f'buffer_store_dwordx4 v[216:219], v5, {WSR}, 0 offen sc1')


def clear_aout(a):
    if OPT['hoist']:
        a.e(f'buffer_store_dwordx4 v[216:219], v186, {WSR}, 0 offen sc1')
        a.e(f'buffer_store_dwordx4 v[216:219], v187, {WSR}, 0 offen sc1')
        return
    a.e(f's_mul_i32 s66, s{S_P}, {AST}')
    a.e(f's_add_u32 s66, s66, {WS_AOUT}')
    a.e('v_lshl_add_u32 v4, v0, 4, s66')
    a.e('v_add_u32 v5, 4096, v4')
    a.e(f'buffer_store_dwordx4 v[216:219], v4, {WSR}, 0 offen sc1')
    a.e(f'buffer_store_dwordx4 v[216:219], v5, {WSR}, 0 offen sc1')


def g_store_addr(a, vd):
    a.e(f's_lshl_b32 s66, s{S_I1}, 3')
    a.e(f's_lshl_b32 s70, s{S_W}, 1')
    a.e('s_add_u32 s66, s66, s70')
    a.e('s_mul_i32 s66, s66, 7168')
    a.e(f's_mul_i32 s70, s{S_J}, 896')
    a.e('s_add_u32 s66, s66, s70')
    a.e(f's_add_u32 s66, s66, {WS_G}')
    a.e(f'v_lshl_add_u32 v{vd}, v1, 4, s66')
    mask_lanes(a, vd, 56, 6)


def clear_g(a):
    if OPT['hoist']:
        a.e('v_add_u32 v5, 7168, v240')
        a.e(f'buffer_store_dwordx4 v[216:219], v240, {WSR}, 0 offen sc1')
        a.e(f'buffer_store_dwordx4 v[216:219], v5, {WSR}, 0 offen sc1')
        return
    g_store_addr(a, 4)
    a.e('v_add_u32 v5, 7168, v4')
    a.e(f'buffer_store_dwordx4 v[216:219], v4, {WSR}, 0 offen sc1')
    a.e(f'buffer_store_dwordx4 v[216:219], v5, {WSR}, 0 offen sc1')


def publish_xn(a):
    bcast_stats(a, 16)
    for j in range(8):
        d = 64 + 2 * j
        t = 48 + j
        a.e(f'v_lshlrev_b32 v{d}, 16, v{8+j}')
        a.e(f'v_and_b32 v{d+1}, 0xffff0000, v{8+j}')
        a.e(f'v_pk_add_f32 v[{d}:{d+1}], v[{d}:{d+1}], s[{72+2*j}:{73+2*j}] op_sel:[0,0] op_sel_hi:[1,0] neg_lo:[0,1] neg_hi:[0,1]')
        a.e(f'v_cvt_pk_bf16_f32 v{t}, v{d}, v{d+1}')
        a.e(f'v_lshlrev_b32 v{d}, 16, v{t}')
        a.e(f'v_and_b32 v{d+1}, 0xffff0000, v{t}')
        a.e(f'v_pk_mul_f32 v[{d}:{d+1}], v[{d}:{d+1}], s[{72+2*j}:{73+2*j}] op_sel:[0,1] op_sel_hi:[1,1]')
        a.e(f'v_cvt_pk_bf16_f32 v{t}, v{d}, v{d+1}')
        a.e(f'v_lshlrev_b32 v{d}, 16, v{t}')
        a.e(f'v_and_b32 v{d+1}, 0xffff0000, v{t}')
    for i in range(4):
        a.e(f'v_cvt_pk_f16_f32 v{80+i}, v{64+4*i}, v{66+4*i}')
        a.e(f'v_cvt_pk_f16_f32 v{84+i}, v{65+4*i}, v{67+4*i}')
    if OPT['hoist']:
        assert OPT['xnb']
        a.e(f'buffer_store_dwordx4 v[80:83], v188, {WSR}, 0 offen sc1')
        a.e(f'buffer_store_dwordx4 v[84:87], v189, {WSR}, 0 offen sc1')
        return
    if OPT['xnb']:
        a.e(f's_mul_i32 s66, s{S_W}, {56*16}')
        a.e(f's_mul_i32 s67, s{S_B}, 7168')
        a.e('s_add_u32 s66, s66, s67')
        a.e(f's_add_u32 s66, s66, {WS_XN}')
        a.e('v_lshl_add_u32 v4, v1, 4, s66')
        mask_lanes(a, 4, 56, 5)
        a.e('v_add_u32 v5, 3584, v4')
    else:
        a.e(f's_mul_i32 s66, s{S_W}, {56*XPS}')
        a.e(f's_lshl_b32 s67, s{S_B}, 4')
        a.e('s_add_u32 s66, s66, s67')
        a.e(f's_add_u32 s66, s66, {WS_XN}')
        a.e(f'v_mul_u32_u24 v4, {XPS}, v1')
        a.e('v_add_u32 v4, s66, v4')
        mask_lanes(a, 4, 56, 5)
        a.e(f'v_add_u32 v5, {XCS}, v4')
    a.e(f'buffer_store_dwordx4 v[80:83], v4, {WSR}, 0 offen sc1')
    a.e(f'buffer_store_dwordx4 v[84:87], v5, {WSR}, 0 offen sc1')


def publish_flag(a, vm=0):
    a.e(f's_waitcnt vmcnt({vm})')
    a.e('s_barrier')
    l = a.lab('noflag')
    a.e(f's_cmp_lg_u32 s{S_W}, 0')
    a.e(f's_cbranch_scc1 {l}')
    a.e(f's_lshl_b32 s66, s{S_B}, 6')
    a.e(f's_add_u32 s66, s66, {WS_FLAG}')
    a.e('v_mov_b32 v2, s66')
    a.e(f'v_mov_b32 v3, s{S_TAG}')
    a.e('s_mov_b64 exec, 1')
    a.e(f'buffer_store_dword v3, v2, {WSR}, 0 offen sc1')
    a.e('s_mov_b64 exec, -1')
    a.e(f'{l}:')


V_FA, V_FV = 233, 234


def flag_addr(a):
    a.e(f'v_lshlrev_b32 v{V_FA}, 6, v0')
    a.e(f'v_add_u32 v{V_FA}, {WS_FLAG}, v{V_FA}')


def flag_load(a):
    a.e(f'buffer_load_dword v{V_FV}, v{V_FA}, {WSR}, 0 offen sc1')


def flag_poll(a):
    lp, ld = a.lab('fpoll'), a.lab('fdone')
    a.e(f's_mov_b32 s{S_SPIN}, 0')
    a.e(f'{lp}:')
    flag_load(a)
    a.e('s_waitcnt vmcnt(0)')
    a.e(f'v_cmp_ne_u32 vcc, s{S_TAG}, v{V_FV}')
    a.e(f's_cbranch_vccz {ld}')
    spin_tail(a, lp)
    a.e(f'{ld}:')


def load_u(a):
    if OPT['hoist']:
        a.e(f'buffer_load_dwordx4 v[176:179], v190, {WSR}, 0 offen sc1')
        a.e(f'buffer_load_dwordx4 v[180:183], v191, {WSR}, 0 offen sc1')
        return
    if OPT['xnb']:
        a.e(f's_lshl_b32 s66, s{S_P}, 4')
        a.e(f's_add_u32 s66, s66, {WS_XN}')
        a.e('v_mul_u32_u24 v2, 7168, v0')
        a.e('v_add_u32 v2, s66, v2')
        a.e('v_add_u32 v3, 3584, v2')
    else:
        a.e(f's_mul_i32 s66, s{S_P}, {XPS}')
        a.e(f's_add_u32 s66, s66, {WS_XN}')
        a.e('v_lshl_add_u32 v2, v0, 4, s66')
        a.e(f'v_add_u32 v3, {XCS}, v2')
    a.e(f'buffer_load_dwordx4 v[176:179], v2, {WSR}, 0 offen sc1')
    a.e(f'buffer_load_dwordx4 v[180:183], v3, {WSR}, 0 offen sc1')


def epoch_update(a):
    le = a.lab('noep')
    a.e('s_cmp_lg_u32 s2, 0')
    a.e(f's_cbranch_scc1 {le}')
    a.e(f'v_mov_b32 v2, {WS_EPOCH}')
    a.e(f'v_mov_b32 v3, s{S_TAG}')
    a.e('s_mov_b64 exec, 1')
    a.e(f'buffer_store_dword v3, v2, {WSR}, 0 offen sc1')
    a.e('s_mov_b64 exec, -1')
    a.e(f'{le}:')


def code_prefetch(a, lstart, lend_):
    lp = a.lab('pcp')
    a.e('s_getpc_b64 s[74:75]')
    a.e(f'{lp}:')
    a.e(f's_sub_u32 s74, s74, {lp}-{lstart}')
    a.e('s_subb_u32 s75, s75, 0')
    a.e('v_lshlrev_b32 v4, 6, v0')
    a.e(f's_mov_b32 s76, {lend_}-{lstart}-4')
    a.e('v_add_u32 v5, 16384, v4')
    a.e('v_add_u32 v6, 32768, v4')
    a.e('v_min_u32 v4, s76, v4')
    a.e('v_min_u32 v5, s76, v5')
    a.e('v_min_u32 v6, s76, v6')
    a.e('global_load_dword v220, v4, s[74:75]')
    a.e('global_load_dword v220, v5, s[74:75]')
    a.e('global_load_dword v220, v6, s[74:75]')


def code_prefetch1(a, lstart, lend_):
    lp = a.lab('pcp')
    a.e('s_getpc_b64 s[74:75]')
    a.e(f'{lp}:')
    a.e('v_lshlrev_b32 v4, 6, v0')
    a.e(f's_mov_b32 s76, {lend_}-{lp}-4')
    a.e('v_min_u32 v4, s76, v4')
    a.e('global_load_dword v220, v4, s[74:75]')


def tlb_touch(a):
    g = OPT['tlbg']
    n = 0
    srd(a, S_T2, P_OUT, XBYTES)
    srd(a, S_T3, P_B2, L * 2)
    if g == 21:
        a.e('v_lshlrev_b32 v4, 21, v1')
        a.e('s_mov_b32 s70, 0x1f8000')
        for s_ in (S_W1, S_W2, S_WS, S_T2, S_T3) if OPT['tlbout'] else (S_W1, S_W2, S_WS, S_T3):
            a.e(f'buffer_load_dword v220, v4, s[{s_}:{s_+3}], {"s70" if s_ == S_WS else 0} offen')
            n += 1
    else:
        a.e(f'v_lshlrev_b32 v4, {g}, v0')
        for s_, nbytes in ((S_W1, W1BYTES), (S_W2, W2BYTES), (S_WS, 0xC00000), (S_T2, XBYTES), (S_T3, 4096)):
            for k in range(-(-nbytes // (256 << g))):
                a.e(f's_mov_b32 s70, {k * (256 << g)}')
                a.e(f'buffer_load_dword v220, v4, s[{s_}:{s_+3}], s70 offen')
                n += 1
    return n


def hoist_common(a):
    a.e(f's_mul_i32 s66, s{S_B}, 7168')
    a.e(f's_add_u32 s66, s66, {WS_HH}')
    a.e('v_lshl_add_u32 v184, v0, 4, s66')
    a.e('v_add_u32 v185, 4096, v184')
    mask_lanes(a, 185, 192, 6, 'v0')
    a.e(f's_mul_i32 s66, s{S_W}, {56*16}')
    a.e(f's_mul_i32 s67, s{S_B}, 7168')
    a.e('s_add_u32 s66, s66, s67')
    a.e(f's_add_u32 s66, s66, {WS_XN}')
    a.e('v_lshl_add_u32 v188, v1, 4, s66')
    mask_lanes(a, 188, 56, 5)
    a.e('v_add_u32 v189, 3584, v188')
    a.e('v_and_b32 v4, 15, v1')
    a.e(f'v_mul_u32_u24 v4, {PROW}, v4')
    a.e('v_lshrrev_b32 v5, 4, v1')
    a.e('v_lshl_add_u32 v4, v5, 4, v4')
    a.e(f's_mul_i32 s66, s{S_W}, {PARTW}')
    a.e(f's_add_u32 s66, s66, {L_PART}')
    a.e('v_add_u32 v241, s66, v4')
    a.e(f'v_mul_u32_u24 v5, {PROW}, v1')
    a.e(f's_lshl_b32 s66, s{S_W}, 6')
    a.e(f's_add_u32 s66, s66, {L_PART}')
    a.e('v_add_u32 v242, s66, v5')
    a.e('v_lshrrev_b32 v5, 3, v1')
    a.e('v_and_b32 v4, 7, v1')
    a.e(f's_lshl_b32 s66, s{S_W}, 4')
    a.e('v_add_u32 v5, s66, v5')
    a.e(f'v_mul_u32_u24 v6, {PROW}, v5')
    a.e('v_lshl_add_u32 v6, v4, 4, v6')
    a.e(f'v_add_u32 v243, {L_PART}, v6')
    g_store_addr(a, 240)
    a.e(f's_mul_i32 s67, s{S_B}, 7168')
    a.e(f's_mul_i32 s66, s{S_W}, 1792')
    a.e('s_add_u32 s66, s66, s67')
    a.e(f's_add_u32 s66, s66, {WS_HH}')
    a.e('v_lshl_add_u32 v213, v1, 4, s66')
    a.e('v_add_u32 v5, 448, v213')
    a.e('v_cmp_gt_u32 vcc, 28, v1')
    a.e('v_cndmask_b32 v213, v5, v213, vcc')
    mask_lanes(a, 213, 56, 5)


def hoist_conv(a):
    a.e(f's_mul_i32 s66, s{S_P}, {AST}')
    a.e(f's_add_u32 s66, s66, {WS_AOUT}')
    a.e('v_lshl_add_u32 v186, v0, 4, s66')
    a.e('v_add_u32 v187, 4096, v186')
    a.e(f's_lshl_b32 s66, s{S_P}, 4')
    a.e(f's_add_u32 s66, s66, {WS_XN}')
    a.e('v_mul_u32_u24 v190, 7168, v0')
    a.e('v_add_u32 v190, s66, v190')
    a.e('v_add_u32 v191, 3584, v190')
    conv_addr(a, 192, 193)
    CP, TS = L_CP, 1280
    a.e('v_and_b32 v3, 15, v1')
    a.e('v_lshlrev_b32 v2, 4, v3')
    a.e('v_lshrrev_b32 v3, 4, v1')
    a.e('v_mul_u32_u24 v3, 320, v3')
    a.e('v_add_u32 v2, v2, v3')
    a.e(f's_mul_i32 s70, s{S_W}, {8*TS}')
    a.e(f's_add_u32 s70, s70, {CP}')
    a.e('v_add_u32 v194, s70, v2')
    a.e('v_lshrrev_b32 v3, 2, v1')
    a.e('v_lshlrev_b32 v2, 4, v3')
    a.e('v_and_b32 v3, 3, v1')
    a.e('v_mul_u32_u24 v3, 320, v3')
    a.e('v_add_u32 v2, v2, v3')
    a.e(f's_lshl_b32 s70, s{S_W}, 1')
    a.e(f's_mul_i32 s71, s70, {TS}')
    a.e(f's_add_u32 s71, s71, {CP}')
    a.e('v_add_u32 v195, s71, v2')
    a.e('s_lshl_b32 s71, s70, 9')
    a.e(f's_add_u32 s71, s71, {L_U + 512}')
    a.e('v_lshl_add_u32 v206, v1, 3, s71')
    a.e(f's_mul_i32 s71, s{S_P}, {AST}')
    a.e('s_lshl_b32 s72, s70, 10')
    a.e('s_add_u32 s71, s71, s72')
    a.e(f's_add_u32 s71, s71, {WS_AOUT}')
    a.e('v_lshl_add_u32 v207, v1, 4, s71')


def kgen_loads(a, part=None):
    R = (S_T0, S_T1, S_T2, S_T3) if part is None else (72, 76, 80, 84)
    if part != 'issue':
        for r, p in zip(R, (P_LAR, P_AI, P_CR, P_CI)):
            srd(a, r, p, PBYTES)
        a.e(f's_lshl_b32 s66, s{S_P}, 10')
        a.e(f's_lshl_b32 s67, s{S_W}, 7')
        a.e('s_add_u32 s66, s66, s67')
        a.e('v_lshl_add_u32 v235, v1, 1, s66')
        a.e(f's_lshl_b32 s66, s{S_P}, 2')
        a.e(f's_load_dword s68, s[{P_LDT}:{P_LDT+1}], s66')
        a.e(f's_load_dword s69, s[{P_DSK}:{P_DSK+1}], s66')
    if part != 'setup':
        for c in range(2):
            for k, s in enumerate(R):
                a.e(f'buffer_load_ushort v{40+4*c+k}, v235, s[{s}:{s+3}], 0 offen offset:{512*c}')


def load_gather_table(a, tablabel):
    lp = a.lab('pc')
    a.e('s_getpc_b64 s[70:71]')
    a.e(f'{lp}:')
    a.e(f's_add_u32 s70, s70, {tablabel}-{lp}')
    a.e('s_addc_u32 s71, s71, 0')
    a.e('v_lshlrev_b32 v2, 5, v0')
    a.e('global_load_dwordx4 v[160:163], v2, s[70:71]')
    a.e('global_load_dwordx4 v[164:167], v2, s[70:71] offset:16')


DK0, DK1 = 16, 28


def kgen_channel(a, c, DACC, mid=None, mid_m0=True, after_setup=None, defer=False):
    LAR, AI, CR, CI = 40 + 4 * c, 41 + 4 * c, 42 + 4 * c, 43 + 4 * c
    SIG, DT = 52 + c, 54 + c
    AL, BE = 56, 57
    Z1, Z2, Z4, Z8, Z128, Z256, Z512, Z1024 = 58, 60, 62, 64, 66, 68, 70, 72
    X0, CA, CB, CC, T0, T1 = 74, 76, 78, 80, 82, 84
    CV = [86, 87, 88, 89]
    VW, VR = 90, 91
    t, t2 = 92, 93
    for r in (LAR, AI, CR, CI):
        a.e(f'v_lshlrev_b32 v{r}, 16, v{r}')
    a.e('s_lshl_b32 s66, s68, 16' if c == 0 else 's_and_b32 s66, s68, 0xffff0000')
    a.e(f'v_mov_b32 v{t2}, s66')
    exp_bf16(a, DT, t2, t)
    a.e(f'v_add_f32 v{SIG}, abs(v{CR}), abs(v{CI})')
    exp_bf16(a, AL, LAR, t)
    a.e(f'v_add_f32_dpp v{SIG}, v{SIG}, v{SIG} quad_perm:[1,0,3,2] row_mask:0xf bank_mask:0xf')
    a.e(f'v_mul_f32 v{AL}, v{AL}, v{DT}')
    a.e(f'v_mul_f32 v{BE}, v{AI}, v{DT}')
    a.e(f'v_add_f32_dpp v{SIG}, v{SIG}, v{SIG} quad_perm:[2,3,0,1] row_mask:0xf bank_mask:0xf')
    a.e(f'v_mul_f32 v{AL}, {fx(-1.4426950408889634)}, v{AL}')
    a.e(f'v_mul_f32 v{BE}, {fx(0.15915494309189535)}, v{BE}')
    a.e(f'v_add_f32_dpp v{SIG}, v{SIG}, v{SIG} row_half_mirror row_mask:0xf bank_mask:0xf')
    a.e(f'v_exp_f32 v{T0}, v{AL}')
    a.e(f'v_fract_f32 v{t}, v{BE}')
    a.e(f'v_add_f32_dpp v{SIG}, v{SIG}, v{SIG} row_ror:8 row_mask:0xf bank_mask:0xf')
    a.e(f'v_cos_f32 v{Z1}, v{t}')
    a.e(f'v_sin_f32 v{Z1+1}, v{t}')
    a.e(f'v_mov_b32 v{t2}, v{SIG}')
    a.e(f'v_mul_f32 v{T1}, 0x43000000, v{AL}')
    a.e(f'v_mul_f32 v{t}, 0x43000000, v{BE}')
    a.e(f'v_permlane16_swap_b32 v{SIG}, v{t2}')
    a.e(f'v_pk_mul_f32 v[{Z1}:{Z1+1}], v[{Z1}:{Z1+1}], v[{T0}:{T0+1}] op_sel:[0,0] op_sel_hi:[1,0]')
    a.e(f'v_add_f32 v{SIG}, v{SIG}, v{t2}')
    a.e(f'v_exp_f32 v{T1}, v{T1}')
    a.e(f'v_fract_f32 v{t}, v{t}')
    a.e(f'v_mov_b32 v{t2}, v{SIG}')
    a.e(f'v_cos_f32 v{Z128}, v{t}')
    a.e(f'v_sin_f32 v{Z128+1}, v{t}')
    a.e(f'v_permlane32_swap_b32 v{SIG}, v{t2}')
    cmul(a, Z2, Z1, Z1, Z2)
    a.e(f'v_add_f32 v{SIG}, v{SIG}, v{t2}')
    a.e(f'v_pk_mul_f32 v[{Z128}:{Z128+1}], v[{Z128}:{Z128+1}], v[{T1}:{T1+1}] op_sel:[0,0] op_sel_hi:[1,0]')
    a.e(f'v_add_f32 v{SIG}, {fx(1e-30)}, v{SIG}')
    cmul(a, Z4, Z2, Z2, Z4)
    a.e(f'v_rcp_f32 v{t}, v{SIG}')
    cmul(a, Z256, Z128, Z128, Z256)
    cmul(a, Z8, Z4, Z4, Z8)
    a.e(f'v_mul_f32 v{X0}, v{CR}, v{t}')
    a.e(f'v_mul_f32 v{X0+1}, v{CI}, v{t}')
    cmul(a, Z512, Z256, Z256, Z512)
    a.e(f's_mul_i32 s66, s{S_W}, {SCRW}')
    a.e(f's_add_u32 s66, s66, {L_SCR}')
    a.e('s_mov_b32 m0, s66')
    cmul(a, Z1024, Z512, Z512, Z1024)
    a.e(f'v_and_b32 v{t}, 15, v1')
    a.e(f'v_mul_u32_u24 v{t}, {SROW}, v{t}')
    a.e(f'v_lshrrev_b32 v{t2}, 4, v1')
    a.e(f'v_lshl_add_u32 v{t}, v{t2}, 4, v{t}')
    a.e(f'v_add_u32 v{VR}, s66, v{t}')
    cvi = [0]
    pend = []

    def flush(keep):
        while len(pend) > keep:
            cv, off = pend.pop(0)
            a.e(f'ds_write_addtid_b32 v{cv} offset:{off}')

    G = OPT['kgrp']
    if G > 1:
        CV = list(range(96, 112))
        if OPT['kdefer']:
            CV = list(range(168, 176)) + list(range(184, 192))
    if after_setup is not None:
        after_setup()

    def put(off, r, neg):
        cv = CV[cvi[0] % len(CV)]
        cvi[0] += 1
        a.e(f'v_cvt_pk_f16_f32 v{cv}, v{r}, {"-" if neg else ""}v{r+1}')
        if G > 1:
            pend.append((cv, off))
            if len(pend) >= G + 1:
                flush(1)
        else:
            flush(1)
            pend.append((cv, off))

    def putX(row, r):
        put(row * SROW, r, True)

    def putY(b, r):
        put((YROW + b) * SROW, r, False)

    a.e(f'v_mov_b32 v{VW}, 0x00003c00')
    pend.append((VW, YROW * SROW))
    putY(1, Z8)
    ychain = {'cur': Z8, 'b': 1}
    YA, YB = CC, 94

    def ystep():
        if ychain['b'] >= 15:
            return
        d = YA if ychain['cur'] != YA else YB
        cmul(a, d, ychain['cur'], Z8, d)
        ychain['b'] += 1
        ychain['cur'] = d
        putY(ychain['b'], d)

    putX(0, X0)
    cmul(a, T0, X0, Z128, T0)
    putX(8, T0)
    cur = X0
    for j in range(1, 8):
        d = CA if cur != CA else CB
        cmul(a, d, cur, Z1, d)
        ystep()
        putX(j, d)
        cmul(a, T0, d, Z128, T0)
        putX(8 + j, T0)
        cur = d
    cmul(a, CA, X0, Z256, CA)
    ystep()
    putX(16, CA)
    cmul(a, T0, CA, Z128, T0)
    putX(20, T0)
    cur = CA
    for j in range(1, 4):
        d = CA if cur != CA else CB
        cmul(a, d, cur, Z2, d)
        ystep()
        putX(16 + j, d)
        cmul(a, T0, d, Z128, T0)
        putX(20 + j, T0)
        cur = d
    if mid is not None:
        if mid_m0:
            flush(0)
        mid()
        if mid_m0:
            a.e(f's_mul_i32 s66, s{S_W}, {SCRW}')
            a.e(f's_add_u32 s66, s66, {L_SCR}')
            a.e('s_mov_b32 m0, s66')
    cmul(a, CA, X0, Z512, CA)
    ystep()
    putX(24, CA)
    cmul(a, CB, CA, Z4, CB)
    ystep()
    putX(25, CB)
    pa, pb = CA, CB
    na, nb = T0, T1
    for q in range(1, 4):
        cmul(a, na, pa, Z128, na)
        cmul(a, nb, pb, Z128, nb)
        ystep()
        putX(24 + 2 * q, na)
        putX(25 + 2 * q, nb)
        pa, pb, na, nb = na, nb, pa, pb
    cmul(a, CA, X0, Z1024, CA)
    putX(32, CA)
    cur = CA
    for q in range(1, 9):
        d = CA if cur != CA else CB
        cmul(a, d, cur, Z128, d)
        putX(32 + q, d)
        cur = d
    while ychain['b'] < 15:
        ystep()
    flush(0)
    FA = 96
    for k in range(4):
        a.e(f'ds_read_b128 v[{144+4*k}:{147+4*k}], v{VR} offset:{YROW*SROW+64*k}')
        for T in range(3):
            r = FA + 16 * T + 4 * k
            a.e(f'ds_read_b128 v[{r}:{r+3}], v{VR} offset:{16*T*SROW+64*k}')
    def mfmas(waits=True):
        for k in range(4):
            if waits:
                a.e(f's_waitcnt lgkmcnt({4*(3-k)})')
            elif k == 0:
                a.e('s_waitcnt lgkmcnt(0)')
            for T in range(3):
                r = FA + 16 * T + 4 * k
                cc = '0' if k == 0 else f'v[{DACC+4*T}:{DACC+4*T+3}]'
                a.e(f'v_mfma_f32_16x16x32_f16 v[{DACC+4*T}:{DACC+4*T+3}], v[{r}:{r+3}], v[{144+4*k}:{147+4*k}], {cc}')

    if defer:
        return lambda: mfmas(waits=False)
    mfmas()


def ktab_part1(a):
    a.e(f's_mul_i32 s66, s{S_W}, {SCRW}')
    a.e(f's_add_u32 s66, s66, {L_SCR}')
    a.e('v_lshl_add_u32 v90, v1, 4, s66')
    a.e(f's_lshl_b32 s67, s{S_W}, 2')
    a.e(f's_add_u32 s67, s67, {L_SIG}')
    a.e('v_mov_b32 v91, s67')
    a.e('s_mov_b64 exec, 1')
    a.e('ds_write_b32 v91, v52')
    a.e('ds_write_b32 v91, v53 offset:16')
    a.e('s_mov_b64 exec, -1')
    for c, DK in ((0, DK0), (1, DK1)):
        for T in range(3):
            for h in range(2):
                i = DK + 4 * T + 2 * h
                a.e(f'v_pk_mul_f32 v[{i}:{i+1}], v[{i}:{i+1}], v[52:53] op_sel:[0,{c}] op_sel_hi:[1,{c}]')
            a.e(f'ds_write_b128 v90, v[{DK+4*T}:{DK+4*T+3}] offset:{c*3072+T*1024}')
    a.e('v_mov_b32 v96, 0')
    a.e('v_mov_b32 v97, 0')
    a.e('v_mov_b32 v98, 0')
    a.e('v_mov_b32 v99, 0')
    a.e(f'v_mov_b32 v92, {L_KT + 1536}')
    a.e('ds_write_b32 v92, v96')
    a.e(f'ds_write_b32 v92, v96 offset:{KTCH}')
    a.e('v_lshlrev_b32 v92, 3, v1')
    a.e(f'ds_write_b64 v92, v[96:97] offset:{L_U}')
    a.e(f'ds_write_b64 v92, v[96:97] offset:{L_U + UCH}')
    a.e('s_waitcnt lgkmcnt(0)')
    a.e('s_barrier')


def ktab_part2(a, mid=None):
    a.e(f'v_mov_b32 v91, {L_SIG}')
    a.e('ds_read_b128 v[44:47], v91')
    a.e('ds_read_b128 v[48:51], v91 offset:16')
    a.e(f's_and_b32 s67, s{S_W}, 1')
    a.e(f's_lshr_b32 s70, s{S_W}, 1')
    a.e('s_mul_i32 s71, s67, 3072')
    a.e('s_lshl_b32 s72, s70, 10')
    a.e('s_add_u32 s72, s72, s71')
    a.e(f's_add_u32 s72, s72, {L_SCR}')
    a.e(f's_add_u32 s71, s71, {L_SCR + 2048}')
    a.e('v_lshl_add_u32 v90, v1, 4, s72')
    a.e('v_lshl_add_u32 v91, v1, 4, s71')
    for wv in range(4):
        a.e(f'ds_read_b128 v[{96+4*wv}:{99+4*wv}], v90 offset:{wv*SCRW}')
    for wv in range(4):
        a.e(f'ds_read_b128 v[{112+4*wv}:{115+4*wv}], v91 offset:{wv*SCRW}')
    a.e('v_mov_b32 v128, 0')
    a.e('v_mov_b32 v129, 0')
    a.e('v_mov_b32 v130, 0')
    a.e('v_mov_b32 v131, 0')
    if OPT['c4']:
        a.e('v_and_b32 v132, 7, v1')
        a.e(f'v_mul_u32_u24 v132, {KCOPY}, v132')
        a.e('v_bfe_u32 v133, v1, 3, 1')
        a.e('v_lshl_add_u32 v132, v133, 4, v132')
    else:
        a.e('v_and_b32 v132, 15, v1')
        a.e(f'v_mul_u32_u24 v132, {KCOPY}, v132')
    a.e(f'v_add_u32 v132, {L_KC}, v132')
    a.e('ds_write_b128 v132, v[128:131] offset:4096')
    a.e('v_lshrrev_b32 v92, 4, v1')
    a.e('v_lshlrev_b32 v92, 7, v92')
    a.e('v_and_b32 v93, 15, v1')
    a.e('v_lshl_add_u32 v92, v93, 1, v92')
    a.e(f's_mul_i32 s71, s67, {KTCH}')
    a.e(f's_add_u32 s71, s71, {L_KT}')
    a.e('v_add_u32 v93, s71, v92')
    a.e('s_lshl_b32 s72, s70, 9')
    a.e('v_add_u32 v92, s72, v93')
    if mid is not None:
        mid()
    a.e('s_waitcnt lgkmcnt(9)')
    a.e('v_pk_add_f32 v[44:45], v[44:45], v[46:47]')
    a.e('v_pk_add_f32 v[48:49], v[48:49], v[50:51]')
    a.e('v_add_f32 v44, v44, v45')
    a.e('v_add_f32 v45, v48, v49')
    a.e('s_cmp_eq_u32 s67, 0')
    a.e('s_cselect_b64 vcc, -1, 0')
    a.e('v_pk_mul_f32 v[54:55], v[54:55], v[44:45]')
    a.e('v_cndmask_b32 v46, v45, v44, vcc')
    a.e('v_pk_add_f32 v[54:55], v[54:55], v[54:55]')
    a.e('v_rcp_f32 v46, v46')
    for jb, (base, va, off) in enumerate(((96, 92, 0), (112, 93, 1024))):
        a.e(f's_waitcnt lgkmcnt({5 if jb == 0 else 5})')
        for h in range(2):
            a.e(f'v_pk_add_f32 v[{base+2*h}:{base+2*h+1}], v[{base+2*h}:{base+2*h+1}], v[{base+4+2*h}:{base+5+2*h}]')
            a.e(f'v_pk_add_f32 v[{base+8+2*h}:{base+9+2*h}], v[{base+8+2*h}:{base+9+2*h}], v[{base+12+2*h}:{base+13+2*h}]')
        for h in range(2):
            a.e(f'v_pk_add_f32 v[{base+2*h}:{base+2*h+1}], v[{base+2*h}:{base+2*h+1}], v[{base+8+2*h}:{base+9+2*h}]')
        for h in range(2):
            a.e(f'v_pk_mul_f32 v[{base+2*h}:{base+2*h+1}], v[{base+2*h}:{base+2*h+1}], v[46:47] op_sel:[0,0] op_sel_hi:[1,0]')
        a.e(f'v_cvt_pk_f16_f32 v{base+4}, v{base}, v{base+1}')
        a.e(f'v_cvt_pk_f16_f32 v{base+5}, v{base+2}, v{base+3}')
        a.e(f'ds_write_b16 v{va}, v{base+4} offset:{off}')
        a.e(f'ds_write_b16_d16_hi v{va}, v{base+4} offset:{off+32}')
        a.e(f'ds_write_b16 v{va}, v{base+5} offset:{off+64}')
        a.e(f'ds_write_b16_d16_hi v{va}, v{base+5} offset:{off+96}')
    for e in range(11 if OPT['c4'] else 15):
        src = 160 + e // 2
        if e % 2 == 0:
            a.e(f'v_and_b32 v{136+e}, 0xffff, v{src}')
        else:
            a.e(f'v_lshrrev_b32 v{136+e}, 16, v{src}')
    a.e('s_waitcnt lgkmcnt(0)')
    a.e('s_barrier')


def kch():
    return (4 if OPT['c4'] else 8) * KCOPY


def kcopies(a):
    AD = 136
    a.e('v_lshlrev_b32 v111, 4, v0')
    a.e(f'v_add_u32 v111, {L_KC}, v111')
    RR = [96, 112]
    if OPT['c4']:
        for c in range(2):
            for e in range(11):
                a.e(f'ds_read_u16 v{RR[c]+e}, v{AD+e} offset:{L_KT + c*KTCH}')
        for c in range(2):
            R = RR[c]
            Da, Db, Oa, Ob = (56, 60, 64, 68) if c == 0 else (16, 20, 24, 28)
            a.e(f's_waitcnt lgkmcnt({11 if c == 0 else 4})')
            for i in range(4):
                a.e(f'v_lshl_or_b32 v{Da+i}, v{R+2*i+1}, 16, v{R+2*i}')
                a.e(f'v_lshl_or_b32 v{Oa+i}, v{R+2*i+2}, 16, v{R+2*i+1}')
                a.e(f'v_lshl_or_b32 v{Db+i}, v{R+2*i+3}, 16, v{R+2*i+2}')
                a.e(f'v_lshl_or_b32 v{Ob+i}, v{R+2*i+4}, 16, v{R+2*i+3}')
            for s_, r in ((0, Da), (1, Oa), (2, Db), (3, Ob)):
                a.e(f'ds_write_b128 v111, v[{r}:{r+3}] offset:{c*kch() + s_*KCOPY}')
        return
    for c in range(2):
        for e in range(15):
            a.e(f'ds_read_u16 v{RR[c]+e}, v{AD+e} offset:{L_KT + c*KTCH}')
    for c in range(2):
        R = RR[c]
        Da, Db, Oa, Ob = 56 + 0, 64, 72, 80
        if c == 1:
            Da, Db, Oa, Ob = 16, 24, 32, 40
        a.e(f's_waitcnt lgkmcnt({15 if c == 0 else 8})')
        for i in range(6):
            a.e(f'v_lshl_or_b32 v{Da+i}, v{R+2*i+1}, 16, v{R+2*i}')
            a.e(f'v_lshl_or_b32 v{Oa+i}, v{R+2*i+2}, 16, v{R+2*i+1}')
        if c == 1:
            a.e(f'v_add_u32 v110, {KCH}, v111')
        va = 111 if c == 0 else 110
        for s, r in ((0, Da), (1, Oa), (4, Da + 2), (5, Oa + 2)):
            a.e(f'ds_write_b128 v{va}, v[{r}:{r+3}] offset:{s*KCOPY}')
        for i in range(6):
            a.e(f'v_lshl_or_b32 v{Db+i}, v{R+2*i+3}, 16, v{R+2*i+2}')
            a.e(f'v_lshl_or_b32 v{Ob+i}, v{R+2*i+4}, 16, v{R+2*i+3}')
        for s, r in ((2, Db), (3, Ob), (6, Db + 2), (7, Ob + 2)):
            a.e(f'ds_write_b128 v{va}, v[{r}:{r+3}] offset:{s*KCOPY}')


def store_u(a, vm):
    a.e('v_lshlrev_b32 v2, 4, v0')
    a.e(f's_waitcnt vmcnt({vm})')
    a.e(f'ds_write_b128 v2, v[176:179] offset:{L_U + 512}')
    a.e(f'ds_write_b128 v2, v[180:183] offset:{L_U + UCH + 512}')
    a.e('s_waitcnt lgkmcnt(0)')
    a.e('s_barrier')


def phase_conv(a, hooks, pre_vm):
    hooks = list(hooks)
    ACC = 16
    FA = [[64 + 64 * s + 4 * i for i in range(8)] for s in range(2)]
    FB = [[96 + 64 * s + 4 * i for i in range(8)] for s in range(2)]
    VA, VB = (192, 193) if OPT['hoist'] else (48, 49)

    def loads(qq, s):
        out = []
        for i in range(8):
            out.append(f'ds_read_b128 v[{FB[s][i]}:{FB[s][i]+3}], v{VB} offset:{512*i + 64*(3-qq)}')
            if OPT['c4']:
                o = 512 * (7 - i) + 64 * (3 - qq)
                out.append(f'ds_read_b64 v[{FA[s][i]}:{FA[s][i]+1}], v{VA} offset:{o}')
                out.append(f'ds_read_b64 v[{FA[s][i]+2}:{FA[s][i]+3}], v{VA} offset:{o + 8}')
            else:
                out.append(f'ds_read_b128 v[{FA[s][i]}:{FA[s][i]+3}], v{VA} offset:{512*(7-i) + 64*(3-qq)}')
        return out

    for x in loads(0, 0):
        a.e(x)
    for qq in range(4):
        s = qq & 1
        nxt = loads(qq + 1, 1 - s) if qq < 3 else []
        n = 0
        for w in range(8):
            for c in range(w, 8):
                if n == 0:
                    a.e('s_waitcnt lgkmcnt(0)')
                cc = '0' if (qq == 0 and w == 0) else f'v[{ACC+4*c}:{ACC+4*c+3}]'
                a.e(f'v_mfma_f32_16x16x32_f16 v[{ACC+4*c}:{ACC+4*c+3}], v[{FA[s][w]}:{FA[s][w]+3}], v[{FB[s][c-w]}:{FB[s][c-w]+3}], {cc}')
                if nxt and (n % 2 == 1 or (OPT['c4'] and n % 4 == 0)):
                    a.e(nxt.pop(0))
                if hooks and n % 4 == 2:
                    hooks.pop(0)()
                n += 1
        assert not nxt
    assert not hooks
    stamp(a, 11)
    CP, TS = L_CP, 1280
    if OPT['hoist']:
        a.e('s_barrier')
        for c in range(8):
            a.e(f'ds_write_b128 v194, v[{ACC+4*c}:{ACC+4*c+3}] offset:{c*TS}')
        VRD, VU, VG = 195, 206, 207
    else:
        a.e('v_and_b32 v2, 15, v1')
        a.e('v_lshlrev_b32 v2, 4, v2')
        a.e('v_lshrrev_b32 v3, 4, v1')
        a.e('v_mul_u32_u24 v3, 320, v3')
        a.e('v_add_u32 v2, v2, v3')
        a.e(f's_mul_i32 s70, s{S_W}, {8*TS}')
        a.e(f's_add_u32 s70, s70, {CP}')
        a.e('v_add_u32 v2, s70, v2')
        a.e('s_barrier')
        for c in range(8):
            a.e(f'ds_write_b128 v2, v[{ACC+4*c}:{ACC+4*c+3}] offset:{c*TS}')
        a.e('v_lshrrev_b32 v2, 2, v1')
        a.e('v_lshlrev_b32 v2, 4, v2')
        a.e('v_and_b32 v3, 3, v1')
        a.e('v_mul_u32_u24 v3, 320, v3')
        a.e('v_add_u32 v2, v2, v3')
        a.e(f's_lshl_b32 s70, s{S_W}, 1')
        a.e(f's_mul_i32 s71, s70, {TS}')
        a.e(f's_add_u32 s71, s71, {CP}')
        a.e('v_add_u32 v2, s71, v2')
        a.e('s_lshl_b32 s71, s70, 9')
        a.e(f's_add_u32 s71, s71, {L_U + 512}')
        a.e('v_lshl_add_u32 v3, v1, 3, s71')
        a.e(f's_mul_i32 s71, s{S_P}, {AST}')
        a.e('s_lshl_b32 s72, s70, 10')
        a.e('s_add_u32 s71, s71, s72')
        a.e(f's_add_u32 s71, s71, {WS_AOUT}')
        a.e('v_lshl_add_u32 v4, v1, 4, s71')
        VRD, VU, VG = 2, 3, 4
    a.e('s_lshl_b32 s72, s69, 16')
    a.e('s_and_b32 s73, s69, 0xffff0000')
    a.e('v_mov_b32 v56, s72')
    a.e('v_mov_b32 v57, s73')
    a.e(f's_waitcnt lgkmcnt(0) vmcnt({pre_vm})')
    a.e('s_barrier')
    for q in range(2):
        P = 64 + 32 * q
        for ch in range(2):
            for hf in range(2):
                r = P + 8 * ch + 4 * hf
                a.e(f'ds_read_b128 v[{r}:{r+3}], v{VRD} offset:{(2*ch+hf)*8*TS + q*TS}')
        for ch in range(2):
            a.e(f'ds_read_b64 v[{P+16+2*ch}:{P+17+2*ch}], v{VU} offset:{ch*UCH + q*512}')
    for q in range(2):
        P = 64 + 32 * q
        a.e(f's_waitcnt lgkmcnt({6 if q == 0 else 0})')
        for ch in range(2):
            y = P + 8 * ch
            T = 128 + 16 * ch
            u = P + 16 + 2 * ch
            for h in range(2):
                a.e(f'v_pk_add_f32 v[{y+2*h}:{y+2*h+1}], v[{y+2*h}:{y+2*h+1}], v[{y+4+2*h}:{y+5+2*h}]')
            for i in range(4):
                a.e(f'v_fma_mix_f32 v{T+i}, v{u+i//2}, v{56+ch}, 0 op_sel:[{i%2},0,0] op_sel_hi:[1,0,0]')
            for h in range(2):
                a.e(f'v_pk_mul_f32 v[{y+2*h}:{y+2*h+1}], v[{y+2*h}:{y+2*h+1}], v[54:55] op_sel:[0,{ch}] op_sel_hi:[1,{ch}]')
            for h in range(2):
                a.e(f'v_cvt_pk_bf16_f32 v{T+6+h}, v{T+2*h}, v{T+2*h+1}')
                a.e(f'v_cvt_pk_bf16_f32 v{T+4+h}, v{y+2*h}, v{y+2*h+1}')
            for h in range(2):
                a.e(f'v_lshlrev_b32 v{T+2*h}, 16, v{T+6+h}')
                a.e(f'v_and_b32 v{T+2*h+1}, 0xffff0000, v{T+6+h}')
                a.e(f'v_lshlrev_b32 v{y+2*h}, 16, v{T+4+h}')
                a.e(f'v_and_b32 v{y+2*h+1}, 0xffff0000, v{T+4+h}')
            for h in range(2):
                a.e(f'v_pk_add_f32 v[{y+2*h}:{y+2*h+1}], v[{y+2*h}:{y+2*h+1}], v[{T+2*h}:{T+2*h+1}]')
        O = 160 + 4 * q
        for i in range(4):
            a.e(f'v_cvt_pk_bf16_f32 v{O+i}, v{P+i}, v{P+8+i}')
        a.e(f'buffer_store_dwordx4 v[{O}:{O+3}], v{VG}, {WSR}, 0 offen offset:{q*1024} sc1')


def conv_addr(a, va=48, vb=49):
    a.e(f's_lshr_b32 s66, s{S_W}, 1')
    a.e(f's_and_b32 s67, s{S_W}, 1')
    a.e('v_and_b32 v2, 7, v1')
    a.e('v_sub_u32 v2, 7, v2')
    if OPT['c4']:
        a.e('v_lshrrev_b32 v5, 2, v2')
        a.e('v_and_b32 v2, 3, v2')
        a.e(f'v_mul_u32_u24 v2, {KCOPY}, v2')
        a.e('v_lshl_add_u32 v2, v5, 3, v2')
    else:
        a.e(f'v_mul_u32_u24 v2, {KCOPY}, v2')
    a.e('v_lshrrev_b32 v3, 4, v1')
    a.e('v_bfe_u32 v4, v1, 3, 1')
    a.e('v_sub_u32 v4, v3, v4')
    a.e('v_lshl_add_u32 v2, v4, 4, v2')
    a.e(f's_mul_i32 s70, s66, {kch()}')
    a.e('s_lshl_b32 s71, s67, 8')
    a.e('s_sub_u32 s70, s70, s71')
    a.e(f's_add_u32 s70, s70, {L_KC + 16*253 - 512*7 - 64*3}')
    a.e(f'v_add_u32 v{va}, s70, v2')
    a.e('v_and_b32 v2, 15, v1')
    a.e('v_lshlrev_b32 v2, 5, v2')
    a.e('v_lshl_add_u32 v2, v3, 4, v2')
    a.e(f's_mul_i32 s70, s66, {UCH}')
    a.e('s_sub_u32 s70, s70, s71')
    a.e(f's_add_u32 s70, s70, {L_U + 480 - 64*3}')
    a.e(f'v_add_u32 v{vb}, s70, v2')


def phase_p4(a, dmas=()):
    X = list(range(8, 16))
    A = 32
    xrow_addr(a)
    a.e(f's_mul_i32 s66, s{S_W}, {56*AST}')
    a.e(f's_lshl_b32 s67, s{S_B}, 5')
    a.e('s_add_u32 s66, s66, s67')
    a.e(f's_add_u32 s66, s66, {WS_AOUT}')
    a.e(f'v_mul_u32_u24 v4, {AST}, v1')
    a.e('v_add_u32 v4, s66, v4')
    a.e(f'v_mov_b32 v5, {OOB}')
    a.e('v_cndmask_b32 v4, v5, v4, vcc')
    if OPT['hpriv']:
        a.e(f's_mul_i32 s66, s{S_W}, 1792')
        a.e(f's_add_u32 s66, s66, {L_HT}')
        a.e('v_lshl_add_u32 v6, v1, 2, s66')
        a.e('v_lshl_add_u32 v7, v1, 4, s66')
        a.e(f's_mul_i32 s66, s{S_B}, 7168')
        a.e(f's_mul_i32 s67, s{S_W}, 224')
        a.e('s_add_u32 s66, s66, s67')
        a.e(f's_add_u32 s66, s66, {WS_H}')
        for k, vd in ((0, 56), (64, 57)):
            a.e(f'v_add_u32 v58, {k}, v1')
            a.e('v_mul_u32_u24 v59, 4682, v58')
            a.e('v_lshrrev_b32 v59, 16, v59')
            a.e(f'v_mul_u32_u24 v{vd}, {896 - 224}, v59')
            a.e(f'v_lshl_add_u32 v{vd}, v58, 4, v{vd}')
            a.e(f'v_add_u32 v{vd}, s66, v{vd}')
        mask_lanes(a, 57, 48, 58)
    else:
        a.e(f's_mul_i32 s66, s{S_W}, 224')
        a.e(f's_add_u32 s66, s66, {L_HT}')
        a.e('v_lshl_add_u32 v6, v1, 2, s66')
    for j in range(8):
        a.e(f'v_lshlrev_b32 v{64+2*j}, 16, v{X[j]}')
        a.e(f'v_and_b32 v{65+2*j}, 0xffff0000, v{X[j]}')
    lp, ld = a.lab('h2poll'), a.lab('h2done')
    a.e(f's_mov_b32 s{S_SPIN}, 0')
    a.e(f'{lp}:')
    a.e(f'buffer_load_dwordx4 v[{A}:{A+3}], v4, {WSR}, 0 offen sc1')
    a.e(f'buffer_load_dwordx4 v[{A+4}:{A+7}], v4, {WSR}, 0 offen offset:16 sc1')
    a.e('s_waitcnt vmcnt(0)')
    a.e(f'v_max3_u32 v40, v{A}, v{A+1}, v{A+2}')
    a.e(f'v_max3_u32 v41, v{A+3}, v{A+4}, v{A+5}')
    a.e(f'v_max3_u32 v40, v40, v{A+6}, v{A+7}')
    a.e('v_max_u32 v40, v40, v41')
    a.e('v_cmp_eq_u32 vcc, -1, v40')
    a.e(f's_cbranch_vccz {ld}')
    spin_tail(a, lp)
    a.e(f'{ld}:')
    stamp(a, 14)
    H = list(range(48, 56))
    for j in range(8):
        t = 40 + 2 * (j % 4)
        a.e(f'v_lshlrev_b32 v{t}, 16, v{A+j}')
        a.e(f'v_and_b32 v{t+1}, 0xffff0000, v{A+j}')
        a.e(f'v_pk_add_f32 v[{t}:{t+1}], v[{t}:{t+1}], v[{64+2*j}:{65+2*j}]')
        a.e(f'v_cvt_pk_bf16_f32 v{H[j]}, v{t}, v{t+1}')
    a.e('s_mov_b32 exec_hi, 0x00ffffff')
    for j in range(8):
        a.e(f'ds_write_b32 v6, v{H[j]} offset:{j*(224 if OPT["hpriv"] else 896)}')
    a.e('s_mov_b32 exec_hi, -1')
    if OPT['hpriv']:
        a.e('ds_read_b128 v[32:35], v7')
        a.e('ds_read_b128 v[36:39], v7 offset:1024')
        a.e('s_waitcnt lgkmcnt(1)')
        a.e(f'buffer_store_dwordx4 v[32:35], v56, {WSR}, 0 offen sc1')
        a.e('s_waitcnt lgkmcnt(0)')
        a.e(f'buffer_store_dwordx4 v[36:39], v57, {WSR}, 0 offen sc1')
        if dmas:
            a.inject(dmas, OPT['p4ev'])
        ln_stats(a, H, 16, L_RED0, 5)
    else:
        def hstore():
            a.e('v_lshlrev_b32 v7, 4, v0')
            a.e(f'ds_read_b128 v[56:59], v7 offset:{L_HT}')
            a.e(f'ds_read_b128 v[60:63], v7 offset:{L_HT + 4096}')
            return 2

        ln_stats(a, H, 16, L_RED0, 5, mid=hstore)
        a.e(f's_mul_i32 s66, s{S_B}, 7168')
        a.e(f's_add_u32 s66, s66, {WS_H}')
        a.e('v_add_u32 v6, s66, v7')
        a.e('v_add_u32 v7, 4096, v6')
        mask_lanes(a, 7, 192, 4, 'v0')
        a.e('s_waitcnt lgkmcnt(0)')
        a.e(f'buffer_store_dwordx4 v[56:59], v6, {WSR}, 0 offen sc1')
        a.e(f'buffer_store_dwordx4 v[60:63], v7, {WSR}, 0 offen sc1')
    bcast_stats(a, 16)
    a.inj_pause()
    a.e('s_mov_b32 exec_hi, 0x00ffffff')
    for j in range(8):
        t = 40 + 2 * (j % 4)
        norm_tok(a, j, H[j], t)
        a.e(f'v_cvt_pk_bf16_f32 v{H[j]}, v{t}, v{t+1}')
    a.e('s_mov_b32 exec_hi, -1')
    a.inj_resume()
    ln_stats(a, H, 16, L_RED1, 5)
    bcast_stats(a, 16)
    VHH = 213 if OPT['hoist'] else 4
    if not OPT['hoist']:
        a.e(f's_mul_i32 s66, s{S_B}, 7168')
        a.e(f's_mul_i32 s67, s{S_W}, 1792')
        a.e('s_add_u32 s66, s66, s67')
        a.e(f's_add_u32 s66, s66, {WS_HH}')
        a.e('v_lshl_add_u32 v4, v1, 4, s66')
        a.e('v_add_u32 v5, 448, v4')
        a.e('v_cmp_gt_u32 vcc, 28, v1')
        a.e('v_cndmask_b32 v4, v5, v4, vcc')
        mask_lanes(a, 4, 56, 5)
    for j in range(8):
        norm_tok(a, j, H[j], 64 + 2 * j)
    O0, O1 = 80, 84
    for i in range(4):
        a.e(f'v_cvt_pk_bf16_f32 v{O0+i}, v{64+4*i}, v{66+4*i}')
        a.e(f'v_cvt_pk_bf16_f32 v{O1+i}, v{65+4*i}, v{67+4*i}')
    a.inj_flush()
    a.e(f's_waitcnt vmcnt({len(dmas)})')
    if not OPT['hpriv']:
        a.e('s_barrier')
    a.e(f'buffer_store_dwordx4 v[{O0}:{O0+3}], v{VHH}, {WSR}, 0 offen sc1')
    a.e(f'buffer_store_dwordx4 v[{O1}:{O1+3}], v{VHH}, {WSR}, 0 offen offset:448 sc1')


def w_setup(a):
    srd(a, S_W1, P_W1, W1BYTES)
    srd(a, S_W2, P_W2, W2BYTES)
    a.e('v_lshrrev_b32 v4, 3, v1')
    a.e('v_bfe_u32 v5, v1, 4, 1')
    a.e('v_lshlrev_b32 v5, 1, v5')
    a.e('v_and_b32 v6, 7, v1')
    a.e('v_xor_b32 v6, v6, v5')
    a.e('v_xor_b32 v7, 4, v6')
    for vd, rowbytes, tile, rows in ((V_D1, F * 2, S_I1, 512), (V_D2, L * 2, S_I2, 448)):
        a.e(f's_mov_b32 s66, {rowbytes}')
        a.e('v_mul_lo_u32 v5, v4, s66')
        a.e(f's_mul_i32 s67, s{S_W}, {rows*rowbytes}')
        a.e(f's_lshl_b32 s66, s{tile}, 7')
        a.e('s_add_u32 s67, s67, s66')
        a.e('v_add_u32 v5, s67, v5')
        for i in range(4):
            a.e(f'v_lshl_add_u32 v{vd+i}, v{6 + (i & 1)}, 4, v5')
            if i:
                a.e(f'v_add_u32 v{vd+i}, {i*(8*rowbytes - 1024)}, v{vd+i}')
    a.e('v_lshlrev_b32 v5, 12, v4')
    a.e('v_and_b32 v6, 7, v1')
    a.e(f'v_lshl_add_u32 v{V_QPF}, v6, 4, v5')
    a.e(f's_and_b32 s66, s{S_LOC}, 3')
    a.e('s_mul_i32 s66, s66, 448')
    if OPT['sched'] == 3:
        a.e(f's_mul_i32 s67, s{S_W}, {(448 - OPT["hR"]) // 4}')
        a.e(f's_add_u32 s67, s67, {OPT["hR"]}')
    else:
        a.e(f's_mul_i32 s67, s{S_W}, 112')
    a.e('s_add_u32 s66, s66, s67')
    a.e('s_lshl_b32 s66, s66, 12')
    a.e(f's_lshl_b32 s67, s{S_I2}, 7')
    a.e(f's_add_u32 s{S_QPF}, s66, s67')
    a.e('v_lshrrev_b32 v4, 4, v1')
    a.e('v_bfe_u32 v5, v1, 2, 2')
    a.e('v_lshl_add_u32 v5, v4, 3, v5')
    a.e('v_lshlrev_b32 v5, 7, v5')
    a.e('v_and_b32 v6, 1, v1')
    a.e('v_lshl_add_u32 v5, v6, 3, v5')
    a.e('v_bfe_u32 v6, v1, 1, 1')
    a.e('v_lshl_add_u32 v5, v6, 4, v5')
    a.e('v_bfe_u32 v6, v1, 3, 1')
    a.e('v_and_b32 v4, 1, v4')
    a.e('v_lshl_add_u32 v6, v4, 1, v6')
    a.e(f's_and_b32 s66, s{S_LOC}, 3')
    a.e(f's_lshr_b32 s67, s{S_LOC}, 2')
    a.e('s_lshl_b32 s67, s67, 1')
    a.e('s_lshl_b32 s70, s66, 2')
    a.e('s_add_u32 s70, s70, s67')
    a.e('s_and_b32 s70, s70, 15')
    a.e(f's_mul_i32 s{S_RW1}, s70, {32*F*2}')
    a.e(f's_mul_i32 s{S_RX1}, s70, {4*7168}')
    a.e('s_mul_i32 s66, s66, 7')
    a.e('s_lshr_b32 s66, s66, 1')
    a.e('s_add_u32 s66, s66, s67')
    for _ in range(2):
        a.e('s_cmp_ge_u32 s66, 14')
        a.e('s_cselect_b32 s67, 14, 0')
        a.e('s_sub_u32 s66, s66, s67')
    a.e(f's_mul_i32 s{S_RW2}, s66, {32*L*2}')
    a.e(f's_mul_i32 s{S_RX2}, s66, {4*7168}')
    a.e(f's_lshl_b32 s{S_SA}, s{S_W}, 14')
    a.e(f's_add_u32 s{S_SA}, s{S_SA}, {L_WA}')
    a.e(f's_mul_i32 s{S_SB}, s{S_W}, 20480')
    a.e(f's_add_u32 s{S_SB}, s{S_SB}, {L_WB}')
    a.e(f's_lshl_b32 s{S_SC}, s{S_W}, 13')
    a.e(f's_add_u32 s{S_SC}, s{S_SC}, {L_WC}')
    for mu in range(4):
        a.e(f'v_xor_b32 v4, {mu}, v6')
        a.e('v_lshl_add_u32 v4, v4, 5, v5')
        a.e(f'v_add_u32 v{V_TA+mu}, s{S_SA}, v4')
        a.e(f'v_add_u32 v{V_TB+mu}, s{S_SB}, v4')
        a.e(f'v_add_u32 v{V_TC+mu}, s{S_SC}, v4')


def rot_off(a, idx, sreg, n, unit):
    a.e(f's_add_u32 s70, s{sreg}, {idx*unit}')
    a.e(f's_cmp_ge_u32 s70, {n*unit}')
    a.e(f's_cselect_b32 s71, {n*unit}, 0')
    a.e('s_sub_u32 s70, s70, s71')


def slot(name):
    return {'A': (S_SA, V_TA), 'B': (S_SB, V_TB), 'C': (S_SC, V_TC)}[name[0]] + (int(name[1]),)


def w_dma1(a, mat, slab, sl, i):
    sb, _, si = slot(sl)
    vd, srd_, rowbytes = (V_D1, S_W1, F * 2) if mat == 1 else (V_D2, S_W2, L * 2)
    if i == 0:
        rot_off(a, slab, S_RW1 if mat == 1 else S_RW2, 16 if mat == 1 else 14, 32 * rowbytes)
        a.e(f's_add_u32 m0, s{sb}, {si*4096}')
    a.e(f'buffer_load_dwordx4 v{vd + i}, s[{srd_}:{srd_+3}], s70 offen offset:{1024*i} lds')


def w_dma(a, mat, slab, sl):
    for i in range(4):
        w_dma1(a, mat, slab, sl, i)


def w_tr(a, slab, sl):
    _, vt, si = slot(sl)
    for mu in range(4):
        r = (slab * 4 + mu) * 4
        a.e(f'ds_read_b64_tr_b16 a[{r}:{r+1}], v{vt+mu} offset:{si*4096}')
        a.e(f'ds_read_b64_tr_b16 a[{r+2}:{r+3}], v{vt+mu} offset:{si*4096 + 512}')


def helper_w2(a, nrows, mid=None):
    a.e(f's_lshr_b32 s66, s{S_XCD}, 1')
    a.e('s_lshl_b32 s66, s66, 10')
    a.e(f's_sub_u32 s67, s{S_LOC}, 28')
    a.e('s_mul_i32 s67, s67, 448')
    a.e(f's_add_u32 s67, s67, s{S_W}')
    a.e('s_lshl_b32 s67, s67, 12')
    a.e('s_add_u32 s90, s66, s67')
    a.e('v_lshlrev_b32 v4, 4, v1')

    def loop(n):
        if n <= 0:
            return
        l = a.lab('l2s')
        a.e(f's_mov_b32 s91, {n}')
        a.e(f'{l}:')
        for i in range(4):
            a.e(f'buffer_load_dwordx4 v[220:223], v4, s[{S_W2}:{S_W2+3}], s90 offen')
            a.e(f's_add_u32 s90, s90, {4*L*2}')
        a.e('s_waitcnt vmcnt(8)')
        a.e('s_sub_u32 s91, s91, 1')
        a.e('s_cmp_lg_u32 s91, 0')
        a.e(f's_cbranch_scc1 {l}')

    total = nrows // 16
    if mid is None:
        loop(total)
        return
    n1, issue, check = mid
    loop(n1)
    issue()
    loop(3)
    check()
    loop(total - n1 - 3)


def qpf_load(a, n):
    for _ in range(n):
        a.e(f'buffer_load_dwordx4 v[220:223], v{V_QPF}, s[{S_W2}:{S_W2+3}], s{S_QPF} offen')
        a.e(f's_add_u32 s{S_QPF}, s{S_QPF}, {8*L*2}')


ACC = 16
XS = 80
NS = 6
VMAX = 214
V_X0, V_X3 = 208, 209


def gemm_xaddr(a, ws_off, kblocks):
    a.e(f's_mul_i32 s66, s{S_W}, {kblocks*7168}')
    a.e(f's_mul_i32 s67, s{S_J}, 896')
    a.e('s_add_u32 s66, s66, s67')
    a.e(f's_add_u32 s66, s66, {ws_off}')
    a.e('v_lshrrev_b32 v4, 4, v1')
    a.e('v_mul_u32_u24 v4, 7168, v4')
    a.e('v_add_u32 v4, s66, v4')
    a.e('v_and_b32 v5, 15, v1')
    a.e(f'v_lshl_add_u32 v{V_X0}, v5, 4, v4')
    if OPT['x3oob']:
        a.e(f'v_add_u32 v{V_X3}, 768, v{V_X0}')
        a.e(f'v_mov_b32 v4, {OOB}')
        a.e('v_cmp_gt_u32 vcc, 8, v5')
        a.e(f'v_cndmask_b32 v{V_X3}, v4, v{V_X3}, vcc')
    else:
        a.e('v_and_b32 v5, 7, v1')
        a.e('v_lshl_add_u32 v4, v5, 4, v4')
        a.e(f'v_add_u32 v{V_X3}, 768, v4')


def gemm_xloads(a, kappa, gid):
    st = XS + 16 * (kappa % NS)
    out = []
    sreg, n = (S_RX1, 16) if gid == 1 else (S_RX2, 14)
    unit = 4 * 7168
    out.append(f's_add_u32 s70, s{sreg}, {kappa*unit}')
    out.append(f's_cmp_ge_u32 s70, {n*unit}')
    out.append(f's_cselect_b32 s71, {n*unit}, 0')
    out.append('s_sub_u32 s70, s70, s71')
    for nu in range(3):
        out.append(f'buffer_load_dwordx4 v[{st+4*nu}:{st+4*nu+3}], v{V_X0}, {WSR}, s70 offen offset:{256*nu} sc1')
    out.append(f'buffer_load_dwordx4 v[{st+12}:{st+15}], v{V_X3}, {WSR}, s70 offen sc1')
    return out


def gemm_main(a, nk, gid, tail_hook=None):
    nfl = OPT['nfl']
    w_is_a = gid == 1
    a.e(f'v_mov_b32 v{VMAX}, 0')
    extra = 0
    for k in range(nk):
        st = XS + 16 * (k % NS)
        rem = min(nfl - 1, nk - 1 - k)
        a.e(f's_waitcnt vmcnt({4*rem + extra})')
        if OPT['stamps'] and k in (0, 4, 8, 12):
            stamp(a, (44 if w_is_a else 51) + (0, 4, 8, 12).index(k))
        fill = gemm_xloads(a, k + nfl, gid) if k + nfl < nk else []
        if k + nfl == nk and tail_hook is not None:
            fill = []
            extra = tail_hook(fill)
        mx = [f'v_max3_u32 v{VMAX}, v{VMAX}, v{st+2*i}, v{st+2*i+1}' for i in range(8)]
        n = 0
        for mu in range(4):
            for nu in range(4):
                w = (k * 4 + mu) * 4
                x = st + 4 * nu
                if w_is_a:
                    acc = ACC + (mu * 4 + nu) * 4
                    A, B = f'a[{w}:{w+3}]', f'v[{x}:{x+3}]'
                else:
                    acc = ACC + (nu * 4 + mu) * 4
                    A, B = f'v[{x}:{x+3}]', f'a[{w}:{w+3}]'
                cc = '0' if k == 0 else f'v[{acc}:{acc+3}]'
                a.e(f'v_mfma_f32_16x16x32_bf16 v[{acc}:{acc+3}], {A}, {B}, {cc}')
                for _ in range(2):
                    if fill:
                        a.e(fill.pop(0))
                if not fill and mx and n >= 4:
                    a.e(mx.pop(0))
                n += 1
        assert not fill and not mx


def capture(fn):
    p = Prog()
    fn(p)
    return [it.text for it in p.items]


STUBS = []


def mfma_line(k, mu, nu, gid):
    st = XS + 16 * (k % NS)
    w = (k * 4 + mu) * 4
    x = st + 4 * nu
    if gid == 1:
        acc = ACC + (mu * 4 + nu) * 4
        A, B = f'a[{w}:{w+3}]', f'v[{x}:{x+3}]'
    else:
        acc = ACC + (nu * 4 + mu) * 4
        A, B = f'v[{x}:{x+3}]', f'a[{w}:{w+3}]'
    cc = '0' if k == 0 else f'v[{acc}:{acc+3}]'
    return f'v_mfma_f32_16x16x32_bf16 v[{acc}:{acc+3}], {A}, {B}, {cc}'


def poison_check(k):
    st = XS + 16 * (k % NS)
    out = [f'v_max3_u32 v{VMAX}, v{st}, v{st+1}, v{st+2}']
    for i in range(6):
        out.append(f'v_max3_u32 v{VMAX}, v{VMAX}, v{st+3+2*i}, v{st+4+2*i}')
    out.append(f'v_max_u32 v{VMAX}, v{VMAX}, v{st+15}')
    out.append(f'v_cmp_eq_u32 vcc, -1, v{VMAX}')
    return out


def gemm_checked(a, nk, gid, sb, tail_hook=None, side=None):
    nfl = OPT['nfl']

    def slow(k):
        ls, lb, lp = a.lab('slow'), a.lab('back'), a.lab('sloop')

        def emit():
            a.e(f'{ls}:')
            a.e(f's_mov_b32 s{S_SPIN}, 0')
            a.e(f'{lp}:')
            for x in gemm_xloads(a, k, gid):
                a.e(x)
            a.e('s_waitcnt vmcnt(0)')
            for x in poison_check(k):
                a.e(x)
            ldone = a.lab('sdone')
            a.e(f's_cbranch_vccz {ldone}')
            spin_tail(a, lp)
            a.e(f'{ldone}:')
            if k == 0:
                for kk in range(1, min(nfl, nk - 1) + 1):
                    for x in gemm_xloads(a, kk, gid):
                        a.e(x)
            a.e(f's_branch {lb}')
        STUBS.append(emit)
        return ls, lb

    for k in range(nfl):
        for x in gemm_xloads(a, k, gid):
            a.e(x)
    a.e(f's_waitcnt vmcnt({4*(nfl-1)})')
    for x in gemm_xloads(a, nfl, gid):
        a.e(x)
    for x in poison_check(0):
        a.e(x)
    ls, lb = slow(0)
    a.e(f's_cbranch_vccnz {ls}')
    a.e(f'{lb}:')
    stamp(a, sb)
    extra = 0
    for k in range(nk):
        lines = [mfma_line(k, mu, nu, gid) for mu in range(4) for nu in range(4)]
        for i in range(8):
            a.e(lines[i])
        if k + 1 < nk:
            kn = k + 1
            rem = min(nfl - 1, nk - 1 - kn)
            a.e(f's_waitcnt vmcnt({4*rem + extra})')
            if OPT['stamps'] and kn in (4, 8, 12):
                stamp(a, (44 if gid == 1 else 51) + (0, 4, 8, 12).index(kn))
            fill = gemm_xloads(a, kn + nfl, gid) if kn + nfl < nk else []
            if kn + nfl == nk and tail_hook is not None:
                extra = tail_hook(fill)
            if side is not None:
                lines_, nvm = side(kn)
                fill += lines_
                extra += nvm
            fill += poison_check(kn)
        else:
            fill = []
        per = -(-len(fill) // 8)
        for i in range(8, 16):
            a.e(lines[i])
            for _ in range(per):
                if fill:
                    a.e(fill.pop(0))
        assert not fill
        if k + 1 < nk:
            ls, lb = slow(k + 1)
            a.e(f's_cbranch_vccnz {ls}')
            a.e(f'{lb}:')


def sentinel(a, ws_off, kblocks):
    lp, ld = a.lab('spoll'), a.lab('sdone')
    a.e(f's_mul_i32 s66, s{S_W}, {kblocks*7168}')
    a.e(f's_mul_i32 s67, s{S_J}, 896')
    a.e('s_add_u32 s66, s66, s67')
    a.e(f's_add_u32 s66, s66, {ws_off + 55*16 + 12}')
    a.e('v_mul_u32_u24 v4, 7168, v1')
    a.e('v_add_u32 v4, s66, v4')
    if kblocks < 64:
        mask_lanes(a, 4, kblocks, 5)
    a.e(f's_mov_b32 s{S_SPIN}, 0')
    a.e(f'{lp}:')
    a.e(f'buffer_load_dword v5, v4, {WSR}, 0 offen sc1')
    a.e('s_waitcnt vmcnt(0)')
    a.e('v_cmp_eq_u32 vcc, -1, v5')
    a.e(f's_cbranch_vccz {ld}')
    spin_tail(a, lp)
    a.e(f'{ld}:')


def gemm_poll_main(a, ws_off, kblocks, nk, gid, sb, tail_hook=None, side=None):
    lr, lok = a.lab('gretry'), a.lab('gok')
    gemm_xaddr(a, ws_off, kblocks)
    if OPT['stchk']:
        gemm_checked(a, nk, gid, sb, tail_hook, side)
        return
    a.e(f's_mov_b32 s{S_RETRY}, 0')
    a.e(f'{lr}:')
    sentinel(a, ws_off, kblocks)
    stamp(a, sb)
    for k in range(OPT['nfl']):
        for x in gemm_xloads(a, k, gid):
            a.e(x)
    gemm_main(a, nk, gid, tail_hook)
    a.e(f'v_cmp_eq_u32 vcc, -1, v{VMAX}')
    a.e(f's_cbranch_vccz {lok}')
    a.e(f's_add_u32 s{S_RETRY}, s{S_RETRY}, 1')
    a.e(f's_cmp_lt_u32 s{S_RETRY}, {RETRY_MAX}')
    a.e(f's_cbranch_scc1 {lr}')
    a.e(f'{lok}:')


def write_partials(a):
    if OPT['hoist']:
        va = 241
    else:
        va = 4
        a.e('v_and_b32 v4, 15, v1')
        a.e(f'v_mul_u32_u24 v4, {PROW}, v4')
        a.e('v_lshrrev_b32 v5, 4, v1')
        a.e('v_lshl_add_u32 v4, v5, 4, v4')
        a.e(f's_mul_i32 s66, s{S_W}, {PARTW}')
        a.e(f's_add_u32 s66, s66, {L_PART}')
        a.e('v_add_u32 v4, s66, v4')
    a.e('s_barrier')
    for mt in range(4):
        for nt in range(4):
            acc = ACC + (mt * 4 + nt) * 4
            a.e(f'ds_write_b128 v{va}, v[{acc}:{acc+3}] offset:{nt*16*PROW + mt*64}')


def sum_partials(a, P):
    for h in range(4):
        a.e(f'v_pk_add_f32 v[{P+2*h}:{P+2*h+1}], v[{P+2*h}:{P+2*h+1}], v[{P+8+2*h}:{P+9+2*h}]')
        a.e(f'v_pk_add_f32 v[{P+16+2*h}:{P+17+2*h}], v[{P+16+2*h}:{P+17+2*h}], v[{P+24+2*h}:{P+25+2*h}]')
    for h in range(4):
        a.e(f'v_pk_add_f32 v[{P+2*h}:{P+2*h+1}], v[{P+2*h}:{P+2*h+1}], v[{P+16+2*h}:{P+17+2*h}]')


def b1_load(a):
    a.e(f's_lshl_b32 s67, s{S_I1}, 7')
    a.e(f's_lshl_b32 s70, s{S_W}, 5')
    a.e('s_add_u32 s67, s67, s70')
    a.e(f's_load_dwordx8 s[72:79], s[{P_B1}:{P_B1+1}], s67')


def gemm1_epilogue(a, d0=(), d1=()):
    write_partials(a)
    if OPT['hoist']:
        VR1, VG1 = 242, 240
    else:
        VR1, VG1 = 4, 5
        a.e(f'v_mul_u32_u24 v4, {PROW}, v1')
        a.e(f's_lshl_b32 s66, s{S_W}, 6')
        a.e(f's_add_u32 s66, s66, {L_PART}')
        a.e('v_add_u32 v4, s66, v4')
        g_store_addr(a, 5)
    C1 = 0.044715
    C2 = -2.0 * 0.7978845608028654 * 1.4426950408889634
    a.e(f'v_mov_b32 v100, {fx(C1*C2)}')
    a.e(f'v_mov_b32 v101, {fx(C1*C2)}')
    a.e(f'v_mov_b32 v102, {fx(C2)}')
    a.e(f'v_mov_b32 v103, {fx(C2)}')
    a.e('s_waitcnt lgkmcnt(0)')
    a.e('s_barrier')
    stamp(a, 24)
    for r in range(2):
        P = 16 + 32 * r
        for wv in range(4):
            a.e(f'ds_read_b128 v[{P+8*wv}:{P+8*wv+3}], v{VR1} offset:{wv*PARTW + r*32}')
            a.e(f'ds_read_b128 v[{P+8*wv+4}:{P+8*wv+7}], v{VR1} offset:{wv*PARTW + r*32 + 16}')
    for i in range(8):
        a.e(f's_lshl_b32 s{80+2*i}, s{72+i}, 16')
        a.e(f's_and_b32 s{81+2*i}, s{72+i}, 0xffff0000')
    for r in range(2):
        P = 16 + 32 * r
        T = 80
        a.e(f's_waitcnt lgkmcnt({8 if r == 0 else 0})')
        if r == 1 and d1:
            a.e('s_barrier')
        dd = d0 if r == 0 else d1
        if dd:
            a.inject(dd, max(1, 80 // len(dd)))
        sum_partials(a, P)
        round_pairs(a, P, T, 8)
        for h in range(4):
            a.e(f'v_pk_add_f32 v[{P+2*h}:{P+2*h+1}], v[{P+2*h}:{P+2*h+1}], s[{80+8*r+2*h}:{81+8*r+2*h}]')
        round_pairs(a, P, T, 8)
        for h in range(4):
            a.e(f'v_pk_mul_f32 v[{P+8+2*h}:{P+9+2*h}], v[{P+2*h}:{P+2*h+1}], v[{P+2*h}:{P+2*h+1}]')
        for h in range(4):
            a.e(f'v_pk_fma_f32 v[{P+8+2*h}:{P+9+2*h}], v[{P+8+2*h}:{P+9+2*h}], v[100:101], v[102:103]')
        for h in range(4):
            a.e(f'v_pk_mul_f32 v[{P+8+2*h}:{P+9+2*h}], v[{P+8+2*h}:{P+9+2*h}], v[{P+2*h}:{P+2*h+1}]')
        for i in range(8):
            a.e(f'v_exp_f32 v{P+8+i}, v{P+8+i}')
        for h in range(4):
            a.e(f'v_pk_add_f32 v[{P+8+2*h}:{P+9+2*h}], v[{P+8+2*h}:{P+9+2*h}], 1.0 op_sel_hi:[1,0]')
        for i in range(8):
            a.e(f'v_rcp_f32 v{P+8+i}, v{P+8+i}')
        for h in range(4):
            a.e(f'v_pk_mul_f32 v[{P+2*h}:{P+2*h+1}], v[{P+2*h}:{P+2*h+1}], v[{P+8+2*h}:{P+9+2*h}]')
        O = 88 + 4 * r
        for h in range(4):
            a.e(f'v_cvt_pk_bf16_f32 v{O+h}, v{P+2*h}, v{P+2*h+1}')
        a.inj_flush()
        if r == 1:
            a.e(f'v_add_u32 v{VG1}, 7168, v{VG1}')
        a.e(f'buffer_store_dwordx4 v[{O}:{O+3}], v{VG1}, {WSR}, 0 offen sc1')


V_OUT, V_HAD, V_B2 = 210, 211, 212
V_HR = 196


def gemm2_addr(a):
    srd(a, S_T2, P_OUT, XBYTES)
    srd(a, S_T3, P_B2, L * 2)
    a.e('v_lshrrev_b32 v4, 3, v1')
    a.e('v_and_b32 v5, 7, v1')
    a.e(f's_lshl_b32 s66, s{S_W}, 4')
    a.e('v_add_u32 v4, s66, v4')
    a.e(f's_lshl_b32 s67, s{S_I2}, 6')
    a.e('v_add_u32 v7, s67, v4')
    a.e(f'v_mul_u32_u24 v{V_OUT}, 896, v7')
    a.e(f'v_lshl_add_u32 v{V_OUT}, v5, 4, v{V_OUT}')
    a.e(f's_mul_i32 s70, s{S_J}, 112')
    a.e(f'v_add_u32 v{V_OUT}, s70, v{V_OUT}')
    a.e(f'v_mov_b32 v6, {OOB}')
    a.e('v_cmp_gt_u32 vcc, 7, v5')
    a.e(f'v_cndmask_b32 v{V_OUT}, v6, v{V_OUT}, vcc')
    a.e(f'v_add_u32 v{V_HAD}, {WS_H}, v{V_OUT}')
    a.e(f'v_lshlrev_b32 v{V_B2}, 1, v7')


def gemm2_tail_loads(fill):
    fill.append(f'buffer_load_dwordx4 v[{V_HR}:{V_HR+3}], v{V_HAD}, {WSR}, 0 offen sc1')
    fill.append(f's_mov_b32 s70, {8*896}')
    fill.append(f'buffer_load_dwordx4 v[{V_HR+4}:{V_HR+7}], v{V_HAD}, {WSR}, s70 offen sc1')
    fill.append(f'buffer_load_ushort v{V_HR+8}, v{V_B2}, s[{S_T3}:{S_T3+3}], 0 offen')
    fill.append(f'buffer_load_ushort v{V_HR+9}, v{V_B2}, s[{S_T3}:{S_T3+3}], 0 offen offset:16')
    return 4


def gemm2_epilogue(a):
    write_partials(a)
    if OPT['hoist']:
        VR2 = 243
    else:
        VR2 = 6
        a.e('v_lshrrev_b32 v4, 3, v1')
        a.e('v_and_b32 v5, 7, v1')
        a.e(f's_lshl_b32 s66, s{S_W}, 4')
        a.e('v_add_u32 v4, s66, v4')
        a.e(f'v_mul_u32_u24 v6, {PROW}, v4')
        a.e('v_lshl_add_u32 v6, v5, 4, v6')
        a.e(f'v_add_u32 v6, {L_PART}, v6')
    a.e('s_waitcnt lgkmcnt(0)')
    a.e('s_barrier')
    stamp(a, 33)
    for r in range(2):
        P = 16 + 32 * r
        for wv in range(4):
            a.e(f'ds_read_b128 v[{P+8*wv}:{P+8*wv+3}], v{VR2} offset:{wv*PARTW + r*8*PROW}')
            a.e(f'ds_read_b128 v[{P+8*wv+4}:{P+8*wv+7}], v{VR2} offset:{wv*PARTW + r*8*PROW + 112}')
    a.e('s_waitcnt vmcnt(0)')
    for r in range(2):
        P = 16 + 32 * r
        T = 80
        H = V_HR + 4 * r
        a.e(f'v_lshlrev_b32 v106, 16, v{V_HR+8+r}')
        for i in range(4):
            a.e(f'v_lshlrev_b32 v{96+i}, 16, v{H+i}')
            a.e(f'v_and_b32 v{100+i}, 0xffff0000, v{H+i}')
        a.e(f's_waitcnt lgkmcnt({8 if r == 0 else 0})')
        sum_partials(a, P)
        round_pairs(a, P, T, 8)
        for h in range(4):
            a.e(f'v_pk_add_f32 v[{P+2*h}:{P+2*h+1}], v[{P+2*h}:{P+2*h+1}], v[106:107] op_sel:[0,0] op_sel_hi:[1,0]')
        round_pairs(a, P, T, 8)
        for h in range(4):
            a.e(f'v_pk_add_f32 v[{P+2*h}:{P+2*h+1}], v[{P+2*h}:{P+2*h+1}], v[{96+2*h}:{97+2*h}]')
        O = 88 + 4 * r
        for i in range(4):
            a.e(f'v_cvt_pk_bf16_f32 v{O+i}, v{P+i}, v{P+4+i}')
        if r == 1:
            a.e(f'v_add_u32 v{V_OUT}, {8*896}, v{V_OUT}')
        a.e(f'buffer_store_dwordx4 v[{O}:{O+3}], v{V_OUT}, s[{S_T2}:{S_T2+3}], 0 offen' + ['', ' sc1', ' nt', ' sc0 sc1', ' sc1 nt'][OPT['outsc']])


HEADER = """;
"""


def build():
    a = Prog()
    name = NAME + '_kernel'
    lend = a.lab('end')
    a.raw(f'.globl {name}')
    a.raw('.p2align 8')
    a.raw(f'.type {name},@function')
    a.raw(f'{name}:')
    prologue(a, lend)
    lnc1, lnc2, lnc3, lnc5, lnc6 = [a.lab('noconv') for _ in range(5)]

    def skip_if_helper(l):
        a.e(f's_cmp_ge_u32 s{S_LOC}, 28')
        a.e(f's_cbranch_scc1 {l}')

    load_xrows(a)
    ncp = 0
    if OPT['cpf'] & 2:
        code_prefetch1(a, name, 'kcode_end')
        ncp = 1
    a.e(f's_add_u32 s66, s{P_WS}, {WS_EPOCH}')
    a.e(f's_addc_u32 s67, s{P_WS+1}, 0')
    a.e('s_load_dword s99, s[66:67], 0')
    poison_regs(a)
    skip_if_helper(lnc1)
    nt = 0
    if not OPT['plate']:
        kgen_loads(a)
        load_gather_table(a, 'ktab_idx')
        w_setup(a)
        if OPT['tlb'] & 2:
            nt = tlb_touch(a)
        flag_addr(a)
        if OPT['hoist']:
            hoist_common(a)
            hoist_conv(a)
        a.e('s_waitcnt lgkmcnt(0)')
        a.e(f's_add_u32 s{S_TAG}, s99, 0x9e3779b9')
        a.e(f's_waitcnt vmcnt({10 + nt + ncp})')
        stamp(a, 2)
        clear_hh(a)
        clear_aout(a)
    else:
        kgen_loads(a, 'setup')
        w_setup(a)
        flag_addr(a)
        a.e(f's_waitcnt vmcnt({ncp})')
        stamp(a, 2)
        kgen_loads(a, 'issue')
        clear_hh(a)
        clear_aout(a)
        load_gather_table(a, 'ktab_idx')
        if OPT['tlb'] & 2:
            nt = tlb_touch(a)
        a.e('s_waitcnt lgkmcnt(0)')
        a.e(f's_add_u32 s{S_TAG}, s99, 0x9e3779b9')
    ln_stats(a, list(range(8, 16)), 16, L_RED0, 5)
    stamp(a, 3)
    publish_xn(a)
    nb0 = OPT['wb0']
    if OPT['sched'] == 2:
        qa, qb = OPT['qa'], OPT['qb']
        qpf_load(a, qa)
        stamp(a, 4)
        a.e(f's_waitcnt vmcnt({8 + nt + qa})')
        kgen_channel(a, 0, DK0)
        for k in range(nb0):
            w_dma(a, 1, k, BS[k])
        stamp(a, 40)
        kgen_channel(a, 1, DK1, mid=lambda: publish_flag(a, qa + 4 * nb0), mid_m0=False)
        stamp(a, 5)
        qpf_load(a, qb)
        a.e(f's_waitcnt vmcnt({qb})')
        for k in range(nb0):
            w_tr(a, k, BS[k])
        ktab_part1(a)
        stamp(a, 6)
        flag_load(a)
        ktab_part2(a)
        stamp(a, 7)
        a.e(f's_mov_b32 s{S_EARLY}, 0')
        lne = a.lab('notearly')
        a.e('s_waitcnt vmcnt(0)')
        a.e(f'v_cmp_ne_u32 vcc, s{S_TAG}, v{V_FV}')
        a.e(f's_cbranch_vccnz {lne}')
        load_u(a)
        a.e(f's_mov_b32 s{S_EARLY}, 1')
        a.e(f'{lne}:')
        conv_addr(a)
        kcopies(a)
        stamp(a, 8)
        lhave = a.lab('haveu')
        a.e(f's_cmp_lg_u32 s{S_EARLY}, 0')
        a.e(f's_cbranch_scc1 {lhave}')
        flag_poll(a)
        load_u(a)
        a.e(f'{lhave}:')
        stamp(a, 9)
        store_u(a, 0)
    elif OPT['sched'] == 3:
        nq = (448 - OPT['hR']) // 32
        ne = 0
        if OPT['cearly']:
            assert OPT['regc']
            for k in range(2):
                w_dma(a, 1, k, f'C{k}')
            q4 = min(OPT['q4'], nq)
            qpf_load(a, q4)
            ne = 8 + q4
            nq -= q4
        stamp(a, 4)
        a.e(f's_waitcnt vmcnt({8 + nt + ne})')
        m0 = kgen_channel(a, 0, DK0, defer=bool(OPT['kdefer']))
        if not OPT['flagmid']:
            publish_flag(a, ne)
        if OPT['regc']:
            nb0 = 2
            if not OPT['cearly']:
                for k in range(2):
                    w_dma(a, 1, k, f'C{k}')
        else:
            for k in range(nb0):
                w_dma(a, 1, k, BS[k])
        if OPT['cearly']:
            qpf_load(a, nq)
            nq = 0
        stamp(a, 40)
        if OPT['flagmid']:
            assert OPT['regc'] and not OPT['cearly']
            kgen_channel(a, 1, DK1, mid=lambda: publish_flag(a, 8), mid_m0=False)
        else:
            kgen_channel(a, 1, DK1, after_setup=m0)
        stamp(a, 5)
        flag_load(a)
        qpf_load(a, nq)
        if not OPT['regc']:
            a.e(f's_waitcnt vmcnt({nq + 1})')
            for k in range(nb0):
                w_tr(a, k, BS[k])
        ktab_part1(a)
        stamp(a, 6)
        a.e(f's_mov_b32 s{S_EARLY}, 0')
        lne = a.lab('notearly')
        a.e(f's_waitcnt vmcnt({nq})')
        a.e(f'v_cmp_ne_u32 vcc, s{S_TAG}, v{V_FV}')

        def early_u():
            a.e(f's_cbranch_vccnz {lne}')
            load_u(a)
            a.e(f's_mov_b32 s{S_EARLY}, 1')
            a.e(f'{lne}:')
        if OPT['uov']:
            assert OPT['hoist']
            ktab_part2(a, mid=early_u)
        else:
            early_u()
            ktab_part2(a)
        stamp(a, 7)
        if not OPT['hoist']:
            conv_addr(a)
        kcopies(a)
        stamp(a, 8)
        lhave = a.lab('haveu')
        a.e(f's_cmp_lg_u32 s{S_EARLY}, 0')
        a.e(f's_cbranch_scc1 {lhave}')
        flag_poll(a)
        load_u(a)
        a.e(f'{lhave}:')
        stamp(a, 9)
        store_u(a, 0)
    else:
        stamp(a, 4)
        a.e(f's_waitcnt vmcnt({8 + nt})')
        kgen_channel(a, 0, DK0)
        publish_flag(a)
        for k in range(min(nb0, 3)):
            w_dma(a, 1, k, BS[k])
        stamp(a, 40)
        kgen_channel(a, 1, DK1, mid=(lambda: [w_dma(a, 1, k, BS[k]) for k in range(3, nb0)]) if nb0 > 3 else None)
        stamp(a, 5)
        if OPT['early']:
            flag_load(a)
            a.e('s_waitcnt vmcnt(1)')
        else:
            a.e('s_waitcnt vmcnt(0)')
        for k in range(nb0):
            w_tr(a, k, BS[k])
        ktab_part1(a)
        stamp(a, 6)
        a.e(f's_mov_b32 s{S_EARLY}, 0')
        lne = a.lab('notearly')
        if OPT['early']:
            a.e('s_waitcnt vmcnt(0)')
            a.e(f'v_cmp_ne_u32 vcc, s{S_TAG}, v{V_FV}')
            a.e(f's_cbranch_vccnz {lne}')
            load_u(a)
            a.e(f's_mov_b32 s{S_EARLY}, 1')
            a.e(f'{lne}:')
        qpf_load(a, OPT['w2pf_a'])
        ktab_part2(a)
        stamp(a, 7)
        if not OPT['hoist']:
            conv_addr(a)
        kcopies(a)
        stamp(a, 8)
        lhave = a.lab('haveu')
        a.e(f's_cmp_lg_u32 s{S_EARLY}, 0')
        a.e(f's_cbranch_scc1 {lhave}')
        flag_poll(a)
        load_u(a)
        a.e('s_waitcnt vmcnt(0)')
        a.e(f'{lhave}:')
        stamp(a, 9)
        store_u(a, OPT['w2pf_a'])
    epoch_update(a)
    clear_g(a)
    if OPT['sched'] == 1:
        qpf_load(a, OPT['w2pf_b'])
    stamp(a, 10)
    hk = []
    cre = OPT['cre'] and OPT['regc']
    if cre:
        for k in range(2):
            w_tr(a, k, f'C{k}')
        for k, sl in enumerate(AS + ['C0', 'C1']):
            for i in range(4):
                hk.append(lambda k=k, sl=sl, i=i: w_dma1(a, 1, 2 + k, sl, i))
                if i % 2 == 1:
                    hk.append(lambda: None)
    else:
        for k in range(4):
            for i in range(4):
                hk.append(lambda k=k, i=i: w_dma1(a, 1, nb0 + k, AS[k], i))
                hk.append(lambda: None)
    if OPT['nohk']:
        hk = []
    elif OPT['hkpos'] == 1:
        hk = [h for i, h in enumerate(hk) if i % 2 == 0]
    elif OPT['hkpos'] == 2:
        hk = [lambda: None] * 18 + [h for i, h in enumerate(hk) if i % 2 == 0]
    phase_conv(a, hk, 0)
    stamp(a, 12)
    if cre:
        for k, sl in enumerate(AS + ['C0', 'C1']):
            w_tr(a, 2 + k, sl)
        nb0 = 4
    else:
        if OPT['regc']:
            for k in range(2):
                w_tr(a, k, f'C{k}')
        for k in range(4):
            w_tr(a, nb0 + k, AS[k])
    a.e('s_waitcnt lgkmcnt(0)')
    a.e('s_barrier')
    rest = list(range(nb0 + 4, 16))
    last = None
    if len(rest) > 9:
        last = rest.pop()
    rest_slots = (BS + AS)[:len(rest)]
    p4d = []
    if OPT['p4dma']:
        assert OPT['hpriv']
        p4d = [lambda k=k, sl=sl, i=i: w_dma1(a, 1, k, sl, i) for k, sl in zip(rest, rest_slots) for i in range(4)]
    else:
        for k, sl in zip(rest, rest_slots):
            w_dma(a, 1, k, sl)
    stamp(a, 13)
    a.e(f's_branch {lnc2}')
    a.e(f'{lnc1}:')
    nh = 0
    if OPT['cpf'] & 1:
        code_prefetch(a, name, 'kcode_end')
        nh += 3
    w_setup(a)
    if OPT['tlb'] & 1:
        nh += tlb_touch(a)
    flag_addr(a)
    if OPT['hoist']:
        hoist_common(a)
    a.e('s_waitcnt lgkmcnt(0)')
    a.e(f's_add_u32 s{S_TAG}, s99, 0x9e3779b9')
    a.e(f's_waitcnt vmcnt({nh + ncp})')
    clear_hh(a)
    ln_stats(a, list(range(8, 16)), 16, L_RED0, 5)
    publish_xn(a)
    publish_flag(a)
    if OPT['sched'] == 3 and OPT['hsplit']:
        qpf_load(a, (448 - OPT['hR']) // 32)

        def hcheck():
            lok = a.lab('hflags')
            a.e(f'v_cmp_ne_u32 vcc, s{S_TAG}, v{V_FV}')
            a.e(f's_cbranch_vccz {lok}')
            flag_poll(a)
            a.e(f'{lok}:')
            a.e('s_barrier')
        helper_w2(a, OPT['hR'], mid=(OPT['hn1'], lambda: flag_load(a), hcheck))
        stamp(a, 41)
    else:
        if OPT['sched'] == 3:
            qpf_load(a, (448 - OPT['hR']) // 32)
            helper_w2(a, OPT['hR'])
        else:
            qpf_load(a, 14)
        stamp(a, 41)
        flag_poll(a)
        a.e('s_barrier')
    if p4d:
        a.e(f's_mov_b32 s{S_W1+2}, 0')
    stamp(a, 42)
    a.e(f'{lnc2}:')
    phase_p4(a, p4d)
    stamp(a, 20)
    gemm2_addr(a)
    skip_if_helper(lnc3)
    b1_load(a)
    if p4d:
        a.e('s_waitcnt vmcnt(2)')
    for k, sl in zip(rest, rest_slots):
        w_tr(a, k, sl)
    a.e('s_waitcnt lgkmcnt(0)')
    if last is not None:
        w_dma(a, 1, last, 'A0')
    for k in range(5):
        w_dma(a, 2, k, BS[k])
    if last is not None:
        a.e('s_waitcnt vmcnt(20)')
        w_tr(a, last, 'A0')
        a.e('s_waitcnt lgkmcnt(0)')
    stamp(a, 21)
    w2sh = OPT['w2sh'] and OPT['stchk'] and OPT['h4early']

    def side1(kn):
        if 6 <= kn <= 10:
            return capture(lambda p: w_tr(p, kn - 6, BS[kn - 6])), 0
        if 13 <= kn <= 15:
            pre = ['s_waitcnt lgkmcnt(0)'] if kn == 13 else []
            return pre + capture(lambda p: w_dma(p, 2, kn - 8, BS[kn - 13])), 4
        return [], 0

    gemm_poll_main(a, WS_HH, 64, 16, 1, 22, side=side1 if w2sh else None)
    stamp(a, 23)
    if OPT['h4early']:
        if not w2sh:
            for k in range(5):
                w_tr(a, k, BS[k])
            a.e('s_waitcnt lgkmcnt(0)')
            for k in range(5, 5 + OPT['npre']):
                w_dma(a, 2, k, BS[k - 5])
        if OPT['e1dma']:
            d0 = [lambda k=k, i=i: w_dma1(a, 2, k, BS[k - 5], i) for k in range(8, 10) for i in range(4)]
            d1 = [lambda k=k, i=i: w_dma1(a, 2, k, AS[k - 10], i) for k in range(10, 14) for i in range(4)]
            gemm1_epilogue(a, d0, d1)
            stamp(a, 25)
            w1, w2, w3 = 26, 18, 1
        else:
            gemm1_epilogue(a)
            stamp(a, 25)
            npre = 3 if w2sh else OPT['npre']
            for k in range(5 + npre, 10):
                w_dma(a, 2, k, BS[k - 5])
            a.e('s_barrier')
            for k in range(10, 14):
                w_dma(a, 2, k, AS[k - 10])
            w1, w2, w3 = 24 + (0 if npre < 3 else 0), 16, 0
            w1 = 26 if npre == 3 else 24
        a.e(f's_waitcnt vmcnt({w1})')
        for k in range(5, 8):
            w_tr(a, k, BS[k - 5])
        a.e(f's_waitcnt vmcnt({w2})')
        for k in range(8, 10):
            w_tr(a, k, BS[k - 5])
        a.e(f's_waitcnt vmcnt({w3})')
        for k in range(10, 14):
            w_tr(a, k, AS[k - 10])
        a.e('s_waitcnt lgkmcnt(0)')
        a.e(f's_branch {lnc6}')
    else:
        gemm1_epilogue(a)
        stamp(a, 25)
        for k in range(5):
            w_tr(a, k, BS[k])
        a.e('s_waitcnt lgkmcnt(0)')
        a.e('s_barrier')
        a.e(f's_branch {lnc5}')
    a.e(f'{lnc3}:')
    for k in range(5):
        w_dma(a, 2, k, BS[k])
    a.e('s_waitcnt vmcnt(0)')
    for k in range(5):
        w_tr(a, k, BS[k])
    a.e('s_waitcnt lgkmcnt(0)')
    a.e(f'{lnc5}:')
    for k in range(5, 10):
        w_dma(a, 2, k, BS[k - 5])
    for k in range(10, 14):
        w_dma(a, 2, k, AS[k - 10])
    a.e('s_waitcnt vmcnt(16)')
    for k in range(5, 10):
        w_tr(a, k, BS[k - 5])
    a.e('s_waitcnt vmcnt(0)')
    for k in range(10, 14):
        w_tr(a, k, AS[k - 10])
    a.e('s_waitcnt lgkmcnt(0)')
    a.e(f'{lnc6}:')
    stamp(a, 30)
    gemm_poll_main(a, WS_G, 56, 14, 2, 31, gemm2_tail_loads)
    stamp(a, 32)
    gemm2_epilogue(a)
    stamp_clk(a, 61)
    stamp(a, 63)
    stamp_flush(a)
    a.e(f'{lend}:')
    a.e('s_endpgm')
    for emit in STUBS:
        emit()
    del STUBS[:]
    a.raw('kcode_end:')
    emit_gather_table(a, 'ktab_idx')
    nn = a.fast_insert_nops()
    head = f'; @launch grid=(256,1,1) block=(256,1,1) lds={LDS_BYTES}\n'
    head += HEADER
    head += '.amdgcn_target "amdgcn-amd-amdhsa--gfx950"\n.text\n'
    tail = '.section .rodata,"a"\n.p2align 6\n' + descriptor(name)
    if OPT['align']:
        nal = a.align8(head, tail)
        sys.stderr.write(f'alignment: {nal}\n')
    sys.stderr.write(f'instructions: {a.count()}, nops inserted: {nn}\n')
    return head + a.text() + tail


if __name__ == '__main__':
    out = sys.argv[1]
    for arg in sys.argv[2:]:
        if arg == 'stamps':
            OPT['stamps'] = True
        elif arg == 'dbg':
            OPT['stamps'] = True
            OPT['dbgsel'] = [0, 1, 2, 4, 8, 9, 12, 13, 14, 20, 21, 23, 25, 30, 32, 63]
        elif '=' in arg:
            k, v = arg.split('=')
            OPT[k] = int(v)
    open(out, 'w').write(build())
```

```python
import sys
import gen
from gen import (Prog, NAME, L, D, F, XBYTES, PBYTES, W1BYTES, W2BYTES, OOB, fx, srd, reduce16, cmul, exp_bf16,
                 gather_table, emit_gather_table, descriptor, round_pairs, norm_tok, bcast_stats)

OPT = dict(prebar=1, lastw=1, slp=0, hn1=11, hsplit=0, hoist=0, cre=0, uov=0, tlbout=0, kdefer=0, flagmid=0, npre=3, nohk=0, hkpos=0, w2sh=1, stchk=1, p4dma=0, p4ev=6, e1dma=0, plate=0, cearly=0, q4=4, hpriv=1, regc=1, hR=320, c4=1, kgrp=3, tlbg=21, cpf=1, sched=3, qa=7, qb=7, tlb=3, outsc=0, x3oob=1, h4early=1, wb0=3, xnb=1, stamps=False, dbgsel=None, w2pf_a=10, w2pf_b=4, nfl=3, early=True, align=True, hlds=True)

WS_FLAG = 0x4000
WS_EPOCH = 0x9000
WS_AOUT = 0x10000
AST = 8448
WS_H = 0x200000
WS_HH = 0x400000
WS_G = 0x600000
WS_DBG = 0x800000
WS_XN = 0xA00000
XCS = 4352
XPS = 2 * XCS
WS_USED = 0x1000000

L_RED0, L_RED1, L_SIG, L_KT = 0, 256, 512, 640
KTCH = 1600
L_U = L_KT + 2 * KTCH
UCH = 4608
L_SCR = L_U + 2 * UCH
SROW = 272
YROW = 41
SCRW = 57 * SROW
L_KC = 82688
KCOPY = 4160
KCH = 8 * KCOPY
L_CP = L_KC
LDS_BYTES = 160 * 1024
L_WA, L_WB = 13056, 78592
L_WC = 123904
L_PART = 1024
PROW = 272
PARTW = 64 * PROW
L_HT = 1024

S_WS, S_X = 4, 8
S_T0, S_T1, S_T2, S_T3 = 12, 16, 20, 24
S_W1, S_W2 = 12, 16
S_W, S_XCD, S_LOC, S_B, S_P, S_J, S_I1, S_I2 = 28, 29, 30, 31, 32, 33, 34, 35
P_X, P_LAR, P_AI, P_CR, P_CI, P_LDT, P_DSK = 36, 38, 40, 42, 44, 46, 48
P_W1, P_B1, P_W2, P_B2, P_OUT, P_DBG, P_WS = 52, 54, 56, 58, 60, 62, 64
S_SA, S_SB = 50, 51
S_RW1, S_RX1, S_RW2, S_RX2 = 38, 39, 40, 41
S_QPF = 42
S_EARLY = 43
S_SC = 44
V_TC = 236
S_TAG, S_SPIN, S_RETRY = 96, 97, 98
V_D1, V_D2, V_TA, V_TB = 224, 228, 244, 248
V_QPF = 232
SPIN_MAX, RETRY_MAX = 4000, 20
AS = ['A0', 'A1', 'A2', 'A3']
BS = ['B0', 'B1', 'B2', 'B3', 'B4']
WSR = f's[{S_WS}:{S_WS+3}]'

assert (gen.S_W, gen.S_B, gen.S_WS) == (S_W, S_B, S_WS)


def stamp(a, idx):
    if not OPT['stamps']:
        return
    sel = OPT['dbgsel']
    if sel is not None:
        if idx not in sel:
            return
        idx = sel.index(idx)
    a.e('s_memrealtime s[100:101]')
    a.e('s_waitcnt lgkmcnt(0)')
    a.e(f'v_writelane_b32 v255, s100, {idx}')


def stamp_clk(a, idx):
    if not OPT['stamps'] or OPT['dbgsel'] is not None:
        return
    a.e('s_memtime s[100:101]')
    a.e('s_waitcnt lgkmcnt(0)')
    a.e(f'v_writelane_b32 v255, s100, {idx}')


def stamp_flush(a):
    if not OPT['stamps']:
        return
    l = a.lab('nost')
    a.e(f's_cmp_lg_u32 s{S_W}, 0')
    a.e(f's_cbranch_scc1 {l}')
    if OPT['dbgsel'] is not None:
        a.e('v_not_b32 v253, v255')
        a.e('v_cmp_eq_u32 vcc, 0, v1')
        a.e('v_cndmask_b32 v255, v255, v253, vcc')
        a.e('v_lshlrev_b32 v254, 2, v1')
        a.e('s_mov_b64 exec, 0xffff')
        a.e(f'global_atomic_umax v254, v255, s[{P_DBG}:{P_DBG+1}]')
        a.e('s_mov_b64 exec, -1')
    else:
        a.e('s_lshl_b32 s66, s2, 8')
        a.e(f's_add_u32 s66, s66, {WS_DBG}')
        a.e('v_lshl_add_u32 v254, v1, 2, s66')
        a.e(f'buffer_store_dword v255, v254, {WSR}, 0 offen')
    a.e(f'{l}:')


def spin_tail(a, lp):
    if OPT['slp']:
        a.e(f's_sleep {OPT["slp"]}')
    a.e(f's_add_u32 s{S_SPIN}, s{S_SPIN}, 1')
    a.e(f's_cmp_lt_u32 s{S_SPIN}, {SPIN_MAX}')
    a.e(f's_cbranch_scc1 {lp}')


def mask_lanes(a, v, n, tmp, src='v1'):
    a.e(f'v_mov_b32 v{tmp}, {OOB}')
    a.e(f'v_cmp_gt_u32 vcc, {n}, {src}')
    a.e(f'v_cndmask_b32 v{v}, v{tmp}, v{v}, vcc')


def prologue(a, lend):
    a.e('s_cmp_ge_u32 s2, 256')
    a.e(f's_cbranch_scc1 {lend}')
    if OPT['stamps']:
        a.e('v_mov_b32 v255, 0')
        stamp(a, 0)
        stamp_clk(a, 60)
    a.e('s_load_dwordx16 s[36:51], s[0:1], 0')
    a.e('s_load_dwordx8 s[52:59], s[0:1], 64')
    a.e('s_load_dwordx4 s[60:63], s[0:1], 96')
    a.e('s_load_dwordx2 s[64:65], s[0:1], 112')
    a.e('v_and_b32 v1, 63, v0')
    a.e('v_lshrrev_b32 v2, 6, v0')
    a.e(f's_and_b32 s{S_XCD}, s2, 7')
    a.e(f'v_readfirstlane_b32 s{S_W}, v2')
    a.e(f's_lshr_b32 s{S_LOC}, s2, 3')
    a.e(f's_lshl_b32 s{S_B}, s{S_XCD}, 5')
    a.e(f's_add_u32 s{S_B}, s{S_B}, s{S_LOC}')
    a.e(f's_mul_i32 s{S_P}, s{S_XCD}, 28')
    a.e(f's_add_u32 s{S_P}, s{S_P}, s{S_LOC}')
    a.e(f's_and_b32 s{S_J}, s{S_XCD}, 1')
    a.e(f's_lshl_b32 s{S_J}, s{S_J}, 2')
    a.e(f's_and_b32 s3, s{S_LOC}, 3')
    a.e(f's_add_u32 s{S_J}, s{S_J}, s3')
    a.e(f's_lshr_b32 s3, s{S_XCD}, 1')
    a.e(f's_lshr_b32 s66, s{S_LOC}, 2')
    a.e(f's_mul_i32 s{S_I1}, s3, 7')
    a.e(f's_add_u32 s{S_I1}, s{S_I1}, s66')
    a.e(f's_lshl_b32 s{S_I2}, s3, 3')
    a.e(f's_add_u32 s{S_I2}, s{S_I2}, s66')
    a.e('s_waitcnt lgkmcnt(0)')
    srd(a, S_X, P_X, XBYTES)
    srd(a, S_WS, P_WS, WS_USED)
    stamp(a, 1)


def xrow_addr(a):
    a.e(f's_mul_i32 s66, s{S_W}, 224')
    a.e(f's_mul_i32 s67, s{S_B}, {8*896}')
    a.e('s_add_u32 s66, s66, s67')
    a.e('v_lshl_add_u32 v2, v1, 2, s66')
    mask_lanes(a, 2, 56, 3)
    a.e('v_add_u32 v3, 4480, v2')


def load_xrows(a):
    xrow_addr(a)
    for j in range(8):
        v, o = (2, j * 896) if j < 5 else (3, (j - 5) * 896)
        a.e(f'buffer_load_dword v{8+j}, v{v}, s[{S_X}:{S_X+3}], 0 offen offset:{o}')


def ln_stats(a, X, T, red, vt, mid=None):
    a.e('s_mov_b32 s66, 0x3f803f80')
    for j in range(8):
        a.e(f'v_dot2_f32_bf16 v{T+j}, v{X[j]}, s66, 0')
        a.e(f'v_dot2_f32_bf16 v{T+8+j}, v{X[j]}, v{X[j]}, 0')
    a.e(f'v_lshlrev_b32 v{vt}, 2, v1')
    a.e(f'v_and_b32 v{vt}, 0xf0, v{vt}')
    a.e(f's_lshl_b32 s66, s{S_W}, 2')
    a.e(f'v_add_u32 v{vt}, s66, v{vt}')
    reduce16(a, [T + i for i in range(16)])
    a.inj_pause()
    a.e('s_mov_b32 exec_lo, 0x11111111')
    a.e('s_mov_b32 exec_hi, 0x11111111')
    a.e(f'ds_write_b32 v{vt}, v{T} offset:{red}')
    a.e('s_mov_b64 exec, -1')
    a.inj_resume()
    a.e(f'v_and_b32 v{vt}, 7, v1')
    a.e(f'v_lshlrev_b32 v{vt}, 4, v{vt}')
    a.e('s_waitcnt lgkmcnt(0)')
    a.e('s_barrier')
    a.e(f'ds_read_b128 v[{T}:{T+3}], v{vt} offset:{red}')
    a.e(f'ds_read_b128 v[{T+4}:{T+7}], v{vt} offset:{red+128}')
    n_mid = mid() if mid else 0
    a.e(f's_waitcnt lgkmcnt({1 + n_mid})')
    a.e(f'v_pk_add_f32 v[{T}:{T+1}], v[{T}:{T+1}], v[{T+2}:{T+3}]')
    a.e(f's_waitcnt lgkmcnt({n_mid})')
    a.e(f'v_pk_add_f32 v[{T+4}:{T+5}], v[{T+4}:{T+5}], v[{T+6}:{T+7}]')
    a.e(f'v_add_f32 v{T}, v{T}, v{T+1}')
    a.e(f'v_add_f32 v{T+4}, v{T+4}, v{T+5}')
    a.e(f'v_mul_f32 v{T}, {fx(1.0/448)}, v{T}')
    a.e(f'v_mul_f32 v{T+4}, {fx(1.0/448)}, v{T+4}')
    a.e(f'v_fma_f32 v{T+4}, -v{T}, v{T}, v{T+4}')
    a.e(f'v_max_f32 v{T+4}, 0, v{T+4}')
    a.e(f'v_cvt_pk_bf16_f32 v{T+4}, v{T+4}, v{T+4}')
    a.e(f'v_lshlrev_b32 v{T+4}, 16, v{T+4}')
    a.e(f'v_add_f32 v{T+4}, {fx(1e-5)}, v{T+4}')
    a.e(f'v_cvt_pk_bf16_f32 v{T+4}, v{T+4}, v{T+4}')
    a.e(f'v_lshlrev_b32 v{T+4}, 16, v{T+4}')
    a.e(f'v_sqrt_f32 v{T+4}, v{T+4}')
    a.e(f'v_cvt_pk_bf16_f32 v{T}, v{T}, v{T+4}')


def poison_regs(a):
    for r in range(216, 220):
        a.e(f'v_mov_b32 v{r}, -1')


def clear_hh(a):
    if OPT['hoist']:
        a.e(f'buffer_store_dwordx4 v[216:219], v184, {WSR}, 0 offen sc1')
        a.e(f'buffer_store_dwordx4 v[216:219], v185, {WSR}, 0 offen sc1')
        return
    a.e(f's_mul_i32 s66, s{S_B}, 7168')
    a.e(f's_add_u32 s66, s66, {WS_HH}')
    a.e('v_lshl_add_u32 v4, v0, 4, s66')
    a.e('v_add_u32 v5, 4096, v4')
    mask_lanes(a, 5, 192, 6, 'v0')
    a.e(f'buffer_store_dwordx4 v[216:219], v4, {WSR}, 0 offen sc1')
    a.e(f'buffer_store_dwordx4 v[216:219], v5, {WSR}, 0 offen sc1')


def clear_aout(a):
    if OPT['hoist']:
        a.e(f'buffer_store_dwordx4 v[216:219], v186, {WSR}, 0 offen sc1')
        a.e(f'buffer_store_dwordx4 v[216:219], v187, {WSR}, 0 offen sc1')
        return
    a.e(f's_mul_i32 s66, s{S_P}, {AST}')
    a.e(f's_add_u32 s66, s66, {WS_AOUT}')
    a.e('v_lshl_add_u32 v4, v0, 4, s66')
    a.e('v_add_u32 v5, 4096, v4')
    a.e(f'buffer_store_dwordx4 v[216:219], v4, {WSR}, 0 offen sc1')
    a.e(f'buffer_store_dwordx4 v[216:219], v5, {WSR}, 0 offen sc1')


def g_store_addr(a, vd):
    a.e(f's_lshl_b32 s66, s{S_I1}, 3')
    a.e(f's_lshl_b32 s70, s{S_W}, 1')
    a.e('s_add_u32 s66, s66, s70')
    a.e('s_mul_i32 s66, s66, 7168')
    a.e(f's_mul_i32 s70, s{S_J}, 896')
    a.e('s_add_u32 s66, s66, s70')
    a.e(f's_add_u32 s66, s66, {WS_G}')
    a.e(f'v_lshl_add_u32 v{vd}, v1, 4, s66')
    mask_lanes(a, vd, 56, 6)


def clear_g(a):
    if OPT['hoist']:
        a.e('v_add_u32 v5, 7168, v240')
        a.e(f'buffer_store_dwordx4 v[216:219], v240, {WSR}, 0 offen sc1')
        a.e(f'buffer_store_dwordx4 v[216:219], v5, {WSR}, 0 offen sc1')
        return
    g_store_addr(a, 4)
    a.e('v_add_u32 v5, 7168, v4')
    a.e(f'buffer_store_dwordx4 v[216:219], v4, {WSR}, 0 offen sc1')
    a.e(f'buffer_store_dwordx4 v[216:219], v5, {WSR}, 0 offen sc1')


def publish_xn(a):
    bcast_stats(a, 16)
    for j in range(8):
        d = 64 + 2 * j
        t = 48 + j
        a.e(f'v_lshlrev_b32 v{d}, 16, v{8+j}')
        a.e(f'v_and_b32 v{d+1}, 0xffff0000, v{8+j}')
        a.e(f'v_pk_add_f32 v[{d}:{d+1}], v[{d}:{d+1}], s[{72+2*j}:{73+2*j}] op_sel:[0,0] op_sel_hi:[1,0] neg_lo:[0,1] neg_hi:[0,1]')
        a.e(f'v_cvt_pk_bf16_f32 v{t}, v{d}, v{d+1}')
        a.e(f'v_lshlrev_b32 v{d}, 16, v{t}')
        a.e(f'v_and_b32 v{d+1}, 0xffff0000, v{t}')
        a.e(f'v_pk_mul_f32 v[{d}:{d+1}], v[{d}:{d+1}], s[{72+2*j}:{73+2*j}] op_sel:[0,1] op_sel_hi:[1,1]')
        a.e(f'v_cvt_pk_bf16_f32 v{t}, v{d}, v{d+1}')
        a.e(f'v_lshlrev_b32 v{d}, 16, v{t}')
        a.e(f'v_and_b32 v{d+1}, 0xffff0000, v{t}')
    for i in range(4):
        a.e(f'v_cvt_pk_f16_f32 v{80+i}, v{64+4*i}, v{66+4*i}')
        a.e(f'v_cvt_pk_f16_f32 v{84+i}, v{65+4*i}, v{67+4*i}')
    if OPT['hoist']:
        assert OPT['xnb']
        a.e(f'buffer_store_dwordx4 v[80:83], v188, {WSR}, 0 offen sc1')
        a.e(f'buffer_store_dwordx4 v[84:87], v189, {WSR}, 0 offen sc1')
        return
    if OPT['xnb']:
        a.e(f's_mul_i32 s66, s{S_W}, {56*16}')
        a.e(f's_mul_i32 s67, s{S_B}, 7168')
        a.e('s_add_u32 s66, s66, s67')
        a.e(f's_add_u32 s66, s66, {WS_XN}')
        a.e('v_lshl_add_u32 v4, v1, 4, s66')
        mask_lanes(a, 4, 56, 5)
        a.e('v_add_u32 v5, 3584, v4')
    else:
        a.e(f's_mul_i32 s66, s{S_W}, {56*XPS}')
        a.e(f's_lshl_b32 s67, s{S_B}, 4')
        a.e('s_add_u32 s66, s66, s67')
        a.e(f's_add_u32 s66, s66, {WS_XN}')
        a.e(f'v_mul_u32_u24 v4, {XPS}, v1')
        a.e('v_add_u32 v4, s66, v4')
        mask_lanes(a, 4, 56, 5)
        a.e(f'v_add_u32 v5, {XCS}, v4')
    a.e(f'buffer_store_dwordx4 v[80:83], v4, {WSR}, 0 offen sc1')
    a.e(f'buffer_store_dwordx4 v[84:87], v5, {WSR}, 0 offen sc1')


def publish_flag(a, vm=0):
    a.e(f's_waitcnt vmcnt({vm})')
    a.e('s_barrier')
    l = a.lab('noflag')
    a.e(f's_cmp_lg_u32 s{S_W}, 0')
    a.e(f's_cbranch_scc1 {l}')
    a.e(f's_lshl_b32 s66, s{S_B}, 6')
    a.e(f's_add_u32 s66, s66, {WS_FLAG}')
    a.e('v_mov_b32 v2, s66')
    a.e(f'v_mov_b32 v3, s{S_TAG}')
    a.e('s_mov_b64 exec, 1')
    a.e(f'buffer_store_dword v3, v2, {WSR}, 0 offen sc1')
    a.e('s_mov_b64 exec, -1')
    a.e(f'{l}:')


V_FA, V_FV = 233, 234


def flag_addr(a):
    a.e(f'v_lshlrev_b32 v{V_FA}, 6, v0')
    a.e(f'v_add_u32 v{V_FA}, {WS_FLAG}, v{V_FA}')


def flag_load(a):
    a.e(f'buffer_load_dword v{V_FV}, v{V_FA}, {WSR}, 0 offen sc1')


def flag_poll(a):
    lp, ld = a.lab('fpoll'), a.lab('fdone')
    a.e(f's_mov_b32 s{S_SPIN}, 0')
    a.e(f'{lp}:')
    flag_load(a)
    a.e('s_waitcnt vmcnt(0)')
    a.e(f'v_cmp_ne_u32 vcc, s{S_TAG}, v{V_FV}')
    a.e(f's_cbranch_vccz {ld}')
    spin_tail(a, lp)
    a.e(f'{ld}:')


def load_u(a):
    if OPT['hoist']:
        a.e(f'buffer_load_dwordx4 v[176:179], v190, {WSR}, 0 offen sc1')
        a.e(f'buffer_load_dwordx4 v[180:183], v191, {WSR}, 0 offen sc1')
        return
    if OPT['xnb']:
        a.e(f's_lshl_b32 s66, s{S_P}, 4')
        a.e(f's_add_u32 s66, s66, {WS_XN}')
        a.e('v_mul_u32_u24 v2, 7168, v0')
        a.e('v_add_u32 v2, s66, v2')
        a.e('v_add_u32 v3, 3584, v2')
    else:
        a.e(f's_mul_i32 s66, s{S_P}, {XPS}')
        a.e(f's_add_u32 s66, s66, {WS_XN}')
        a.e('v_lshl_add_u32 v2, v0, 4, s66')
        a.e(f'v_add_u32 v3, {XCS}, v2')
    a.e(f'buffer_load_dwordx4 v[176:179], v2, {WSR}, 0 offen sc1')
    a.e(f'buffer_load_dwordx4 v[180:183], v3, {WSR}, 0 offen sc1')


def epoch_update(a):
    le = a.lab('noep')
    a.e('s_cmp_lg_u32 s2, 0')
    a.e(f's_cbranch_scc1 {le}')
    a.e(f'v_mov_b32 v2, {WS_EPOCH}')
    a.e(f'v_mov_b32 v3, s{S_TAG}')
    a.e('s_mov_b64 exec, 1')
    a.e(f'buffer_store_dword v3, v2, {WSR}, 0 offen sc1')
    a.e('s_mov_b64 exec, -1')
    a.e(f'{le}:')


def code_prefetch(a, lstart, lend_):
    lp = a.lab('pcp')
    a.e('s_getpc_b64 s[74:75]')
    a.e(f'{lp}:')
    a.e(f's_sub_u32 s74, s74, {lp}-{lstart}')
    a.e('s_subb_u32 s75, s75, 0')
    a.e('v_lshlrev_b32 v4, 6, v0')
    a.e(f's_mov_b32 s76, {lend_}-{lstart}-4')
    a.e('v_add_u32 v5, 16384, v4')
    a.e('v_add_u32 v6, 32768, v4')
    a.e('v_min_u32 v4, s76, v4')
    a.e('v_min_u32 v5, s76, v5')
    a.e('v_min_u32 v6, s76, v6')
    a.e('global_load_dword v220, v4, s[74:75]')
    a.e('global_load_dword v220, v5, s[74:75]')
    a.e('global_load_dword v220, v6, s[74:75]')


def code_prefetch1(a, lstart, lend_):
    lp = a.lab('pcp')
    a.e('s_getpc_b64 s[74:75]')
    a.e(f'{lp}:')
    a.e('v_lshlrev_b32 v4, 6, v0')
    a.e(f's_mov_b32 s76, {lend_}-{lp}-4')
    a.e('v_min_u32 v4, s76, v4')
    a.e('global_load_dword v220, v4, s[74:75]')


def tlb_touch(a):
    g = OPT['tlbg']
    n = 0
    srd(a, S_T2, P_OUT, XBYTES)
    srd(a, S_T3, P_B2, L * 2)
    if g == 21:
        a.e('v_lshlrev_b32 v4, 21, v1')
        a.e('s_mov_b32 s70, 0x1f8000')
        for s_ in (S_W1, S_W2, S_WS, S_T2, S_T3) if OPT['tlbout'] else (S_W1, S_W2, S_WS, S_T3):
            a.e(f'buffer_load_dword v220, v4, s[{s_}:{s_+3}], {"s70" if s_ == S_WS else 0} offen')
            n += 1
    else:
        a.e(f'v_lshlrev_b32 v4, {g}, v0')
        for s_, nbytes in ((S_W1, W1BYTES), (S_W2, W2BYTES), (S_WS, 0xC00000), (S_T2, XBYTES), (S_T3, 4096)):
            for k in range(-(-nbytes // (256 << g))):
                a.e(f's_mov_b32 s70, {k * (256 << g)}')
                a.e(f'buffer_load_dword v220, v4, s[{s_}:{s_+3}], s70 offen')
                n += 1
    return n


def hoist_common(a):
    a.e(f's_mul_i32 s66, s{S_B}, 7168')
    a.e(f's_add_u32 s66, s66, {WS_HH}')
    a.e('v_lshl_add_u32 v184, v0, 4, s66')
    a.e('v_add_u32 v185, 4096, v184')
    mask_lanes(a, 185, 192, 6, 'v0')
    a.e(f's_mul_i32 s66, s{S_W}, {56*16}')
    a.e(f's_mul_i32 s67, s{S_B}, 7168')
    a.e('s_add_u32 s66, s66, s67')
    a.e(f's_add_u32 s66, s66, {WS_XN}')
    a.e('v_lshl_add_u32 v188, v1, 4, s66')
    mask_lanes(a, 188, 56, 5)
    a.e('v_add_u32 v189, 3584, v188')
    a.e('v_and_b32 v4, 15, v1')
    a.e(f'v_mul_u32_u24 v4, {PROW}, v4')
    a.e('v_lshrrev_b32 v5, 4, v1')
    a.e('v_lshl_add_u32 v4, v5, 4, v4')
    a.e(f's_mul_i32 s66, s{S_W}, {PARTW}')
    a.e(f's_add_u32 s66, s66, {L_PART}')
    a.e('v_add_u32 v241, s66, v4')
    a.e(f'v_mul_u32_u24 v5, {PROW}, v1')
    a.e(f's_lshl_b32 s66, s{S_W}, 6')
    a.e(f's_add_u32 s66, s66, {L_PART}')
    a.e('v_add_u32 v242, s66, v5')
    a.e('v_lshrrev_b32 v5, 3, v1')
    a.e('v_and_b32 v4, 7, v1')
    a.e(f's_lshl_b32 s66, s{S_W}, 4')
    a.e('v_add_u32 v5, s66, v5')
    a.e(f'v_mul_u32_u24 v6, {PROW}, v5')
    a.e('v_lshl_add_u32 v6, v4, 4, v6')
    a.e(f'v_add_u32 v243, {L_PART}, v6')
    g_store_addr(a, 240)
    a.e(f's_mul_i32 s67, s{S_B}, 7168')
    a.e(f's_mul_i32 s66, s{S_W}, 1792')
    a.e('s_add_u32 s66, s66, s67')
    a.e(f's_add_u32 s66, s66, {WS_HH}')
    a.e('v_lshl_add_u32 v213, v1, 4, s66')
    a.e('v_add_u32 v5, 448, v213')
    a.e('v_cmp_gt_u32 vcc, 28, v1')
    a.e('v_cndmask_b32 v213, v5, v213, vcc')
    mask_lanes(a, 213, 56, 5)


def hoist_conv(a):
    a.e(f's_mul_i32 s66, s{S_P}, {AST}')
    a.e(f's_add_u32 s66, s66, {WS_AOUT}')
    a.e('v_lshl_add_u32 v186, v0, 4, s66')
    a.e('v_add_u32 v187, 4096, v186')
    a.e(f's_lshl_b32 s66, s{S_P}, 4')
    a.e(f's_add_u32 s66, s66, {WS_XN}')
    a.e('v_mul_u32_u24 v190, 7168, v0')
    a.e('v_add_u32 v190, s66, v190')
    a.e('v_add_u32 v191, 3584, v190')
    conv_addr(a, 192, 193)
    CP, TS = L_CP, 1280
    a.e('v_and_b32 v3, 15, v1')
    a.e('v_lshlrev_b32 v2, 4, v3')
    a.e('v_lshrrev_b32 v3, 4, v1')
    a.e('v_mul_u32_u24 v3, 320, v3')
    a.e('v_add_u32 v2, v2, v3')
    a.e(f's_mul_i32 s70, s{S_W}, {8*TS}')
    a.e(f's_add_u32 s70, s70, {CP}')
    a.e('v_add_u32 v194, s70, v2')
    a.e('v_lshrrev_b32 v3, 2, v1')
    a.e('v_lshlrev_b32 v2, 4, v3')
    a.e('v_and_b32 v3, 3, v1')
    a.e('v_mul_u32_u24 v3, 320, v3')
    a.e('v_add_u32 v2, v2, v3')
    a.e(f's_lshl_b32 s70, s{S_W}, 1')
    a.e(f's_mul_i32 s71, s70, {TS}')
    a.e(f's_add_u32 s71, s71, {CP}')
    a.e('v_add_u32 v195, s71, v2')
    a.e('s_lshl_b32 s71, s70, 9')
    a.e(f's_add_u32 s71, s71, {L_U + 512}')
    a.e('v_lshl_add_u32 v206, v1, 3, s71')
    a.e(f's_mul_i32 s71, s{S_P}, {AST}')
    a.e('s_lshl_b32 s72, s70, 10')
    a.e('s_add_u32 s71, s71, s72')
    a.e(f's_add_u32 s71, s71, {WS_AOUT}')
    a.e('v_lshl_add_u32 v207, v1, 4, s71')


def kgen_loads(a, part=None):
    R = (S_T0, S_T1, S_T2, S_T3) if part is None else (72, 76, 80, 84)
    if part != 'issue':
        for r, p in zip(R, (P_LAR, P_AI, P_CR, P_CI)):
            srd(a, r, p, PBYTES)
        a.e(f's_lshl_b32 s66, s{S_P}, 10')
        a.e(f's_lshl_b32 s67, s{S_W}, 7')
        a.e('s_add_u32 s66, s66, s67')
        a.e('v_lshl_add_u32 v235, v1, 1, s66')
        a.e(f's_lshl_b32 s66, s{S_P}, 2')
        a.e(f's_load_dword s68, s[{P_LDT}:{P_LDT+1}], s66')
        a.e(f's_load_dword s69, s[{P_DSK}:{P_DSK+1}], s66')
    if part != 'setup':
        for c in range(2):
            for k, s in enumerate(R):
                a.e(f'buffer_load_ushort v{40+4*c+k}, v235, s[{s}:{s+3}], 0 offen offset:{512*c}')


def load_gather_table(a, tablabel):
    lp = a.lab('pc')
    a.e('s_getpc_b64 s[70:71]')
    a.e(f'{lp}:')
    a.e(f's_add_u32 s70, s70, {tablabel}-{lp}')
    a.e('s_addc_u32 s71, s71, 0')
    a.e('v_lshlrev_b32 v2, 5, v0')
    a.e('global_load_dwordx4 v[160:163], v2, s[70:71]')
    a.e('global_load_dwordx4 v[164:167], v2, s[70:71] offset:16')


DK0, DK1 = 16, 28


def kgen_channel(a, c, DACC, mid=None, mid_m0=True, after_setup=None, defer=False):
    LAR, AI, CR, CI = 40 + 4 * c, 41 + 4 * c, 42 + 4 * c, 43 + 4 * c
    SIG, DT = 52 + c, 54 + c
    AL, BE = 56, 57
    Z1, Z2, Z4, Z8, Z128, Z256, Z512, Z1024 = 58, 60, 62, 64, 66, 68, 70, 72
    X0, CA, CB, CC, T0, T1 = 74, 76, 78, 80, 82, 84
    CV = [86, 87, 88, 89]
    VW, VR = 90, 91
    t, t2 = 92, 93
    for r in (LAR, AI, CR, CI):
        a.e(f'v_lshlrev_b32 v{r}, 16, v{r}')
    a.e('s_lshl_b32 s66, s68, 16' if c == 0 else 's_and_b32 s66, s68, 0xffff0000')
    a.e(f'v_mov_b32 v{t2}, s66')
    exp_bf16(a, DT, t2, t)
    a.e(f'v_add_f32 v{SIG}, abs(v{CR}), abs(v{CI})')
    exp_bf16(a, AL, LAR, t)
    a.e(f'v_add_f32_dpp v{SIG}, v{SIG}, v{SIG} quad_perm:[1,0,3,2] row_mask:0xf bank_mask:0xf')
    a.e(f'v_mul_f32 v{AL}, v{AL}, v{DT}')
    a.e(f'v_mul_f32 v{BE}, v{AI}, v{DT}')
    a.e(f'v_add_f32_dpp v{SIG}, v{SIG}, v{SIG} quad_perm:[2,3,0,1] row_mask:0xf bank_mask:0xf')
    a.e(f'v_mul_f32 v{AL}, {fx(-1.4426950408889634)}, v{AL}')
    a.e(f'v_mul_f32 v{BE}, {fx(0.15915494309189535)}, v{BE}')
    a.e(f'v_add_f32_dpp v{SIG}, v{SIG}, v{SIG} row_half_mirror row_mask:0xf bank_mask:0xf')
    a.e(f'v_exp_f32 v{T0}, v{AL}')
    a.e(f'v_fract_f32 v{t}, v{BE}')
    a.e(f'v_add_f32_dpp v{SIG}, v{SIG}, v{SIG} row_ror:8 row_mask:0xf bank_mask:0xf')
    a.e(f'v_cos_f32 v{Z1}, v{t}')
    a.e(f'v_sin_f32 v{Z1+1}, v{t}')
    a.e(f'v_mov_b32 v{t2}, v{SIG}')
    a.e(f'v_mul_f32 v{T1}, 0x43000000, v{AL}')
    a.e(f'v_mul_f32 v{t}, 0x43000000, v{BE}')
    a.e(f'v_permlane16_swap_b32 v{SIG}, v{t2}')
    a.e(f'v_pk_mul_f32 v[{Z1}:{Z1+1}], v[{Z1}:{Z1+1}], v[{T0}:{T0+1}] op_sel:[0,0] op_sel_hi:[1,0]')
    a.e(f'v_add_f32 v{SIG}, v{SIG}, v{t2}')
    a.e(f'v_exp_f32 v{T1}, v{T1}')
    a.e(f'v_fract_f32 v{t}, v{t}')
    a.e(f'v_mov_b32 v{t2}, v{SIG}')
    a.e(f'v_cos_f32 v{Z128}, v{t}')
    a.e(f'v_sin_f32 v{Z128+1}, v{t}')
    a.e(f'v_permlane32_swap_b32 v{SIG}, v{t2}')
    cmul(a, Z2, Z1, Z1, Z2)
    a.e(f'v_add_f32 v{SIG}, v{SIG}, v{t2}')
    a.e(f'v_pk_mul_f32 v[{Z128}:{Z128+1}], v[{Z128}:{Z128+1}], v[{T1}:{T1+1}] op_sel:[0,0] op_sel_hi:[1,0]')
    a.e(f'v_add_f32 v{SIG}, {fx(1e-30)}, v{SIG}')
    cmul(a, Z4, Z2, Z2, Z4)
    a.e(f'v_rcp_f32 v{t}, v{SIG}')
    cmul(a, Z256, Z128, Z128, Z256)
    cmul(a, Z8, Z4, Z4, Z8)
    a.e(f'v_mul_f32 v{X0}, v{CR}, v{t}')
    a.e(f'v_mul_f32 v{X0+1}, v{CI}, v{t}')
    cmul(a, Z512, Z256, Z256, Z512)
    a.e(f's_mul_i32 s66, s{S_W}, {SCRW}')
    a.e(f's_add_u32 s66, s66, {L_SCR}')
    a.e('s_mov_b32 m0, s66')
    cmul(a, Z1024, Z512, Z512, Z1024)
    a.e(f'v_and_b32 v{t}, 15, v1')
    a.e(f'v_mul_u32_u24 v{t}, {SROW}, v{t}')
    a.e(f'v_lshrrev_b32 v{t2}, 4, v1')
    a.e(f'v_lshl_add_u32 v{t}, v{t2}, 4, v{t}')
    a.e(f'v_add_u32 v{VR}, s66, v{t}')
    cvi = [0]
    pend = []

    def flush(keep):
        while len(pend) > keep:
            cv, off = pend.pop(0)
            a.e(f'ds_write_addtid_b32 v{cv} offset:{off}')

    G = OPT['kgrp']
    if G > 1:
        CV = list(range(96, 112))
        if OPT['kdefer']:
            CV = list(range(168, 176)) + list(range(184, 192))
    if after_setup is not None:
        after_setup()

    def put(off, r, neg):
        cv = CV[cvi[0] % len(CV)]
        cvi[0] += 1
        a.e(f'v_cvt_pk_f16_f32 v{cv}, v{r}, {"-" if neg else ""}v{r+1}')
        if G > 1:
            pend.append((cv, off))
            if len(pend) >= G + 1:
                flush(1)
        else:
            flush(1)
            pend.append((cv, off))

    def putX(row, r):
        put(row * SROW, r, True)

    def putY(b, r):
        put((YROW + b) * SROW, r, False)

    a.e(f'v_mov_b32 v{VW}, 0x00003c00')
    pend.append((VW, YROW * SROW))
    putY(1, Z8)
    ychain = {'cur': Z8, 'b': 1}
    YA, YB = CC, 94

    def ystep():
        if ychain['b'] >= 15:
            return
        d = YA if ychain['cur'] != YA else YB
        cmul(a, d, ychain['cur'], Z8, d)
        ychain['b'] += 1
        ychain['cur'] = d
        putY(ychain['b'], d)

    putX(0, X0)
    cmul(a, T0, X0, Z128, T0)
    putX(8, T0)
    cur = X0
    for j in range(1, 8):
        d = CA if cur != CA else CB
        cmul(a, d, cur, Z1, d)
        ystep()
        putX(j, d)
        cmul(a, T0, d, Z128, T0)
        putX(8 + j, T0)
        cur = d
    cmul(a, CA, X0, Z256, CA)
    ystep()
    putX(16, CA)
    cmul(a, T0, CA, Z128, T0)
    putX(20, T0)
    cur = CA
    for j in range(1, 4):
        d = CA if cur != CA else CB
        cmul(a, d, cur, Z2, d)
        ystep()
        putX(16 + j, d)
        cmul(a, T0, d, Z128, T0)
        putX(20 + j, T0)
        cur = d
    if mid is not None:
        if mid_m0:
            flush(0)
        mid()
        if mid_m0:
            a.e(f's_mul_i32 s66, s{S_W}, {SCRW}')
            a.e(f's_add_u32 s66, s66, {L_SCR}')
            a.e('s_mov_b32 m0, s66')
    cmul(a, CA, X0, Z512, CA)
    ystep()
    putX(24, CA)
    cmul(a, CB, CA, Z4, CB)
    ystep()
    putX(25, CB)
    pa, pb = CA, CB
    na, nb = T0, T1
    for q in range(1, 4):
        cmul(a, na, pa, Z128, na)
        cmul(a, nb, pb, Z128, nb)
        ystep()
        putX(24 + 2 * q, na)
        putX(25 + 2 * q, nb)
        pa, pb, na, nb = na, nb, pa, pb
    cmul(a, CA, X0, Z1024, CA)
    putX(32, CA)
    cur = CA
    for q in range(1, 9):
        d = CA if cur != CA else CB
        cmul(a, d, cur, Z128, d)
        putX(32 + q, d)
        cur = d
    while ychain['b'] < 15:
        ystep()
    flush(0)
    FA = 96
    for k in range(4):
        a.e(f'ds_read_b128 v[{144+4*k}:{147+4*k}], v{VR} offset:{YROW*SROW+64*k}')
        for T in range(3):
            r = FA + 16 * T + 4 * k
            a.e(f'ds_read_b128 v[{r}:{r+3}], v{VR} offset:{16*T*SROW+64*k}')
    def mfmas(waits=True):
        for k in range(4):
            if waits:
                a.e(f's_waitcnt lgkmcnt({4*(3-k)})')
            elif k == 0:
                a.e('s_waitcnt lgkmcnt(0)')
            for T in range(3):
                r = FA + 16 * T + 4 * k
                cc = '0' if k == 0 else f'v[{DACC+4*T}:{DACC+4*T+3}]'
                a.e(f'v_mfma_f32_16x16x32_f16 v[{DACC+4*T}:{DACC+4*T+3}], v[{r}:{r+3}], v[{144+4*k}:{147+4*k}], {cc}')

    if defer:
        return lambda: mfmas(waits=False)
    mfmas()


def ktab_part1(a):
    a.e(f's_mul_i32 s66, s{S_W}, {SCRW}')
    a.e(f's_add_u32 s66, s66, {L_SCR}')
    a.e('v_lshl_add_u32 v90, v1, 4, s66')
    a.e(f's_lshl_b32 s67, s{S_W}, 2')
    a.e(f's_add_u32 s67, s67, {L_SIG}')
    a.e('v_mov_b32 v91, s67')
    a.e('s_mov_b64 exec, 1')
    a.e('ds_write_b32 v91, v52')
    a.e('ds_write_b32 v91, v53 offset:16')
    a.e('s_mov_b64 exec, -1')
    for c, DK in ((0, DK0), (1, DK1)):
        for T in range(3):
            for h in range(2):
                i = DK + 4 * T + 2 * h
                a.e(f'v_pk_mul_f32 v[{i}:{i+1}], v[{i}:{i+1}], v[52:53] op_sel:[0,{c}] op_sel_hi:[1,{c}]')
            a.e(f'ds_write_b128 v90, v[{DK+4*T}:{DK+4*T+3}] offset:{c*3072+T*1024}')
    a.e('v_mov_b32 v96, 0')
    a.e('v_mov_b32 v97, 0')
    a.e('v_mov_b32 v98, 0')
    a.e('v_mov_b32 v99, 0')
    a.e(f'v_mov_b32 v92, {L_KT + 1536}')
    a.e('ds_write_b32 v92, v96')
    a.e(f'ds_write_b32 v92, v96 offset:{KTCH}')
    a.e('v_lshlrev_b32 v92, 3, v1')
    a.e(f'ds_write_b64 v92, v[96:97] offset:{L_U}')
    a.e(f'ds_write_b64 v92, v[96:97] offset:{L_U + UCH}')
    a.e('s_waitcnt lgkmcnt(0)')
    a.e('s_barrier')


def ktab_part2(a, mid=None):
    a.e(f'v_mov_b32 v91, {L_SIG}')
    a.e('ds_read_b128 v[44:47], v91')
    a.e('ds_read_b128 v[48:51], v91 offset:16')
    a.e(f's_and_b32 s67, s{S_W}, 1')
    a.e(f's_lshr_b32 s70, s{S_W}, 1')
    a.e('s_mul_i32 s71, s67, 3072')
    a.e('s_lshl_b32 s72, s70, 10')
    a.e('s_add_u32 s72, s72, s71')
    a.e(f's_add_u32 s72, s72, {L_SCR}')
    a.e(f's_add_u32 s71, s71, {L_SCR + 2048}')
    a.e('v_lshl_add_u32 v90, v1, 4, s72')
    a.e('v_lshl_add_u32 v91, v1, 4, s71')
    for wv in range(4):
        a.e(f'ds_read_b128 v[{96+4*wv}:{99+4*wv}], v90 offset:{wv*SCRW}')
    for wv in range(4):
        a.e(f'ds_read_b128 v[{112+4*wv}:{115+4*wv}], v91 offset:{wv*SCRW}')
    a.e('v_mov_b32 v128, 0')
    a.e('v_mov_b32 v129, 0')
    a.e('v_mov_b32 v130, 0')
    a.e('v_mov_b32 v131, 0')
    if OPT['c4']:
        a.e('v_and_b32 v132, 7, v1')
        a.e(f'v_mul_u32_u24 v132, {KCOPY}, v132')
        a.e('v_bfe_u32 v133, v1, 3, 1')
        a.e('v_lshl_add_u32 v132, v133, 4, v132')
    else:
        a.e('v_and_b32 v132, 15, v1')
        a.e(f'v_mul_u32_u24 v132, {KCOPY}, v132')
    a.e(f'v_add_u32 v132, {L_KC}, v132')
    a.e('ds_write_b128 v132, v[128:131] offset:4096')
    a.e('v_lshrrev_b32 v92, 4, v1')
    a.e('v_lshlrev_b32 v92, 7, v92')
    a.e('v_and_b32 v93, 15, v1')
    a.e('v_lshl_add_u32 v92, v93, 1, v92')
    a.e(f's_mul_i32 s71, s67, {KTCH}')
    a.e(f's_add_u32 s71, s71, {L_KT}')
    a.e('v_add_u32 v93, s71, v92')
    a.e('s_lshl_b32 s72, s70, 9')
    a.e('v_add_u32 v92, s72, v93')
    if mid is not None:
        mid()
    a.e('s_waitcnt lgkmcnt(9)')
    a.e('v_pk_add_f32 v[44:45], v[44:45], v[46:47]')
    a.e('v_pk_add_f32 v[48:49], v[48:49], v[50:51]')
    a.e('v_add_f32 v44, v44, v45')
    a.e('v_add_f32 v45, v48, v49')
    a.e('s_cmp_eq_u32 s67, 0')
    a.e('s_cselect_b64 vcc, -1, 0')
    a.e('v_pk_mul_f32 v[54:55], v[54:55], v[44:45]')
    a.e('v_cndmask_b32 v46, v45, v44, vcc')
    a.e('v_pk_add_f32 v[54:55], v[54:55], v[54:55]')
    a.e('v_rcp_f32 v46, v46')
    for jb, (base, va, off) in enumerate(((96, 92, 0), (112, 93, 1024))):
        a.e(f's_waitcnt lgkmcnt({5 if jb == 0 else 5})')
        for h in range(2):
            a.e(f'v_pk_add_f32 v[{base+2*h}:{base+2*h+1}], v[{base+2*h}:{base+2*h+1}], v[{base+4+2*h}:{base+5+2*h}]')
            a.e(f'v_pk_add_f32 v[{base+8+2*h}:{base+9+2*h}], v[{base+8+2*h}:{base+9+2*h}], v[{base+12+2*h}:{base+13+2*h}]')
        for h in range(2):
            a.e(f'v_pk_add_f32 v[{base+2*h}:{base+2*h+1}], v[{base+2*h}:{base+2*h+1}], v[{base+8+2*h}:{base+9+2*h}]')
        for h in range(2):
            a.e(f'v_pk_mul_f32 v[{base+2*h}:{base+2*h+1}], v[{base+2*h}:{base+2*h+1}], v[46:47] op_sel:[0,0] op_sel_hi:[1,0]')
        a.e(f'v_cvt_pk_f16_f32 v{base+4}, v{base}, v{base+1}')
        a.e(f'v_cvt_pk_f16_f32 v{base+5}, v{base+2}, v{base+3}')
        a.e(f'ds_write_b16 v{va}, v{base+4} offset:{off}')
        a.e(f'ds_write_b16_d16_hi v{va}, v{base+4} offset:{off+32}')
        a.e(f'ds_write_b16 v{va}, v{base+5} offset:{off+64}')
        a.e(f'ds_write_b16_d16_hi v{va}, v{base+5} offset:{off+96}')
    for e in range(11 if OPT['c4'] else 15):
        src = 160 + e // 2
        if e % 2 == 0:
            a.e(f'v_and_b32 v{136+e}, 0xffff, v{src}')
        else:
            a.e(f'v_lshrrev_b32 v{136+e}, 16, v{src}')
    a.e('s_waitcnt lgkmcnt(0)')
    a.e('s_barrier')


def kch():
    return (4 if OPT['c4'] else 8) * KCOPY


def kcopies(a):
    AD = 136
    a.e('v_lshlrev_b32 v111, 4, v0')
    a.e(f'v_add_u32 v111, {L_KC}, v111')
    RR = [96, 112]
    if OPT['c4']:
        for c in range(2):
            for e in range(11):
                a.e(f'ds_read_u16 v{RR[c]+e}, v{AD+e} offset:{L_KT + c*KTCH}')
        for c in range(2):
            R = RR[c]
            Da, Db, Oa, Ob = (56, 60, 64, 68) if c == 0 else (16, 20, 24, 28)
            a.e(f's_waitcnt lgkmcnt({11 if c == 0 else 4})')
            for i in range(4):
                a.e(f'v_lshl_or_b32 v{Da+i}, v{R+2*i+1}, 16, v{R+2*i}')
                a.e(f'v_lshl_or_b32 v{Oa+i}, v{R+2*i+2}, 16, v{R+2*i+1}')
                a.e(f'v_lshl_or_b32 v{Db+i}, v{R+2*i+3}, 16, v{R+2*i+2}')
                a.e(f'v_lshl_or_b32 v{Ob+i}, v{R+2*i+4}, 16, v{R+2*i+3}')
            for s_, r in ((0, Da), (1, Oa), (2, Db), (3, Ob)):
                a.e(f'ds_write_b128 v111, v[{r}:{r+3}] offset:{c*kch() + s_*KCOPY}')
        return
    for c in range(2):
        for e in range(15):
            a.e(f'ds_read_u16 v{RR[c]+e}, v{AD+e} offset:{L_KT + c*KTCH}')
    for c in range(2):
        R = RR[c]
        Da, Db, Oa, Ob = 56 + 0, 64, 72, 80
        if c == 1:
            Da, Db, Oa, Ob = 16, 24, 32, 40
        a.e(f's_waitcnt lgkmcnt({15 if c == 0 else 8})')
        for i in range(6):
            a.e(f'v_lshl_or_b32 v{Da+i}, v{R+2*i+1}, 16, v{R+2*i}')
            a.e(f'v_lshl_or_b32 v{Oa+i}, v{R+2*i+2}, 16, v{R+2*i+1}')
        if c == 1:
            a.e(f'v_add_u32 v110, {KCH}, v111')
        va = 111 if c == 0 else 110
        for s, r in ((0, Da), (1, Oa), (4, Da + 2), (5, Oa + 2)):
            a.e(f'ds_write_b128 v{va}, v[{r}:{r+3}] offset:{s*KCOPY}')
        for i in range(6):
            a.e(f'v_lshl_or_b32 v{Db+i}, v{R+2*i+3}, 16, v{R+2*i+2}')
            a.e(f'v_lshl_or_b32 v{Ob+i}, v{R+2*i+4}, 16, v{R+2*i+3}')
        for s, r in ((2, Db), (3, Ob), (6, Db + 2), (7, Ob + 2)):
            a.e(f'ds_write_b128 v{va}, v[{r}:{r+3}] offset:{s*KCOPY}')


def store_u(a, vm):
    a.e('v_lshlrev_b32 v2, 4, v0')
    a.e(f's_waitcnt vmcnt({vm})')
    a.e(f'ds_write_b128 v2, v[176:179] offset:{L_U + 512}')
    a.e(f'ds_write_b128 v2, v[180:183] offset:{L_U + UCH + 512}')
    a.e('s_waitcnt lgkmcnt(0)')
    a.e('s_barrier')


def phase_conv(a, hooks, pre_vm):
    hooks = list(hooks)
    ACC = 16
    FA = [[64 + 64 * s + 4 * i for i in range(8)] for s in range(2)]
    FB = [[96 + 64 * s + 4 * i for i in range(8)] for s in range(2)]
    VA, VB = (192, 193) if OPT['hoist'] else (48, 49)

    def loads(qq, s):
        out = []
        for i in range(8):
            out.append(f'ds_read_b128 v[{FB[s][i]}:{FB[s][i]+3}], v{VB} offset:{512*i + 64*(3-qq)}')
            if OPT['c4']:
                o = 512 * (7 - i) + 64 * (3 - qq)
                out.append(f'ds_read_b64 v[{FA[s][i]}:{FA[s][i]+1}], v{VA} offset:{o}')
                out.append(f'ds_read_b64 v[{FA[s][i]+2}:{FA[s][i]+3}], v{VA} offset:{o + 8}')
            else:
                out.append(f'ds_read_b128 v[{FA[s][i]}:{FA[s][i]+3}], v{VA} offset:{512*(7-i) + 64*(3-qq)}')
        return out

    for x in loads(0, 0):
        a.e(x)
    for qq in range(4):
        s = qq & 1
        nxt = loads(qq + 1, 1 - s) if qq < 3 else []
        n = 0
        for w in range(8):
            for c in range(w, 8):
                if n == 0:
                    a.e('s_waitcnt lgkmcnt(0)')
                cc = '0' if (qq == 0 and w == 0) else f'v[{ACC+4*c}:{ACC+4*c+3}]'
                a.e(f'v_mfma_f32_16x16x32_f16 v[{ACC+4*c}:{ACC+4*c+3}], v[{FA[s][w]}:{FA[s][w]+3}], v[{FB[s][c-w]}:{FB[s][c-w]+3}], {cc}')
                if nxt and (n % 2 == 1 or (OPT['c4'] and n % 4 == 0)):
                    a.e(nxt.pop(0))
                if hooks and n % 4 == 2:
                    hooks.pop(0)()
                n += 1
        assert not nxt
    assert not hooks
    stamp(a, 11)
    CP, TS = L_CP, 1280
    if OPT['hoist']:
        a.e('s_barrier')
        for c in range(8):
            a.e(f'ds_write_b128 v194, v[{ACC+4*c}:{ACC+4*c+3}] offset:{c*TS}')
        VRD, VU, VG = 195, 206, 207
    else:
        a.e('v_and_b32 v2, 15, v1')
        a.e('v_lshlrev_b32 v2, 4, v2')
        a.e('v_lshrrev_b32 v3, 4, v1')
        a.e('v_mul_u32_u24 v3, 320, v3')
        a.e('v_add_u32 v2, v2, v3')
        a.e(f's_mul_i32 s70, s{S_W}, {8*TS}')
        a.e(f's_add_u32 s70, s70, {CP}')
        a.e('v_add_u32 v2, s70, v2')
        a.e('s_barrier')
        for c in range(8):
            a.e(f'ds_write_b128 v2, v[{ACC+4*c}:{ACC+4*c+3}] offset:{c*TS}')
        a.e('v_lshrrev_b32 v2, 2, v1')
        a.e('v_lshlrev_b32 v2, 4, v2')
        a.e('v_and_b32 v3, 3, v1')
        a.e('v_mul_u32_u24 v3, 320, v3')
        a.e('v_add_u32 v2, v2, v3')
        a.e(f's_lshl_b32 s70, s{S_W}, 1')
        a.e(f's_mul_i32 s71, s70, {TS}')
        a.e(f's_add_u32 s71, s71, {CP}')
        a.e('v_add_u32 v2, s71, v2')
        a.e('s_lshl_b32 s71, s70, 9')
        a.e(f's_add_u32 s71, s71, {L_U + 512}')
        a.e('v_lshl_add_u32 v3, v1, 3, s71')
        a.e(f's_mul_i32 s71, s{S_P}, {AST}')
        a.e('s_lshl_b32 s72, s70, 10')
        a.e('s_add_u32 s71, s71, s72')
        a.e(f's_add_u32 s71, s71, {WS_AOUT}')
        a.e('v_lshl_add_u32 v4, v1, 4, s71')
        VRD, VU, VG = 2, 3, 4
    a.e('s_lshl_b32 s72, s69, 16')
    a.e('s_and_b32 s73, s69, 0xffff0000')
    a.e('v_mov_b32 v56, s72')
    a.e('v_mov_b32 v57, s73')
    a.e(f's_waitcnt lgkmcnt(0) vmcnt({pre_vm})')
    a.e('s_barrier')
    for q in range(2):
        P = 64 + 32 * q
        for ch in range(2):
            for hf in range(2):
                r = P + 8 * ch + 4 * hf
                a.e(f'ds_read_b128 v[{r}:{r+3}], v{VRD} offset:{(2*ch+hf)*8*TS + q*TS}')
        for ch in range(2):
            a.e(f'ds_read_b64 v[{P+16+2*ch}:{P+17+2*ch}], v{VU} offset:{ch*UCH + q*512}')
    for q in range(2):
        P = 64 + 32 * q
        a.e(f's_waitcnt lgkmcnt({6 if q == 0 else 0})')
        for ch in range(2):
            y = P + 8 * ch
            T = 128 + 16 * ch
            u = P + 16 + 2 * ch
            for h in range(2):
                a.e(f'v_pk_add_f32 v[{y+2*h}:{y+2*h+1}], v[{y+2*h}:{y+2*h+1}], v[{y+4+2*h}:{y+5+2*h}]')
            for i in range(4):
                a.e(f'v_fma_mix_f32 v{T+i}, v{u+i//2}, v{56+ch}, 0 op_sel:[{i%2},0,0] op_sel_hi:[1,0,0]')
            for h in range(2):
                a.e(f'v_pk_mul_f32 v[{y+2*h}:{y+2*h+1}], v[{y+2*h}:{y+2*h+1}], v[54:55] op_sel:[0,{ch}] op_sel_hi:[1,{ch}]')
            for h in range(2):
                a.e(f'v_cvt_pk_bf16_f32 v{T+6+h}, v{T+2*h}, v{T+2*h+1}')
                a.e(f'v_cvt_pk_bf16_f32 v{T+4+h}, v{y+2*h}, v{y+2*h+1}')
            for h in range(2):
                a.e(f'v_lshlrev_b32 v{T+2*h}, 16, v{T+6+h}')
                a.e(f'v_and_b32 v{T+2*h+1}, 0xffff0000, v{T+6+h}')
                a.e(f'v_lshlrev_b32 v{y+2*h}, 16, v{T+4+h}')
                a.e(f'v_and_b32 v{y+2*h+1}, 0xffff0000, v{T+4+h}')
            for h in range(2):
                a.e(f'v_pk_add_f32 v[{y+2*h}:{y+2*h+1}], v[{y+2*h}:{y+2*h+1}], v[{T+2*h}:{T+2*h+1}]')
        O = 160 + 4 * q
        for i in range(4):
            a.e(f'v_cvt_pk_bf16_f32 v{O+i}, v{P+i}, v{P+8+i}')
        a.e(f'buffer_store_dwordx4 v[{O}:{O+3}], v{VG}, {WSR}, 0 offen offset:{q*1024} sc1')


def conv_addr(a, va=48, vb=49):
    a.e(f's_lshr_b32 s66, s{S_W}, 1')
    a.e(f's_and_b32 s67, s{S_W}, 1')
    a.e('v_and_b32 v2, 7, v1')
    a.e('v_sub_u32 v2, 7, v2')
    if OPT['c4']:
        a.e('v_lshrrev_b32 v5, 2, v2')
        a.e('v_and_b32 v2, 3, v2')
        a.e(f'v_mul_u32_u24 v2, {KCOPY}, v2')
        a.e('v_lshl_add_u32 v2, v5, 3, v2')
    else:
        a.e(f'v_mul_u32_u24 v2, {KCOPY}, v2')
    a.e('v_lshrrev_b32 v3, 4, v1')
    a.e('v_bfe_u32 v4, v1, 3, 1')
    a.e('v_sub_u32 v4, v3, v4')
    a.e('v_lshl_add_u32 v2, v4, 4, v2')
    a.e(f's_mul_i32 s70, s66, {kch()}')
    a.e('s_lshl_b32 s71, s67, 8')
    a.e('s_sub_u32 s70, s70, s71')
    a.e(f's_add_u32 s70, s70, {L_KC + 16*253 - 512*7 - 64*3}')
    a.e(f'v_add_u32 v{va}, s70, v2')
    a.e('v_and_b32 v2, 15, v1')
    a.e('v_lshlrev_b32 v2, 5, v2')
    a.e('v_lshl_add_u32 v2, v3, 4, v2')
    a.e(f's_mul_i32 s70, s66, {UCH}')
    a.e('s_sub_u32 s70, s70, s71')
    a.e(f's_add_u32 s70, s70, {L_U + 480 - 64*3}')
    a.e(f'v_add_u32 v{vb}, s70, v2')


def phase_p4(a, dmas=()):
    X = list(range(8, 16))
    A = 32
    xrow_addr(a)
    a.e(f's_mul_i32 s66, s{S_W}, {56*AST}')
    a.e(f's_lshl_b32 s67, s{S_B}, 5')
    a.e('s_add_u32 s66, s66, s67')
    a.e(f's_add_u32 s66, s66, {WS_AOUT}')
    a.e(f'v_mul_u32_u24 v4, {AST}, v1')
    a.e('v_add_u32 v4, s66, v4')
    a.e(f'v_mov_b32 v5, {OOB}')
    a.e('v_cndmask_b32 v4, v5, v4, vcc')
    if OPT['hpriv']:
        a.e(f's_mul_i32 s66, s{S_W}, 1792')
        a.e(f's_add_u32 s66, s66, {L_HT}')
        a.e('v_lshl_add_u32 v6, v1, 2, s66')
        a.e('v_lshl_add_u32 v7, v1, 4, s66')
        a.e(f's_mul_i32 s66, s{S_B}, 7168')
        a.e(f's_mul_i32 s67, s{S_W}, 224')
        a.e('s_add_u32 s66, s66, s67')
        a.e(f's_add_u32 s66, s66, {WS_H}')
        for k, vd in ((0, 56), (64, 57)):
            a.e(f'v_add_u32 v58, {k}, v1')
            a.e('v_mul_u32_u24 v59, 4682, v58')
            a.e('v_lshrrev_b32 v59, 16, v59')
            a.e(f'v_mul_u32_u24 v{vd}, {896 - 224}, v59')
            a.e(f'v_lshl_add_u32 v{vd}, v58, 4, v{vd}')
            a.e(f'v_add_u32 v{vd}, s66, v{vd}')
        mask_lanes(a, 57, 48, 58)
    else:
        a.e(f's_mul_i32 s66, s{S_W}, 224')
        a.e(f's_add_u32 s66, s66, {L_HT}')
        a.e('v_lshl_add_u32 v6, v1, 2, s66')
    for j in range(8):
        a.e(f'v_lshlrev_b32 v{64+2*j}, 16, v{X[j]}')
        a.e(f'v_and_b32 v{65+2*j}, 0xffff0000, v{X[j]}')
    lp, ld = a.lab('h2poll'), a.lab('h2done')
    a.e(f's_mov_b32 s{S_SPIN}, 0')
    a.e(f'{lp}:')
    a.e(f'buffer_load_dwordx4 v[{A}:{A+3}], v4, {WSR}, 0 offen sc1')
    a.e(f'buffer_load_dwordx4 v[{A+4}:{A+7}], v4, {WSR}, 0 offen offset:16 sc1')
    a.e('s_waitcnt vmcnt(0)')
    a.e(f'v_max3_u32 v40, v{A}, v{A+1}, v{A+2}')
    a.e(f'v_max3_u32 v41, v{A+3}, v{A+4}, v{A+5}')
    a.e(f'v_max3_u32 v40, v40, v{A+6}, v{A+7}')
    a.e('v_max_u32 v40, v40, v41')
    a.e('v_cmp_eq_u32 vcc, -1, v40')
    a.e(f's_cbranch_vccz {ld}')
    spin_tail(a, lp)
    a.e(f'{ld}:')
    stamp(a, 14)
    H = list(range(48, 56))
    for j in range(8):
        t = 40 + 2 * (j % 4)
        a.e(f'v_lshlrev_b32 v{t}, 16, v{A+j}')
        a.e(f'v_and_b32 v{t+1}, 0xffff0000, v{A+j}')
        a.e(f'v_pk_add_f32 v[{t}:{t+1}], v[{t}:{t+1}], v[{64+2*j}:{65+2*j}]')
        a.e(f'v_cvt_pk_bf16_f32 v{H[j]}, v{t}, v{t+1}')
    a.e('s_mov_b32 exec_hi, 0x00ffffff')
    for j in range(8):
        a.e(f'ds_write_b32 v6, v{H[j]} offset:{j*(224 if OPT["hpriv"] else 896)}')
    a.e('s_mov_b32 exec_hi, -1')
    if OPT['hpriv']:
        a.e('ds_read_b128 v[32:35], v7')
        a.e('ds_read_b128 v[36:39], v7 offset:1024')
        a.e('s_waitcnt lgkmcnt(1)')
        a.e(f'buffer_store_dwordx4 v[32:35], v56, {WSR}, 0 offen sc1')
        a.e('s_waitcnt lgkmcnt(0)')
        a.e(f'buffer_store_dwordx4 v[36:39], v57, {WSR}, 0 offen sc1')
        if dmas:
            a.inject(dmas, OPT['p4ev'])
        ln_stats(a, H, 16, L_RED0, 5)
    else:
        def hstore():
            a.e('v_lshlrev_b32 v7, 4, v0')
            a.e(f'ds_read_b128 v[56:59], v7 offset:{L_HT}')
            a.e(f'ds_read_b128 v[60:63], v7 offset:{L_HT + 4096}')
            return 2

        ln_stats(a, H, 16, L_RED0, 5, mid=hstore)
        a.e(f's_mul_i32 s66, s{S_B}, 7168')
        a.e(f's_add_u32 s66, s66, {WS_H}')
        a.e('v_add_u32 v6, s66, v7')
        a.e('v_add_u32 v7, 4096, v6')
        mask_lanes(a, 7, 192, 4, 'v0')
        a.e('s_waitcnt lgkmcnt(0)')
        a.e(f'buffer_store_dwordx4 v[56:59], v6, {WSR}, 0 offen sc1')
        a.e(f'buffer_store_dwordx4 v[60:63], v7, {WSR}, 0 offen sc1')
    bcast_stats(a, 16)
    a.inj_pause()
    a.e('s_mov_b32 exec_hi, 0x00ffffff')
    for j in range(8):
        t = 40 + 2 * (j % 4)
        norm_tok(a, j, H[j], t)
        a.e(f'v_cvt_pk_bf16_f32 v{H[j]}, v{t}, v{t+1}')
    a.e('s_mov_b32 exec_hi, -1')
    a.inj_resume()
    ln_stats(a, H, 16, L_RED1, 5)
    bcast_stats(a, 16)
    VHH = 213 if OPT['hoist'] else 4
    if not OPT['hoist']:
        a.e(f's_mul_i32 s66, s{S_B}, 7168')
        a.e(f's_mul_i32 s67, s{S_W}, 1792')
        a.e('s_add_u32 s66, s66, s67')
        a.e(f's_add_u32 s66, s66, {WS_HH}')
        a.e('v_lshl_add_u32 v4, v1, 4, s66')
        a.e('v_add_u32 v5, 448, v4')
        a.e('v_cmp_gt_u32 vcc, 28, v1')
        a.e('v_cndmask_b32 v4, v5, v4, vcc')
        mask_lanes(a, 4, 56, 5)
    for j in range(8):
        norm_tok(a, j, H[j], 64 + 2 * j)
    O0, O1 = 80, 84
    for i in range(4):
        a.e(f'v_cvt_pk_bf16_f32 v{O0+i}, v{64+4*i}, v{66+4*i}')
        a.e(f'v_cvt_pk_bf16_f32 v{O1+i}, v{65+4*i}, v{67+4*i}')
    a.inj_flush()
    a.e(f's_waitcnt vmcnt({len(dmas)})')
    if not OPT['hpriv']:
        a.e('s_barrier')
    a.e(f'buffer_store_dwordx4 v[{O0}:{O0+3}], v{VHH}, {WSR}, 0 offen sc1')
    a.e(f'buffer_store_dwordx4 v[{O1}:{O1+3}], v{VHH}, {WSR}, 0 offen offset:448 sc1')


def w_setup(a):
    srd(a, S_W1, P_W1, W1BYTES)
    srd(a, S_W2, P_W2, W2BYTES)
    a.e('v_lshrrev_b32 v4, 3, v1')
    a.e('v_bfe_u32 v5, v1, 4, 1')
    a.e('v_lshlrev_b32 v5, 1, v5')
    a.e('v_and_b32 v6, 7, v1')
    a.e('v_xor_b32 v6, v6, v5')
    a.e('v_xor_b32 v7, 4, v6')
    for vd, rowbytes, tile, rows in ((V_D1, F * 2, S_I1, 512), (V_D2, L * 2, S_I2, 448)):
        a.e(f's_mov_b32 s66, {rowbytes}')
        a.e('v_mul_lo_u32 v5, v4, s66')
        a.e(f's_mul_i32 s67, s{S_W}, {rows*rowbytes}')
        a.e(f's_lshl_b32 s66, s{tile}, 7')
        a.e('s_add_u32 s67, s67, s66')
        a.e('v_add_u32 v5, s67, v5')
        for i in range(4):
            a.e(f'v_lshl_add_u32 v{vd+i}, v{6 + (i & 1)}, 4, v5')
            if i:
                a.e(f'v_add_u32 v{vd+i}, {i*(8*rowbytes - 1024)}, v{vd+i}')
    a.e('v_lshlrev_b32 v5, 12, v4')
    a.e('v_and_b32 v6, 7, v1')
    a.e(f'v_lshl_add_u32 v{V_QPF}, v6, 4, v5')
    a.e(f's_and_b32 s66, s{S_LOC}, 3')
    a.e('s_mul_i32 s66, s66, 448')
    if OPT['sched'] == 3:
        a.e(f's_mul_i32 s67, s{S_W}, {(448 - OPT["hR"]) // 4}')
        a.e(f's_add_u32 s67, s67, {OPT["hR"]}')
    else:
        a.e(f's_mul_i32 s67, s{S_W}, 112')
    a.e('s_add_u32 s66, s66, s67')
    a.e('s_lshl_b32 s66, s66, 12')
    a.e(f's_lshl_b32 s67, s{S_I2}, 7')
    a.e(f's_add_u32 s{S_QPF}, s66, s67')
    a.e('v_lshrrev_b32 v4, 4, v1')
    a.e('v_bfe_u32 v5, v1, 2, 2')
    a.e('v_lshl_add_u32 v5, v4, 3, v5')
    a.e('v_lshlrev_b32 v5, 7, v5')
    a.e('v_and_b32 v6, 1, v1')
    a.e('v_lshl_add_u32 v5, v6, 3, v5')
    a.e('v_bfe_u32 v6, v1, 1, 1')
    a.e('v_lshl_add_u32 v5, v6, 4, v5')
    a.e('v_bfe_u32 v6, v1, 3, 1')
    a.e('v_and_b32 v4, 1, v4')
    a.e('v_lshl_add_u32 v6, v4, 1, v6')
    a.e(f's_and_b32 s66, s{S_LOC}, 3')
    a.e(f's_lshr_b32 s67, s{S_LOC}, 2')
    a.e('s_lshl_b32 s67, s67, 1')
    a.e('s_lshl_b32 s70, s66, 2')
    a.e('s_add_u32 s70, s70, s67')
    a.e('s_and_b32 s70, s70, 15')
    a.e(f's_mul_i32 s{S_RW1}, s70, {32*F*2}')
    a.e(f's_mul_i32 s{S_RX1}, s70, {4*7168}')
    a.e('s_mul_i32 s66, s66, 7')
    a.e('s_lshr_b32 s66, s66, 1')
    a.e('s_add_u32 s66, s66, s67')
    for _ in range(2):
        a.e('s_cmp_ge_u32 s66, 14')
        a.e('s_cselect_b32 s67, 14, 0')
        a.e('s_sub_u32 s66, s66, s67')
    a.e(f's_mul_i32 s{S_RW2}, s66, {32*L*2}')
    a.e(f's_mul_i32 s{S_RX2}, s66, {4*7168}')
    a.e(f's_lshl_b32 s{S_SA}, s{S_W}, 14')
    a.e(f's_add_u32 s{S_SA}, s{S_SA}, {L_WA}')
    a.e(f's_mul_i32 s{S_SB}, s{S_W}, 20480')
    a.e(f's_add_u32 s{S_SB}, s{S_SB}, {L_WB}')
    a.e(f's_lshl_b32 s{S_SC}, s{S_W}, 13')
    a.e(f's_add_u32 s{S_SC}, s{S_SC}, {L_WC}')
    for mu in range(4):
        a.e(f'v_xor_b32 v4, {mu}, v6')
        a.e('v_lshl_add_u32 v4, v4, 5, v5')
        a.e(f'v_add_u32 v{V_TA+mu}, s{S_SA}, v4')
        a.e(f'v_add_u32 v{V_TB+mu}, s{S_SB}, v4')
        a.e(f'v_add_u32 v{V_TC+mu}, s{S_SC}, v4')


def rot_off(a, idx, sreg, n, unit):
    a.e(f's_add_u32 s70, s{sreg}, {idx*unit}')
    a.e(f's_cmp_ge_u32 s70, {n*unit}')
    a.e(f's_cselect_b32 s71, {n*unit}, 0')
    a.e('s_sub_u32 s70, s70, s71')


def slot(name):
    return {'A': (S_SA, V_TA), 'B': (S_SB, V_TB), 'C': (S_SC, V_TC)}[name[0]] + (int(name[1]),)


def w_dma1(a, mat, slab, sl, i):
    sb, _, si = slot(sl)
    vd, srd_, rowbytes = (V_D1, S_W1, F * 2) if mat == 1 else (V_D2, S_W2, L * 2)
    if i == 0:
        rot_off(a, slab, S_RW1 if mat == 1 else S_RW2, 16 if mat == 1 else 14, 32 * rowbytes)
        a.e(f's_add_u32 m0, s{sb}, {si*4096}')
    a.e(f'buffer_load_dwordx4 v{vd + i}, s[{srd_}:{srd_+3}], s70 offen offset:{1024*i} lds')


def w_dma(a, mat, slab, sl):
    for i in range(4):
        w_dma1(a, mat, slab, sl, i)


def w_tr(a, slab, sl):
    _, vt, si = slot(sl)
    for mu in range(4):
        r = (slab * 4 + mu) * 4
        a.e(f'ds_read_b64_tr_b16 a[{r}:{r+1}], v{vt+mu} offset:{si*4096}')
        a.e(f'ds_read_b64_tr_b16 a[{r+2}:{r+3}], v{vt+mu} offset:{si*4096 + 512}')


def helper_w2(a, nrows, mid=None):
    a.e(f's_lshr_b32 s66, s{S_XCD}, 1')
    a.e('s_lshl_b32 s66, s66, 10')
    a.e(f's_sub_u32 s67, s{S_LOC}, 28')
    a.e('s_mul_i32 s67, s67, 448')
    a.e(f's_add_u32 s67, s67, s{S_W}')
    a.e('s_lshl_b32 s67, s67, 12')
    a.e('s_add_u32 s90, s66, s67')
    a.e('v_lshlrev_b32 v4, 4, v1')

    def loop(n):
        if n <= 0:
            return
        l = a.lab('l2s')
        a.e(f's_mov_b32 s91, {n}')
        a.e(f'{l}:')
        for i in range(4):
            a.e(f'buffer_load_dwordx4 v[220:223], v4, s[{S_W2}:{S_W2+3}], s90 offen')
            a.e(f's_add_u32 s90, s90, {4*L*2}')
        a.e('s_waitcnt vmcnt(8)')
        a.e('s_sub_u32 s91, s91, 1')
        a.e('s_cmp_lg_u32 s91, 0')
        a.e(f's_cbranch_scc1 {l}')

    total = nrows // 16
    if mid is None:
        loop(total)
        return
    n1, issue, check = mid
    loop(n1)
    issue()
    loop(3)
    check()
    loop(total - n1 - 3)


def qpf_load(a, n):
    for _ in range(n):
        a.e(f'buffer_load_dwordx4 v[220:223], v{V_QPF}, s[{S_W2}:{S_W2+3}], s{S_QPF} offen')
        a.e(f's_add_u32 s{S_QPF}, s{S_QPF}, {8*L*2}')


ACC = 16
XS = 80
NS = 6
VMAX = 214
V_X0, V_X3 = 208, 209


def gemm_xaddr(a, ws_off, kblocks):
    a.e(f's_mul_i32 s66, s{S_W}, {kblocks*7168}')
    a.e(f's_mul_i32 s67, s{S_J}, 896')
    a.e('s_add_u32 s66, s66, s67')
    a.e(f's_add_u32 s66, s66, {ws_off}')
    a.e('v_lshrrev_b32 v4, 4, v1')
    a.e('v_mul_u32_u24 v4, 7168, v4')
    a.e('v_add_u32 v4, s66, v4')
    a.e('v_and_b32 v5, 15, v1')
    a.e(f'v_lshl_add_u32 v{V_X0}, v5, 4, v4')
    if OPT['x3oob']:
        a.e(f'v_add_u32 v{V_X3}, 768, v{V_X0}')
        a.e(f'v_mov_b32 v4, {OOB}')
        a.e('v_cmp_gt_u32 vcc, 8, v5')
        a.e(f'v_cndmask_b32 v{V_X3}, v4, v{V_X3}, vcc')
    else:
        a.e('v_and_b32 v5, 7, v1')
        a.e('v_lshl_add_u32 v4, v5, 4, v4')
        a.e(f'v_add_u32 v{V_X3}, 768, v4')


def gemm_xloads(a, kappa, gid):
    st = XS + 16 * (kappa % NS)
    out = []
    sreg, n = (S_RX1, 16) if gid == 1 else (S_RX2, 14)
    unit = 4 * 7168
    out.append(f's_add_u32 s70, s{sreg}, {kappa*unit}')
    out.append(f's_cmp_ge_u32 s70, {n*unit}')
    out.append(f's_cselect_b32 s71, {n*unit}, 0')
    out.append('s_sub_u32 s70, s70, s71')
    for nu in range(3):
        out.append(f'buffer_load_dwordx4 v[{st+4*nu}:{st+4*nu+3}], v{V_X0}, {WSR}, s70 offen offset:{256*nu} sc1')
    out.append(f'buffer_load_dwordx4 v[{st+12}:{st+15}], v{V_X3}, {WSR}, s70 offen sc1')
    return out


def gemm_main(a, nk, gid, tail_hook=None):
    nfl = OPT['nfl']
    w_is_a = gid == 1
    a.e(f'v_mov_b32 v{VMAX}, 0')
    extra = 0
    for k in range(nk):
        st = XS + 16 * (k % NS)
        rem = min(nfl - 1, nk - 1 - k)
        a.e(f's_waitcnt vmcnt({4*rem + extra})')
        if OPT['stamps'] and k in (0, 4, 8, 12):
            stamp(a, (44 if w_is_a else 51) + (0, 4, 8, 12).index(k))
        fill = gemm_xloads(a, k + nfl, gid) if k + nfl < nk else []
        if k + nfl == nk and tail_hook is not None:
            fill = []
            extra = tail_hook(fill)
        mx = [f'v_max3_u32 v{VMAX}, v{VMAX}, v{st+2*i}, v{st+2*i+1}' for i in range(8)]
        n = 0
        for mu in range(4):
            for nu in range(4):
                w = (k * 4 + mu) * 4
                x = st + 4 * nu
                if w_is_a:
                    acc = ACC + (mu * 4 + nu) * 4
                    A, B = f'a[{w}:{w+3}]', f'v[{x}:{x+3}]'
                else:
                    acc = ACC + (nu * 4 + mu) * 4
                    A, B = f'v[{x}:{x+3}]', f'a[{w}:{w+3}]'
                cc = '0' if k == 0 else f'v[{acc}:{acc+3}]'
                a.e(f'v_mfma_f32_16x16x32_bf16 v[{acc}:{acc+3}], {A}, {B}, {cc}')
                for _ in range(2):
                    if fill:
                        a.e(fill.pop(0))
                if not fill and mx and n >= 4:
                    a.e(mx.pop(0))
                n += 1
        assert not fill and not mx


def capture(fn):
    p = Prog()
    fn(p)
    return [it.text for it in p.items]


STUBS = []


def mfma_line(k, mu, nu, gid):
    st = XS + 16 * (k % NS)
    w = (k * 4 + mu) * 4
    x = st + 4 * nu
    if gid == 1:
        acc = ACC + (mu * 4 + nu) * 4
        A, B = f'a[{w}:{w+3}]', f'v[{x}:{x+3}]'
    else:
        acc = ACC + (nu * 4 + mu) * 4
        A, B = f'v[{x}:{x+3}]', f'a[{w}:{w+3}]'
    cc = '0' if k == 0 else f'v[{acc}:{acc+3}]'
    return f'v_mfma_f32_16x16x32_bf16 v[{acc}:{acc+3}], {A}, {B}, {cc}'


def poison_check(k):
    st = XS + 16 * (k % NS)
    out = [f'v_max3_u32 v{VMAX}, v{st}, v{st+1}, v{st+2}']
    for i in range(6):
        out.append(f'v_max3_u32 v{VMAX}, v{VMAX}, v{st+3+2*i}, v{st+4+2*i}')
    out.append(f'v_max_u32 v{VMAX}, v{VMAX}, v{st+15}')
    out.append(f'v_cmp_eq_u32 vcc, -1, v{VMAX}')
    return out


def gemm_checked(a, nk, gid, sb, tail_hook=None, side=None):
    nfl = OPT['nfl']

    def slow(k):
        ls, lb, lp = a.lab('slow'), a.lab('back'), a.lab('sloop')

        def emit():
            a.e(f'{ls}:')
            a.e(f's_mov_b32 s{S_SPIN}, 0')
            a.e(f'{lp}:')
            for x in gemm_xloads(a, k, gid):
                a.e(x)
            a.e('s_waitcnt vmcnt(0)')
            for x in poison_check(k):
                a.e(x)
            ldone = a.lab('sdone')
            a.e(f's_cbranch_vccz {ldone}')
            spin_tail(a, lp)
            a.e(f'{ldone}:')
            if k == 0:
                for kk in range(1, min(nfl, nk - 1) + 1):
                    for x in gemm_xloads(a, kk, gid):
                        a.e(x)
            a.e(f's_branch {lb}')
        STUBS.append(emit)
        return ls, lb

    for k in range(nfl):
        for x in gemm_xloads(a, k, gid):
            a.e(x)
    a.e(f's_waitcnt vmcnt({4*(nfl-1)})')
    for x in gemm_xloads(a, nfl, gid):
        a.e(x)
    for x in poison_check(0):
        a.e(x)
    ls, lb = slow(0)
    a.e(f's_cbranch_vccnz {ls}')
    a.e(f'{lb}:')
    stamp(a, sb)
    extra = 0
    for k in range(nk):
        lines = [mfma_line(k, mu, nu, gid) for mu in range(4) for nu in range(4)]
        for i in range(8):
            a.e(lines[i])
        if k + 1 < nk:
            kn = k + 1
            rem = min(nfl - 1, nk - 1 - kn)
            a.e(f's_waitcnt vmcnt({4*rem + extra})')
            if OPT['stamps'] and kn in (4, 8, 12):
                stamp(a, (44 if gid == 1 else 51) + (0, 4, 8, 12).index(kn))
            fill = gemm_xloads(a, kn + nfl, gid) if kn + nfl < nk else []
            if kn + nfl == nk and tail_hook is not None:
                extra = tail_hook(fill)
            if side is not None:
                lines_, nvm = side(kn)
                fill += lines_
                extra += nvm
            fill += poison_check(kn)
        else:
            fill = []
        per = -(-len(fill) // 8)
        for i in range(8, 16):
            a.e(lines[i])
            for _ in range(per):
                if fill:
                    a.e(fill.pop(0))
        assert not fill
        if k + 1 < nk:
            ls, lb = slow(k + 1)
            a.e(f's_cbranch_vccnz {ls}')
            a.e(f'{lb}:')


def sentinel(a, ws_off, kblocks):
    lp, ld = a.lab('spoll'), a.lab('sdone')
    a.e(f's_mul_i32 s66, s{S_W}, {kblocks*7168}')
    a.e(f's_mul_i32 s67, s{S_J}, 896')
    a.e('s_add_u32 s66, s66, s67')
    a.e(f's_add_u32 s66, s66, {ws_off + 55*16 + 12}')
    a.e('v_mul_u32_u24 v4, 7168, v1')
    a.e('v_add_u32 v4, s66, v4')
    if kblocks < 64:
        mask_lanes(a, 4, kblocks, 5)
    a.e(f's_mov_b32 s{S_SPIN}, 0')
    a.e(f'{lp}:')
    a.e(f'buffer_load_dword v5, v4, {WSR}, 0 offen sc1')
    a.e('s_waitcnt vmcnt(0)')
    a.e('v_cmp_eq_u32 vcc, -1, v5')
    a.e(f's_cbranch_vccz {ld}')
    spin_tail(a, lp)
    a.e(f'{ld}:')


def gemm_poll_main(a, ws_off, kblocks, nk, gid, sb, tail_hook=None, side=None):
    lr, lok = a.lab('gretry'), a.lab('gok')
    gemm_xaddr(a, ws_off, kblocks)
    if OPT['stchk']:
        gemm_checked(a, nk, gid, sb, tail_hook, side)
        return
    a.e(f's_mov_b32 s{S_RETRY}, 0')
    a.e(f'{lr}:')
    sentinel(a, ws_off, kblocks)
    stamp(a, sb)
    for k in range(OPT['nfl']):
        for x in gemm_xloads(a, k, gid):
            a.e(x)
    gemm_main(a, nk, gid, tail_hook)
    a.e(f'v_cmp_eq_u32 vcc, -1, v{VMAX}')
    a.e(f's_cbranch_vccz {lok}')
    a.e(f's_add_u32 s{S_RETRY}, s{S_RETRY}, 1')
    a.e(f's_cmp_lt_u32 s{S_RETRY}, {RETRY_MAX}')
    a.e(f's_cbranch_scc1 {lr}')
    a.e(f'{lok}:')


def write_partials(a):
    if OPT['hoist']:
        va = 241
    else:
        va = 4
        a.e('v_and_b32 v4, 15, v1')
        a.e(f'v_mul_u32_u24 v4, {PROW}, v4')
        a.e('v_lshrrev_b32 v5, 4, v1')
        a.e('v_lshl_add_u32 v4, v5, 4, v4')
        a.e(f's_mul_i32 s66, s{S_W}, {PARTW}')
        a.e(f's_add_u32 s66, s66, {L_PART}')
        a.e('v_add_u32 v4, s66, v4')
    if not OPT['prebar']:
        a.e('s_barrier')
    for mt in range(4):
        for nt in range(4):
            acc = ACC + (mt * 4 + nt) * 4
            a.e(f'ds_write_b128 v{va}, v[{acc}:{acc+3}] offset:{nt*16*PROW + mt*64}')


def sum_partials(a, P):
    for h in range(4):
        a.e(f'v_pk_add_f32 v[{P+2*h}:{P+2*h+1}], v[{P+2*h}:{P+2*h+1}], v[{P+8+2*h}:{P+9+2*h}]')
        a.e(f'v_pk_add_f32 v[{P+16+2*h}:{P+17+2*h}], v[{P+16+2*h}:{P+17+2*h}], v[{P+24+2*h}:{P+25+2*h}]')
    for h in range(4):
        a.e(f'v_pk_add_f32 v[{P+2*h}:{P+2*h+1}], v[{P+2*h}:{P+2*h+1}], v[{P+16+2*h}:{P+17+2*h}]')


def b1_load(a):
    a.e(f's_lshl_b32 s67, s{S_I1}, 7')
    a.e(f's_lshl_b32 s70, s{S_W}, 5')
    a.e('s_add_u32 s67, s67, s70')
    a.e(f's_load_dwordx8 s[72:79], s[{P_B1}:{P_B1+1}], s67')


def gemm1_epilogue(a, d0=(), d1=()):
    write_partials(a)
    if OPT['hoist']:
        VR1, VG1 = 242, 240
    else:
        VR1, VG1 = 4, 5
        a.e(f'v_mul_u32_u24 v4, {PROW}, v1')
        a.e(f's_lshl_b32 s66, s{S_W}, 6')
        a.e(f's_add_u32 s66, s66, {L_PART}')
        a.e('v_add_u32 v4, s66, v4')
        g_store_addr(a, 5)
    C1 = 0.044715
    C2 = -2.0 * 0.7978845608028654 * 1.4426950408889634
    a.e(f'v_mov_b32 v100, {fx(C1*C2)}')
    a.e(f'v_mov_b32 v101, {fx(C1*C2)}')
    a.e(f'v_mov_b32 v102, {fx(C2)}')
    a.e(f'v_mov_b32 v103, {fx(C2)}')
    a.e('s_waitcnt lgkmcnt(0)')
    a.e('s_barrier')
    stamp(a, 24)
    for r in range(2):
        P = 16 + 32 * r
        for wv in range(4):
            a.e(f'ds_read_b128 v[{P+8*wv}:{P+8*wv+3}], v{VR1} offset:{wv*PARTW + r*32}')
            a.e(f'ds_read_b128 v[{P+8*wv+4}:{P+8*wv+7}], v{VR1} offset:{wv*PARTW + r*32 + 16}')
    for i in range(8):
        a.e(f's_lshl_b32 s{80+2*i}, s{72+i}, 16')
        a.e(f's_and_b32 s{81+2*i}, s{72+i}, 0xffff0000')
    for r in range(2):
        P = 16 + 32 * r
        T = 80
        a.e(f's_waitcnt lgkmcnt({8 if r == 0 else 0})')
        if r == 1 and d1:
            a.e('s_barrier')
        dd = d0 if r == 0 else d1
        if dd:
            a.inject(dd, max(1, 80 // len(dd)))
        sum_partials(a, P)
        round_pairs(a, P, T, 8)
        for h in range(4):
            a.e(f'v_pk_add_f32 v[{P+2*h}:{P+2*h+1}], v[{P+2*h}:{P+2*h+1}], s[{80+8*r+2*h}:{81+8*r+2*h}]')
        round_pairs(a, P, T, 8)
        for h in range(4):
            a.e(f'v_pk_mul_f32 v[{P+8+2*h}:{P+9+2*h}], v[{P+2*h}:{P+2*h+1}], v[{P+2*h}:{P+2*h+1}]')
        for h in range(4):
            a.e(f'v_pk_fma_f32 v[{P+8+2*h}:{P+9+2*h}], v[{P+8+2*h}:{P+9+2*h}], v[100:101], v[102:103]')
        for h in range(4):
            a.e(f'v_pk_mul_f32 v[{P+8+2*h}:{P+9+2*h}], v[{P+8+2*h}:{P+9+2*h}], v[{P+2*h}:{P+2*h+1}]')
        for i in range(8):
            a.e(f'v_exp_f32 v{P+8+i}, v{P+8+i}')
        for h in range(4):
            a.e(f'v_pk_add_f32 v[{P+8+2*h}:{P+9+2*h}], v[{P+8+2*h}:{P+9+2*h}], 1.0 op_sel_hi:[1,0]')
        for i in range(8):
            a.e(f'v_rcp_f32 v{P+8+i}, v{P+8+i}')
        for h in range(4):
            a.e(f'v_pk_mul_f32 v[{P+2*h}:{P+2*h+1}], v[{P+2*h}:{P+2*h+1}], v[{P+8+2*h}:{P+9+2*h}]')
        O = 88 + 4 * r
        for h in range(4):
            a.e(f'v_cvt_pk_bf16_f32 v{O+h}, v{P+2*h}, v{P+2*h+1}')
        a.inj_flush()
        if r == 1:
            a.e(f'v_add_u32 v{VG1}, 7168, v{VG1}')
        a.e(f'buffer_store_dwordx4 v[{O}:{O+3}], v{VG1}, {WSR}, 0 offen sc1')


V_OUT, V_HAD, V_B2 = 210, 211, 212
V_HR = 196


def gemm2_addr(a):
    srd(a, S_T2, P_OUT, XBYTES)
    srd(a, S_T3, P_B2, L * 2)
    a.e('v_lshrrev_b32 v4, 3, v1')
    a.e('v_and_b32 v5, 7, v1')
    a.e(f's_lshl_b32 s66, s{S_W}, 4')
    a.e('v_add_u32 v4, s66, v4')
    a.e(f's_lshl_b32 s67, s{S_I2}, 6')
    a.e('v_add_u32 v7, s67, v4')
    a.e(f'v_mul_u32_u24 v{V_OUT}, 896, v7')
    a.e(f'v_lshl_add_u32 v{V_OUT}, v5, 4, v{V_OUT}')
    a.e(f's_mul_i32 s70, s{S_J}, 112')
    a.e(f'v_add_u32 v{V_OUT}, s70, v{V_OUT}')
    a.e(f'v_mov_b32 v6, {OOB}')
    a.e('v_cmp_gt_u32 vcc, 7, v5')
    a.e(f'v_cndmask_b32 v{V_OUT}, v6, v{V_OUT}, vcc')
    a.e(f'v_add_u32 v{V_HAD}, {WS_H}, v{V_OUT}')
    a.e(f'v_lshlrev_b32 v{V_B2}, 1, v7')


def gemm2_tail_loads(fill):
    fill.append(f'buffer_load_dwordx4 v[{V_HR}:{V_HR+3}], v{V_HAD}, {WSR}, 0 offen sc1')
    fill.append(f's_mov_b32 s70, {8*896}')
    fill.append(f'buffer_load_dwordx4 v[{V_HR+4}:{V_HR+7}], v{V_HAD}, {WSR}, s70 offen sc1')
    fill.append(f'buffer_load_ushort v{V_HR+8}, v{V_B2}, s[{S_T3}:{S_T3+3}], 0 offen')
    fill.append(f'buffer_load_ushort v{V_HR+9}, v{V_B2}, s[{S_T3}:{S_T3+3}], 0 offen offset:16')
    return 4


def gemm2_epilogue(a):
    write_partials(a)
    if OPT['hoist']:
        VR2 = 243
    else:
        VR2 = 6
        a.e('v_lshrrev_b32 v4, 3, v1')
        a.e('v_and_b32 v5, 7, v1')
        a.e(f's_lshl_b32 s66, s{S_W}, 4')
        a.e('v_add_u32 v4, s66, v4')
        a.e(f'v_mul_u32_u24 v6, {PROW}, v4')
        a.e('v_lshl_add_u32 v6, v5, 4, v6')
        a.e(f'v_add_u32 v6, {L_PART}, v6')
    a.e('s_waitcnt lgkmcnt(0)')
    a.e('s_barrier')
    stamp(a, 33)
    for r in range(2):
        P = 16 + 32 * r
        for wv in range(4):
            a.e(f'ds_read_b128 v[{P+8*wv}:{P+8*wv+3}], v{VR2} offset:{wv*PARTW + r*8*PROW}')
            a.e(f'ds_read_b128 v[{P+8*wv+4}:{P+8*wv+7}], v{VR2} offset:{wv*PARTW + r*8*PROW + 112}')
    a.e('s_waitcnt vmcnt(0)')
    for r in range(2):
        P = 16 + 32 * r
        T = 80
        H = V_HR + 4 * r
        a.e(f'v_lshlrev_b32 v106, 16, v{V_HR+8+r}')
        for i in range(4):
            a.e(f'v_lshlrev_b32 v{96+i}, 16, v{H+i}')
            a.e(f'v_and_b32 v{100+i}, 0xffff0000, v{H+i}')
        a.e(f's_waitcnt lgkmcnt({8 if r == 0 else 0})')
        sum_partials(a, P)
        round_pairs(a, P, T, 8)
        for h in range(4):
            a.e(f'v_pk_add_f32 v[{P+2*h}:{P+2*h+1}], v[{P+2*h}:{P+2*h+1}], v[106:107] op_sel:[0,0] op_sel_hi:[1,0]')
        round_pairs(a, P, T, 8)
        for h in range(4):
            a.e(f'v_pk_add_f32 v[{P+2*h}:{P+2*h+1}], v[{P+2*h}:{P+2*h+1}], v[{96+2*h}:{97+2*h}]')
        O = 88 + 4 * r
        for i in range(4):
            a.e(f'v_cvt_pk_bf16_f32 v{O+i}, v{P+i}, v{P+4+i}')
        if r == 1:
            a.e(f'v_add_u32 v{V_OUT}, {8*896}, v{V_OUT}')
        a.e(f'buffer_store_dwordx4 v[{O}:{O+3}], v{V_OUT}, s[{S_T2}:{S_T2+3}], 0 offen' + ['', ' sc1', ' nt', ' sc0 sc1', ' sc1 nt'][OPT['outsc']])


HEADER = """;
"""


def build():
    a = Prog()
    name = NAME + '_kernel'
    lend = a.lab('end')
    a.raw(f'.globl {name}')
    a.raw('.p2align 8')
    a.raw(f'.type {name},@function')
    a.raw(f'{name}:')
    prologue(a, lend)
    lnc1, lnc2, lnc3, lnc5, lnc6 = [a.lab('noconv') for _ in range(5)]

    def skip_if_helper(l):
        a.e(f's_cmp_ge_u32 s{S_LOC}, 28')
        a.e(f's_cbranch_scc1 {l}')

    load_xrows(a)
    ncp = 0
    if OPT['cpf'] & 2:
        code_prefetch1(a, name, 'kcode_end')
        ncp = 1
    a.e(f's_add_u32 s66, s{P_WS}, {WS_EPOCH}')
    a.e(f's_addc_u32 s67, s{P_WS+1}, 0')
    a.e('s_load_dword s99, s[66:67], 0')
    poison_regs(a)
    skip_if_helper(lnc1)
    nt = 0
    if not OPT['plate']:
        kgen_loads(a)
        load_gather_table(a, 'ktab_idx')
        w_setup(a)
        if OPT['tlb'] & 2:
            nt = tlb_touch(a)
        flag_addr(a)
        if OPT['hoist']:
            hoist_common(a)
            hoist_conv(a)
        a.e('s_waitcnt lgkmcnt(0)')
        a.e(f's_add_u32 s{S_TAG}, s99, 0x9e3779b9')
        a.e(f's_waitcnt vmcnt({10 + nt + ncp})')
        stamp(a, 2)
        clear_hh(a)
        clear_aout(a)
    else:
        kgen_loads(a, 'setup')
        w_setup(a)
        flag_addr(a)
        a.e(f's_waitcnt vmcnt({ncp})')
        stamp(a, 2)
        kgen_loads(a, 'issue')
        clear_hh(a)
        clear_aout(a)
        load_gather_table(a, 'ktab_idx')
        if OPT['tlb'] & 2:
            nt = tlb_touch(a)
        a.e('s_waitcnt lgkmcnt(0)')
        a.e(f's_add_u32 s{S_TAG}, s99, 0x9e3779b9')
    ln_stats(a, list(range(8, 16)), 16, L_RED0, 5)
    stamp(a, 3)
    publish_xn(a)
    nb0 = OPT['wb0']
    if OPT['sched'] == 2:
        qa, qb = OPT['qa'], OPT['qb']
        qpf_load(a, qa)
        stamp(a, 4)
        a.e(f's_waitcnt vmcnt({8 + nt + qa})')
        kgen_channel(a, 0, DK0)
        for k in range(nb0):
            w_dma(a, 1, k, BS[k])
        stamp(a, 40)
        kgen_channel(a, 1, DK1, mid=lambda: publish_flag(a, qa + 4 * nb0), mid_m0=False)
        stamp(a, 5)
        qpf_load(a, qb)
        a.e(f's_waitcnt vmcnt({qb})')
        for k in range(nb0):
            w_tr(a, k, BS[k])
        ktab_part1(a)
        stamp(a, 6)
        flag_load(a)
        ktab_part2(a)
        stamp(a, 7)
        a.e(f's_mov_b32 s{S_EARLY}, 0')
        lne = a.lab('notearly')
        a.e('s_waitcnt vmcnt(0)')
        a.e(f'v_cmp_ne_u32 vcc, s{S_TAG}, v{V_FV}')
        a.e(f's_cbranch_vccnz {lne}')
        load_u(a)
        a.e(f's_mov_b32 s{S_EARLY}, 1')
        a.e(f'{lne}:')
        conv_addr(a)
        kcopies(a)
        stamp(a, 8)
        lhave = a.lab('haveu')
        a.e(f's_cmp_lg_u32 s{S_EARLY}, 0')
        a.e(f's_cbranch_scc1 {lhave}')
        flag_poll(a)
        load_u(a)
        a.e(f'{lhave}:')
        stamp(a, 9)
        store_u(a, 0)
    elif OPT['sched'] == 3:
        nq = (448 - OPT['hR']) // 32
        ne = 0
        if OPT['cearly']:
            assert OPT['regc']
            for k in range(2):
                w_dma(a, 1, k, f'C{k}')
            q4 = min(OPT['q4'], nq)
            qpf_load(a, q4)
            ne = 8 + q4
            nq -= q4
        stamp(a, 4)
        a.e(f's_waitcnt vmcnt({8 + nt + ne})')
        m0 = kgen_channel(a, 0, DK0, defer=bool(OPT['kdefer']))
        if not OPT['flagmid']:
            publish_flag(a, ne)
        if OPT['regc']:
            nb0 = 2
            if not OPT['cearly']:
                for k in range(2):
                    w_dma(a, 1, k, f'C{k}')
        else:
            for k in range(nb0):
                w_dma(a, 1, k, BS[k])
        if OPT['cearly']:
            qpf_load(a, nq)
            nq = 0
        stamp(a, 40)
        if OPT['flagmid']:
            assert OPT['regc'] and not OPT['cearly']
            kgen_channel(a, 1, DK1, mid=lambda: publish_flag(a, 8), mid_m0=False)
        else:
            kgen_channel(a, 1, DK1, after_setup=m0)
        stamp(a, 5)
        flag_load(a)
        qpf_load(a, nq)
        if not OPT['regc']:
            a.e(f's_waitcnt vmcnt({nq + 1})')
            for k in range(nb0):
                w_tr(a, k, BS[k])
        ktab_part1(a)
        stamp(a, 6)
        a.e(f's_mov_b32 s{S_EARLY}, 0')
        lne = a.lab('notearly')
        a.e(f's_waitcnt vmcnt({nq})')
        a.e(f'v_cmp_ne_u32 vcc, s{S_TAG}, v{V_FV}')

        def early_u():
            a.e(f's_cbranch_vccnz {lne}')
            load_u(a)
            a.e(f's_mov_b32 s{S_EARLY}, 1')
            a.e(f'{lne}:')
        if OPT['uov']:
            assert OPT['hoist']
            ktab_part2(a, mid=early_u)
        else:
            early_u()
            ktab_part2(a)
        stamp(a, 7)
        if not OPT['hoist']:
            conv_addr(a)
        kcopies(a)
        stamp(a, 8)
        lhave = a.lab('haveu')
        a.e(f's_cmp_lg_u32 s{S_EARLY}, 0')
        a.e(f's_cbranch_scc1 {lhave}')
        flag_poll(a)
        load_u(a)
        a.e(f'{lhave}:')
        stamp(a, 9)
        store_u(a, 0)
    else:
        stamp(a, 4)
        a.e(f's_waitcnt vmcnt({8 + nt})')
        kgen_channel(a, 0, DK0)
        publish_flag(a)
        for k in range(min(nb0, 3)):
            w_dma(a, 1, k, BS[k])
        stamp(a, 40)
        kgen_channel(a, 1, DK1, mid=(lambda: [w_dma(a, 1, k, BS[k]) for k in range(3, nb0)]) if nb0 > 3 else None)
        stamp(a, 5)
        if OPT['early']:
            flag_load(a)
            a.e('s_waitcnt vmcnt(1)')
        else:
            a.e('s_waitcnt vmcnt(0)')
        for k in range(nb0):
            w_tr(a, k, BS[k])
        ktab_part1(a)
        stamp(a, 6)
        a.e(f's_mov_b32 s{S_EARLY}, 0')
        lne = a.lab('notearly')
        if OPT['early']:
            a.e('s_waitcnt vmcnt(0)')
            a.e(f'v_cmp_ne_u32 vcc, s{S_TAG}, v{V_FV}')
            a.e(f's_cbranch_vccnz {lne}')
            load_u(a)
            a.e(f's_mov_b32 s{S_EARLY}, 1')
            a.e(f'{lne}:')
        qpf_load(a, OPT['w2pf_a'])
        ktab_part2(a)
        stamp(a, 7)
        if not OPT['hoist']:
            conv_addr(a)
        kcopies(a)
        stamp(a, 8)
        lhave = a.lab('haveu')
        a.e(f's_cmp_lg_u32 s{S_EARLY}, 0')
        a.e(f's_cbranch_scc1 {lhave}')
        flag_poll(a)
        load_u(a)
        a.e('s_waitcnt vmcnt(0)')
        a.e(f'{lhave}:')
        stamp(a, 9)
        store_u(a, OPT['w2pf_a'])
    epoch_update(a)
    clear_g(a)
    if OPT['sched'] == 1:
        qpf_load(a, OPT['w2pf_b'])
    stamp(a, 10)
    hk = []
    cre = OPT['cre'] and OPT['regc']
    if cre:
        for k in range(2):
            w_tr(a, k, f'C{k}')
        for k, sl in enumerate(AS + ['C0', 'C1']):
            for i in range(4):
                hk.append(lambda k=k, sl=sl, i=i: w_dma1(a, 1, 2 + k, sl, i))
                if i % 2 == 1:
                    hk.append(lambda: None)
    else:
        for k in range(4):
            for i in range(4):
                hk.append(lambda k=k, i=i: w_dma1(a, 1, nb0 + k, AS[k], i))
                hk.append(lambda: None)
    if OPT['nohk']:
        hk = []
    elif OPT['hkpos'] == 1:
        hk = [h for i, h in enumerate(hk) if i % 2 == 0]
    elif OPT['hkpos'] == 2:
        hk = [lambda: None] * 18 + [h for i, h in enumerate(hk) if i % 2 == 0]
    phase_conv(a, hk, 0)
    stamp(a, 12)
    if cre:
        for k, sl in enumerate(AS + ['C0', 'C1']):
            w_tr(a, 2 + k, sl)
        nb0 = 4
    else:
        if OPT['regc']:
            for k in range(2):
                w_tr(a, k, f'C{k}')
        for k in range(4):
            w_tr(a, nb0 + k, AS[k])
    a.e('s_waitcnt lgkmcnt(0)')
    a.e('s_barrier')
    rest = list(range(nb0 + 4, 16))
    last = None
    if len(rest) > 9:
        last = rest.pop()
    rest_slots = (BS + AS)[:len(rest)]
    p4d = []
    if OPT['p4dma']:
        assert OPT['hpriv']
        p4d = [lambda k=k, sl=sl, i=i: w_dma1(a, 1, k, sl, i) for k, sl in zip(rest, rest_slots) for i in range(4)]
    else:
        for k, sl in zip(rest, rest_slots):
            w_dma(a, 1, k, sl)
    stamp(a, 13)
    a.e(f's_branch {lnc2}')
    a.e(f'{lnc1}:')
    nh = 0
    if OPT['cpf'] & 1:
        code_prefetch(a, name, 'kcode_end')
        nh += 3
    w_setup(a)
    if OPT['tlb'] & 1:
        nh += tlb_touch(a)
    flag_addr(a)
    if OPT['hoist']:
        hoist_common(a)
    a.e('s_waitcnt lgkmcnt(0)')
    a.e(f's_add_u32 s{S_TAG}, s99, 0x9e3779b9')
    a.e(f's_waitcnt vmcnt({nh + ncp})')
    clear_hh(a)
    ln_stats(a, list(range(8, 16)), 16, L_RED0, 5)
    publish_xn(a)
    publish_flag(a)
    if OPT['sched'] == 3 and OPT['hsplit']:
        qpf_load(a, (448 - OPT['hR']) // 32)

        def hcheck():
            lok = a.lab('hflags')
            a.e(f'v_cmp_ne_u32 vcc, s{S_TAG}, v{V_FV}')
            a.e(f's_cbranch_vccz {lok}')
            flag_poll(a)
            a.e(f'{lok}:')
            a.e('s_barrier')
        helper_w2(a, OPT['hR'], mid=(OPT['hn1'], lambda: flag_load(a), hcheck))
        stamp(a, 41)
    else:
        if OPT['sched'] == 3:
            qpf_load(a, (448 - OPT['hR']) // 32)
            helper_w2(a, OPT['hR'])
        else:
            qpf_load(a, 14)
        stamp(a, 41)
        flag_poll(a)
        a.e('s_barrier')
    if p4d:
        a.e(f's_mov_b32 s{S_W1+2}, 0')
    stamp(a, 42)
    a.e(f'{lnc2}:')
    phase_p4(a, p4d)
    stamp(a, 20)
    gemm2_addr(a)
    skip_if_helper(lnc3)
    b1_load(a)
    if p4d:
        a.e('s_waitcnt vmcnt(2)')
    for k, sl in zip(rest, rest_slots):
        w_tr(a, k, sl)
    a.e('s_waitcnt lgkmcnt(0)')
    if last is not None:
        w_dma(a, 1, last, 'A0')
    for k in range(5):
        w_dma(a, 2, k, BS[k])
    if last is not None:
        a.e('s_waitcnt vmcnt(20)')
        w_tr(a, last, 'A0')
        a.e('s_waitcnt lgkmcnt(0)')
    if OPT['prebar']:
        a.e('s_barrier')
    stamp(a, 21)
    w2sh = OPT['w2sh'] and OPT['stchk'] and OPT['h4early']

    def side1(kn):
        if 6 <= kn <= 10:
            return capture(lambda p: w_tr(p, kn - 6, BS[kn - 6])), 0
        if 13 <= kn <= 15:
            pre = ['s_waitcnt lgkmcnt(0)'] if kn == 13 else []
            return pre + capture(lambda p: w_dma(p, 2, kn - 8, BS[kn - 13])), 4
        return [], 0

    gemm_poll_main(a, WS_HH, 64, 16, 1, 22, side=side1 if w2sh else None)
    stamp(a, 23)
    if OPT['h4early']:
        if not w2sh:
            for k in range(5):
                w_tr(a, k, BS[k])
            a.e('s_waitcnt lgkmcnt(0)')
            for k in range(5, 5 + OPT['npre']):
                w_dma(a, 2, k, BS[k - 5])
        if OPT['e1dma']:
            d0 = [lambda k=k, i=i: w_dma1(a, 2, k, BS[k - 5], i) for k in range(8, 10) for i in range(4)]
            d1 = [lambda k=k, i=i: w_dma1(a, 2, k, AS[k - 10], i) for k in range(10, 14) for i in range(4)]
            gemm1_epilogue(a, d0, d1)
            stamp(a, 25)
            w1, w2, w3 = 26, 18, 1
        else:
            gemm1_epilogue(a)
            stamp(a, 25)
            npre = 3 if w2sh else OPT['npre']
            for k in range(5 + npre, 10):
                w_dma(a, 2, k, BS[k - 5])
            a.e('s_barrier')
            for k in range(10, 14):
                w_dma(a, 2, k, AS[k - 10])
            w1, w2, w3 = 24 + (0 if npre < 3 else 0), 16, 0
            w1 = 26 if npre == 3 else 24
        a.e(f's_waitcnt vmcnt({w1})')
        for k in range(5, 8):
            w_tr(a, k, BS[k - 5])
        a.e(f's_waitcnt vmcnt({w2})')
        for k in range(8, 10):
            w_tr(a, k, BS[k - 5])
        a.e(f's_waitcnt vmcnt({w3})')
        for k in range(10, 14):
            w_tr(a, k, AS[k - 10])
        a.e('s_waitcnt lgkmcnt(0)')
        a.e(f's_branch {lnc6}')
    else:
        gemm1_epilogue(a)
        stamp(a, 25)
        for k in range(5):
            w_tr(a, k, BS[k])
        a.e('s_waitcnt lgkmcnt(0)')
        a.e('s_barrier')
        a.e(f's_branch {lnc5}')
    a.e(f'{lnc3}:')
    for k in range(5):
        w_dma(a, 2, k, BS[k])
    a.e('s_waitcnt vmcnt(0)')
    for k in range(5):
        w_tr(a, k, BS[k])
    a.e('s_waitcnt lgkmcnt(0)')
    a.e(f'{lnc5}:')
    for k in range(5, 10):
        w_dma(a, 2, k, BS[k - 5])
    for k in range(10, 14):
        w_dma(a, 2, k, AS[k - 10])
    a.e('s_waitcnt vmcnt(16)')
    for k in range(5, 10):
        w_tr(a, k, BS[k - 5])
    a.e('s_waitcnt vmcnt(0)')
    for k in range(10, 14):
        w_tr(a, k, AS[k - 10])
    a.e('s_waitcnt lgkmcnt(0)')
    a.e(f'{lnc6}:')
    if OPT['prebar']:
        a.e('s_barrier')
    stamp(a, 30)
    gemm_poll_main(a, WS_G, 56, 14, 2, 31, gemm2_tail_loads)
    stamp(a, 32)
    gemm2_epilogue(a)
    stamp_clk(a, 61)
    stamp(a, 63)
    stamp_flush(a)
    a.e(f'{lend}:')
    a.e('s_endpgm')
    for emit in STUBS:
        emit()
    del STUBS[:]
    a.raw('kcode_end:')
    emit_gather_table(a, 'ktab_idx')
    nn = a.fast_insert_nops()
    head = f'; @launch grid=(256,1,1) block=(256,1,1) lds={LDS_BYTES}\n'
    head += HEADER
    head += '.amdgcn_target "amdgcn-amd-amdhsa--gfx950"\n.text\n'
    tail = '.section .rodata,"a"\n.p2align 6\n' + descriptor(name)
    if OPT['align']:
        nal = a.align8(head, tail)
        sys.stderr.write(f'alignment: {nal}\n')
    sys.stderr.write(f'instructions: {a.count()}, nops inserted: {nn}\n')
    return head + a.text() + tail


if __name__ == '__main__':
    out = sys.argv[1]
    for arg in sys.argv[2:]:
        if arg == 'stamps':
            OPT['stamps'] = True
        elif arg == 'dbg':
            OPT['stamps'] = True
            OPT['dbgsel'] = [0, 1, 2, 4, 8, 9, 12, 13, 14, 20, 21, 23, 25, 30, 32, 63]
        elif '=' in arg:
            k, v = arg.split('=')
            OPT[k] = int(v)
    open(out, 'w').write(build())
```

```python
import sys
import gen
from gen import (Prog, NAME, L, D, F, XBYTES, PBYTES, W1BYTES, W2BYTES, OOB, fx, srd, reduce16, cmul, exp_bf16,
                 gather_table, emit_gather_table, descriptor, round_pairs, norm_tok, bcast_stats)

OPT = dict(cvbar=1, prebar=1, lastw=1, slp=0, hn1=11, hsplit=0, hoist=0, cre=0, uov=0, tlbout=0, kdefer=1, flagmid=0, npre=3, nohk=0, hkpos=0, w2sh=1, stchk=1, p4dma=0, p4ev=6, e1dma=0, plate=0, cearly=0, q4=4, hpriv=1, regc=1, hR=320, c4=1, kgrp=3, tlbg=21, cpf=1, sched=3, qa=7, qb=7, tlb=3, outsc=0, x3oob=1, h4early=1, wb0=3, xnb=1, stamps=False, dbgsel=None, w2pf_a=10, w2pf_b=4, nfl=3, early=True, align=True, hlds=True)

WS_FLAG = 0x4000
WS_EPOCH = 0x9000
WS_AOUT = 0x10000
AST = 8448
WS_H = 0x200000
WS_HH = 0x400000
WS_G = 0x600000
WS_DBG = 0x800000
WS_XN = 0xA00000
XCS = 4352
XPS = 2 * XCS
WS_USED = 0x1000000

L_RED0, L_RED1, L_SIG, L_KT = 0, 256, 512, 640
KTCH = 1600
L_U = L_KT + 2 * KTCH
UCH = 4608
L_SCR = L_U + 2 * UCH
SROW = 272
YROW = 41
SCRW = 57 * SROW
L_KC = 82688
KCOPY = 4160
KCH = 8 * KCOPY
L_CP = L_KC
LDS_BYTES = 160 * 1024
L_WA, L_WB = 13056, 78592
L_WC = 123904
L_PART = 1024
PROW = 272
PARTW = 64 * PROW
L_HT = 1024

S_WS, S_X = 4, 8
S_T0, S_T1, S_T2, S_T3 = 12, 16, 20, 24
S_W1, S_W2 = 12, 16
S_W, S_XCD, S_LOC, S_B, S_P, S_J, S_I1, S_I2 = 28, 29, 30, 31, 32, 33, 34, 35
P_X, P_LAR, P_AI, P_CR, P_CI, P_LDT, P_DSK = 36, 38, 40, 42, 44, 46, 48
P_W1, P_B1, P_W2, P_B2, P_OUT, P_DBG, P_WS = 52, 54, 56, 58, 60, 62, 64
S_SA, S_SB = 50, 51
S_RW1, S_RX1, S_RW2, S_RX2 = 38, 39, 40, 41
S_QPF = 42
S_EARLY = 43
S_SC = 44
V_TC = 236
S_TAG, S_SPIN, S_RETRY = 96, 97, 98
V_D1, V_D2, V_TA, V_TB = 224, 228, 244, 248
V_QPF = 232
SPIN_MAX, RETRY_MAX = 4000, 20
AS = ['A0', 'A1', 'A2', 'A3']
BS = ['B0', 'B1', 'B2', 'B3', 'B4']
WSR = f's[{S_WS}:{S_WS+3}]'

assert (gen.S_W, gen.S_B, gen.S_WS) == (S_W, S_B, S_WS)


def stamp(a, idx):
    if not OPT['stamps']:
        return
    sel = OPT['dbgsel']
    if sel is not None:
        if idx not in sel:
            return
        idx = sel.index(idx)
    a.e('s_memrealtime s[100:101]')
    a.e('s_waitcnt lgkmcnt(0)')
    a.e(f'v_writelane_b32 v255, s100, {idx}')


def stamp_clk(a, idx):
    if not OPT['stamps'] or OPT['dbgsel'] is not None:
        return
    a.e('s_memtime s[100:101]')
    a.e('s_waitcnt lgkmcnt(0)')
    a.e(f'v_writelane_b32 v255, s100, {idx}')


def stamp_flush(a):
    if not OPT['stamps']:
        return
    l = a.lab('nost')
    a.e(f's_cmp_lg_u32 s{S_W}, 0')
    a.e(f's_cbranch_scc1 {l}')
    if OPT['dbgsel'] is not None:
        a.e('v_not_b32 v253, v255')
        a.e('v_cmp_eq_u32 vcc, 0, v1')
        a.e('v_cndmask_b32 v255, v255, v253, vcc')
        a.e('v_lshlrev_b32 v254, 2, v1')
        a.e('s_mov_b64 exec, 0xffff')
        a.e(f'global_atomic_umax v254, v255, s[{P_DBG}:{P_DBG+1}]')
        a.e('s_mov_b64 exec, -1')
    else:
        a.e('s_lshl_b32 s66, s2, 8')
        a.e(f's_add_u32 s66, s66, {WS_DBG}')
        a.e('v_lshl_add_u32 v254, v1, 2, s66')
        a.e(f'buffer_store_dword v255, v254, {WSR}, 0 offen')
    a.e(f'{l}:')


def spin_tail(a, lp):
    if OPT['slp']:
        a.e(f's_sleep {OPT["slp"]}')
    a.e(f's_add_u32 s{S_SPIN}, s{S_SPIN}, 1')
    a.e(f's_cmp_lt_u32 s{S_SPIN}, {SPIN_MAX}')
    a.e(f's_cbranch_scc1 {lp}')


def mask_lanes(a, v, n, tmp, src='v1'):
    a.e(f'v_mov_b32 v{tmp}, {OOB}')
    a.e(f'v_cmp_gt_u32 vcc, {n}, {src}')
    a.e(f'v_cndmask_b32 v{v}, v{tmp}, v{v}, vcc')


def prologue(a, lend):
    a.e('s_cmp_ge_u32 s2, 256')
    a.e(f's_cbranch_scc1 {lend}')
    if OPT['stamps']:
        a.e('v_mov_b32 v255, 0')
        stamp(a, 0)
        stamp_clk(a, 60)
    a.e('s_load_dwordx16 s[36:51], s[0:1], 0')
    a.e('s_load_dwordx8 s[52:59], s[0:1], 64')
    a.e('s_load_dwordx4 s[60:63], s[0:1], 96')
    a.e('s_load_dwordx2 s[64:65], s[0:1], 112')
    a.e('v_and_b32 v1, 63, v0')
    a.e('v_lshrrev_b32 v2, 6, v0')
    a.e(f's_and_b32 s{S_XCD}, s2, 7')
    a.e(f'v_readfirstlane_b32 s{S_W}, v2')
    a.e(f's_lshr_b32 s{S_LOC}, s2, 3')
    a.e(f's_lshl_b32 s{S_B}, s{S_XCD}, 5')
    a.e(f's_add_u32 s{S_B}, s{S_B}, s{S_LOC}')
    a.e(f's_mul_i32 s{S_P}, s{S_XCD}, 28')
    a.e(f's_add_u32 s{S_P}, s{S_P}, s{S_LOC}')
    a.e(f's_and_b32 s{S_J}, s{S_XCD}, 1')
    a.e(f's_lshl_b32 s{S_J}, s{S_J}, 2')
    a.e(f's_and_b32 s3, s{S_LOC}, 3')
    a.e(f's_add_u32 s{S_J}, s{S_J}, s3')
    a.e(f's_lshr_b32 s3, s{S_XCD}, 1')
    a.e(f's_lshr_b32 s66, s{S_LOC}, 2')
    a.e(f's_mul_i32 s{S_I1}, s3, 7')
    a.e(f's_add_u32 s{S_I1}, s{S_I1}, s66')
    a.e(f's_lshl_b32 s{S_I2}, s3, 3')
    a.e(f's_add_u32 s{S_I2}, s{S_I2}, s66')
    a.e('s_waitcnt lgkmcnt(0)')
    srd(a, S_X, P_X, XBYTES)
    srd(a, S_WS, P_WS, WS_USED)
    stamp(a, 1)


def xrow_addr(a):
    a.e(f's_mul_i32 s66, s{S_W}, 224')
    a.e(f's_mul_i32 s67, s{S_B}, {8*896}')
    a.e('s_add_u32 s66, s66, s67')
    a.e('v_lshl_add_u32 v2, v1, 2, s66')
    mask_lanes(a, 2, 56, 3)
    a.e('v_add_u32 v3, 4480, v2')


def load_xrows(a):
    xrow_addr(a)
    for j in range(8):
        v, o = (2, j * 896) if j < 5 else (3, (j - 5) * 896)
        a.e(f'buffer_load_dword v{8+j}, v{v}, s[{S_X}:{S_X+3}], 0 offen offset:{o}')


def ln_stats(a, X, T, red, vt, mid=None):
    a.e('s_mov_b32 s66, 0x3f803f80')
    for j in range(8):
        a.e(f'v_dot2_f32_bf16 v{T+j}, v{X[j]}, s66, 0')
        a.e(f'v_dot2_f32_bf16 v{T+8+j}, v{X[j]}, v{X[j]}, 0')
    a.e(f'v_lshlrev_b32 v{vt}, 2, v1')
    a.e(f'v_and_b32 v{vt}, 0xf0, v{vt}')
    a.e(f's_lshl_b32 s66, s{S_W}, 2')
    a.e(f'v_add_u32 v{vt}, s66, v{vt}')
    reduce16(a, [T + i for i in range(16)])
    a.inj_pause()
    a.e('s_mov_b32 exec_lo, 0x11111111')
    a.e('s_mov_b32 exec_hi, 0x11111111')
    a.e(f'ds_write_b32 v{vt}, v{T} offset:{red}')
    a.e('s_mov_b64 exec, -1')
    a.inj_resume()
    a.e(f'v_and_b32 v{vt}, 7, v1')
    a.e(f'v_lshlrev_b32 v{vt}, 4, v{vt}')
    a.e('s_waitcnt lgkmcnt(0)')
    a.e('s_barrier')
    a.e(f'ds_read_b128 v[{T}:{T+3}], v{vt} offset:{red}')
    a.e(f'ds_read_b128 v[{T+4}:{T+7}], v{vt} offset:{red+128}')
    n_mid = mid() if mid else 0
    a.e(f's_waitcnt lgkmcnt({1 + n_mid})')
    a.e(f'v_pk_add_f32 v[{T}:{T+1}], v[{T}:{T+1}], v[{T+2}:{T+3}]')
    a.e(f's_waitcnt lgkmcnt({n_mid})')
    a.e(f'v_pk_add_f32 v[{T+4}:{T+5}], v[{T+4}:{T+5}], v[{T+6}:{T+7}]')
    a.e(f'v_add_f32 v{T}, v{T}, v{T+1}')
    a.e(f'v_add_f32 v{T+4}, v{T+4}, v{T+5}')
    a.e(f'v_mul_f32 v{T}, {fx(1.0/448)}, v{T}')
    a.e(f'v_mul_f32 v{T+4}, {fx(1.0/448)}, v{T+4}')
    a.e(f'v_fma_f32 v{T+4}, -v{T}, v{T}, v{T+4}')
    a.e(f'v_max_f32 v{T+4}, 0, v{T+4}')
    a.e(f'v_cvt_pk_bf16_f32 v{T+4}, v{T+4}, v{T+4}')
    a.e(f'v_lshlrev_b32 v{T+4}, 16, v{T+4}')
    a.e(f'v_add_f32 v{T+4}, {fx(1e-5)}, v{T+4}')
    a.e(f'v_cvt_pk_bf16_f32 v{T+4}, v{T+4}, v{T+4}')
    a.e(f'v_lshlrev_b32 v{T+4}, 16, v{T+4}')
    a.e(f'v_sqrt_f32 v{T+4}, v{T+4}')
    a.e(f'v_cvt_pk_bf16_f32 v{T}, v{T}, v{T+4}')


def poison_regs(a):
    for r in range(216, 220):
        a.e(f'v_mov_b32 v{r}, -1')


def clear_hh(a):
    if OPT['hoist']:
        a.e(f'buffer_store_dwordx4 v[216:219], v184, {WSR}, 0 offen sc1')
        a.e(f'buffer_store_dwordx4 v[216:219], v185, {WSR}, 0 offen sc1')
        return
    a.e(f's_mul_i32 s66, s{S_B}, 7168')
    a.e(f's_add_u32 s66, s66, {WS_HH}')
    a.e('v_lshl_add_u32 v4, v0, 4, s66')
    a.e('v_add_u32 v5, 4096, v4')
    mask_lanes(a, 5, 192, 6, 'v0')
    a.e(f'buffer_store_dwordx4 v[216:219], v4, {WSR}, 0 offen sc1')
    a.e(f'buffer_store_dwordx4 v[216:219], v5, {WSR}, 0 offen sc1')


def clear_aout(a):
    if OPT['hoist']:
        a.e(f'buffer_store_dwordx4 v[216:219], v186, {WSR}, 0 offen sc1')
        a.e(f'buffer_store_dwordx4 v[216:219], v187, {WSR}, 0 offen sc1')
        return
    a.e(f's_mul_i32 s66, s{S_P}, {AST}')
    a.e(f's_add_u32 s66, s66, {WS_AOUT}')
    a.e('v_lshl_add_u32 v4, v0, 4, s66')
    a.e('v_add_u32 v5, 4096, v4')
    a.e(f'buffer_store_dwordx4 v[216:219], v4, {WSR}, 0 offen sc1')
    a.e(f'buffer_store_dwordx4 v[216:219], v5, {WSR}, 0 offen sc1')


def g_store_addr(a, vd):
    a.e(f's_lshl_b32 s66, s{S_I1}, 3')
    a.e(f's_lshl_b32 s70, s{S_W}, 1')
    a.e('s_add_u32 s66, s66, s70')
    a.e('s_mul_i32 s66, s66, 7168')
    a.e(f's_mul_i32 s70, s{S_J}, 896')
    a.e('s_add_u32 s66, s66, s70')
    a.e(f's_add_u32 s66, s66, {WS_G}')
    a.e(f'v_lshl_add_u32 v{vd}, v1, 4, s66')
    mask_lanes(a, vd, 56, 6)


def clear_g(a):
    if OPT['hoist']:
        a.e('v_add_u32 v5, 7168, v240')
        a.e(f'buffer_store_dwordx4 v[216:219], v240, {WSR}, 0 offen sc1')
        a.e(f'buffer_store_dwordx4 v[216:219], v5, {WSR}, 0 offen sc1')
        return
    g_store_addr(a, 4)
    a.e('v_add_u32 v5, 7168, v4')
    a.e(f'buffer_store_dwordx4 v[216:219], v4, {WSR}, 0 offen sc1')
    a.e(f'buffer_store_dwordx4 v[216:219], v5, {WSR}, 0 offen sc1')


def publish_xn(a):
    bcast_stats(a, 16)
    for j in range(8):
        d = 64 + 2 * j
        t = 48 + j
        a.e(f'v_lshlrev_b32 v{d}, 16, v{8+j}')
        a.e(f'v_and_b32 v{d+1}, 0xffff0000, v{8+j}')
        a.e(f'v_pk_add_f32 v[{d}:{d+1}], v[{d}:{d+1}], s[{72+2*j}:{73+2*j}] op_sel:[0,0] op_sel_hi:[1,0] neg_lo:[0,1] neg_hi:[0,1]')
        a.e(f'v_cvt_pk_bf16_f32 v{t}, v{d}, v{d+1}')
        a.e(f'v_lshlrev_b32 v{d}, 16, v{t}')
        a.e(f'v_and_b32 v{d+1}, 0xffff0000, v{t}')
        a.e(f'v_pk_mul_f32 v[{d}:{d+1}], v[{d}:{d+1}], s[{72+2*j}:{73+2*j}] op_sel:[0,1] op_sel_hi:[1,1]')
        a.e(f'v_cvt_pk_bf16_f32 v{t}, v{d}, v{d+1}')
        a.e(f'v_lshlrev_b32 v{d}, 16, v{t}')
        a.e(f'v_and_b32 v{d+1}, 0xffff0000, v{t}')
    for i in range(4):
        a.e(f'v_cvt_pk_f16_f32 v{80+i}, v{64+4*i}, v{66+4*i}')
        a.e(f'v_cvt_pk_f16_f32 v{84+i}, v{65+4*i}, v{67+4*i}')
    if OPT['hoist']:
        assert OPT['xnb']
        a.e(f'buffer_store_dwordx4 v[80:83], v188, {WSR}, 0 offen sc1')
        a.e(f'buffer_store_dwordx4 v[84:87], v189, {WSR}, 0 offen sc1')
        return
    if OPT['xnb']:
        a.e(f's_mul_i32 s66, s{S_W}, {56*16}')
        a.e(f's_mul_i32 s67, s{S_B}, 7168')
        a.e('s_add_u32 s66, s66, s67')
        a.e(f's_add_u32 s66, s66, {WS_XN}')
        a.e('v_lshl_add_u32 v4, v1, 4, s66')
        mask_lanes(a, 4, 56, 5)
        a.e('v_add_u32 v5, 3584, v4')
    else:
        a.e(f's_mul_i32 s66, s{S_W}, {56*XPS}')
        a.e(f's_lshl_b32 s67, s{S_B}, 4')
        a.e('s_add_u32 s66, s66, s67')
        a.e(f's_add_u32 s66, s66, {WS_XN}')
        a.e(f'v_mul_u32_u24 v4, {XPS}, v1')
        a.e('v_add_u32 v4, s66, v4')
        mask_lanes(a, 4, 56, 5)
        a.e(f'v_add_u32 v5, {XCS}, v4')
    a.e(f'buffer_store_dwordx4 v[80:83], v4, {WSR}, 0 offen sc1')
    a.e(f'buffer_store_dwordx4 v[84:87], v5, {WSR}, 0 offen sc1')


def publish_flag(a, vm=0):
    a.e(f's_waitcnt vmcnt({vm})')
    a.e('s_barrier')
    l = a.lab('noflag')
    a.e(f's_cmp_lg_u32 s{S_W}, 0')
    a.e(f's_cbranch_scc1 {l}')
    a.e(f's_lshl_b32 s66, s{S_B}, 6')
    a.e(f's_add_u32 s66, s66, {WS_FLAG}')
    a.e('v_mov_b32 v2, s66')
    a.e(f'v_mov_b32 v3, s{S_TAG}')
    a.e('s_mov_b64 exec, 1')
    a.e(f'buffer_store_dword v3, v2, {WSR}, 0 offen sc1')
    a.e('s_mov_b64 exec, -1')
    a.e(f'{l}:')


V_FA, V_FV = 233, 234


def flag_addr(a):
    a.e(f'v_lshlrev_b32 v{V_FA}, 6, v0')
    a.e(f'v_add_u32 v{V_FA}, {WS_FLAG}, v{V_FA}')


def flag_load(a):
    a.e(f'buffer_load_dword v{V_FV}, v{V_FA}, {WSR}, 0 offen sc1')


def flag_poll(a):
    lp, ld = a.lab('fpoll'), a.lab('fdone')
    a.e(f's_mov_b32 s{S_SPIN}, 0')
    a.e(f'{lp}:')
    flag_load(a)
    a.e('s_waitcnt vmcnt(0)')
    a.e(f'v_cmp_ne_u32 vcc, s{S_TAG}, v{V_FV}')
    a.e(f's_cbranch_vccz {ld}')
    spin_tail(a, lp)
    a.e(f'{ld}:')


def load_u(a):
    if OPT['hoist']:
        a.e(f'buffer_load_dwordx4 v[176:179], v190, {WSR}, 0 offen sc1')
        a.e(f'buffer_load_dwordx4 v[180:183], v191, {WSR}, 0 offen sc1')
        return
    if OPT['xnb']:
        a.e(f's_lshl_b32 s66, s{S_P}, 4')
        a.e(f's_add_u32 s66, s66, {WS_XN}')
        a.e('v_mul_u32_u24 v2, 7168, v0')
        a.e('v_add_u32 v2, s66, v2')
        a.e('v_add_u32 v3, 3584, v2')
    else:
        a.e(f's_mul_i32 s66, s{S_P}, {XPS}')
        a.e(f's_add_u32 s66, s66, {WS_XN}')
        a.e('v_lshl_add_u32 v2, v0, 4, s66')
        a.e(f'v_add_u32 v3, {XCS}, v2')
    a.e(f'buffer_load_dwordx4 v[176:179], v2, {WSR}, 0 offen sc1')
    a.e(f'buffer_load_dwordx4 v[180:183], v3, {WSR}, 0 offen sc1')


def epoch_update(a):
    le = a.lab('noep')
    a.e('s_cmp_lg_u32 s2, 0')
    a.e(f's_cbranch_scc1 {le}')
    a.e(f'v_mov_b32 v2, {WS_EPOCH}')
    a.e(f'v_mov_b32 v3, s{S_TAG}')
    a.e('s_mov_b64 exec, 1')
    a.e(f'buffer_store_dword v3, v2, {WSR}, 0 offen sc1')
    a.e('s_mov_b64 exec, -1')
    a.e(f'{le}:')


def code_prefetch(a, lstart, lend_):
    lp = a.lab('pcp')
    a.e('s_getpc_b64 s[74:75]')
    a.e(f'{lp}:')
    a.e(f's_sub_u32 s74, s74, {lp}-{lstart}')
    a.e('s_subb_u32 s75, s75, 0')
    a.e('v_lshlrev_b32 v4, 6, v0')
    a.e(f's_mov_b32 s76, {lend_}-{lstart}-4')
    a.e('v_add_u32 v5, 16384, v4')
    a.e('v_add_u32 v6, 32768, v4')
    a.e('v_min_u32 v4, s76, v4')
    a.e('v_min_u32 v5, s76, v5')
    a.e('v_min_u32 v6, s76, v6')
    a.e('global_load_dword v220, v4, s[74:75]')
    a.e('global_load_dword v220, v5, s[74:75]')
    a.e('global_load_dword v220, v6, s[74:75]')


def code_prefetch1(a, lstart, lend_):
    lp = a.lab('pcp')
    a.e('s_getpc_b64 s[74:75]')
    a.e(f'{lp}:')
    a.e('v_lshlrev_b32 v4, 6, v0')
    a.e(f's_mov_b32 s76, {lend_}-{lp}-4')
    a.e('v_min_u32 v4, s76, v4')
    a.e('global_load_dword v220, v4, s[74:75]')


def tlb_touch(a):
    g = OPT['tlbg']
    n = 0
    srd(a, S_T2, P_OUT, XBYTES)
    srd(a, S_T3, P_B2, L * 2)
    if g == 21:
        a.e('v_lshlrev_b32 v4, 21, v1')
        a.e('s_mov_b32 s70, 0x1f8000')
        for s_ in (S_W1, S_W2, S_WS, S_T2, S_T3) if OPT['tlbout'] else (S_W1, S_W2, S_WS, S_T3):
            a.e(f'buffer_load_dword v220, v4, s[{s_}:{s_+3}], {"s70" if s_ == S_WS else 0} offen')
            n += 1
    else:
        a.e(f'v_lshlrev_b32 v4, {g}, v0')
        for s_, nbytes in ((S_W1, W1BYTES), (S_W2, W2BYTES), (S_WS, 0xC00000), (S_T2, XBYTES), (S_T3, 4096)):
            for k in range(-(-nbytes // (256 << g))):
                a.e(f's_mov_b32 s70, {k * (256 << g)}')
                a.e(f'buffer_load_dword v220, v4, s[{s_}:{s_+3}], s70 offen')
                n += 1
    return n


def hoist_common(a):
    a.e(f's_mul_i32 s66, s{S_B}, 7168')
    a.e(f's_add_u32 s66, s66, {WS_HH}')
    a.e('v_lshl_add_u32 v184, v0, 4, s66')
    a.e('v_add_u32 v185, 4096, v184')
    mask_lanes(a, 185, 192, 6, 'v0')
    a.e(f's_mul_i32 s66, s{S_W}, {56*16}')
    a.e(f's_mul_i32 s67, s{S_B}, 7168')
    a.e('s_add_u32 s66, s66, s67')
    a.e(f's_add_u32 s66, s66, {WS_XN}')
    a.e('v_lshl_add_u32 v188, v1, 4, s66')
    mask_lanes(a, 188, 56, 5)
    a.e('v_add_u32 v189, 3584, v188')
    a.e('v_and_b32 v4, 15, v1')
    a.e(f'v_mul_u32_u24 v4, {PROW}, v4')
    a.e('v_lshrrev_b32 v5, 4, v1')
    a.e('v_lshl_add_u32 v4, v5, 4, v4')
    a.e(f's_mul_i32 s66, s{S_W}, {PARTW}')
    a.e(f's_add_u32 s66, s66, {L_PART}')
    a.e('v_add_u32 v241, s66, v4')
    a.e(f'v_mul_u32_u24 v5, {PROW}, v1')
    a.e(f's_lshl_b32 s66, s{S_W}, 6')
    a.e(f's_add_u32 s66, s66, {L_PART}')
    a.e('v_add_u32 v242, s66, v5')
    a.e('v_lshrrev_b32 v5, 3, v1')
    a.e('v_and_b32 v4, 7, v1')
    a.e(f's_lshl_b32 s66, s{S_W}, 4')
    a.e('v_add_u32 v5, s66, v5')
    a.e(f'v_mul_u32_u24 v6, {PROW}, v5')
    a.e('v_lshl_add_u32 v6, v4, 4, v6')
    a.e(f'v_add_u32 v243, {L_PART}, v6')
    g_store_addr(a, 240)
    a.e(f's_mul_i32 s67, s{S_B}, 7168')
    a.e(f's_mul_i32 s66, s{S_W}, 1792')
    a.e('s_add_u32 s66, s66, s67')
    a.e(f's_add_u32 s66, s66, {WS_HH}')
    a.e('v_lshl_add_u32 v213, v1, 4, s66')
    a.e('v_add_u32 v5, 448, v213')
    a.e('v_cmp_gt_u32 vcc, 28, v1')
    a.e('v_cndmask_b32 v213, v5, v213, vcc')
    mask_lanes(a, 213, 56, 5)


def hoist_conv(a):
    a.e(f's_mul_i32 s66, s{S_P}, {AST}')
    a.e(f's_add_u32 s66, s66, {WS_AOUT}')
    a.e('v_lshl_add_u32 v186, v0, 4, s66')
    a.e('v_add_u32 v187, 4096, v186')
    a.e(f's_lshl_b32 s66, s{S_P}, 4')
    a.e(f's_add_u32 s66, s66, {WS_XN}')
    a.e('v_mul_u32_u24 v190, 7168, v0')
    a.e('v_add_u32 v190, s66, v190')
    a.e('v_add_u32 v191, 3584, v190')
    conv_addr(a, 192, 193)
    CP, TS = L_CP, 1280
    a.e('v_and_b32 v3, 15, v1')
    a.e('v_lshlrev_b32 v2, 4, v3')
    a.e('v_lshrrev_b32 v3, 4, v1')
    a.e('v_mul_u32_u24 v3, 320, v3')
    a.e('v_add_u32 v2, v2, v3')
    a.e(f's_mul_i32 s70, s{S_W}, {8*TS}')
    a.e(f's_add_u32 s70, s70, {CP}')
    a.e('v_add_u32 v194, s70, v2')
    a.e('v_lshrrev_b32 v3, 2, v1')
    a.e('v_lshlrev_b32 v2, 4, v3')
    a.e('v_and_b32 v3, 3, v1')
    a.e('v_mul_u32_u24 v3, 320, v3')
    a.e('v_add_u32 v2, v2, v3')
    a.e(f's_lshl_b32 s70, s{S_W}, 1')
    a.e(f's_mul_i32 s71, s70, {TS}')
    a.e(f's_add_u32 s71, s71, {CP}')
    a.e('v_add_u32 v195, s71, v2')
    a.e('s_lshl_b32 s71, s70, 9')
    a.e(f's_add_u32 s71, s71, {L_U + 512}')
    a.e('v_lshl_add_u32 v206, v1, 3, s71')
    a.e(f's_mul_i32 s71, s{S_P}, {AST}')
    a.e('s_lshl_b32 s72, s70, 10')
    a.e('s_add_u32 s71, s71, s72')
    a.e(f's_add_u32 s71, s71, {WS_AOUT}')
    a.e('v_lshl_add_u32 v207, v1, 4, s71')


def kgen_loads(a, part=None):
    R = (S_T0, S_T1, S_T2, S_T3) if part is None else (72, 76, 80, 84)
    if part != 'issue':
        for r, p in zip(R, (P_LAR, P_AI, P_CR, P_CI)):
            srd(a, r, p, PBYTES)
        a.e(f's_lshl_b32 s66, s{S_P}, 10')
        a.e(f's_lshl_b32 s67, s{S_W}, 7')
        a.e('s_add_u32 s66, s66, s67')
        a.e('v_lshl_add_u32 v235, v1, 1, s66')
        a.e(f's_lshl_b32 s66, s{S_P}, 2')
        a.e(f's_load_dword s68, s[{P_LDT}:{P_LDT+1}], s66')
        a.e(f's_load_dword s69, s[{P_DSK}:{P_DSK+1}], s66')
    if part != 'setup':
        for c in range(2):
            for k, s in enumerate(R):
                a.e(f'buffer_load_ushort v{40+4*c+k}, v235, s[{s}:{s+3}], 0 offen offset:{512*c}')


def load_gather_table(a, tablabel):
    lp = a.lab('pc')
    a.e('s_getpc_b64 s[70:71]')
    a.e(f'{lp}:')
    a.e(f's_add_u32 s70, s70, {tablabel}-{lp}')
    a.e('s_addc_u32 s71, s71, 0')
    a.e('v_lshlrev_b32 v2, 5, v0')
    a.e('global_load_dwordx4 v[160:163], v2, s[70:71]')
    a.e('global_load_dwordx4 v[164:167], v2, s[70:71] offset:16')


DK0, DK1 = 16, 28


def kgen_channel(a, c, DACC, mid=None, mid_m0=True, after_setup=None, defer=False):
    LAR, AI, CR, CI = 40 + 4 * c, 41 + 4 * c, 42 + 4 * c, 43 + 4 * c
    SIG, DT = 52 + c, 54 + c
    AL, BE = 56, 57
    Z1, Z2, Z4, Z8, Z128, Z256, Z512, Z1024 = 58, 60, 62, 64, 66, 68, 70, 72
    X0, CA, CB, CC, T0, T1 = 74, 76, 78, 80, 82, 84
    CV = [86, 87, 88, 89]
    VW, VR = 90, 91
    t, t2 = 92, 93
    for r in (LAR, AI, CR, CI):
        a.e(f'v_lshlrev_b32 v{r}, 16, v{r}')
    a.e('s_lshl_b32 s66, s68, 16' if c == 0 else 's_and_b32 s66, s68, 0xffff0000')
    a.e(f'v_mov_b32 v{t2}, s66')
    exp_bf16(a, DT, t2, t)
    a.e(f'v_add_f32 v{SIG}, abs(v{CR}), abs(v{CI})')
    exp_bf16(a, AL, LAR, t)
    a.e(f'v_add_f32_dpp v{SIG}, v{SIG}, v{SIG} quad_perm:[1,0,3,2] row_mask:0xf bank_mask:0xf')
    a.e(f'v_mul_f32 v{AL}, v{AL}, v{DT}')
    a.e(f'v_mul_f32 v{BE}, v{AI}, v{DT}')
    a.e(f'v_add_f32_dpp v{SIG}, v{SIG}, v{SIG} quad_perm:[2,3,0,1] row_mask:0xf bank_mask:0xf')
    a.e(f'v_mul_f32 v{AL}, {fx(-1.4426950408889634)}, v{AL}')
    a.e(f'v_mul_f32 v{BE}, {fx(0.15915494309189535)}, v{BE}')
    a.e(f'v_add_f32_dpp v{SIG}, v{SIG}, v{SIG} row_half_mirror row_mask:0xf bank_mask:0xf')
    a.e(f'v_exp_f32 v{T0}, v{AL}')
    a.e(f'v_fract_f32 v{t}, v{BE}')
    a.e(f'v_add_f32_dpp v{SIG}, v{SIG}, v{SIG} row_ror:8 row_mask:0xf bank_mask:0xf')
    a.e(f'v_cos_f32 v{Z1}, v{t}')
    a.e(f'v_sin_f32 v{Z1+1}, v{t}')
    a.e(f'v_mov_b32 v{t2}, v{SIG}')
    a.e(f'v_mul_f32 v{T1}, 0x43000000, v{AL}')
    a.e(f'v_mul_f32 v{t}, 0x43000000, v{BE}')
    a.e(f'v_permlane16_swap_b32 v{SIG}, v{t2}')
    a.e(f'v_pk_mul_f32 v[{Z1}:{Z1+1}], v[{Z1}:{Z1+1}], v[{T0}:{T0+1}] op_sel:[0,0] op_sel_hi:[1,0]')
    a.e(f'v_add_f32 v{SIG}, v{SIG}, v{t2}')
    a.e(f'v_exp_f32 v{T1}, v{T1}')
    a.e(f'v_fract_f32 v{t}, v{t}')
    a.e(f'v_mov_b32 v{t2}, v{SIG}')
    a.e(f'v_cos_f32 v{Z128}, v{t}')
    a.e(f'v_sin_f32 v{Z128+1}, v{t}')
    a.e(f'v_permlane32_swap_b32 v{SIG}, v{t2}')
    cmul(a, Z2, Z1, Z1, Z2)
    a.e(f'v_add_f32 v{SIG}, v{SIG}, v{t2}')
    a.e(f'v_pk_mul_f32 v[{Z128}:{Z128+1}], v[{Z128}:{Z128+1}], v[{T1}:{T1+1}] op_sel:[0,0] op_sel_hi:[1,0]')
    a.e(f'v_add_f32 v{SIG}, {fx(1e-30)}, v{SIG}')
    cmul(a, Z4, Z2, Z2, Z4)
    a.e(f'v_rcp_f32 v{t}, v{SIG}')
    cmul(a, Z256, Z128, Z128, Z256)
    cmul(a, Z8, Z4, Z4, Z8)
    a.e(f'v_mul_f32 v{X0}, v{CR}, v{t}')
    a.e(f'v_mul_f32 v{X0+1}, v{CI}, v{t}')
    cmul(a, Z512, Z256, Z256, Z512)
    a.e(f's_mul_i32 s66, s{S_W}, {SCRW}')
    a.e(f's_add_u32 s66, s66, {L_SCR}')
    a.e('s_mov_b32 m0, s66')
    cmul(a, Z1024, Z512, Z512, Z1024)
    a.e(f'v_and_b32 v{t}, 15, v1')
    a.e(f'v_mul_u32_u24 v{t}, {SROW}, v{t}')
    a.e(f'v_lshrrev_b32 v{t2}, 4, v1')
    a.e(f'v_lshl_add_u32 v{t}, v{t2}, 4, v{t}')
    a.e(f'v_add_u32 v{VR}, s66, v{t}')
    cvi = [0]
    pend = []

    def flush(keep):
        while len(pend) > keep:
            cv, off = pend.pop(0)
            a.e(f'ds_write_addtid_b32 v{cv} offset:{off}')

    G = OPT['kgrp']
    if G > 1:
        CV = list(range(96, 112))
        if OPT['kdefer']:
            CV = list(range(168, 176))
    if after_setup is not None:
        after_setup()

    def put(off, r, neg):
        cv = CV[cvi[0] % len(CV)]
        cvi[0] += 1
        a.e(f'v_cvt_pk_f16_f32 v{cv}, v{r}, {"-" if neg else ""}v{r+1}')
        if G > 1:
            pend.append((cv, off))
            if len(pend) >= G + 1:
                flush(1)
        else:
            flush(1)
            pend.append((cv, off))

    def putX(row, r):
        put(row * SROW, r, True)

    def putY(b, r):
        put((YROW + b) * SROW, r, False)

    a.e(f'v_mov_b32 v{VW}, 0x00003c00')
    pend.append((VW, YROW * SROW))
    putY(1, Z8)
    ychain = {'cur': Z8, 'b': 1}
    YA, YB = CC, 94

    def ystep():
        if ychain['b'] >= 15:
            return
        d = YA if ychain['cur'] != YA else YB
        cmul(a, d, ychain['cur'], Z8, d)
        ychain['b'] += 1
        ychain['cur'] = d
        putY(ychain['b'], d)

    putX(0, X0)
    cmul(a, T0, X0, Z128, T0)
    putX(8, T0)
    cur = X0
    for j in range(1, 8):
        d = CA if cur != CA else CB
        cmul(a, d, cur, Z1, d)
        ystep()
        putX(j, d)
        cmul(a, T0, d, Z128, T0)
        putX(8 + j, T0)
        cur = d
    cmul(a, CA, X0, Z256, CA)
    ystep()
    putX(16, CA)
    cmul(a, T0, CA, Z128, T0)
    putX(20, T0)
    cur = CA
    for j in range(1, 4):
        d = CA if cur != CA else CB
        cmul(a, d, cur, Z2, d)
        ystep()
        putX(16 + j, d)
        cmul(a, T0, d, Z128, T0)
        putX(20 + j, T0)
        cur = d
    if mid is not None:
        if mid_m0:
            flush(0)
        mid()
        if mid_m0:
            a.e(f's_mul_i32 s66, s{S_W}, {SCRW}')
            a.e(f's_add_u32 s66, s66, {L_SCR}')
            a.e('s_mov_b32 m0, s66')
    cmul(a, CA, X0, Z512, CA)
    ystep()
    putX(24, CA)
    cmul(a, CB, CA, Z4, CB)
    ystep()
    putX(25, CB)
    pa, pb = CA, CB
    na, nb = T0, T1
    for q in range(1, 4):
        cmul(a, na, pa, Z128, na)
        cmul(a, nb, pb, Z128, nb)
        ystep()
        putX(24 + 2 * q, na)
        putX(25 + 2 * q, nb)
        pa, pb, na, nb = na, nb, pa, pb
    cmul(a, CA, X0, Z1024, CA)
    putX(32, CA)
    cur = CA
    for q in range(1, 9):
        d = CA if cur != CA else CB
        cmul(a, d, cur, Z128, d)
        putX(32 + q, d)
        cur = d
    while ychain['b'] < 15:
        ystep()
    flush(0)
    FA = 96
    for k in range(4):
        a.e(f'ds_read_b128 v[{144+4*k}:{147+4*k}], v{VR} offset:{YROW*SROW+64*k}')
        for T in range(3):
            r = FA + 16 * T + 4 * k
            a.e(f'ds_read_b128 v[{r}:{r+3}], v{VR} offset:{16*T*SROW+64*k}')
    def mfmas(waits=True):
        for k in range(4):
            if waits:
                a.e(f's_waitcnt lgkmcnt({4*(3-k)})')
            elif k == 0:
                a.e('s_waitcnt lgkmcnt(0)')
            for T in range(3):
                r = FA + 16 * T + 4 * k
                cc = '0' if k == 0 else f'v[{DACC+4*T}:{DACC+4*T+3}]'
                a.e(f'v_mfma_f32_16x16x32_f16 v[{DACC+4*T}:{DACC+4*T+3}], v[{r}:{r+3}], v[{144+4*k}:{147+4*k}], {cc}')

    if defer:
        return lambda: mfmas(waits=False)
    mfmas()


def ktab_part1(a):
    a.e(f's_mul_i32 s66, s{S_W}, {SCRW}')
    a.e(f's_add_u32 s66, s66, {L_SCR}')
    a.e('v_lshl_add_u32 v90, v1, 4, s66')
    a.e(f's_lshl_b32 s67, s{S_W}, 2')
    a.e(f's_add_u32 s67, s67, {L_SIG}')
    a.e('v_mov_b32 v91, s67')
    a.e('s_mov_b64 exec, 1')
    a.e('ds_write_b32 v91, v52')
    a.e('ds_write_b32 v91, v53 offset:16')
    a.e('s_mov_b64 exec, -1')
    for c, DK in ((0, DK0), (1, DK1)):
        for T in range(3):
            for h in range(2):
                i = DK + 4 * T + 2 * h
                a.e(f'v_pk_mul_f32 v[{i}:{i+1}], v[{i}:{i+1}], v[52:53] op_sel:[0,{c}] op_sel_hi:[1,{c}]')
            a.e(f'ds_write_b128 v90, v[{DK+4*T}:{DK+4*T+3}] offset:{c*3072+T*1024}')
    a.e('v_mov_b32 v96, 0')
    a.e('v_mov_b32 v97, 0')
    a.e('v_mov_b32 v98, 0')
    a.e('v_mov_b32 v99, 0')
    a.e(f'v_mov_b32 v92, {L_KT + 1536}')
    a.e('ds_write_b32 v92, v96')
    a.e(f'ds_write_b32 v92, v96 offset:{KTCH}')
    a.e('v_lshlrev_b32 v92, 3, v1')
    a.e(f'ds_write_b64 v92, v[96:97] offset:{L_U}')
    a.e(f'ds_write_b64 v92, v[96:97] offset:{L_U + UCH}')
    a.e('s_waitcnt lgkmcnt(0)')
    a.e('s_barrier')


def ktab_part2(a, mid=None):
    a.e(f'v_mov_b32 v91, {L_SIG}')
    a.e('ds_read_b128 v[44:47], v91')
    a.e('ds_read_b128 v[48:51], v91 offset:16')
    a.e(f's_and_b32 s67, s{S_W}, 1')
    a.e(f's_lshr_b32 s70, s{S_W}, 1')
    a.e('s_mul_i32 s71, s67, 3072')
    a.e('s_lshl_b32 s72, s70, 10')
    a.e('s_add_u32 s72, s72, s71')
    a.e(f's_add_u32 s72, s72, {L_SCR}')
    a.e(f's_add_u32 s71, s71, {L_SCR + 2048}')
    a.e('v_lshl_add_u32 v90, v1, 4, s72')
    a.e('v_lshl_add_u32 v91, v1, 4, s71')
    for wv in range(4):
        a.e(f'ds_read_b128 v[{96+4*wv}:{99+4*wv}], v90 offset:{wv*SCRW}')
    for wv in range(4):
        a.e(f'ds_read_b128 v[{112+4*wv}:{115+4*wv}], v91 offset:{wv*SCRW}')
    a.e('v_mov_b32 v128, 0')
    a.e('v_mov_b32 v129, 0')
    a.e('v_mov_b32 v130, 0')
    a.e('v_mov_b32 v131, 0')
    if OPT['c4']:
        a.e('v_and_b32 v132, 7, v1')
        a.e(f'v_mul_u32_u24 v132, {KCOPY}, v132')
        a.e('v_bfe_u32 v133, v1, 3, 1')
        a.e('v_lshl_add_u32 v132, v133, 4, v132')
    else:
        a.e('v_and_b32 v132, 15, v1')
        a.e(f'v_mul_u32_u24 v132, {KCOPY}, v132')
    a.e(f'v_add_u32 v132, {L_KC}, v132')
    a.e('ds_write_b128 v132, v[128:131] offset:4096')
    a.e('v_lshrrev_b32 v92, 4, v1')
    a.e('v_lshlrev_b32 v92, 7, v92')
    a.e('v_and_b32 v93, 15, v1')
    a.e('v_lshl_add_u32 v92, v93, 1, v92')
    a.e(f's_mul_i32 s71, s67, {KTCH}')
    a.e(f's_add_u32 s71, s71, {L_KT}')
    a.e('v_add_u32 v93, s71, v92')
    a.e('s_lshl_b32 s72, s70, 9')
    a.e('v_add_u32 v92, s72, v93')
    if mid is not None:
        mid()
    a.e('s_waitcnt lgkmcnt(9)')
    a.e('v_pk_add_f32 v[44:45], v[44:45], v[46:47]')
    a.e('v_pk_add_f32 v[48:49], v[48:49], v[50:51]')
    a.e('v_add_f32 v44, v44, v45')
    a.e('v_add_f32 v45, v48, v49')
    a.e('s_cmp_eq_u32 s67, 0')
    a.e('s_cselect_b64 vcc, -1, 0')
    a.e('v_pk_mul_f32 v[54:55], v[54:55], v[44:45]')
    a.e('v_cndmask_b32 v46, v45, v44, vcc')
    a.e('v_pk_add_f32 v[54:55], v[54:55], v[54:55]')
    a.e('v_rcp_f32 v46, v46')
    for jb, (base, va, off) in enumerate(((96, 92, 0), (112, 93, 1024))):
        a.e(f's_waitcnt lgkmcnt({5 if jb == 0 else 5})')
        for h in range(2):
            a.e(f'v_pk_add_f32 v[{base+2*h}:{base+2*h+1}], v[{base+2*h}:{base+2*h+1}], v[{base+4+2*h}:{base+5+2*h}]')
            a.e(f'v_pk_add_f32 v[{base+8+2*h}:{base+9+2*h}], v[{base+8+2*h}:{base+9+2*h}], v[{base+12+2*h}:{base+13+2*h}]')
        for h in range(2):
            a.e(f'v_pk_add_f32 v[{base+2*h}:{base+2*h+1}], v[{base+2*h}:{base+2*h+1}], v[{base+8+2*h}:{base+9+2*h}]')
        for h in range(2):
            a.e(f'v_pk_mul_f32 v[{base+2*h}:{base+2*h+1}], v[{base+2*h}:{base+2*h+1}], v[46:47] op_sel:[0,0] op_sel_hi:[1,0]')
        a.e(f'v_cvt_pk_f16_f32 v{base+4}, v{base}, v{base+1}')
        a.e(f'v_cvt_pk_f16_f32 v{base+5}, v{base+2}, v{base+3}')
        a.e(f'ds_write_b16 v{va}, v{base+4} offset:{off}')
        a.e(f'ds_write_b16_d16_hi v{va}, v{base+4} offset:{off+32}')
        a.e(f'ds_write_b16 v{va}, v{base+5} offset:{off+64}')
        a.e(f'ds_write_b16_d16_hi v{va}, v{base+5} offset:{off+96}')
    for e in range(11 if OPT['c4'] else 15):
        src = 160 + e // 2
        if e % 2 == 0:
            a.e(f'v_and_b32 v{136+e}, 0xffff, v{src}')
        else:
            a.e(f'v_lshrrev_b32 v{136+e}, 16, v{src}')
    a.e('s_waitcnt lgkmcnt(0)')
    a.e('s_barrier')


def kch():
    return (4 if OPT['c4'] else 8) * KCOPY


def kcopies(a):
    AD = 136
    a.e('v_lshlrev_b32 v111, 4, v0')
    a.e(f'v_add_u32 v111, {L_KC}, v111')
    RR = [96, 112]
    if OPT['c4']:
        for c in range(2):
            for e in range(11):
                a.e(f'ds_read_u16 v{RR[c]+e}, v{AD+e} offset:{L_KT + c*KTCH}')
        for c in range(2):
            R = RR[c]
            Da, Db, Oa, Ob = (56, 60, 64, 68) if c == 0 else (16, 20, 24, 28)
            a.e(f's_waitcnt lgkmcnt({11 if c == 0 else 4})')
            for i in range(4):
                a.e(f'v_lshl_or_b32 v{Da+i}, v{R+2*i+1}, 16, v{R+2*i}')
                a.e(f'v_lshl_or_b32 v{Oa+i}, v{R+2*i+2}, 16, v{R+2*i+1}')
                a.e(f'v_lshl_or_b32 v{Db+i}, v{R+2*i+3}, 16, v{R+2*i+2}')
                a.e(f'v_lshl_or_b32 v{Ob+i}, v{R+2*i+4}, 16, v{R+2*i+3}')
            for s_, r in ((0, Da), (1, Oa), (2, Db), (3, Ob)):
                a.e(f'ds_write_b128 v111, v[{r}:{r+3}] offset:{c*kch() + s_*KCOPY}')
        return
    for c in range(2):
        for e in range(15):
            a.e(f'ds_read_u16 v{RR[c]+e}, v{AD+e} offset:{L_KT + c*KTCH}')
    for c in range(2):
        R = RR[c]
        Da, Db, Oa, Ob = 56 + 0, 64, 72, 80
        if c == 1:
            Da, Db, Oa, Ob = 16, 24, 32, 40
        a.e(f's_waitcnt lgkmcnt({15 if c == 0 else 8})')
        for i in range(6):
            a.e(f'v_lshl_or_b32 v{Da+i}, v{R+2*i+1}, 16, v{R+2*i}')
            a.e(f'v_lshl_or_b32 v{Oa+i}, v{R+2*i+2}, 16, v{R+2*i+1}')
        if c == 1:
            a.e(f'v_add_u32 v110, {KCH}, v111')
        va = 111 if c == 0 else 110
        for s, r in ((0, Da), (1, Oa), (4, Da + 2), (5, Oa + 2)):
            a.e(f'ds_write_b128 v{va}, v[{r}:{r+3}] offset:{s*KCOPY}')
        for i in range(6):
            a.e(f'v_lshl_or_b32 v{Db+i}, v{R+2*i+3}, 16, v{R+2*i+2}')
            a.e(f'v_lshl_or_b32 v{Ob+i}, v{R+2*i+4}, 16, v{R+2*i+3}')
        for s, r in ((2, Db), (3, Ob), (6, Db + 2), (7, Ob + 2)):
            a.e(f'ds_write_b128 v{va}, v[{r}:{r+3}] offset:{s*KCOPY}')


def store_u(a, vm):
    a.e('v_lshlrev_b32 v2, 4, v0')
    a.e(f's_waitcnt vmcnt({vm})')
    a.e(f'ds_write_b128 v2, v[176:179] offset:{L_U + 512}')
    a.e(f'ds_write_b128 v2, v[180:183] offset:{L_U + UCH + 512}')
    a.e('s_waitcnt lgkmcnt(0)')
    a.e('s_barrier')


def phase_conv(a, hooks, pre_vm):
    hooks = list(hooks)
    ACC = 16
    FA = [[64 + 64 * s + 4 * i for i in range(8)] for s in range(2)]
    FB = [[96 + 64 * s + 4 * i for i in range(8)] for s in range(2)]
    VA, VB = (192, 193) if OPT['hoist'] else (48, 49)

    def loads(qq, s):
        out = []
        for i in range(8):
            out.append(f'ds_read_b128 v[{FB[s][i]}:{FB[s][i]+3}], v{VB} offset:{512*i + 64*(3-qq)}')
            if OPT['c4']:
                o = 512 * (7 - i) + 64 * (3 - qq)
                out.append(f'ds_read_b64 v[{FA[s][i]}:{FA[s][i]+1}], v{VA} offset:{o}')
                out.append(f'ds_read_b64 v[{FA[s][i]+2}:{FA[s][i]+3}], v{VA} offset:{o + 8}')
            else:
                out.append(f'ds_read_b128 v[{FA[s][i]}:{FA[s][i]+3}], v{VA} offset:{512*(7-i) + 64*(3-qq)}')
        return out

    for x in loads(0, 0):
        a.e(x)
    for qq in range(4):
        s = qq & 1
        nxt = loads(qq + 1, 1 - s) if qq < 3 else []
        n = 0
        for w in range(8):
            for c in range(w, 8):
                if n == 0:
                    a.e('s_waitcnt lgkmcnt(0)')
                    if qq == 3 and OPT['cvbar']:
                        a.e('s_barrier')
                cc = '0' if (qq == 0 and w == 0) else f'v[{ACC+4*c}:{ACC+4*c+3}]'
                a.e(f'v_mfma_f32_16x16x32_f16 v[{ACC+4*c}:{ACC+4*c+3}], v[{FA[s][w]}:{FA[s][w]+3}], v[{FB[s][c-w]}:{FB[s][c-w]+3}], {cc}')
                if nxt and (n % 2 == 1 or (OPT['c4'] and n % 4 == 0)):
                    a.e(nxt.pop(0))
                if hooks and n % 4 == 2:
                    hooks.pop(0)()
                n += 1
        assert not nxt
    assert not hooks
    stamp(a, 11)
    CP, TS = L_CP, 1280
    if OPT['hoist']:
        if not OPT['cvbar']:
            a.e('s_barrier')
        for c in range(8):
            a.e(f'ds_write_b128 v194, v[{ACC+4*c}:{ACC+4*c+3}] offset:{c*TS}')
        VRD, VU, VG = 195, 206, 207
    else:
        a.e('v_and_b32 v2, 15, v1')
        a.e('v_lshlrev_b32 v2, 4, v2')
        a.e('v_lshrrev_b32 v3, 4, v1')
        a.e('v_mul_u32_u24 v3, 320, v3')
        a.e('v_add_u32 v2, v2, v3')
        a.e(f's_mul_i32 s70, s{S_W}, {8*TS}')
        a.e(f's_add_u32 s70, s70, {CP}')
        a.e('v_add_u32 v2, s70, v2')
        if not OPT['cvbar']:
            a.e('s_barrier')
        for c in range(8):
            a.e(f'ds_write_b128 v2, v[{ACC+4*c}:{ACC+4*c+3}] offset:{c*TS}')
        a.e('v_lshrrev_b32 v2, 2, v1')
        a.e('v_lshlrev_b32 v2, 4, v2')
        a.e('v_and_b32 v3, 3, v1')
        a.e('v_mul_u32_u24 v3, 320, v3')
        a.e('v_add_u32 v2, v2, v3')
        a.e(f's_lshl_b32 s70, s{S_W}, 1')
        a.e(f's_mul_i32 s71, s70, {TS}')
        a.e(f's_add_u32 s71, s71, {CP}')
        a.e('v_add_u32 v2, s71, v2')
        a.e('s_lshl_b32 s71, s70, 9')
        a.e(f's_add_u32 s71, s71, {L_U + 512}')
        a.e('v_lshl_add_u32 v3, v1, 3, s71')
        a.e(f's_mul_i32 s71, s{S_P}, {AST}')
        a.e('s_lshl_b32 s72, s70, 10')
        a.e('s_add_u32 s71, s71, s72')
        a.e(f's_add_u32 s71, s71, {WS_AOUT}')
        a.e('v_lshl_add_u32 v4, v1, 4, s71')
        VRD, VU, VG = 2, 3, 4
    a.e('s_lshl_b32 s72, s69, 16')
    a.e('s_and_b32 s73, s69, 0xffff0000')
    a.e('v_mov_b32 v56, s72')
    a.e('v_mov_b32 v57, s73')
    a.e(f's_waitcnt lgkmcnt(0) vmcnt({pre_vm})')
    a.e('s_barrier')
    for q in range(2):
        P = 64 + 32 * q
        for ch in range(2):
            for hf in range(2):
                r = P + 8 * ch + 4 * hf
                a.e(f'ds_read_b128 v[{r}:{r+3}], v{VRD} offset:{(2*ch+hf)*8*TS + q*TS}')
        for ch in range(2):
            a.e(f'ds_read_b64 v[{P+16+2*ch}:{P+17+2*ch}], v{VU} offset:{ch*UCH + q*512}')
    for q in range(2):
        P = 64 + 32 * q
        a.e(f's_waitcnt lgkmcnt({6 if q == 0 else 0})')
        for ch in range(2):
            y = P + 8 * ch
            T = 128 + 16 * ch
            u = P + 16 + 2 * ch
            for h in range(2):
                a.e(f'v_pk_add_f32 v[{y+2*h}:{y+2*h+1}], v[{y+2*h}:{y+2*h+1}], v[{y+4+2*h}:{y+5+2*h}]')
            for i in range(4):
                a.e(f'v_fma_mix_f32 v{T+i}, v{u+i//2}, v{56+ch}, 0 op_sel:[{i%2},0,0] op_sel_hi:[1,0,0]')
            for h in range(2):
                a.e(f'v_pk_mul_f32 v[{y+2*h}:{y+2*h+1}], v[{y+2*h}:{y+2*h+1}], v[54:55] op_sel:[0,{ch}] op_sel_hi:[1,{ch}]')
            for h in range(2):
                a.e(f'v_cvt_pk_bf16_f32 v{T+6+h}, v{T+2*h}, v{T+2*h+1}')
                a.e(f'v_cvt_pk_bf16_f32 v{T+4+h}, v{y+2*h}, v{y+2*h+1}')
            for h in range(2):
                a.e(f'v_lshlrev_b32 v{T+2*h}, 16, v{T+6+h}')
                a.e(f'v_and_b32 v{T+2*h+1}, 0xffff0000, v{T+6+h}')
                a.e(f'v_lshlrev_b32 v{y+2*h}, 16, v{T+4+h}')
                a.e(f'v_and_b32 v{y+2*h+1}, 0xffff0000, v{T+4+h}')
            for h in range(2):
                a.e(f'v_pk_add_f32 v[{y+2*h}:{y+2*h+1}], v[{y+2*h}:{y+2*h+1}], v[{T+2*h}:{T+2*h+1}]')
        O = 160 + 4 * q
        for i in range(4):
            a.e(f'v_cvt_pk_bf16_f32 v{O+i}, v{P+i}, v{P+8+i}')
        a.e(f'buffer_store_dwordx4 v[{O}:{O+3}], v{VG}, {WSR}, 0 offen offset:{q*1024} sc1')


def conv_addr(a, va=48, vb=49):
    a.e(f's_lshr_b32 s66, s{S_W}, 1')
    a.e(f's_and_b32 s67, s{S_W}, 1')
    a.e('v_and_b32 v2, 7, v1')
    a.e('v_sub_u32 v2, 7, v2')
    if OPT['c4']:
        a.e('v_lshrrev_b32 v5, 2, v2')
        a.e('v_and_b32 v2, 3, v2')
        a.e(f'v_mul_u32_u24 v2, {KCOPY}, v2')
        a.e('v_lshl_add_u32 v2, v5, 3, v2')
    else:
        a.e(f'v_mul_u32_u24 v2, {KCOPY}, v2')
    a.e('v_lshrrev_b32 v3, 4, v1')
    a.e('v_bfe_u32 v4, v1, 3, 1')
    a.e('v_sub_u32 v4, v3, v4')
    a.e('v_lshl_add_u32 v2, v4, 4, v2')
    a.e(f's_mul_i32 s70, s66, {kch()}')
    a.e('s_lshl_b32 s71, s67, 8')
    a.e('s_sub_u32 s70, s70, s71')
    a.e(f's_add_u32 s70, s70, {L_KC + 16*253 - 512*7 - 64*3}')
    a.e(f'v_add_u32 v{va}, s70, v2')
    a.e('v_and_b32 v2, 15, v1')
    a.e('v_lshlrev_b32 v2, 5, v2')
    a.e('v_lshl_add_u32 v2, v3, 4, v2')
    a.e(f's_mul_i32 s70, s66, {UCH}')
    a.e('s_sub_u32 s70, s70, s71')
    a.e(f's_add_u32 s70, s70, {L_U + 480 - 64*3}')
    a.e(f'v_add_u32 v{vb}, s70, v2')


def phase_p4(a, dmas=()):
    X = list(range(8, 16))
    A = 32
    xrow_addr(a)
    a.e(f's_mul_i32 s66, s{S_W}, {56*AST}')
    a.e(f's_lshl_b32 s67, s{S_B}, 5')
    a.e('s_add_u32 s66, s66, s67')
    a.e(f's_add_u32 s66, s66, {WS_AOUT}')
    a.e(f'v_mul_u32_u24 v4, {AST}, v1')
    a.e('v_add_u32 v4, s66, v4')
    a.e(f'v_mov_b32 v5, {OOB}')
    a.e('v_cndmask_b32 v4, v5, v4, vcc')
    if OPT['hpriv']:
        a.e(f's_mul_i32 s66, s{S_W}, 1792')
        a.e(f's_add_u32 s66, s66, {L_HT}')
        a.e('v_lshl_add_u32 v6, v1, 2, s66')
        a.e('v_lshl_add_u32 v7, v1, 4, s66')
        a.e(f's_mul_i32 s66, s{S_B}, 7168')
        a.e(f's_mul_i32 s67, s{S_W}, 224')
        a.e('s_add_u32 s66, s66, s67')
        a.e(f's_add_u32 s66, s66, {WS_H}')
        for k, vd in ((0, 56), (64, 57)):
            a.e(f'v_add_u32 v58, {k}, v1')
            a.e('v_mul_u32_u24 v59, 4682, v58')
            a.e('v_lshrrev_b32 v59, 16, v59')
            a.e(f'v_mul_u32_u24 v{vd}, {896 - 224}, v59')
            a.e(f'v_lshl_add_u32 v{vd}, v58, 4, v{vd}')
            a.e(f'v_add_u32 v{vd}, s66, v{vd}')
        mask_lanes(a, 57, 48, 58)
    else:
        a.e(f's_mul_i32 s66, s{S_W}, 224')
        a.e(f's_add_u32 s66, s66, {L_HT}')
        a.e('v_lshl_add_u32 v6, v1, 2, s66')
    for j in range(8):
        a.e(f'v_lshlrev_b32 v{64+2*j}, 16, v{X[j]}')
        a.e(f'v_and_b32 v{65+2*j}, 0xffff0000, v{X[j]}')
    lp, ld = a.lab('h2poll'), a.lab('h2done')
    a.e(f's_mov_b32 s{S_SPIN}, 0')
    a.e(f'{lp}:')
    a.e(f'buffer_load_dwordx4 v[{A}:{A+3}], v4, {WSR}, 0 offen sc1')
    a.e(f'buffer_load_dwordx4 v[{A+4}:{A+7}], v4, {WSR}, 0 offen offset:16 sc1')
    a.e('s_waitcnt vmcnt(0)')
    a.e(f'v_max3_u32 v40, v{A}, v{A+1}, v{A+2}')
    a.e(f'v_max3_u32 v41, v{A+3}, v{A+4}, v{A+5}')
    a.e(f'v_max3_u32 v40, v40, v{A+6}, v{A+7}')
    a.e('v_max_u32 v40, v40, v41')
    a.e('v_cmp_eq_u32 vcc, -1, v40')
    a.e(f's_cbranch_vccz {ld}')
    spin_tail(a, lp)
    a.e(f'{ld}:')
    stamp(a, 14)
    H = list(range(48, 56))
    for j in range(8):
        t = 40 + 2 * (j % 4)
        a.e(f'v_lshlrev_b32 v{t}, 16, v{A+j}')
        a.e(f'v_and_b32 v{t+1}, 0xffff0000, v{A+j}')
        a.e(f'v_pk_add_f32 v[{t}:{t+1}], v[{t}:{t+1}], v[{64+2*j}:{65+2*j}]')
        a.e(f'v_cvt_pk_bf16_f32 v{H[j]}, v{t}, v{t+1}')
    a.e('s_mov_b32 exec_hi, 0x00ffffff')
    for j in range(8):
        a.e(f'ds_write_b32 v6, v{H[j]} offset:{j*(224 if OPT["hpriv"] else 896)}')
    a.e('s_mov_b32 exec_hi, -1')
    if OPT['hpriv']:
        a.e('ds_read_b128 v[32:35], v7')
        a.e('ds_read_b128 v[36:39], v7 offset:1024')
        a.e('s_waitcnt lgkmcnt(1)')
        a.e(f'buffer_store_dwordx4 v[32:35], v56, {WSR}, 0 offen sc1')
        a.e('s_waitcnt lgkmcnt(0)')
        a.e(f'buffer_store_dwordx4 v[36:39], v57, {WSR}, 0 offen sc1')
        if dmas:
            a.inject(dmas, OPT['p4ev'])
        ln_stats(a, H, 16, L_RED0, 5)
    else:
        def hstore():
            a.e('v_lshlrev_b32 v7, 4, v0')
            a.e(f'ds_read_b128 v[56:59], v7 offset:{L_HT}')
            a.e(f'ds_read_b128 v[60:63], v7 offset:{L_HT + 4096}')
            return 2

        ln_stats(a, H, 16, L_RED0, 5, mid=hstore)
        a.e(f's_mul_i32 s66, s{S_B}, 7168')
        a.e(f's_add_u32 s66, s66, {WS_H}')
        a.e('v_add_u32 v6, s66, v7')
        a.e('v_add_u32 v7, 4096, v6')
        mask_lanes(a, 7, 192, 4, 'v0')
        a.e('s_waitcnt lgkmcnt(0)')
        a.e(f'buffer_store_dwordx4 v[56:59], v6, {WSR}, 0 offen sc1')
        a.e(f'buffer_store_dwordx4 v[60:63], v7, {WSR}, 0 offen sc1')
    bcast_stats(a, 16)
    a.inj_pause()
    a.e('s_mov_b32 exec_hi, 0x00ffffff')
    for j in range(8):
        t = 40 + 2 * (j % 4)
        norm_tok(a, j, H[j], t)
        a.e(f'v_cvt_pk_bf16_f32 v{H[j]}, v{t}, v{t+1}')
    a.e('s_mov_b32 exec_hi, -1')
    a.inj_resume()
    ln_stats(a, H, 16, L_RED1, 5)
    bcast_stats(a, 16)
    VHH = 213 if OPT['hoist'] else 4
    if not OPT['hoist']:
        a.e(f's_mul_i32 s66, s{S_B}, 7168')
        a.e(f's_mul_i32 s67, s{S_W}, 1792')
        a.e('s_add_u32 s66, s66, s67')
        a.e(f's_add_u32 s66, s66, {WS_HH}')
        a.e('v_lshl_add_u32 v4, v1, 4, s66')
        a.e('v_add_u32 v5, 448, v4')
        a.e('v_cmp_gt_u32 vcc, 28, v1')
        a.e('v_cndmask_b32 v4, v5, v4, vcc')
        mask_lanes(a, 4, 56, 5)
    for j in range(8):
        norm_tok(a, j, H[j], 64 + 2 * j)
    O0, O1 = 80, 84
    for i in range(4):
        a.e(f'v_cvt_pk_bf16_f32 v{O0+i}, v{64+4*i}, v{66+4*i}')
        a.e(f'v_cvt_pk_bf16_f32 v{O1+i}, v{65+4*i}, v{67+4*i}')
    a.inj_flush()
    a.e(f's_waitcnt vmcnt({len(dmas)})')
    if not OPT['hpriv']:
        a.e('s_barrier')
    a.e(f'buffer_store_dwordx4 v[{O0}:{O0+3}], v{VHH}, {WSR}, 0 offen sc1')
    a.e(f'buffer_store_dwordx4 v[{O1}:{O1+3}], v{VHH}, {WSR}, 0 offen offset:448 sc1')


def w_setup(a):
    srd(a, S_W1, P_W1, W1BYTES)
    srd(a, S_W2, P_W2, W2BYTES)
    a.e('v_lshrrev_b32 v4, 3, v1')
    a.e('v_bfe_u32 v5, v1, 4, 1')
    a.e('v_lshlrev_b32 v5, 1, v5')
    a.e('v_and_b32 v6, 7, v1')
    a.e('v_xor_b32 v6, v6, v5')
    a.e('v_xor_b32 v7, 4, v6')
    for vd, rowbytes, tile, rows in ((V_D1, F * 2, S_I1, 512), (V_D2, L * 2, S_I2, 448)):
        a.e(f's_mov_b32 s66, {rowbytes}')
        a.e('v_mul_lo_u32 v5, v4, s66')
        a.e(f's_mul_i32 s67, s{S_W}, {rows*rowbytes}')
        a.e(f's_lshl_b32 s66, s{tile}, 7')
        a.e('s_add_u32 s67, s67, s66')
        a.e('v_add_u32 v5, s67, v5')
        for i in range(4):
            a.e(f'v_lshl_add_u32 v{vd+i}, v{6 + (i & 1)}, 4, v5')
            if i:
                a.e(f'v_add_u32 v{vd+i}, {i*(8*rowbytes - 1024)}, v{vd+i}')
    a.e('v_lshlrev_b32 v5, 12, v4')
    a.e('v_and_b32 v6, 7, v1')
    a.e(f'v_lshl_add_u32 v{V_QPF}, v6, 4, v5')
    a.e(f's_and_b32 s66, s{S_LOC}, 3')
    a.e('s_mul_i32 s66, s66, 448')
    if OPT['sched'] == 3:
        a.e(f's_mul_i32 s67, s{S_W}, {(448 - OPT["hR"]) // 4}')
        a.e(f's_add_u32 s67, s67, {OPT["hR"]}')
    else:
        a.e(f's_mul_i32 s67, s{S_W}, 112')
    a.e('s_add_u32 s66, s66, s67')
    a.e('s_lshl_b32 s66, s66, 12')
    a.e(f's_lshl_b32 s67, s{S_I2}, 7')
    a.e(f's_add_u32 s{S_QPF}, s66, s67')
    a.e('v_lshrrev_b32 v4, 4, v1')
    a.e('v_bfe_u32 v5, v1, 2, 2')
    a.e('v_lshl_add_u32 v5, v4, 3, v5')
    a.e('v_lshlrev_b32 v5, 7, v5')
    a.e('v_and_b32 v6, 1, v1')
    a.e('v_lshl_add_u32 v5, v6, 3, v5')
    a.e('v_bfe_u32 v6, v1, 1, 1')
    a.e('v_lshl_add_u32 v5, v6, 4, v5')
    a.e('v_bfe_u32 v6, v1, 3, 1')
    a.e('v_and_b32 v4, 1, v4')
    a.e('v_lshl_add_u32 v6, v4, 1, v6')
    a.e(f's_and_b32 s66, s{S_LOC}, 3')
    a.e(f's_lshr_b32 s67, s{S_LOC}, 2')
    a.e('s_lshl_b32 s67, s67, 1')
    a.e('s_lshl_b32 s70, s66, 2')
    a.e('s_add_u32 s70, s70, s67')
    a.e('s_and_b32 s70, s70, 15')
    a.e(f's_mul_i32 s{S_RW1}, s70, {32*F*2}')
    a.e(f's_mul_i32 s{S_RX1}, s70, {4*7168}')
    a.e('s_mul_i32 s66, s66, 7')
    a.e('s_lshr_b32 s66, s66, 1')
    a.e('s_add_u32 s66, s66, s67')
    for _ in range(2):
        a.e('s_cmp_ge_u32 s66, 14')
        a.e('s_cselect_b32 s67, 14, 0')
        a.e('s_sub_u32 s66, s66, s67')
    a.e(f's_mul_i32 s{S_RW2}, s66, {32*L*2}')
    a.e(f's_mul_i32 s{S_RX2}, s66, {4*7168}')
    a.e(f's_lshl_b32 s{S_SA}, s{S_W}, 14')
    a.e(f's_add_u32 s{S_SA}, s{S_SA}, {L_WA}')
    a.e(f's_mul_i32 s{S_SB}, s{S_W}, 20480')
    a.e(f's_add_u32 s{S_SB}, s{S_SB}, {L_WB}')
    a.e(f's_lshl_b32 s{S_SC}, s{S_W}, 13')
    a.e(f's_add_u32 s{S_SC}, s{S_SC}, {L_WC}')
    for mu in range(4):
        a.e(f'v_xor_b32 v4, {mu}, v6')
        a.e('v_lshl_add_u32 v4, v4, 5, v5')
        a.e(f'v_add_u32 v{V_TA+mu}, s{S_SA}, v4')
        a.e(f'v_add_u32 v{V_TB+mu}, s{S_SB}, v4')
        a.e(f'v_add_u32 v{V_TC+mu}, s{S_SC}, v4')


def rot_off(a, idx, sreg, n, unit):
    a.e(f's_add_u32 s70, s{sreg}, {idx*unit}')
    a.e(f's_cmp_ge_u32 s70, {n*unit}')
    a.e(f's_cselect_b32 s71, {n*unit}, 0')
    a.e('s_sub_u32 s70, s70, s71')


def slot(name):
    return {'A': (S_SA, V_TA), 'B': (S_SB, V_TB), 'C': (S_SC, V_TC)}[name[0]] + (int(name[1]),)


def w_dma1(a, mat, slab, sl, i):
    sb, _, si = slot(sl)
    vd, srd_, rowbytes = (V_D1, S_W1, F * 2) if mat == 1 else (V_D2, S_W2, L * 2)
    if i == 0:
        rot_off(a, slab, S_RW1 if mat == 1 else S_RW2, 16 if mat == 1 else 14, 32 * rowbytes)
        a.e(f's_add_u32 m0, s{sb}, {si*4096}')
    a.e(f'buffer_load_dwordx4 v{vd + i}, s[{srd_}:{srd_+3}], s70 offen offset:{1024*i} lds')


def w_dma(a, mat, slab, sl):
    for i in range(4):
        w_dma1(a, mat, slab, sl, i)


def w_tr(a, slab, sl):
    _, vt, si = slot(sl)
    for mu in range(4):
        r = (slab * 4 + mu) * 4
        a.e(f'ds_read_b64_tr_b16 a[{r}:{r+1}], v{vt+mu} offset:{si*4096}')
        a.e(f'ds_read_b64_tr_b16 a[{r+2}:{r+3}], v{vt+mu} offset:{si*4096 + 512}')


def helper_w2(a, nrows, mid=None):
    a.e(f's_lshr_b32 s66, s{S_XCD}, 1')
    a.e('s_lshl_b32 s66, s66, 10')
    a.e(f's_sub_u32 s67, s{S_LOC}, 28')
    a.e('s_mul_i32 s67, s67, 448')
    a.e(f's_add_u32 s67, s67, s{S_W}')
    a.e('s_lshl_b32 s67, s67, 12')
    a.e('s_add_u32 s90, s66, s67')
    a.e('v_lshlrev_b32 v4, 4, v1')

    def loop(n):
        if n <= 0:
            return
        l = a.lab('l2s')
        a.e(f's_mov_b32 s91, {n}')
        a.e(f'{l}:')
        for i in range(4):
            a.e(f'buffer_load_dwordx4 v[220:223], v4, s[{S_W2}:{S_W2+3}], s90 offen')
            a.e(f's_add_u32 s90, s90, {4*L*2}')
        a.e('s_waitcnt vmcnt(8)')
        a.e('s_sub_u32 s91, s91, 1')
        a.e('s_cmp_lg_u32 s91, 0')
        a.e(f's_cbranch_scc1 {l}')

    total = nrows // 16
    if mid is None:
        loop(total)
        return
    n1, issue, check = mid
    loop(n1)
    issue()
    loop(3)
    check()
    loop(total - n1 - 3)


def qpf_load(a, n):
    for _ in range(n):
        a.e(f'buffer_load_dwordx4 v[220:223], v{V_QPF}, s[{S_W2}:{S_W2+3}], s{S_QPF} offen')
        a.e(f's_add_u32 s{S_QPF}, s{S_QPF}, {8*L*2}')


ACC = 16
XS = 80
NS = 6
VMAX = 214
V_X0, V_X3 = 208, 209


def gemm_xaddr(a, ws_off, kblocks):
    a.e(f's_mul_i32 s66, s{S_W}, {kblocks*7168}')
    a.e(f's_mul_i32 s67, s{S_J}, 896')
    a.e('s_add_u32 s66, s66, s67')
    a.e(f's_add_u32 s66, s66, {ws_off}')
    a.e('v_lshrrev_b32 v4, 4, v1')
    a.e('v_mul_u32_u24 v4, 7168, v4')
    a.e('v_add_u32 v4, s66, v4')
    a.e('v_and_b32 v5, 15, v1')
    a.e(f'v_lshl_add_u32 v{V_X0}, v5, 4, v4')
    if OPT['x3oob']:
        a.e(f'v_add_u32 v{V_X3}, 768, v{V_X0}')
        a.e(f'v_mov_b32 v4, {OOB}')
        a.e('v_cmp_gt_u32 vcc, 8, v5')
        a.e(f'v_cndmask_b32 v{V_X3}, v4, v{V_X3}, vcc')
    else:
        a.e('v_and_b32 v5, 7, v1')
        a.e('v_lshl_add_u32 v4, v5, 4, v4')
        a.e(f'v_add_u32 v{V_X3}, 768, v4')


def gemm_xloads(a, kappa, gid):
    st = XS + 16 * (kappa % NS)
    out = []
    sreg, n = (S_RX1, 16) if gid == 1 else (S_RX2, 14)
    unit = 4 * 7168
    out.append(f's_add_u32 s70, s{sreg}, {kappa*unit}')
    out.append(f's_cmp_ge_u32 s70, {n*unit}')
    out.append(f's_cselect_b32 s71, {n*unit}, 0')
    out.append('s_sub_u32 s70, s70, s71')
    for nu in range(3):
        out.append(f'buffer_load_dwordx4 v[{st+4*nu}:{st+4*nu+3}], v{V_X0}, {WSR}, s70 offen offset:{256*nu} sc1')
    out.append(f'buffer_load_dwordx4 v[{st+12}:{st+15}], v{V_X3}, {WSR}, s70 offen sc1')
    return out


def gemm_main(a, nk, gid, tail_hook=None):
    nfl = OPT['nfl']
    w_is_a = gid == 1
    a.e(f'v_mov_b32 v{VMAX}, 0')
    extra = 0
    for k in range(nk):
        st = XS + 16 * (k % NS)
        rem = min(nfl - 1, nk - 1 - k)
        a.e(f's_waitcnt vmcnt({4*rem + extra})')
        if OPT['stamps'] and k in (0, 4, 8, 12):
            stamp(a, (44 if w_is_a else 51) + (0, 4, 8, 12).index(k))
        fill = gemm_xloads(a, k + nfl, gid) if k + nfl < nk else []
        if k + nfl == nk and tail_hook is not None:
            fill = []
            extra = tail_hook(fill)
        mx = [f'v_max3_u32 v{VMAX}, v{VMAX}, v{st+2*i}, v{st+2*i+1}' for i in range(8)]
        n = 0
        for mu in range(4):
            for nu in range(4):
                w = (k * 4 + mu) * 4
                x = st + 4 * nu
                if w_is_a:
                    acc = ACC + (mu * 4 + nu) * 4
                    A, B = f'a[{w}:{w+3}]', f'v[{x}:{x+3}]'
                else:
                    acc = ACC + (nu * 4 + mu) * 4
                    A, B = f'v[{x}:{x+3}]', f'a[{w}:{w+3}]'
                cc = '0' if k == 0 else f'v[{acc}:{acc+3}]'
                a.e(f'v_mfma_f32_16x16x32_bf16 v[{acc}:{acc+3}], {A}, {B}, {cc}')
                for _ in range(2):
                    if fill:
                        a.e(fill.pop(0))
                if not fill and mx and n >= 4:
                    a.e(mx.pop(0))
                n += 1
        assert not fill and not mx


def capture(fn):
    p = Prog()
    fn(p)
    return [it.text for it in p.items]


STUBS = []


def mfma_line(k, mu, nu, gid):
    st = XS + 16 * (k % NS)
    w = (k * 4 + mu) * 4
    x = st + 4 * nu
    if gid == 1:
        acc = ACC + (mu * 4 + nu) * 4
        A, B = f'a[{w}:{w+3}]', f'v[{x}:{x+3}]'
    else:
        acc = ACC + (nu * 4 + mu) * 4
        A, B = f'v[{x}:{x+3}]', f'a[{w}:{w+3}]'
    cc = '0' if k == 0 else f'v[{acc}:{acc+3}]'
    return f'v_mfma_f32_16x16x32_bf16 v[{acc}:{acc+3}], {A}, {B}, {cc}'


def poison_check(k):
    st = XS + 16 * (k % NS)
    out = [f'v_max3_u32 v{VMAX}, v{st}, v{st+1}, v{st+2}']
    for i in range(6):
        out.append(f'v_max3_u32 v{VMAX}, v{VMAX}, v{st+3+2*i}, v{st+4+2*i}')
    out.append(f'v_max_u32 v{VMAX}, v{VMAX}, v{st+15}')
    out.append(f'v_cmp_eq_u32 vcc, -1, v{VMAX}')
    return out


def gemm_checked(a, nk, gid, sb, tail_hook=None, side=None):
    nfl = OPT['nfl']

    def slow(k):
        ls, lb, lp = a.lab('slow'), a.lab('back'), a.lab('sloop')

        def emit():
            a.e(f'{ls}:')
            a.e(f's_mov_b32 s{S_SPIN}, 0')
            a.e(f'{lp}:')
            for x in gemm_xloads(a, k, gid):
                a.e(x)
            a.e('s_waitcnt vmcnt(0)')
            for x in poison_check(k):
                a.e(x)
            ldone = a.lab('sdone')
            a.e(f's_cbranch_vccz {ldone}')
            spin_tail(a, lp)
            a.e(f'{ldone}:')
            if k == 0:
                for kk in range(1, min(nfl, nk - 1) + 1):
                    for x in gemm_xloads(a, kk, gid):
                        a.e(x)
            a.e(f's_branch {lb}')
        STUBS.append(emit)
        return ls, lb

    for k in range(nfl):
        for x in gemm_xloads(a, k, gid):
            a.e(x)
    a.e(f's_waitcnt vmcnt({4*(nfl-1)})')
    for x in gemm_xloads(a, nfl, gid):
        a.e(x)
    for x in poison_check(0):
        a.e(x)
    ls, lb = slow(0)
    a.e(f's_cbranch_vccnz {ls}')
    a.e(f'{lb}:')
    stamp(a, sb)
    extra = 0
    for k in range(nk):
        lines = [mfma_line(k, mu, nu, gid) for mu in range(4) for nu in range(4)]
        for i in range(8):
            a.e(lines[i])
        if k + 1 < nk:
            kn = k + 1
            rem = min(nfl - 1, nk - 1 - kn)
            a.e(f's_waitcnt vmcnt({4*rem + extra})')
            if OPT['stamps'] and kn in (4, 8, 12):
                stamp(a, (44 if gid == 1 else 51) + (0, 4, 8, 12).index(kn))
            fill = gemm_xloads(a, kn + nfl, gid) if kn + nfl < nk else []
            if kn + nfl == nk and tail_hook is not None:
                extra = tail_hook(fill)
            if side is not None:
                lines_, nvm = side(kn)
                fill += lines_
                extra += nvm
            fill += poison_check(kn)
        else:
            fill = []
        per = -(-len(fill) // 8)
        for i in range(8, 16):
            a.e(lines[i])
            for _ in range(per):
                if fill:
                    a.e(fill.pop(0))
        assert not fill
        if k + 1 < nk:
            ls, lb = slow(k + 1)
            a.e(f's_cbranch_vccnz {ls}')
            a.e(f'{lb}:')


def sentinel(a, ws_off, kblocks):
    lp, ld = a.lab('spoll'), a.lab('sdone')
    a.e(f's_mul_i32 s66, s{S_W}, {kblocks*7168}')
    a.e(f's_mul_i32 s67, s{S_J}, 896')
    a.e('s_add_u32 s66, s66, s67')
    a.e(f's_add_u32 s66, s66, {ws_off + 55*16 + 12}')
    a.e('v_mul_u32_u24 v4, 7168, v1')
    a.e('v_add_u32 v4, s66, v4')
    if kblocks < 64:
        mask_lanes(a, 4, kblocks, 5)
    a.e(f's_mov_b32 s{S_SPIN}, 0')
    a.e(f'{lp}:')
    a.e(f'buffer_load_dword v5, v4, {WSR}, 0 offen sc1')
    a.e('s_waitcnt vmcnt(0)')
    a.e('v_cmp_eq_u32 vcc, -1, v5')
    a.e(f's_cbranch_vccz {ld}')
    spin_tail(a, lp)
    a.e(f'{ld}:')


def gemm_poll_main(a, ws_off, kblocks, nk, gid, sb, tail_hook=None, side=None):
    lr, lok = a.lab('gretry'), a.lab('gok')
    gemm_xaddr(a, ws_off, kblocks)
    if OPT['stchk']:
        gemm_checked(a, nk, gid, sb, tail_hook, side)
        return
    a.e(f's_mov_b32 s{S_RETRY}, 0')
    a.e(f'{lr}:')
    sentinel(a, ws_off, kblocks)
    stamp(a, sb)
    for k in range(OPT['nfl']):
        for x in gemm_xloads(a, k, gid):
            a.e(x)
    gemm_main(a, nk, gid, tail_hook)
    a.e(f'v_cmp_eq_u32 vcc, -1, v{VMAX}')
    a.e(f's_cbranch_vccz {lok}')
    a.e(f's_add_u32 s{S_RETRY}, s{S_RETRY}, 1')
    a.e(f's_cmp_lt_u32 s{S_RETRY}, {RETRY_MAX}')
    a.e(f's_cbranch_scc1 {lr}')
    a.e(f'{lok}:')


def write_partials(a):
    if OPT['hoist']:
        va = 241
    else:
        va = 4
        a.e('v_and_b32 v4, 15, v1')
        a.e(f'v_mul_u32_u24 v4, {PROW}, v4')
        a.e('v_lshrrev_b32 v5, 4, v1')
        a.e('v_lshl_add_u32 v4, v5, 4, v4')
        a.e(f's_mul_i32 s66, s{S_W}, {PARTW}')
        a.e(f's_add_u32 s66, s66, {L_PART}')
        a.e('v_add_u32 v4, s66, v4')
    if not OPT['prebar']:
        a.e('s_barrier')
    for mt in range(4):
        for nt in range(4):
            acc = ACC + (mt * 4 + nt) * 4
            a.e(f'ds_write_b128 v{va}, v[{acc}:{acc+3}] offset:{nt*16*PROW + mt*64}')


def sum_partials(a, P):
    for h in range(4):
        a.e(f'v_pk_add_f32 v[{P+2*h}:{P+2*h+1}], v[{P+2*h}:{P+2*h+1}], v[{P+8+2*h}:{P+9+2*h}]')
        a.e(f'v_pk_add_f32 v[{P+16+2*h}:{P+17+2*h}], v[{P+16+2*h}:{P+17+2*h}], v[{P+24+2*h}:{P+25+2*h}]')
    for h in range(4):
        a.e(f'v_pk_add_f32 v[{P+2*h}:{P+2*h+1}], v[{P+2*h}:{P+2*h+1}], v[{P+16+2*h}:{P+17+2*h}]')


def b1_load(a):
    a.e(f's_lshl_b32 s67, s{S_I1}, 7')
    a.e(f's_lshl_b32 s70, s{S_W}, 5')
    a.e('s_add_u32 s67, s67, s70')
    a.e(f's_load_dwordx8 s[72:79], s[{P_B1}:{P_B1+1}], s67')


def gemm1_epilogue(a, d0=(), d1=()):
    write_partials(a)
    if OPT['hoist']:
        VR1, VG1 = 242, 240
    else:
        VR1, VG1 = 4, 5
        a.e(f'v_mul_u32_u24 v4, {PROW}, v1')
        a.e(f's_lshl_b32 s66, s{S_W}, 6')
        a.e(f's_add_u32 s66, s66, {L_PART}')
        a.e('v_add_u32 v4, s66, v4')
        g_store_addr(a, 5)
    C1 = 0.044715
    C2 = -2.0 * 0.7978845608028654 * 1.4426950408889634
    a.e(f'v_mov_b32 v100, {fx(C1*C2)}')
    a.e(f'v_mov_b32 v101, {fx(C1*C2)}')
    a.e(f'v_mov_b32 v102, {fx(C2)}')
    a.e(f'v_mov_b32 v103, {fx(C2)}')
    a.e('s_waitcnt lgkmcnt(0)')
    a.e('s_barrier')
    stamp(a, 24)
    for r in range(2):
        P = 16 + 32 * r
        for wv in range(4):
            a.e(f'ds_read_b128 v[{P+8*wv}:{P+8*wv+3}], v{VR1} offset:{wv*PARTW + r*32}')
            a.e(f'ds_read_b128 v[{P+8*wv+4}:{P+8*wv+7}], v{VR1} offset:{wv*PARTW + r*32 + 16}')
    for i in range(8):
        a.e(f's_lshl_b32 s{80+2*i}, s{72+i}, 16')
        a.e(f's_and_b32 s{81+2*i}, s{72+i}, 0xffff0000')
    for r in range(2):
        P = 16 + 32 * r
        T = 80
        a.e(f's_waitcnt lgkmcnt({8 if r == 0 else 0})')
        if r == 1 and d1:
            a.e('s_barrier')
        dd = d0 if r == 0 else d1
        if dd:
            a.inject(dd, max(1, 80 // len(dd)))
        sum_partials(a, P)
        round_pairs(a, P, T, 8)
        for h in range(4):
            a.e(f'v_pk_add_f32 v[{P+2*h}:{P+2*h+1}], v[{P+2*h}:{P+2*h+1}], s[{80+8*r+2*h}:{81+8*r+2*h}]')
        round_pairs(a, P, T, 8)
        for h in range(4):
            a.e(f'v_pk_mul_f32 v[{P+8+2*h}:{P+9+2*h}], v[{P+2*h}:{P+2*h+1}], v[{P+2*h}:{P+2*h+1}]')
        for h in range(4):
            a.e(f'v_pk_fma_f32 v[{P+8+2*h}:{P+9+2*h}], v[{P+8+2*h}:{P+9+2*h}], v[100:101], v[102:103]')
        for h in range(4):
            a.e(f'v_pk_mul_f32 v[{P+8+2*h}:{P+9+2*h}], v[{P+8+2*h}:{P+9+2*h}], v[{P+2*h}:{P+2*h+1}]')
        for i in range(8):
            a.e(f'v_exp_f32 v{P+8+i}, v{P+8+i}')
        for h in range(4):
            a.e(f'v_pk_add_f32 v[{P+8+2*h}:{P+9+2*h}], v[{P+8+2*h}:{P+9+2*h}], 1.0 op_sel_hi:[1,0]')
        for i in range(8):
            a.e(f'v_rcp_f32 v{P+8+i}, v{P+8+i}')
        for h in range(4):
            a.e(f'v_pk_mul_f32 v[{P+2*h}:{P+2*h+1}], v[{P+2*h}:{P+2*h+1}], v[{P+8+2*h}:{P+9+2*h}]')
        O = 88 + 4 * r
        for h in range(4):
            a.e(f'v_cvt_pk_bf16_f32 v{O+h}, v{P+2*h}, v{P+2*h+1}')
        a.inj_flush()
        if r == 1:
            a.e(f'v_add_u32 v{VG1}, 7168, v{VG1}')
        a.e(f'buffer_store_dwordx4 v[{O}:{O+3}], v{VG1}, {WSR}, 0 offen sc1')


V_OUT, V_HAD, V_B2 = 210, 211, 212
V_HR = 196


def gemm2_addr(a):
    srd(a, S_T2, P_OUT, XBYTES)
    srd(a, S_T3, P_B2, L * 2)
    a.e('v_lshrrev_b32 v4, 3, v1')
    a.e('v_and_b32 v5, 7, v1')
    a.e(f's_lshl_b32 s66, s{S_W}, 4')
    a.e('v_add_u32 v4, s66, v4')
    a.e(f's_lshl_b32 s67, s{S_I2}, 6')
    a.e('v_add_u32 v7, s67, v4')
    a.e(f'v_mul_u32_u24 v{V_OUT}, 896, v7')
    a.e(f'v_lshl_add_u32 v{V_OUT}, v5, 4, v{V_OUT}')
    a.e(f's_mul_i32 s70, s{S_J}, 112')
    a.e(f'v_add_u32 v{V_OUT}, s70, v{V_OUT}')
    a.e(f'v_mov_b32 v6, {OOB}')
    a.e('v_cmp_gt_u32 vcc, 7, v5')
    a.e(f'v_cndmask_b32 v{V_OUT}, v6, v{V_OUT}, vcc')
    a.e(f'v_add_u32 v{V_HAD}, {WS_H}, v{V_OUT}')
    a.e(f'v_lshlrev_b32 v{V_B2}, 1, v7')


def gemm2_tail_loads(fill):
    fill.append(f'buffer_load_dwordx4 v[{V_HR}:{V_HR+3}], v{V_HAD}, {WSR}, 0 offen sc1')
    fill.append(f's_mov_b32 s70, {8*896}')
    fill.append(f'buffer_load_dwordx4 v[{V_HR+4}:{V_HR+7}], v{V_HAD}, {WSR}, s70 offen sc1')
    fill.append(f'buffer_load_ushort v{V_HR+8}, v{V_B2}, s[{S_T3}:{S_T3+3}], 0 offen')
    fill.append(f'buffer_load_ushort v{V_HR+9}, v{V_B2}, s[{S_T3}:{S_T3+3}], 0 offen offset:16')
    return 4


def gemm2_epilogue(a):
    write_partials(a)
    if OPT['hoist']:
        VR2 = 243
    else:
        VR2 = 6
        a.e('v_lshrrev_b32 v4, 3, v1')
        a.e('v_and_b32 v5, 7, v1')
        a.e(f's_lshl_b32 s66, s{S_W}, 4')
        a.e('v_add_u32 v4, s66, v4')
        a.e(f'v_mul_u32_u24 v6, {PROW}, v4')
        a.e('v_lshl_add_u32 v6, v5, 4, v6')
        a.e(f'v_add_u32 v6, {L_PART}, v6')
    a.e('s_waitcnt lgkmcnt(0)')
    a.e('s_barrier')
    stamp(a, 33)
    for r in range(2):
        P = 16 + 32 * r
        for wv in range(4):
            a.e(f'ds_read_b128 v[{P+8*wv}:{P+8*wv+3}], v{VR2} offset:{wv*PARTW + r*8*PROW}')
            a.e(f'ds_read_b128 v[{P+8*wv+4}:{P+8*wv+7}], v{VR2} offset:{wv*PARTW + r*8*PROW + 112}')
    a.e('s_waitcnt vmcnt(0)')
    for r in range(2):
        P = 16 + 32 * r
        T = 80
        H = V_HR + 4 * r
        a.e(f'v_lshlrev_b32 v106, 16, v{V_HR+8+r}')
        for i in range(4):
            a.e(f'v_lshlrev_b32 v{96+i}, 16, v{H+i}')
            a.e(f'v_and_b32 v{100+i}, 0xffff0000, v{H+i}')
        a.e(f's_waitcnt lgkmcnt({8 if r == 0 else 0})')
        sum_partials(a, P)
        round_pairs(a, P, T, 8)
        for h in range(4):
            a.e(f'v_pk_add_f32 v[{P+2*h}:{P+2*h+1}], v[{P+2*h}:{P+2*h+1}], v[106:107] op_sel:[0,0] op_sel_hi:[1,0]')
        round_pairs(a, P, T, 8)
        for h in range(4):
            a.e(f'v_pk_add_f32 v[{P+2*h}:{P+2*h+1}], v[{P+2*h}:{P+2*h+1}], v[{96+2*h}:{97+2*h}]')
        O = 88 + 4 * r
        for i in range(4):
            a.e(f'v_cvt_pk_bf16_f32 v{O+i}, v{P+i}, v{P+4+i}')
        if r == 1:
            a.e(f'v_add_u32 v{V_OUT}, {8*896}, v{V_OUT}')
        a.e(f'buffer_store_dwordx4 v[{O}:{O+3}], v{V_OUT}, s[{S_T2}:{S_T2+3}], 0 offen' + ['', ' sc1', ' nt', ' sc0 sc1', ' sc1 nt'][OPT['outsc']])


HEADER = """;
"""


def build():
    a = Prog()
    name = NAME + '_kernel'
    lend = a.lab('end')
    a.raw(f'.globl {name}')
    a.raw('.p2align 8')
    a.raw(f'.type {name},@function')
    a.raw(f'{name}:')
    prologue(a, lend)
    lnc1, lnc2, lnc3, lnc5, lnc6 = [a.lab('noconv') for _ in range(5)]

    def skip_if_helper(l):
        a.e(f's_cmp_ge_u32 s{S_LOC}, 28')
        a.e(f's_cbranch_scc1 {l}')

    load_xrows(a)
    ncp = 0
    if OPT['cpf'] & 2:
        code_prefetch1(a, name, 'kcode_end')
        ncp = 1
    a.e(f's_add_u32 s66, s{P_WS}, {WS_EPOCH}')
    a.e(f's_addc_u32 s67, s{P_WS+1}, 0')
    a.e('s_load_dword s99, s[66:67], 0')
    poison_regs(a)
    skip_if_helper(lnc1)
    nt = 0
    if not OPT['plate']:
        kgen_loads(a)
        load_gather_table(a, 'ktab_idx')
        w_setup(a)
        if OPT['tlb'] & 2:
            nt = tlb_touch(a)
        flag_addr(a)
        if OPT['hoist']:
            hoist_common(a)
            hoist_conv(a)
        a.e('s_waitcnt lgkmcnt(0)')
        a.e(f's_add_u32 s{S_TAG}, s99, 0x9e3779b9')
        a.e(f's_waitcnt vmcnt({10 + nt + ncp})')
        stamp(a, 2)
        clear_hh(a)
        clear_aout(a)
    else:
        kgen_loads(a, 'setup')
        w_setup(a)
        flag_addr(a)
        a.e(f's_waitcnt vmcnt({ncp})')
        stamp(a, 2)
        kgen_loads(a, 'issue')
        clear_hh(a)
        clear_aout(a)
        load_gather_table(a, 'ktab_idx')
        if OPT['tlb'] & 2:
            nt = tlb_touch(a)
        a.e('s_waitcnt lgkmcnt(0)')
        a.e(f's_add_u32 s{S_TAG}, s99, 0x9e3779b9')
    ln_stats(a, list(range(8, 16)), 16, L_RED0, 5)
    stamp(a, 3)
    publish_xn(a)
    nb0 = OPT['wb0']
    if OPT['sched'] == 2:
        qa, qb = OPT['qa'], OPT['qb']
        qpf_load(a, qa)
        stamp(a, 4)
        a.e(f's_waitcnt vmcnt({8 + nt + qa})')
        kgen_channel(a, 0, DK0)
        for k in range(nb0):
            w_dma(a, 1, k, BS[k])
        stamp(a, 40)
        kgen_channel(a, 1, DK1, mid=lambda: publish_flag(a, qa + 4 * nb0), mid_m0=False)
        stamp(a, 5)
        qpf_load(a, qb)
        a.e(f's_waitcnt vmcnt({qb})')
        for k in range(nb0):
            w_tr(a, k, BS[k])
        ktab_part1(a)
        stamp(a, 6)
        flag_load(a)
        ktab_part2(a)
        stamp(a, 7)
        a.e(f's_mov_b32 s{S_EARLY}, 0')
        lne = a.lab('notearly')
        a.e('s_waitcnt vmcnt(0)')
        a.e(f'v_cmp_ne_u32 vcc, s{S_TAG}, v{V_FV}')
        a.e(f's_cbranch_vccnz {lne}')
        load_u(a)
        a.e(f's_mov_b32 s{S_EARLY}, 1')
        a.e(f'{lne}:')
        conv_addr(a)
        kcopies(a)
        stamp(a, 8)
        lhave = a.lab('haveu')
        a.e(f's_cmp_lg_u32 s{S_EARLY}, 0')
        a.e(f's_cbranch_scc1 {lhave}')
        flag_poll(a)
        load_u(a)
        a.e(f'{lhave}:')
        stamp(a, 9)
        store_u(a, 0)
    elif OPT['sched'] == 3:
        nq = (448 - OPT['hR']) // 32
        ne = 0
        if OPT['cearly']:
            assert OPT['regc']
            for k in range(2):
                w_dma(a, 1, k, f'C{k}')
            q4 = min(OPT['q4'], nq)
            qpf_load(a, q4)
            ne = 8 + q4
            nq -= q4
        stamp(a, 4)
        a.e(f's_waitcnt vmcnt({8 + nt + ne})')
        m0 = kgen_channel(a, 0, DK0, defer=bool(OPT['kdefer']))
        if not OPT['flagmid']:
            publish_flag(a, ne)
        if OPT['regc']:
            nb0 = 2
            if not OPT['cearly']:
                for k in range(2):
                    w_dma(a, 1, k, f'C{k}')
        else:
            for k in range(nb0):
                w_dma(a, 1, k, BS[k])
        if OPT['cearly']:
            qpf_load(a, nq)
            nq = 0
        stamp(a, 40)
        if OPT['flagmid']:
            assert OPT['regc'] and not OPT['cearly']
            kgen_channel(a, 1, DK1, mid=lambda: publish_flag(a, 8), mid_m0=False)
        else:
            kgen_channel(a, 1, DK1, after_setup=m0)
        stamp(a, 5)
        flag_load(a)
        qpf_load(a, nq)
        if not OPT['regc']:
            a.e(f's_waitcnt vmcnt({nq + 1})')
            for k in range(nb0):
                w_tr(a, k, BS[k])
        ktab_part1(a)
        stamp(a, 6)
        a.e(f's_mov_b32 s{S_EARLY}, 0')
        lne = a.lab('notearly')
        a.e(f's_waitcnt vmcnt({nq})')
        a.e(f'v_cmp_ne_u32 vcc, s{S_TAG}, v{V_FV}')

        def early_u():
            a.e(f's_cbranch_vccnz {lne}')
            load_u(a)
            a.e(f's_mov_b32 s{S_EARLY}, 1')
            a.e(f'{lne}:')
        if OPT['uov']:
            assert OPT['hoist']
            ktab_part2(a, mid=early_u)
        else:
            early_u()
            ktab_part2(a)
        stamp(a, 7)
        if not OPT['hoist']:
            conv_addr(a)
        kcopies(a)
        stamp(a, 8)
        lhave = a.lab('haveu')
        a.e(f's_cmp_lg_u32 s{S_EARLY}, 0')
        a.e(f's_cbranch_scc1 {lhave}')
        flag_poll(a)
        load_u(a)
        a.e(f'{lhave}:')
        stamp(a, 9)
        store_u(a, 0)
    else:
        stamp(a, 4)
        a.e(f's_waitcnt vmcnt({8 + nt})')
        kgen_channel(a, 0, DK0)
        publish_flag(a)
        for k in range(min(nb0, 3)):
            w_dma(a, 1, k, BS[k])
        stamp(a, 40)
        kgen_channel(a, 1, DK1, mid=(lambda: [w_dma(a, 1, k, BS[k]) for k in range(3, nb0)]) if nb0 > 3 else None)
        stamp(a, 5)
        if OPT['early']:
            flag_load(a)
            a.e('s_waitcnt vmcnt(1)')
        else:
            a.e('s_waitcnt vmcnt(0)')
        for k in range(nb0):
            w_tr(a, k, BS[k])
        ktab_part1(a)
        stamp(a, 6)
        a.e(f's_mov_b32 s{S_EARLY}, 0')
        lne = a.lab('notearly')
        if OPT['early']:
            a.e('s_waitcnt vmcnt(0)')
            a.e(f'v_cmp_ne_u32 vcc, s{S_TAG}, v{V_FV}')
            a.e(f's_cbranch_vccnz {lne}')
            load_u(a)
            a.e(f's_mov_b32 s{S_EARLY}, 1')
            a.e(f'{lne}:')
        qpf_load(a, OPT['w2pf_a'])
        ktab_part2(a)
        stamp(a, 7)
        if not OPT['hoist']:
            conv_addr(a)
        kcopies(a)
        stamp(a, 8)
        lhave = a.lab('haveu')
        a.e(f's_cmp_lg_u32 s{S_EARLY}, 0')
        a.e(f's_cbranch_scc1 {lhave}')
        flag_poll(a)
        load_u(a)
        a.e('s_waitcnt vmcnt(0)')
        a.e(f'{lhave}:')
        stamp(a, 9)
        store_u(a, OPT['w2pf_a'])
    epoch_update(a)
    clear_g(a)
    if OPT['sched'] == 1:
        qpf_load(a, OPT['w2pf_b'])
    stamp(a, 10)
    hk = []
    cre = OPT['cre'] and OPT['regc']
    if cre:
        for k in range(2):
            w_tr(a, k, f'C{k}')
        for k, sl in enumerate(AS + ['C0', 'C1']):
            for i in range(4):
                hk.append(lambda k=k, sl=sl, i=i: w_dma1(a, 1, 2 + k, sl, i))
                if i % 2 == 1:
                    hk.append(lambda: None)
    else:
        for k in range(4):
            for i in range(4):
                hk.append(lambda k=k, i=i: w_dma1(a, 1, nb0 + k, AS[k], i))
                hk.append(lambda: None)
    if OPT['nohk']:
        hk = []
    elif OPT['hkpos'] == 1:
        hk = [h for i, h in enumerate(hk) if i % 2 == 0]
    elif OPT['hkpos'] == 2:
        hk = [lambda: None] * 18 + [h for i, h in enumerate(hk) if i % 2 == 0]
    phase_conv(a, hk, 0)
    stamp(a, 12)
    if cre:
        for k, sl in enumerate(AS + ['C0', 'C1']):
            w_tr(a, 2 + k, sl)
        nb0 = 4
    else:
        if OPT['regc']:
            for k in range(2):
                w_tr(a, k, f'C{k}')
        for k in range(4):
            w_tr(a, nb0 + k, AS[k])
    a.e('s_waitcnt lgkmcnt(0)')
    a.e('s_barrier')
    rest = list(range(nb0 + 4, 16))
    last = None
    if len(rest) > 9:
        last = rest.pop()
    rest_slots = (BS + AS)[:len(rest)]
    p4d = []
    if OPT['p4dma']:
        assert OPT['hpriv']
        p4d = [lambda k=k, sl=sl, i=i: w_dma1(a, 1, k, sl, i) for k, sl in zip(rest, rest_slots) for i in range(4)]
    else:
        for k, sl in zip(rest, rest_slots):
            w_dma(a, 1, k, sl)
    stamp(a, 13)
    a.e(f's_branch {lnc2}')
    a.e(f'{lnc1}:')
    nh = 0
    if OPT['cpf'] & 1:
        code_prefetch(a, name, 'kcode_end')
        nh += 3
    w_setup(a)
    if OPT['tlb'] & 1:
        nh += tlb_touch(a)
    flag_addr(a)
    if OPT['hoist']:
        hoist_common(a)
    a.e('s_waitcnt lgkmcnt(0)')
    a.e(f's_add_u32 s{S_TAG}, s99, 0x9e3779b9')
    a.e(f's_waitcnt vmcnt({nh + ncp})')
    clear_hh(a)
    ln_stats(a, list(range(8, 16)), 16, L_RED0, 5)
    publish_xn(a)
    publish_flag(a)
    if OPT['sched'] == 3 and OPT['hsplit']:
        qpf_load(a, (448 - OPT['hR']) // 32)

        def hcheck():
            lok = a.lab('hflags')
            a.e(f'v_cmp_ne_u32 vcc, s{S_TAG}, v{V_FV}')
            a.e(f's_cbranch_vccz {lok}')
            flag_poll(a)
            a.e(f'{lok}:')
            a.e('s_barrier')
        helper_w2(a, OPT['hR'], mid=(OPT['hn1'], lambda: flag_load(a), hcheck))
        stamp(a, 41)
    else:
        if OPT['sched'] == 3:
            qpf_load(a, (448 - OPT['hR']) // 32)
            helper_w2(a, OPT['hR'])
        else:
            qpf_load(a, 14)
        stamp(a, 41)
        flag_poll(a)
        a.e('s_barrier')
    if p4d:
        a.e(f's_mov_b32 s{S_W1+2}, 0')
    stamp(a, 42)
    a.e(f'{lnc2}:')
    phase_p4(a, p4d)
    stamp(a, 20)
    gemm2_addr(a)
    skip_if_helper(lnc3)
    b1_load(a)
    if p4d:
        a.e('s_waitcnt vmcnt(2)')
    for k, sl in zip(rest, rest_slots):
        w_tr(a, k, sl)
    a.e('s_waitcnt lgkmcnt(0)')
    if last is not None:
        w_dma(a, 1, last, 'A0')
    for k in range(5):
        w_dma(a, 2, k, BS[k])
    if last is not None:
        a.e('s_waitcnt vmcnt(20)')
        w_tr(a, last, 'A0')
        a.e('s_waitcnt lgkmcnt(0)')
    if OPT['prebar']:
        a.e('s_barrier')
    stamp(a, 21)
    w2sh = OPT['w2sh'] and OPT['stchk'] and OPT['h4early']

    def side1(kn):
        if 6 <= kn <= 10:
            return capture(lambda p: w_tr(p, kn - 6, BS[kn - 6])), 0
        if 13 <= kn <= 15:
            pre = ['s_waitcnt lgkmcnt(0)'] if kn == 13 else []
            return pre + capture(lambda p: w_dma(p, 2, kn - 8, BS[kn - 13])), 4
        return [], 0

    gemm_poll_main(a, WS_HH, 64, 16, 1, 22, side=side1 if w2sh else None)
    stamp(a, 23)
    if OPT['h4early']:
        if not w2sh:
            for k in range(5):
                w_tr(a, k, BS[k])
            a.e('s_waitcnt lgkmcnt(0)')
            for k in range(5, 5 + OPT['npre']):
                w_dma(a, 2, k, BS[k - 5])
        if OPT['e1dma']:
            d0 = [lambda k=k, i=i: w_dma1(a, 2, k, BS[k - 5], i) for k in range(8, 10) for i in range(4)]
            d1 = [lambda k=k, i=i: w_dma1(a, 2, k, AS[k - 10], i) for k in range(10, 14) for i in range(4)]
            gemm1_epilogue(a, d0, d1)
            stamp(a, 25)
            w1, w2, w3 = 26, 18, 1
        else:
            gemm1_epilogue(a)
            stamp(a, 25)
            npre = 3 if w2sh else OPT['npre']
            for k in range(5 + npre, 10):
                w_dma(a, 2, k, BS[k - 5])
            a.e('s_barrier')
            for k in range(10, 14):
                w_dma(a, 2, k, AS[k - 10])
            w1, w2, w3 = 24 + (0 if npre < 3 else 0), 16, 0
            w1 = 26 if npre == 3 else 24
        a.e(f's_waitcnt vmcnt({w1})')
        for k in range(5, 8):
            w_tr(a, k, BS[k - 5])
        a.e(f's_waitcnt vmcnt({w2})')
        for k in range(8, 10):
            w_tr(a, k, BS[k - 5])
        a.e(f's_waitcnt vmcnt({w3})')
        for k in range(10, 14):
            w_tr(a, k, AS[k - 10])
        a.e('s_waitcnt lgkmcnt(0)')
        a.e(f's_branch {lnc6}')
    else:
        gemm1_epilogue(a)
        stamp(a, 25)
        for k in range(5):
            w_tr(a, k, BS[k])
        a.e('s_waitcnt lgkmcnt(0)')
        a.e('s_barrier')
        a.e(f's_branch {lnc5}')
    a.e(f'{lnc3}:')
    for k in range(5):
        w_dma(a, 2, k, BS[k])
    a.e('s_waitcnt vmcnt(0)')
    for k in range(5):
        w_tr(a, k, BS[k])
    a.e('s_waitcnt lgkmcnt(0)')
    a.e(f'{lnc5}:')
    for k in range(5, 10):
        w_dma(a, 2, k, BS[k - 5])
    for k in range(10, 14):
        w_dma(a, 2, k, AS[k - 10])
    a.e('s_waitcnt vmcnt(16)')
    for k in range(5, 10):
        w_tr(a, k, BS[k - 5])
    a.e('s_waitcnt vmcnt(0)')
    for k in range(10, 14):
        w_tr(a, k, AS[k - 10])
    a.e('s_waitcnt lgkmcnt(0)')
    a.e(f'{lnc6}:')
    if OPT['prebar']:
        a.e('s_barrier')
    stamp(a, 30)
    gemm_poll_main(a, WS_G, 56, 14, 2, 31, gemm2_tail_loads)
    stamp(a, 32)
    gemm2_epilogue(a)
    stamp_clk(a, 61)
    stamp(a, 63)
    stamp_flush(a)
    a.e(f'{lend}:')
    a.e('s_endpgm')
    for emit in STUBS:
        emit()
    del STUBS[:]
    a.raw('kcode_end:')
    emit_gather_table(a, 'ktab_idx')
    nn = a.fast_insert_nops()
    head = f'; @launch grid=(256,1,1) block=(256,1,1) lds={LDS_BYTES}\n'
    head += HEADER
    head += '.amdgcn_target "amdgcn-amd-amdhsa--gfx950"\n.text\n'
    tail = '.section .rodata,"a"\n.p2align 6\n' + descriptor(name)
    if OPT['align']:
        nal = a.align8(head, tail)
        sys.stderr.write(f'alignment: {nal}\n')
    sys.stderr.write(f'instructions: {a.count()}, nops inserted: {nn}\n')
    return head + a.text() + tail


if __name__ == '__main__':
    out = sys.argv[1]
    for arg in sys.argv[2:]:
        if arg == 'stamps':
            OPT['stamps'] = True
        elif arg == 'dbg':
            OPT['stamps'] = True
            OPT['dbgsel'] = [0, 1, 2, 4, 8, 9, 12, 13, 14, 20, 21, 23, 25, 30, 32, 63]
        elif '=' in arg:
            k, v = arg.split('=')
            OPT[k] = int(v)
    open(out, 'w').write(build())
```

```python
import sys
import gen
from gen import (Prog, NAME, L, D, F, XBYTES, PBYTES, W1BYTES, W2BYTES, OOB, fx, srd, reduce16, cmul, exp_bf16,
                 gather_table, emit_gather_table, descriptor, round_pairs, norm_tok, bcast_stats)

OPT = dict(cvvm=1, cvbar=1, prebar=1, lastw=1, slp=0, hn1=11, hsplit=0, hoist=0, cre=0, uov=0, tlbout=0, kdefer=1, flagmid=0, npre=3, nohk=0, hkpos=0, w2sh=1, stchk=1, p4dma=0, p4ev=6, e1dma=0, plate=0, cearly=0, q4=4, hpriv=1, regc=1, hR=320, c4=1, kgrp=3, tlbg=21, cpf=1, sched=3, qa=7, qb=7, tlb=3, outsc=0, x3oob=1, h4early=1, wb0=3, xnb=1, stamps=False, dbgsel=None, w2pf_a=10, w2pf_b=4, nfl=3, early=True, align=True, hlds=True)

WS_FLAG = 0x4000
WS_EPOCH = 0x9000
WS_AOUT = 0x10000
AST = 8448
WS_H = 0x200000
WS_HH = 0x400000
WS_G = 0x600000
WS_DBG = 0x800000
WS_XN = 0xA00000
XCS = 4352
XPS = 2 * XCS
WS_USED = 0x1000000

L_RED0, L_RED1, L_SIG, L_KT = 0, 256, 512, 640
KTCH = 1600
L_U = L_KT + 2 * KTCH
UCH = 4608
L_SCR = L_U + 2 * UCH
SROW = 272
YROW = 41
SCRW = 57 * SROW
L_KC = 82688
KCOPY = 4160
KCH = 8 * KCOPY
L_CP = L_KC
LDS_BYTES = 160 * 1024
L_WA, L_WB = 13056, 78592
L_WC = 123904
L_PART = 1024
PROW = 272
PARTW = 64 * PROW
L_HT = 1024

S_WS, S_X = 4, 8
S_T0, S_T1, S_T2, S_T3 = 12, 16, 20, 24
S_W1, S_W2 = 12, 16
S_W, S_XCD, S_LOC, S_B, S_P, S_J, S_I1, S_I2 = 28, 29, 30, 31, 32, 33, 34, 35
P_X, P_LAR, P_AI, P_CR, P_CI, P_LDT, P_DSK = 36, 38, 40, 42, 44, 46, 48
P_W1, P_B1, P_W2, P_B2, P_OUT, P_DBG, P_WS = 52, 54, 56, 58, 60, 62, 64
S_SA, S_SB = 50, 51
S_RW1, S_RX1, S_RW2, S_RX2 = 38, 39, 40, 41
S_QPF = 42
S_EARLY = 43
S_SC = 44
V_TC = 236
S_TAG, S_SPIN, S_RETRY = 96, 97, 98
V_D1, V_D2, V_TA, V_TB = 224, 228, 244, 248
V_QPF = 232
SPIN_MAX, RETRY_MAX = 4000, 20
AS = ['A0', 'A1', 'A2', 'A3']
BS = ['B0', 'B1', 'B2', 'B3', 'B4']
WSR = f's[{S_WS}:{S_WS+3}]'

assert (gen.S_W, gen.S_B, gen.S_WS) == (S_W, S_B, S_WS)


def stamp(a, idx):
    if not OPT['stamps']:
        return
    sel = OPT['dbgsel']
    if sel is not None:
        if idx not in sel:
            return
        idx = sel.index(idx)
    a.e('s_memrealtime s[100:101]')
    a.e('s_waitcnt lgkmcnt(0)')
    a.e(f'v_writelane_b32 v255, s100, {idx}')


def stamp_clk(a, idx):
    if not OPT['stamps'] or OPT['dbgsel'] is not None:
        return
    a.e('s_memtime s[100:101]')
    a.e('s_waitcnt lgkmcnt(0)')
    a.e(f'v_writelane_b32 v255, s100, {idx}')


def stamp_flush(a):
    if not OPT['stamps']:
        return
    l = a.lab('nost')
    a.e(f's_cmp_lg_u32 s{S_W}, 0')
    a.e(f's_cbranch_scc1 {l}')
    if OPT['dbgsel'] is not None:
        a.e('v_not_b32 v253, v255')
        a.e('v_cmp_eq_u32 vcc, 0, v1')
        a.e('v_cndmask_b32 v255, v255, v253, vcc')
        a.e('v_lshlrev_b32 v254, 2, v1')
        a.e('s_mov_b64 exec, 0xffff')
        a.e(f'global_atomic_umax v254, v255, s[{P_DBG}:{P_DBG+1}]')
        a.e('s_mov_b64 exec, -1')
    else:
        a.e('s_lshl_b32 s66, s2, 8')
        a.e(f's_add_u32 s66, s66, {WS_DBG}')
        a.e('v_lshl_add_u32 v254, v1, 2, s66')
        a.e(f'buffer_store_dword v255, v254, {WSR}, 0 offen')
    a.e(f'{l}:')


def spin_tail(a, lp):
    if OPT['slp']:
        a.e(f's_sleep {OPT["slp"]}')
    a.e(f's_add_u32 s{S_SPIN}, s{S_SPIN}, 1')
    a.e(f's_cmp_lt_u32 s{S_SPIN}, {SPIN_MAX}')
    a.e(f's_cbranch_scc1 {lp}')


def mask_lanes(a, v, n, tmp, src='v1'):
    a.e(f'v_mov_b32 v{tmp}, {OOB}')
    a.e(f'v_cmp_gt_u32 vcc, {n}, {src}')
    a.e(f'v_cndmask_b32 v{v}, v{tmp}, v{v}, vcc')


def prologue(a, lend):
    a.e('s_cmp_ge_u32 s2, 256')
    a.e(f's_cbranch_scc1 {lend}')
    if OPT['stamps']:
        a.e('v_mov_b32 v255, 0')
        stamp(a, 0)
        stamp_clk(a, 60)
    a.e('s_load_dwordx16 s[36:51], s[0:1], 0')
    a.e('s_load_dwordx8 s[52:59], s[0:1], 64')
    a.e('s_load_dwordx4 s[60:63], s[0:1], 96')
    a.e('s_load_dwordx2 s[64:65], s[0:1], 112')
    a.e('v_and_b32 v1, 63, v0')
    a.e('v_lshrrev_b32 v2, 6, v0')
    a.e(f's_and_b32 s{S_XCD}, s2, 7')
    a.e(f'v_readfirstlane_b32 s{S_W}, v2')
    a.e(f's_lshr_b32 s{S_LOC}, s2, 3')
    a.e(f's_lshl_b32 s{S_B}, s{S_XCD}, 5')
    a.e(f's_add_u32 s{S_B}, s{S_B}, s{S_LOC}')
    a.e(f's_mul_i32 s{S_P}, s{S_XCD}, 28')
    a.e(f's_add_u32 s{S_P}, s{S_P}, s{S_LOC}')
    a.e(f's_and_b32 s{S_J}, s{S_XCD}, 1')
    a.e(f's_lshl_b32 s{S_J}, s{S_J}, 2')
    a.e(f's_and_b32 s3, s{S_LOC}, 3')
    a.e(f's_add_u32 s{S_J}, s{S_J}, s3')
    a.e(f's_lshr_b32 s3, s{S_XCD}, 1')
    a.e(f's_lshr_b32 s66, s{S_LOC}, 2')
    a.e(f's_mul_i32 s{S_I1}, s3, 7')
    a.e(f's_add_u32 s{S_I1}, s{S_I1}, s66')
    a.e(f's_lshl_b32 s{S_I2}, s3, 3')
    a.e(f's_add_u32 s{S_I2}, s{S_I2}, s66')
    a.e('s_waitcnt lgkmcnt(0)')
    srd(a, S_X, P_X, XBYTES)
    srd(a, S_WS, P_WS, WS_USED)
    stamp(a, 1)


def xrow_addr(a):
    a.e(f's_mul_i32 s66, s{S_W}, 224')
    a.e(f's_mul_i32 s67, s{S_B}, {8*896}')
    a.e('s_add_u32 s66, s66, s67')
    a.e('v_lshl_add_u32 v2, v1, 2, s66')
    mask_lanes(a, 2, 56, 3)
    a.e('v_add_u32 v3, 4480, v2')


def load_xrows(a):
    xrow_addr(a)
    for j in range(8):
        v, o = (2, j * 896) if j < 5 else (3, (j - 5) * 896)
        a.e(f'buffer_load_dword v{8+j}, v{v}, s[{S_X}:{S_X+3}], 0 offen offset:{o}')


def ln_stats(a, X, T, red, vt, mid=None):
    a.e('s_mov_b32 s66, 0x3f803f80')
    for j in range(8):
        a.e(f'v_dot2_f32_bf16 v{T+j}, v{X[j]}, s66, 0')
        a.e(f'v_dot2_f32_bf16 v{T+8+j}, v{X[j]}, v{X[j]}, 0')
    a.e(f'v_lshlrev_b32 v{vt}, 2, v1')
    a.e(f'v_and_b32 v{vt}, 0xf0, v{vt}')
    a.e(f's_lshl_b32 s66, s{S_W}, 2')
    a.e(f'v_add_u32 v{vt}, s66, v{vt}')
    reduce16(a, [T + i for i in range(16)])
    a.inj_pause()
    a.e('s_mov_b32 exec_lo, 0x11111111')
    a.e('s_mov_b32 exec_hi, 0x11111111')
    a.e(f'ds_write_b32 v{vt}, v{T} offset:{red}')
    a.e('s_mov_b64 exec, -1')
    a.inj_resume()
    a.e(f'v_and_b32 v{vt}, 7, v1')
    a.e(f'v_lshlrev_b32 v{vt}, 4, v{vt}')
    a.e('s_waitcnt lgkmcnt(0)')
    a.e('s_barrier')
    a.e(f'ds_read_b128 v[{T}:{T+3}], v{vt} offset:{red}')
    a.e(f'ds_read_b128 v[{T+4}:{T+7}], v{vt} offset:{red+128}')
    n_mid = mid() if mid else 0
    a.e(f's_waitcnt lgkmcnt({1 + n_mid})')
    a.e(f'v_pk_add_f32 v[{T}:{T+1}], v[{T}:{T+1}], v[{T+2}:{T+3}]')
    a.e(f's_waitcnt lgkmcnt({n_mid})')
    a.e(f'v_pk_add_f32 v[{T+4}:{T+5}], v[{T+4}:{T+5}], v[{T+6}:{T+7}]')
    a.e(f'v_add_f32 v{T}, v{T}, v{T+1}')
    a.e(f'v_add_f32 v{T+4}, v{T+4}, v{T+5}')
    a.e(f'v_mul_f32 v{T}, {fx(1.0/448)}, v{T}')
    a.e(f'v_mul_f32 v{T+4}, {fx(1.0/448)}, v{T+4}')
    a.e(f'v_fma_f32 v{T+4}, -v{T}, v{T}, v{T+4}')
    a.e(f'v_max_f32 v{T+4}, 0, v{T+4}')
    a.e(f'v_cvt_pk_bf16_f32 v{T+4}, v{T+4}, v{T+4}')
    a.e(f'v_lshlrev_b32 v{T+4}, 16, v{T+4}')
    a.e(f'v_add_f32 v{T+4}, {fx(1e-5)}, v{T+4}')
    a.e(f'v_cvt_pk_bf16_f32 v{T+4}, v{T+4}, v{T+4}')
    a.e(f'v_lshlrev_b32 v{T+4}, 16, v{T+4}')
    a.e(f'v_sqrt_f32 v{T+4}, v{T+4}')
    a.e(f'v_cvt_pk_bf16_f32 v{T}, v{T}, v{T+4}')


def poison_regs(a):
    for r in range(216, 220):
        a.e(f'v_mov_b32 v{r}, -1')


def clear_hh(a):
    if OPT['hoist']:
        a.e(f'buffer_store_dwordx4 v[216:219], v184, {WSR}, 0 offen sc1')
        a.e(f'buffer_store_dwordx4 v[216:219], v185, {WSR}, 0 offen sc1')
        return
    a.e(f's_mul_i32 s66, s{S_B}, 7168')
    a.e(f's_add_u32 s66, s66, {WS_HH}')
    a.e('v_lshl_add_u32 v4, v0, 4, s66')
    a.e('v_add_u32 v5, 4096, v4')
    mask_lanes(a, 5, 192, 6, 'v0')
    a.e(f'buffer_store_dwordx4 v[216:219], v4, {WSR}, 0 offen sc1')
    a.e(f'buffer_store_dwordx4 v[216:219], v5, {WSR}, 0 offen sc1')


def clear_aout(a):
    if OPT['hoist']:
        a.e(f'buffer_store_dwordx4 v[216:219], v186, {WSR}, 0 offen sc1')
        a.e(f'buffer_store_dwordx4 v[216:219], v187, {WSR}, 0 offen sc1')
        return
    a.e(f's_mul_i32 s66, s{S_P}, {AST}')
    a.e(f's_add_u32 s66, s66, {WS_AOUT}')
    a.e('v_lshl_add_u32 v4, v0, 4, s66')
    a.e('v_add_u32 v5, 4096, v4')
    a.e(f'buffer_store_dwordx4 v[216:219], v4, {WSR}, 0 offen sc1')
    a.e(f'buffer_store_dwordx4 v[216:219], v5, {WSR}, 0 offen sc1')


def g_store_addr(a, vd):
    a.e(f's_lshl_b32 s66, s{S_I1}, 3')
    a.e(f's_lshl_b32 s70, s{S_W}, 1')
    a.e('s_add_u32 s66, s66, s70')
    a.e('s_mul_i32 s66, s66, 7168')
    a.e(f's_mul_i32 s70, s{S_J}, 896')
    a.e('s_add_u32 s66, s66, s70')
    a.e(f's_add_u32 s66, s66, {WS_G}')
    a.e(f'v_lshl_add_u32 v{vd}, v1, 4, s66')
    mask_lanes(a, vd, 56, 6)


def clear_g(a):
    if OPT['hoist']:
        a.e('v_add_u32 v5, 7168, v240')
        a.e(f'buffer_store_dwordx4 v[216:219], v240, {WSR}, 0 offen sc1')
        a.e(f'buffer_store_dwordx4 v[216:219], v5, {WSR}, 0 offen sc1')
        return
    g_store_addr(a, 4)
    a.e('v_add_u32 v5, 7168, v4')
    a.e(f'buffer_store_dwordx4 v[216:219], v4, {WSR}, 0 offen sc1')
    a.e(f'buffer_store_dwordx4 v[216:219], v5, {WSR}, 0 offen sc1')


def publish_xn(a):
    bcast_stats(a, 16)
    for j in range(8):
        d = 64 + 2 * j
        t = 48 + j
        a.e(f'v_lshlrev_b32 v{d}, 16, v{8+j}')
        a.e(f'v_and_b32 v{d+1}, 0xffff0000, v{8+j}')
        a.e(f'v_pk_add_f32 v[{d}:{d+1}], v[{d}:{d+1}], s[{72+2*j}:{73+2*j}] op_sel:[0,0] op_sel_hi:[1,0] neg_lo:[0,1] neg_hi:[0,1]')
        a.e(f'v_cvt_pk_bf16_f32 v{t}, v{d}, v{d+1}')
        a.e(f'v_lshlrev_b32 v{d}, 16, v{t}')
        a.e(f'v_and_b32 v{d+1}, 0xffff0000, v{t}')
        a.e(f'v_pk_mul_f32 v[{d}:{d+1}], v[{d}:{d+1}], s[{72+2*j}:{73+2*j}] op_sel:[0,1] op_sel_hi:[1,1]')
        a.e(f'v_cvt_pk_bf16_f32 v{t}, v{d}, v{d+1}')
        a.e(f'v_lshlrev_b32 v{d}, 16, v{t}')
        a.e(f'v_and_b32 v{d+1}, 0xffff0000, v{t}')
    for i in range(4):
        a.e(f'v_cvt_pk_f16_f32 v{80+i}, v{64+4*i}, v{66+4*i}')
        a.e(f'v_cvt_pk_f16_f32 v{84+i}, v{65+4*i}, v{67+4*i}')
    if OPT['hoist']:
        assert OPT['xnb']
        a.e(f'buffer_store_dwordx4 v[80:83], v188, {WSR}, 0 offen sc1')
        a.e(f'buffer_store_dwordx4 v[84:87], v189, {WSR}, 0 offen sc1')
        return
    if OPT['xnb']:
        a.e(f's_mul_i32 s66, s{S_W}, {56*16}')
        a.e(f's_mul_i32 s67, s{S_B}, 7168')
        a.e('s_add_u32 s66, s66, s67')
        a.e(f's_add_u32 s66, s66, {WS_XN}')
        a.e('v_lshl_add_u32 v4, v1, 4, s66')
        mask_lanes(a, 4, 56, 5)
        a.e('v_add_u32 v5, 3584, v4')
    else:
        a.e(f's_mul_i32 s66, s{S_W}, {56*XPS}')
        a.e(f's_lshl_b32 s67, s{S_B}, 4')
        a.e('s_add_u32 s66, s66, s67')
        a.e(f's_add_u32 s66, s66, {WS_XN}')
        a.e(f'v_mul_u32_u24 v4, {XPS}, v1')
        a.e('v_add_u32 v4, s66, v4')
        mask_lanes(a, 4, 56, 5)
        a.e(f'v_add_u32 v5, {XCS}, v4')
    a.e(f'buffer_store_dwordx4 v[80:83], v4, {WSR}, 0 offen sc1')
    a.e(f'buffer_store_dwordx4 v[84:87], v5, {WSR}, 0 offen sc1')


def publish_flag(a, vm=0):
    a.e(f's_waitcnt vmcnt({vm})')
    a.e('s_barrier')
    l = a.lab('noflag')
    a.e(f's_cmp_lg_u32 s{S_W}, 0')
    a.e(f's_cbranch_scc1 {l}')
    a.e(f's_lshl_b32 s66, s{S_B}, 6')
    a.e(f's_add_u32 s66, s66, {WS_FLAG}')
    a.e('v_mov_b32 v2, s66')
    a.e(f'v_mov_b32 v3, s{S_TAG}')
    a.e('s_mov_b64 exec, 1')
    a.e(f'buffer_store_dword v3, v2, {WSR}, 0 offen sc1')
    a.e('s_mov_b64 exec, -1')
    a.e(f'{l}:')


V_FA, V_FV = 233, 234


def flag_addr(a):
    a.e(f'v_lshlrev_b32 v{V_FA}, 6, v0')
    a.e(f'v_add_u32 v{V_FA}, {WS_FLAG}, v{V_FA}')


def flag_load(a):
    a.e(f'buffer_load_dword v{V_FV}, v{V_FA}, {WSR}, 0 offen sc1')


def flag_poll(a):
    lp, ld = a.lab('fpoll'), a.lab('fdone')
    a.e(f's_mov_b32 s{S_SPIN}, 0')
    a.e(f'{lp}:')
    flag_load(a)
    a.e('s_waitcnt vmcnt(0)')
    a.e(f'v_cmp_ne_u32 vcc, s{S_TAG}, v{V_FV}')
    a.e(f's_cbranch_vccz {ld}')
    spin_tail(a, lp)
    a.e(f'{ld}:')


def load_u(a):
    if OPT['hoist']:
        a.e(f'buffer_load_dwordx4 v[176:179], v190, {WSR}, 0 offen sc1')
        a.e(f'buffer_load_dwordx4 v[180:183], v191, {WSR}, 0 offen sc1')
        return
    if OPT['xnb']:
        a.e(f's_lshl_b32 s66, s{S_P}, 4')
        a.e(f's_add_u32 s66, s66, {WS_XN}')
        a.e('v_mul_u32_u24 v2, 7168, v0')
        a.e('v_add_u32 v2, s66, v2')
        a.e('v_add_u32 v3, 3584, v2')
    else:
        a.e(f's_mul_i32 s66, s{S_P}, {XPS}')
        a.e(f's_add_u32 s66, s66, {WS_XN}')
        a.e('v_lshl_add_u32 v2, v0, 4, s66')
        a.e(f'v_add_u32 v3, {XCS}, v2')
    a.e(f'buffer_load_dwordx4 v[176:179], v2, {WSR}, 0 offen sc1')
    a.e(f'buffer_load_dwordx4 v[180:183], v3, {WSR}, 0 offen sc1')


def epoch_update(a):
    le = a.lab('noep')
    a.e('s_cmp_lg_u32 s2, 0')
    a.e(f's_cbranch_scc1 {le}')
    a.e(f'v_mov_b32 v2, {WS_EPOCH}')
    a.e(f'v_mov_b32 v3, s{S_TAG}')
    a.e('s_mov_b64 exec, 1')
    a.e(f'buffer_store_dword v3, v2, {WSR}, 0 offen sc1')
    a.e('s_mov_b64 exec, -1')
    a.e(f'{le}:')


def code_prefetch(a, lstart, lend_):
    lp = a.lab('pcp')
    a.e('s_getpc_b64 s[74:75]')
    a.e(f'{lp}:')
    a.e(f's_sub_u32 s74, s74, {lp}-{lstart}')
    a.e('s_subb_u32 s75, s75, 0')
    a.e('v_lshlrev_b32 v4, 6, v0')
    a.e(f's_mov_b32 s76, {lend_}-{lstart}-4')
    a.e('v_add_u32 v5, 16384, v4')
    a.e('v_add_u32 v6, 32768, v4')
    a.e('v_min_u32 v4, s76, v4')
    a.e('v_min_u32 v5, s76, v5')
    a.e('v_min_u32 v6, s76, v6')
    a.e('global_load_dword v220, v4, s[74:75]')
    a.e('global_load_dword v220, v5, s[74:75]')
    a.e('global_load_dword v220, v6, s[74:75]')


def code_prefetch1(a, lstart, lend_):
    lp = a.lab('pcp')
    a.e('s_getpc_b64 s[74:75]')
    a.e(f'{lp}:')
    a.e('v_lshlrev_b32 v4, 6, v0')
    a.e(f's_mov_b32 s76, {lend_}-{lp}-4')
    a.e('v_min_u32 v4, s76, v4')
    a.e('global_load_dword v220, v4, s[74:75]')


def tlb_touch(a):
    g = OPT['tlbg']
    n = 0
    srd(a, S_T2, P_OUT, XBYTES)
    srd(a, S_T3, P_B2, L * 2)
    if g == 21:
        a.e('v_lshlrev_b32 v4, 21, v1')
        a.e('s_mov_b32 s70, 0x1f8000')
        for s_ in (S_W1, S_W2, S_WS, S_T2, S_T3) if OPT['tlbout'] else (S_W1, S_W2, S_WS, S_T3):
            a.e(f'buffer_load_dword v220, v4, s[{s_}:{s_+3}], {"s70" if s_ == S_WS else 0} offen')
            n += 1
    else:
        a.e(f'v_lshlrev_b32 v4, {g}, v0')
        for s_, nbytes in ((S_W1, W1BYTES), (S_W2, W2BYTES), (S_WS, 0xC00000), (S_T2, XBYTES), (S_T3, 4096)):
            for k in range(-(-nbytes // (256 << g))):
                a.e(f's_mov_b32 s70, {k * (256 << g)}')
                a.e(f'buffer_load_dword v220, v4, s[{s_}:{s_+3}], s70 offen')
                n += 1
    return n


def hoist_common(a):
    a.e(f's_mul_i32 s66, s{S_B}, 7168')
    a.e(f's_add_u32 s66, s66, {WS_HH}')
    a.e('v_lshl_add_u32 v184, v0, 4, s66')
    a.e('v_add_u32 v185, 4096, v184')
    mask_lanes(a, 185, 192, 6, 'v0')
    a.e(f's_mul_i32 s66, s{S_W}, {56*16}')
    a.e(f's_mul_i32 s67, s{S_B}, 7168')
    a.e('s_add_u32 s66, s66, s67')
    a.e(f's_add_u32 s66, s66, {WS_XN}')
    a.e('v_lshl_add_u32 v188, v1, 4, s66')
    mask_lanes(a, 188, 56, 5)
    a.e('v_add_u32 v189, 3584, v188')
    a.e('v_and_b32 v4, 15, v1')
    a.e(f'v_mul_u32_u24 v4, {PROW}, v4')
    a.e('v_lshrrev_b32 v5, 4, v1')
    a.e('v_lshl_add_u32 v4, v5, 4, v4')
    a.e(f's_mul_i32 s66, s{S_W}, {PARTW}')
    a.e(f's_add_u32 s66, s66, {L_PART}')
    a.e('v_add_u32 v241, s66, v4')
    a.e(f'v_mul_u32_u24 v5, {PROW}, v1')
    a.e(f's_lshl_b32 s66, s{S_W}, 6')
    a.e(f's_add_u32 s66, s66, {L_PART}')
    a.e('v_add_u32 v242, s66, v5')
    a.e('v_lshrrev_b32 v5, 3, v1')
    a.e('v_and_b32 v4, 7, v1')
    a.e(f's_lshl_b32 s66, s{S_W}, 4')
    a.e('v_add_u32 v5, s66, v5')
    a.e(f'v_mul_u32_u24 v6, {PROW}, v5')
    a.e('v_lshl_add_u32 v6, v4, 4, v6')
    a.e(f'v_add_u32 v243, {L_PART}, v6')
    g_store_addr(a, 240)
    a.e(f's_mul_i32 s67, s{S_B}, 7168')
    a.e(f's_mul_i32 s66, s{S_W}, 1792')
    a.e('s_add_u32 s66, s66, s67')
    a.e(f's_add_u32 s66, s66, {WS_HH}')
    a.e('v_lshl_add_u32 v213, v1, 4, s66')
    a.e('v_add_u32 v5, 448, v213')
    a.e('v_cmp_gt_u32 vcc, 28, v1')
    a.e('v_cndmask_b32 v213, v5, v213, vcc')
    mask_lanes(a, 213, 56, 5)


def hoist_conv(a):
    a.e(f's_mul_i32 s66, s{S_P}, {AST}')
    a.e(f's_add_u32 s66, s66, {WS_AOUT}')
    a.e('v_lshl_add_u32 v186, v0, 4, s66')
    a.e('v_add_u32 v187, 4096, v186')
    a.e(f's_lshl_b32 s66, s{S_P}, 4')
    a.e(f's_add_u32 s66, s66, {WS_XN}')
    a.e('v_mul_u32_u24 v190, 7168, v0')
    a.e('v_add_u32 v190, s66, v190')
    a.e('v_add_u32 v191, 3584, v190')
    conv_addr(a, 192, 193)
    CP, TS = L_CP, 1280
    a.e('v_and_b32 v3, 15, v1')
    a.e('v_lshlrev_b32 v2, 4, v3')
    a.e('v_lshrrev_b32 v3, 4, v1')
    a.e('v_mul_u32_u24 v3, 320, v3')
    a.e('v_add_u32 v2, v2, v3')
    a.e(f's_mul_i32 s70, s{S_W}, {8*TS}')
    a.e(f's_add_u32 s70, s70, {CP}')
    a.e('v_add_u32 v194, s70, v2')
    a.e('v_lshrrev_b32 v3, 2, v1')
    a.e('v_lshlrev_b32 v2, 4, v3')
    a.e('v_and_b32 v3, 3, v1')
    a.e('v_mul_u32_u24 v3, 320, v3')
    a.e('v_add_u32 v2, v2, v3')
    a.e(f's_lshl_b32 s70, s{S_W}, 1')
    a.e(f's_mul_i32 s71, s70, {TS}')
    a.e(f's_add_u32 s71, s71, {CP}')
    a.e('v_add_u32 v195, s71, v2')
    a.e('s_lshl_b32 s71, s70, 9')
    a.e(f's_add_u32 s71, s71, {L_U + 512}')
    a.e('v_lshl_add_u32 v206, v1, 3, s71')
    a.e(f's_mul_i32 s71, s{S_P}, {AST}')
    a.e('s_lshl_b32 s72, s70, 10')
    a.e('s_add_u32 s71, s71, s72')
    a.e(f's_add_u32 s71, s71, {WS_AOUT}')
    a.e('v_lshl_add_u32 v207, v1, 4, s71')


def kgen_loads(a, part=None):
    R = (S_T0, S_T1, S_T2, S_T3) if part is None else (72, 76, 80, 84)
    if part != 'issue':
        for r, p in zip(R, (P_LAR, P_AI, P_CR, P_CI)):
            srd(a, r, p, PBYTES)
        a.e(f's_lshl_b32 s66, s{S_P}, 10')
        a.e(f's_lshl_b32 s67, s{S_W}, 7')
        a.e('s_add_u32 s66, s66, s67')
        a.e('v_lshl_add_u32 v235, v1, 1, s66')
        a.e(f's_lshl_b32 s66, s{S_P}, 2')
        a.e(f's_load_dword s68, s[{P_LDT}:{P_LDT+1}], s66')
        a.e(f's_load_dword s69, s[{P_DSK}:{P_DSK+1}], s66')
    if part != 'setup':
        for c in range(2):
            for k, s in enumerate(R):
                a.e(f'buffer_load_ushort v{40+4*c+k}, v235, s[{s}:{s+3}], 0 offen offset:{512*c}')


def load_gather_table(a, tablabel):
    lp = a.lab('pc')
    a.e('s_getpc_b64 s[70:71]')
    a.e(f'{lp}:')
    a.e(f's_add_u32 s70, s70, {tablabel}-{lp}')
    a.e('s_addc_u32 s71, s71, 0')
    a.e('v_lshlrev_b32 v2, 5, v0')
    a.e('global_load_dwordx4 v[160:163], v2, s[70:71]')
    a.e('global_load_dwordx4 v[164:167], v2, s[70:71] offset:16')


DK0, DK1 = 16, 28


def kgen_channel(a, c, DACC, mid=None, mid_m0=True, after_setup=None, defer=False):
    LAR, AI, CR, CI = 40 + 4 * c, 41 + 4 * c, 42 + 4 * c, 43 + 4 * c
    SIG, DT = 52 + c, 54 + c
    AL, BE = 56, 57
    Z1, Z2, Z4, Z8, Z128, Z256, Z512, Z1024 = 58, 60, 62, 64, 66, 68, 70, 72
    X0, CA, CB, CC, T0, T1 = 74, 76, 78, 80, 82, 84
    CV = [86, 87, 88, 89]
    VW, VR = 90, 91
    t, t2 = 92, 93
    for r in (LAR, AI, CR, CI):
        a.e(f'v_lshlrev_b32 v{r}, 16, v{r}')
    a.e('s_lshl_b32 s66, s68, 16' if c == 0 else 's_and_b32 s66, s68, 0xffff0000')
    a.e(f'v_mov_b32 v{t2}, s66')
    exp_bf16(a, DT, t2, t)
    a.e(f'v_add_f32 v{SIG}, abs(v{CR}), abs(v{CI})')
    exp_bf16(a, AL, LAR, t)
    a.e(f'v_add_f32_dpp v{SIG}, v{SIG}, v{SIG} quad_perm:[1,0,3,2] row_mask:0xf bank_mask:0xf')
    a.e(f'v_mul_f32 v{AL}, v{AL}, v{DT}')
    a.e(f'v_mul_f32 v{BE}, v{AI}, v{DT}')
    a.e(f'v_add_f32_dpp v{SIG}, v{SIG}, v{SIG} quad_perm:[2,3,0,1] row_mask:0xf bank_mask:0xf')
    a.e(f'v_mul_f32 v{AL}, {fx(-1.4426950408889634)}, v{AL}')
    a.e(f'v_mul_f32 v{BE}, {fx(0.15915494309189535)}, v{BE}')
    a.e(f'v_add_f32_dpp v{SIG}, v{SIG}, v{SIG} row_half_mirror row_mask:0xf bank_mask:0xf')
    a.e(f'v_exp_f32 v{T0}, v{AL}')
    a.e(f'v_fract_f32 v{t}, v{BE}')
    a.e(f'v_add_f32_dpp v{SIG}, v{SIG}, v{SIG} row_ror:8 row_mask:0xf bank_mask:0xf')
    a.e(f'v_cos_f32 v{Z1}, v{t}')
    a.e(f'v_sin_f32 v{Z1+1}, v{t}')
    a.e(f'v_mov_b32 v{t2}, v{SIG}')
    a.e(f'v_mul_f32 v{T1}, 0x43000000, v{AL}')
    a.e(f'v_mul_f32 v{t}, 0x43000000, v{BE}')
    a.e(f'v_permlane16_swap_b32 v{SIG}, v{t2}')
    a.e(f'v_pk_mul_f32 v[{Z1}:{Z1+1}], v[{Z1}:{Z1+1}], v[{T0}:{T0+1}] op_sel:[0,0] op_sel_hi:[1,0]')
    a.e(f'v_add_f32 v{SIG}, v{SIG}, v{t2}')
    a.e(f'v_exp_f32 v{T1}, v{T1}')
    a.e(f'v_fract_f32 v{t}, v{t}')
    a.e(f'v_mov_b32 v{t2}, v{SIG}')
    a.e(f'v_cos_f32 v{Z128}, v{t}')
    a.e(f'v_sin_f32 v{Z128+1}, v{t}')
    a.e(f'v_permlane32_swap_b32 v{SIG}, v{t2}')
    cmul(a, Z2, Z1, Z1, Z2)
    a.e(f'v_add_f32 v{SIG}, v{SIG}, v{t2}')
    a.e(f'v_pk_mul_f32 v[{Z128}:{Z128+1}], v[{Z128}:{Z128+1}], v[{T1}:{T1+1}] op_sel:[0,0] op_sel_hi:[1,0]')
    a.e(f'v_add_f32 v{SIG}, {fx(1e-30)}, v{SIG}')
    cmul(a, Z4, Z2, Z2, Z4)
    a.e(f'v_rcp_f32 v{t}, v{SIG}')
    cmul(a, Z256, Z128, Z128, Z256)
    cmul(a, Z8, Z4, Z4, Z8)
    a.e(f'v_mul_f32 v{X0}, v{CR}, v{t}')
    a.e(f'v_mul_f32 v{X0+1}, v{CI}, v{t}')
    cmul(a, Z512, Z256, Z256, Z512)
    a.e(f's_mul_i32 s66, s{S_W}, {SCRW}')
    a.e(f's_add_u32 s66, s66, {L_SCR}')
    a.e('s_mov_b32 m0, s66')
    cmul(a, Z1024, Z512, Z512, Z1024)
    a.e(f'v_and_b32 v{t}, 15, v1')
    a.e(f'v_mul_u32_u24 v{t}, {SROW}, v{t}')
    a.e(f'v_lshrrev_b32 v{t2}, 4, v1')
    a.e(f'v_lshl_add_u32 v{t}, v{t2}, 4, v{t}')
    a.e(f'v_add_u32 v{VR}, s66, v{t}')
    cvi = [0]
    pend = []

    def flush(keep):
        while len(pend) > keep:
            cv, off = pend.pop(0)
            a.e(f'ds_write_addtid_b32 v{cv} offset:{off}')

    G = OPT['kgrp']
    if G > 1:
        CV = list(range(96, 112))
        if OPT['kdefer']:
            CV = list(range(168, 176))
    if after_setup is not None:
        after_setup()

    def put(off, r, neg):
        cv = CV[cvi[0] % len(CV)]
        cvi[0] += 1
        a.e(f'v_cvt_pk_f16_f32 v{cv}, v{r}, {"-" if neg else ""}v{r+1}')
        if G > 1:
            pend.append((cv, off))
            if len(pend) >= G + 1:
                flush(1)
        else:
            flush(1)
            pend.append((cv, off))

    def putX(row, r):
        put(row * SROW, r, True)

    def putY(b, r):
        put((YROW + b) * SROW, r, False)

    a.e(f'v_mov_b32 v{VW}, 0x00003c00')
    pend.append((VW, YROW * SROW))
    putY(1, Z8)
    ychain = {'cur': Z8, 'b': 1}
    YA, YB = CC, 94

    def ystep():
        if ychain['b'] >= 15:
            return
        d = YA if ychain['cur'] != YA else YB
        cmul(a, d, ychain['cur'], Z8, d)
        ychain['b'] += 1
        ychain['cur'] = d
        putY(ychain['b'], d)

    putX(0, X0)
    cmul(a, T0, X0, Z128, T0)
    putX(8, T0)
    cur = X0
    for j in range(1, 8):
        d = CA if cur != CA else CB
        cmul(a, d, cur, Z1, d)
        ystep()
        putX(j, d)
        cmul(a, T0, d, Z128, T0)
        putX(8 + j, T0)
        cur = d
    cmul(a, CA, X0, Z256, CA)
    ystep()
    putX(16, CA)
    cmul(a, T0, CA, Z128, T0)
    putX(20, T0)
    cur = CA
    for j in range(1, 4):
        d = CA if cur != CA else CB
        cmul(a, d, cur, Z2, d)
        ystep()
        putX(16 + j, d)
        cmul(a, T0, d, Z128, T0)
        putX(20 + j, T0)
        cur = d
    if mid is not None:
        if mid_m0:
            flush(0)
        mid()
        if mid_m0:
            a.e(f's_mul_i32 s66, s{S_W}, {SCRW}')
            a.e(f's_add_u32 s66, s66, {L_SCR}')
            a.e('s_mov_b32 m0, s66')
    cmul(a, CA, X0, Z512, CA)
    ystep()
    putX(24, CA)
    cmul(a, CB, CA, Z4, CB)
    ystep()
    putX(25, CB)
    pa, pb = CA, CB
    na, nb = T0, T1
    for q in range(1, 4):
        cmul(a, na, pa, Z128, na)
        cmul(a, nb, pb, Z128, nb)
        ystep()
        putX(24 + 2 * q, na)
        putX(25 + 2 * q, nb)
        pa, pb, na, nb = na, nb, pa, pb
    cmul(a, CA, X0, Z1024, CA)
    putX(32, CA)
    cur = CA
    for q in range(1, 9):
        d = CA if cur != CA else CB
        cmul(a, d, cur, Z128, d)
        putX(32 + q, d)
        cur = d
    while ychain['b'] < 15:
        ystep()
    flush(0)
    FA = 96
    for k in range(4):
        a.e(f'ds_read_b128 v[{144+4*k}:{147+4*k}], v{VR} offset:{YROW*SROW+64*k}')
        for T in range(3):
            r = FA + 16 * T + 4 * k
            a.e(f'ds_read_b128 v[{r}:{r+3}], v{VR} offset:{16*T*SROW+64*k}')
    def mfmas(waits=True):
        for k in range(4):
            if waits:
                a.e(f's_waitcnt lgkmcnt({4*(3-k)})')
            elif k == 0:
                a.e('s_waitcnt lgkmcnt(0)')
            for T in range(3):
                r = FA + 16 * T + 4 * k
                cc = '0' if k == 0 else f'v[{DACC+4*T}:{DACC+4*T+3}]'
                a.e(f'v_mfma_f32_16x16x32_f16 v[{DACC+4*T}:{DACC+4*T+3}], v[{r}:{r+3}], v[{144+4*k}:{147+4*k}], {cc}')

    if defer:
        return lambda: mfmas(waits=False)
    mfmas()


def ktab_part1(a):
    a.e(f's_mul_i32 s66, s{S_W}, {SCRW}')
    a.e(f's_add_u32 s66, s66, {L_SCR}')
    a.e('v_lshl_add_u32 v90, v1, 4, s66')
    a.e(f's_lshl_b32 s67, s{S_W}, 2')
    a.e(f's_add_u32 s67, s67, {L_SIG}')
    a.e('v_mov_b32 v91, s67')
    a.e('s_mov_b64 exec, 1')
    a.e('ds_write_b32 v91, v52')
    a.e('ds_write_b32 v91, v53 offset:16')
    a.e('s_mov_b64 exec, -1')
    for c, DK in ((0, DK0), (1, DK1)):
        for T in range(3):
            for h in range(2):
                i = DK + 4 * T + 2 * h
                a.e(f'v_pk_mul_f32 v[{i}:{i+1}], v[{i}:{i+1}], v[52:53] op_sel:[0,{c}] op_sel_hi:[1,{c}]')
            a.e(f'ds_write_b128 v90, v[{DK+4*T}:{DK+4*T+3}] offset:{c*3072+T*1024}')
    a.e('v_mov_b32 v96, 0')
    a.e('v_mov_b32 v97, 0')
    a.e('v_mov_b32 v98, 0')
    a.e('v_mov_b32 v99, 0')
    a.e(f'v_mov_b32 v92, {L_KT + 1536}')
    a.e('ds_write_b32 v92, v96')
    a.e(f'ds_write_b32 v92, v96 offset:{KTCH}')
    a.e('v_lshlrev_b32 v92, 3, v1')
    a.e(f'ds_write_b64 v92, v[96:97] offset:{L_U}')
    a.e(f'ds_write_b64 v92, v[96:97] offset:{L_U + UCH}')
    a.e('s_waitcnt lgkmcnt(0)')
    a.e('s_barrier')


def ktab_part2(a, mid=None):
    a.e(f'v_mov_b32 v91, {L_SIG}')
    a.e('ds_read_b128 v[44:47], v91')
    a.e('ds_read_b128 v[48:51], v91 offset:16')
    a.e(f's_and_b32 s67, s{S_W}, 1')
    a.e(f's_lshr_b32 s70, s{S_W}, 1')
    a.e('s_mul_i32 s71, s67, 3072')
    a.e('s_lshl_b32 s72, s70, 10')
    a.e('s_add_u32 s72, s72, s71')
    a.e(f's_add_u32 s72, s72, {L_SCR}')
    a.e(f's_add_u32 s71, s71, {L_SCR + 2048}')
    a.e('v_lshl_add_u32 v90, v1, 4, s72')
    a.e('v_lshl_add_u32 v91, v1, 4, s71')
    for wv in range(4):
        a.e(f'ds_read_b128 v[{96+4*wv}:{99+4*wv}], v90 offset:{wv*SCRW}')
    for wv in range(4):
        a.e(f'ds_read_b128 v[{112+4*wv}:{115+4*wv}], v91 offset:{wv*SCRW}')
    a.e('v_mov_b32 v128, 0')
    a.e('v_mov_b32 v129, 0')
    a.e('v_mov_b32 v130, 0')
    a.e('v_mov_b32 v131, 0')
    if OPT['c4']:
        a.e('v_and_b32 v132, 7, v1')
        a.e(f'v_mul_u32_u24 v132, {KCOPY}, v132')
        a.e('v_bfe_u32 v133, v1, 3, 1')
        a.e('v_lshl_add_u32 v132, v133, 4, v132')
    else:
        a.e('v_and_b32 v132, 15, v1')
        a.e(f'v_mul_u32_u24 v132, {KCOPY}, v132')
    a.e(f'v_add_u32 v132, {L_KC}, v132')
    a.e('ds_write_b128 v132, v[128:131] offset:4096')
    a.e('v_lshrrev_b32 v92, 4, v1')
    a.e('v_lshlrev_b32 v92, 7, v92')
    a.e('v_and_b32 v93, 15, v1')
    a.e('v_lshl_add_u32 v92, v93, 1, v92')
    a.e(f's_mul_i32 s71, s67, {KTCH}')
    a.e(f's_add_u32 s71, s71, {L_KT}')
    a.e('v_add_u32 v93, s71, v92')
    a.e('s_lshl_b32 s72, s70, 9')
    a.e('v_add_u32 v92, s72, v93')
    if mid is not None:
        mid()
    a.e('s_waitcnt lgkmcnt(9)')
    a.e('v_pk_add_f32 v[44:45], v[44:45], v[46:47]')
    a.e('v_pk_add_f32 v[48:49], v[48:49], v[50:51]')
    a.e('v_add_f32 v44, v44, v45')
    a.e('v_add_f32 v45, v48, v49')
    a.e('s_cmp_eq_u32 s67, 0')
    a.e('s_cselect_b64 vcc, -1, 0')
    a.e('v_pk_mul_f32 v[54:55], v[54:55], v[44:45]')
    a.e('v_cndmask_b32 v46, v45, v44, vcc')
    a.e('v_pk_add_f32 v[54:55], v[54:55], v[54:55]')
    a.e('v_rcp_f32 v46, v46')
    for jb, (base, va, off) in enumerate(((96, 92, 0), (112, 93, 1024))):
        a.e(f's_waitcnt lgkmcnt({5 if jb == 0 else 5})')
        for h in range(2):
            a.e(f'v_pk_add_f32 v[{base+2*h}:{base+2*h+1}], v[{base+2*h}:{base+2*h+1}], v[{base+4+2*h}:{base+5+2*h}]')
            a.e(f'v_pk_add_f32 v[{base+8+2*h}:{base+9+2*h}], v[{base+8+2*h}:{base+9+2*h}], v[{base+12+2*h}:{base+13+2*h}]')
        for h in range(2):
            a.e(f'v_pk_add_f32 v[{base+2*h}:{base+2*h+1}], v[{base+2*h}:{base+2*h+1}], v[{base+8+2*h}:{base+9+2*h}]')
        for h in range(2):
            a.e(f'v_pk_mul_f32 v[{base+2*h}:{base+2*h+1}], v[{base+2*h}:{base+2*h+1}], v[46:47] op_sel:[0,0] op_sel_hi:[1,0]')
        a.e(f'v_cvt_pk_f16_f32 v{base+4}, v{base}, v{base+1}')
        a.e(f'v_cvt_pk_f16_f32 v{base+5}, v{base+2}, v{base+3}')
        a.e(f'ds_write_b16 v{va}, v{base+4} offset:{off}')
        a.e(f'ds_write_b16_d16_hi v{va}, v{base+4} offset:{off+32}')
        a.e(f'ds_write_b16 v{va}, v{base+5} offset:{off+64}')
        a.e(f'ds_write_b16_d16_hi v{va}, v{base+5} offset:{off+96}')
    for e in range(11 if OPT['c4'] else 15):
        src = 160 + e // 2
        if e % 2 == 0:
            a.e(f'v_and_b32 v{136+e}, 0xffff, v{src}')
        else:
            a.e(f'v_lshrrev_b32 v{136+e}, 16, v{src}')
    a.e('s_waitcnt lgkmcnt(0)')
    a.e('s_barrier')


def kch():
    return (4 if OPT['c4'] else 8) * KCOPY


def kcopies(a):
    AD = 136
    a.e('v_lshlrev_b32 v111, 4, v0')
    a.e(f'v_add_u32 v111, {L_KC}, v111')
    RR = [96, 112]
    if OPT['c4']:
        for c in range(2):
            for e in range(11):
                a.e(f'ds_read_u16 v{RR[c]+e}, v{AD+e} offset:{L_KT + c*KTCH}')
        for c in range(2):
            R = RR[c]
            Da, Db, Oa, Ob = (56, 60, 64, 68) if c == 0 else (16, 20, 24, 28)
            a.e(f's_waitcnt lgkmcnt({11 if c == 0 else 4})')
            for i in range(4):
                a.e(f'v_lshl_or_b32 v{Da+i}, v{R+2*i+1}, 16, v{R+2*i}')
                a.e(f'v_lshl_or_b32 v{Oa+i}, v{R+2*i+2}, 16, v{R+2*i+1}')
                a.e(f'v_lshl_or_b32 v{Db+i}, v{R+2*i+3}, 16, v{R+2*i+2}')
                a.e(f'v_lshl_or_b32 v{Ob+i}, v{R+2*i+4}, 16, v{R+2*i+3}')
            for s_, r in ((0, Da), (1, Oa), (2, Db), (3, Ob)):
                a.e(f'ds_write_b128 v111, v[{r}:{r+3}] offset:{c*kch() + s_*KCOPY}')
        return
    for c in range(2):
        for e in range(15):
            a.e(f'ds_read_u16 v{RR[c]+e}, v{AD+e} offset:{L_KT + c*KTCH}')
    for c in range(2):
        R = RR[c]
        Da, Db, Oa, Ob = 56 + 0, 64, 72, 80
        if c == 1:
            Da, Db, Oa, Ob = 16, 24, 32, 40
        a.e(f's_waitcnt lgkmcnt({15 if c == 0 else 8})')
        for i in range(6):
            a.e(f'v_lshl_or_b32 v{Da+i}, v{R+2*i+1}, 16, v{R+2*i}')
            a.e(f'v_lshl_or_b32 v{Oa+i}, v{R+2*i+2}, 16, v{R+2*i+1}')
        if c == 1:
            a.e(f'v_add_u32 v110, {KCH}, v111')
        va = 111 if c == 0 else 110
        for s, r in ((0, Da), (1, Oa), (4, Da + 2), (5, Oa + 2)):
            a.e(f'ds_write_b128 v{va}, v[{r}:{r+3}] offset:{s*KCOPY}')
        for i in range(6):
            a.e(f'v_lshl_or_b32 v{Db+i}, v{R+2*i+3}, 16, v{R+2*i+2}')
            a.e(f'v_lshl_or_b32 v{Ob+i}, v{R+2*i+4}, 16, v{R+2*i+3}')
        for s, r in ((2, Db), (3, Ob), (6, Db + 2), (7, Ob + 2)):
            a.e(f'ds_write_b128 v{va}, v[{r}:{r+3}] offset:{s*KCOPY}')


def store_u(a, vm):
    a.e('v_lshlrev_b32 v2, 4, v0')
    a.e(f's_waitcnt vmcnt({vm})')
    a.e(f'ds_write_b128 v2, v[176:179] offset:{L_U + 512}')
    a.e(f'ds_write_b128 v2, v[180:183] offset:{L_U + UCH + 512}')
    a.e('s_waitcnt lgkmcnt(0)')
    a.e('s_barrier')


def phase_conv(a, hooks, pre_vm):
    hooks = list(hooks)
    ACC = 16
    FA = [[64 + 64 * s + 4 * i for i in range(8)] for s in range(2)]
    FB = [[96 + 64 * s + 4 * i for i in range(8)] for s in range(2)]
    VA, VB = (192, 193) if OPT['hoist'] else (48, 49)

    def loads(qq, s):
        out = []
        for i in range(8):
            out.append(f'ds_read_b128 v[{FB[s][i]}:{FB[s][i]+3}], v{VB} offset:{512*i + 64*(3-qq)}')
            if OPT['c4']:
                o = 512 * (7 - i) + 64 * (3 - qq)
                out.append(f'ds_read_b64 v[{FA[s][i]}:{FA[s][i]+1}], v{VA} offset:{o}')
                out.append(f'ds_read_b64 v[{FA[s][i]+2}:{FA[s][i]+3}], v{VA} offset:{o + 8}')
            else:
                out.append(f'ds_read_b128 v[{FA[s][i]}:{FA[s][i]+3}], v{VA} offset:{512*(7-i) + 64*(3-qq)}')
        return out

    for x in loads(0, 0):
        a.e(x)
    for qq in range(4):
        s = qq & 1
        nxt = loads(qq + 1, 1 - s) if qq < 3 else []
        n = 0
        for w in range(8):
            for c in range(w, 8):
                if n == 0:
                    a.e('s_waitcnt lgkmcnt(0)')
                    if qq == 3 and OPT['cvbar']:
                        a.e('s_barrier')
                cc = '0' if (qq == 0 and w == 0) else f'v[{ACC+4*c}:{ACC+4*c+3}]'
                a.e(f'v_mfma_f32_16x16x32_f16 v[{ACC+4*c}:{ACC+4*c+3}], v[{FA[s][w]}:{FA[s][w]+3}], v[{FB[s][c-w]}:{FB[s][c-w]+3}], {cc}')
                if nxt and (n % 2 == 1 or (OPT['c4'] and n % 4 == 0)):
                    a.e(nxt.pop(0))
                if hooks and n % 4 == 2:
                    hooks.pop(0)()
                n += 1
        assert not nxt
    assert not hooks
    stamp(a, 11)
    CP, TS = L_CP, 1280
    if OPT['hoist']:
        if not OPT['cvbar']:
            a.e('s_barrier')
        for c in range(8):
            a.e(f'ds_write_b128 v194, v[{ACC+4*c}:{ACC+4*c+3}] offset:{c*TS}')
        VRD, VU, VG = 195, 206, 207
    else:
        a.e('v_and_b32 v2, 15, v1')
        a.e('v_lshlrev_b32 v2, 4, v2')
        a.e('v_lshrrev_b32 v3, 4, v1')
        a.e('v_mul_u32_u24 v3, 320, v3')
        a.e('v_add_u32 v2, v2, v3')
        a.e(f's_mul_i32 s70, s{S_W}, {8*TS}')
        a.e(f's_add_u32 s70, s70, {CP}')
        a.e('v_add_u32 v2, s70, v2')
        if not OPT['cvbar']:
            a.e('s_barrier')
        for c in range(8):
            a.e(f'ds_write_b128 v2, v[{ACC+4*c}:{ACC+4*c+3}] offset:{c*TS}')
        a.e('v_lshrrev_b32 v2, 2, v1')
        a.e('v_lshlrev_b32 v2, 4, v2')
        a.e('v_and_b32 v3, 3, v1')
        a.e('v_mul_u32_u24 v3, 320, v3')
        a.e('v_add_u32 v2, v2, v3')
        a.e(f's_lshl_b32 s70, s{S_W}, 1')
        a.e(f's_mul_i32 s71, s70, {TS}')
        a.e(f's_add_u32 s71, s71, {CP}')
        a.e('v_add_u32 v2, s71, v2')
        a.e('s_lshl_b32 s71, s70, 9')
        a.e(f's_add_u32 s71, s71, {L_U + 512}')
        a.e('v_lshl_add_u32 v3, v1, 3, s71')
        a.e(f's_mul_i32 s71, s{S_P}, {AST}')
        a.e('s_lshl_b32 s72, s70, 10')
        a.e('s_add_u32 s71, s71, s72')
        a.e(f's_add_u32 s71, s71, {WS_AOUT}')
        a.e('v_lshl_add_u32 v4, v1, 4, s71')
        VRD, VU, VG = 2, 3, 4
    a.e('s_lshl_b32 s72, s69, 16')
    a.e('s_and_b32 s73, s69, 0xffff0000')
    a.e('v_mov_b32 v56, s72')
    a.e('v_mov_b32 v57, s73')
    a.e(f's_waitcnt lgkmcnt(0) vmcnt({pre_vm})')
    a.e('s_barrier')
    for q in range(2):
        P = 64 + 32 * q
        for ch in range(2):
            for hf in range(2):
                r = P + 8 * ch + 4 * hf
                a.e(f'ds_read_b128 v[{r}:{r+3}], v{VRD} offset:{(2*ch+hf)*8*TS + q*TS}')
        for ch in range(2):
            a.e(f'ds_read_b64 v[{P+16+2*ch}:{P+17+2*ch}], v{VU} offset:{ch*UCH + q*512}')
    for q in range(2):
        P = 64 + 32 * q
        a.e(f's_waitcnt lgkmcnt({6 if q == 0 else 0})')
        for ch in range(2):
            y = P + 8 * ch
            T = 128 + 16 * ch
            u = P + 16 + 2 * ch
            for h in range(2):
                a.e(f'v_pk_add_f32 v[{y+2*h}:{y+2*h+1}], v[{y+2*h}:{y+2*h+1}], v[{y+4+2*h}:{y+5+2*h}]')
            for i in range(4):
                a.e(f'v_fma_mix_f32 v{T+i}, v{u+i//2}, v{56+ch}, 0 op_sel:[{i%2},0,0] op_sel_hi:[1,0,0]')
            for h in range(2):
                a.e(f'v_pk_mul_f32 v[{y+2*h}:{y+2*h+1}], v[{y+2*h}:{y+2*h+1}], v[54:55] op_sel:[0,{ch}] op_sel_hi:[1,{ch}]')
            for h in range(2):
                a.e(f'v_cvt_pk_bf16_f32 v{T+6+h}, v{T+2*h}, v{T+2*h+1}')
                a.e(f'v_cvt_pk_bf16_f32 v{T+4+h}, v{y+2*h}, v{y+2*h+1}')
            for h in range(2):
                a.e(f'v_lshlrev_b32 v{T+2*h}, 16, v{T+6+h}')
                a.e(f'v_and_b32 v{T+2*h+1}, 0xffff0000, v{T+6+h}')
                a.e(f'v_lshlrev_b32 v{y+2*h}, 16, v{T+4+h}')
                a.e(f'v_and_b32 v{y+2*h+1}, 0xffff0000, v{T+4+h}')
            for h in range(2):
                a.e(f'v_pk_add_f32 v[{y+2*h}:{y+2*h+1}], v[{y+2*h}:{y+2*h+1}], v[{T+2*h}:{T+2*h+1}]')
        O = 160 + 4 * q
        for i in range(4):
            a.e(f'v_cvt_pk_bf16_f32 v{O+i}, v{P+i}, v{P+8+i}')
        a.e(f'buffer_store_dwordx4 v[{O}:{O+3}], v{VG}, {WSR}, 0 offen offset:{q*1024} sc1')


def conv_addr(a, va=48, vb=49):
    a.e(f's_lshr_b32 s66, s{S_W}, 1')
    a.e(f's_and_b32 s67, s{S_W}, 1')
    a.e('v_and_b32 v2, 7, v1')
    a.e('v_sub_u32 v2, 7, v2')
    if OPT['c4']:
        a.e('v_lshrrev_b32 v5, 2, v2')
        a.e('v_and_b32 v2, 3, v2')
        a.e(f'v_mul_u32_u24 v2, {KCOPY}, v2')
        a.e('v_lshl_add_u32 v2, v5, 3, v2')
    else:
        a.e(f'v_mul_u32_u24 v2, {KCOPY}, v2')
    a.e('v_lshrrev_b32 v3, 4, v1')
    a.e('v_bfe_u32 v4, v1, 3, 1')
    a.e('v_sub_u32 v4, v3, v4')
    a.e('v_lshl_add_u32 v2, v4, 4, v2')
    a.e(f's_mul_i32 s70, s66, {kch()}')
    a.e('s_lshl_b32 s71, s67, 8')
    a.e('s_sub_u32 s70, s70, s71')
    a.e(f's_add_u32 s70, s70, {L_KC + 16*253 - 512*7 - 64*3}')
    a.e(f'v_add_u32 v{va}, s70, v2')
    a.e('v_and_b32 v2, 15, v1')
    a.e('v_lshlrev_b32 v2, 5, v2')
    a.e('v_lshl_add_u32 v2, v3, 4, v2')
    a.e(f's_mul_i32 s70, s66, {UCH}')
    a.e('s_sub_u32 s70, s70, s71')
    a.e(f's_add_u32 s70, s70, {L_U + 480 - 64*3}')
    a.e(f'v_add_u32 v{vb}, s70, v2')


def phase_p4(a, dmas=()):
    X = list(range(8, 16))
    A = 32
    xrow_addr(a)
    a.e(f's_mul_i32 s66, s{S_W}, {56*AST}')
    a.e(f's_lshl_b32 s67, s{S_B}, 5')
    a.e('s_add_u32 s66, s66, s67')
    a.e(f's_add_u32 s66, s66, {WS_AOUT}')
    a.e(f'v_mul_u32_u24 v4, {AST}, v1')
    a.e('v_add_u32 v4, s66, v4')
    a.e(f'v_mov_b32 v5, {OOB}')
    a.e('v_cndmask_b32 v4, v5, v4, vcc')
    if OPT['hpriv']:
        a.e(f's_mul_i32 s66, s{S_W}, 1792')
        a.e(f's_add_u32 s66, s66, {L_HT}')
        a.e('v_lshl_add_u32 v6, v1, 2, s66')
        a.e('v_lshl_add_u32 v7, v1, 4, s66')
        a.e(f's_mul_i32 s66, s{S_B}, 7168')
        a.e(f's_mul_i32 s67, s{S_W}, 224')
        a.e('s_add_u32 s66, s66, s67')
        a.e(f's_add_u32 s66, s66, {WS_H}')
        for k, vd in ((0, 56), (64, 57)):
            a.e(f'v_add_u32 v58, {k}, v1')
            a.e('v_mul_u32_u24 v59, 4682, v58')
            a.e('v_lshrrev_b32 v59, 16, v59')
            a.e(f'v_mul_u32_u24 v{vd}, {896 - 224}, v59')
            a.e(f'v_lshl_add_u32 v{vd}, v58, 4, v{vd}')
            a.e(f'v_add_u32 v{vd}, s66, v{vd}')
        mask_lanes(a, 57, 48, 58)
    else:
        a.e(f's_mul_i32 s66, s{S_W}, 224')
        a.e(f's_add_u32 s66, s66, {L_HT}')
        a.e('v_lshl_add_u32 v6, v1, 2, s66')
    for j in range(8):
        a.e(f'v_lshlrev_b32 v{64+2*j}, 16, v{X[j]}')
        a.e(f'v_and_b32 v{65+2*j}, 0xffff0000, v{X[j]}')
    lp, ld = a.lab('h2poll'), a.lab('h2done')
    a.e(f's_mov_b32 s{S_SPIN}, 0')
    a.e(f'{lp}:')
    a.e(f'buffer_load_dwordx4 v[{A}:{A+3}], v4, {WSR}, 0 offen sc1')
    a.e(f'buffer_load_dwordx4 v[{A+4}:{A+7}], v4, {WSR}, 0 offen offset:16 sc1')
    a.e('s_waitcnt vmcnt(0)')
    a.e(f'v_max3_u32 v40, v{A}, v{A+1}, v{A+2}')
    a.e(f'v_max3_u32 v41, v{A+3}, v{A+4}, v{A+5}')
    a.e(f'v_max3_u32 v40, v40, v{A+6}, v{A+7}')
    a.e('v_max_u32 v40, v40, v41')
    a.e('v_cmp_eq_u32 vcc, -1, v40')
    a.e(f's_cbranch_vccz {ld}')
    spin_tail(a, lp)
    a.e(f'{ld}:')
    stamp(a, 14)
    H = list(range(48, 56))
    for j in range(8):
        t = 40 + 2 * (j % 4)
        a.e(f'v_lshlrev_b32 v{t}, 16, v{A+j}')
        a.e(f'v_and_b32 v{t+1}, 0xffff0000, v{A+j}')
        a.e(f'v_pk_add_f32 v[{t}:{t+1}], v[{t}:{t+1}], v[{64+2*j}:{65+2*j}]')
        a.e(f'v_cvt_pk_bf16_f32 v{H[j]}, v{t}, v{t+1}')
    a.e('s_mov_b32 exec_hi, 0x00ffffff')
    for j in range(8):
        a.e(f'ds_write_b32 v6, v{H[j]} offset:{j*(224 if OPT["hpriv"] else 896)}')
    a.e('s_mov_b32 exec_hi, -1')
    if OPT['hpriv']:
        a.e('ds_read_b128 v[32:35], v7')
        a.e('ds_read_b128 v[36:39], v7 offset:1024')
        a.e('s_waitcnt lgkmcnt(1)')
        a.e(f'buffer_store_dwordx4 v[32:35], v56, {WSR}, 0 offen sc1')
        a.e('s_waitcnt lgkmcnt(0)')
        a.e(f'buffer_store_dwordx4 v[36:39], v57, {WSR}, 0 offen sc1')
        if dmas:
            a.inject(dmas, OPT['p4ev'])
        ln_stats(a, H, 16, L_RED0, 5)
    else:
        def hstore():
            a.e('v_lshlrev_b32 v7, 4, v0')
            a.e(f'ds_read_b128 v[56:59], v7 offset:{L_HT}')
            a.e(f'ds_read_b128 v[60:63], v7 offset:{L_HT + 4096}')
            return 2

        ln_stats(a, H, 16, L_RED0, 5, mid=hstore)
        a.e(f's_mul_i32 s66, s{S_B}, 7168')
        a.e(f's_add_u32 s66, s66, {WS_H}')
        a.e('v_add_u32 v6, s66, v7')
        a.e('v_add_u32 v7, 4096, v6')
        mask_lanes(a, 7, 192, 4, 'v0')
        a.e('s_waitcnt lgkmcnt(0)')
        a.e(f'buffer_store_dwordx4 v[56:59], v6, {WSR}, 0 offen sc1')
        a.e(f'buffer_store_dwordx4 v[60:63], v7, {WSR}, 0 offen sc1')
    bcast_stats(a, 16)
    a.inj_pause()
    a.e('s_mov_b32 exec_hi, 0x00ffffff')
    for j in range(8):
        t = 40 + 2 * (j % 4)
        norm_tok(a, j, H[j], t)
        a.e(f'v_cvt_pk_bf16_f32 v{H[j]}, v{t}, v{t+1}')
    a.e('s_mov_b32 exec_hi, -1')
    a.inj_resume()
    ln_stats(a, H, 16, L_RED1, 5)
    bcast_stats(a, 16)
    VHH = 213 if OPT['hoist'] else 4
    if not OPT['hoist']:
        a.e(f's_mul_i32 s66, s{S_B}, 7168')
        a.e(f's_mul_i32 s67, s{S_W}, 1792')
        a.e('s_add_u32 s66, s66, s67')
        a.e(f's_add_u32 s66, s66, {WS_HH}')
        a.e('v_lshl_add_u32 v4, v1, 4, s66')
        a.e('v_add_u32 v5, 448, v4')
        a.e('v_cmp_gt_u32 vcc, 28, v1')
        a.e('v_cndmask_b32 v4, v5, v4, vcc')
        mask_lanes(a, 4, 56, 5)
    for j in range(8):
        norm_tok(a, j, H[j], 64 + 2 * j)
    O0, O1 = 80, 84
    for i in range(4):
        a.e(f'v_cvt_pk_bf16_f32 v{O0+i}, v{64+4*i}, v{66+4*i}')
        a.e(f'v_cvt_pk_bf16_f32 v{O1+i}, v{65+4*i}, v{67+4*i}')
    a.inj_flush()
    a.e(f's_waitcnt vmcnt({len(dmas)})')
    if not OPT['hpriv']:
        a.e('s_barrier')
    a.e(f'buffer_store_dwordx4 v[{O0}:{O0+3}], v{VHH}, {WSR}, 0 offen sc1')
    a.e(f'buffer_store_dwordx4 v[{O1}:{O1+3}], v{VHH}, {WSR}, 0 offen offset:448 sc1')


def w_setup(a):
    srd(a, S_W1, P_W1, W1BYTES)
    srd(a, S_W2, P_W2, W2BYTES)
    a.e('v_lshrrev_b32 v4, 3, v1')
    a.e('v_bfe_u32 v5, v1, 4, 1')
    a.e('v_lshlrev_b32 v5, 1, v5')
    a.e('v_and_b32 v6, 7, v1')
    a.e('v_xor_b32 v6, v6, v5')
    a.e('v_xor_b32 v7, 4, v6')
    for vd, rowbytes, tile, rows in ((V_D1, F * 2, S_I1, 512), (V_D2, L * 2, S_I2, 448)):
        a.e(f's_mov_b32 s66, {rowbytes}')
        a.e('v_mul_lo_u32 v5, v4, s66')
        a.e(f's_mul_i32 s67, s{S_W}, {rows*rowbytes}')
        a.e(f's_lshl_b32 s66, s{tile}, 7')
        a.e('s_add_u32 s67, s67, s66')
        a.e('v_add_u32 v5, s67, v5')
        for i in range(4):
            a.e(f'v_lshl_add_u32 v{vd+i}, v{6 + (i & 1)}, 4, v5')
            if i:
                a.e(f'v_add_u32 v{vd+i}, {i*(8*rowbytes - 1024)}, v{vd+i}')
    a.e('v_lshlrev_b32 v5, 12, v4')
    a.e('v_and_b32 v6, 7, v1')
    a.e(f'v_lshl_add_u32 v{V_QPF}, v6, 4, v5')
    a.e(f's_and_b32 s66, s{S_LOC}, 3')
    a.e('s_mul_i32 s66, s66, 448')
    if OPT['sched'] == 3:
        a.e(f's_mul_i32 s67, s{S_W}, {(448 - OPT["hR"]) // 4}')
        a.e(f's_add_u32 s67, s67, {OPT["hR"]}')
    else:
        a.e(f's_mul_i32 s67, s{S_W}, 112')
    a.e('s_add_u32 s66, s66, s67')
    a.e('s_lshl_b32 s66, s66, 12')
    a.e(f's_lshl_b32 s67, s{S_I2}, 7')
    a.e(f's_add_u32 s{S_QPF}, s66, s67')
    a.e('v_lshrrev_b32 v4, 4, v1')
    a.e('v_bfe_u32 v5, v1, 2, 2')
    a.e('v_lshl_add_u32 v5, v4, 3, v5')
    a.e('v_lshlrev_b32 v5, 7, v5')
    a.e('v_and_b32 v6, 1, v1')
    a.e('v_lshl_add_u32 v5, v6, 3, v5')
    a.e('v_bfe_u32 v6, v1, 1, 1')
    a.e('v_lshl_add_u32 v5, v6, 4, v5')
    a.e('v_bfe_u32 v6, v1, 3, 1')
    a.e('v_and_b32 v4, 1, v4')
    a.e('v_lshl_add_u32 v6, v4, 1, v6')
    a.e(f's_and_b32 s66, s{S_LOC}, 3')
    a.e(f's_lshr_b32 s67, s{S_LOC}, 2')
    a.e('s_lshl_b32 s67, s67, 1')
    a.e('s_lshl_b32 s70, s66, 2')
    a.e('s_add_u32 s70, s70, s67')
    a.e('s_and_b32 s70, s70, 15')
    a.e(f's_mul_i32 s{S_RW1}, s70, {32*F*2}')
    a.e(f's_mul_i32 s{S_RX1}, s70, {4*7168}')
    a.e('s_mul_i32 s66, s66, 7')
    a.e('s_lshr_b32 s66, s66, 1')
    a.e('s_add_u32 s66, s66, s67')
    for _ in range(2):
        a.e('s_cmp_ge_u32 s66, 14')
        a.e('s_cselect_b32 s67, 14, 0')
        a.e('s_sub_u32 s66, s66, s67')
    a.e(f's_mul_i32 s{S_RW2}, s66, {32*L*2}')
    a.e(f's_mul_i32 s{S_RX2}, s66, {4*7168}')
    a.e(f's_lshl_b32 s{S_SA}, s{S_W}, 14')
    a.e(f's_add_u32 s{S_SA}, s{S_SA}, {L_WA}')
    a.e(f's_mul_i32 s{S_SB}, s{S_W}, 20480')
    a.e(f's_add_u32 s{S_SB}, s{S_SB}, {L_WB}')
    a.e(f's_lshl_b32 s{S_SC}, s{S_W}, 13')
    a.e(f's_add_u32 s{S_SC}, s{S_SC}, {L_WC}')
    for mu in range(4):
        a.e(f'v_xor_b32 v4, {mu}, v6')
        a.e('v_lshl_add_u32 v4, v4, 5, v5')
        a.e(f'v_add_u32 v{V_TA+mu}, s{S_SA}, v4')
        a.e(f'v_add_u32 v{V_TB+mu}, s{S_SB}, v4')
        a.e(f'v_add_u32 v{V_TC+mu}, s{S_SC}, v4')


def rot_off(a, idx, sreg, n, unit):
    a.e(f's_add_u32 s70, s{sreg}, {idx*unit}')
    a.e(f's_cmp_ge_u32 s70, {n*unit}')
    a.e(f's_cselect_b32 s71, {n*unit}, 0')
    a.e('s_sub_u32 s70, s70, s71')


def slot(name):
    return {'A': (S_SA, V_TA), 'B': (S_SB, V_TB), 'C': (S_SC, V_TC)}[name[0]] + (int(name[1]),)


def w_dma1(a, mat, slab, sl, i):
    sb, _, si = slot(sl)
    vd, srd_, rowbytes = (V_D1, S_W1, F * 2) if mat == 1 else (V_D2, S_W2, L * 2)
    if i == 0:
        rot_off(a, slab, S_RW1 if mat == 1 else S_RW2, 16 if mat == 1 else 14, 32 * rowbytes)
        a.e(f's_add_u32 m0, s{sb}, {si*4096}')
    a.e(f'buffer_load_dwordx4 v{vd + i}, s[{srd_}:{srd_+3}], s70 offen offset:{1024*i} lds')


def w_dma(a, mat, slab, sl):
    for i in range(4):
        w_dma1(a, mat, slab, sl, i)


def w_tr(a, slab, sl):
    _, vt, si = slot(sl)
    for mu in range(4):
        r = (slab * 4 + mu) * 4
        a.e(f'ds_read_b64_tr_b16 a[{r}:{r+1}], v{vt+mu} offset:{si*4096}')
        a.e(f'ds_read_b64_tr_b16 a[{r+2}:{r+3}], v{vt+mu} offset:{si*4096 + 512}')


def helper_w2(a, nrows, mid=None):
    a.e(f's_lshr_b32 s66, s{S_XCD}, 1')
    a.e('s_lshl_b32 s66, s66, 10')
    a.e(f's_sub_u32 s67, s{S_LOC}, 28')
    a.e('s_mul_i32 s67, s67, 448')
    a.e(f's_add_u32 s67, s67, s{S_W}')
    a.e('s_lshl_b32 s67, s67, 12')
    a.e('s_add_u32 s90, s66, s67')
    a.e('v_lshlrev_b32 v4, 4, v1')

    def loop(n):
        if n <= 0:
            return
        l = a.lab('l2s')
        a.e(f's_mov_b32 s91, {n}')
        a.e(f'{l}:')
        for i in range(4):
            a.e(f'buffer_load_dwordx4 v[220:223], v4, s[{S_W2}:{S_W2+3}], s90 offen')
            a.e(f's_add_u32 s90, s90, {4*L*2}')
        a.e('s_waitcnt vmcnt(8)')
        a.e('s_sub_u32 s91, s91, 1')
        a.e('s_cmp_lg_u32 s91, 0')
        a.e(f's_cbranch_scc1 {l}')

    total = nrows // 16
    if mid is None:
        loop(total)
        return
    n1, issue, check = mid
    loop(n1)
    issue()
    loop(3)
    check()
    loop(total - n1 - 3)


def qpf_load(a, n):
    for _ in range(n):
        a.e(f'buffer_load_dwordx4 v[220:223], v{V_QPF}, s[{S_W2}:{S_W2+3}], s{S_QPF} offen')
        a.e(f's_add_u32 s{S_QPF}, s{S_QPF}, {8*L*2}')


ACC = 16
XS = 80
NS = 6
VMAX = 214
V_X0, V_X3 = 208, 209


def gemm_xaddr(a, ws_off, kblocks):
    a.e(f's_mul_i32 s66, s{S_W}, {kblocks*7168}')
    a.e(f's_mul_i32 s67, s{S_J}, 896')
    a.e('s_add_u32 s66, s66, s67')
    a.e(f's_add_u32 s66, s66, {ws_off}')
    a.e('v_lshrrev_b32 v4, 4, v1')
    a.e('v_mul_u32_u24 v4, 7168, v4')
    a.e('v_add_u32 v4, s66, v4')
    a.e('v_and_b32 v5, 15, v1')
    a.e(f'v_lshl_add_u32 v{V_X0}, v5, 4, v4')
    if OPT['x3oob']:
        a.e(f'v_add_u32 v{V_X3}, 768, v{V_X0}')
        a.e(f'v_mov_b32 v4, {OOB}')
        a.e('v_cmp_gt_u32 vcc, 8, v5')
        a.e(f'v_cndmask_b32 v{V_X3}, v4, v{V_X3}, vcc')
    else:
        a.e('v_and_b32 v5, 7, v1')
        a.e('v_lshl_add_u32 v4, v5, 4, v4')
        a.e(f'v_add_u32 v{V_X3}, 768, v4')


def gemm_xloads(a, kappa, gid):
    st = XS + 16 * (kappa % NS)
    out = []
    sreg, n = (S_RX1, 16) if gid == 1 else (S_RX2, 14)
    unit = 4 * 7168
    out.append(f's_add_u32 s70, s{sreg}, {kappa*unit}')
    out.append(f's_cmp_ge_u32 s70, {n*unit}')
    out.append(f's_cselect_b32 s71, {n*unit}, 0')
    out.append('s_sub_u32 s70, s70, s71')
    for nu in range(3):
        out.append(f'buffer_load_dwordx4 v[{st+4*nu}:{st+4*nu+3}], v{V_X0}, {WSR}, s70 offen offset:{256*nu} sc1')
    out.append(f'buffer_load_dwordx4 v[{st+12}:{st+15}], v{V_X3}, {WSR}, s70 offen sc1')
    return out


def gemm_main(a, nk, gid, tail_hook=None):
    nfl = OPT['nfl']
    w_is_a = gid == 1
    a.e(f'v_mov_b32 v{VMAX}, 0')
    extra = 0
    for k in range(nk):
        st = XS + 16 * (k % NS)
        rem = min(nfl - 1, nk - 1 - k)
        a.e(f's_waitcnt vmcnt({4*rem + extra})')
        if OPT['stamps'] and k in (0, 4, 8, 12):
            stamp(a, (44 if w_is_a else 51) + (0, 4, 8, 12).index(k))
        fill = gemm_xloads(a, k + nfl, gid) if k + nfl < nk else []
        if k + nfl == nk and tail_hook is not None:
            fill = []
            extra = tail_hook(fill)
        mx = [f'v_max3_u32 v{VMAX}, v{VMAX}, v{st+2*i}, v{st+2*i+1}' for i in range(8)]
        n = 0
        for mu in range(4):
            for nu in range(4):
                w = (k * 4 + mu) * 4
                x = st + 4 * nu
                if w_is_a:
                    acc = ACC + (mu * 4 + nu) * 4
                    A, B = f'a[{w}:{w+3}]', f'v[{x}:{x+3}]'
                else:
                    acc = ACC + (nu * 4 + mu) * 4
                    A, B = f'v[{x}:{x+3}]', f'a[{w}:{w+3}]'
                cc = '0' if k == 0 else f'v[{acc}:{acc+3}]'
                a.e(f'v_mfma_f32_16x16x32_bf16 v[{acc}:{acc+3}], {A}, {B}, {cc}')
                for _ in range(2):
                    if fill:
                        a.e(fill.pop(0))
                if not fill and mx and n >= 4:
                    a.e(mx.pop(0))
                n += 1
        assert not fill and not mx


def capture(fn):
    p = Prog()
    fn(p)
    return [it.text for it in p.items]


STUBS = []


def mfma_line(k, mu, nu, gid):
    st = XS + 16 * (k % NS)
    w = (k * 4 + mu) * 4
    x = st + 4 * nu
    if gid == 1:
        acc = ACC + (mu * 4 + nu) * 4
        A, B = f'a[{w}:{w+3}]', f'v[{x}:{x+3}]'
    else:
        acc = ACC + (nu * 4 + mu) * 4
        A, B = f'v[{x}:{x+3}]', f'a[{w}:{w+3}]'
    cc = '0' if k == 0 else f'v[{acc}:{acc+3}]'
    return f'v_mfma_f32_16x16x32_bf16 v[{acc}:{acc+3}], {A}, {B}, {cc}'


def poison_check(k):
    st = XS + 16 * (k % NS)
    out = [f'v_max3_u32 v{VMAX}, v{st}, v{st+1}, v{st+2}']
    for i in range(6):
        out.append(f'v_max3_u32 v{VMAX}, v{VMAX}, v{st+3+2*i}, v{st+4+2*i}')
    out.append(f'v_max_u32 v{VMAX}, v{VMAX}, v{st+15}')
    out.append(f'v_cmp_eq_u32 vcc, -1, v{VMAX}')
    return out


def gemm_checked(a, nk, gid, sb, tail_hook=None, side=None):
    nfl = OPT['nfl']

    def slow(k):
        ls, lb, lp = a.lab('slow'), a.lab('back'), a.lab('sloop')

        def emit():
            a.e(f'{ls}:')
            a.e(f's_mov_b32 s{S_SPIN}, 0')
            a.e(f'{lp}:')
            for x in gemm_xloads(a, k, gid):
                a.e(x)
            a.e('s_waitcnt vmcnt(0)')
            for x in poison_check(k):
                a.e(x)
            ldone = a.lab('sdone')
            a.e(f's_cbranch_vccz {ldone}')
            spin_tail(a, lp)
            a.e(f'{ldone}:')
            if k == 0:
                for kk in range(1, min(nfl, nk - 1) + 1):
                    for x in gemm_xloads(a, kk, gid):
                        a.e(x)
            a.e(f's_branch {lb}')
        STUBS.append(emit)
        return ls, lb

    for k in range(nfl):
        for x in gemm_xloads(a, k, gid):
            a.e(x)
    a.e(f's_waitcnt vmcnt({4*(nfl-1)})')
    for x in gemm_xloads(a, nfl, gid):
        a.e(x)
    for x in poison_check(0):
        a.e(x)
    ls, lb = slow(0)
    a.e(f's_cbranch_vccnz {ls}')
    a.e(f'{lb}:')
    stamp(a, sb)
    extra = 0
    for k in range(nk):
        lines = [mfma_line(k, mu, nu, gid) for mu in range(4) for nu in range(4)]
        for i in range(8):
            a.e(lines[i])
        if k + 1 < nk:
            kn = k + 1
            rem = min(nfl - 1, nk - 1 - kn)
            a.e(f's_waitcnt vmcnt({4*rem + extra})')
            if OPT['stamps'] and kn in (4, 8, 12):
                stamp(a, (44 if gid == 1 else 51) + (0, 4, 8, 12).index(kn))
            fill = gemm_xloads(a, kn + nfl, gid) if kn + nfl < nk else []
            if kn + nfl == nk and tail_hook is not None:
                extra = tail_hook(fill)
            if side is not None:
                lines_, nvm = side(kn)
                fill += lines_
                extra += nvm
            fill += poison_check(kn)
        else:
            fill = []
        per = -(-len(fill) // 8)
        for i in range(8, 16):
            a.e(lines[i])
            for _ in range(per):
                if fill:
                    a.e(fill.pop(0))
        assert not fill
        if k + 1 < nk:
            ls, lb = slow(k + 1)
            a.e(f's_cbranch_vccnz {ls}')
            a.e(f'{lb}:')


def sentinel(a, ws_off, kblocks):
    lp, ld = a.lab('spoll'), a.lab('sdone')
    a.e(f's_mul_i32 s66, s{S_W}, {kblocks*7168}')
    a.e(f's_mul_i32 s67, s{S_J}, 896')
    a.e('s_add_u32 s66, s66, s67')
    a.e(f's_add_u32 s66, s66, {ws_off + 55*16 + 12}')
    a.e('v_mul_u32_u24 v4, 7168, v1')
    a.e('v_add_u32 v4, s66, v4')
    if kblocks < 64:
        mask_lanes(a, 4, kblocks, 5)
    a.e(f's_mov_b32 s{S_SPIN}, 0')
    a.e(f'{lp}:')
    a.e(f'buffer_load_dword v5, v4, {WSR}, 0 offen sc1')
    a.e('s_waitcnt vmcnt(0)')
    a.e('v_cmp_eq_u32 vcc, -1, v5')
    a.e(f's_cbranch_vccz {ld}')
    spin_tail(a, lp)
    a.e(f'{ld}:')


def gemm_poll_main(a, ws_off, kblocks, nk, gid, sb, tail_hook=None, side=None):
    lr, lok = a.lab('gretry'), a.lab('gok')
    gemm_xaddr(a, ws_off, kblocks)
    if OPT['stchk']:
        gemm_checked(a, nk, gid, sb, tail_hook, side)
        return
    a.e(f's_mov_b32 s{S_RETRY}, 0')
    a.e(f'{lr}:')
    sentinel(a, ws_off, kblocks)
    stamp(a, sb)
    for k in range(OPT['nfl']):
        for x in gemm_xloads(a, k, gid):
            a.e(x)
    gemm_main(a, nk, gid, tail_hook)
    a.e(f'v_cmp_eq_u32 vcc, -1, v{VMAX}')
    a.e(f's_cbranch_vccz {lok}')
    a.e(f's_add_u32 s{S_RETRY}, s{S_RETRY}, 1')
    a.e(f's_cmp_lt_u32 s{S_RETRY}, {RETRY_MAX}')
    a.e(f's_cbranch_scc1 {lr}')
    a.e(f'{lok}:')


def write_partials(a):
    if OPT['hoist']:
        va = 241
    else:
        va = 4
        a.e('v_and_b32 v4, 15, v1')
        a.e(f'v_mul_u32_u24 v4, {PROW}, v4')
        a.e('v_lshrrev_b32 v5, 4, v1')
        a.e('v_lshl_add_u32 v4, v5, 4, v4')
        a.e(f's_mul_i32 s66, s{S_W}, {PARTW}')
        a.e(f's_add_u32 s66, s66, {L_PART}')
        a.e('v_add_u32 v4, s66, v4')
    if not OPT['prebar']:
        a.e('s_barrier')
    for mt in range(4):
        for nt in range(4):
            acc = ACC + (mt * 4 + nt) * 4
            a.e(f'ds_write_b128 v{va}, v[{acc}:{acc+3}] offset:{nt*16*PROW + mt*64}')


def sum_partials(a, P):
    for h in range(4):
        a.e(f'v_pk_add_f32 v[{P+2*h}:{P+2*h+1}], v[{P+2*h}:{P+2*h+1}], v[{P+8+2*h}:{P+9+2*h}]')
        a.e(f'v_pk_add_f32 v[{P+16+2*h}:{P+17+2*h}], v[{P+16+2*h}:{P+17+2*h}], v[{P+24+2*h}:{P+25+2*h}]')
    for h in range(4):
        a.e(f'v_pk_add_f32 v[{P+2*h}:{P+2*h+1}], v[{P+2*h}:{P+2*h+1}], v[{P+16+2*h}:{P+17+2*h}]')


def b1_load(a):
    a.e(f's_lshl_b32 s67, s{S_I1}, 7')
    a.e(f's_lshl_b32 s70, s{S_W}, 5')
    a.e('s_add_u32 s67, s67, s70')
    a.e(f's_load_dwordx8 s[72:79], s[{P_B1}:{P_B1+1}], s67')


def gemm1_epilogue(a, d0=(), d1=()):
    write_partials(a)
    if OPT['hoist']:
        VR1, VG1 = 242, 240
    else:
        VR1, VG1 = 4, 5
        a.e(f'v_mul_u32_u24 v4, {PROW}, v1')
        a.e(f's_lshl_b32 s66, s{S_W}, 6')
        a.e(f's_add_u32 s66, s66, {L_PART}')
        a.e('v_add_u32 v4, s66, v4')
        g_store_addr(a, 5)
    C1 = 0.044715
    C2 = -2.0 * 0.7978845608028654 * 1.4426950408889634
    a.e(f'v_mov_b32 v100, {fx(C1*C2)}')
    a.e(f'v_mov_b32 v101, {fx(C1*C2)}')
    a.e(f'v_mov_b32 v102, {fx(C2)}')
    a.e(f'v_mov_b32 v103, {fx(C2)}')
    a.e('s_waitcnt lgkmcnt(0)')
    a.e('s_barrier')
    stamp(a, 24)
    for r in range(2):
        P = 16 + 32 * r
        for wv in range(4):
            a.e(f'ds_read_b128 v[{P+8*wv}:{P+8*wv+3}], v{VR1} offset:{wv*PARTW + r*32}')
            a.e(f'ds_read_b128 v[{P+8*wv+4}:{P+8*wv+7}], v{VR1} offset:{wv*PARTW + r*32 + 16}')
    for i in range(8):
        a.e(f's_lshl_b32 s{80+2*i}, s{72+i}, 16')
        a.e(f's_and_b32 s{81+2*i}, s{72+i}, 0xffff0000')
    for r in range(2):
        P = 16 + 32 * r
        T = 80
        a.e(f's_waitcnt lgkmcnt({8 if r == 0 else 0})')
        if r == 1 and d1:
            a.e('s_barrier')
        dd = d0 if r == 0 else d1
        if dd:
            a.inject(dd, max(1, 80 // len(dd)))
        sum_partials(a, P)
        round_pairs(a, P, T, 8)
        for h in range(4):
            a.e(f'v_pk_add_f32 v[{P+2*h}:{P+2*h+1}], v[{P+2*h}:{P+2*h+1}], s[{80+8*r+2*h}:{81+8*r+2*h}]')
        round_pairs(a, P, T, 8)
        for h in range(4):
            a.e(f'v_pk_mul_f32 v[{P+8+2*h}:{P+9+2*h}], v[{P+2*h}:{P+2*h+1}], v[{P+2*h}:{P+2*h+1}]')
        for h in range(4):
            a.e(f'v_pk_fma_f32 v[{P+8+2*h}:{P+9+2*h}], v[{P+8+2*h}:{P+9+2*h}], v[100:101], v[102:103]')
        for h in range(4):
            a.e(f'v_pk_mul_f32 v[{P+8+2*h}:{P+9+2*h}], v[{P+8+2*h}:{P+9+2*h}], v[{P+2*h}:{P+2*h+1}]')
        for i in range(8):
            a.e(f'v_exp_f32 v{P+8+i}, v{P+8+i}')
        for h in range(4):
            a.e(f'v_pk_add_f32 v[{P+8+2*h}:{P+9+2*h}], v[{P+8+2*h}:{P+9+2*h}], 1.0 op_sel_hi:[1,0]')
        for i in range(8):
            a.e(f'v_rcp_f32 v{P+8+i}, v{P+8+i}')
        for h in range(4):
            a.e(f'v_pk_mul_f32 v[{P+2*h}:{P+2*h+1}], v[{P+2*h}:{P+2*h+1}], v[{P+8+2*h}:{P+9+2*h}]')
        O = 88 + 4 * r
        for h in range(4):
            a.e(f'v_cvt_pk_bf16_f32 v{O+h}, v{P+2*h}, v{P+2*h+1}')
        a.inj_flush()
        if r == 1:
            a.e(f'v_add_u32 v{VG1}, 7168, v{VG1}')
        a.e(f'buffer_store_dwordx4 v[{O}:{O+3}], v{VG1}, {WSR}, 0 offen sc1')


V_OUT, V_HAD, V_B2 = 210, 211, 212
V_HR = 196


def gemm2_addr(a):
    srd(a, S_T2, P_OUT, XBYTES)
    srd(a, S_T3, P_B2, L * 2)
    a.e('v_lshrrev_b32 v4, 3, v1')
    a.e('v_and_b32 v5, 7, v1')
    a.e(f's_lshl_b32 s66, s{S_W}, 4')
    a.e('v_add_u32 v4, s66, v4')
    a.e(f's_lshl_b32 s67, s{S_I2}, 6')
    a.e('v_add_u32 v7, s67, v4')
    a.e(f'v_mul_u32_u24 v{V_OUT}, 896, v7')
    a.e(f'v_lshl_add_u32 v{V_OUT}, v5, 4, v{V_OUT}')
    a.e(f's_mul_i32 s70, s{S_J}, 112')
    a.e(f'v_add_u32 v{V_OUT}, s70, v{V_OUT}')
    a.e(f'v_mov_b32 v6, {OOB}')
    a.e('v_cmp_gt_u32 vcc, 7, v5')
    a.e(f'v_cndmask_b32 v{V_OUT}, v6, v{V_OUT}, vcc')
    a.e(f'v_add_u32 v{V_HAD}, {WS_H}, v{V_OUT}')
    a.e(f'v_lshlrev_b32 v{V_B2}, 1, v7')


def gemm2_tail_loads(fill):
    fill.append(f'buffer_load_dwordx4 v[{V_HR}:{V_HR+3}], v{V_HAD}, {WSR}, 0 offen sc1')
    fill.append(f's_mov_b32 s70, {8*896}')
    fill.append(f'buffer_load_dwordx4 v[{V_HR+4}:{V_HR+7}], v{V_HAD}, {WSR}, s70 offen sc1')
    fill.append(f'buffer_load_ushort v{V_HR+8}, v{V_B2}, s[{S_T3}:{S_T3+3}], 0 offen')
    fill.append(f'buffer_load_ushort v{V_HR+9}, v{V_B2}, s[{S_T3}:{S_T3+3}], 0 offen offset:16')
    return 4


def gemm2_epilogue(a):
    write_partials(a)
    if OPT['hoist']:
        VR2 = 243
    else:
        VR2 = 6
        a.e('v_lshrrev_b32 v4, 3, v1')
        a.e('v_and_b32 v5, 7, v1')
        a.e(f's_lshl_b32 s66, s{S_W}, 4')
        a.e('v_add_u32 v4, s66, v4')
        a.e(f'v_mul_u32_u24 v6, {PROW}, v4')
        a.e('v_lshl_add_u32 v6, v5, 4, v6')
        a.e(f'v_add_u32 v6, {L_PART}, v6')
    a.e('s_waitcnt lgkmcnt(0)')
    a.e('s_barrier')
    stamp(a, 33)
    for r in range(2):
        P = 16 + 32 * r
        for wv in range(4):
            a.e(f'ds_read_b128 v[{P+8*wv}:{P+8*wv+3}], v{VR2} offset:{wv*PARTW + r*8*PROW}')
            a.e(f'ds_read_b128 v[{P+8*wv+4}:{P+8*wv+7}], v{VR2} offset:{wv*PARTW + r*8*PROW + 112}')
    a.e('s_waitcnt vmcnt(0)')
    for r in range(2):
        P = 16 + 32 * r
        T = 80
        H = V_HR + 4 * r
        a.e(f'v_lshlrev_b32 v106, 16, v{V_HR+8+r}')
        for i in range(4):
            a.e(f'v_lshlrev_b32 v{96+i}, 16, v{H+i}')
            a.e(f'v_and_b32 v{100+i}, 0xffff0000, v{H+i}')
        a.e(f's_waitcnt lgkmcnt({8 if r == 0 else 0})')
        sum_partials(a, P)
        round_pairs(a, P, T, 8)
        for h in range(4):
            a.e(f'v_pk_add_f32 v[{P+2*h}:{P+2*h+1}], v[{P+2*h}:{P+2*h+1}], v[106:107] op_sel:[0,0] op_sel_hi:[1,0]')
        round_pairs(a, P, T, 8)
        for h in range(4):
            a.e(f'v_pk_add_f32 v[{P+2*h}:{P+2*h+1}], v[{P+2*h}:{P+2*h+1}], v[{96+2*h}:{97+2*h}]')
        O = 88 + 4 * r
        for i in range(4):
            a.e(f'v_cvt_pk_bf16_f32 v{O+i}, v{P+i}, v{P+4+i}')
        if r == 1:
            a.e(f'v_add_u32 v{V_OUT}, {8*896}, v{V_OUT}')
        a.e(f'buffer_store_dwordx4 v[{O}:{O+3}], v{V_OUT}, s[{S_T2}:{S_T2+3}], 0 offen' + ['', ' sc1', ' nt', ' sc0 sc1', ' sc1 nt'][OPT['outsc']])


HEADER = """;
"""


def build():
    a = Prog()
    name = NAME + '_kernel'
    lend = a.lab('end')
    a.raw(f'.globl {name}')
    a.raw('.p2align 8')
    a.raw(f'.type {name},@function')
    a.raw(f'{name}:')
    prologue(a, lend)
    lnc1, lnc2, lnc3, lnc5, lnc6 = [a.lab('noconv') for _ in range(5)]

    def skip_if_helper(l):
        a.e(f's_cmp_ge_u32 s{S_LOC}, 28')
        a.e(f's_cbranch_scc1 {l}')

    load_xrows(a)
    ncp = 0
    if OPT['cpf'] & 2:
        code_prefetch1(a, name, 'kcode_end')
        ncp = 1
    a.e(f's_add_u32 s66, s{P_WS}, {WS_EPOCH}')
    a.e(f's_addc_u32 s67, s{P_WS+1}, 0')
    a.e('s_load_dword s99, s[66:67], 0')
    poison_regs(a)
    skip_if_helper(lnc1)
    nt = 0
    if not OPT['plate']:
        kgen_loads(a)
        load_gather_table(a, 'ktab_idx')
        w_setup(a)
        if OPT['tlb'] & 2:
            nt = tlb_touch(a)
        flag_addr(a)
        if OPT['hoist']:
            hoist_common(a)
            hoist_conv(a)
        a.e('s_waitcnt lgkmcnt(0)')
        a.e(f's_add_u32 s{S_TAG}, s99, 0x9e3779b9')
        a.e(f's_waitcnt vmcnt({10 + nt + ncp})')
        stamp(a, 2)
        clear_hh(a)
        clear_aout(a)
    else:
        kgen_loads(a, 'setup')
        w_setup(a)
        flag_addr(a)
        a.e(f's_waitcnt vmcnt({ncp})')
        stamp(a, 2)
        kgen_loads(a, 'issue')
        clear_hh(a)
        clear_aout(a)
        load_gather_table(a, 'ktab_idx')
        if OPT['tlb'] & 2:
            nt = tlb_touch(a)
        a.e('s_waitcnt lgkmcnt(0)')
        a.e(f's_add_u32 s{S_TAG}, s99, 0x9e3779b9')
    ln_stats(a, list(range(8, 16)), 16, L_RED0, 5)
    stamp(a, 3)
    publish_xn(a)
    nb0 = OPT['wb0']
    if OPT['sched'] == 2:
        qa, qb = OPT['qa'], OPT['qb']
        qpf_load(a, qa)
        stamp(a, 4)
        a.e(f's_waitcnt vmcnt({8 + nt + qa})')
        kgen_channel(a, 0, DK0)
        for k in range(nb0):
            w_dma(a, 1, k, BS[k])
        stamp(a, 40)
        kgen_channel(a, 1, DK1, mid=lambda: publish_flag(a, qa + 4 * nb0), mid_m0=False)
        stamp(a, 5)
        qpf_load(a, qb)
        a.e(f's_waitcnt vmcnt({qb})')
        for k in range(nb0):
            w_tr(a, k, BS[k])
        ktab_part1(a)
        stamp(a, 6)
        flag_load(a)
        ktab_part2(a)
        stamp(a, 7)
        a.e(f's_mov_b32 s{S_EARLY}, 0')
        lne = a.lab('notearly')
        a.e('s_waitcnt vmcnt(0)')
        a.e(f'v_cmp_ne_u32 vcc, s{S_TAG}, v{V_FV}')
        a.e(f's_cbranch_vccnz {lne}')
        load_u(a)
        a.e(f's_mov_b32 s{S_EARLY}, 1')
        a.e(f'{lne}:')
        conv_addr(a)
        kcopies(a)
        stamp(a, 8)
        lhave = a.lab('haveu')
        a.e(f's_cmp_lg_u32 s{S_EARLY}, 0')
        a.e(f's_cbranch_scc1 {lhave}')
        flag_poll(a)
        load_u(a)
        a.e(f'{lhave}:')
        stamp(a, 9)
        store_u(a, 0)
    elif OPT['sched'] == 3:
        nq = (448 - OPT['hR']) // 32
        ne = 0
        if OPT['cearly']:
            assert OPT['regc']
            for k in range(2):
                w_dma(a, 1, k, f'C{k}')
            q4 = min(OPT['q4'], nq)
            qpf_load(a, q4)
            ne = 8 + q4
            nq -= q4
        stamp(a, 4)
        a.e(f's_waitcnt vmcnt({8 + nt + ne})')
        m0 = kgen_channel(a, 0, DK0, defer=bool(OPT['kdefer']))
        if not OPT['flagmid']:
            publish_flag(a, ne)
        if OPT['regc']:
            nb0 = 2
            if not OPT['cearly']:
                for k in range(2):
                    w_dma(a, 1, k, f'C{k}')
        else:
            for k in range(nb0):
                w_dma(a, 1, k, BS[k])
        if OPT['cearly']:
            qpf_load(a, nq)
            nq = 0
        stamp(a, 40)
        if OPT['flagmid']:
            assert OPT['regc'] and not OPT['cearly']
            kgen_channel(a, 1, DK1, mid=lambda: publish_flag(a, 8), mid_m0=False)
        else:
            kgen_channel(a, 1, DK1, after_setup=m0)
        stamp(a, 5)
        flag_load(a)
        qpf_load(a, nq)
        if not OPT['regc']:
            a.e(f's_waitcnt vmcnt({nq + 1})')
            for k in range(nb0):
                w_tr(a, k, BS[k])
        ktab_part1(a)
        stamp(a, 6)
        a.e(f's_mov_b32 s{S_EARLY}, 0')
        lne = a.lab('notearly')
        a.e(f's_waitcnt vmcnt({nq})')
        a.e(f'v_cmp_ne_u32 vcc, s{S_TAG}, v{V_FV}')

        def early_u():
            a.e(f's_cbranch_vccnz {lne}')
            load_u(a)
            a.e(f's_mov_b32 s{S_EARLY}, 1')
            a.e(f'{lne}:')
        if OPT['uov']:
            assert OPT['hoist']
            ktab_part2(a, mid=early_u)
        else:
            early_u()
            ktab_part2(a)
        stamp(a, 7)
        if not OPT['hoist']:
            conv_addr(a)
        kcopies(a)
        stamp(a, 8)
        lhave = a.lab('haveu')
        a.e(f's_cmp_lg_u32 s{S_EARLY}, 0')
        a.e(f's_cbranch_scc1 {lhave}')
        flag_poll(a)
        load_u(a)
        a.e(f'{lhave}:')
        stamp(a, 9)
        store_u(a, 0)
    else:
        stamp(a, 4)
        a.e(f's_waitcnt vmcnt({8 + nt})')
        kgen_channel(a, 0, DK0)
        publish_flag(a)
        for k in range(min(nb0, 3)):
            w_dma(a, 1, k, BS[k])
        stamp(a, 40)
        kgen_channel(a, 1, DK1, mid=(lambda: [w_dma(a, 1, k, BS[k]) for k in range(3, nb0)]) if nb0 > 3 else None)
        stamp(a, 5)
        if OPT['early']:
            flag_load(a)
            a.e('s_waitcnt vmcnt(1)')
        else:
            a.e('s_waitcnt vmcnt(0)')
        for k in range(nb0):
            w_tr(a, k, BS[k])
        ktab_part1(a)
        stamp(a, 6)
        a.e(f's_mov_b32 s{S_EARLY}, 0')
        lne = a.lab('notearly')
        if OPT['early']:
            a.e('s_waitcnt vmcnt(0)')
            a.e(f'v_cmp_ne_u32 vcc, s{S_TAG}, v{V_FV}')
            a.e(f's_cbranch_vccnz {lne}')
            load_u(a)
            a.e(f's_mov_b32 s{S_EARLY}, 1')
            a.e(f'{lne}:')
        qpf_load(a, OPT['w2pf_a'])
        ktab_part2(a)
        stamp(a, 7)
        if not OPT['hoist']:
            conv_addr(a)
        kcopies(a)
        stamp(a, 8)
        lhave = a.lab('haveu')
        a.e(f's_cmp_lg_u32 s{S_EARLY}, 0')
        a.e(f's_cbranch_scc1 {lhave}')
        flag_poll(a)
        load_u(a)
        a.e('s_waitcnt vmcnt(0)')
        a.e(f'{lhave}:')
        stamp(a, 9)
        store_u(a, OPT['w2pf_a'])
    epoch_update(a)
    clear_g(a)
    if OPT['sched'] == 1:
        qpf_load(a, OPT['w2pf_b'])
    stamp(a, 10)
    hk = []
    cre = OPT['cre'] and OPT['regc']
    if cre:
        for k in range(2):
            w_tr(a, k, f'C{k}')
        for k, sl in enumerate(AS + ['C0', 'C1']):
            for i in range(4):
                hk.append(lambda k=k, sl=sl, i=i: w_dma1(a, 1, 2 + k, sl, i))
                if i % 2 == 1:
                    hk.append(lambda: None)
    else:
        for k in range(4):
            for i in range(4):
                hk.append(lambda k=k, i=i: w_dma1(a, 1, nb0 + k, AS[k], i))
                hk.append(lambda: None)
    if OPT['nohk']:
        hk = []
    elif OPT['hkpos'] == 1:
        hk = [h for i, h in enumerate(hk) if i % 2 == 0]
    elif OPT['hkpos'] == 2:
        hk = [lambda: None] * 18 + [h for i, h in enumerate(hk) if i % 2 == 0]
    ndma = 0 if OPT['nohk'] else (24 if cre else 16)
    if OPT['cvvm']:
        phase_conv(a, hk, ndma)
        stamp(a, 12)
        a.e('s_waitcnt vmcnt(2)')
    else:
        phase_conv(a, hk, 0)
        stamp(a, 12)
    if cre:
        for k, sl in enumerate(AS + ['C0', 'C1']):
            w_tr(a, 2 + k, sl)
        nb0 = 4
    else:
        if OPT['regc']:
            for k in range(2):
                w_tr(a, k, f'C{k}')
        for k in range(4):
            w_tr(a, nb0 + k, AS[k])
    a.e('s_waitcnt lgkmcnt(0)')
    a.e('s_barrier')
    rest = list(range(nb0 + 4, 16))
    last = None
    if len(rest) > 9:
        last = rest.pop()
    rest_slots = (BS + AS)[:len(rest)]
    p4d = []
    if OPT['p4dma']:
        assert OPT['hpriv']
        p4d = [lambda k=k, sl=sl, i=i: w_dma1(a, 1, k, sl, i) for k, sl in zip(rest, rest_slots) for i in range(4)]
    else:
        for k, sl in zip(rest, rest_slots):
            w_dma(a, 1, k, sl)
    stamp(a, 13)
    a.e(f's_branch {lnc2}')
    a.e(f'{lnc1}:')
    nh = 0
    if OPT['cpf'] & 1:
        code_prefetch(a, name, 'kcode_end')
        nh += 3
    w_setup(a)
    if OPT['tlb'] & 1:
        nh += tlb_touch(a)
    flag_addr(a)
    if OPT['hoist']:
        hoist_common(a)
    a.e('s_waitcnt lgkmcnt(0)')
    a.e(f's_add_u32 s{S_TAG}, s99, 0x9e3779b9')
    a.e(f's_waitcnt vmcnt({nh + ncp})')
    clear_hh(a)
    ln_stats(a, list(range(8, 16)), 16, L_RED0, 5)
    publish_xn(a)
    publish_flag(a)
    if OPT['sched'] == 3 and OPT['hsplit']:
        qpf_load(a, (448 - OPT['hR']) // 32)

        def hcheck():
            lok = a.lab('hflags')
            a.e(f'v_cmp_ne_u32 vcc, s{S_TAG}, v{V_FV}')
            a.e(f's_cbranch_vccz {lok}')
            flag_poll(a)
            a.e(f'{lok}:')
            a.e('s_barrier')
        helper_w2(a, OPT['hR'], mid=(OPT['hn1'], lambda: flag_load(a), hcheck))
        stamp(a, 41)
    else:
        if OPT['sched'] == 3:
            qpf_load(a, (448 - OPT['hR']) // 32)
            helper_w2(a, OPT['hR'])
        else:
            qpf_load(a, 14)
        stamp(a, 41)
        flag_poll(a)
        a.e('s_barrier')
    if p4d:
        a.e(f's_mov_b32 s{S_W1+2}, 0')
    stamp(a, 42)
    a.e(f'{lnc2}:')
    phase_p4(a, p4d)
    stamp(a, 20)
    gemm2_addr(a)
    skip_if_helper(lnc3)
    b1_load(a)
    if p4d:
        a.e('s_waitcnt vmcnt(2)')
    for k, sl in zip(rest, rest_slots):
        w_tr(a, k, sl)
    a.e('s_waitcnt lgkmcnt(0)')
    if last is not None:
        w_dma(a, 1, last, 'A0')
    for k in range(5):
        w_dma(a, 2, k, BS[k])
    if last is not None:
        a.e('s_waitcnt vmcnt(20)')
        w_tr(a, last, 'A0')
        a.e('s_waitcnt lgkmcnt(0)')
    if OPT['prebar']:
        a.e('s_barrier')
    stamp(a, 21)
    w2sh = OPT['w2sh'] and OPT['stchk'] and OPT['h4early']

    def side1(kn):
        if 6 <= kn <= 10:
            return capture(lambda p: w_tr(p, kn - 6, BS[kn - 6])), 0
        if 13 <= kn <= 15:
            pre = ['s_waitcnt lgkmcnt(0)'] if kn == 13 else []
            return pre + capture(lambda p: w_dma(p, 2, kn - 8, BS[kn - 13])), 4
        return [], 0

    gemm_poll_main(a, WS_HH, 64, 16, 1, 22, side=side1 if w2sh else None)
    stamp(a, 23)
    if OPT['h4early']:
        if not w2sh:
            for k in range(5):
                w_tr(a, k, BS[k])
            a.e('s_waitcnt lgkmcnt(0)')
            for k in range(5, 5 + OPT['npre']):
                w_dma(a, 2, k, BS[k - 5])
        if OPT['e1dma']:
            d0 = [lambda k=k, i=i: w_dma1(a, 2, k, BS[k - 5], i) for k in range(8, 10) for i in range(4)]
            d1 = [lambda k=k, i=i: w_dma1(a, 2, k, AS[k - 10], i) for k in range(10, 14) for i in range(4)]
            gemm1_epilogue(a, d0, d1)
            stamp(a, 25)
            w1, w2, w3 = 26, 18, 1
        else:
            gemm1_epilogue(a)
            stamp(a, 25)
            npre = 3 if w2sh else OPT['npre']
            for k in range(5 + npre, 10):
                w_dma(a, 2, k, BS[k - 5])
            a.e('s_barrier')
            for k in range(10, 14):
                w_dma(a, 2, k, AS[k - 10])
            w1, w2, w3 = 24 + (0 if npre < 3 else 0), 16, 0
            w1 = 26 if npre == 3 else 24
        a.e(f's_waitcnt vmcnt({w1})')
        for k in range(5, 8):
            w_tr(a, k, BS[k - 5])
        a.e(f's_waitcnt vmcnt({w2})')
        for k in range(8, 10):
            w_tr(a, k, BS[k - 5])
        a.e(f's_waitcnt vmcnt({w3})')
        for k in range(10, 14):
            w_tr(a, k, AS[k - 10])
        a.e('s_waitcnt lgkmcnt(0)')
        a.e(f's_branch {lnc6}')
    else:
        gemm1_epilogue(a)
        stamp(a, 25)
        for k in range(5):
            w_tr(a, k, BS[k])
        a.e('s_waitcnt lgkmcnt(0)')
        a.e('s_barrier')
        a.e(f's_branch {lnc5}')
    a.e(f'{lnc3}:')
    for k in range(5):
        w_dma(a, 2, k, BS[k])
    a.e('s_waitcnt vmcnt(0)')
    for k in range(5):
        w_tr(a, k, BS[k])
    a.e('s_waitcnt lgkmcnt(0)')
    a.e(f'{lnc5}:')
    for k in range(5, 10):
        w_dma(a, 2, k, BS[k - 5])
    for k in range(10, 14):
        w_dma(a, 2, k, AS[k - 10])
    a.e('s_waitcnt vmcnt(16)')
    for k in range(5, 10):
        w_tr(a, k, BS[k - 5])
    a.e('s_waitcnt vmcnt(0)')
    for k in range(10, 14):
        w_tr(a, k, AS[k - 10])
    a.e('s_waitcnt lgkmcnt(0)')
    a.e(f'{lnc6}:')
    if OPT['prebar']:
        a.e('s_barrier')
    stamp(a, 30)
    gemm_poll_main(a, WS_G, 56, 14, 2, 31, gemm2_tail_loads)
    stamp(a, 32)
    gemm2_epilogue(a)
    stamp_clk(a, 61)
    stamp(a, 63)
    stamp_flush(a)
    a.e(f'{lend}:')
    a.e('s_endpgm')
    for emit in STUBS:
        emit()
    del STUBS[:]
    a.raw('kcode_end:')
    emit_gather_table(a, 'ktab_idx')
    nn = a.fast_insert_nops()
    head = f'; @launch grid=(256,1,1) block=(256,1,1) lds={LDS_BYTES}\n'
    head += HEADER
    head += '.amdgcn_target "amdgcn-amd-amdhsa--gfx950"\n.text\n'
    tail = '.section .rodata,"a"\n.p2align 6\n' + descriptor(name)
    if OPT['align']:
        nal = a.align8(head, tail)
        sys.stderr.write(f'alignment: {nal}\n')
    sys.stderr.write(f'instructions: {a.count()}, nops inserted: {nn}\n')
    return head + a.text() + tail


if __name__ == '__main__':
    out = sys.argv[1]
    for arg in sys.argv[2:]:
        if arg == 'stamps':
            OPT['stamps'] = True
        elif arg == 'dbg':
            OPT['stamps'] = True
            OPT['dbgsel'] = [0, 1, 2, 4, 8, 9, 12, 13, 14, 20, 21, 23, 25, 30, 32, 63]
        elif '=' in arg:
            k, v = arg.split('=')
            OPT[k] = int(v)
    open(out, 'w').write(build())
```

```python
import sys
import gen
from gen import (Prog, NAME, L, D, F, XBYTES, PBYTES, W1BYTES, W2BYTES, OOB, fx, srd, reduce16, cmul, exp_bf16,
                 gather_table, emit_gather_table, descriptor, round_pairs, norm_tok, bcast_stats)

OPT = dict(xe1=1, xe2=1, cvvm=1, cvbar=1, prebar=1, lastw=1, slp=0, hn1=11, hsplit=0, hoist=0, cre=0, uov=0, tlbout=0, kdefer=1, flagmid=0, npre=3, nohk=0, hkpos=0, w2sh=1, stchk=1, p4dma=0, p4ev=6, e1dma=0, plate=0, cearly=0, q4=4, hpriv=1, regc=1, hR=320, c4=1, kgrp=3, tlbg=21, cpf=1, sched=3, qa=7, qb=7, tlb=3, outsc=0, x3oob=1, h4early=1, wb0=3, xnb=1, stamps=False, dbgsel=None, w2pf_a=10, w2pf_b=4, nfl=3, early=True, align=True, hlds=True)

WS_FLAG = 0x4000
WS_EPOCH = 0x9000
WS_AOUT = 0x10000
AST = 8448
WS_H = 0x200000
WS_HH = 0x400000
WS_G = 0x600000
WS_DBG = 0x800000
WS_XN = 0xA00000
XCS = 4352
XPS = 2 * XCS
WS_USED = 0x1000000

L_RED0, L_RED1, L_SIG, L_KT = 0, 256, 512, 640
KTCH = 1600
L_U = L_KT + 2 * KTCH
UCH = 4608
L_SCR = L_U + 2 * UCH
SROW = 272
YROW = 41
SCRW = 57 * SROW
L_KC = 82688
KCOPY = 4160
KCH = 8 * KCOPY
L_CP = L_KC
LDS_BYTES = 160 * 1024
L_WA, L_WB = 13056, 78592
L_WC = 123904
L_PART = 1024
PROW = 272
PARTW = 64 * PROW
L_HT = 1024

S_WS, S_X = 4, 8
S_T0, S_T1, S_T2, S_T3 = 12, 16, 20, 24
S_W1, S_W2 = 12, 16
S_W, S_XCD, S_LOC, S_B, S_P, S_J, S_I1, S_I2 = 28, 29, 30, 31, 32, 33, 34, 35
P_X, P_LAR, P_AI, P_CR, P_CI, P_LDT, P_DSK = 36, 38, 40, 42, 44, 46, 48
P_W1, P_B1, P_W2, P_B2, P_OUT, P_DBG, P_WS = 52, 54, 56, 58, 60, 62, 64
S_SA, S_SB = 50, 51
S_RW1, S_RX1, S_RW2, S_RX2 = 38, 39, 40, 41
S_QPF = 42
S_EARLY = 43
S_SC = 44
V_TC = 236
S_TAG, S_SPIN, S_RETRY = 96, 97, 98
V_D1, V_D2, V_TA, V_TB = 224, 228, 244, 248
V_QPF = 232
SPIN_MAX, RETRY_MAX = 4000, 20
AS = ['A0', 'A1', 'A2', 'A3']
BS = ['B0', 'B1', 'B2', 'B3', 'B4']
WSR = f's[{S_WS}:{S_WS+3}]'

assert (gen.S_W, gen.S_B, gen.S_WS) == (S_W, S_B, S_WS)


def stamp(a, idx):
    if not OPT['stamps']:
        return
    sel = OPT['dbgsel']
    if sel is not None:
        if idx not in sel:
            return
        idx = sel.index(idx)
    a.e('s_memrealtime s[100:101]')
    a.e('s_waitcnt lgkmcnt(0)')
    a.e(f'v_writelane_b32 v255, s100, {idx}')


def stamp_clk(a, idx):
    if not OPT['stamps'] or OPT['dbgsel'] is not None:
        return
    a.e('s_memtime s[100:101]')
    a.e('s_waitcnt lgkmcnt(0)')
    a.e(f'v_writelane_b32 v255, s100, {idx}')


def stamp_flush(a):
    if not OPT['stamps']:
        return
    l = a.lab('nost')
    a.e(f's_cmp_lg_u32 s{S_W}, 0')
    a.e(f's_cbranch_scc1 {l}')
    if OPT['dbgsel'] is not None:
        a.e('v_not_b32 v253, v255')
        a.e('v_cmp_eq_u32 vcc, 0, v1')
        a.e('v_cndmask_b32 v255, v255, v253, vcc')
        a.e('v_lshlrev_b32 v254, 2, v1')
        a.e('s_mov_b64 exec, 0xffff')
        a.e(f'global_atomic_umax v254, v255, s[{P_DBG}:{P_DBG+1}]')
        a.e('s_mov_b64 exec, -1')
    else:
        a.e('s_lshl_b32 s66, s2, 8')
        a.e(f's_add_u32 s66, s66, {WS_DBG}')
        a.e('v_lshl_add_u32 v254, v1, 2, s66')
        a.e(f'buffer_store_dword v255, v254, {WSR}, 0 offen')
    a.e(f'{l}:')


def spin_tail(a, lp):
    if OPT['slp']:
        a.e(f's_sleep {OPT["slp"]}')
    a.e(f's_add_u32 s{S_SPIN}, s{S_SPIN}, 1')
    a.e(f's_cmp_lt_u32 s{S_SPIN}, {SPIN_MAX}')
    a.e(f's_cbranch_scc1 {lp}')


def mask_lanes(a, v, n, tmp, src='v1'):
    a.e(f'v_mov_b32 v{tmp}, {OOB}')
    a.e(f'v_cmp_gt_u32 vcc, {n}, {src}')
    a.e(f'v_cndmask_b32 v{v}, v{tmp}, v{v}, vcc')


def prologue(a, lend):
    a.e('s_cmp_ge_u32 s2, 256')
    a.e(f's_cbranch_scc1 {lend}')
    if OPT['stamps']:
        a.e('v_mov_b32 v255, 0')
        stamp(a, 0)
        stamp_clk(a, 60)
    a.e('s_load_dwordx16 s[36:51], s[0:1], 0')
    a.e('s_load_dwordx8 s[52:59], s[0:1], 64')
    a.e('s_load_dwordx4 s[60:63], s[0:1], 96')
    a.e('s_load_dwordx2 s[64:65], s[0:1], 112')
    a.e('v_and_b32 v1, 63, v0')
    a.e('v_lshrrev_b32 v2, 6, v0')
    a.e(f's_and_b32 s{S_XCD}, s2, 7')
    a.e(f'v_readfirstlane_b32 s{S_W}, v2')
    a.e(f's_lshr_b32 s{S_LOC}, s2, 3')
    a.e(f's_lshl_b32 s{S_B}, s{S_XCD}, 5')
    a.e(f's_add_u32 s{S_B}, s{S_B}, s{S_LOC}')
    a.e(f's_mul_i32 s{S_P}, s{S_XCD}, 28')
    a.e(f's_add_u32 s{S_P}, s{S_P}, s{S_LOC}')
    a.e(f's_and_b32 s{S_J}, s{S_XCD}, 1')
    a.e(f's_lshl_b32 s{S_J}, s{S_J}, 2')
    a.e(f's_and_b32 s3, s{S_LOC}, 3')
    a.e(f's_add_u32 s{S_J}, s{S_J}, s3')
    a.e(f's_lshr_b32 s3, s{S_XCD}, 1')
    a.e(f's_lshr_b32 s66, s{S_LOC}, 2')
    a.e(f's_mul_i32 s{S_I1}, s3, 7')
    a.e(f's_add_u32 s{S_I1}, s{S_I1}, s66')
    a.e(f's_lshl_b32 s{S_I2}, s3, 3')
    a.e(f's_add_u32 s{S_I2}, s{S_I2}, s66')
    a.e('s_waitcnt lgkmcnt(0)')
    srd(a, S_X, P_X, XBYTES)
    srd(a, S_WS, P_WS, WS_USED)
    stamp(a, 1)


def xrow_addr(a):
    a.e(f's_mul_i32 s66, s{S_W}, 224')
    a.e(f's_mul_i32 s67, s{S_B}, {8*896}')
    a.e('s_add_u32 s66, s66, s67')
    a.e('v_lshl_add_u32 v2, v1, 2, s66')
    mask_lanes(a, 2, 56, 3)
    a.e('v_add_u32 v3, 4480, v2')


def load_xrows(a):
    xrow_addr(a)
    for j in range(8):
        v, o = (2, j * 896) if j < 5 else (3, (j - 5) * 896)
        a.e(f'buffer_load_dword v{8+j}, v{v}, s[{S_X}:{S_X+3}], 0 offen offset:{o}')


def ln_stats(a, X, T, red, vt, mid=None):
    a.e('s_mov_b32 s66, 0x3f803f80')
    for j in range(8):
        a.e(f'v_dot2_f32_bf16 v{T+j}, v{X[j]}, s66, 0')
        a.e(f'v_dot2_f32_bf16 v{T+8+j}, v{X[j]}, v{X[j]}, 0')
    a.e(f'v_lshlrev_b32 v{vt}, 2, v1')
    a.e(f'v_and_b32 v{vt}, 0xf0, v{vt}')
    a.e(f's_lshl_b32 s66, s{S_W}, 2')
    a.e(f'v_add_u32 v{vt}, s66, v{vt}')
    reduce16(a, [T + i for i in range(16)])
    a.inj_pause()
    a.e('s_mov_b32 exec_lo, 0x11111111')
    a.e('s_mov_b32 exec_hi, 0x11111111')
    a.e(f'ds_write_b32 v{vt}, v{T} offset:{red}')
    a.e('s_mov_b64 exec, -1')
    a.inj_resume()
    a.e(f'v_and_b32 v{vt}, 7, v1')
    a.e(f'v_lshlrev_b32 v{vt}, 4, v{vt}')
    a.e('s_waitcnt lgkmcnt(0)')
    a.e('s_barrier')
    a.e(f'ds_read_b128 v[{T}:{T+3}], v{vt} offset:{red}')
    a.e(f'ds_read_b128 v[{T+4}:{T+7}], v{vt} offset:{red+128}')
    n_mid = mid() if mid else 0
    a.e(f's_waitcnt lgkmcnt({1 + n_mid})')
    a.e(f'v_pk_add_f32 v[{T}:{T+1}], v[{T}:{T+1}], v[{T+2}:{T+3}]')
    a.e(f's_waitcnt lgkmcnt({n_mid})')
    a.e(f'v_pk_add_f32 v[{T+4}:{T+5}], v[{T+4}:{T+5}], v[{T+6}:{T+7}]')
    a.e(f'v_add_f32 v{T}, v{T}, v{T+1}')
    a.e(f'v_add_f32 v{T+4}, v{T+4}, v{T+5}')
    a.e(f'v_mul_f32 v{T}, {fx(1.0/448)}, v{T}')
    a.e(f'v_mul_f32 v{T+4}, {fx(1.0/448)}, v{T+4}')
    a.e(f'v_fma_f32 v{T+4}, -v{T}, v{T}, v{T+4}')
    a.e(f'v_max_f32 v{T+4}, 0, v{T+4}')
    a.e(f'v_cvt_pk_bf16_f32 v{T+4}, v{T+4}, v{T+4}')
    a.e(f'v_lshlrev_b32 v{T+4}, 16, v{T+4}')
    a.e(f'v_add_f32 v{T+4}, {fx(1e-5)}, v{T+4}')
    a.e(f'v_cvt_pk_bf16_f32 v{T+4}, v{T+4}, v{T+4}')
    a.e(f'v_lshlrev_b32 v{T+4}, 16, v{T+4}')
    a.e(f'v_sqrt_f32 v{T+4}, v{T+4}')
    a.e(f'v_cvt_pk_bf16_f32 v{T}, v{T}, v{T+4}')


def poison_regs(a):
    for r in range(216, 220):
        a.e(f'v_mov_b32 v{r}, -1')


def clear_hh(a):
    if OPT['hoist']:
        a.e(f'buffer_store_dwordx4 v[216:219], v184, {WSR}, 0 offen sc1')
        a.e(f'buffer_store_dwordx4 v[216:219], v185, {WSR}, 0 offen sc1')
        return
    a.e(f's_mul_i32 s66, s{S_B}, 7168')
    a.e(f's_add_u32 s66, s66, {WS_HH}')
    a.e('v_lshl_add_u32 v4, v0, 4, s66')
    a.e('v_add_u32 v5, 4096, v4')
    mask_lanes(a, 5, 192, 6, 'v0')
    a.e(f'buffer_store_dwordx4 v[216:219], v4, {WSR}, 0 offen sc1')
    a.e(f'buffer_store_dwordx4 v[216:219], v5, {WSR}, 0 offen sc1')


def clear_aout(a):
    if OPT['hoist']:
        a.e(f'buffer_store_dwordx4 v[216:219], v186, {WSR}, 0 offen sc1')
        a.e(f'buffer_store_dwordx4 v[216:219], v187, {WSR}, 0 offen sc1')
        return
    a.e(f's_mul_i32 s66, s{S_P}, {AST}')
    a.e(f's_add_u32 s66, s66, {WS_AOUT}')
    a.e('v_lshl_add_u32 v4, v0, 4, s66')
    a.e('v_add_u32 v5, 4096, v4')
    a.e(f'buffer_store_dwordx4 v[216:219], v4, {WSR}, 0 offen sc1')
    a.e(f'buffer_store_dwordx4 v[216:219], v5, {WSR}, 0 offen sc1')


def g_store_addr(a, vd):
    a.e(f's_lshl_b32 s66, s{S_I1}, 3')
    a.e(f's_lshl_b32 s70, s{S_W}, 1')
    a.e('s_add_u32 s66, s66, s70')
    a.e('s_mul_i32 s66, s66, 7168')
    a.e(f's_mul_i32 s70, s{S_J}, 896')
    a.e('s_add_u32 s66, s66, s70')
    a.e(f's_add_u32 s66, s66, {WS_G}')
    a.e(f'v_lshl_add_u32 v{vd}, v1, 4, s66')
    mask_lanes(a, vd, 56, 6)


def clear_g(a):
    if OPT['hoist']:
        a.e('v_add_u32 v5, 7168, v240')
        a.e(f'buffer_store_dwordx4 v[216:219], v240, {WSR}, 0 offen sc1')
        a.e(f'buffer_store_dwordx4 v[216:219], v5, {WSR}, 0 offen sc1')
        return
    g_store_addr(a, 4)
    a.e('v_add_u32 v5, 7168, v4')
    a.e(f'buffer_store_dwordx4 v[216:219], v4, {WSR}, 0 offen sc1')
    a.e(f'buffer_store_dwordx4 v[216:219], v5, {WSR}, 0 offen sc1')


def publish_xn(a):
    bcast_stats(a, 16)
    for j in range(8):
        d = 64 + 2 * j
        t = 48 + j
        a.e(f'v_lshlrev_b32 v{d}, 16, v{8+j}')
        a.e(f'v_and_b32 v{d+1}, 0xffff0000, v{8+j}')
        a.e(f'v_pk_add_f32 v[{d}:{d+1}], v[{d}:{d+1}], s[{72+2*j}:{73+2*j}] op_sel:[0,0] op_sel_hi:[1,0] neg_lo:[0,1] neg_hi:[0,1]')
        a.e(f'v_cvt_pk_bf16_f32 v{t}, v{d}, v{d+1}')
        a.e(f'v_lshlrev_b32 v{d}, 16, v{t}')
        a.e(f'v_and_b32 v{d+1}, 0xffff0000, v{t}')
        a.e(f'v_pk_mul_f32 v[{d}:{d+1}], v[{d}:{d+1}], s[{72+2*j}:{73+2*j}] op_sel:[0,1] op_sel_hi:[1,1]')
        a.e(f'v_cvt_pk_bf16_f32 v{t}, v{d}, v{d+1}')
        a.e(f'v_lshlrev_b32 v{d}, 16, v{t}')
        a.e(f'v_and_b32 v{d+1}, 0xffff0000, v{t}')
    for i in range(4):
        a.e(f'v_cvt_pk_f16_f32 v{80+i}, v{64+4*i}, v{66+4*i}')
        a.e(f'v_cvt_pk_f16_f32 v{84+i}, v{65+4*i}, v{67+4*i}')
    if OPT['hoist']:
        assert OPT['xnb']
        a.e(f'buffer_store_dwordx4 v[80:83], v188, {WSR}, 0 offen sc1')
        a.e(f'buffer_store_dwordx4 v[84:87], v189, {WSR}, 0 offen sc1')
        return
    if OPT['xnb']:
        a.e(f's_mul_i32 s66, s{S_W}, {56*16}')
        a.e(f's_mul_i32 s67, s{S_B}, 7168')
        a.e('s_add_u32 s66, s66, s67')
        a.e(f's_add_u32 s66, s66, {WS_XN}')
        a.e('v_lshl_add_u32 v4, v1, 4, s66')
        mask_lanes(a, 4, 56, 5)
        a.e('v_add_u32 v5, 3584, v4')
    else:
        a.e(f's_mul_i32 s66, s{S_W}, {56*XPS}')
        a.e(f's_lshl_b32 s67, s{S_B}, 4')
        a.e('s_add_u32 s66, s66, s67')
        a.e(f's_add_u32 s66, s66, {WS_XN}')
        a.e(f'v_mul_u32_u24 v4, {XPS}, v1')
        a.e('v_add_u32 v4, s66, v4')
        mask_lanes(a, 4, 56, 5)
        a.e(f'v_add_u32 v5, {XCS}, v4')
    a.e(f'buffer_store_dwordx4 v[80:83], v4, {WSR}, 0 offen sc1')
    a.e(f'buffer_store_dwordx4 v[84:87], v5, {WSR}, 0 offen sc1')


def publish_flag(a, vm=0):
    a.e(f's_waitcnt vmcnt({vm})')
    a.e('s_barrier')
    l = a.lab('noflag')
    a.e(f's_cmp_lg_u32 s{S_W}, 0')
    a.e(f's_cbranch_scc1 {l}')
    a.e(f's_lshl_b32 s66, s{S_B}, 6')
    a.e(f's_add_u32 s66, s66, {WS_FLAG}')
    a.e('v_mov_b32 v2, s66')
    a.e(f'v_mov_b32 v3, s{S_TAG}')
    a.e('s_mov_b64 exec, 1')
    a.e(f'buffer_store_dword v3, v2, {WSR}, 0 offen sc1')
    a.e('s_mov_b64 exec, -1')
    a.e(f'{l}:')


V_FA, V_FV = 233, 234


def flag_addr(a):
    a.e(f'v_lshlrev_b32 v{V_FA}, 6, v0')
    a.e(f'v_add_u32 v{V_FA}, {WS_FLAG}, v{V_FA}')


def flag_load(a):
    a.e(f'buffer_load_dword v{V_FV}, v{V_FA}, {WSR}, 0 offen sc1')


def flag_poll(a):
    lp, ld = a.lab('fpoll'), a.lab('fdone')
    a.e(f's_mov_b32 s{S_SPIN}, 0')
    a.e(f'{lp}:')
    flag_load(a)
    a.e('s_waitcnt vmcnt(0)')
    a.e(f'v_cmp_ne_u32 vcc, s{S_TAG}, v{V_FV}')
    a.e(f's_cbranch_vccz {ld}')
    spin_tail(a, lp)
    a.e(f'{ld}:')


def load_u(a):
    if OPT['hoist']:
        a.e(f'buffer_load_dwordx4 v[176:179], v190, {WSR}, 0 offen sc1')
        a.e(f'buffer_load_dwordx4 v[180:183], v191, {WSR}, 0 offen sc1')
        return
    if OPT['xnb']:
        a.e(f's_lshl_b32 s66, s{S_P}, 4')
        a.e(f's_add_u32 s66, s66, {WS_XN}')
        a.e('v_mul_u32_u24 v2, 7168, v0')
        a.e('v_add_u32 v2, s66, v2')
        a.e('v_add_u32 v3, 3584, v2')
    else:
        a.e(f's_mul_i32 s66, s{S_P}, {XPS}')
        a.e(f's_add_u32 s66, s66, {WS_XN}')
        a.e('v_lshl_add_u32 v2, v0, 4, s66')
        a.e(f'v_add_u32 v3, {XCS}, v2')
    a.e(f'buffer_load_dwordx4 v[176:179], v2, {WSR}, 0 offen sc1')
    a.e(f'buffer_load_dwordx4 v[180:183], v3, {WSR}, 0 offen sc1')


def epoch_update(a):
    le = a.lab('noep')
    a.e('s_cmp_lg_u32 s2, 0')
    a.e(f's_cbranch_scc1 {le}')
    a.e(f'v_mov_b32 v2, {WS_EPOCH}')
    a.e(f'v_mov_b32 v3, s{S_TAG}')
    a.e('s_mov_b64 exec, 1')
    a.e(f'buffer_store_dword v3, v2, {WSR}, 0 offen sc1')
    a.e('s_mov_b64 exec, -1')
    a.e(f'{le}:')


def code_prefetch(a, lstart, lend_):
    lp = a.lab('pcp')
    a.e('s_getpc_b64 s[74:75]')
    a.e(f'{lp}:')
    a.e(f's_sub_u32 s74, s74, {lp}-{lstart}')
    a.e('s_subb_u32 s75, s75, 0')
    a.e('v_lshlrev_b32 v4, 6, v0')
    a.e(f's_mov_b32 s76, {lend_}-{lstart}-4')
    a.e('v_add_u32 v5, 16384, v4')
    a.e('v_add_u32 v6, 32768, v4')
    a.e('v_min_u32 v4, s76, v4')
    a.e('v_min_u32 v5, s76, v5')
    a.e('v_min_u32 v6, s76, v6')
    a.e('global_load_dword v220, v4, s[74:75]')
    a.e('global_load_dword v220, v5, s[74:75]')
    a.e('global_load_dword v220, v6, s[74:75]')


def code_prefetch1(a, lstart, lend_):
    lp = a.lab('pcp')
    a.e('s_getpc_b64 s[74:75]')
    a.e(f'{lp}:')
    a.e('v_lshlrev_b32 v4, 6, v0')
    a.e(f's_mov_b32 s76, {lend_}-{lp}-4')
    a.e('v_min_u32 v4, s76, v4')
    a.e('global_load_dword v220, v4, s[74:75]')


def tlb_touch(a):
    g = OPT['tlbg']
    n = 0
    srd(a, S_T2, P_OUT, XBYTES)
    srd(a, S_T3, P_B2, L * 2)
    if g == 21:
        a.e('v_lshlrev_b32 v4, 21, v1')
        a.e('s_mov_b32 s70, 0x1f8000')
        for s_ in (S_W1, S_W2, S_WS, S_T2, S_T3) if OPT['tlbout'] else (S_W1, S_W2, S_WS, S_T3):
            a.e(f'buffer_load_dword v220, v4, s[{s_}:{s_+3}], {"s70" if s_ == S_WS else 0} offen')
            n += 1
    else:
        a.e(f'v_lshlrev_b32 v4, {g}, v0')
        for s_, nbytes in ((S_W1, W1BYTES), (S_W2, W2BYTES), (S_WS, 0xC00000), (S_T2, XBYTES), (S_T3, 4096)):
            for k in range(-(-nbytes // (256 << g))):
                a.e(f's_mov_b32 s70, {k * (256 << g)}')
                a.e(f'buffer_load_dword v220, v4, s[{s_}:{s_+3}], s70 offen')
                n += 1
    return n


def hoist_common(a):
    a.e(f's_mul_i32 s66, s{S_B}, 7168')
    a.e(f's_add_u32 s66, s66, {WS_HH}')
    a.e('v_lshl_add_u32 v184, v0, 4, s66')
    a.e('v_add_u32 v185, 4096, v184')
    mask_lanes(a, 185, 192, 6, 'v0')
    a.e(f's_mul_i32 s66, s{S_W}, {56*16}')
    a.e(f's_mul_i32 s67, s{S_B}, 7168')
    a.e('s_add_u32 s66, s66, s67')
    a.e(f's_add_u32 s66, s66, {WS_XN}')
    a.e('v_lshl_add_u32 v188, v1, 4, s66')
    mask_lanes(a, 188, 56, 5)
    a.e('v_add_u32 v189, 3584, v188')
    a.e('v_and_b32 v4, 15, v1')
    a.e(f'v_mul_u32_u24 v4, {PROW}, v4')
    a.e('v_lshrrev_b32 v5, 4, v1')
    a.e('v_lshl_add_u32 v4, v5, 4, v4')
    a.e(f's_mul_i32 s66, s{S_W}, {PARTW}')
    a.e(f's_add_u32 s66, s66, {L_PART}')
    a.e('v_add_u32 v241, s66, v4')
    a.e(f'v_mul_u32_u24 v5, {PROW}, v1')
    a.e(f's_lshl_b32 s66, s{S_W}, 6')
    a.e(f's_add_u32 s66, s66, {L_PART}')
    a.e('v_add_u32 v242, s66, v5')
    a.e('v_lshrrev_b32 v5, 3, v1')
    a.e('v_and_b32 v4, 7, v1')
    a.e(f's_lshl_b32 s66, s{S_W}, 4')
    a.e('v_add_u32 v5, s66, v5')
    a.e(f'v_mul_u32_u24 v6, {PROW}, v5')
    a.e('v_lshl_add_u32 v6, v4, 4, v6')
    a.e(f'v_add_u32 v243, {L_PART}, v6')
    g_store_addr(a, 240)
    a.e(f's_mul_i32 s67, s{S_B}, 7168')
    a.e(f's_mul_i32 s66, s{S_W}, 1792')
    a.e('s_add_u32 s66, s66, s67')
    a.e(f's_add_u32 s66, s66, {WS_HH}')
    a.e('v_lshl_add_u32 v213, v1, 4, s66')
    a.e('v_add_u32 v5, 448, v213')
    a.e('v_cmp_gt_u32 vcc, 28, v1')
    a.e('v_cndmask_b32 v213, v5, v213, vcc')
    mask_lanes(a, 213, 56, 5)


def hoist_conv(a):
    a.e(f's_mul_i32 s66, s{S_P}, {AST}')
    a.e(f's_add_u32 s66, s66, {WS_AOUT}')
    a.e('v_lshl_add_u32 v186, v0, 4, s66')
    a.e('v_add_u32 v187, 4096, v186')
    a.e(f's_lshl_b32 s66, s{S_P}, 4')
    a.e(f's_add_u32 s66, s66, {WS_XN}')
    a.e('v_mul_u32_u24 v190, 7168, v0')
    a.e('v_add_u32 v190, s66, v190')
    a.e('v_add_u32 v191, 3584, v190')
    conv_addr(a, 192, 193)
    CP, TS = L_CP, 1280
    a.e('v_and_b32 v3, 15, v1')
    a.e('v_lshlrev_b32 v2, 4, v3')
    a.e('v_lshrrev_b32 v3, 4, v1')
    a.e('v_mul_u32_u24 v3, 320, v3')
    a.e('v_add_u32 v2, v2, v3')
    a.e(f's_mul_i32 s70, s{S_W}, {8*TS}')
    a.e(f's_add_u32 s70, s70, {CP}')
    a.e('v_add_u32 v194, s70, v2')
    a.e('v_lshrrev_b32 v3, 2, v1')
    a.e('v_lshlrev_b32 v2, 4, v3')
    a.e('v_and_b32 v3, 3, v1')
    a.e('v_mul_u32_u24 v3, 320, v3')
    a.e('v_add_u32 v2, v2, v3')
    a.e(f's_lshl_b32 s70, s{S_W}, 1')
    a.e(f's_mul_i32 s71, s70, {TS}')
    a.e(f's_add_u32 s71, s71, {CP}')
    a.e('v_add_u32 v195, s71, v2')
    a.e('s_lshl_b32 s71, s70, 9')
    a.e(f's_add_u32 s71, s71, {L_U + 512}')
    a.e('v_lshl_add_u32 v206, v1, 3, s71')
    a.e(f's_mul_i32 s71, s{S_P}, {AST}')
    a.e('s_lshl_b32 s72, s70, 10')
    a.e('s_add_u32 s71, s71, s72')
    a.e(f's_add_u32 s71, s71, {WS_AOUT}')
    a.e('v_lshl_add_u32 v207, v1, 4, s71')


def kgen_loads(a, part=None):
    R = (S_T0, S_T1, S_T2, S_T3) if part is None else (72, 76, 80, 84)
    if part != 'issue':
        for r, p in zip(R, (P_LAR, P_AI, P_CR, P_CI)):
            srd(a, r, p, PBYTES)
        a.e(f's_lshl_b32 s66, s{S_P}, 10')
        a.e(f's_lshl_b32 s67, s{S_W}, 7')
        a.e('s_add_u32 s66, s66, s67')
        a.e('v_lshl_add_u32 v235, v1, 1, s66')
        a.e(f's_lshl_b32 s66, s{S_P}, 2')
        a.e(f's_load_dword s68, s[{P_LDT}:{P_LDT+1}], s66')
        a.e(f's_load_dword s69, s[{P_DSK}:{P_DSK+1}], s66')
    if part != 'setup':
        for c in range(2):
            for k, s in enumerate(R):
                a.e(f'buffer_load_ushort v{40+4*c+k}, v235, s[{s}:{s+3}], 0 offen offset:{512*c}')


def load_gather_table(a, tablabel):
    lp = a.lab('pc')
    a.e('s_getpc_b64 s[70:71]')
    a.e(f'{lp}:')
    a.e(f's_add_u32 s70, s70, {tablabel}-{lp}')
    a.e('s_addc_u32 s71, s71, 0')
    a.e('v_lshlrev_b32 v2, 5, v0')
    a.e('global_load_dwordx4 v[160:163], v2, s[70:71]')
    a.e('global_load_dwordx4 v[164:167], v2, s[70:71] offset:16')


DK0, DK1 = 16, 28


def kgen_channel(a, c, DACC, mid=None, mid_m0=True, after_setup=None, defer=False):
    LAR, AI, CR, CI = 40 + 4 * c, 41 + 4 * c, 42 + 4 * c, 43 + 4 * c
    SIG, DT = 52 + c, 54 + c
    AL, BE = 56, 57
    Z1, Z2, Z4, Z8, Z128, Z256, Z512, Z1024 = 58, 60, 62, 64, 66, 68, 70, 72
    X0, CA, CB, CC, T0, T1 = 74, 76, 78, 80, 82, 84
    CV = [86, 87, 88, 89]
    VW, VR = 90, 91
    t, t2 = 92, 93
    for r in (LAR, AI, CR, CI):
        a.e(f'v_lshlrev_b32 v{r}, 16, v{r}')
    a.e('s_lshl_b32 s66, s68, 16' if c == 0 else 's_and_b32 s66, s68, 0xffff0000')
    a.e(f'v_mov_b32 v{t2}, s66')
    exp_bf16(a, DT, t2, t)
    a.e(f'v_add_f32 v{SIG}, abs(v{CR}), abs(v{CI})')
    exp_bf16(a, AL, LAR, t)
    a.e(f'v_add_f32_dpp v{SIG}, v{SIG}, v{SIG} quad_perm:[1,0,3,2] row_mask:0xf bank_mask:0xf')
    a.e(f'v_mul_f32 v{AL}, v{AL}, v{DT}')
    a.e(f'v_mul_f32 v{BE}, v{AI}, v{DT}')
    a.e(f'v_add_f32_dpp v{SIG}, v{SIG}, v{SIG} quad_perm:[2,3,0,1] row_mask:0xf bank_mask:0xf')
    a.e(f'v_mul_f32 v{AL}, {fx(-1.4426950408889634)}, v{AL}')
    a.e(f'v_mul_f32 v{BE}, {fx(0.15915494309189535)}, v{BE}')
    a.e(f'v_add_f32_dpp v{SIG}, v{SIG}, v{SIG} row_half_mirror row_mask:0xf bank_mask:0xf')
    a.e(f'v_exp_f32 v{T0}, v{AL}')
    a.e(f'v_fract_f32 v{t}, v{BE}')
    a.e(f'v_add_f32_dpp v{SIG}, v{SIG}, v{SIG} row_ror:8 row_mask:0xf bank_mask:0xf')
    a.e(f'v_cos_f32 v{Z1}, v{t}')
    a.e(f'v_sin_f32 v{Z1+1}, v{t}')
    a.e(f'v_mov_b32 v{t2}, v{SIG}')
    a.e(f'v_mul_f32 v{T1}, 0x43000000, v{AL}')
    a.e(f'v_mul_f32 v{t}, 0x43000000, v{BE}')
    a.e(f'v_permlane16_swap_b32 v{SIG}, v{t2}')
    a.e(f'v_pk_mul_f32 v[{Z1}:{Z1+1}], v[{Z1}:{Z1+1}], v[{T0}:{T0+1}] op_sel:[0,0] op_sel_hi:[1,0]')
    a.e(f'v_add_f32 v{SIG}, v{SIG}, v{t2}')
    a.e(f'v_exp_f32 v{T1}, v{T1}')
    a.e(f'v_fract_f32 v{t}, v{t}')
    a.e(f'v_mov_b32 v{t2}, v{SIG}')
    a.e(f'v_cos_f32 v{Z128}, v{t}')
    a.e(f'v_sin_f32 v{Z128+1}, v{t}')
    a.e(f'v_permlane32_swap_b32 v{SIG}, v{t2}')
    cmul(a, Z2, Z1, Z1, Z2)
    a.e(f'v_add_f32 v{SIG}, v{SIG}, v{t2}')
    a.e(f'v_pk_mul_f32 v[{Z128}:{Z128+1}], v[{Z128}:{Z128+1}], v[{T1}:{T1+1}] op_sel:[0,0] op_sel_hi:[1,0]')
    a.e(f'v_add_f32 v{SIG}, {fx(1e-30)}, v{SIG}')
    cmul(a, Z4, Z2, Z2, Z4)
    a.e(f'v_rcp_f32 v{t}, v{SIG}')
    cmul(a, Z256, Z128, Z128, Z256)
    cmul(a, Z8, Z4, Z4, Z8)
    a.e(f'v_mul_f32 v{X0}, v{CR}, v{t}')
    a.e(f'v_mul_f32 v{X0+1}, v{CI}, v{t}')
    cmul(a, Z512, Z256, Z256, Z512)
    a.e(f's_mul_i32 s66, s{S_W}, {SCRW}')
    a.e(f's_add_u32 s66, s66, {L_SCR}')
    a.e('s_mov_b32 m0, s66')
    cmul(a, Z1024, Z512, Z512, Z1024)
    a.e(f'v_and_b32 v{t}, 15, v1')
    a.e(f'v_mul_u32_u24 v{t}, {SROW}, v{t}')
    a.e(f'v_lshrrev_b32 v{t2}, 4, v1')
    a.e(f'v_lshl_add_u32 v{t}, v{t2}, 4, v{t}')
    a.e(f'v_add_u32 v{VR}, s66, v{t}')
    cvi = [0]
    pend = []

    def flush(keep):
        while len(pend) > keep:
            cv, off = pend.pop(0)
            a.e(f'ds_write_addtid_b32 v{cv} offset:{off}')

    G = OPT['kgrp']
    if G > 1:
        CV = list(range(96, 112))
        if OPT['kdefer']:
            CV = list(range(168, 176))
    if after_setup is not None:
        after_setup()

    def put(off, r, neg):
        cv = CV[cvi[0] % len(CV)]
        cvi[0] += 1
        a.e(f'v_cvt_pk_f16_f32 v{cv}, v{r}, {"-" if neg else ""}v{r+1}')
        if G > 1:
            pend.append((cv, off))
            if len(pend) >= G + 1:
                flush(1)
        else:
            flush(1)
            pend.append((cv, off))

    def putX(row, r):
        put(row * SROW, r, True)

    def putY(b, r):
        put((YROW + b) * SROW, r, False)

    a.e(f'v_mov_b32 v{VW}, 0x00003c00')
    pend.append((VW, YROW * SROW))
    putY(1, Z8)
    ychain = {'cur': Z8, 'b': 1}
    YA, YB = CC, 94

    def ystep():
        if ychain['b'] >= 15:
            return
        d = YA if ychain['cur'] != YA else YB
        cmul(a, d, ychain['cur'], Z8, d)
        ychain['b'] += 1
        ychain['cur'] = d
        putY(ychain['b'], d)

    putX(0, X0)
    cmul(a, T0, X0, Z128, T0)
    putX(8, T0)
    cur = X0
    for j in range(1, 8):
        d = CA if cur != CA else CB
        cmul(a, d, cur, Z1, d)
        ystep()
        putX(j, d)
        cmul(a, T0, d, Z128, T0)
        putX(8 + j, T0)
        cur = d
    cmul(a, CA, X0, Z256, CA)
    ystep()
    putX(16, CA)
    cmul(a, T0, CA, Z128, T0)
    putX(20, T0)
    cur = CA
    for j in range(1, 4):
        d = CA if cur != CA else CB
        cmul(a, d, cur, Z2, d)
        ystep()
        putX(16 + j, d)
        cmul(a, T0, d, Z128, T0)
        putX(20 + j, T0)
        cur = d
    if mid is not None:
        if mid_m0:
            flush(0)
        mid()
        if mid_m0:
            a.e(f's_mul_i32 s66, s{S_W}, {SCRW}')
            a.e(f's_add_u32 s66, s66, {L_SCR}')
            a.e('s_mov_b32 m0, s66')
    cmul(a, CA, X0, Z512, CA)
    ystep()
    putX(24, CA)
    cmul(a, CB, CA, Z4, CB)
    ystep()
    putX(25, CB)
    pa, pb = CA, CB
    na, nb = T0, T1
    for q in range(1, 4):
        cmul(a, na, pa, Z128, na)
        cmul(a, nb, pb, Z128, nb)
        ystep()
        putX(24 + 2 * q, na)
        putX(25 + 2 * q, nb)
        pa, pb, na, nb = na, nb, pa, pb
    cmul(a, CA, X0, Z1024, CA)
    putX(32, CA)
    cur = CA
    for q in range(1, 9):
        d = CA if cur != CA else CB
        cmul(a, d, cur, Z128, d)
        putX(32 + q, d)
        cur = d
    while ychain['b'] < 15:
        ystep()
    flush(0)
    FA = 96
    for k in range(4):
        a.e(f'ds_read_b128 v[{144+4*k}:{147+4*k}], v{VR} offset:{YROW*SROW+64*k}')
        for T in range(3):
            r = FA + 16 * T + 4 * k
            a.e(f'ds_read_b128 v[{r}:{r+3}], v{VR} offset:{16*T*SROW+64*k}')
    def mfmas(waits=True):
        for k in range(4):
            if waits:
                a.e(f's_waitcnt lgkmcnt({4*(3-k)})')
            elif k == 0:
                a.e('s_waitcnt lgkmcnt(0)')
            for T in range(3):
                r = FA + 16 * T + 4 * k
                cc = '0' if k == 0 else f'v[{DACC+4*T}:{DACC+4*T+3}]'
                a.e(f'v_mfma_f32_16x16x32_f16 v[{DACC+4*T}:{DACC+4*T+3}], v[{r}:{r+3}], v[{144+4*k}:{147+4*k}], {cc}')

    if defer:
        return lambda: mfmas(waits=False)
    mfmas()


def ktab_part1(a):
    a.e(f's_mul_i32 s66, s{S_W}, {SCRW}')
    a.e(f's_add_u32 s66, s66, {L_SCR}')
    a.e('v_lshl_add_u32 v90, v1, 4, s66')
    a.e(f's_lshl_b32 s67, s{S_W}, 2')
    a.e(f's_add_u32 s67, s67, {L_SIG}')
    a.e('v_mov_b32 v91, s67')
    a.e('s_mov_b64 exec, 1')
    a.e('ds_write_b32 v91, v52')
    a.e('ds_write_b32 v91, v53 offset:16')
    a.e('s_mov_b64 exec, -1')
    for c, DK in ((0, DK0), (1, DK1)):
        for T in range(3):
            for h in range(2):
                i = DK + 4 * T + 2 * h
                a.e(f'v_pk_mul_f32 v[{i}:{i+1}], v[{i}:{i+1}], v[52:53] op_sel:[0,{c}] op_sel_hi:[1,{c}]')
            a.e(f'ds_write_b128 v90, v[{DK+4*T}:{DK+4*T+3}] offset:{c*3072+T*1024}')
    a.e('v_mov_b32 v96, 0')
    a.e('v_mov_b32 v97, 0')
    a.e('v_mov_b32 v98, 0')
    a.e('v_mov_b32 v99, 0')
    a.e(f'v_mov_b32 v92, {L_KT + 1536}')
    a.e('ds_write_b32 v92, v96')
    a.e(f'ds_write_b32 v92, v96 offset:{KTCH}')
    a.e('v_lshlrev_b32 v92, 3, v1')
    a.e(f'ds_write_b64 v92, v[96:97] offset:{L_U}')
    a.e(f'ds_write_b64 v92, v[96:97] offset:{L_U + UCH}')
    a.e('s_waitcnt lgkmcnt(0)')
    a.e('s_barrier')


def ktab_part2(a, mid=None):
    a.e(f'v_mov_b32 v91, {L_SIG}')
    a.e('ds_read_b128 v[44:47], v91')
    a.e('ds_read_b128 v[48:51], v91 offset:16')
    a.e(f's_and_b32 s67, s{S_W}, 1')
    a.e(f's_lshr_b32 s70, s{S_W}, 1')
    a.e('s_mul_i32 s71, s67, 3072')
    a.e('s_lshl_b32 s72, s70, 10')
    a.e('s_add_u32 s72, s72, s71')
    a.e(f's_add_u32 s72, s72, {L_SCR}')
    a.e(f's_add_u32 s71, s71, {L_SCR + 2048}')
    a.e('v_lshl_add_u32 v90, v1, 4, s72')
    a.e('v_lshl_add_u32 v91, v1, 4, s71')
    for wv in range(4):
        a.e(f'ds_read_b128 v[{96+4*wv}:{99+4*wv}], v90 offset:{wv*SCRW}')
    for wv in range(4):
        a.e(f'ds_read_b128 v[{112+4*wv}:{115+4*wv}], v91 offset:{wv*SCRW}')
    a.e('v_mov_b32 v128, 0')
    a.e('v_mov_b32 v129, 0')
    a.e('v_mov_b32 v130, 0')
    a.e('v_mov_b32 v131, 0')
    if OPT['c4']:
        a.e('v_and_b32 v132, 7, v1')
        a.e(f'v_mul_u32_u24 v132, {KCOPY}, v132')
        a.e('v_bfe_u32 v133, v1, 3, 1')
        a.e('v_lshl_add_u32 v132, v133, 4, v132')
    else:
        a.e('v_and_b32 v132, 15, v1')
        a.e(f'v_mul_u32_u24 v132, {KCOPY}, v132')
    a.e(f'v_add_u32 v132, {L_KC}, v132')
    a.e('ds_write_b128 v132, v[128:131] offset:4096')
    a.e('v_lshrrev_b32 v92, 4, v1')
    a.e('v_lshlrev_b32 v92, 7, v92')
    a.e('v_and_b32 v93, 15, v1')
    a.e('v_lshl_add_u32 v92, v93, 1, v92')
    a.e(f's_mul_i32 s71, s67, {KTCH}')
    a.e(f's_add_u32 s71, s71, {L_KT}')
    a.e('v_add_u32 v93, s71, v92')
    a.e('s_lshl_b32 s72, s70, 9')
    a.e('v_add_u32 v92, s72, v93')
    if mid is not None:
        mid()
    a.e('s_waitcnt lgkmcnt(9)')
    a.e('v_pk_add_f32 v[44:45], v[44:45], v[46:47]')
    a.e('v_pk_add_f32 v[48:49], v[48:49], v[50:51]')
    a.e('v_add_f32 v44, v44, v45')
    a.e('v_add_f32 v45, v48, v49')
    a.e('s_cmp_eq_u32 s67, 0')
    a.e('s_cselect_b64 vcc, -1, 0')
    a.e('v_pk_mul_f32 v[54:55], v[54:55], v[44:45]')
    a.e('v_cndmask_b32 v46, v45, v44, vcc')
    a.e('v_pk_add_f32 v[54:55], v[54:55], v[54:55]')
    a.e('v_rcp_f32 v46, v46')
    for jb, (base, va, off) in enumerate(((96, 92, 0), (112, 93, 1024))):
        a.e(f's_waitcnt lgkmcnt({5 if jb == 0 else 5})')
        for h in range(2):
            a.e(f'v_pk_add_f32 v[{base+2*h}:{base+2*h+1}], v[{base+2*h}:{base+2*h+1}], v[{base+4+2*h}:{base+5+2*h}]')
            a.e(f'v_pk_add_f32 v[{base+8+2*h}:{base+9+2*h}], v[{base+8+2*h}:{base+9+2*h}], v[{base+12+2*h}:{base+13+2*h}]')
        for h in range(2):
            a.e(f'v_pk_add_f32 v[{base+2*h}:{base+2*h+1}], v[{base+2*h}:{base+2*h+1}], v[{base+8+2*h}:{base+9+2*h}]')
        for h in range(2):
            a.e(f'v_pk_mul_f32 v[{base+2*h}:{base+2*h+1}], v[{base+2*h}:{base+2*h+1}], v[46:47] op_sel:[0,0] op_sel_hi:[1,0]')
        a.e(f'v_cvt_pk_f16_f32 v{base+4}, v{base}, v{base+1}')
        a.e(f'v_cvt_pk_f16_f32 v{base+5}, v{base+2}, v{base+3}')
        a.e(f'ds_write_b16 v{va}, v{base+4} offset:{off}')
        a.e(f'ds_write_b16_d16_hi v{va}, v{base+4} offset:{off+32}')
        a.e(f'ds_write_b16 v{va}, v{base+5} offset:{off+64}')
        a.e(f'ds_write_b16_d16_hi v{va}, v{base+5} offset:{off+96}')
    for e in range(11 if OPT['c4'] else 15):
        src = 160 + e // 2
        if e % 2 == 0:
            a.e(f'v_and_b32 v{136+e}, 0xffff, v{src}')
        else:
            a.e(f'v_lshrrev_b32 v{136+e}, 16, v{src}')
    a.e('s_waitcnt lgkmcnt(0)')
    a.e('s_barrier')


def kch():
    return (4 if OPT['c4'] else 8) * KCOPY


def kcopies(a):
    AD = 136
    a.e('v_lshlrev_b32 v111, 4, v0')
    a.e(f'v_add_u32 v111, {L_KC}, v111')
    RR = [96, 112]
    if OPT['c4']:
        for c in range(2):
            for e in range(11):
                a.e(f'ds_read_u16 v{RR[c]+e}, v{AD+e} offset:{L_KT + c*KTCH}')
        for c in range(2):
            R = RR[c]
            Da, Db, Oa, Ob = (56, 60, 64, 68) if c == 0 else (16, 20, 24, 28)
            a.e(f's_waitcnt lgkmcnt({11 if c == 0 else 4})')
            for i in range(4):
                a.e(f'v_lshl_or_b32 v{Da+i}, v{R+2*i+1}, 16, v{R+2*i}')
                a.e(f'v_lshl_or_b32 v{Oa+i}, v{R+2*i+2}, 16, v{R+2*i+1}')
                a.e(f'v_lshl_or_b32 v{Db+i}, v{R+2*i+3}, 16, v{R+2*i+2}')
                a.e(f'v_lshl_or_b32 v{Ob+i}, v{R+2*i+4}, 16, v{R+2*i+3}')
            for s_, r in ((0, Da), (1, Oa), (2, Db), (3, Ob)):
                a.e(f'ds_write_b128 v111, v[{r}:{r+3}] offset:{c*kch() + s_*KCOPY}')
        return
    for c in range(2):
        for e in range(15):
            a.e(f'ds_read_u16 v{RR[c]+e}, v{AD+e} offset:{L_KT + c*KTCH}')
    for c in range(2):
        R = RR[c]
        Da, Db, Oa, Ob = 56 + 0, 64, 72, 80
        if c == 1:
            Da, Db, Oa, Ob = 16, 24, 32, 40
        a.e(f's_waitcnt lgkmcnt({15 if c == 0 else 8})')
        for i in range(6):
            a.e(f'v_lshl_or_b32 v{Da+i}, v{R+2*i+1}, 16, v{R+2*i}')
            a.e(f'v_lshl_or_b32 v{Oa+i}, v{R+2*i+2}, 16, v{R+2*i+1}')
        if c == 1:
            a.e(f'v_add_u32 v110, {KCH}, v111')
        va = 111 if c == 0 else 110
        for s, r in ((0, Da), (1, Oa), (4, Da + 2), (5, Oa + 2)):
            a.e(f'ds_write_b128 v{va}, v[{r}:{r+3}] offset:{s*KCOPY}')
        for i in range(6):
            a.e(f'v_lshl_or_b32 v{Db+i}, v{R+2*i+3}, 16, v{R+2*i+2}')
            a.e(f'v_lshl_or_b32 v{Ob+i}, v{R+2*i+4}, 16, v{R+2*i+3}')
        for s, r in ((2, Db), (3, Ob), (6, Db + 2), (7, Ob + 2)):
            a.e(f'ds_write_b128 v{va}, v[{r}:{r+3}] offset:{s*KCOPY}')


def store_u(a, vm):
    a.e('v_lshlrev_b32 v2, 4, v0')
    a.e(f's_waitcnt vmcnt({vm})')
    a.e(f'ds_write_b128 v2, v[176:179] offset:{L_U + 512}')
    a.e(f'ds_write_b128 v2, v[180:183] offset:{L_U + UCH + 512}')
    a.e('s_waitcnt lgkmcnt(0)')
    a.e('s_barrier')


def phase_conv(a, hooks, pre_vm):
    hooks = list(hooks)
    ACC = 16
    FA = [[64 + 64 * s + 4 * i for i in range(8)] for s in range(2)]
    FB = [[96 + 64 * s + 4 * i for i in range(8)] for s in range(2)]
    VA, VB = (192, 193) if OPT['hoist'] else (48, 49)

    def loads(qq, s):
        out = []
        for i in range(8):
            out.append(f'ds_read_b128 v[{FB[s][i]}:{FB[s][i]+3}], v{VB} offset:{512*i + 64*(3-qq)}')
            if OPT['c4']:
                o = 512 * (7 - i) + 64 * (3 - qq)
                out.append(f'ds_read_b64 v[{FA[s][i]}:{FA[s][i]+1}], v{VA} offset:{o}')
                out.append(f'ds_read_b64 v[{FA[s][i]+2}:{FA[s][i]+3}], v{VA} offset:{o + 8}')
            else:
                out.append(f'ds_read_b128 v[{FA[s][i]}:{FA[s][i]+3}], v{VA} offset:{512*(7-i) + 64*(3-qq)}')
        return out

    for x in loads(0, 0):
        a.e(x)
    for qq in range(4):
        s = qq & 1
        nxt = loads(qq + 1, 1 - s) if qq < 3 else []
        n = 0
        for w in range(8):
            for c in range(w, 8):
                if n == 0:
                    a.e('s_waitcnt lgkmcnt(0)')
                    if qq == 3 and OPT['cvbar']:
                        a.e('s_barrier')
                cc = '0' if (qq == 0 and w == 0) else f'v[{ACC+4*c}:{ACC+4*c+3}]'
                a.e(f'v_mfma_f32_16x16x32_f16 v[{ACC+4*c}:{ACC+4*c+3}], v[{FA[s][w]}:{FA[s][w]+3}], v[{FB[s][c-w]}:{FB[s][c-w]+3}], {cc}')
                if nxt and (n % 2 == 1 or (OPT['c4'] and n % 4 == 0)):
                    a.e(nxt.pop(0))
                if hooks and n % 4 == 2:
                    hooks.pop(0)()
                n += 1
        assert not nxt
    assert not hooks
    stamp(a, 11)
    CP, TS = L_CP, 1280
    if OPT['hoist']:
        if not OPT['cvbar']:
            a.e('s_barrier')
        for c in range(8):
            a.e(f'ds_write_b128 v194, v[{ACC+4*c}:{ACC+4*c+3}] offset:{c*TS}')
        VRD, VU, VG = 195, 206, 207
    else:
        a.e('v_and_b32 v2, 15, v1')
        a.e('v_lshlrev_b32 v2, 4, v2')
        a.e('v_lshrrev_b32 v3, 4, v1')
        a.e('v_mul_u32_u24 v3, 320, v3')
        a.e('v_add_u32 v2, v2, v3')
        a.e(f's_mul_i32 s70, s{S_W}, {8*TS}')
        a.e(f's_add_u32 s70, s70, {CP}')
        a.e('v_add_u32 v2, s70, v2')
        if not OPT['cvbar']:
            a.e('s_barrier')
        for c in range(8):
            a.e(f'ds_write_b128 v2, v[{ACC+4*c}:{ACC+4*c+3}] offset:{c*TS}')
        a.e('v_lshrrev_b32 v2, 2, v1')
        a.e('v_lshlrev_b32 v2, 4, v2')
        a.e('v_and_b32 v3, 3, v1')
        a.e('v_mul_u32_u24 v3, 320, v3')
        a.e('v_add_u32 v2, v2, v3')
        a.e(f's_lshl_b32 s70, s{S_W}, 1')
        a.e(f's_mul_i32 s71, s70, {TS}')
        a.e(f's_add_u32 s71, s71, {CP}')
        a.e('v_add_u32 v2, s71, v2')
        a.e('s_lshl_b32 s71, s70, 9')
        a.e(f's_add_u32 s71, s71, {L_U + 512}')
        a.e('v_lshl_add_u32 v3, v1, 3, s71')
        a.e(f's_mul_i32 s71, s{S_P}, {AST}')
        a.e('s_lshl_b32 s72, s70, 10')
        a.e('s_add_u32 s71, s71, s72')
        a.e(f's_add_u32 s71, s71, {WS_AOUT}')
        a.e('v_lshl_add_u32 v4, v1, 4, s71')
        VRD, VU, VG = 2, 3, 4
    a.e('s_lshl_b32 s72, s69, 16')
    a.e('s_and_b32 s73, s69, 0xffff0000')
    a.e('v_mov_b32 v56, s72')
    a.e('v_mov_b32 v57, s73')
    a.e(f's_waitcnt lgkmcnt(0) vmcnt({pre_vm})')
    a.e('s_barrier')
    for q in range(2):
        P = 64 + 32 * q
        for ch in range(2):
            for hf in range(2):
                r = P + 8 * ch + 4 * hf
                a.e(f'ds_read_b128 v[{r}:{r+3}], v{VRD} offset:{(2*ch+hf)*8*TS + q*TS}')
        for ch in range(2):
            a.e(f'ds_read_b64 v[{P+16+2*ch}:{P+17+2*ch}], v{VU} offset:{ch*UCH + q*512}')
    for q in range(2):
        P = 64 + 32 * q
        a.e(f's_waitcnt lgkmcnt({6 if q == 0 else 0})')
        for ch in range(2):
            y = P + 8 * ch
            T = 128 + 16 * ch
            u = P + 16 + 2 * ch
            for h in range(2):
                a.e(f'v_pk_add_f32 v[{y+2*h}:{y+2*h+1}], v[{y+2*h}:{y+2*h+1}], v[{y+4+2*h}:{y+5+2*h}]')
            for i in range(4):
                a.e(f'v_fma_mix_f32 v{T+i}, v{u+i//2}, v{56+ch}, 0 op_sel:[{i%2},0,0] op_sel_hi:[1,0,0]')
            for h in range(2):
                a.e(f'v_pk_mul_f32 v[{y+2*h}:{y+2*h+1}], v[{y+2*h}:{y+2*h+1}], v[54:55] op_sel:[0,{ch}] op_sel_hi:[1,{ch}]')
            for h in range(2):
                a.e(f'v_cvt_pk_bf16_f32 v{T+6+h}, v{T+2*h}, v{T+2*h+1}')
                a.e(f'v_cvt_pk_bf16_f32 v{T+4+h}, v{y+2*h}, v{y+2*h+1}')
            for h in range(2):
                a.e(f'v_lshlrev_b32 v{T+2*h}, 16, v{T+6+h}')
                a.e(f'v_and_b32 v{T+2*h+1}, 0xffff0000, v{T+6+h}')
                a.e(f'v_lshlrev_b32 v{y+2*h}, 16, v{T+4+h}')
                a.e(f'v_and_b32 v{y+2*h+1}, 0xffff0000, v{T+4+h}')
            for h in range(2):
                a.e(f'v_pk_add_f32 v[{y+2*h}:{y+2*h+1}], v[{y+2*h}:{y+2*h+1}], v[{T+2*h}:{T+2*h+1}]')
        O = 160 + 4 * q
        for i in range(4):
            a.e(f'v_cvt_pk_bf16_f32 v{O+i}, v{P+i}, v{P+8+i}')
        a.e(f'buffer_store_dwordx4 v[{O}:{O+3}], v{VG}, {WSR}, 0 offen offset:{q*1024} sc1')


def conv_addr(a, va=48, vb=49):
    a.e(f's_lshr_b32 s66, s{S_W}, 1')
    a.e(f's_and_b32 s67, s{S_W}, 1')
    a.e('v_and_b32 v2, 7, v1')
    a.e('v_sub_u32 v2, 7, v2')
    if OPT['c4']:
        a.e('v_lshrrev_b32 v5, 2, v2')
        a.e('v_and_b32 v2, 3, v2')
        a.e(f'v_mul_u32_u24 v2, {KCOPY}, v2')
        a.e('v_lshl_add_u32 v2, v5, 3, v2')
    else:
        a.e(f'v_mul_u32_u24 v2, {KCOPY}, v2')
    a.e('v_lshrrev_b32 v3, 4, v1')
    a.e('v_bfe_u32 v4, v1, 3, 1')
    a.e('v_sub_u32 v4, v3, v4')
    a.e('v_lshl_add_u32 v2, v4, 4, v2')
    a.e(f's_mul_i32 s70, s66, {kch()}')
    a.e('s_lshl_b32 s71, s67, 8')
    a.e('s_sub_u32 s70, s70, s71')
    a.e(f's_add_u32 s70, s70, {L_KC + 16*253 - 512*7 - 64*3}')
    a.e(f'v_add_u32 v{va}, s70, v2')
    a.e('v_and_b32 v2, 15, v1')
    a.e('v_lshlrev_b32 v2, 5, v2')
    a.e('v_lshl_add_u32 v2, v3, 4, v2')
    a.e(f's_mul_i32 s70, s66, {UCH}')
    a.e('s_sub_u32 s70, s70, s71')
    a.e(f's_add_u32 s70, s70, {L_U + 480 - 64*3}')
    a.e(f'v_add_u32 v{vb}, s70, v2')


def phase_p4(a, dmas=()):
    X = list(range(8, 16))
    A = 32
    xrow_addr(a)
    a.e(f's_mul_i32 s66, s{S_W}, {56*AST}')
    a.e(f's_lshl_b32 s67, s{S_B}, 5')
    a.e('s_add_u32 s66, s66, s67')
    a.e(f's_add_u32 s66, s66, {WS_AOUT}')
    a.e(f'v_mul_u32_u24 v4, {AST}, v1')
    a.e('v_add_u32 v4, s66, v4')
    a.e(f'v_mov_b32 v5, {OOB}')
    a.e('v_cndmask_b32 v4, v5, v4, vcc')
    if OPT['hpriv']:
        a.e(f's_mul_i32 s66, s{S_W}, 1792')
        a.e(f's_add_u32 s66, s66, {L_HT}')
        a.e('v_lshl_add_u32 v6, v1, 2, s66')
        a.e('v_lshl_add_u32 v7, v1, 4, s66')
        a.e(f's_mul_i32 s66, s{S_B}, 7168')
        a.e(f's_mul_i32 s67, s{S_W}, 224')
        a.e('s_add_u32 s66, s66, s67')
        a.e(f's_add_u32 s66, s66, {WS_H}')
        for k, vd in ((0, 56), (64, 57)):
            a.e(f'v_add_u32 v58, {k}, v1')
            a.e('v_mul_u32_u24 v59, 4682, v58')
            a.e('v_lshrrev_b32 v59, 16, v59')
            a.e(f'v_mul_u32_u24 v{vd}, {896 - 224}, v59')
            a.e(f'v_lshl_add_u32 v{vd}, v58, 4, v{vd}')
            a.e(f'v_add_u32 v{vd}, s66, v{vd}')
        mask_lanes(a, 57, 48, 58)
    else:
        a.e(f's_mul_i32 s66, s{S_W}, 224')
        a.e(f's_add_u32 s66, s66, {L_HT}')
        a.e('v_lshl_add_u32 v6, v1, 2, s66')
    for j in range(8):
        a.e(f'v_lshlrev_b32 v{64+2*j}, 16, v{X[j]}')
        a.e(f'v_and_b32 v{65+2*j}, 0xffff0000, v{X[j]}')
    lp, ld = a.lab('h2poll'), a.lab('h2done')
    a.e(f's_mov_b32 s{S_SPIN}, 0')
    a.e(f'{lp}:')
    a.e(f'buffer_load_dwordx4 v[{A}:{A+3}], v4, {WSR}, 0 offen sc1')
    a.e(f'buffer_load_dwordx4 v[{A+4}:{A+7}], v4, {WSR}, 0 offen offset:16 sc1')
    a.e('s_waitcnt vmcnt(0)')
    a.e(f'v_max3_u32 v40, v{A}, v{A+1}, v{A+2}')
    a.e(f'v_max3_u32 v41, v{A+3}, v{A+4}, v{A+5}')
    a.e(f'v_max3_u32 v40, v40, v{A+6}, v{A+7}')
    a.e('v_max_u32 v40, v40, v41')
    a.e('v_cmp_eq_u32 vcc, -1, v40')
    a.e(f's_cbranch_vccz {ld}')
    spin_tail(a, lp)
    a.e(f'{ld}:')
    stamp(a, 14)
    H = list(range(48, 56))
    for j in range(8):
        t = 40 + 2 * (j % 4)
        a.e(f'v_lshlrev_b32 v{t}, 16, v{A+j}')
        a.e(f'v_and_b32 v{t+1}, 0xffff0000, v{A+j}')
        a.e(f'v_pk_add_f32 v[{t}:{t+1}], v[{t}:{t+1}], v[{64+2*j}:{65+2*j}]')
        a.e(f'v_cvt_pk_bf16_f32 v{H[j]}, v{t}, v{t+1}')
    a.e('s_mov_b32 exec_hi, 0x00ffffff')
    for j in range(8):
        a.e(f'ds_write_b32 v6, v{H[j]} offset:{j*(224 if OPT["hpriv"] else 896)}')
    a.e('s_mov_b32 exec_hi, -1')
    if OPT['hpriv']:
        a.e('ds_read_b128 v[32:35], v7')
        a.e('ds_read_b128 v[36:39], v7 offset:1024')
        a.e('s_waitcnt lgkmcnt(1)')
        a.e(f'buffer_store_dwordx4 v[32:35], v56, {WSR}, 0 offen sc1')
        a.e('s_waitcnt lgkmcnt(0)')
        a.e(f'buffer_store_dwordx4 v[36:39], v57, {WSR}, 0 offen sc1')
        if dmas:
            a.inject(dmas, OPT['p4ev'])
        ln_stats(a, H, 16, L_RED0, 5)
    else:
        def hstore():
            a.e('v_lshlrev_b32 v7, 4, v0')
            a.e(f'ds_read_b128 v[56:59], v7 offset:{L_HT}')
            a.e(f'ds_read_b128 v[60:63], v7 offset:{L_HT + 4096}')
            return 2

        ln_stats(a, H, 16, L_RED0, 5, mid=hstore)
        a.e(f's_mul_i32 s66, s{S_B}, 7168')
        a.e(f's_add_u32 s66, s66, {WS_H}')
        a.e('v_add_u32 v6, s66, v7')
        a.e('v_add_u32 v7, 4096, v6')
        mask_lanes(a, 7, 192, 4, 'v0')
        a.e('s_waitcnt lgkmcnt(0)')
        a.e(f'buffer_store_dwordx4 v[56:59], v6, {WSR}, 0 offen sc1')
        a.e(f'buffer_store_dwordx4 v[60:63], v7, {WSR}, 0 offen sc1')
    bcast_stats(a, 16)
    a.inj_pause()
    a.e('s_mov_b32 exec_hi, 0x00ffffff')
    for j in range(8):
        t = 40 + 2 * (j % 4)
        norm_tok(a, j, H[j], t)
        a.e(f'v_cvt_pk_bf16_f32 v{H[j]}, v{t}, v{t+1}')
    a.e('s_mov_b32 exec_hi, -1')
    a.inj_resume()
    ln_stats(a, H, 16, L_RED1, 5)
    bcast_stats(a, 16)
    VHH = 213 if OPT['hoist'] else 4
    if not OPT['hoist']:
        a.e(f's_mul_i32 s66, s{S_B}, 7168')
        a.e(f's_mul_i32 s67, s{S_W}, 1792')
        a.e('s_add_u32 s66, s66, s67')
        a.e(f's_add_u32 s66, s66, {WS_HH}')
        a.e('v_lshl_add_u32 v4, v1, 4, s66')
        a.e('v_add_u32 v5, 448, v4')
        a.e('v_cmp_gt_u32 vcc, 28, v1')
        a.e('v_cndmask_b32 v4, v5, v4, vcc')
        mask_lanes(a, 4, 56, 5)
    for j in range(8):
        norm_tok(a, j, H[j], 64 + 2 * j)
    O0, O1 = 80, 84
    for i in range(4):
        a.e(f'v_cvt_pk_bf16_f32 v{O0+i}, v{64+4*i}, v{66+4*i}')
        a.e(f'v_cvt_pk_bf16_f32 v{O1+i}, v{65+4*i}, v{67+4*i}')
    a.inj_flush()
    a.e(f's_waitcnt vmcnt({len(dmas)})')
    if not OPT['hpriv']:
        a.e('s_barrier')
    a.e(f'buffer_store_dwordx4 v[{O0}:{O0+3}], v{VHH}, {WSR}, 0 offen sc1')
    a.e(f'buffer_store_dwordx4 v[{O1}:{O1+3}], v{VHH}, {WSR}, 0 offen offset:448 sc1')


def w_setup(a):
    srd(a, S_W1, P_W1, W1BYTES)
    srd(a, S_W2, P_W2, W2BYTES)
    a.e('v_lshrrev_b32 v4, 3, v1')
    a.e('v_bfe_u32 v5, v1, 4, 1')
    a.e('v_lshlrev_b32 v5, 1, v5')
    a.e('v_and_b32 v6, 7, v1')
    a.e('v_xor_b32 v6, v6, v5')
    a.e('v_xor_b32 v7, 4, v6')
    for vd, rowbytes, tile, rows in ((V_D1, F * 2, S_I1, 512), (V_D2, L * 2, S_I2, 448)):
        a.e(f's_mov_b32 s66, {rowbytes}')
        a.e('v_mul_lo_u32 v5, v4, s66')
        a.e(f's_mul_i32 s67, s{S_W}, {rows*rowbytes}')
        a.e(f's_lshl_b32 s66, s{tile}, 7')
        a.e('s_add_u32 s67, s67, s66')
        a.e('v_add_u32 v5, s67, v5')
        for i in range(4):
            a.e(f'v_lshl_add_u32 v{vd+i}, v{6 + (i & 1)}, 4, v5')
            if i:
                a.e(f'v_add_u32 v{vd+i}, {i*(8*rowbytes - 1024)}, v{vd+i}')
    a.e('v_lshlrev_b32 v5, 12, v4')
    a.e('v_and_b32 v6, 7, v1')
    a.e(f'v_lshl_add_u32 v{V_QPF}, v6, 4, v5')
    a.e(f's_and_b32 s66, s{S_LOC}, 3')
    a.e('s_mul_i32 s66, s66, 448')
    if OPT['sched'] == 3:
        a.e(f's_mul_i32 s67, s{S_W}, {(448 - OPT["hR"]) // 4}')
        a.e(f's_add_u32 s67, s67, {OPT["hR"]}')
    else:
        a.e(f's_mul_i32 s67, s{S_W}, 112')
    a.e('s_add_u32 s66, s66, s67')
    a.e('s_lshl_b32 s66, s66, 12')
    a.e(f's_lshl_b32 s67, s{S_I2}, 7')
    a.e(f's_add_u32 s{S_QPF}, s66, s67')
    a.e('v_lshrrev_b32 v4, 4, v1')
    a.e('v_bfe_u32 v5, v1, 2, 2')
    a.e('v_lshl_add_u32 v5, v4, 3, v5')
    a.e('v_lshlrev_b32 v5, 7, v5')
    a.e('v_and_b32 v6, 1, v1')
    a.e('v_lshl_add_u32 v5, v6, 3, v5')
    a.e('v_bfe_u32 v6, v1, 1, 1')
    a.e('v_lshl_add_u32 v5, v6, 4, v5')
    a.e('v_bfe_u32 v6, v1, 3, 1')
    a.e('v_and_b32 v4, 1, v4')
    a.e('v_lshl_add_u32 v6, v4, 1, v6')
    a.e(f's_and_b32 s66, s{S_LOC}, 3')
    a.e(f's_lshr_b32 s67, s{S_LOC}, 2')
    a.e('s_lshl_b32 s67, s67, 1')
    a.e('s_lshl_b32 s70, s66, 2')
    a.e('s_add_u32 s70, s70, s67')
    a.e('s_and_b32 s70, s70, 15')
    a.e(f's_mul_i32 s{S_RW1}, s70, {32*F*2}')
    a.e(f's_mul_i32 s{S_RX1}, s70, {4*7168}')
    a.e('s_mul_i32 s66, s66, 7')
    a.e('s_lshr_b32 s66, s66, 1')
    a.e('s_add_u32 s66, s66, s67')
    for _ in range(2):
        a.e('s_cmp_ge_u32 s66, 14')
        a.e('s_cselect_b32 s67, 14, 0')
        a.e('s_sub_u32 s66, s66, s67')
    a.e(f's_mul_i32 s{S_RW2}, s66, {32*L*2}')
    a.e(f's_mul_i32 s{S_RX2}, s66, {4*7168}')
    a.e(f's_lshl_b32 s{S_SA}, s{S_W}, 14')
    a.e(f's_add_u32 s{S_SA}, s{S_SA}, {L_WA}')
    a.e(f's_mul_i32 s{S_SB}, s{S_W}, 20480')
    a.e(f's_add_u32 s{S_SB}, s{S_SB}, {L_WB}')
    a.e(f's_lshl_b32 s{S_SC}, s{S_W}, 13')
    a.e(f's_add_u32 s{S_SC}, s{S_SC}, {L_WC}')
    for mu in range(4):
        a.e(f'v_xor_b32 v4, {mu}, v6')
        a.e('v_lshl_add_u32 v4, v4, 5, v5')
        a.e(f'v_add_u32 v{V_TA+mu}, s{S_SA}, v4')
        a.e(f'v_add_u32 v{V_TB+mu}, s{S_SB}, v4')
        a.e(f'v_add_u32 v{V_TC+mu}, s{S_SC}, v4')


def rot_off(a, idx, sreg, n, unit):
    a.e(f's_add_u32 s70, s{sreg}, {idx*unit}')
    a.e(f's_cmp_ge_u32 s70, {n*unit}')
    a.e(f's_cselect_b32 s71, {n*unit}, 0')
    a.e('s_sub_u32 s70, s70, s71')


def slot(name):
    return {'A': (S_SA, V_TA), 'B': (S_SB, V_TB), 'C': (S_SC, V_TC)}[name[0]] + (int(name[1]),)


def w_dma1(a, mat, slab, sl, i):
    sb, _, si = slot(sl)
    vd, srd_, rowbytes = (V_D1, S_W1, F * 2) if mat == 1 else (V_D2, S_W2, L * 2)
    if i == 0:
        rot_off(a, slab, S_RW1 if mat == 1 else S_RW2, 16 if mat == 1 else 14, 32 * rowbytes)
        a.e(f's_add_u32 m0, s{sb}, {si*4096}')
    a.e(f'buffer_load_dwordx4 v{vd + i}, s[{srd_}:{srd_+3}], s70 offen offset:{1024*i} lds')


def w_dma(a, mat, slab, sl):
    for i in range(4):
        w_dma1(a, mat, slab, sl, i)


def w_tr(a, slab, sl):
    _, vt, si = slot(sl)
    for mu in range(4):
        r = (slab * 4 + mu) * 4
        a.e(f'ds_read_b64_tr_b16 a[{r}:{r+1}], v{vt+mu} offset:{si*4096}')
        a.e(f'ds_read_b64_tr_b16 a[{r+2}:{r+3}], v{vt+mu} offset:{si*4096 + 512}')


def helper_w2(a, nrows, mid=None):
    a.e(f's_lshr_b32 s66, s{S_XCD}, 1')
    a.e('s_lshl_b32 s66, s66, 10')
    a.e(f's_sub_u32 s67, s{S_LOC}, 28')
    a.e('s_mul_i32 s67, s67, 448')
    a.e(f's_add_u32 s67, s67, s{S_W}')
    a.e('s_lshl_b32 s67, s67, 12')
    a.e('s_add_u32 s90, s66, s67')
    a.e('v_lshlrev_b32 v4, 4, v1')

    def loop(n):
        if n <= 0:
            return
        l = a.lab('l2s')
        a.e(f's_mov_b32 s91, {n}')
        a.e(f'{l}:')
        for i in range(4):
            a.e(f'buffer_load_dwordx4 v[220:223], v4, s[{S_W2}:{S_W2+3}], s90 offen')
            a.e(f's_add_u32 s90, s90, {4*L*2}')
        a.e('s_waitcnt vmcnt(8)')
        a.e('s_sub_u32 s91, s91, 1')
        a.e('s_cmp_lg_u32 s91, 0')
        a.e(f's_cbranch_scc1 {l}')

    total = nrows // 16
    if mid is None:
        loop(total)
        return
    n1, issue, check = mid
    loop(n1)
    issue()
    loop(3)
    check()
    loop(total - n1 - 3)


def qpf_load(a, n):
    for _ in range(n):
        a.e(f'buffer_load_dwordx4 v[220:223], v{V_QPF}, s[{S_W2}:{S_W2+3}], s{S_QPF} offen')
        a.e(f's_add_u32 s{S_QPF}, s{S_QPF}, {8*L*2}')


ACC = 16
XS = 80
NS = 6
VMAX = 214
V_X0, V_X3 = 208, 209


def gemm_xaddr(a, ws_off, kblocks):
    a.e(f's_mul_i32 s66, s{S_W}, {kblocks*7168}')
    a.e(f's_mul_i32 s67, s{S_J}, 896')
    a.e('s_add_u32 s66, s66, s67')
    a.e(f's_add_u32 s66, s66, {ws_off}')
    a.e('v_lshrrev_b32 v4, 4, v1')
    a.e('v_mul_u32_u24 v4, 7168, v4')
    a.e('v_add_u32 v4, s66, v4')
    a.e('v_and_b32 v5, 15, v1')
    a.e(f'v_lshl_add_u32 v{V_X0}, v5, 4, v4')
    if OPT['x3oob']:
        a.e(f'v_add_u32 v{V_X3}, 768, v{V_X0}')
        a.e(f'v_mov_b32 v4, {OOB}')
        a.e('v_cmp_gt_u32 vcc, 8, v5')
        a.e(f'v_cndmask_b32 v{V_X3}, v4, v{V_X3}, vcc')
    else:
        a.e('v_and_b32 v5, 7, v1')
        a.e('v_lshl_add_u32 v4, v5, 4, v4')
        a.e(f'v_add_u32 v{V_X3}, 768, v4')


def gemm_xloads(a, kappa, gid):
    st = XS + 16 * (kappa % NS)
    out = []
    sreg, n = (S_RX1, 16) if gid == 1 else (S_RX2, 14)
    unit = 4 * 7168
    out.append(f's_add_u32 s70, s{sreg}, {kappa*unit}')
    out.append(f's_cmp_ge_u32 s70, {n*unit}')
    out.append(f's_cselect_b32 s71, {n*unit}, 0')
    out.append('s_sub_u32 s70, s70, s71')
    for nu in range(3):
        out.append(f'buffer_load_dwordx4 v[{st+4*nu}:{st+4*nu+3}], v{V_X0}, {WSR}, s70 offen offset:{256*nu} sc1')
    out.append(f'buffer_load_dwordx4 v[{st+12}:{st+15}], v{V_X3}, {WSR}, s70 offen sc1')
    return out


def gemm_main(a, nk, gid, tail_hook=None):
    nfl = OPT['nfl']
    w_is_a = gid == 1
    a.e(f'v_mov_b32 v{VMAX}, 0')
    extra = 0
    for k in range(nk):
        st = XS + 16 * (k % NS)
        rem = min(nfl - 1, nk - 1 - k)
        a.e(f's_waitcnt vmcnt({4*rem + extra})')
        if OPT['stamps'] and k in (0, 4, 8, 12):
            stamp(a, (44 if w_is_a else 51) + (0, 4, 8, 12).index(k))
        fill = gemm_xloads(a, k + nfl, gid) if k + nfl < nk else []
        if k + nfl == nk and tail_hook is not None:
            fill = []
            extra = tail_hook(fill)
        mx = [f'v_max3_u32 v{VMAX}, v{VMAX}, v{st+2*i}, v{st+2*i+1}' for i in range(8)]
        n = 0
        for mu in range(4):
            for nu in range(4):
                w = (k * 4 + mu) * 4
                x = st + 4 * nu
                if w_is_a:
                    acc = ACC + (mu * 4 + nu) * 4
                    A, B = f'a[{w}:{w+3}]', f'v[{x}:{x+3}]'
                else:
                    acc = ACC + (nu * 4 + mu) * 4
                    A, B = f'v[{x}:{x+3}]', f'a[{w}:{w+3}]'
                cc = '0' if k == 0 else f'v[{acc}:{acc+3}]'
                a.e(f'v_mfma_f32_16x16x32_bf16 v[{acc}:{acc+3}], {A}, {B}, {cc}')
                for _ in range(2):
                    if fill:
                        a.e(fill.pop(0))
                if not fill and mx and n >= 4:
                    a.e(mx.pop(0))
                n += 1
        assert not fill and not mx


def capture(fn):
    p = Prog()
    fn(p)
    return [it.text for it in p.items]


STUBS = []


def mfma_line(k, mu, nu, gid):
    st = XS + 16 * (k % NS)
    w = (k * 4 + mu) * 4
    x = st + 4 * nu
    if gid == 1:
        acc = ACC + (mu * 4 + nu) * 4
        A, B = f'a[{w}:{w+3}]', f'v[{x}:{x+3}]'
    else:
        acc = ACC + (nu * 4 + mu) * 4
        A, B = f'v[{x}:{x+3}]', f'a[{w}:{w+3}]'
    cc = '0' if k == 0 else f'v[{acc}:{acc+3}]'
    return f'v_mfma_f32_16x16x32_bf16 v[{acc}:{acc+3}], {A}, {B}, {cc}'


def poison_check(k):
    st = XS + 16 * (k % NS)
    out = [f'v_max3_u32 v{VMAX}, v{st}, v{st+1}, v{st+2}']
    for i in range(6):
        out.append(f'v_max3_u32 v{VMAX}, v{VMAX}, v{st+3+2*i}, v{st+4+2*i}')
    out.append(f'v_max_u32 v{VMAX}, v{VMAX}, v{st+15}')
    out.append(f'v_cmp_eq_u32 vcc, -1, v{VMAX}')
    return out


def gemm_checked(a, nk, gid, sb, tail_hook=None, side=None, issued=False):
    nfl = OPT['nfl']

    def slow(k):
        ls, lb, lp = a.lab('slow'), a.lab('back'), a.lab('sloop')

        def emit():
            a.e(f'{ls}:')
            a.e(f's_mov_b32 s{S_SPIN}, 0')
            a.e(f'{lp}:')
            for x in gemm_xloads(a, k, gid):
                a.e(x)
            a.e('s_waitcnt vmcnt(0)')
            for x in poison_check(k):
                a.e(x)
            ldone = a.lab('sdone')
            a.e(f's_cbranch_vccz {ldone}')
            spin_tail(a, lp)
            a.e(f'{ldone}:')
            if k == 0:
                for kk in range(1, min(nfl, nk - 1) + 1):
                    for x in gemm_xloads(a, kk, gid):
                        a.e(x)
            a.e(f's_branch {lb}')
        STUBS.append(emit)
        return ls, lb

    if not issued:
        for k in range(nfl):
            for x in gemm_xloads(a, k, gid):
                a.e(x)
    a.e(f's_waitcnt vmcnt({4*(nfl-1)})')
    for x in gemm_xloads(a, nfl, gid):
        a.e(x)
    for x in poison_check(0):
        a.e(x)
    ls, lb = slow(0)
    a.e(f's_cbranch_vccnz {ls}')
    a.e(f'{lb}:')
    stamp(a, sb)
    extra = 0
    for k in range(nk):
        lines = [mfma_line(k, mu, nu, gid) for mu in range(4) for nu in range(4)]
        for i in range(8):
            a.e(lines[i])
        if k + 1 < nk:
            kn = k + 1
            rem = min(nfl - 1, nk - 1 - kn)
            a.e(f's_waitcnt vmcnt({4*rem + extra})')
            if OPT['stamps'] and kn in (4, 8, 12):
                stamp(a, (44 if gid == 1 else 51) + (0, 4, 8, 12).index(kn))
            fill = gemm_xloads(a, kn + nfl, gid) if kn + nfl < nk else []
            if kn + nfl == nk and tail_hook is not None:
                extra = tail_hook(fill)
            if side is not None:
                lines_, nvm = side(kn)
                fill += lines_
                extra += nvm
            fill += poison_check(kn)
        else:
            fill = []
        per = -(-len(fill) // 8)
        for i in range(8, 16):
            a.e(lines[i])
            for _ in range(per):
                if fill:
                    a.e(fill.pop(0))
        assert not fill
        if k + 1 < nk:
            ls, lb = slow(k + 1)
            a.e(f's_cbranch_vccnz {ls}')
            a.e(f'{lb}:')


def sentinel(a, ws_off, kblocks):
    lp, ld = a.lab('spoll'), a.lab('sdone')
    a.e(f's_mul_i32 s66, s{S_W}, {kblocks*7168}')
    a.e(f's_mul_i32 s67, s{S_J}, 896')
    a.e('s_add_u32 s66, s66, s67')
    a.e(f's_add_u32 s66, s66, {ws_off + 55*16 + 12}')
    a.e('v_mul_u32_u24 v4, 7168, v1')
    a.e('v_add_u32 v4, s66, v4')
    if kblocks < 64:
        mask_lanes(a, 4, kblocks, 5)
    a.e(f's_mov_b32 s{S_SPIN}, 0')
    a.e(f'{lp}:')
    a.e(f'buffer_load_dword v5, v4, {WSR}, 0 offen sc1')
    a.e('s_waitcnt vmcnt(0)')
    a.e('v_cmp_eq_u32 vcc, -1, v5')
    a.e(f's_cbranch_vccz {ld}')
    spin_tail(a, lp)
    a.e(f'{ld}:')


def gemm_first_loads(a, ws_off, kblocks, gid):
    gemm_xaddr(a, ws_off, kblocks)
    for k in range(OPT['nfl']):
        for x in gemm_xloads(a, k, gid):
            a.e(x)
    return 4 * OPT['nfl']


def gemm_poll_main(a, ws_off, kblocks, nk, gid, sb, tail_hook=None, side=None, issued=False):
    lr, lok = a.lab('gretry'), a.lab('gok')
    if not issued:
        gemm_xaddr(a, ws_off, kblocks)
    if OPT['stchk']:
        gemm_checked(a, nk, gid, sb, tail_hook, side, issued)
        return
    a.e(f's_mov_b32 s{S_RETRY}, 0')
    a.e(f'{lr}:')
    sentinel(a, ws_off, kblocks)
    stamp(a, sb)
    for k in range(OPT['nfl']):
        for x in gemm_xloads(a, k, gid):
            a.e(x)
    gemm_main(a, nk, gid, tail_hook)
    a.e(f'v_cmp_eq_u32 vcc, -1, v{VMAX}')
    a.e(f's_cbranch_vccz {lok}')
    a.e(f's_add_u32 s{S_RETRY}, s{S_RETRY}, 1')
    a.e(f's_cmp_lt_u32 s{S_RETRY}, {RETRY_MAX}')
    a.e(f's_cbranch_scc1 {lr}')
    a.e(f'{lok}:')


def write_partials(a):
    if OPT['hoist']:
        va = 241
    else:
        va = 4
        a.e('v_and_b32 v4, 15, v1')
        a.e(f'v_mul_u32_u24 v4, {PROW}, v4')
        a.e('v_lshrrev_b32 v5, 4, v1')
        a.e('v_lshl_add_u32 v4, v5, 4, v4')
        a.e(f's_mul_i32 s66, s{S_W}, {PARTW}')
        a.e(f's_add_u32 s66, s66, {L_PART}')
        a.e('v_add_u32 v4, s66, v4')
    if not OPT['prebar']:
        a.e('s_barrier')
    for mt in range(4):
        for nt in range(4):
            acc = ACC + (mt * 4 + nt) * 4
            a.e(f'ds_write_b128 v{va}, v[{acc}:{acc+3}] offset:{nt*16*PROW + mt*64}')


def sum_partials(a, P):
    for h in range(4):
        a.e(f'v_pk_add_f32 v[{P+2*h}:{P+2*h+1}], v[{P+2*h}:{P+2*h+1}], v[{P+8+2*h}:{P+9+2*h}]')
        a.e(f'v_pk_add_f32 v[{P+16+2*h}:{P+17+2*h}], v[{P+16+2*h}:{P+17+2*h}], v[{P+24+2*h}:{P+25+2*h}]')
    for h in range(4):
        a.e(f'v_pk_add_f32 v[{P+2*h}:{P+2*h+1}], v[{P+2*h}:{P+2*h+1}], v[{P+16+2*h}:{P+17+2*h}]')


def b1_load(a):
    a.e(f's_lshl_b32 s67, s{S_I1}, 7')
    a.e(f's_lshl_b32 s70, s{S_W}, 5')
    a.e('s_add_u32 s67, s67, s70')
    a.e(f's_load_dwordx8 s[72:79], s[{P_B1}:{P_B1+1}], s67')


def gemm1_epilogue(a, d0=(), d1=()):
    write_partials(a)
    if OPT['hoist']:
        VR1, VG1 = 242, 240
    else:
        VR1, VG1 = 4, 5
        a.e(f'v_mul_u32_u24 v4, {PROW}, v1')
        a.e(f's_lshl_b32 s66, s{S_W}, 6')
        a.e(f's_add_u32 s66, s66, {L_PART}')
        a.e('v_add_u32 v4, s66, v4')
        g_store_addr(a, 5)
    C1 = 0.044715
    C2 = -2.0 * 0.7978845608028654 * 1.4426950408889634
    a.e(f'v_mov_b32 v100, {fx(C1*C2)}')
    a.e(f'v_mov_b32 v101, {fx(C1*C2)}')
    a.e(f'v_mov_b32 v102, {fx(C2)}')
    a.e(f'v_mov_b32 v103, {fx(C2)}')
    a.e('s_waitcnt lgkmcnt(0)')
    a.e('s_barrier')
    stamp(a, 24)
    for r in range(2):
        P = 16 + 32 * r
        for wv in range(4):
            a.e(f'ds_read_b128 v[{P+8*wv}:{P+8*wv+3}], v{VR1} offset:{wv*PARTW + r*32}')
            a.e(f'ds_read_b128 v[{P+8*wv+4}:{P+8*wv+7}], v{VR1} offset:{wv*PARTW + r*32 + 16}')
    for i in range(8):
        a.e(f's_lshl_b32 s{80+2*i}, s{72+i}, 16')
        a.e(f's_and_b32 s{81+2*i}, s{72+i}, 0xffff0000')
    for r in range(2):
        P = 16 + 32 * r
        T = 80
        a.e(f's_waitcnt lgkmcnt({8 if r == 0 else 0})')
        if r == 1 and d1:
            a.e('s_barrier')
        dd = d0 if r == 0 else d1
        if dd:
            a.inject(dd, max(1, 80 // len(dd)))
        sum_partials(a, P)
        round_pairs(a, P, T, 8)
        for h in range(4):
            a.e(f'v_pk_add_f32 v[{P+2*h}:{P+2*h+1}], v[{P+2*h}:{P+2*h+1}], s[{80+8*r+2*h}:{81+8*r+2*h}]')
        round_pairs(a, P, T, 8)
        for h in range(4):
            a.e(f'v_pk_mul_f32 v[{P+8+2*h}:{P+9+2*h}], v[{P+2*h}:{P+2*h+1}], v[{P+2*h}:{P+2*h+1}]')
        for h in range(4):
            a.e(f'v_pk_fma_f32 v[{P+8+2*h}:{P+9+2*h}], v[{P+8+2*h}:{P+9+2*h}], v[100:101], v[102:103]')
        for h in range(4):
            a.e(f'v_pk_mul_f32 v[{P+8+2*h}:{P+9+2*h}], v[{P+8+2*h}:{P+9+2*h}], v[{P+2*h}:{P+2*h+1}]')
        for i in range(8):
            a.e(f'v_exp_f32 v{P+8+i}, v{P+8+i}')
        for h in range(4):
            a.e(f'v_pk_add_f32 v[{P+8+2*h}:{P+9+2*h}], v[{P+8+2*h}:{P+9+2*h}], 1.0 op_sel_hi:[1,0]')
        for i in range(8):
            a.e(f'v_rcp_f32 v{P+8+i}, v{P+8+i}')
        for h in range(4):
            a.e(f'v_pk_mul_f32 v[{P+2*h}:{P+2*h+1}], v[{P+2*h}:{P+2*h+1}], v[{P+8+2*h}:{P+9+2*h}]')
        O = 88 + 4 * r
        for h in range(4):
            a.e(f'v_cvt_pk_bf16_f32 v{O+h}, v{P+2*h}, v{P+2*h+1}')
        a.inj_flush()
        if r == 1:
            a.e(f'v_add_u32 v{VG1}, 7168, v{VG1}')
        a.e(f'buffer_store_dwordx4 v[{O}:{O+3}], v{VG1}, {WSR}, 0 offen sc1')


V_OUT, V_HAD, V_B2 = 210, 211, 212
V_HR = 196


def gemm2_addr(a):
    srd(a, S_T2, P_OUT, XBYTES)
    srd(a, S_T3, P_B2, L * 2)
    a.e('v_lshrrev_b32 v4, 3, v1')
    a.e('v_and_b32 v5, 7, v1')
    a.e(f's_lshl_b32 s66, s{S_W}, 4')
    a.e('v_add_u32 v4, s66, v4')
    a.e(f's_lshl_b32 s67, s{S_I2}, 6')
    a.e('v_add_u32 v7, s67, v4')
    a.e(f'v_mul_u32_u24 v{V_OUT}, 896, v7')
    a.e(f'v_lshl_add_u32 v{V_OUT}, v5, 4, v{V_OUT}')
    a.e(f's_mul_i32 s70, s{S_J}, 112')
    a.e(f'v_add_u32 v{V_OUT}, s70, v{V_OUT}')
    a.e(f'v_mov_b32 v6, {OOB}')
    a.e('v_cmp_gt_u32 vcc, 7, v5')
    a.e(f'v_cndmask_b32 v{V_OUT}, v6, v{V_OUT}, vcc')
    a.e(f'v_add_u32 v{V_HAD}, {WS_H}, v{V_OUT}')
    a.e(f'v_lshlrev_b32 v{V_B2}, 1, v7')


def gemm2_tail_loads(fill):
    fill.append(f'buffer_load_dwordx4 v[{V_HR}:{V_HR+3}], v{V_HAD}, {WSR}, 0 offen sc1')
    fill.append(f's_mov_b32 s70, {8*896}')
    fill.append(f'buffer_load_dwordx4 v[{V_HR+4}:{V_HR+7}], v{V_HAD}, {WSR}, s70 offen sc1')
    fill.append(f'buffer_load_ushort v{V_HR+8}, v{V_B2}, s[{S_T3}:{S_T3+3}], 0 offen')
    fill.append(f'buffer_load_ushort v{V_HR+9}, v{V_B2}, s[{S_T3}:{S_T3+3}], 0 offen offset:16')
    return 4


def gemm2_epilogue(a):
    write_partials(a)
    if OPT['hoist']:
        VR2 = 243
    else:
        VR2 = 6
        a.e('v_lshrrev_b32 v4, 3, v1')
        a.e('v_and_b32 v5, 7, v1')
        a.e(f's_lshl_b32 s66, s{S_W}, 4')
        a.e('v_add_u32 v4, s66, v4')
        a.e(f'v_mul_u32_u24 v6, {PROW}, v4')
        a.e('v_lshl_add_u32 v6, v5, 4, v6')
        a.e(f'v_add_u32 v6, {L_PART}, v6')
    a.e('s_waitcnt lgkmcnt(0)')
    a.e('s_barrier')
    stamp(a, 33)
    for r in range(2):
        P = 16 + 32 * r
        for wv in range(4):
            a.e(f'ds_read_b128 v[{P+8*wv}:{P+8*wv+3}], v{VR2} offset:{wv*PARTW + r*8*PROW}')
            a.e(f'ds_read_b128 v[{P+8*wv+4}:{P+8*wv+7}], v{VR2} offset:{wv*PARTW + r*8*PROW + 112}')
    a.e('s_waitcnt vmcnt(0)')
    for r in range(2):
        P = 16 + 32 * r
        T = 80
        H = V_HR + 4 * r
        a.e(f'v_lshlrev_b32 v106, 16, v{V_HR+8+r}')
        for i in range(4):
            a.e(f'v_lshlrev_b32 v{96+i}, 16, v{H+i}')
            a.e(f'v_and_b32 v{100+i}, 0xffff0000, v{H+i}')
        a.e(f's_waitcnt lgkmcnt({8 if r == 0 else 0})')
        sum_partials(a, P)
        round_pairs(a, P, T, 8)
        for h in range(4):
            a.e(f'v_pk_add_f32 v[{P+2*h}:{P+2*h+1}], v[{P+2*h}:{P+2*h+1}], v[106:107] op_sel:[0,0] op_sel_hi:[1,0]')
        round_pairs(a, P, T, 8)
        for h in range(4):
            a.e(f'v_pk_add_f32 v[{P+2*h}:{P+2*h+1}], v[{P+2*h}:{P+2*h+1}], v[{96+2*h}:{97+2*h}]')
        O = 88 + 4 * r
        for i in range(4):
            a.e(f'v_cvt_pk_bf16_f32 v{O+i}, v{P+i}, v{P+4+i}')
        if r == 1:
            a.e(f'v_add_u32 v{V_OUT}, {8*896}, v{V_OUT}')
        a.e(f'buffer_store_dwordx4 v[{O}:{O+3}], v{V_OUT}, s[{S_T2}:{S_T2+3}], 0 offen' + ['', ' sc1', ' nt', ' sc0 sc1', ' sc1 nt'][OPT['outsc']])


HEADER = """;
"""


def build():
    a = Prog()
    name = NAME + '_kernel'
    lend = a.lab('end')
    a.raw(f'.globl {name}')
    a.raw('.p2align 8')
    a.raw(f'.type {name},@function')
    a.raw(f'{name}:')
    prologue(a, lend)
    lnc1, lnc2, lnc3, lnc5, lnc6 = [a.lab('noconv') for _ in range(5)]

    def skip_if_helper(l):
        a.e(f's_cmp_ge_u32 s{S_LOC}, 28')
        a.e(f's_cbranch_scc1 {l}')

    load_xrows(a)
    ncp = 0
    if OPT['cpf'] & 2:
        code_prefetch1(a, name, 'kcode_end')
        ncp = 1
    a.e(f's_add_u32 s66, s{P_WS}, {WS_EPOCH}')
    a.e(f's_addc_u32 s67, s{P_WS+1}, 0')
    a.e('s_load_dword s99, s[66:67], 0')
    poison_regs(a)
    skip_if_helper(lnc1)
    nt = 0
    if not OPT['plate']:
        kgen_loads(a)
        load_gather_table(a, 'ktab_idx')
        w_setup(a)
        if OPT['tlb'] & 2:
            nt = tlb_touch(a)
        flag_addr(a)
        if OPT['hoist']:
            hoist_common(a)
            hoist_conv(a)
        a.e('s_waitcnt lgkmcnt(0)')
        a.e(f's_add_u32 s{S_TAG}, s99, 0x9e3779b9')
        a.e(f's_waitcnt vmcnt({10 + nt + ncp})')
        stamp(a, 2)
        clear_hh(a)
        clear_aout(a)
    else:
        kgen_loads(a, 'setup')
        w_setup(a)
        flag_addr(a)
        a.e(f's_waitcnt vmcnt({ncp})')
        stamp(a, 2)
        kgen_loads(a, 'issue')
        clear_hh(a)
        clear_aout(a)
        load_gather_table(a, 'ktab_idx')
        if OPT['tlb'] & 2:
            nt = tlb_touch(a)
        a.e('s_waitcnt lgkmcnt(0)')
        a.e(f's_add_u32 s{S_TAG}, s99, 0x9e3779b9')
    ln_stats(a, list(range(8, 16)), 16, L_RED0, 5)
    stamp(a, 3)
    publish_xn(a)
    nb0 = OPT['wb0']
    if OPT['sched'] == 2:
        qa, qb = OPT['qa'], OPT['qb']
        qpf_load(a, qa)
        stamp(a, 4)
        a.e(f's_waitcnt vmcnt({8 + nt + qa})')
        kgen_channel(a, 0, DK0)
        for k in range(nb0):
            w_dma(a, 1, k, BS[k])
        stamp(a, 40)
        kgen_channel(a, 1, DK1, mid=lambda: publish_flag(a, qa + 4 * nb0), mid_m0=False)
        stamp(a, 5)
        qpf_load(a, qb)
        a.e(f's_waitcnt vmcnt({qb})')
        for k in range(nb0):
            w_tr(a, k, BS[k])
        ktab_part1(a)
        stamp(a, 6)
        flag_load(a)
        ktab_part2(a)
        stamp(a, 7)
        a.e(f's_mov_b32 s{S_EARLY}, 0')
        lne = a.lab('notearly')
        a.e('s_waitcnt vmcnt(0)')
        a.e(f'v_cmp_ne_u32 vcc, s{S_TAG}, v{V_FV}')
        a.e(f's_cbranch_vccnz {lne}')
        load_u(a)
        a.e(f's_mov_b32 s{S_EARLY}, 1')
        a.e(f'{lne}:')
        conv_addr(a)
        kcopies(a)
        stamp(a, 8)
        lhave = a.lab('haveu')
        a.e(f's_cmp_lg_u32 s{S_EARLY}, 0')
        a.e(f's_cbranch_scc1 {lhave}')
        flag_poll(a)
        load_u(a)
        a.e(f'{lhave}:')
        stamp(a, 9)
        store_u(a, 0)
    elif OPT['sched'] == 3:
        nq = (448 - OPT['hR']) // 32
        ne = 0
        if OPT['cearly']:
            assert OPT['regc']
            for k in range(2):
                w_dma(a, 1, k, f'C{k}')
            q4 = min(OPT['q4'], nq)
            qpf_load(a, q4)
            ne = 8 + q4
            nq -= q4
        stamp(a, 4)
        a.e(f's_waitcnt vmcnt({8 + nt + ne})')
        m0 = kgen_channel(a, 0, DK0, defer=bool(OPT['kdefer']))
        if not OPT['flagmid']:
            publish_flag(a, ne)
        if OPT['regc']:
            nb0 = 2
            if not OPT['cearly']:
                for k in range(2):
                    w_dma(a, 1, k, f'C{k}')
        else:
            for k in range(nb0):
                w_dma(a, 1, k, BS[k])
        if OPT['cearly']:
            qpf_load(a, nq)
            nq = 0
        stamp(a, 40)
        if OPT['flagmid']:
            assert OPT['regc'] and not OPT['cearly']
            kgen_channel(a, 1, DK1, mid=lambda: publish_flag(a, 8), mid_m0=False)
        else:
            kgen_channel(a, 1, DK1, after_setup=m0)
        stamp(a, 5)
        flag_load(a)
        qpf_load(a, nq)
        if not OPT['regc']:
            a.e(f's_waitcnt vmcnt({nq + 1})')
            for k in range(nb0):
                w_tr(a, k, BS[k])
        ktab_part1(a)
        stamp(a, 6)
        a.e(f's_mov_b32 s{S_EARLY}, 0')
        lne = a.lab('notearly')
        a.e(f's_waitcnt vmcnt({nq})')
        a.e(f'v_cmp_ne_u32 vcc, s{S_TAG}, v{V_FV}')

        def early_u():
            a.e(f's_cbranch_vccnz {lne}')
            load_u(a)
            a.e(f's_mov_b32 s{S_EARLY}, 1')
            a.e(f'{lne}:')
        if OPT['uov']:
            assert OPT['hoist']
            ktab_part2(a, mid=early_u)
        else:
            early_u()
            ktab_part2(a)
        stamp(a, 7)
        if not OPT['hoist']:
            conv_addr(a)
        kcopies(a)
        stamp(a, 8)
        lhave = a.lab('haveu')
        a.e(f's_cmp_lg_u32 s{S_EARLY}, 0')
        a.e(f's_cbranch_scc1 {lhave}')
        flag_poll(a)
        load_u(a)
        a.e(f'{lhave}:')
        stamp(a, 9)
        store_u(a, 0)
    else:
        stamp(a, 4)
        a.e(f's_waitcnt vmcnt({8 + nt})')
        kgen_channel(a, 0, DK0)
        publish_flag(a)
        for k in range(min(nb0, 3)):
            w_dma(a, 1, k, BS[k])
        stamp(a, 40)
        kgen_channel(a, 1, DK1, mid=(lambda: [w_dma(a, 1, k, BS[k]) for k in range(3, nb0)]) if nb0 > 3 else None)
        stamp(a, 5)
        if OPT['early']:
            flag_load(a)
            a.e('s_waitcnt vmcnt(1)')
        else:
            a.e('s_waitcnt vmcnt(0)')
        for k in range(nb0):
            w_tr(a, k, BS[k])
        ktab_part1(a)
        stamp(a, 6)
        a.e(f's_mov_b32 s{S_EARLY}, 0')
        lne = a.lab('notearly')
        if OPT['early']:
            a.e('s_waitcnt vmcnt(0)')
            a.e(f'v_cmp_ne_u32 vcc, s{S_TAG}, v{V_FV}')
            a.e(f's_cbranch_vccnz {lne}')
            load_u(a)
            a.e(f's_mov_b32 s{S_EARLY}, 1')
            a.e(f'{lne}:')
        qpf_load(a, OPT['w2pf_a'])
        ktab_part2(a)
        stamp(a, 7)
        if not OPT['hoist']:
            conv_addr(a)
        kcopies(a)
        stamp(a, 8)
        lhave = a.lab('haveu')
        a.e(f's_cmp_lg_u32 s{S_EARLY}, 0')
        a.e(f's_cbranch_scc1 {lhave}')
        flag_poll(a)
        load_u(a)
        a.e('s_waitcnt vmcnt(0)')
        a.e(f'{lhave}:')
        stamp(a, 9)
        store_u(a, OPT['w2pf_a'])
    epoch_update(a)
    clear_g(a)
    if OPT['sched'] == 1:
        qpf_load(a, OPT['w2pf_b'])
    stamp(a, 10)
    hk = []
    cre = OPT['cre'] and OPT['regc']
    if cre:
        for k in range(2):
            w_tr(a, k, f'C{k}')
        for k, sl in enumerate(AS + ['C0', 'C1']):
            for i in range(4):
                hk.append(lambda k=k, sl=sl, i=i: w_dma1(a, 1, 2 + k, sl, i))
                if i % 2 == 1:
                    hk.append(lambda: None)
    else:
        for k in range(4):
            for i in range(4):
                hk.append(lambda k=k, i=i: w_dma1(a, 1, nb0 + k, AS[k], i))
                hk.append(lambda: None)
    if OPT['nohk']:
        hk = []
    elif OPT['hkpos'] == 1:
        hk = [h for i, h in enumerate(hk) if i % 2 == 0]
    elif OPT['hkpos'] == 2:
        hk = [lambda: None] * 18 + [h for i, h in enumerate(hk) if i % 2 == 0]
    ndma = 0 if OPT['nohk'] else (24 if cre else 16)
    if OPT['cvvm']:
        phase_conv(a, hk, ndma)
        stamp(a, 12)
        a.e('s_waitcnt vmcnt(2)')
    else:
        phase_conv(a, hk, 0)
        stamp(a, 12)
    if cre:
        for k, sl in enumerate(AS + ['C0', 'C1']):
            w_tr(a, 2 + k, sl)
        nb0 = 4
    else:
        if OPT['regc']:
            for k in range(2):
                w_tr(a, k, f'C{k}')
        for k in range(4):
            w_tr(a, nb0 + k, AS[k])
    a.e('s_waitcnt lgkmcnt(0)')
    a.e('s_barrier')
    rest = list(range(nb0 + 4, 16))
    last = None
    if len(rest) > 9:
        last = rest.pop()
    rest_slots = (BS + AS)[:len(rest)]
    p4d = []
    if OPT['p4dma']:
        assert OPT['hpriv']
        p4d = [lambda k=k, sl=sl, i=i: w_dma1(a, 1, k, sl, i) for k, sl in zip(rest, rest_slots) for i in range(4)]
    else:
        for k, sl in zip(rest, rest_slots):
            w_dma(a, 1, k, sl)
    stamp(a, 13)
    a.e(f's_branch {lnc2}')
    a.e(f'{lnc1}:')
    nh = 0
    if OPT['cpf'] & 1:
        code_prefetch(a, name, 'kcode_end')
        nh += 3
    w_setup(a)
    if OPT['tlb'] & 1:
        nh += tlb_touch(a)
    flag_addr(a)
    if OPT['hoist']:
        hoist_common(a)
    a.e('s_waitcnt lgkmcnt(0)')
    a.e(f's_add_u32 s{S_TAG}, s99, 0x9e3779b9')
    a.e(f's_waitcnt vmcnt({nh + ncp})')
    clear_hh(a)
    ln_stats(a, list(range(8, 16)), 16, L_RED0, 5)
    publish_xn(a)
    publish_flag(a)
    if OPT['sched'] == 3 and OPT['hsplit']:
        qpf_load(a, (448 - OPT['hR']) // 32)

        def hcheck():
            lok = a.lab('hflags')
            a.e(f'v_cmp_ne_u32 vcc, s{S_TAG}, v{V_FV}')
            a.e(f's_cbranch_vccz {lok}')
            flag_poll(a)
            a.e(f'{lok}:')
            a.e('s_barrier')
        helper_w2(a, OPT['hR'], mid=(OPT['hn1'], lambda: flag_load(a), hcheck))
        stamp(a, 41)
    else:
        if OPT['sched'] == 3:
            qpf_load(a, (448 - OPT['hR']) // 32)
            helper_w2(a, OPT['hR'])
        else:
            qpf_load(a, 14)
        stamp(a, 41)
        flag_poll(a)
        a.e('s_barrier')
    if p4d:
        a.e(f's_mov_b32 s{S_W1+2}, 0')
    stamp(a, 42)
    a.e(f'{lnc2}:')
    phase_p4(a, p4d)
    stamp(a, 20)
    gemm2_addr(a)
    skip_if_helper(lnc3)
    b1_load(a)
    if p4d:
        a.e('s_waitcnt vmcnt(2)')
    for k, sl in zip(rest, rest_slots):
        w_tr(a, k, sl)
    a.e('s_waitcnt lgkmcnt(0)')
    if last is not None:
        w_dma(a, 1, last, 'A0')
    for k in range(5):
        w_dma(a, 2, k, BS[k])
    nx1 = gemm_first_loads(a, WS_HH, 64, 1) if OPT['xe1'] else 0
    if last is not None:
        a.e(f's_waitcnt vmcnt({20 + nx1})')
        w_tr(a, last, 'A0')
        a.e('s_waitcnt lgkmcnt(0)')
    if OPT['prebar']:
        a.e('s_barrier')
    stamp(a, 21)
    w2sh = OPT['w2sh'] and OPT['stchk'] and OPT['h4early']

    def side1(kn):
        if 6 <= kn <= 10:
            return capture(lambda p: w_tr(p, kn - 6, BS[kn - 6])), 0
        if 13 <= kn <= 15:
            pre = ['s_waitcnt lgkmcnt(0)'] if kn == 13 else []
            return pre + capture(lambda p: w_dma(p, 2, kn - 8, BS[kn - 13])), 4
        return [], 0

    gemm_poll_main(a, WS_HH, 64, 16, 1, 22, side=side1 if w2sh else None, issued=bool(OPT['xe1']))
    stamp(a, 23)
    if OPT['h4early']:
        if not w2sh:
            for k in range(5):
                w_tr(a, k, BS[k])
            a.e('s_waitcnt lgkmcnt(0)')
            for k in range(5, 5 + OPT['npre']):
                w_dma(a, 2, k, BS[k - 5])
        if OPT['e1dma']:
            d0 = [lambda k=k, i=i: w_dma1(a, 2, k, BS[k - 5], i) for k in range(8, 10) for i in range(4)]
            d1 = [lambda k=k, i=i: w_dma1(a, 2, k, AS[k - 10], i) for k in range(10, 14) for i in range(4)]
            gemm1_epilogue(a, d0, d1)
            stamp(a, 25)
            w1, w2, w3 = 26, 18, 1
        else:
            gemm1_epilogue(a)
            stamp(a, 25)
            npre = 3 if w2sh else OPT['npre']
            for k in range(5 + npre, 10):
                w_dma(a, 2, k, BS[k - 5])
            a.e('s_barrier')
            for k in range(10, 14):
                w_dma(a, 2, k, AS[k - 10])
            w1, w2, w3 = 24 + (0 if npre < 3 else 0), 16, 0
            w1 = 26 if npre == 3 else 24
        if OPT['xe2']:
            nx2 = gemm_first_loads(a, WS_G, 56, 2)
            w1, w2, w3 = w1 + nx2, w2 + nx2, w3 + nx2
        a.e(f's_waitcnt vmcnt({w1})')
        for k in range(5, 8):
            w_tr(a, k, BS[k - 5])
        a.e(f's_waitcnt vmcnt({w2})')
        for k in range(8, 10):
            w_tr(a, k, BS[k - 5])
        a.e(f's_waitcnt vmcnt({w3})')
        for k in range(10, 14):
            w_tr(a, k, AS[k - 10])
        a.e('s_waitcnt lgkmcnt(0)')
        a.e(f's_branch {lnc6}')
    else:
        gemm1_epilogue(a)
        stamp(a, 25)
        for k in range(5):
            w_tr(a, k, BS[k])
        a.e('s_waitcnt lgkmcnt(0)')
        a.e('s_barrier')
        a.e(f's_branch {lnc5}')
    a.e(f'{lnc3}:')
    for k in range(5):
        w_dma(a, 2, k, BS[k])
    a.e('s_waitcnt vmcnt(0)')
    for k in range(5):
        w_tr(a, k, BS[k])
    a.e('s_waitcnt lgkmcnt(0)')
    a.e(f'{lnc5}:')
    for k in range(5, 10):
        w_dma(a, 2, k, BS[k - 5])
    for k in range(10, 14):
        w_dma(a, 2, k, AS[k - 10])
    nx2 = gemm_first_loads(a, WS_G, 56, 2) if OPT['xe2'] else 0
    a.e(f's_waitcnt vmcnt({16 + nx2})')
    for k in range(5, 10):
        w_tr(a, k, BS[k - 5])
    a.e(f's_waitcnt vmcnt({nx2})')
    for k in range(10, 14):
        w_tr(a, k, AS[k - 10])
    a.e('s_waitcnt lgkmcnt(0)')
    a.e(f'{lnc6}:')
    if OPT['prebar']:
        a.e('s_barrier')
    stamp(a, 30)
    gemm_poll_main(a, WS_G, 56, 14, 2, 31, gemm2_tail_loads, issued=bool(OPT['xe2']))
    stamp(a, 32)
    gemm2_epilogue(a)
    stamp_clk(a, 61)
    stamp(a, 63)
    stamp_flush(a)
    a.e(f'{lend}:')
    a.e('s_endpgm')
    for emit in STUBS:
        emit()
    del STUBS[:]
    a.raw('kcode_end:')
    emit_gather_table(a, 'ktab_idx')
    nn = a.fast_insert_nops()
    head = f'; @launch grid=(256,1,1) block=(256,1,1) lds={LDS_BYTES}\n'
    head += HEADER
    head += '.amdgcn_target "amdgcn-amd-amdhsa--gfx950"\n.text\n'
    tail = '.section .rodata,"a"\n.p2align 6\n' + descriptor(name)
    if OPT['align']:
        nal = a.align8(head, tail)
        sys.stderr.write(f'alignment: {nal}\n')
    sys.stderr.write(f'instructions: {a.count()}, nops inserted: {nn}\n')
    return head + a.text() + tail


if __name__ == '__main__':
    out = sys.argv[1]
    for arg in sys.argv[2:]:
        if arg == 'stamps':
            OPT['stamps'] = True
        elif arg == 'dbg':
            OPT['stamps'] = True
            OPT['dbgsel'] = [0, 1, 2, 4, 8, 9, 12, 13, 14, 20, 21, 23, 25, 30, 32, 63]
        elif '=' in arg:
            k, v = arg.split('=')
            OPT[k] = int(v)
    open(out, 'w').write(build())
```

```python
import sys
import gen
from gen import (Prog, NAME, L, D, F, XBYTES, PBYTES, W1BYTES, W2BYTES, OOB, fx, srd, reduce16, cmul, exp_bf16,
                 gather_table, emit_gather_table, descriptor, round_pairs, norm_tok, bcast_stats)

OPT = dict(nohw=0, h2e=0, h2n=5, xe1=1, xe2=1, cvvm=1, cvbar=1, prebar=1, lastw=1, slp=0, hn1=11, hsplit=0, hoist=0, cre=0, uov=0, tlbout=0, kdefer=1, flagmid=0, npre=3, nohk=0, hkpos=0, w2sh=1, stchk=1, p4dma=0, p4ev=6, e1dma=0, plate=0, cearly=0, q4=4, hpriv=1, regc=1, hR=320, c4=1, kgrp=3, tlbg=21, cpf=1, sched=3, qa=7, qb=7, tlb=3, outsc=0, x3oob=1, h4early=1, wb0=3, xnb=1, stamps=False, dbgsel=None, w2pf_a=10, w2pf_b=4, nfl=3, early=True, align=True, hlds=True)

WS_FLAG = 0x4000
WS_EPOCH = 0x9000
WS_AOUT = 0x10000
AST = 8448
WS_H = 0x200000
WS_HH = 0x400000
WS_G = 0x600000
WS_DBG = 0x800000
WS_XN = 0xA00000
XCS = 4352
XPS = 2 * XCS
WS_USED = 0x1000000

L_RED0, L_RED1, L_SIG, L_KT = 0, 256, 512, 640
KTCH = 1600
L_U = L_KT + 2 * KTCH
UCH = 4608
L_SCR = L_U + 2 * UCH
SROW = 272
YROW = 41
SCRW = 57 * SROW
L_KC = 82688
KCOPY = 4160
KCH = 8 * KCOPY
L_CP = L_KC
LDS_BYTES = 160 * 1024
L_WA, L_WB = 13056, 78592
L_WC = 123904
L_PART = 1024
PROW = 272
PARTW = 64 * PROW
L_HT = 1024

S_WS, S_X = 4, 8
S_T0, S_T1, S_T2, S_T3 = 12, 16, 20, 24
S_W1, S_W2 = 12, 16
S_W, S_XCD, S_LOC, S_B, S_P, S_J, S_I1, S_I2 = 28, 29, 30, 31, 32, 33, 34, 35
P_X, P_LAR, P_AI, P_CR, P_CI, P_LDT, P_DSK = 36, 38, 40, 42, 44, 46, 48
P_W1, P_B1, P_W2, P_B2, P_OUT, P_DBG, P_WS = 52, 54, 56, 58, 60, 62, 64
S_SA, S_SB = 50, 51
S_RW1, S_RX1, S_RW2, S_RX2 = 38, 39, 40, 41
S_QPF = 42
S_EARLY = 43
S_SC = 44
V_TC = 236
S_TAG, S_SPIN, S_RETRY = 96, 97, 98
V_D1, V_D2, V_TA, V_TB = 224, 228, 244, 248
V_QPF = 232
SPIN_MAX, RETRY_MAX = 4000, 20
AS = ['A0', 'A1', 'A2', 'A3']
BS = ['B0', 'B1', 'B2', 'B3', 'B4']
WSR = f's[{S_WS}:{S_WS+3}]'

assert (gen.S_W, gen.S_B, gen.S_WS) == (S_W, S_B, S_WS)


def stamp(a, idx):
    if not OPT['stamps']:
        return
    sel = OPT['dbgsel']
    if sel is not None:
        if idx not in sel:
            return
        idx = sel.index(idx)
    a.e('s_memrealtime s[100:101]')
    a.e('s_waitcnt lgkmcnt(0)')
    a.e(f'v_writelane_b32 v255, s100, {idx}')


def stamp_clk(a, idx):
    if not OPT['stamps'] or OPT['dbgsel'] is not None:
        return
    a.e('s_memtime s[100:101]')
    a.e('s_waitcnt lgkmcnt(0)')
    a.e(f'v_writelane_b32 v255, s100, {idx}')


def stamp_flush(a):
    if not OPT['stamps']:
        return
    l = a.lab('nost')
    a.e(f's_cmp_lg_u32 s{S_W}, 0')
    a.e(f's_cbranch_scc1 {l}')
    if OPT['dbgsel'] is not None:
        a.e('v_not_b32 v253, v255')
        a.e('v_cmp_eq_u32 vcc, 0, v1')
        a.e('v_cndmask_b32 v255, v255, v253, vcc')
        a.e('v_lshlrev_b32 v254, 2, v1')
        a.e('s_mov_b64 exec, 0xffff')
        a.e(f'global_atomic_umax v254, v255, s[{P_DBG}:{P_DBG+1}]')
        a.e('s_mov_b64 exec, -1')
    else:
        a.e('s_lshl_b32 s66, s2, 8')
        a.e(f's_add_u32 s66, s66, {WS_DBG}')
        a.e('v_lshl_add_u32 v254, v1, 2, s66')
        a.e(f'buffer_store_dword v255, v254, {WSR}, 0 offen')
    a.e(f'{l}:')


def spin_tail(a, lp):
    if OPT['slp']:
        a.e(f's_sleep {OPT["slp"]}')
    a.e(f's_add_u32 s{S_SPIN}, s{S_SPIN}, 1')
    a.e(f's_cmp_lt_u32 s{S_SPIN}, {SPIN_MAX}')
    a.e(f's_cbranch_scc1 {lp}')


def mask_lanes(a, v, n, tmp, src='v1'):
    a.e(f'v_mov_b32 v{tmp}, {OOB}')
    a.e(f'v_cmp_gt_u32 vcc, {n}, {src}')
    a.e(f'v_cndmask_b32 v{v}, v{tmp}, v{v}, vcc')


def prologue(a, lend):
    a.e('s_cmp_ge_u32 s2, 256')
    a.e(f's_cbranch_scc1 {lend}')
    if OPT['stamps']:
        a.e('v_mov_b32 v255, 0')
        stamp(a, 0)
        stamp_clk(a, 60)
    a.e('s_load_dwordx16 s[36:51], s[0:1], 0')
    a.e('s_load_dwordx8 s[52:59], s[0:1], 64')
    a.e('s_load_dwordx4 s[60:63], s[0:1], 96')
    a.e('s_load_dwordx2 s[64:65], s[0:1], 112')
    a.e('v_and_b32 v1, 63, v0')
    a.e('v_lshrrev_b32 v2, 6, v0')
    a.e(f's_and_b32 s{S_XCD}, s2, 7')
    a.e(f'v_readfirstlane_b32 s{S_W}, v2')
    a.e(f's_lshr_b32 s{S_LOC}, s2, 3')
    a.e(f's_lshl_b32 s{S_B}, s{S_XCD}, 5')
    a.e(f's_add_u32 s{S_B}, s{S_B}, s{S_LOC}')
    a.e(f's_mul_i32 s{S_P}, s{S_XCD}, 28')
    a.e(f's_add_u32 s{S_P}, s{S_P}, s{S_LOC}')
    a.e(f's_and_b32 s{S_J}, s{S_XCD}, 1')
    a.e(f's_lshl_b32 s{S_J}, s{S_J}, 2')
    a.e(f's_and_b32 s3, s{S_LOC}, 3')
    a.e(f's_add_u32 s{S_J}, s{S_J}, s3')
    a.e(f's_lshr_b32 s3, s{S_XCD}, 1')
    a.e(f's_lshr_b32 s66, s{S_LOC}, 2')
    a.e(f's_mul_i32 s{S_I1}, s3, 7')
    a.e(f's_add_u32 s{S_I1}, s{S_I1}, s66')
    a.e(f's_lshl_b32 s{S_I2}, s3, 3')
    a.e(f's_add_u32 s{S_I2}, s{S_I2}, s66')
    a.e('s_waitcnt lgkmcnt(0)')
    srd(a, S_X, P_X, XBYTES)
    srd(a, S_WS, P_WS, WS_USED)
    stamp(a, 1)


def xrow_addr(a):
    a.e(f's_mul_i32 s66, s{S_W}, 224')
    a.e(f's_mul_i32 s67, s{S_B}, {8*896}')
    a.e('s_add_u32 s66, s66, s67')
    a.e('v_lshl_add_u32 v2, v1, 2, s66')
    mask_lanes(a, 2, 56, 3)
    a.e('v_add_u32 v3, 4480, v2')


def load_xrows(a):
    xrow_addr(a)
    for j in range(8):
        v, o = (2, j * 896) if j < 5 else (3, (j - 5) * 896)
        a.e(f'buffer_load_dword v{8+j}, v{v}, s[{S_X}:{S_X+3}], 0 offen offset:{o}')


def ln_stats(a, X, T, red, vt, mid=None):
    a.e('s_mov_b32 s66, 0x3f803f80')
    for j in range(8):
        a.e(f'v_dot2_f32_bf16 v{T+j}, v{X[j]}, s66, 0')
        a.e(f'v_dot2_f32_bf16 v{T+8+j}, v{X[j]}, v{X[j]}, 0')
    a.e(f'v_lshlrev_b32 v{vt}, 2, v1')
    a.e(f'v_and_b32 v{vt}, 0xf0, v{vt}')
    a.e(f's_lshl_b32 s66, s{S_W}, 2')
    a.e(f'v_add_u32 v{vt}, s66, v{vt}')
    reduce16(a, [T + i for i in range(16)])
    a.inj_pause()
    a.e('s_mov_b32 exec_lo, 0x11111111')
    a.e('s_mov_b32 exec_hi, 0x11111111')
    a.e(f'ds_write_b32 v{vt}, v{T} offset:{red}')
    a.e('s_mov_b64 exec, -1')
    a.inj_resume()
    a.e(f'v_and_b32 v{vt}, 7, v1')
    a.e(f'v_lshlrev_b32 v{vt}, 4, v{vt}')
    a.e('s_waitcnt lgkmcnt(0)')
    a.e('s_barrier')
    a.e(f'ds_read_b128 v[{T}:{T+3}], v{vt} offset:{red}')
    a.e(f'ds_read_b128 v[{T+4}:{T+7}], v{vt} offset:{red+128}')
    n_mid = mid() if mid else 0
    a.e(f's_waitcnt lgkmcnt({1 + n_mid})')
    a.e(f'v_pk_add_f32 v[{T}:{T+1}], v[{T}:{T+1}], v[{T+2}:{T+3}]')
    a.e(f's_waitcnt lgkmcnt({n_mid})')
    a.e(f'v_pk_add_f32 v[{T+4}:{T+5}], v[{T+4}:{T+5}], v[{T+6}:{T+7}]')
    a.e(f'v_add_f32 v{T}, v{T}, v{T+1}')
    a.e(f'v_add_f32 v{T+4}, v{T+4}, v{T+5}')
    a.e(f'v_mul_f32 v{T}, {fx(1.0/448)}, v{T}')
    a.e(f'v_mul_f32 v{T+4}, {fx(1.0/448)}, v{T+4}')
    a.e(f'v_fma_f32 v{T+4}, -v{T}, v{T}, v{T+4}')
    a.e(f'v_max_f32 v{T+4}, 0, v{T+4}')
    a.e(f'v_cvt_pk_bf16_f32 v{T+4}, v{T+4}, v{T+4}')
    a.e(f'v_lshlrev_b32 v{T+4}, 16, v{T+4}')
    a.e(f'v_add_f32 v{T+4}, {fx(1e-5)}, v{T+4}')
    a.e(f'v_cvt_pk_bf16_f32 v{T+4}, v{T+4}, v{T+4}')
    a.e(f'v_lshlrev_b32 v{T+4}, 16, v{T+4}')
    a.e(f'v_sqrt_f32 v{T+4}, v{T+4}')
    a.e(f'v_cvt_pk_bf16_f32 v{T}, v{T}, v{T+4}')


def poison_regs(a):
    for r in range(216, 220):
        a.e(f'v_mov_b32 v{r}, -1')


def clear_hh(a):
    if OPT['hoist']:
        a.e(f'buffer_store_dwordx4 v[216:219], v184, {WSR}, 0 offen sc1')
        a.e(f'buffer_store_dwordx4 v[216:219], v185, {WSR}, 0 offen sc1')
        return
    a.e(f's_mul_i32 s66, s{S_B}, 7168')
    a.e(f's_add_u32 s66, s66, {WS_HH}')
    a.e('v_lshl_add_u32 v4, v0, 4, s66')
    a.e('v_add_u32 v5, 4096, v4')
    mask_lanes(a, 5, 192, 6, 'v0')
    a.e(f'buffer_store_dwordx4 v[216:219], v4, {WSR}, 0 offen sc1')
    a.e(f'buffer_store_dwordx4 v[216:219], v5, {WSR}, 0 offen sc1')


def clear_aout(a):
    if OPT['hoist']:
        a.e(f'buffer_store_dwordx4 v[216:219], v186, {WSR}, 0 offen sc1')
        a.e(f'buffer_store_dwordx4 v[216:219], v187, {WSR}, 0 offen sc1')
        return
    a.e(f's_mul_i32 s66, s{S_P}, {AST}')
    a.e(f's_add_u32 s66, s66, {WS_AOUT}')
    a.e('v_lshl_add_u32 v4, v0, 4, s66')
    a.e('v_add_u32 v5, 4096, v4')
    a.e(f'buffer_store_dwordx4 v[216:219], v4, {WSR}, 0 offen sc1')
    a.e(f'buffer_store_dwordx4 v[216:219], v5, {WSR}, 0 offen sc1')


def g_store_addr(a, vd):
    a.e(f's_lshl_b32 s66, s{S_I1}, 3')
    a.e(f's_lshl_b32 s70, s{S_W}, 1')
    a.e('s_add_u32 s66, s66, s70')
    a.e('s_mul_i32 s66, s66, 7168')
    a.e(f's_mul_i32 s70, s{S_J}, 896')
    a.e('s_add_u32 s66, s66, s70')
    a.e(f's_add_u32 s66, s66, {WS_G}')
    a.e(f'v_lshl_add_u32 v{vd}, v1, 4, s66')
    mask_lanes(a, vd, 56, 6)


def clear_g(a):
    if OPT['hoist']:
        a.e('v_add_u32 v5, 7168, v240')
        a.e(f'buffer_store_dwordx4 v[216:219], v240, {WSR}, 0 offen sc1')
        a.e(f'buffer_store_dwordx4 v[216:219], v5, {WSR}, 0 offen sc1')
        return
    g_store_addr(a, 4)
    a.e('v_add_u32 v5, 7168, v4')
    a.e(f'buffer_store_dwordx4 v[216:219], v4, {WSR}, 0 offen sc1')
    a.e(f'buffer_store_dwordx4 v[216:219], v5, {WSR}, 0 offen sc1')


def publish_xn(a):
    bcast_stats(a, 16)
    for j in range(8):
        d = 64 + 2 * j
        t = 48 + j
        a.e(f'v_lshlrev_b32 v{d}, 16, v{8+j}')
        a.e(f'v_and_b32 v{d+1}, 0xffff0000, v{8+j}')
        a.e(f'v_pk_add_f32 v[{d}:{d+1}], v[{d}:{d+1}], s[{72+2*j}:{73+2*j}] op_sel:[0,0] op_sel_hi:[1,0] neg_lo:[0,1] neg_hi:[0,1]')
        a.e(f'v_cvt_pk_bf16_f32 v{t}, v{d}, v{d+1}')
        a.e(f'v_lshlrev_b32 v{d}, 16, v{t}')
        a.e(f'v_and_b32 v{d+1}, 0xffff0000, v{t}')
        a.e(f'v_pk_mul_f32 v[{d}:{d+1}], v[{d}:{d+1}], s[{72+2*j}:{73+2*j}] op_sel:[0,1] op_sel_hi:[1,1]')
        a.e(f'v_cvt_pk_bf16_f32 v{t}, v{d}, v{d+1}')
        a.e(f'v_lshlrev_b32 v{d}, 16, v{t}')
        a.e(f'v_and_b32 v{d+1}, 0xffff0000, v{t}')
    for i in range(4):
        a.e(f'v_cvt_pk_f16_f32 v{80+i}, v{64+4*i}, v{66+4*i}')
        a.e(f'v_cvt_pk_f16_f32 v{84+i}, v{65+4*i}, v{67+4*i}')
    if OPT['hoist']:
        assert OPT['xnb']
        a.e(f'buffer_store_dwordx4 v[80:83], v188, {WSR}, 0 offen sc1')
        a.e(f'buffer_store_dwordx4 v[84:87], v189, {WSR}, 0 offen sc1')
        return
    if OPT['xnb']:
        a.e(f's_mul_i32 s66, s{S_W}, {56*16}')
        a.e(f's_mul_i32 s67, s{S_B}, 7168')
        a.e('s_add_u32 s66, s66, s67')
        a.e(f's_add_u32 s66, s66, {WS_XN}')
        a.e('v_lshl_add_u32 v4, v1, 4, s66')
        mask_lanes(a, 4, 56, 5)
        a.e('v_add_u32 v5, 3584, v4')
    else:
        a.e(f's_mul_i32 s66, s{S_W}, {56*XPS}')
        a.e(f's_lshl_b32 s67, s{S_B}, 4')
        a.e('s_add_u32 s66, s66, s67')
        a.e(f's_add_u32 s66, s66, {WS_XN}')
        a.e(f'v_mul_u32_u24 v4, {XPS}, v1')
        a.e('v_add_u32 v4, s66, v4')
        mask_lanes(a, 4, 56, 5)
        a.e(f'v_add_u32 v5, {XCS}, v4')
    a.e(f'buffer_store_dwordx4 v[80:83], v4, {WSR}, 0 offen sc1')
    a.e(f'buffer_store_dwordx4 v[84:87], v5, {WSR}, 0 offen sc1')


def publish_flag(a, vm=0):
    a.e(f's_waitcnt vmcnt({vm})')
    a.e('s_barrier')
    l = a.lab('noflag')
    a.e(f's_cmp_lg_u32 s{S_W}, 0')
    a.e(f's_cbranch_scc1 {l}')
    a.e(f's_lshl_b32 s66, s{S_B}, 6')
    a.e(f's_add_u32 s66, s66, {WS_FLAG}')
    a.e('v_mov_b32 v2, s66')
    a.e(f'v_mov_b32 v3, s{S_TAG}')
    a.e('s_mov_b64 exec, 1')
    a.e(f'buffer_store_dword v3, v2, {WSR}, 0 offen sc1')
    a.e('s_mov_b64 exec, -1')
    a.e(f'{l}:')


V_FA, V_FV = 233, 234


def flag_addr(a):
    a.e(f'v_lshlrev_b32 v{V_FA}, 6, v0')
    a.e(f'v_add_u32 v{V_FA}, {WS_FLAG}, v{V_FA}')


def flag_load(a):
    a.e(f'buffer_load_dword v{V_FV}, v{V_FA}, {WSR}, 0 offen sc1')


def flag_poll(a):
    lp, ld = a.lab('fpoll'), a.lab('fdone')
    a.e(f's_mov_b32 s{S_SPIN}, 0')
    a.e(f'{lp}:')
    flag_load(a)
    a.e('s_waitcnt vmcnt(0)')
    a.e(f'v_cmp_ne_u32 vcc, s{S_TAG}, v{V_FV}')
    a.e(f's_cbranch_vccz {ld}')
    spin_tail(a, lp)
    a.e(f'{ld}:')


def load_u(a):
    if OPT['hoist']:
        a.e(f'buffer_load_dwordx4 v[176:179], v190, {WSR}, 0 offen sc1')
        a.e(f'buffer_load_dwordx4 v[180:183], v191, {WSR}, 0 offen sc1')
        return
    if OPT['xnb']:
        a.e(f's_lshl_b32 s66, s{S_P}, 4')
        a.e(f's_add_u32 s66, s66, {WS_XN}')
        a.e('v_mul_u32_u24 v2, 7168, v0')
        a.e('v_add_u32 v2, s66, v2')
        a.e('v_add_u32 v3, 3584, v2')
    else:
        a.e(f's_mul_i32 s66, s{S_P}, {XPS}')
        a.e(f's_add_u32 s66, s66, {WS_XN}')
        a.e('v_lshl_add_u32 v2, v0, 4, s66')
        a.e(f'v_add_u32 v3, {XCS}, v2')
    a.e(f'buffer_load_dwordx4 v[176:179], v2, {WSR}, 0 offen sc1')
    a.e(f'buffer_load_dwordx4 v[180:183], v3, {WSR}, 0 offen sc1')


def epoch_update(a):
    le = a.lab('noep')
    a.e('s_cmp_lg_u32 s2, 0')
    a.e(f's_cbranch_scc1 {le}')
    a.e(f'v_mov_b32 v2, {WS_EPOCH}')
    a.e(f'v_mov_b32 v3, s{S_TAG}')
    a.e('s_mov_b64 exec, 1')
    a.e(f'buffer_store_dword v3, v2, {WSR}, 0 offen sc1')
    a.e('s_mov_b64 exec, -1')
    a.e(f'{le}:')


def code_prefetch(a, lstart, lend_):
    lp = a.lab('pcp')
    a.e('s_getpc_b64 s[74:75]')
    a.e(f'{lp}:')
    a.e(f's_sub_u32 s74, s74, {lp}-{lstart}')
    a.e('s_subb_u32 s75, s75, 0')
    a.e('v_lshlrev_b32 v4, 6, v0')
    a.e(f's_mov_b32 s76, {lend_}-{lstart}-4')
    a.e('v_add_u32 v5, 16384, v4')
    a.e('v_add_u32 v6, 32768, v4')
    a.e('v_min_u32 v4, s76, v4')
    a.e('v_min_u32 v5, s76, v5')
    a.e('v_min_u32 v6, s76, v6')
    a.e('global_load_dword v220, v4, s[74:75]')
    a.e('global_load_dword v220, v5, s[74:75]')
    a.e('global_load_dword v220, v6, s[74:75]')


def code_prefetch1(a, lstart, lend_):
    lp = a.lab('pcp')
    a.e('s_getpc_b64 s[74:75]')
    a.e(f'{lp}:')
    a.e('v_lshlrev_b32 v4, 6, v0')
    a.e(f's_mov_b32 s76, {lend_}-{lp}-4')
    a.e('v_min_u32 v4, s76, v4')
    a.e('global_load_dword v220, v4, s[74:75]')


def tlb_touch(a):
    g = OPT['tlbg']
    n = 0
    srd(a, S_T2, P_OUT, XBYTES)
    srd(a, S_T3, P_B2, L * 2)
    if g == 21:
        a.e('v_lshlrev_b32 v4, 21, v1')
        a.e('s_mov_b32 s70, 0x1f8000')
        for s_ in (S_W1, S_W2, S_WS, S_T2, S_T3) if OPT['tlbout'] else (S_W1, S_W2, S_WS, S_T3):
            a.e(f'buffer_load_dword v220, v4, s[{s_}:{s_+3}], {"s70" if s_ == S_WS else 0} offen')
            n += 1
    else:
        a.e(f'v_lshlrev_b32 v4, {g}, v0')
        for s_, nbytes in ((S_W1, W1BYTES), (S_W2, W2BYTES), (S_WS, 0xC00000), (S_T2, XBYTES), (S_T3, 4096)):
            for k in range(-(-nbytes // (256 << g))):
                a.e(f's_mov_b32 s70, {k * (256 << g)}')
                a.e(f'buffer_load_dword v220, v4, s[{s_}:{s_+3}], s70 offen')
                n += 1
    return n


def hoist_common(a):
    a.e(f's_mul_i32 s66, s{S_B}, 7168')
    a.e(f's_add_u32 s66, s66, {WS_HH}')
    a.e('v_lshl_add_u32 v184, v0, 4, s66')
    a.e('v_add_u32 v185, 4096, v184')
    mask_lanes(a, 185, 192, 6, 'v0')
    a.e(f's_mul_i32 s66, s{S_W}, {56*16}')
    a.e(f's_mul_i32 s67, s{S_B}, 7168')
    a.e('s_add_u32 s66, s66, s67')
    a.e(f's_add_u32 s66, s66, {WS_XN}')
    a.e('v_lshl_add_u32 v188, v1, 4, s66')
    mask_lanes(a, 188, 56, 5)
    a.e('v_add_u32 v189, 3584, v188')
    a.e('v_and_b32 v4, 15, v1')
    a.e(f'v_mul_u32_u24 v4, {PROW}, v4')
    a.e('v_lshrrev_b32 v5, 4, v1')
    a.e('v_lshl_add_u32 v4, v5, 4, v4')
    a.e(f's_mul_i32 s66, s{S_W}, {PARTW}')
    a.e(f's_add_u32 s66, s66, {L_PART}')
    a.e('v_add_u32 v241, s66, v4')
    a.e(f'v_mul_u32_u24 v5, {PROW}, v1')
    a.e(f's_lshl_b32 s66, s{S_W}, 6')
    a.e(f's_add_u32 s66, s66, {L_PART}')
    a.e('v_add_u32 v242, s66, v5')
    a.e('v_lshrrev_b32 v5, 3, v1')
    a.e('v_and_b32 v4, 7, v1')
    a.e(f's_lshl_b32 s66, s{S_W}, 4')
    a.e('v_add_u32 v5, s66, v5')
    a.e(f'v_mul_u32_u24 v6, {PROW}, v5')
    a.e('v_lshl_add_u32 v6, v4, 4, v6')
    a.e(f'v_add_u32 v243, {L_PART}, v6')
    g_store_addr(a, 240)
    a.e(f's_mul_i32 s67, s{S_B}, 7168')
    a.e(f's_mul_i32 s66, s{S_W}, 1792')
    a.e('s_add_u32 s66, s66, s67')
    a.e(f's_add_u32 s66, s66, {WS_HH}')
    a.e('v_lshl_add_u32 v213, v1, 4, s66')
    a.e('v_add_u32 v5, 448, v213')
    a.e('v_cmp_gt_u32 vcc, 28, v1')
    a.e('v_cndmask_b32 v213, v5, v213, vcc')
    mask_lanes(a, 213, 56, 5)


def hoist_conv(a):
    a.e(f's_mul_i32 s66, s{S_P}, {AST}')
    a.e(f's_add_u32 s66, s66, {WS_AOUT}')
    a.e('v_lshl_add_u32 v186, v0, 4, s66')
    a.e('v_add_u32 v187, 4096, v186')
    a.e(f's_lshl_b32 s66, s{S_P}, 4')
    a.e(f's_add_u32 s66, s66, {WS_XN}')
    a.e('v_mul_u32_u24 v190, 7168, v0')
    a.e('v_add_u32 v190, s66, v190')
    a.e('v_add_u32 v191, 3584, v190')
    conv_addr(a, 192, 193)
    CP, TS = L_CP, 1280
    a.e('v_and_b32 v3, 15, v1')
    a.e('v_lshlrev_b32 v2, 4, v3')
    a.e('v_lshrrev_b32 v3, 4, v1')
    a.e('v_mul_u32_u24 v3, 320, v3')
    a.e('v_add_u32 v2, v2, v3')
    a.e(f's_mul_i32 s70, s{S_W}, {8*TS}')
    a.e(f's_add_u32 s70, s70, {CP}')
    a.e('v_add_u32 v194, s70, v2')
    a.e('v_lshrrev_b32 v3, 2, v1')
    a.e('v_lshlrev_b32 v2, 4, v3')
    a.e('v_and_b32 v3, 3, v1')
    a.e('v_mul_u32_u24 v3, 320, v3')
    a.e('v_add_u32 v2, v2, v3')
    a.e(f's_lshl_b32 s70, s{S_W}, 1')
    a.e(f's_mul_i32 s71, s70, {TS}')
    a.e(f's_add_u32 s71, s71, {CP}')
    a.e('v_add_u32 v195, s71, v2')
    a.e('s_lshl_b32 s71, s70, 9')
    a.e(f's_add_u32 s71, s71, {L_U + 512}')
    a.e('v_lshl_add_u32 v206, v1, 3, s71')
    a.e(f's_mul_i32 s71, s{S_P}, {AST}')
    a.e('s_lshl_b32 s72, s70, 10')
    a.e('s_add_u32 s71, s71, s72')
    a.e(f's_add_u32 s71, s71, {WS_AOUT}')
    a.e('v_lshl_add_u32 v207, v1, 4, s71')


def kgen_loads(a, part=None):
    R = (S_T0, S_T1, S_T2, S_T3) if part is None else (72, 76, 80, 84)
    if part != 'issue':
        for r, p in zip(R, (P_LAR, P_AI, P_CR, P_CI)):
            srd(a, r, p, PBYTES)
        a.e(f's_lshl_b32 s66, s{S_P}, 10')
        a.e(f's_lshl_b32 s67, s{S_W}, 7')
        a.e('s_add_u32 s66, s66, s67')
        a.e('v_lshl_add_u32 v235, v1, 1, s66')
        a.e(f's_lshl_b32 s66, s{S_P}, 2')
        a.e(f's_load_dword s68, s[{P_LDT}:{P_LDT+1}], s66')
        a.e(f's_load_dword s69, s[{P_DSK}:{P_DSK+1}], s66')
    if part != 'setup':
        for c in range(2):
            for k, s in enumerate(R):
                a.e(f'buffer_load_ushort v{40+4*c+k}, v235, s[{s}:{s+3}], 0 offen offset:{512*c}')


def load_gather_table(a, tablabel):
    lp = a.lab('pc')
    a.e('s_getpc_b64 s[70:71]')
    a.e(f'{lp}:')
    a.e(f's_add_u32 s70, s70, {tablabel}-{lp}')
    a.e('s_addc_u32 s71, s71, 0')
    a.e('v_lshlrev_b32 v2, 5, v0')
    a.e('global_load_dwordx4 v[160:163], v2, s[70:71]')
    a.e('global_load_dwordx4 v[164:167], v2, s[70:71] offset:16')


DK0, DK1 = 16, 28


def kgen_channel(a, c, DACC, mid=None, mid_m0=True, after_setup=None, defer=False):
    LAR, AI, CR, CI = 40 + 4 * c, 41 + 4 * c, 42 + 4 * c, 43 + 4 * c
    SIG, DT = 52 + c, 54 + c
    AL, BE = 56, 57
    Z1, Z2, Z4, Z8, Z128, Z256, Z512, Z1024 = 58, 60, 62, 64, 66, 68, 70, 72
    X0, CA, CB, CC, T0, T1 = 74, 76, 78, 80, 82, 84
    CV = [86, 87, 88, 89]
    VW, VR = 90, 91
    t, t2 = 92, 93
    for r in (LAR, AI, CR, CI):
        a.e(f'v_lshlrev_b32 v{r}, 16, v{r}')
    a.e('s_lshl_b32 s66, s68, 16' if c == 0 else 's_and_b32 s66, s68, 0xffff0000')
    a.e(f'v_mov_b32 v{t2}, s66')
    exp_bf16(a, DT, t2, t)
    a.e(f'v_add_f32 v{SIG}, abs(v{CR}), abs(v{CI})')
    exp_bf16(a, AL, LAR, t)
    a.e(f'v_add_f32_dpp v{SIG}, v{SIG}, v{SIG} quad_perm:[1,0,3,2] row_mask:0xf bank_mask:0xf')
    a.e(f'v_mul_f32 v{AL}, v{AL}, v{DT}')
    a.e(f'v_mul_f32 v{BE}, v{AI}, v{DT}')
    a.e(f'v_add_f32_dpp v{SIG}, v{SIG}, v{SIG} quad_perm:[2,3,0,1] row_mask:0xf bank_mask:0xf')
    a.e(f'v_mul_f32 v{AL}, {fx(-1.4426950408889634)}, v{AL}')
    a.e(f'v_mul_f32 v{BE}, {fx(0.15915494309189535)}, v{BE}')
    a.e(f'v_add_f32_dpp v{SIG}, v{SIG}, v{SIG} row_half_mirror row_mask:0xf bank_mask:0xf')
    a.e(f'v_exp_f32 v{T0}, v{AL}')
    a.e(f'v_fract_f32 v{t}, v{BE}')
    a.e(f'v_add_f32_dpp v{SIG}, v{SIG}, v{SIG} row_ror:8 row_mask:0xf bank_mask:0xf')
    a.e(f'v_cos_f32 v{Z1}, v{t}')
    a.e(f'v_sin_f32 v{Z1+1}, v{t}')
    a.e(f'v_mov_b32 v{t2}, v{SIG}')
    a.e(f'v_mul_f32 v{T1}, 0x43000000, v{AL}')
    a.e(f'v_mul_f32 v{t}, 0x43000000, v{BE}')
    a.e(f'v_permlane16_swap_b32 v{SIG}, v{t2}')
    a.e(f'v_pk_mul_f32 v[{Z1}:{Z1+1}], v[{Z1}:{Z1+1}], v[{T0}:{T0+1}] op_sel:[0,0] op_sel_hi:[1,0]')
    a.e(f'v_add_f32 v{SIG}, v{SIG}, v{t2}')
    a.e(f'v_exp_f32 v{T1}, v{T1}')
    a.e(f'v_fract_f32 v{t}, v{t}')
    a.e(f'v_mov_b32 v{t2}, v{SIG}')
    a.e(f'v_cos_f32 v{Z128}, v{t}')
    a.e(f'v_sin_f32 v{Z128+1}, v{t}')
    a.e(f'v_permlane32_swap_b32 v{SIG}, v{t2}')
    cmul(a, Z2, Z1, Z1, Z2)
    a.e(f'v_add_f32 v{SIG}, v{SIG}, v{t2}')
    a.e(f'v_pk_mul_f32 v[{Z128}:{Z128+1}], v[{Z128}:{Z128+1}], v[{T1}:{T1+1}] op_sel:[0,0] op_sel_hi:[1,0]')
    a.e(f'v_add_f32 v{SIG}, {fx(1e-30)}, v{SIG}')
    cmul(a, Z4, Z2, Z2, Z4)
    a.e(f'v_rcp_f32 v{t}, v{SIG}')
    cmul(a, Z256, Z128, Z128, Z256)
    cmul(a, Z8, Z4, Z4, Z8)
    a.e(f'v_mul_f32 v{X0}, v{CR}, v{t}')
    a.e(f'v_mul_f32 v{X0+1}, v{CI}, v{t}')
    cmul(a, Z512, Z256, Z256, Z512)
    a.e(f's_mul_i32 s66, s{S_W}, {SCRW}')
    a.e(f's_add_u32 s66, s66, {L_SCR}')
    a.e('s_mov_b32 m0, s66')
    cmul(a, Z1024, Z512, Z512, Z1024)
    a.e(f'v_and_b32 v{t}, 15, v1')
    a.e(f'v_mul_u32_u24 v{t}, {SROW}, v{t}')
    a.e(f'v_lshrrev_b32 v{t2}, 4, v1')
    a.e(f'v_lshl_add_u32 v{t}, v{t2}, 4, v{t}')
    a.e(f'v_add_u32 v{VR}, s66, v{t}')
    cvi = [0]
    pend = []

    def flush(keep):
        while len(pend) > keep:
            cv, off = pend.pop(0)
            a.e(f'ds_write_addtid_b32 v{cv} offset:{off}')

    G = OPT['kgrp']
    if G > 1:
        CV = list(range(96, 112))
        if OPT['kdefer']:
            CV = list(range(168, 176))
    if after_setup is not None:
        after_setup()

    def put(off, r, neg):
        cv = CV[cvi[0] % len(CV)]
        cvi[0] += 1
        a.e(f'v_cvt_pk_f16_f32 v{cv}, v{r}, {"-" if neg else ""}v{r+1}')
        if G > 1:
            pend.append((cv, off))
            if len(pend) >= G + 1:
                flush(1)
        else:
            flush(1)
            pend.append((cv, off))

    def putX(row, r):
        put(row * SROW, r, True)

    def putY(b, r):
        put((YROW + b) * SROW, r, False)

    a.e(f'v_mov_b32 v{VW}, 0x00003c00')
    pend.append((VW, YROW * SROW))
    putY(1, Z8)
    ychain = {'cur': Z8, 'b': 1}
    YA, YB = CC, 94

    def ystep():
        if ychain['b'] >= 15:
            return
        d = YA if ychain['cur'] != YA else YB
        cmul(a, d, ychain['cur'], Z8, d)
        ychain['b'] += 1
        ychain['cur'] = d
        putY(ychain['b'], d)

    putX(0, X0)
    cmul(a, T0, X0, Z128, T0)
    putX(8, T0)
    cur = X0
    for j in range(1, 8):
        d = CA if cur != CA else CB
        cmul(a, d, cur, Z1, d)
        ystep()
        putX(j, d)
        cmul(a, T0, d, Z128, T0)
        putX(8 + j, T0)
        cur = d
    cmul(a, CA, X0, Z256, CA)
    ystep()
    putX(16, CA)
    cmul(a, T0, CA, Z128, T0)
    putX(20, T0)
    cur = CA
    for j in range(1, 4):
        d = CA if cur != CA else CB
        cmul(a, d, cur, Z2, d)
        ystep()
        putX(16 + j, d)
        cmul(a, T0, d, Z128, T0)
        putX(20 + j, T0)
        cur = d
    if mid is not None:
        if mid_m0:
            flush(0)
        mid()
        if mid_m0:
            a.e(f's_mul_i32 s66, s{S_W}, {SCRW}')
            a.e(f's_add_u32 s66, s66, {L_SCR}')
            a.e('s_mov_b32 m0, s66')
    cmul(a, CA, X0, Z512, CA)
    ystep()
    putX(24, CA)
    cmul(a, CB, CA, Z4, CB)
    ystep()
    putX(25, CB)
    pa, pb = CA, CB
    na, nb = T0, T1
    for q in range(1, 4):
        cmul(a, na, pa, Z128, na)
        cmul(a, nb, pb, Z128, nb)
        ystep()
        putX(24 + 2 * q, na)
        putX(25 + 2 * q, nb)
        pa, pb, na, nb = na, nb, pa, pb
    cmul(a, CA, X0, Z1024, CA)
    putX(32, CA)
    cur = CA
    for q in range(1, 9):
        d = CA if cur != CA else CB
        cmul(a, d, cur, Z128, d)
        putX(32 + q, d)
        cur = d
    while ychain['b'] < 15:
        ystep()
    flush(0)
    FA = 96
    for k in range(4):
        a.e(f'ds_read_b128 v[{144+4*k}:{147+4*k}], v{VR} offset:{YROW*SROW+64*k}')
        for T in range(3):
            r = FA + 16 * T + 4 * k
            a.e(f'ds_read_b128 v[{r}:{r+3}], v{VR} offset:{16*T*SROW+64*k}')
    def mfmas(waits=True):
        for k in range(4):
            if waits:
                a.e(f's_waitcnt lgkmcnt({4*(3-k)})')
            elif k == 0:
                a.e('s_waitcnt lgkmcnt(0)')
            for T in range(3):
                r = FA + 16 * T + 4 * k
                cc = '0' if k == 0 else f'v[{DACC+4*T}:{DACC+4*T+3}]'
                a.e(f'v_mfma_f32_16x16x32_f16 v[{DACC+4*T}:{DACC+4*T+3}], v[{r}:{r+3}], v[{144+4*k}:{147+4*k}], {cc}')

    if defer:
        return lambda: mfmas(waits=False)
    mfmas()


def ktab_part1(a):
    a.e(f's_mul_i32 s66, s{S_W}, {SCRW}')
    a.e(f's_add_u32 s66, s66, {L_SCR}')
    a.e('v_lshl_add_u32 v90, v1, 4, s66')
    a.e(f's_lshl_b32 s67, s{S_W}, 2')
    a.e(f's_add_u32 s67, s67, {L_SIG}')
    a.e('v_mov_b32 v91, s67')
    a.e('s_mov_b64 exec, 1')
    a.e('ds_write_b32 v91, v52')
    a.e('ds_write_b32 v91, v53 offset:16')
    a.e('s_mov_b64 exec, -1')
    for c, DK in ((0, DK0), (1, DK1)):
        for T in range(3):
            for h in range(2):
                i = DK + 4 * T + 2 * h
                a.e(f'v_pk_mul_f32 v[{i}:{i+1}], v[{i}:{i+1}], v[52:53] op_sel:[0,{c}] op_sel_hi:[1,{c}]')
            a.e(f'ds_write_b128 v90, v[{DK+4*T}:{DK+4*T+3}] offset:{c*3072+T*1024}')
    a.e('v_mov_b32 v96, 0')
    a.e('v_mov_b32 v97, 0')
    a.e('v_mov_b32 v98, 0')
    a.e('v_mov_b32 v99, 0')
    a.e(f'v_mov_b32 v92, {L_KT + 1536}')
    a.e('ds_write_b32 v92, v96')
    a.e(f'ds_write_b32 v92, v96 offset:{KTCH}')
    a.e('v_lshlrev_b32 v92, 3, v1')
    a.e(f'ds_write_b64 v92, v[96:97] offset:{L_U}')
    a.e(f'ds_write_b64 v92, v[96:97] offset:{L_U + UCH}')
    a.e('s_waitcnt lgkmcnt(0)')
    a.e('s_barrier')


def ktab_part2(a, mid=None):
    a.e(f'v_mov_b32 v91, {L_SIG}')
    a.e('ds_read_b128 v[44:47], v91')
    a.e('ds_read_b128 v[48:51], v91 offset:16')
    a.e(f's_and_b32 s67, s{S_W}, 1')
    a.e(f's_lshr_b32 s70, s{S_W}, 1')
    a.e('s_mul_i32 s71, s67, 3072')
    a.e('s_lshl_b32 s72, s70, 10')
    a.e('s_add_u32 s72, s72, s71')
    a.e(f's_add_u32 s72, s72, {L_SCR}')
    a.e(f's_add_u32 s71, s71, {L_SCR + 2048}')
    a.e('v_lshl_add_u32 v90, v1, 4, s72')
    a.e('v_lshl_add_u32 v91, v1, 4, s71')
    for wv in range(4):
        a.e(f'ds_read_b128 v[{96+4*wv}:{99+4*wv}], v90 offset:{wv*SCRW}')
    for wv in range(4):
        a.e(f'ds_read_b128 v[{112+4*wv}:{115+4*wv}], v91 offset:{wv*SCRW}')
    a.e('v_mov_b32 v128, 0')
    a.e('v_mov_b32 v129, 0')
    a.e('v_mov_b32 v130, 0')
    a.e('v_mov_b32 v131, 0')
    if OPT['c4']:
        a.e('v_and_b32 v132, 7, v1')
        a.e(f'v_mul_u32_u24 v132, {KCOPY}, v132')
        a.e('v_bfe_u32 v133, v1, 3, 1')
        a.e('v_lshl_add_u32 v132, v133, 4, v132')
    else:
        a.e('v_and_b32 v132, 15, v1')
        a.e(f'v_mul_u32_u24 v132, {KCOPY}, v132')
    a.e(f'v_add_u32 v132, {L_KC}, v132')
    a.e('ds_write_b128 v132, v[128:131] offset:4096')
    a.e('v_lshrrev_b32 v92, 4, v1')
    a.e('v_lshlrev_b32 v92, 7, v92')
    a.e('v_and_b32 v93, 15, v1')
    a.e('v_lshl_add_u32 v92, v93, 1, v92')
    a.e(f's_mul_i32 s71, s67, {KTCH}')
    a.e(f's_add_u32 s71, s71, {L_KT}')
    a.e('v_add_u32 v93, s71, v92')
    a.e('s_lshl_b32 s72, s70, 9')
    a.e('v_add_u32 v92, s72, v93')
    if mid is not None:
        mid()
    a.e('s_waitcnt lgkmcnt(9)')
    a.e('v_pk_add_f32 v[44:45], v[44:45], v[46:47]')
    a.e('v_pk_add_f32 v[48:49], v[48:49], v[50:51]')
    a.e('v_add_f32 v44, v44, v45')
    a.e('v_add_f32 v45, v48, v49')
    a.e('s_cmp_eq_u32 s67, 0')
    a.e('s_cselect_b64 vcc, -1, 0')
    a.e('v_pk_mul_f32 v[54:55], v[54:55], v[44:45]')
    a.e('v_cndmask_b32 v46, v45, v44, vcc')
    a.e('v_pk_add_f32 v[54:55], v[54:55], v[54:55]')
    a.e('v_rcp_f32 v46, v46')
    for jb, (base, va, off) in enumerate(((96, 92, 0), (112, 93, 1024))):
        a.e(f's_waitcnt lgkmcnt({5 if jb == 0 else 5})')
        for h in range(2):
            a.e(f'v_pk_add_f32 v[{base+2*h}:{base+2*h+1}], v[{base+2*h}:{base+2*h+1}], v[{base+4+2*h}:{base+5+2*h}]')
            a.e(f'v_pk_add_f32 v[{base+8+2*h}:{base+9+2*h}], v[{base+8+2*h}:{base+9+2*h}], v[{base+12+2*h}:{base+13+2*h}]')
        for h in range(2):
            a.e(f'v_pk_add_f32 v[{base+2*h}:{base+2*h+1}], v[{base+2*h}:{base+2*h+1}], v[{base+8+2*h}:{base+9+2*h}]')
        for h in range(2):
            a.e(f'v_pk_mul_f32 v[{base+2*h}:{base+2*h+1}], v[{base+2*h}:{base+2*h+1}], v[46:47] op_sel:[0,0] op_sel_hi:[1,0]')
        a.e(f'v_cvt_pk_f16_f32 v{base+4}, v{base}, v{base+1}')
        a.e(f'v_cvt_pk_f16_f32 v{base+5}, v{base+2}, v{base+3}')
        a.e(f'ds_write_b16 v{va}, v{base+4} offset:{off}')
        a.e(f'ds_write_b16_d16_hi v{va}, v{base+4} offset:{off+32}')
        a.e(f'ds_write_b16 v{va}, v{base+5} offset:{off+64}')
        a.e(f'ds_write_b16_d16_hi v{va}, v{base+5} offset:{off+96}')
    for e in range(11 if OPT['c4'] else 15):
        src = 160 + e // 2
        if e % 2 == 0:
            a.e(f'v_and_b32 v{136+e}, 0xffff, v{src}')
        else:
            a.e(f'v_lshrrev_b32 v{136+e}, 16, v{src}')
    a.e('s_waitcnt lgkmcnt(0)')
    a.e('s_barrier')


def kch():
    return (4 if OPT['c4'] else 8) * KCOPY


def kcopies(a):
    AD = 136
    a.e('v_lshlrev_b32 v111, 4, v0')
    a.e(f'v_add_u32 v111, {L_KC}, v111')
    RR = [96, 112]
    if OPT['c4']:
        for c in range(2):
            for e in range(11):
                a.e(f'ds_read_u16 v{RR[c]+e}, v{AD+e} offset:{L_KT + c*KTCH}')
        for c in range(2):
            R = RR[c]
            Da, Db, Oa, Ob = (56, 60, 64, 68) if c == 0 else (16, 20, 24, 28)
            a.e(f's_waitcnt lgkmcnt({11 if c == 0 else 4})')
            for i in range(4):
                a.e(f'v_lshl_or_b32 v{Da+i}, v{R+2*i+1}, 16, v{R+2*i}')
                a.e(f'v_lshl_or_b32 v{Oa+i}, v{R+2*i+2}, 16, v{R+2*i+1}')
                a.e(f'v_lshl_or_b32 v{Db+i}, v{R+2*i+3}, 16, v{R+2*i+2}')
                a.e(f'v_lshl_or_b32 v{Ob+i}, v{R+2*i+4}, 16, v{R+2*i+3}')
            for s_, r in ((0, Da), (1, Oa), (2, Db), (3, Ob)):
                a.e(f'ds_write_b128 v111, v[{r}:{r+3}] offset:{c*kch() + s_*KCOPY}')
        return
    for c in range(2):
        for e in range(15):
            a.e(f'ds_read_u16 v{RR[c]+e}, v{AD+e} offset:{L_KT + c*KTCH}')
    for c in range(2):
        R = RR[c]
        Da, Db, Oa, Ob = 56 + 0, 64, 72, 80
        if c == 1:
            Da, Db, Oa, Ob = 16, 24, 32, 40
        a.e(f's_waitcnt lgkmcnt({15 if c == 0 else 8})')
        for i in range(6):
            a.e(f'v_lshl_or_b32 v{Da+i}, v{R+2*i+1}, 16, v{R+2*i}')
            a.e(f'v_lshl_or_b32 v{Oa+i}, v{R+2*i+2}, 16, v{R+2*i+1}')
        if c == 1:
            a.e(f'v_add_u32 v110, {KCH}, v111')
        va = 111 if c == 0 else 110
        for s, r in ((0, Da), (1, Oa), (4, Da + 2), (5, Oa + 2)):
            a.e(f'ds_write_b128 v{va}, v[{r}:{r+3}] offset:{s*KCOPY}')
        for i in range(6):
            a.e(f'v_lshl_or_b32 v{Db+i}, v{R+2*i+3}, 16, v{R+2*i+2}')
            a.e(f'v_lshl_or_b32 v{Ob+i}, v{R+2*i+4}, 16, v{R+2*i+3}')
        for s, r in ((2, Db), (3, Ob), (6, Db + 2), (7, Ob + 2)):
            a.e(f'ds_write_b128 v{va}, v[{r}:{r+3}] offset:{s*KCOPY}')


def store_u(a, vm):
    a.e('v_lshlrev_b32 v2, 4, v0')
    a.e(f's_waitcnt vmcnt({vm})')
    a.e(f'ds_write_b128 v2, v[176:179] offset:{L_U + 512}')
    a.e(f'ds_write_b128 v2, v[180:183] offset:{L_U + UCH + 512}')
    a.e('s_waitcnt lgkmcnt(0)')
    a.e('s_barrier')


def phase_conv(a, hooks, pre_vm):
    hooks = list(hooks)
    ACC = 16
    FA = [[64 + 64 * s + 4 * i for i in range(8)] for s in range(2)]
    FB = [[96 + 64 * s + 4 * i for i in range(8)] for s in range(2)]
    VA, VB = (192, 193) if OPT['hoist'] else (48, 49)

    def loads(qq, s):
        out = []
        for i in range(8):
            out.append(f'ds_read_b128 v[{FB[s][i]}:{FB[s][i]+3}], v{VB} offset:{512*i + 64*(3-qq)}')
            if OPT['c4']:
                o = 512 * (7 - i) + 64 * (3 - qq)
                out.append(f'ds_read_b64 v[{FA[s][i]}:{FA[s][i]+1}], v{VA} offset:{o}')
                out.append(f'ds_read_b64 v[{FA[s][i]+2}:{FA[s][i]+3}], v{VA} offset:{o + 8}')
            else:
                out.append(f'ds_read_b128 v[{FA[s][i]}:{FA[s][i]+3}], v{VA} offset:{512*(7-i) + 64*(3-qq)}')
        return out

    for x in loads(0, 0):
        a.e(x)
    for qq in range(4):
        s = qq & 1
        nxt = loads(qq + 1, 1 - s) if qq < 3 else []
        n = 0
        for w in range(8):
            for c in range(w, 8):
                if n == 0:
                    a.e('s_waitcnt lgkmcnt(0)')
                    if qq == 3 and OPT['cvbar']:
                        a.e('s_barrier')
                cc = '0' if (qq == 0 and w == 0) else f'v[{ACC+4*c}:{ACC+4*c+3}]'
                a.e(f'v_mfma_f32_16x16x32_f16 v[{ACC+4*c}:{ACC+4*c+3}], v[{FA[s][w]}:{FA[s][w]+3}], v[{FB[s][c-w]}:{FB[s][c-w]+3}], {cc}')
                if nxt and (n % 2 == 1 or (OPT['c4'] and n % 4 == 0)):
                    a.e(nxt.pop(0))
                if hooks and n % 4 == 2:
                    hooks.pop(0)()
                n += 1
        assert not nxt
    assert not hooks
    stamp(a, 11)
    CP, TS = L_CP, 1280
    if OPT['hoist']:
        if not OPT['cvbar']:
            a.e('s_barrier')
        for c in range(8):
            a.e(f'ds_write_b128 v194, v[{ACC+4*c}:{ACC+4*c+3}] offset:{c*TS}')
        VRD, VU, VG = 195, 206, 207
    else:
        a.e('v_and_b32 v2, 15, v1')
        a.e('v_lshlrev_b32 v2, 4, v2')
        a.e('v_lshrrev_b32 v3, 4, v1')
        a.e('v_mul_u32_u24 v3, 320, v3')
        a.e('v_add_u32 v2, v2, v3')
        a.e(f's_mul_i32 s70, s{S_W}, {8*TS}')
        a.e(f's_add_u32 s70, s70, {CP}')
        a.e('v_add_u32 v2, s70, v2')
        if not OPT['cvbar']:
            a.e('s_barrier')
        for c in range(8):
            a.e(f'ds_write_b128 v2, v[{ACC+4*c}:{ACC+4*c+3}] offset:{c*TS}')
        a.e('v_lshrrev_b32 v2, 2, v1')
        a.e('v_lshlrev_b32 v2, 4, v2')
        a.e('v_and_b32 v3, 3, v1')
        a.e('v_mul_u32_u24 v3, 320, v3')
        a.e('v_add_u32 v2, v2, v3')
        a.e(f's_lshl_b32 s70, s{S_W}, 1')
        a.e(f's_mul_i32 s71, s70, {TS}')
        a.e(f's_add_u32 s71, s71, {CP}')
        a.e('v_add_u32 v2, s71, v2')
        a.e('s_lshl_b32 s71, s70, 9')
        a.e(f's_add_u32 s71, s71, {L_U + 512}')
        a.e('v_lshl_add_u32 v3, v1, 3, s71')
        a.e(f's_mul_i32 s71, s{S_P}, {AST}')
        a.e('s_lshl_b32 s72, s70, 10')
        a.e('s_add_u32 s71, s71, s72')
        a.e(f's_add_u32 s71, s71, {WS_AOUT}')
        a.e('v_lshl_add_u32 v4, v1, 4, s71')
        VRD, VU, VG = 2, 3, 4
    a.e('s_lshl_b32 s72, s69, 16')
    a.e('s_and_b32 s73, s69, 0xffff0000')
    a.e('v_mov_b32 v56, s72')
    a.e('v_mov_b32 v57, s73')
    a.e(f's_waitcnt lgkmcnt(0) vmcnt({pre_vm})')
    a.e('s_barrier')
    for q in range(2):
        P = 64 + 32 * q
        for ch in range(2):
            for hf in range(2):
                r = P + 8 * ch + 4 * hf
                a.e(f'ds_read_b128 v[{r}:{r+3}], v{VRD} offset:{(2*ch+hf)*8*TS + q*TS}')
        for ch in range(2):
            a.e(f'ds_read_b64 v[{P+16+2*ch}:{P+17+2*ch}], v{VU} offset:{ch*UCH + q*512}')
    for q in range(2):
        P = 64 + 32 * q
        a.e(f's_waitcnt lgkmcnt({6 if q == 0 else 0})')
        for ch in range(2):
            y = P + 8 * ch
            T = 128 + 16 * ch
            u = P + 16 + 2 * ch
            for h in range(2):
                a.e(f'v_pk_add_f32 v[{y+2*h}:{y+2*h+1}], v[{y+2*h}:{y+2*h+1}], v[{y+4+2*h}:{y+5+2*h}]')
            for i in range(4):
                a.e(f'v_fma_mix_f32 v{T+i}, v{u+i//2}, v{56+ch}, 0 op_sel:[{i%2},0,0] op_sel_hi:[1,0,0]')
            for h in range(2):
                a.e(f'v_pk_mul_f32 v[{y+2*h}:{y+2*h+1}], v[{y+2*h}:{y+2*h+1}], v[54:55] op_sel:[0,{ch}] op_sel_hi:[1,{ch}]')
            for h in range(2):
                a.e(f'v_cvt_pk_bf16_f32 v{T+6+h}, v{T+2*h}, v{T+2*h+1}')
                a.e(f'v_cvt_pk_bf16_f32 v{T+4+h}, v{y+2*h}, v{y+2*h+1}')
            for h in range(2):
                a.e(f'v_lshlrev_b32 v{T+2*h}, 16, v{T+6+h}')
                a.e(f'v_and_b32 v{T+2*h+1}, 0xffff0000, v{T+6+h}')
                a.e(f'v_lshlrev_b32 v{y+2*h}, 16, v{T+4+h}')
                a.e(f'v_and_b32 v{y+2*h+1}, 0xffff0000, v{T+4+h}')
            for h in range(2):
                a.e(f'v_pk_add_f32 v[{y+2*h}:{y+2*h+1}], v[{y+2*h}:{y+2*h+1}], v[{T+2*h}:{T+2*h+1}]')
        O = 160 + 4 * q
        for i in range(4):
            a.e(f'v_cvt_pk_bf16_f32 v{O+i}, v{P+i}, v{P+8+i}')
        a.e(f'buffer_store_dwordx4 v[{O}:{O+3}], v{VG}, {WSR}, 0 offen offset:{q*1024} sc1')


def conv_addr(a, va=48, vb=49):
    a.e(f's_lshr_b32 s66, s{S_W}, 1')
    a.e(f's_and_b32 s67, s{S_W}, 1')
    a.e('v_and_b32 v2, 7, v1')
    a.e('v_sub_u32 v2, 7, v2')
    if OPT['c4']:
        a.e('v_lshrrev_b32 v5, 2, v2')
        a.e('v_and_b32 v2, 3, v2')
        a.e(f'v_mul_u32_u24 v2, {KCOPY}, v2')
        a.e('v_lshl_add_u32 v2, v5, 3, v2')
    else:
        a.e(f'v_mul_u32_u24 v2, {KCOPY}, v2')
    a.e('v_lshrrev_b32 v3, 4, v1')
    a.e('v_bfe_u32 v4, v1, 3, 1')
    a.e('v_sub_u32 v4, v3, v4')
    a.e('v_lshl_add_u32 v2, v4, 4, v2')
    a.e(f's_mul_i32 s70, s66, {kch()}')
    a.e('s_lshl_b32 s71, s67, 8')
    a.e('s_sub_u32 s70, s70, s71')
    a.e(f's_add_u32 s70, s70, {L_KC + 16*253 - 512*7 - 64*3}')
    a.e(f'v_add_u32 v{va}, s70, v2')
    a.e('v_and_b32 v2, 15, v1')
    a.e('v_lshlrev_b32 v2, 5, v2')
    a.e('v_lshl_add_u32 v2, v3, 4, v2')
    a.e(f's_mul_i32 s70, s66, {UCH}')
    a.e('s_sub_u32 s70, s70, s71')
    a.e(f's_add_u32 s70, s70, {L_U + 480 - 64*3}')
    a.e(f'v_add_u32 v{vb}, s70, v2')


def p4_pre(a):
    X = list(range(8, 16))
    xrow_addr(a)
    a.e(f's_mul_i32 s66, s{S_W}, {56*AST}')
    a.e(f's_lshl_b32 s67, s{S_B}, 5')
    a.e('s_add_u32 s66, s66, s67')
    a.e(f's_add_u32 s66, s66, {WS_AOUT}')
    a.e(f'v_mul_u32_u24 v4, {AST}, v1')
    a.e('v_add_u32 v4, s66, v4')
    a.e(f'v_mov_b32 v5, {OOB}')
    a.e('v_cndmask_b32 v4, v5, v4, vcc')
    if OPT['hpriv']:
        a.e(f's_mul_i32 s66, s{S_W}, 1792')
        a.e(f's_add_u32 s66, s66, {L_HT}')
        a.e('v_lshl_add_u32 v6, v1, 2, s66')
        a.e('v_lshl_add_u32 v7, v1, 4, s66')
        a.e(f's_mul_i32 s66, s{S_B}, 7168')
        a.e(f's_mul_i32 s67, s{S_W}, 224')
        a.e('s_add_u32 s66, s66, s67')
        a.e(f's_add_u32 s66, s66, {WS_H}')
        for k, vd in ((0, 56), (64, 57)):
            a.e(f'v_add_u32 v58, {k}, v1')
            a.e('v_mul_u32_u24 v59, 4682, v58')
            a.e('v_lshrrev_b32 v59, 16, v59')
            a.e(f'v_mul_u32_u24 v{vd}, {896 - 224}, v59')
            a.e(f'v_lshl_add_u32 v{vd}, v58, 4, v{vd}')
            a.e(f'v_add_u32 v{vd}, s66, v{vd}')
        mask_lanes(a, 57, 48, 58)
    else:
        a.e(f's_mul_i32 s66, s{S_W}, 224')
        a.e(f's_add_u32 s66, s66, {L_HT}')
        a.e('v_lshl_add_u32 v6, v1, 2, s66')
    for j in range(8):
        a.e(f'v_lshlrev_b32 v{64+2*j}, 16, v{X[j]}')
        a.e(f'v_and_b32 v{65+2*j}, 0xffff0000, v{X[j]}')


def p4_loads(a):
    A = 32
    a.e(f'buffer_load_dwordx4 v[{A}:{A+3}], v4, {WSR}, 0 offen sc1')
    a.e(f'buffer_load_dwordx4 v[{A+4}:{A+7}], v4, {WSR}, 0 offen offset:16 sc1')


def p4_check(a):
    A = 32
    a.e(f'v_max3_u32 v40, v{A}, v{A+1}, v{A+2}')
    a.e(f'v_max3_u32 v41, v{A+3}, v{A+4}, v{A+5}')
    a.e(f'v_max3_u32 v40, v40, v{A+6}, v{A+7}')
    a.e('v_max_u32 v40, v40, v41')
    a.e('v_cmp_eq_u32 vcc, -1, v40')


def phase_p4(a, dmas=(), pre_done=None):
    X = list(range(8, 16))
    A = 32
    if pre_done is None:
        p4_pre(a)
        lp0, ld = a.lab('h2poll0'), a.lab('h2done')
    else:
        lp0, ld = pre_done
    lp = a.lab('h2poll')
    a.e(f'{lp0}:')
    a.e(f's_mov_b32 s{S_SPIN}, 0')
    a.e(f'{lp}:')
    p4_loads(a)
    a.e('s_waitcnt vmcnt(0)')
    p4_check(a)
    a.e(f's_cbranch_vccz {ld}')
    spin_tail(a, lp)
    a.e(f'{ld}:')
    stamp(a, 14)
    H = list(range(48, 56))
    for j in range(8):
        t = 40 + 2 * (j % 4)
        a.e(f'v_lshlrev_b32 v{t}, 16, v{A+j}')
        a.e(f'v_and_b32 v{t+1}, 0xffff0000, v{A+j}')
        a.e(f'v_pk_add_f32 v[{t}:{t+1}], v[{t}:{t+1}], v[{64+2*j}:{65+2*j}]')
        a.e(f'v_cvt_pk_bf16_f32 v{H[j]}, v{t}, v{t+1}')
    a.e('s_mov_b32 exec_hi, 0x00ffffff')
    for j in range(8):
        a.e(f'ds_write_b32 v6, v{H[j]} offset:{j*(224 if OPT["hpriv"] else 896)}')
    a.e('s_mov_b32 exec_hi, -1')
    if OPT['hpriv']:
        a.e('ds_read_b128 v[32:35], v7')
        a.e('ds_read_b128 v[36:39], v7 offset:1024')
        a.e('s_waitcnt lgkmcnt(1)')
        a.e(f'buffer_store_dwordx4 v[32:35], v56, {WSR}, 0 offen sc1')
        a.e('s_waitcnt lgkmcnt(0)')
        a.e(f'buffer_store_dwordx4 v[36:39], v57, {WSR}, 0 offen sc1')
        if dmas:
            a.inject(dmas, OPT['p4ev'])
        ln_stats(a, H, 16, L_RED0, 5)
    else:
        def hstore():
            a.e('v_lshlrev_b32 v7, 4, v0')
            a.e(f'ds_read_b128 v[56:59], v7 offset:{L_HT}')
            a.e(f'ds_read_b128 v[60:63], v7 offset:{L_HT + 4096}')
            return 2

        ln_stats(a, H, 16, L_RED0, 5, mid=hstore)
        a.e(f's_mul_i32 s66, s{S_B}, 7168')
        a.e(f's_add_u32 s66, s66, {WS_H}')
        a.e('v_add_u32 v6, s66, v7')
        a.e('v_add_u32 v7, 4096, v6')
        mask_lanes(a, 7, 192, 4, 'v0')
        a.e('s_waitcnt lgkmcnt(0)')
        a.e(f'buffer_store_dwordx4 v[56:59], v6, {WSR}, 0 offen sc1')
        a.e(f'buffer_store_dwordx4 v[60:63], v7, {WSR}, 0 offen sc1')
    bcast_stats(a, 16)
    a.inj_pause()
    a.e('s_mov_b32 exec_hi, 0x00ffffff')
    for j in range(8):
        t = 40 + 2 * (j % 4)
        norm_tok(a, j, H[j], t)
        a.e(f'v_cvt_pk_bf16_f32 v{H[j]}, v{t}, v{t+1}')
    a.e('s_mov_b32 exec_hi, -1')
    a.inj_resume()
    ln_stats(a, H, 16, L_RED1, 5)
    bcast_stats(a, 16)
    VHH = 213 if OPT['hoist'] else 4
    if not OPT['hoist']:
        a.e(f's_mul_i32 s66, s{S_B}, 7168')
        a.e(f's_mul_i32 s67, s{S_W}, 1792')
        a.e('s_add_u32 s66, s66, s67')
        a.e(f's_add_u32 s66, s66, {WS_HH}')
        a.e('v_lshl_add_u32 v4, v1, 4, s66')
        a.e('v_add_u32 v5, 448, v4')
        a.e('v_cmp_gt_u32 vcc, 28, v1')
        a.e('v_cndmask_b32 v4, v5, v4, vcc')
        mask_lanes(a, 4, 56, 5)
    for j in range(8):
        norm_tok(a, j, H[j], 64 + 2 * j)
    O0, O1 = 80, 84
    for i in range(4):
        a.e(f'v_cvt_pk_bf16_f32 v{O0+i}, v{64+4*i}, v{66+4*i}')
        a.e(f'v_cvt_pk_bf16_f32 v{O1+i}, v{65+4*i}, v{67+4*i}')
    a.inj_flush()
    if not OPT['nohw']:
        a.e(f's_waitcnt vmcnt({len(dmas)})')
    if not OPT['hpriv']:
        a.e('s_barrier')
    a.e(f'buffer_store_dwordx4 v[{O0}:{O0+3}], v{VHH}, {WSR}, 0 offen sc1')
    a.e(f'buffer_store_dwordx4 v[{O1}:{O1+3}], v{VHH}, {WSR}, 0 offen offset:448 sc1')


def w_setup(a):
    srd(a, S_W1, P_W1, W1BYTES)
    srd(a, S_W2, P_W2, W2BYTES)
    a.e('v_lshrrev_b32 v4, 3, v1')
    a.e('v_bfe_u32 v5, v1, 4, 1')
    a.e('v_lshlrev_b32 v5, 1, v5')
    a.e('v_and_b32 v6, 7, v1')
    a.e('v_xor_b32 v6, v6, v5')
    a.e('v_xor_b32 v7, 4, v6')
    for vd, rowbytes, tile, rows in ((V_D1, F * 2, S_I1, 512), (V_D2, L * 2, S_I2, 448)):
        a.e(f's_mov_b32 s66, {rowbytes}')
        a.e('v_mul_lo_u32 v5, v4, s66')
        a.e(f's_mul_i32 s67, s{S_W}, {rows*rowbytes}')
        a.e(f's_lshl_b32 s66, s{tile}, 7')
        a.e('s_add_u32 s67, s67, s66')
        a.e('v_add_u32 v5, s67, v5')
        for i in range(4):
            a.e(f'v_lshl_add_u32 v{vd+i}, v{6 + (i & 1)}, 4, v5')
            if i:
                a.e(f'v_add_u32 v{vd+i}, {i*(8*rowbytes - 1024)}, v{vd+i}')
    a.e('v_lshlrev_b32 v5, 12, v4')
    a.e('v_and_b32 v6, 7, v1')
    a.e(f'v_lshl_add_u32 v{V_QPF}, v6, 4, v5')
    a.e(f's_and_b32 s66, s{S_LOC}, 3')
    a.e('s_mul_i32 s66, s66, 448')
    if OPT['sched'] == 3:
        a.e(f's_mul_i32 s67, s{S_W}, {(448 - OPT["hR"]) // 4}')
        a.e(f's_add_u32 s67, s67, {OPT["hR"]}')
    else:
        a.e(f's_mul_i32 s67, s{S_W}, 112')
    a.e('s_add_u32 s66, s66, s67')
    a.e('s_lshl_b32 s66, s66, 12')
    a.e(f's_lshl_b32 s67, s{S_I2}, 7')
    a.e(f's_add_u32 s{S_QPF}, s66, s67')
    a.e('v_lshrrev_b32 v4, 4, v1')
    a.e('v_bfe_u32 v5, v1, 2, 2')
    a.e('v_lshl_add_u32 v5, v4, 3, v5')
    a.e('v_lshlrev_b32 v5, 7, v5')
    a.e('v_and_b32 v6, 1, v1')
    a.e('v_lshl_add_u32 v5, v6, 3, v5')
    a.e('v_bfe_u32 v6, v1, 1, 1')
    a.e('v_lshl_add_u32 v5, v6, 4, v5')
    a.e('v_bfe_u32 v6, v1, 3, 1')
    a.e('v_and_b32 v4, 1, v4')
    a.e('v_lshl_add_u32 v6, v4, 1, v6')
    a.e(f's_and_b32 s66, s{S_LOC}, 3')
    a.e(f's_lshr_b32 s67, s{S_LOC}, 2')
    a.e('s_lshl_b32 s67, s67, 1')
    a.e('s_lshl_b32 s70, s66, 2')
    a.e('s_add_u32 s70, s70, s67')
    a.e('s_and_b32 s70, s70, 15')
    a.e(f's_mul_i32 s{S_RW1}, s70, {32*F*2}')
    a.e(f's_mul_i32 s{S_RX1}, s70, {4*7168}')
    a.e('s_mul_i32 s66, s66, 7')
    a.e('s_lshr_b32 s66, s66, 1')
    a.e('s_add_u32 s66, s66, s67')
    for _ in range(2):
        a.e('s_cmp_ge_u32 s66, 14')
        a.e('s_cselect_b32 s67, 14, 0')
        a.e('s_sub_u32 s66, s66, s67')
    a.e(f's_mul_i32 s{S_RW2}, s66, {32*L*2}')
    a.e(f's_mul_i32 s{S_RX2}, s66, {4*7168}')
    a.e(f's_lshl_b32 s{S_SA}, s{S_W}, 14')
    a.e(f's_add_u32 s{S_SA}, s{S_SA}, {L_WA}')
    a.e(f's_mul_i32 s{S_SB}, s{S_W}, 20480')
    a.e(f's_add_u32 s{S_SB}, s{S_SB}, {L_WB}')
    a.e(f's_lshl_b32 s{S_SC}, s{S_W}, 13')
    a.e(f's_add_u32 s{S_SC}, s{S_SC}, {L_WC}')
    for mu in range(4):
        a.e(f'v_xor_b32 v4, {mu}, v6')
        a.e('v_lshl_add_u32 v4, v4, 5, v5')
        a.e(f'v_add_u32 v{V_TA+mu}, s{S_SA}, v4')
        a.e(f'v_add_u32 v{V_TB+mu}, s{S_SB}, v4')
        a.e(f'v_add_u32 v{V_TC+mu}, s{S_SC}, v4')


def rot_off(a, idx, sreg, n, unit):
    a.e(f's_add_u32 s70, s{sreg}, {idx*unit}')
    a.e(f's_cmp_ge_u32 s70, {n*unit}')
    a.e(f's_cselect_b32 s71, {n*unit}, 0')
    a.e('s_sub_u32 s70, s70, s71')


def slot(name):
    return {'A': (S_SA, V_TA), 'B': (S_SB, V_TB), 'C': (S_SC, V_TC)}[name[0]] + (int(name[1]),)


def w_dma1(a, mat, slab, sl, i):
    sb, _, si = slot(sl)
    vd, srd_, rowbytes = (V_D1, S_W1, F * 2) if mat == 1 else (V_D2, S_W2, L * 2)
    if i == 0:
        rot_off(a, slab, S_RW1 if mat == 1 else S_RW2, 16 if mat == 1 else 14, 32 * rowbytes)
        a.e(f's_add_u32 m0, s{sb}, {si*4096}')
    a.e(f'buffer_load_dwordx4 v{vd + i}, s[{srd_}:{srd_+3}], s70 offen offset:{1024*i} lds')


def w_dma(a, mat, slab, sl):
    for i in range(4):
        w_dma1(a, mat, slab, sl, i)


def w_tr(a, slab, sl):
    _, vt, si = slot(sl)
    for mu in range(4):
        r = (slab * 4 + mu) * 4
        a.e(f'ds_read_b64_tr_b16 a[{r}:{r+1}], v{vt+mu} offset:{si*4096}')
        a.e(f'ds_read_b64_tr_b16 a[{r+2}:{r+3}], v{vt+mu} offset:{si*4096 + 512}')


def helper_w2(a, nrows, mid=None):
    a.e(f's_lshr_b32 s66, s{S_XCD}, 1')
    a.e('s_lshl_b32 s66, s66, 10')
    a.e(f's_sub_u32 s67, s{S_LOC}, 28')
    a.e('s_mul_i32 s67, s67, 448')
    a.e(f's_add_u32 s67, s67, s{S_W}')
    a.e('s_lshl_b32 s67, s67, 12')
    a.e('s_add_u32 s90, s66, s67')
    a.e('v_lshlrev_b32 v4, 4, v1')

    def loop(n):
        if n <= 0:
            return
        l = a.lab('l2s')
        a.e(f's_mov_b32 s91, {n}')
        a.e(f'{l}:')
        for i in range(4):
            a.e(f'buffer_load_dwordx4 v[220:223], v4, s[{S_W2}:{S_W2+3}], s90 offen')
            a.e(f's_add_u32 s90, s90, {4*L*2}')
        a.e('s_waitcnt vmcnt(8)')
        a.e('s_sub_u32 s91, s91, 1')
        a.e('s_cmp_lg_u32 s91, 0')
        a.e(f's_cbranch_scc1 {l}')

    total = nrows // 16
    if mid is None:
        loop(total)
        return
    n1, issue, check = mid
    loop(n1)
    issue()
    loop(3)
    check()
    loop(total - n1 - 3)


def qpf_load(a, n):
    for _ in range(n):
        a.e(f'buffer_load_dwordx4 v[220:223], v{V_QPF}, s[{S_W2}:{S_W2+3}], s{S_QPF} offen')
        a.e(f's_add_u32 s{S_QPF}, s{S_QPF}, {8*L*2}')


ACC = 16
XS = 80
NS = 6
VMAX = 214
V_X0, V_X3 = 208, 209


def gemm_xaddr(a, ws_off, kblocks):
    a.e(f's_mul_i32 s66, s{S_W}, {kblocks*7168}')
    a.e(f's_mul_i32 s67, s{S_J}, 896')
    a.e('s_add_u32 s66, s66, s67')
    a.e(f's_add_u32 s66, s66, {ws_off}')
    a.e('v_lshrrev_b32 v4, 4, v1')
    a.e('v_mul_u32_u24 v4, 7168, v4')
    a.e('v_add_u32 v4, s66, v4')
    a.e('v_and_b32 v5, 15, v1')
    a.e(f'v_lshl_add_u32 v{V_X0}, v5, 4, v4')
    if OPT['x3oob']:
        a.e(f'v_add_u32 v{V_X3}, 768, v{V_X0}')
        a.e(f'v_mov_b32 v4, {OOB}')
        a.e('v_cmp_gt_u32 vcc, 8, v5')
        a.e(f'v_cndmask_b32 v{V_X3}, v4, v{V_X3}, vcc')
    else:
        a.e('v_and_b32 v5, 7, v1')
        a.e('v_lshl_add_u32 v4, v5, 4, v4')
        a.e(f'v_add_u32 v{V_X3}, 768, v4')


def gemm_xloads(a, kappa, gid):
    st = XS + 16 * (kappa % NS)
    out = []
    sreg, n = (S_RX1, 16) if gid == 1 else (S_RX2, 14)
    unit = 4 * 7168
    out.append(f's_add_u32 s70, s{sreg}, {kappa*unit}')
    out.append(f's_cmp_ge_u32 s70, {n*unit}')
    out.append(f's_cselect_b32 s71, {n*unit}, 0')
    out.append('s_sub_u32 s70, s70, s71')
    for nu in range(3):
        out.append(f'buffer_load_dwordx4 v[{st+4*nu}:{st+4*nu+3}], v{V_X0}, {WSR}, s70 offen offset:{256*nu} sc1')
    out.append(f'buffer_load_dwordx4 v[{st+12}:{st+15}], v{V_X3}, {WSR}, s70 offen sc1')
    return out


def gemm_main(a, nk, gid, tail_hook=None):
    nfl = OPT['nfl']
    w_is_a = gid == 1
    a.e(f'v_mov_b32 v{VMAX}, 0')
    extra = 0
    for k in range(nk):
        st = XS + 16 * (k % NS)
        rem = min(nfl - 1, nk - 1 - k)
        a.e(f's_waitcnt vmcnt({4*rem + extra})')
        if OPT['stamps'] and k in (0, 4, 8, 12):
            stamp(a, (44 if w_is_a else 51) + (0, 4, 8, 12).index(k))
        fill = gemm_xloads(a, k + nfl, gid) if k + nfl < nk else []
        if k + nfl == nk and tail_hook is not None:
            fill = []
            extra = tail_hook(fill)
        mx = [f'v_max3_u32 v{VMAX}, v{VMAX}, v{st+2*i}, v{st+2*i+1}' for i in range(8)]
        n = 0
        for mu in range(4):
            for nu in range(4):
                w = (k * 4 + mu) * 4
                x = st + 4 * nu
                if w_is_a:
                    acc = ACC + (mu * 4 + nu) * 4
                    A, B = f'a[{w}:{w+3}]', f'v[{x}:{x+3}]'
                else:
                    acc = ACC + (nu * 4 + mu) * 4
                    A, B = f'v[{x}:{x+3}]', f'a[{w}:{w+3}]'
                cc = '0' if k == 0 else f'v[{acc}:{acc+3}]'
                a.e(f'v_mfma_f32_16x16x32_bf16 v[{acc}:{acc+3}], {A}, {B}, {cc}')
                for _ in range(2):
                    if fill:
                        a.e(fill.pop(0))
                if not fill and mx and n >= 4:
                    a.e(mx.pop(0))
                n += 1
        assert not fill and not mx


def capture(fn):
    p = Prog()
    fn(p)
    return [it.text for it in p.items]


STUBS = []


def mfma_line(k, mu, nu, gid):
    st = XS + 16 * (k % NS)
    w = (k * 4 + mu) * 4
    x = st + 4 * nu
    if gid == 1:
        acc = ACC + (mu * 4 + nu) * 4
        A, B = f'a[{w}:{w+3}]', f'v[{x}:{x+3}]'
    else:
        acc = ACC + (nu * 4 + mu) * 4
        A, B = f'v[{x}:{x+3}]', f'a[{w}:{w+3}]'
    cc = '0' if k == 0 else f'v[{acc}:{acc+3}]'
    return f'v_mfma_f32_16x16x32_bf16 v[{acc}:{acc+3}], {A}, {B}, {cc}'


def poison_check(k):
    st = XS + 16 * (k % NS)
    out = [f'v_max3_u32 v{VMAX}, v{st}, v{st+1}, v{st+2}']
    for i in range(6):
        out.append(f'v_max3_u32 v{VMAX}, v{VMAX}, v{st+3+2*i}, v{st+4+2*i}')
    out.append(f'v_max_u32 v{VMAX}, v{VMAX}, v{st+15}')
    out.append(f'v_cmp_eq_u32 vcc, -1, v{VMAX}')
    return out


def gemm_checked(a, nk, gid, sb, tail_hook=None, side=None, issued=False):
    nfl = OPT['nfl']

    def slow(k):
        ls, lb, lp = a.lab('slow'), a.lab('back'), a.lab('sloop')

        def emit():
            a.e(f'{ls}:')
            a.e(f's_mov_b32 s{S_SPIN}, 0')
            a.e(f'{lp}:')
            for x in gemm_xloads(a, k, gid):
                a.e(x)
            a.e('s_waitcnt vmcnt(0)')
            for x in poison_check(k):
                a.e(x)
            ldone = a.lab('sdone')
            a.e(f's_cbranch_vccz {ldone}')
            spin_tail(a, lp)
            a.e(f'{ldone}:')
            if k == 0:
                for kk in range(1, min(nfl, nk - 1) + 1):
                    for x in gemm_xloads(a, kk, gid):
                        a.e(x)
            a.e(f's_branch {lb}')
        STUBS.append(emit)
        return ls, lb

    if not issued:
        for k in range(nfl):
            for x in gemm_xloads(a, k, gid):
                a.e(x)
    a.e(f's_waitcnt vmcnt({4*(nfl-1)})')
    for x in gemm_xloads(a, nfl, gid):
        a.e(x)
    for x in poison_check(0):
        a.e(x)
    ls, lb = slow(0)
    a.e(f's_cbranch_vccnz {ls}')
    a.e(f'{lb}:')
    stamp(a, sb)
    extra = 0
    for k in range(nk):
        lines = [mfma_line(k, mu, nu, gid) for mu in range(4) for nu in range(4)]
        for i in range(8):
            a.e(lines[i])
        if k + 1 < nk:
            kn = k + 1
            rem = min(nfl - 1, nk - 1 - kn)
            a.e(f's_waitcnt vmcnt({4*rem + extra})')
            if OPT['stamps'] and kn in (4, 8, 12):
                stamp(a, (44 if gid == 1 else 51) + (0, 4, 8, 12).index(kn))
            fill = gemm_xloads(a, kn + nfl, gid) if kn + nfl < nk else []
            if kn + nfl == nk and tail_hook is not None:
                extra = tail_hook(fill)
            if side is not None:
                lines_, nvm = side(kn)
                fill += lines_
                extra += nvm
            fill += poison_check(kn)
        else:
            fill = []
        per = -(-len(fill) // 8)
        for i in range(8, 16):
            a.e(lines[i])
            for _ in range(per):
                if fill:
                    a.e(fill.pop(0))
        assert not fill
        if k + 1 < nk:
            ls, lb = slow(k + 1)
            a.e(f's_cbranch_vccnz {ls}')
            a.e(f'{lb}:')


def sentinel(a, ws_off, kblocks):
    lp, ld = a.lab('spoll'), a.lab('sdone')
    a.e(f's_mul_i32 s66, s{S_W}, {kblocks*7168}')
    a.e(f's_mul_i32 s67, s{S_J}, 896')
    a.e('s_add_u32 s66, s66, s67')
    a.e(f's_add_u32 s66, s66, {ws_off + 55*16 + 12}')
    a.e('v_mul_u32_u24 v4, 7168, v1')
    a.e('v_add_u32 v4, s66, v4')
    if kblocks < 64:
        mask_lanes(a, 4, kblocks, 5)
    a.e(f's_mov_b32 s{S_SPIN}, 0')
    a.e(f'{lp}:')
    a.e(f'buffer_load_dword v5, v4, {WSR}, 0 offen sc1')
    a.e('s_waitcnt vmcnt(0)')
    a.e('v_cmp_eq_u32 vcc, -1, v5')
    a.e(f's_cbranch_vccz {ld}')
    spin_tail(a, lp)
    a.e(f'{ld}:')


def gemm_first_loads(a, ws_off, kblocks, gid):
    gemm_xaddr(a, ws_off, kblocks)
    for k in range(OPT['nfl']):
        for x in gemm_xloads(a, k, gid):
            a.e(x)
    return 4 * OPT['nfl']


def gemm_poll_main(a, ws_off, kblocks, nk, gid, sb, tail_hook=None, side=None, issued=False):
    lr, lok = a.lab('gretry'), a.lab('gok')
    if not issued:
        gemm_xaddr(a, ws_off, kblocks)
    if OPT['stchk']:
        gemm_checked(a, nk, gid, sb, tail_hook, side, issued)
        return
    a.e(f's_mov_b32 s{S_RETRY}, 0')
    a.e(f'{lr}:')
    sentinel(a, ws_off, kblocks)
    stamp(a, sb)
    for k in range(OPT['nfl']):
        for x in gemm_xloads(a, k, gid):
            a.e(x)
    gemm_main(a, nk, gid, tail_hook)
    a.e(f'v_cmp_eq_u32 vcc, -1, v{VMAX}')
    a.e(f's_cbranch_vccz {lok}')
    a.e(f's_add_u32 s{S_RETRY}, s{S_RETRY}, 1')
    a.e(f's_cmp_lt_u32 s{S_RETRY}, {RETRY_MAX}')
    a.e(f's_cbranch_scc1 {lr}')
    a.e(f'{lok}:')


def write_partials(a):
    if OPT['hoist']:
        va = 241
    else:
        va = 4
        a.e('v_and_b32 v4, 15, v1')
        a.e(f'v_mul_u32_u24 v4, {PROW}, v4')
        a.e('v_lshrrev_b32 v5, 4, v1')
        a.e('v_lshl_add_u32 v4, v5, 4, v4')
        a.e(f's_mul_i32 s66, s{S_W}, {PARTW}')
        a.e(f's_add_u32 s66, s66, {L_PART}')
        a.e('v_add_u32 v4, s66, v4')
    if not OPT['prebar']:
        a.e('s_barrier')
    for mt in range(4):
        for nt in range(4):
            acc = ACC + (mt * 4 + nt) * 4
            a.e(f'ds_write_b128 v{va}, v[{acc}:{acc+3}] offset:{nt*16*PROW + mt*64}')


def sum_partials(a, P):
    for h in range(4):
        a.e(f'v_pk_add_f32 v[{P+2*h}:{P+2*h+1}], v[{P+2*h}:{P+2*h+1}], v[{P+8+2*h}:{P+9+2*h}]')
        a.e(f'v_pk_add_f32 v[{P+16+2*h}:{P+17+2*h}], v[{P+16+2*h}:{P+17+2*h}], v[{P+24+2*h}:{P+25+2*h}]')
    for h in range(4):
        a.e(f'v_pk_add_f32 v[{P+2*h}:{P+2*h+1}], v[{P+2*h}:{P+2*h+1}], v[{P+16+2*h}:{P+17+2*h}]')


def b1_load(a):
    a.e(f's_lshl_b32 s67, s{S_I1}, 7')
    a.e(f's_lshl_b32 s70, s{S_W}, 5')
    a.e('s_add_u32 s67, s67, s70')
    a.e(f's_load_dwordx8 s[72:79], s[{P_B1}:{P_B1+1}], s67')


def gemm1_epilogue(a, d0=(), d1=()):
    write_partials(a)
    if OPT['hoist']:
        VR1, VG1 = 242, 240
    else:
        VR1, VG1 = 4, 5
        a.e(f'v_mul_u32_u24 v4, {PROW}, v1')
        a.e(f's_lshl_b32 s66, s{S_W}, 6')
        a.e(f's_add_u32 s66, s66, {L_PART}')
        a.e('v_add_u32 v4, s66, v4')
        g_store_addr(a, 5)
    C1 = 0.044715
    C2 = -2.0 * 0.7978845608028654 * 1.4426950408889634
    a.e(f'v_mov_b32 v100, {fx(C1*C2)}')
    a.e(f'v_mov_b32 v101, {fx(C1*C2)}')
    a.e(f'v_mov_b32 v102, {fx(C2)}')
    a.e(f'v_mov_b32 v103, {fx(C2)}')
    a.e('s_waitcnt lgkmcnt(0)')
    a.e('s_barrier')
    stamp(a, 24)
    for r in range(2):
        P = 16 + 32 * r
        for wv in range(4):
            a.e(f'ds_read_b128 v[{P+8*wv}:{P+8*wv+3}], v{VR1} offset:{wv*PARTW + r*32}')
            a.e(f'ds_read_b128 v[{P+8*wv+4}:{P+8*wv+7}], v{VR1} offset:{wv*PARTW + r*32 + 16}')
    for i in range(8):
        a.e(f's_lshl_b32 s{80+2*i}, s{72+i}, 16')
        a.e(f's_and_b32 s{81+2*i}, s{72+i}, 0xffff0000')
    for r in range(2):
        P = 16 + 32 * r
        T = 80
        a.e(f's_waitcnt lgkmcnt({8 if r == 0 else 0})')
        if r == 1 and d1:
            a.e('s_barrier')
        dd = d0 if r == 0 else d1
        if dd:
            a.inject(dd, max(1, 80 // len(dd)))
        sum_partials(a, P)
        round_pairs(a, P, T, 8)
        for h in range(4):
            a.e(f'v_pk_add_f32 v[{P+2*h}:{P+2*h+1}], v[{P+2*h}:{P+2*h+1}], s[{80+8*r+2*h}:{81+8*r+2*h}]')
        round_pairs(a, P, T, 8)
        for h in range(4):
            a.e(f'v_pk_mul_f32 v[{P+8+2*h}:{P+9+2*h}], v[{P+2*h}:{P+2*h+1}], v[{P+2*h}:{P+2*h+1}]')
        for h in range(4):
            a.e(f'v_pk_fma_f32 v[{P+8+2*h}:{P+9+2*h}], v[{P+8+2*h}:{P+9+2*h}], v[100:101], v[102:103]')
        for h in range(4):
            a.e(f'v_pk_mul_f32 v[{P+8+2*h}:{P+9+2*h}], v[{P+8+2*h}:{P+9+2*h}], v[{P+2*h}:{P+2*h+1}]')
        for i in range(8):
            a.e(f'v_exp_f32 v{P+8+i}, v{P+8+i}')
        for h in range(4):
            a.e(f'v_pk_add_f32 v[{P+8+2*h}:{P+9+2*h}], v[{P+8+2*h}:{P+9+2*h}], 1.0 op_sel_hi:[1,0]')
        for i in range(8):
            a.e(f'v_rcp_f32 v{P+8+i}, v{P+8+i}')
        for h in range(4):
            a.e(f'v_pk_mul_f32 v[{P+2*h}:{P+2*h+1}], v[{P+2*h}:{P+2*h+1}], v[{P+8+2*h}:{P+9+2*h}]')
        O = 88 + 4 * r
        for h in range(4):
            a.e(f'v_cvt_pk_bf16_f32 v{O+h}, v{P+2*h}, v{P+2*h+1}')
        a.inj_flush()
        if r == 1:
            a.e(f'v_add_u32 v{VG1}, 7168, v{VG1}')
        a.e(f'buffer_store_dwordx4 v[{O}:{O+3}], v{VG1}, {WSR}, 0 offen sc1')


V_OUT, V_HAD, V_B2 = 210, 211, 212
V_HR = 196


def gemm2_addr(a):
    srd(a, S_T2, P_OUT, XBYTES)
    srd(a, S_T3, P_B2, L * 2)
    a.e('v_lshrrev_b32 v4, 3, v1')
    a.e('v_and_b32 v5, 7, v1')
    a.e(f's_lshl_b32 s66, s{S_W}, 4')
    a.e('v_add_u32 v4, s66, v4')
    a.e(f's_lshl_b32 s67, s{S_I2}, 6')
    a.e('v_add_u32 v7, s67, v4')
    a.e(f'v_mul_u32_u24 v{V_OUT}, 896, v7')
    a.e(f'v_lshl_add_u32 v{V_OUT}, v5, 4, v{V_OUT}')
    a.e(f's_mul_i32 s70, s{S_J}, 112')
    a.e(f'v_add_u32 v{V_OUT}, s70, v{V_OUT}')
    a.e(f'v_mov_b32 v6, {OOB}')
    a.e('v_cmp_gt_u32 vcc, 7, v5')
    a.e(f'v_cndmask_b32 v{V_OUT}, v6, v{V_OUT}, vcc')
    a.e(f'v_add_u32 v{V_HAD}, {WS_H}, v{V_OUT}')
    a.e(f'v_lshlrev_b32 v{V_B2}, 1, v7')


def gemm2_tail_loads(fill):
    fill.append(f'buffer_load_dwordx4 v[{V_HR}:{V_HR+3}], v{V_HAD}, {WSR}, 0 offen sc1')
    fill.append(f's_mov_b32 s70, {8*896}')
    fill.append(f'buffer_load_dwordx4 v[{V_HR+4}:{V_HR+7}], v{V_HAD}, {WSR}, s70 offen sc1')
    fill.append(f'buffer_load_ushort v{V_HR+8}, v{V_B2}, s[{S_T3}:{S_T3+3}], 0 offen')
    fill.append(f'buffer_load_ushort v{V_HR+9}, v{V_B2}, s[{S_T3}:{S_T3+3}], 0 offen offset:16')
    return 4


def gemm2_epilogue(a):
    write_partials(a)
    if OPT['hoist']:
        VR2 = 243
    else:
        VR2 = 6
        a.e('v_lshrrev_b32 v4, 3, v1')
        a.e('v_and_b32 v5, 7, v1')
        a.e(f's_lshl_b32 s66, s{S_W}, 4')
        a.e('v_add_u32 v4, s66, v4')
        a.e(f'v_mul_u32_u24 v6, {PROW}, v4')
        a.e('v_lshl_add_u32 v6, v5, 4, v6')
        a.e(f'v_add_u32 v6, {L_PART}, v6')
    a.e('s_waitcnt lgkmcnt(0)')
    a.e('s_barrier')
    stamp(a, 33)
    for r in range(2):
        P = 16 + 32 * r
        for wv in range(4):
            a.e(f'ds_read_b128 v[{P+8*wv}:{P+8*wv+3}], v{VR2} offset:{wv*PARTW + r*8*PROW}')
            a.e(f'ds_read_b128 v[{P+8*wv+4}:{P+8*wv+7}], v{VR2} offset:{wv*PARTW + r*8*PROW + 112}')
    a.e('s_waitcnt vmcnt(0)')
    for r in range(2):
        P = 16 + 32 * r
        T = 80
        H = V_HR + 4 * r
        a.e(f'v_lshlrev_b32 v106, 16, v{V_HR+8+r}')
        for i in range(4):
            a.e(f'v_lshlrev_b32 v{96+i}, 16, v{H+i}')
            a.e(f'v_and_b32 v{100+i}, 0xffff0000, v{H+i}')
        a.e(f's_waitcnt lgkmcnt({8 if r == 0 else 0})')
        sum_partials(a, P)
        round_pairs(a, P, T, 8)
        for h in range(4):
            a.e(f'v_pk_add_f32 v[{P+2*h}:{P+2*h+1}], v[{P+2*h}:{P+2*h+1}], v[106:107] op_sel:[0,0] op_sel_hi:[1,0]')
        round_pairs(a, P, T, 8)
        for h in range(4):
            a.e(f'v_pk_add_f32 v[{P+2*h}:{P+2*h+1}], v[{P+2*h}:{P+2*h+1}], v[{96+2*h}:{97+2*h}]')
        O = 88 + 4 * r
        for i in range(4):
            a.e(f'v_cvt_pk_bf16_f32 v{O+i}, v{P+i}, v{P+4+i}')
        if r == 1:
            a.e(f'v_add_u32 v{V_OUT}, {8*896}, v{V_OUT}')
        a.e(f'buffer_store_dwordx4 v[{O}:{O+3}], v{V_OUT}, s[{S_T2}:{S_T2+3}], 0 offen' + ['', ' sc1', ' nt', ' sc0 sc1', ' sc1 nt'][OPT['outsc']])


HEADER = """;
"""


def build():
    a = Prog()
    name = NAME + '_kernel'
    lend = a.lab('end')
    a.raw(f'.globl {name}')
    a.raw('.p2align 8')
    a.raw(f'.type {name},@function')
    a.raw(f'{name}:')
    prologue(a, lend)
    lnc1, lnc2, lnc3, lnc5, lnc6 = [a.lab('noconv') for _ in range(5)]

    def skip_if_helper(l):
        a.e(f's_cmp_ge_u32 s{S_LOC}, 28')
        a.e(f's_cbranch_scc1 {l}')

    load_xrows(a)
    ncp = 0
    if OPT['cpf'] & 2:
        code_prefetch1(a, name, 'kcode_end')
        ncp = 1
    a.e(f's_add_u32 s66, s{P_WS}, {WS_EPOCH}')
    a.e(f's_addc_u32 s67, s{P_WS+1}, 0')
    a.e('s_load_dword s99, s[66:67], 0')
    poison_regs(a)
    skip_if_helper(lnc1)
    nt = 0
    if not OPT['plate']:
        kgen_loads(a)
        load_gather_table(a, 'ktab_idx')
        w_setup(a)
        if OPT['tlb'] & 2:
            nt = tlb_touch(a)
        flag_addr(a)
        if OPT['hoist']:
            hoist_common(a)
            hoist_conv(a)
        a.e('s_waitcnt lgkmcnt(0)')
        a.e(f's_add_u32 s{S_TAG}, s99, 0x9e3779b9')
        a.e(f's_waitcnt vmcnt({10 + nt + ncp})')
        stamp(a, 2)
        clear_hh(a)
        clear_aout(a)
    else:
        kgen_loads(a, 'setup')
        w_setup(a)
        flag_addr(a)
        a.e(f's_waitcnt vmcnt({ncp})')
        stamp(a, 2)
        kgen_loads(a, 'issue')
        clear_hh(a)
        clear_aout(a)
        load_gather_table(a, 'ktab_idx')
        if OPT['tlb'] & 2:
            nt = tlb_touch(a)
        a.e('s_waitcnt lgkmcnt(0)')
        a.e(f's_add_u32 s{S_TAG}, s99, 0x9e3779b9')
    ln_stats(a, list(range(8, 16)), 16, L_RED0, 5)
    stamp(a, 3)
    publish_xn(a)
    nb0 = OPT['wb0']
    if OPT['sched'] == 2:
        qa, qb = OPT['qa'], OPT['qb']
        qpf_load(a, qa)
        stamp(a, 4)
        a.e(f's_waitcnt vmcnt({8 + nt + qa})')
        kgen_channel(a, 0, DK0)
        for k in range(nb0):
            w_dma(a, 1, k, BS[k])
        stamp(a, 40)
        kgen_channel(a, 1, DK1, mid=lambda: publish_flag(a, qa + 4 * nb0), mid_m0=False)
        stamp(a, 5)
        qpf_load(a, qb)
        a.e(f's_waitcnt vmcnt({qb})')
        for k in range(nb0):
            w_tr(a, k, BS[k])
        ktab_part1(a)
        stamp(a, 6)
        flag_load(a)
        ktab_part2(a)
        stamp(a, 7)
        a.e(f's_mov_b32 s{S_EARLY}, 0')
        lne = a.lab('notearly')
        a.e('s_waitcnt vmcnt(0)')
        a.e(f'v_cmp_ne_u32 vcc, s{S_TAG}, v{V_FV}')
        a.e(f's_cbranch_vccnz {lne}')
        load_u(a)
        a.e(f's_mov_b32 s{S_EARLY}, 1')
        a.e(f'{lne}:')
        conv_addr(a)
        kcopies(a)
        stamp(a, 8)
        lhave = a.lab('haveu')
        a.e(f's_cmp_lg_u32 s{S_EARLY}, 0')
        a.e(f's_cbranch_scc1 {lhave}')
        flag_poll(a)
        load_u(a)
        a.e(f'{lhave}:')
        stamp(a, 9)
        store_u(a, 0)
    elif OPT['sched'] == 3:
        nq = (448 - OPT['hR']) // 32
        ne = 0
        if OPT['cearly']:
            assert OPT['regc']
            for k in range(2):
                w_dma(a, 1, k, f'C{k}')
            q4 = min(OPT['q4'], nq)
            qpf_load(a, q4)
            ne = 8 + q4
            nq -= q4
        stamp(a, 4)
        a.e(f's_waitcnt vmcnt({8 + nt + ne})')
        m0 = kgen_channel(a, 0, DK0, defer=bool(OPT['kdefer']))
        if not OPT['flagmid']:
            publish_flag(a, ne)
        if OPT['regc']:
            nb0 = 2
            if not OPT['cearly']:
                for k in range(2):
                    w_dma(a, 1, k, f'C{k}')
        else:
            for k in range(nb0):
                w_dma(a, 1, k, BS[k])
        if OPT['cearly']:
            qpf_load(a, nq)
            nq = 0
        stamp(a, 40)
        if OPT['flagmid']:
            assert OPT['regc'] and not OPT['cearly']
            kgen_channel(a, 1, DK1, mid=lambda: publish_flag(a, 8), mid_m0=False)
        else:
            kgen_channel(a, 1, DK1, after_setup=m0)
        stamp(a, 5)
        flag_load(a)
        qpf_load(a, nq)
        if not OPT['regc']:
            a.e(f's_waitcnt vmcnt({nq + 1})')
            for k in range(nb0):
                w_tr(a, k, BS[k])
        ktab_part1(a)
        stamp(a, 6)
        a.e(f's_mov_b32 s{S_EARLY}, 0')
        lne = a.lab('notearly')
        a.e(f's_waitcnt vmcnt({nq})')
        a.e(f'v_cmp_ne_u32 vcc, s{S_TAG}, v{V_FV}')

        def early_u():
            a.e(f's_cbranch_vccnz {lne}')
            load_u(a)
            a.e(f's_mov_b32 s{S_EARLY}, 1')
            a.e(f'{lne}:')
        if OPT['uov']:
            assert OPT['hoist']
            ktab_part2(a, mid=early_u)
        else:
            early_u()
            ktab_part2(a)
        stamp(a, 7)
        if not OPT['hoist']:
            conv_addr(a)
        kcopies(a)
        stamp(a, 8)
        lhave = a.lab('haveu')
        a.e(f's_cmp_lg_u32 s{S_EARLY}, 0')
        a.e(f's_cbranch_scc1 {lhave}')
        flag_poll(a)
        load_u(a)
        a.e(f'{lhave}:')
        stamp(a, 9)
        store_u(a, 0)
    else:
        stamp(a, 4)
        a.e(f's_waitcnt vmcnt({8 + nt})')
        kgen_channel(a, 0, DK0)
        publish_flag(a)
        for k in range(min(nb0, 3)):
            w_dma(a, 1, k, BS[k])
        stamp(a, 40)
        kgen_channel(a, 1, DK1, mid=(lambda: [w_dma(a, 1, k, BS[k]) for k in range(3, nb0)]) if nb0 > 3 else None)
        stamp(a, 5)
        if OPT['early']:
            flag_load(a)
            a.e('s_waitcnt vmcnt(1)')
        else:
            a.e('s_waitcnt vmcnt(0)')
        for k in range(nb0):
            w_tr(a, k, BS[k])
        ktab_part1(a)
        stamp(a, 6)
        a.e(f's_mov_b32 s{S_EARLY}, 0')
        lne = a.lab('notearly')
        if OPT['early']:
            a.e('s_waitcnt vmcnt(0)')
            a.e(f'v_cmp_ne_u32 vcc, s{S_TAG}, v{V_FV}')
            a.e(f's_cbranch_vccnz {lne}')
            load_u(a)
            a.e(f's_mov_b32 s{S_EARLY}, 1')
            a.e(f'{lne}:')
        qpf_load(a, OPT['w2pf_a'])
        ktab_part2(a)
        stamp(a, 7)
        if not OPT['hoist']:
            conv_addr(a)
        kcopies(a)
        stamp(a, 8)
        lhave = a.lab('haveu')
        a.e(f's_cmp_lg_u32 s{S_EARLY}, 0')
        a.e(f's_cbranch_scc1 {lhave}')
        flag_poll(a)
        load_u(a)
        a.e('s_waitcnt vmcnt(0)')
        a.e(f'{lhave}:')
        stamp(a, 9)
        store_u(a, OPT['w2pf_a'])
    epoch_update(a)
    clear_g(a)
    if OPT['sched'] == 1:
        qpf_load(a, OPT['w2pf_b'])
    stamp(a, 10)
    hk = []
    cre = OPT['cre'] and OPT['regc']
    if cre:
        for k in range(2):
            w_tr(a, k, f'C{k}')
        for k, sl in enumerate(AS + ['C0', 'C1']):
            for i in range(4):
                hk.append(lambda k=k, sl=sl, i=i: w_dma1(a, 1, 2 + k, sl, i))
                if i % 2 == 1:
                    hk.append(lambda: None)
    else:
        for k in range(4):
            for i in range(4):
                hk.append(lambda k=k, i=i: w_dma1(a, 1, nb0 + k, AS[k], i))
                hk.append(lambda: None)
    if OPT['nohk']:
        hk = []
    elif OPT['hkpos'] == 1:
        hk = [h for i, h in enumerate(hk) if i % 2 == 0]
    elif OPT['hkpos'] == 2:
        hk = [lambda: None] * 18 + [h for i, h in enumerate(hk) if i % 2 == 0]
    ndma = 0 if OPT['nohk'] else (24 if cre else 16)
    if OPT['cvvm']:
        phase_conv(a, hk, ndma)
        stamp(a, 12)
        a.e('s_waitcnt vmcnt(2)')
    else:
        phase_conv(a, hk, 0)
        stamp(a, 12)
    if cre:
        for k, sl in enumerate(AS + ['C0', 'C1']):
            w_tr(a, 2 + k, sl)
        nb0 = 4
    else:
        if OPT['regc']:
            for k in range(2):
                w_tr(a, k, f'C{k}')
        for k in range(4):
            w_tr(a, nb0 + k, AS[k])
    a.e('s_waitcnt lgkmcnt(0)')
    a.e('s_barrier')
    rest = list(range(nb0 + 4, 16))
    last = None
    if len(rest) > 9:
        last = rest.pop()
    rest_slots = (BS + AS)[:len(rest)]
    p4d = []
    if OPT['p4dma']:
        assert OPT['hpriv']
        p4d = [lambda k=k, sl=sl, i=i: w_dma1(a, 1, k, sl, i) for k, sl in zip(rest, rest_slots) for i in range(4)]
    elif OPT['h2e']:
        lh2p, lh2d = a.lab('h2poll0'), a.lab('h2done')
        p4_pre(a)
        n1 = OPT['h2n']
        for k, sl in list(zip(rest, rest_slots))[:n1]:
            w_dma(a, 1, k, sl)
        p4_loads(a)
        for k, sl in list(zip(rest, rest_slots))[n1:]:
            w_dma(a, 1, k, sl)
        a.e(f's_waitcnt vmcnt({4 * (len(rest) - n1)})')
        p4_check(a)
        stamp(a, 13)
        a.e(f's_cbranch_vccz {lh2d}')
        a.e(f's_branch {lh2p}')
    else:
        for k, sl in zip(rest, rest_slots):
            w_dma(a, 1, k, sl)
    if not (OPT['h2e'] and not OPT['p4dma']):
        stamp(a, 13)
        a.e(f's_branch {lnc2}')
    a.e(f'{lnc1}:')
    nh = 0
    if OPT['cpf'] & 1:
        code_prefetch(a, name, 'kcode_end')
        nh += 3
    w_setup(a)
    if OPT['tlb'] & 1:
        nh += tlb_touch(a)
    flag_addr(a)
    if OPT['hoist']:
        hoist_common(a)
    a.e('s_waitcnt lgkmcnt(0)')
    a.e(f's_add_u32 s{S_TAG}, s99, 0x9e3779b9')
    a.e(f's_waitcnt vmcnt({nh + ncp})')
    clear_hh(a)
    ln_stats(a, list(range(8, 16)), 16, L_RED0, 5)
    publish_xn(a)
    publish_flag(a)
    if OPT['sched'] == 3 and OPT['hsplit']:
        qpf_load(a, (448 - OPT['hR']) // 32)

        def hcheck():
            lok = a.lab('hflags')
            a.e(f'v_cmp_ne_u32 vcc, s{S_TAG}, v{V_FV}')
            a.e(f's_cbranch_vccz {lok}')
            flag_poll(a)
            a.e(f'{lok}:')
            a.e('s_barrier')
        helper_w2(a, OPT['hR'], mid=(OPT['hn1'], lambda: flag_load(a), hcheck))
        stamp(a, 41)
    else:
        if OPT['sched'] == 3:
            qpf_load(a, (448 - OPT['hR']) // 32)
            helper_w2(a, OPT['hR'])
        else:
            qpf_load(a, 14)
        stamp(a, 41)
        flag_poll(a)
        a.e('s_barrier')
    if p4d:
        a.e(f's_mov_b32 s{S_W1+2}, 0')
    stamp(a, 42)
    if OPT['h2e'] and not OPT['p4dma']:
        p4_pre(a)
        phase_p4(a, p4d, pre_done=(lh2p, lh2d))
    else:
        a.e(f'{lnc2}:')
        phase_p4(a, p4d)
    stamp(a, 20)
    gemm2_addr(a)
    skip_if_helper(lnc3)
    b1_load(a)
    if p4d:
        a.e('s_waitcnt vmcnt(2)')
    for k, sl in zip(rest, rest_slots):
        w_tr(a, k, sl)
    a.e('s_waitcnt lgkmcnt(0)')
    if last is not None:
        w_dma(a, 1, last, 'A0')
    for k in range(5):
        w_dma(a, 2, k, BS[k])
    nx1 = gemm_first_loads(a, WS_HH, 64, 1) if OPT['xe1'] else 0
    if last is not None:
        a.e(f's_waitcnt vmcnt({20 + nx1})')
        w_tr(a, last, 'A0')
        a.e('s_waitcnt lgkmcnt(0)')
    if OPT['prebar']:
        a.e('s_barrier')
    stamp(a, 21)
    w2sh = OPT['w2sh'] and OPT['stchk'] and OPT['h4early']

    def side1(kn):
        if 6 <= kn <= 10:
            return capture(lambda p: w_tr(p, kn - 6, BS[kn - 6])), 0
        if 13 <= kn <= 15:
            pre = ['s_waitcnt lgkmcnt(0)'] if kn == 13 else []
            return pre + capture(lambda p: w_dma(p, 2, kn - 8, BS[kn - 13])), 4
        return [], 0

    gemm_poll_main(a, WS_HH, 64, 16, 1, 22, side=side1 if w2sh else None, issued=bool(OPT['xe1']))
    stamp(a, 23)
    if OPT['h4early']:
        if not w2sh:
            for k in range(5):
                w_tr(a, k, BS[k])
            a.e('s_waitcnt lgkmcnt(0)')
            for k in range(5, 5 + OPT['npre']):
                w_dma(a, 2, k, BS[k - 5])
        if OPT['e1dma']:
            d0 = [lambda k=k, i=i: w_dma1(a, 2, k, BS[k - 5], i) for k in range(8, 10) for i in range(4)]
            d1 = [lambda k=k, i=i: w_dma1(a, 2, k, AS[k - 10], i) for k in range(10, 14) for i in range(4)]
            gemm1_epilogue(a, d0, d1)
            stamp(a, 25)
            w1, w2, w3 = 26, 18, 1
        else:
            gemm1_epilogue(a)
            stamp(a, 25)
            npre = 3 if w2sh else OPT['npre']
            for k in range(5 + npre, 10):
                w_dma(a, 2, k, BS[k - 5])
            a.e('s_barrier')
            for k in range(10, 14):
                w_dma(a, 2, k, AS[k - 10])
            w1, w2, w3 = 24 + (0 if npre < 3 else 0), 16, 0
            w1 = 26 if npre == 3 else 24
        if OPT['xe2']:
            nx2 = gemm_first_loads(a, WS_G, 56, 2)
            w1, w2, w3 = w1 + nx2, w2 + nx2, w3 + nx2
        a.e(f's_waitcnt vmcnt({w1})')
        for k in range(5, 8):
            w_tr(a, k, BS[k - 5])
        a.e(f's_waitcnt vmcnt({w2})')
        for k in range(8, 10):
            w_tr(a, k, BS[k - 5])
        a.e(f's_waitcnt vmcnt({w3})')
        for k in range(10, 14):
            w_tr(a, k, AS[k - 10])
        a.e('s_waitcnt lgkmcnt(0)')
        a.e(f's_branch {lnc6}')
    else:
        gemm1_epilogue(a)
        stamp(a, 25)
        for k in range(5):
            w_tr(a, k, BS[k])
        a.e('s_waitcnt lgkmcnt(0)')
        a.e('s_barrier')
        a.e(f's_branch {lnc5}')
    a.e(f'{lnc3}:')
    for k in range(5):
        w_dma(a, 2, k, BS[k])
    a.e('s_waitcnt vmcnt(0)')
    for k in range(5):
        w_tr(a, k, BS[k])
    a.e('s_waitcnt lgkmcnt(0)')
    a.e(f'{lnc5}:')
    for k in range(5, 10):
        w_dma(a, 2, k, BS[k - 5])
    for k in range(10, 14):
        w_dma(a, 2, k, AS[k - 10])
    nx2 = gemm_first_loads(a, WS_G, 56, 2) if OPT['xe2'] else 0
    a.e(f's_waitcnt vmcnt({16 + nx2})')
    for k in range(5, 10):
        w_tr(a, k, BS[k - 5])
    a.e(f's_waitcnt vmcnt({nx2})')
    for k in range(10, 14):
        w_tr(a, k, AS[k - 10])
    a.e('s_waitcnt lgkmcnt(0)')
    a.e(f'{lnc6}:')
    if OPT['prebar']:
        a.e('s_barrier')
    stamp(a, 30)
    gemm_poll_main(a, WS_G, 56, 14, 2, 31, gemm2_tail_loads, issued=bool(OPT['xe2']))
    stamp(a, 32)
    gemm2_epilogue(a)
    stamp_clk(a, 61)
    stamp(a, 63)
    stamp_flush(a)
    a.e(f'{lend}:')
    a.e('s_endpgm')
    for emit in STUBS:
        emit()
    del STUBS[:]
    a.raw('kcode_end:')
    emit_gather_table(a, 'ktab_idx')
    nn = a.fast_insert_nops()
    head = f'; @launch grid=(256,1,1) block=(256,1,1) lds={LDS_BYTES}\n'
    head += HEADER
    head += '.amdgcn_target "amdgcn-amd-amdhsa--gfx950"\n.text\n'
    tail = '.section .rodata,"a"\n.p2align 6\n' + descriptor(name)
    if OPT['align']:
        nal = a.align8(head, tail)
        sys.stderr.write(f'alignment: {nal}\n')
    sys.stderr.write(f'instructions: {a.count()}, nops inserted: {nn}\n')
    return head + a.text() + tail


if __name__ == '__main__':
    out = sys.argv[1]
    for arg in sys.argv[2:]:
        if arg == 'stamps':
            OPT['stamps'] = True
        elif arg == 'dbg':
            OPT['stamps'] = True
            OPT['dbgsel'] = [0, 1, 2, 4, 8, 9, 12, 13, 14, 20, 21, 23, 25, 30, 32, 63]
        elif '=' in arg:
            k, v = arg.split('=')
            OPT[k] = int(v)
    open(out, 'w').write(build())
```

```python
import sys
import gen
from gen import (Prog, NAME, L, D, F, XBYTES, PBYTES, W1BYTES, W2BYTES, OOB, fx, srd, reduce16, cmul, exp_bf16,
                 gather_table, emit_gather_table, descriptor, round_pairs, norm_tok, bcast_stats)

OPT = dict(hf=0, nohw=0, h2e=0, h2n=5, xe1=1, xe2=1, cvvm=1, cvbar=1, prebar=1, lastw=1, slp=0, hn1=11, hsplit=0, hoist=0, cre=0, uov=0, tlbout=0, kdefer=1, flagmid=0, npre=3, nohk=0, hkpos=0, w2sh=1, stchk=1, p4dma=0, p4ev=6, e1dma=0, plate=0, cearly=0, q4=4, hpriv=1, regc=1, hR=320, c4=1, kgrp=3, tlbg=21, cpf=1, sched=3, qa=7, qb=7, tlb=3, outsc=0, x3oob=1, h4early=1, wb0=3, xnb=1, stamps=False, dbgsel=None, w2pf_a=10, w2pf_b=4, nfl=3, early=True, align=True, hlds=True)

WS_FLAG = 0x4000
WS_EPOCH = 0x9000
WS_AOUT = 0x10000
AST = 8448
WS_H = 0x200000
WS_HH = 0x400000
WS_G = 0x600000
WS_DBG = 0x800000
WS_XN = 0xA00000
XCS = 4352
XPS = 2 * XCS
WS_USED = 0x1000000

L_RED0, L_RED1, L_SIG, L_KT = 0, 256, 512, 640
KTCH = 1600
L_U = L_KT + 2 * KTCH
UCH = 4608
L_SCR = L_U + 2 * UCH
SROW = 272
YROW = 41
SCRW = 57 * SROW
L_KC = 82688
KCOPY = 4160
KCH = 8 * KCOPY
L_CP = L_KC
LDS_BYTES = 160 * 1024
L_WA, L_WB = 13056, 78592
L_WC = 123904
L_PART = 1024
PROW = 272
PARTW = 64 * PROW
L_HT = 1024

S_WS, S_X = 4, 8
S_T0, S_T1, S_T2, S_T3 = 12, 16, 20, 24
S_W1, S_W2 = 12, 16
S_W, S_XCD, S_LOC, S_B, S_P, S_J, S_I1, S_I2 = 28, 29, 30, 31, 32, 33, 34, 35
P_X, P_LAR, P_AI, P_CR, P_CI, P_LDT, P_DSK = 36, 38, 40, 42, 44, 46, 48
P_W1, P_B1, P_W2, P_B2, P_OUT, P_DBG, P_WS = 52, 54, 56, 58, 60, 62, 64
S_SA, S_SB = 50, 51
S_RW1, S_RX1, S_RW2, S_RX2 = 38, 39, 40, 41
S_QPF = 42
S_EARLY = 43
S_SC = 44
V_TC = 236
S_TAG, S_SPIN, S_RETRY = 96, 97, 98
V_D1, V_D2, V_TA, V_TB = 224, 228, 244, 248
V_QPF = 232
SPIN_MAX, RETRY_MAX = 4000, 20
AS = ['A0', 'A1', 'A2', 'A3']
BS = ['B0', 'B1', 'B2', 'B3', 'B4']
WSR = f's[{S_WS}:{S_WS+3}]'

assert (gen.S_W, gen.S_B, gen.S_WS) == (S_W, S_B, S_WS)


def stamp(a, idx):
    if not OPT['stamps']:
        return
    sel = OPT['dbgsel']
    if sel is not None:
        if idx not in sel:
            return
        idx = sel.index(idx)
    a.e('s_memrealtime s[100:101]')
    a.e('s_waitcnt lgkmcnt(0)')
    a.e(f'v_writelane_b32 v255, s100, {idx}')


def stamp_clk(a, idx):
    if not OPT['stamps'] or OPT['dbgsel'] is not None:
        return
    a.e('s_memtime s[100:101]')
    a.e('s_waitcnt lgkmcnt(0)')
    a.e(f'v_writelane_b32 v255, s100, {idx}')


def stamp_flush(a):
    if not OPT['stamps']:
        return
    l = a.lab('nost')
    a.e(f's_cmp_lg_u32 s{S_W}, 0')
    a.e(f's_cbranch_scc1 {l}')
    if OPT['dbgsel'] is not None:
        a.e('v_not_b32 v253, v255')
        a.e('v_cmp_eq_u32 vcc, 0, v1')
        a.e('v_cndmask_b32 v255, v255, v253, vcc')
        a.e('v_lshlrev_b32 v254, 2, v1')
        a.e('s_mov_b64 exec, 0xffff')
        a.e(f'global_atomic_umax v254, v255, s[{P_DBG}:{P_DBG+1}]')
        a.e('s_mov_b64 exec, -1')
    else:
        a.e('s_lshl_b32 s66, s2, 8')
        a.e(f's_add_u32 s66, s66, {WS_DBG}')
        a.e('v_lshl_add_u32 v254, v1, 2, s66')
        a.e(f'buffer_store_dword v255, v254, {WSR}, 0 offen')
    a.e(f'{l}:')


def spin_tail(a, lp):
    if OPT['slp']:
        a.e(f's_sleep {OPT["slp"]}')
    a.e(f's_add_u32 s{S_SPIN}, s{S_SPIN}, 1')
    a.e(f's_cmp_lt_u32 s{S_SPIN}, {SPIN_MAX}')
    a.e(f's_cbranch_scc1 {lp}')


def mask_lanes(a, v, n, tmp, src='v1'):
    a.e(f'v_mov_b32 v{tmp}, {OOB}')
    a.e(f'v_cmp_gt_u32 vcc, {n}, {src}')
    a.e(f'v_cndmask_b32 v{v}, v{tmp}, v{v}, vcc')


def prologue(a, lend):
    a.e('s_cmp_ge_u32 s2, 256')
    a.e(f's_cbranch_scc1 {lend}')
    if OPT['stamps']:
        a.e('v_mov_b32 v255, 0')
        stamp(a, 0)
        stamp_clk(a, 60)
    a.e('s_load_dwordx16 s[36:51], s[0:1], 0')
    a.e('s_load_dwordx8 s[52:59], s[0:1], 64')
    a.e('s_load_dwordx4 s[60:63], s[0:1], 96')
    a.e('s_load_dwordx2 s[64:65], s[0:1], 112')
    a.e('v_and_b32 v1, 63, v0')
    a.e('v_lshrrev_b32 v2, 6, v0')
    a.e(f's_and_b32 s{S_XCD}, s2, 7')
    a.e(f'v_readfirstlane_b32 s{S_W}, v2')
    a.e(f's_lshr_b32 s{S_LOC}, s2, 3')
    a.e(f's_lshl_b32 s{S_B}, s{S_XCD}, 5')
    a.e(f's_add_u32 s{S_B}, s{S_B}, s{S_LOC}')
    a.e(f's_mul_i32 s{S_P}, s{S_XCD}, 28')
    a.e(f's_add_u32 s{S_P}, s{S_P}, s{S_LOC}')
    a.e(f's_and_b32 s{S_J}, s{S_XCD}, 1')
    a.e(f's_lshl_b32 s{S_J}, s{S_J}, 2')
    a.e(f's_and_b32 s3, s{S_LOC}, 3')
    a.e(f's_add_u32 s{S_J}, s{S_J}, s3')
    a.e(f's_lshr_b32 s3, s{S_XCD}, 1')
    a.e(f's_lshr_b32 s66, s{S_LOC}, 2')
    a.e(f's_mul_i32 s{S_I1}, s3, 7')
    a.e(f's_add_u32 s{S_I1}, s{S_I1}, s66')
    a.e(f's_lshl_b32 s{S_I2}, s3, 3')
    a.e(f's_add_u32 s{S_I2}, s{S_I2}, s66')
    a.e('s_waitcnt lgkmcnt(0)')
    srd(a, S_X, P_X, XBYTES)
    srd(a, S_WS, P_WS, WS_USED)
    stamp(a, 1)


def xrow_addr(a):
    a.e(f's_mul_i32 s66, s{S_W}, 224')
    a.e(f's_mul_i32 s67, s{S_B}, {8*896}')
    a.e('s_add_u32 s66, s66, s67')
    a.e('v_lshl_add_u32 v2, v1, 2, s66')
    mask_lanes(a, 2, 56, 3)
    a.e('v_add_u32 v3, 4480, v2')


def load_xrows(a):
    xrow_addr(a)
    for j in range(8):
        v, o = (2, j * 896) if j < 5 else (3, (j - 5) * 896)
        a.e(f'buffer_load_dword v{8+j}, v{v}, s[{S_X}:{S_X+3}], 0 offen offset:{o}')


def ln_stats(a, X, T, red, vt, mid=None):
    a.e('s_mov_b32 s66, 0x3f803f80')
    for j in range(8):
        a.e(f'v_dot2_f32_bf16 v{T+j}, v{X[j]}, s66, 0')
        a.e(f'v_dot2_f32_bf16 v{T+8+j}, v{X[j]}, v{X[j]}, 0')
    a.e(f'v_lshlrev_b32 v{vt}, 2, v1')
    a.e(f'v_and_b32 v{vt}, 0xf0, v{vt}')
    a.e(f's_lshl_b32 s66, s{S_W}, 2')
    a.e(f'v_add_u32 v{vt}, s66, v{vt}')
    reduce16(a, [T + i for i in range(16)])
    a.inj_pause()
    a.e('s_mov_b32 exec_lo, 0x11111111')
    a.e('s_mov_b32 exec_hi, 0x11111111')
    a.e(f'ds_write_b32 v{vt}, v{T} offset:{red}')
    a.e('s_mov_b64 exec, -1')
    a.inj_resume()
    a.e(f'v_and_b32 v{vt}, 7, v1')
    a.e(f'v_lshlrev_b32 v{vt}, 4, v{vt}')
    a.e('s_waitcnt lgkmcnt(0)')
    a.e('s_barrier')
    a.e(f'ds_read_b128 v[{T}:{T+3}], v{vt} offset:{red}')
    a.e(f'ds_read_b128 v[{T+4}:{T+7}], v{vt} offset:{red+128}')
    n_mid = mid() if mid else 0
    a.e(f's_waitcnt lgkmcnt({1 + n_mid})')
    a.e(f'v_pk_add_f32 v[{T}:{T+1}], v[{T}:{T+1}], v[{T+2}:{T+3}]')
    a.e(f's_waitcnt lgkmcnt({n_mid})')
    a.e(f'v_pk_add_f32 v[{T+4}:{T+5}], v[{T+4}:{T+5}], v[{T+6}:{T+7}]')
    a.e(f'v_add_f32 v{T}, v{T}, v{T+1}')
    a.e(f'v_add_f32 v{T+4}, v{T+4}, v{T+5}')
    a.e(f'v_mul_f32 v{T}, {fx(1.0/448)}, v{T}')
    a.e(f'v_mul_f32 v{T+4}, {fx(1.0/448)}, v{T+4}')
    a.e(f'v_fma_f32 v{T+4}, -v{T}, v{T}, v{T+4}')
    a.e(f'v_max_f32 v{T+4}, 0, v{T+4}')
    a.e(f'v_cvt_pk_bf16_f32 v{T+4}, v{T+4}, v{T+4}')
    a.e(f'v_lshlrev_b32 v{T+4}, 16, v{T+4}')
    a.e(f'v_add_f32 v{T+4}, {fx(1e-5)}, v{T+4}')
    a.e(f'v_cvt_pk_bf16_f32 v{T+4}, v{T+4}, v{T+4}')
    a.e(f'v_lshlrev_b32 v{T+4}, 16, v{T+4}')
    a.e(f'v_sqrt_f32 v{T+4}, v{T+4}')
    a.e(f'v_cvt_pk_bf16_f32 v{T}, v{T}, v{T+4}')


def poison_regs(a):
    for r in range(216, 220):
        a.e(f'v_mov_b32 v{r}, -1')


def clear_hh(a):
    if OPT['hoist']:
        a.e(f'buffer_store_dwordx4 v[216:219], v184, {WSR}, 0 offen sc1')
        a.e(f'buffer_store_dwordx4 v[216:219], v185, {WSR}, 0 offen sc1')
        return
    a.e(f's_mul_i32 s66, s{S_B}, 7168')
    a.e(f's_add_u32 s66, s66, {WS_HH}')
    a.e('v_lshl_add_u32 v4, v0, 4, s66')
    a.e('v_add_u32 v5, 4096, v4')
    mask_lanes(a, 5, 192, 6, 'v0')
    a.e(f'buffer_store_dwordx4 v[216:219], v4, {WSR}, 0 offen sc1')
    a.e(f'buffer_store_dwordx4 v[216:219], v5, {WSR}, 0 offen sc1')


def clear_aout(a):
    if OPT['hoist']:
        a.e(f'buffer_store_dwordx4 v[216:219], v186, {WSR}, 0 offen sc1')
        a.e(f'buffer_store_dwordx4 v[216:219], v187, {WSR}, 0 offen sc1')
        return
    a.e(f's_mul_i32 s66, s{S_P}, {AST}')
    a.e(f's_add_u32 s66, s66, {WS_AOUT}')
    a.e('v_lshl_add_u32 v4, v0, 4, s66')
    a.e('v_add_u32 v5, 4096, v4')
    a.e(f'buffer_store_dwordx4 v[216:219], v4, {WSR}, 0 offen sc1')
    a.e(f'buffer_store_dwordx4 v[216:219], v5, {WSR}, 0 offen sc1')


def g_store_addr(a, vd):
    a.e(f's_lshl_b32 s66, s{S_I1}, 3')
    a.e(f's_lshl_b32 s70, s{S_W}, 1')
    a.e('s_add_u32 s66, s66, s70')
    a.e('s_mul_i32 s66, s66, 7168')
    a.e(f's_mul_i32 s70, s{S_J}, 896')
    a.e('s_add_u32 s66, s66, s70')
    a.e(f's_add_u32 s66, s66, {WS_G}')
    a.e(f'v_lshl_add_u32 v{vd}, v1, 4, s66')
    mask_lanes(a, vd, 56, 6)


def clear_g(a):
    if OPT['hoist']:
        a.e('v_add_u32 v5, 7168, v240')
        a.e(f'buffer_store_dwordx4 v[216:219], v240, {WSR}, 0 offen sc1')
        a.e(f'buffer_store_dwordx4 v[216:219], v5, {WSR}, 0 offen sc1')
        return
    g_store_addr(a, 4)
    a.e('v_add_u32 v5, 7168, v4')
    a.e(f'buffer_store_dwordx4 v[216:219], v4, {WSR}, 0 offen sc1')
    a.e(f'buffer_store_dwordx4 v[216:219], v5, {WSR}, 0 offen sc1')


def publish_xn(a):
    bcast_stats(a, 16)
    for j in range(8):
        d = 64 + 2 * j
        t = 48 + j
        a.e(f'v_lshlrev_b32 v{d}, 16, v{8+j}')
        a.e(f'v_and_b32 v{d+1}, 0xffff0000, v{8+j}')
        a.e(f'v_pk_add_f32 v[{d}:{d+1}], v[{d}:{d+1}], s[{72+2*j}:{73+2*j}] op_sel:[0,0] op_sel_hi:[1,0] neg_lo:[0,1] neg_hi:[0,1]')
        a.e(f'v_cvt_pk_bf16_f32 v{t}, v{d}, v{d+1}')
        a.e(f'v_lshlrev_b32 v{d}, 16, v{t}')
        a.e(f'v_and_b32 v{d+1}, 0xffff0000, v{t}')
        a.e(f'v_pk_mul_f32 v[{d}:{d+1}], v[{d}:{d+1}], s[{72+2*j}:{73+2*j}] op_sel:[0,1] op_sel_hi:[1,1]')
        a.e(f'v_cvt_pk_bf16_f32 v{t}, v{d}, v{d+1}')
        a.e(f'v_lshlrev_b32 v{d}, 16, v{t}')
        a.e(f'v_and_b32 v{d+1}, 0xffff0000, v{t}')
    for i in range(4):
        a.e(f'v_cvt_pk_f16_f32 v{80+i}, v{64+4*i}, v{66+4*i}')
        a.e(f'v_cvt_pk_f16_f32 v{84+i}, v{65+4*i}, v{67+4*i}')
    if OPT['hoist']:
        assert OPT['xnb']
        a.e(f'buffer_store_dwordx4 v[80:83], v188, {WSR}, 0 offen sc1')
        a.e(f'buffer_store_dwordx4 v[84:87], v189, {WSR}, 0 offen sc1')
        return
    if OPT['xnb']:
        a.e(f's_mul_i32 s66, s{S_W}, {56*16}')
        a.e(f's_mul_i32 s67, s{S_B}, 7168')
        a.e('s_add_u32 s66, s66, s67')
        a.e(f's_add_u32 s66, s66, {WS_XN}')
        a.e('v_lshl_add_u32 v4, v1, 4, s66')
        mask_lanes(a, 4, 56, 5)
        a.e('v_add_u32 v5, 3584, v4')
    else:
        a.e(f's_mul_i32 s66, s{S_W}, {56*XPS}')
        a.e(f's_lshl_b32 s67, s{S_B}, 4')
        a.e('s_add_u32 s66, s66, s67')
        a.e(f's_add_u32 s66, s66, {WS_XN}')
        a.e(f'v_mul_u32_u24 v4, {XPS}, v1')
        a.e('v_add_u32 v4, s66, v4')
        mask_lanes(a, 4, 56, 5)
        a.e(f'v_add_u32 v5, {XCS}, v4')
    a.e(f'buffer_store_dwordx4 v[80:83], v4, {WSR}, 0 offen sc1')
    a.e(f'buffer_store_dwordx4 v[84:87], v5, {WSR}, 0 offen sc1')


def publish_flag(a, vm=0):
    a.e(f's_waitcnt vmcnt({vm})')
    a.e('s_barrier')
    l = a.lab('noflag')
    a.e(f's_cmp_lg_u32 s{S_W}, 0')
    a.e(f's_cbranch_scc1 {l}')
    a.e(f's_lshl_b32 s66, s{S_B}, 6')
    a.e(f's_add_u32 s66, s66, {WS_FLAG}')
    a.e('v_mov_b32 v2, s66')
    a.e(f'v_mov_b32 v3, s{S_TAG}')
    a.e('s_mov_b64 exec, 1')
    a.e(f'buffer_store_dword v3, v2, {WSR}, 0 offen sc1')
    a.e('s_mov_b64 exec, -1')
    a.e(f'{l}:')


V_FA, V_FV = 233, 234


def flag_addr(a):
    a.e(f'v_lshlrev_b32 v{V_FA}, 6, v0')
    a.e(f'v_add_u32 v{V_FA}, {WS_FLAG}, v{V_FA}')


def flag_load(a):
    a.e(f'buffer_load_dword v{V_FV}, v{V_FA}, {WSR}, 0 offen sc1')


def flag_poll(a):
    lp, ld = a.lab('fpoll'), a.lab('fdone')
    a.e(f's_mov_b32 s{S_SPIN}, 0')
    a.e(f'{lp}:')
    flag_load(a)
    a.e('s_waitcnt vmcnt(0)')
    a.e(f'v_cmp_ne_u32 vcc, s{S_TAG}, v{V_FV}')
    a.e(f's_cbranch_vccz {ld}')
    spin_tail(a, lp)
    a.e(f'{ld}:')


def load_u(a):
    if OPT['hoist']:
        a.e(f'buffer_load_dwordx4 v[176:179], v190, {WSR}, 0 offen sc1')
        a.e(f'buffer_load_dwordx4 v[180:183], v191, {WSR}, 0 offen sc1')
        return
    if OPT['xnb']:
        a.e(f's_lshl_b32 s66, s{S_P}, 4')
        a.e(f's_add_u32 s66, s66, {WS_XN}')
        a.e('v_mul_u32_u24 v2, 7168, v0')
        a.e('v_add_u32 v2, s66, v2')
        a.e('v_add_u32 v3, 3584, v2')
    else:
        a.e(f's_mul_i32 s66, s{S_P}, {XPS}')
        a.e(f's_add_u32 s66, s66, {WS_XN}')
        a.e('v_lshl_add_u32 v2, v0, 4, s66')
        a.e(f'v_add_u32 v3, {XCS}, v2')
    a.e(f'buffer_load_dwordx4 v[176:179], v2, {WSR}, 0 offen sc1')
    a.e(f'buffer_load_dwordx4 v[180:183], v3, {WSR}, 0 offen sc1')


def epoch_update(a):
    le = a.lab('noep')
    a.e('s_cmp_lg_u32 s2, 0')
    a.e(f's_cbranch_scc1 {le}')
    a.e(f'v_mov_b32 v2, {WS_EPOCH}')
    a.e(f'v_mov_b32 v3, s{S_TAG}')
    a.e('s_mov_b64 exec, 1')
    a.e(f'buffer_store_dword v3, v2, {WSR}, 0 offen sc1')
    a.e('s_mov_b64 exec, -1')
    a.e(f'{le}:')


def code_prefetch(a, lstart, lend_):
    lp = a.lab('pcp')
    a.e('s_getpc_b64 s[74:75]')
    a.e(f'{lp}:')
    a.e(f's_sub_u32 s74, s74, {lp}-{lstart}')
    a.e('s_subb_u32 s75, s75, 0')
    a.e('v_lshlrev_b32 v4, 6, v0')
    a.e(f's_mov_b32 s76, {lend_}-{lstart}-4')
    a.e('v_add_u32 v5, 16384, v4')
    a.e('v_add_u32 v6, 32768, v4')
    a.e('v_min_u32 v4, s76, v4')
    a.e('v_min_u32 v5, s76, v5')
    a.e('v_min_u32 v6, s76, v6')
    a.e('global_load_dword v220, v4, s[74:75]')
    a.e('global_load_dword v220, v5, s[74:75]')
    a.e('global_load_dword v220, v6, s[74:75]')


def code_prefetch1(a, lstart, lend_):
    lp = a.lab('pcp')
    a.e('s_getpc_b64 s[74:75]')
    a.e(f'{lp}:')
    a.e('v_lshlrev_b32 v4, 6, v0')
    a.e(f's_mov_b32 s76, {lend_}-{lp}-4')
    a.e('v_min_u32 v4, s76, v4')
    a.e('global_load_dword v220, v4, s[74:75]')


def tlb_touch(a):
    g = OPT['tlbg']
    n = 0
    srd(a, S_T2, P_OUT, XBYTES)
    srd(a, S_T3, P_B2, L * 2)
    if g == 21:
        a.e('v_lshlrev_b32 v4, 21, v1')
        a.e('s_mov_b32 s70, 0x1f8000')
        for s_ in (S_W1, S_W2, S_WS, S_T2, S_T3) if OPT['tlbout'] else (S_W1, S_W2, S_WS, S_T3):
            a.e(f'buffer_load_dword v220, v4, s[{s_}:{s_+3}], {"s70" if s_ == S_WS else 0} offen')
            n += 1
    else:
        a.e(f'v_lshlrev_b32 v4, {g}, v0')
        for s_, nbytes in ((S_W1, W1BYTES), (S_W2, W2BYTES), (S_WS, 0xC00000), (S_T2, XBYTES), (S_T3, 4096)):
            for k in range(-(-nbytes // (256 << g))):
                a.e(f's_mov_b32 s70, {k * (256 << g)}')
                a.e(f'buffer_load_dword v220, v4, s[{s_}:{s_+3}], s70 offen')
                n += 1
    return n


def hoist_common(a):
    a.e(f's_mul_i32 s66, s{S_B}, 7168')
    a.e(f's_add_u32 s66, s66, {WS_HH}')
    a.e('v_lshl_add_u32 v184, v0, 4, s66')
    a.e('v_add_u32 v185, 4096, v184')
    mask_lanes(a, 185, 192, 6, 'v0')
    a.e(f's_mul_i32 s66, s{S_W}, {56*16}')
    a.e(f's_mul_i32 s67, s{S_B}, 7168')
    a.e('s_add_u32 s66, s66, s67')
    a.e(f's_add_u32 s66, s66, {WS_XN}')
    a.e('v_lshl_add_u32 v188, v1, 4, s66')
    mask_lanes(a, 188, 56, 5)
    a.e('v_add_u32 v189, 3584, v188')
    a.e('v_and_b32 v4, 15, v1')
    a.e(f'v_mul_u32_u24 v4, {PROW}, v4')
    a.e('v_lshrrev_b32 v5, 4, v1')
    a.e('v_lshl_add_u32 v4, v5, 4, v4')
    a.e(f's_mul_i32 s66, s{S_W}, {PARTW}')
    a.e(f's_add_u32 s66, s66, {L_PART}')
    a.e('v_add_u32 v241, s66, v4')
    a.e(f'v_mul_u32_u24 v5, {PROW}, v1')
    a.e(f's_lshl_b32 s66, s{S_W}, 6')
    a.e(f's_add_u32 s66, s66, {L_PART}')
    a.e('v_add_u32 v242, s66, v5')
    a.e('v_lshrrev_b32 v5, 3, v1')
    a.e('v_and_b32 v4, 7, v1')
    a.e(f's_lshl_b32 s66, s{S_W}, 4')
    a.e('v_add_u32 v5, s66, v5')
    a.e(f'v_mul_u32_u24 v6, {PROW}, v5')
    a.e('v_lshl_add_u32 v6, v4, 4, v6')
    a.e(f'v_add_u32 v243, {L_PART}, v6')
    g_store_addr(a, 240)
    a.e(f's_mul_i32 s67, s{S_B}, 7168')
    a.e(f's_mul_i32 s66, s{S_W}, 1792')
    a.e('s_add_u32 s66, s66, s67')
    a.e(f's_add_u32 s66, s66, {WS_HH}')
    a.e('v_lshl_add_u32 v213, v1, 4, s66')
    a.e('v_add_u32 v5, 448, v213')
    a.e('v_cmp_gt_u32 vcc, 28, v1')
    a.e('v_cndmask_b32 v213, v5, v213, vcc')
    mask_lanes(a, 213, 56, 5)


def hoist_conv(a):
    a.e(f's_mul_i32 s66, s{S_P}, {AST}')
    a.e(f's_add_u32 s66, s66, {WS_AOUT}')
    a.e('v_lshl_add_u32 v186, v0, 4, s66')
    a.e('v_add_u32 v187, 4096, v186')
    a.e(f's_lshl_b32 s66, s{S_P}, 4')
    a.e(f's_add_u32 s66, s66, {WS_XN}')
    a.e('v_mul_u32_u24 v190, 7168, v0')
    a.e('v_add_u32 v190, s66, v190')
    a.e('v_add_u32 v191, 3584, v190')
    conv_addr(a, 192, 193)
    CP, TS = L_CP, 1280
    a.e('v_and_b32 v3, 15, v1')
    a.e('v_lshlrev_b32 v2, 4, v3')
    a.e('v_lshrrev_b32 v3, 4, v1')
    a.e('v_mul_u32_u24 v3, 320, v3')
    a.e('v_add_u32 v2, v2, v3')
    a.e(f's_mul_i32 s70, s{S_W}, {8*TS}')
    a.e(f's_add_u32 s70, s70, {CP}')
    a.e('v_add_u32 v194, s70, v2')
    a.e('v_lshrrev_b32 v3, 2, v1')
    a.e('v_lshlrev_b32 v2, 4, v3')
    a.e('v_and_b32 v3, 3, v1')
    a.e('v_mul_u32_u24 v3, 320, v3')
    a.e('v_add_u32 v2, v2, v3')
    a.e(f's_lshl_b32 s70, s{S_W}, 1')
    a.e(f's_mul_i32 s71, s70, {TS}')
    a.e(f's_add_u32 s71, s71, {CP}')
    a.e('v_add_u32 v195, s71, v2')
    a.e('s_lshl_b32 s71, s70, 9')
    a.e(f's_add_u32 s71, s71, {L_U + 512}')
    a.e('v_lshl_add_u32 v206, v1, 3, s71')
    a.e(f's_mul_i32 s71, s{S_P}, {AST}')
    a.e('s_lshl_b32 s72, s70, 10')
    a.e('s_add_u32 s71, s71, s72')
    a.e(f's_add_u32 s71, s71, {WS_AOUT}')
    a.e('v_lshl_add_u32 v207, v1, 4, s71')


def kgen_loads(a, part=None):
    R = (S_T0, S_T1, S_T2, S_T3) if part is None else (72, 76, 80, 84)
    if part != 'issue':
        for r, p in zip(R, (P_LAR, P_AI, P_CR, P_CI)):
            srd(a, r, p, PBYTES)
        a.e(f's_lshl_b32 s66, s{S_P}, 10')
        a.e(f's_lshl_b32 s67, s{S_W}, 7')
        a.e('s_add_u32 s66, s66, s67')
        a.e('v_lshl_add_u32 v235, v1, 1, s66')
        a.e(f's_lshl_b32 s66, s{S_P}, 2')
        a.e(f's_load_dword s68, s[{P_LDT}:{P_LDT+1}], s66')
        a.e(f's_load_dword s69, s[{P_DSK}:{P_DSK+1}], s66')
    if part != 'setup':
        for c in range(2):
            for k, s in enumerate(R):
                a.e(f'buffer_load_ushort v{40+4*c+k}, v235, s[{s}:{s+3}], 0 offen offset:{512*c}')


def load_gather_table(a, tablabel):
    lp = a.lab('pc')
    a.e('s_getpc_b64 s[70:71]')
    a.e(f'{lp}:')
    a.e(f's_add_u32 s70, s70, {tablabel}-{lp}')
    a.e('s_addc_u32 s71, s71, 0')
    a.e('v_lshlrev_b32 v2, 5, v0')
    a.e('global_load_dwordx4 v[160:163], v2, s[70:71]')
    a.e('global_load_dwordx4 v[164:167], v2, s[70:71] offset:16')


DK0, DK1 = 16, 28


def kgen_channel(a, c, DACC, mid=None, mid_m0=True, after_setup=None, defer=False):
    LAR, AI, CR, CI = 40 + 4 * c, 41 + 4 * c, 42 + 4 * c, 43 + 4 * c
    SIG, DT = 52 + c, 54 + c
    AL, BE = 56, 57
    Z1, Z2, Z4, Z8, Z128, Z256, Z512, Z1024 = 58, 60, 62, 64, 66, 68, 70, 72
    X0, CA, CB, CC, T0, T1 = 74, 76, 78, 80, 82, 84
    CV = [86, 87, 88, 89]
    VW, VR = 90, 91
    t, t2 = 92, 93
    for r in (LAR, AI, CR, CI):
        a.e(f'v_lshlrev_b32 v{r}, 16, v{r}')
    a.e('s_lshl_b32 s66, s68, 16' if c == 0 else 's_and_b32 s66, s68, 0xffff0000')
    a.e(f'v_mov_b32 v{t2}, s66')
    exp_bf16(a, DT, t2, t)
    a.e(f'v_add_f32 v{SIG}, abs(v{CR}), abs(v{CI})')
    exp_bf16(a, AL, LAR, t)
    a.e(f'v_add_f32_dpp v{SIG}, v{SIG}, v{SIG} quad_perm:[1,0,3,2] row_mask:0xf bank_mask:0xf')
    a.e(f'v_mul_f32 v{AL}, v{AL}, v{DT}')
    a.e(f'v_mul_f32 v{BE}, v{AI}, v{DT}')
    a.e(f'v_add_f32_dpp v{SIG}, v{SIG}, v{SIG} quad_perm:[2,3,0,1] row_mask:0xf bank_mask:0xf')
    a.e(f'v_mul_f32 v{AL}, {fx(-1.4426950408889634)}, v{AL}')
    a.e(f'v_mul_f32 v{BE}, {fx(0.15915494309189535)}, v{BE}')
    a.e(f'v_add_f32_dpp v{SIG}, v{SIG}, v{SIG} row_half_mirror row_mask:0xf bank_mask:0xf')
    a.e(f'v_exp_f32 v{T0}, v{AL}')
    a.e(f'v_fract_f32 v{t}, v{BE}')
    a.e(f'v_add_f32_dpp v{SIG}, v{SIG}, v{SIG} row_ror:8 row_mask:0xf bank_mask:0xf')
    a.e(f'v_cos_f32 v{Z1}, v{t}')
    a.e(f'v_sin_f32 v{Z1+1}, v{t}')
    a.e(f'v_mov_b32 v{t2}, v{SIG}')
    a.e(f'v_mul_f32 v{T1}, 0x43000000, v{AL}')
    a.e(f'v_mul_f32 v{t}, 0x43000000, v{BE}')
    a.e(f'v_permlane16_swap_b32 v{SIG}, v{t2}')
    a.e(f'v_pk_mul_f32 v[{Z1}:{Z1+1}], v[{Z1}:{Z1+1}], v[{T0}:{T0+1}] op_sel:[0,0] op_sel_hi:[1,0]')
    a.e(f'v_add_f32 v{SIG}, v{SIG}, v{t2}')
    a.e(f'v_exp_f32 v{T1}, v{T1}')
    a.e(f'v_fract_f32 v{t}, v{t}')
    a.e(f'v_mov_b32 v{t2}, v{SIG}')
    a.e(f'v_cos_f32 v{Z128}, v{t}')
    a.e(f'v_sin_f32 v{Z128+1}, v{t}')
    a.e(f'v_permlane32_swap_b32 v{SIG}, v{t2}')
    cmul(a, Z2, Z1, Z1, Z2)
    a.e(f'v_add_f32 v{SIG}, v{SIG}, v{t2}')
    a.e(f'v_pk_mul_f32 v[{Z128}:{Z128+1}], v[{Z128}:{Z128+1}], v[{T1}:{T1+1}] op_sel:[0,0] op_sel_hi:[1,0]')
    a.e(f'v_add_f32 v{SIG}, {fx(1e-30)}, v{SIG}')
    cmul(a, Z4, Z2, Z2, Z4)
    a.e(f'v_rcp_f32 v{t}, v{SIG}')
    cmul(a, Z256, Z128, Z128, Z256)
    cmul(a, Z8, Z4, Z4, Z8)
    a.e(f'v_mul_f32 v{X0}, v{CR}, v{t}')
    a.e(f'v_mul_f32 v{X0+1}, v{CI}, v{t}')
    cmul(a, Z512, Z256, Z256, Z512)
    a.e(f's_mul_i32 s66, s{S_W}, {SCRW}')
    a.e(f's_add_u32 s66, s66, {L_SCR}')
    a.e('s_mov_b32 m0, s66')
    cmul(a, Z1024, Z512, Z512, Z1024)
    a.e(f'v_and_b32 v{t}, 15, v1')
    a.e(f'v_mul_u32_u24 v{t}, {SROW}, v{t}')
    a.e(f'v_lshrrev_b32 v{t2}, 4, v1')
    a.e(f'v_lshl_add_u32 v{t}, v{t2}, 4, v{t}')
    a.e(f'v_add_u32 v{VR}, s66, v{t}')
    cvi = [0]
    pend = []

    def flush(keep):
        while len(pend) > keep:
            cv, off = pend.pop(0)
            a.e(f'ds_write_addtid_b32 v{cv} offset:{off}')

    G = OPT['kgrp']
    if G > 1:
        CV = list(range(96, 112))
        if OPT['kdefer']:
            CV = list(range(168, 176))
    if after_setup is not None:
        after_setup()

    def put(off, r, neg):
        cv = CV[cvi[0] % len(CV)]
        cvi[0] += 1
        a.e(f'v_cvt_pk_f16_f32 v{cv}, v{r}, {"-" if neg else ""}v{r+1}')
        if G > 1:
            pend.append((cv, off))
            if len(pend) >= G + 1:
                flush(1)
        else:
            flush(1)
            pend.append((cv, off))

    def putX(row, r):
        put(row * SROW, r, True)

    def putY(b, r):
        put((YROW + b) * SROW, r, False)

    a.e(f'v_mov_b32 v{VW}, 0x00003c00')
    pend.append((VW, YROW * SROW))
    putY(1, Z8)
    ychain = {'cur': Z8, 'b': 1}
    YA, YB = CC, 94

    def ystep():
        if ychain['b'] >= 15:
            return
        d = YA if ychain['cur'] != YA else YB
        cmul(a, d, ychain['cur'], Z8, d)
        ychain['b'] += 1
        ychain['cur'] = d
        putY(ychain['b'], d)

    putX(0, X0)
    cmul(a, T0, X0, Z128, T0)
    putX(8, T0)
    cur = X0
    for j in range(1, 8):
        d = CA if cur != CA else CB
        cmul(a, d, cur, Z1, d)
        ystep()
        putX(j, d)
        cmul(a, T0, d, Z128, T0)
        putX(8 + j, T0)
        cur = d
    cmul(a, CA, X0, Z256, CA)
    ystep()
    putX(16, CA)
    cmul(a, T0, CA, Z128, T0)
    putX(20, T0)
    cur = CA
    for j in range(1, 4):
        d = CA if cur != CA else CB
        cmul(a, d, cur, Z2, d)
        ystep()
        putX(16 + j, d)
        cmul(a, T0, d, Z128, T0)
        putX(20 + j, T0)
        cur = d
    if mid is not None:
        if mid_m0:
            flush(0)
        mid()
        if mid_m0:
            a.e(f's_mul_i32 s66, s{S_W}, {SCRW}')
            a.e(f's_add_u32 s66, s66, {L_SCR}')
            a.e('s_mov_b32 m0, s66')
    cmul(a, CA, X0, Z512, CA)
    ystep()
    putX(24, CA)
    cmul(a, CB, CA, Z4, CB)
    ystep()
    putX(25, CB)
    pa, pb = CA, CB
    na, nb = T0, T1
    for q in range(1, 4):
        cmul(a, na, pa, Z128, na)
        cmul(a, nb, pb, Z128, nb)
        ystep()
        putX(24 + 2 * q, na)
        putX(25 + 2 * q, nb)
        pa, pb, na, nb = na, nb, pa, pb
    cmul(a, CA, X0, Z1024, CA)
    putX(32, CA)
    cur = CA
    for q in range(1, 9):
        d = CA if cur != CA else CB
        cmul(a, d, cur, Z128, d)
        putX(32 + q, d)
        cur = d
    while ychain['b'] < 15:
        ystep()
    flush(0)
    FA = 96
    for k in range(4):
        a.e(f'ds_read_b128 v[{144+4*k}:{147+4*k}], v{VR} offset:{YROW*SROW+64*k}')
        for T in range(3):
            r = FA + 16 * T + 4 * k
            a.e(f'ds_read_b128 v[{r}:{r+3}], v{VR} offset:{16*T*SROW+64*k}')
    def mfmas(waits=True):
        for k in range(4):
            if waits:
                a.e(f's_waitcnt lgkmcnt({4*(3-k)})')
            elif k == 0:
                a.e('s_waitcnt lgkmcnt(0)')
            for T in range(3):
                r = FA + 16 * T + 4 * k
                cc = '0' if k == 0 else f'v[{DACC+4*T}:{DACC+4*T+3}]'
                a.e(f'v_mfma_f32_16x16x32_f16 v[{DACC+4*T}:{DACC+4*T+3}], v[{r}:{r+3}], v[{144+4*k}:{147+4*k}], {cc}')

    if defer:
        return lambda: mfmas(waits=False)
    mfmas()


def ktab_part1(a):
    a.e(f's_mul_i32 s66, s{S_W}, {SCRW}')
    a.e(f's_add_u32 s66, s66, {L_SCR}')
    a.e('v_lshl_add_u32 v90, v1, 4, s66')
    a.e(f's_lshl_b32 s67, s{S_W}, 2')
    a.e(f's_add_u32 s67, s67, {L_SIG}')
    a.e('v_mov_b32 v91, s67')
    a.e('s_mov_b64 exec, 1')
    a.e('ds_write_b32 v91, v52')
    a.e('ds_write_b32 v91, v53 offset:16')
    a.e('s_mov_b64 exec, -1')
    for c, DK in ((0, DK0), (1, DK1)):
        for T in range(3):
            for h in range(2):
                i = DK + 4 * T + 2 * h
                a.e(f'v_pk_mul_f32 v[{i}:{i+1}], v[{i}:{i+1}], v[52:53] op_sel:[0,{c}] op_sel_hi:[1,{c}]')
            a.e(f'ds_write_b128 v90, v[{DK+4*T}:{DK+4*T+3}] offset:{c*3072+T*1024}')
    a.e('v_mov_b32 v96, 0')
    a.e('v_mov_b32 v97, 0')
    a.e('v_mov_b32 v98, 0')
    a.e('v_mov_b32 v99, 0')
    a.e(f'v_mov_b32 v92, {L_KT + 1536}')
    a.e('ds_write_b32 v92, v96')
    a.e(f'ds_write_b32 v92, v96 offset:{KTCH}')
    a.e('v_lshlrev_b32 v92, 3, v1')
    a.e(f'ds_write_b64 v92, v[96:97] offset:{L_U}')
    a.e(f'ds_write_b64 v92, v[96:97] offset:{L_U + UCH}')
    a.e('s_waitcnt lgkmcnt(0)')
    a.e('s_barrier')


def ktab_part2(a, mid=None):
    a.e(f'v_mov_b32 v91, {L_SIG}')
    a.e('ds_read_b128 v[44:47], v91')
    a.e('ds_read_b128 v[48:51], v91 offset:16')
    a.e(f's_and_b32 s67, s{S_W}, 1')
    a.e(f's_lshr_b32 s70, s{S_W}, 1')
    a.e('s_mul_i32 s71, s67, 3072')
    a.e('s_lshl_b32 s72, s70, 10')
    a.e('s_add_u32 s72, s72, s71')
    a.e(f's_add_u32 s72, s72, {L_SCR}')
    a.e(f's_add_u32 s71, s71, {L_SCR + 2048}')
    a.e('v_lshl_add_u32 v90, v1, 4, s72')
    a.e('v_lshl_add_u32 v91, v1, 4, s71')
    for wv in range(4):
        a.e(f'ds_read_b128 v[{96+4*wv}:{99+4*wv}], v90 offset:{wv*SCRW}')
    for wv in range(4):
        a.e(f'ds_read_b128 v[{112+4*wv}:{115+4*wv}], v91 offset:{wv*SCRW}')
    a.e('v_mov_b32 v128, 0')
    a.e('v_mov_b32 v129, 0')
    a.e('v_mov_b32 v130, 0')
    a.e('v_mov_b32 v131, 0')
    if OPT['c4']:
        a.e('v_and_b32 v132, 7, v1')
        a.e(f'v_mul_u32_u24 v132, {KCOPY}, v132')
        a.e('v_bfe_u32 v133, v1, 3, 1')
        a.e('v_lshl_add_u32 v132, v133, 4, v132')
    else:
        a.e('v_and_b32 v132, 15, v1')
        a.e(f'v_mul_u32_u24 v132, {KCOPY}, v132')
    a.e(f'v_add_u32 v132, {L_KC}, v132')
    a.e('ds_write_b128 v132, v[128:131] offset:4096')
    a.e('v_lshrrev_b32 v92, 4, v1')
    a.e('v_lshlrev_b32 v92, 7, v92')
    a.e('v_and_b32 v93, 15, v1')
    a.e('v_lshl_add_u32 v92, v93, 1, v92')
    a.e(f's_mul_i32 s71, s67, {KTCH}')
    a.e(f's_add_u32 s71, s71, {L_KT}')
    a.e('v_add_u32 v93, s71, v92')
    a.e('s_lshl_b32 s72, s70, 9')
    a.e('v_add_u32 v92, s72, v93')
    if mid is not None:
        mid()
    a.e('s_waitcnt lgkmcnt(9)')
    a.e('v_pk_add_f32 v[44:45], v[44:45], v[46:47]')
    a.e('v_pk_add_f32 v[48:49], v[48:49], v[50:51]')
    a.e('v_add_f32 v44, v44, v45')
    a.e('v_add_f32 v45, v48, v49')
    a.e('s_cmp_eq_u32 s67, 0')
    a.e('s_cselect_b64 vcc, -1, 0')
    a.e('v_pk_mul_f32 v[54:55], v[54:55], v[44:45]')
    a.e('v_cndmask_b32 v46, v45, v44, vcc')
    a.e('v_pk_add_f32 v[54:55], v[54:55], v[54:55]')
    a.e('v_rcp_f32 v46, v46')
    for jb, (base, va, off) in enumerate(((96, 92, 0), (112, 93, 1024))):
        a.e(f's_waitcnt lgkmcnt({5 if jb == 0 else 5})')
        for h in range(2):
            a.e(f'v_pk_add_f32 v[{base+2*h}:{base+2*h+1}], v[{base+2*h}:{base+2*h+1}], v[{base+4+2*h}:{base+5+2*h}]')
            a.e(f'v_pk_add_f32 v[{base+8+2*h}:{base+9+2*h}], v[{base+8+2*h}:{base+9+2*h}], v[{base+12+2*h}:{base+13+2*h}]')
        for h in range(2):
            a.e(f'v_pk_add_f32 v[{base+2*h}:{base+2*h+1}], v[{base+2*h}:{base+2*h+1}], v[{base+8+2*h}:{base+9+2*h}]')
        for h in range(2):
            a.e(f'v_pk_mul_f32 v[{base+2*h}:{base+2*h+1}], v[{base+2*h}:{base+2*h+1}], v[46:47] op_sel:[0,0] op_sel_hi:[1,0]')
        a.e(f'v_cvt_pk_f16_f32 v{base+4}, v{base}, v{base+1}')
        a.e(f'v_cvt_pk_f16_f32 v{base+5}, v{base+2}, v{base+3}')
        a.e(f'ds_write_b16 v{va}, v{base+4} offset:{off}')
        a.e(f'ds_write_b16_d16_hi v{va}, v{base+4} offset:{off+32}')
        a.e(f'ds_write_b16 v{va}, v{base+5} offset:{off+64}')
        a.e(f'ds_write_b16_d16_hi v{va}, v{base+5} offset:{off+96}')
    for e in range(11 if OPT['c4'] else 15):
        src = 160 + e // 2
        if e % 2 == 0:
            a.e(f'v_and_b32 v{136+e}, 0xffff, v{src}')
        else:
            a.e(f'v_lshrrev_b32 v{136+e}, 16, v{src}')
    a.e('s_waitcnt lgkmcnt(0)')
    a.e('s_barrier')


def kch():
    return (4 if OPT['c4'] else 8) * KCOPY


def kcopies(a):
    AD = 136
    a.e('v_lshlrev_b32 v111, 4, v0')
    a.e(f'v_add_u32 v111, {L_KC}, v111')
    RR = [96, 112]
    if OPT['c4']:
        for c in range(2):
            for e in range(11):
                a.e(f'ds_read_u16 v{RR[c]+e}, v{AD+e} offset:{L_KT + c*KTCH}')
        for c in range(2):
            R = RR[c]
            Da, Db, Oa, Ob = (56, 60, 64, 68) if c == 0 else (16, 20, 24, 28)
            a.e(f's_waitcnt lgkmcnt({11 if c == 0 else 4})')
            for i in range(4):
                a.e(f'v_lshl_or_b32 v{Da+i}, v{R+2*i+1}, 16, v{R+2*i}')
                a.e(f'v_lshl_or_b32 v{Oa+i}, v{R+2*i+2}, 16, v{R+2*i+1}')
                a.e(f'v_lshl_or_b32 v{Db+i}, v{R+2*i+3}, 16, v{R+2*i+2}')
                a.e(f'v_lshl_or_b32 v{Ob+i}, v{R+2*i+4}, 16, v{R+2*i+3}')
            for s_, r in ((0, Da), (1, Oa), (2, Db), (3, Ob)):
                a.e(f'ds_write_b128 v111, v[{r}:{r+3}] offset:{c*kch() + s_*KCOPY}')
        return
    for c in range(2):
        for e in range(15):
            a.e(f'ds_read_u16 v{RR[c]+e}, v{AD+e} offset:{L_KT + c*KTCH}')
    for c in range(2):
        R = RR[c]
        Da, Db, Oa, Ob = 56 + 0, 64, 72, 80
        if c == 1:
            Da, Db, Oa, Ob = 16, 24, 32, 40
        a.e(f's_waitcnt lgkmcnt({15 if c == 0 else 8})')
        for i in range(6):
            a.e(f'v_lshl_or_b32 v{Da+i}, v{R+2*i+1}, 16, v{R+2*i}')
            a.e(f'v_lshl_or_b32 v{Oa+i}, v{R+2*i+2}, 16, v{R+2*i+1}')
        if c == 1:
            a.e(f'v_add_u32 v110, {KCH}, v111')
        va = 111 if c == 0 else 110
        for s, r in ((0, Da), (1, Oa), (4, Da + 2), (5, Oa + 2)):
            a.e(f'ds_write_b128 v{va}, v[{r}:{r+3}] offset:{s*KCOPY}')
        for i in range(6):
            a.e(f'v_lshl_or_b32 v{Db+i}, v{R+2*i+3}, 16, v{R+2*i+2}')
            a.e(f'v_lshl_or_b32 v{Ob+i}, v{R+2*i+4}, 16, v{R+2*i+3}')
        for s, r in ((2, Db), (3, Ob), (6, Db + 2), (7, Ob + 2)):
            a.e(f'ds_write_b128 v{va}, v[{r}:{r+3}] offset:{s*KCOPY}')


def store_u(a, vm):
    a.e('v_lshlrev_b32 v2, 4, v0')
    a.e(f's_waitcnt vmcnt({vm})')
    a.e(f'ds_write_b128 v2, v[176:179] offset:{L_U + 512}')
    a.e(f'ds_write_b128 v2, v[180:183] offset:{L_U + UCH + 512}')
    a.e('s_waitcnt lgkmcnt(0)')
    a.e('s_barrier')


def phase_conv(a, hooks, pre_vm):
    hooks = list(hooks)
    ACC = 16
    FA = [[64 + 64 * s + 4 * i for i in range(8)] for s in range(2)]
    FB = [[96 + 64 * s + 4 * i for i in range(8)] for s in range(2)]
    VA, VB = (192, 193) if OPT['hoist'] else (48, 49)

    def loads(qq, s):
        out = []
        for i in range(8):
            out.append(f'ds_read_b128 v[{FB[s][i]}:{FB[s][i]+3}], v{VB} offset:{512*i + 64*(3-qq)}')
            if OPT['c4']:
                o = 512 * (7 - i) + 64 * (3 - qq)
                out.append(f'ds_read_b64 v[{FA[s][i]}:{FA[s][i]+1}], v{VA} offset:{o}')
                out.append(f'ds_read_b64 v[{FA[s][i]+2}:{FA[s][i]+3}], v{VA} offset:{o + 8}')
            else:
                out.append(f'ds_read_b128 v[{FA[s][i]}:{FA[s][i]+3}], v{VA} offset:{512*(7-i) + 64*(3-qq)}')
        return out

    for x in loads(0, 0):
        a.e(x)
    for qq in range(4):
        s = qq & 1
        nxt = loads(qq + 1, 1 - s) if qq < 3 else []
        n = 0
        for w in range(8):
            for c in range(w, 8):
                if n == 0:
                    a.e('s_waitcnt lgkmcnt(0)')
                    if qq == 3 and OPT['cvbar']:
                        a.e('s_barrier')
                cc = '0' if (qq == 0 and w == 0) else f'v[{ACC+4*c}:{ACC+4*c+3}]'
                a.e(f'v_mfma_f32_16x16x32_f16 v[{ACC+4*c}:{ACC+4*c+3}], v[{FA[s][w]}:{FA[s][w]+3}], v[{FB[s][c-w]}:{FB[s][c-w]+3}], {cc}')
                if nxt and (n % 2 == 1 or (OPT['c4'] and n % 4 == 0)):
                    a.e(nxt.pop(0))
                if hooks and n % 4 == 2:
                    hooks.pop(0)()
                n += 1
        assert not nxt
    assert not hooks
    stamp(a, 11)
    CP, TS = L_CP, 1280
    if OPT['hoist']:
        if not OPT['cvbar']:
            a.e('s_barrier')
        for c in range(8):
            a.e(f'ds_write_b128 v194, v[{ACC+4*c}:{ACC+4*c+3}] offset:{c*TS}')
        VRD, VU, VG = 195, 206, 207
    else:
        a.e('v_and_b32 v2, 15, v1')
        a.e('v_lshlrev_b32 v2, 4, v2')
        a.e('v_lshrrev_b32 v3, 4, v1')
        a.e('v_mul_u32_u24 v3, 320, v3')
        a.e('v_add_u32 v2, v2, v3')
        a.e(f's_mul_i32 s70, s{S_W}, {8*TS}')
        a.e(f's_add_u32 s70, s70, {CP}')
        a.e('v_add_u32 v2, s70, v2')
        if not OPT['cvbar']:
            a.e('s_barrier')
        for c in range(8):
            a.e(f'ds_write_b128 v2, v[{ACC+4*c}:{ACC+4*c+3}] offset:{c*TS}')
        a.e('v_lshrrev_b32 v2, 2, v1')
        a.e('v_lshlrev_b32 v2, 4, v2')
        a.e('v_and_b32 v3, 3, v1')
        a.e('v_mul_u32_u24 v3, 320, v3')
        a.e('v_add_u32 v2, v2, v3')
        a.e(f's_lshl_b32 s70, s{S_W}, 1')
        a.e(f's_mul_i32 s71, s70, {TS}')
        a.e(f's_add_u32 s71, s71, {CP}')
        a.e('v_add_u32 v2, s71, v2')
        a.e('s_lshl_b32 s71, s70, 9')
        a.e(f's_add_u32 s71, s71, {L_U + 512}')
        a.e('v_lshl_add_u32 v3, v1, 3, s71')
        a.e(f's_mul_i32 s71, s{S_P}, {AST}')
        a.e('s_lshl_b32 s72, s70, 10')
        a.e('s_add_u32 s71, s71, s72')
        a.e(f's_add_u32 s71, s71, {WS_AOUT}')
        a.e('v_lshl_add_u32 v4, v1, 4, s71')
        VRD, VU, VG = 2, 3, 4
    a.e('s_lshl_b32 s72, s69, 16')
    a.e('s_and_b32 s73, s69, 0xffff0000')
    a.e('v_mov_b32 v56, s72')
    a.e('v_mov_b32 v57, s73')
    a.e(f's_waitcnt lgkmcnt(0) vmcnt({pre_vm})')
    a.e('s_barrier')
    for q in range(2):
        P = 64 + 32 * q
        for ch in range(2):
            for hf in range(2):
                r = P + 8 * ch + 4 * hf
                a.e(f'ds_read_b128 v[{r}:{r+3}], v{VRD} offset:{(2*ch+hf)*8*TS + q*TS}')
        for ch in range(2):
            a.e(f'ds_read_b64 v[{P+16+2*ch}:{P+17+2*ch}], v{VU} offset:{ch*UCH + q*512}')
    for q in range(2):
        P = 64 + 32 * q
        a.e(f's_waitcnt lgkmcnt({6 if q == 0 else 0})')
        for ch in range(2):
            y = P + 8 * ch
            T = 128 + 16 * ch
            u = P + 16 + 2 * ch
            for h in range(2):
                a.e(f'v_pk_add_f32 v[{y+2*h}:{y+2*h+1}], v[{y+2*h}:{y+2*h+1}], v[{y+4+2*h}:{y+5+2*h}]')
            for i in range(4):
                a.e(f'v_fma_mix_f32 v{T+i}, v{u+i//2}, v{56+ch}, 0 op_sel:[{i%2},0,0] op_sel_hi:[1,0,0]')
            for h in range(2):
                a.e(f'v_pk_mul_f32 v[{y+2*h}:{y+2*h+1}], v[{y+2*h}:{y+2*h+1}], v[54:55] op_sel:[0,{ch}] op_sel_hi:[1,{ch}]')
            for h in range(2):
                a.e(f'v_cvt_pk_bf16_f32 v{T+6+h}, v{T+2*h}, v{T+2*h+1}')
                a.e(f'v_cvt_pk_bf16_f32 v{T+4+h}, v{y+2*h}, v{y+2*h+1}')
            for h in range(2):
                a.e(f'v_lshlrev_b32 v{T+2*h}, 16, v{T+6+h}')
                a.e(f'v_and_b32 v{T+2*h+1}, 0xffff0000, v{T+6+h}')
                a.e(f'v_lshlrev_b32 v{y+2*h}, 16, v{T+4+h}')
                a.e(f'v_and_b32 v{y+2*h+1}, 0xffff0000, v{T+4+h}')
            for h in range(2):
                a.e(f'v_pk_add_f32 v[{y+2*h}:{y+2*h+1}], v[{y+2*h}:{y+2*h+1}], v[{T+2*h}:{T+2*h+1}]')
        O = 160 + 4 * q
        for i in range(4):
            a.e(f'v_cvt_pk_bf16_f32 v{O+i}, v{P+i}, v{P+8+i}')
        a.e(f'buffer_store_dwordx4 v[{O}:{O+3}], v{VG}, {WSR}, 0 offen offset:{q*1024} sc1')


def conv_addr(a, va=48, vb=49):
    a.e(f's_lshr_b32 s66, s{S_W}, 1')
    a.e(f's_and_b32 s67, s{S_W}, 1')
    a.e('v_and_b32 v2, 7, v1')
    a.e('v_sub_u32 v2, 7, v2')
    if OPT['c4']:
        a.e('v_lshrrev_b32 v5, 2, v2')
        a.e('v_and_b32 v2, 3, v2')
        a.e(f'v_mul_u32_u24 v2, {KCOPY}, v2')
        a.e('v_lshl_add_u32 v2, v5, 3, v2')
    else:
        a.e(f'v_mul_u32_u24 v2, {KCOPY}, v2')
    a.e('v_lshrrev_b32 v3, 4, v1')
    a.e('v_bfe_u32 v4, v1, 3, 1')
    a.e('v_sub_u32 v4, v3, v4')
    a.e('v_lshl_add_u32 v2, v4, 4, v2')
    a.e(f's_mul_i32 s70, s66, {kch()}')
    a.e('s_lshl_b32 s71, s67, 8')
    a.e('s_sub_u32 s70, s70, s71')
    a.e(f's_add_u32 s70, s70, {L_KC + 16*253 - 512*7 - 64*3}')
    a.e(f'v_add_u32 v{va}, s70, v2')
    a.e('v_and_b32 v2, 15, v1')
    a.e('v_lshlrev_b32 v2, 5, v2')
    a.e('v_lshl_add_u32 v2, v3, 4, v2')
    a.e(f's_mul_i32 s70, s66, {UCH}')
    a.e('s_sub_u32 s70, s70, s71')
    a.e(f's_add_u32 s70, s70, {L_U + 480 - 64*3}')
    a.e(f'v_add_u32 v{vb}, s70, v2')


def p4_pre(a):
    X = list(range(8, 16))
    xrow_addr(a)
    a.e(f's_mul_i32 s66, s{S_W}, {56*AST}')
    a.e(f's_lshl_b32 s67, s{S_B}, 5')
    a.e('s_add_u32 s66, s66, s67')
    a.e(f's_add_u32 s66, s66, {WS_AOUT}')
    a.e(f'v_mul_u32_u24 v4, {AST}, v1')
    a.e('v_add_u32 v4, s66, v4')
    a.e(f'v_mov_b32 v5, {OOB}')
    a.e('v_cndmask_b32 v4, v5, v4, vcc')
    if OPT['hpriv']:
        a.e(f's_mul_i32 s66, s{S_W}, 1792')
        a.e(f's_add_u32 s66, s66, {L_HT}')
        a.e('v_lshl_add_u32 v6, v1, 2, s66')
        a.e('v_lshl_add_u32 v7, v1, 4, s66')
        a.e(f's_mul_i32 s66, s{S_B}, 7168')
        a.e(f's_mul_i32 s67, s{S_W}, 224')
        a.e('s_add_u32 s66, s66, s67')
        a.e(f's_add_u32 s66, s66, {WS_H}')
        for k, vd in ((0, 56), (64, 57)):
            a.e(f'v_add_u32 v58, {k}, v1')
            a.e('v_mul_u32_u24 v59, 4682, v58')
            a.e('v_lshrrev_b32 v59, 16, v59')
            a.e(f'v_mul_u32_u24 v{vd}, {896 - 224}, v59')
            a.e(f'v_lshl_add_u32 v{vd}, v58, 4, v{vd}')
            a.e(f'v_add_u32 v{vd}, s66, v{vd}')
        mask_lanes(a, 57, 48, 58)
    else:
        a.e(f's_mul_i32 s66, s{S_W}, 224')
        a.e(f's_add_u32 s66, s66, {L_HT}')
        a.e('v_lshl_add_u32 v6, v1, 2, s66')
    for j in range(8):
        a.e(f'v_lshlrev_b32 v{64+2*j}, 16, v{X[j]}')
        a.e(f'v_and_b32 v{65+2*j}, 0xffff0000, v{X[j]}')


def p4_loads(a):
    A = 32
    a.e(f'buffer_load_dwordx4 v[{A}:{A+3}], v4, {WSR}, 0 offen sc1')
    a.e(f'buffer_load_dwordx4 v[{A+4}:{A+7}], v4, {WSR}, 0 offen offset:16 sc1')


def p4_check(a):
    A = 32
    a.e(f'v_max3_u32 v40, v{A}, v{A+1}, v{A+2}')
    a.e(f'v_max3_u32 v41, v{A+3}, v{A+4}, v{A+5}')
    a.e(f'v_max3_u32 v40, v40, v{A+6}, v{A+7}')
    a.e('v_max_u32 v40, v40, v41')
    a.e('v_cmp_eq_u32 vcc, -1, v40')


def phase_p4(a, dmas=(), pre_done=None):
    X = list(range(8, 16))
    A = 32
    if pre_done is None:
        p4_pre(a)
        lp0, ld = a.lab('h2poll0'), a.lab('h2done')
    else:
        lp0, ld = pre_done
    lp = a.lab('h2poll')
    a.e(f'{lp0}:')
    a.e(f's_mov_b32 s{S_SPIN}, 0')
    a.e(f'{lp}:')
    p4_loads(a)
    a.e('s_waitcnt vmcnt(0)')
    p4_check(a)
    a.e(f's_cbranch_vccz {ld}')
    spin_tail(a, lp)
    a.e(f'{ld}:')
    stamp(a, 14)
    H = list(range(48, 56))
    for j in range(8):
        t = 40 + 2 * (j % 4)
        a.e(f'v_lshlrev_b32 v{t}, 16, v{A+j}')
        a.e(f'v_and_b32 v{t+1}, 0xffff0000, v{A+j}')
        a.e(f'v_pk_add_f32 v[{t}:{t+1}], v[{t}:{t+1}], v[{64+2*j}:{65+2*j}]')
        a.e(f'v_cvt_pk_bf16_f32 v{H[j]}, v{t}, v{t+1}')
    a.e('s_mov_b32 exec_hi, 0x00ffffff')
    for j in range(8):
        a.e(f'ds_write_b32 v6, v{H[j]} offset:{j*(224 if OPT["hpriv"] else 896)}')
    a.e('s_mov_b32 exec_hi, -1')
    if OPT['hpriv']:
        a.e('ds_read_b128 v[32:35], v7')
        a.e('ds_read_b128 v[36:39], v7 offset:1024')
        a.e('s_waitcnt lgkmcnt(1)')
        a.e(f'buffer_store_dwordx4 v[32:35], v56, {WSR}, 0 offen sc1')
        a.e('s_waitcnt lgkmcnt(0)')
        a.e(f'buffer_store_dwordx4 v[36:39], v57, {WSR}, 0 offen sc1')
        if dmas:
            a.inject(dmas, OPT['p4ev'])
        ln_stats(a, H, 16, L_RED0, 5)
    else:
        def hstore():
            a.e('v_lshlrev_b32 v7, 4, v0')
            a.e(f'ds_read_b128 v[56:59], v7 offset:{L_HT}')
            a.e(f'ds_read_b128 v[60:63], v7 offset:{L_HT + 4096}')
            return 2

        ln_stats(a, H, 16, L_RED0, 5, mid=hstore)
        a.e(f's_mul_i32 s66, s{S_B}, 7168')
        a.e(f's_add_u32 s66, s66, {WS_H}')
        a.e('v_add_u32 v6, s66, v7')
        a.e('v_add_u32 v7, 4096, v6')
        mask_lanes(a, 7, 192, 4, 'v0')
        a.e('s_waitcnt lgkmcnt(0)')
        a.e(f'buffer_store_dwordx4 v[56:59], v6, {WSR}, 0 offen sc1')
        a.e(f'buffer_store_dwordx4 v[60:63], v7, {WSR}, 0 offen sc1')
    bcast_stats(a, 16)
    a.inj_pause()
    a.e('s_mov_b32 exec_hi, 0x00ffffff')
    for j in range(8):
        t = 40 + 2 * (j % 4)
        norm_tok(a, j, H[j], t)
        a.e(f'v_cvt_pk_bf16_f32 v{H[j]}, v{t}, v{t+1}')
    a.e('s_mov_b32 exec_hi, -1')
    a.inj_resume()
    ln_stats(a, H, 16, L_RED1, 5)
    bcast_stats(a, 16)
    VHH = 213 if OPT['hoist'] else 4
    if not OPT['hoist']:
        a.e(f's_mul_i32 s66, s{S_B}, 7168')
        a.e(f's_mul_i32 s67, s{S_W}, 1792')
        a.e('s_add_u32 s66, s66, s67')
        a.e(f's_add_u32 s66, s66, {WS_HH}')
        a.e('v_lshl_add_u32 v4, v1, 4, s66')
        a.e('v_add_u32 v5, 448, v4')
        a.e('v_cmp_gt_u32 vcc, 28, v1')
        a.e('v_cndmask_b32 v4, v5, v4, vcc')
        mask_lanes(a, 4, 56, 5)
    for j in range(8):
        norm_tok(a, j, H[j], 64 + 2 * j)
    O0, O1 = 80, 84
    for i in range(4):
        a.e(f'v_cvt_pk_bf16_f32 v{O0+i}, v{64+4*i}, v{66+4*i}')
        a.e(f'v_cvt_pk_bf16_f32 v{O1+i}, v{65+4*i}, v{67+4*i}')
    a.inj_flush()
    if not OPT['nohw']:
        a.e(f's_waitcnt vmcnt({len(dmas)})')
    if not OPT['hpriv']:
        a.e('s_barrier')
    a.e(f'buffer_store_dwordx4 v[{O0}:{O0+3}], v{VHH}, {WSR}, 0 offen sc1')
    a.e(f'buffer_store_dwordx4 v[{O1}:{O1+3}], v{VHH}, {WSR}, 0 offen offset:448 sc1')


def w_setup(a):
    srd(a, S_W1, P_W1, W1BYTES)
    srd(a, S_W2, P_W2, W2BYTES)
    a.e('v_lshrrev_b32 v4, 3, v1')
    a.e('v_bfe_u32 v5, v1, 4, 1')
    a.e('v_lshlrev_b32 v5, 1, v5')
    a.e('v_and_b32 v6, 7, v1')
    a.e('v_xor_b32 v6, v6, v5')
    a.e('v_xor_b32 v7, 4, v6')
    for vd, rowbytes, tile, rows in ((V_D1, F * 2, S_I1, 512), (V_D2, L * 2, S_I2, 448)):
        a.e(f's_mov_b32 s66, {rowbytes}')
        a.e('v_mul_lo_u32 v5, v4, s66')
        a.e(f's_mul_i32 s67, s{S_W}, {rows*rowbytes}')
        a.e(f's_lshl_b32 s66, s{tile}, 7')
        a.e('s_add_u32 s67, s67, s66')
        a.e('v_add_u32 v5, s67, v5')
        for i in range(4):
            a.e(f'v_lshl_add_u32 v{vd+i}, v{6 + (i & 1)}, 4, v5')
            if i:
                a.e(f'v_add_u32 v{vd+i}, {i*(8*rowbytes - 1024)}, v{vd+i}')
    a.e('v_lshlrev_b32 v5, 12, v4')
    a.e('v_and_b32 v6, 7, v1')
    a.e(f'v_lshl_add_u32 v{V_QPF}, v6, 4, v5')
    a.e(f's_and_b32 s66, s{S_LOC}, 3')
    a.e('s_mul_i32 s66, s66, 448')
    if OPT['sched'] == 3:
        a.e(f's_mul_i32 s67, s{S_W}, {(448 - OPT["hR"]) // 4}')
        a.e(f's_add_u32 s67, s67, {OPT["hR"]}')
    else:
        a.e(f's_mul_i32 s67, s{S_W}, 112')
    a.e('s_add_u32 s66, s66, s67')
    a.e('s_lshl_b32 s66, s66, 12')
    a.e(f's_lshl_b32 s67, s{S_I2}, 7')
    a.e(f's_add_u32 s{S_QPF}, s66, s67')
    a.e('v_lshrrev_b32 v4, 4, v1')
    a.e('v_bfe_u32 v5, v1, 2, 2')
    a.e('v_lshl_add_u32 v5, v4, 3, v5')
    a.e('v_lshlrev_b32 v5, 7, v5')
    a.e('v_and_b32 v6, 1, v1')
    a.e('v_lshl_add_u32 v5, v6, 3, v5')
    a.e('v_bfe_u32 v6, v1, 1, 1')
    a.e('v_lshl_add_u32 v5, v6, 4, v5')
    a.e('v_bfe_u32 v6, v1, 3, 1')
    a.e('v_and_b32 v4, 1, v4')
    a.e('v_lshl_add_u32 v6, v4, 1, v6')
    a.e(f's_and_b32 s66, s{S_LOC}, 3')
    a.e(f's_lshr_b32 s67, s{S_LOC}, 2')
    a.e('s_lshl_b32 s67, s67, 1')
    a.e('s_lshl_b32 s70, s66, 2')
    a.e('s_add_u32 s70, s70, s67')
    a.e('s_and_b32 s70, s70, 15')
    a.e(f's_mul_i32 s{S_RW1}, s70, {32*F*2}')
    a.e(f's_mul_i32 s{S_RX1}, s70, {4*7168}')
    a.e('s_mul_i32 s66, s66, 7')
    a.e('s_lshr_b32 s66, s66, 1')
    a.e('s_add_u32 s66, s66, s67')
    for _ in range(2):
        a.e('s_cmp_ge_u32 s66, 14')
        a.e('s_cselect_b32 s67, 14, 0')
        a.e('s_sub_u32 s66, s66, s67')
    a.e(f's_mul_i32 s{S_RW2}, s66, {32*L*2}')
    a.e(f's_mul_i32 s{S_RX2}, s66, {4*7168}')
    a.e(f's_lshl_b32 s{S_SA}, s{S_W}, 14')
    a.e(f's_add_u32 s{S_SA}, s{S_SA}, {L_WA}')
    a.e(f's_mul_i32 s{S_SB}, s{S_W}, 20480')
    a.e(f's_add_u32 s{S_SB}, s{S_SB}, {L_WB}')
    a.e(f's_lshl_b32 s{S_SC}, s{S_W}, 13')
    a.e(f's_add_u32 s{S_SC}, s{S_SC}, {L_WC}')
    for mu in range(4):
        a.e(f'v_xor_b32 v4, {mu}, v6')
        a.e('v_lshl_add_u32 v4, v4, 5, v5')
        a.e(f'v_add_u32 v{V_TA+mu}, s{S_SA}, v4')
        a.e(f'v_add_u32 v{V_TB+mu}, s{S_SB}, v4')
        a.e(f'v_add_u32 v{V_TC+mu}, s{S_SC}, v4')


def rot_off(a, idx, sreg, n, unit):
    a.e(f's_add_u32 s70, s{sreg}, {idx*unit}')
    a.e(f's_cmp_ge_u32 s70, {n*unit}')
    a.e(f's_cselect_b32 s71, {n*unit}, 0')
    a.e('s_sub_u32 s70, s70, s71')


def slot(name):
    return {'A': (S_SA, V_TA), 'B': (S_SB, V_TB), 'C': (S_SC, V_TC)}[name[0]] + (int(name[1]),)


def w_dma1(a, mat, slab, sl, i):
    sb, _, si = slot(sl)
    vd, srd_, rowbytes = (V_D1, S_W1, F * 2) if mat == 1 else (V_D2, S_W2, L * 2)
    if i == 0:
        rot_off(a, slab, S_RW1 if mat == 1 else S_RW2, 16 if mat == 1 else 14, 32 * rowbytes)
        a.e(f's_add_u32 m0, s{sb}, {si*4096}')
    a.e(f'buffer_load_dwordx4 v{vd + i}, s[{srd_}:{srd_+3}], s70 offen offset:{1024*i} lds')


def w_dma(a, mat, slab, sl):
    for i in range(4):
        w_dma1(a, mat, slab, sl, i)


def w_tr(a, slab, sl):
    _, vt, si = slot(sl)
    for mu in range(4):
        r = (slab * 4 + mu) * 4
        a.e(f'ds_read_b64_tr_b16 a[{r}:{r+1}], v{vt+mu} offset:{si*4096}')
        a.e(f'ds_read_b64_tr_b16 a[{r+2}:{r+3}], v{vt+mu} offset:{si*4096 + 512}')


def helper_w2(a, nrows, mid=None):
    a.e(f's_lshr_b32 s66, s{S_XCD}, 1')
    a.e('s_lshl_b32 s66, s66, 10')
    a.e(f's_sub_u32 s67, s{S_LOC}, 28')
    a.e('s_mul_i32 s67, s67, 448')
    a.e(f's_add_u32 s67, s67, s{S_W}')
    a.e('s_lshl_b32 s67, s67, 12')
    a.e('s_add_u32 s90, s66, s67')
    a.e('v_lshlrev_b32 v4, 4, v1')

    def loop(n):
        if n <= 0:
            return
        l = a.lab('l2s')
        a.e(f's_mov_b32 s91, {n}')
        a.e(f'{l}:')
        for i in range(4):
            a.e(f'buffer_load_dwordx4 v[220:223], v4, s[{S_W2}:{S_W2+3}], s90 offen')
            a.e(f's_add_u32 s90, s90, {4*L*2}')
        a.e('s_waitcnt vmcnt(8)')
        a.e('s_sub_u32 s91, s91, 1')
        a.e('s_cmp_lg_u32 s91, 0')
        a.e(f's_cbranch_scc1 {l}')

    total = nrows // 16
    if mid is None:
        loop(total)
        return
    n1, issue, check = mid
    loop(n1)
    issue()
    loop(3)
    check()
    loop(total - n1 - 3)


def qpf_load(a, n):
    for _ in range(n):
        a.e(f'buffer_load_dwordx4 v[220:223], v{V_QPF}, s[{S_W2}:{S_W2+3}], s{S_QPF} offen')
        a.e(f's_add_u32 s{S_QPF}, s{S_QPF}, {8*L*2}')


ACC = 16
XS = 80
NS = 6
VMAX = 214
V_X0, V_X3 = 208, 209


def gemm_xaddr(a, ws_off, kblocks):
    a.e(f's_mul_i32 s66, s{S_W}, {kblocks*7168}')
    a.e(f's_mul_i32 s67, s{S_J}, 896')
    a.e('s_add_u32 s66, s66, s67')
    a.e(f's_add_u32 s66, s66, {ws_off}')
    a.e('v_lshrrev_b32 v4, 4, v1')
    a.e('v_mul_u32_u24 v4, 7168, v4')
    a.e('v_add_u32 v4, s66, v4')
    a.e('v_and_b32 v5, 15, v1')
    a.e(f'v_lshl_add_u32 v{V_X0}, v5, 4, v4')
    if OPT['x3oob']:
        a.e(f'v_add_u32 v{V_X3}, 768, v{V_X0}')
        a.e(f'v_mov_b32 v4, {OOB}')
        a.e('v_cmp_gt_u32 vcc, 8, v5')
        a.e(f'v_cndmask_b32 v{V_X3}, v4, v{V_X3}, vcc')
    else:
        a.e('v_and_b32 v5, 7, v1')
        a.e('v_lshl_add_u32 v4, v5, 4, v4')
        a.e(f'v_add_u32 v{V_X3}, 768, v4')


def gemm_xloads(a, kappa, gid):
    st = XS + 16 * (kappa % NS)
    out = []
    sreg, n = (S_RX1, 16) if gid == 1 else (S_RX2, 14)
    unit = 4 * 7168
    out.append(f's_add_u32 s70, s{sreg}, {kappa*unit}')
    out.append(f's_cmp_ge_u32 s70, {n*unit}')
    out.append(f's_cselect_b32 s71, {n*unit}, 0')
    out.append('s_sub_u32 s70, s70, s71')
    for nu in range(3):
        out.append(f'buffer_load_dwordx4 v[{st+4*nu}:{st+4*nu+3}], v{V_X0}, {WSR}, s70 offen offset:{256*nu} sc1')
    out.append(f'buffer_load_dwordx4 v[{st+12}:{st+15}], v{V_X3}, {WSR}, s70 offen sc1')
    return out


def xhalf(a, kappa, h, gid):
    full = gemm_xloads(a, kappa, gid)
    return full[:4] + (full[4:6] if h == 0 else full[6:8])


def xseq(a, lo, hi, nk, gid):
    out = []
    i = lo
    while i < min(hi, 2 * nk):
        if i % 2 == 0 and i + 1 < min(hi, 2 * nk):
            out += gemm_xloads(a, i // 2, gid)
            i += 2
        else:
            out += xhalf(a, i // 2, i % 2, gid)
            i += 1
    return out


def x_ahead():
    return 2 * OPT['nfl'] + OPT['hf']


def gemm_main(a, nk, gid, tail_hook=None):
    nfl = OPT['nfl']
    w_is_a = gid == 1
    a.e(f'v_mov_b32 v{VMAX}, 0')
    extra = 0
    for k in range(nk):
        st = XS + 16 * (k % NS)
        rem = min(nfl - 1, nk - 1 - k)
        a.e(f's_waitcnt vmcnt({4*rem + extra})')
        if OPT['stamps'] and k in (0, 4, 8, 12):
            stamp(a, (44 if w_is_a else 51) + (0, 4, 8, 12).index(k))
        fill = gemm_xloads(a, k + nfl, gid) if k + nfl < nk else []
        if k + nfl == nk and tail_hook is not None:
            fill = []
            extra = tail_hook(fill)
        mx = [f'v_max3_u32 v{VMAX}, v{VMAX}, v{st+2*i}, v{st+2*i+1}' for i in range(8)]
        n = 0
        for mu in range(4):
            for nu in range(4):
                w = (k * 4 + mu) * 4
                x = st + 4 * nu
                if w_is_a:
                    acc = ACC + (mu * 4 + nu) * 4
                    A, B = f'a[{w}:{w+3}]', f'v[{x}:{x+3}]'
                else:
                    acc = ACC + (nu * 4 + mu) * 4
                    A, B = f'v[{x}:{x+3}]', f'a[{w}:{w+3}]'
                cc = '0' if k == 0 else f'v[{acc}:{acc+3}]'
                a.e(f'v_mfma_f32_16x16x32_bf16 v[{acc}:{acc+3}], {A}, {B}, {cc}')
                for _ in range(2):
                    if fill:
                        a.e(fill.pop(0))
                if not fill and mx and n >= 4:
                    a.e(mx.pop(0))
                n += 1
        assert not fill and not mx


def capture(fn):
    p = Prog()
    fn(p)
    return [it.text for it in p.items]


STUBS = []


def mfma_line(k, mu, nu, gid):
    st = XS + 16 * (k % NS)
    w = (k * 4 + mu) * 4
    x = st + 4 * nu
    if gid == 1:
        acc = ACC + (mu * 4 + nu) * 4
        A, B = f'a[{w}:{w+3}]', f'v[{x}:{x+3}]'
    else:
        acc = ACC + (nu * 4 + mu) * 4
        A, B = f'v[{x}:{x+3}]', f'a[{w}:{w+3}]'
    cc = '0' if k == 0 else f'v[{acc}:{acc+3}]'
    return f'v_mfma_f32_16x16x32_bf16 v[{acc}:{acc+3}], {A}, {B}, {cc}'


def poison_check(k):
    st = XS + 16 * (k % NS)
    out = [f'v_max3_u32 v{VMAX}, v{st}, v{st+1}, v{st+2}']
    for i in range(6):
        out.append(f'v_max3_u32 v{VMAX}, v{VMAX}, v{st+3+2*i}, v{st+4+2*i}')
    out.append(f'v_max_u32 v{VMAX}, v{VMAX}, v{st+15}')
    out.append(f'v_cmp_eq_u32 vcc, -1, v{VMAX}')
    return out


def gemm_checked(a, nk, gid, sb, tail_hook=None, side=None, issued=False):
    nfl = OPT['nfl']

    def slow(k):
        ls, lb, lp = a.lab('slow'), a.lab('back'), a.lab('sloop')

        def emit():
            a.e(f'{ls}:')
            a.e(f's_mov_b32 s{S_SPIN}, 0')
            a.e(f'{lp}:')
            for x in gemm_xloads(a, k, gid):
                a.e(x)
            a.e('s_waitcnt vmcnt(0)')
            for x in poison_check(k):
                a.e(x)
            ldone = a.lab('sdone')
            a.e(f's_cbranch_vccz {ldone}')
            spin_tail(a, lp)
            a.e(f'{ldone}:')
            if k == 0:
                for x in xseq(a, 2, x_ahead() + 2, nk, gid):
                    a.e(x)
            a.e(f's_branch {lb}')
        STUBS.append(emit)
        return ls, lb

    ah = x_ahead()
    if not issued:
        for x in xseq(a, 0, ah, nk, gid):
            a.e(x)
    a.e(f's_waitcnt vmcnt({2*(ah-2)})')
    for x in xseq(a, ah, ah + 2, nk, gid):
        a.e(x)
    for x in poison_check(0):
        a.e(x)
    ls, lb = slow(0)
    a.e(f's_cbranch_vccnz {ls}')
    a.e(f'{lb}:')
    stamp(a, sb)
    extra = 0
    for k in range(nk):
        lines = [mfma_line(k, mu, nu, gid) for mu in range(4) for nu in range(4)]
        for i in range(8):
            a.e(lines[i])
        if k + 1 < nk:
            kn = k + 1
            issued_h = min(ah + 2 * kn, 2 * nk)
            a.e(f's_waitcnt vmcnt({2*(issued_h - 2*kn - 2) + extra})')
            if OPT['stamps'] and kn in (4, 8, 12):
                stamp(a, (44 if gid == 1 else 51) + (0, 4, 8, 12).index(kn))
            fill = xseq(a, issued_h, issued_h + 2, nk, gid)
            if kn + nfl == nk and tail_hook is not None:
                assert issued_h + 2 >= 2 * nk
                extra = tail_hook(fill)
            if side is not None:
                lines_, nvm = side(kn)
                fill += lines_
                extra += nvm
            fill += poison_check(kn)
        else:
            fill = []
        per = -(-len(fill) // 8)
        for i in range(8, 16):
            a.e(lines[i])
            for _ in range(per):
                if fill:
                    a.e(fill.pop(0))
        assert not fill
        if k + 1 < nk:
            ls, lb = slow(k + 1)
            a.e(f's_cbranch_vccnz {ls}')
            a.e(f'{lb}:')


def sentinel(a, ws_off, kblocks):
    lp, ld = a.lab('spoll'), a.lab('sdone')
    a.e(f's_mul_i32 s66, s{S_W}, {kblocks*7168}')
    a.e(f's_mul_i32 s67, s{S_J}, 896')
    a.e('s_add_u32 s66, s66, s67')
    a.e(f's_add_u32 s66, s66, {ws_off + 55*16 + 12}')
    a.e('v_mul_u32_u24 v4, 7168, v1')
    a.e('v_add_u32 v4, s66, v4')
    if kblocks < 64:
        mask_lanes(a, 4, kblocks, 5)
    a.e(f's_mov_b32 s{S_SPIN}, 0')
    a.e(f'{lp}:')
    a.e(f'buffer_load_dword v5, v4, {WSR}, 0 offen sc1')
    a.e('s_waitcnt vmcnt(0)')
    a.e('v_cmp_eq_u32 vcc, -1, v5')
    a.e(f's_cbranch_vccz {ld}')
    spin_tail(a, lp)
    a.e(f'{ld}:')


def gemm_first_loads(a, ws_off, kblocks, gid):
    gemm_xaddr(a, ws_off, kblocks)
    for x in xseq(a, 0, x_ahead(), 16 if gid == 1 else 14, gid):
        a.e(x)
    return 2 * x_ahead()


def gemm_poll_main(a, ws_off, kblocks, nk, gid, sb, tail_hook=None, side=None, issued=False):
    lr, lok = a.lab('gretry'), a.lab('gok')
    if not issued:
        gemm_xaddr(a, ws_off, kblocks)
    if OPT['stchk']:
        gemm_checked(a, nk, gid, sb, tail_hook, side, issued)
        return
    a.e(f's_mov_b32 s{S_RETRY}, 0')
    a.e(f'{lr}:')
    sentinel(a, ws_off, kblocks)
    stamp(a, sb)
    for k in range(OPT['nfl']):
        for x in gemm_xloads(a, k, gid):
            a.e(x)
    gemm_main(a, nk, gid, tail_hook)
    a.e(f'v_cmp_eq_u32 vcc, -1, v{VMAX}')
    a.e(f's_cbranch_vccz {lok}')
    a.e(f's_add_u32 s{S_RETRY}, s{S_RETRY}, 1')
    a.e(f's_cmp_lt_u32 s{S_RETRY}, {RETRY_MAX}')
    a.e(f's_cbranch_scc1 {lr}')
    a.e(f'{lok}:')


def write_partials(a):
    if OPT['hoist']:
        va = 241
    else:
        va = 4
        a.e('v_and_b32 v4, 15, v1')
        a.e(f'v_mul_u32_u24 v4, {PROW}, v4')
        a.e('v_lshrrev_b32 v5, 4, v1')
        a.e('v_lshl_add_u32 v4, v5, 4, v4')
        a.e(f's_mul_i32 s66, s{S_W}, {PARTW}')
        a.e(f's_add_u32 s66, s66, {L_PART}')
        a.e('v_add_u32 v4, s66, v4')
    if not OPT['prebar']:
        a.e('s_barrier')
    for mt in range(4):
        for nt in range(4):
            acc = ACC + (mt * 4 + nt) * 4
            a.e(f'ds_write_b128 v{va}, v[{acc}:{acc+3}] offset:{nt*16*PROW + mt*64}')


def sum_partials(a, P):
    for h in range(4):
        a.e(f'v_pk_add_f32 v[{P+2*h}:{P+2*h+1}], v[{P+2*h}:{P+2*h+1}], v[{P+8+2*h}:{P+9+2*h}]')
        a.e(f'v_pk_add_f32 v[{P+16+2*h}:{P+17+2*h}], v[{P+16+2*h}:{P+17+2*h}], v[{P+24+2*h}:{P+25+2*h}]')
    for h in range(4):
        a.e(f'v_pk_add_f32 v[{P+2*h}:{P+2*h+1}], v[{P+2*h}:{P+2*h+1}], v[{P+16+2*h}:{P+17+2*h}]')


def b1_load(a):
    a.e(f's_lshl_b32 s67, s{S_I1}, 7')
    a.e(f's_lshl_b32 s70, s{S_W}, 5')
    a.e('s_add_u32 s67, s67, s70')
    a.e(f's_load_dwordx8 s[72:79], s[{P_B1}:{P_B1+1}], s67')


def gemm1_epilogue(a, d0=(), d1=()):
    write_partials(a)
    if OPT['hoist']:
        VR1, VG1 = 242, 240
    else:
        VR1, VG1 = 4, 5
        a.e(f'v_mul_u32_u24 v4, {PROW}, v1')
        a.e(f's_lshl_b32 s66, s{S_W}, 6')
        a.e(f's_add_u32 s66, s66, {L_PART}')
        a.e('v_add_u32 v4, s66, v4')
        g_store_addr(a, 5)
    C1 = 0.044715
    C2 = -2.0 * 0.7978845608028654 * 1.4426950408889634
    a.e(f'v_mov_b32 v100, {fx(C1*C2)}')
    a.e(f'v_mov_b32 v101, {fx(C1*C2)}')
    a.e(f'v_mov_b32 v102, {fx(C2)}')
    a.e(f'v_mov_b32 v103, {fx(C2)}')
    a.e('s_waitcnt lgkmcnt(0)')
    a.e('s_barrier')
    stamp(a, 24)
    for r in range(2):
        P = 16 + 32 * r
        for wv in range(4):
            a.e(f'ds_read_b128 v[{P+8*wv}:{P+8*wv+3}], v{VR1} offset:{wv*PARTW + r*32}')
            a.e(f'ds_read_b128 v[{P+8*wv+4}:{P+8*wv+7}], v{VR1} offset:{wv*PARTW + r*32 + 16}')
    for i in range(8):
        a.e(f's_lshl_b32 s{80+2*i}, s{72+i}, 16')
        a.e(f's_and_b32 s{81+2*i}, s{72+i}, 0xffff0000')
    for r in range(2):
        P = 16 + 32 * r
        T = 80
        a.e(f's_waitcnt lgkmcnt({8 if r == 0 else 0})')
        if r == 1 and d1:
            a.e('s_barrier')
        dd = d0 if r == 0 else d1
        if dd:
            a.inject(dd, max(1, 80 // len(dd)))
        sum_partials(a, P)
        round_pairs(a, P, T, 8)
        for h in range(4):
            a.e(f'v_pk_add_f32 v[{P+2*h}:{P+2*h+1}], v[{P+2*h}:{P+2*h+1}], s[{80+8*r+2*h}:{81+8*r+2*h}]')
        round_pairs(a, P, T, 8)
        for h in range(4):
            a.e(f'v_pk_mul_f32 v[{P+8+2*h}:{P+9+2*h}], v[{P+2*h}:{P+2*h+1}], v[{P+2*h}:{P+2*h+1}]')
        for h in range(4):
            a.e(f'v_pk_fma_f32 v[{P+8+2*h}:{P+9+2*h}], v[{P+8+2*h}:{P+9+2*h}], v[100:101], v[102:103]')
        for h in range(4):
            a.e(f'v_pk_mul_f32 v[{P+8+2*h}:{P+9+2*h}], v[{P+8+2*h}:{P+9+2*h}], v[{P+2*h}:{P+2*h+1}]')
        for i in range(8):
            a.e(f'v_exp_f32 v{P+8+i}, v{P+8+i}')
        for h in range(4):
            a.e(f'v_pk_add_f32 v[{P+8+2*h}:{P+9+2*h}], v[{P+8+2*h}:{P+9+2*h}], 1.0 op_sel_hi:[1,0]')
        for i in range(8):
            a.e(f'v_rcp_f32 v{P+8+i}, v{P+8+i}')
        for h in range(4):
            a.e(f'v_pk_mul_f32 v[{P+2*h}:{P+2*h+1}], v[{P+2*h}:{P+2*h+1}], v[{P+8+2*h}:{P+9+2*h}]')
        O = 88 + 4 * r
        for h in range(4):
            a.e(f'v_cvt_pk_bf16_f32 v{O+h}, v{P+2*h}, v{P+2*h+1}')
        a.inj_flush()
        if r == 1:
            a.e(f'v_add_u32 v{VG1}, 7168, v{VG1}')
        a.e(f'buffer_store_dwordx4 v[{O}:{O+3}], v{VG1}, {WSR}, 0 offen sc1')


V_OUT, V_HAD, V_B2 = 210, 211, 212
V_HR = 196


def gemm2_addr(a):
    srd(a, S_T2, P_OUT, XBYTES)
    srd(a, S_T3, P_B2, L * 2)
    a.e('v_lshrrev_b32 v4, 3, v1')
    a.e('v_and_b32 v5, 7, v1')
    a.e(f's_lshl_b32 s66, s{S_W}, 4')
    a.e('v_add_u32 v4, s66, v4')
    a.e(f's_lshl_b32 s67, s{S_I2}, 6')
    a.e('v_add_u32 v7, s67, v4')
    a.e(f'v_mul_u32_u24 v{V_OUT}, 896, v7')
    a.e(f'v_lshl_add_u32 v{V_OUT}, v5, 4, v{V_OUT}')
    a.e(f's_mul_i32 s70, s{S_J}, 112')
    a.e(f'v_add_u32 v{V_OUT}, s70, v{V_OUT}')
    a.e(f'v_mov_b32 v6, {OOB}')
    a.e('v_cmp_gt_u32 vcc, 7, v5')
    a.e(f'v_cndmask_b32 v{V_OUT}, v6, v{V_OUT}, vcc')
    a.e(f'v_add_u32 v{V_HAD}, {WS_H}, v{V_OUT}')
    a.e(f'v_lshlrev_b32 v{V_B2}, 1, v7')


def gemm2_tail_loads(fill):
    fill.append(f'buffer_load_dwordx4 v[{V_HR}:{V_HR+3}], v{V_HAD}, {WSR}, 0 offen sc1')
    fill.append(f's_mov_b32 s70, {8*896}')
    fill.append(f'buffer_load_dwordx4 v[{V_HR+4}:{V_HR+7}], v{V_HAD}, {WSR}, s70 offen sc1')
    fill.append(f'buffer_load_ushort v{V_HR+8}, v{V_B2}, s[{S_T3}:{S_T3+3}], 0 offen')
    fill.append(f'buffer_load_ushort v{V_HR+9}, v{V_B2}, s[{S_T3}:{S_T3+3}], 0 offen offset:16')
    return 4


def gemm2_epilogue(a):
    write_partials(a)
    if OPT['hoist']:
        VR2 = 243
    else:
        VR2 = 6
        a.e('v_lshrrev_b32 v4, 3, v1')
        a.e('v_and_b32 v5, 7, v1')
        a.e(f's_lshl_b32 s66, s{S_W}, 4')
        a.e('v_add_u32 v4, s66, v4')
        a.e(f'v_mul_u32_u24 v6, {PROW}, v4')
        a.e('v_lshl_add_u32 v6, v5, 4, v6')
        a.e(f'v_add_u32 v6, {L_PART}, v6')
    a.e('s_waitcnt lgkmcnt(0)')
    a.e('s_barrier')
    stamp(a, 33)
    for r in range(2):
        P = 16 + 32 * r
        for wv in range(4):
            a.e(f'ds_read_b128 v[{P+8*wv}:{P+8*wv+3}], v{VR2} offset:{wv*PARTW + r*8*PROW}')
            a.e(f'ds_read_b128 v[{P+8*wv+4}:{P+8*wv+7}], v{VR2} offset:{wv*PARTW + r*8*PROW + 112}')
    a.e('s_waitcnt vmcnt(0)')
    for r in range(2):
        P = 16 + 32 * r
        T = 80
        H = V_HR + 4 * r
        a.e(f'v_lshlrev_b32 v106, 16, v{V_HR+8+r}')
        for i in range(4):
            a.e(f'v_lshlrev_b32 v{96+i}, 16, v{H+i}')
            a.e(f'v_and_b32 v{100+i}, 0xffff0000, v{H+i}')
        a.e(f's_waitcnt lgkmcnt({8 if r == 0 else 0})')
        sum_partials(a, P)
        round_pairs(a, P, T, 8)
        for h in range(4):
            a.e(f'v_pk_add_f32 v[{P+2*h}:{P+2*h+1}], v[{P+2*h}:{P+2*h+1}], v[106:107] op_sel:[0,0] op_sel_hi:[1,0]')
        round_pairs(a, P, T, 8)
        for h in range(4):
            a.e(f'v_pk_add_f32 v[{P+2*h}:{P+2*h+1}], v[{P+2*h}:{P+2*h+1}], v[{96+2*h}:{97+2*h}]')
        O = 88 + 4 * r
        for i in range(4):
            a.e(f'v_cvt_pk_bf16_f32 v{O+i}, v{P+i}, v{P+4+i}')
        if r == 1:
            a.e(f'v_add_u32 v{V_OUT}, {8*896}, v{V_OUT}')
        a.e(f'buffer_store_dwordx4 v[{O}:{O+3}], v{V_OUT}, s[{S_T2}:{S_T2+3}], 0 offen' + ['', ' sc1', ' nt', ' sc0 sc1', ' sc1 nt'][OPT['outsc']])


HEADER = """;
"""


def build():
    a = Prog()
    name = NAME + '_kernel'
    lend = a.lab('end')
    a.raw(f'.globl {name}')
    a.raw('.p2align 8')
    a.raw(f'.type {name},@function')
    a.raw(f'{name}:')
    prologue(a, lend)
    lnc1, lnc2, lnc3, lnc5, lnc6 = [a.lab('noconv') for _ in range(5)]

    def skip_if_helper(l):
        a.e(f's_cmp_ge_u32 s{S_LOC}, 28')
        a.e(f's_cbranch_scc1 {l}')

    load_xrows(a)
    ncp = 0
    if OPT['cpf'] & 2:
        code_prefetch1(a, name, 'kcode_end')
        ncp = 1
    a.e(f's_add_u32 s66, s{P_WS}, {WS_EPOCH}')
    a.e(f's_addc_u32 s67, s{P_WS+1}, 0')
    a.e('s_load_dword s99, s[66:67], 0')
    poison_regs(a)
    skip_if_helper(lnc1)
    nt = 0
    if not OPT['plate']:
        kgen_loads(a)
        load_gather_table(a, 'ktab_idx')
        w_setup(a)
        if OPT['tlb'] & 2:
            nt = tlb_touch(a)
        flag_addr(a)
        if OPT['hoist']:
            hoist_common(a)
            hoist_conv(a)
        a.e('s_waitcnt lgkmcnt(0)')
        a.e(f's_add_u32 s{S_TAG}, s99, 0x9e3779b9')
        a.e(f's_waitcnt vmcnt({10 + nt + ncp})')
        stamp(a, 2)
        clear_hh(a)
        clear_aout(a)
    else:
        kgen_loads(a, 'setup')
        w_setup(a)
        flag_addr(a)
        a.e(f's_waitcnt vmcnt({ncp})')
        stamp(a, 2)
        kgen_loads(a, 'issue')
        clear_hh(a)
        clear_aout(a)
        load_gather_table(a, 'ktab_idx')
        if OPT['tlb'] & 2:
            nt = tlb_touch(a)
        a.e('s_waitcnt lgkmcnt(0)')
        a.e(f's_add_u32 s{S_TAG}, s99, 0x9e3779b9')
    ln_stats(a, list(range(8, 16)), 16, L_RED0, 5)
    stamp(a, 3)
    publish_xn(a)
    nb0 = OPT['wb0']
    if OPT['sched'] == 2:
        qa, qb = OPT['qa'], OPT['qb']
        qpf_load(a, qa)
        stamp(a, 4)
        a.e(f's_waitcnt vmcnt({8 + nt + qa})')
        kgen_channel(a, 0, DK0)
        for k in range(nb0):
            w_dma(a, 1, k, BS[k])
        stamp(a, 40)
        kgen_channel(a, 1, DK1, mid=lambda: publish_flag(a, qa + 4 * nb0), mid_m0=False)
        stamp(a, 5)
        qpf_load(a, qb)
        a.e(f's_waitcnt vmcnt({qb})')
        for k in range(nb0):
            w_tr(a, k, BS[k])
        ktab_part1(a)
        stamp(a, 6)
        flag_load(a)
        ktab_part2(a)
        stamp(a, 7)
        a.e(f's_mov_b32 s{S_EARLY}, 0')
        lne = a.lab('notearly')
        a.e('s_waitcnt vmcnt(0)')
        a.e(f'v_cmp_ne_u32 vcc, s{S_TAG}, v{V_FV}')
        a.e(f's_cbranch_vccnz {lne}')
        load_u(a)
        a.e(f's_mov_b32 s{S_EARLY}, 1')
        a.e(f'{lne}:')
        conv_addr(a)
        kcopies(a)
        stamp(a, 8)
        lhave = a.lab('haveu')
        a.e(f's_cmp_lg_u32 s{S_EARLY}, 0')
        a.e(f's_cbranch_scc1 {lhave}')
        flag_poll(a)
        load_u(a)
        a.e(f'{lhave}:')
        stamp(a, 9)
        store_u(a, 0)
    elif OPT['sched'] == 3:
        nq = (448 - OPT['hR']) // 32
        ne = 0
        if OPT['cearly']:
            assert OPT['regc']
            for k in range(2):
                w_dma(a, 1, k, f'C{k}')
            q4 = min(OPT['q4'], nq)
            qpf_load(a, q4)
            ne = 8 + q4
            nq -= q4
        stamp(a, 4)
        a.e(f's_waitcnt vmcnt({8 + nt + ne})')
        m0 = kgen_channel(a, 0, DK0, defer=bool(OPT['kdefer']))
        if not OPT['flagmid']:
            publish_flag(a, ne)
        if OPT['regc']:
            nb0 = 2
            if not OPT['cearly']:
                for k in range(2):
                    w_dma(a, 1, k, f'C{k}')
        else:
            for k in range(nb0):
                w_dma(a, 1, k, BS[k])
        if OPT['cearly']:
            qpf_load(a, nq)
            nq = 0
        stamp(a, 40)
        if OPT['flagmid']:
            assert OPT['regc'] and not OPT['cearly']
            kgen_channel(a, 1, DK1, mid=lambda: publish_flag(a, 8), mid_m0=False)
        else:
            kgen_channel(a, 1, DK1, after_setup=m0)
        stamp(a, 5)
        flag_load(a)
        qpf_load(a, nq)
        if not OPT['regc']:
            a.e(f's_waitcnt vmcnt({nq + 1})')
            for k in range(nb0):
                w_tr(a, k, BS[k])
        ktab_part1(a)
        stamp(a, 6)
        a.e(f's_mov_b32 s{S_EARLY}, 0')
        lne = a.lab('notearly')
        a.e(f's_waitcnt vmcnt({nq})')
        a.e(f'v_cmp_ne_u32 vcc, s{S_TAG}, v{V_FV}')

        def early_u():
            a.e(f's_cbranch_vccnz {lne}')
            load_u(a)
            a.e(f's_mov_b32 s{S_EARLY}, 1')
            a.e(f'{lne}:')
        if OPT['uov']:
            assert OPT['hoist']
            ktab_part2(a, mid=early_u)
        else:
            early_u()
            ktab_part2(a)
        stamp(a, 7)
        if not OPT['hoist']:
            conv_addr(a)
        kcopies(a)
        stamp(a, 8)
        lhave = a.lab('haveu')
        a.e(f's_cmp_lg_u32 s{S_EARLY}, 0')
        a.e(f's_cbranch_scc1 {lhave}')
        flag_poll(a)
        load_u(a)
        a.e(f'{lhave}:')
        stamp(a, 9)
        store_u(a, 0)
    else:
        stamp(a, 4)
        a.e(f's_waitcnt vmcnt({8 + nt})')
        kgen_channel(a, 0, DK0)
        publish_flag(a)
        for k in range(min(nb0, 3)):
            w_dma(a, 1, k, BS[k])
        stamp(a, 40)
        kgen_channel(a, 1, DK1, mid=(lambda: [w_dma(a, 1, k, BS[k]) for k in range(3, nb0)]) if nb0 > 3 else None)
        stamp(a, 5)
        if OPT['early']:
            flag_load(a)
            a.e('s_waitcnt vmcnt(1)')
        else:
            a.e('s_waitcnt vmcnt(0)')
        for k in range(nb0):
            w_tr(a, k, BS[k])
        ktab_part1(a)
        stamp(a, 6)
        a.e(f's_mov_b32 s{S_EARLY}, 0')
        lne = a.lab('notearly')
        if OPT['early']:
            a.e('s_waitcnt vmcnt(0)')
            a.e(f'v_cmp_ne_u32 vcc, s{S_TAG}, v{V_FV}')
            a.e(f's_cbranch_vccnz {lne}')
            load_u(a)
            a.e(f's_mov_b32 s{S_EARLY}, 1')
            a.e(f'{lne}:')
        qpf_load(a, OPT['w2pf_a'])
        ktab_part2(a)
        stamp(a, 7)
        if not OPT['hoist']:
            conv_addr(a)
        kcopies(a)
        stamp(a, 8)
        lhave = a.lab('haveu')
        a.e(f's_cmp_lg_u32 s{S_EARLY}, 0')
        a.e(f's_cbranch_scc1 {lhave}')
        flag_poll(a)
        load_u(a)
        a.e('s_waitcnt vmcnt(0)')
        a.e(f'{lhave}:')
        stamp(a, 9)
        store_u(a, OPT['w2pf_a'])
    epoch_update(a)
    clear_g(a)
    if OPT['sched'] == 1:
        qpf_load(a, OPT['w2pf_b'])
    stamp(a, 10)
    hk = []
    cre = OPT['cre'] and OPT['regc']
    if cre:
        for k in range(2):
            w_tr(a, k, f'C{k}')
        for k, sl in enumerate(AS + ['C0', 'C1']):
            for i in range(4):
                hk.append(lambda k=k, sl=sl, i=i: w_dma1(a, 1, 2 + k, sl, i))
                if i % 2 == 1:
                    hk.append(lambda: None)
    else:
        for k in range(4):
            for i in range(4):
                hk.append(lambda k=k, i=i: w_dma1(a, 1, nb0 + k, AS[k], i))
                hk.append(lambda: None)
    if OPT['nohk']:
        hk = []
    elif OPT['hkpos'] == 1:
        hk = [h for i, h in enumerate(hk) if i % 2 == 0]
    elif OPT['hkpos'] == 2:
        hk = [lambda: None] * 18 + [h for i, h in enumerate(hk) if i % 2 == 0]
    ndma = 0 if OPT['nohk'] else (24 if cre else 16)
    if OPT['cvvm']:
        phase_conv(a, hk, ndma)
        stamp(a, 12)
        a.e('s_waitcnt vmcnt(2)')
    else:
        phase_conv(a, hk, 0)
        stamp(a, 12)
    if cre:
        for k, sl in enumerate(AS + ['C0', 'C1']):
            w_tr(a, 2 + k, sl)
        nb0 = 4
    else:
        if OPT['regc']:
            for k in range(2):
                w_tr(a, k, f'C{k}')
        for k in range(4):
            w_tr(a, nb0 + k, AS[k])
    a.e('s_waitcnt lgkmcnt(0)')
    a.e('s_barrier')
    rest = list(range(nb0 + 4, 16))
    last = None
    if len(rest) > 9:
        last = rest.pop()
    rest_slots = (BS + AS)[:len(rest)]
    p4d = []
    if OPT['p4dma']:
        assert OPT['hpriv']
        p4d = [lambda k=k, sl=sl, i=i: w_dma1(a, 1, k, sl, i) for k, sl in zip(rest, rest_slots) for i in range(4)]
    elif OPT['h2e']:
        lh2p, lh2d = a.lab('h2poll0'), a.lab('h2done')
        p4_pre(a)
        n1 = OPT['h2n']
        for k, sl in list(zip(rest, rest_slots))[:n1]:
            w_dma(a, 1, k, sl)
        p4_loads(a)
        for k, sl in list(zip(rest, rest_slots))[n1:]:
            w_dma(a, 1, k, sl)
        a.e(f's_waitcnt vmcnt({4 * (len(rest) - n1)})')
        p4_check(a)
        stamp(a, 13)
        a.e(f's_cbranch_vccz {lh2d}')
        a.e(f's_branch {lh2p}')
    else:
        for k, sl in zip(rest, rest_slots):
            w_dma(a, 1, k, sl)
    if not (OPT['h2e'] and not OPT['p4dma']):
        stamp(a, 13)
        a.e(f's_branch {lnc2}')
    a.e(f'{lnc1}:')
    nh = 0
    if OPT['cpf'] & 1:
        code_prefetch(a, name, 'kcode_end')
        nh += 3
    w_setup(a)
    if OPT['tlb'] & 1:
        nh += tlb_touch(a)
    flag_addr(a)
    if OPT['hoist']:
        hoist_common(a)
    a.e('s_waitcnt lgkmcnt(0)')
    a.e(f's_add_u32 s{S_TAG}, s99, 0x9e3779b9')
    a.e(f's_waitcnt vmcnt({nh + ncp})')
    clear_hh(a)
    ln_stats(a, list(range(8, 16)), 16, L_RED0, 5)
    publish_xn(a)
    publish_flag(a)
    if OPT['sched'] == 3 and OPT['hsplit']:
        qpf_load(a, (448 - OPT['hR']) // 32)

        def hcheck():
            lok = a.lab('hflags')
            a.e(f'v_cmp_ne_u32 vcc, s{S_TAG}, v{V_FV}')
            a.e(f's_cbranch_vccz {lok}')
            flag_poll(a)
            a.e(f'{lok}:')
            a.e('s_barrier')
        helper_w2(a, OPT['hR'], mid=(OPT['hn1'], lambda: flag_load(a), hcheck))
        stamp(a, 41)
    else:
        if OPT['sched'] == 3:
            qpf_load(a, (448 - OPT['hR']) // 32)
            helper_w2(a, OPT['hR'])
        else:
            qpf_load(a, 14)
        stamp(a, 41)
        flag_poll(a)
        a.e('s_barrier')
    if p4d:
        a.e(f's_mov_b32 s{S_W1+2}, 0')
    stamp(a, 42)
    if OPT['h2e'] and not OPT['p4dma']:
        p4_pre(a)
        phase_p4(a, p4d, pre_done=(lh2p, lh2d))
    else:
        a.e(f'{lnc2}:')
        phase_p4(a, p4d)
    stamp(a, 20)
    gemm2_addr(a)
    skip_if_helper(lnc3)
    b1_load(a)
    if p4d:
        a.e('s_waitcnt vmcnt(2)')
    for k, sl in zip(rest, rest_slots):
        w_tr(a, k, sl)
    a.e('s_waitcnt lgkmcnt(0)')
    if last is not None:
        w_dma(a, 1, last, 'A0')
    for k in range(5):
        w_dma(a, 2, k, BS[k])
    nx1 = gemm_first_loads(a, WS_HH, 64, 1) if OPT['xe1'] else 0
    if last is not None:
        a.e(f's_waitcnt vmcnt({20 + nx1})')
        w_tr(a, last, 'A0')
        a.e('s_waitcnt lgkmcnt(0)')
    if OPT['prebar']:
        a.e('s_barrier')
    stamp(a, 21)
    w2sh = OPT['w2sh'] and OPT['stchk'] and OPT['h4early']

    def side1(kn):
        if 6 <= kn <= 10:
            return capture(lambda p: w_tr(p, kn - 6, BS[kn - 6])), 0
        if 13 <= kn <= 15:
            pre = ['s_waitcnt lgkmcnt(0)'] if kn == 13 else []
            return pre + capture(lambda p: w_dma(p, 2, kn - 8, BS[kn - 13])), 4
        return [], 0

    gemm_poll_main(a, WS_HH, 64, 16, 1, 22, side=side1 if w2sh else None, issued=bool(OPT['xe1']))
    stamp(a, 23)
    if OPT['h4early']:
        if not w2sh:
            for k in range(5):
                w_tr(a, k, BS[k])
            a.e('s_waitcnt lgkmcnt(0)')
            for k in range(5, 5 + OPT['npre']):
                w_dma(a, 2, k, BS[k - 5])
        if OPT['e1dma']:
            d0 = [lambda k=k, i=i: w_dma1(a, 2, k, BS[k - 5], i) for k in range(8, 10) for i in range(4)]
            d1 = [lambda k=k, i=i: w_dma1(a, 2, k, AS[k - 10], i) for k in range(10, 14) for i in range(4)]
            gemm1_epilogue(a, d0, d1)
            stamp(a, 25)
            w1, w2, w3 = 26, 18, 1
        else:
            gemm1_epilogue(a)
            stamp(a, 25)
            npre = 3 if w2sh else OPT['npre']
            for k in range(5 + npre, 10):
                w_dma(a, 2, k, BS[k - 5])
            a.e('s_barrier')
            for k in range(10, 14):
                w_dma(a, 2, k, AS[k - 10])
            w1, w2, w3 = 24 + (0 if npre < 3 else 0), 16, 0
            w1 = 26 if npre == 3 else 24
        if OPT['xe2']:
            nx2 = gemm_first_loads(a, WS_G, 56, 2)
            w1, w2, w3 = w1 + nx2, w2 + nx2, w3 + nx2
        a.e(f's_waitcnt vmcnt({w1})')
        for k in range(5, 8):
            w_tr(a, k, BS[k - 5])
        a.e(f's_waitcnt vmcnt({w2})')
        for k in range(8, 10):
            w_tr(a, k, BS[k - 5])
        a.e(f's_waitcnt vmcnt({w3})')
        for k in range(10, 14):
            w_tr(a, k, AS[k - 10])
        a.e('s_waitcnt lgkmcnt(0)')
        a.e(f's_branch {lnc6}')
    else:
        gemm1_epilogue(a)
        stamp(a, 25)
        for k in range(5):
            w_tr(a, k, BS[k])
        a.e('s_waitcnt lgkmcnt(0)')
        a.e('s_barrier')
        a.e(f's_branch {lnc5}')
    a.e(f'{lnc3}:')
    for k in range(5):
        w_dma(a, 2, k, BS[k])
    a.e('s_waitcnt vmcnt(0)')
    for k in range(5):
        w_tr(a, k, BS[k])
    a.e('s_waitcnt lgkmcnt(0)')
    a.e(f'{lnc5}:')
    for k in range(5, 10):
        w_dma(a, 2, k, BS[k - 5])
    for k in range(10, 14):
        w_dma(a, 2, k, AS[k - 10])
    nx2 = gemm_first_loads(a, WS_G, 56, 2) if OPT['xe2'] else 0
    a.e(f's_waitcnt vmcnt({16 + nx2})')
    for k in range(5, 10):
        w_tr(a, k, BS[k - 5])
    a.e(f's_waitcnt vmcnt({nx2})')
    for k in range(10, 14):
        w_tr(a, k, AS[k - 10])
    a.e('s_waitcnt lgkmcnt(0)')
    a.e(f'{lnc6}:')
    if OPT['prebar']:
        a.e('s_barrier')
    stamp(a, 30)
    gemm_poll_main(a, WS_G, 56, 14, 2, 31, gemm2_tail_loads, issued=bool(OPT['xe2']))
    stamp(a, 32)
    gemm2_epilogue(a)
    stamp_clk(a, 61)
    stamp(a, 63)
    stamp_flush(a)
    a.e(f'{lend}:')
    a.e('s_endpgm')
    for emit in STUBS:
        emit()
    del STUBS[:]
    a.raw('kcode_end:')
    emit_gather_table(a, 'ktab_idx')
    nn = a.fast_insert_nops()
    head = f'; @launch grid=(256,1,1) block=(256,1,1) lds={LDS_BYTES}\n'
    head += HEADER
    head += '.amdgcn_target "amdgcn-amd-amdhsa--gfx950"\n.text\n'
    tail = '.section .rodata,"a"\n.p2align 6\n' + descriptor(name)
    if OPT['align']:
        nal = a.align8(head, tail)
        sys.stderr.write(f'alignment: {nal}\n')
    sys.stderr.write(f'instructions: {a.count()}, nops inserted: {nn}\n')
    return head + a.text() + tail


if __name__ == '__main__':
    out = sys.argv[1]
    for arg in sys.argv[2:]:
        if arg == 'stamps':
            OPT['stamps'] = True
        elif arg == 'dbg':
            OPT['stamps'] = True
            OPT['dbgsel'] = [0, 1, 2, 4, 8, 9, 12, 13, 14, 20, 21, 23, 25, 30, 32, 63]
        elif '=' in arg:
            k, v = arg.split('=')
            OPT[k] = int(v)
    open(out, 'w').write(build())
```

```python
import sys
import gen
from gen import (Prog, NAME, L, D, F, XBYTES, PBYTES, W1BYTES, W2BYTES, OOB, fx, srd, reduce16, cmul, exp_bf16,
                 gather_table, emit_gather_table, descriptor, round_pairs, norm_tok, bcast_stats)

OPT = dict(gap=1, hf=0, nohw=0, h2e=0, h2n=5, xe1=1, xe2=1, cvvm=1, cvbar=1, prebar=1, lastw=1, slp=0, hn1=11, hsplit=0, hoist=0, cre=0, uov=0, tlbout=0, kdefer=1, flagmid=0, npre=3, nohk=0, hkpos=0, w2sh=1, stchk=1, p4dma=0, p4ev=6, e1dma=0, plate=0, cearly=0, q4=4, hpriv=1, regc=1, hR=320, c4=1, kgrp=3, tlbg=21, cpf=1, sched=3, qa=7, qb=7, tlb=3, outsc=0, x3oob=1, h4early=1, wb0=3, xnb=1, stamps=False, dbgsel=None, w2pf_a=10, w2pf_b=4, nfl=3, early=True, align=True, hlds=True)

WS_FLAG = 0x4000
WS_EPOCH = 0x9000
WS_AOUT = 0x10000
AST = 8448
WS_H = 0x200000
WS_HH = 0x400000
WS_G = 0x600000
WS_DBG = 0x800000
WS_XN = 0xA00000
XCS = 4352
XPS = 2 * XCS
WS_USED = 0x1000000

L_RED0, L_RED1, L_SIG, L_KT = 0, 256, 512, 640
KTCH = 1600
L_U = L_KT + 2 * KTCH
UCH = 4608
L_SCR = L_U + 2 * UCH
SROW = 272
YROW = 41
SCRW = 57 * SROW
L_KC = 82688
KCOPY = 4160
KCH = 8 * KCOPY
L_CP = L_KC
LDS_BYTES = 160 * 1024
L_WA, L_WB = 13056, 78592
L_WC = 123904
L_PART = 1024
PROW = 272
PARTW = 64 * PROW
L_HT = 1024

S_WS, S_X = 4, 8
S_T0, S_T1, S_T2, S_T3 = 12, 16, 20, 24
S_W1, S_W2 = 12, 16
S_W, S_XCD, S_LOC, S_B, S_P, S_J, S_I1, S_I2 = 28, 29, 30, 31, 32, 33, 34, 35
P_X, P_LAR, P_AI, P_CR, P_CI, P_LDT, P_DSK = 36, 38, 40, 42, 44, 46, 48
P_W1, P_B1, P_W2, P_B2, P_OUT, P_DBG, P_WS = 52, 54, 56, 58, 60, 62, 64
S_SA, S_SB = 50, 51
S_RW1, S_RX1, S_RW2, S_RX2 = 38, 39, 40, 41
S_QPF = 42
S_EARLY = 43
S_SC = 44
V_TC = 236
S_TAG, S_SPIN, S_RETRY = 96, 97, 98
V_D1, V_D2, V_TA, V_TB = 224, 228, 244, 248
V_QPF = 232
SPIN_MAX, RETRY_MAX = 4000, 20
AS = ['A0', 'A1', 'A2', 'A3']
BS = ['B0', 'B1', 'B2', 'B3', 'B4']
WSR = f's[{S_WS}:{S_WS+3}]'

assert (gen.S_W, gen.S_B, gen.S_WS) == (S_W, S_B, S_WS)


def stamp(a, idx):
    if not OPT['stamps']:
        return
    sel = OPT['dbgsel']
    if sel is not None:
        if idx not in sel:
            return
        idx = sel.index(idx)
    a.e('s_memrealtime s[100:101]')
    a.e('s_waitcnt lgkmcnt(0)')
    a.e(f'v_writelane_b32 v255, s100, {idx}')


def stamp_clk(a, idx):
    if not OPT['stamps'] or OPT['dbgsel'] is not None:
        return
    a.e('s_memtime s[100:101]')
    a.e('s_waitcnt lgkmcnt(0)')
    a.e(f'v_writelane_b32 v255, s100, {idx}')


def stamp_flush(a):
    if not OPT['stamps']:
        return
    l = a.lab('nost')
    a.e(f's_cmp_lg_u32 s{S_W}, 0')
    a.e(f's_cbranch_scc1 {l}')
    if OPT['dbgsel'] is not None:
        a.e('v_not_b32 v253, v255')
        a.e('v_cmp_eq_u32 vcc, 0, v1')
        a.e('v_cndmask_b32 v255, v255, v253, vcc')
        a.e('v_lshlrev_b32 v254, 2, v1')
        a.e('s_mov_b64 exec, 0xffff')
        a.e(f'global_atomic_umax v254, v255, s[{P_DBG}:{P_DBG+1}]')
        a.e('s_mov_b64 exec, -1')
    else:
        a.e('s_lshl_b32 s66, s2, 8')
        a.e(f's_add_u32 s66, s66, {WS_DBG}')
        a.e('v_lshl_add_u32 v254, v1, 2, s66')
        a.e(f'buffer_store_dword v255, v254, {WSR}, 0 offen')
    a.e(f'{l}:')


def spin_tail(a, lp):
    if OPT['slp']:
        a.e(f's_sleep {OPT["slp"]}')
    a.e(f's_add_u32 s{S_SPIN}, s{S_SPIN}, 1')
    a.e(f's_cmp_lt_u32 s{S_SPIN}, {SPIN_MAX}')
    a.e(f's_cbranch_scc1 {lp}')


def mask_lanes(a, v, n, tmp, src='v1'):
    a.e(f'v_mov_b32 v{tmp}, {OOB}')
    a.e(f'v_cmp_gt_u32 vcc, {n}, {src}')
    a.e(f'v_cndmask_b32 v{v}, v{tmp}, v{v}, vcc')


def prologue(a, lend):
    a.e('s_cmp_ge_u32 s2, 256')
    a.e(f's_cbranch_scc1 {lend}')
    if OPT['stamps']:
        a.e('v_mov_b32 v255, 0')
        stamp(a, 0)
        stamp_clk(a, 60)
    a.e('s_load_dwordx16 s[36:51], s[0:1], 0')
    a.e('s_load_dwordx8 s[52:59], s[0:1], 64')
    a.e('s_load_dwordx4 s[60:63], s[0:1], 96')
    a.e('s_load_dwordx2 s[64:65], s[0:1], 112')
    a.e('v_and_b32 v1, 63, v0')
    a.e('v_lshrrev_b32 v2, 6, v0')
    a.e(f's_and_b32 s{S_XCD}, s2, 7')
    a.e(f'v_readfirstlane_b32 s{S_W}, v2')
    a.e(f's_lshr_b32 s{S_LOC}, s2, 3')
    a.e(f's_lshl_b32 s{S_B}, s{S_XCD}, 5')
    a.e(f's_add_u32 s{S_B}, s{S_B}, s{S_LOC}')
    a.e(f's_mul_i32 s{S_P}, s{S_XCD}, 28')
    a.e(f's_add_u32 s{S_P}, s{S_P}, s{S_LOC}')
    a.e(f's_and_b32 s{S_J}, s{S_XCD}, 1')
    a.e(f's_lshl_b32 s{S_J}, s{S_J}, 2')
    a.e(f's_and_b32 s3, s{S_LOC}, 3')
    a.e(f's_add_u32 s{S_J}, s{S_J}, s3')
    a.e(f's_lshr_b32 s3, s{S_XCD}, 1')
    a.e(f's_lshr_b32 s66, s{S_LOC}, 2')
    a.e(f's_mul_i32 s{S_I1}, s3, 7')
    a.e(f's_add_u32 s{S_I1}, s{S_I1}, s66')
    a.e(f's_lshl_b32 s{S_I2}, s3, 3')
    a.e(f's_add_u32 s{S_I2}, s{S_I2}, s66')
    a.e('s_waitcnt lgkmcnt(0)')
    srd(a, S_X, P_X, XBYTES)
    srd(a, S_WS, P_WS, WS_USED)
    stamp(a, 1)


def xrow_addr(a):
    a.e(f's_mul_i32 s66, s{S_W}, 224')
    a.e(f's_mul_i32 s67, s{S_B}, {8*896}')
    a.e('s_add_u32 s66, s66, s67')
    a.e('v_lshl_add_u32 v2, v1, 2, s66')
    mask_lanes(a, 2, 56, 3)
    a.e('v_add_u32 v3, 4480, v2')


def load_xrows(a):
    xrow_addr(a)
    for j in range(8):
        v, o = (2, j * 896) if j < 5 else (3, (j - 5) * 896)
        a.e(f'buffer_load_dword v{8+j}, v{v}, s[{S_X}:{S_X+3}], 0 offen offset:{o}')


def ln_stats(a, X, T, red, vt, mid=None):
    a.e('s_mov_b32 s66, 0x3f803f80')
    for j in range(8):
        a.e(f'v_dot2_f32_bf16 v{T+j}, v{X[j]}, s66, 0')
        a.e(f'v_dot2_f32_bf16 v{T+8+j}, v{X[j]}, v{X[j]}, 0')
    a.e(f'v_lshlrev_b32 v{vt}, 2, v1')
    a.e(f'v_and_b32 v{vt}, 0xf0, v{vt}')
    a.e(f's_lshl_b32 s66, s{S_W}, 2')
    a.e(f'v_add_u32 v{vt}, s66, v{vt}')
    reduce16(a, [T + i for i in range(16)])
    a.inj_pause()
    a.e('s_mov_b32 exec_lo, 0x11111111')
    a.e('s_mov_b32 exec_hi, 0x11111111')
    a.e(f'ds_write_b32 v{vt}, v{T} offset:{red}')
    a.e('s_mov_b64 exec, -1')
    a.inj_resume()
    a.e(f'v_and_b32 v{vt}, 7, v1')
    a.e(f'v_lshlrev_b32 v{vt}, 4, v{vt}')
    a.e('s_waitcnt lgkmcnt(0)')
    a.e('s_barrier')
    a.e(f'ds_read_b128 v[{T}:{T+3}], v{vt} offset:{red}')
    a.e(f'ds_read_b128 v[{T+4}:{T+7}], v{vt} offset:{red+128}')
    n_mid = mid() if mid else 0
    a.e(f's_waitcnt lgkmcnt({1 + n_mid})')
    a.e(f'v_pk_add_f32 v[{T}:{T+1}], v[{T}:{T+1}], v[{T+2}:{T+3}]')
    a.e(f's_waitcnt lgkmcnt({n_mid})')
    a.e(f'v_pk_add_f32 v[{T+4}:{T+5}], v[{T+4}:{T+5}], v[{T+6}:{T+7}]')
    a.e(f'v_add_f32 v{T}, v{T}, v{T+1}')
    a.e(f'v_add_f32 v{T+4}, v{T+4}, v{T+5}')
    a.e(f'v_mul_f32 v{T}, {fx(1.0/448)}, v{T}')
    a.e(f'v_mul_f32 v{T+4}, {fx(1.0/448)}, v{T+4}')
    a.e(f'v_fma_f32 v{T+4}, -v{T}, v{T}, v{T+4}')
    a.e(f'v_max_f32 v{T+4}, 0, v{T+4}')
    a.e(f'v_cvt_pk_bf16_f32 v{T+4}, v{T+4}, v{T+4}')
    a.e(f'v_lshlrev_b32 v{T+4}, 16, v{T+4}')
    a.e(f'v_add_f32 v{T+4}, {fx(1e-5)}, v{T+4}')
    a.e(f'v_cvt_pk_bf16_f32 v{T+4}, v{T+4}, v{T+4}')
    a.e(f'v_lshlrev_b32 v{T+4}, 16, v{T+4}')
    a.e(f'v_sqrt_f32 v{T+4}, v{T+4}')
    a.e(f'v_cvt_pk_bf16_f32 v{T}, v{T}, v{T+4}')


def poison_regs(a):
    for r in range(216, 220):
        a.e(f'v_mov_b32 v{r}, -1')


def clear_hh(a):
    if OPT['hoist']:
        a.e(f'buffer_store_dwordx4 v[216:219], v184, {WSR}, 0 offen sc1')
        a.e(f'buffer_store_dwordx4 v[216:219], v185, {WSR}, 0 offen sc1')
        return
    a.e(f's_mul_i32 s66, s{S_B}, 7168')
    a.e(f's_add_u32 s66, s66, {WS_HH}')
    a.e('v_lshl_add_u32 v4, v0, 4, s66')
    a.e('v_add_u32 v5, 4096, v4')
    mask_lanes(a, 5, 192, 6, 'v0')
    a.e(f'buffer_store_dwordx4 v[216:219], v4, {WSR}, 0 offen sc1')
    a.e(f'buffer_store_dwordx4 v[216:219], v5, {WSR}, 0 offen sc1')


def clear_aout(a):
    if OPT['hoist']:
        a.e(f'buffer_store_dwordx4 v[216:219], v186, {WSR}, 0 offen sc1')
        a.e(f'buffer_store_dwordx4 v[216:219], v187, {WSR}, 0 offen sc1')
        return
    a.e(f's_mul_i32 s66, s{S_P}, {AST}')
    a.e(f's_add_u32 s66, s66, {WS_AOUT}')
    a.e('v_lshl_add_u32 v4, v0, 4, s66')
    a.e('v_add_u32 v5, 4096, v4')
    a.e(f'buffer_store_dwordx4 v[216:219], v4, {WSR}, 0 offen sc1')
    a.e(f'buffer_store_dwordx4 v[216:219], v5, {WSR}, 0 offen sc1')


def g_store_addr(a, vd):
    a.e(f's_lshl_b32 s66, s{S_I1}, 3')
    a.e(f's_lshl_b32 s70, s{S_W}, 1')
    a.e('s_add_u32 s66, s66, s70')
    a.e('s_mul_i32 s66, s66, 7168')
    a.e(f's_mul_i32 s70, s{S_J}, 896')
    a.e('s_add_u32 s66, s66, s70')
    a.e(f's_add_u32 s66, s66, {WS_G}')
    a.e(f'v_lshl_add_u32 v{vd}, v1, 4, s66')
    mask_lanes(a, vd, 56, 6)


def clear_g(a):
    if OPT['hoist']:
        a.e('v_add_u32 v5, 7168, v240')
        a.e(f'buffer_store_dwordx4 v[216:219], v240, {WSR}, 0 offen sc1')
        a.e(f'buffer_store_dwordx4 v[216:219], v5, {WSR}, 0 offen sc1')
        return
    g_store_addr(a, 4)
    a.e('v_add_u32 v5, 7168, v4')
    a.e(f'buffer_store_dwordx4 v[216:219], v4, {WSR}, 0 offen sc1')
    a.e(f'buffer_store_dwordx4 v[216:219], v5, {WSR}, 0 offen sc1')


def publish_xn(a):
    bcast_stats(a, 16)
    for j in range(8):
        d = 64 + 2 * j
        t = 48 + j
        a.e(f'v_lshlrev_b32 v{d}, 16, v{8+j}')
        a.e(f'v_and_b32 v{d+1}, 0xffff0000, v{8+j}')
        a.e(f'v_pk_add_f32 v[{d}:{d+1}], v[{d}:{d+1}], s[{72+2*j}:{73+2*j}] op_sel:[0,0] op_sel_hi:[1,0] neg_lo:[0,1] neg_hi:[0,1]')
        a.e(f'v_cvt_pk_bf16_f32 v{t}, v{d}, v{d+1}')
        a.e(f'v_lshlrev_b32 v{d}, 16, v{t}')
        a.e(f'v_and_b32 v{d+1}, 0xffff0000, v{t}')
        a.e(f'v_pk_mul_f32 v[{d}:{d+1}], v[{d}:{d+1}], s[{72+2*j}:{73+2*j}] op_sel:[0,1] op_sel_hi:[1,1]')
        a.e(f'v_cvt_pk_bf16_f32 v{t}, v{d}, v{d+1}')
        a.e(f'v_lshlrev_b32 v{d}, 16, v{t}')
        a.e(f'v_and_b32 v{d+1}, 0xffff0000, v{t}')
    for i in range(4):
        a.e(f'v_cvt_pk_f16_f32 v{80+i}, v{64+4*i}, v{66+4*i}')
        a.e(f'v_cvt_pk_f16_f32 v{84+i}, v{65+4*i}, v{67+4*i}')
    if OPT['hoist']:
        assert OPT['xnb']
        a.e(f'buffer_store_dwordx4 v[80:83], v188, {WSR}, 0 offen sc1')
        a.e(f'buffer_store_dwordx4 v[84:87], v189, {WSR}, 0 offen sc1')
        return
    if OPT['xnb']:
        a.e(f's_mul_i32 s66, s{S_W}, {56*16}')
        a.e(f's_mul_i32 s67, s{S_B}, 7168')
        a.e('s_add_u32 s66, s66, s67')
        a.e(f's_add_u32 s66, s66, {WS_XN}')
        a.e('v_lshl_add_u32 v4, v1, 4, s66')
        mask_lanes(a, 4, 56, 5)
        a.e('v_add_u32 v5, 3584, v4')
    else:
        a.e(f's_mul_i32 s66, s{S_W}, {56*XPS}')
        a.e(f's_lshl_b32 s67, s{S_B}, 4')
        a.e('s_add_u32 s66, s66, s67')
        a.e(f's_add_u32 s66, s66, {WS_XN}')
        a.e(f'v_mul_u32_u24 v4, {XPS}, v1')
        a.e('v_add_u32 v4, s66, v4')
        mask_lanes(a, 4, 56, 5)
        a.e(f'v_add_u32 v5, {XCS}, v4')
    a.e(f'buffer_store_dwordx4 v[80:83], v4, {WSR}, 0 offen sc1')
    a.e(f'buffer_store_dwordx4 v[84:87], v5, {WSR}, 0 offen sc1')


def publish_flag(a, vm=0):
    a.e(f's_waitcnt vmcnt({vm})')
    a.e('s_barrier')
    l = a.lab('noflag')
    a.e(f's_cmp_lg_u32 s{S_W}, 0')
    a.e(f's_cbranch_scc1 {l}')
    a.e(f's_lshl_b32 s66, s{S_B}, 6')
    a.e(f's_add_u32 s66, s66, {WS_FLAG}')
    a.e('v_mov_b32 v2, s66')
    a.e(f'v_mov_b32 v3, s{S_TAG}')
    a.e('s_mov_b64 exec, 1')
    a.e(f'buffer_store_dword v3, v2, {WSR}, 0 offen sc1')
    a.e('s_mov_b64 exec, -1')
    a.e(f'{l}:')


V_FA, V_FV = 233, 234


def flag_addr(a):
    a.e(f'v_lshlrev_b32 v{V_FA}, 6, v0')
    a.e(f'v_add_u32 v{V_FA}, {WS_FLAG}, v{V_FA}')


def flag_load(a):
    a.e(f'buffer_load_dword v{V_FV}, v{V_FA}, {WSR}, 0 offen sc1')


def flag_poll(a):
    lp, ld = a.lab('fpoll'), a.lab('fdone')
    a.e(f's_mov_b32 s{S_SPIN}, 0')
    a.e(f'{lp}:')
    flag_load(a)
    a.e('s_waitcnt vmcnt(0)')
    a.e(f'v_cmp_ne_u32 vcc, s{S_TAG}, v{V_FV}')
    a.e(f's_cbranch_vccz {ld}')
    spin_tail(a, lp)
    a.e(f'{ld}:')


def load_u(a):
    if OPT['hoist']:
        a.e(f'buffer_load_dwordx4 v[176:179], v190, {WSR}, 0 offen sc1')
        a.e(f'buffer_load_dwordx4 v[180:183], v191, {WSR}, 0 offen sc1')
        return
    if OPT['xnb']:
        a.e(f's_lshl_b32 s66, s{S_P}, 4')
        a.e(f's_add_u32 s66, s66, {WS_XN}')
        a.e('v_mul_u32_u24 v2, 7168, v0')
        a.e('v_add_u32 v2, s66, v2')
        a.e('v_add_u32 v3, 3584, v2')
    else:
        a.e(f's_mul_i32 s66, s{S_P}, {XPS}')
        a.e(f's_add_u32 s66, s66, {WS_XN}')
        a.e('v_lshl_add_u32 v2, v0, 4, s66')
        a.e(f'v_add_u32 v3, {XCS}, v2')
    a.e(f'buffer_load_dwordx4 v[176:179], v2, {WSR}, 0 offen sc1')
    a.e(f'buffer_load_dwordx4 v[180:183], v3, {WSR}, 0 offen sc1')


def epoch_update(a):
    le = a.lab('noep')
    a.e('s_cmp_lg_u32 s2, 0')
    a.e(f's_cbranch_scc1 {le}')
    a.e(f'v_mov_b32 v2, {WS_EPOCH}')
    a.e(f'v_mov_b32 v3, s{S_TAG}')
    a.e('s_mov_b64 exec, 1')
    a.e(f'buffer_store_dword v3, v2, {WSR}, 0 offen sc1')
    a.e('s_mov_b64 exec, -1')
    a.e(f'{le}:')


def code_prefetch(a, lstart, lend_):
    lp = a.lab('pcp')
    a.e('s_getpc_b64 s[74:75]')
    a.e(f'{lp}:')
    a.e(f's_sub_u32 s74, s74, {lp}-{lstart}')
    a.e('s_subb_u32 s75, s75, 0')
    a.e('v_lshlrev_b32 v4, 6, v0')
    a.e(f's_mov_b32 s76, {lend_}-{lstart}-4')
    a.e('v_add_u32 v5, 16384, v4')
    a.e('v_add_u32 v6, 32768, v4')
    a.e('v_min_u32 v4, s76, v4')
    a.e('v_min_u32 v5, s76, v5')
    a.e('v_min_u32 v6, s76, v6')
    a.e('global_load_dword v220, v4, s[74:75]')
    a.e('global_load_dword v220, v5, s[74:75]')
    a.e('global_load_dword v220, v6, s[74:75]')


def code_prefetch1(a, lstart, lend_):
    lp = a.lab('pcp')
    a.e('s_getpc_b64 s[74:75]')
    a.e(f'{lp}:')
    a.e('v_lshlrev_b32 v4, 6, v0')
    a.e(f's_mov_b32 s76, {lend_}-{lp}-4')
    a.e('v_min_u32 v4, s76, v4')
    a.e('global_load_dword v220, v4, s[74:75]')


def tlb_touch(a):
    g = OPT['tlbg']
    n = 0
    srd(a, S_T2, P_OUT, XBYTES)
    srd(a, S_T3, P_B2, L * 2)
    if g == 21:
        a.e('v_lshlrev_b32 v4, 21, v1')
        a.e('s_mov_b32 s70, 0x1f8000')
        for s_ in (S_W1, S_W2, S_WS, S_T2, S_T3) if OPT['tlbout'] else (S_W1, S_W2, S_WS, S_T3):
            a.e(f'buffer_load_dword v220, v4, s[{s_}:{s_+3}], {"s70" if s_ == S_WS else 0} offen')
            n += 1
    else:
        a.e(f'v_lshlrev_b32 v4, {g}, v0')
        for s_, nbytes in ((S_W1, W1BYTES), (S_W2, W2BYTES), (S_WS, 0xC00000), (S_T2, XBYTES), (S_T3, 4096)):
            for k in range(-(-nbytes // (256 << g))):
                a.e(f's_mov_b32 s70, {k * (256 << g)}')
                a.e(f'buffer_load_dword v220, v4, s[{s_}:{s_+3}], s70 offen')
                n += 1
    return n


def hoist_common(a):
    a.e(f's_mul_i32 s66, s{S_B}, 7168')
    a.e(f's_add_u32 s66, s66, {WS_HH}')
    a.e('v_lshl_add_u32 v184, v0, 4, s66')
    a.e('v_add_u32 v185, 4096, v184')
    mask_lanes(a, 185, 192, 6, 'v0')
    a.e(f's_mul_i32 s66, s{S_W}, {56*16}')
    a.e(f's_mul_i32 s67, s{S_B}, 7168')
    a.e('s_add_u32 s66, s66, s67')
    a.e(f's_add_u32 s66, s66, {WS_XN}')
    a.e('v_lshl_add_u32 v188, v1, 4, s66')
    mask_lanes(a, 188, 56, 5)
    a.e('v_add_u32 v189, 3584, v188')
    a.e('v_and_b32 v4, 15, v1')
    a.e(f'v_mul_u32_u24 v4, {PROW}, v4')
    a.e('v_lshrrev_b32 v5, 4, v1')
    a.e('v_lshl_add_u32 v4, v5, 4, v4')
    a.e(f's_mul_i32 s66, s{S_W}, {PARTW}')
    a.e(f's_add_u32 s66, s66, {L_PART}')
    a.e('v_add_u32 v241, s66, v4')
    a.e(f'v_mul_u32_u24 v5, {PROW}, v1')
    a.e(f's_lshl_b32 s66, s{S_W}, 6')
    a.e(f's_add_u32 s66, s66, {L_PART}')
    a.e('v_add_u32 v242, s66, v5')
    a.e('v_lshrrev_b32 v5, 3, v1')
    a.e('v_and_b32 v4, 7, v1')
    a.e(f's_lshl_b32 s66, s{S_W}, 4')
    a.e('v_add_u32 v5, s66, v5')
    a.e(f'v_mul_u32_u24 v6, {PROW}, v5')
    a.e('v_lshl_add_u32 v6, v4, 4, v6')
    a.e(f'v_add_u32 v243, {L_PART}, v6')
    g_store_addr(a, 240)
    a.e(f's_mul_i32 s67, s{S_B}, 7168')
    a.e(f's_mul_i32 s66, s{S_W}, 1792')
    a.e('s_add_u32 s66, s66, s67')
    a.e(f's_add_u32 s66, s66, {WS_HH}')
    a.e('v_lshl_add_u32 v213, v1, 4, s66')
    a.e('v_add_u32 v5, 448, v213')
    a.e('v_cmp_gt_u32 vcc, 28, v1')
    a.e('v_cndmask_b32 v213, v5, v213, vcc')
    mask_lanes(a, 213, 56, 5)


def hoist_conv(a):
    a.e(f's_mul_i32 s66, s{S_P}, {AST}')
    a.e(f's_add_u32 s66, s66, {WS_AOUT}')
    a.e('v_lshl_add_u32 v186, v0, 4, s66')
    a.e('v_add_u32 v187, 4096, v186')
    a.e(f's_lshl_b32 s66, s{S_P}, 4')
    a.e(f's_add_u32 s66, s66, {WS_XN}')
    a.e('v_mul_u32_u24 v190, 7168, v0')
    a.e('v_add_u32 v190, s66, v190')
    a.e('v_add_u32 v191, 3584, v190')
    conv_addr(a, 192, 193)
    CP, TS = L_CP, 1280
    a.e('v_and_b32 v3, 15, v1')
    a.e('v_lshlrev_b32 v2, 4, v3')
    a.e('v_lshrrev_b32 v3, 4, v1')
    a.e('v_mul_u32_u24 v3, 320, v3')
    a.e('v_add_u32 v2, v2, v3')
    a.e(f's_mul_i32 s70, s{S_W}, {8*TS}')
    a.e(f's_add_u32 s70, s70, {CP}')
    a.e('v_add_u32 v194, s70, v2')
    a.e('v_lshrrev_b32 v3, 2, v1')
    a.e('v_lshlrev_b32 v2, 4, v3')
    a.e('v_and_b32 v3, 3, v1')
    a.e('v_mul_u32_u24 v3, 320, v3')
    a.e('v_add_u32 v2, v2, v3')
    a.e(f's_lshl_b32 s70, s{S_W}, 1')
    a.e(f's_mul_i32 s71, s70, {TS}')
    a.e(f's_add_u32 s71, s71, {CP}')
    a.e('v_add_u32 v195, s71, v2')
    a.e('s_lshl_b32 s71, s70, 9')
    a.e(f's_add_u32 s71, s71, {L_U + 512}')
    a.e('v_lshl_add_u32 v206, v1, 3, s71')
    a.e(f's_mul_i32 s71, s{S_P}, {AST}')
    a.e('s_lshl_b32 s72, s70, 10')
    a.e('s_add_u32 s71, s71, s72')
    a.e(f's_add_u32 s71, s71, {WS_AOUT}')
    a.e('v_lshl_add_u32 v207, v1, 4, s71')


def kgen_loads(a, part=None):
    R = (S_T0, S_T1, S_T2, S_T3) if part is None else (72, 76, 80, 84)
    if part != 'issue':
        for r, p in zip(R, (P_LAR, P_AI, P_CR, P_CI)):
            srd(a, r, p, PBYTES)
        a.e(f's_lshl_b32 s66, s{S_P}, 10')
        a.e(f's_lshl_b32 s67, s{S_W}, 7')
        a.e('s_add_u32 s66, s66, s67')
        a.e('v_lshl_add_u32 v235, v1, 1, s66')
        a.e(f's_lshl_b32 s66, s{S_P}, 2')
        a.e(f's_load_dword s68, s[{P_LDT}:{P_LDT+1}], s66')
        a.e(f's_load_dword s69, s[{P_DSK}:{P_DSK+1}], s66')
    if part != 'setup':
        for c in range(2):
            for k, s in enumerate(R):
                a.e(f'buffer_load_ushort v{40+4*c+k}, v235, s[{s}:{s+3}], 0 offen offset:{512*c}')


def load_gather_table(a, tablabel):
    lp = a.lab('pc')
    a.e('s_getpc_b64 s[70:71]')
    a.e(f'{lp}:')
    a.e(f's_add_u32 s70, s70, {tablabel}-{lp}')
    a.e('s_addc_u32 s71, s71, 0')
    a.e('v_lshlrev_b32 v2, 5, v0')
    a.e('global_load_dwordx4 v[160:163], v2, s[70:71]')
    a.e('global_load_dwordx4 v[164:167], v2, s[70:71] offset:16')


DK0, DK1 = 16, 28


def kgen_channel(a, c, DACC, mid=None, mid_m0=True, after_setup=None, defer=False):
    LAR, AI, CR, CI = 40 + 4 * c, 41 + 4 * c, 42 + 4 * c, 43 + 4 * c
    SIG, DT = 52 + c, 54 + c
    AL, BE = 56, 57
    Z1, Z2, Z4, Z8, Z128, Z256, Z512, Z1024 = 58, 60, 62, 64, 66, 68, 70, 72
    X0, CA, CB, CC, T0, T1 = 74, 76, 78, 80, 82, 84
    CV = [86, 87, 88, 89]
    VW, VR = 90, 91
    t, t2 = 92, 93
    for r in (LAR, AI, CR, CI):
        a.e(f'v_lshlrev_b32 v{r}, 16, v{r}')
    a.e('s_lshl_b32 s66, s68, 16' if c == 0 else 's_and_b32 s66, s68, 0xffff0000')
    a.e(f'v_mov_b32 v{t2}, s66')
    exp_bf16(a, DT, t2, t)
    a.e(f'v_add_f32 v{SIG}, abs(v{CR}), abs(v{CI})')
    exp_bf16(a, AL, LAR, t)
    a.e(f'v_add_f32_dpp v{SIG}, v{SIG}, v{SIG} quad_perm:[1,0,3,2] row_mask:0xf bank_mask:0xf')
    a.e(f'v_mul_f32 v{AL}, v{AL}, v{DT}')
    a.e(f'v_mul_f32 v{BE}, v{AI}, v{DT}')
    a.e(f'v_add_f32_dpp v{SIG}, v{SIG}, v{SIG} quad_perm:[2,3,0,1] row_mask:0xf bank_mask:0xf')
    a.e(f'v_mul_f32 v{AL}, {fx(-1.4426950408889634)}, v{AL}')
    a.e(f'v_mul_f32 v{BE}, {fx(0.15915494309189535)}, v{BE}')
    a.e(f'v_add_f32_dpp v{SIG}, v{SIG}, v{SIG} row_half_mirror row_mask:0xf bank_mask:0xf')
    a.e(f'v_exp_f32 v{T0}, v{AL}')
    a.e(f'v_fract_f32 v{t}, v{BE}')
    a.e(f'v_add_f32_dpp v{SIG}, v{SIG}, v{SIG} row_ror:8 row_mask:0xf bank_mask:0xf')
    a.e(f'v_cos_f32 v{Z1}, v{t}')
    a.e(f'v_sin_f32 v{Z1+1}, v{t}')
    a.e(f'v_mov_b32 v{t2}, v{SIG}')
    a.e(f'v_mul_f32 v{T1}, 0x43000000, v{AL}')
    a.e(f'v_mul_f32 v{t}, 0x43000000, v{BE}')
    a.e(f'v_permlane16_swap_b32 v{SIG}, v{t2}')
    a.e(f'v_pk_mul_f32 v[{Z1}:{Z1+1}], v[{Z1}:{Z1+1}], v[{T0}:{T0+1}] op_sel:[0,0] op_sel_hi:[1,0]')
    a.e(f'v_add_f32 v{SIG}, v{SIG}, v{t2}')
    a.e(f'v_exp_f32 v{T1}, v{T1}')
    a.e(f'v_fract_f32 v{t}, v{t}')
    a.e(f'v_mov_b32 v{t2}, v{SIG}')
    a.e(f'v_cos_f32 v{Z128}, v{t}')
    a.e(f'v_sin_f32 v{Z128+1}, v{t}')
    a.e(f'v_permlane32_swap_b32 v{SIG}, v{t2}')
    cmul(a, Z2, Z1, Z1, Z2)
    a.e(f'v_add_f32 v{SIG}, v{SIG}, v{t2}')
    a.e(f'v_pk_mul_f32 v[{Z128}:{Z128+1}], v[{Z128}:{Z128+1}], v[{T1}:{T1+1}] op_sel:[0,0] op_sel_hi:[1,0]')
    a.e(f'v_add_f32 v{SIG}, {fx(1e-30)}, v{SIG}')
    cmul(a, Z4, Z2, Z2, Z4)
    a.e(f'v_rcp_f32 v{t}, v{SIG}')
    cmul(a, Z256, Z128, Z128, Z256)
    cmul(a, Z8, Z4, Z4, Z8)
    a.e(f'v_mul_f32 v{X0}, v{CR}, v{t}')
    a.e(f'v_mul_f32 v{X0+1}, v{CI}, v{t}')
    cmul(a, Z512, Z256, Z256, Z512)
    a.e(f's_mul_i32 s66, s{S_W}, {SCRW}')
    a.e(f's_add_u32 s66, s66, {L_SCR}')
    a.e('s_mov_b32 m0, s66')
    cmul(a, Z1024, Z512, Z512, Z1024)
    a.e(f'v_and_b32 v{t}, 15, v1')
    a.e(f'v_mul_u32_u24 v{t}, {SROW}, v{t}')
    a.e(f'v_lshrrev_b32 v{t2}, 4, v1')
    a.e(f'v_lshl_add_u32 v{t}, v{t2}, 4, v{t}')
    a.e(f'v_add_u32 v{VR}, s66, v{t}')
    cvi = [0]
    pend = []

    def flush(keep):
        while len(pend) > keep:
            cv, off = pend.pop(0)
            a.e(f'ds_write_addtid_b32 v{cv} offset:{off}')

    G = OPT['kgrp']
    if G > 1:
        CV = list(range(96, 112))
        if OPT['kdefer']:
            CV = list(range(168, 176))
    if after_setup is not None:
        after_setup()

    def put(off, r, neg):
        cv = CV[cvi[0] % len(CV)]
        cvi[0] += 1
        a.e(f'v_cvt_pk_f16_f32 v{cv}, v{r}, {"-" if neg else ""}v{r+1}')
        if G > 1:
            pend.append((cv, off))
            if len(pend) >= G + 1:
                flush(1)
        else:
            flush(1)
            pend.append((cv, off))

    def putX(row, r):
        put(row * SROW, r, True)

    def putY(b, r):
        put((YROW + b) * SROW, r, False)

    a.e(f'v_mov_b32 v{VW}, 0x00003c00')
    pend.append((VW, YROW * SROW))
    putY(1, Z8)
    ychain = {'cur': Z8, 'b': 1}
    YA, YB = CC, 94

    def ystep():
        if ychain['b'] >= 15:
            return
        d = YA if ychain['cur'] != YA else YB
        cmul(a, d, ychain['cur'], Z8, d)
        ychain['b'] += 1
        ychain['cur'] = d
        putY(ychain['b'], d)

    putX(0, X0)
    cmul(a, T0, X0, Z128, T0)
    putX(8, T0)
    cur = X0
    for j in range(1, 8):
        d = CA if cur != CA else CB
        cmul(a, d, cur, Z1, d)
        ystep()
        putX(j, d)
        cmul(a, T0, d, Z128, T0)
        putX(8 + j, T0)
        cur = d
    cmul(a, CA, X0, Z256, CA)
    ystep()
    putX(16, CA)
    cmul(a, T0, CA, Z128, T0)
    putX(20, T0)
    cur = CA
    for j in range(1, 4):
        d = CA if cur != CA else CB
        cmul(a, d, cur, Z2, d)
        ystep()
        putX(16 + j, d)
        cmul(a, T0, d, Z128, T0)
        putX(20 + j, T0)
        cur = d
    if mid is not None:
        if mid_m0:
            flush(0)
        mid()
        if mid_m0:
            a.e(f's_mul_i32 s66, s{S_W}, {SCRW}')
            a.e(f's_add_u32 s66, s66, {L_SCR}')
            a.e('s_mov_b32 m0, s66')
    cmul(a, CA, X0, Z512, CA)
    ystep()
    putX(24, CA)
    cmul(a, CB, CA, Z4, CB)
    ystep()
    putX(25, CB)
    pa, pb = CA, CB
    na, nb = T0, T1
    for q in range(1, 4):
        cmul(a, na, pa, Z128, na)
        cmul(a, nb, pb, Z128, nb)
        ystep()
        putX(24 + 2 * q, na)
        putX(25 + 2 * q, nb)
        pa, pb, na, nb = na, nb, pa, pb
    cmul(a, CA, X0, Z1024, CA)
    putX(32, CA)
    cur = CA
    for q in range(1, 9):
        d = CA if cur != CA else CB
        cmul(a, d, cur, Z128, d)
        putX(32 + q, d)
        cur = d
    while ychain['b'] < 15:
        ystep()
    flush(0)
    FA = 96
    for k in range(4):
        a.e(f'ds_read_b128 v[{144+4*k}:{147+4*k}], v{VR} offset:{YROW*SROW+64*k}')
        for T in range(3):
            r = FA + 16 * T + 4 * k
            a.e(f'ds_read_b128 v[{r}:{r+3}], v{VR} offset:{16*T*SROW+64*k}')
    def mfmas(waits=True):
        for k in range(4):
            if waits:
                a.e(f's_waitcnt lgkmcnt({4*(3-k)})')
            elif k == 0:
                a.e('s_waitcnt lgkmcnt(0)')
            for T in range(3):
                r = FA + 16 * T + 4 * k
                cc = '0' if k == 0 else f'v[{DACC+4*T}:{DACC+4*T+3}]'
                a.e(f'v_mfma_f32_16x16x32_f16 v[{DACC+4*T}:{DACC+4*T+3}], v[{r}:{r+3}], v[{144+4*k}:{147+4*k}], {cc}')

    if defer:
        return lambda: mfmas(waits=False)
    mfmas()


def ktab_part1(a):
    a.e(f's_mul_i32 s66, s{S_W}, {SCRW}')
    a.e(f's_add_u32 s66, s66, {L_SCR}')
    a.e('v_lshl_add_u32 v90, v1, 4, s66')
    a.e(f's_lshl_b32 s67, s{S_W}, 2')
    a.e(f's_add_u32 s67, s67, {L_SIG}')
    a.e('v_mov_b32 v91, s67')
    a.e('s_mov_b64 exec, 1')
    a.e('ds_write_b32 v91, v52')
    a.e('ds_write_b32 v91, v53 offset:16')
    a.e('s_mov_b64 exec, -1')
    for c, DK in ((0, DK0), (1, DK1)):
        for T in range(3):
            for h in range(2):
                i = DK + 4 * T + 2 * h
                a.e(f'v_pk_mul_f32 v[{i}:{i+1}], v[{i}:{i+1}], v[52:53] op_sel:[0,{c}] op_sel_hi:[1,{c}]')
            a.e(f'ds_write_b128 v90, v[{DK+4*T}:{DK+4*T+3}] offset:{c*3072+T*1024}')
    a.e('v_mov_b32 v96, 0')
    a.e('v_mov_b32 v97, 0')
    a.e('v_mov_b32 v98, 0')
    a.e('v_mov_b32 v99, 0')
    a.e(f'v_mov_b32 v92, {L_KT + 1536}')
    a.e('ds_write_b32 v92, v96')
    a.e(f'ds_write_b32 v92, v96 offset:{KTCH}')
    a.e('v_lshlrev_b32 v92, 3, v1')
    a.e(f'ds_write_b64 v92, v[96:97] offset:{L_U}')
    a.e(f'ds_write_b64 v92, v[96:97] offset:{L_U + UCH}')
    a.e('s_waitcnt lgkmcnt(0)')
    a.e('s_barrier')


def ktab_part2(a, mid=None):
    a.e(f'v_mov_b32 v91, {L_SIG}')
    a.e('ds_read_b128 v[44:47], v91')
    a.e('ds_read_b128 v[48:51], v91 offset:16')
    a.e(f's_and_b32 s67, s{S_W}, 1')
    a.e(f's_lshr_b32 s70, s{S_W}, 1')
    a.e('s_mul_i32 s71, s67, 3072')
    a.e('s_lshl_b32 s72, s70, 10')
    a.e('s_add_u32 s72, s72, s71')
    a.e(f's_add_u32 s72, s72, {L_SCR}')
    a.e(f's_add_u32 s71, s71, {L_SCR + 2048}')
    a.e('v_lshl_add_u32 v90, v1, 4, s72')
    a.e('v_lshl_add_u32 v91, v1, 4, s71')
    for wv in range(4):
        a.e(f'ds_read_b128 v[{96+4*wv}:{99+4*wv}], v90 offset:{wv*SCRW}')
    for wv in range(4):
        a.e(f'ds_read_b128 v[{112+4*wv}:{115+4*wv}], v91 offset:{wv*SCRW}')
    a.e('v_mov_b32 v128, 0')
    a.e('v_mov_b32 v129, 0')
    a.e('v_mov_b32 v130, 0')
    a.e('v_mov_b32 v131, 0')
    if OPT['c4']:
        a.e('v_and_b32 v132, 7, v1')
        a.e(f'v_mul_u32_u24 v132, {KCOPY}, v132')
        a.e('v_bfe_u32 v133, v1, 3, 1')
        a.e('v_lshl_add_u32 v132, v133, 4, v132')
    else:
        a.e('v_and_b32 v132, 15, v1')
        a.e(f'v_mul_u32_u24 v132, {KCOPY}, v132')
    a.e(f'v_add_u32 v132, {L_KC}, v132')
    a.e('ds_write_b128 v132, v[128:131] offset:4096')
    a.e('v_lshrrev_b32 v92, 4, v1')
    a.e('v_lshlrev_b32 v92, 7, v92')
    a.e('v_and_b32 v93, 15, v1')
    a.e('v_lshl_add_u32 v92, v93, 1, v92')
    a.e(f's_mul_i32 s71, s67, {KTCH}')
    a.e(f's_add_u32 s71, s71, {L_KT}')
    a.e('v_add_u32 v93, s71, v92')
    a.e('s_lshl_b32 s72, s70, 9')
    a.e('v_add_u32 v92, s72, v93')
    if mid is not None:
        mid()
    a.e('s_waitcnt lgkmcnt(9)')
    a.e('v_pk_add_f32 v[44:45], v[44:45], v[46:47]')
    a.e('v_pk_add_f32 v[48:49], v[48:49], v[50:51]')
    a.e('v_add_f32 v44, v44, v45')
    a.e('v_add_f32 v45, v48, v49')
    a.e('s_cmp_eq_u32 s67, 0')
    a.e('s_cselect_b64 vcc, -1, 0')
    a.e('v_pk_mul_f32 v[54:55], v[54:55], v[44:45]')
    a.e('v_cndmask_b32 v46, v45, v44, vcc')
    a.e('v_pk_add_f32 v[54:55], v[54:55], v[54:55]')
    a.e('v_rcp_f32 v46, v46')
    for jb, (base, va, off) in enumerate(((96, 92, 0), (112, 93, 1024))):
        a.e(f's_waitcnt lgkmcnt({5 if jb == 0 else 5})')
        for h in range(2):
            a.e(f'v_pk_add_f32 v[{base+2*h}:{base+2*h+1}], v[{base+2*h}:{base+2*h+1}], v[{base+4+2*h}:{base+5+2*h}]')
            a.e(f'v_pk_add_f32 v[{base+8+2*h}:{base+9+2*h}], v[{base+8+2*h}:{base+9+2*h}], v[{base+12+2*h}:{base+13+2*h}]')
        for h in range(2):
            a.e(f'v_pk_add_f32 v[{base+2*h}:{base+2*h+1}], v[{base+2*h}:{base+2*h+1}], v[{base+8+2*h}:{base+9+2*h}]')
        for h in range(2):
            a.e(f'v_pk_mul_f32 v[{base+2*h}:{base+2*h+1}], v[{base+2*h}:{base+2*h+1}], v[46:47] op_sel:[0,0] op_sel_hi:[1,0]')
        a.e(f'v_cvt_pk_f16_f32 v{base+4}, v{base}, v{base+1}')
        a.e(f'v_cvt_pk_f16_f32 v{base+5}, v{base+2}, v{base+3}')
        a.e(f'ds_write_b16 v{va}, v{base+4} offset:{off}')
        a.e(f'ds_write_b16_d16_hi v{va}, v{base+4} offset:{off+32}')
        a.e(f'ds_write_b16 v{va}, v{base+5} offset:{off+64}')
        a.e(f'ds_write_b16_d16_hi v{va}, v{base+5} offset:{off+96}')
    for e in range(11 if OPT['c4'] else 15):
        src = 160 + e // 2
        if e % 2 == 0:
            a.e(f'v_and_b32 v{136+e}, 0xffff, v{src}')
        else:
            a.e(f'v_lshrrev_b32 v{136+e}, 16, v{src}')
    a.e('s_waitcnt lgkmcnt(0)')
    a.e('s_barrier')


def kch():
    return (4 if OPT['c4'] else 8) * KCOPY


def kcopies(a):
    AD = 136
    a.e('v_lshlrev_b32 v111, 4, v0')
    a.e(f'v_add_u32 v111, {L_KC}, v111')
    RR = [96, 112]
    if OPT['c4']:
        for c in range(2):
            for e in range(11):
                a.e(f'ds_read_u16 v{RR[c]+e}, v{AD+e} offset:{L_KT + c*KTCH}')
        for c in range(2):
            R = RR[c]
            Da, Db, Oa, Ob = (56, 60, 64, 68) if c == 0 else (16, 20, 24, 28)
            a.e(f's_waitcnt lgkmcnt({11 if c == 0 else 4})')
            for i in range(4):
                a.e(f'v_lshl_or_b32 v{Da+i}, v{R+2*i+1}, 16, v{R+2*i}')
                a.e(f'v_lshl_or_b32 v{Oa+i}, v{R+2*i+2}, 16, v{R+2*i+1}')
                a.e(f'v_lshl_or_b32 v{Db+i}, v{R+2*i+3}, 16, v{R+2*i+2}')
                a.e(f'v_lshl_or_b32 v{Ob+i}, v{R+2*i+4}, 16, v{R+2*i+3}')
            for s_, r in ((0, Da), (1, Oa), (2, Db), (3, Ob)):
                a.e(f'ds_write_b128 v111, v[{r}:{r+3}] offset:{c*kch() + s_*KCOPY}')
        return
    for c in range(2):
        for e in range(15):
            a.e(f'ds_read_u16 v{RR[c]+e}, v{AD+e} offset:{L_KT + c*KTCH}')
    for c in range(2):
        R = RR[c]
        Da, Db, Oa, Ob = 56 + 0, 64, 72, 80
        if c == 1:
            Da, Db, Oa, Ob = 16, 24, 32, 40
        a.e(f's_waitcnt lgkmcnt({15 if c == 0 else 8})')
        for i in range(6):
            a.e(f'v_lshl_or_b32 v{Da+i}, v{R+2*i+1}, 16, v{R+2*i}')
            a.e(f'v_lshl_or_b32 v{Oa+i}, v{R+2*i+2}, 16, v{R+2*i+1}')
        if c == 1:
            a.e(f'v_add_u32 v110, {KCH}, v111')
        va = 111 if c == 0 else 110
        for s, r in ((0, Da), (1, Oa), (4, Da + 2), (5, Oa + 2)):
            a.e(f'ds_write_b128 v{va}, v[{r}:{r+3}] offset:{s*KCOPY}')
        for i in range(6):
            a.e(f'v_lshl_or_b32 v{Db+i}, v{R+2*i+3}, 16, v{R+2*i+2}')
            a.e(f'v_lshl_or_b32 v{Ob+i}, v{R+2*i+4}, 16, v{R+2*i+3}')
        for s, r in ((2, Db), (3, Ob), (6, Db + 2), (7, Ob + 2)):
            a.e(f'ds_write_b128 v{va}, v[{r}:{r+3}] offset:{s*KCOPY}')


def store_u(a, vm):
    a.e('v_lshlrev_b32 v2, 4, v0')
    a.e(f's_waitcnt vmcnt({vm})')
    a.e(f'ds_write_b128 v2, v[176:179] offset:{L_U + 512}')
    a.e(f'ds_write_b128 v2, v[180:183] offset:{L_U + UCH + 512}')
    a.e('s_waitcnt lgkmcnt(0)')
    a.e('s_barrier')


def phase_conv(a, hooks, pre_vm):
    hooks = list(hooks)
    ACC = 16
    FA = [[64 + 64 * s + 4 * i for i in range(8)] for s in range(2)]
    FB = [[96 + 64 * s + 4 * i for i in range(8)] for s in range(2)]
    VA, VB = (192, 193) if OPT['hoist'] else (48, 49)

    def loads(qq, s):
        out = []
        for i in range(8):
            out.append(f'ds_read_b128 v[{FB[s][i]}:{FB[s][i]+3}], v{VB} offset:{512*i + 64*(3-qq)}')
            if OPT['c4']:
                o = 512 * (7 - i) + 64 * (3 - qq)
                out.append(f'ds_read_b64 v[{FA[s][i]}:{FA[s][i]+1}], v{VA} offset:{o}')
                out.append(f'ds_read_b64 v[{FA[s][i]+2}:{FA[s][i]+3}], v{VA} offset:{o + 8}')
            else:
                out.append(f'ds_read_b128 v[{FA[s][i]}:{FA[s][i]+3}], v{VA} offset:{512*(7-i) + 64*(3-qq)}')
        return out

    for x in loads(0, 0):
        a.e(x)
    for qq in range(4):
        s = qq & 1
        nxt = loads(qq + 1, 1 - s) if qq < 3 else []
        n = 0
        for w in range(8):
            for c in range(w, 8):
                if n == 0:
                    a.e('s_waitcnt lgkmcnt(0)')
                    if qq == 3 and OPT['cvbar']:
                        a.e('s_barrier')
                cc = '0' if (qq == 0 and w == 0) else f'v[{ACC+4*c}:{ACC+4*c+3}]'
                a.e(f'v_mfma_f32_16x16x32_f16 v[{ACC+4*c}:{ACC+4*c+3}], v[{FA[s][w]}:{FA[s][w]+3}], v[{FB[s][c-w]}:{FB[s][c-w]+3}], {cc}')
                if nxt and (n % 2 == 1 or (OPT['c4'] and n % 4 == 0)):
                    a.e(nxt.pop(0))
                if hooks and n % 4 == 2:
                    hooks.pop(0)()
                n += 1
        assert not nxt
    assert not hooks
    stamp(a, 11)
    CP, TS = L_CP, 1280
    if OPT['hoist']:
        if not OPT['cvbar']:
            a.e('s_barrier')
        for c in range(8):
            a.e(f'ds_write_b128 v194, v[{ACC+4*c}:{ACC+4*c+3}] offset:{c*TS}')
        VRD, VU, VG = 195, 206, 207
    else:
        a.e('v_and_b32 v2, 15, v1')
        a.e('v_lshlrev_b32 v2, 4, v2')
        a.e('v_lshrrev_b32 v3, 4, v1')
        a.e('v_mul_u32_u24 v3, 320, v3')
        a.e('v_add_u32 v2, v2, v3')
        a.e(f's_mul_i32 s70, s{S_W}, {8*TS}')
        a.e(f's_add_u32 s70, s70, {CP}')
        a.e('v_add_u32 v2, s70, v2')
        if not OPT['cvbar']:
            a.e('s_barrier')
        for c in range(8):
            a.e(f'ds_write_b128 v2, v[{ACC+4*c}:{ACC+4*c+3}] offset:{c*TS}')
        a.e('v_lshrrev_b32 v2, 2, v1')
        a.e('v_lshlrev_b32 v2, 4, v2')
        a.e('v_and_b32 v3, 3, v1')
        a.e('v_mul_u32_u24 v3, 320, v3')
        a.e('v_add_u32 v2, v2, v3')
        a.e(f's_lshl_b32 s70, s{S_W}, 1')
        a.e(f's_mul_i32 s71, s70, {TS}')
        a.e(f's_add_u32 s71, s71, {CP}')
        a.e('v_add_u32 v2, s71, v2')
        a.e('s_lshl_b32 s71, s70, 9')
        a.e(f's_add_u32 s71, s71, {L_U + 512}')
        a.e('v_lshl_add_u32 v3, v1, 3, s71')
        a.e(f's_mul_i32 s71, s{S_P}, {AST}')
        a.e('s_lshl_b32 s72, s70, 10')
        a.e('s_add_u32 s71, s71, s72')
        a.e(f's_add_u32 s71, s71, {WS_AOUT}')
        a.e('v_lshl_add_u32 v4, v1, 4, s71')
        VRD, VU, VG = 2, 3, 4
    a.e('s_lshl_b32 s72, s69, 16')
    a.e('s_and_b32 s73, s69, 0xffff0000')
    a.e('v_mov_b32 v56, s72')
    a.e('v_mov_b32 v57, s73')
    a.e(f's_waitcnt lgkmcnt(0) vmcnt({pre_vm})')
    a.e('s_barrier')
    for q in range(2):
        P = 64 + 32 * q
        for ch in range(2):
            for hf in range(2):
                r = P + 8 * ch + 4 * hf
                a.e(f'ds_read_b128 v[{r}:{r+3}], v{VRD} offset:{(2*ch+hf)*8*TS + q*TS}')
        for ch in range(2):
            a.e(f'ds_read_b64 v[{P+16+2*ch}:{P+17+2*ch}], v{VU} offset:{ch*UCH + q*512}')
    for q in range(2):
        P = 64 + 32 * q
        a.e(f's_waitcnt lgkmcnt({6 if q == 0 else 0})')
        for ch in range(2):
            y = P + 8 * ch
            T = 128 + 16 * ch
            u = P + 16 + 2 * ch
            for h in range(2):
                a.e(f'v_pk_add_f32 v[{y+2*h}:{y+2*h+1}], v[{y+2*h}:{y+2*h+1}], v[{y+4+2*h}:{y+5+2*h}]')
            for i in range(4):
                a.e(f'v_fma_mix_f32 v{T+i}, v{u+i//2}, v{56+ch}, 0 op_sel:[{i%2},0,0] op_sel_hi:[1,0,0]')
            for h in range(2):
                a.e(f'v_pk_mul_f32 v[{y+2*h}:{y+2*h+1}], v[{y+2*h}:{y+2*h+1}], v[54:55] op_sel:[0,{ch}] op_sel_hi:[1,{ch}]')
            for h in range(2):
                a.e(f'v_cvt_pk_bf16_f32 v{T+6+h}, v{T+2*h}, v{T+2*h+1}')
                a.e(f'v_cvt_pk_bf16_f32 v{T+4+h}, v{y+2*h}, v{y+2*h+1}')
            for h in range(2):
                a.e(f'v_lshlrev_b32 v{T+2*h}, 16, v{T+6+h}')
                a.e(f'v_and_b32 v{T+2*h+1}, 0xffff0000, v{T+6+h}')
                a.e(f'v_lshlrev_b32 v{y+2*h}, 16, v{T+4+h}')
                a.e(f'v_and_b32 v{y+2*h+1}, 0xffff0000, v{T+4+h}')
            for h in range(2):
                a.e(f'v_pk_add_f32 v[{y+2*h}:{y+2*h+1}], v[{y+2*h}:{y+2*h+1}], v[{T+2*h}:{T+2*h+1}]')
        O = 160 + 4 * q
        for i in range(4):
            a.e(f'v_cvt_pk_bf16_f32 v{O+i}, v{P+i}, v{P+8+i}')
        a.e(f'buffer_store_dwordx4 v[{O}:{O+3}], v{VG}, {WSR}, 0 offen offset:{q*1024} sc1')


def conv_addr(a, va=48, vb=49):
    a.e(f's_lshr_b32 s66, s{S_W}, 1')
    a.e(f's_and_b32 s67, s{S_W}, 1')
    a.e('v_and_b32 v2, 7, v1')
    a.e('v_sub_u32 v2, 7, v2')
    if OPT['c4']:
        a.e('v_lshrrev_b32 v5, 2, v2')
        a.e('v_and_b32 v2, 3, v2')
        a.e(f'v_mul_u32_u24 v2, {KCOPY}, v2')
        a.e('v_lshl_add_u32 v2, v5, 3, v2')
    else:
        a.e(f'v_mul_u32_u24 v2, {KCOPY}, v2')
    a.e('v_lshrrev_b32 v3, 4, v1')
    a.e('v_bfe_u32 v4, v1, 3, 1')
    a.e('v_sub_u32 v4, v3, v4')
    a.e('v_lshl_add_u32 v2, v4, 4, v2')
    a.e(f's_mul_i32 s70, s66, {kch()}')
    a.e('s_lshl_b32 s71, s67, 8')
    a.e('s_sub_u32 s70, s70, s71')
    a.e(f's_add_u32 s70, s70, {L_KC + 16*253 - 512*7 - 64*3}')
    a.e(f'v_add_u32 v{va}, s70, v2')
    a.e('v_and_b32 v2, 15, v1')
    a.e('v_lshlrev_b32 v2, 5, v2')
    a.e('v_lshl_add_u32 v2, v3, 4, v2')
    a.e(f's_mul_i32 s70, s66, {UCH}')
    a.e('s_sub_u32 s70, s70, s71')
    a.e(f's_add_u32 s70, s70, {L_U + 480 - 64*3}')
    a.e(f'v_add_u32 v{vb}, s70, v2')


def p4_pre(a):
    X = list(range(8, 16))
    xrow_addr(a)
    a.e(f's_mul_i32 s66, s{S_W}, {56*AST}')
    a.e(f's_lshl_b32 s67, s{S_B}, 5')
    a.e('s_add_u32 s66, s66, s67')
    a.e(f's_add_u32 s66, s66, {WS_AOUT}')
    a.e(f'v_mul_u32_u24 v4, {AST}, v1')
    a.e('v_add_u32 v4, s66, v4')
    a.e(f'v_mov_b32 v5, {OOB}')
    a.e('v_cndmask_b32 v4, v5, v4, vcc')
    if OPT['hpriv']:
        a.e(f's_mul_i32 s66, s{S_W}, 1792')
        a.e(f's_add_u32 s66, s66, {L_HT}')
        a.e('v_lshl_add_u32 v6, v1, 2, s66')
        a.e('v_lshl_add_u32 v7, v1, 4, s66')
        a.e(f's_mul_i32 s66, s{S_B}, 7168')
        a.e(f's_mul_i32 s67, s{S_W}, 224')
        a.e('s_add_u32 s66, s66, s67')
        a.e(f's_add_u32 s66, s66, {WS_H}')
        for k, vd in ((0, 56), (64, 57)):
            a.e(f'v_add_u32 v58, {k}, v1')
            a.e('v_mul_u32_u24 v59, 4682, v58')
            a.e('v_lshrrev_b32 v59, 16, v59')
            a.e(f'v_mul_u32_u24 v{vd}, {896 - 224}, v59')
            a.e(f'v_lshl_add_u32 v{vd}, v58, 4, v{vd}')
            a.e(f'v_add_u32 v{vd}, s66, v{vd}')
        mask_lanes(a, 57, 48, 58)
    else:
        a.e(f's_mul_i32 s66, s{S_W}, 224')
        a.e(f's_add_u32 s66, s66, {L_HT}')
        a.e('v_lshl_add_u32 v6, v1, 2, s66')
    for j in range(8):
        a.e(f'v_lshlrev_b32 v{64+2*j}, 16, v{X[j]}')
        a.e(f'v_and_b32 v{65+2*j}, 0xffff0000, v{X[j]}')


def p4_loads(a):
    A = 32
    a.e(f'buffer_load_dwordx4 v[{A}:{A+3}], v4, {WSR}, 0 offen sc1')
    a.e(f'buffer_load_dwordx4 v[{A+4}:{A+7}], v4, {WSR}, 0 offen offset:16 sc1')


def p4_check(a):
    A = 32
    a.e(f'v_max3_u32 v40, v{A}, v{A+1}, v{A+2}')
    a.e(f'v_max3_u32 v41, v{A+3}, v{A+4}, v{A+5}')
    a.e(f'v_max3_u32 v40, v40, v{A+6}, v{A+7}')
    a.e('v_max_u32 v40, v40, v41')
    a.e('v_cmp_eq_u32 vcc, -1, v40')


def phase_p4(a, dmas=(), pre_done=None):
    X = list(range(8, 16))
    A = 32
    if pre_done is None:
        p4_pre(a)
        lp0, ld = a.lab('h2poll0'), a.lab('h2done')
    else:
        lp0, ld = pre_done
    lp = a.lab('h2poll')
    a.e(f'{lp0}:')
    a.e(f's_mov_b32 s{S_SPIN}, 0')
    a.e(f'{lp}:')
    p4_loads(a)
    a.e('s_waitcnt vmcnt(0)')
    p4_check(a)
    a.e(f's_cbranch_vccz {ld}')
    spin_tail(a, lp)
    a.e(f'{ld}:')
    stamp(a, 14)
    H = list(range(48, 56))
    for j in range(8):
        t = 40 + 2 * (j % 4)
        a.e(f'v_lshlrev_b32 v{t}, 16, v{A+j}')
        a.e(f'v_and_b32 v{t+1}, 0xffff0000, v{A+j}')
        a.e(f'v_pk_add_f32 v[{t}:{t+1}], v[{t}:{t+1}], v[{64+2*j}:{65+2*j}]')
        a.e(f'v_cvt_pk_bf16_f32 v{H[j]}, v{t}, v{t+1}')
    a.e('s_mov_b32 exec_hi, 0x00ffffff')
    for j in range(8):
        a.e(f'ds_write_b32 v6, v{H[j]} offset:{j*(224 if OPT["hpriv"] else 896)}')
    a.e('s_mov_b32 exec_hi, -1')
    if OPT['hpriv']:
        a.e('ds_read_b128 v[32:35], v7')
        a.e('ds_read_b128 v[36:39], v7 offset:1024')
        a.e('s_waitcnt lgkmcnt(1)')
        a.e(f'buffer_store_dwordx4 v[32:35], v56, {WSR}, 0 offen sc1')
        a.e('s_waitcnt lgkmcnt(0)')
        a.e(f'buffer_store_dwordx4 v[36:39], v57, {WSR}, 0 offen sc1')
        if dmas:
            a.inject(dmas, OPT['p4ev'])
        ln_stats(a, H, 16, L_RED0, 5)
    else:
        def hstore():
            a.e('v_lshlrev_b32 v7, 4, v0')
            a.e(f'ds_read_b128 v[56:59], v7 offset:{L_HT}')
            a.e(f'ds_read_b128 v[60:63], v7 offset:{L_HT + 4096}')
            return 2

        ln_stats(a, H, 16, L_RED0, 5, mid=hstore)
        a.e(f's_mul_i32 s66, s{S_B}, 7168')
        a.e(f's_add_u32 s66, s66, {WS_H}')
        a.e('v_add_u32 v6, s66, v7')
        a.e('v_add_u32 v7, 4096, v6')
        mask_lanes(a, 7, 192, 4, 'v0')
        a.e('s_waitcnt lgkmcnt(0)')
        a.e(f'buffer_store_dwordx4 v[56:59], v6, {WSR}, 0 offen sc1')
        a.e(f'buffer_store_dwordx4 v[60:63], v7, {WSR}, 0 offen sc1')
    bcast_stats(a, 16)
    a.inj_pause()
    a.e('s_mov_b32 exec_hi, 0x00ffffff')
    for j in range(8):
        t = 40 + 2 * (j % 4)
        norm_tok(a, j, H[j], t)
        a.e(f'v_cvt_pk_bf16_f32 v{H[j]}, v{t}, v{t+1}')
    a.e('s_mov_b32 exec_hi, -1')
    a.inj_resume()
    ln_stats(a, H, 16, L_RED1, 5)
    bcast_stats(a, 16)
    VHH = 213 if OPT['hoist'] else 4
    if not OPT['hoist']:
        a.e(f's_mul_i32 s66, s{S_B}, 7168')
        a.e(f's_mul_i32 s67, s{S_W}, 1792')
        a.e('s_add_u32 s66, s66, s67')
        a.e(f's_add_u32 s66, s66, {WS_HH}')
        a.e('v_lshl_add_u32 v4, v1, 4, s66')
        a.e('v_add_u32 v5, 448, v4')
        a.e('v_cmp_gt_u32 vcc, 28, v1')
        a.e('v_cndmask_b32 v4, v5, v4, vcc')
        mask_lanes(a, 4, 56, 5)
    for j in range(8):
        norm_tok(a, j, H[j], 64 + 2 * j)
    O0, O1 = 80, 84
    for i in range(4):
        a.e(f'v_cvt_pk_bf16_f32 v{O0+i}, v{64+4*i}, v{66+4*i}')
        a.e(f'v_cvt_pk_bf16_f32 v{O1+i}, v{65+4*i}, v{67+4*i}')
    a.inj_flush()
    if not OPT['nohw']:
        a.e(f's_waitcnt vmcnt({len(dmas)})')
    if not OPT['hpriv']:
        a.e('s_barrier')
    a.e(f'buffer_store_dwordx4 v[{O0}:{O0+3}], v{VHH}, {WSR}, 0 offen sc1')
    a.e(f'buffer_store_dwordx4 v[{O1}:{O1+3}], v{VHH}, {WSR}, 0 offen offset:448 sc1')


def w_setup(a):
    srd(a, S_W1, P_W1, W1BYTES)
    srd(a, S_W2, P_W2, W2BYTES)
    a.e('v_lshrrev_b32 v4, 3, v1')
    a.e('v_bfe_u32 v5, v1, 4, 1')
    a.e('v_lshlrev_b32 v5, 1, v5')
    a.e('v_and_b32 v6, 7, v1')
    a.e('v_xor_b32 v6, v6, v5')
    a.e('v_xor_b32 v7, 4, v6')
    for vd, rowbytes, tile, rows in ((V_D1, F * 2, S_I1, 512), (V_D2, L * 2, S_I2, 448)):
        a.e(f's_mov_b32 s66, {rowbytes}')
        a.e('v_mul_lo_u32 v5, v4, s66')
        a.e(f's_mul_i32 s67, s{S_W}, {rows*rowbytes}')
        a.e(f's_lshl_b32 s66, s{tile}, 7')
        a.e('s_add_u32 s67, s67, s66')
        a.e('v_add_u32 v5, s67, v5')
        for i in range(4):
            a.e(f'v_lshl_add_u32 v{vd+i}, v{6 + (i & 1)}, 4, v5')
            if i:
                a.e(f'v_add_u32 v{vd+i}, {i*(8*rowbytes - 1024)}, v{vd+i}')
    a.e('v_lshlrev_b32 v5, 12, v4')
    a.e('v_and_b32 v6, 7, v1')
    a.e(f'v_lshl_add_u32 v{V_QPF}, v6, 4, v5')
    a.e(f's_and_b32 s66, s{S_LOC}, 3')
    a.e('s_mul_i32 s66, s66, 448')
    if OPT['sched'] == 3:
        a.e(f's_mul_i32 s67, s{S_W}, {(448 - OPT["hR"]) // 4}')
        a.e(f's_add_u32 s67, s67, {OPT["hR"]}')
    else:
        a.e(f's_mul_i32 s67, s{S_W}, 112')
    a.e('s_add_u32 s66, s66, s67')
    a.e('s_lshl_b32 s66, s66, 12')
    a.e(f's_lshl_b32 s67, s{S_I2}, 7')
    a.e(f's_add_u32 s{S_QPF}, s66, s67')
    a.e('v_lshrrev_b32 v4, 4, v1')
    a.e('v_bfe_u32 v5, v1, 2, 2')
    a.e('v_lshl_add_u32 v5, v4, 3, v5')
    a.e('v_lshlrev_b32 v5, 7, v5')
    a.e('v_and_b32 v6, 1, v1')
    a.e('v_lshl_add_u32 v5, v6, 3, v5')
    a.e('v_bfe_u32 v6, v1, 1, 1')
    a.e('v_lshl_add_u32 v5, v6, 4, v5')
    a.e('v_bfe_u32 v6, v1, 3, 1')
    a.e('v_and_b32 v4, 1, v4')
    a.e('v_lshl_add_u32 v6, v4, 1, v6')
    a.e(f's_and_b32 s66, s{S_LOC}, 3')
    a.e(f's_lshr_b32 s67, s{S_LOC}, 2')
    a.e('s_lshl_b32 s67, s67, 1')
    a.e('s_lshl_b32 s70, s66, 2')
    a.e('s_add_u32 s70, s70, s67')
    a.e('s_and_b32 s70, s70, 15')
    a.e(f's_mul_i32 s{S_RW1}, s70, {32*F*2}')
    a.e(f's_mul_i32 s{S_RX1}, s70, {4*7168}')
    a.e('s_mul_i32 s66, s66, 7')
    a.e('s_lshr_b32 s66, s66, 1')
    a.e('s_add_u32 s66, s66, s67')
    for _ in range(2):
        a.e('s_cmp_ge_u32 s66, 14')
        a.e('s_cselect_b32 s67, 14, 0')
        a.e('s_sub_u32 s66, s66, s67')
    a.e(f's_mul_i32 s{S_RW2}, s66, {32*L*2}')
    a.e(f's_mul_i32 s{S_RX2}, s66, {4*7168}')
    a.e(f's_lshl_b32 s{S_SA}, s{S_W}, 14')
    a.e(f's_add_u32 s{S_SA}, s{S_SA}, {L_WA}')
    a.e(f's_mul_i32 s{S_SB}, s{S_W}, 20480')
    a.e(f's_add_u32 s{S_SB}, s{S_SB}, {L_WB}')
    a.e(f's_lshl_b32 s{S_SC}, s{S_W}, 13')
    a.e(f's_add_u32 s{S_SC}, s{S_SC}, {L_WC}')
    for mu in range(4):
        a.e(f'v_xor_b32 v4, {mu}, v6')
        a.e('v_lshl_add_u32 v4, v4, 5, v5')
        a.e(f'v_add_u32 v{V_TA+mu}, s{S_SA}, v4')
        a.e(f'v_add_u32 v{V_TB+mu}, s{S_SB}, v4')
        a.e(f'v_add_u32 v{V_TC+mu}, s{S_SC}, v4')


def rot_off(a, idx, sreg, n, unit):
    a.e(f's_add_u32 s70, s{sreg}, {idx*unit}')
    a.e(f's_cmp_ge_u32 s70, {n*unit}')
    a.e(f's_cselect_b32 s71, {n*unit}, 0')
    a.e('s_sub_u32 s70, s70, s71')


def slot(name):
    return {'A': (S_SA, V_TA), 'B': (S_SB, V_TB), 'C': (S_SC, V_TC)}[name[0]] + (int(name[1]),)


def w_dma1(a, mat, slab, sl, i):
    sb, _, si = slot(sl)
    vd, srd_, rowbytes = (V_D1, S_W1, F * 2) if mat == 1 else (V_D2, S_W2, L * 2)
    if i == 0:
        rot_off(a, slab, S_RW1 if mat == 1 else S_RW2, 16 if mat == 1 else 14, 32 * rowbytes)
        a.e(f's_add_u32 m0, s{sb}, {si*4096}')
    a.e(f'buffer_load_dwordx4 v{vd + i}, s[{srd_}:{srd_+3}], s70 offen offset:{1024*i} lds')


def w_dma(a, mat, slab, sl):
    for i in range(4):
        w_dma1(a, mat, slab, sl, i)


def w_tr(a, slab, sl):
    _, vt, si = slot(sl)
    for mu in range(4):
        r = (slab * 4 + mu) * 4
        a.e(f'ds_read_b64_tr_b16 a[{r}:{r+1}], v{vt+mu} offset:{si*4096}')
        a.e(f'ds_read_b64_tr_b16 a[{r+2}:{r+3}], v{vt+mu} offset:{si*4096 + 512}')


def helper_w2(a, nrows, mid=None):
    a.e(f's_lshr_b32 s66, s{S_XCD}, 1')
    a.e('s_lshl_b32 s66, s66, 10')
    a.e(f's_sub_u32 s67, s{S_LOC}, 28')
    a.e('s_mul_i32 s67, s67, 448')
    a.e(f's_add_u32 s67, s67, s{S_W}')
    a.e('s_lshl_b32 s67, s67, 12')
    a.e('s_add_u32 s90, s66, s67')
    a.e('v_lshlrev_b32 v4, 4, v1')

    def loop(n):
        if n <= 0:
            return
        l = a.lab('l2s')
        a.e(f's_mov_b32 s91, {n}')
        a.e(f'{l}:')
        for i in range(4):
            a.e(f'buffer_load_dwordx4 v[220:223], v4, s[{S_W2}:{S_W2+3}], s90 offen')
            a.e(f's_add_u32 s90, s90, {4*L*2}')
        a.e('s_waitcnt vmcnt(8)')
        a.e('s_sub_u32 s91, s91, 1')
        a.e('s_cmp_lg_u32 s91, 0')
        a.e(f's_cbranch_scc1 {l}')

    total = nrows // 16
    if mid is None:
        loop(total)
        return
    n1, issue, check = mid
    loop(n1)
    issue()
    loop(3)
    check()
    loop(total - n1 - 3)


def qpf_load(a, n):
    for _ in range(n):
        a.e(f'buffer_load_dwordx4 v[220:223], v{V_QPF}, s[{S_W2}:{S_W2+3}], s{S_QPF} offen')
        a.e(f's_add_u32 s{S_QPF}, s{S_QPF}, {8*L*2}')


ACC = 16
XS = 80
NS = 6
VMAX = 214
V_X0, V_X3 = 208, 209


def gemm_xaddr(a, ws_off, kblocks):
    a.e(f's_mul_i32 s66, s{S_W}, {kblocks*7168}')
    a.e(f's_mul_i32 s67, s{S_J}, 896')
    a.e('s_add_u32 s66, s66, s67')
    a.e(f's_add_u32 s66, s66, {ws_off}')
    a.e('v_lshrrev_b32 v4, 4, v1')
    a.e('v_mul_u32_u24 v4, 7168, v4')
    a.e('v_add_u32 v4, s66, v4')
    a.e('v_and_b32 v5, 15, v1')
    a.e(f'v_lshl_add_u32 v{V_X0}, v5, 4, v4')
    if OPT['x3oob']:
        a.e(f'v_add_u32 v{V_X3}, 768, v{V_X0}')
        a.e(f'v_mov_b32 v4, {OOB}')
        a.e('v_cmp_gt_u32 vcc, 8, v5')
        a.e(f'v_cndmask_b32 v{V_X3}, v4, v{V_X3}, vcc')
    else:
        a.e('v_and_b32 v5, 7, v1')
        a.e('v_lshl_add_u32 v4, v5, 4, v4')
        a.e(f'v_add_u32 v{V_X3}, 768, v4')


def gemm_xloads(a, kappa, gid):
    st = XS + 16 * (kappa % NS)
    out = []
    sreg, n = (S_RX1, 16) if gid == 1 else (S_RX2, 14)
    unit = 4 * 7168
    out.append(f's_add_u32 s70, s{sreg}, {kappa*unit}')
    out.append(f's_cmp_ge_u32 s70, {n*unit}')
    out.append(f's_cselect_b32 s71, {n*unit}, 0')
    out.append('s_sub_u32 s70, s70, s71')
    for nu in range(3):
        out.append(f'buffer_load_dwordx4 v[{st+4*nu}:{st+4*nu+3}], v{V_X0}, {WSR}, s70 offen offset:{256*nu} sc1')
    out.append(f'buffer_load_dwordx4 v[{st+12}:{st+15}], v{V_X3}, {WSR}, s70 offen sc1')
    return out


def xhalf(a, kappa, h, gid):
    full = gemm_xloads(a, kappa, gid)
    return full[:4] + (full[4:6] if h == 0 else full[6:8])


def xseq(a, lo, hi, nk, gid):
    out = []
    i = lo
    while i < min(hi, 2 * nk):
        if i % 2 == 0 and i + 1 < min(hi, 2 * nk):
            out += gemm_xloads(a, i // 2, gid)
            i += 2
        else:
            out += xhalf(a, i // 2, i % 2, gid)
            i += 1
    return out


def x_ahead():
    return 2 * OPT['nfl'] + OPT['hf']


def gemm_main(a, nk, gid, tail_hook=None):
    nfl = OPT['nfl']
    w_is_a = gid == 1
    a.e(f'v_mov_b32 v{VMAX}, 0')
    extra = 0
    for k in range(nk):
        st = XS + 16 * (k % NS)
        rem = min(nfl - 1, nk - 1 - k)
        a.e(f's_waitcnt vmcnt({4*rem + extra})')
        if OPT['stamps'] and k in (0, 4, 8, 12):
            stamp(a, (44 if w_is_a else 51) + (0, 4, 8, 12).index(k))
        fill = gemm_xloads(a, k + nfl, gid) if k + nfl < nk else []
        if k + nfl == nk and tail_hook is not None:
            fill = []
            extra = tail_hook(fill)
        mx = [f'v_max3_u32 v{VMAX}, v{VMAX}, v{st+2*i}, v{st+2*i+1}' for i in range(8)]
        n = 0
        for mu in range(4):
            for nu in range(4):
                w = (k * 4 + mu) * 4
                x = st + 4 * nu
                if w_is_a:
                    acc = ACC + (mu * 4 + nu) * 4
                    A, B = f'a[{w}:{w+3}]', f'v[{x}:{x+3}]'
                else:
                    acc = ACC + (nu * 4 + mu) * 4
                    A, B = f'v[{x}:{x+3}]', f'a[{w}:{w+3}]'
                cc = '0' if k == 0 else f'v[{acc}:{acc+3}]'
                a.e(f'v_mfma_f32_16x16x32_bf16 v[{acc}:{acc+3}], {A}, {B}, {cc}')
                for _ in range(2):
                    if fill:
                        a.e(fill.pop(0))
                if not fill and mx and n >= 4:
                    a.e(mx.pop(0))
                n += 1
        assert not fill and not mx


def capture(fn):
    p = Prog()
    fn(p)
    return [it.text for it in p.items]


STUBS = []


def mfma_line(k, mu, nu, gid):
    st = XS + 16 * (k % NS)
    w = (k * 4 + mu) * 4
    x = st + 4 * nu
    if gid == 1:
        acc = ACC + (mu * 4 + nu) * 4
        A, B = f'a[{w}:{w+3}]', f'v[{x}:{x+3}]'
    else:
        acc = ACC + (nu * 4 + mu) * 4
        A, B = f'v[{x}:{x+3}]', f'a[{w}:{w+3}]'
    cc = '0' if k == 0 else f'v[{acc}:{acc+3}]'
    return f'v_mfma_f32_16x16x32_bf16 v[{acc}:{acc+3}], {A}, {B}, {cc}'


def poison_check(k):
    st = XS + 16 * (k % NS)
    out = [f'v_max3_u32 v{VMAX}, v{st}, v{st+1}, v{st+2}']
    for i in range(6):
        out.append(f'v_max3_u32 v{VMAX}, v{VMAX}, v{st+3+2*i}, v{st+4+2*i}')
    out.append(f'v_max_u32 v{VMAX}, v{VMAX}, v{st+15}')
    out.append(f'v_cmp_eq_u32 vcc, -1, v{VMAX}')
    return out


def is_scalar(x):
    return x.startswith('s_')


def emit_gaps(a, mf, fillers):
    q = list(fillers)
    for i, m in enumerate(mf):
        a.e(m)
        nv = ns = 0
        left = len(mf) - 1 - i
        while q:
            x = q[0]
            if is_scalar(x):
                if ns >= 1 and left > 0:
                    break
                ns += 1
            else:
                if nv >= 2 and left > 0:
                    break
                nv += 1
            a.e(q.pop(0))
    assert not q


def gemm_gap_loop(a, nk, gid, slow, tail_hook, side):
    assert OPT['hf'] == 0
    nfl = OPT['nfl']
    extra = 0

    def xl(kappa):
        return [x.replace('s70', 's92').replace('s71', 's93') for x in gemm_xloads(a, kappa, gid)]

    for k in range(nk):
        lines = [mfma_line(k, mu, nu, gid) for mu in range(4) for nu in range(4)]
        kn = k + 1
        nxt = xl(kn + nfl) if (kn < nk and kn + nfl < nk) else []
        first = nxt[:4]
        if side is not None:
            lines_, nvm = side(k)
            first = first + lines_
            extra += nvm
        emit_gaps(a, lines[:8], first)
        second = []
        if kn < nk:
            rem = min(nfl - 1, nk - 1 - kn)
            a.e(f's_waitcnt vmcnt({4*rem + extra})')
            if OPT['stamps'] and kn in (4, 8, 12):
                stamp(a, (44 if gid == 1 else 51) + (0, 4, 8, 12).index(kn))
            loads = nxt[4:]
            if kn + nfl == nk and tail_hook is not None:
                t = []
                extra += tail_hook(t)
                loads = [x.replace('s70', 's92') for x in t]
            chk = poison_check(kn)
            while loads or chk:
                if loads:
                    x = loads.pop(0)
                    second.append(x)
                    if is_scalar(x):
                        continue
                if chk:
                    second.append(chk.pop(0))
                    if not loads and chk:
                        second.append(chk.pop(0))
        emit_gaps(a, lines[8:], second)
        if kn < nk:
            ls, lb = slow(kn)
            a.e(f's_cbranch_vccnz {ls}')
            a.e(f'{lb}:')


def gemm_checked(a, nk, gid, sb, tail_hook=None, side=None, issued=False):
    nfl = OPT['nfl']

    def slow(k):
        ls, lb, lp = a.lab('slow'), a.lab('back'), a.lab('sloop')

        def emit():
            a.e(f'{ls}:')
            a.e(f's_mov_b32 s{S_SPIN}, 0')
            a.e(f'{lp}:')
            for x in gemm_xloads(a, k, gid):
                a.e(x)
            a.e('s_waitcnt vmcnt(0)')
            for x in poison_check(k):
                a.e(x)
            ldone = a.lab('sdone')
            a.e(f's_cbranch_vccz {ldone}')
            spin_tail(a, lp)
            a.e(f'{ldone}:')
            if k == 0:
                for x in xseq(a, 2, x_ahead() + 2, nk, gid):
                    a.e(x)
            a.e(f's_branch {lb}')
        STUBS.append(emit)
        return ls, lb

    ah = x_ahead()
    if not issued:
        for x in xseq(a, 0, ah, nk, gid):
            a.e(x)
    a.e(f's_waitcnt vmcnt({2*(ah-2)})')
    for x in xseq(a, ah, ah + 2, nk, gid):
        a.e(x)
    for x in poison_check(0):
        a.e(x)
    ls, lb = slow(0)
    a.e(f's_cbranch_vccnz {ls}')
    a.e(f'{lb}:')
    if OPT['gap']:
        stamp(a, sb)
        gemm_gap_loop(a, nk, gid, slow, tail_hook, side)
        return
    stamp(a, sb)
    extra = 0
    for k in range(nk):
        lines = [mfma_line(k, mu, nu, gid) for mu in range(4) for nu in range(4)]
        for i in range(8):
            a.e(lines[i])
        if k + 1 < nk:
            kn = k + 1
            issued_h = min(ah + 2 * kn, 2 * nk)
            a.e(f's_waitcnt vmcnt({2*(issued_h - 2*kn - 2) + extra})')
            if OPT['stamps'] and kn in (4, 8, 12):
                stamp(a, (44 if gid == 1 else 51) + (0, 4, 8, 12).index(kn))
            fill = xseq(a, issued_h, issued_h + 2, nk, gid)
            if kn + nfl == nk and tail_hook is not None:
                assert issued_h + 2 >= 2 * nk
                extra = tail_hook(fill)
            if side is not None:
                lines_, nvm = side(kn)
                fill += lines_
                extra += nvm
            fill += poison_check(kn)
        else:
            fill = []
        per = -(-len(fill) // 8)
        for i in range(8, 16):
            a.e(lines[i])
            for _ in range(per):
                if fill:
                    a.e(fill.pop(0))
        assert not fill
        if k + 1 < nk:
            ls, lb = slow(k + 1)
            a.e(f's_cbranch_vccnz {ls}')
            a.e(f'{lb}:')


def sentinel(a, ws_off, kblocks):
    lp, ld = a.lab('spoll'), a.lab('sdone')
    a.e(f's_mul_i32 s66, s{S_W}, {kblocks*7168}')
    a.e(f's_mul_i32 s67, s{S_J}, 896')
    a.e('s_add_u32 s66, s66, s67')
    a.e(f's_add_u32 s66, s66, {ws_off + 55*16 + 12}')
    a.e('v_mul_u32_u24 v4, 7168, v1')
    a.e('v_add_u32 v4, s66, v4')
    if kblocks < 64:
        mask_lanes(a, 4, kblocks, 5)
    a.e(f's_mov_b32 s{S_SPIN}, 0')
    a.e(f'{lp}:')
    a.e(f'buffer_load_dword v5, v4, {WSR}, 0 offen sc1')
    a.e('s_waitcnt vmcnt(0)')
    a.e('v_cmp_eq_u32 vcc, -1, v5')
    a.e(f's_cbranch_vccz {ld}')
    spin_tail(a, lp)
    a.e(f'{ld}:')


def gemm_first_loads(a, ws_off, kblocks, gid):
    gemm_xaddr(a, ws_off, kblocks)
    for x in xseq(a, 0, x_ahead(), 16 if gid == 1 else 14, gid):
        a.e(x)
    return 2 * x_ahead()


def gemm_poll_main(a, ws_off, kblocks, nk, gid, sb, tail_hook=None, side=None, issued=False):
    lr, lok = a.lab('gretry'), a.lab('gok')
    if not issued:
        gemm_xaddr(a, ws_off, kblocks)
    if OPT['stchk']:
        gemm_checked(a, nk, gid, sb, tail_hook, side, issued)
        return
    a.e(f's_mov_b32 s{S_RETRY}, 0')
    a.e(f'{lr}:')
    sentinel(a, ws_off, kblocks)
    stamp(a, sb)
    for k in range(OPT['nfl']):
        for x in gemm_xloads(a, k, gid):
            a.e(x)
    gemm_main(a, nk, gid, tail_hook)
    a.e(f'v_cmp_eq_u32 vcc, -1, v{VMAX}')
    a.e(f's_cbranch_vccz {lok}')
    a.e(f's_add_u32 s{S_RETRY}, s{S_RETRY}, 1')
    a.e(f's_cmp_lt_u32 s{S_RETRY}, {RETRY_MAX}')
    a.e(f's_cbranch_scc1 {lr}')
    a.e(f'{lok}:')


def write_partials(a):
    if OPT['hoist']:
        va = 241
    else:
        va = 4
        a.e('v_and_b32 v4, 15, v1')
        a.e(f'v_mul_u32_u24 v4, {PROW}, v4')
        a.e('v_lshrrev_b32 v5, 4, v1')
        a.e('v_lshl_add_u32 v4, v5, 4, v4')
        a.e(f's_mul_i32 s66, s{S_W}, {PARTW}')
        a.e(f's_add_u32 s66, s66, {L_PART}')
        a.e('v_add_u32 v4, s66, v4')
    if not OPT['prebar']:
        a.e('s_barrier')
    for mt in range(4):
        for nt in range(4):
            acc = ACC + (mt * 4 + nt) * 4
            a.e(f'ds_write_b128 v{va}, v[{acc}:{acc+3}] offset:{nt*16*PROW + mt*64}')


def sum_partials(a, P):
    for h in range(4):
        a.e(f'v_pk_add_f32 v[{P+2*h}:{P+2*h+1}], v[{P+2*h}:{P+2*h+1}], v[{P+8+2*h}:{P+9+2*h}]')
        a.e(f'v_pk_add_f32 v[{P+16+2*h}:{P+17+2*h}], v[{P+16+2*h}:{P+17+2*h}], v[{P+24+2*h}:{P+25+2*h}]')
    for h in range(4):
        a.e(f'v_pk_add_f32 v[{P+2*h}:{P+2*h+1}], v[{P+2*h}:{P+2*h+1}], v[{P+16+2*h}:{P+17+2*h}]')


def b1_load(a):
    a.e(f's_lshl_b32 s67, s{S_I1}, 7')
    a.e(f's_lshl_b32 s70, s{S_W}, 5')
    a.e('s_add_u32 s67, s67, s70')
    a.e(f's_load_dwordx8 s[72:79], s[{P_B1}:{P_B1+1}], s67')


def gemm1_epilogue(a, d0=(), d1=()):
    write_partials(a)
    if OPT['hoist']:
        VR1, VG1 = 242, 240
    else:
        VR1, VG1 = 4, 5
        a.e(f'v_mul_u32_u24 v4, {PROW}, v1')
        a.e(f's_lshl_b32 s66, s{S_W}, 6')
        a.e(f's_add_u32 s66, s66, {L_PART}')
        a.e('v_add_u32 v4, s66, v4')
        g_store_addr(a, 5)
    C1 = 0.044715
    C2 = -2.0 * 0.7978845608028654 * 1.4426950408889634
    a.e(f'v_mov_b32 v100, {fx(C1*C2)}')
    a.e(f'v_mov_b32 v101, {fx(C1*C2)}')
    a.e(f'v_mov_b32 v102, {fx(C2)}')
    a.e(f'v_mov_b32 v103, {fx(C2)}')
    a.e('s_waitcnt lgkmcnt(0)')
    a.e('s_barrier')
    stamp(a, 24)
    for r in range(2):
        P = 16 + 32 * r
        for wv in range(4):
            a.e(f'ds_read_b128 v[{P+8*wv}:{P+8*wv+3}], v{VR1} offset:{wv*PARTW + r*32}')
            a.e(f'ds_read_b128 v[{P+8*wv+4}:{P+8*wv+7}], v{VR1} offset:{wv*PARTW + r*32 + 16}')
    for i in range(8):
        a.e(f's_lshl_b32 s{80+2*i}, s{72+i}, 16')
        a.e(f's_and_b32 s{81+2*i}, s{72+i}, 0xffff0000')
    for r in range(2):
        P = 16 + 32 * r
        T = 80
        a.e(f's_waitcnt lgkmcnt({8 if r == 0 else 0})')
        if r == 1 and d1:
            a.e('s_barrier')
        dd = d0 if r == 0 else d1
        if dd:
            a.inject(dd, max(1, 80 // len(dd)))
        sum_partials(a, P)
        round_pairs(a, P, T, 8)
        for h in range(4):
            a.e(f'v_pk_add_f32 v[{P+2*h}:{P+2*h+1}], v[{P+2*h}:{P+2*h+1}], s[{80+8*r+2*h}:{81+8*r+2*h}]')
        round_pairs(a, P, T, 8)
        for h in range(4):
            a.e(f'v_pk_mul_f32 v[{P+8+2*h}:{P+9+2*h}], v[{P+2*h}:{P+2*h+1}], v[{P+2*h}:{P+2*h+1}]')
        for h in range(4):
            a.e(f'v_pk_fma_f32 v[{P+8+2*h}:{P+9+2*h}], v[{P+8+2*h}:{P+9+2*h}], v[100:101], v[102:103]')
        for h in range(4):
            a.e(f'v_pk_mul_f32 v[{P+8+2*h}:{P+9+2*h}], v[{P+8+2*h}:{P+9+2*h}], v[{P+2*h}:{P+2*h+1}]')
        for i in range(8):
            a.e(f'v_exp_f32 v{P+8+i}, v{P+8+i}')
        for h in range(4):
            a.e(f'v_pk_add_f32 v[{P+8+2*h}:{P+9+2*h}], v[{P+8+2*h}:{P+9+2*h}], 1.0 op_sel_hi:[1,0]')
        for i in range(8):
            a.e(f'v_rcp_f32 v{P+8+i}, v{P+8+i}')
        for h in range(4):
            a.e(f'v_pk_mul_f32 v[{P+2*h}:{P+2*h+1}], v[{P+2*h}:{P+2*h+1}], v[{P+8+2*h}:{P+9+2*h}]')
        O = 88 + 4 * r
        for h in range(4):
            a.e(f'v_cvt_pk_bf16_f32 v{O+h}, v{P+2*h}, v{P+2*h+1}')
        a.inj_flush()
        if r == 1:
            a.e(f'v_add_u32 v{VG1}, 7168, v{VG1}')
        a.e(f'buffer_store_dwordx4 v[{O}:{O+3}], v{VG1}, {WSR}, 0 offen sc1')


V_OUT, V_HAD, V_B2 = 210, 211, 212
V_HR = 196


def gemm2_addr(a):
    srd(a, S_T2, P_OUT, XBYTES)
    srd(a, S_T3, P_B2, L * 2)
    a.e('v_lshrrev_b32 v4, 3, v1')
    a.e('v_and_b32 v5, 7, v1')
    a.e(f's_lshl_b32 s66, s{S_W}, 4')
    a.e('v_add_u32 v4, s66, v4')
    a.e(f's_lshl_b32 s67, s{S_I2}, 6')
    a.e('v_add_u32 v7, s67, v4')
    a.e(f'v_mul_u32_u24 v{V_OUT}, 896, v7')
    a.e(f'v_lshl_add_u32 v{V_OUT}, v5, 4, v{V_OUT}')
    a.e(f's_mul_i32 s70, s{S_J}, 112')
    a.e(f'v_add_u32 v{V_OUT}, s70, v{V_OUT}')
    a.e(f'v_mov_b32 v6, {OOB}')
    a.e('v_cmp_gt_u32 vcc, 7, v5')
    a.e(f'v_cndmask_b32 v{V_OUT}, v6, v{V_OUT}, vcc')
    a.e(f'v_add_u32 v{V_HAD}, {WS_H}, v{V_OUT}')
    a.e(f'v_lshlrev_b32 v{V_B2}, 1, v7')


def gemm2_tail_loads(fill):
    fill.append(f'buffer_load_dwordx4 v[{V_HR}:{V_HR+3}], v{V_HAD}, {WSR}, 0 offen sc1')
    fill.append(f's_mov_b32 s70, {8*896}')
    fill.append(f'buffer_load_dwordx4 v[{V_HR+4}:{V_HR+7}], v{V_HAD}, {WSR}, s70 offen sc1')
    fill.append(f'buffer_load_ushort v{V_HR+8}, v{V_B2}, s[{S_T3}:{S_T3+3}], 0 offen')
    fill.append(f'buffer_load_ushort v{V_HR+9}, v{V_B2}, s[{S_T3}:{S_T3+3}], 0 offen offset:16')
    return 4


def gemm2_epilogue(a):
    write_partials(a)
    if OPT['hoist']:
        VR2 = 243
    else:
        VR2 = 6
        a.e('v_lshrrev_b32 v4, 3, v1')
        a.e('v_and_b32 v5, 7, v1')
        a.e(f's_lshl_b32 s66, s{S_W}, 4')
        a.e('v_add_u32 v4, s66, v4')
        a.e(f'v_mul_u32_u24 v6, {PROW}, v4')
        a.e('v_lshl_add_u32 v6, v5, 4, v6')
        a.e(f'v_add_u32 v6, {L_PART}, v6')
    a.e('s_waitcnt lgkmcnt(0)')
    a.e('s_barrier')
    stamp(a, 33)
    for r in range(2):
        P = 16 + 32 * r
        for wv in range(4):
            a.e(f'ds_read_b128 v[{P+8*wv}:{P+8*wv+3}], v{VR2} offset:{wv*PARTW + r*8*PROW}')
            a.e(f'ds_read_b128 v[{P+8*wv+4}:{P+8*wv+7}], v{VR2} offset:{wv*PARTW + r*8*PROW + 112}')
    a.e('s_waitcnt vmcnt(0)')
    for r in range(2):
        P = 16 + 32 * r
        T = 80
        H = V_HR + 4 * r
        a.e(f'v_lshlrev_b32 v106, 16, v{V_HR+8+r}')
        for i in range(4):
            a.e(f'v_lshlrev_b32 v{96+i}, 16, v{H+i}')
            a.e(f'v_and_b32 v{100+i}, 0xffff0000, v{H+i}')
        a.e(f's_waitcnt lgkmcnt({8 if r == 0 else 0})')
        sum_partials(a, P)
        round_pairs(a, P, T, 8)
        for h in range(4):
            a.e(f'v_pk_add_f32 v[{P+2*h}:{P+2*h+1}], v[{P+2*h}:{P+2*h+1}], v[106:107] op_sel:[0,0] op_sel_hi:[1,0]')
        round_pairs(a, P, T, 8)
        for h in range(4):
            a.e(f'v_pk_add_f32 v[{P+2*h}:{P+2*h+1}], v[{P+2*h}:{P+2*h+1}], v[{96+2*h}:{97+2*h}]')
        O = 88 + 4 * r
        for i in range(4):
            a.e(f'v_cvt_pk_bf16_f32 v{O+i}, v{P+i}, v{P+4+i}')
        if r == 1:
            a.e(f'v_add_u32 v{V_OUT}, {8*896}, v{V_OUT}')
        a.e(f'buffer_store_dwordx4 v[{O}:{O+3}], v{V_OUT}, s[{S_T2}:{S_T2+3}], 0 offen' + ['', ' sc1', ' nt', ' sc0 sc1', ' sc1 nt'][OPT['outsc']])


HEADER = """;
"""


def build():
    a = Prog()
    name = NAME + '_kernel'
    lend = a.lab('end')
    a.raw(f'.globl {name}')
    a.raw('.p2align 8')
    a.raw(f'.type {name},@function')
    a.raw(f'{name}:')
    prologue(a, lend)
    lnc1, lnc2, lnc3, lnc5, lnc6 = [a.lab('noconv') for _ in range(5)]

    def skip_if_helper(l):
        a.e(f's_cmp_ge_u32 s{S_LOC}, 28')
        a.e(f's_cbranch_scc1 {l}')

    load_xrows(a)
    ncp = 0
    if OPT['cpf'] & 2:
        code_prefetch1(a, name, 'kcode_end')
        ncp = 1
    a.e(f's_add_u32 s66, s{P_WS}, {WS_EPOCH}')
    a.e(f's_addc_u32 s67, s{P_WS+1}, 0')
    a.e('s_load_dword s99, s[66:67], 0')
    poison_regs(a)
    skip_if_helper(lnc1)
    nt = 0
    if not OPT['plate']:
        kgen_loads(a)
        load_gather_table(a, 'ktab_idx')
        w_setup(a)
        if OPT['tlb'] & 2:
            nt = tlb_touch(a)
        flag_addr(a)
        if OPT['hoist']:
            hoist_common(a)
            hoist_conv(a)
        a.e('s_waitcnt lgkmcnt(0)')
        a.e(f's_add_u32 s{S_TAG}, s99, 0x9e3779b9')
        a.e(f's_waitcnt vmcnt({10 + nt + ncp})')
        stamp(a, 2)
        clear_hh(a)
        clear_aout(a)
    else:
        kgen_loads(a, 'setup')
        w_setup(a)
        flag_addr(a)
        a.e(f's_waitcnt vmcnt({ncp})')
        stamp(a, 2)
        kgen_loads(a, 'issue')
        clear_hh(a)
        clear_aout(a)
        load_gather_table(a, 'ktab_idx')
        if OPT['tlb'] & 2:
            nt = tlb_touch(a)
        a.e('s_waitcnt lgkmcnt(0)')
        a.e(f's_add_u32 s{S_TAG}, s99, 0x9e3779b9')
    ln_stats(a, list(range(8, 16)), 16, L_RED0, 5)
    stamp(a, 3)
    publish_xn(a)
    nb0 = OPT['wb0']
    if OPT['sched'] == 2:
        qa, qb = OPT['qa'], OPT['qb']
        qpf_load(a, qa)
        stamp(a, 4)
        a.e(f's_waitcnt vmcnt({8 + nt + qa})')
        kgen_channel(a, 0, DK0)
        for k in range(nb0):
            w_dma(a, 1, k, BS[k])
        stamp(a, 40)
        kgen_channel(a, 1, DK1, mid=lambda: publish_flag(a, qa + 4 * nb0), mid_m0=False)
        stamp(a, 5)
        qpf_load(a, qb)
        a.e(f's_waitcnt vmcnt({qb})')
        for k in range(nb0):
            w_tr(a, k, BS[k])
        ktab_part1(a)
        stamp(a, 6)
        flag_load(a)
        ktab_part2(a)
        stamp(a, 7)
        a.e(f's_mov_b32 s{S_EARLY}, 0')
        lne = a.lab('notearly')
        a.e('s_waitcnt vmcnt(0)')
        a.e(f'v_cmp_ne_u32 vcc, s{S_TAG}, v{V_FV}')
        a.e(f's_cbranch_vccnz {lne}')
        load_u(a)
        a.e(f's_mov_b32 s{S_EARLY}, 1')
        a.e(f'{lne}:')
        conv_addr(a)
        kcopies(a)
        stamp(a, 8)
        lhave = a.lab('haveu')
        a.e(f's_cmp_lg_u32 s{S_EARLY}, 0')
        a.e(f's_cbranch_scc1 {lhave}')
        flag_poll(a)
        load_u(a)
        a.e(f'{lhave}:')
        stamp(a, 9)
        store_u(a, 0)
    elif OPT['sched'] == 3:
        nq = (448 - OPT['hR']) // 32
        ne = 0
        if OPT['cearly']:
            assert OPT['regc']
            for k in range(2):
                w_dma(a, 1, k, f'C{k}')
            q4 = min(OPT['q4'], nq)
            qpf_load(a, q4)
            ne = 8 + q4
            nq -= q4
        stamp(a, 4)
        a.e(f's_waitcnt vmcnt({8 + nt + ne})')
        m0 = kgen_channel(a, 0, DK0, defer=bool(OPT['kdefer']))
        if not OPT['flagmid']:
            publish_flag(a, ne)
        if OPT['regc']:
            nb0 = 2
            if not OPT['cearly']:
                for k in range(2):
                    w_dma(a, 1, k, f'C{k}')
        else:
            for k in range(nb0):
                w_dma(a, 1, k, BS[k])
        if OPT['cearly']:
            qpf_load(a, nq)
            nq = 0
        stamp(a, 40)
        if OPT['flagmid']:
            assert OPT['regc'] and not OPT['cearly']
            kgen_channel(a, 1, DK1, mid=lambda: publish_flag(a, 8), mid_m0=False)
        else:
            kgen_channel(a, 1, DK1, after_setup=m0)
        stamp(a, 5)
        flag_load(a)
        qpf_load(a, nq)
        if not OPT['regc']:
            a.e(f's_waitcnt vmcnt({nq + 1})')
            for k in range(nb0):
                w_tr(a, k, BS[k])
        ktab_part1(a)
        stamp(a, 6)
        a.e(f's_mov_b32 s{S_EARLY}, 0')
        lne = a.lab('notearly')
        a.e(f's_waitcnt vmcnt({nq})')
        a.e(f'v_cmp_ne_u32 vcc, s{S_TAG}, v{V_FV}')

        def early_u():
            a.e(f's_cbranch_vccnz {lne}')
            load_u(a)
            a.e(f's_mov_b32 s{S_EARLY}, 1')
            a.e(f'{lne}:')
        if OPT['uov']:
            assert OPT['hoist']
            ktab_part2(a, mid=early_u)
        else:
            early_u()
            ktab_part2(a)
        stamp(a, 7)
        if not OPT['hoist']:
            conv_addr(a)
        kcopies(a)
        stamp(a, 8)
        lhave = a.lab('haveu')
        a.e(f's_cmp_lg_u32 s{S_EARLY}, 0')
        a.e(f's_cbranch_scc1 {lhave}')
        flag_poll(a)
        load_u(a)
        a.e(f'{lhave}:')
        stamp(a, 9)
        store_u(a, 0)
    else:
        stamp(a, 4)
        a.e(f's_waitcnt vmcnt({8 + nt})')
        kgen_channel(a, 0, DK0)
        publish_flag(a)
        for k in range(min(nb0, 3)):
            w_dma(a, 1, k, BS[k])
        stamp(a, 40)
        kgen_channel(a, 1, DK1, mid=(lambda: [w_dma(a, 1, k, BS[k]) for k in range(3, nb0)]) if nb0 > 3 else None)
        stamp(a, 5)
        if OPT['early']:
            flag_load(a)
            a.e('s_waitcnt vmcnt(1)')
        else:
            a.e('s_waitcnt vmcnt(0)')
        for k in range(nb0):
            w_tr(a, k, BS[k])
        ktab_part1(a)
        stamp(a, 6)
        a.e(f's_mov_b32 s{S_EARLY}, 0')
        lne = a.lab('notearly')
        if OPT['early']:
            a.e('s_waitcnt vmcnt(0)')
            a.e(f'v_cmp_ne_u32 vcc, s{S_TAG}, v{V_FV}')
            a.e(f's_cbranch_vccnz {lne}')
            load_u(a)
            a.e(f's_mov_b32 s{S_EARLY}, 1')
            a.e(f'{lne}:')
        qpf_load(a, OPT['w2pf_a'])
        ktab_part2(a)
        stamp(a, 7)
        if not OPT['hoist']:
            conv_addr(a)
        kcopies(a)
        stamp(a, 8)
        lhave = a.lab('haveu')
        a.e(f's_cmp_lg_u32 s{S_EARLY}, 0')
        a.e(f's_cbranch_scc1 {lhave}')
        flag_poll(a)
        load_u(a)
        a.e('s_waitcnt vmcnt(0)')
        a.e(f'{lhave}:')
        stamp(a, 9)
        store_u(a, OPT['w2pf_a'])
    epoch_update(a)
    clear_g(a)
    if OPT['sched'] == 1:
        qpf_load(a, OPT['w2pf_b'])
    stamp(a, 10)
    hk = []
    cre = OPT['cre'] and OPT['regc']
    if cre:
        for k in range(2):
            w_tr(a, k, f'C{k}')
        for k, sl in enumerate(AS + ['C0', 'C1']):
            for i in range(4):
                hk.append(lambda k=k, sl=sl, i=i: w_dma1(a, 1, 2 + k, sl, i))
                if i % 2 == 1:
                    hk.append(lambda: None)
    else:
        for k in range(4):
            for i in range(4):
                hk.append(lambda k=k, i=i: w_dma1(a, 1, nb0 + k, AS[k], i))
                hk.append(lambda: None)
    if OPT['nohk']:
        hk = []
    elif OPT['hkpos'] == 1:
        hk = [h for i, h in enumerate(hk) if i % 2 == 0]
    elif OPT['hkpos'] == 2:
        hk = [lambda: None] * 18 + [h for i, h in enumerate(hk) if i % 2 == 0]
    ndma = 0 if OPT['nohk'] else (24 if cre else 16)
    if OPT['cvvm']:
        phase_conv(a, hk, ndma)
        stamp(a, 12)
        a.e('s_waitcnt vmcnt(2)')
    else:
        phase_conv(a, hk, 0)
        stamp(a, 12)
    if cre:
        for k, sl in enumerate(AS + ['C0', 'C1']):
            w_tr(a, 2 + k, sl)
        nb0 = 4
    else:
        if OPT['regc']:
            for k in range(2):
                w_tr(a, k, f'C{k}')
        for k in range(4):
            w_tr(a, nb0 + k, AS[k])
    a.e('s_waitcnt lgkmcnt(0)')
    a.e('s_barrier')
    rest = list(range(nb0 + 4, 16))
    last = None
    if len(rest) > 9:
        last = rest.pop()
    rest_slots = (BS + AS)[:len(rest)]
    p4d = []
    if OPT['p4dma']:
        assert OPT['hpriv']
        p4d = [lambda k=k, sl=sl, i=i: w_dma1(a, 1, k, sl, i) for k, sl in zip(rest, rest_slots) for i in range(4)]
    elif OPT['h2e']:
        lh2p, lh2d = a.lab('h2poll0'), a.lab('h2done')
        p4_pre(a)
        n1 = OPT['h2n']
        for k, sl in list(zip(rest, rest_slots))[:n1]:
            w_dma(a, 1, k, sl)
        p4_loads(a)
        for k, sl in list(zip(rest, rest_slots))[n1:]:
            w_dma(a, 1, k, sl)
        a.e(f's_waitcnt vmcnt({4 * (len(rest) - n1)})')
        p4_check(a)
        stamp(a, 13)
        a.e(f's_cbranch_vccz {lh2d}')
        a.e(f's_branch {lh2p}')
    else:
        for k, sl in zip(rest, rest_slots):
            w_dma(a, 1, k, sl)
    if not (OPT['h2e'] and not OPT['p4dma']):
        stamp(a, 13)
        a.e(f's_branch {lnc2}')
    a.e(f'{lnc1}:')
    nh = 0
    if OPT['cpf'] & 1:
        code_prefetch(a, name, 'kcode_end')
        nh += 3
    w_setup(a)
    if OPT['tlb'] & 1:
        nh += tlb_touch(a)
    flag_addr(a)
    if OPT['hoist']:
        hoist_common(a)
    a.e('s_waitcnt lgkmcnt(0)')
    a.e(f's_add_u32 s{S_TAG}, s99, 0x9e3779b9')
    a.e(f's_waitcnt vmcnt({nh + ncp})')
    clear_hh(a)
    ln_stats(a, list(range(8, 16)), 16, L_RED0, 5)
    publish_xn(a)
    publish_flag(a)
    if OPT['sched'] == 3 and OPT['hsplit']:
        qpf_load(a, (448 - OPT['hR']) // 32)

        def hcheck():
            lok = a.lab('hflags')
            a.e(f'v_cmp_ne_u32 vcc, s{S_TAG}, v{V_FV}')
            a.e(f's_cbranch_vccz {lok}')
            flag_poll(a)
            a.e(f'{lok}:')
            a.e('s_barrier')
        helper_w2(a, OPT['hR'], mid=(OPT['hn1'], lambda: flag_load(a), hcheck))
        stamp(a, 41)
    else:
        if OPT['sched'] == 3:
            qpf_load(a, (448 - OPT['hR']) // 32)
            helper_w2(a, OPT['hR'])
        else:
            qpf_load(a, 14)
        stamp(a, 41)
        flag_poll(a)
        a.e('s_barrier')
    if p4d:
        a.e(f's_mov_b32 s{S_W1+2}, 0')
    stamp(a, 42)
    if OPT['h2e'] and not OPT['p4dma']:
        p4_pre(a)
        phase_p4(a, p4d, pre_done=(lh2p, lh2d))
    else:
        a.e(f'{lnc2}:')
        phase_p4(a, p4d)
    stamp(a, 20)
    gemm2_addr(a)
    skip_if_helper(lnc3)
    b1_load(a)
    if p4d:
        a.e('s_waitcnt vmcnt(2)')
    for k, sl in zip(rest, rest_slots):
        w_tr(a, k, sl)
    a.e('s_waitcnt lgkmcnt(0)')
    if last is not None:
        w_dma(a, 1, last, 'A0')
    for k in range(5):
        w_dma(a, 2, k, BS[k])
    nx1 = gemm_first_loads(a, WS_HH, 64, 1) if OPT['xe1'] else 0
    if last is not None:
        a.e(f's_waitcnt vmcnt({20 + nx1})')
        w_tr(a, last, 'A0')
        a.e('s_waitcnt lgkmcnt(0)')
    if OPT['prebar']:
        a.e('s_barrier')
    stamp(a, 21)
    w2sh = OPT['w2sh'] and OPT['stchk'] and OPT['h4early']

    def side1(kn):
        if OPT['gap'] and kn == 16:
            return [], 0
        if 6 <= kn <= 10:
            return capture(lambda p: w_tr(p, kn - 6, BS[kn - 6])), 0
        if 13 <= kn <= 15:
            pre = ['s_waitcnt lgkmcnt(0)'] if kn == 13 else []
            return pre + capture(lambda p: w_dma(p, 2, kn - 8, BS[kn - 13])), 4
        return [], 0

    gemm_poll_main(a, WS_HH, 64, 16, 1, 22, side=side1 if w2sh else None, issued=bool(OPT['xe1']))
    stamp(a, 23)
    if OPT['h4early']:
        if not w2sh:
            for k in range(5):
                w_tr(a, k, BS[k])
            a.e('s_waitcnt lgkmcnt(0)')
            for k in range(5, 5 + OPT['npre']):
                w_dma(a, 2, k, BS[k - 5])
        if OPT['e1dma']:
            d0 = [lambda k=k, i=i: w_dma1(a, 2, k, BS[k - 5], i) for k in range(8, 10) for i in range(4)]
            d1 = [lambda k=k, i=i: w_dma1(a, 2, k, AS[k - 10], i) for k in range(10, 14) for i in range(4)]
            gemm1_epilogue(a, d0, d1)
            stamp(a, 25)
            w1, w2, w3 = 26, 18, 1
        else:
            gemm1_epilogue(a)
            stamp(a, 25)
            npre = 3 if w2sh else OPT['npre']
            for k in range(5 + npre, 10):
                w_dma(a, 2, k, BS[k - 5])
            a.e('s_barrier')
            for k in range(10, 14):
                w_dma(a, 2, k, AS[k - 10])
            w1, w2, w3 = 24 + (0 if npre < 3 else 0), 16, 0
            w1 = 26 if npre == 3 else 24
        if OPT['xe2']:
            nx2 = gemm_first_loads(a, WS_G, 56, 2)
            w1, w2, w3 = w1 + nx2, w2 + nx2, w3 + nx2
        a.e(f's_waitcnt vmcnt({w1})')
        for k in range(5, 8):
            w_tr(a, k, BS[k - 5])
        a.e(f's_waitcnt vmcnt({w2})')
        for k in range(8, 10):
            w_tr(a, k, BS[k - 5])
        a.e(f's_waitcnt vmcnt({w3})')
        for k in range(10, 14):
            w_tr(a, k, AS[k - 10])
        a.e('s_waitcnt lgkmcnt(0)')
        a.e(f's_branch {lnc6}')
    else:
        gemm1_epilogue(a)
        stamp(a, 25)
        for k in range(5):
            w_tr(a, k, BS[k])
        a.e('s_waitcnt lgkmcnt(0)')
        a.e('s_barrier')
        a.e(f's_branch {lnc5}')
    a.e(f'{lnc3}:')
    for k in range(5):
        w_dma(a, 2, k, BS[k])
    a.e('s_waitcnt vmcnt(0)')
    for k in range(5):
        w_tr(a, k, BS[k])
    a.e('s_waitcnt lgkmcnt(0)')
    a.e(f'{lnc5}:')
    for k in range(5, 10):
        w_dma(a, 2, k, BS[k - 5])
    for k in range(10, 14):
        w_dma(a, 2, k, AS[k - 10])
    nx2 = gemm_first_loads(a, WS_G, 56, 2) if OPT['xe2'] else 0
    a.e(f's_waitcnt vmcnt({16 + nx2})')
    for k in range(5, 10):
        w_tr(a, k, BS[k - 5])
    a.e(f's_waitcnt vmcnt({nx2})')
    for k in range(10, 14):
        w_tr(a, k, AS[k - 10])
    a.e('s_waitcnt lgkmcnt(0)')
    a.e(f'{lnc6}:')
    if OPT['prebar']:
        a.e('s_barrier')
    stamp(a, 30)
    gemm_poll_main(a, WS_G, 56, 14, 2, 31, gemm2_tail_loads, issued=bool(OPT['xe2']))
    stamp(a, 32)
    gemm2_epilogue(a)
    stamp_clk(a, 61)
    stamp(a, 63)
    stamp_flush(a)
    a.e(f'{lend}:')
    a.e('s_endpgm')
    for emit in STUBS:
        emit()
    del STUBS[:]
    a.raw('kcode_end:')
    emit_gather_table(a, 'ktab_idx')
    nn = a.fast_insert_nops()
    head = f'; @launch grid=(256,1,1) block=(256,1,1) lds={LDS_BYTES}\n'
    head += HEADER
    head += '.amdgcn_target "amdgcn-amd-amdhsa--gfx950"\n.text\n'
    tail = '.section .rodata,"a"\n.p2align 6\n' + descriptor(name)
    if OPT['align']:
        nal = a.align8(head, tail)
        sys.stderr.write(f'alignment: {nal}\n')
    sys.stderr.write(f'instructions: {a.count()}, nops inserted: {nn}\n')
    return head + a.text() + tail


if __name__ == '__main__':
    out = sys.argv[1]
    for arg in sys.argv[2:]:
        if arg == 'stamps':
            OPT['stamps'] = True
        elif arg == 'dbg':
            OPT['stamps'] = True
            OPT['dbgsel'] = [0, 1, 2, 4, 8, 9, 12, 13, 14, 20, 21, 23, 25, 30, 32, 63]
        elif '=' in arg:
            k, v = arg.split('=')
            OPT[k] = int(v)
    open(out, 'w').write(build())
```

```python
import sys
import gen
from gen import (Prog, NAME, L, D, F, XBYTES, PBYTES, W1BYTES, W2BYTES, OOB, fx, srd, reduce16, cmul, exp_bf16,
                 gather_table, emit_gather_table, descriptor, round_pairs, norm_tok, bcast_stats)

OPT = dict(clate=0, gap=0, hf=0, nohw=0, h2e=0, h2n=5, xe1=1, xe2=1, cvvm=1, cvbar=1, prebar=1, lastw=1, slp=0, hn1=11, hsplit=0, hoist=0, cre=0, uov=0, tlbout=0, kdefer=1, flagmid=0, npre=3, nohk=0, hkpos=0, w2sh=1, stchk=1, p4dma=0, p4ev=6, e1dma=0, plate=0, cearly=0, q4=4, hpriv=1, regc=1, hR=320, c4=1, kgrp=3, tlbg=21, cpf=1, sched=3, qa=7, qb=7, tlb=1, outsc=0, x3oob=1, h4early=1, wb0=3, xnb=1, stamps=False, dbgsel=None, w2pf_a=10, w2pf_b=4, nfl=3, early=True, align=True, hlds=True)

WS_FLAG = 0x4000
WS_EPOCH = 0x9000
WS_AOUT = 0x10000
AST = 8448
WS_H = 0x200000
WS_HH = 0x400000
WS_G = 0x600000
WS_DBG = 0x800000
WS_XN = 0xA00000
XCS = 4352
XPS = 2 * XCS
WS_USED = 0x1000000

L_RED0, L_RED1, L_SIG, L_KT = 0, 256, 512, 640
KTCH = 1600
L_U = L_KT + 2 * KTCH
UCH = 4608
L_SCR = L_U + 2 * UCH
SROW = 272
YROW = 41
SCRW = 57 * SROW
L_KC = 82688
KCOPY = 4160
KCH = 8 * KCOPY
L_CP = L_KC
LDS_BYTES = 160 * 1024
L_WA, L_WB = 13056, 78592
L_WC = 123904
L_PART = 1024
PROW = 272
PARTW = 64 * PROW
L_HT = 1024

S_WS, S_X = 4, 8
S_T0, S_T1, S_T2, S_T3 = 12, 16, 20, 24
S_W1, S_W2 = 12, 16
S_W, S_XCD, S_LOC, S_B, S_P, S_J, S_I1, S_I2 = 28, 29, 30, 31, 32, 33, 34, 35
P_X, P_LAR, P_AI, P_CR, P_CI, P_LDT, P_DSK = 36, 38, 40, 42, 44, 46, 48
P_W1, P_B1, P_W2, P_B2, P_OUT, P_DBG, P_WS = 52, 54, 56, 58, 60, 62, 64
S_SA, S_SB = 50, 51
S_RW1, S_RX1, S_RW2, S_RX2 = 38, 39, 40, 41
S_QPF = 42
S_EARLY = 43
S_SC = 44
V_TC = 236
S_TAG, S_SPIN, S_RETRY = 96, 97, 98
V_D1, V_D2, V_TA, V_TB = 224, 228, 244, 248
V_QPF = 232
SPIN_MAX, RETRY_MAX = 4000, 20
AS = ['A0', 'A1', 'A2', 'A3']
BS = ['B0', 'B1', 'B2', 'B3', 'B4']
WSR = f's[{S_WS}:{S_WS+3}]'

assert (gen.S_W, gen.S_B, gen.S_WS) == (S_W, S_B, S_WS)


def stamp(a, idx):
    if not OPT['stamps']:
        return
    sel = OPT['dbgsel']
    if sel is not None:
        if idx not in sel:
            return
        idx = sel.index(idx)
    a.e('s_memrealtime s[100:101]')
    a.e('s_waitcnt lgkmcnt(0)')
    a.e(f'v_writelane_b32 v255, s100, {idx}')


def stamp_clk(a, idx):
    if not OPT['stamps'] or OPT['dbgsel'] is not None:
        return
    a.e('s_memtime s[100:101]')
    a.e('s_waitcnt lgkmcnt(0)')
    a.e(f'v_writelane_b32 v255, s100, {idx}')


def stamp_flush(a):
    if not OPT['stamps']:
        return
    l = a.lab('nost')
    a.e(f's_cmp_lg_u32 s{S_W}, 0')
    a.e(f's_cbranch_scc1 {l}')
    if OPT['dbgsel'] is not None:
        a.e('v_not_b32 v253, v255')
        a.e('v_cmp_eq_u32 vcc, 0, v1')
        a.e('v_cndmask_b32 v255, v255, v253, vcc')
        a.e('v_lshlrev_b32 v254, 2, v1')
        a.e('s_mov_b64 exec, 0xffff')
        a.e(f'global_atomic_umax v254, v255, s[{P_DBG}:{P_DBG+1}]')
        a.e('s_mov_b64 exec, -1')
    else:
        a.e('s_lshl_b32 s66, s2, 8')
        a.e(f's_add_u32 s66, s66, {WS_DBG}')
        a.e('v_lshl_add_u32 v254, v1, 2, s66')
        a.e(f'buffer_store_dword v255, v254, {WSR}, 0 offen')
    a.e(f'{l}:')


def spin_tail(a, lp):
    if OPT['slp']:
        a.e(f's_sleep {OPT["slp"]}')
    a.e(f's_add_u32 s{S_SPIN}, s{S_SPIN}, 1')
    a.e(f's_cmp_lt_u32 s{S_SPIN}, {SPIN_MAX}')
    a.e(f's_cbranch_scc1 {lp}')


def mask_lanes(a, v, n, tmp, src='v1'):
    a.e(f'v_mov_b32 v{tmp}, {OOB}')
    a.e(f'v_cmp_gt_u32 vcc, {n}, {src}')
    a.e(f'v_cndmask_b32 v{v}, v{tmp}, v{v}, vcc')


def prologue(a, lend):
    a.e('s_cmp_ge_u32 s2, 256')
    a.e(f's_cbranch_scc1 {lend}')
    if OPT['stamps']:
        a.e('v_mov_b32 v255, 0')
        stamp(a, 0)
        stamp_clk(a, 60)
    a.e('s_load_dwordx16 s[36:51], s[0:1], 0')
    a.e('s_load_dwordx8 s[52:59], s[0:1], 64')
    a.e('s_load_dwordx4 s[60:63], s[0:1], 96')
    a.e('s_load_dwordx2 s[64:65], s[0:1], 112')
    a.e('v_and_b32 v1, 63, v0')
    a.e('v_lshrrev_b32 v2, 6, v0')
    a.e(f's_and_b32 s{S_XCD}, s2, 7')
    a.e(f'v_readfirstlane_b32 s{S_W}, v2')
    a.e(f's_lshr_b32 s{S_LOC}, s2, 3')
    a.e(f's_lshl_b32 s{S_B}, s{S_XCD}, 5')
    a.e(f's_add_u32 s{S_B}, s{S_B}, s{S_LOC}')
    a.e(f's_mul_i32 s{S_P}, s{S_XCD}, 28')
    a.e(f's_add_u32 s{S_P}, s{S_P}, s{S_LOC}')
    a.e(f's_and_b32 s{S_J}, s{S_XCD}, 1')
    a.e(f's_lshl_b32 s{S_J}, s{S_J}, 2')
    a.e(f's_and_b32 s3, s{S_LOC}, 3')
    a.e(f's_add_u32 s{S_J}, s{S_J}, s3')
    a.e(f's_lshr_b32 s3, s{S_XCD}, 1')
    a.e(f's_lshr_b32 s66, s{S_LOC}, 2')
    a.e(f's_mul_i32 s{S_I1}, s3, 7')
    a.e(f's_add_u32 s{S_I1}, s{S_I1}, s66')
    a.e(f's_lshl_b32 s{S_I2}, s3, 3')
    a.e(f's_add_u32 s{S_I2}, s{S_I2}, s66')
    a.e('s_waitcnt lgkmcnt(0)')
    srd(a, S_X, P_X, XBYTES)
    srd(a, S_WS, P_WS, WS_USED)
    stamp(a, 1)


def xrow_addr(a):
    a.e(f's_mul_i32 s66, s{S_W}, 224')
    a.e(f's_mul_i32 s67, s{S_B}, {8*896}')
    a.e('s_add_u32 s66, s66, s67')
    a.e('v_lshl_add_u32 v2, v1, 2, s66')
    mask_lanes(a, 2, 56, 3)
    a.e('v_add_u32 v3, 4480, v2')


def load_xrows(a):
    xrow_addr(a)
    for j in range(8):
        v, o = (2, j * 896) if j < 5 else (3, (j - 5) * 896)
        a.e(f'buffer_load_dword v{8+j}, v{v}, s[{S_X}:{S_X+3}], 0 offen offset:{o}')


def ln_stats(a, X, T, red, vt, mid=None):
    a.e('s_mov_b32 s66, 0x3f803f80')
    for j in range(8):
        a.e(f'v_dot2_f32_bf16 v{T+j}, v{X[j]}, s66, 0')
        a.e(f'v_dot2_f32_bf16 v{T+8+j}, v{X[j]}, v{X[j]}, 0')
    a.e(f'v_lshlrev_b32 v{vt}, 2, v1')
    a.e(f'v_and_b32 v{vt}, 0xf0, v{vt}')
    a.e(f's_lshl_b32 s66, s{S_W}, 2')
    a.e(f'v_add_u32 v{vt}, s66, v{vt}')
    reduce16(a, [T + i for i in range(16)])
    a.inj_pause()
    a.e('s_mov_b32 exec_lo, 0x11111111')
    a.e('s_mov_b32 exec_hi, 0x11111111')
    a.e(f'ds_write_b32 v{vt}, v{T} offset:{red}')
    a.e('s_mov_b64 exec, -1')
    a.inj_resume()
    a.e(f'v_and_b32 v{vt}, 7, v1')
    a.e(f'v_lshlrev_b32 v{vt}, 4, v{vt}')
    a.e('s_waitcnt lgkmcnt(0)')
    a.e('s_barrier')
    a.e(f'ds_read_b128 v[{T}:{T+3}], v{vt} offset:{red}')
    a.e(f'ds_read_b128 v[{T+4}:{T+7}], v{vt} offset:{red+128}')
    n_mid = mid() if mid else 0
    a.e(f's_waitcnt lgkmcnt({1 + n_mid})')
    a.e(f'v_pk_add_f32 v[{T}:{T+1}], v[{T}:{T+1}], v[{T+2}:{T+3}]')
    a.e(f's_waitcnt lgkmcnt({n_mid})')
    a.e(f'v_pk_add_f32 v[{T+4}:{T+5}], v[{T+4}:{T+5}], v[{T+6}:{T+7}]')
    a.e(f'v_add_f32 v{T}, v{T}, v{T+1}')
    a.e(f'v_add_f32 v{T+4}, v{T+4}, v{T+5}')
    a.e(f'v_mul_f32 v{T}, {fx(1.0/448)}, v{T}')
    a.e(f'v_mul_f32 v{T+4}, {fx(1.0/448)}, v{T+4}')
    a.e(f'v_fma_f32 v{T+4}, -v{T}, v{T}, v{T+4}')
    a.e(f'v_max_f32 v{T+4}, 0, v{T+4}')
    a.e(f'v_cvt_pk_bf16_f32 v{T+4}, v{T+4}, v{T+4}')
    a.e(f'v_lshlrev_b32 v{T+4}, 16, v{T+4}')
    a.e(f'v_add_f32 v{T+4}, {fx(1e-5)}, v{T+4}')
    a.e(f'v_cvt_pk_bf16_f32 v{T+4}, v{T+4}, v{T+4}')
    a.e(f'v_lshlrev_b32 v{T+4}, 16, v{T+4}')
    a.e(f'v_sqrt_f32 v{T+4}, v{T+4}')
    a.e(f'v_cvt_pk_bf16_f32 v{T}, v{T}, v{T+4}')


def poison_regs(a):
    for r in range(216, 220):
        a.e(f'v_mov_b32 v{r}, -1')


def clear_hh(a):
    if OPT['hoist']:
        a.e(f'buffer_store_dwordx4 v[216:219], v184, {WSR}, 0 offen sc1')
        a.e(f'buffer_store_dwordx4 v[216:219], v185, {WSR}, 0 offen sc1')
        return
    a.e(f's_mul_i32 s66, s{S_B}, 7168')
    a.e(f's_add_u32 s66, s66, {WS_HH}')
    a.e('v_lshl_add_u32 v4, v0, 4, s66')
    a.e('v_add_u32 v5, 4096, v4')
    mask_lanes(a, 5, 192, 6, 'v0')
    a.e(f'buffer_store_dwordx4 v[216:219], v4, {WSR}, 0 offen sc1')
    a.e(f'buffer_store_dwordx4 v[216:219], v5, {WSR}, 0 offen sc1')


def clear_aout(a):
    if OPT['hoist']:
        a.e(f'buffer_store_dwordx4 v[216:219], v186, {WSR}, 0 offen sc1')
        a.e(f'buffer_store_dwordx4 v[216:219], v187, {WSR}, 0 offen sc1')
        return
    a.e(f's_mul_i32 s66, s{S_P}, {AST}')
    a.e(f's_add_u32 s66, s66, {WS_AOUT}')
    a.e('v_lshl_add_u32 v4, v0, 4, s66')
    a.e('v_add_u32 v5, 4096, v4')
    a.e(f'buffer_store_dwordx4 v[216:219], v4, {WSR}, 0 offen sc1')
    a.e(f'buffer_store_dwordx4 v[216:219], v5, {WSR}, 0 offen sc1')


def g_store_addr(a, vd):
    a.e(f's_lshl_b32 s66, s{S_I1}, 3')
    a.e(f's_lshl_b32 s70, s{S_W}, 1')
    a.e('s_add_u32 s66, s66, s70')
    a.e('s_mul_i32 s66, s66, 7168')
    a.e(f's_mul_i32 s70, s{S_J}, 896')
    a.e('s_add_u32 s66, s66, s70')
    a.e(f's_add_u32 s66, s66, {WS_G}')
    a.e(f'v_lshl_add_u32 v{vd}, v1, 4, s66')
    mask_lanes(a, vd, 56, 6)


def clear_g(a):
    if OPT['hoist']:
        a.e('v_add_u32 v5, 7168, v240')
        a.e(f'buffer_store_dwordx4 v[216:219], v240, {WSR}, 0 offen sc1')
        a.e(f'buffer_store_dwordx4 v[216:219], v5, {WSR}, 0 offen sc1')
        return
    g_store_addr(a, 4)
    a.e('v_add_u32 v5, 7168, v4')
    a.e(f'buffer_store_dwordx4 v[216:219], v4, {WSR}, 0 offen sc1')
    a.e(f'buffer_store_dwordx4 v[216:219], v5, {WSR}, 0 offen sc1')


def publish_xn(a):
    bcast_stats(a, 16)
    for j in range(8):
        d = 64 + 2 * j
        t = 48 + j
        a.e(f'v_lshlrev_b32 v{d}, 16, v{8+j}')
        a.e(f'v_and_b32 v{d+1}, 0xffff0000, v{8+j}')
        a.e(f'v_pk_add_f32 v[{d}:{d+1}], v[{d}:{d+1}], s[{72+2*j}:{73+2*j}] op_sel:[0,0] op_sel_hi:[1,0] neg_lo:[0,1] neg_hi:[0,1]')
        a.e(f'v_cvt_pk_bf16_f32 v{t}, v{d}, v{d+1}')
        a.e(f'v_lshlrev_b32 v{d}, 16, v{t}')
        a.e(f'v_and_b32 v{d+1}, 0xffff0000, v{t}')
        a.e(f'v_pk_mul_f32 v[{d}:{d+1}], v[{d}:{d+1}], s[{72+2*j}:{73+2*j}] op_sel:[0,1] op_sel_hi:[1,1]')
        a.e(f'v_cvt_pk_bf16_f32 v{t}, v{d}, v{d+1}')
        a.e(f'v_lshlrev_b32 v{d}, 16, v{t}')
        a.e(f'v_and_b32 v{d+1}, 0xffff0000, v{t}')
    for i in range(4):
        a.e(f'v_cvt_pk_f16_f32 v{80+i}, v{64+4*i}, v{66+4*i}')
        a.e(f'v_cvt_pk_f16_f32 v{84+i}, v{65+4*i}, v{67+4*i}')
    if OPT['hoist']:
        assert OPT['xnb']
        a.e(f'buffer_store_dwordx4 v[80:83], v188, {WSR}, 0 offen sc1')
        a.e(f'buffer_store_dwordx4 v[84:87], v189, {WSR}, 0 offen sc1')
        return
    if OPT['xnb']:
        a.e(f's_mul_i32 s66, s{S_W}, {56*16}')
        a.e(f's_mul_i32 s67, s{S_B}, 7168')
        a.e('s_add_u32 s66, s66, s67')
        a.e(f's_add_u32 s66, s66, {WS_XN}')
        a.e('v_lshl_add_u32 v4, v1, 4, s66')
        mask_lanes(a, 4, 56, 5)
        a.e('v_add_u32 v5, 3584, v4')
    else:
        a.e(f's_mul_i32 s66, s{S_W}, {56*XPS}')
        a.e(f's_lshl_b32 s67, s{S_B}, 4')
        a.e('s_add_u32 s66, s66, s67')
        a.e(f's_add_u32 s66, s66, {WS_XN}')
        a.e(f'v_mul_u32_u24 v4, {XPS}, v1')
        a.e('v_add_u32 v4, s66, v4')
        mask_lanes(a, 4, 56, 5)
        a.e(f'v_add_u32 v5, {XCS}, v4')
    a.e(f'buffer_store_dwordx4 v[80:83], v4, {WSR}, 0 offen sc1')
    a.e(f'buffer_store_dwordx4 v[84:87], v5, {WSR}, 0 offen sc1')


def publish_flag(a, vm=0):
    a.e(f's_waitcnt vmcnt({vm})')
    a.e('s_barrier')
    l = a.lab('noflag')
    a.e(f's_cmp_lg_u32 s{S_W}, 0')
    a.e(f's_cbranch_scc1 {l}')
    a.e(f's_lshl_b32 s66, s{S_B}, 6')
    a.e(f's_add_u32 s66, s66, {WS_FLAG}')
    a.e('v_mov_b32 v2, s66')
    a.e(f'v_mov_b32 v3, s{S_TAG}')
    a.e('s_mov_b64 exec, 1')
    a.e(f'buffer_store_dword v3, v2, {WSR}, 0 offen sc1')
    a.e('s_mov_b64 exec, -1')
    a.e(f'{l}:')


V_FA, V_FV = 233, 234


def flag_addr(a):
    a.e(f'v_lshlrev_b32 v{V_FA}, 6, v0')
    a.e(f'v_add_u32 v{V_FA}, {WS_FLAG}, v{V_FA}')


def flag_load(a):
    a.e(f'buffer_load_dword v{V_FV}, v{V_FA}, {WSR}, 0 offen sc1')


def flag_poll(a):
    lp, ld = a.lab('fpoll'), a.lab('fdone')
    a.e(f's_mov_b32 s{S_SPIN}, 0')
    a.e(f'{lp}:')
    flag_load(a)
    a.e('s_waitcnt vmcnt(0)')
    a.e(f'v_cmp_ne_u32 vcc, s{S_TAG}, v{V_FV}')
    a.e(f's_cbranch_vccz {ld}')
    spin_tail(a, lp)
    a.e(f'{ld}:')


def load_u(a):
    if OPT['hoist']:
        a.e(f'buffer_load_dwordx4 v[176:179], v190, {WSR}, 0 offen sc1')
        a.e(f'buffer_load_dwordx4 v[180:183], v191, {WSR}, 0 offen sc1')
        return
    if OPT['xnb']:
        a.e(f's_lshl_b32 s66, s{S_P}, 4')
        a.e(f's_add_u32 s66, s66, {WS_XN}')
        a.e('v_mul_u32_u24 v2, 7168, v0')
        a.e('v_add_u32 v2, s66, v2')
        a.e('v_add_u32 v3, 3584, v2')
    else:
        a.e(f's_mul_i32 s66, s{S_P}, {XPS}')
        a.e(f's_add_u32 s66, s66, {WS_XN}')
        a.e('v_lshl_add_u32 v2, v0, 4, s66')
        a.e(f'v_add_u32 v3, {XCS}, v2')
    a.e(f'buffer_load_dwordx4 v[176:179], v2, {WSR}, 0 offen sc1')
    a.e(f'buffer_load_dwordx4 v[180:183], v3, {WSR}, 0 offen sc1')


def epoch_update(a):
    le = a.lab('noep')
    a.e('s_cmp_lg_u32 s2, 0')
    a.e(f's_cbranch_scc1 {le}')
    a.e(f'v_mov_b32 v2, {WS_EPOCH}')
    a.e(f'v_mov_b32 v3, s{S_TAG}')
    a.e('s_mov_b64 exec, 1')
    a.e(f'buffer_store_dword v3, v2, {WSR}, 0 offen sc1')
    a.e('s_mov_b64 exec, -1')
    a.e(f'{le}:')


def code_prefetch(a, lstart, lend_):
    lp = a.lab('pcp')
    a.e('s_getpc_b64 s[74:75]')
    a.e(f'{lp}:')
    a.e(f's_sub_u32 s74, s74, {lp}-{lstart}')
    a.e('s_subb_u32 s75, s75, 0')
    a.e('v_lshlrev_b32 v4, 6, v0')
    a.e(f's_mov_b32 s76, {lend_}-{lstart}-4')
    a.e('v_add_u32 v5, 16384, v4')
    a.e('v_add_u32 v6, 32768, v4')
    a.e('v_min_u32 v4, s76, v4')
    a.e('v_min_u32 v5, s76, v5')
    a.e('v_min_u32 v6, s76, v6')
    a.e('global_load_dword v220, v4, s[74:75]')
    a.e('global_load_dword v220, v5, s[74:75]')
    a.e('global_load_dword v220, v6, s[74:75]')


def code_prefetch1(a, lstart, lend_):
    lp = a.lab('pcp')
    a.e('s_getpc_b64 s[74:75]')
    a.e(f'{lp}:')
    a.e('v_lshlrev_b32 v4, 6, v0')
    a.e(f's_mov_b32 s76, {lend_}-{lp}-4')
    a.e('v_min_u32 v4, s76, v4')
    a.e('global_load_dword v220, v4, s[74:75]')


def tlb_touch(a):
    g = OPT['tlbg']
    n = 0
    srd(a, S_T2, P_OUT, XBYTES)
    srd(a, S_T3, P_B2, L * 2)
    if g == 21:
        a.e('v_lshlrev_b32 v4, 21, v1')
        a.e('s_mov_b32 s70, 0x1f8000')
        for s_ in (S_W1, S_W2, S_WS, S_T2, S_T3) if OPT['tlbout'] else (S_W1, S_W2, S_WS, S_T3):
            a.e(f'buffer_load_dword v220, v4, s[{s_}:{s_+3}], {"s70" if s_ == S_WS else 0} offen')
            n += 1
    else:
        a.e(f'v_lshlrev_b32 v4, {g}, v0')
        for s_, nbytes in ((S_W1, W1BYTES), (S_W2, W2BYTES), (S_WS, 0xC00000), (S_T2, XBYTES), (S_T3, 4096)):
            for k in range(-(-nbytes // (256 << g))):
                a.e(f's_mov_b32 s70, {k * (256 << g)}')
                a.e(f'buffer_load_dword v220, v4, s[{s_}:{s_+3}], s70 offen')
                n += 1
    return n


def hoist_common(a):
    a.e(f's_mul_i32 s66, s{S_B}, 7168')
    a.e(f's_add_u32 s66, s66, {WS_HH}')
    a.e('v_lshl_add_u32 v184, v0, 4, s66')
    a.e('v_add_u32 v185, 4096, v184')
    mask_lanes(a, 185, 192, 6, 'v0')
    a.e(f's_mul_i32 s66, s{S_W}, {56*16}')
    a.e(f's_mul_i32 s67, s{S_B}, 7168')
    a.e('s_add_u32 s66, s66, s67')
    a.e(f's_add_u32 s66, s66, {WS_XN}')
    a.e('v_lshl_add_u32 v188, v1, 4, s66')
    mask_lanes(a, 188, 56, 5)
    a.e('v_add_u32 v189, 3584, v188')
    a.e('v_and_b32 v4, 15, v1')
    a.e(f'v_mul_u32_u24 v4, {PROW}, v4')
    a.e('v_lshrrev_b32 v5, 4, v1')
    a.e('v_lshl_add_u32 v4, v5, 4, v4')
    a.e(f's_mul_i32 s66, s{S_W}, {PARTW}')
    a.e(f's_add_u32 s66, s66, {L_PART}')
    a.e('v_add_u32 v241, s66, v4')
    a.e(f'v_mul_u32_u24 v5, {PROW}, v1')
    a.e(f's_lshl_b32 s66, s{S_W}, 6')
    a.e(f's_add_u32 s66, s66, {L_PART}')
    a.e('v_add_u32 v242, s66, v5')
    a.e('v_lshrrev_b32 v5, 3, v1')
    a.e('v_and_b32 v4, 7, v1')
    a.e(f's_lshl_b32 s66, s{S_W}, 4')
    a.e('v_add_u32 v5, s66, v5')
    a.e(f'v_mul_u32_u24 v6, {PROW}, v5')
    a.e('v_lshl_add_u32 v6, v4, 4, v6')
    a.e(f'v_add_u32 v243, {L_PART}, v6')
    g_store_addr(a, 240)
    a.e(f's_mul_i32 s67, s{S_B}, 7168')
    a.e(f's_mul_i32 s66, s{S_W}, 1792')
    a.e('s_add_u32 s66, s66, s67')
    a.e(f's_add_u32 s66, s66, {WS_HH}')
    a.e('v_lshl_add_u32 v213, v1, 4, s66')
    a.e('v_add_u32 v5, 448, v213')
    a.e('v_cmp_gt_u32 vcc, 28, v1')
    a.e('v_cndmask_b32 v213, v5, v213, vcc')
    mask_lanes(a, 213, 56, 5)


def hoist_conv(a):
    a.e(f's_mul_i32 s66, s{S_P}, {AST}')
    a.e(f's_add_u32 s66, s66, {WS_AOUT}')
    a.e('v_lshl_add_u32 v186, v0, 4, s66')
    a.e('v_add_u32 v187, 4096, v186')
    a.e(f's_lshl_b32 s66, s{S_P}, 4')
    a.e(f's_add_u32 s66, s66, {WS_XN}')
    a.e('v_mul_u32_u24 v190, 7168, v0')
    a.e('v_add_u32 v190, s66, v190')
    a.e('v_add_u32 v191, 3584, v190')
    conv_addr(a, 192, 193)
    CP, TS = L_CP, 1280
    a.e('v_and_b32 v3, 15, v1')
    a.e('v_lshlrev_b32 v2, 4, v3')
    a.e('v_lshrrev_b32 v3, 4, v1')
    a.e('v_mul_u32_u24 v3, 320, v3')
    a.e('v_add_u32 v2, v2, v3')
    a.e(f's_mul_i32 s70, s{S_W}, {8*TS}')
    a.e(f's_add_u32 s70, s70, {CP}')
    a.e('v_add_u32 v194, s70, v2')
    a.e('v_lshrrev_b32 v3, 2, v1')
    a.e('v_lshlrev_b32 v2, 4, v3')
    a.e('v_and_b32 v3, 3, v1')
    a.e('v_mul_u32_u24 v3, 320, v3')
    a.e('v_add_u32 v2, v2, v3')
    a.e(f's_lshl_b32 s70, s{S_W}, 1')
    a.e(f's_mul_i32 s71, s70, {TS}')
    a.e(f's_add_u32 s71, s71, {CP}')
    a.e('v_add_u32 v195, s71, v2')
    a.e('s_lshl_b32 s71, s70, 9')
    a.e(f's_add_u32 s71, s71, {L_U + 512}')
    a.e('v_lshl_add_u32 v206, v1, 3, s71')
    a.e(f's_mul_i32 s71, s{S_P}, {AST}')
    a.e('s_lshl_b32 s72, s70, 10')
    a.e('s_add_u32 s71, s71, s72')
    a.e(f's_add_u32 s71, s71, {WS_AOUT}')
    a.e('v_lshl_add_u32 v207, v1, 4, s71')


def kgen_loads(a, part=None):
    R = (S_T0, S_T1, S_T2, S_T3) if part is None else (72, 76, 80, 84)
    if part != 'issue':
        for r, p in zip(R, (P_LAR, P_AI, P_CR, P_CI)):
            srd(a, r, p, PBYTES)
        a.e(f's_lshl_b32 s66, s{S_P}, 10')
        a.e(f's_lshl_b32 s67, s{S_W}, 7')
        a.e('s_add_u32 s66, s66, s67')
        a.e('v_lshl_add_u32 v235, v1, 1, s66')
        a.e(f's_lshl_b32 s66, s{S_P}, 2')
        a.e(f's_load_dword s68, s[{P_LDT}:{P_LDT+1}], s66')
        a.e(f's_load_dword s69, s[{P_DSK}:{P_DSK+1}], s66')
    if part != 'setup':
        for c in range(2):
            for k, s in enumerate(R):
                a.e(f'buffer_load_ushort v{40+4*c+k}, v235, s[{s}:{s+3}], 0 offen offset:{512*c}')


def load_gather_table(a, tablabel):
    lp = a.lab('pc')
    a.e('s_getpc_b64 s[70:71]')
    a.e(f'{lp}:')
    a.e(f's_add_u32 s70, s70, {tablabel}-{lp}')
    a.e('s_addc_u32 s71, s71, 0')
    a.e('v_lshlrev_b32 v2, 5, v0')
    a.e('global_load_dwordx4 v[160:163], v2, s[70:71]')
    a.e('global_load_dwordx4 v[164:167], v2, s[70:71] offset:16')


DK0, DK1 = 16, 28


def kgen_channel(a, c, DACC, mid=None, mid_m0=True, after_setup=None, defer=False):
    LAR, AI, CR, CI = 40 + 4 * c, 41 + 4 * c, 42 + 4 * c, 43 + 4 * c
    SIG, DT = 52 + c, 54 + c
    AL, BE = 56, 57
    Z1, Z2, Z4, Z8, Z128, Z256, Z512, Z1024 = 58, 60, 62, 64, 66, 68, 70, 72
    X0, CA, CB, CC, T0, T1 = 74, 76, 78, 80, 82, 84
    CV = [86, 87, 88, 89]
    VW, VR = 90, 91
    t, t2 = 92, 93
    for r in (LAR, AI, CR, CI):
        a.e(f'v_lshlrev_b32 v{r}, 16, v{r}')
    a.e('s_lshl_b32 s66, s68, 16' if c == 0 else 's_and_b32 s66, s68, 0xffff0000')
    a.e(f'v_mov_b32 v{t2}, s66')
    exp_bf16(a, DT, t2, t)
    a.e(f'v_add_f32 v{SIG}, abs(v{CR}), abs(v{CI})')
    exp_bf16(a, AL, LAR, t)
    a.e(f'v_add_f32_dpp v{SIG}, v{SIG}, v{SIG} quad_perm:[1,0,3,2] row_mask:0xf bank_mask:0xf')
    a.e(f'v_mul_f32 v{AL}, v{AL}, v{DT}')
    a.e(f'v_mul_f32 v{BE}, v{AI}, v{DT}')
    a.e(f'v_add_f32_dpp v{SIG}, v{SIG}, v{SIG} quad_perm:[2,3,0,1] row_mask:0xf bank_mask:0xf')
    a.e(f'v_mul_f32 v{AL}, {fx(-1.4426950408889634)}, v{AL}')
    a.e(f'v_mul_f32 v{BE}, {fx(0.15915494309189535)}, v{BE}')
    a.e(f'v_add_f32_dpp v{SIG}, v{SIG}, v{SIG} row_half_mirror row_mask:0xf bank_mask:0xf')
    a.e(f'v_exp_f32 v{T0}, v{AL}')
    a.e(f'v_fract_f32 v{t}, v{BE}')
    a.e(f'v_add_f32_dpp v{SIG}, v{SIG}, v{SIG} row_ror:8 row_mask:0xf bank_mask:0xf')
    a.e(f'v_cos_f32 v{Z1}, v{t}')
    a.e(f'v_sin_f32 v{Z1+1}, v{t}')
    a.e(f'v_mov_b32 v{t2}, v{SIG}')
    a.e(f'v_mul_f32 v{T1}, 0x43000000, v{AL}')
    a.e(f'v_mul_f32 v{t}, 0x43000000, v{BE}')
    a.e(f'v_permlane16_swap_b32 v{SIG}, v{t2}')
    a.e(f'v_pk_mul_f32 v[{Z1}:{Z1+1}], v[{Z1}:{Z1+1}], v[{T0}:{T0+1}] op_sel:[0,0] op_sel_hi:[1,0]')
    a.e(f'v_add_f32 v{SIG}, v{SIG}, v{t2}')
    a.e(f'v_exp_f32 v{T1}, v{T1}')
    a.e(f'v_fract_f32 v{t}, v{t}')
    a.e(f'v_mov_b32 v{t2}, v{SIG}')
    a.e(f'v_cos_f32 v{Z128}, v{t}')
    a.e(f'v_sin_f32 v{Z128+1}, v{t}')
    a.e(f'v_permlane32_swap_b32 v{SIG}, v{t2}')
    cmul(a, Z2, Z1, Z1, Z2)
    a.e(f'v_add_f32 v{SIG}, v{SIG}, v{t2}')
    a.e(f'v_pk_mul_f32 v[{Z128}:{Z128+1}], v[{Z128}:{Z128+1}], v[{T1}:{T1+1}] op_sel:[0,0] op_sel_hi:[1,0]')
    a.e(f'v_add_f32 v{SIG}, {fx(1e-30)}, v{SIG}')
    cmul(a, Z4, Z2, Z2, Z4)
    a.e(f'v_rcp_f32 v{t}, v{SIG}')
    cmul(a, Z256, Z128, Z128, Z256)
    cmul(a, Z8, Z4, Z4, Z8)
    a.e(f'v_mul_f32 v{X0}, v{CR}, v{t}')
    a.e(f'v_mul_f32 v{X0+1}, v{CI}, v{t}')
    cmul(a, Z512, Z256, Z256, Z512)
    a.e(f's_mul_i32 s66, s{S_W}, {SCRW}')
    a.e(f's_add_u32 s66, s66, {L_SCR}')
    a.e('s_mov_b32 m0, s66')
    cmul(a, Z1024, Z512, Z512, Z1024)
    a.e(f'v_and_b32 v{t}, 15, v1')
    a.e(f'v_mul_u32_u24 v{t}, {SROW}, v{t}')
    a.e(f'v_lshrrev_b32 v{t2}, 4, v1')
    a.e(f'v_lshl_add_u32 v{t}, v{t2}, 4, v{t}')
    a.e(f'v_add_u32 v{VR}, s66, v{t}')
    cvi = [0]
    pend = []

    def flush(keep):
        while len(pend) > keep:
            cv, off = pend.pop(0)
            a.e(f'ds_write_addtid_b32 v{cv} offset:{off}')

    G = OPT['kgrp']
    if G > 1:
        CV = list(range(96, 112))
        if OPT['kdefer']:
            CV = list(range(168, 176))
    if after_setup is not None:
        after_setup()

    def put(off, r, neg):
        cv = CV[cvi[0] % len(CV)]
        cvi[0] += 1
        a.e(f'v_cvt_pk_f16_f32 v{cv}, v{r}, {"-" if neg else ""}v{r+1}')
        if G > 1:
            pend.append((cv, off))
            if len(pend) >= G + 1:
                flush(1)
        else:
            flush(1)
            pend.append((cv, off))

    def putX(row, r):
        put(row * SROW, r, True)

    def putY(b, r):
        put((YROW + b) * SROW, r, False)

    a.e(f'v_mov_b32 v{VW}, 0x00003c00')
    pend.append((VW, YROW * SROW))
    putY(1, Z8)
    ychain = {'cur': Z8, 'b': 1}
    YA, YB = CC, 94

    def ystep():
        if ychain['b'] >= 15:
            return
        d = YA if ychain['cur'] != YA else YB
        cmul(a, d, ychain['cur'], Z8, d)
        ychain['b'] += 1
        ychain['cur'] = d
        putY(ychain['b'], d)

    putX(0, X0)
    cmul(a, T0, X0, Z128, T0)
    putX(8, T0)
    cur = X0
    for j in range(1, 8):
        d = CA if cur != CA else CB
        cmul(a, d, cur, Z1, d)
        ystep()
        putX(j, d)
        cmul(a, T0, d, Z128, T0)
        putX(8 + j, T0)
        cur = d
    cmul(a, CA, X0, Z256, CA)
    ystep()
    putX(16, CA)
    cmul(a, T0, CA, Z128, T0)
    putX(20, T0)
    cur = CA
    for j in range(1, 4):
        d = CA if cur != CA else CB
        cmul(a, d, cur, Z2, d)
        ystep()
        putX(16 + j, d)
        cmul(a, T0, d, Z128, T0)
        putX(20 + j, T0)
        cur = d
    if mid is not None:
        if mid_m0:
            flush(0)
        mid()
        if mid_m0:
            a.e(f's_mul_i32 s66, s{S_W}, {SCRW}')
            a.e(f's_add_u32 s66, s66, {L_SCR}')
            a.e('s_mov_b32 m0, s66')
    cmul(a, CA, X0, Z512, CA)
    ystep()
    putX(24, CA)
    cmul(a, CB, CA, Z4, CB)
    ystep()
    putX(25, CB)
    pa, pb = CA, CB
    na, nb = T0, T1
    for q in range(1, 4):
        cmul(a, na, pa, Z128, na)
        cmul(a, nb, pb, Z128, nb)
        ystep()
        putX(24 + 2 * q, na)
        putX(25 + 2 * q, nb)
        pa, pb, na, nb = na, nb, pa, pb
    cmul(a, CA, X0, Z1024, CA)
    putX(32, CA)
    cur = CA
    for q in range(1, 9):
        d = CA if cur != CA else CB
        cmul(a, d, cur, Z128, d)
        putX(32 + q, d)
        cur = d
    while ychain['b'] < 15:
        ystep()
    flush(0)
    FA = 96
    for k in range(4):
        a.e(f'ds_read_b128 v[{144+4*k}:{147+4*k}], v{VR} offset:{YROW*SROW+64*k}')
        for T in range(3):
            r = FA + 16 * T + 4 * k
            a.e(f'ds_read_b128 v[{r}:{r+3}], v{VR} offset:{16*T*SROW+64*k}')
    def mfmas(waits=True):
        for k in range(4):
            if waits:
                a.e(f's_waitcnt lgkmcnt({4*(3-k)})')
            elif k == 0:
                a.e('s_waitcnt lgkmcnt(0)')
            for T in range(3):
                r = FA + 16 * T + 4 * k
                cc = '0' if k == 0 else f'v[{DACC+4*T}:{DACC+4*T+3}]'
                a.e(f'v_mfma_f32_16x16x32_f16 v[{DACC+4*T}:{DACC+4*T+3}], v[{r}:{r+3}], v[{144+4*k}:{147+4*k}], {cc}')

    if defer:
        return lambda: mfmas(waits=False)
    mfmas()


def ktab_part1(a):
    a.e(f's_mul_i32 s66, s{S_W}, {SCRW}')
    a.e(f's_add_u32 s66, s66, {L_SCR}')
    a.e('v_lshl_add_u32 v90, v1, 4, s66')
    a.e(f's_lshl_b32 s67, s{S_W}, 2')
    a.e(f's_add_u32 s67, s67, {L_SIG}')
    a.e('v_mov_b32 v91, s67')
    a.e('s_mov_b64 exec, 1')
    a.e('ds_write_b32 v91, v52')
    a.e('ds_write_b32 v91, v53 offset:16')
    a.e('s_mov_b64 exec, -1')
    for c, DK in ((0, DK0), (1, DK1)):
        for T in range(3):
            for h in range(2):
                i = DK + 4 * T + 2 * h
                a.e(f'v_pk_mul_f32 v[{i}:{i+1}], v[{i}:{i+1}], v[52:53] op_sel:[0,{c}] op_sel_hi:[1,{c}]')
            a.e(f'ds_write_b128 v90, v[{DK+4*T}:{DK+4*T+3}] offset:{c*3072+T*1024}')
    a.e('v_mov_b32 v96, 0')
    a.e('v_mov_b32 v97, 0')
    a.e('v_mov_b32 v98, 0')
    a.e('v_mov_b32 v99, 0')
    a.e(f'v_mov_b32 v92, {L_KT + 1536}')
    a.e('ds_write_b32 v92, v96')
    a.e(f'ds_write_b32 v92, v96 offset:{KTCH}')
    a.e('v_lshlrev_b32 v92, 3, v1')
    a.e(f'ds_write_b64 v92, v[96:97] offset:{L_U}')
    a.e(f'ds_write_b64 v92, v[96:97] offset:{L_U + UCH}')
    a.e('s_waitcnt lgkmcnt(0)')
    a.e('s_barrier')


def ktab_part2(a, mid=None):
    a.e(f'v_mov_b32 v91, {L_SIG}')
    a.e('ds_read_b128 v[44:47], v91')
    a.e('ds_read_b128 v[48:51], v91 offset:16')
    a.e(f's_and_b32 s67, s{S_W}, 1')
    a.e(f's_lshr_b32 s70, s{S_W}, 1')
    a.e('s_mul_i32 s71, s67, 3072')
    a.e('s_lshl_b32 s72, s70, 10')
    a.e('s_add_u32 s72, s72, s71')
    a.e(f's_add_u32 s72, s72, {L_SCR}')
    a.e(f's_add_u32 s71, s71, {L_SCR + 2048}')
    a.e('v_lshl_add_u32 v90, v1, 4, s72')
    a.e('v_lshl_add_u32 v91, v1, 4, s71')
    for wv in range(4):
        a.e(f'ds_read_b128 v[{96+4*wv}:{99+4*wv}], v90 offset:{wv*SCRW}')
    for wv in range(4):
        a.e(f'ds_read_b128 v[{112+4*wv}:{115+4*wv}], v91 offset:{wv*SCRW}')
    a.e('v_mov_b32 v128, 0')
    a.e('v_mov_b32 v129, 0')
    a.e('v_mov_b32 v130, 0')
    a.e('v_mov_b32 v131, 0')
    if OPT['c4']:
        a.e('v_and_b32 v132, 7, v1')
        a.e(f'v_mul_u32_u24 v132, {KCOPY}, v132')
        a.e('v_bfe_u32 v133, v1, 3, 1')
        a.e('v_lshl_add_u32 v132, v133, 4, v132')
    else:
        a.e('v_and_b32 v132, 15, v1')
        a.e(f'v_mul_u32_u24 v132, {KCOPY}, v132')
    a.e(f'v_add_u32 v132, {L_KC}, v132')
    a.e('ds_write_b128 v132, v[128:131] offset:4096')
    a.e('v_lshrrev_b32 v92, 4, v1')
    a.e('v_lshlrev_b32 v92, 7, v92')
    a.e('v_and_b32 v93, 15, v1')
    a.e('v_lshl_add_u32 v92, v93, 1, v92')
    a.e(f's_mul_i32 s71, s67, {KTCH}')
    a.e(f's_add_u32 s71, s71, {L_KT}')
    a.e('v_add_u32 v93, s71, v92')
    a.e('s_lshl_b32 s72, s70, 9')
    a.e('v_add_u32 v92, s72, v93')
    if mid is not None:
        mid()
    a.e('s_waitcnt lgkmcnt(9)')
    a.e('v_pk_add_f32 v[44:45], v[44:45], v[46:47]')
    a.e('v_pk_add_f32 v[48:49], v[48:49], v[50:51]')
    a.e('v_add_f32 v44, v44, v45')
    a.e('v_add_f32 v45, v48, v49')
    a.e('s_cmp_eq_u32 s67, 0')
    a.e('s_cselect_b64 vcc, -1, 0')
    a.e('v_pk_mul_f32 v[54:55], v[54:55], v[44:45]')
    a.e('v_cndmask_b32 v46, v45, v44, vcc')
    a.e('v_pk_add_f32 v[54:55], v[54:55], v[54:55]')
    a.e('v_rcp_f32 v46, v46')
    for jb, (base, va, off) in enumerate(((96, 92, 0), (112, 93, 1024))):
        a.e(f's_waitcnt lgkmcnt({5 if jb == 0 else 5})')
        for h in range(2):
            a.e(f'v_pk_add_f32 v[{base+2*h}:{base+2*h+1}], v[{base+2*h}:{base+2*h+1}], v[{base+4+2*h}:{base+5+2*h}]')
            a.e(f'v_pk_add_f32 v[{base+8+2*h}:{base+9+2*h}], v[{base+8+2*h}:{base+9+2*h}], v[{base+12+2*h}:{base+13+2*h}]')
        for h in range(2):
            a.e(f'v_pk_add_f32 v[{base+2*h}:{base+2*h+1}], v[{base+2*h}:{base+2*h+1}], v[{base+8+2*h}:{base+9+2*h}]')
        for h in range(2):
            a.e(f'v_pk_mul_f32 v[{base+2*h}:{base+2*h+1}], v[{base+2*h}:{base+2*h+1}], v[46:47] op_sel:[0,0] op_sel_hi:[1,0]')
        a.e(f'v_cvt_pk_f16_f32 v{base+4}, v{base}, v{base+1}')
        a.e(f'v_cvt_pk_f16_f32 v{base+5}, v{base+2}, v{base+3}')
        a.e(f'ds_write_b16 v{va}, v{base+4} offset:{off}')
        a.e(f'ds_write_b16_d16_hi v{va}, v{base+4} offset:{off+32}')
        a.e(f'ds_write_b16 v{va}, v{base+5} offset:{off+64}')
        a.e(f'ds_write_b16_d16_hi v{va}, v{base+5} offset:{off+96}')
    for e in range(11 if OPT['c4'] else 15):
        src = 160 + e // 2
        if e % 2 == 0:
            a.e(f'v_and_b32 v{136+e}, 0xffff, v{src}')
        else:
            a.e(f'v_lshrrev_b32 v{136+e}, 16, v{src}')
    a.e('s_waitcnt lgkmcnt(0)')
    a.e('s_barrier')


def kch():
    return (4 if OPT['c4'] else 8) * KCOPY


def kcopies(a):
    AD = 136
    a.e('v_lshlrev_b32 v111, 4, v0')
    a.e(f'v_add_u32 v111, {L_KC}, v111')
    RR = [96, 112]
    if OPT['c4']:
        for c in range(2):
            for e in range(11):
                a.e(f'ds_read_u16 v{RR[c]+e}, v{AD+e} offset:{L_KT + c*KTCH}')
        for c in range(2):
            R = RR[c]
            Da, Db, Oa, Ob = (56, 60, 64, 68) if c == 0 else (16, 20, 24, 28)
            a.e(f's_waitcnt lgkmcnt({11 if c == 0 else 4})')
            for i in range(4):
                a.e(f'v_lshl_or_b32 v{Da+i}, v{R+2*i+1}, 16, v{R+2*i}')
                a.e(f'v_lshl_or_b32 v{Oa+i}, v{R+2*i+2}, 16, v{R+2*i+1}')
                a.e(f'v_lshl_or_b32 v{Db+i}, v{R+2*i+3}, 16, v{R+2*i+2}')
                a.e(f'v_lshl_or_b32 v{Ob+i}, v{R+2*i+4}, 16, v{R+2*i+3}')
            for s_, r in ((0, Da), (1, Oa), (2, Db), (3, Ob)):
                a.e(f'ds_write_b128 v111, v[{r}:{r+3}] offset:{c*kch() + s_*KCOPY}')
        return
    for c in range(2):
        for e in range(15):
            a.e(f'ds_read_u16 v{RR[c]+e}, v{AD+e} offset:{L_KT + c*KTCH}')
    for c in range(2):
        R = RR[c]
        Da, Db, Oa, Ob = 56 + 0, 64, 72, 80
        if c == 1:
            Da, Db, Oa, Ob = 16, 24, 32, 40
        a.e(f's_waitcnt lgkmcnt({15 if c == 0 else 8})')
        for i in range(6):
            a.e(f'v_lshl_or_b32 v{Da+i}, v{R+2*i+1}, 16, v{R+2*i}')
            a.e(f'v_lshl_or_b32 v{Oa+i}, v{R+2*i+2}, 16, v{R+2*i+1}')
        if c == 1:
            a.e(f'v_add_u32 v110, {KCH}, v111')
        va = 111 if c == 0 else 110
        for s, r in ((0, Da), (1, Oa), (4, Da + 2), (5, Oa + 2)):
            a.e(f'ds_write_b128 v{va}, v[{r}:{r+3}] offset:{s*KCOPY}')
        for i in range(6):
            a.e(f'v_lshl_or_b32 v{Db+i}, v{R+2*i+3}, 16, v{R+2*i+2}')
            a.e(f'v_lshl_or_b32 v{Ob+i}, v{R+2*i+4}, 16, v{R+2*i+3}')
        for s, r in ((2, Db), (3, Ob), (6, Db + 2), (7, Ob + 2)):
            a.e(f'ds_write_b128 v{va}, v[{r}:{r+3}] offset:{s*KCOPY}')


def store_u(a, vm):
    a.e('v_lshlrev_b32 v2, 4, v0')
    a.e(f's_waitcnt vmcnt({vm})')
    a.e(f'ds_write_b128 v2, v[176:179] offset:{L_U + 512}')
    a.e(f'ds_write_b128 v2, v[180:183] offset:{L_U + UCH + 512}')
    a.e('s_waitcnt lgkmcnt(0)')
    a.e('s_barrier')


def phase_conv(a, hooks, pre_vm):
    hooks = list(hooks)
    ACC = 16
    FA = [[64 + 64 * s + 4 * i for i in range(8)] for s in range(2)]
    FB = [[96 + 64 * s + 4 * i for i in range(8)] for s in range(2)]
    VA, VB = (192, 193) if OPT['hoist'] else (48, 49)

    def loads(qq, s):
        out = []
        for i in range(8):
            out.append(f'ds_read_b128 v[{FB[s][i]}:{FB[s][i]+3}], v{VB} offset:{512*i + 64*(3-qq)}')
            if OPT['c4']:
                o = 512 * (7 - i) + 64 * (3 - qq)
                out.append(f'ds_read_b64 v[{FA[s][i]}:{FA[s][i]+1}], v{VA} offset:{o}')
                out.append(f'ds_read_b64 v[{FA[s][i]+2}:{FA[s][i]+3}], v{VA} offset:{o + 8}')
            else:
                out.append(f'ds_read_b128 v[{FA[s][i]}:{FA[s][i]+3}], v{VA} offset:{512*(7-i) + 64*(3-qq)}')
        return out

    for x in loads(0, 0):
        a.e(x)
    for qq in range(4):
        s = qq & 1
        nxt = loads(qq + 1, 1 - s) if qq < 3 else []
        n = 0
        for w in range(8):
            for c in range(w, 8):
                if n == 0:
                    a.e('s_waitcnt lgkmcnt(0)')
                    if qq == 3 and OPT['cvbar']:
                        a.e('s_barrier')
                cc = '0' if (qq == 0 and w == 0) else f'v[{ACC+4*c}:{ACC+4*c+3}]'
                a.e(f'v_mfma_f32_16x16x32_f16 v[{ACC+4*c}:{ACC+4*c+3}], v[{FA[s][w]}:{FA[s][w]+3}], v[{FB[s][c-w]}:{FB[s][c-w]+3}], {cc}')
                if nxt and (n % 2 == 1 or (OPT['c4'] and n % 4 == 0)):
                    a.e(nxt.pop(0))
                if hooks and n % 4 == 2:
                    hooks.pop(0)()
                n += 1
        assert not nxt
    assert not hooks
    stamp(a, 11)
    CP, TS = L_CP, 1280
    if OPT['hoist']:
        if not OPT['cvbar']:
            a.e('s_barrier')
        for c in range(8):
            a.e(f'ds_write_b128 v194, v[{ACC+4*c}:{ACC+4*c+3}] offset:{c*TS}')
        VRD, VU, VG = 195, 206, 207
    else:
        a.e('v_and_b32 v2, 15, v1')
        a.e('v_lshlrev_b32 v2, 4, v2')
        a.e('v_lshrrev_b32 v3, 4, v1')
        a.e('v_mul_u32_u24 v3, 320, v3')
        a.e('v_add_u32 v2, v2, v3')
        a.e(f's_mul_i32 s70, s{S_W}, {8*TS}')
        a.e(f's_add_u32 s70, s70, {CP}')
        a.e('v_add_u32 v2, s70, v2')
        if not OPT['cvbar']:
            a.e('s_barrier')
        for c in range(8):
            a.e(f'ds_write_b128 v2, v[{ACC+4*c}:{ACC+4*c+3}] offset:{c*TS}')
        a.e('v_lshrrev_b32 v2, 2, v1')
        a.e('v_lshlrev_b32 v2, 4, v2')
        a.e('v_and_b32 v3, 3, v1')
        a.e('v_mul_u32_u24 v3, 320, v3')
        a.e('v_add_u32 v2, v2, v3')
        a.e(f's_lshl_b32 s70, s{S_W}, 1')
        a.e(f's_mul_i32 s71, s70, {TS}')
        a.e(f's_add_u32 s71, s71, {CP}')
        a.e('v_add_u32 v2, s71, v2')
        a.e('s_lshl_b32 s71, s70, 9')
        a.e(f's_add_u32 s71, s71, {L_U + 512}')
        a.e('v_lshl_add_u32 v3, v1, 3, s71')
        a.e(f's_mul_i32 s71, s{S_P}, {AST}')
        a.e('s_lshl_b32 s72, s70, 10')
        a.e('s_add_u32 s71, s71, s72')
        a.e(f's_add_u32 s71, s71, {WS_AOUT}')
        a.e('v_lshl_add_u32 v4, v1, 4, s71')
        VRD, VU, VG = 2, 3, 4
    a.e('s_lshl_b32 s72, s69, 16')
    a.e('s_and_b32 s73, s69, 0xffff0000')
    a.e('v_mov_b32 v56, s72')
    a.e('v_mov_b32 v57, s73')
    a.e(f's_waitcnt lgkmcnt(0) vmcnt({pre_vm})')
    a.e('s_barrier')
    for q in range(2):
        P = 64 + 32 * q
        for ch in range(2):
            for hf in range(2):
                r = P + 8 * ch + 4 * hf
                a.e(f'ds_read_b128 v[{r}:{r+3}], v{VRD} offset:{(2*ch+hf)*8*TS + q*TS}')
        for ch in range(2):
            a.e(f'ds_read_b64 v[{P+16+2*ch}:{P+17+2*ch}], v{VU} offset:{ch*UCH + q*512}')
    for q in range(2):
        P = 64 + 32 * q
        a.e(f's_waitcnt lgkmcnt({6 if q == 0 else 0})')
        for ch in range(2):
            y = P + 8 * ch
            T = 128 + 16 * ch
            u = P + 16 + 2 * ch
            for h in range(2):
                a.e(f'v_pk_add_f32 v[{y+2*h}:{y+2*h+1}], v[{y+2*h}:{y+2*h+1}], v[{y+4+2*h}:{y+5+2*h}]')
            for i in range(4):
                a.e(f'v_fma_mix_f32 v{T+i}, v{u+i//2}, v{56+ch}, 0 op_sel:[{i%2},0,0] op_sel_hi:[1,0,0]')
            for h in range(2):
                a.e(f'v_pk_mul_f32 v[{y+2*h}:{y+2*h+1}], v[{y+2*h}:{y+2*h+1}], v[54:55] op_sel:[0,{ch}] op_sel_hi:[1,{ch}]')
            for h in range(2):
                a.e(f'v_cvt_pk_bf16_f32 v{T+6+h}, v{T+2*h}, v{T+2*h+1}')
                a.e(f'v_cvt_pk_bf16_f32 v{T+4+h}, v{y+2*h}, v{y+2*h+1}')
            for h in range(2):
                a.e(f'v_lshlrev_b32 v{T+2*h}, 16, v{T+6+h}')
                a.e(f'v_and_b32 v{T+2*h+1}, 0xffff0000, v{T+6+h}')
                a.e(f'v_lshlrev_b32 v{y+2*h}, 16, v{T+4+h}')
                a.e(f'v_and_b32 v{y+2*h+1}, 0xffff0000, v{T+4+h}')
            for h in range(2):
                a.e(f'v_pk_add_f32 v[{y+2*h}:{y+2*h+1}], v[{y+2*h}:{y+2*h+1}], v[{T+2*h}:{T+2*h+1}]')
        O = 160 + 4 * q
        for i in range(4):
            a.e(f'v_cvt_pk_bf16_f32 v{O+i}, v{P+i}, v{P+8+i}')
        a.e(f'buffer_store_dwordx4 v[{O}:{O+3}], v{VG}, {WSR}, 0 offen offset:{q*1024} sc1')


def conv_addr(a, va=48, vb=49):
    a.e(f's_lshr_b32 s66, s{S_W}, 1')
    a.e(f's_and_b32 s67, s{S_W}, 1')
    a.e('v_and_b32 v2, 7, v1')
    a.e('v_sub_u32 v2, 7, v2')
    if OPT['c4']:
        a.e('v_lshrrev_b32 v5, 2, v2')
        a.e('v_and_b32 v2, 3, v2')
        a.e(f'v_mul_u32_u24 v2, {KCOPY}, v2')
        a.e('v_lshl_add_u32 v2, v5, 3, v2')
    else:
        a.e(f'v_mul_u32_u24 v2, {KCOPY}, v2')
    a.e('v_lshrrev_b32 v3, 4, v1')
    a.e('v_bfe_u32 v4, v1, 3, 1')
    a.e('v_sub_u32 v4, v3, v4')
    a.e('v_lshl_add_u32 v2, v4, 4, v2')
    a.e(f's_mul_i32 s70, s66, {kch()}')
    a.e('s_lshl_b32 s71, s67, 8')
    a.e('s_sub_u32 s70, s70, s71')
    a.e(f's_add_u32 s70, s70, {L_KC + 16*253 - 512*7 - 64*3}')
    a.e(f'v_add_u32 v{va}, s70, v2')
    a.e('v_and_b32 v2, 15, v1')
    a.e('v_lshlrev_b32 v2, 5, v2')
    a.e('v_lshl_add_u32 v2, v3, 4, v2')
    a.e(f's_mul_i32 s70, s66, {UCH}')
    a.e('s_sub_u32 s70, s70, s71')
    a.e(f's_add_u32 s70, s70, {L_U + 480 - 64*3}')
    a.e(f'v_add_u32 v{vb}, s70, v2')


def p4_pre(a):
    X = list(range(8, 16))
    xrow_addr(a)
    a.e(f's_mul_i32 s66, s{S_W}, {56*AST}')
    a.e(f's_lshl_b32 s67, s{S_B}, 5')
    a.e('s_add_u32 s66, s66, s67')
    a.e(f's_add_u32 s66, s66, {WS_AOUT}')
    a.e(f'v_mul_u32_u24 v4, {AST}, v1')
    a.e('v_add_u32 v4, s66, v4')
    a.e(f'v_mov_b32 v5, {OOB}')
    a.e('v_cndmask_b32 v4, v5, v4, vcc')
    if OPT['hpriv']:
        a.e(f's_mul_i32 s66, s{S_W}, 1792')
        a.e(f's_add_u32 s66, s66, {L_HT}')
        a.e('v_lshl_add_u32 v6, v1, 2, s66')
        a.e('v_lshl_add_u32 v7, v1, 4, s66')
        a.e(f's_mul_i32 s66, s{S_B}, 7168')
        a.e(f's_mul_i32 s67, s{S_W}, 224')
        a.e('s_add_u32 s66, s66, s67')
        a.e(f's_add_u32 s66, s66, {WS_H}')
        for k, vd in ((0, 56), (64, 57)):
            a.e(f'v_add_u32 v58, {k}, v1')
            a.e('v_mul_u32_u24 v59, 4682, v58')
            a.e('v_lshrrev_b32 v59, 16, v59')
            a.e(f'v_mul_u32_u24 v{vd}, {896 - 224}, v59')
            a.e(f'v_lshl_add_u32 v{vd}, v58, 4, v{vd}')
            a.e(f'v_add_u32 v{vd}, s66, v{vd}')
        mask_lanes(a, 57, 48, 58)
    else:
        a.e(f's_mul_i32 s66, s{S_W}, 224')
        a.e(f's_add_u32 s66, s66, {L_HT}')
        a.e('v_lshl_add_u32 v6, v1, 2, s66')
    for j in range(8):
        a.e(f'v_lshlrev_b32 v{64+2*j}, 16, v{X[j]}')
        a.e(f'v_and_b32 v{65+2*j}, 0xffff0000, v{X[j]}')


def p4_loads(a):
    A = 32
    a.e(f'buffer_load_dwordx4 v[{A}:{A+3}], v4, {WSR}, 0 offen sc1')
    a.e(f'buffer_load_dwordx4 v[{A+4}:{A+7}], v4, {WSR}, 0 offen offset:16 sc1')


def p4_check(a):
    A = 32
    a.e(f'v_max3_u32 v40, v{A}, v{A+1}, v{A+2}')
    a.e(f'v_max3_u32 v41, v{A+3}, v{A+4}, v{A+5}')
    a.e(f'v_max3_u32 v40, v40, v{A+6}, v{A+7}')
    a.e('v_max_u32 v40, v40, v41')
    a.e('v_cmp_eq_u32 vcc, -1, v40')


def phase_p4(a, dmas=(), pre_done=None):
    X = list(range(8, 16))
    A = 32
    if pre_done is None:
        p4_pre(a)
        lp0, ld = a.lab('h2poll0'), a.lab('h2done')
    else:
        lp0, ld = pre_done
    lp = a.lab('h2poll')
    a.e(f'{lp0}:')
    a.e(f's_mov_b32 s{S_SPIN}, 0')
    a.e(f'{lp}:')
    p4_loads(a)
    a.e('s_waitcnt vmcnt(0)')
    p4_check(a)
    a.e(f's_cbranch_vccz {ld}')
    spin_tail(a, lp)
    a.e(f'{ld}:')
    stamp(a, 14)
    H = list(range(48, 56))
    for j in range(8):
        t = 40 + 2 * (j % 4)
        a.e(f'v_lshlrev_b32 v{t}, 16, v{A+j}')
        a.e(f'v_and_b32 v{t+1}, 0xffff0000, v{A+j}')
        a.e(f'v_pk_add_f32 v[{t}:{t+1}], v[{t}:{t+1}], v[{64+2*j}:{65+2*j}]')
        a.e(f'v_cvt_pk_bf16_f32 v{H[j]}, v{t}, v{t+1}')
    a.e('s_mov_b32 exec_hi, 0x00ffffff')
    for j in range(8):
        a.e(f'ds_write_b32 v6, v{H[j]} offset:{j*(224 if OPT["hpriv"] else 896)}')
    a.e('s_mov_b32 exec_hi, -1')
    if OPT['hpriv']:
        a.e('ds_read_b128 v[32:35], v7')
        a.e('ds_read_b128 v[36:39], v7 offset:1024')
        a.e('s_waitcnt lgkmcnt(1)')
        a.e(f'buffer_store_dwordx4 v[32:35], v56, {WSR}, 0 offen sc1')
        a.e('s_waitcnt lgkmcnt(0)')
        a.e(f'buffer_store_dwordx4 v[36:39], v57, {WSR}, 0 offen sc1')
        if dmas:
            a.inject(dmas, OPT['p4ev'])
        ln_stats(a, H, 16, L_RED0, 5)
    else:
        def hstore():
            a.e('v_lshlrev_b32 v7, 4, v0')
            a.e(f'ds_read_b128 v[56:59], v7 offset:{L_HT}')
            a.e(f'ds_read_b128 v[60:63], v7 offset:{L_HT + 4096}')
            return 2

        ln_stats(a, H, 16, L_RED0, 5, mid=hstore)
        a.e(f's_mul_i32 s66, s{S_B}, 7168')
        a.e(f's_add_u32 s66, s66, {WS_H}')
        a.e('v_add_u32 v6, s66, v7')
        a.e('v_add_u32 v7, 4096, v6')
        mask_lanes(a, 7, 192, 4, 'v0')
        a.e('s_waitcnt lgkmcnt(0)')
        a.e(f'buffer_store_dwordx4 v[56:59], v6, {WSR}, 0 offen sc1')
        a.e(f'buffer_store_dwordx4 v[60:63], v7, {WSR}, 0 offen sc1')
    bcast_stats(a, 16)
    a.inj_pause()
    a.e('s_mov_b32 exec_hi, 0x00ffffff')
    for j in range(8):
        t = 40 + 2 * (j % 4)
        norm_tok(a, j, H[j], t)
        a.e(f'v_cvt_pk_bf16_f32 v{H[j]}, v{t}, v{t+1}')
    a.e('s_mov_b32 exec_hi, -1')
    a.inj_resume()
    ln_stats(a, H, 16, L_RED1, 5)
    bcast_stats(a, 16)
    VHH = 213 if OPT['hoist'] else 4
    if not OPT['hoist']:
        a.e(f's_mul_i32 s66, s{S_B}, 7168')
        a.e(f's_mul_i32 s67, s{S_W}, 1792')
        a.e('s_add_u32 s66, s66, s67')
        a.e(f's_add_u32 s66, s66, {WS_HH}')
        a.e('v_lshl_add_u32 v4, v1, 4, s66')
        a.e('v_add_u32 v5, 448, v4')
        a.e('v_cmp_gt_u32 vcc, 28, v1')
        a.e('v_cndmask_b32 v4, v5, v4, vcc')
        mask_lanes(a, 4, 56, 5)
    for j in range(8):
        norm_tok(a, j, H[j], 64 + 2 * j)
    O0, O1 = 80, 84
    for i in range(4):
        a.e(f'v_cvt_pk_bf16_f32 v{O0+i}, v{64+4*i}, v{66+4*i}')
        a.e(f'v_cvt_pk_bf16_f32 v{O1+i}, v{65+4*i}, v{67+4*i}')
    a.inj_flush()
    if not OPT['nohw']:
        a.e(f's_waitcnt vmcnt({len(dmas)})')
    if not OPT['hpriv']:
        a.e('s_barrier')
    a.e(f'buffer_store_dwordx4 v[{O0}:{O0+3}], v{VHH}, {WSR}, 0 offen sc1')
    a.e(f'buffer_store_dwordx4 v[{O1}:{O1+3}], v{VHH}, {WSR}, 0 offen offset:448 sc1')


def w_setup(a):
    srd(a, S_W1, P_W1, W1BYTES)
    srd(a, S_W2, P_W2, W2BYTES)
    a.e('v_lshrrev_b32 v4, 3, v1')
    a.e('v_bfe_u32 v5, v1, 4, 1')
    a.e('v_lshlrev_b32 v5, 1, v5')
    a.e('v_and_b32 v6, 7, v1')
    a.e('v_xor_b32 v6, v6, v5')
    a.e('v_xor_b32 v7, 4, v6')
    for vd, rowbytes, tile, rows in ((V_D1, F * 2, S_I1, 512), (V_D2, L * 2, S_I2, 448)):
        a.e(f's_mov_b32 s66, {rowbytes}')
        a.e('v_mul_lo_u32 v5, v4, s66')
        a.e(f's_mul_i32 s67, s{S_W}, {rows*rowbytes}')
        a.e(f's_lshl_b32 s66, s{tile}, 7')
        a.e('s_add_u32 s67, s67, s66')
        a.e('v_add_u32 v5, s67, v5')
        for i in range(4):
            a.e(f'v_lshl_add_u32 v{vd+i}, v{6 + (i & 1)}, 4, v5')
            if i:
                a.e(f'v_add_u32 v{vd+i}, {i*(8*rowbytes - 1024)}, v{vd+i}')
    a.e('v_lshlrev_b32 v5, 12, v4')
    a.e('v_and_b32 v6, 7, v1')
    a.e(f'v_lshl_add_u32 v{V_QPF}, v6, 4, v5')
    a.e(f's_and_b32 s66, s{S_LOC}, 3')
    a.e('s_mul_i32 s66, s66, 448')
    if OPT['sched'] == 3:
        a.e(f's_mul_i32 s67, s{S_W}, {(448 - OPT["hR"]) // 4}')
        a.e(f's_add_u32 s67, s67, {OPT["hR"]}')
    else:
        a.e(f's_mul_i32 s67, s{S_W}, 112')
    a.e('s_add_u32 s66, s66, s67')
    a.e('s_lshl_b32 s66, s66, 12')
    a.e(f's_lshl_b32 s67, s{S_I2}, 7')
    a.e(f's_add_u32 s{S_QPF}, s66, s67')
    a.e('v_lshrrev_b32 v4, 4, v1')
    a.e('v_bfe_u32 v5, v1, 2, 2')
    a.e('v_lshl_add_u32 v5, v4, 3, v5')
    a.e('v_lshlrev_b32 v5, 7, v5')
    a.e('v_and_b32 v6, 1, v1')
    a.e('v_lshl_add_u32 v5, v6, 3, v5')
    a.e('v_bfe_u32 v6, v1, 1, 1')
    a.e('v_lshl_add_u32 v5, v6, 4, v5')
    a.e('v_bfe_u32 v6, v1, 3, 1')
    a.e('v_and_b32 v4, 1, v4')
    a.e('v_lshl_add_u32 v6, v4, 1, v6')
    a.e(f's_and_b32 s66, s{S_LOC}, 3')
    a.e(f's_lshr_b32 s67, s{S_LOC}, 2')
    a.e('s_lshl_b32 s67, s67, 1')
    a.e('s_lshl_b32 s70, s66, 2')
    a.e('s_add_u32 s70, s70, s67')
    a.e('s_and_b32 s70, s70, 15')
    a.e(f's_mul_i32 s{S_RW1}, s70, {32*F*2}')
    a.e(f's_mul_i32 s{S_RX1}, s70, {4*7168}')
    a.e('s_mul_i32 s66, s66, 7')
    a.e('s_lshr_b32 s66, s66, 1')
    a.e('s_add_u32 s66, s66, s67')
    for _ in range(2):
        a.e('s_cmp_ge_u32 s66, 14')
        a.e('s_cselect_b32 s67, 14, 0')
        a.e('s_sub_u32 s66, s66, s67')
    a.e(f's_mul_i32 s{S_RW2}, s66, {32*L*2}')
    a.e(f's_mul_i32 s{S_RX2}, s66, {4*7168}')
    a.e(f's_lshl_b32 s{S_SA}, s{S_W}, 14')
    a.e(f's_add_u32 s{S_SA}, s{S_SA}, {L_WA}')
    a.e(f's_mul_i32 s{S_SB}, s{S_W}, 20480')
    a.e(f's_add_u32 s{S_SB}, s{S_SB}, {L_WB}')
    a.e(f's_lshl_b32 s{S_SC}, s{S_W}, 13')
    a.e(f's_add_u32 s{S_SC}, s{S_SC}, {L_WC}')
    for mu in range(4):
        a.e(f'v_xor_b32 v4, {mu}, v6')
        a.e('v_lshl_add_u32 v4, v4, 5, v5')
        a.e(f'v_add_u32 v{V_TA+mu}, s{S_SA}, v4')
        a.e(f'v_add_u32 v{V_TB+mu}, s{S_SB}, v4')
        a.e(f'v_add_u32 v{V_TC+mu}, s{S_SC}, v4')


def rot_off(a, idx, sreg, n, unit):
    a.e(f's_add_u32 s70, s{sreg}, {idx*unit}')
    a.e(f's_cmp_ge_u32 s70, {n*unit}')
    a.e(f's_cselect_b32 s71, {n*unit}, 0')
    a.e('s_sub_u32 s70, s70, s71')


def slot(name):
    return {'A': (S_SA, V_TA), 'B': (S_SB, V_TB), 'C': (S_SC, V_TC)}[name[0]] + (int(name[1]),)


def w_dma1(a, mat, slab, sl, i):
    sb, _, si = slot(sl)
    vd, srd_, rowbytes = (V_D1, S_W1, F * 2) if mat == 1 else (V_D2, S_W2, L * 2)
    if i == 0:
        rot_off(a, slab, S_RW1 if mat == 1 else S_RW2, 16 if mat == 1 else 14, 32 * rowbytes)
        a.e(f's_add_u32 m0, s{sb}, {si*4096}')
    a.e(f'buffer_load_dwordx4 v{vd + i}, s[{srd_}:{srd_+3}], s70 offen offset:{1024*i} lds')


def w_dma(a, mat, slab, sl):
    for i in range(4):
        w_dma1(a, mat, slab, sl, i)


def w_tr(a, slab, sl):
    _, vt, si = slot(sl)
    for mu in range(4):
        r = (slab * 4 + mu) * 4
        a.e(f'ds_read_b64_tr_b16 a[{r}:{r+1}], v{vt+mu} offset:{si*4096}')
        a.e(f'ds_read_b64_tr_b16 a[{r+2}:{r+3}], v{vt+mu} offset:{si*4096 + 512}')


def helper_w2(a, nrows, mid=None):
    a.e(f's_lshr_b32 s66, s{S_XCD}, 1')
    a.e('s_lshl_b32 s66, s66, 10')
    a.e(f's_sub_u32 s67, s{S_LOC}, 28')
    a.e('s_mul_i32 s67, s67, 448')
    a.e(f's_add_u32 s67, s67, s{S_W}')
    a.e('s_lshl_b32 s67, s67, 12')
    a.e('s_add_u32 s90, s66, s67')
    a.e('v_lshlrev_b32 v4, 4, v1')

    def loop(n):
        if n <= 0:
            return
        l = a.lab('l2s')
        a.e(f's_mov_b32 s91, {n}')
        a.e(f'{l}:')
        for i in range(4):
            a.e(f'buffer_load_dwordx4 v[220:223], v4, s[{S_W2}:{S_W2+3}], s90 offen')
            a.e(f's_add_u32 s90, s90, {4*L*2}')
        a.e('s_waitcnt vmcnt(8)')
        a.e('s_sub_u32 s91, s91, 1')
        a.e('s_cmp_lg_u32 s91, 0')
        a.e(f's_cbranch_scc1 {l}')

    total = nrows // 16
    if mid is None:
        loop(total)
        return
    n1, issue, check = mid
    loop(n1)
    issue()
    loop(3)
    check()
    loop(total - n1 - 3)


def qpf_load(a, n):
    for _ in range(n):
        a.e(f'buffer_load_dwordx4 v[220:223], v{V_QPF}, s[{S_W2}:{S_W2+3}], s{S_QPF} offen')
        a.e(f's_add_u32 s{S_QPF}, s{S_QPF}, {8*L*2}')


ACC = 16
XS = 80
NS = 6
VMAX = 214
V_X0, V_X3 = 208, 209


def gemm_xaddr(a, ws_off, kblocks):
    a.e(f's_mul_i32 s66, s{S_W}, {kblocks*7168}')
    a.e(f's_mul_i32 s67, s{S_J}, 896')
    a.e('s_add_u32 s66, s66, s67')
    a.e(f's_add_u32 s66, s66, {ws_off}')
    a.e('v_lshrrev_b32 v4, 4, v1')
    a.e('v_mul_u32_u24 v4, 7168, v4')
    a.e('v_add_u32 v4, s66, v4')
    a.e('v_and_b32 v5, 15, v1')
    a.e(f'v_lshl_add_u32 v{V_X0}, v5, 4, v4')
    if OPT['x3oob']:
        a.e(f'v_add_u32 v{V_X3}, 768, v{V_X0}')
        a.e(f'v_mov_b32 v4, {OOB}')
        a.e('v_cmp_gt_u32 vcc, 8, v5')
        a.e(f'v_cndmask_b32 v{V_X3}, v4, v{V_X3}, vcc')
    else:
        a.e('v_and_b32 v5, 7, v1')
        a.e('v_lshl_add_u32 v4, v5, 4, v4')
        a.e(f'v_add_u32 v{V_X3}, 768, v4')


def gemm_xloads(a, kappa, gid):
    st = XS + 16 * (kappa % NS)
    out = []
    sreg, n = (S_RX1, 16) if gid == 1 else (S_RX2, 14)
    unit = 4 * 7168
    out.append(f's_add_u32 s70, s{sreg}, {kappa*unit}')
    out.append(f's_cmp_ge_u32 s70, {n*unit}')
    out.append(f's_cselect_b32 s71, {n*unit}, 0')
    out.append('s_sub_u32 s70, s70, s71')
    for nu in range(3):
        out.append(f'buffer_load_dwordx4 v[{st+4*nu}:{st+4*nu+3}], v{V_X0}, {WSR}, s70 offen offset:{256*nu} sc1')
    out.append(f'buffer_load_dwordx4 v[{st+12}:{st+15}], v{V_X3}, {WSR}, s70 offen sc1')
    return out


def xhalf(a, kappa, h, gid):
    full = gemm_xloads(a, kappa, gid)
    return full[:4] + (full[4:6] if h == 0 else full[6:8])


def xseq(a, lo, hi, nk, gid):
    out = []
    i = lo
    while i < min(hi, 2 * nk):
        if i % 2 == 0 and i + 1 < min(hi, 2 * nk):
            out += gemm_xloads(a, i // 2, gid)
            i += 2
        else:
            out += xhalf(a, i // 2, i % 2, gid)
            i += 1
    return out


def x_ahead():
    return 2 * OPT['nfl'] + OPT['hf']


def gemm_main(a, nk, gid, tail_hook=None):
    nfl = OPT['nfl']
    w_is_a = gid == 1
    a.e(f'v_mov_b32 v{VMAX}, 0')
    extra = 0
    for k in range(nk):
        st = XS + 16 * (k % NS)
        rem = min(nfl - 1, nk - 1 - k)
        a.e(f's_waitcnt vmcnt({4*rem + extra})')
        if OPT['stamps'] and k in (0, 4, 8, 12):
            stamp(a, (44 if w_is_a else 51) + (0, 4, 8, 12).index(k))
        fill = gemm_xloads(a, k + nfl, gid) if k + nfl < nk else []
        if k + nfl == nk and tail_hook is not None:
            fill = []
            extra = tail_hook(fill)
        mx = [f'v_max3_u32 v{VMAX}, v{VMAX}, v{st+2*i}, v{st+2*i+1}' for i in range(8)]
        n = 0
        for mu in range(4):
            for nu in range(4):
                w = (k * 4 + mu) * 4
                x = st + 4 * nu
                if w_is_a:
                    acc = ACC + (mu * 4 + nu) * 4
                    A, B = f'a[{w}:{w+3}]', f'v[{x}:{x+3}]'
                else:
                    acc = ACC + (nu * 4 + mu) * 4
                    A, B = f'v[{x}:{x+3}]', f'a[{w}:{w+3}]'
                cc = '0' if k == 0 else f'v[{acc}:{acc+3}]'
                a.e(f'v_mfma_f32_16x16x32_bf16 v[{acc}:{acc+3}], {A}, {B}, {cc}')
                for _ in range(2):
                    if fill:
                        a.e(fill.pop(0))
                if not fill and mx and n >= 4:
                    a.e(mx.pop(0))
                n += 1
        assert not fill and not mx


def capture(fn):
    p = Prog()
    fn(p)
    return [it.text for it in p.items]


STUBS = []


def mfma_line(k, mu, nu, gid):
    st = XS + 16 * (k % NS)
    w = (k * 4 + mu) * 4
    x = st + 4 * nu
    if gid == 1:
        acc = ACC + (mu * 4 + nu) * 4
        A, B = f'a[{w}:{w+3}]', f'v[{x}:{x+3}]'
    else:
        acc = ACC + (nu * 4 + mu) * 4
        A, B = f'v[{x}:{x+3}]', f'a[{w}:{w+3}]'
    cc = '0' if k == 0 else f'v[{acc}:{acc+3}]'
    return f'v_mfma_f32_16x16x32_bf16 v[{acc}:{acc+3}], {A}, {B}, {cc}'


def poison_check(k):
    st = XS + 16 * (k % NS)
    out = [f'v_max3_u32 v{VMAX}, v{st}, v{st+1}, v{st+2}']
    for i in range(6):
        out.append(f'v_max3_u32 v{VMAX}, v{VMAX}, v{st+3+2*i}, v{st+4+2*i}')
    out.append(f'v_max_u32 v{VMAX}, v{VMAX}, v{st+15}')
    out.append(f'v_cmp_eq_u32 vcc, -1, v{VMAX}')
    return out


def is_scalar(x):
    return x.startswith('s_')


def emit_gaps(a, mf, fillers):
    q = list(fillers)
    for i, m in enumerate(mf):
        a.e(m)
        nv = ns = 0
        left = len(mf) - 1 - i
        while q:
            x = q[0]
            if is_scalar(x):
                if ns >= 1 and left > 0:
                    break
                ns += 1
            else:
                if nv >= 2 and left > 0:
                    break
                nv += 1
            a.e(q.pop(0))
    assert not q


def gemm_gap_loop(a, nk, gid, slow, tail_hook, side):
    assert OPT['hf'] == 0
    nfl = OPT['nfl']
    extra = 0

    def xl(kappa):
        return [x.replace('s70', 's92').replace('s71', 's93') for x in gemm_xloads(a, kappa, gid)]

    for k in range(nk):
        lines = [mfma_line(k, mu, nu, gid) for mu in range(4) for nu in range(4)]
        kn = k + 1
        nxt = xl(kn + nfl) if (kn < nk and kn + nfl < nk) else []
        first = nxt[:4]
        if side is not None:
            lines_, nvm = side(k)
            first = first + lines_
            extra += nvm
        emit_gaps(a, lines[:8], first)
        second = []
        if kn < nk:
            rem = min(nfl - 1, nk - 1 - kn)
            a.e(f's_waitcnt vmcnt({4*rem + extra})')
            if OPT['stamps'] and kn in (4, 8, 12):
                stamp(a, (44 if gid == 1 else 51) + (0, 4, 8, 12).index(kn))
            loads = nxt[4:]
            if kn + nfl == nk and tail_hook is not None:
                t = []
                extra += tail_hook(t)
                loads = [x.replace('s70', 's92') for x in t]
            chk = poison_check(kn)
            while loads or chk:
                if loads:
                    x = loads.pop(0)
                    second.append(x)
                    if is_scalar(x):
                        continue
                if chk:
                    second.append(chk.pop(0))
                    if not loads and chk:
                        second.append(chk.pop(0))
        emit_gaps(a, lines[8:], second)
        if kn < nk:
            ls, lb = slow(kn)
            a.e(f's_cbranch_vccnz {ls}')
            a.e(f'{lb}:')


def gemm_checked(a, nk, gid, sb, tail_hook=None, side=None, issued=False):
    nfl = OPT['nfl']

    def slow(k):
        ls, lb, lp = a.lab('slow'), a.lab('back'), a.lab('sloop')

        def emit():
            a.e(f'{ls}:')
            a.e(f's_mov_b32 s{S_SPIN}, 0')
            a.e(f'{lp}:')
            for x in gemm_xloads(a, k, gid):
                a.e(x)
            a.e('s_waitcnt vmcnt(0)')
            for x in poison_check(k):
                a.e(x)
            ldone = a.lab('sdone')
            a.e(f's_cbranch_vccz {ldone}')
            spin_tail(a, lp)
            a.e(f'{ldone}:')
            if k == 0:
                for x in xseq(a, 2, x_ahead() + 2, nk, gid):
                    a.e(x)
            a.e(f's_branch {lb}')
        STUBS.append(emit)
        return ls, lb

    ah = x_ahead()
    if not issued:
        for x in xseq(a, 0, ah, nk, gid):
            a.e(x)
    a.e(f's_waitcnt vmcnt({2*(ah-2)})')
    for x in xseq(a, ah, ah + 2, nk, gid):
        a.e(x)
    for x in poison_check(0):
        a.e(x)
    ls, lb = slow(0)
    a.e(f's_cbranch_vccnz {ls}')
    a.e(f'{lb}:')
    if OPT['gap']:
        stamp(a, sb)
        gemm_gap_loop(a, nk, gid, slow, tail_hook, side)
        return
    stamp(a, sb)
    extra = 0
    for k in range(nk):
        lines = [mfma_line(k, mu, nu, gid) for mu in range(4) for nu in range(4)]
        for i in range(8):
            a.e(lines[i])
        if k + 1 < nk:
            kn = k + 1
            issued_h = min(ah + 2 * kn, 2 * nk)
            a.e(f's_waitcnt vmcnt({2*(issued_h - 2*kn - 2) + extra})')
            if OPT['stamps'] and kn in (4, 8, 12):
                stamp(a, (44 if gid == 1 else 51) + (0, 4, 8, 12).index(kn))
            fill = xseq(a, issued_h, issued_h + 2, nk, gid)
            if kn + nfl == nk and tail_hook is not None:
                assert issued_h + 2 >= 2 * nk
                extra = tail_hook(fill)
            if side is not None:
                lines_, nvm = side(kn)
                fill += lines_
                extra += nvm
            fill += poison_check(kn)
        else:
            fill = []
        per = -(-len(fill) // 8)
        for i in range(8, 16):
            a.e(lines[i])
            for _ in range(per):
                if fill:
                    a.e(fill.pop(0))
        assert not fill
        if k + 1 < nk:
            ls, lb = slow(k + 1)
            a.e(f's_cbranch_vccnz {ls}')
            a.e(f'{lb}:')


def sentinel(a, ws_off, kblocks):
    lp, ld = a.lab('spoll'), a.lab('sdone')
    a.e(f's_mul_i32 s66, s{S_W}, {kblocks*7168}')
    a.e(f's_mul_i32 s67, s{S_J}, 896')
    a.e('s_add_u32 s66, s66, s67')
    a.e(f's_add_u32 s66, s66, {ws_off + 55*16 + 12}')
    a.e('v_mul_u32_u24 v4, 7168, v1')
    a.e('v_add_u32 v4, s66, v4')
    if kblocks < 64:
        mask_lanes(a, 4, kblocks, 5)
    a.e(f's_mov_b32 s{S_SPIN}, 0')
    a.e(f'{lp}:')
    a.e(f'buffer_load_dword v5, v4, {WSR}, 0 offen sc1')
    a.e('s_waitcnt vmcnt(0)')
    a.e('v_cmp_eq_u32 vcc, -1, v5')
    a.e(f's_cbranch_vccz {ld}')
    spin_tail(a, lp)
    a.e(f'{ld}:')


def gemm_first_loads(a, ws_off, kblocks, gid):
    gemm_xaddr(a, ws_off, kblocks)
    for x in xseq(a, 0, x_ahead(), 16 if gid == 1 else 14, gid):
        a.e(x)
    return 2 * x_ahead()


def gemm_poll_main(a, ws_off, kblocks, nk, gid, sb, tail_hook=None, side=None, issued=False):
    lr, lok = a.lab('gretry'), a.lab('gok')
    if not issued:
        gemm_xaddr(a, ws_off, kblocks)
    if OPT['stchk']:
        gemm_checked(a, nk, gid, sb, tail_hook, side, issued)
        return
    a.e(f's_mov_b32 s{S_RETRY}, 0')
    a.e(f'{lr}:')
    sentinel(a, ws_off, kblocks)
    stamp(a, sb)
    for k in range(OPT['nfl']):
        for x in gemm_xloads(a, k, gid):
            a.e(x)
    gemm_main(a, nk, gid, tail_hook)
    a.e(f'v_cmp_eq_u32 vcc, -1, v{VMAX}')
    a.e(f's_cbranch_vccz {lok}')
    a.e(f's_add_u32 s{S_RETRY}, s{S_RETRY}, 1')
    a.e(f's_cmp_lt_u32 s{S_RETRY}, {RETRY_MAX}')
    a.e(f's_cbranch_scc1 {lr}')
    a.e(f'{lok}:')


def write_partials(a):
    if OPT['hoist']:
        va = 241
    else:
        va = 4
        a.e('v_and_b32 v4, 15, v1')
        a.e(f'v_mul_u32_u24 v4, {PROW}, v4')
        a.e('v_lshrrev_b32 v5, 4, v1')
        a.e('v_lshl_add_u32 v4, v5, 4, v4')
        a.e(f's_mul_i32 s66, s{S_W}, {PARTW}')
        a.e(f's_add_u32 s66, s66, {L_PART}')
        a.e('v_add_u32 v4, s66, v4')
    if not OPT['prebar']:
        a.e('s_barrier')
    for mt in range(4):
        for nt in range(4):
            acc = ACC + (mt * 4 + nt) * 4
            a.e(f'ds_write_b128 v{va}, v[{acc}:{acc+3}] offset:{nt*16*PROW + mt*64}')


def sum_partials(a, P):
    for h in range(4):
        a.e(f'v_pk_add_f32 v[{P+2*h}:{P+2*h+1}], v[{P+2*h}:{P+2*h+1}], v[{P+8+2*h}:{P+9+2*h}]')
        a.e(f'v_pk_add_f32 v[{P+16+2*h}:{P+17+2*h}], v[{P+16+2*h}:{P+17+2*h}], v[{P+24+2*h}:{P+25+2*h}]')
    for h in range(4):
        a.e(f'v_pk_add_f32 v[{P+2*h}:{P+2*h+1}], v[{P+2*h}:{P+2*h+1}], v[{P+16+2*h}:{P+17+2*h}]')


def b1_load(a):
    a.e(f's_lshl_b32 s67, s{S_I1}, 7')
    a.e(f's_lshl_b32 s70, s{S_W}, 5')
    a.e('s_add_u32 s67, s67, s70')
    a.e(f's_load_dwordx8 s[72:79], s[{P_B1}:{P_B1+1}], s67')


def gemm1_epilogue(a, d0=(), d1=()):
    write_partials(a)
    if OPT['hoist']:
        VR1, VG1 = 242, 240
    else:
        VR1, VG1 = 4, 5
        a.e(f'v_mul_u32_u24 v4, {PROW}, v1')
        a.e(f's_lshl_b32 s66, s{S_W}, 6')
        a.e(f's_add_u32 s66, s66, {L_PART}')
        a.e('v_add_u32 v4, s66, v4')
        g_store_addr(a, 5)
    C1 = 0.044715
    C2 = -2.0 * 0.7978845608028654 * 1.4426950408889634
    a.e(f'v_mov_b32 v100, {fx(C1*C2)}')
    a.e(f'v_mov_b32 v101, {fx(C1*C2)}')
    a.e(f'v_mov_b32 v102, {fx(C2)}')
    a.e(f'v_mov_b32 v103, {fx(C2)}')
    a.e('s_waitcnt lgkmcnt(0)')
    a.e('s_barrier')
    stamp(a, 24)
    for r in range(2):
        P = 16 + 32 * r
        for wv in range(4):
            a.e(f'ds_read_b128 v[{P+8*wv}:{P+8*wv+3}], v{VR1} offset:{wv*PARTW + r*32}')
            a.e(f'ds_read_b128 v[{P+8*wv+4}:{P+8*wv+7}], v{VR1} offset:{wv*PARTW + r*32 + 16}')
    for i in range(8):
        a.e(f's_lshl_b32 s{80+2*i}, s{72+i}, 16')
        a.e(f's_and_b32 s{81+2*i}, s{72+i}, 0xffff0000')
    for r in range(2):
        P = 16 + 32 * r
        T = 80
        a.e(f's_waitcnt lgkmcnt({8 if r == 0 else 0})')
        if r == 1 and d1:
            a.e('s_barrier')
        dd = d0 if r == 0 else d1
        if dd:
            a.inject(dd, max(1, 80 // len(dd)))
        sum_partials(a, P)
        round_pairs(a, P, T, 8)
        for h in range(4):
            a.e(f'v_pk_add_f32 v[{P+2*h}:{P+2*h+1}], v[{P+2*h}:{P+2*h+1}], s[{80+8*r+2*h}:{81+8*r+2*h}]')
        round_pairs(a, P, T, 8)
        for h in range(4):
            a.e(f'v_pk_mul_f32 v[{P+8+2*h}:{P+9+2*h}], v[{P+2*h}:{P+2*h+1}], v[{P+2*h}:{P+2*h+1}]')
        for h in range(4):
            a.e(f'v_pk_fma_f32 v[{P+8+2*h}:{P+9+2*h}], v[{P+8+2*h}:{P+9+2*h}], v[100:101], v[102:103]')
        for h in range(4):
            a.e(f'v_pk_mul_f32 v[{P+8+2*h}:{P+9+2*h}], v[{P+8+2*h}:{P+9+2*h}], v[{P+2*h}:{P+2*h+1}]')
        for i in range(8):
            a.e(f'v_exp_f32 v{P+8+i}, v{P+8+i}')
        for h in range(4):
            a.e(f'v_pk_add_f32 v[{P+8+2*h}:{P+9+2*h}], v[{P+8+2*h}:{P+9+2*h}], 1.0 op_sel_hi:[1,0]')
        for i in range(8):
            a.e(f'v_rcp_f32 v{P+8+i}, v{P+8+i}')
        for h in range(4):
            a.e(f'v_pk_mul_f32 v[{P+2*h}:{P+2*h+1}], v[{P+2*h}:{P+2*h+1}], v[{P+8+2*h}:{P+9+2*h}]')
        O = 88 + 4 * r
        for h in range(4):
            a.e(f'v_cvt_pk_bf16_f32 v{O+h}, v{P+2*h}, v{P+2*h+1}')
        a.inj_flush()
        if r == 1:
            a.e(f'v_add_u32 v{VG1}, 7168, v{VG1}')
        a.e(f'buffer_store_dwordx4 v[{O}:{O+3}], v{VG1}, {WSR}, 0 offen sc1')


V_OUT, V_HAD, V_B2 = 210, 211, 212
V_HR = 196


def gemm2_addr(a):
    srd(a, S_T2, P_OUT, XBYTES)
    srd(a, S_T3, P_B2, L * 2)
    a.e('v_lshrrev_b32 v4, 3, v1')
    a.e('v_and_b32 v5, 7, v1')
    a.e(f's_lshl_b32 s66, s{S_W}, 4')
    a.e('v_add_u32 v4, s66, v4')
    a.e(f's_lshl_b32 s67, s{S_I2}, 6')
    a.e('v_add_u32 v7, s67, v4')
    a.e(f'v_mul_u32_u24 v{V_OUT}, 896, v7')
    a.e(f'v_lshl_add_u32 v{V_OUT}, v5, 4, v{V_OUT}')
    a.e(f's_mul_i32 s70, s{S_J}, 112')
    a.e(f'v_add_u32 v{V_OUT}, s70, v{V_OUT}')
    a.e(f'v_mov_b32 v6, {OOB}')
    a.e('v_cmp_gt_u32 vcc, 7, v5')
    a.e(f'v_cndmask_b32 v{V_OUT}, v6, v{V_OUT}, vcc')
    a.e(f'v_add_u32 v{V_HAD}, {WS_H}, v{V_OUT}')
    a.e(f'v_lshlrev_b32 v{V_B2}, 1, v7')


def gemm2_tail_loads(fill):
    fill.append(f'buffer_load_dwordx4 v[{V_HR}:{V_HR+3}], v{V_HAD}, {WSR}, 0 offen sc1')
    fill.append(f's_mov_b32 s70, {8*896}')
    fill.append(f'buffer_load_dwordx4 v[{V_HR+4}:{V_HR+7}], v{V_HAD}, {WSR}, s70 offen sc1')
    fill.append(f'buffer_load_ushort v{V_HR+8}, v{V_B2}, s[{S_T3}:{S_T3+3}], 0 offen')
    fill.append(f'buffer_load_ushort v{V_HR+9}, v{V_B2}, s[{S_T3}:{S_T3+3}], 0 offen offset:16')
    return 4


def gemm2_epilogue(a):
    write_partials(a)
    if OPT['hoist']:
        VR2 = 243
    else:
        VR2 = 6
        a.e('v_lshrrev_b32 v4, 3, v1')
        a.e('v_and_b32 v5, 7, v1')
        a.e(f's_lshl_b32 s66, s{S_W}, 4')
        a.e('v_add_u32 v4, s66, v4')
        a.e(f'v_mul_u32_u24 v6, {PROW}, v4')
        a.e('v_lshl_add_u32 v6, v5, 4, v6')
        a.e(f'v_add_u32 v6, {L_PART}, v6')
    a.e('s_waitcnt lgkmcnt(0)')
    a.e('s_barrier')
    stamp(a, 33)
    for r in range(2):
        P = 16 + 32 * r
        for wv in range(4):
            a.e(f'ds_read_b128 v[{P+8*wv}:{P+8*wv+3}], v{VR2} offset:{wv*PARTW + r*8*PROW}')
            a.e(f'ds_read_b128 v[{P+8*wv+4}:{P+8*wv+7}], v{VR2} offset:{wv*PARTW + r*8*PROW + 112}')
    a.e('s_waitcnt vmcnt(0)')
    for r in range(2):
        P = 16 + 32 * r
        T = 80
        H = V_HR + 4 * r
        a.e(f'v_lshlrev_b32 v106, 16, v{V_HR+8+r}')
        for i in range(4):
            a.e(f'v_lshlrev_b32 v{96+i}, 16, v{H+i}')
            a.e(f'v_and_b32 v{100+i}, 0xffff0000, v{H+i}')
        a.e(f's_waitcnt lgkmcnt({8 if r == 0 else 0})')
        sum_partials(a, P)
        round_pairs(a, P, T, 8)
        for h in range(4):
            a.e(f'v_pk_add_f32 v[{P+2*h}:{P+2*h+1}], v[{P+2*h}:{P+2*h+1}], v[106:107] op_sel:[0,0] op_sel_hi:[1,0]')
        round_pairs(a, P, T, 8)
        for h in range(4):
            a.e(f'v_pk_add_f32 v[{P+2*h}:{P+2*h+1}], v[{P+2*h}:{P+2*h+1}], v[{96+2*h}:{97+2*h}]')
        O = 88 + 4 * r
        for i in range(4):
            a.e(f'v_cvt_pk_bf16_f32 v{O+i}, v{P+i}, v{P+4+i}')
        if r == 1:
            a.e(f'v_add_u32 v{V_OUT}, {8*896}, v{V_OUT}')
        a.e(f'buffer_store_dwordx4 v[{O}:{O+3}], v{V_OUT}, s[{S_T2}:{S_T2+3}], 0 offen' + ['', ' sc1', ' nt', ' sc0 sc1', ' sc1 nt'][OPT['outsc']])


HEADER = """;
"""


def build():
    a = Prog()
    name = NAME + '_kernel'
    lend = a.lab('end')
    a.raw(f'.globl {name}')
    a.raw('.p2align 8')
    a.raw(f'.type {name},@function')
    a.raw(f'{name}:')
    prologue(a, lend)
    lnc1, lnc2, lnc3, lnc5, lnc6 = [a.lab('noconv') for _ in range(5)]

    def skip_if_helper(l):
        a.e(f's_cmp_ge_u32 s{S_LOC}, 28')
        a.e(f's_cbranch_scc1 {l}')

    load_xrows(a)
    ncp = 0
    if OPT['cpf'] & 2:
        code_prefetch1(a, name, 'kcode_end')
        ncp = 1
    a.e(f's_add_u32 s66, s{P_WS}, {WS_EPOCH}')
    a.e(f's_addc_u32 s67, s{P_WS+1}, 0')
    a.e('s_load_dword s99, s[66:67], 0')
    poison_regs(a)
    skip_if_helper(lnc1)
    nt = 0
    if not OPT['plate']:
        kgen_loads(a)
        load_gather_table(a, 'ktab_idx')
        w_setup(a)
        if OPT['tlb'] & 2:
            nt = tlb_touch(a)
        flag_addr(a)
        if OPT['hoist']:
            hoist_common(a)
            hoist_conv(a)
        a.e('s_waitcnt lgkmcnt(0)')
        a.e(f's_add_u32 s{S_TAG}, s99, 0x9e3779b9')
        a.e(f's_waitcnt vmcnt({10 + nt + ncp})')
        stamp(a, 2)
        clear_hh(a)
        clear_aout(a)
    else:
        kgen_loads(a, 'setup')
        w_setup(a)
        flag_addr(a)
        a.e(f's_waitcnt vmcnt({ncp})')
        stamp(a, 2)
        kgen_loads(a, 'issue')
        clear_hh(a)
        clear_aout(a)
        load_gather_table(a, 'ktab_idx')
        if OPT['tlb'] & 2:
            nt = tlb_touch(a)
        a.e('s_waitcnt lgkmcnt(0)')
        a.e(f's_add_u32 s{S_TAG}, s99, 0x9e3779b9')
    ln_stats(a, list(range(8, 16)), 16, L_RED0, 5)
    stamp(a, 3)
    publish_xn(a)
    nb0 = OPT['wb0']
    if OPT['sched'] == 2:
        qa, qb = OPT['qa'], OPT['qb']
        qpf_load(a, qa)
        stamp(a, 4)
        a.e(f's_waitcnt vmcnt({8 + nt + qa})')
        kgen_channel(a, 0, DK0)
        for k in range(nb0):
            w_dma(a, 1, k, BS[k])
        stamp(a, 40)
        kgen_channel(a, 1, DK1, mid=lambda: publish_flag(a, qa + 4 * nb0), mid_m0=False)
        stamp(a, 5)
        qpf_load(a, qb)
        a.e(f's_waitcnt vmcnt({qb})')
        for k in range(nb0):
            w_tr(a, k, BS[k])
        ktab_part1(a)
        stamp(a, 6)
        flag_load(a)
        ktab_part2(a)
        stamp(a, 7)
        a.e(f's_mov_b32 s{S_EARLY}, 0')
        lne = a.lab('notearly')
        a.e('s_waitcnt vmcnt(0)')
        a.e(f'v_cmp_ne_u32 vcc, s{S_TAG}, v{V_FV}')
        a.e(f's_cbranch_vccnz {lne}')
        load_u(a)
        a.e(f's_mov_b32 s{S_EARLY}, 1')
        a.e(f'{lne}:')
        conv_addr(a)
        kcopies(a)
        stamp(a, 8)
        lhave = a.lab('haveu')
        a.e(f's_cmp_lg_u32 s{S_EARLY}, 0')
        a.e(f's_cbranch_scc1 {lhave}')
        flag_poll(a)
        load_u(a)
        a.e(f'{lhave}:')
        stamp(a, 9)
        store_u(a, 0)
    elif OPT['sched'] == 3:
        nq = (448 - OPT['hR']) // 32
        ne = 0
        if OPT['cearly']:
            assert OPT['regc']
            for k in range(2):
                w_dma(a, 1, k, f'C{k}')
            q4 = min(OPT['q4'], nq)
            qpf_load(a, q4)
            ne = 8 + q4
            nq -= q4
        stamp(a, 4)
        a.e(f's_waitcnt vmcnt({8 + nt + ne})')
        m0 = kgen_channel(a, 0, DK0, defer=bool(OPT['kdefer']))
        if not OPT['flagmid']:
            publish_flag(a, ne)
        if OPT['regc']:
            nb0 = 2
            if not OPT['cearly'] and not OPT['clate']:
                for k in range(2):
                    w_dma(a, 1, k, f'C{k}')
        else:
            for k in range(nb0):
                w_dma(a, 1, k, BS[k])
        if OPT['cearly']:
            qpf_load(a, nq)
            nq = 0
        stamp(a, 40)
        if OPT['flagmid']:
            assert OPT['regc'] and not OPT['cearly']
            kgen_channel(a, 1, DK1, mid=lambda: publish_flag(a, 8), mid_m0=False)
        else:
            kgen_channel(a, 1, DK1, after_setup=m0)
        stamp(a, 5)
        flag_load(a)
        nq_late = 0
        if OPT['clate']:
            nq_late, nq = nq, 0
        qpf_load(a, nq)
        if not OPT['regc']:
            a.e(f's_waitcnt vmcnt({nq + 1})')
            for k in range(nb0):
                w_tr(a, k, BS[k])
        ktab_part1(a)
        stamp(a, 6)
        a.e(f's_mov_b32 s{S_EARLY}, 0')
        lne = a.lab('notearly')
        a.e(f's_waitcnt vmcnt({nq})')
        a.e(f'v_cmp_ne_u32 vcc, s{S_TAG}, v{V_FV}')

        def early_u():
            a.e(f's_cbranch_vccnz {lne}')
            load_u(a)
            a.e(f's_mov_b32 s{S_EARLY}, 1')
            a.e(f'{lne}:')
        if OPT['uov']:
            assert OPT['hoist']
            ktab_part2(a, mid=early_u)
        else:
            early_u()
            ktab_part2(a)
        stamp(a, 7)
        if not OPT['hoist']:
            conv_addr(a)
        kcopies(a)
        stamp(a, 8)
        lhave = a.lab('haveu')
        a.e(f's_cmp_lg_u32 s{S_EARLY}, 0')
        a.e(f's_cbranch_scc1 {lhave}')
        flag_poll(a)
        load_u(a)
        a.e(f'{lhave}:')
        stamp(a, 9)
        nlate = 0
        if OPT['clate']:
            for k in range(2):
                w_dma(a, 1, k, f'C{k}')
            qpf_load(a, nq_late)
            nlate = 8 + nq_late
        store_u(a, nlate)
    else:
        stamp(a, 4)
        a.e(f's_waitcnt vmcnt({8 + nt})')
        kgen_channel(a, 0, DK0)
        publish_flag(a)
        for k in range(min(nb0, 3)):
            w_dma(a, 1, k, BS[k])
        stamp(a, 40)
        kgen_channel(a, 1, DK1, mid=(lambda: [w_dma(a, 1, k, BS[k]) for k in range(3, nb0)]) if nb0 > 3 else None)
        stamp(a, 5)
        if OPT['early']:
            flag_load(a)
            a.e('s_waitcnt vmcnt(1)')
        else:
            a.e('s_waitcnt vmcnt(0)')
        for k in range(nb0):
            w_tr(a, k, BS[k])
        ktab_part1(a)
        stamp(a, 6)
        a.e(f's_mov_b32 s{S_EARLY}, 0')
        lne = a.lab('notearly')
        if OPT['early']:
            a.e('s_waitcnt vmcnt(0)')
            a.e(f'v_cmp_ne_u32 vcc, s{S_TAG}, v{V_FV}')
            a.e(f's_cbranch_vccnz {lne}')
            load_u(a)
            a.e(f's_mov_b32 s{S_EARLY}, 1')
            a.e(f'{lne}:')
        qpf_load(a, OPT['w2pf_a'])
        ktab_part2(a)
        stamp(a, 7)
        if not OPT['hoist']:
            conv_addr(a)
        kcopies(a)
        stamp(a, 8)
        lhave = a.lab('haveu')
        a.e(f's_cmp_lg_u32 s{S_EARLY}, 0')
        a.e(f's_cbranch_scc1 {lhave}')
        flag_poll(a)
        load_u(a)
        a.e('s_waitcnt vmcnt(0)')
        a.e(f'{lhave}:')
        stamp(a, 9)
        store_u(a, OPT['w2pf_a'])
    epoch_update(a)
    clear_g(a)
    if OPT['sched'] == 1:
        qpf_load(a, OPT['w2pf_b'])
    stamp(a, 10)
    hk = []
    cre = OPT['cre'] and OPT['regc']
    if cre:
        for k in range(2):
            w_tr(a, k, f'C{k}')
        for k, sl in enumerate(AS + ['C0', 'C1']):
            for i in range(4):
                hk.append(lambda k=k, sl=sl, i=i: w_dma1(a, 1, 2 + k, sl, i))
                if i % 2 == 1:
                    hk.append(lambda: None)
    else:
        for k in range(4):
            for i in range(4):
                hk.append(lambda k=k, i=i: w_dma1(a, 1, nb0 + k, AS[k], i))
                hk.append(lambda: None)
    if OPT['nohk']:
        hk = []
    elif OPT['hkpos'] == 1:
        hk = [h for i, h in enumerate(hk) if i % 2 == 0]
    elif OPT['hkpos'] == 2:
        hk = [lambda: None] * 18 + [h for i, h in enumerate(hk) if i % 2 == 0]
    ndma = 0 if OPT['nohk'] else (24 if cre else 16)
    if OPT['cvvm']:
        phase_conv(a, hk, ndma)
        stamp(a, 12)
        a.e('s_waitcnt vmcnt(2)')
    else:
        phase_conv(a, hk, 0)
        stamp(a, 12)
    if cre:
        for k, sl in enumerate(AS + ['C0', 'C1']):
            w_tr(a, 2 + k, sl)
        nb0 = 4
    else:
        if OPT['regc']:
            for k in range(2):
                w_tr(a, k, f'C{k}')
        for k in range(4):
            w_tr(a, nb0 + k, AS[k])
    a.e('s_waitcnt lgkmcnt(0)')
    a.e('s_barrier')
    rest = list(range(nb0 + 4, 16))
    last = None
    if len(rest) > 9:
        last = rest.pop()
    rest_slots = (BS + AS)[:len(rest)]
    p4d = []
    if OPT['p4dma']:
        assert OPT['hpriv']
        p4d = [lambda k=k, sl=sl, i=i: w_dma1(a, 1, k, sl, i) for k, sl in zip(rest, rest_slots) for i in range(4)]
    elif OPT['h2e']:
        lh2p, lh2d = a.lab('h2poll0'), a.lab('h2done')
        p4_pre(a)
        n1 = OPT['h2n']
        for k, sl in list(zip(rest, rest_slots))[:n1]:
            w_dma(a, 1, k, sl)
        p4_loads(a)
        for k, sl in list(zip(rest, rest_slots))[n1:]:
            w_dma(a, 1, k, sl)
        a.e(f's_waitcnt vmcnt({4 * (len(rest) - n1)})')
        p4_check(a)
        stamp(a, 13)
        a.e(f's_cbranch_vccz {lh2d}')
        a.e(f's_branch {lh2p}')
    else:
        for k, sl in zip(rest, rest_slots):
            w_dma(a, 1, k, sl)
    if not (OPT['h2e'] and not OPT['p4dma']):
        stamp(a, 13)
        a.e(f's_branch {lnc2}')
    a.e(f'{lnc1}:')
    nh = 0
    if OPT['cpf'] & 1:
        code_prefetch(a, name, 'kcode_end')
        nh += 3
    w_setup(a)
    if OPT['tlb'] & 1:
        nh += tlb_touch(a)
    flag_addr(a)
    if OPT['hoist']:
        hoist_common(a)
    a.e('s_waitcnt lgkmcnt(0)')
    a.e(f's_add_u32 s{S_TAG}, s99, 0x9e3779b9')
    a.e(f's_waitcnt vmcnt({nh + ncp})')
    clear_hh(a)
    ln_stats(a, list(range(8, 16)), 16, L_RED0, 5)
    publish_xn(a)
    publish_flag(a)
    if OPT['sched'] == 3 and OPT['hsplit']:
        qpf_load(a, (448 - OPT['hR']) // 32)

        def hcheck():
            lok = a.lab('hflags')
            a.e(f'v_cmp_ne_u32 vcc, s{S_TAG}, v{V_FV}')
            a.e(f's_cbranch_vccz {lok}')
            flag_poll(a)
            a.e(f'{lok}:')
            a.e('s_barrier')
        helper_w2(a, OPT['hR'], mid=(OPT['hn1'], lambda: flag_load(a), hcheck))
        stamp(a, 41)
    else:
        if OPT['sched'] == 3:
            qpf_load(a, (448 - OPT['hR']) // 32)
            helper_w2(a, OPT['hR'])
        else:
            qpf_load(a, 14)
        stamp(a, 41)
        flag_poll(a)
        a.e('s_barrier')
    if p4d:
        a.e(f's_mov_b32 s{S_W1+2}, 0')
    stamp(a, 42)
    if OPT['h2e'] and not OPT['p4dma']:
        p4_pre(a)
        phase_p4(a, p4d, pre_done=(lh2p, lh2d))
    else:
        a.e(f'{lnc2}:')
        phase_p4(a, p4d)
    stamp(a, 20)
    gemm2_addr(a)
    skip_if_helper(lnc3)
    b1_load(a)
    if p4d:
        a.e('s_waitcnt vmcnt(2)')
    for k, sl in zip(rest, rest_slots):
        w_tr(a, k, sl)
    a.e('s_waitcnt lgkmcnt(0)')
    if last is not None:
        w_dma(a, 1, last, 'A0')
    for k in range(5):
        w_dma(a, 2, k, BS[k])
    nx1 = gemm_first_loads(a, WS_HH, 64, 1) if OPT['xe1'] else 0
    if last is not None:
        a.e(f's_waitcnt vmcnt({20 + nx1})')
        w_tr(a, last, 'A0')
        a.e('s_waitcnt lgkmcnt(0)')
    if OPT['prebar']:
        a.e('s_barrier')
    stamp(a, 21)
    w2sh = OPT['w2sh'] and OPT['stchk'] and OPT['h4early']

    def side1(kn):
        if OPT['gap'] and kn == 16:
            return [], 0
        if 6 <= kn <= 10:
            return capture(lambda p: w_tr(p, kn - 6, BS[kn - 6])), 0
        if 13 <= kn <= 15:
            pre = ['s_waitcnt lgkmcnt(0)'] if kn == 13 else []
            return pre + capture(lambda p: w_dma(p, 2, kn - 8, BS[kn - 13])), 4
        return [], 0

    gemm_poll_main(a, WS_HH, 64, 16, 1, 22, side=side1 if w2sh else None, issued=bool(OPT['xe1']))
    stamp(a, 23)
    if OPT['h4early']:
        if not w2sh:
            for k in range(5):
                w_tr(a, k, BS[k])
            a.e('s_waitcnt lgkmcnt(0)')
            for k in range(5, 5 + OPT['npre']):
                w_dma(a, 2, k, BS[k - 5])
        if OPT['e1dma']:
            d0 = [lambda k=k, i=i: w_dma1(a, 2, k, BS[k - 5], i) for k in range(8, 10) for i in range(4)]
            d1 = [lambda k=k, i=i: w_dma1(a, 2, k, AS[k - 10], i) for k in range(10, 14) for i in range(4)]
            gemm1_epilogue(a, d0, d1)
            stamp(a, 25)
            w1, w2, w3 = 26, 18, 1
        else:
            gemm1_epilogue(a)
            stamp(a, 25)
            npre = 3 if w2sh else OPT['npre']
            for k in range(5 + npre, 10):
                w_dma(a, 2, k, BS[k - 5])
            a.e('s_barrier')
            for k in range(10, 14):
                w_dma(a, 2, k, AS[k - 10])
            w1, w2, w3 = 24 + (0 if npre < 3 else 0), 16, 0
            w1 = 26 if npre == 3 else 24
        if OPT['xe2']:
            nx2 = gemm_first_loads(a, WS_G, 56, 2)
            w1, w2, w3 = w1 + nx2, w2 + nx2, w3 + nx2
        a.e(f's_waitcnt vmcnt({w1})')
        for k in range(5, 8):
            w_tr(a, k, BS[k - 5])
        a.e(f's_waitcnt vmcnt({w2})')
        for k in range(8, 10):
            w_tr(a, k, BS[k - 5])
        a.e(f's_waitcnt vmcnt({w3})')
        for k in range(10, 14):
            w_tr(a, k, AS[k - 10])
        a.e('s_waitcnt lgkmcnt(0)')
        a.e(f's_branch {lnc6}')
    else:
        gemm1_epilogue(a)
        stamp(a, 25)
        for k in range(5):
            w_tr(a, k, BS[k])
        a.e('s_waitcnt lgkmcnt(0)')
        a.e('s_barrier')
        a.e(f's_branch {lnc5}')
    a.e(f'{lnc3}:')
    for k in range(5):
        w_dma(a, 2, k, BS[k])
    a.e('s_waitcnt vmcnt(0)')
    for k in range(5):
        w_tr(a, k, BS[k])
    a.e('s_waitcnt lgkmcnt(0)')
    a.e(f'{lnc5}:')
    for k in range(5, 10):
        w_dma(a, 2, k, BS[k - 5])
    for k in range(10, 14):
        w_dma(a, 2, k, AS[k - 10])
    nx2 = gemm_first_loads(a, WS_G, 56, 2) if OPT['xe2'] else 0
    a.e(f's_waitcnt vmcnt({16 + nx2})')
    for k in range(5, 10):
        w_tr(a, k, BS[k - 5])
    a.e(f's_waitcnt vmcnt({nx2})')
    for k in range(10, 14):
        w_tr(a, k, AS[k - 10])
    a.e('s_waitcnt lgkmcnt(0)')
    a.e(f'{lnc6}:')
    if OPT['prebar']:
        a.e('s_barrier')
    stamp(a, 30)
    gemm_poll_main(a, WS_G, 56, 14, 2, 31, gemm2_tail_loads, issued=bool(OPT['xe2']))
    stamp(a, 32)
    gemm2_epilogue(a)
    stamp_clk(a, 61)
    stamp(a, 63)
    stamp_flush(a)
    a.e(f'{lend}:')
    a.e('s_endpgm')
    for emit in STUBS:
        emit()
    del STUBS[:]
    a.raw('kcode_end:')
    emit_gather_table(a, 'ktab_idx')
    nn = a.fast_insert_nops()
    head = f'; @launch grid=(256,1,1) block=(256,1,1) lds={LDS_BYTES}\n'
    head += HEADER
    head += '.amdgcn_target "amdgcn-amd-amdhsa--gfx950"\n.text\n'
    tail = '.section .rodata,"a"\n.p2align 6\n' + descriptor(name)
    if OPT['align']:
        nal = a.align8(head, tail)
        sys.stderr.write(f'alignment: {nal}\n')
    sys.stderr.write(f'instructions: {a.count()}, nops inserted: {nn}\n')
    return head + a.text() + tail


if __name__ == '__main__':
    out = sys.argv[1]
    for arg in sys.argv[2:]:
        if arg == 'stamps':
            OPT['stamps'] = True
        elif arg == 'dbg':
            OPT['stamps'] = True
            OPT['dbgsel'] = [0, 1, 2, 4, 8, 9, 12, 13, 14, 20, 21, 23, 25, 30, 32, 63]
        elif '=' in arg:
            k, v = arg.split('=')
            OPT[k] = int(v)
    open(out, 'w').write(build())
```

```python
import sys
import gen
from gen import (Prog, NAME, L, D, F, XBYTES, PBYTES, W1BYTES, W2BYTES, OOB, fx, srd, reduce16, cmul, exp_bf16,
                 gather_table, emit_gather_table, descriptor, round_pairs, norm_tok, bcast_stats)

OPT = dict(g2in=0, clate=0, gap=0, hf=0, nohw=0, h2e=0, h2n=5, xe1=1, xe2=1, cvvm=1, cvbar=1, prebar=1, lastw=1, slp=0, hn1=11, hsplit=0, hoist=0, cre=0, uov=0, tlbout=0, kdefer=1, flagmid=0, npre=3, nohk=0, hkpos=0, w2sh=1, stchk=1, p4dma=0, p4ev=6, e1dma=0, plate=0, cearly=0, q4=4, hpriv=1, regc=1, hR=320, c4=1, kgrp=3, tlbg=21, cpf=1, sched=3, qa=7, qb=7, tlb=1, outsc=0, x3oob=1, h4early=1, wb0=3, xnb=1, stamps=False, dbgsel=None, w2pf_a=10, w2pf_b=4, nfl=3, early=True, align=True, hlds=True)

WS_FLAG = 0x4000
WS_EPOCH = 0x9000
WS_AOUT = 0x10000
AST = 8448
WS_H = 0x200000
WS_HH = 0x400000
WS_G = 0x600000
WS_DBG = 0x800000
WS_XN = 0xA00000
XCS = 4352
XPS = 2 * XCS
WS_USED = 0x1000000

L_RED0, L_RED1, L_SIG, L_KT = 0, 256, 512, 640
KTCH = 1600
L_U = L_KT + 2 * KTCH
UCH = 4608
L_SCR = L_U + 2 * UCH
SROW = 272
YROW = 41
SCRW = 57 * SROW
L_KC = 82688
KCOPY = 4160
KCH = 8 * KCOPY
L_CP = L_KC
LDS_BYTES = 160 * 1024
L_WA, L_WB = 13056, 78592
L_WC = 123904
L_PART = 1024
PROW = 272
PARTW = 64 * PROW
L_HT = 1024

S_WS, S_X = 4, 8
S_T0, S_T1, S_T2, S_T3 = 12, 16, 20, 24
S_W1, S_W2 = 12, 16
S_W, S_XCD, S_LOC, S_B, S_P, S_J, S_I1, S_I2 = 28, 29, 30, 31, 32, 33, 34, 35
P_X, P_LAR, P_AI, P_CR, P_CI, P_LDT, P_DSK = 36, 38, 40, 42, 44, 46, 48
P_W1, P_B1, P_W2, P_B2, P_OUT, P_DBG, P_WS = 52, 54, 56, 58, 60, 62, 64
S_SA, S_SB = 50, 51
S_RW1, S_RX1, S_RW2, S_RX2 = 38, 39, 40, 41
S_QPF = 42
S_EARLY = 43
S_SC = 44
V_TC = 236
S_TAG, S_SPIN, S_RETRY = 96, 97, 98
V_D1, V_D2, V_TA, V_TB = 224, 228, 244, 248
V_QPF = 232
SPIN_MAX, RETRY_MAX = 4000, 20
AS = ['A0', 'A1', 'A2', 'A3']
BS = ['B0', 'B1', 'B2', 'B3', 'B4']
WSR = f's[{S_WS}:{S_WS+3}]'

assert (gen.S_W, gen.S_B, gen.S_WS) == (S_W, S_B, S_WS)


def stamp(a, idx):
    if not OPT['stamps']:
        return
    sel = OPT['dbgsel']
    if sel is not None:
        if idx not in sel:
            return
        idx = sel.index(idx)
    a.e('s_memrealtime s[100:101]')
    a.e('s_waitcnt lgkmcnt(0)')
    a.e(f'v_writelane_b32 v255, s100, {idx}')


def stamp_clk(a, idx):
    if not OPT['stamps'] or OPT['dbgsel'] is not None:
        return
    a.e('s_memtime s[100:101]')
    a.e('s_waitcnt lgkmcnt(0)')
    a.e(f'v_writelane_b32 v255, s100, {idx}')


def stamp_flush(a):
    if not OPT['stamps']:
        return
    l = a.lab('nost')
    a.e(f's_cmp_lg_u32 s{S_W}, 0')
    a.e(f's_cbranch_scc1 {l}')
    if OPT['dbgsel'] is not None:
        a.e('v_not_b32 v253, v255')
        a.e('v_cmp_eq_u32 vcc, 0, v1')
        a.e('v_cndmask_b32 v255, v255, v253, vcc')
        a.e('v_lshlrev_b32 v254, 2, v1')
        a.e('s_mov_b64 exec, 0xffff')
        a.e(f'global_atomic_umax v254, v255, s[{P_DBG}:{P_DBG+1}]')
        a.e('s_mov_b64 exec, -1')
    else:
        a.e('s_lshl_b32 s66, s2, 8')
        a.e(f's_add_u32 s66, s66, {WS_DBG}')
        a.e('v_lshl_add_u32 v254, v1, 2, s66')
        a.e(f'buffer_store_dword v255, v254, {WSR}, 0 offen')
    a.e(f'{l}:')


def spin_tail(a, lp):
    if OPT['slp']:
        a.e(f's_sleep {OPT["slp"]}')
    a.e(f's_add_u32 s{S_SPIN}, s{S_SPIN}, 1')
    a.e(f's_cmp_lt_u32 s{S_SPIN}, {SPIN_MAX}')
    a.e(f's_cbranch_scc1 {lp}')


def mask_lanes(a, v, n, tmp, src='v1'):
    a.e(f'v_mov_b32 v{tmp}, {OOB}')
    a.e(f'v_cmp_gt_u32 vcc, {n}, {src}')
    a.e(f'v_cndmask_b32 v{v}, v{tmp}, v{v}, vcc')


def prologue(a, lend):
    a.e('s_cmp_ge_u32 s2, 256')
    a.e(f's_cbranch_scc1 {lend}')
    if OPT['stamps']:
        a.e('v_mov_b32 v255, 0')
        stamp(a, 0)
        stamp_clk(a, 60)
    a.e('s_load_dwordx16 s[36:51], s[0:1], 0')
    a.e('s_load_dwordx8 s[52:59], s[0:1], 64')
    a.e('s_load_dwordx4 s[60:63], s[0:1], 96')
    a.e('s_load_dwordx2 s[64:65], s[0:1], 112')
    a.e('v_and_b32 v1, 63, v0')
    a.e('v_lshrrev_b32 v2, 6, v0')
    a.e(f's_and_b32 s{S_XCD}, s2, 7')
    a.e(f'v_readfirstlane_b32 s{S_W}, v2')
    a.e(f's_lshr_b32 s{S_LOC}, s2, 3')
    a.e(f's_lshl_b32 s{S_B}, s{S_XCD}, 5')
    a.e(f's_add_u32 s{S_B}, s{S_B}, s{S_LOC}')
    a.e(f's_mul_i32 s{S_P}, s{S_XCD}, 28')
    a.e(f's_add_u32 s{S_P}, s{S_P}, s{S_LOC}')
    a.e(f's_and_b32 s{S_J}, s{S_XCD}, 1')
    a.e(f's_lshl_b32 s{S_J}, s{S_J}, 2')
    a.e(f's_and_b32 s3, s{S_LOC}, 3')
    a.e(f's_add_u32 s{S_J}, s{S_J}, s3')
    a.e(f's_lshr_b32 s3, s{S_XCD}, 1')
    a.e(f's_lshr_b32 s66, s{S_LOC}, 2')
    a.e(f's_mul_i32 s{S_I1}, s3, 7')
    a.e(f's_add_u32 s{S_I1}, s{S_I1}, s66')
    a.e(f's_lshl_b32 s{S_I2}, s3, 3')
    a.e(f's_add_u32 s{S_I2}, s{S_I2}, s66')
    a.e('s_waitcnt lgkmcnt(0)')
    srd(a, S_X, P_X, XBYTES)
    srd(a, S_WS, P_WS, WS_USED)
    stamp(a, 1)


def xrow_addr(a):
    a.e(f's_mul_i32 s66, s{S_W}, 224')
    a.e(f's_mul_i32 s67, s{S_B}, {8*896}')
    a.e('s_add_u32 s66, s66, s67')
    a.e('v_lshl_add_u32 v2, v1, 2, s66')
    mask_lanes(a, 2, 56, 3)
    a.e('v_add_u32 v3, 4480, v2')


def load_xrows(a):
    xrow_addr(a)
    for j in range(8):
        v, o = (2, j * 896) if j < 5 else (3, (j - 5) * 896)
        a.e(f'buffer_load_dword v{8+j}, v{v}, s[{S_X}:{S_X+3}], 0 offen offset:{o}')


def ln_stats(a, X, T, red, vt, mid=None):
    a.e('s_mov_b32 s66, 0x3f803f80')
    for j in range(8):
        a.e(f'v_dot2_f32_bf16 v{T+j}, v{X[j]}, s66, 0')
        a.e(f'v_dot2_f32_bf16 v{T+8+j}, v{X[j]}, v{X[j]}, 0')
    a.e(f'v_lshlrev_b32 v{vt}, 2, v1')
    a.e(f'v_and_b32 v{vt}, 0xf0, v{vt}')
    a.e(f's_lshl_b32 s66, s{S_W}, 2')
    a.e(f'v_add_u32 v{vt}, s66, v{vt}')
    reduce16(a, [T + i for i in range(16)])
    a.inj_pause()
    a.e('s_mov_b32 exec_lo, 0x11111111')
    a.e('s_mov_b32 exec_hi, 0x11111111')
    a.e(f'ds_write_b32 v{vt}, v{T} offset:{red}')
    a.e('s_mov_b64 exec, -1')
    a.inj_resume()
    a.e(f'v_and_b32 v{vt}, 7, v1')
    a.e(f'v_lshlrev_b32 v{vt}, 4, v{vt}')
    a.e('s_waitcnt lgkmcnt(0)')
    a.e('s_barrier')
    a.e(f'ds_read_b128 v[{T}:{T+3}], v{vt} offset:{red}')
    a.e(f'ds_read_b128 v[{T+4}:{T+7}], v{vt} offset:{red+128}')
    n_mid = mid() if mid else 0
    a.e(f's_waitcnt lgkmcnt({1 + n_mid})')
    a.e(f'v_pk_add_f32 v[{T}:{T+1}], v[{T}:{T+1}], v[{T+2}:{T+3}]')
    a.e(f's_waitcnt lgkmcnt({n_mid})')
    a.e(f'v_pk_add_f32 v[{T+4}:{T+5}], v[{T+4}:{T+5}], v[{T+6}:{T+7}]')
    a.e(f'v_add_f32 v{T}, v{T}, v{T+1}')
    a.e(f'v_add_f32 v{T+4}, v{T+4}, v{T+5}')
    a.e(f'v_mul_f32 v{T}, {fx(1.0/448)}, v{T}')
    a.e(f'v_mul_f32 v{T+4}, {fx(1.0/448)}, v{T+4}')
    a.e(f'v_fma_f32 v{T+4}, -v{T}, v{T}, v{T+4}')
    a.e(f'v_max_f32 v{T+4}, 0, v{T+4}')
    a.e(f'v_cvt_pk_bf16_f32 v{T+4}, v{T+4}, v{T+4}')
    a.e(f'v_lshlrev_b32 v{T+4}, 16, v{T+4}')
    a.e(f'v_add_f32 v{T+4}, {fx(1e-5)}, v{T+4}')
    a.e(f'v_cvt_pk_bf16_f32 v{T+4}, v{T+4}, v{T+4}')
    a.e(f'v_lshlrev_b32 v{T+4}, 16, v{T+4}')
    a.e(f'v_sqrt_f32 v{T+4}, v{T+4}')
    a.e(f'v_cvt_pk_bf16_f32 v{T}, v{T}, v{T+4}')


def poison_regs(a):
    for r in range(216, 220):
        a.e(f'v_mov_b32 v{r}, -1')


def clear_hh(a):
    if OPT['hoist']:
        a.e(f'buffer_store_dwordx4 v[216:219], v184, {WSR}, 0 offen sc1')
        a.e(f'buffer_store_dwordx4 v[216:219], v185, {WSR}, 0 offen sc1')
        return
    a.e(f's_mul_i32 s66, s{S_B}, 7168')
    a.e(f's_add_u32 s66, s66, {WS_HH}')
    a.e('v_lshl_add_u32 v4, v0, 4, s66')
    a.e('v_add_u32 v5, 4096, v4')
    mask_lanes(a, 5, 192, 6, 'v0')
    a.e(f'buffer_store_dwordx4 v[216:219], v4, {WSR}, 0 offen sc1')
    a.e(f'buffer_store_dwordx4 v[216:219], v5, {WSR}, 0 offen sc1')


def clear_aout(a):
    if OPT['hoist']:
        a.e(f'buffer_store_dwordx4 v[216:219], v186, {WSR}, 0 offen sc1')
        a.e(f'buffer_store_dwordx4 v[216:219], v187, {WSR}, 0 offen sc1')
        return
    a.e(f's_mul_i32 s66, s{S_P}, {AST}')
    a.e(f's_add_u32 s66, s66, {WS_AOUT}')
    a.e('v_lshl_add_u32 v4, v0, 4, s66')
    a.e('v_add_u32 v5, 4096, v4')
    a.e(f'buffer_store_dwordx4 v[216:219], v4, {WSR}, 0 offen sc1')
    a.e(f'buffer_store_dwordx4 v[216:219], v5, {WSR}, 0 offen sc1')


def g_store_addr(a, vd):
    a.e(f's_lshl_b32 s66, s{S_I1}, 3')
    a.e(f's_lshl_b32 s70, s{S_W}, 1')
    a.e('s_add_u32 s66, s66, s70')
    a.e('s_mul_i32 s66, s66, 7168')
    a.e(f's_mul_i32 s70, s{S_J}, 896')
    a.e('s_add_u32 s66, s66, s70')
    a.e(f's_add_u32 s66, s66, {WS_G}')
    a.e(f'v_lshl_add_u32 v{vd}, v1, 4, s66')
    mask_lanes(a, vd, 56, 6)


def clear_g(a):
    if OPT['hoist']:
        a.e('v_add_u32 v5, 7168, v240')
        a.e(f'buffer_store_dwordx4 v[216:219], v240, {WSR}, 0 offen sc1')
        a.e(f'buffer_store_dwordx4 v[216:219], v5, {WSR}, 0 offen sc1')
        return
    g_store_addr(a, 4)
    a.e('v_add_u32 v5, 7168, v4')
    a.e(f'buffer_store_dwordx4 v[216:219], v4, {WSR}, 0 offen sc1')
    a.e(f'buffer_store_dwordx4 v[216:219], v5, {WSR}, 0 offen sc1')


def publish_xn(a):
    bcast_stats(a, 16)
    for j in range(8):
        d = 64 + 2 * j
        t = 48 + j
        a.e(f'v_lshlrev_b32 v{d}, 16, v{8+j}')
        a.e(f'v_and_b32 v{d+1}, 0xffff0000, v{8+j}')
        a.e(f'v_pk_add_f32 v[{d}:{d+1}], v[{d}:{d+1}], s[{72+2*j}:{73+2*j}] op_sel:[0,0] op_sel_hi:[1,0] neg_lo:[0,1] neg_hi:[0,1]')
        a.e(f'v_cvt_pk_bf16_f32 v{t}, v{d}, v{d+1}')
        a.e(f'v_lshlrev_b32 v{d}, 16, v{t}')
        a.e(f'v_and_b32 v{d+1}, 0xffff0000, v{t}')
        a.e(f'v_pk_mul_f32 v[{d}:{d+1}], v[{d}:{d+1}], s[{72+2*j}:{73+2*j}] op_sel:[0,1] op_sel_hi:[1,1]')
        a.e(f'v_cvt_pk_bf16_f32 v{t}, v{d}, v{d+1}')
        a.e(f'v_lshlrev_b32 v{d}, 16, v{t}')
        a.e(f'v_and_b32 v{d+1}, 0xffff0000, v{t}')
    for i in range(4):
        a.e(f'v_cvt_pk_f16_f32 v{80+i}, v{64+4*i}, v{66+4*i}')
        a.e(f'v_cvt_pk_f16_f32 v{84+i}, v{65+4*i}, v{67+4*i}')
    if OPT['hoist']:
        assert OPT['xnb']
        a.e(f'buffer_store_dwordx4 v[80:83], v188, {WSR}, 0 offen sc1')
        a.e(f'buffer_store_dwordx4 v[84:87], v189, {WSR}, 0 offen sc1')
        return
    if OPT['xnb']:
        a.e(f's_mul_i32 s66, s{S_W}, {56*16}')
        a.e(f's_mul_i32 s67, s{S_B}, 7168')
        a.e('s_add_u32 s66, s66, s67')
        a.e(f's_add_u32 s66, s66, {WS_XN}')
        a.e('v_lshl_add_u32 v4, v1, 4, s66')
        mask_lanes(a, 4, 56, 5)
        a.e('v_add_u32 v5, 3584, v4')
    else:
        a.e(f's_mul_i32 s66, s{S_W}, {56*XPS}')
        a.e(f's_lshl_b32 s67, s{S_B}, 4')
        a.e('s_add_u32 s66, s66, s67')
        a.e(f's_add_u32 s66, s66, {WS_XN}')
        a.e(f'v_mul_u32_u24 v4, {XPS}, v1')
        a.e('v_add_u32 v4, s66, v4')
        mask_lanes(a, 4, 56, 5)
        a.e(f'v_add_u32 v5, {XCS}, v4')
    a.e(f'buffer_store_dwordx4 v[80:83], v4, {WSR}, 0 offen sc1')
    a.e(f'buffer_store_dwordx4 v[84:87], v5, {WSR}, 0 offen sc1')


def publish_flag(a, vm=0):
    a.e(f's_waitcnt vmcnt({vm})')
    a.e('s_barrier')
    l = a.lab('noflag')
    a.e(f's_cmp_lg_u32 s{S_W}, 0')
    a.e(f's_cbranch_scc1 {l}')
    a.e(f's_lshl_b32 s66, s{S_B}, 6')
    a.e(f's_add_u32 s66, s66, {WS_FLAG}')
    a.e('v_mov_b32 v2, s66')
    a.e(f'v_mov_b32 v3, s{S_TAG}')
    a.e('s_mov_b64 exec, 1')
    a.e(f'buffer_store_dword v3, v2, {WSR}, 0 offen sc1')
    a.e('s_mov_b64 exec, -1')
    a.e(f'{l}:')


V_FA, V_FV = 233, 234


def flag_addr(a):
    a.e(f'v_lshlrev_b32 v{V_FA}, 6, v0')
    a.e(f'v_add_u32 v{V_FA}, {WS_FLAG}, v{V_FA}')


def flag_load(a):
    a.e(f'buffer_load_dword v{V_FV}, v{V_FA}, {WSR}, 0 offen sc1')


def flag_poll(a):
    lp, ld = a.lab('fpoll'), a.lab('fdone')
    a.e(f's_mov_b32 s{S_SPIN}, 0')
    a.e(f'{lp}:')
    flag_load(a)
    a.e('s_waitcnt vmcnt(0)')
    a.e(f'v_cmp_ne_u32 vcc, s{S_TAG}, v{V_FV}')
    a.e(f's_cbranch_vccz {ld}')
    spin_tail(a, lp)
    a.e(f'{ld}:')


def load_u(a):
    if OPT['hoist']:
        a.e(f'buffer_load_dwordx4 v[176:179], v190, {WSR}, 0 offen sc1')
        a.e(f'buffer_load_dwordx4 v[180:183], v191, {WSR}, 0 offen sc1')
        return
    if OPT['xnb']:
        a.e(f's_lshl_b32 s66, s{S_P}, 4')
        a.e(f's_add_u32 s66, s66, {WS_XN}')
        a.e('v_mul_u32_u24 v2, 7168, v0')
        a.e('v_add_u32 v2, s66, v2')
        a.e('v_add_u32 v3, 3584, v2')
    else:
        a.e(f's_mul_i32 s66, s{S_P}, {XPS}')
        a.e(f's_add_u32 s66, s66, {WS_XN}')
        a.e('v_lshl_add_u32 v2, v0, 4, s66')
        a.e(f'v_add_u32 v3, {XCS}, v2')
    a.e(f'buffer_load_dwordx4 v[176:179], v2, {WSR}, 0 offen sc1')
    a.e(f'buffer_load_dwordx4 v[180:183], v3, {WSR}, 0 offen sc1')


def epoch_update(a):
    le = a.lab('noep')
    a.e('s_cmp_lg_u32 s2, 0')
    a.e(f's_cbranch_scc1 {le}')
    a.e(f'v_mov_b32 v2, {WS_EPOCH}')
    a.e(f'v_mov_b32 v3, s{S_TAG}')
    a.e('s_mov_b64 exec, 1')
    a.e(f'buffer_store_dword v3, v2, {WSR}, 0 offen sc1')
    a.e('s_mov_b64 exec, -1')
    a.e(f'{le}:')


def code_prefetch(a, lstart, lend_):
    lp = a.lab('pcp')
    a.e('s_getpc_b64 s[74:75]')
    a.e(f'{lp}:')
    a.e(f's_sub_u32 s74, s74, {lp}-{lstart}')
    a.e('s_subb_u32 s75, s75, 0')
    a.e('v_lshlrev_b32 v4, 6, v0')
    a.e(f's_mov_b32 s76, {lend_}-{lstart}-4')
    a.e('v_add_u32 v5, 16384, v4')
    a.e('v_add_u32 v6, 32768, v4')
    a.e('v_min_u32 v4, s76, v4')
    a.e('v_min_u32 v5, s76, v5')
    a.e('v_min_u32 v6, s76, v6')
    a.e('global_load_dword v220, v4, s[74:75]')
    a.e('global_load_dword v220, v5, s[74:75]')
    a.e('global_load_dword v220, v6, s[74:75]')


def code_prefetch1(a, lstart, lend_):
    lp = a.lab('pcp')
    a.e('s_getpc_b64 s[74:75]')
    a.e(f'{lp}:')
    a.e('v_lshlrev_b32 v4, 6, v0')
    a.e(f's_mov_b32 s76, {lend_}-{lp}-4')
    a.e('v_min_u32 v4, s76, v4')
    a.e('global_load_dword v220, v4, s[74:75]')


def tlb_touch(a):
    g = OPT['tlbg']
    n = 0
    srd(a, S_T2, P_OUT, XBYTES)
    srd(a, S_T3, P_B2, L * 2)
    if g == 21:
        a.e('v_lshlrev_b32 v4, 21, v1')
        a.e('s_mov_b32 s70, 0x1f8000')
        for s_ in (S_W1, S_W2, S_WS, S_T2, S_T3) if OPT['tlbout'] else (S_W1, S_W2, S_WS, S_T3):
            a.e(f'buffer_load_dword v220, v4, s[{s_}:{s_+3}], {"s70" if s_ == S_WS else 0} offen')
            n += 1
    else:
        a.e(f'v_lshlrev_b32 v4, {g}, v0')
        for s_, nbytes in ((S_W1, W1BYTES), (S_W2, W2BYTES), (S_WS, 0xC00000), (S_T2, XBYTES), (S_T3, 4096)):
            for k in range(-(-nbytes // (256 << g))):
                a.e(f's_mov_b32 s70, {k * (256 << g)}')
                a.e(f'buffer_load_dword v220, v4, s[{s_}:{s_+3}], s70 offen')
                n += 1
    return n


def hoist_common(a):
    a.e(f's_mul_i32 s66, s{S_B}, 7168')
    a.e(f's_add_u32 s66, s66, {WS_HH}')
    a.e('v_lshl_add_u32 v184, v0, 4, s66')
    a.e('v_add_u32 v185, 4096, v184')
    mask_lanes(a, 185, 192, 6, 'v0')
    a.e(f's_mul_i32 s66, s{S_W}, {56*16}')
    a.e(f's_mul_i32 s67, s{S_B}, 7168')
    a.e('s_add_u32 s66, s66, s67')
    a.e(f's_add_u32 s66, s66, {WS_XN}')
    a.e('v_lshl_add_u32 v188, v1, 4, s66')
    mask_lanes(a, 188, 56, 5)
    a.e('v_add_u32 v189, 3584, v188')
    a.e('v_and_b32 v4, 15, v1')
    a.e(f'v_mul_u32_u24 v4, {PROW}, v4')
    a.e('v_lshrrev_b32 v5, 4, v1')
    a.e('v_lshl_add_u32 v4, v5, 4, v4')
    a.e(f's_mul_i32 s66, s{S_W}, {PARTW}')
    a.e(f's_add_u32 s66, s66, {L_PART}')
    a.e('v_add_u32 v241, s66, v4')
    a.e(f'v_mul_u32_u24 v5, {PROW}, v1')
    a.e(f's_lshl_b32 s66, s{S_W}, 6')
    a.e(f's_add_u32 s66, s66, {L_PART}')
    a.e('v_add_u32 v242, s66, v5')
    a.e('v_lshrrev_b32 v5, 3, v1')
    a.e('v_and_b32 v4, 7, v1')
    a.e(f's_lshl_b32 s66, s{S_W}, 4')
    a.e('v_add_u32 v5, s66, v5')
    a.e(f'v_mul_u32_u24 v6, {PROW}, v5')
    a.e('v_lshl_add_u32 v6, v4, 4, v6')
    a.e(f'v_add_u32 v243, {L_PART}, v6')
    g_store_addr(a, 240)
    a.e(f's_mul_i32 s67, s{S_B}, 7168')
    a.e(f's_mul_i32 s66, s{S_W}, 1792')
    a.e('s_add_u32 s66, s66, s67')
    a.e(f's_add_u32 s66, s66, {WS_HH}')
    a.e('v_lshl_add_u32 v213, v1, 4, s66')
    a.e('v_add_u32 v5, 448, v213')
    a.e('v_cmp_gt_u32 vcc, 28, v1')
    a.e('v_cndmask_b32 v213, v5, v213, vcc')
    mask_lanes(a, 213, 56, 5)


def hoist_conv(a):
    a.e(f's_mul_i32 s66, s{S_P}, {AST}')
    a.e(f's_add_u32 s66, s66, {WS_AOUT}')
    a.e('v_lshl_add_u32 v186, v0, 4, s66')
    a.e('v_add_u32 v187, 4096, v186')
    a.e(f's_lshl_b32 s66, s{S_P}, 4')
    a.e(f's_add_u32 s66, s66, {WS_XN}')
    a.e('v_mul_u32_u24 v190, 7168, v0')
    a.e('v_add_u32 v190, s66, v190')
    a.e('v_add_u32 v191, 3584, v190')
    conv_addr(a, 192, 193)
    CP, TS = L_CP, 1280
    a.e('v_and_b32 v3, 15, v1')
    a.e('v_lshlrev_b32 v2, 4, v3')
    a.e('v_lshrrev_b32 v3, 4, v1')
    a.e('v_mul_u32_u24 v3, 320, v3')
    a.e('v_add_u32 v2, v2, v3')
    a.e(f's_mul_i32 s70, s{S_W}, {8*TS}')
    a.e(f's_add_u32 s70, s70, {CP}')
    a.e('v_add_u32 v194, s70, v2')
    a.e('v_lshrrev_b32 v3, 2, v1')
    a.e('v_lshlrev_b32 v2, 4, v3')
    a.e('v_and_b32 v3, 3, v1')
    a.e('v_mul_u32_u24 v3, 320, v3')
    a.e('v_add_u32 v2, v2, v3')
    a.e(f's_lshl_b32 s70, s{S_W}, 1')
    a.e(f's_mul_i32 s71, s70, {TS}')
    a.e(f's_add_u32 s71, s71, {CP}')
    a.e('v_add_u32 v195, s71, v2')
    a.e('s_lshl_b32 s71, s70, 9')
    a.e(f's_add_u32 s71, s71, {L_U + 512}')
    a.e('v_lshl_add_u32 v206, v1, 3, s71')
    a.e(f's_mul_i32 s71, s{S_P}, {AST}')
    a.e('s_lshl_b32 s72, s70, 10')
    a.e('s_add_u32 s71, s71, s72')
    a.e(f's_add_u32 s71, s71, {WS_AOUT}')
    a.e('v_lshl_add_u32 v207, v1, 4, s71')


def kgen_loads(a, part=None):
    R = (S_T0, S_T1, S_T2, S_T3) if part is None else (72, 76, 80, 84)
    if part != 'issue':
        for r, p in zip(R, (P_LAR, P_AI, P_CR, P_CI)):
            srd(a, r, p, PBYTES)
        a.e(f's_lshl_b32 s66, s{S_P}, 10')
        a.e(f's_lshl_b32 s67, s{S_W}, 7')
        a.e('s_add_u32 s66, s66, s67')
        a.e('v_lshl_add_u32 v235, v1, 1, s66')
        a.e(f's_lshl_b32 s66, s{S_P}, 2')
        a.e(f's_load_dword s68, s[{P_LDT}:{P_LDT+1}], s66')
        a.e(f's_load_dword s69, s[{P_DSK}:{P_DSK+1}], s66')
    if part != 'setup':
        for c in range(2):
            for k, s in enumerate(R):
                a.e(f'buffer_load_ushort v{40+4*c+k}, v235, s[{s}:{s+3}], 0 offen offset:{512*c}')


def load_gather_table(a, tablabel):
    lp = a.lab('pc')
    a.e('s_getpc_b64 s[70:71]')
    a.e(f'{lp}:')
    a.e(f's_add_u32 s70, s70, {tablabel}-{lp}')
    a.e('s_addc_u32 s71, s71, 0')
    a.e('v_lshlrev_b32 v2, 5, v0')
    a.e('global_load_dwordx4 v[160:163], v2, s[70:71]')
    a.e('global_load_dwordx4 v[164:167], v2, s[70:71] offset:16')


DK0, DK1 = 16, 28


def kgen_channel(a, c, DACC, mid=None, mid_m0=True, after_setup=None, defer=False):
    LAR, AI, CR, CI = 40 + 4 * c, 41 + 4 * c, 42 + 4 * c, 43 + 4 * c
    SIG, DT = 52 + c, 54 + c
    AL, BE = 56, 57
    Z1, Z2, Z4, Z8, Z128, Z256, Z512, Z1024 = 58, 60, 62, 64, 66, 68, 70, 72
    X0, CA, CB, CC, T0, T1 = 74, 76, 78, 80, 82, 84
    CV = [86, 87, 88, 89]
    VW, VR = 90, 91
    t, t2 = 92, 93
    for r in (LAR, AI, CR, CI):
        a.e(f'v_lshlrev_b32 v{r}, 16, v{r}')
    a.e('s_lshl_b32 s66, s68, 16' if c == 0 else 's_and_b32 s66, s68, 0xffff0000')
    a.e(f'v_mov_b32 v{t2}, s66')
    exp_bf16(a, DT, t2, t)
    a.e(f'v_add_f32 v{SIG}, abs(v{CR}), abs(v{CI})')
    exp_bf16(a, AL, LAR, t)
    a.e(f'v_add_f32_dpp v{SIG}, v{SIG}, v{SIG} quad_perm:[1,0,3,2] row_mask:0xf bank_mask:0xf')
    a.e(f'v_mul_f32 v{AL}, v{AL}, v{DT}')
    a.e(f'v_mul_f32 v{BE}, v{AI}, v{DT}')
    a.e(f'v_add_f32_dpp v{SIG}, v{SIG}, v{SIG} quad_perm:[2,3,0,1] row_mask:0xf bank_mask:0xf')
    a.e(f'v_mul_f32 v{AL}, {fx(-1.4426950408889634)}, v{AL}')
    a.e(f'v_mul_f32 v{BE}, {fx(0.15915494309189535)}, v{BE}')
    a.e(f'v_add_f32_dpp v{SIG}, v{SIG}, v{SIG} row_half_mirror row_mask:0xf bank_mask:0xf')
    a.e(f'v_exp_f32 v{T0}, v{AL}')
    a.e(f'v_fract_f32 v{t}, v{BE}')
    a.e(f'v_add_f32_dpp v{SIG}, v{SIG}, v{SIG} row_ror:8 row_mask:0xf bank_mask:0xf')
    a.e(f'v_cos_f32 v{Z1}, v{t}')
    a.e(f'v_sin_f32 v{Z1+1}, v{t}')
    a.e(f'v_mov_b32 v{t2}, v{SIG}')
    a.e(f'v_mul_f32 v{T1}, 0x43000000, v{AL}')
    a.e(f'v_mul_f32 v{t}, 0x43000000, v{BE}')
    a.e(f'v_permlane16_swap_b32 v{SIG}, v{t2}')
    a.e(f'v_pk_mul_f32 v[{Z1}:{Z1+1}], v[{Z1}:{Z1+1}], v[{T0}:{T0+1}] op_sel:[0,0] op_sel_hi:[1,0]')
    a.e(f'v_add_f32 v{SIG}, v{SIG}, v{t2}')
    a.e(f'v_exp_f32 v{T1}, v{T1}')
    a.e(f'v_fract_f32 v{t}, v{t}')
    a.e(f'v_mov_b32 v{t2}, v{SIG}')
    a.e(f'v_cos_f32 v{Z128}, v{t}')
    a.e(f'v_sin_f32 v{Z128+1}, v{t}')
    a.e(f'v_permlane32_swap_b32 v{SIG}, v{t2}')
    cmul(a, Z2, Z1, Z1, Z2)
    a.e(f'v_add_f32 v{SIG}, v{SIG}, v{t2}')
    a.e(f'v_pk_mul_f32 v[{Z128}:{Z128+1}], v[{Z128}:{Z128+1}], v[{T1}:{T1+1}] op_sel:[0,0] op_sel_hi:[1,0]')
    a.e(f'v_add_f32 v{SIG}, {fx(1e-30)}, v{SIG}')
    cmul(a, Z4, Z2, Z2, Z4)
    a.e(f'v_rcp_f32 v{t}, v{SIG}')
    cmul(a, Z256, Z128, Z128, Z256)
    cmul(a, Z8, Z4, Z4, Z8)
    a.e(f'v_mul_f32 v{X0}, v{CR}, v{t}')
    a.e(f'v_mul_f32 v{X0+1}, v{CI}, v{t}')
    cmul(a, Z512, Z256, Z256, Z512)
    a.e(f's_mul_i32 s66, s{S_W}, {SCRW}')
    a.e(f's_add_u32 s66, s66, {L_SCR}')
    a.e('s_mov_b32 m0, s66')
    cmul(a, Z1024, Z512, Z512, Z1024)
    a.e(f'v_and_b32 v{t}, 15, v1')
    a.e(f'v_mul_u32_u24 v{t}, {SROW}, v{t}')
    a.e(f'v_lshrrev_b32 v{t2}, 4, v1')
    a.e(f'v_lshl_add_u32 v{t}, v{t2}, 4, v{t}')
    a.e(f'v_add_u32 v{VR}, s66, v{t}')
    cvi = [0]
    pend = []

    def flush(keep):
        while len(pend) > keep:
            cv, off = pend.pop(0)
            a.e(f'ds_write_addtid_b32 v{cv} offset:{off}')

    G = OPT['kgrp']
    if G > 1:
        CV = list(range(96, 112))
        if OPT['kdefer']:
            CV = list(range(168, 176))
    if after_setup is not None:
        after_setup()

    def put(off, r, neg):
        cv = CV[cvi[0] % len(CV)]
        cvi[0] += 1
        a.e(f'v_cvt_pk_f16_f32 v{cv}, v{r}, {"-" if neg else ""}v{r+1}')
        if G > 1:
            pend.append((cv, off))
            if len(pend) >= G + 1:
                flush(1)
        else:
            flush(1)
            pend.append((cv, off))

    def putX(row, r):
        put(row * SROW, r, True)

    def putY(b, r):
        put((YROW + b) * SROW, r, False)

    a.e(f'v_mov_b32 v{VW}, 0x00003c00')
    pend.append((VW, YROW * SROW))
    putY(1, Z8)
    ychain = {'cur': Z8, 'b': 1}
    YA, YB = CC, 94

    def ystep():
        if ychain['b'] >= 15:
            return
        d = YA if ychain['cur'] != YA else YB
        cmul(a, d, ychain['cur'], Z8, d)
        ychain['b'] += 1
        ychain['cur'] = d
        putY(ychain['b'], d)

    putX(0, X0)
    cmul(a, T0, X0, Z128, T0)
    putX(8, T0)
    cur = X0
    for j in range(1, 8):
        d = CA if cur != CA else CB
        cmul(a, d, cur, Z1, d)
        ystep()
        putX(j, d)
        cmul(a, T0, d, Z128, T0)
        putX(8 + j, T0)
        cur = d
    cmul(a, CA, X0, Z256, CA)
    ystep()
    putX(16, CA)
    cmul(a, T0, CA, Z128, T0)
    putX(20, T0)
    cur = CA
    for j in range(1, 4):
        d = CA if cur != CA else CB
        cmul(a, d, cur, Z2, d)
        ystep()
        putX(16 + j, d)
        cmul(a, T0, d, Z128, T0)
        putX(20 + j, T0)
        cur = d
    if mid is not None:
        if mid_m0:
            flush(0)
        mid()
        if mid_m0:
            a.e(f's_mul_i32 s66, s{S_W}, {SCRW}')
            a.e(f's_add_u32 s66, s66, {L_SCR}')
            a.e('s_mov_b32 m0, s66')
    cmul(a, CA, X0, Z512, CA)
    ystep()
    putX(24, CA)
    cmul(a, CB, CA, Z4, CB)
    ystep()
    putX(25, CB)
    pa, pb = CA, CB
    na, nb = T0, T1
    for q in range(1, 4):
        cmul(a, na, pa, Z128, na)
        cmul(a, nb, pb, Z128, nb)
        ystep()
        putX(24 + 2 * q, na)
        putX(25 + 2 * q, nb)
        pa, pb, na, nb = na, nb, pa, pb
    cmul(a, CA, X0, Z1024, CA)
    putX(32, CA)
    cur = CA
    for q in range(1, 9):
        d = CA if cur != CA else CB
        cmul(a, d, cur, Z128, d)
        putX(32 + q, d)
        cur = d
    while ychain['b'] < 15:
        ystep()
    flush(0)
    FA = 96
    for k in range(4):
        a.e(f'ds_read_b128 v[{144+4*k}:{147+4*k}], v{VR} offset:{YROW*SROW+64*k}')
        for T in range(3):
            r = FA + 16 * T + 4 * k
            a.e(f'ds_read_b128 v[{r}:{r+3}], v{VR} offset:{16*T*SROW+64*k}')
    def mfmas(waits=True):
        for k in range(4):
            if waits:
                a.e(f's_waitcnt lgkmcnt({4*(3-k)})')
            elif k == 0:
                a.e('s_waitcnt lgkmcnt(0)')
            for T in range(3):
                r = FA + 16 * T + 4 * k
                cc = '0' if k == 0 else f'v[{DACC+4*T}:{DACC+4*T+3}]'
                a.e(f'v_mfma_f32_16x16x32_f16 v[{DACC+4*T}:{DACC+4*T+3}], v[{r}:{r+3}], v[{144+4*k}:{147+4*k}], {cc}')

    if defer:
        return lambda: mfmas(waits=False)
    mfmas()


def ktab_part1(a):
    a.e(f's_mul_i32 s66, s{S_W}, {SCRW}')
    a.e(f's_add_u32 s66, s66, {L_SCR}')
    a.e('v_lshl_add_u32 v90, v1, 4, s66')
    a.e(f's_lshl_b32 s67, s{S_W}, 2')
    a.e(f's_add_u32 s67, s67, {L_SIG}')
    a.e('v_mov_b32 v91, s67')
    a.e('s_mov_b64 exec, 1')
    a.e('ds_write_b32 v91, v52')
    a.e('ds_write_b32 v91, v53 offset:16')
    a.e('s_mov_b64 exec, -1')
    for c, DK in ((0, DK0), (1, DK1)):
        for T in range(3):
            for h in range(2):
                i = DK + 4 * T + 2 * h
                a.e(f'v_pk_mul_f32 v[{i}:{i+1}], v[{i}:{i+1}], v[52:53] op_sel:[0,{c}] op_sel_hi:[1,{c}]')
            a.e(f'ds_write_b128 v90, v[{DK+4*T}:{DK+4*T+3}] offset:{c*3072+T*1024}')
    a.e('v_mov_b32 v96, 0')
    a.e('v_mov_b32 v97, 0')
    a.e('v_mov_b32 v98, 0')
    a.e('v_mov_b32 v99, 0')
    a.e(f'v_mov_b32 v92, {L_KT + 1536}')
    a.e('ds_write_b32 v92, v96')
    a.e(f'ds_write_b32 v92, v96 offset:{KTCH}')
    a.e('v_lshlrev_b32 v92, 3, v1')
    a.e(f'ds_write_b64 v92, v[96:97] offset:{L_U}')
    a.e(f'ds_write_b64 v92, v[96:97] offset:{L_U + UCH}')
    a.e('s_waitcnt lgkmcnt(0)')
    a.e('s_barrier')


def ktab_part2(a, mid=None):
    a.e(f'v_mov_b32 v91, {L_SIG}')
    a.e('ds_read_b128 v[44:47], v91')
    a.e('ds_read_b128 v[48:51], v91 offset:16')
    a.e(f's_and_b32 s67, s{S_W}, 1')
    a.e(f's_lshr_b32 s70, s{S_W}, 1')
    a.e('s_mul_i32 s71, s67, 3072')
    a.e('s_lshl_b32 s72, s70, 10')
    a.e('s_add_u32 s72, s72, s71')
    a.e(f's_add_u32 s72, s72, {L_SCR}')
    a.e(f's_add_u32 s71, s71, {L_SCR + 2048}')
    a.e('v_lshl_add_u32 v90, v1, 4, s72')
    a.e('v_lshl_add_u32 v91, v1, 4, s71')
    for wv in range(4):
        a.e(f'ds_read_b128 v[{96+4*wv}:{99+4*wv}], v90 offset:{wv*SCRW}')
    for wv in range(4):
        a.e(f'ds_read_b128 v[{112+4*wv}:{115+4*wv}], v91 offset:{wv*SCRW}')
    a.e('v_mov_b32 v128, 0')
    a.e('v_mov_b32 v129, 0')
    a.e('v_mov_b32 v130, 0')
    a.e('v_mov_b32 v131, 0')
    if OPT['c4']:
        a.e('v_and_b32 v132, 7, v1')
        a.e(f'v_mul_u32_u24 v132, {KCOPY}, v132')
        a.e('v_bfe_u32 v133, v1, 3, 1')
        a.e('v_lshl_add_u32 v132, v133, 4, v132')
    else:
        a.e('v_and_b32 v132, 15, v1')
        a.e(f'v_mul_u32_u24 v132, {KCOPY}, v132')
    a.e(f'v_add_u32 v132, {L_KC}, v132')
    a.e('ds_write_b128 v132, v[128:131] offset:4096')
    a.e('v_lshrrev_b32 v92, 4, v1')
    a.e('v_lshlrev_b32 v92, 7, v92')
    a.e('v_and_b32 v93, 15, v1')
    a.e('v_lshl_add_u32 v92, v93, 1, v92')
    a.e(f's_mul_i32 s71, s67, {KTCH}')
    a.e(f's_add_u32 s71, s71, {L_KT}')
    a.e('v_add_u32 v93, s71, v92')
    a.e('s_lshl_b32 s72, s70, 9')
    a.e('v_add_u32 v92, s72, v93')
    if mid is not None:
        mid()
    a.e('s_waitcnt lgkmcnt(9)')
    a.e('v_pk_add_f32 v[44:45], v[44:45], v[46:47]')
    a.e('v_pk_add_f32 v[48:49], v[48:49], v[50:51]')
    a.e('v_add_f32 v44, v44, v45')
    a.e('v_add_f32 v45, v48, v49')
    a.e('s_cmp_eq_u32 s67, 0')
    a.e('s_cselect_b64 vcc, -1, 0')
    a.e('v_pk_mul_f32 v[54:55], v[54:55], v[44:45]')
    a.e('v_cndmask_b32 v46, v45, v44, vcc')
    a.e('v_pk_add_f32 v[54:55], v[54:55], v[54:55]')
    a.e('v_rcp_f32 v46, v46')
    for jb, (base, va, off) in enumerate(((96, 92, 0), (112, 93, 1024))):
        a.e(f's_waitcnt lgkmcnt({5 if jb == 0 else 5})')
        for h in range(2):
            a.e(f'v_pk_add_f32 v[{base+2*h}:{base+2*h+1}], v[{base+2*h}:{base+2*h+1}], v[{base+4+2*h}:{base+5+2*h}]')
            a.e(f'v_pk_add_f32 v[{base+8+2*h}:{base+9+2*h}], v[{base+8+2*h}:{base+9+2*h}], v[{base+12+2*h}:{base+13+2*h}]')
        for h in range(2):
            a.e(f'v_pk_add_f32 v[{base+2*h}:{base+2*h+1}], v[{base+2*h}:{base+2*h+1}], v[{base+8+2*h}:{base+9+2*h}]')
        for h in range(2):
            a.e(f'v_pk_mul_f32 v[{base+2*h}:{base+2*h+1}], v[{base+2*h}:{base+2*h+1}], v[46:47] op_sel:[0,0] op_sel_hi:[1,0]')
        a.e(f'v_cvt_pk_f16_f32 v{base+4}, v{base}, v{base+1}')
        a.e(f'v_cvt_pk_f16_f32 v{base+5}, v{base+2}, v{base+3}')
        a.e(f'ds_write_b16 v{va}, v{base+4} offset:{off}')
        a.e(f'ds_write_b16_d16_hi v{va}, v{base+4} offset:{off+32}')
        a.e(f'ds_write_b16 v{va}, v{base+5} offset:{off+64}')
        a.e(f'ds_write_b16_d16_hi v{va}, v{base+5} offset:{off+96}')
    for e in range(11 if OPT['c4'] else 15):
        src = 160 + e // 2
        if e % 2 == 0:
            a.e(f'v_and_b32 v{136+e}, 0xffff, v{src}')
        else:
            a.e(f'v_lshrrev_b32 v{136+e}, 16, v{src}')
    a.e('s_waitcnt lgkmcnt(0)')
    a.e('s_barrier')


def kch():
    return (4 if OPT['c4'] else 8) * KCOPY


def kcopies(a):
    AD = 136
    a.e('v_lshlrev_b32 v111, 4, v0')
    a.e(f'v_add_u32 v111, {L_KC}, v111')
    RR = [96, 112]
    if OPT['c4']:
        for c in range(2):
            for e in range(11):
                a.e(f'ds_read_u16 v{RR[c]+e}, v{AD+e} offset:{L_KT + c*KTCH}')
        for c in range(2):
            R = RR[c]
            Da, Db, Oa, Ob = (56, 60, 64, 68) if c == 0 else (16, 20, 24, 28)
            a.e(f's_waitcnt lgkmcnt({11 if c == 0 else 4})')
            for i in range(4):
                a.e(f'v_lshl_or_b32 v{Da+i}, v{R+2*i+1}, 16, v{R+2*i}')
                a.e(f'v_lshl_or_b32 v{Oa+i}, v{R+2*i+2}, 16, v{R+2*i+1}')
                a.e(f'v_lshl_or_b32 v{Db+i}, v{R+2*i+3}, 16, v{R+2*i+2}')
                a.e(f'v_lshl_or_b32 v{Ob+i}, v{R+2*i+4}, 16, v{R+2*i+3}')
            for s_, r in ((0, Da), (1, Oa), (2, Db), (3, Ob)):
                a.e(f'ds_write_b128 v111, v[{r}:{r+3}] offset:{c*kch() + s_*KCOPY}')
        return
    for c in range(2):
        for e in range(15):
            a.e(f'ds_read_u16 v{RR[c]+e}, v{AD+e} offset:{L_KT + c*KTCH}')
    for c in range(2):
        R = RR[c]
        Da, Db, Oa, Ob = 56 + 0, 64, 72, 80
        if c == 1:
            Da, Db, Oa, Ob = 16, 24, 32, 40
        a.e(f's_waitcnt lgkmcnt({15 if c == 0 else 8})')
        for i in range(6):
            a.e(f'v_lshl_or_b32 v{Da+i}, v{R+2*i+1}, 16, v{R+2*i}')
            a.e(f'v_lshl_or_b32 v{Oa+i}, v{R+2*i+2}, 16, v{R+2*i+1}')
        if c == 1:
            a.e(f'v_add_u32 v110, {KCH}, v111')
        va = 111 if c == 0 else 110
        for s, r in ((0, Da), (1, Oa), (4, Da + 2), (5, Oa + 2)):
            a.e(f'ds_write_b128 v{va}, v[{r}:{r+3}] offset:{s*KCOPY}')
        for i in range(6):
            a.e(f'v_lshl_or_b32 v{Db+i}, v{R+2*i+3}, 16, v{R+2*i+2}')
            a.e(f'v_lshl_or_b32 v{Ob+i}, v{R+2*i+4}, 16, v{R+2*i+3}')
        for s, r in ((2, Db), (3, Ob), (6, Db + 2), (7, Ob + 2)):
            a.e(f'ds_write_b128 v{va}, v[{r}:{r+3}] offset:{s*KCOPY}')


def store_u(a, vm):
    a.e('v_lshlrev_b32 v2, 4, v0')
    a.e(f's_waitcnt vmcnt({vm})')
    a.e(f'ds_write_b128 v2, v[176:179] offset:{L_U + 512}')
    a.e(f'ds_write_b128 v2, v[180:183] offset:{L_U + UCH + 512}')
    a.e('s_waitcnt lgkmcnt(0)')
    a.e('s_barrier')


def phase_conv(a, hooks, pre_vm):
    hooks = list(hooks)
    ACC = 16
    FA = [[64 + 64 * s + 4 * i for i in range(8)] for s in range(2)]
    FB = [[96 + 64 * s + 4 * i for i in range(8)] for s in range(2)]
    VA, VB = (192, 193) if OPT['hoist'] else (48, 49)

    def loads(qq, s):
        out = []
        for i in range(8):
            out.append(f'ds_read_b128 v[{FB[s][i]}:{FB[s][i]+3}], v{VB} offset:{512*i + 64*(3-qq)}')
            if OPT['c4']:
                o = 512 * (7 - i) + 64 * (3 - qq)
                out.append(f'ds_read_b64 v[{FA[s][i]}:{FA[s][i]+1}], v{VA} offset:{o}')
                out.append(f'ds_read_b64 v[{FA[s][i]+2}:{FA[s][i]+3}], v{VA} offset:{o + 8}')
            else:
                out.append(f'ds_read_b128 v[{FA[s][i]}:{FA[s][i]+3}], v{VA} offset:{512*(7-i) + 64*(3-qq)}')
        return out

    for x in loads(0, 0):
        a.e(x)
    for qq in range(4):
        s = qq & 1
        nxt = loads(qq + 1, 1 - s) if qq < 3 else []
        n = 0
        for w in range(8):
            for c in range(w, 8):
                if n == 0:
                    a.e('s_waitcnt lgkmcnt(0)')
                    if qq == 3 and OPT['cvbar']:
                        a.e('s_barrier')
                cc = '0' if (qq == 0 and w == 0) else f'v[{ACC+4*c}:{ACC+4*c+3}]'
                a.e(f'v_mfma_f32_16x16x32_f16 v[{ACC+4*c}:{ACC+4*c+3}], v[{FA[s][w]}:{FA[s][w]+3}], v[{FB[s][c-w]}:{FB[s][c-w]+3}], {cc}')
                if nxt and (n % 2 == 1 or (OPT['c4'] and n % 4 == 0)):
                    a.e(nxt.pop(0))
                if hooks and n % 4 == 2:
                    hooks.pop(0)()
                n += 1
        assert not nxt
    assert not hooks
    stamp(a, 11)
    CP, TS = L_CP, 1280
    if OPT['hoist']:
        if not OPT['cvbar']:
            a.e('s_barrier')
        for c in range(8):
            a.e(f'ds_write_b128 v194, v[{ACC+4*c}:{ACC+4*c+3}] offset:{c*TS}')
        VRD, VU, VG = 195, 206, 207
    else:
        a.e('v_and_b32 v2, 15, v1')
        a.e('v_lshlrev_b32 v2, 4, v2')
        a.e('v_lshrrev_b32 v3, 4, v1')
        a.e('v_mul_u32_u24 v3, 320, v3')
        a.e('v_add_u32 v2, v2, v3')
        a.e(f's_mul_i32 s70, s{S_W}, {8*TS}')
        a.e(f's_add_u32 s70, s70, {CP}')
        a.e('v_add_u32 v2, s70, v2')
        if not OPT['cvbar']:
            a.e('s_barrier')
        for c in range(8):
            a.e(f'ds_write_b128 v2, v[{ACC+4*c}:{ACC+4*c+3}] offset:{c*TS}')
        a.e('v_lshrrev_b32 v2, 2, v1')
        a.e('v_lshlrev_b32 v2, 4, v2')
        a.e('v_and_b32 v3, 3, v1')
        a.e('v_mul_u32_u24 v3, 320, v3')
        a.e('v_add_u32 v2, v2, v3')
        a.e(f's_lshl_b32 s70, s{S_W}, 1')
        a.e(f's_mul_i32 s71, s70, {TS}')
        a.e(f's_add_u32 s71, s71, {CP}')
        a.e('v_add_u32 v2, s71, v2')
        a.e('s_lshl_b32 s71, s70, 9')
        a.e(f's_add_u32 s71, s71, {L_U + 512}')
        a.e('v_lshl_add_u32 v3, v1, 3, s71')
        a.e(f's_mul_i32 s71, s{S_P}, {AST}')
        a.e('s_lshl_b32 s72, s70, 10')
        a.e('s_add_u32 s71, s71, s72')
        a.e(f's_add_u32 s71, s71, {WS_AOUT}')
        a.e('v_lshl_add_u32 v4, v1, 4, s71')
        VRD, VU, VG = 2, 3, 4
    a.e('s_lshl_b32 s72, s69, 16')
    a.e('s_and_b32 s73, s69, 0xffff0000')
    a.e('v_mov_b32 v56, s72')
    a.e('v_mov_b32 v57, s73')
    a.e(f's_waitcnt lgkmcnt(0) vmcnt({pre_vm})')
    a.e('s_barrier')
    for q in range(2):
        P = 64 + 32 * q
        for ch in range(2):
            for hf in range(2):
                r = P + 8 * ch + 4 * hf
                a.e(f'ds_read_b128 v[{r}:{r+3}], v{VRD} offset:{(2*ch+hf)*8*TS + q*TS}')
        for ch in range(2):
            a.e(f'ds_read_b64 v[{P+16+2*ch}:{P+17+2*ch}], v{VU} offset:{ch*UCH + q*512}')
    for q in range(2):
        P = 64 + 32 * q
        a.e(f's_waitcnt lgkmcnt({6 if q == 0 else 0})')
        for ch in range(2):
            y = P + 8 * ch
            T = 128 + 16 * ch
            u = P + 16 + 2 * ch
            for h in range(2):
                a.e(f'v_pk_add_f32 v[{y+2*h}:{y+2*h+1}], v[{y+2*h}:{y+2*h+1}], v[{y+4+2*h}:{y+5+2*h}]')
            for i in range(4):
                a.e(f'v_fma_mix_f32 v{T+i}, v{u+i//2}, v{56+ch}, 0 op_sel:[{i%2},0,0] op_sel_hi:[1,0,0]')
            for h in range(2):
                a.e(f'v_pk_mul_f32 v[{y+2*h}:{y+2*h+1}], v[{y+2*h}:{y+2*h+1}], v[54:55] op_sel:[0,{ch}] op_sel_hi:[1,{ch}]')
            for h in range(2):
                a.e(f'v_cvt_pk_bf16_f32 v{T+6+h}, v{T+2*h}, v{T+2*h+1}')
                a.e(f'v_cvt_pk_bf16_f32 v{T+4+h}, v{y+2*h}, v{y+2*h+1}')
            for h in range(2):
                a.e(f'v_lshlrev_b32 v{T+2*h}, 16, v{T+6+h}')
                a.e(f'v_and_b32 v{T+2*h+1}, 0xffff0000, v{T+6+h}')
                a.e(f'v_lshlrev_b32 v{y+2*h}, 16, v{T+4+h}')
                a.e(f'v_and_b32 v{y+2*h+1}, 0xffff0000, v{T+4+h}')
            for h in range(2):
                a.e(f'v_pk_add_f32 v[{y+2*h}:{y+2*h+1}], v[{y+2*h}:{y+2*h+1}], v[{T+2*h}:{T+2*h+1}]')
        O = 160 + 4 * q
        for i in range(4):
            a.e(f'v_cvt_pk_bf16_f32 v{O+i}, v{P+i}, v{P+8+i}')
        a.e(f'buffer_store_dwordx4 v[{O}:{O+3}], v{VG}, {WSR}, 0 offen offset:{q*1024} sc1')


def conv_addr(a, va=48, vb=49):
    a.e(f's_lshr_b32 s66, s{S_W}, 1')
    a.e(f's_and_b32 s67, s{S_W}, 1')
    a.e('v_and_b32 v2, 7, v1')
    a.e('v_sub_u32 v2, 7, v2')
    if OPT['c4']:
        a.e('v_lshrrev_b32 v5, 2, v2')
        a.e('v_and_b32 v2, 3, v2')
        a.e(f'v_mul_u32_u24 v2, {KCOPY}, v2')
        a.e('v_lshl_add_u32 v2, v5, 3, v2')
    else:
        a.e(f'v_mul_u32_u24 v2, {KCOPY}, v2')
    a.e('v_lshrrev_b32 v3, 4, v1')
    a.e('v_bfe_u32 v4, v1, 3, 1')
    a.e('v_sub_u32 v4, v3, v4')
    a.e('v_lshl_add_u32 v2, v4, 4, v2')
    a.e(f's_mul_i32 s70, s66, {kch()}')
    a.e('s_lshl_b32 s71, s67, 8')
    a.e('s_sub_u32 s70, s70, s71')
    a.e(f's_add_u32 s70, s70, {L_KC + 16*253 - 512*7 - 64*3}')
    a.e(f'v_add_u32 v{va}, s70, v2')
    a.e('v_and_b32 v2, 15, v1')
    a.e('v_lshlrev_b32 v2, 5, v2')
    a.e('v_lshl_add_u32 v2, v3, 4, v2')
    a.e(f's_mul_i32 s70, s66, {UCH}')
    a.e('s_sub_u32 s70, s70, s71')
    a.e(f's_add_u32 s70, s70, {L_U + 480 - 64*3}')
    a.e(f'v_add_u32 v{vb}, s70, v2')


def p4_pre(a):
    X = list(range(8, 16))
    xrow_addr(a)
    a.e(f's_mul_i32 s66, s{S_W}, {56*AST}')
    a.e(f's_lshl_b32 s67, s{S_B}, 5')
    a.e('s_add_u32 s66, s66, s67')
    a.e(f's_add_u32 s66, s66, {WS_AOUT}')
    a.e(f'v_mul_u32_u24 v4, {AST}, v1')
    a.e('v_add_u32 v4, s66, v4')
    a.e(f'v_mov_b32 v5, {OOB}')
    a.e('v_cndmask_b32 v4, v5, v4, vcc')
    if OPT['hpriv']:
        a.e(f's_mul_i32 s66, s{S_W}, 1792')
        a.e(f's_add_u32 s66, s66, {L_HT}')
        a.e('v_lshl_add_u32 v6, v1, 2, s66')
        a.e('v_lshl_add_u32 v7, v1, 4, s66')
        a.e(f's_mul_i32 s66, s{S_B}, 7168')
        a.e(f's_mul_i32 s67, s{S_W}, 224')
        a.e('s_add_u32 s66, s66, s67')
        a.e(f's_add_u32 s66, s66, {WS_H}')
        for k, vd in ((0, 56), (64, 57)):
            a.e(f'v_add_u32 v58, {k}, v1')
            a.e('v_mul_u32_u24 v59, 4682, v58')
            a.e('v_lshrrev_b32 v59, 16, v59')
            a.e(f'v_mul_u32_u24 v{vd}, {896 - 224}, v59')
            a.e(f'v_lshl_add_u32 v{vd}, v58, 4, v{vd}')
            a.e(f'v_add_u32 v{vd}, s66, v{vd}')
        mask_lanes(a, 57, 48, 58)
    else:
        a.e(f's_mul_i32 s66, s{S_W}, 224')
        a.e(f's_add_u32 s66, s66, {L_HT}')
        a.e('v_lshl_add_u32 v6, v1, 2, s66')
    for j in range(8):
        a.e(f'v_lshlrev_b32 v{64+2*j}, 16, v{X[j]}')
        a.e(f'v_and_b32 v{65+2*j}, 0xffff0000, v{X[j]}')


def p4_loads(a):
    A = 32
    a.e(f'buffer_load_dwordx4 v[{A}:{A+3}], v4, {WSR}, 0 offen sc1')
    a.e(f'buffer_load_dwordx4 v[{A+4}:{A+7}], v4, {WSR}, 0 offen offset:16 sc1')


def p4_check(a):
    A = 32
    a.e(f'v_max3_u32 v40, v{A}, v{A+1}, v{A+2}')
    a.e(f'v_max3_u32 v41, v{A+3}, v{A+4}, v{A+5}')
    a.e(f'v_max3_u32 v40, v40, v{A+6}, v{A+7}')
    a.e('v_max_u32 v40, v40, v41')
    a.e('v_cmp_eq_u32 vcc, -1, v40')


def phase_p4(a, dmas=(), pre_done=None):
    X = list(range(8, 16))
    A = 32
    if pre_done is None:
        p4_pre(a)
        lp0, ld = a.lab('h2poll0'), a.lab('h2done')
    else:
        lp0, ld = pre_done
    lp = a.lab('h2poll')
    a.e(f'{lp0}:')
    a.e(f's_mov_b32 s{S_SPIN}, 0')
    a.e(f'{lp}:')
    p4_loads(a)
    a.e('s_waitcnt vmcnt(0)')
    p4_check(a)
    a.e(f's_cbranch_vccz {ld}')
    spin_tail(a, lp)
    a.e(f'{ld}:')
    stamp(a, 14)
    H = list(range(48, 56))
    for j in range(8):
        t = 40 + 2 * (j % 4)
        a.e(f'v_lshlrev_b32 v{t}, 16, v{A+j}')
        a.e(f'v_and_b32 v{t+1}, 0xffff0000, v{A+j}')
        a.e(f'v_pk_add_f32 v[{t}:{t+1}], v[{t}:{t+1}], v[{64+2*j}:{65+2*j}]')
        a.e(f'v_cvt_pk_bf16_f32 v{H[j]}, v{t}, v{t+1}')
    a.e('s_mov_b32 exec_hi, 0x00ffffff')
    for j in range(8):
        a.e(f'ds_write_b32 v6, v{H[j]} offset:{j*(224 if OPT["hpriv"] else 896)}')
    a.e('s_mov_b32 exec_hi, -1')
    if OPT['hpriv']:
        a.e('ds_read_b128 v[32:35], v7')
        a.e('ds_read_b128 v[36:39], v7 offset:1024')
        a.e('s_waitcnt lgkmcnt(1)')
        a.e(f'buffer_store_dwordx4 v[32:35], v56, {WSR}, 0 offen sc1')
        a.e('s_waitcnt lgkmcnt(0)')
        a.e(f'buffer_store_dwordx4 v[36:39], v57, {WSR}, 0 offen sc1')
        if dmas:
            a.inject(dmas, OPT['p4ev'])
        ln_stats(a, H, 16, L_RED0, 5)
    else:
        def hstore():
            a.e('v_lshlrev_b32 v7, 4, v0')
            a.e(f'ds_read_b128 v[56:59], v7 offset:{L_HT}')
            a.e(f'ds_read_b128 v[60:63], v7 offset:{L_HT + 4096}')
            return 2

        ln_stats(a, H, 16, L_RED0, 5, mid=hstore)
        a.e(f's_mul_i32 s66, s{S_B}, 7168')
        a.e(f's_add_u32 s66, s66, {WS_H}')
        a.e('v_add_u32 v6, s66, v7')
        a.e('v_add_u32 v7, 4096, v6')
        mask_lanes(a, 7, 192, 4, 'v0')
        a.e('s_waitcnt lgkmcnt(0)')
        a.e(f'buffer_store_dwordx4 v[56:59], v6, {WSR}, 0 offen sc1')
        a.e(f'buffer_store_dwordx4 v[60:63], v7, {WSR}, 0 offen sc1')
    bcast_stats(a, 16)
    a.inj_pause()
    a.e('s_mov_b32 exec_hi, 0x00ffffff')
    for j in range(8):
        t = 40 + 2 * (j % 4)
        norm_tok(a, j, H[j], t)
        a.e(f'v_cvt_pk_bf16_f32 v{H[j]}, v{t}, v{t+1}')
    a.e('s_mov_b32 exec_hi, -1')
    a.inj_resume()
    ln_stats(a, H, 16, L_RED1, 5)
    bcast_stats(a, 16)
    VHH = 213 if OPT['hoist'] else 4
    if not OPT['hoist']:
        a.e(f's_mul_i32 s66, s{S_B}, 7168')
        a.e(f's_mul_i32 s67, s{S_W}, 1792')
        a.e('s_add_u32 s66, s66, s67')
        a.e(f's_add_u32 s66, s66, {WS_HH}')
        a.e('v_lshl_add_u32 v4, v1, 4, s66')
        a.e('v_add_u32 v5, 448, v4')
        a.e('v_cmp_gt_u32 vcc, 28, v1')
        a.e('v_cndmask_b32 v4, v5, v4, vcc')
        mask_lanes(a, 4, 56, 5)
    for j in range(8):
        norm_tok(a, j, H[j], 64 + 2 * j)
    O0, O1 = 80, 84
    for i in range(4):
        a.e(f'v_cvt_pk_bf16_f32 v{O0+i}, v{64+4*i}, v{66+4*i}')
        a.e(f'v_cvt_pk_bf16_f32 v{O1+i}, v{65+4*i}, v{67+4*i}')
    a.inj_flush()
    if not OPT['nohw']:
        a.e(f's_waitcnt vmcnt({len(dmas)})')
    if not OPT['hpriv']:
        a.e('s_barrier')
    a.e(f'buffer_store_dwordx4 v[{O0}:{O0+3}], v{VHH}, {WSR}, 0 offen sc1')
    a.e(f'buffer_store_dwordx4 v[{O1}:{O1+3}], v{VHH}, {WSR}, 0 offen offset:448 sc1')


def w_setup(a):
    srd(a, S_W1, P_W1, W1BYTES)
    srd(a, S_W2, P_W2, W2BYTES)
    a.e('v_lshrrev_b32 v4, 3, v1')
    a.e('v_bfe_u32 v5, v1, 4, 1')
    a.e('v_lshlrev_b32 v5, 1, v5')
    a.e('v_and_b32 v6, 7, v1')
    a.e('v_xor_b32 v6, v6, v5')
    a.e('v_xor_b32 v7, 4, v6')
    for vd, rowbytes, tile, rows in ((V_D1, F * 2, S_I1, 512), (V_D2, L * 2, S_I2, 448)):
        a.e(f's_mov_b32 s66, {rowbytes}')
        a.e('v_mul_lo_u32 v5, v4, s66')
        a.e(f's_mul_i32 s67, s{S_W}, {rows*rowbytes}')
        a.e(f's_lshl_b32 s66, s{tile}, 7')
        a.e('s_add_u32 s67, s67, s66')
        a.e('v_add_u32 v5, s67, v5')
        for i in range(4):
            a.e(f'v_lshl_add_u32 v{vd+i}, v{6 + (i & 1)}, 4, v5')
            if i:
                a.e(f'v_add_u32 v{vd+i}, {i*(8*rowbytes - 1024)}, v{vd+i}')
    a.e('v_lshlrev_b32 v5, 12, v4')
    a.e('v_and_b32 v6, 7, v1')
    a.e(f'v_lshl_add_u32 v{V_QPF}, v6, 4, v5')
    a.e(f's_and_b32 s66, s{S_LOC}, 3')
    a.e('s_mul_i32 s66, s66, 448')
    if OPT['sched'] == 3:
        a.e(f's_mul_i32 s67, s{S_W}, {(448 - OPT["hR"]) // 4}')
        a.e(f's_add_u32 s67, s67, {OPT["hR"]}')
    else:
        a.e(f's_mul_i32 s67, s{S_W}, 112')
    a.e('s_add_u32 s66, s66, s67')
    a.e('s_lshl_b32 s66, s66, 12')
    a.e(f's_lshl_b32 s67, s{S_I2}, 7')
    a.e(f's_add_u32 s{S_QPF}, s66, s67')
    a.e('v_lshrrev_b32 v4, 4, v1')
    a.e('v_bfe_u32 v5, v1, 2, 2')
    a.e('v_lshl_add_u32 v5, v4, 3, v5')
    a.e('v_lshlrev_b32 v5, 7, v5')
    a.e('v_and_b32 v6, 1, v1')
    a.e('v_lshl_add_u32 v5, v6, 3, v5')
    a.e('v_bfe_u32 v6, v1, 1, 1')
    a.e('v_lshl_add_u32 v5, v6, 4, v5')
    a.e('v_bfe_u32 v6, v1, 3, 1')
    a.e('v_and_b32 v4, 1, v4')
    a.e('v_lshl_add_u32 v6, v4, 1, v6')
    a.e(f's_and_b32 s66, s{S_LOC}, 3')
    a.e(f's_lshr_b32 s67, s{S_LOC}, 2')
    a.e('s_lshl_b32 s67, s67, 1')
    a.e('s_lshl_b32 s70, s66, 2')
    a.e('s_add_u32 s70, s70, s67')
    a.e('s_and_b32 s70, s70, 15')
    a.e(f's_mul_i32 s{S_RW1}, s70, {32*F*2}')
    a.e(f's_mul_i32 s{S_RX1}, s70, {4*7168}')
    a.e('s_mul_i32 s66, s66, 7')
    a.e('s_lshr_b32 s66, s66, 1')
    a.e('s_add_u32 s66, s66, s67')
    for _ in range(2):
        a.e('s_cmp_ge_u32 s66, 14')
        a.e('s_cselect_b32 s67, 14, 0')
        a.e('s_sub_u32 s66, s66, s67')
    a.e(f's_mul_i32 s{S_RW2}, s66, {32*L*2}')
    a.e(f's_mul_i32 s{S_RX2}, s66, {4*7168}')
    a.e(f's_lshl_b32 s{S_SA}, s{S_W}, 14')
    a.e(f's_add_u32 s{S_SA}, s{S_SA}, {L_WA}')
    a.e(f's_mul_i32 s{S_SB}, s{S_W}, 20480')
    a.e(f's_add_u32 s{S_SB}, s{S_SB}, {L_WB}')
    a.e(f's_lshl_b32 s{S_SC}, s{S_W}, 13')
    a.e(f's_add_u32 s{S_SC}, s{S_SC}, {L_WC}')
    for mu in range(4):
        a.e(f'v_xor_b32 v4, {mu}, v6')
        a.e('v_lshl_add_u32 v4, v4, 5, v5')
        a.e(f'v_add_u32 v{V_TA+mu}, s{S_SA}, v4')
        a.e(f'v_add_u32 v{V_TB+mu}, s{S_SB}, v4')
        a.e(f'v_add_u32 v{V_TC+mu}, s{S_SC}, v4')


def rot_off(a, idx, sreg, n, unit):
    a.e(f's_add_u32 s70, s{sreg}, {idx*unit}')
    a.e(f's_cmp_ge_u32 s70, {n*unit}')
    a.e(f's_cselect_b32 s71, {n*unit}, 0')
    a.e('s_sub_u32 s70, s70, s71')


def slot(name):
    return {'A': (S_SA, V_TA), 'B': (S_SB, V_TB), 'C': (S_SC, V_TC)}[name[0]] + (int(name[1]),)


def w_dma1(a, mat, slab, sl, i):
    sb, _, si = slot(sl)
    vd, srd_, rowbytes = (V_D1, S_W1, F * 2) if mat == 1 else (V_D2, S_W2, L * 2)
    if i == 0:
        rot_off(a, slab, S_RW1 if mat == 1 else S_RW2, 16 if mat == 1 else 14, 32 * rowbytes)
        a.e(f's_add_u32 m0, s{sb}, {si*4096}')
    a.e(f'buffer_load_dwordx4 v{vd + i}, s[{srd_}:{srd_+3}], s70 offen offset:{1024*i} lds')


def w_dma(a, mat, slab, sl):
    for i in range(4):
        w_dma1(a, mat, slab, sl, i)


def w_tr(a, slab, sl):
    _, vt, si = slot(sl)
    for mu in range(4):
        r = (slab * 4 + mu) * 4
        a.e(f'ds_read_b64_tr_b16 a[{r}:{r+1}], v{vt+mu} offset:{si*4096}')
        a.e(f'ds_read_b64_tr_b16 a[{r+2}:{r+3}], v{vt+mu} offset:{si*4096 + 512}')


def helper_w2(a, nrows, mid=None):
    a.e(f's_lshr_b32 s66, s{S_XCD}, 1')
    a.e('s_lshl_b32 s66, s66, 10')
    a.e(f's_sub_u32 s67, s{S_LOC}, 28')
    a.e('s_mul_i32 s67, s67, 448')
    a.e(f's_add_u32 s67, s67, s{S_W}')
    a.e('s_lshl_b32 s67, s67, 12')
    a.e('s_add_u32 s90, s66, s67')
    a.e('v_lshlrev_b32 v4, 4, v1')

    def loop(n):
        if n <= 0:
            return
        l = a.lab('l2s')
        a.e(f's_mov_b32 s91, {n}')
        a.e(f'{l}:')
        for i in range(4):
            a.e(f'buffer_load_dwordx4 v[220:223], v4, s[{S_W2}:{S_W2+3}], s90 offen')
            a.e(f's_add_u32 s90, s90, {4*L*2}')
        a.e('s_waitcnt vmcnt(8)')
        a.e('s_sub_u32 s91, s91, 1')
        a.e('s_cmp_lg_u32 s91, 0')
        a.e(f's_cbranch_scc1 {l}')

    total = nrows // 16
    if mid is None:
        loop(total)
        return
    n1, issue, check = mid
    loop(n1)
    issue()
    loop(3)
    check()
    loop(total - n1 - 3)


def qpf_load(a, n):
    for _ in range(n):
        a.e(f'buffer_load_dwordx4 v[220:223], v{V_QPF}, s[{S_W2}:{S_W2+3}], s{S_QPF} offen')
        a.e(f's_add_u32 s{S_QPF}, s{S_QPF}, {8*L*2}')


ACC = 16
XS = 80
NS = 6
VMAX = 214
V_X0, V_X3 = 208, 209


def gemm_xaddr(a, ws_off, kblocks):
    a.e(f's_mul_i32 s66, s{S_W}, {kblocks*7168}')
    a.e(f's_mul_i32 s67, s{S_J}, 896')
    a.e('s_add_u32 s66, s66, s67')
    a.e(f's_add_u32 s66, s66, {ws_off}')
    a.e('v_lshrrev_b32 v4, 4, v1')
    a.e('v_mul_u32_u24 v4, 7168, v4')
    a.e('v_add_u32 v4, s66, v4')
    a.e('v_and_b32 v5, 15, v1')
    a.e(f'v_lshl_add_u32 v{V_X0}, v5, 4, v4')
    if OPT['x3oob']:
        a.e(f'v_add_u32 v{V_X3}, 768, v{V_X0}')
        a.e(f'v_mov_b32 v4, {OOB}')
        a.e('v_cmp_gt_u32 vcc, 8, v5')
        a.e(f'v_cndmask_b32 v{V_X3}, v4, v{V_X3}, vcc')
    else:
        a.e('v_and_b32 v5, 7, v1')
        a.e('v_lshl_add_u32 v4, v5, 4, v4')
        a.e(f'v_add_u32 v{V_X3}, 768, v4')


def gemm_xloads(a, kappa, gid):
    st = XS + 16 * (kappa % NS)
    out = []
    sreg, n = (S_RX1, 16) if gid == 1 else (S_RX2, 14)
    unit = 4 * 7168
    out.append(f's_add_u32 s70, s{sreg}, {kappa*unit}')
    out.append(f's_cmp_ge_u32 s70, {n*unit}')
    out.append(f's_cselect_b32 s71, {n*unit}, 0')
    out.append('s_sub_u32 s70, s70, s71')
    for nu in range(3):
        out.append(f'buffer_load_dwordx4 v[{st+4*nu}:{st+4*nu+3}], v{V_X0}, {WSR}, s70 offen offset:{256*nu} sc1')
    out.append(f'buffer_load_dwordx4 v[{st+12}:{st+15}], v{V_X3}, {WSR}, s70 offen sc1')
    return out


def xhalf(a, kappa, h, gid):
    full = gemm_xloads(a, kappa, gid)
    return full[:4] + (full[4:6] if h == 0 else full[6:8])


def xseq(a, lo, hi, nk, gid):
    out = []
    i = lo
    while i < min(hi, 2 * nk):
        if i % 2 == 0 and i + 1 < min(hi, 2 * nk):
            out += gemm_xloads(a, i // 2, gid)
            i += 2
        else:
            out += xhalf(a, i // 2, i % 2, gid)
            i += 1
    return out


def x_ahead():
    return 2 * OPT['nfl'] + OPT['hf']


def gemm_main(a, nk, gid, tail_hook=None):
    nfl = OPT['nfl']
    w_is_a = gid == 1
    a.e(f'v_mov_b32 v{VMAX}, 0')
    extra = 0
    for k in range(nk):
        st = XS + 16 * (k % NS)
        rem = min(nfl - 1, nk - 1 - k)
        a.e(f's_waitcnt vmcnt({4*rem + extra})')
        if OPT['stamps'] and k in (0, 4, 8, 12):
            stamp(a, (44 if w_is_a else 51) + (0, 4, 8, 12).index(k))
        fill = gemm_xloads(a, k + nfl, gid) if k + nfl < nk else []
        if k + nfl == nk and tail_hook is not None:
            fill = []
            extra = tail_hook(fill)
        mx = [f'v_max3_u32 v{VMAX}, v{VMAX}, v{st+2*i}, v{st+2*i+1}' for i in range(8)]
        n = 0
        for mu in range(4):
            for nu in range(4):
                w = (k * 4 + mu) * 4
                x = st + 4 * nu
                if w_is_a:
                    acc = ACC + (mu * 4 + nu) * 4
                    A, B = f'a[{w}:{w+3}]', f'v[{x}:{x+3}]'
                else:
                    acc = ACC + (nu * 4 + mu) * 4
                    A, B = f'v[{x}:{x+3}]', f'a[{w}:{w+3}]'
                cc = '0' if k == 0 else f'v[{acc}:{acc+3}]'
                a.e(f'v_mfma_f32_16x16x32_bf16 v[{acc}:{acc+3}], {A}, {B}, {cc}')
                for _ in range(2):
                    if fill:
                        a.e(fill.pop(0))
                if not fill and mx and n >= 4:
                    a.e(mx.pop(0))
                n += 1
        assert not fill and not mx


def capture(fn):
    p = Prog()
    fn(p)
    return [it.text for it in p.items]


STUBS = []


def mfma_line(k, mu, nu, gid):
    st = XS + 16 * (k % NS)
    w = (k * 4 + mu) * 4
    x = st + 4 * nu
    if gid == 1:
        acc = ACC + (mu * 4 + nu) * 4
        A, B = f'a[{w}:{w+3}]', f'v[{x}:{x+3}]'
    else:
        acc = ACC + (nu * 4 + mu) * 4
        A, B = f'v[{x}:{x+3}]', f'a[{w}:{w+3}]'
    cc = '0' if k == 0 else f'v[{acc}:{acc+3}]'
    return f'v_mfma_f32_16x16x32_bf16 v[{acc}:{acc+3}], {A}, {B}, {cc}'


def poison_check(k):
    st = XS + 16 * (k % NS)
    out = [f'v_max3_u32 v{VMAX}, v{st}, v{st+1}, v{st+2}']
    for i in range(6):
        out.append(f'v_max3_u32 v{VMAX}, v{VMAX}, v{st+3+2*i}, v{st+4+2*i}')
    out.append(f'v_max_u32 v{VMAX}, v{VMAX}, v{st+15}')
    out.append(f'v_cmp_eq_u32 vcc, -1, v{VMAX}')
    return out


def is_scalar(x):
    return x.startswith('s_')


def emit_gaps(a, mf, fillers):
    q = list(fillers)
    for i, m in enumerate(mf):
        a.e(m)
        nv = ns = 0
        left = len(mf) - 1 - i
        while q:
            x = q[0]
            if is_scalar(x):
                if ns >= 1 and left > 0:
                    break
                ns += 1
            else:
                if nv >= 2 and left > 0:
                    break
                nv += 1
            a.e(q.pop(0))
    assert not q


def gemm_gap_loop(a, nk, gid, slow, tail_hook, side):
    assert OPT['hf'] == 0
    nfl = OPT['nfl']
    extra = 0

    def xl(kappa):
        return [x.replace('s70', 's92').replace('s71', 's93') for x in gemm_xloads(a, kappa, gid)]

    for k in range(nk):
        lines = [mfma_line(k, mu, nu, gid) for mu in range(4) for nu in range(4)]
        kn = k + 1
        nxt = xl(kn + nfl) if (kn < nk and kn + nfl < nk) else []
        first = nxt[:4]
        if side is not None:
            lines_, nvm = side(k)
            first = first + lines_
            extra += nvm
        emit_gaps(a, lines[:8], first)
        second = []
        if kn < nk:
            rem = min(nfl - 1, nk - 1 - kn)
            a.e(f's_waitcnt vmcnt({4*rem + extra})')
            if OPT['stamps'] and kn in (4, 8, 12):
                stamp(a, (44 if gid == 1 else 51) + (0, 4, 8, 12).index(kn))
            loads = nxt[4:]
            if kn + nfl == nk and tail_hook is not None:
                t = []
                extra += tail_hook(t)
                loads = [x.replace('s70', 's92') for x in t]
            chk = poison_check(kn)
            while loads or chk:
                if loads:
                    x = loads.pop(0)
                    second.append(x)
                    if is_scalar(x):
                        continue
                if chk:
                    second.append(chk.pop(0))
                    if not loads and chk:
                        second.append(chk.pop(0))
        emit_gaps(a, lines[8:], second)
        if kn < nk:
            ls, lb = slow(kn)
            a.e(f's_cbranch_vccnz {ls}')
            a.e(f'{lb}:')


def gemm_checked(a, nk, gid, sb, tail_hook=None, side=None, issued=False):
    nfl = OPT['nfl']

    def slow(k):
        ls, lb, lp = a.lab('slow'), a.lab('back'), a.lab('sloop')

        def emit():
            a.e(f'{ls}:')
            a.e(f's_mov_b32 s{S_SPIN}, 0')
            a.e(f'{lp}:')
            for x in gemm_xloads(a, k, gid):
                a.e(x)
            a.e('s_waitcnt vmcnt(0)')
            for x in poison_check(k):
                a.e(x)
            ldone = a.lab('sdone')
            a.e(f's_cbranch_vccz {ldone}')
            spin_tail(a, lp)
            a.e(f'{ldone}:')
            if k == 0:
                for x in xseq(a, 2, x_ahead() + 2, nk, gid):
                    a.e(x)
            a.e(f's_branch {lb}')
        STUBS.append(emit)
        return ls, lb

    ah = x_ahead()
    if not issued:
        for x in xseq(a, 0, ah, nk, gid):
            a.e(x)
    a.e(f's_waitcnt vmcnt({2*(ah-2)})')
    for x in xseq(a, ah, ah + 2, nk, gid):
        a.e(x)
    for x in poison_check(0):
        a.e(x)
    ls, lb = slow(0)
    a.e(f's_cbranch_vccnz {ls}')
    a.e(f'{lb}:')
    if OPT['gap']:
        stamp(a, sb)
        gemm_gap_loop(a, nk, gid, slow, tail_hook, side)
        return
    stamp(a, sb)
    nvm_at = {}
    for k in range(nk):
        lines = [mfma_line(k, mu, nu, gid) for mu in range(4) for nu in range(4)]
        for i in range(8):
            a.e(lines[i])
        if k + 1 < nk:
            kn = k + 1
            issued_h = min(ah + 2 * kn, 2 * nk)
            extra = sum(n for t, n in nvm_at.items() if t >= kn - nfl - (1 if OPT['hf'] else 0))
            a.e(f's_waitcnt vmcnt({2*(issued_h - 2*kn - 2) + extra})')
            if OPT['stamps'] and kn in (4, 8, 12):
                stamp(a, (44 if gid == 1 else 51) + (0, 4, 8, 12).index(kn))
            fill = xseq(a, issued_h, issued_h + 2, nk, gid)
            if kn + nfl == nk and tail_hook is not None:
                assert issued_h + 2 >= 2 * nk
                nvm_at[kn] = nvm_at.get(kn, 0) + tail_hook(fill)
            if side is not None:
                lines_, nvm = side(kn)
                fill += lines_
                nvm_at[kn] = nvm_at.get(kn, 0) + nvm
            fill += poison_check(kn)
        else:
            fill = []
        per = -(-len(fill) // 8)
        for i in range(8, 16):
            a.e(lines[i])
            for _ in range(per):
                if fill:
                    a.e(fill.pop(0))
        assert not fill
        if k + 1 < nk:
            ls, lb = slow(k + 1)
            a.e(f's_cbranch_vccnz {ls}')
            a.e(f'{lb}:')


def sentinel(a, ws_off, kblocks):
    lp, ld = a.lab('spoll'), a.lab('sdone')
    a.e(f's_mul_i32 s66, s{S_W}, {kblocks*7168}')
    a.e(f's_mul_i32 s67, s{S_J}, 896')
    a.e('s_add_u32 s66, s66, s67')
    a.e(f's_add_u32 s66, s66, {ws_off + 55*16 + 12}')
    a.e('v_mul_u32_u24 v4, 7168, v1')
    a.e('v_add_u32 v4, s66, v4')
    if kblocks < 64:
        mask_lanes(a, 4, kblocks, 5)
    a.e(f's_mov_b32 s{S_SPIN}, 0')
    a.e(f'{lp}:')
    a.e(f'buffer_load_dword v5, v4, {WSR}, 0 offen sc1')
    a.e('s_waitcnt vmcnt(0)')
    a.e('v_cmp_eq_u32 vcc, -1, v5')
    a.e(f's_cbranch_vccz {ld}')
    spin_tail(a, lp)
    a.e(f'{ld}:')


def gemm_first_loads(a, ws_off, kblocks, gid):
    gemm_xaddr(a, ws_off, kblocks)
    for x in xseq(a, 0, x_ahead(), 16 if gid == 1 else 14, gid):
        a.e(x)
    return 2 * x_ahead()


def gemm_poll_main(a, ws_off, kblocks, nk, gid, sb, tail_hook=None, side=None, issued=False):
    lr, lok = a.lab('gretry'), a.lab('gok')
    if not issued:
        gemm_xaddr(a, ws_off, kblocks)
    if OPT['stchk']:
        gemm_checked(a, nk, gid, sb, tail_hook, side, issued)
        return
    a.e(f's_mov_b32 s{S_RETRY}, 0')
    a.e(f'{lr}:')
    sentinel(a, ws_off, kblocks)
    stamp(a, sb)
    for k in range(OPT['nfl']):
        for x in gemm_xloads(a, k, gid):
            a.e(x)
    gemm_main(a, nk, gid, tail_hook)
    a.e(f'v_cmp_eq_u32 vcc, -1, v{VMAX}')
    a.e(f's_cbranch_vccz {lok}')
    a.e(f's_add_u32 s{S_RETRY}, s{S_RETRY}, 1')
    a.e(f's_cmp_lt_u32 s{S_RETRY}, {RETRY_MAX}')
    a.e(f's_cbranch_scc1 {lr}')
    a.e(f'{lok}:')


def write_partials(a):
    if OPT['hoist']:
        va = 241
    else:
        va = 4
        a.e('v_and_b32 v4, 15, v1')
        a.e(f'v_mul_u32_u24 v4, {PROW}, v4')
        a.e('v_lshrrev_b32 v5, 4, v1')
        a.e('v_lshl_add_u32 v4, v5, 4, v4')
        a.e(f's_mul_i32 s66, s{S_W}, {PARTW}')
        a.e(f's_add_u32 s66, s66, {L_PART}')
        a.e('v_add_u32 v4, s66, v4')
    if not OPT['prebar']:
        a.e('s_barrier')
    for mt in range(4):
        for nt in range(4):
            acc = ACC + (mt * 4 + nt) * 4
            a.e(f'ds_write_b128 v{va}, v[{acc}:{acc+3}] offset:{nt*16*PROW + mt*64}')


def sum_partials(a, P):
    for h in range(4):
        a.e(f'v_pk_add_f32 v[{P+2*h}:{P+2*h+1}], v[{P+2*h}:{P+2*h+1}], v[{P+8+2*h}:{P+9+2*h}]')
        a.e(f'v_pk_add_f32 v[{P+16+2*h}:{P+17+2*h}], v[{P+16+2*h}:{P+17+2*h}], v[{P+24+2*h}:{P+25+2*h}]')
    for h in range(4):
        a.e(f'v_pk_add_f32 v[{P+2*h}:{P+2*h+1}], v[{P+2*h}:{P+2*h+1}], v[{P+16+2*h}:{P+17+2*h}]')


def b1_load(a):
    a.e(f's_lshl_b32 s67, s{S_I1}, 7')
    a.e(f's_lshl_b32 s70, s{S_W}, 5')
    a.e('s_add_u32 s67, s67, s70')
    a.e(f's_load_dwordx8 s[72:79], s[{P_B1}:{P_B1+1}], s67')


def gemm1_epilogue(a, d0=(), d1=()):
    write_partials(a)
    if OPT['hoist']:
        VR1, VG1 = 242, 240
    else:
        VR1, VG1 = 4, 5
        a.e(f'v_mul_u32_u24 v4, {PROW}, v1')
        a.e(f's_lshl_b32 s66, s{S_W}, 6')
        a.e(f's_add_u32 s66, s66, {L_PART}')
        a.e('v_add_u32 v4, s66, v4')
        g_store_addr(a, 5)
    C1 = 0.044715
    C2 = -2.0 * 0.7978845608028654 * 1.4426950408889634
    a.e(f'v_mov_b32 v100, {fx(C1*C2)}')
    a.e(f'v_mov_b32 v101, {fx(C1*C2)}')
    a.e(f'v_mov_b32 v102, {fx(C2)}')
    a.e(f'v_mov_b32 v103, {fx(C2)}')
    a.e('s_waitcnt lgkmcnt(0)')
    a.e('s_barrier')
    stamp(a, 24)
    for r in range(2):
        P = 16 + 32 * r
        for wv in range(4):
            a.e(f'ds_read_b128 v[{P+8*wv}:{P+8*wv+3}], v{VR1} offset:{wv*PARTW + r*32}')
            a.e(f'ds_read_b128 v[{P+8*wv+4}:{P+8*wv+7}], v{VR1} offset:{wv*PARTW + r*32 + 16}')
    for i in range(8):
        a.e(f's_lshl_b32 s{80+2*i}, s{72+i}, 16')
        a.e(f's_and_b32 s{81+2*i}, s{72+i}, 0xffff0000')
    for r in range(2):
        P = 16 + 32 * r
        T = 80
        a.e(f's_waitcnt lgkmcnt({8 if r == 0 else 0})')
        if r == 1 and d1:
            a.e('s_barrier')
        dd = d0 if r == 0 else d1
        if dd:
            a.inject(dd, max(1, 80 // len(dd)))
        sum_partials(a, P)
        round_pairs(a, P, T, 8)
        for h in range(4):
            a.e(f'v_pk_add_f32 v[{P+2*h}:{P+2*h+1}], v[{P+2*h}:{P+2*h+1}], s[{80+8*r+2*h}:{81+8*r+2*h}]')
        round_pairs(a, P, T, 8)
        for h in range(4):
            a.e(f'v_pk_mul_f32 v[{P+8+2*h}:{P+9+2*h}], v[{P+2*h}:{P+2*h+1}], v[{P+2*h}:{P+2*h+1}]')
        for h in range(4):
            a.e(f'v_pk_fma_f32 v[{P+8+2*h}:{P+9+2*h}], v[{P+8+2*h}:{P+9+2*h}], v[100:101], v[102:103]')
        for h in range(4):
            a.e(f'v_pk_mul_f32 v[{P+8+2*h}:{P+9+2*h}], v[{P+8+2*h}:{P+9+2*h}], v[{P+2*h}:{P+2*h+1}]')
        for i in range(8):
            a.e(f'v_exp_f32 v{P+8+i}, v{P+8+i}')
        for h in range(4):
            a.e(f'v_pk_add_f32 v[{P+8+2*h}:{P+9+2*h}], v[{P+8+2*h}:{P+9+2*h}], 1.0 op_sel_hi:[1,0]')
        for i in range(8):
            a.e(f'v_rcp_f32 v{P+8+i}, v{P+8+i}')
        for h in range(4):
            a.e(f'v_pk_mul_f32 v[{P+2*h}:{P+2*h+1}], v[{P+2*h}:{P+2*h+1}], v[{P+8+2*h}:{P+9+2*h}]')
        O = 88 + 4 * r
        for h in range(4):
            a.e(f'v_cvt_pk_bf16_f32 v{O+h}, v{P+2*h}, v{P+2*h+1}')
        a.inj_flush()
        if r == 1:
            a.e(f'v_add_u32 v{VG1}, 7168, v{VG1}')
        a.e(f'buffer_store_dwordx4 v[{O}:{O+3}], v{VG1}, {WSR}, 0 offen sc1')


V_OUT, V_HAD, V_B2 = 210, 211, 212
V_HR = 196


def gemm2_addr(a):
    srd(a, S_T2, P_OUT, XBYTES)
    srd(a, S_T3, P_B2, L * 2)
    a.e('v_lshrrev_b32 v4, 3, v1')
    a.e('v_and_b32 v5, 7, v1')
    a.e(f's_lshl_b32 s66, s{S_W}, 4')
    a.e('v_add_u32 v4, s66, v4')
    a.e(f's_lshl_b32 s67, s{S_I2}, 6')
    a.e('v_add_u32 v7, s67, v4')
    a.e(f'v_mul_u32_u24 v{V_OUT}, 896, v7')
    a.e(f'v_lshl_add_u32 v{V_OUT}, v5, 4, v{V_OUT}')
    a.e(f's_mul_i32 s70, s{S_J}, 112')
    a.e(f'v_add_u32 v{V_OUT}, s70, v{V_OUT}')
    a.e(f'v_mov_b32 v6, {OOB}')
    a.e('v_cmp_gt_u32 vcc, 7, v5')
    a.e(f'v_cndmask_b32 v{V_OUT}, v6, v{V_OUT}, vcc')
    a.e(f'v_add_u32 v{V_HAD}, {WS_H}, v{V_OUT}')
    a.e(f'v_lshlrev_b32 v{V_B2}, 1, v7')


def gemm2_tail_loads(fill):
    fill.append(f'buffer_load_dwordx4 v[{V_HR}:{V_HR+3}], v{V_HAD}, {WSR}, 0 offen sc1')
    fill.append(f's_mov_b32 s70, {8*896}')
    fill.append(f'buffer_load_dwordx4 v[{V_HR+4}:{V_HR+7}], v{V_HAD}, {WSR}, s70 offen sc1')
    fill.append(f'buffer_load_ushort v{V_HR+8}, v{V_B2}, s[{S_T3}:{S_T3+3}], 0 offen')
    fill.append(f'buffer_load_ushort v{V_HR+9}, v{V_B2}, s[{S_T3}:{S_T3+3}], 0 offen offset:16')
    return 4


def gemm2_epilogue(a):
    write_partials(a)
    if OPT['hoist']:
        VR2 = 243
    else:
        VR2 = 6
        a.e('v_lshrrev_b32 v4, 3, v1')
        a.e('v_and_b32 v5, 7, v1')
        a.e(f's_lshl_b32 s66, s{S_W}, 4')
        a.e('v_add_u32 v4, s66, v4')
        a.e(f'v_mul_u32_u24 v6, {PROW}, v4')
        a.e('v_lshl_add_u32 v6, v5, 4, v6')
        a.e(f'v_add_u32 v6, {L_PART}, v6')
    a.e('s_waitcnt lgkmcnt(0)')
    a.e('s_barrier')
    stamp(a, 33)
    for r in range(2):
        P = 16 + 32 * r
        for wv in range(4):
            a.e(f'ds_read_b128 v[{P+8*wv}:{P+8*wv+3}], v{VR2} offset:{wv*PARTW + r*8*PROW}')
            a.e(f'ds_read_b128 v[{P+8*wv+4}:{P+8*wv+7}], v{VR2} offset:{wv*PARTW + r*8*PROW + 112}')
    a.e('s_waitcnt vmcnt(0)')
    for r in range(2):
        P = 16 + 32 * r
        T = 80
        H = V_HR + 4 * r
        a.e(f'v_lshlrev_b32 v106, 16, v{V_HR+8+r}')
        for i in range(4):
            a.e(f'v_lshlrev_b32 v{96+i}, 16, v{H+i}')
            a.e(f'v_and_b32 v{100+i}, 0xffff0000, v{H+i}')
        a.e(f's_waitcnt lgkmcnt({8 if r == 0 else 0})')
        sum_partials(a, P)
        round_pairs(a, P, T, 8)
        for h in range(4):
            a.e(f'v_pk_add_f32 v[{P+2*h}:{P+2*h+1}], v[{P+2*h}:{P+2*h+1}], v[106:107] op_sel:[0,0] op_sel_hi:[1,0]')
        round_pairs(a, P, T, 8)
        for h in range(4):
            a.e(f'v_pk_add_f32 v[{P+2*h}:{P+2*h+1}], v[{P+2*h}:{P+2*h+1}], v[{96+2*h}:{97+2*h}]')
        O = 88 + 4 * r
        for i in range(4):
            a.e(f'v_cvt_pk_bf16_f32 v{O+i}, v{P+i}, v{P+4+i}')
        if r == 1:
            a.e(f'v_add_u32 v{V_OUT}, {8*896}, v{V_OUT}')
        a.e(f'buffer_store_dwordx4 v[{O}:{O+3}], v{V_OUT}, s[{S_T2}:{S_T2+3}], 0 offen' + ['', ' sc1', ' nt', ' sc0 sc1', ' sc1 nt'][OPT['outsc']])


HEADER = """;
"""


def build():
    a = Prog()
    name = NAME + '_kernel'
    lend = a.lab('end')
    a.raw(f'.globl {name}')
    a.raw('.p2align 8')
    a.raw(f'.type {name},@function')
    a.raw(f'{name}:')
    prologue(a, lend)
    lnc1, lnc2, lnc3, lnc5, lnc6 = [a.lab('noconv') for _ in range(5)]

    def skip_if_helper(l):
        a.e(f's_cmp_ge_u32 s{S_LOC}, 28')
        a.e(f's_cbranch_scc1 {l}')

    load_xrows(a)
    ncp = 0
    if OPT['cpf'] & 2:
        code_prefetch1(a, name, 'kcode_end')
        ncp = 1
    a.e(f's_add_u32 s66, s{P_WS}, {WS_EPOCH}')
    a.e(f's_addc_u32 s67, s{P_WS+1}, 0')
    a.e('s_load_dword s99, s[66:67], 0')
    poison_regs(a)
    skip_if_helper(lnc1)
    nt = 0
    if not OPT['plate']:
        kgen_loads(a)
        load_gather_table(a, 'ktab_idx')
        w_setup(a)
        if OPT['tlb'] & 2:
            nt = tlb_touch(a)
        flag_addr(a)
        if OPT['hoist']:
            hoist_common(a)
            hoist_conv(a)
        a.e('s_waitcnt lgkmcnt(0)')
        a.e(f's_add_u32 s{S_TAG}, s99, 0x9e3779b9')
        a.e(f's_waitcnt vmcnt({10 + nt + ncp})')
        stamp(a, 2)
        clear_hh(a)
        clear_aout(a)
    else:
        kgen_loads(a, 'setup')
        w_setup(a)
        flag_addr(a)
        a.e(f's_waitcnt vmcnt({ncp})')
        stamp(a, 2)
        kgen_loads(a, 'issue')
        clear_hh(a)
        clear_aout(a)
        load_gather_table(a, 'ktab_idx')
        if OPT['tlb'] & 2:
            nt = tlb_touch(a)
        a.e('s_waitcnt lgkmcnt(0)')
        a.e(f's_add_u32 s{S_TAG}, s99, 0x9e3779b9')
    ln_stats(a, list(range(8, 16)), 16, L_RED0, 5)
    stamp(a, 3)
    publish_xn(a)
    nb0 = OPT['wb0']
    if OPT['sched'] == 2:
        qa, qb = OPT['qa'], OPT['qb']
        qpf_load(a, qa)
        stamp(a, 4)
        a.e(f's_waitcnt vmcnt({8 + nt + qa})')
        kgen_channel(a, 0, DK0)
        for k in range(nb0):
            w_dma(a, 1, k, BS[k])
        stamp(a, 40)
        kgen_channel(a, 1, DK1, mid=lambda: publish_flag(a, qa + 4 * nb0), mid_m0=False)
        stamp(a, 5)
        qpf_load(a, qb)
        a.e(f's_waitcnt vmcnt({qb})')
        for k in range(nb0):
            w_tr(a, k, BS[k])
        ktab_part1(a)
        stamp(a, 6)
        flag_load(a)
        ktab_part2(a)
        stamp(a, 7)
        a.e(f's_mov_b32 s{S_EARLY}, 0')
        lne = a.lab('notearly')
        a.e('s_waitcnt vmcnt(0)')
        a.e(f'v_cmp_ne_u32 vcc, s{S_TAG}, v{V_FV}')
        a.e(f's_cbranch_vccnz {lne}')
        load_u(a)
        a.e(f's_mov_b32 s{S_EARLY}, 1')
        a.e(f'{lne}:')
        conv_addr(a)
        kcopies(a)
        stamp(a, 8)
        lhave = a.lab('haveu')
        a.e(f's_cmp_lg_u32 s{S_EARLY}, 0')
        a.e(f's_cbranch_scc1 {lhave}')
        flag_poll(a)
        load_u(a)
        a.e(f'{lhave}:')
        stamp(a, 9)
        store_u(a, 0)
    elif OPT['sched'] == 3:
        nq = (448 - OPT['hR']) // 32
        ne = 0
        if OPT['cearly']:
            assert OPT['regc']
            for k in range(2):
                w_dma(a, 1, k, f'C{k}')
            q4 = min(OPT['q4'], nq)
            qpf_load(a, q4)
            ne = 8 + q4
            nq -= q4
        stamp(a, 4)
        a.e(f's_waitcnt vmcnt({8 + nt + ne})')
        m0 = kgen_channel(a, 0, DK0, defer=bool(OPT['kdefer']))
        if not OPT['flagmid']:
            publish_flag(a, ne)
        if OPT['regc']:
            nb0 = 2
            if not OPT['cearly'] and not OPT['clate']:
                for k in range(2):
                    w_dma(a, 1, k, f'C{k}')
        else:
            for k in range(nb0):
                w_dma(a, 1, k, BS[k])
        if OPT['cearly']:
            qpf_load(a, nq)
            nq = 0
        stamp(a, 40)
        if OPT['flagmid']:
            assert OPT['regc'] and not OPT['cearly']
            kgen_channel(a, 1, DK1, mid=lambda: publish_flag(a, 8), mid_m0=False)
        else:
            kgen_channel(a, 1, DK1, after_setup=m0)
        stamp(a, 5)
        flag_load(a)
        nq_late = 0
        if OPT['clate']:
            nq_late, nq = nq, 0
        qpf_load(a, nq)
        if not OPT['regc']:
            a.e(f's_waitcnt vmcnt({nq + 1})')
            for k in range(nb0):
                w_tr(a, k, BS[k])
        ktab_part1(a)
        stamp(a, 6)
        a.e(f's_mov_b32 s{S_EARLY}, 0')
        lne = a.lab('notearly')
        a.e(f's_waitcnt vmcnt({nq})')
        a.e(f'v_cmp_ne_u32 vcc, s{S_TAG}, v{V_FV}')

        def early_u():
            a.e(f's_cbranch_vccnz {lne}')
            load_u(a)
            a.e(f's_mov_b32 s{S_EARLY}, 1')
            a.e(f'{lne}:')
        if OPT['uov']:
            assert OPT['hoist']
            ktab_part2(a, mid=early_u)
        else:
            early_u()
            ktab_part2(a)
        stamp(a, 7)
        if not OPT['hoist']:
            conv_addr(a)
        kcopies(a)
        stamp(a, 8)
        lhave = a.lab('haveu')
        a.e(f's_cmp_lg_u32 s{S_EARLY}, 0')
        a.e(f's_cbranch_scc1 {lhave}')
        flag_poll(a)
        load_u(a)
        a.e(f'{lhave}:')
        stamp(a, 9)
        nlate = 0
        if OPT['clate']:
            for k in range(2):
                w_dma(a, 1, k, f'C{k}')
            qpf_load(a, nq_late)
            nlate = 8 + nq_late
        store_u(a, nlate)
    else:
        stamp(a, 4)
        a.e(f's_waitcnt vmcnt({8 + nt})')
        kgen_channel(a, 0, DK0)
        publish_flag(a)
        for k in range(min(nb0, 3)):
            w_dma(a, 1, k, BS[k])
        stamp(a, 40)
        kgen_channel(a, 1, DK1, mid=(lambda: [w_dma(a, 1, k, BS[k]) for k in range(3, nb0)]) if nb0 > 3 else None)
        stamp(a, 5)
        if OPT['early']:
            flag_load(a)
            a.e('s_waitcnt vmcnt(1)')
        else:
            a.e('s_waitcnt vmcnt(0)')
        for k in range(nb0):
            w_tr(a, k, BS[k])
        ktab_part1(a)
        stamp(a, 6)
        a.e(f's_mov_b32 s{S_EARLY}, 0')
        lne = a.lab('notearly')
        if OPT['early']:
            a.e('s_waitcnt vmcnt(0)')
            a.e(f'v_cmp_ne_u32 vcc, s{S_TAG}, v{V_FV}')
            a.e(f's_cbranch_vccnz {lne}')
            load_u(a)
            a.e(f's_mov_b32 s{S_EARLY}, 1')
            a.e(f'{lne}:')
        qpf_load(a, OPT['w2pf_a'])
        ktab_part2(a)
        stamp(a, 7)
        if not OPT['hoist']:
            conv_addr(a)
        kcopies(a)
        stamp(a, 8)
        lhave = a.lab('haveu')
        a.e(f's_cmp_lg_u32 s{S_EARLY}, 0')
        a.e(f's_cbranch_scc1 {lhave}')
        flag_poll(a)
        load_u(a)
        a.e('s_waitcnt vmcnt(0)')
        a.e(f'{lhave}:')
        stamp(a, 9)
        store_u(a, OPT['w2pf_a'])
    epoch_update(a)
    clear_g(a)
    if OPT['sched'] == 1:
        qpf_load(a, OPT['w2pf_b'])
    stamp(a, 10)
    hk = []
    cre = OPT['cre'] and OPT['regc']
    if cre:
        for k in range(2):
            w_tr(a, k, f'C{k}')
        for k, sl in enumerate(AS + ['C0', 'C1']):
            for i in range(4):
                hk.append(lambda k=k, sl=sl, i=i: w_dma1(a, 1, 2 + k, sl, i))
                if i % 2 == 1:
                    hk.append(lambda: None)
    else:
        for k in range(4):
            for i in range(4):
                hk.append(lambda k=k, i=i: w_dma1(a, 1, nb0 + k, AS[k], i))
                hk.append(lambda: None)
    if OPT['nohk']:
        hk = []
    elif OPT['hkpos'] == 1:
        hk = [h for i, h in enumerate(hk) if i % 2 == 0]
    elif OPT['hkpos'] == 2:
        hk = [lambda: None] * 18 + [h for i, h in enumerate(hk) if i % 2 == 0]
    ndma = 0 if OPT['nohk'] else (24 if cre else 16)
    if OPT['cvvm']:
        phase_conv(a, hk, ndma)
        stamp(a, 12)
        a.e('s_waitcnt vmcnt(2)')
    else:
        phase_conv(a, hk, 0)
        stamp(a, 12)
    if cre:
        for k, sl in enumerate(AS + ['C0', 'C1']):
            w_tr(a, 2 + k, sl)
        nb0 = 4
    else:
        if OPT['regc']:
            for k in range(2):
                w_tr(a, k, f'C{k}')
        for k in range(4):
            w_tr(a, nb0 + k, AS[k])
    a.e('s_waitcnt lgkmcnt(0)')
    a.e('s_barrier')
    rest = list(range(nb0 + 4, 16))
    last = None
    if len(rest) > 9:
        last = rest.pop()
    rest_slots = (BS + AS)[:len(rest)]
    p4d = []
    if OPT['p4dma']:
        assert OPT['hpriv']
        p4d = [lambda k=k, sl=sl, i=i: w_dma1(a, 1, k, sl, i) for k, sl in zip(rest, rest_slots) for i in range(4)]
    elif OPT['h2e']:
        lh2p, lh2d = a.lab('h2poll0'), a.lab('h2done')
        p4_pre(a)
        n1 = OPT['h2n']
        for k, sl in list(zip(rest, rest_slots))[:n1]:
            w_dma(a, 1, k, sl)
        p4_loads(a)
        for k, sl in list(zip(rest, rest_slots))[n1:]:
            w_dma(a, 1, k, sl)
        a.e(f's_waitcnt vmcnt({4 * (len(rest) - n1)})')
        p4_check(a)
        stamp(a, 13)
        a.e(f's_cbranch_vccz {lh2d}')
        a.e(f's_branch {lh2p}')
    else:
        for k, sl in zip(rest, rest_slots):
            w_dma(a, 1, k, sl)
    if not (OPT['h2e'] and not OPT['p4dma']):
        stamp(a, 13)
        a.e(f's_branch {lnc2}')
    a.e(f'{lnc1}:')
    nh = 0
    if OPT['cpf'] & 1:
        code_prefetch(a, name, 'kcode_end')
        nh += 3
    w_setup(a)
    if OPT['tlb'] & 1:
        nh += tlb_touch(a)
    flag_addr(a)
    if OPT['hoist']:
        hoist_common(a)
    a.e('s_waitcnt lgkmcnt(0)')
    a.e(f's_add_u32 s{S_TAG}, s99, 0x9e3779b9')
    a.e(f's_waitcnt vmcnt({nh + ncp})')
    clear_hh(a)
    ln_stats(a, list(range(8, 16)), 16, L_RED0, 5)
    publish_xn(a)
    publish_flag(a)
    if OPT['sched'] == 3 and OPT['hsplit']:
        qpf_load(a, (448 - OPT['hR']) // 32)

        def hcheck():
            lok = a.lab('hflags')
            a.e(f'v_cmp_ne_u32 vcc, s{S_TAG}, v{V_FV}')
            a.e(f's_cbranch_vccz {lok}')
            flag_poll(a)
            a.e(f'{lok}:')
            a.e('s_barrier')
        helper_w2(a, OPT['hR'], mid=(OPT['hn1'], lambda: flag_load(a), hcheck))
        stamp(a, 41)
    else:
        if OPT['sched'] == 3:
            qpf_load(a, (448 - OPT['hR']) // 32)
            helper_w2(a, OPT['hR'])
        else:
            qpf_load(a, 14)
        stamp(a, 41)
        flag_poll(a)
        a.e('s_barrier')
    if p4d:
        a.e(f's_mov_b32 s{S_W1+2}, 0')
    stamp(a, 42)
    if OPT['h2e'] and not OPT['p4dma']:
        p4_pre(a)
        phase_p4(a, p4d, pre_done=(lh2p, lh2d))
    else:
        a.e(f'{lnc2}:')
        phase_p4(a, p4d)
    stamp(a, 20)
    gemm2_addr(a)
    skip_if_helper(lnc3)
    b1_load(a)
    if p4d:
        a.e('s_waitcnt vmcnt(2)')
    for k, sl in zip(rest, rest_slots):
        w_tr(a, k, sl)
    a.e('s_waitcnt lgkmcnt(0)')
    if last is not None:
        w_dma(a, 1, last, 'A0')
    for k in range(5):
        w_dma(a, 2, k, BS[k])
    nx1 = gemm_first_loads(a, WS_HH, 64, 1) if OPT['xe1'] else 0
    if last is not None:
        a.e(f's_waitcnt vmcnt({20 + nx1})')
        w_tr(a, last, 'A0')
        a.e('s_waitcnt lgkmcnt(0)')
    if OPT['prebar']:
        a.e('s_barrier')
    stamp(a, 21)
    w2sh = OPT['w2sh'] and OPT['stchk'] and OPT['h4early']
    g2in = OPT['g2in'] and w2sh and not OPT['e1dma'] and not OPT['gap'] and OPT['prebar']

    def side1(kn):
        if OPT['gap'] and kn == 16:
            return [], 0
        if 6 <= kn <= 10:
            return capture(lambda p: w_tr(p, kn - 6, BS[kn - 6])), 0
        if 13 <= kn <= 15:
            pre = ['s_waitcnt lgkmcnt(0)'] if kn == 13 else []
            return pre + capture(lambda p: w_dma(p, 2, kn - 8, BS[kn - 13])), 4
        return [], 0

    gemm_poll_main(a, WS_HH, 64, 16, 1, 22, side=side1 if w2sh else None, issued=bool(OPT['xe1']))
    stamp(a, 23)
    if OPT['h4early']:
        if not w2sh:
            for k in range(5):
                w_tr(a, k, BS[k])
            a.e('s_waitcnt lgkmcnt(0)')
            for k in range(5, 5 + OPT['npre']):
                w_dma(a, 2, k, BS[k - 5])
        if OPT['e1dma']:
            d0 = [lambda k=k, i=i: w_dma1(a, 2, k, BS[k - 5], i) for k in range(8, 10) for i in range(4)]
            d1 = [lambda k=k, i=i: w_dma1(a, 2, k, AS[k - 10], i) for k in range(10, 14) for i in range(4)]
            gemm1_epilogue(a, d0, d1)
            stamp(a, 25)
            w1, w2, w3 = 26, 18, 1
        else:
            gemm1_epilogue(a)
            stamp(a, 25)
            npre = 3 if w2sh else OPT['npre']
            for k in range(5 + npre, 10):
                w_dma(a, 2, k, BS[k - 5])
            if not g2in:
                a.e('s_barrier')
                for k in range(10, 14):
                    w_dma(a, 2, k, AS[k - 10])
            w1, w2, w3 = 24 + (0 if npre < 3 else 0), 16, 0
            w1 = 26 if npre == 3 else 24
            if g2in:
                w1, w2 = w1 - 16, 0
        if OPT['xe2']:
            nx2 = gemm_first_loads(a, WS_G, 56, 2)
            w1, w2, w3 = w1 + nx2, w2 + nx2, w3 + nx2
        a.e(f's_waitcnt vmcnt({w1})')
        for k in range(5, 8):
            w_tr(a, k, BS[k - 5])
        a.e(f's_waitcnt vmcnt({w2})')
        for k in range(8, 10):
            w_tr(a, k, BS[k - 5])
        if not g2in:
            a.e(f's_waitcnt vmcnt({w3})')
            for k in range(10, 14):
                w_tr(a, k, AS[k - 10])
        a.e('s_waitcnt lgkmcnt(0)')
        a.e(f's_branch {lnc6}')
    else:
        gemm1_epilogue(a)
        stamp(a, 25)
        for k in range(5):
            w_tr(a, k, BS[k])
        a.e('s_waitcnt lgkmcnt(0)')
        a.e('s_barrier')
        a.e(f's_branch {lnc5}')
    a.e(f'{lnc3}:')
    for k in range(5):
        w_dma(a, 2, k, BS[k])
    a.e('s_waitcnt vmcnt(0)')
    for k in range(5):
        w_tr(a, k, BS[k])
    a.e('s_waitcnt lgkmcnt(0)')
    a.e(f'{lnc5}:')
    for k in range(5, 10):
        w_dma(a, 2, k, BS[k - 5])
    if not g2in:
        for k in range(10, 14):
            w_dma(a, 2, k, AS[k - 10])
    nx2 = gemm_first_loads(a, WS_G, 56, 2) if OPT['xe2'] else 0
    a.e(f's_waitcnt vmcnt({(0 if g2in else 16) + nx2})')
    for k in range(5, 10):
        w_tr(a, k, BS[k - 5])
    if not g2in:
        a.e(f's_waitcnt vmcnt({nx2})')
        for k in range(10, 14):
            w_tr(a, k, AS[k - 10])
    a.e('s_waitcnt lgkmcnt(0)')
    a.e(f'{lnc6}:')
    if OPT['prebar']:
        a.e('s_barrier')
    stamp(a, 30)

    def side2(kn):
        if 1 <= kn <= 4:
            return capture(lambda p: w_dma(p, 2, 9 + kn, BS[kn - 1])), 4
        if 6 <= kn <= 9:
            return capture(lambda p: w_tr(p, 4 + kn, BS[kn - 6])), 0
        if kn == 10:
            return ['s_waitcnt lgkmcnt(0)'], 0
        return [], 0

    gemm_poll_main(a, WS_G, 56, 14, 2, 31, gemm2_tail_loads, side=side2 if g2in else None, issued=bool(OPT['xe2']))
    stamp(a, 32)
    gemm2_epilogue(a)
    stamp_clk(a, 61)
    stamp(a, 63)
    stamp_flush(a)
    a.e(f'{lend}:')
    a.e('s_endpgm')
    for emit in STUBS:
        emit()
    del STUBS[:]
    a.raw('kcode_end:')
    emit_gather_table(a, 'ktab_idx')
    nn = a.fast_insert_nops()
    head = f'; @launch grid=(256,1,1) block=(256,1,1) lds={LDS_BYTES}\n'
    head += HEADER
    head += '.amdgcn_target "amdgcn-amd-amdhsa--gfx950"\n.text\n'
    tail = '.section .rodata,"a"\n.p2align 6\n' + descriptor(name)
    if OPT['align']:
        nal = a.align8(head, tail)
        sys.stderr.write(f'alignment: {nal}\n')
    sys.stderr.write(f'instructions: {a.count()}, nops inserted: {nn}\n')
    return head + a.text() + tail


if __name__ == '__main__':
    out = sys.argv[1]
    for arg in sys.argv[2:]:
        if arg == 'stamps':
            OPT['stamps'] = True
        elif arg == 'dbg':
            OPT['stamps'] = True
            OPT['dbgsel'] = [0, 1, 2, 4, 8, 9, 12, 13, 14, 20, 21, 23, 25, 30, 32, 63]
        elif '=' in arg:
            k, v = arg.split('=')
            OPT[k] = int(v)
    open(out, 'w').write(build())
```
